```python
import torch

def _softmax(x, axis=-1):
    return torch.softmax(x, dim=axis)
def _gelu(x):
    return torch.nn.functional.gelu(x, approximate="tanh")
def _silu(x):
    return torch.nn.functional.silu(x)
def _sigmoid(x):
    return torch.sigmoid(x)
def _layernorm(x, axis=-1, eps=1e-5):
    m = x.mean(dim=axis, keepdim=True)
    v = x.var(dim=axis, keepdim=True, unbiased=False)
    return (x - m) / torch.sqrt(v + eps)
def _scatter_add(tgt, idx, src, axis=0):
    return tgt.clone().index_add_(axis, idx, src)
def _segment_sum(src, seg, n):
    out = torch.zeros((n,) + src.shape[1:], dtype=src.dtype)
    return out.index_add_(0, seg, src)
def _pad(x, pw):
    flat = tuple(v for pair in reversed(pw) for v in pair)
    return torch.nn.functional.pad(x, flat)

kernel_name = 'interleave_layers__softmax_full_mha__glu_gated_reglu__prompt'

def setup_inputs():

    _w = (lambda a: (lambda t: t.to(torch.bfloat16) if t.is_floating_point() else t)(torch.as_tensor(a)))
    def _A_setup():
        B, S, D = 1, 2048, 640
        return {
            "x": _w((lambda *s: torch.randn(*s, dtype=torch.bfloat16) * 0.05)(B, S, D)),
            "wqkv": _w((lambda *s: torch.randn(*s, dtype=torch.bfloat16) * 0.05)(D, 3 * D)),
            "wo": _w((lambda *s: torch.randn(*s, dtype=torch.bfloat16) * 0.05)(D, D)),
        }
    _A_in = _A_setup()

    def _B_setup():
        B, S, D, F = 1, 2048, 640, 1536
        return {
            "x": _w((lambda *s: torch.randn(*s, dtype=torch.bfloat16) * 0.05)(B, S, D)),
            "W_gate": _w((lambda *s: torch.randn(*s, dtype=torch.bfloat16) * 0.8)(D, F) * (2.0 / D) ** 0.5),
            "W_up": _w((lambda *s: torch.randn(*s, dtype=torch.bfloat16) * 0.8)(D, F) * (2.0 / D) ** 0.5),
            "W_down": _w((lambda *s: torch.randn(*s, dtype=torch.bfloat16) * 0.8)(F, D) * (1.0 / F) ** 0.5),
        }
    _B_in = _B_setup()

    return {
        "A_x": _A_in["x"],
        "A_wqkv": _A_in["wqkv"],
        "A_wo": _A_in["wo"],
        "B_x": _B_in["x"],
        "B_W_gate": _B_in["W_gate"],
        "B_W_up": _B_in["W_up"],
        "B_W_down": _B_in["W_down"],
    }

def reference(A_x, A_wqkv, A_wo, B_x, B_W_gate, B_W_up, B_W_down):
    def _A_ref(x, wqkv, wo):
        B, S, D = x.shape
        H = 32; Dh = D // H
        qkv = (lambda x, *d: x.permute(*d))((x @ wqkv).reshape(B, S, 3, H, Dh), 2, 0, 3, 1, 4)
        q, k, v = qkv[0], qkv[1], qkv[2]
        scale = Dh ** -0.5
        scores = torch.einsum("bhqd,bhkd->bhqk", q, k) * scale
        p = _softmax(scores, axis=-1)
        o = torch.einsum("bhqk,bhkd->bhqd", p, v)
        return (lambda x, *d: x.permute(*d))(o, 0, 2, 1, 3).reshape(B, S, D) @ wo

    def _B_ref(x, W_gate, W_up, W_down):
        gate = torch.einsum("bsd,df->bsf", x, W_gate)
        up = torch.einsum("bsd,df->bsf", x, W_up)
        gate = gate * (lambda x, dt: x.to(dt))(gate > 0, gate.dtype)
        h = gate * up
        return torch.einsum("bsf,fd->bsd", h, W_down)

    x = A_x
    x = x + _A_ref(_layernorm(x, axis=-1), A_wqkv, A_wo)
    x = x + _B_ref(_layernorm(x, axis=-1), B_W_gate, B_W_up, B_W_down)
    x = x + _A_ref(_layernorm(x, axis=-1), A_wqkv, A_wo)
    x = x + _B_ref(_layernorm(x, axis=-1), B_W_gate, B_W_up, B_W_down)
    return x
```

```python
import re

class Asm:
    def __init__(self):
        self.lines = []
        self._uid = 0
    def __call__(self, s="", *a):
        for l in s.split("\n"):
            l = l.strip()
            if l:
                self.lines.append(l)
    def label(self, name):
        self.lines.append(name + ":")
    def uid(self, p="L"):
        self._uid += 1
        return f"{p}_{self._uid}"
    def nop(self, n):
        while n > 0:
            k = min(n, 16)
            self(f"s_nop {k-1}")
            n -= k
    def text(self):
        out = []
        for l in self.lines:
            if l.endswith(":") or l.startswith(".") or l.startswith(";"):
                out.append(l)
            else:
                out.append("    " + l)
        return "\n".join(out) + "\n"

def v(a, n=1):
    return f"v{a}" if n == 1 else f"v[{a}:{a+n-1}]"
def s(a, n=1):
    return f"s{a}" if n == 1 else f"s[{a}:{a+n-1}]"

_reg = re.compile(r"^-?\|?(?:abs\()?([vsa])(?:(\d+)|\[(\d+):(\d+)\])\)?\|?$")
def regs(tok):
    tok = tok.strip()
    if tok in ("vcc",): return {("s", 106), ("s", 107)}
    if tok == "vcc_lo": return {("s", 106)}
    if tok == "vcc_hi": return {("s", 107)}
    if tok == "exec": return {("s", 126), ("s", 127)}
    if tok == "exec_lo": return {("s", 126)}
    if tok == "exec_hi": return {("s", 127)}
    if tok == "m0": return {("s", 124)}
    m = _reg.match(tok)
    if not m: return set()
    f = m.group(1)
    if m.group(2) is not None: return {(f, int(m.group(2)))}
    return {(f, i) for i in range(int(m.group(3)), int(m.group(4)) + 1)}

TRANS = ("v_exp_f32", "v_log_f32", "v_rcp_f32", "v_rsq_f32", "v_sqrt_f32", "v_sin_f32", "v_cos_f32", "v_rcp_iflag_f32")

class I:
    def __init__(self, line):
        self.line = line
        line = line.split(";")[0].strip()
        parts = line.split(None, 1)
        self.op = parts[0]
        rest = parts[1] if len(parts) > 1 else ""
        ops = [t.strip() for t in rest.split(",")] if rest else []
        if ops:
            last = ops[-1].split()
            self.mods = last[1:]
            ops[-1] = last[0] if last else ""
        else:
            self.mods = []
        self.ops = ops
        op = self.op
        self.w = set(); self.r = set()
        self.kind = "other"
        self.srcC = set(); self.srcAB = set(); self.passes = 0
        self.data = set()
        R = [regs(t) for t in ops]
        if op.startswith("v_mfma"):
            self.kind = "mfma"
            self.w = R[0]; self.srcAB = R[1] | R[2]; self.srcC = R[3]; self.r = self.srcAB | self.srcC
            if "32x32x4_2b" in op: self.passes = 16
            elif "32x32" in op: self.passes = 8
            else: self.passes = 4
        elif op.startswith("v_cmp"):
            self.kind = "valu"; self.w = R[0]; self.r = set().union(*R[1:])
            if op.startswith("v_cmpx"): self.w |= regs("exec")
        elif op.startswith("v_readfirstlane") or op.startswith("v_readlane"):
            self.kind = "valu"; self.w = R[0]; self.r = set().union(*R[1:])
        elif op.startswith("v_permlane"):
            self.kind = "valu"; self.w = R[0] | R[1]; self.r = R[0] | R[1]
        elif op.startswith("v_"):
            self.kind = "valu"
            self.w = R[0]; self.r = set().union(*R[1:]) if len(R) > 1 else set()
            if "_co_" in op:
                self.w |= R[1]; self.r = set().union(*R[2:])
            if op.startswith(("v_fmac", "v_dot2c", "v_mac", "v_writelane")) or "UNUSED_PRESERVE" in line or "fma_mix" in op:
                self.r |= R[0]
            if op.startswith("v_cndmask") and len(ops) == 3: self.r |= regs("vcc")
        elif op.startswith("ds_"):
            self.kind = "ds"
            if "read" in op or "permute" in op or "swizzle" in op:
                self.w = R[0]; self.r = set().union(*R[1:])
            else:
                self.r = set().union(*R); self.data = set().union(*R[1:])
        elif op.startswith("buffer_") or op.startswith("global_"):
            self.kind = "vmem"
            lds = "lds" in self.mods or "_lds_" in op
            if op in ("buffer_inv", "buffer_wbl2"): pass
            elif lds:
                self.r = set().union(*R) | regs("m0"); self.kind = "vmem"; self.lds = True
            elif "load" in op:
                self.w = R[0]; self.r = set().union(*R[1:])
            elif "store" in op:
                self.r = set().union(*R)
                self.data = R[0] if op.startswith("buffer_") else R[1]
            else:
                self.r = set().union(*R)
                if "sc0" in self.mods: self.w = R[0]
        elif op.startswith("s_"):
            self.kind = "salu"
            if op.startswith(("s_cmp", "s_cbranch", "s_branch", "s_waitcnt", "s_barrier", "s_nop", "s_sleep", "s_setprio", "s_endpgm", "s_bitcmp")):
                self.r = set().union(*R) if R else set()
            else:
                self.w = R[0] if R else set(); self.r = set().union(*R[1:]) if len(R) > 1 else set()
                if "saveexec" in op: self.w |= regs("exec")
        self.states = 1
        if op == "s_nop": self.states = int(ops[0], 0) + 1
        self.dpp = any(m.startswith(("row_", "quad_perm", "wave_")) for m in self.mods) or op.endswith("_dpp")
        self.wide_store = self.kind == "vmem" and "store" in op and (op.endswith("x4") or op.endswith("x3"))

def need(p, c):
    n = 0
    vw = {x for x in p.w if x[0] in "va"}
    sw = {x for x in p.w if x[0] == "s"}
    if p.kind == "valu":
        if c.kind == "mfma" and vw & c.r: n = max(n, 2)
        if c.kind == "valu":
            if p.op.split("_e")[0] in TRANS and vw & c.r and c.op.split("_e")[0] not in TRANS: n = max(n, 1)
            if c.op.startswith("v_permlane") and vw & c.r: n = max(n, 2)
            if c.op.startswith(("v_readfirstlane", "v_readlane")) and vw & c.r: n = max(n, 1)
            if c.dpp and vw & c.r: n = max(n, 2)
            if sw & c.r: n = max(n, 2)
            if c.op.startswith(("v_readlane", "v_writelane")) and sw & c.r: n = max(n, 4)
            if p.op.startswith("v_dot") and (vw & (c.r | c.w)):
                if not (c.op == p.op and not (vw & (regs(c.ops[1]) | regs(c.ops[2])))): n = max(n, 3)
            if "sdwa" in p.op or any("op_sel" in m for m in p.mods) and not p.op.startswith("v_pk"):
                if vw & (c.r | c.w): n = max(n, 1)
        if p.op.split("_e")[0] in TRANS and c.kind in ("ds", "vmem") and vw & c.r: n = max(n, 1)
        if c.kind == "vmem" and sw & c.r: n = max(n, 5)
        if regs("exec") & p.w:
            if c.kind == "mfma": n = max(n, 4)
            if c.kind == "valu" and c.op.startswith(("v_readfirstlane", "v_readlane", "v_writelane", "v_permlane")): n = max(n, 4)
            if c.dpp: n = max(n, 5)
    if p.kind == "mfma":
        big = {2: 5, 4: 8, 8: 12, 16: 20}[p.passes]
        ovl = {2: 4, 4: 6, 8: 10, 16: 18}[p.passes]
        war = {2: 1, 4: 3, 8: 7, 16: 15}[p.passes]
        if c.kind == "mfma":
            if p.w & c.srcAB: n = max(n, big)
            if p.w & c.srcC and not (p.w == c.srcC and p.passes == c.passes): n = max(n, ovl)
            if p.w & c.w and not (p.w & c.srcC):
                if p.passes > c.passes: n = max(n, big)
        elif c.kind in ("valu", "ds", "vmem"):
            if p.w & (c.r | c.w): n = max(n, big)
            if c.kind == "valu" and p.srcC & c.w: n = max(n, war)
            if c.kind in ("ds", "vmem") and p.srcC & c.w: n = max(n, war)
    if p.kind == "salu":
        if ("s", 124) in p.w and c.kind == "vmem" and getattr(c, "lds", False): n = max(n, 1)
    if p.wide_store or (p.kind == "ds" and p.op.endswith(("b128", "b96"))):
        if p.data & c.w: n = max(n, 2 if c.kind == "valu" else 1)
    return n

def check(lines, window=24):
    ins = []; labels = {}
    for l in lines:
        if l.startswith(".") and not l.endswith(":") or l.startswith(";"): continue
        if l.endswith(":"):
            labels[l[:-1]] = len(ins); continue
        ins.append(I(l))
    probs = []
    n = len(ins)
    def succ(i):
        op = ins[i].op
        if op == "s_endpgm": return []
        if op == "s_branch": return [labels[ins[i].ops[0]]]
        if op.startswith("s_cbranch"): return [i + 1, labels[ins[i].ops[0]]]
        if op.startswith("s_setpc"): return []
        return [i + 1]
    for i in range(n):
        p = ins[i]
        if not (p.kind in ("valu", "mfma") or p.wide_store or p.kind == "ds" or ("s", 124) in p.w): continue
        stack = [(j, 0) for j in succ(i)]
        seen = {}
        while stack:
            j, d = stack.pop()
            if j >= n or d >= 20: continue
            if j in seen and seen[j] <= d: continue
            seen[j] = d
            c = ins[j]
            k = need(p, c)
            if k > d:
                probs.append(f"need {k} have {d}: [{i}] {p.line}  ->  [{j}] {c.line}")
            for t in succ(j): stack.append((t, d + c.states))
    return probs
```

```python
import sys, math
sys.path.insert(0, "gen")
from asmlib import *

NAME = "interleave_layers__softmax_full_mha__glu_gated_reglu__prompt"
S, D, F, H, DH = 2048, 640, 1536, 32, 20
ACT = S * D * 2
HEADB = 81920
WS_Q = 0
WS_K = WS_Q + ACT
WS_V = WS_K + ACT
WS_O = WS_V + ACT
WS_X1 = WS_O + ACT
WS_X2 = WS_X1 + ACT
WS_H = WS_X2 + ACT
WS_ST0 = WS_H + S * F * 2
WS_ST1 = WS_ST0 + S * 64
WS_ST2 = WS_ST1 + S * 64
WS_CSQ = WS_ST2 + S * 64
WS_CSG = WS_CSQ + 1920 * 4
WS_CSU = WS_CSG + 1536 * 4
WS_END = WS_CSU + 1536 * 4
WS_SIZE = 268435456
QSCALE = (DH ** -0.5) * math.log2(math.e)

import struct
def f32(x): return "0x%08x" % struct.unpack("<I", struct.pack("<f", x))[0]

P_X, P_WQKV, P_WO, P_BX, P_WG, P_WU, P_WD, P_OUT, P_DBG, P_WS = 16, 18, 20, 22, 24, 26, 28, 30, 32, 34
sG, sR, sW, sL = 4, 5, 6, 3
R_A, R_W, R_W2, R_WS, R_RES, R_DST = 36, 40, 44, 48, 52, 56
T = 60

def srd(a, r, ptr, size, off=0):
    if off:
        a(f"s_add_u32 s{r}, s{ptr}, {off}")
        a(f"s_addc_u32 s{r+1}, s{ptr+1}, 0")
    else:
        a(f"s_mov_b32 s{r}, s{ptr}")
        a(f"s_mov_b32 s{r+1}, s{ptr+1}")
    a(f"s_mov_b32 s{r+2}, {size}")
    a(f"s_mov_b32 s{r+3}, 0x20000")

def srd_sel(a, r, ptr0, off0, ptr1, off1, size):
    a(f"s_cmp_eq_u32 s{sL}, 0")
    a(f"s_cselect_b32 s{r}, s{ptr0}, s{ptr1}")
    a(f"s_cselect_b32 s{r+1}, s{ptr0+1}, s{ptr1+1}")
    a(f"s_cselect_b32 s{r+2}, {off0}, {off1}" if (off0 == 0 or off1 == 0) else f"ERR")
    a(f"s_add_u32 s{r}, s{r}, s{r+2}")
    a(f"s_addc_u32 s{r+1}, s{r+1}, 0")
    a(f"s_mov_b32 s{r+2}, {size}")
    a(f"s_mov_b32 s{r+3}, 0x20000")

def prologue(a, exit_label):
    a(f"""
    s_load_dwordx16 s[16:31], s[0:1], 0
    s_load_dwordx4 s[32:35], s[0:1], 64
    s_cmp_ge_u32 s2, 256
    s_cbranch_scc1 {exit_label}
    s_and_b32 s{sG}, s2, 7
    s_lshr_b32 s{sR}, s2, 3
    v_lshrrev_b32 v1, 6, v0
    v_and_b32 v0, 63, v0
    v_readfirstlane_b32 s{sW}, v1
    s_waitcnt lgkmcnt(0)
    """)
    srd(a, R_WS, P_WS, WS_END)

def interleave(a, mf, other, lead=0):
    n = len(mf)
    k = 0
    for i, m in enumerate(mf):
        a(m)
        tgt = (len(other) * (i + 1) + n - 1) // n
        while k < tgt:
            a(other[k]); k += 1

def loader_loop(a, n, nslots, per, issue, pre=None):
    cnt = T + 20
    l1 = a.uid("ldp"); l2 = a.uid("lds")
    a(f"s_mov_b32 s{cnt}, {min(nslots, n)}")
    a.label(l1)
    issue()
    a(f"s_sub_u32 s{cnt}, s{cnt}, 1\ns_cmp_lg_u32 s{cnt}, 0\ns_cbranch_scc1 {l1}")
    a(f"s_waitcnt vmcnt({(nslots-1)*per})\ns_barrier")
    if n - nslots >= 1:
        a(f"s_mov_b32 s{cnt}, {n-nslots}")
        a.label(l2)
        a(f"s_waitcnt vmcnt({(nslots-2)*per})\ns_barrier")
        issue()
        a(f"s_sub_u32 s{cnt}, s{cnt}, 1\ns_cmp_lg_u32 s{cnt}, 0\ns_cbranch_scc1 {l2}")
    for c in range(n - nslots + 1, n):
        a(f"s_waitcnt vmcnt({(n-1-c)*per})\ns_barrier")

def dma(a, vaddr, rsrc, soff, m0expr, bits=""):
    a(m0expr)
    a(soff[1])
    a(f"buffer_load_dwordx4 v{vaddr}, s[{rsrc}:{rsrc+3}], {soff[0]} offen {bits} lds")

def row_stats(a, vst, vmean, vrstd):
    for i in range(1, 8):
        a(f"v_add_f32 v{vst}, v{vst}, v{vst+2*i}")
        a(f"v_add_f32 v{vst+1}, v{vst+1}, v{vst+2*i+1}")
    a(f"v_mul_f32 v{vmean}, {f32(1.0/D)}, v{vst}")
    a(f"v_mul_f32 v{vst+1}, {f32(1.0/D)}, v{vst+1}")
    a(f"v_fma_f32 v{vst+1}, -v{vmean}, v{vmean}, v{vst+1}")
    a(f"v_max_f32 v{vst+1}, 0, v{vst+1}")
    a(f"v_add_f32 v{vst+1}, {f32(1e-5)}, v{vst+1}")
    a(f"v_rsq_f32 v{vrstd}, v{vst+1}")
    a("s_nop 0")

def phase_prep(a):
    done = a.uid("prep_done")
    stats = a.uid("prep_stats")
    a(f"s_cmp_ge_u32 s2, 156\ns_cbranch_scc1 {stats}")
    t = T
    a(f"""
    s_cmp_lt_u32 s2, 108
    s_cselect_b32 s{R_W}, s{P_WG}, s{P_WU}
    s_cselect_b32 s{R_W+1}, s{P_WG+1}, s{P_WU+1}
    s_cselect_b32 s{t}, 60, 108
    s_cmp_lt_u32 s2, 60
    s_cselect_b32 s{R_W}, s{P_WQKV}, s{R_W}
    s_cselect_b32 s{R_W+1}, s{P_WQKV+1}, s{R_W+1}
    s_cselect_b32 s{t}, 0, s{t}
    s_movk_i32 s{t+2}, 3072
    s_cselect_b32 s{t+1}, 3840, s{t+2}
    s_mul_i32 s{R_W+2}, s{t+1}, 640
    s_mov_b32 s{R_W+3}, 0x20000
    s_sub_u32 s{t}, s2, s{t}
    s_lshl_b32 s{t}, s{t}, 6
    s_mul_i32 s{t+2}, s{sW}, 80
    v_lshrrev_b32 v1, 2, v0
    v_add_u32 v1, s{t+2}, v1
    v_mul_lo_u32 v1, v1, s{t+1}
    v_and_b32 v2, 3, v0
    v_lshl_add_u32 v1, v2, 4, v1
    s_lshl_b32 s{t+1}, s{t+1}, 4
    """)
    for i in range(5):
        a(f"buffer_load_dwordx4 v[{8+4*i}:{11+4*i}], v1, s[{R_W}:{R_W+3}], s{t} offen")
        if i < 4: a(f"s_add_u32 s{t}, s{t}, s{t+1}")
    a(f"s_mov_b32 s{t+3}, 0xffff0000")
    for i in range(5):
        a(f"s_waitcnt vmcnt({4-i})")
        for j in range(4):
            src = 8 + 4*i + j
            if i == 0:
                a(f"v_lshlrev_b32 v{32+2*j}, 16, v{src}")
                a(f"v_and_b32 v{33+2*j}, s{t+3}, v{src}")
            else:
                a(f"v_lshlrev_b32 v3, 16, v{src}")
                a(f"v_and_b32 v4, s{t+3}, v{src}")
                a(f"v_add_f32 v{32+2*j}, v{32+2*j}, v3")
                a(f"v_add_f32 v{33+2*j}, v{33+2*j}, v4")
    a("s_nop 1")
    for rot in (4, 8):
        for j in range(8):
            a(f"v_add_f32_dpp v{32+j}, v{32+j}, v{32+j} row_ror:{rot} row_mask:0xf bank_mask:0xf")
        a("s_nop 1")
    a(f"""
    v_lshrrev_b32 v1, 4, v0
    s_lshl_b32 s{t}, s{sW}, 2
    v_add_u32 v1, s{t}, v1
    v_lshlrev_b32 v1, 7, v1
    v_lshl_add_u32 v1, v2, 5, v1
    ds_write_b128 v1, v[32:35]
    ds_write_b128 v1, v[36:39] offset:16
    s_waitcnt lgkmcnt(0)
    s_barrier
    s_cmp_lg_u32 s{sW}, 0
    s_cbranch_scc1 {done}
    v_and_b32 v1, 31, v0
    v_lshrrev_b32 v2, 5, v0
    v_lshlrev_b32 v2, 11, v2
    v_lshl_add_u32 v2, v1, 2, v2
    """)
    for i in range(16):
        a(f"ds_read_b32 v{8+i}, v2 offset:{128*i}")
    a("s_waitcnt lgkmcnt(0)")
    for i in range(1, 16):
        a(f"v_add_f32 v8, v8, v{8+i}")
    a(f"""
    v_mov_b32 v9, v8
    s_nop 1
    v_permlane32_swap_b32 v8, v9
    s_nop 1
    v_add_f32 v8, v8, v9
    s_lshl_b32 s{t}, s2, 7
    s_add_u32 s{t}, s{t}, {WS_CSQ}
    v_lshlrev_b32 v1, 2, v1
    buffer_store_dword v8, v1, s[{R_WS}:{R_WS+3}], s{t} offen
    s_branch {done}
    """)
    a.label(stats)
    a(f"s_cmp_ge_u32 s2, 188\ns_cbranch_scc1 {done}")
    srd(a, R_A, P_X, ACT)
    a(f"""
    s_sub_u32 s{t}, s2, 156
    s_lshl_b32 s{t}, s{t}, 3
    s_add_u32 s{t}, s{t}, s{sW}
    s_mul_i32 s{t+1}, s{t}, {8*1280}
    v_lshrrev_b32 v1, 3, v0
    v_mul_u32_u24 v1, 1280, v1
    v_and_b32 v2, 7, v0
    v_lshl_add_u32 v1, v2, 4, v1
    """)
    for i in range(10):
        a(f"buffer_load_dwordx4 v[{8+4*i}:{11+4*i}], v1, s[{R_A}:{R_A+3}], s{t+1} offen offset:{128*i}")
    a(f"s_mov_b32 s{t+3}, 0xffff0000\nv_mov_b32 v6, 0\nv_mov_b32 v7, 0")
    for i in range(10):
        a(f"s_waitcnt vmcnt({9-i})")
        for j in range(4):
            src = 8 + 4*i + j
            a(f"v_lshlrev_b32 v3, 16, v{src}")
            a(f"v_and_b32 v4, s{t+3}, v{src}")
            a(f"v_add_f32 v6, v6, v3\nv_fmac_f32 v7, v3, v3\nv_add_f32 v6, v6, v4\nv_fmac_f32 v7, v4, v4")
    a(f"""
    s_lshl_b32 s{t}, s{t}, 9
    s_add_u32 s{t}, s{t}, {WS_ST0}
    v_lshlrev_b32 v1, 3, v0
    buffer_store_dwordx2 v[6:7], v1, s[{R_WS}:{R_WS+3}], s{t} offen
    """)
    a.label(done)

def phase_qkv(a):
    done = a.uid("qkv_done"); ld = a.uid("qkv_ld")
    t = T
    sRT, sCT, sTY, sC0 = t, t+1, t+2, t+3
    NS, SLOT = 4, 32768
    STAT = NS * SLOT
    a(f"""
    s_cmp_ge_u32 s{sR}, 30
    s_cbranch_scc1 {done}
    s_cmp_ge_u32 s{sR}, 15
    s_cselect_b32 s{sRT}, 1, 0
    s_cselect_b32 s{sCT}, 15, 0
    s_sub_u32 s{sCT}, s{sR}, s{sCT}
    s_lshl_b32 s{t+4}, s{sG}, 1
    s_add_u32 s{sRT}, s{sRT}, s{t+4}
    s_cmp_ge_u32 s{sW}, 4
    s_cbranch_scc1 {ld}
    """)
    sWM, sWN = t+5, t+6
    a(f"""
    s_mul_i32 s{sTY}, s{sCT}, 52
    s_lshr_b32 s{sTY}, s{sTY}, 8
    s_mul_i32 s{sC0}, s{sTY}, 5
    s_sub_u32 s{sC0}, s{sCT}, s{sC0}
    s_lshl_b32 s{sC0}, s{sC0}, 7
    s_and_b32 s{sWM}, s{sW}, 1
    s_lshr_b32 s{sWN}, s{sW}, 1
    """)
    ACC = 128; FR = 16
    VST = 80
    VCS = 96
    a(f"""
    s_lshl_b32 s{t+7}, s{sRT}, 7
    s_lshl_b32 s{t+8}, s{sWM}, 6
    s_add_u32 s{t+7}, s{t+7}, s{t+8}
    s_lshl_b32 s{t+7}, s{t+7}, 6
    s_cmp_eq_u32 s{sL}, 0
    s_mov_b32 s{t+8}, {WS_ST2}
    s_cselect_b32 s{t+8}, {WS_ST0}, s{t+8}
    s_add_u32 s{t+7}, s{t+7}, s{t+8}
    v_lshlrev_b32 v1, 6, v0
    """)
    for i in range(4):
        a(f"buffer_load_dwordx4 v[{VST+4*i}:{VST+4*i+3}], v1, s[{R_WS}:{R_WS+3}], s{t+7} offen offset:{16*i}")
    a(f"""
    s_lshl_b32 s{t+7}, s{sCT}, 7
    s_lshl_b32 s{t+8}, s{sWN}, 6
    s_add_u32 s{t+7}, s{t+7}, s{t+8}
    s_lshl_b32 s{t+7}, s{t+7}, 2
    s_add_u32 s{t+7}, s{t+7}, {WS_CSQ}
    v_lshrrev_b32 v14, 5, v0
    v_and_b32 v15, 31, v0
    v_lshlrev_b32 v1, 4, v14
    """)
    for tn in range(2):
        for q in range(4):
            r = VCS + 16*tn + 4*q
            a(f"buffer_load_dwordx4 v[{r}:{r+3}], v1, s[{R_WS}:{R_WS+3}], s{t+7} offen offset:{(32*tn+8*q)*4}")
    a(f"v_lshlrev_b32 v1, 2, v15")
    VCV = 192
    for tn in range(2):
        a(f"buffer_load_dword v{VCV+tn}, v1, s[{R_WS}:{R_WS+3}], s{t+7} offen offset:{128*tn}")
    a(f"""
    s_lshl_b32 s{t+7}, s{sWM}, 13
    v_lshlrev_b32 v1, 7, v15
    v_add_u32 v1, s{t+7}, v1
    v_bfe_u32 v8, v0, 1, 3
    v_xor_b32 v8, v8, v14
    """)
    for kk in range(4):
        a(f"v_xor_b32 v9, {2*kk}, v8\nv_lshl_add_u32 v{2+kk}, v9, 4, v1")
    a(f"""
    v_bfe_u32 v8, v0, 2, 2
    v_lshl_add_u32 v9, v14, 3, v8
    v_lshlrev_b32 v9, 8, v9
    v_bfe_u32 v10, v0, 4, 1
    v_lshl_add_u32 v9, v10, 5, v9
    v_and_b32 v10, 3, v0
    v_lshl_add_u32 v9, v10, 3, v9
    v_add_u32 v9, 16384, v9
    s_lshl_b32 s{t+7}, s{sWN}, 1
    v_xor_b32 v8, s{t+7}, v8
    v_lshl_add_u32 v6, v8, 6, v9
    v_xor_b32 v8, 1, v8
    v_lshl_add_u32 v7, v8, 6, v9
    """)
    for i in range(6): a(f"v_mov_b32 v{8+i}, v{2+i}")
    for i in range(64): a(f"v_mov_b32 v{ACC+i}, 0")
    for i in range(16): a(f"v_mov_b32 v{FR+48+i}, 0")
    def reads(kk):
        b = FR + 16*kk
        r = []
        for tm in range(2):
            r.append(f"ds_read_b128 v[{b+4*tm}:{b+4*tm+3}], v{8+kk} offset:{4096*tm}")
        for tn in range(2):
            for j in range(2):
                d = b + 8 + 4*tn + 2*j
                r.append(f"ds_read_b64_tr_b16 v[{d}:{d+1}], v{12+tn} offset:{4096*kk+1024*j}")
        return r
    def mfmas(kk, vtype):
        b = FR + 16*kk
        m = []
        for tn in range(2):
            for tm in range(2):
                c = ACC + 16*(2*tn + tm)
                X = v(b + 4*tm, 4); W = v(b + 8 + 4*tn, 4)
                A, B = (X, W) if vtype else (W, X)
                m.append(f"v_mfma_f32_32x32x16_bf16 {v(c,16)}, {A}, {B}, {v(c,16)}")
        return m
    sC, sSl = t+9, t+10
    vlab = a.uid("qkv_v"); epi_v = a.uid("qkv_epv")
    a(f"s_mov_b32 s{sC}, 10\ns_mov_b32 s{sSl}, 0")
    a(f"s_cmp_eq_u32 s{sTY}, 2\ns_cbranch_scc1 {vlab}")
    def mainloop(vtype):
        lp = a.uid("qkv_loop")
        a.label(lp)
        a("s_barrier")
        interleave(a, mfmas(3, vtype), reads(0) + reads(1))
        a("s_waitcnt lgkmcnt(6)")
        interleave(a, mfmas(0, vtype), reads(2))
        a("s_waitcnt lgkmcnt(6)")
        interleave(a, mfmas(1, vtype), reads(3))
        a("s_waitcnt lgkmcnt(6)")
        upd = [f"s_add_u32 s{sSl}, s{sSl}, {SLOT}", f"s_and_b32 s{sSl}, s{sSl}, {NS*SLOT-1}"] + \
              [f"v_add_u32 v{8+i}, s{sSl}, v{2+i}" for i in range(6)] + [f"s_sub_u32 s{sC}, s{sC}, 1"]
        interleave(a, mfmas(2, vtype), upd)
        a(f"s_waitcnt lgkmcnt(0)\ns_cmp_lg_u32 s{sC}, 0\ns_cbranch_scc1 {lp}")
        for m in mfmas(3, vtype): a(m)
    mainloop(False)
    a("s_waitcnt vmcnt(0)")
    row_stats(a, VST, 16, 17)
    a(f"""
    s_cmp_eq_u32 s{sTY}, 0
    s_cselect_b32 s{t+7}, {f32(QSCALE)}, 1.0
    v_mul_f32 v17, s{t+7}, v17
    v_mov_b32 v18, v16
    v_mov_b32 v19, v17
    s_nop 1
    v_permlane32_swap_b32 v16, v18
    v_permlane32_swap_b32 v17, v19
    """)
    a(f"""
    s_mul_i32 s{t+7}, s{sTY}, {ACT}
    s_lshl_b32 s{t+8}, s{sRT}, 2
    s_lshl_b32 s{t+11}, s{sWM}, 1
    s_add_u32 s{t+8}, s{t+8}, s{t+11}
    s_mul_i32 s{t+8}, s{t+8}, 1280
    s_add_u32 s{t+7}, s{t+7}, s{t+8}
    s_add_u32 s{t+7}, s{t+7}, {WS_Q}
    s_lshr_b32 s{t+8}, s{sC0}, 2
    s_lshl_b32 s{t+11}, s{sWN}, 4
    s_add_u32 s{t+8}, s{t+8}, s{t+11}
    v_add_u32 v20, s{t+8}, v14
    v_lshlrev_b32 v21, 4, v15
    v_lshlrev_b32 v22, 3, v15
    v_add_u32 v22, 1024, v22
    s_mov_b32 s{t+12}, {HEADB}
    """)
    for tn in range(2):
        for q in range(4):
            a(f"""
            v_add_u32 v23, {8*tn+2*q}, v20
            v_mul_u32_u24 v24, 205, v23
            v_lshrrev_b32 v24, 10, v24
            v_mad_i32_i24 v23, v24, -5, v23
            v_lshrrev_b32 v25, 1, v23
            v_lshl_add_u32 v25, v25, 9, v21
            v_and_b32 v26, 1, v23
            v_lshl_add_u32 v25, v26, 3, v25
            v_cmp_eq_u32 vcc, 4, v23
            v_mul_lo_u32 v24, v24, s{t+12}
            s_nop 0
            v_cndmask_b32 v25, v25, v22, vcc
            v_add_u32 v25, v25, v24
            """)
            for tm in range(2):
                c = ACC + 16*(2*tn + tm) + 4*q
                cs = VCS + 16*tn + 4*q
                o = 28 + 6*tm
                for i in range(4):
                    a(f"v_fma_f32 v{o+i}, -v{16+2*tm}, v{cs+i}, v{c+i}")
                for i in range(4):
                    a(f"v_mul_f32 v{o+i}, v{17+2*tm}, v{o+i}")
                a(f"v_cvt_pk_bf16_f32 v{o+4}, v{o}, v{o+1}\nv_cvt_pk_bf16_f32 v{o+5}, v{o+2}, v{o+3}")
                a(f"buffer_store_dwordx2 v[{o+4}:{o+5}], v25, s[{R_WS}:{R_WS+3}], s{t+7} offen offset:{1280*tm}")
    a(f"s_branch {done}")
    a.label(vlab)
    mainloop(True)
    a("s_waitcnt vmcnt(0)")
    row_stats(a, VST, 16, 17)
    a(f"""
    s_lshl_b32 s{t+7}, s{sW}, 9
    s_add_u32 s{t+7}, s{t+7}, {STAT}
    v_lshlrev_b32 v1, 2, v0
    v_add_u32 v1, s{t+7}, v1
    ds_write_b32 v1, v16
    ds_write_b32 v1, v17 offset:256
    v_lshlrev_b32 v1, 4, v14
    v_add_u32 v1, s{t+7}, v1
    s_waitcnt lgkmcnt(0)
    """)
    VM, VR = 32, 64
    for tm in range(2):
        for q in range(4):
            a(f"ds_read_b128 v[{VM+16*tm+4*q}:{VM+16*tm+4*q+3}], v1 offset:{(32*tm+8*q)*4}")
            a(f"ds_read_b128 v[{VR+16*tm+4*q}:{VR+16*tm+4*q+3}], v1 offset:{256+(32*tm+8*q)*4}")
    a(f"""
    s_lshl_b32 s{t+8}, s{sRT}, 3
    s_lshl_b32 s{t+11}, s{sWM}, 2
    s_add_u32 s{t+8}, s{t+8}, s{t+11}
    s_mul_i32 s{t+7}, s{t+8}, 640
    s_add_u32 s{t+7}, s{t+7}, {WS_V}
    s_lshl_b32 s{t+11}, s{sWN}, 6
    s_add_u32 s{t+8}, s{sC0}, s{t+11}
    v_add_u32 v20, s{t+8}, v15
    v_mul_u32_u24 v21, 320, v14
    s_mov_b32 s{t+12}, {HEADB}
    s_movk_i32 s{t+13}, 3277
    s_movk_i32 s{t+14}, -20
    """)
    for tn in range(2):
        a(f"""
        v_add_u32 v23, {32*tn}, v20
        v_mul_u32_u24 v24, s{t+13}, v23
        v_lshrrev_b32 v24, 16, v24
        v_mad_i32_i24 v23, v24, s{t+14}, v23
        v_lshl_add_u32 v23, v23, 4, v21
        v_mul_lo_u32 v24, v24, s{t+12}
        v_add_u32 v{18+tn}, v23, v24
        """)
    a("s_waitcnt lgkmcnt(0)")
    for tn in range(2):
        for tm in range(2):
            c = ACC + 16*(2*tn + tm)
            for i in range(16):
                a(f"v_fma_f32 v{c+i}, -v{VM+16*tm+i}, v{VCV+tn}, v{c+i}")
            for i in range(16):
                a(f"v_mul_f32 v{c+i}, v{VR+16*tm+i}, v{c+i}")
            o = 96 + 8*(2*tn+tm)
            for i in range(8):
                a(f"v_cvt_pk_bf16_f32 v{o+i}, v{c+2*i}, v{c+2*i+1}")
            for b in range(2):
                a(f"buffer_store_dwordx4 v[{o+4*b}:{o+4*b+3}], v{18+tn}, s[{R_WS}:{R_WS+3}], s{t+7} offen offset:{640*(2*tm+b)}")
    a(f"s_branch {done}")
    a.label(ld)
    srd_sel(a, R_A, P_X, 0, P_WS, WS_X2, ACT)
    srd(a, R_W, P_WQKV, D*3*D*2)
    sLW, sAo, sWo, sM, sTmp = t+5, t+6, t+7, t+8, t+9
    a(f"""
    s_sub_u32 s{sLW}, s{sW}, 4
    v_lshrrev_b32 v1, 3, v0
    v_mul_u32_u24 v1, 1280, v1
    v_lshrrev_b32 v2, 4, v0
    v_and_b32 v3, 7, v0
    v_xor_b32 v3, v3, v2
    v_lshl_add_u32 v4, v3, 4, v1
    v_xor_b32 v3, 4, v3
    v_lshl_add_u32 v5, v3, 4, v1
    v_mul_u32_u24 v1, 3840, v2
    v_lshlrev_b32 v2, 2, v2
    v_and_b32 v3, 15, v0
    v_xor_b32 v3, v3, v2
    v_lshl_add_u32 v6, v3, 4, v1
    s_lshl_b32 s{sAo}, s{sRT}, 2
    s_add_u32 s{sAo}, s{sAo}, s{sLW}
    s_mul_i32 s{sAo}, s{sAo}, {32*1280}
    s_mul_i32 s{sWo}, s{sLW}, {16*3840}
    s_lshl_b32 s{sTmp}, s{sCT}, 8
    s_add_u32 s{sWo}, s{sWo}, s{sTmp}
    s_lshl_b32 s{sM}, s{sLW}, 12
    """)
    def issue():
        for i in range(4):
            dma(a, 4 + (i & 1), R_A, (f"s{sTmp}", f"s_add_u32 s{sTmp}, s{sAo}, {i*8*1280}"), f"s_add_u32 m0, s{sM}, {1024*i}")
        for i in range(4):
            dma(a, 6, R_W, (f"s{sTmp}", f"s_add_u32 s{sTmp}, s{sWo}, {i*4*3840}"), f"s_add_u32 m0, s{sM}, {16384+1024*i}")
        a(f"""
        s_add_u32 s{sAo}, s{sAo}, 128
        s_add_u32 s{sWo}, s{sWo}, {64*3840}
        s_add_u32 s{sM}, s{sM}, {SLOT}
        s_and_b32 s{sM}, s{sM}, {NS*SLOT-1}
        """)
    loader_loop(a, 10, NS, 8, issue)
    a.label(done)

def phase_attn(a):
    t = T
    NCH = 4; CH = 20480; NS = 4
    sQP, sKH, sKo, sM, sTmp, sC = t, t+1, t+2, t+3, t+4, t+5
    sEX = t+6
    QA, QB = 16, 22
    NM = 32
    SS = 64
    PP = 96
    OO = 112
    KF = 144
    VF = 160
    vK, vK8, vV = 2, 3, 4
    a(f"""
    s_and_b32 s{sQP}, s{sW}, 3
    s_lshr_b32 s{sKH}, s{sW}, 2
    v_lshrrev_b32 v14, 5, v0
    v_and_b32 v15, 31, v0
    v_lshlrev_b32 v5, 4, v0
    s_mul_i32 s{sKo}, s{sR}, {HEADB}
    """)
    a(f"""
    s_lshl_b32 s{sTmp}, s{sG}, 3
    s_lshl_b32 s{sC}, s{sQP}, 1
    s_add_u32 s{sTmp}, s{sTmp}, s{sC}
    s_mul_i32 s{sTmp}, s{sTmp}, 1280
    s_add_u32 s{sTmp}, s{sTmp}, s{sKo}
    s_add_u32 s{sTmp}, s{sTmp}, {WS_Q}
    v_lshlrev_b32 v6, 3, v15
    buffer_load_dwordx4 v[{QA}:{QA+3}], v5, s[{R_WS}:{R_WS+3}], s{sTmp} offen
    buffer_load_dwordx2 v[{QA+4}:{QA+5}], v6, s[{R_WS}:{R_WS+3}], s{sTmp} offen offset:1024
    buffer_load_dwordx4 v[{QB}:{QB+3}], v5, s[{R_WS}:{R_WS+3}], s{sTmp} offen offset:1280
    buffer_load_dwordx2 v[{QB+4}:{QB+5}], v6, s[{R_WS}:{R_WS+3}], s{sTmp} offen offset:{1280+1024}
    """)
    a(f"""
    s_mul_i32 s{sTmp}, s{sKH}, 40960
    s_add_u32 s{sKo}, s{sKo}, s{sTmp}
    s_and_b32 s{sTmp}, s{sQP}, 1
    s_mul_i32 s{sTmp}, s{sTmp}, 5120
    s_add_u32 s{sKo}, s{sKo}, s{sTmp}
    s_cmp_ge_u32 s{sQP}, 2
    s_mov_b32 s{sTmp}, {WS_K}
    s_cselect_b32 s{sTmp}, {WS_V}, s{sTmp}
    s_add_u32 s{sKo}, s{sKo}, s{sTmp}
    s_mul_i32 s{sM}, s{sKH}, {NCH*CH}
    s_mul_i32 s{sTmp}, s{sQP}, 5120
    s_add_u32 s{sM}, s{sM}, s{sTmp}
    """)
    def issue():
        a(f"s_mov_b32 m0, s{sM}")
        a(f"s_add_u32 s{sM}, s{sM}, {CH}")
        for i in range(4):
            a(f"buffer_load_dwordx4 v5, s[{R_WS}:{R_WS+3}], s{sKo} offen offset:{1024*i} lds")
        a(f"s_add_u32 m0, m0, 4096\ns_add_u32 s{sTmp}, s{sKo}, 4096")
        a(f"buffer_load_dwordx4 v5, s[{R_WS}:{R_WS+3}], s{sTmp} offen lds")
        a(f"s_add_u32 s{sKo}, s{sKo}, 10240")
    issue(); issue()
    a(f"""
    s_mul_i32 s{sTmp}, s{sKH}, {NCH*CH}
    v_add_u32 v{vK}, s{sTmp}, v5
    v_add_u32 v{vK8}, s{sTmp}, v6
    v_mul_u32_u24 v7, 320, v14
    v_lshl_add_u32 v7, v15, 4, v7
    v_add_u32 v{vV}, s{sTmp}, v7
    s_mov_b32 s{sEX}, 0x000fffff
    s_mov_b32 s{sEX+1}, 0x000fffff
    """)
    for i in range(16): a(f"v_mov_b32 v{VF+i}, 0x3f803f80")
    for i in range(32): a(f"v_mov_b32 v{OO+i}, 0")
    for i in range(8): a(f"v_mov_b32 v{PP+8+i}, 0")
    a("s_waitcnt vmcnt(10)")
    a(f"""
    v_cmp_gt_u32 vcc, 32, v0
    s_nop 1
    v_cndmask_b32 v{QA+4}, 0, v{QA+4}, vcc
    v_cndmask_b32 v{QA+5}, 0, v{QA+5}, vcc
    v_cndmask_b32 v{QB+4}, 0, v{QB+4}, vcc
    v_cndmask_b32 v{QB+5}, 0, v{QB+5}, vcc
    s_waitcnt vmcnt(5)
    s_barrier
    """)
    def rdK(st, kt):
        off = (kt % 8) * 1280 + (kt // 8) * CH
        b = KF + 8*st
        return [f"ds_read_b128 v[{b}:{b+3}], v{vK} offset:{off}",
                f"ds_read_b64 v[{b+4}:{b+5}], v{vK8} offset:{off+1024}"]
    def rdV(st, kt):
        off = 10240 + kt * 1280
        b = VF + 8*st
        return [f"s_mov_b64 exec, s[{sEX}:{sEX+1}]",
                f"ds_read_b128 v[{b}:{b+3}], v{vV} offset:{off}",
                f"ds_read_b128 v[{b+4}:{b+7}], v{vV} offset:{off+640}",
                f"s_mov_b64 exec, -1"]
    def qk(x, st, c=None):
        b = KF + 8*st; q = (QA, QB)[x]; sd = SS + 16*x
        cc = v(NM + 16*x, 16) if c is None else c
        return [f"v_mfma_f32_32x32x16_bf16 {v(sd,16)}, {v(b,4)}, {v(q,4)}, {cc}",
                f"v_mfma_f32_32x32x8_bf16 {v(sd,16)}, {v(b+4,2)}, {v(q+4,2)}, {v(sd,16)}"]
    def pv(x, st):
        b = VF + 8*st; p = PP + 8*x; o = OO + 16*x
        return [f"v_mfma_f32_32x32x16_bf16 {v(o,16)}, {v(b,4)}, {v(p,4)}, {v(o,16)}",
                f"v_mfma_f32_32x32x16_bf16 {v(o,16)}, {v(b+4,4)}, {v(p+4,4)}, {v(o,16)}"]
    def sm(x):
        sd = SS + 16*x; p = PP + 8*x
        r = []
        for i in range(8):
            r.append(f"v_exp_f32 v{sd+2*i}, v{sd+2*i}")
            r.append(f"v_exp_f32 v{sd+2*i+1}, v{sd+2*i+1}")
            if i > 0: r.append(f"v_cvt_pk_bf16_f32 v{p+i-1}, v{sd+2*i-2}, v{sd+2*i-1}")
        r.append("s_nop 0")
        r.append(f"v_cvt_pk_bf16_f32 v{p+7}, v{sd+14}, v{sd+15}")
        return r
    for x in rdK(0, 0): a(x)
    a("s_waitcnt lgkmcnt(0)")
    for x in range(2):
        for m in qk(x, 0, "0"): a(m)
    a.nop(12)
    for x in range(2):
        sd = SS + 16*x
        a(f"v_max3_f32 v{8+x}, v{sd}, v{sd+1}, v{sd+2}")
        for i in range(3, 15, 2):
            a(f"v_max3_f32 v{8+x}, v{8+x}, v{sd+i}, v{sd+i+1}")
        a(f"v_max_f32 v{8+x}, v{8+x}, v{sd+15}")
        a(f"v_mov_b32 v{10+x}, v{8+x}")
    a("s_nop 1")
    for x in range(2):
        a(f"v_permlane32_swap_b32 v{8+x}, v{10+x}")
    a("s_nop 1")
    for x in range(2):
        a(f"v_max_f32 v{8+x}, v{8+x}, v{10+x}")
    for x in range(2):
        for i in range(16):
            a(f"v_sub_f32 v{NM+16*x+i}, 0, v{8+x}")
    a("s_nop 1")
    for m in qk(0, 0): a(m)
    a(f"s_mov_b32 s{sC}, 0")
    lp = a.uid("att_loop"); nodma = a.uid("att_nodma"); nobar = a.uid("att_nobar")
    a.nop(8)
    a.label(lp)
    a(f"s_cmp_ge_u32 s{sC}, {NCH-2}\ns_cbranch_scc1 {nodma}")
    issue()
    a.label(nodma)
    for kt in range(8):
        st = kt & 1
        val = sm(0)
        if kt == 7:
            pre = [f"s_cmp_ge_u32 s{sC}, {NCH-1}", f"s_cbranch_scc1 {nobar}",
                   f"s_cmp_ge_u32 s{sC}, {NCH-2}", f"s_cbranch_scc1 {nobar}_w0",
                   "s_waitcnt vmcnt(5)", f"{nobar}_w1:", "s_barrier", f"{nobar}:"]
            for x in pre:
                if x.endswith(":"): a.label(x[:-1])
                else: a(x)
        mf = qk(1, st) + pv(1, st ^ 1)
        ex = rdV(st, kt) + rdK(st ^ 1, kt + 1)
        a(mf[0]); [a(x) for x in ex[:4]]; [a(x) for x in val[0:6]]
        a(mf[1]); [a(x) for x in ex[4:]]; [a(x) for x in val[6:12]]
        a(mf[2]); [a(x) for x in val[12:18]]
        a(mf[3]); [a(x) for x in val[18:]]
        val = sm(1)
        mf = qk(0, st ^ 1) + pv(0, st)
        a("s_waitcnt lgkmcnt(0)")
        a(mf[0]); [a(x) for x in val[0:6]]
        a(mf[1]); [a(x) for x in val[6:12]]
        a(mf[2]); [a(x) for x in val[12:18]]
        a(mf[3]); [a(x) for x in val[18:]]
    a(f"""
    v_add_u32 v{vK}, {CH}, v{vK}
    v_add_u32 v{vK8}, {CH}, v{vK8}
    v_add_u32 v{vV}, {CH}, v{vV}
    s_add_u32 s{sC}, s{sC}, 1
    s_cmp_lt_u32 s{sC}, {NCH}
    s_cbranch_scc1 {lp}
    """)
    for m in pv(1, 1): a(m)
    fb = a.uid("att_fb"); comb = a.uid("att_comb"); done = a.uid("att_done")
    a.nop(12)
    a(f"v_mul_f32 v10, {f32(2.0**63)}, v{OO+12}\nv_mul_f32 v11, {f32(2.0**63)}, v{OO+16+12}")
    a(f"v_add_f32 v10, v10, v10\nv_add_f32 v11, v11, v11\nv_mul_f32 v10, 0, v10\nv_mul_f32 v11, 0, v11")
    for i in range(12):
        a(f"v_fma_f32 v10, v{OO+i}, 0, v10\nv_fma_f32 v11, v{OO+16+i}, 0, v11")
    a(f"v_cmp_u_f32 vcc, v10, v11\ns_cbranch_vccnz {fb}")
    a.label(comb)
    a("s_barrier")
    swp = a.uid("att_swp")
    a(f"s_cmp_eq_u32 s{sKH}, 0\ns_cbranch_scc1 {swp}")
    for i in range(13):
        a(f"v_swap_b32 v{OO+i}, v{OO+16+i}")
    a("v_swap_b32 v8, v9")
    a.label(swp)
    a(f"""
    v_mov_b32 v{OO+16+13}, v9
    s_lshl_b32 s{sTmp}, s{sW}, 12
    v_add_u32 v1, s{sTmp}, v5
    s_xor_b32 s{sTmp}, s{sTmp}, {4<<12}
    v_add_u32 v2, s{sTmp}, v5
    """)
    for i in range(4):
        a(f"ds_write_b128 v1, v[{OO+16+4*i}:{OO+16+4*i+3}] offset:{1024*i}")
    a("s_waitcnt lgkmcnt(0)\ns_barrier")
    for i in range(4):
        a(f"ds_read_b128 v[{64+4*i}:{64+4*i+3}], v2 offset:{1024*i}")
    a(f"""
    s_lshl_b32 s{sTmp}, s{sG}, 3
    s_lshl_b32 s{sC}, s{sQP}, 1
    s_add_u32 s{sTmp}, s{sTmp}, s{sC}
    s_add_u32 s{sTmp}, s{sTmp}, s{sKH}
    s_mul_i32 s{sTmp}, s{sTmp}, {32*1280}
    s_mul_i32 s{sC}, s{sR}, 40
    s_add_u32 s{sTmp}, s{sTmp}, s{sC}
    s_add_u32 s{sTmp}, s{sTmp}, {WS_O}
    v_mul_u32_u24 v3, 1280, v15
    v_lshl_add_u32 v3, v14, 3, v3
    s_waitcnt lgkmcnt(0)
    v_max_f32 v10, v8, v77
    v_sub_f32 v11, v8, v10
    v_sub_f32 v12, v77, v10
    v_exp_f32 v11, v11
    v_exp_f32 v12, v12
    s_nop 0
    v_mul_f32 v13, v11, v{OO+12}
    v_fmac_f32 v13, v12, v76
    v_rcp_f32 v13, v13
    s_nop 0
    v_mul_f32 v11, v11, v13
    v_mul_f32 v12, v12, v13
    """)
    for i in range(12):
        a(f"v_mul_f32 v{OO+i}, v11, v{OO+i}\nv_fmac_f32 v{OO+i}, v12, v{64+i}")
    for i in range(6):
        a(f"v_cvt_pk_bf16_f32 v{80+i}, v{OO+2*i}, v{OO+2*i+1}")
    a(f"""
    buffer_store_dwordx2 v[80:81], v3, s[{R_WS}:{R_WS+3}], s{sTmp} offen
    buffer_store_dwordx2 v[82:83], v3, s[{R_WS}:{R_WS+3}], s{sTmp} offen offset:16
    s_mov_b32 exec_hi, 0
    buffer_store_dwordx2 v[84:85], v3, s[{R_WS}:{R_WS+3}], s{sTmp} offen offset:32
    s_mov_b64 exec, -1
    s_branch {done}
    """)
    a.label(f"{nobar}_w0")
    a(f"s_waitcnt vmcnt(0)\ns_branch {nobar}_w1")
    a.label(fb)
    sKb, sVb = t+8, t+9
    a(f"""
    s_mul_i32 s{sKb}, s{sR}, {HEADB}
    s_mul_i32 s{sTmp}, s{sKH}, 40960
    s_add_u32 s{sKb}, s{sKb}, s{sTmp}
    s_add_u32 s{sVb}, s{sKb}, {WS_V}
    s_add_u32 s{sKb}, s{sKb}, {WS_K}
    s_mov_b32 s{sTmp}, s{sKb}
    s_mov_b32 s{sC}, 32
    v_mov_b32 v8, 0xff800000
    v_mov_b32 v9, 0xff800000
    """)
    l1 = a.uid("att_fb1"); l2 = a.uid("att_fb2")
    def ldK():
        a(f"buffer_load_dwordx4 v[{KF}:{KF+3}], v5, s[{R_WS}:{R_WS+3}], s{sTmp} offen")
        a(f"buffer_load_dwordx2 v[{KF+4}:{KF+5}], v6, s[{R_WS}:{R_WS+3}], s{sTmp} offen offset:1024")
    a.label(l1)
    ldK()
    a("s_waitcnt vmcnt(0)")
    for x in range(2):
        for m in qk(x, 0, "0"): a(m)
    a.nop(12)
    for x in range(2):
        sd = SS + 16*x
        for i in range(0, 16, 2):
            a(f"v_max3_f32 v{8+x}, v{8+x}, v{sd+i}, v{sd+i+1}")
    a(f"s_add_u32 s{sTmp}, s{sTmp}, 1280\ns_sub_u32 s{sC}, s{sC}, 1\ns_cmp_lg_u32 s{sC}, 0\ns_cbranch_scc1 {l1}")
    a("v_mov_b32 v10, v8\nv_mov_b32 v11, v9\ns_nop 1")
    for x in range(2): a(f"v_permlane32_swap_b32 v{8+x}, v{10+x}")
    a("s_nop 1")
    for x in range(2): a(f"v_max_f32 v{8+x}, v{8+x}, v{10+x}")
    for x in range(2):
        for i in range(16): a(f"v_sub_f32 v{NM+16*x+i}, 0, v{8+x}")
    for i in range(32): a(f"v_mov_b32 v{OO+i}, 0")
    a(f"s_mov_b32 s{sTmp}, s{sKb}\ns_mov_b32 s{sC}, 32")
    a.label(l2)
    ldK()
    a(f"""
    s_mov_b64 exec, s[{sEX}:{sEX+1}]
    buffer_load_dwordx4 v[{VF}:{VF+3}], v7, s[{R_WS}:{R_WS+3}], s{sVb} offen
    buffer_load_dwordx4 v[{VF+4}:{VF+7}], v7, s[{R_WS}:{R_WS+3}], s{sVb} offen offset:640
    s_mov_b64 exec, -1
    s_waitcnt vmcnt(0)
    """)
    for x in range(2):
        for m in qk(x, 0): a(m)
    a.nop(12)
    for x in range(2):
        for i in sm(x): a(i)
    a("s_nop 1")
    for x in range(2):
        for m in pv(x, 0): a(m)
    a(f"s_add_u32 s{sTmp}, s{sTmp}, 1280\ns_add_u32 s{sVb}, s{sVb}, 1280\ns_sub_u32 s{sC}, s{sC}, 1\ns_cmp_lg_u32 s{sC}, 0\ns_cbranch_scc1 {l2}")
    a.nop(12)
    a(f"s_branch {comb}")
    a.label(done)

def phase_proj(a, down):
    done = a.uid("prj_done"); ld = a.uid("prj_ld")
    t = T
    K = F if down else D
    AST = K * 2
    NCH = K // 128
    NS, SLOT = 4, 36864
    sRT, sCT = t, t+1
    a(f"""
    s_lshr_b32 s{sRT}, s{sR}, 3
    s_and_b32 s{sCT}, s{sR}, 7
    s_lshl_b32 s{t+2}, s{sG}, 2
    s_add_u32 s{sRT}, s{sRT}, s{t+2}
    s_cmp_ge_u32 s{sW}, 4
    s_cbranch_scc1 {ld}
    """)
    sTH, sKH = t+2, t+3
    if down:
        srd(a, R_RES, P_WS, ACT, WS_X1)
        srd_sel(a, R_DST, P_WS, WS_X2, P_OUT, 0, ACT)
    else:
        srd_sel(a, R_RES, P_X, 0, P_WS, WS_X2, ACT)
        srd(a, R_DST, P_WS, ACT, WS_X1)
    ACC = 96; FR = 16
    RES = 72
    a(f"""
    s_and_b32 s{sTH}, s{sW}, 1
    s_lshr_b32 s{sKH}, s{sW}, 1
    v_and_b32 v15, 15, v0
    v_lshrrev_b32 v14, 4, v0
    """)
    sOut = t+4
    a(f"""
    s_lshl_b32 s{sOut}, s{sRT}, 2
    s_lshl_b32 s{t+5}, s{sTH}, 1
    s_add_u32 s{sOut}, s{sOut}, s{t+5}
    s_add_u32 s{sOut}, s{sOut}, s{sKH}
    s_lshl_b32 s{t+11}, s{sOut}, 10
    s_mul_i32 s{sOut}, s{sOut}, {16*1280}
    s_mul_i32 s{t+5}, s{sCT}, 160
    s_add_u32 s{sOut}, s{sOut}, s{t+5}
    v_mul_u32_u24 v13, 1280, v15
    v_lshl_add_u32 v13, v14, 3, v13
    """)
    for j in range(5):
        a(f"buffer_load_dwordx2 v[{RES+2*j}:{RES+2*j+1}], v13, s[{R_RES}:{R_RES+3}], s{sOut} offen offset:{32*j}")
    a(f"""
    s_lshl_b32 s{t+5}, s{sTH}, 12
    v_lshlrev_b32 v1, 7, v15
    v_add_u32 v1, s{t+5}, v1
    v_bfe_u32 v8, v0, 1, 3
    v_xor_b32 v8, v8, v14
    s_lshl_b32 s{t+5}, s{sKH}, 2
    v_xor_b32 v8, s{t+5}, v8
    v_lshl_add_u32 v2, v8, 4, v1
    """)
    a(f"""
    v_bfe_u32 v8, v0, 2, 3
    v_lshrrev_b32 v9, 5, v0
    v_lshl_add_u32 v8, v9, 4, v8
    s_lshl_b32 s{t+5}, s{sKH}, 5
    v_add_u32 v8, s{t+5}, v8
    v_mul_u32_u24 v8, 160, v8
    v_and_b32 v9, 3, v0
    v_lshl_add_u32 v8, v9, 3, v8
    v_add_u32 v3, 16384, v8
    v_mov_b32 v4, v2
    v_mov_b32 v5, v3
    """)
    for i in range(40): a(f"v_mov_b32 v{ACC+i}, 0")
    for i in range(28): a(f"v_mov_b32 v{FR+28+i}, 0")
    def reads(u):
        b = FR + 28*u
        r = []
        for tm in range(2):
            r.append(f"ds_read_b128 v[{b+4*tm}:{b+4*tm+3}], v4 offset:{8192*u+2048*tm}")
        for jn in range(5):
            for j in range(2):
                d = b + 8 + 4*jn + 2*j
                r.append(f"ds_read_b64_tr_b16 v[{d}:{d+1}], v5 offset:{160*(64*u+8*j)+32*jn}")
        return r
    def mfmas(u):
        b = FR + 28*u
        m = []
        for jn in range(5):
            for tm in range(2):
                c = ACC + 20*tm + 4*jn
                m.append(f"v_mfma_f32_16x16x32_bf16 {v(c,4)}, {v(b+8+4*jn,4)}, {v(b+4*tm,4)}, {v(c,4)}")
        return m
    sC, sSl = t+6, t+7
    a(f"s_mov_b32 s{sC}, {NCH}\ns_mov_b32 s{sSl}, 0")
    lp = a.uid("prj_loop")
    a.label(lp)
    a("s_barrier")
    interleave(a, mfmas(1), reads(0))
    r1 = reads(1)
    a(r1[0]); a(r1[1])
    a("s_waitcnt lgkmcnt(2)")
    interleave(a, mfmas(0), r1[2:])
    a(f"""
    s_add_u32 s{sSl}, s{sSl}, {SLOT}
    s_cmp_eq_u32 s{sSl}, {NS*SLOT}
    s_cselect_b32 s{sSl}, 0, s{sSl}
    v_add_u32 v4, s{sSl}, v2
    v_add_u32 v5, s{sSl}, v3
    s_sub_u32 s{sC}, s{sC}, 1
    s_waitcnt lgkmcnt(0)
    s_cmp_lg_u32 s{sC}, 0
    s_cbranch_scc1 {lp}
    """)
    for m in mfmas(1): a(m)
    a("s_barrier")
    swp = a.uid("prj_swp")
    a(f"""
    s_mul_i32 s{t+5}, s{sW}, 5120
    v_lshlrev_b32 v1, 4, v0
    v_add_u32 v2, s{t+5}, v1
    s_xor_b32 s{t+8}, s{sW}, 2
    s_mul_i32 s{t+8}, s{t+8}, 5120
    v_add_u32 v3, s{t+8}, v1
    s_nop 1
    s_cmp_eq_u32 s{sKH}, 0
    s_cbranch_scc1 {swp}
    """)
    for i in range(20): a(f"v_swap_b32 v{ACC+i}, v{ACC+20+i}")
    a.label(swp)
    for j in range(5):
        a(f"ds_write_b128 v2, v[{ACC+20+4*j}:{ACC+20+4*j+3}] offset:{1024*j}")
    a("s_waitcnt lgkmcnt(0)\ns_barrier")
    for j in range(5):
        a(f"ds_read_b128 v[{16+4*j}:{16+4*j+3}], v3 offset:{1024*j}")
    a(f"s_mov_b32 s{t+8}, 0xffff0000\ns_waitcnt vmcnt(0)")
    for j in range(5):
        for i in range(2):
            r = RES + 2*j + i; c = ACC + 4*j + 2*i
            a(f"v_lshlrev_b32 v8, 16, v{r}\nv_and_b32 v9, s{t+8}, v{r}")
            a(f"v_add_f32 v{c}, v{c}, v8\nv_add_f32 v{c+1}, v{c+1}, v9")
    a("v_mov_b32 v10, 0\nv_mov_b32 v11, 0\ns_waitcnt lgkmcnt(0)")
    for j in range(5):
        for i in range(4):
            a(f"v_add_f32 v{ACC+4*j+i}, v{ACC+4*j+i}, v{16+4*j+i}")
        o = 40 + 2*j
        a(f"v_cvt_pk_bf16_f32 v{o}, v{ACC+4*j}, v{ACC+4*j+1}\nv_cvt_pk_bf16_f32 v{o+1}, v{ACC+4*j+2}, v{ACC+4*j+3}")
        a(f"buffer_store_dwordx2 v[{o}:{o+1}], v13, s[{R_DST}:{R_DST+3}], s{sOut} offen offset:{32*j}")
        for i in range(2):
            a(f"v_lshlrev_b32 v8, 16, v{o+i}\nv_and_b32 v9, s{t+8}, v{o+i}")
            a(f"v_add_f32 v10, v10, v8\nv_fmac_f32 v11, v8, v8\nv_add_f32 v10, v10, v9\nv_fmac_f32 v11, v9, v9")
    a(f"""
    s_nop 1
    v_permlane32_swap_b32 v10, v11
    s_nop 1
    v_add_f32 v10, v10, v11
    v_mov_b32 v11, v10
    s_nop 1
    v_permlane16_swap_b32 v10, v11
    s_nop 1
    v_add_f32 v10, v10, v11
    s_lshl_b32 s{t+5}, s{sCT}, 3
    s_add_u32 s{t+11}, s{t+11}, s{t+5}
    s_add_u32 s{t+11}, s{t+11}, {WS_ST2 if down else WS_ST1}
    v_lshrrev_b32 v8, 5, v0
    v_lshlrev_b32 v8, 2, v8
    v_lshl_add_u32 v8, v15, 6, v8
    buffer_store_dword v10, v8, s[{R_WS}:{R_WS+3}], s{t+11} offen
    s_branch {done}
    """)
    a.label(ld)
    srd(a, R_A, P_WS, S*K*2, WS_H if down else WS_O)
    srd(a, R_W, P_WD if down else P_WO, K*D*2)
    sLW, sAo, sWo, sM, sTmp, sM2 = t+2, t+3, t+4, t+5, t+6, t+7
    a(f"""
    s_sub_u32 s{sLW}, s{sW}, 4
    v_lshrrev_b32 v1, 3, v0
    v_mul_u32_u24 v1, {AST}, v1
    v_lshrrev_b32 v2, 4, v0
    v_and_b32 v3, 7, v0
    v_xor_b32 v3, v3, v2
    v_lshl_add_u32 v4, v3, 4, v1
    v_xor_b32 v3, 4, v3
    v_lshl_add_u32 v5, v3, 4, v1
    s_lshl_b32 s{sAo}, s{sRT}, 1
    s_and_b32 s{sTmp}, s{sLW}, 1
    s_add_u32 s{sAo}, s{sAo}, s{sTmp}
    s_mul_i32 s{sAo}, s{sAo}, {32*AST}
    s_lshr_b32 s{sTmp}, s{sLW}, 1
    s_lshl_b32 s{sTmp}, s{sTmp}, 7
    s_add_u32 s{sAo}, s{sAo}, s{sTmp}
    s_mul_i32 s{sWo}, s{sLW}, {32*1280}
    s_mul_i32 s{sTmp}, s{sCT}, 160
    s_add_u32 s{sWo}, s{sWo}, s{sTmp}
    s_lshl_b32 s{sM}, s{sLW}, 12
    s_mul_i32 s{sM2}, s{sLW}, 5120
    s_add_u32 s{sM2}, s{sM2}, 16384
    s_movk_i32 s{sTmp}, 6554
    """)
    for i in range(5):
        a(f"""
        v_add_u32 v1, {64*i}, v0
        v_mul_u32_u24 v2, s{sTmp}, v1
        v_lshrrev_b32 v2, 16, v2
        v_mad_i32_i24 v1, v2, -10, v1
        v_and_b32 v3, 0x33, v2
        v_bfe_u32 v11, v2, 2, 1
        v_lshl_add_u32 v3, v11, 3, v3
        v_bfe_u32 v11, v2, 3, 1
        v_lshl_add_u32 v3, v11, 2, v3
        v_mul_u32_u24 v3, 1280, v3
        v_lshl_add_u32 v{6+i}, v1, 4, v3
        """)
    sSl = t+8
    a(f"s_mov_b32 s{sSl}, 0")
    def issue():
        a(f"s_add_u32 s{t+9}, s{sSl}, s{sM}\ns_add_u32 s{t+10}, s{sSl}, s{sM2}")
        for i in range(4):
            dma(a, 4 + (i & 1), R_A, (f"s{sTmp}", f"s_add_u32 s{sTmp}, s{sAo}, {i*8*AST}"), f"s_add_u32 m0, s{t+9}, {1024*i}")
        for i in range(5):
            dma(a, 6 + i, R_W, (f"s{sWo}", "s_nop 0"), f"s_add_u32 m0, s{t+10}, {1024*i}")
        a(f"""
        s_add_u32 s{sAo}, s{sAo}, 256
        s_add_u32 s{sWo}, s{sWo}, {128*1280}
        s_add_u32 s{sSl}, s{sSl}, {SLOT}
        s_cmp_eq_u32 s{sSl}, {NS*SLOT}
        s_cselect_b32 s{sSl}, 0, s{sSl}
        """)
    loader_loop(a, NCH, NS, 9, issue)
    a("s_barrier\ns_barrier")
    a.label(done)

def phase_gu(a):
    done = a.uid("gu_done"); ld = a.uid("gu_ld")
    t = T
    NS, SLOT = 4, 40960
    sRT, sCT = t, t+1
    a(f"""
    s_lshr_b32 s{sRT}, s{sR}, 4
    s_and_b32 s{sCT}, s{sR}, 15
    s_lshl_b32 s{t+2}, s{sG}, 1
    s_add_u32 s{sRT}, s{sRT}, s{t+2}
    s_cmp_ge_u32 s{sW}, 4
    s_cbranch_scc1 {ld}
    """)
    sWM, sWN = t+2, t+3
    FR = 16; ACC = 96; VCS = 192; VST = 240
    a(f"""
    s_and_b32 s{sWM}, s{sW}, 1
    s_lshr_b32 s{sWN}, s{sW}, 1
    s_lshl_b32 s{t+4}, s{sRT}, 1
    s_add_u32 s{t+4}, s{t+4}, s{sWM}
    s_lshl_b32 s{t+5}, s{t+4}, 12
    s_add_u32 s{t+5}, s{t+5}, {WS_ST1}
    v_lshlrev_b32 v1, 6, v0
    """)
    for i in range(4):
        a(f"buffer_load_dwordx4 v[{VST+4*i}:{VST+4*i+3}], v1, s[{R_WS}:{R_WS+3}], s{t+5} offen offset:{16*i}")
    sF0 = t+6
    a(f"""
    s_mul_i32 s{sF0}, s{sCT}, 96
    s_mul_i32 s{t+5}, s{sWN}, 48
    s_add_u32 s{sF0}, s{sF0}, s{t+5}
    s_lshl_b32 s{t+5}, s{sF0}, 2
    s_add_u32 s{t+5}, s{t+5}, {WS_CSG}
    s_add_u32 s{t+7}, s{t+5}, {F*4}
    v_lshrrev_b32 v14, 5, v0
    v_and_b32 v15, 31, v0
    v_lshlrev_b32 v1, 4, v14
    """)
    for jn in range(3):
        for q in range(4):
            r = VCS + 16*jn + 4*q
            a(f"buffer_load_dwordx4 v[{r}:{r+3}], v1, s[{R_WS}:{R_WS+3}], s{t+5 if q < 2 else t+7} offen offset:{(16*jn+8*(q&1))*4}")
    a(f"""
    s_lshl_b32 s{t+5}, s{sWM}, 13
    v_lshlrev_b32 v1, 7, v15
    v_add_u32 v1, s{t+5}, v1
    v_bfe_u32 v8, v0, 1, 3
    v_xor_b32 v8, v8, v14
    """)
    for kk in range(4):
        a(f"v_xor_b32 v9, {2*kk}, v8\nv_lshl_add_u32 v{2+kk}, v9, 4, v1")
    a(f"""
    v_bfe_u32 v8, v0, 2, 2
    v_lshl_add_u32 v8, v14, 3, v8
    v_mul_u32_u24 v8, 192, v8
    v_and_b32 v9, 3, v0
    v_lshl_add_u32 v8, v9, 3, v8
    v_bfe_u32 v9, v0, 4, 1
    v_mul_u32_u24 v10, 12288, v9
    v_add_u32 v8, v8, v10
    v_add_u32 v8, 16384, v8
    s_mul_i32 s{t+5}, s{sWN}, 3
    v_xor_b32 v10, s{t+5}, v9
    v_lshl_add_u32 v6, v10, 5, v8
    s_add_u32 s{t+5}, s{t+5}, 1
    v_xor_b32 v10, s{t+5}, v9
    v_lshl_add_u32 v7, v10, 5, v8
    """)
    for i in range(6): a(f"v_mov_b32 v{8+i}, v{2+i}")
    for i in range(96): a(f"v_mov_b32 v{ACC+i}, 0")
    for i in range(20): a(f"v_mov_b32 v{FR+60+i}, 0")
    def reads(kk):
        b = FR + 20*kk
        r = []
        for tm in range(2):
            r.append(f"ds_read_b128 v[{b+4*tm}:{b+4*tm+3}], v{8+kk} offset:{4096*tm}")
        for jn in range(3):
            for j in range(2):
                d = b + 8 + 4*jn + 2*j
                r.append(f"ds_read_b64_tr_b16 v[{d}:{d+1}], v{12+(jn&1)} offset:{192*(16*kk+4*j)+64*(jn>>1)}")
        return r
    def mfmas(kk):
        b = FR + 20*kk
        m = []
        for jn in range(3):
            for tm in range(2):
                c = ACC + 16*(2*jn + tm)
                m.append(f"v_mfma_f32_32x32x16_bf16 {v(c,16)}, {v(b+8+4*jn,4)}, {v(b+4*tm,4)}, {v(c,16)}")
        return m
    sC, sSl = t+8, t+9
    a(f"s_mov_b32 s{sC}, 10\ns_mov_b32 s{sSl}, 0")
    lp = a.uid("gu_loop")
    a.label(lp)
    a("s_barrier")
    r1 = reads(1)
    interleave(a, mfmas(3), reads(0) + r1[:7])
    a(r1[7])
    a("s_waitcnt lgkmcnt(8)")
    interleave(a, mfmas(0), reads(2))
    a("s_waitcnt lgkmcnt(8)")
    interleave(a, mfmas(1), reads(3))
    a("s_waitcnt lgkmcnt(8)")
    upd = [f"s_add_u32 s{sSl}, s{sSl}, {SLOT}", f"s_cmp_eq_u32 s{sSl}, {NS*SLOT}", f"s_cselect_b32 s{sSl}, 0, s{sSl}"] + \
          [f"v_add_u32 v{8+i}, s{sSl}, v{2+i}" for i in range(6)] + [f"s_sub_u32 s{sC}, s{sC}, 1"]
    interleave(a, mfmas(2), upd)
    a(f"s_waitcnt lgkmcnt(0)\ns_cmp_lg_u32 s{sC}, 0\ns_cbranch_scc1 {lp}")
    for m in mfmas(3): a(m)
    a("s_waitcnt vmcnt(0)")
    row_stats(a, VST, 16, 17)
    a(f"""
    v_mul_f32 v17, v17, v17
    v_mov_b32 v18, v16
    v_mov_b32 v19, v17
    s_nop 1
    v_permlane32_swap_b32 v16, v18
    v_permlane32_swap_b32 v17, v19
    s_mul_i32 s{t+5}, s{t+4}, {64*F*2}
    s_lshl_b32 s{t+7}, s{sF0}, 1
    s_add_u32 s{t+5}, s{t+5}, s{t+7}
    s_add_u32 s{t+5}, s{t+5}, {WS_H}
    s_add_u32 s{t+7}, s{t+5}, {32*F*2}
    v_mul_u32_u24 v1, {F*2}, v15
    v_lshl_add_u32 v1, v14, 4, v1
    """)
    for jn in range(3):
        for tm in range(2):
            c = ACC + 16*(2*jn + tm); cs = VCS + 16*jn
            for i in range(16):
                a(f"v_fma_f32 v{c+i}, -v{16+2*tm}, v{cs+i}, v{c+i}")
            for i in range(8):
                a(f"v_max_f32 v{c+i}, 0, v{c+i}\nv_mul_f32 v{c+8+i}, v{17+2*tm}, v{c+8+i}")
            for i in range(8):
                a(f"v_mul_f32 v{c+i}, v{c+i}, v{c+8+i}")
            o = 24 + 4*(2*jn + tm)
            for i in range(4):
                a(f"v_cvt_pk_bf16_f32 v{o+i}, v{c+2*i}, v{c+2*i+1}")
            a(f"s_nop 1\nv_permlane32_swap_b32 v{o}, v{o+2}\nv_permlane32_swap_b32 v{o+1}, v{o+3}")
            a(f"buffer_store_dwordx4 v[{o}:{o+3}], v1, s[{R_WS}:{R_WS+3}], s{t+5 if tm == 0 else t+7} offen offset:{32*jn}")
    a(f"s_branch {done}")
    a.label(ld)
    srd(a, R_A, P_WS, ACT, WS_X1)
    srd(a, R_W, P_WG, D*F*2)
    srd(a, R_W2, P_WU, D*F*2)
    sLW, sAo, sWo, sM, sTmp, sM2 = t+2, t+3, t+4, t+5, t+6, t+7
    a(f"""
    s_sub_u32 s{sLW}, s{sW}, 4
    v_lshrrev_b32 v1, 3, v0
    v_mul_u32_u24 v1, 1280, v1
    v_lshrrev_b32 v2, 4, v0
    v_and_b32 v3, 7, v0
    v_xor_b32 v3, v3, v2
    v_lshl_add_u32 v4, v3, 4, v1
    v_xor_b32 v3, 4, v3
    v_lshl_add_u32 v5, v3, 4, v1
    s_lshl_b32 s{sAo}, s{sRT}, 2
    s_add_u32 s{sAo}, s{sAo}, s{sLW}
    s_mul_i32 s{sAo}, s{sAo}, {32*1280}
    s_mul_i32 s{sWo}, s{sLW}, {16*F*2}
    s_mul_i32 s{sTmp}, s{sCT}, 192
    s_add_u32 s{sWo}, s{sWo}, s{sTmp}
    s_lshl_b32 s{sM}, s{sLW}, 12
    s_mul_i32 s{sM2}, s{sLW}, 3072
    s_add_u32 s{sM2}, s{sM2}, 16384
    s_movk_i32 s{sTmp}, 5462
    """)
    for i in range(3):
        a(f"""
        v_add_u32 v1, {64*i}, v0
        v_mul_u32_u24 v2, s{sTmp}, v1
        v_lshrrev_b32 v2, 16, v2
        v_mad_i32_i24 v1, v2, -12, v1
        v_mul_u32_u24 v2, {F*2}, v2
        v_lshl_add_u32 v{6+i}, v1, 4, v2
        v_xor_b32 v1, 2, v1
        v_lshl_add_u32 v{9+i}, v1, 4, v2
        """)
    sSl = t+8
    a(f"s_mov_b32 s{sSl}, 0")
    def issue():
        a(f"s_add_u32 s{t+9}, s{sSl}, s{sM}\ns_add_u32 s{t+10}, s{sSl}, s{sM2}")
        for i in range(4):
            dma(a, 4 + (i & 1), R_A, (f"s{sTmp}", f"s_add_u32 s{sTmp}, s{sAo}, {i*8*1280}"), f"s_add_u32 m0, s{t+9}, {1024*i}")
        for i in range(3):
            dma(a, 6 + i, R_W, (f"s{sWo}", "s_nop 0"), f"s_add_u32 m0, s{t+10}, {1024*i}")
            dma(a, 9 + i, R_W2, (f"s{sWo}", "s_nop 0"), f"s_add_u32 m0, s{t+10}, {12288+1024*i}")
        a(f"""
        s_add_u32 s{sAo}, s{sAo}, 128
        s_add_u32 s{sWo}, s{sWo}, {64*F*2}
        s_add_u32 s{sSl}, s{sSl}, {SLOT}
        s_cmp_eq_u32 s{sSl}, {NS*SLOT}
        s_cselect_b32 s{sSl}, 0, s{sSl}
        """)
    loader_loop(a, 10, NS, 10, issue)
    a.label(done)

KD = """.amdhsa_kernel {name}
  .amdhsa_next_free_vgpr 256
  .amdhsa_next_free_sgpr 102
  .amdhsa_accum_offset 256
  .amdhsa_group_segment_fixed_size 0
  .amdhsa_kernarg_size 80
  .amdhsa_user_sgpr_count 2
  .amdhsa_user_sgpr_kernarg_segment_ptr 1
  .amdhsa_system_sgpr_workgroup_id_x 1
.end_amdhsa_kernel
"""

def build_multi(extra_launch=0):
    a = Asm()
    kernels = []
    def kern(name):
        kernels.append(name)
        a(f".globl {name}\n.p2align 8\n.type {name},@function")
        a.label(name)
    def two_layer(base, fn):
        kern(f"{base}1_kernel")
        a(f"s_mov_b32 s{sL}, 1\ns_branch {base}_common")
        kern(f"{base}0_kernel")
        a(f"s_mov_b32 s{sL}, 0")
        a.label(f"{base}_common")
        prologue(a, f"{base}_exit"); fn(a); a.label(f"{base}_exit"); a("s_endpgm")
    def one(base, fn):
        kern(f"{base}_kernel")
        prologue(a, f"{base}_exit"); fn(a); a.label(f"{base}_exit"); a("s_endpgm")
    one("prep", phase_prep)
    two_layer("qkv", phase_qkv)
    one("attn", phase_attn)
    two_layer("wo", lambda a: phase_proj(a, False))
    one("gu", phase_gu)
    two_layer("down", lambda a: phase_proj(a, True))
    order = ["prep", "qkv0", "attn", "wo0", "gu", "down0", "qkv1", "attn", "wo1", "gu", "down1"] + ["prep"] * extra_launch
    hdr = open("cdna_kernels/" + NAME + ".s.ref").read().split("; Override")[0]
    for k in order:
        hdr += f"; @launch kernel={k}_kernel grid=(256,1,1) block=(512,1,1) lds=163840\n"
    txt = hdr + '.amdgcn_target "amdgcn-amd-amdhsa--gfx950"\n.text\n' + a.text() + '.section .rodata,"a"\n'
    for k in kernels:
        txt += ".p2align 6\n" + KD.format(name=k)
    probs = check(a.lines)
    for p in probs: print("HAZARD", p)
    return txt

if __name__ == "__main__":
    out = sys.argv[1] if len(sys.argv) > 1 else "cdna_kernels/" + NAME + ".s"
    extra = int(sys.argv[2]) if len(sys.argv) > 2 else 0
    open(out, "w").write(build_multi(extra))
    print("written", out)
```

```python
import sys, math
sys.path.insert(0, "gen")
from asmlib import *

NAME = "interleave_layers__softmax_full_mha__glu_gated_reglu__prompt"
S, D, F, H, DH = 2048, 640, 1536, 32, 20
ACT = S * D * 2
HEADB = 81920
WS_Q = 0
WS_K = WS_Q + ACT
WS_V = WS_K + ACT
WS_O = WS_V + ACT
WS_X1 = WS_O + ACT
WS_X2 = WS_X1 + ACT
WS_H = WS_X2 + ACT
WS_ST0 = WS_H + S * F * 2
WS_ST1 = WS_ST0 + S * 64
WS_ST2 = WS_ST1 + S * 64
WS_CSQ = WS_ST2 + S * 64
WS_CSG = WS_CSQ + 1920 * 4
WS_CSU = WS_CSG + 1536 * 4
WS_END = WS_CSU + 1536 * 4
WS_SIZE = 268435456
QSCALE = (DH ** -0.5) * math.log2(math.e)

import struct
def f32(x): return "0x%08x" % struct.unpack("<I", struct.pack("<f", x))[0]

P_X, P_WQKV, P_WO, P_BX, P_WG, P_WU, P_WD, P_OUT, P_DBG, P_WS = 16, 18, 20, 22, 24, 26, 28, 30, 32, 34
sG, sR, sW, sL = 4, 5, 6, 3
R_A, R_W, R_W2, R_WS, R_RES, R_DST = 36, 40, 44, 48, 52, 56
T = 60

STAMP = False
WS_STAMP = 200 << 20
def stamp(a, i):
    if STAMP: a(f"s_memtime s[{84+2*i}:{85+2*i}]")
def stamp_begin(a):
    if STAMP:
        for i in range(1, 8): a(f"s_mov_b32 s{84+2*i}, 0")
        a("s_memrealtime s[10:11]")
        stamp(a, 0)
def stamp_end(a):
    if not STAMP: return
    a("s_waitcnt vmcnt(0) lgkmcnt(0)")
    stamp(a, 7)
    a(f"""
    s_memrealtime s[14:15]
    s_waitcnt lgkmcnt(0)
    s_lshl_b32 s8, s2, 3
    s_add_u32 s8, s8, s{sW}
    s_lshl_b32 s8, s8, 6
    s_and_b32 s9, s{P_DBG}, 0x1fff
    s_lshl_b32 s9, s9, 8
    s_add_u32 s8, s8, s9
    s_add_u32 s8, s8, {WS_STAMP}
    v_mov_b32 v1, s8
    """)
    for i in range(8): a(f"v_mov_b32 v{4+i}, s{84+2*i}")
    a("v_mov_b32 v12, s10\nv_mov_b32 v13, s14")
    a(f"global_store_dwordx4 v1, v[4:7], s[{P_WS}:{P_WS+1}]\nglobal_store_dwordx4 v1, v[8:11], s[{P_WS}:{P_WS+1}] offset:16")
    a(f"global_store_dwordx2 v1, v[12:13], s[{P_WS}:{P_WS+1}] offset:32")

def srd(a, r, ptr, size, off=0):
    if off:
        a(f"s_add_u32 s{r}, s{ptr}, {off}")
        a(f"s_addc_u32 s{r+1}, s{ptr+1}, 0")
    else:
        a(f"s_mov_b32 s{r}, s{ptr}")
        a(f"s_mov_b32 s{r+1}, s{ptr+1}")
    a(f"s_mov_b32 s{r+2}, {size}")
    a(f"s_mov_b32 s{r+3}, 0x20000")

def srd_sel(a, r, ptr0, off0, ptr1, off1, size):
    a(f"s_cmp_eq_u32 s{sL}, 0")
    a(f"s_cselect_b32 s{r}, s{ptr0}, s{ptr1}")
    a(f"s_cselect_b32 s{r+1}, s{ptr0+1}, s{ptr1+1}")
    a(f"s_cselect_b32 s{r+2}, {off0}, {off1}" if (off0 == 0 or off1 == 0) else f"ERR")
    a(f"s_add_u32 s{r}, s{r}, s{r+2}")
    a(f"s_addc_u32 s{r+1}, s{r+1}, 0")
    a(f"s_mov_b32 s{r+2}, {size}")
    a(f"s_mov_b32 s{r+3}, 0x20000")

def prologue(a, exit_label):
    a(f"""
    s_load_dwordx16 s[16:31], s[0:1], 0
    s_load_dwordx4 s[32:35], s[0:1], 64
    s_cmp_ge_u32 s2, 256
    s_cbranch_scc1 {exit_label}
    s_and_b32 s{sG}, s2, 7
    s_lshr_b32 s{sR}, s2, 3
    v_lshrrev_b32 v1, 6, v0
    v_and_b32 v0, 63, v0
    v_readfirstlane_b32 s{sW}, v1
    s_waitcnt lgkmcnt(0)
    """)
    srd(a, R_WS, P_WS, WS_END)

def interleave(a, mf, other, lead=0):
    n = len(mf)
    k = 0
    for i, m in enumerate(mf):
        a(m)
        tgt = (len(other) * (i + 1) + n - 1) // n
        while k < tgt:
            a(other[k]); k += 1

def loader_loop(a, n, nslots, per, issue, pre=None):
    cnt = T + 20
    l1 = a.uid("ldp"); l2 = a.uid("lds")
    stamp(a, 1)
    a(f"s_mov_b32 s{cnt}, {min(nslots, n)}")
    a.label(l1)
    issue()
    a(f"s_sub_u32 s{cnt}, s{cnt}, 1\ns_cmp_lg_u32 s{cnt}, 0\ns_cbranch_scc1 {l1}")
    stamp(a, 2)
    a(f"s_waitcnt vmcnt({(nslots-1)*per})")
    stamp(a, 3)
    a("s_barrier")
    if n - nslots >= 1:
        a(f"s_mov_b32 s{cnt}, {n-nslots}")
        a.label(l2)
        a(f"s_waitcnt vmcnt({(nslots-2)*per})\ns_barrier")
        issue()
        a(f"s_sub_u32 s{cnt}, s{cnt}, 1\ns_cmp_lg_u32 s{cnt}, 0\ns_cbranch_scc1 {l2}")
    stamp(a, 4)
    for c in range(n - nslots + 1, n):
        a(f"s_waitcnt vmcnt({(n-1-c)*per})\ns_barrier")

def dma(a, vaddr, rsrc, soff, m0expr, bits=""):
    a(m0expr)
    a(soff[1])
    a(f"buffer_load_dwordx4 v{vaddr}, s[{rsrc}:{rsrc+3}], {soff[0]} offen {bits} lds")

def row_stats(a, vst, vmean, vrstd):
    for i in range(1, 8):
        a(f"v_add_f32 v{vst}, v{vst}, v{vst+2*i}")
        a(f"v_add_f32 v{vst+1}, v{vst+1}, v{vst+2*i+1}")
    a(f"v_mul_f32 v{vmean}, {f32(1.0/D)}, v{vst}")
    a(f"v_mul_f32 v{vst+1}, {f32(1.0/D)}, v{vst+1}")
    a(f"v_fma_f32 v{vst+1}, -v{vmean}, v{vmean}, v{vst+1}")
    a(f"v_max_f32 v{vst+1}, 0, v{vst+1}")
    a(f"v_add_f32 v{vst+1}, {f32(1e-5)}, v{vst+1}")
    a(f"v_rsq_f32 v{vrstd}, v{vst+1}")
    a("s_nop 0")

def phase_prep(a):
    done = a.uid("prep_done")
    stats = a.uid("prep_stats")
    a(f"s_cmp_ge_u32 s2, 156\ns_cbranch_scc1 {stats}")
    t = T
    a(f"""
    s_cmp_lt_u32 s2, 108
    s_cselect_b32 s{R_W}, s{P_WG}, s{P_WU}
    s_cselect_b32 s{R_W+1}, s{P_WG+1}, s{P_WU+1}
    s_cselect_b32 s{t}, 60, 108
    s_cmp_lt_u32 s2, 60
    s_cselect_b32 s{R_W}, s{P_WQKV}, s{R_W}
    s_cselect_b32 s{R_W+1}, s{P_WQKV+1}, s{R_W+1}
    s_cselect_b32 s{t}, 0, s{t}
    s_movk_i32 s{t+2}, 3072
    s_cselect_b32 s{t+1}, 3840, s{t+2}
    s_mul_i32 s{R_W+2}, s{t+1}, 640
    s_mov_b32 s{R_W+3}, 0x20000
    s_sub_u32 s{t}, s2, s{t}
    s_lshl_b32 s{t}, s{t}, 6
    s_mul_i32 s{t+2}, s{sW}, 80
    v_lshrrev_b32 v1, 2, v0
    v_add_u32 v1, s{t+2}, v1
    v_mul_lo_u32 v1, v1, s{t+1}
    v_and_b32 v2, 3, v0
    v_lshl_add_u32 v1, v2, 4, v1
    s_lshl_b32 s{t+1}, s{t+1}, 4
    """)
    for i in range(5):
        a(f"buffer_load_dwordx4 v[{8+4*i}:{11+4*i}], v1, s[{R_W}:{R_W+3}], s{t} offen")
        if i < 4: a(f"s_add_u32 s{t}, s{t}, s{t+1}")
    a(f"s_mov_b32 s{t+3}, 0xffff0000")
    for i in range(5):
        a(f"s_waitcnt vmcnt({4-i})")
        for j in range(4):
            src = 8 + 4*i + j
            if i == 0:
                a(f"v_lshlrev_b32 v{32+2*j}, 16, v{src}")
                a(f"v_and_b32 v{33+2*j}, s{t+3}, v{src}")
            else:
                a(f"v_lshlrev_b32 v3, 16, v{src}")
                a(f"v_and_b32 v4, s{t+3}, v{src}")
                a(f"v_add_f32 v{32+2*j}, v{32+2*j}, v3")
                a(f"v_add_f32 v{33+2*j}, v{33+2*j}, v4")
    a("s_nop 1")
    for rot in (4, 8):
        for j in range(8):
            a(f"v_add_f32_dpp v{32+j}, v{32+j}, v{32+j} row_ror:{rot} row_mask:0xf bank_mask:0xf")
        a("s_nop 1")
    a(f"""
    v_lshrrev_b32 v1, 4, v0
    s_lshl_b32 s{t}, s{sW}, 2
    v_add_u32 v1, s{t}, v1
    v_lshlrev_b32 v1, 7, v1
    v_lshl_add_u32 v1, v2, 5, v1
    ds_write_b128 v1, v[32:35]
    ds_write_b128 v1, v[36:39] offset:16
    s_waitcnt lgkmcnt(0)
    s_barrier
    s_cmp_lg_u32 s{sW}, 0
    s_cbranch_scc1 {done}
    v_and_b32 v1, 31, v0
    v_lshrrev_b32 v2, 5, v0
    v_lshlrev_b32 v2, 11, v2
    v_lshl_add_u32 v2, v1, 2, v2
    """)
    for i in range(16):
        a(f"ds_read_b32 v{8+i}, v2 offset:{128*i}")
    a("s_waitcnt lgkmcnt(0)")
    for i in range(1, 16):
        a(f"v_add_f32 v8, v8, v{8+i}")
    a(f"""
    v_mov_b32 v9, v8
    s_nop 1
    v_permlane32_swap_b32 v8, v9
    s_nop 1
    v_add_f32 v8, v8, v9
    s_lshl_b32 s{t}, s2, 7
    s_add_u32 s{t}, s{t}, {WS_CSQ}
    v_lshlrev_b32 v1, 2, v1
    buffer_store_dword v8, v1, s[{R_WS}:{R_WS+3}], s{t} offen
    s_branch {done}
    """)
    a.label(stats)
    a(f"s_cmp_ge_u32 s2, 188\ns_cbranch_scc1 {done}")
    srd(a, R_A, P_X, ACT)
    a(f"""
    s_sub_u32 s{t}, s2, 156
    s_lshl_b32 s{t}, s{t}, 3
    s_add_u32 s{t}, s{t}, s{sW}
    s_mul_i32 s{t+1}, s{t}, {8*1280}
    v_lshrrev_b32 v1, 3, v0
    v_mul_u32_u24 v1, 1280, v1
    v_and_b32 v2, 7, v0
    v_lshl_add_u32 v1, v2, 4, v1
    """)
    for i in range(10):
        a(f"buffer_load_dwordx4 v[{8+4*i}:{11+4*i}], v1, s[{R_A}:{R_A+3}], s{t+1} offen offset:{128*i}")
    a(f"s_mov_b32 s{t+3}, 0xffff0000\nv_mov_b32 v6, 0\nv_mov_b32 v7, 0")
    for i in range(10):
        a(f"s_waitcnt vmcnt({9-i})")
        for j in range(4):
            src = 8 + 4*i + j
            a(f"v_lshlrev_b32 v3, 16, v{src}")
            a(f"v_and_b32 v4, s{t+3}, v{src}")
            a(f"v_add_f32 v6, v6, v3\nv_fmac_f32 v7, v3, v3\nv_add_f32 v6, v6, v4\nv_fmac_f32 v7, v4, v4")
    a(f"""
    s_lshl_b32 s{t}, s{t}, 9
    s_add_u32 s{t}, s{t}, {WS_ST0}
    v_lshlrev_b32 v1, 3, v0
    buffer_store_dwordx2 v[6:7], v1, s[{R_WS}:{R_WS+3}], s{t} offen
    """)
    a.label(done)

def phase_qkv(a):
    done = a.uid("qkv_done"); ld = a.uid("qkv_ld")
    t = T
    sRT, sCT, sTY, sC0 = t, t+1, t+2, t+3
    NS, SLOT = 4, 32768
    STAT = NS * SLOT
    a(f"""
    s_cmp_ge_u32 s{sR}, 30
    s_cbranch_scc1 {done}
    s_cmp_ge_u32 s{sR}, 15
    s_cselect_b32 s{sRT}, 1, 0
    s_cselect_b32 s{sCT}, 15, 0
    s_sub_u32 s{sCT}, s{sR}, s{sCT}
    s_lshl_b32 s{t+4}, s{sG}, 1
    s_add_u32 s{sRT}, s{sRT}, s{t+4}
    s_cmp_ge_u32 s{sW}, 4
    s_cbranch_scc1 {ld}
    """)
    sWM, sWN = t+5, t+6
    a(f"""
    s_mul_i32 s{sTY}, s{sCT}, 52
    s_lshr_b32 s{sTY}, s{sTY}, 8
    s_mul_i32 s{sC0}, s{sTY}, 5
    s_sub_u32 s{sC0}, s{sCT}, s{sC0}
    s_lshl_b32 s{sC0}, s{sC0}, 7
    s_and_b32 s{sWM}, s{sW}, 1
    s_lshr_b32 s{sWN}, s{sW}, 1
    """)
    ACC = 128; FR = 16
    VST = 80
    VCS = 96
    a(f"""
    s_lshl_b32 s{t+7}, s{sRT}, 7
    s_lshl_b32 s{t+8}, s{sWM}, 6
    s_add_u32 s{t+7}, s{t+7}, s{t+8}
    s_lshl_b32 s{t+7}, s{t+7}, 6
    s_cmp_eq_u32 s{sL}, 0
    s_mov_b32 s{t+8}, {WS_ST2}
    s_cselect_b32 s{t+8}, {WS_ST0}, s{t+8}
    s_add_u32 s{t+7}, s{t+7}, s{t+8}
    v_lshlrev_b32 v1, 6, v0
    """)
    for i in range(4):
        a(f"buffer_load_dwordx4 v[{VST+4*i}:{VST+4*i+3}], v1, s[{R_WS}:{R_WS+3}], s{t+7} offen offset:{16*i}")
    a(f"""
    s_lshl_b32 s{t+7}, s{sCT}, 7
    s_lshl_b32 s{t+8}, s{sWN}, 6
    s_add_u32 s{t+7}, s{t+7}, s{t+8}
    s_lshl_b32 s{t+7}, s{t+7}, 2
    s_add_u32 s{t+7}, s{t+7}, {WS_CSQ}
    v_lshrrev_b32 v14, 5, v0
    v_and_b32 v15, 31, v0
    v_lshlrev_b32 v1, 4, v14
    """)
    for tn in range(2):
        for q in range(4):
            r = VCS + 16*tn + 4*q
            a(f"buffer_load_dwordx4 v[{r}:{r+3}], v1, s[{R_WS}:{R_WS+3}], s{t+7} offen offset:{(32*tn+8*q)*4}")
    a(f"v_lshlrev_b32 v1, 2, v15")
    VCV = 192
    for tn in range(2):
        a(f"buffer_load_dword v{VCV+tn}, v1, s[{R_WS}:{R_WS+3}], s{t+7} offen offset:{128*tn}")
    a(f"""
    s_lshl_b32 s{t+7}, s{sWM}, 13
    v_lshlrev_b32 v1, 7, v15
    v_add_u32 v1, s{t+7}, v1
    v_bfe_u32 v8, v0, 1, 3
    v_xor_b32 v8, v8, v14
    """)
    for kk in range(4):
        a(f"v_xor_b32 v9, {2*kk}, v8\nv_lshl_add_u32 v{2+kk}, v9, 4, v1")
    a(f"""
    v_bfe_u32 v8, v0, 2, 2
    v_lshl_add_u32 v9, v14, 3, v8
    v_lshlrev_b32 v9, 8, v9
    v_bfe_u32 v10, v0, 4, 1
    v_lshl_add_u32 v9, v10, 5, v9
    v_and_b32 v10, 3, v0
    v_lshl_add_u32 v9, v10, 3, v9
    v_add_u32 v9, 16384, v9
    s_lshl_b32 s{t+7}, s{sWN}, 1
    v_xor_b32 v8, s{t+7}, v8
    v_lshl_add_u32 v6, v8, 6, v9
    v_xor_b32 v8, 1, v8
    v_lshl_add_u32 v7, v8, 6, v9
    """)
    for i in range(6): a(f"v_mov_b32 v{8+i}, v{2+i}")
    for i in range(64): a(f"v_mov_b32 v{ACC+i}, 0")
    for i in range(16): a(f"v_mov_b32 v{FR+48+i}, 0")
    def reads(kk):
        b = FR + 16*kk
        r = []
        for tm in range(2):
            r.append(f"ds_read_b128 v[{b+4*tm}:{b+4*tm+3}], v{8+kk} offset:{4096*tm}")
        for tn in range(2):
            for j in range(2):
                d = b + 8 + 4*tn + 2*j
                r.append(f"ds_read_b64_tr_b16 v[{d}:{d+1}], v{12+tn} offset:{4096*kk+1024*j}")
        return r
    def mfmas(kk, vtype):
        b = FR + 16*kk
        m = []
        for tn in range(2):
            for tm in range(2):
                c = ACC + 16*(2*tn + tm)
                X = v(b + 4*tm, 4); W = v(b + 8 + 4*tn, 4)
                A, B = (X, W) if vtype else (W, X)
                m.append(f"v_mfma_f32_32x32x16_bf16 {v(c,16)}, {A}, {B}, {v(c,16)}")
        return m
    sC, sSl = t+9, t+10
    vlab = a.uid("qkv_v"); epi_v = a.uid("qkv_epv")
    a(f"s_mov_b32 s{sC}, 10\ns_mov_b32 s{sSl}, 0")
    a(f"s_cmp_eq_u32 s{sTY}, 2\ns_cbranch_scc1 {vlab}")
    def mainloop(vtype):
        stamp(a, 1)
        lp = a.uid("qkv_loop")
        a.label(lp)
        a("s_barrier")
        interleave(a, mfmas(3, vtype), reads(0) + reads(1))
        a("s_waitcnt lgkmcnt(6)")
        interleave(a, mfmas(0, vtype), reads(2))
        a("s_waitcnt lgkmcnt(6)")
        interleave(a, mfmas(1, vtype), reads(3))
        a("s_waitcnt lgkmcnt(6)")
        upd = [f"s_add_u32 s{sSl}, s{sSl}, {SLOT}", f"s_and_b32 s{sSl}, s{sSl}, {NS*SLOT-1}"] + \
              [f"v_add_u32 v{8+i}, s{sSl}, v{2+i}" for i in range(6)] + [f"s_sub_u32 s{sC}, s{sC}, 1"]
        interleave(a, mfmas(2, vtype), upd)
        a(f"s_waitcnt lgkmcnt(0)\ns_cmp_lg_u32 s{sC}, 0\ns_cbranch_scc1 {lp}")
        for m in mfmas(3, vtype): a(m)
        stamp(a, 2)
    mainloop(False)
    a("s_waitcnt vmcnt(0)")
    row_stats(a, VST, 16, 17)
    a(f"""
    s_cmp_eq_u32 s{sTY}, 0
    s_cselect_b32 s{t+7}, {f32(QSCALE)}, 1.0
    v_mul_f32 v17, s{t+7}, v17
    v_mov_b32 v18, v16
    v_mov_b32 v19, v17
    s_nop 1
    v_permlane32_swap_b32 v16, v18
    v_permlane32_swap_b32 v17, v19
    """)
    a(f"""
    s_mul_i32 s{t+7}, s{sTY}, {ACT}
    s_lshl_b32 s{t+8}, s{sRT}, 2
    s_lshl_b32 s{t+11}, s{sWM}, 1
    s_add_u32 s{t+8}, s{t+8}, s{t+11}
    s_mul_i32 s{t+8}, s{t+8}, 1280
    s_add_u32 s{t+7}, s{t+7}, s{t+8}
    s_add_u32 s{t+7}, s{t+7}, {WS_Q}
    s_lshr_b32 s{t+8}, s{sC0}, 2
    s_lshl_b32 s{t+11}, s{sWN}, 4
    s_add_u32 s{t+8}, s{t+8}, s{t+11}
    v_add_u32 v20, s{t+8}, v14
    v_lshlrev_b32 v21, 4, v15
    v_lshlrev_b32 v22, 3, v15
    v_add_u32 v22, 1024, v22
    s_mov_b32 s{t+12}, {HEADB}
    """)
    for tn in range(2):
        for q in range(4):
            a(f"""
            v_add_u32 v23, {8*tn+2*q}, v20
            v_mul_u32_u24 v24, 205, v23
            v_lshrrev_b32 v24, 10, v24
            v_mad_i32_i24 v23, v24, -5, v23
            v_lshrrev_b32 v25, 1, v23
            v_lshl_add_u32 v25, v25, 9, v21
            v_and_b32 v26, 1, v23
            v_lshl_add_u32 v25, v26, 3, v25
            v_cmp_eq_u32 vcc, 4, v23
            v_mul_lo_u32 v24, v24, s{t+12}
            s_nop 0
            v_cndmask_b32 v25, v25, v22, vcc
            v_add_u32 v25, v25, v24
            """)
            for tm in range(2):
                c = ACC + 16*(2*tn + tm) + 4*q
                cs = VCS + 16*tn + 4*q
                o = 28 + 6*tm
                for i in range(4):
                    a(f"v_fma_f32 v{o+i}, -v{16+2*tm}, v{cs+i}, v{c+i}")
                for i in range(4):
                    a(f"v_mul_f32 v{o+i}, v{17+2*tm}, v{o+i}")
                a(f"v_cvt_pk_bf16_f32 v{o+4}, v{o}, v{o+1}\nv_cvt_pk_bf16_f32 v{o+5}, v{o+2}, v{o+3}")
                a(f"buffer_store_dwordx2 v[{o+4}:{o+5}], v25, s[{R_WS}:{R_WS+3}], s{t+7} offen offset:{1280*tm}")
    stamp(a, 3)
    a(f"s_branch {done}")
    a.label(vlab)
    mainloop(True)
    a("s_waitcnt vmcnt(0)")
    row_stats(a, VST, 16, 17)
    a(f"""
    s_lshl_b32 s{t+7}, s{sW}, 9
    s_add_u32 s{t+7}, s{t+7}, {STAT}
    v_lshlrev_b32 v1, 2, v0
    v_add_u32 v1, s{t+7}, v1
    ds_write_b32 v1, v16
    ds_write_b32 v1, v17 offset:256
    v_lshlrev_b32 v1, 4, v14
    v_add_u32 v1, s{t+7}, v1
    s_waitcnt lgkmcnt(0)
    """)
    VM, VR = 32, 64
    for tm in range(2):
        for q in range(4):
            a(f"ds_read_b128 v[{VM+16*tm+4*q}:{VM+16*tm+4*q+3}], v1 offset:{(32*tm+8*q)*4}")
            a(f"ds_read_b128 v[{VR+16*tm+4*q}:{VR+16*tm+4*q+3}], v1 offset:{256+(32*tm+8*q)*4}")
    a(f"""
    s_lshl_b32 s{t+8}, s{sRT}, 3
    s_lshl_b32 s{t+11}, s{sWM}, 2
    s_add_u32 s{t+8}, s{t+8}, s{t+11}
    s_mul_i32 s{t+7}, s{t+8}, 640
    s_add_u32 s{t+7}, s{t+7}, {WS_V}
    s_lshl_b32 s{t+11}, s{sWN}, 6
    s_add_u32 s{t+8}, s{sC0}, s{t+11}
    v_add_u32 v20, s{t+8}, v15
    v_mul_u32_u24 v21, 320, v14
    s_mov_b32 s{t+12}, {HEADB}
    s_movk_i32 s{t+13}, 3277
    s_movk_i32 s{t+14}, -20
    """)
    for tn in range(2):
        a(f"""
        v_add_u32 v23, {32*tn}, v20
        v_mul_u32_u24 v24, s{t+13}, v23
        v_lshrrev_b32 v24, 16, v24
        v_mad_i32_i24 v23, v24, s{t+14}, v23
        v_lshl_add_u32 v23, v23, 4, v21
        v_mul_lo_u32 v24, v24, s{t+12}
        v_add_u32 v{18+tn}, v23, v24
        """)
    a("s_waitcnt lgkmcnt(0)")
    for tn in range(2):
        for tm in range(2):
            c = ACC + 16*(2*tn + tm)
            for i in range(16):
                a(f"v_fma_f32 v{c+i}, -v{VM+16*tm+i}, v{VCV+tn}, v{c+i}")
            for i in range(16):
                a(f"v_mul_f32 v{c+i}, v{VR+16*tm+i}, v{c+i}")
            o = 96 + 8*(2*tn+tm)
            for i in range(8):
                a(f"v_cvt_pk_bf16_f32 v{o+i}, v{c+2*i}, v{c+2*i+1}")
            for b in range(2):
                a(f"buffer_store_dwordx4 v[{o+4*b}:{o+4*b+3}], v{18+tn}, s[{R_WS}:{R_WS+3}], s{t+7} offen offset:{640*(2*tm+b)}")
    a(f"s_branch {done}")
    a.label(ld)
    srd_sel(a, R_A, P_X, 0, P_WS, WS_X2, ACT)
    srd(a, R_W, P_WQKV, D*3*D*2)
    sLW, sAo, sWo, sM, sTmp = t+5, t+6, t+7, t+8, t+9
    a(f"""
    s_sub_u32 s{sLW}, s{sW}, 4
    v_lshrrev_b32 v1, 3, v0
    v_mul_u32_u24 v1, 1280, v1
    v_lshrrev_b32 v2, 4, v0
    v_and_b32 v3, 7, v0
    v_xor_b32 v3, v3, v2
    v_lshl_add_u32 v4, v3, 4, v1
    v_xor_b32 v3, 4, v3
    v_lshl_add_u32 v5, v3, 4, v1
    v_mul_u32_u24 v1, 3840, v2
    v_lshlrev_b32 v2, 2, v2
    v_and_b32 v3, 15, v0
    v_xor_b32 v3, v3, v2
    v_lshl_add_u32 v6, v3, 4, v1
    s_lshl_b32 s{sAo}, s{sRT}, 2
    s_add_u32 s{sAo}, s{sAo}, s{sLW}
    s_mul_i32 s{sAo}, s{sAo}, {32*1280}
    s_mul_i32 s{sWo}, s{sLW}, {16*3840}
    s_lshl_b32 s{sTmp}, s{sCT}, 8
    s_add_u32 s{sWo}, s{sWo}, s{sTmp}
    s_lshl_b32 s{sM}, s{sLW}, 12
    """)
    def issue():
        for i in range(4):
            dma(a, 4 + (i & 1), R_A, (f"s{sTmp}", f"s_add_u32 s{sTmp}, s{sAo}, {i*8*1280}"), f"s_add_u32 m0, s{sM}, {1024*i}")
        for i in range(4):
            dma(a, 6, R_W, (f"s{sTmp}", f"s_add_u32 s{sTmp}, s{sWo}, {i*4*3840}"), f"s_add_u32 m0, s{sM}, {16384+1024*i}")
        a(f"""
        s_add_u32 s{sAo}, s{sAo}, 128
        s_add_u32 s{sWo}, s{sWo}, {64*3840}
        s_add_u32 s{sM}, s{sM}, {SLOT}
        s_and_b32 s{sM}, s{sM}, {NS*SLOT-1}
        """)
    loader_loop(a, 10, NS, 8, issue)
    a.label(done)

def phase_attn(a):
    t = T
    NCH = 4; CH = 20480; NS = 4
    sQP, sKH, sKo, sM, sTmp, sC = t, t+1, t+2, t+3, t+4, t+5
    sEX = t+6
    QA, QB = 16, 22
    NM = 32
    SS = 64
    PP = 96
    OO = 112
    KF = 144
    VF = 160
    vK, vK8, vV = 2, 3, 4
    a(f"""
    s_and_b32 s{sQP}, s{sW}, 3
    s_lshr_b32 s{sKH}, s{sW}, 2
    v_lshrrev_b32 v14, 5, v0
    v_and_b32 v15, 31, v0
    v_lshlrev_b32 v5, 4, v0
    s_mul_i32 s{sKo}, s{sR}, {HEADB}
    """)
    a(f"""
    s_lshl_b32 s{sTmp}, s{sG}, 3
    s_lshl_b32 s{sC}, s{sQP}, 1
    s_add_u32 s{sTmp}, s{sTmp}, s{sC}
    s_mul_i32 s{sTmp}, s{sTmp}, 1280
    s_add_u32 s{sTmp}, s{sTmp}, s{sKo}
    s_add_u32 s{sTmp}, s{sTmp}, {WS_Q}
    v_lshlrev_b32 v6, 3, v15
    buffer_load_dwordx4 v[{QA}:{QA+3}], v5, s[{R_WS}:{R_WS+3}], s{sTmp} offen
    buffer_load_dwordx2 v[{QA+4}:{QA+5}], v6, s[{R_WS}:{R_WS+3}], s{sTmp} offen offset:1024
    buffer_load_dwordx4 v[{QB}:{QB+3}], v5, s[{R_WS}:{R_WS+3}], s{sTmp} offen offset:1280
    buffer_load_dwordx2 v[{QB+4}:{QB+5}], v6, s[{R_WS}:{R_WS+3}], s{sTmp} offen offset:{1280+1024}
    """)
    a(f"""
    s_mul_i32 s{sTmp}, s{sKH}, 40960
    s_add_u32 s{sKo}, s{sKo}, s{sTmp}
    s_and_b32 s{sTmp}, s{sQP}, 1
    s_mul_i32 s{sTmp}, s{sTmp}, 5120
    s_add_u32 s{sKo}, s{sKo}, s{sTmp}
    s_cmp_ge_u32 s{sQP}, 2
    s_mov_b32 s{sTmp}, {WS_K}
    s_cselect_b32 s{sTmp}, {WS_V}, s{sTmp}
    s_add_u32 s{sKo}, s{sKo}, s{sTmp}
    s_mul_i32 s{sM}, s{sKH}, {NCH*CH}
    s_mul_i32 s{sTmp}, s{sQP}, 5120
    s_add_u32 s{sM}, s{sM}, s{sTmp}
    """)
    def issue():
        a(f"s_mov_b32 m0, s{sM}")
        a(f"s_add_u32 s{sM}, s{sM}, {CH}")
        for i in range(4):
            a(f"buffer_load_dwordx4 v5, s[{R_WS}:{R_WS+3}], s{sKo} offen offset:{1024*i} lds")
        a(f"s_add_u32 m0, m0, 4096\ns_add_u32 s{sTmp}, s{sKo}, 4096")
        a(f"buffer_load_dwordx4 v5, s[{R_WS}:{R_WS+3}], s{sTmp} offen lds")
        a(f"s_add_u32 s{sKo}, s{sKo}, 10240")
    issue(); issue()
    a(f"""
    s_mul_i32 s{sTmp}, s{sKH}, {NCH*CH}
    v_add_u32 v{vK}, s{sTmp}, v5
    v_add_u32 v{vK8}, s{sTmp}, v6
    v_mul_u32_u24 v7, 320, v14
    v_lshl_add_u32 v7, v15, 4, v7
    v_add_u32 v{vV}, s{sTmp}, v7
    s_mov_b32 s{sEX}, 0x000fffff
    s_mov_b32 s{sEX+1}, 0x000fffff
    """)
    for i in range(16): a(f"v_mov_b32 v{VF+i}, 0x3f803f80")
    for i in range(32): a(f"v_mov_b32 v{OO+i}, 0")
    for i in range(8): a(f"v_mov_b32 v{PP+8+i}, 0")
    a("s_waitcnt vmcnt(10)")
    a(f"""
    v_cmp_gt_u32 vcc, 32, v0
    s_nop 1
    v_cndmask_b32 v{QA+4}, 0, v{QA+4}, vcc
    v_cndmask_b32 v{QA+5}, 0, v{QA+5}, vcc
    v_cndmask_b32 v{QB+4}, 0, v{QB+4}, vcc
    v_cndmask_b32 v{QB+5}, 0, v{QB+5}, vcc
    s_waitcnt vmcnt(5)
    s_barrier
    """)
    stamp(a, 1)
    def rdK(st, kt):
        off = (kt % 8) * 1280 + (kt // 8) * CH
        b = KF + 8*st
        return [f"ds_read_b128 v[{b}:{b+3}], v{vK} offset:{off}",
                f"ds_read_b64 v[{b+4}:{b+5}], v{vK8} offset:{off+1024}"]
    def rdV(st, kt):
        off = 10240 + kt * 1280
        b = VF + 8*st
        return [f"s_mov_b64 exec, s[{sEX}:{sEX+1}]",
                f"ds_read_b128 v[{b}:{b+3}], v{vV} offset:{off}",
                f"ds_read_b128 v[{b+4}:{b+7}], v{vV} offset:{off+640}",
                f"s_mov_b64 exec, -1"]
    def qk(x, st, c=None):
        b = KF + 8*st; q = (QA, QB)[x]; sd = SS + 16*x
        cc = v(NM + 16*x, 16) if c is None else c
        return [f"v_mfma_f32_32x32x16_bf16 {v(sd,16)}, {v(b,4)}, {v(q,4)}, {cc}",
                f"v_mfma_f32_32x32x8_bf16 {v(sd,16)}, {v(b+4,2)}, {v(q+4,2)}, {v(sd,16)}"]
    def pv(x, st):
        b = VF + 8*st; p = PP + 8*x; o = OO + 16*x
        return [f"v_mfma_f32_32x32x16_bf16 {v(o,16)}, {v(b,4)}, {v(p,4)}, {v(o,16)}",
                f"v_mfma_f32_32x32x16_bf16 {v(o,16)}, {v(b+4,4)}, {v(p+4,4)}, {v(o,16)}"]
    def sm(x):
        sd = SS + 16*x; p = PP + 8*x
        r = []
        for i in range(8):
            r.append(f"v_exp_f32 v{sd+2*i}, v{sd+2*i}")
            r.append(f"v_exp_f32 v{sd+2*i+1}, v{sd+2*i+1}")
            if i > 0: r.append(f"v_cvt_pk_bf16_f32 v{p+i-1}, v{sd+2*i-2}, v{sd+2*i-1}")
        r.append("s_nop 0")
        r.append(f"v_cvt_pk_bf16_f32 v{p+7}, v{sd+14}, v{sd+15}")
        return r
    for x in rdK(0, 0): a(x)
    a("s_waitcnt lgkmcnt(0)")
    for x in range(2):
        for m in qk(x, 0, "0"): a(m)
    a.nop(12)
    for x in range(2):
        sd = SS + 16*x
        a(f"v_max3_f32 v{8+x}, v{sd}, v{sd+1}, v{sd+2}")
        for i in range(3, 15, 2):
            a(f"v_max3_f32 v{8+x}, v{8+x}, v{sd+i}, v{sd+i+1}")
        a(f"v_max_f32 v{8+x}, v{8+x}, v{sd+15}")
        a(f"v_mov_b32 v{10+x}, v{8+x}")
    a("s_nop 1")
    for x in range(2):
        a(f"v_permlane32_swap_b32 v{8+x}, v{10+x}")
    a("s_nop 1")
    for x in range(2):
        a(f"v_max_f32 v{8+x}, v{8+x}, v{10+x}")
    for x in range(2):
        for i in range(16):
            a(f"v_sub_f32 v{NM+16*x+i}, 0, v{8+x}")
    a("s_nop 1")
    for m in qk(0, 0): a(m)
    a(f"s_mov_b32 s{sC}, 0")
    lp = a.uid("att_loop"); nodma = a.uid("att_nodma"); nobar = a.uid("att_nobar")
    a.nop(8)
    stamp(a, 2)
    a.label(lp)
    a(f"s_cmp_ge_u32 s{sC}, {NCH-2}\ns_cbranch_scc1 {nodma}")
    issue()
    a.label(nodma)
    for kt in range(8):
        st = kt & 1
        val = sm(0)
        if kt == 7:
            pre = [f"s_cmp_ge_u32 s{sC}, {NCH-1}", f"s_cbranch_scc1 {nobar}",
                   f"s_cmp_ge_u32 s{sC}, {NCH-2}", f"s_cbranch_scc1 {nobar}_w0",
                   "s_waitcnt vmcnt(5)", f"{nobar}_w1:", "s_barrier", f"{nobar}:"]
            for x in pre:
                if x.endswith(":"): a.label(x[:-1])
                else: a(x)
        mf = qk(1, st) + pv(1, st ^ 1)
        ex = rdV(st, kt) + rdK(st ^ 1, kt + 1)
        a(mf[0]); [a(x) for x in ex[:4]]; [a(x) for x in val[0:6]]
        a(mf[1]); [a(x) for x in ex[4:]]; [a(x) for x in val[6:12]]
        a(mf[2]); [a(x) for x in val[12:18]]
        a(mf[3]); [a(x) for x in val[18:]]
        val = sm(1)
        mf = qk(0, st ^ 1) + pv(0, st)
        a("s_waitcnt lgkmcnt(0)")
        a(mf[0]); [a(x) for x in val[0:6]]
        a(mf[1]); [a(x) for x in val[6:12]]
        a(mf[2]); [a(x) for x in val[12:18]]
        a(mf[3]); [a(x) for x in val[18:]]
    a(f"""
    v_add_u32 v{vK}, {CH}, v{vK}
    v_add_u32 v{vK8}, {CH}, v{vK8}
    v_add_u32 v{vV}, {CH}, v{vV}
    s_add_u32 s{sC}, s{sC}, 1
    s_cmp_lt_u32 s{sC}, {NCH}
    s_cbranch_scc1 {lp}
    """)
    for m in pv(1, 1): a(m)
    stamp(a, 3)
    fb = a.uid("att_fb"); comb = a.uid("att_comb"); done = a.uid("att_done")
    a.nop(12)
    a(f"v_mul_f32 v10, {f32(2.0**63)}, v{OO+12}\nv_mul_f32 v11, {f32(2.0**63)}, v{OO+16+12}")
    a(f"v_add_f32 v10, v10, v10\nv_add_f32 v11, v11, v11\nv_mul_f32 v10, 0, v10\nv_mul_f32 v11, 0, v11")
    for i in range(12):
        a(f"v_fma_f32 v10, v{OO+i}, 0, v10\nv_fma_f32 v11, v{OO+16+i}, 0, v11")
    a(f"v_cmp_u_f32 vcc, v10, v11\ns_cbranch_vccnz {fb}")
    a.label(comb)
    a("s_barrier")
    swp = a.uid("att_swp")
    a(f"s_cmp_eq_u32 s{sKH}, 0\ns_cbranch_scc1 {swp}")
    for i in range(13):
        a(f"v_swap_b32 v{OO+i}, v{OO+16+i}")
    a("v_swap_b32 v8, v9")
    a.label(swp)
    a(f"""
    v_mov_b32 v{OO+16+13}, v9
    s_lshl_b32 s{sTmp}, s{sW}, 12
    v_add_u32 v1, s{sTmp}, v5
    s_xor_b32 s{sTmp}, s{sTmp}, {4<<12}
    v_add_u32 v2, s{sTmp}, v5
    """)
    for i in range(4):
        a(f"ds_write_b128 v1, v[{OO+16+4*i}:{OO+16+4*i+3}] offset:{1024*i}")
    a("s_waitcnt lgkmcnt(0)\ns_barrier")
    for i in range(4):
        a(f"ds_read_b128 v[{64+4*i}:{64+4*i+3}], v2 offset:{1024*i}")
    a(f"""
    s_lshl_b32 s{sTmp}, s{sG}, 3
    s_lshl_b32 s{sC}, s{sQP}, 1
    s_add_u32 s{sTmp}, s{sTmp}, s{sC}
    s_add_u32 s{sTmp}, s{sTmp}, s{sKH}
    s_mul_i32 s{sTmp}, s{sTmp}, {32*1280}
    s_mul_i32 s{sC}, s{sR}, 40
    s_add_u32 s{sTmp}, s{sTmp}, s{sC}
    s_add_u32 s{sTmp}, s{sTmp}, {WS_O}
    v_mul_u32_u24 v3, 1280, v15
    v_lshl_add_u32 v3, v14, 3, v3
    s_waitcnt lgkmcnt(0)
    v_max_f32 v10, v8, v77
    v_sub_f32 v11, v8, v10
    v_sub_f32 v12, v77, v10
    v_exp_f32 v11, v11
    v_exp_f32 v12, v12
    s_nop 0
    v_mul_f32 v13, v11, v{OO+12}
    v_fmac_f32 v13, v12, v76
    v_rcp_f32 v13, v13
    s_nop 0
    v_mul_f32 v11, v11, v13
    v_mul_f32 v12, v12, v13
    """)
    for i in range(12):
        a(f"v_mul_f32 v{OO+i}, v11, v{OO+i}\nv_fmac_f32 v{OO+i}, v12, v{64+i}")
    for i in range(6):
        a(f"v_cvt_pk_bf16_f32 v{80+i}, v{OO+2*i}, v{OO+2*i+1}")
    a(f"""
    buffer_store_dwordx2 v[80:81], v3, s[{R_WS}:{R_WS+3}], s{sTmp} offen
    buffer_store_dwordx2 v[82:83], v3, s[{R_WS}:{R_WS+3}], s{sTmp} offen offset:16
    s_mov_b32 exec_hi, 0
    buffer_store_dwordx2 v[84:85], v3, s[{R_WS}:{R_WS+3}], s{sTmp} offen offset:32
    s_mov_b64 exec, -1
    s_branch {done}
    """)
    a.label(f"{nobar}_w0")
    a(f"s_waitcnt vmcnt(0)\ns_branch {nobar}_w1")
    a.label(fb)
    sKb, sVb = t+8, t+9
    a(f"""
    s_mul_i32 s{sKb}, s{sR}, {HEADB}
    s_mul_i32 s{sTmp}, s{sKH}, 40960
    s_add_u32 s{sKb}, s{sKb}, s{sTmp}
    s_add_u32 s{sVb}, s{sKb}, {WS_V}
    s_add_u32 s{sKb}, s{sKb}, {WS_K}
    s_mov_b32 s{sTmp}, s{sKb}
    s_mov_b32 s{sC}, 32
    v_mov_b32 v8, 0xff800000
    v_mov_b32 v9, 0xff800000
    """)
    l1 = a.uid("att_fb1"); l2 = a.uid("att_fb2")
    def ldK():
        a(f"buffer_load_dwordx4 v[{KF}:{KF+3}], v5, s[{R_WS}:{R_WS+3}], s{sTmp} offen")
        a(f"buffer_load_dwordx2 v[{KF+4}:{KF+5}], v6, s[{R_WS}:{R_WS+3}], s{sTmp} offen offset:1024")
    a.label(l1)
    ldK()
    a("s_waitcnt vmcnt(0)")
    for x in range(2):
        for m in qk(x, 0, "0"): a(m)
    a.nop(12)
    for x in range(2):
        sd = SS + 16*x
        for i in range(0, 16, 2):
            a(f"v_max3_f32 v{8+x}, v{8+x}, v{sd+i}, v{sd+i+1}")
    a(f"s_add_u32 s{sTmp}, s{sTmp}, 1280\ns_sub_u32 s{sC}, s{sC}, 1\ns_cmp_lg_u32 s{sC}, 0\ns_cbranch_scc1 {l1}")
    a("v_mov_b32 v10, v8\nv_mov_b32 v11, v9\ns_nop 1")
    for x in range(2): a(f"v_permlane32_swap_b32 v{8+x}, v{10+x}")
    a("s_nop 1")
    for x in range(2): a(f"v_max_f32 v{8+x}, v{8+x}, v{10+x}")
    for x in range(2):
        for i in range(16): a(f"v_sub_f32 v{NM+16*x+i}, 0, v{8+x}")
    for i in range(32): a(f"v_mov_b32 v{OO+i}, 0")
    a(f"s_mov_b32 s{sTmp}, s{sKb}\ns_mov_b32 s{sC}, 32")
    a.label(l2)
    ldK()
    a(f"""
    s_mov_b64 exec, s[{sEX}:{sEX+1}]
    buffer_load_dwordx4 v[{VF}:{VF+3}], v7, s[{R_WS}:{R_WS+3}], s{sVb} offen
    buffer_load_dwordx4 v[{VF+4}:{VF+7}], v7, s[{R_WS}:{R_WS+3}], s{sVb} offen offset:640
    s_mov_b64 exec, -1
    s_waitcnt vmcnt(0)
    """)
    for x in range(2):
        for m in qk(x, 0): a(m)
    a.nop(12)
    for x in range(2):
        for i in sm(x): a(i)
    a("s_nop 1")
    for x in range(2):
        for m in pv(x, 0): a(m)
    a(f"s_add_u32 s{sTmp}, s{sTmp}, 1280\ns_add_u32 s{sVb}, s{sVb}, 1280\ns_sub_u32 s{sC}, s{sC}, 1\ns_cmp_lg_u32 s{sC}, 0\ns_cbranch_scc1 {l2}")
    a.nop(12)
    a(f"s_branch {comb}")
    a.label(done)

def phase_proj(a, down):
    done = a.uid("prj_done"); ld = a.uid("prj_ld")
    t = T
    K = F if down else D
    AST = K * 2
    NCH = K // 128
    NS, SLOT = 4, 36864
    sRT, sCT = t, t+1
    a(f"""
    s_lshr_b32 s{sRT}, s{sR}, 3
    s_and_b32 s{sCT}, s{sR}, 7
    s_lshl_b32 s{t+2}, s{sG}, 2
    s_add_u32 s{sRT}, s{sRT}, s{t+2}
    s_cmp_ge_u32 s{sW}, 4
    s_cbranch_scc1 {ld}
    """)
    sTH, sKH = t+2, t+3
    if down:
        srd(a, R_RES, P_WS, ACT, WS_X1)
        srd_sel(a, R_DST, P_WS, WS_X2, P_OUT, 0, ACT)
    else:
        srd_sel(a, R_RES, P_X, 0, P_WS, WS_X2, ACT)
        srd(a, R_DST, P_WS, ACT, WS_X1)
    ACC = 96; FR = 16
    RES = 72
    a(f"""
    s_and_b32 s{sTH}, s{sW}, 1
    s_lshr_b32 s{sKH}, s{sW}, 1
    v_and_b32 v15, 15, v0
    v_lshrrev_b32 v14, 4, v0
    """)
    sOut = t+4
    a(f"""
    s_lshl_b32 s{sOut}, s{sRT}, 2
    s_lshl_b32 s{t+5}, s{sTH}, 1
    s_add_u32 s{sOut}, s{sOut}, s{t+5}
    s_add_u32 s{sOut}, s{sOut}, s{sKH}
    s_lshl_b32 s{t+11}, s{sOut}, 10
    s_mul_i32 s{sOut}, s{sOut}, {16*1280}
    s_mul_i32 s{t+5}, s{sCT}, 160
    s_add_u32 s{sOut}, s{sOut}, s{t+5}
    v_mul_u32_u24 v13, 1280, v15
    v_lshl_add_u32 v13, v14, 3, v13
    """)
    for j in range(5):
        a(f"buffer_load_dwordx2 v[{RES+2*j}:{RES+2*j+1}], v13, s[{R_RES}:{R_RES+3}], s{sOut} offen offset:{32*j}")
    a(f"""
    s_lshl_b32 s{t+5}, s{sTH}, 12
    v_lshlrev_b32 v1, 7, v15
    v_add_u32 v1, s{t+5}, v1
    v_bfe_u32 v8, v0, 1, 3
    v_xor_b32 v8, v8, v14
    s_lshl_b32 s{t+5}, s{sKH}, 2
    v_xor_b32 v8, s{t+5}, v8
    v_lshl_add_u32 v2, v8, 4, v1
    """)
    a(f"""
    v_bfe_u32 v8, v0, 2, 3
    v_lshrrev_b32 v9, 5, v0
    v_lshl_add_u32 v8, v9, 4, v8
    s_lshl_b32 s{t+5}, s{sKH}, 5
    v_add_u32 v8, s{t+5}, v8
    v_mul_u32_u24 v8, 160, v8
    v_and_b32 v9, 3, v0
    v_lshl_add_u32 v8, v9, 3, v8
    v_add_u32 v3, 16384, v8
    v_mov_b32 v4, v2
    v_mov_b32 v5, v3
    """)
    for i in range(40): a(f"v_mov_b32 v{ACC+i}, 0")
    for i in range(28): a(f"v_mov_b32 v{FR+28+i}, 0")
    def reads(u):
        b = FR + 28*u
        r = []
        for tm in range(2):
            r.append(f"ds_read_b128 v[{b+4*tm}:{b+4*tm+3}], v4 offset:{8192*u+2048*tm}")
        for jn in range(5):
            for j in range(2):
                d = b + 8 + 4*jn + 2*j
                r.append(f"ds_read_b64_tr_b16 v[{d}:{d+1}], v5 offset:{160*(64*u+8*j)+32*jn}")
        return r
    def mfmas(u):
        b = FR + 28*u
        m = []
        for jn in range(5):
            for tm in range(2):
                c = ACC + 20*tm + 4*jn
                m.append(f"v_mfma_f32_16x16x32_bf16 {v(c,4)}, {v(b+8+4*jn,4)}, {v(b+4*tm,4)}, {v(c,4)}")
        return m
    sC, sSl = t+6, t+7
    a(f"s_mov_b32 s{sC}, {NCH}\ns_mov_b32 s{sSl}, 0")
    stamp(a, 1)
    lp = a.uid("prj_loop")
    a.label(lp)
    a("s_barrier")
    interleave(a, mfmas(1), reads(0))
    r1 = reads(1)
    a(r1[0]); a(r1[1])
    a("s_waitcnt lgkmcnt(2)")
    interleave(a, mfmas(0), r1[2:])
    a(f"""
    s_add_u32 s{sSl}, s{sSl}, {SLOT}
    s_cmp_eq_u32 s{sSl}, {NS*SLOT}
    s_cselect_b32 s{sSl}, 0, s{sSl}
    v_add_u32 v4, s{sSl}, v2
    v_add_u32 v5, s{sSl}, v3
    s_sub_u32 s{sC}, s{sC}, 1
    s_waitcnt lgkmcnt(0)
    s_cmp_lg_u32 s{sC}, 0
    s_cbranch_scc1 {lp}
    """)
    for m in mfmas(1): a(m)
    stamp(a, 2)
    a("s_barrier")
    swp = a.uid("prj_swp")
    a(f"""
    s_mul_i32 s{t+5}, s{sW}, 5120
    v_lshlrev_b32 v1, 4, v0
    v_add_u32 v2, s{t+5}, v1
    s_xor_b32 s{t+8}, s{sW}, 2
    s_mul_i32 s{t+8}, s{t+8}, 5120
    v_add_u32 v3, s{t+8}, v1
    s_nop 1
    s_cmp_eq_u32 s{sKH}, 0
    s_cbranch_scc1 {swp}
    """)
    for i in range(20): a(f"v_swap_b32 v{ACC+i}, v{ACC+20+i}")
    a.label(swp)
    for j in range(5):
        a(f"ds_write_b128 v2, v[{ACC+20+4*j}:{ACC+20+4*j+3}] offset:{1024*j}")
    a("s_waitcnt lgkmcnt(0)\ns_barrier")
    for j in range(5):
        a(f"ds_read_b128 v[{16+4*j}:{16+4*j+3}], v3 offset:{1024*j}")
    a(f"s_mov_b32 s{t+8}, 0xffff0000\ns_waitcnt vmcnt(0)")
    for j in range(5):
        for i in range(2):
            r = RES + 2*j + i; c = ACC + 4*j + 2*i
            a(f"v_lshlrev_b32 v8, 16, v{r}\nv_and_b32 v9, s{t+8}, v{r}")
            a(f"v_add_f32 v{c}, v{c}, v8\nv_add_f32 v{c+1}, v{c+1}, v9")
    a("v_mov_b32 v10, 0\nv_mov_b32 v11, 0\ns_waitcnt lgkmcnt(0)")
    for j in range(5):
        for i in range(4):
            a(f"v_add_f32 v{ACC+4*j+i}, v{ACC+4*j+i}, v{16+4*j+i}")
        o = 40 + 2*j
        a(f"v_cvt_pk_bf16_f32 v{o}, v{ACC+4*j}, v{ACC+4*j+1}\nv_cvt_pk_bf16_f32 v{o+1}, v{ACC+4*j+2}, v{ACC+4*j+3}")
        a(f"buffer_store_dwordx2 v[{o}:{o+1}], v13, s[{R_DST}:{R_DST+3}], s{sOut} offen offset:{32*j}")
        for i in range(2):
            a(f"v_lshlrev_b32 v8, 16, v{o+i}\nv_and_b32 v9, s{t+8}, v{o+i}")
            a(f"v_add_f32 v10, v10, v8\nv_fmac_f32 v11, v8, v8\nv_add_f32 v10, v10, v9\nv_fmac_f32 v11, v9, v9")
    a(f"""
    s_nop 1
    v_permlane32_swap_b32 v10, v11
    s_nop 1
    v_add_f32 v10, v10, v11
    v_mov_b32 v11, v10
    s_nop 1
    v_permlane16_swap_b32 v10, v11
    s_nop 1
    v_add_f32 v10, v10, v11
    s_lshl_b32 s{t+5}, s{sCT}, 3
    s_add_u32 s{t+11}, s{t+11}, s{t+5}
    s_add_u32 s{t+11}, s{t+11}, {WS_ST2 if down else WS_ST1}
    v_lshrrev_b32 v8, 5, v0
    v_lshlrev_b32 v8, 2, v8
    v_lshl_add_u32 v8, v15, 6, v8
    buffer_store_dword v10, v8, s[{R_WS}:{R_WS+3}], s{t+11} offen
    s_branch {done}
    """)
    a.label(ld)
    srd(a, R_A, P_WS, S*K*2, WS_H if down else WS_O)
    srd(a, R_W, P_WD if down else P_WO, K*D*2)
    sLW, sAo, sWo, sM, sTmp, sM2 = t+2, t+3, t+4, t+5, t+6, t+7
    a(f"""
    s_sub_u32 s{sLW}, s{sW}, 4
    v_lshrrev_b32 v1, 3, v0
    v_mul_u32_u24 v1, {AST}, v1
    v_lshrrev_b32 v2, 4, v0
    v_and_b32 v3, 7, v0
    v_xor_b32 v3, v3, v2
    v_lshl_add_u32 v4, v3, 4, v1
    v_xor_b32 v3, 4, v3
    v_lshl_add_u32 v5, v3, 4, v1
    s_lshl_b32 s{sAo}, s{sRT}, 1
    s_and_b32 s{sTmp}, s{sLW}, 1
    s_add_u32 s{sAo}, s{sAo}, s{sTmp}
    s_mul_i32 s{sAo}, s{sAo}, {32*AST}
    s_lshr_b32 s{sTmp}, s{sLW}, 1
    s_lshl_b32 s{sTmp}, s{sTmp}, 7
    s_add_u32 s{sAo}, s{sAo}, s{sTmp}
    s_mul_i32 s{sWo}, s{sLW}, {32*1280}
    s_mul_i32 s{sTmp}, s{sCT}, 160
    s_add_u32 s{sWo}, s{sWo}, s{sTmp}
    s_lshl_b32 s{sM}, s{sLW}, 12
    s_mul_i32 s{sM2}, s{sLW}, 5120
    s_add_u32 s{sM2}, s{sM2}, 16384
    s_movk_i32 s{sTmp}, 6554
    """)
    for i in range(5):
        a(f"""
        v_add_u32 v1, {64*i}, v0
        v_mul_u32_u24 v2, s{sTmp}, v1
        v_lshrrev_b32 v2, 16, v2
        v_mad_i32_i24 v1, v2, -10, v1
        v_and_b32 v3, 0x33, v2
        v_bfe_u32 v11, v2, 2, 1
        v_lshl_add_u32 v3, v11, 3, v3
        v_bfe_u32 v11, v2, 3, 1
        v_lshl_add_u32 v3, v11, 2, v3
        v_mul_u32_u24 v3, 1280, v3
        v_lshl_add_u32 v{6+i}, v1, 4, v3
        """)
    sSl = t+8
    a(f"s_mov_b32 s{sSl}, 0")
    def issue():
        a(f"s_add_u32 s{t+9}, s{sSl}, s{sM}\ns_add_u32 s{t+10}, s{sSl}, s{sM2}")
        for i in range(4):
            dma(a, 4 + (i & 1), R_A, (f"s{sTmp}", f"s_add_u32 s{sTmp}, s{sAo}, {i*8*AST}"), f"s_add_u32 m0, s{t+9}, {1024*i}")
        for i in range(5):
            dma(a, 6 + i, R_W, (f"s{sWo}", "s_nop 0"), f"s_add_u32 m0, s{t+10}, {1024*i}")
        a(f"""
        s_add_u32 s{sAo}, s{sAo}, 256
        s_add_u32 s{sWo}, s{sWo}, {128*1280}
        s_add_u32 s{sSl}, s{sSl}, {SLOT}
        s_cmp_eq_u32 s{sSl}, {NS*SLOT}
        s_cselect_b32 s{sSl}, 0, s{sSl}
        """)
    loader_loop(a, NCH, NS, 9, issue)
    a("s_barrier\ns_barrier")
    a.label(done)

def phase_gu(a):
    done = a.uid("gu_done"); ld = a.uid("gu_ld")
    t = T
    NS, SLOT = 4, 40960
    sRT, sCT = t, t+1
    a(f"""
    s_lshr_b32 s{sRT}, s{sR}, 4
    s_and_b32 s{sCT}, s{sR}, 15
    s_lshl_b32 s{t+2}, s{sG}, 1
    s_add_u32 s{sRT}, s{sRT}, s{t+2}
    s_cmp_ge_u32 s{sW}, 4
    s_cbranch_scc1 {ld}
    """)
    sWM, sWN = t+2, t+3
    FR = 16; ACC = 96; VCS = 192; VST = 240
    a(f"""
    s_and_b32 s{sWM}, s{sW}, 1
    s_lshr_b32 s{sWN}, s{sW}, 1
    s_lshl_b32 s{t+4}, s{sRT}, 1
    s_add_u32 s{t+4}, s{t+4}, s{sWM}
    s_lshl_b32 s{t+5}, s{t+4}, 12
    s_add_u32 s{t+5}, s{t+5}, {WS_ST1}
    v_lshlrev_b32 v1, 6, v0
    """)
    for i in range(4):
        a(f"buffer_load_dwordx4 v[{VST+4*i}:{VST+4*i+3}], v1, s[{R_WS}:{R_WS+3}], s{t+5} offen offset:{16*i}")
    sF0 = t+6
    a(f"""
    s_mul_i32 s{sF0}, s{sCT}, 96
    s_mul_i32 s{t+5}, s{sWN}, 48
    s_add_u32 s{sF0}, s{sF0}, s{t+5}
    s_lshl_b32 s{t+5}, s{sF0}, 2
    s_add_u32 s{t+5}, s{t+5}, {WS_CSG}
    s_add_u32 s{t+7}, s{t+5}, {F*4}
    v_lshrrev_b32 v14, 5, v0
    v_and_b32 v15, 31, v0
    v_lshlrev_b32 v1, 4, v14
    """)
    for jn in range(3):
        for q in range(4):
            r = VCS + 16*jn + 4*q
            a(f"buffer_load_dwordx4 v[{r}:{r+3}], v1, s[{R_WS}:{R_WS+3}], s{t+5 if q < 2 else t+7} offen offset:{(16*jn+8*(q&1))*4}")
    a(f"""
    s_lshl_b32 s{t+5}, s{sWM}, 13
    v_lshlrev_b32 v1, 7, v15
    v_add_u32 v1, s{t+5}, v1
    v_bfe_u32 v8, v0, 1, 3
    v_xor_b32 v8, v8, v14
    """)
    for kk in range(4):
        a(f"v_xor_b32 v9, {2*kk}, v8\nv_lshl_add_u32 v{2+kk}, v9, 4, v1")
    a(f"""
    v_bfe_u32 v8, v0, 2, 2
    v_lshl_add_u32 v8, v14, 3, v8
    v_mul_u32_u24 v8, 192, v8
    v_and_b32 v9, 3, v0
    v_lshl_add_u32 v8, v9, 3, v8
    v_bfe_u32 v9, v0, 4, 1
    v_mul_u32_u24 v10, 12288, v9
    v_add_u32 v8, v8, v10
    v_add_u32 v8, 16384, v8
    s_mul_i32 s{t+5}, s{sWN}, 3
    v_xor_b32 v10, s{t+5}, v9
    v_lshl_add_u32 v6, v10, 5, v8
    s_add_u32 s{t+5}, s{t+5}, 1
    v_xor_b32 v10, s{t+5}, v9
    v_lshl_add_u32 v7, v10, 5, v8
    """)
    for i in range(6): a(f"v_mov_b32 v{8+i}, v{2+i}")
    for i in range(96): a(f"v_mov_b32 v{ACC+i}, 0")
    for i in range(20): a(f"v_mov_b32 v{FR+60+i}, 0")
    def reads(kk):
        b = FR + 20*kk
        r = []
        for tm in range(2):
            r.append(f"ds_read_b128 v[{b+4*tm}:{b+4*tm+3}], v{8+kk} offset:{4096*tm}")
        for jn in range(3):
            for j in range(2):
                d = b + 8 + 4*jn + 2*j
                r.append(f"ds_read_b64_tr_b16 v[{d}:{d+1}], v{12+(jn&1)} offset:{192*(16*kk+4*j)+64*(jn>>1)}")
        return r
    def mfmas(kk):
        b = FR + 20*kk
        m = []
        for jn in range(3):
            for tm in range(2):
                c = ACC + 16*(2*jn + tm)
                m.append(f"v_mfma_f32_32x32x16_bf16 {v(c,16)}, {v(b+8+4*jn,4)}, {v(b+4*tm,4)}, {v(c,16)}")
        return m
    sC, sSl = t+8, t+9
    a(f"s_mov_b32 s{sC}, 10\ns_mov_b32 s{sSl}, 0")
    stamp(a, 1)
    lp = a.uid("gu_loop")
    a.label(lp)
    a("s_barrier")
    r1 = reads(1)
    interleave(a, mfmas(3), reads(0) + r1[:7])
    a(r1[7])
    a("s_waitcnt lgkmcnt(8)")
    interleave(a, mfmas(0), reads(2))
    a("s_waitcnt lgkmcnt(8)")
    interleave(a, mfmas(1), reads(3))
    a("s_waitcnt lgkmcnt(8)")
    upd = [f"s_add_u32 s{sSl}, s{sSl}, {SLOT}", f"s_cmp_eq_u32 s{sSl}, {NS*SLOT}", f"s_cselect_b32 s{sSl}, 0, s{sSl}"] + \
          [f"v_add_u32 v{8+i}, s{sSl}, v{2+i}" for i in range(6)] + [f"s_sub_u32 s{sC}, s{sC}, 1"]
    interleave(a, mfmas(2), upd)
    a(f"s_waitcnt lgkmcnt(0)\ns_cmp_lg_u32 s{sC}, 0\ns_cbranch_scc1 {lp}")
    for m in mfmas(3): a(m)
    stamp(a, 2)
    a("s_waitcnt vmcnt(0)")
    row_stats(a, VST, 16, 17)
    a(f"""
    v_mul_f32 v17, v17, v17
    v_mov_b32 v18, v16
    v_mov_b32 v19, v17
    s_nop 1
    v_permlane32_swap_b32 v16, v18
    v_permlane32_swap_b32 v17, v19
    s_mul_i32 s{t+5}, s{t+4}, {64*F*2}
    s_lshl_b32 s{t+7}, s{sF0}, 1
    s_add_u32 s{t+5}, s{t+5}, s{t+7}
    s_add_u32 s{t+5}, s{t+5}, {WS_H}
    s_add_u32 s{t+7}, s{t+5}, {32*F*2}
    v_mul_u32_u24 v1, {F*2}, v15
    v_lshl_add_u32 v1, v14, 4, v1
    """)
    for jn in range(3):
        for tm in range(2):
            c = ACC + 16*(2*jn + tm); cs = VCS + 16*jn
            for i in range(16):
                a(f"v_fma_f32 v{c+i}, -v{16+2*tm}, v{cs+i}, v{c+i}")
            for i in range(8):
                a(f"v_max_f32 v{c+i}, 0, v{c+i}\nv_mul_f32 v{c+8+i}, v{17+2*tm}, v{c+8+i}")
            for i in range(8):
                a(f"v_mul_f32 v{c+i}, v{c+i}, v{c+8+i}")
            o = 24 + 4*(2*jn + tm)
            for i in range(4):
                a(f"v_cvt_pk_bf16_f32 v{o+i}, v{c+2*i}, v{c+2*i+1}")
            a(f"s_nop 1\nv_permlane32_swap_b32 v{o}, v{o+2}\nv_permlane32_swap_b32 v{o+1}, v{o+3}")
            a(f"buffer_store_dwordx4 v[{o}:{o+3}], v1, s[{R_WS}:{R_WS+3}], s{t+5 if tm == 0 else t+7} offen offset:{32*jn}")
    a(f"s_branch {done}")
    a.label(ld)
    srd(a, R_A, P_WS, ACT, WS_X1)
    srd(a, R_W, P_WG, D*F*2)
    srd(a, R_W2, P_WU, D*F*2)
    sLW, sAo, sWo, sM, sTmp, sM2 = t+2, t+3, t+4, t+5, t+6, t+7
    a(f"""
    s_sub_u32 s{sLW}, s{sW}, 4
    v_lshrrev_b32 v1, 3, v0
    v_mul_u32_u24 v1, 1280, v1
    v_lshrrev_b32 v2, 4, v0
    v_and_b32 v3, 7, v0
    v_xor_b32 v3, v3, v2
    v_lshl_add_u32 v4, v3, 4, v1
    v_xor_b32 v3, 4, v3
    v_lshl_add_u32 v5, v3, 4, v1
    s_lshl_b32 s{sAo}, s{sRT}, 2
    s_add_u32 s{sAo}, s{sAo}, s{sLW}
    s_mul_i32 s{sAo}, s{sAo}, {32*1280}
    s_mul_i32 s{sWo}, s{sLW}, {16*F*2}
    s_mul_i32 s{sTmp}, s{sCT}, 192
    s_add_u32 s{sWo}, s{sWo}, s{sTmp}
    s_lshl_b32 s{sM}, s{sLW}, 12
    s_mul_i32 s{sM2}, s{sLW}, 3072
    s_add_u32 s{sM2}, s{sM2}, 16384
    s_movk_i32 s{sTmp}, 5462
    """)
    for i in range(3):
        a(f"""
        v_add_u32 v1, {64*i}, v0
        v_mul_u32_u24 v2, s{sTmp}, v1
        v_lshrrev_b32 v2, 16, v2
        v_mad_i32_i24 v1, v2, -12, v1
        v_mul_u32_u24 v2, {F*2}, v2
        v_lshl_add_u32 v{6+i}, v1, 4, v2
        v_xor_b32 v1, 2, v1
        v_lshl_add_u32 v{9+i}, v1, 4, v2
        """)
    sSl = t+8
    a(f"s_mov_b32 s{sSl}, 0")
    def issue():
        a(f"s_add_u32 s{t+9}, s{sSl}, s{sM}\ns_add_u32 s{t+10}, s{sSl}, s{sM2}")
        for i in range(4):
            dma(a, 4 + (i & 1), R_A, (f"s{sTmp}", f"s_add_u32 s{sTmp}, s{sAo}, {i*8*1280}"), f"s_add_u32 m0, s{t+9}, {1024*i}")
        for i in range(3):
            dma(a, 6 + i, R_W, (f"s{sWo}", "s_nop 0"), f"s_add_u32 m0, s{t+10}, {1024*i}")
            dma(a, 9 + i, R_W2, (f"s{sWo}", "s_nop 0"), f"s_add_u32 m0, s{t+10}, {12288+1024*i}")
        a(f"""
        s_add_u32 s{sAo}, s{sAo}, 128
        s_add_u32 s{sWo}, s{sWo}, {64*F*2}
        s_add_u32 s{sSl}, s{sSl}, {SLOT}
        s_cmp_eq_u32 s{sSl}, {NS*SLOT}
        s_cselect_b32 s{sSl}, 0, s{sSl}
        """)
    loader_loop(a, 10, NS, 10, issue)
    a.label(done)

KD = """.amdhsa_kernel {name}
  .amdhsa_next_free_vgpr 256
  .amdhsa_next_free_sgpr 102
  .amdhsa_accum_offset 256
  .amdhsa_group_segment_fixed_size 0
  .amdhsa_kernarg_size 80
  .amdhsa_user_sgpr_count 2
  .amdhsa_user_sgpr_kernarg_segment_ptr 1
  .amdhsa_system_sgpr_workgroup_id_x 1
.end_amdhsa_kernel
"""

def build_multi(extra_launch=0):
    a = Asm()
    kernels = []
    def kern(name):
        kernels.append(name)
        a(f".globl {name}\n.p2align 8\n.type {name},@function")
        a.label(name)
    def two_layer(base, fn):
        kern(f"{base}1_kernel")
        a(f"s_mov_b32 s{sL}, 1\ns_branch {base}_common")
        kern(f"{base}0_kernel")
        a(f"s_mov_b32 s{sL}, 0")
        a.label(f"{base}_common")
        stamp_begin(a); prologue(a, f"{base}_exit"); fn(a); stamp_end(a); a.label(f"{base}_exit"); a("s_endpgm")
    def one(base, fn):
        kern(f"{base}_kernel")
        stamp_begin(a); prologue(a, f"{base}_exit"); fn(a); stamp_end(a); a.label(f"{base}_exit"); a("s_endpgm")
    kern("nop_kernel"); a("s_endpgm")
    one("prep", phase_prep)
    two_layer("qkv", phase_qkv)
    one("attn", phase_attn)
    two_layer("wo", lambda a: phase_proj(a, False))
    one("gu", phase_gu)
    two_layer("down", lambda a: phase_proj(a, True))
    order = ["prep", "qkv0", "attn", "wo0", "gu", "down0", "qkv1", "attn", "wo1", "gu", "down1"] + ["nop"] * extra_launch
    hdr = open("cdna_kernels/" + NAME + ".s.ref").read().split("; Override")[0]
    for k in order:
        hdr += f"; @launch kernel={k}_kernel grid=(256,1,1) block=(512,1,1) lds=163840\n"
    txt = hdr + '.amdgcn_target "amdgcn-amd-amdhsa--gfx950"\n.text\n' + a.text() + '.section .rodata,"a"\n'
    for k in kernels:
        txt += ".p2align 6\n" + KD.format(name=k)
    probs = check(a.lines)
    for p in probs: print("HAZARD", p)
    return txt

if __name__ == "__main__":
    out = sys.argv[1] if len(sys.argv) > 1 else "cdna_kernels/" + NAME + ".s"
    extra = int(sys.argv[2]) if len(sys.argv) > 2 else 0
    STAMP = len(sys.argv) > 3 and sys.argv[3] == "stamp"
    open(out, "w").write(build_multi(extra))
    print("written", out)
```

```python
import re

class Asm:
    def __init__(self):
        self.lines = []
        self._uid = 0
    def __call__(self, s="", *a):
        for l in s.split("\n"):
            l = l.strip()
            if l:
                self.lines.append(l)
    def label(self, name):
        self.lines.append(name + ":")
    def uid(self, p="L"):
        self._uid += 1
        return f"{p}_{self._uid}"
    def nop(self, n):
        while n > 0:
            k = min(n, 16)
            self(f"s_nop {k-1}")
            n -= k
    def text(self):
        out = []
        for l in self.lines:
            if l.endswith(":") or l.startswith(".") or l.startswith(";"):
                out.append(l)
            else:
                out.append(l)
        return "\n".join(out) + "\n"

def v(a, n=1):
    return f"v{a}" if n == 1 else f"v[{a}:{a+n-1}]"
def s(a, n=1):
    return f"s{a}" if n == 1 else f"s[{a}:{a+n-1}]"

_reg = re.compile(r"^-?\|?(?:abs\()?([vsa])(?:(\d+)|\[(\d+):(\d+)\])\)?\|?$")
def regs(tok):
    tok = tok.strip()
    if tok in ("vcc",): return {("s", 106), ("s", 107)}
    if tok == "vcc_lo": return {("s", 106)}
    if tok == "vcc_hi": return {("s", 107)}
    if tok == "exec": return {("s", 126), ("s", 127)}
    if tok == "exec_lo": return {("s", 126)}
    if tok == "exec_hi": return {("s", 127)}
    if tok == "m0": return {("s", 124)}
    m = _reg.match(tok)
    if not m: return set()
    f = m.group(1)
    if m.group(2) is not None: return {(f, int(m.group(2)))}
    return {(f, i) for i in range(int(m.group(3)), int(m.group(4)) + 1)}

TRANS = ("v_exp_f32", "v_log_f32", "v_rcp_f32", "v_rsq_f32", "v_sqrt_f32", "v_sin_f32", "v_cos_f32", "v_rcp_iflag_f32")

class I:
    def __init__(self, line):
        self.line = line
        line = line.split(";")[0].strip()
        parts = line.split(None, 1)
        self.op = parts[0]
        rest = parts[1] if len(parts) > 1 else ""
        xm = re.findall(r"\b[a-z_]+:\[[^\]]*\]", rest)
        rest = re.sub(r"\b[a-z_]+:\[[^\]]*\]", "", rest)
        rest = re.sub(r"hwreg\([^)]*\)", "hw", rest)
        ops = [t.strip() for t in rest.split(",")] if rest else []
        if ops:
            last = ops[-1].split()
            self.mods = last[1:] + xm
            ops[-1] = last[0] if last else ""
        else:
            self.mods = []
        self.ops = ops
        op = self.op
        self.w = set(); self.r = set()
        self.kind = "other"
        self.srcC = set(); self.srcAB = set(); self.passes = 0
        self.data = set()
        R = [regs(t) for t in ops]
        if op.startswith("v_mfma"):
            self.kind = "mfma"
            self.w = R[0]; self.srcAB = R[1] | R[2]; self.srcC = R[3]; self.r = self.srcAB | self.srcC
            if "32x32x4_2b" in op: self.passes = 16
            elif "32x32" in op: self.passes = 8
            else: self.passes = 4
        elif op.startswith("v_cmp"):
            self.kind = "valu"; self.w = R[0]; self.r = set().union(*R[1:])
            if op.startswith("v_cmpx"): self.w |= regs("exec")
        elif op.startswith("v_readfirstlane") or op.startswith("v_readlane"):
            self.kind = "valu"; self.w = R[0]; self.r = set().union(*R[1:])
        elif op.startswith("v_permlane") or op.startswith("v_swap"):
            self.kind = "valu"; self.w = R[0] | R[1]; self.r = R[0] | R[1]
        elif op.startswith("v_"):
            self.kind = "valu"
            self.w = R[0]; self.r = set().union(*R[1:]) if len(R) > 1 else set()
            if "_co_" in op:
                self.w |= R[1]; self.r = set().union(*R[2:])
            if op.startswith(("v_fmac", "v_dot2c", "v_mac", "v_writelane")) or "UNUSED_PRESERVE" in line or "fma_mix" in op:
                self.r |= R[0]
            if op.startswith("v_cndmask") and len(ops) == 3: self.r |= regs("vcc")
        elif op.startswith("ds_"):
            self.kind = "ds"
            if "read" in op or "permute" in op or "swizzle" in op:
                self.w = R[0]; self.r = set().union(*R[1:])
            else:
                self.r = set().union(*R); self.data = set().union(*R[1:])
        elif op.startswith("buffer_") or op.startswith("global_"):
            self.kind = "vmem"
            lds = "lds" in self.mods or "_lds_" in op
            if op in ("buffer_inv", "buffer_wbl2"): pass
            elif lds:
                self.r = set().union(*R) | regs("m0"); self.kind = "vmem"; self.lds = True
            elif "load" in op:
                self.w = R[0]; self.r = set().union(*R[1:])
            elif "store" in op:
                self.r = set().union(*R)
                self.data = R[0] if op.startswith("buffer_") else R[1]
            else:
                self.r = set().union(*R)
                if "sc0" in self.mods: self.w = R[0]
        elif op.startswith("s_"):
            self.kind = "salu"
            if op.startswith(("s_cmp", "s_cbranch", "s_branch", "s_waitcnt", "s_barrier", "s_nop", "s_sleep", "s_setprio", "s_endpgm", "s_bitcmp")):
                self.r = set().union(*R) if R else set()
            else:
                self.w = R[0] if R else set(); self.r = set().union(*R[1:]) if len(R) > 1 else set()
                if "saveexec" in op: self.w |= regs("exec")
        self.states = 1
        if op == "s_nop": self.states = int(ops[0], 0) + 1
        self.dpp = any(m.startswith(("row_", "quad_perm", "wave_")) for m in self.mods) or op.endswith("_dpp")
        self.wide_store = self.kind == "vmem" and "store" in op and (op.endswith("x4") or op.endswith("x3"))

def need(p, c):
    n = 0
    vw = {x for x in p.w if x[0] in "va"}
    sw = {x for x in p.w if x[0] == "s"}
    if p.kind == "valu":
        if c.kind == "mfma" and vw & c.r: n = max(n, 2)
        if c.kind == "valu":
            if p.op in TRANS and vw & c.r and c.op not in TRANS: n = max(n, 1)
            if c.op.startswith("v_permlane") and vw & c.r: n = max(n, 2)
            if c.op.startswith(("v_readfirstlane", "v_readlane")) and vw & c.r: n = max(n, 1)
            if c.dpp and vw & c.r: n = max(n, 2)
            if sw & c.r: n = max(n, 2)
            if c.op.startswith(("v_readlane", "v_writelane")) and sw & c.r: n = max(n, 4)
            if p.op.startswith("v_dot") and (vw & (c.r | c.w)):
                if not (c.op == p.op and not (vw & (regs(c.ops[1]) | regs(c.ops[2])))): n = max(n, 3)
            if "sdwa" in p.op or any("op_sel" in m for m in p.mods) and not p.op.startswith("v_pk"):
                if vw & (c.r | c.w): n = max(n, 1)
        if p.op in TRANS and c.kind in ("ds", "vmem") and vw & c.r: n = max(n, 1)
        if c.kind == "vmem" and sw & c.r: n = max(n, 5)
        if regs("exec") & p.w:
            if c.kind == "mfma": n = max(n, 4)
            if c.kind == "valu" and c.op.startswith(("v_readfirstlane", "v_readlane", "v_writelane", "v_permlane")): n = max(n, 4)
            if c.dpp: n = max(n, 5)
    if p.kind == "mfma":
        big = {2: 5, 4: 8, 8: 12, 16: 20}[p.passes]
        ovl = {2: 4, 4: 6, 8: 10, 16: 18}[p.passes]
        war = {2: 1, 4: 3, 8: 7, 16: 15}[p.passes]
        if c.kind == "mfma":
            if p.w & c.srcAB: n = max(n, big)
            if p.w & c.srcC and not (p.w == c.srcC and p.passes == c.passes): n = max(n, ovl)
            if p.w & c.w and not (p.w & c.srcC):
                if p.passes > c.passes: n = max(n, big)
        elif c.kind in ("valu", "ds", "vmem"):
            if p.w & (c.r | c.w): n = max(n, big)
            if c.kind == "valu" and p.srcC & c.w: n = max(n, war)
            if c.kind in ("ds", "vmem") and p.srcC & c.w: n = max(n, war)
    if p.kind == "salu":
        if ("s", 124) in p.w and c.kind == "vmem" and getattr(c, "lds", False): n = max(n, 1)
    if p.wide_store or (p.kind == "ds" and p.op.endswith(("b128", "b96"))):
        if p.data & c.w: n = max(n, 2 if c.kind == "valu" else 1)
    return n

def check(lines, window=24):
    ins = []; labels = {}
    for l in lines:
        if l.startswith(".") and not l.endswith(":") or l.startswith(";"): continue
        if l.endswith(":"):
            labels[l[:-1]] = len(ins); continue
        ins.append(I(l))
    probs = []
    n = len(ins)
    def succ(i):
        op = ins[i].op
        if op == "s_endpgm": return []
        if op == "s_branch": return [labels[ins[i].ops[0]]]
        if op.startswith("s_cbranch"): return [i + 1, labels[ins[i].ops[0]]]
        if op.startswith("s_setpc"): return []
        return [i + 1]
    for i in range(n):
        p = ins[i]
        if not (p.kind in ("valu", "mfma") or p.wide_store or p.kind == "ds" or ("s", 124) in p.w): continue
        stack = [(j, 0) for j in succ(i)]
        seen = {}
        while stack:
            j, d = stack.pop()
            if j >= n or d >= 20: continue
            if j in seen and seen[j] <= d: continue
            seen[j] = d
            c = ins[j]
            k = need(p, c)
            if k > d:
                probs.append(f"need {k} have {d}: [{i}] {p.line}  ->  [{j}] {c.line}")
            for t in succ(j): stack.append((t, d + c.states))
    return probs
```

```python
import sys, math, struct
sys.path.insert(0, "gen")
from asmlib import *

NAME = "interleave_layers__softmax_full_mha__glu_gated_reglu__prompt"
S, D, F, H, DH = 2048, 640, 1536, 32, 20
ACT = S * D * 2
HEADB = 81920
L_Q = 0
L_K = L_Q + ACT
L_V = L_K + ACT
L_O = L_V + ACT
L_X1 = L_O + ACT
L_X2 = L_X1 + ACT
L_H = L_X2 + ACT
L_ST1 = L_H + S * F * 2
L_ST2 = L_ST1 + S * 64
L_FG = L_ST2 + S * 64
LSTRIDE = L_FG + 32768
WS_WTO = 2 * LSTRIDE
WS_WTD = WS_WTO + D * D * 2
WS_CSG = WS_WTD + F * D * 2
WS_CSQ = WS_CSG + 2 * F * 4
WS_FL = WS_CSQ + 256 * 512
WS_END = WS_FL + 8192
WS_SIZE = 268435456
WS_STAMP = 200 << 20
QSCALE = (DH ** -0.5) * math.log2(math.e)
def f32(x): return "0x%08x" % struct.unpack("<I", struct.pack("<f", x))[0]

P_X, P_WQKV, P_WO, P_BX, P_WG, P_WU, P_WD, P_OUT, P_DBG, P_WS = 16, 18, 20, 22, 24, 26, 28, 30, 32, 34
sL, sG, sR, sW, sLO, sEP, sTMO = 3, 4, 5, 6, 7, 8, 9
R_WS, R_X, R_WQ, R_WG, R_WU, R_T = 36, 40, 44, 48, 52, 56
T = 60
WSR = f"s[{R_WS}:{R_WS+3}]"
def R(r): return f"s[{r}:{r+3}]"
SPIN = 200000

class Cfg:
    stamp = False
    gu_pre = 3
    dn_pre = 4
    qk_pre = 4
    l2pf = 12
C = Cfg()

def stamp(a, i):
    if not C.stamp: return
    a(f"s_memtime s[10:11]\ns_mul_i32 s12, s{sL}, 24\ns_add_u32 m0, s12, {i}\ns_waitcnt lgkmcnt(0)\nv_writelane_b32 v255, s10, m0")

def srd(a, r, ptr, size):
    a(f"s_mov_b32 s{r}, s{ptr}\ns_mov_b32 s{r+1}, s{ptr+1}\ns_mov_b32 s{r+2}, {size}\ns_mov_b32 s{r+3}, 0x20000")

def interleave(a, mf, other):
    n = len(mf); k = 0
    for i, m in enumerate(mf):
        a(m)
        tgt = (len(other) * (i + 1) + n - 1) // n
        while k < tgt:
            a(other[k]); k += 1

def poll(a, vaddr, vtmp, soff, want, sleep=0):
    lp = a.uid("poll"); ok = a.uid("pollok")
    cnt = T + 22
    a(f"s_mov_b32 s{cnt}, s{sTMO}")
    a.label(lp)
    a(f"buffer_load_dword v{vtmp}, v{vaddr}, {WSR}, {soff} offen sc1")
    a(f"s_waitcnt vmcnt(0)")
    a(f"v_cmp_gt_u32 vcc, {want}, v{vtmp}")
    a(f"s_cbranch_vccz {ok}")
    if sleep: a(f"s_sleep {sleep}")
    a(f"s_add_u32 s{cnt}, s{cnt}, 1\ns_cmp_lt_u32 s{cnt}, {SPIN}\ns_cbranch_scc1 {lp}")
    a(f"s_mov_b32 s{sTMO}, {SPIN}")
    a.label(ok)

def poll_local(a, kind, ep, va=1, vt=2):
    t = T + 20
    if kind == "wo":
        a(f"v_lshlrev_b32 v{va}, 4, v0\ns_lshr_b32 s{t}, s{sR}, 3\ns_lshl_b32 s{t}, s{t}, 2")
    elif kind == "gu":
        a(f"v_lshrrev_b32 v{va}, 2, v0\nv_lshlrev_b32 v{va}, 5, v{va}\nv_and_b32 v{vt}, 3, v0\nv_lshl_add_u32 v{va}, v{vt}, 2, v{va}")
        a(f"s_lshr_b32 s{t}, s{sR}, 4\ns_lshl_b32 s{t}, s{t}, 9")
    elif kind == "down":
        a(f"v_bfe_u32 v{va}, v0, 1, 4\nv_lshlrev_b32 v{va}, 5, v{va}\nv_and_b32 v{vt}, 1, v0\nv_lshl_add_u32 v{va}, v{vt}, 3, v{va}")
        a(f"s_lshr_b32 s{t}, s{sR}, 4\ns_lshl_b32 s{t}, s{t}, 9\ns_bfe_u32 s{t+1}, s{sR}, 0x10003\ns_lshl_b32 s{t+1}, s{t+1}, 2\ns_add_u32 s{t}, s{t}, s{t+1}")
    elif kind == "attn":
        a(f"v_and_b32 v{va}, 31, v0\nv_lshlrev_b32 v{va}, 5, v{va}\ns_mov_b32 s{t}, 0")
    a(f"s_lshl_b32 s{t+1}, s{sG}, 10\ns_add_u32 s{t}, s{t}, s{t+1}\ns_add_u32 s{t}, s{t}, {WS_FL}\ns_add_u32 s{t+1}, s{sEP}, {ep}")
    poll(a, va, vt, f"s{t}", f"s{t+1}")

def publish_local(a, ep, SB, wait=True, w=None):
    t = T + 20
    a(f"s_lshl_b32 s{t}, s{sG}, 5\ns_add_u32 s{t}, s{t}, s{sR}\ns_lshl_b32 s{t}, s{t}, 3")
    if w is None: a(f"s_add_u32 s{t}, s{t}, s{sW}")
    a(f"s_lshl_b32 s{t}, s{t}, 2\ns_add_u32 s{t}, s{t}, {WS_FL}\ns_add_u32 s{t+1}, s{sEP}, {ep}")
    a(f"v_mov_b32 v1, 0\nv_mov_b32 v2, s{t+1}")
    if wait: a("s_waitcnt vmcnt(0)")
    a(f"s_mov_b64 exec, 1\nbuffer_store_dword v2, v1, {WSR}, s{t} offen {SB}\ns_mov_b64 exec, -1")

def row_stats(a, vst, vmean, vrstd):
    for i in range(1, 8):
        a(f"v_pk_add_f32 v[{vst}:{vst+1}], v[{vst}:{vst+1}], v[{vst+2*i}:{vst+2*i+1}]")
    finish_stats(a, vst, vst + 1, vmean, vrstd)

def finish_stats(a, vs, vq, vmean, vrstd):
    a(f"v_mul_f32 v{vmean}, {f32(1.0/D)}, v{vs}")
    a(f"v_mul_f32 v{vq}, {f32(1.0/D)}, v{vq}")
    a(f"v_fma_f32 v{vq}, -v{vmean}, v{vmean}, v{vq}")
    a(f"v_max_f32 v{vq}, 0, v{vq}")
    a(f"v_add_f32 v{vq}, {f32(1e-5)}, v{vq}")
    a(f"v_rsq_f32 v{vrstd}, v{vq}")
    a("s_nop 0")

class Sched:
    def __init__(self, a): self.a = a; self.q = []
    def issued(self, tag, n): self.q += [tag] * n
    def wait(self, *tags):
        last = -1
        for i, t in enumerate(self.q):
            if t in tags: last = i
        if last >= 0:
            n = len(self.q) - 1 - last
            assert n <= 63, n
            self.a(f"s_waitcnt vmcnt({n})")
            self.q = self.q[last+1:]
    def drain(self): self.q = []

def gemm_loader(a, n, NA, NW, pre, issueA, issueW, pollfn, after_bar=None, wdone=0, LA=2):
    sc = Sched(a)
    nw = wdone
    while nw < min(pre, n, NW):
        sc.issued(("W", nw), issueW(nw)); nw += 1
    if pollfn:
        pollfn(); sc.drain()
    na = 0
    for c in range(n):
        ramp = LA - 1 + 2 * c
        limA = min(n - 1, max(NA - 1, c - 2 + NA), ramp)
        limW = min(n - 1, max(NW - 1, c - 2 + NW), max(ramp, nw if c > 0 else -1))
        while na <= limA or nw <= limW:
            if nw <= limW and (nw <= na or na > limA):
                sc.issued(("W", nw), issueW(nw)); nw += 1
            else:
                sc.issued(("A", na), issueA(na)); na += 1
        if after_bar and c > 0: after_bar(c - 1)
        sc.wait(("A", c), ("W", c))
        a("s_barrier")
    if after_bar: after_bar(n - 1)

def lin_dma(a, vaddr, src_s, src_off, dst_s, dst_off, npieces, bits="", rsrc=WSR, tmp=T+19):
    i = 0
    while i < npieces:
        k = min(4, npieces - i)
        a(f"s_add_u32 m0, s{dst_s}, {dst_off + 1024*i}")
        a(f"s_add_u32 s{tmp}, s{src_s}, {src_off + 1024*i}")
        for j in range(k):
            a(f"buffer_load_dwordx4 v{vaddr}, {rsrc}, s{tmp} offen offset:{1024*j} {bits} lds")
        i += k
    return npieces

def prep_publish(a, cnt_addr, nwaves):
    sk = a.uid("pp")
    a(f"""
    s_waitcnt vmcnt(0)
    v_mov_b32 v1, {cnt_addr}
    v_mov_b32 v{250}, 1
    s_mov_b64 exec, 1
    ds_add_rtn_u32 v{250}, v1, v{250}
    s_getreg_b32 s{T+20}, hwreg(HW_REG_XCC_ID, 0, 4)
    s_or_b32 s{T+20}, s{T+20}, 0x80
    s_waitcnt lgkmcnt(0)
    v_cmp_eq_u32 vcc, {nwaves-1}, v{250}
    v_mov_b32 v1, s2
    v_mov_b32 v{250}, s{T+20}
    s_cbranch_vccz {sk}
    global_store_byte v1, v{250}, s[{P_DBG}:{P_DBG+1}] sc1
    """)
    a.label(sk)
    a("s_mov_b64 exec, -1")

def prep_transform(a, scratch):
    t = T + 8
    done = a.uid("tr_done")
    a(f"""
    s_mul_i32 s{t}, s{sG}, 30
    s_lshr_b32 s{t+1}, s{sR}, 4
    s_sub_u32 s{t+1}, s{sR}, s{t+1}
    s_add_u32 s{t}, s{t}, s{t+1}
    s_sub_u32 s{t+1}, s{sW}, 1
    s_mul_i32 s{t+2}, s{t+1}, 240
    s_add_u32 s{t}, s{t}, s{t+2}
    s_cmp_ge_u32 s{t}, 544
    s_cbranch_scc1 {done}
    s_mul_i32 s{t+1}, s{t+1}, 5120
    s_add_u32 s{t+1}, s{t+1}, {scratch}
    s_and_b32 s{t+2}, s{t}, 7
    s_lshr_b32 s{t+3}, s{t}, 3
    s_cmp_lt_u32 s{t+3}, 20
    s_cselect_b32 s{R_T}, s{P_WO}, s{P_WD}
    s_cselect_b32 s{R_T+1}, s{P_WO+1}, s{P_WD+1}
    s_mov_b32 s{R_T+2}, {F*D*2}
    s_cselect_b32 s{R_T+2}, {D*D*2}, s{R_T+2}
    s_mov_b32 s{R_T+3}, 0x20000
    s_cselect_b32 s{t+4}, 0, 20
    s_cselect_b32 s{t+5}, 20, 48
    s_mov_b32 s{t+6}, {WS_WTD}
    s_cselect_b32 s{t+6}, {WS_WTO}, s{t+6}
    s_sub_u32 s{t+3}, s{t+3}, s{t+4}
    s_mul_i32 s{t+5}, s{t+5}, s{t+2}
    s_add_u32 s{t+5}, s{t+5}, s{t+3}
    s_mul_i32 s{t+5}, s{t+5}, 5120
    s_add_u32 s{t+6}, s{t+6}, s{t+5}
    s_mul_i32 s{t+3}, s{t+3}, {32*1280}
    s_mul_i32 s{t+2}, s{t+2}, 160
    s_add_u32 s{t+3}, s{t+3}, s{t+2}
    s_movk_i32 s{t+4}, 6554
    """)
    for i in range(5):
        a(f"""
        v_add_u32 v1, {64*i}, v0
        v_mul_u32_u24 v2, s{t+4}, v1
        v_lshrrev_b32 v2, 16, v2
        v_mad_i32_i24 v1, v2, -10, v1
        v_mul_u32_u24 v2, 1280, v2
        v_lshl_add_u32 v1, v1, 4, v2
        s_add_u32 m0, s{t+1}, {1024*i}
        s_nop 0
        buffer_load_dwordx4 v1, {R(R_T)}, s{t+3} offen lds
        """)
    a(f"""
    v_lshrrev_b32 v1, 4, v0
    v_bfe_u32 v2, v0, 2, 2
    v_lshl_add_u32 v1, v1, 3, v2
    v_mul_u32_u24 v1, 160, v1
    v_add_u32 v1, s{t+1}, v1
    v_and_b32 v2, 3, v0
    v_lshl_add_u32 v3, v2, 3, v1
    v_lshl_add_u32 v2, v2, 4, v1
    v_lshlrev_b32 v4, 4, v0
    s_waitcnt vmcnt(0)
    """)
    for jn in range(5):
        for j in range(2):
            d = 40 + 4*jn + 2*j
            if jn < 4: a(f"ds_read_b64_tr_b16 v[{d}:{d+1}], v2 offset:{640*j + 64*(jn>>1) + 8*(jn&1)}")
            else: a(f"ds_read_b64_tr_b16 v[{d}:{d+1}], v3 offset:{640*j + 128}")
    a(f"s_add_u32 s{t+5}, s{t+6}, 4096\ns_waitcnt lgkmcnt(0)")
    for jn in range(5):
        d = 40 + 4*jn
        a(f"buffer_store_dwordx4 v[{d}:{d+3}], v4, {WSR}, s{t+6 if jn < 4 else t+5} offen offset:{1024*(jn&3)} sc1")
    a.label(done)

def prep_colsum(a):
    t = T + 8
    done = a.uid("cs_done")
    a(f"""
    s_cmp_ge_u32 s{sW}, 6
    s_cbranch_scc1 {done}
    s_lshl_b32 s{t}, s{sG}, 1
    s_lshr_b32 s{t+1}, s{sR}, 4
    s_add_u32 s{t}, s{t}, s{t+1}
    s_mul_i32 s{t}, s{t}, 6
    s_add_u32 s{t}, s{t}, s{sW}
    s_cmp_lt_u32 s{t}, 48
    s_cselect_b32 s{R_T}, s{P_WG}, s{P_WU}
    s_cselect_b32 s{R_T+1}, s{P_WG+1}, s{P_WU+1}
    s_mov_b32 s{R_T+2}, {F*D*2}
    s_mov_b32 s{R_T+3}, 0x20000
    s_cselect_b32 s{t+1}, 0, 48
    s_sub_u32 s{t+1}, s{t}, s{t+1}
    s_lshl_b32 s{t+1}, s{t+1}, 6
    v_lshrrev_b32 v1, 2, v0
    v_mul_u32_u24 v1, {F*2}, v1
    v_and_b32 v2, 3, v0
    v_lshl_add_u32 v1, v2, 4, v1
    """)
    for i in range(40):
        a(f"buffer_load_dwordx4 v[{16+4*i}:{19+4*i}], v1, {R(R_T)}, s{t+1} offen")
        a(f"s_add_u32 s{t+1}, s{t+1}, {16*F*2}")
    a(f"s_mov_b32 s{t+3}, 0xffff0000")
    for j in range(8): a(f"v_mov_b32 v{8+j}, 0")
    for i in range(40):
        a(f"s_waitcnt vmcnt({39-i})")
        for j in range(4):
            src = 16 + 4*i + j
            a(f"v_lshlrev_b32 v4, 16, v{src}\nv_and_b32 v5, s{t+3}, v{src}")
            a(f"v_pk_add_f32 v[{8+2*j}:{9+2*j}], v[{8+2*j}:{9+2*j}], v[4:5]")
    a("s_nop 1")
    for rot in (4, 8):
        for j in range(8):
            a(f"v_add_f32_dpp v{8+j}, v{8+j}, v{8+j} row_ror:{rot} row_mask:0xf bank_mask:0xf")
        a("s_nop 1")
    for sw in ("16", "32"):
        for j in range(8): a(f"v_mov_b32 v{16+j}, v{8+j}")
        a("s_nop 1")
        for j in range(8): a(f"v_permlane{sw}_swap_b32 v{8+j}, v{16+j}")
        a("s_nop 1")
        for j in range(8): a(f"v_add_f32 v{8+j}, v{8+j}, v{16+j}")
    a(f"""
    s_lshl_b32 s{t}, s{t}, 7
    s_add_u32 s{t}, s{t}, {WS_CSG}
    v_lshlrev_b32 v1, 5, v2
    s_mov_b64 exec, 15
    buffer_store_dwordx4 v[8:11], v1, {WSR}, s{t} offen sc1
    buffer_store_dwordx4 v[12:15], v1, {WSR}, s{t} offen offset:16 sc1
    s_mov_b64 exec, -1
    """)
    a.label(done)

def sync0(a, mode_addr):
    lp = a.uid("s0"); ok = a.uid("s0ok")
    t = T + 20
    a(f"v_lshlrev_b32 v1, 2, v0\ns_mov_b32 s{t}, 0\ns_mov_b32 s{t+1}, 0x80808080")
    a.label(lp)
    a(f"""
    global_load_dword v2, v1, s[{P_DBG}:{P_DBG+1}] sc1
    s_waitcnt vmcnt(0)
    v_and_b32 v3, s{t+1}, v2
    v_cmp_ne_u32 vcc, s{t+1}, v3
    s_cbranch_vccz {ok}
    s_sleep 8
    s_add_u32 s{t}, s{t}, 1
    s_cmp_lt_u32 s{t}, {SPIN}
    s_cbranch_scc1 {lp}
    s_mov_b32 s{sTMO}, {SPIN}
    """)
    a.label(ok)
    a(f"""
    s_and_b32 s{t}, s{sG}, 3
    s_lshl_b32 s{t}, s{t}, 3
    v_lshrrev_b32 v2, s{t}, v2
    v_and_b32 v2, 0xff, v2
    s_getreg_b32 s{t}, hwreg(HW_REG_XCC_ID, 0, 4)
    s_or_b32 s{t}, s{t}, 0x80
    v_cmp_ne_u32 vcc, s{t}, v2
    s_mov_b32 s{t}, 0x55555555
    s_lshr_b32 s{t+1}, s{sG}, 2
    s_lshl_b32 s{t}, s{t}, s{t+1}
    s_or_b32 s{t+1}, vcc_lo, vcc_hi
    s_and_b32 s{t}, s{t}, s{t+1}
    s_cmp_eq_u32 s{t}, 0
    s_cselect_b32 s{t}, 1, 0
    v_mov_b32 v1, {mode_addr}
    v_mov_b32 v2, s{t}
    ds_write_b32 v1, v2
    s_waitcnt lgkmcnt(0)
    """)

def phase_qkv(a, first, SB):
    done = a.uid("qkv_done"); ld = a.uid("qkv_ld"); idle = a.uid("qkv_idle")
    t = T
    sRT, sCT, sTY, sC0, sLQ = t, t+1, t+2, t+3, t+4
    NA = 4; NW = 4 if first else 6
    WB = 65536
    SCR = 131072
    TAB = SCR + 15360
    CNT = TAB + 1024; MODE = CNT + 4
    a(f"""
    s_lshr_b32 s{sRT}, s{sR}, 4
    s_and_b32 s{sCT}, s{sR}, 15
    s_lshl_b32 s{t+5}, s{sG}, 1
    s_add_u32 s{sRT}, s{sRT}, s{t+5}
    s_mov_b32 s{sLQ}, {0 if first else LSTRIDE}
    s_cmp_eq_u32 s{sCT}, 15
    s_cbranch_scc1 {idle}
    s_cmp_ge_u32 s{sW}, 4
    s_cbranch_scc1 {ld}
    """)
    if first:
        nz = a.uid("nz")
        a(f"s_cmp_eq_u32 s{sW}, 0\ns_cbranch_scc1 {nz}")
        prep_transform(a, SCR)
        a.label(nz)
    sWM, sWN = t+5, t+6
    a(f"""
    s_mul_i32 s{sTY}, s{sCT}, 52
    s_lshr_b32 s{sTY}, s{sTY}, 8
    s_mul_i32 s{sC0}, s{sTY}, 5
    s_sub_u32 s{sC0}, s{sCT}, s{sC0}
    s_lshl_b32 s{sC0}, s{sC0}, 7
    s_and_b32 s{sWM}, s{sW}, 1
    s_lshr_b32 s{sWN}, s{sW}, 1
    v_lshrrev_b32 v14, 5, v0
    v_and_b32 v15, 31, v0
    """)
    ACC = 128; FR = 16; VST = 80; VCS = 96; VCV = 192; ONE = 196; AD = 200
    sCS = t+15
    a(f"s_lshl_b32 s{sCS}, s2, 9\ns_lshl_b32 s{t+7}, s{sWN}, 8\ns_add_u32 s{sCS}, s{sCS}, s{t+7}\ns_add_u32 s{sCS}, s{sCS}, {WS_CSQ}")
    a(f"v_lshlrev_b32 v{AD+8}, 5, v14\nv_lshlrev_b32 v{AD+9}, 2, v15")
    if not first:
        for tn in range(2):
            for q in range(4):
                r = VCS + 16*tn + 4*q
                a(f"buffer_load_dwordx4 v[{r}:{r+3}], v{AD+8}, {WSR}, s{sCS} offen offset:{(32*tn+16*(q>>1)+4*(q&1))*4} sc1")
            a(f"buffer_load_dword v{VCV+tn}, v{AD+9}, {WSR}, s{sCS} offen offset:{128*tn} sc1")
    if first:
        a(f"""
        s_lshl_b32 s{t+7}, s{sWM}, 13
        v_lshlrev_b32 v1, 7, v15
        v_add_u32 v1, s{t+7}, v1
        v_bfe_u32 v8, v0, 1, 3
        v_xor_b32 v8, v8, v14
        """)
        for kk in range(4):
            a(f"v_xor_b32 v9, {2*kk}, v8\nv_lshl_add_u32 v{2+kk}, v9, 4, v1")
    else:
        a(f"s_lshl_b32 s{t+7}, s{sWM}, 13\nv_lshlrev_b32 v2, 4, v0\nv_add_u32 v2, s{t+7}, v2")
    a(f"""
    v_and_b32 v10, 3, v0
    v_and_b32 v11, 1, v0
    v_bfe_u32 v12, v0, 1, 1
    v_lshl_add_u32 v11, v11, 1, v12
    s_cmp_eq_u32 s{sTY}, 2
    s_cselect_b64 vcc, -1, 0
    v_cndmask_b32 v10, v11, v10, vcc
    v_bfe_u32 v8, v0, 2, 2
    v_lshl_add_u32 v9, v14, 3, v8
    v_lshlrev_b32 v9, 8, v9
    v_lshl_add_u32 v9, v10, 3, v9
    v_bfe_u32 v10, v0, 4, 1
    v_lshl_add_u32 v9, v10, 5, v9
    v_add_u32 v9, {WB}, v9
    s_lshl_b32 s{t+7}, s{sWN}, 1
    v_xor_b32 v8, s{t+7}, v8
    v_lshl_add_u32 v6, v8, 6, v9
    v_xor_b32 v8, 1, v8
    v_lshl_add_u32 v7, v8, 6, v9
    """)
    nxa = 4 if first else 1
    for i in list(range(nxa)) + [4, 5]: a(f"v_mov_b32 v{8+i}, v{2+i}")
    for i in range(0, 64, 2): a(f"v_mov_b64 v[{ACC+i}:{ACC+i+1}], 0")
    for i in range(0, 16, 2): a(f"v_mov_b64 v[{FR+48+i}:{FR+48+i+1}], 0")
    if first:
        for i in range(0, 32, 2): a(f"v_mov_b64 v[{VCS+i}:{VCS+i+1}], 0")
        for i in range(4): a(f"v_mov_b32 v{ONE+i}, 0x3f803f80")
    def reads(kk):
        b = FR + 16*kk; r = []
        for tm in range(2):
            if first: r.append(f"ds_read_b128 v[{b+4*tm}:{b+4*tm+3}], v{8+kk} offset:{4096*tm}")
            else: r.append(f"ds_read_b128 v[{b+4*tm}:{b+4*tm+3}], v8 offset:{4096*tm+1024*kk}")
        for tn in range(2):
            for j in range(2):
                d = b + 8 + 4*tn + 2*j
                r.append(f"ds_read_b64_tr_b16 v[{d}:{d+1}], v{12+tn} offset:{4096*kk+1024*j}")
        return r
    def mfmas(kk, vtype):
        b = FR + 16*kk; m = []
        for tn in range(2):
            W = v(b + 8 + 4*tn, 4)
            for tm in range(2):
                c = ACC + 16*(2*tn + tm)
                X = v(b + 4*tm, 4)
                A, B = (X, W) if vtype else (W, X)
                m.append(f"v_mfma_f32_32x32x16_bf16 {v(c,16)}, {A}, {B}, {v(c,16)}")
            if first:
                c = VCS + 16*tn; X = v(ONE, 4)
                A, B = (X, W) if vtype else (W, X)
                m.append(f"v_mfma_f32_32x32x16_bf16 {v(c,16)}, {A}, {B}, {v(c,16)}")
        return m
    sC, sSa, sSw = t+9, t+10, t+11
    vlab = a.uid("qkv_v"); fin = a.uid("qkv_fin")
    sDst = t+12
    a(f"s_mov_b32 s{sC}, 10\ns_mov_b32 s{sSa}, 0\ns_mov_b32 s{sSw}, 0")
    a(f"s_cmp_eq_u32 s{sTY}, 2\ns_cbranch_scc1 {vlab}")
    hooks = []
    def mainloop(vtype):
        lp = a.uid("qkv_loop"); hk = a.uid("qkv_hk"); hb = a.uid("qkv_hb")
        stamp(a, 1 if first else 18)
        a.label(lp)
        a("s_barrier")
        interleave(a, mfmas(3, vtype), reads(0) + reads(1))
        a("s_waitcnt lgkmcnt(6)")
        interleave(a, mfmas(0, vtype), reads(2))
        a("s_waitcnt lgkmcnt(6)")
        interleave(a, mfmas(1, vtype), reads(3))
        a("s_waitcnt lgkmcnt(6)")
        upd = [f"s_add_u32 s{sSa}, s{sSa}, 16384", f"s_and_b32 s{sSa}, s{sSa}, {NA*16384-1}",
               f"s_add_u32 s{sSw}, s{sSw}, 16384", f"s_cmp_eq_u32 s{sSw}, {NW*16384}", f"s_cselect_b32 s{sSw}, 0, s{sSw}"] + \
              [f"v_add_u32 v{8+i}, s{sSa}, v{2+i}" for i in range(nxa)] + [f"v_add_u32 v{12+i}, s{sSw}, v{6+i}" for i in range(2)] + \
              [f"s_sub_u32 s{sC}, s{sC}, 1"]
        interleave(a, mfmas(2, vtype), upd)
        a(f"s_waitcnt lgkmcnt(0)")
        a(f"s_cmp_eq_u32 s{sC}, {7 if first else 9}\ns_cbranch_scc1 {hk}")
        a.label(hb)
        a(f"s_cmp_lg_u32 s{sC}, 0\ns_cbranch_scc1 {lp}")
        a("s_barrier")
        for m in mfmas(3, vtype): a(m)
        stamp(a, 2 if first else 19)
        hooks.append((hk, hb))
    def get_stats():
        if first:
            a(f"s_lshl_b32 s{t+7}, s{sWM}, 8\nv_lshlrev_b32 v1, 2, v0\nv_add_u32 v1, s{t+7}, v1")
            a(f"v_add_u32 v1, {TAB}, v1\nds_read_b32 v16, v1\nds_read_b32 v17, v1 offset:512\ns_waitcnt lgkmcnt(0)")
        else:
            a("s_waitcnt vmcnt(0)")
            row_stats(a, VST, 16, 17)
    a(f"""
    s_mul_i32 s{sDst}, s{sTY}, {ACT}
    s_lshl_b32 s{t+8}, s{sRT}, 2
    s_lshl_b32 s{t+7}, s{sWM}, 1
    s_add_u32 s{t+8}, s{t+8}, s{t+7}
    s_mul_i32 s{t+8}, s{t+8}, 1280
    s_add_u32 s{sDst}, s{sDst}, s{t+8}
    s_add_u32 s{sDst}, s{sDst}, s{sLQ}
    s_lshr_b32 s{t+8}, s{sC0}, 3
    s_lshl_b32 s{t+7}, s{sWN}, 3
    s_add_u32 s{t+8}, s{t+8}, s{t+7}
    v_add_u32 v80, s{t+8}, v14
    s_mov_b32 s{t+13}, {2*HEADB}
    s_mov_b32 s{t+14}, {HEADB - 3*512}
    v_mov_b32 v86, 0x7fffffff
    """)
    for sl in range(4):
        a(f"""
        v_add_u32 v81, {2*sl}, v80
        v_mul_u32_u24 v82, 205, v81
        v_lshrrev_b32 v82, 10, v82
        v_mad_i32_i24 v81, v82, -5, v81
        v_mul_lo_u32 v82, v82, s{t+13}
        v_lshl_add_u32 v83, v81, 9, v82
        v_lshl_add_u32 v83, v15, 4, v83
        v_add_u32 v84, s{t+14}, v83
        v_cmp_lt_u32 vcc, 2, v81
        v_lshl_add_u32 v85, v15, 3, v82
        v_add_u32 v85, 1024, v85
        v_cndmask_b32 v83, v83, v84, vcc
        v_cmp_eq_u32 vcc, 2, v81
        s_nop 1
        v_cndmask_b32 v{AD+sl}, v83, v86, vcc
        v_cndmask_b32 v{AD+4+sl}, v86, v85, vcc
        """)
    mainloop(False)
    get_stats()
    a(f"""
    s_cmp_eq_u32 s{sTY}, 0
    s_cselect_b32 s{t+7}, {f32(QSCALE)}, 1.0
    v_mul_f32 v17, s{t+7}, v17
    v_mov_b32 v18, v16
    v_mov_b32 v19, v17
    s_add_u32 s{t+8}, s{sDst}, {HEADB}
    s_nop 0
    v_permlane32_swap_b32 v16, v18
    v_permlane32_swap_b32 v17, v19
    s_nop 1
    """)
    for tn in range(2):
        for tm in range(2):
            c = ACC + 16*(2*tn + tm); cs = VCS + 16*tn
            for i in range(0, 16, 2):
                a(f"v_pk_fma_f32 v[{c+i}:{c+i+1}], v[{cs+i}:{cs+i+1}], v[{16+2*tm}:{17+2*tm}], v[{c+i}:{c+i+1}] op_sel_hi:[1,0,1] neg_lo:[0,1,0] neg_hi:[0,1,0]")
            for i in range(0, 16, 2):
                a(f"v_pk_mul_f32 v[{c+i}:{c+i+1}], v[{c+i}:{c+i+1}], v[{16+2*tm}:{17+2*tm}] op_sel:[0,1] op_sel_hi:[1,1]")
            o = 32 + 8*(2*tn + tm)
            for i in range(8):
                a(f"v_cvt_pk_bf16_f32 v{o+i}, v{c+2*i}, v{c+2*i+1}")
            for p in range(2):
                sl = 2*tn + p
                a(f"buffer_store_dwordx4 v[{o+4*p}:{o+4*p+3}], v{AD+sl}, {WSR}, s{sDst} offen offset:{1280*tm} sc1")
                a(f"buffer_store_dwordx2 v[{o+4*p}:{o+4*p+1}], v{AD+4+sl}, {WSR}, s{sDst} offen offset:{1280*tm} sc1")
                a(f"buffer_store_dwordx2 v[{o+4*p+2}:{o+4*p+3}], v{AD+4+sl}, {WSR}, s{t+8} offen offset:{1280*tm} sc1")
    if first:
        a(f"s_mov_b32 exec_lo, 1\ns_mov_b32 exec_hi, 1")
        for tn in range(2):
            for q in range(4):
                r = VCS + 16*tn + 4*q
                a(f"buffer_store_dwordx4 v[{r}:{r+3}], v{AD+8}, {WSR}, s{sCS} offen offset:{(32*tn+16*(q>>1)+4*(q&1))*4}")
        a("s_mov_b64 exec, -1")
    a(f"s_branch {fin}")
    a.label(vlab)
    a(f"""
    s_lshl_b32 s{t+8}, s{sRT}, 3
    s_lshl_b32 s{t+7}, s{sWM}, 2
    s_add_u32 s{t+8}, s{t+8}, s{t+7}
    s_mul_i32 s{sDst}, s{t+8}, 640
    s_add_u32 s{sDst}, s{sDst}, {L_V}
    s_add_u32 s{sDst}, s{sDst}, s{sLQ}
    s_lshl_b32 s{t+7}, s{sWN}, 6
    s_add_u32 s{t+8}, s{sC0}, s{t+7}
    v_add_u32 v80, s{t+8}, v15
    v_mul_u32_u24 v81, 320, v14
    s_mov_b32 s{t+13}, {HEADB}
    s_movk_i32 s{t+14}, 3277
    s_movk_i32 s{t+7}, -20
    """)
    for tn in range(2):
        a(f"""
        v_add_u32 v83, {32*tn}, v80
        v_mul_u32_u24 v84, s{t+14}, v83
        v_lshrrev_b32 v84, 16, v84
        v_mad_i32_i24 v83, v84, s{t+7}, v83
        v_lshl_add_u32 v83, v83, 4, v81
        v_mul_lo_u32 v84, v84, s{t+13}
        v_add_u32 v{AD+tn}, v83, v84
        """)
    mainloop(True)
    VM, VR = 32, 64
    if first:
        a(f"s_lshl_b32 s{t+7}, s{sWM}, 8\ns_add_u32 s{t+7}, s{t+7}, {TAB}")
        roff = 512
    else:
        get_stats()
        a(f"""
        s_lshl_b32 s{t+7}, s{sW}, 9
        v_lshlrev_b32 v1, 2, v0
        v_add_u32 v1, s{t+7}, v1
        ds_write_b32 v1, v16
        ds_write_b32 v1, v17 offset:256
        """)
        roff = 256
    a(f"v_lshlrev_b32 v1, 4, v14\nv_add_u32 v1, s{t+7}, v1")
    for tm in range(2):
        for q in range(4):
            a(f"ds_read_b128 v[{VM+16*tm+4*q}:{VM+16*tm+4*q+3}], v1 offset:{(32*tm+8*q)*4}")
            a(f"ds_read_b128 v[{VR+16*tm+4*q}:{VR+16*tm+4*q+3}], v1 offset:{roff+(32*tm+8*q)*4}")
    if first:
        a(f"v_mov_b32 v{VCV}, v{VCS}\nv_mov_b32 v{VCV+1}, v{VCS+16}")
        for tn in range(2):
            a(f"buffer_store_dword v{VCV+tn}, v{AD+9}, {WSR}, s{sCS} offen offset:{128*tn}")
    a("s_waitcnt lgkmcnt(0)")
    for tn in range(2):
        for tm in range(2):
            c = ACC + 16*(2*tn + tm)
            sel = "op_sel:[0,0,0] op_sel_hi:[1,0,1]" if tn == 0 else "op_sel:[0,1,0] op_sel_hi:[1,1,1]"
            for i in range(0, 16, 2):
                a(f"v_pk_fma_f32 v[{c+i}:{c+i+1}], v[{VM+16*tm+i}:{VM+16*tm+i+1}], v[{VCV}:{VCV+1}], v[{c+i}:{c+i+1}] {sel} neg_lo:[1,0,0] neg_hi:[1,0,0]")
            for i in range(0, 16, 2):
                a(f"v_pk_mul_f32 v[{c+i}:{c+i+1}], v[{c+i}:{c+i+1}], v[{VR+16*tm+i}:{VR+16*tm+i+1}]")
            o = 96 + 8*(2*tn+tm)
            for i in range(8):
                a(f"v_cvt_pk_bf16_f32 v{o+i}, v{c+2*i}, v{c+2*i+1}")
            for b in range(2):
                a(f"buffer_store_dwordx4 v[{o+4*b}:{o+4*b+3}], v{AD+tn}, {WSR}, s{sDst} offen offset:{640*(2*tm+b)} sc1")
    a.label(fin)
    stamp(a, 3 if first else 20)
    a(f"s_waitcnt vmcnt(0)\ns_branch {done}")
    for hk, hb in hooks:
        a.label(hk)
        if first:
            prep_publish(a, CNT, 4)
        else:
            a(f"""
            s_lshl_b32 s{t+7}, s{sRT}, 1
            s_add_u32 s{t+7}, s{t+7}, s{sWM}
            s_lshl_b32 s{t+7}, s{t+7}, 12
            s_add_u32 s{t+7}, s{t+7}, {L_ST2}
            v_lshlrev_b32 v1, 6, v0
            """)
            for i in range(4):
                a(f"buffer_load_dwordx4 v[{VST+4*i}:{VST+4*i+3}], v1, {WSR}, s{t+7} offen offset:{16*i} sc1")
        a(f"s_branch {hb}")
    a.label(ld)
    sLW, sAo, sWo, sM, sTmp = t+5, t+6, t+7, t+8, t+9
    a(f"""
    s_sub_u32 s{sLW}, s{sW}, 4
    v_lshrrev_b32 v2, 4, v0
    v_mul_u32_u24 v1, 3840, v2
    v_lshlrev_b32 v7, 2, v2
    v_and_b32 v3, 15, v0
    v_xor_b32 v3, v3, v7
    v_lshl_add_u32 v6, v3, 4, v1
    s_mul_i32 s{sWo}, s{sLW}, {16*3840}
    s_lshl_b32 s{sTmp}, s{sCT}, 8
    s_add_u32 s{sWo}, s{sWo}, s{sTmp}
    s_lshl_b32 s{sM}, s{sLW}, 12
    s_lshl_b32 s{sAo}, s{sRT}, 2
    s_add_u32 s{sAo}, s{sAo}, s{sLW}
    s_mul_i32 s{sAo}, s{sAo}, {32*1280}
    v_lshlrev_b32 v8, 4, v0
    """)
    if first:
        a(f"""
        v_lshrrev_b32 v1, 3, v0
        v_mul_u32_u24 v1, 1280, v1
        v_and_b32 v3, 7, v0
        v_xor_b32 v3, v3, v2
        v_lshl_add_u32 v4, v3, 4, v1
        v_xor_b32 v3, 4, v3
        v_lshl_add_u32 v5, v3, 4, v1
        v_add_u32 v9, s{sM}, v8
        s_mov_b32 s{t+10}, 0xffff0000
        """)
        for i in range(0, 8, 2): a(f"v_mov_b64 v[{16+i}:{17+i}], 0")
    else:
        a(f"s_add_u32 s{sAo}, s{sAo}, {L_X2}")
    def issueA(c):
        if first:
            for i in range(4):
                a(f"s_add_u32 m0, s{sM}, {(c % NA)*16384 + 1024*i}\ns_add_u32 s{sTmp}, s{sAo}, {c*128 + i*8*1280}")
                a(f"buffer_load_dwordx4 v{4 + (i & 1)}, {R(R_X)}, s{sTmp} offen lds")
            return 4
        return lin_dma(a, 8, sAo, c*4096, sM, (c % NA)*16384, 4, "sc1")
    def issueW(c):
        for i in range(4):
            a(f"s_add_u32 m0, s{sM}, {WB + (c % NW)*16384 + 1024*i}\ns_add_u32 s{sTmp}, s{sWo}, {c*64*3840 + i*4*3840}")
            a(f"buffer_load_dwordx4 v6, {R(R_WQ)}, s{sTmp} offen lds")
        return 4
    def xstats(c):
        for i in range(4):
            a(f"ds_read_b128 v[{32+4*i}:{35+4*i}], v9 offset:{(c % NA)*16384 + 1024*i}")
        for i in range(4):
            a(f"s_waitcnt lgkmcnt({3-i})")
            for j in range(4):
                src = 32 + 4*i + j
                a(f"v_lshlrev_b32 v10, 16, v{src}\nv_and_b32 v11, s{t+10}, v{src}")
                a(f"v_add_f32 v{16+2*i}, v{16+2*i}, v10\nv_fmac_f32 v{17+2*i}, v10, v10\nv_add_f32 v{16+2*i}, v{16+2*i}, v11\nv_fmac_f32 v{17+2*i}, v11, v11")
    stamp(a, 1 if first else 18)
    if first:
        gemm_loader(a, 10, NA, NW, 0, issueA, issueW, None, after_bar=xstats)
        a("s_nop 1")
        for mod in ("quad_perm:[1,0,3,2]", "quad_perm:[2,3,0,1]", "row_half_mirror"):
            for j in range(8):
                a(f"v_add_f32_dpp v{16+j}, v{16+j}, v{16+j} {mod} row_mask:0xf bank_mask:0xf")
            a("s_nop 1")
        a(f"v_lshrrev_b32 v1, 3, v0\nv_lshlrev_b32 v1, 2, v1\ns_lshl_b32 s{sTmp}, s{sLW}, 7\ns_add_u32 s{sTmp}, s{sTmp}, {TAB}\nv_add_u32 v1, s{sTmp}, v1")
        for i in range(4):
            finish_stats(a, 16+2*i, 17+2*i, 24+2*i, 25+2*i)
            a(f"ds_write_b32 v1, v{24+2*i} offset:{32*i}\nds_write_b32 v1, v{25+2*i} offset:{512+32*i}")
        a("s_waitcnt lgkmcnt(0)")
    else:
        def pf():
            stamp(a, 16); poll_local(a, "gu", 5); stamp(a, 17)
        gemm_loader(a, 10, NA, NW, C.qk_pre, issueA, issueW, pf)
    stamp(a, 2 if first else 19)
    a("s_barrier")
    if first:
        a(f"s_cmp_lg_u32 s{sW}, 4\ns_cbranch_scc1 {done}")
        sync0(a, MODE)
    a(f"s_branch {done}")
    a.label(idle)
    if first:
        prep_colsum(a)
        prep_publish(a, CNT, 8)
        a(f"s_cmp_lg_u32 s{sW}, 7\ns_cbranch_scc1 {done}")
        sync0(a, MODE)
    a.label(done)
    a("s_barrier")
    return MODE, CNT

def qkv_publish(a, SB):
    sk = a.uid("qpub")
    t = T + 20
    a(f"s_cmp_lg_u32 s{sW}, 0\ns_cbranch_scc1 {sk}")
    publish_local(a, 1, SB, wait=False, w=0)
    a(f"""
    s_lshl_b32 s{t}, s{sG}, 5
    s_add_u32 s{t}, s{t}, s{sR}
    s_lshl_b32 s{t}, s{t}, 7
    s_add_u32 s{t}, s{t}, s{sLO}
    s_add_u32 s{t}, s{t}, {L_FG}
    s_mov_b64 exec, 1
    buffer_store_dword v2, v1, {WSR}, s{t} offen sc1
    s_mov_b64 exec, -1
    """)
    a.label(sk)

def phase_attn(a, SB):
    fast = SB == ""
    t = T
    CH = 20480
    sQP, sKH, sSrc, sDst, sTmp, sC, sHB = t, t+1, t+2, t+3, t+4, t+5, t+8
    sEX = t+6
    sWs, sWd, sPF = t+9, t+10, t+11
    QA, QB = 16, 22
    NM, SS, PP, OO, KF, VF = 32, 64, 96, 112, 144, 160
    vK, vK8, vV = 2, 3, 4
    DUM = 176
    stamp(a, 4)
    a(f"""
    s_and_b32 s{sQP}, s{sW}, 3
    s_lshr_b32 s{sKH}, s{sW}, 2
    v_lshrrev_b32 v14, 5, v0
    v_and_b32 v15, 31, v0
    v_lshlrev_b32 v5, 4, v0
    v_lshlrev_b32 v6, 3, v15
    s_mul_i32 s{sHB}, s{sR}, {HEADB}
    s_add_u32 s{sHB}, s{sHB}, s{sLO}
    """)
    a(f"""
    s_and_b32 s{sTmp}, s{sQP}, 1
    s_mul_i32 s{sSrc}, s{sTmp}, 5120
    s_mul_i32 s{sDst}, s{sTmp}, 10240
    s_lshr_b32 s{sTmp}, s{sQP}, 1
    s_mul_i32 s{sC}, s{sTmp}, 5120
    s_add_u32 s{sDst}, s{sDst}, s{sC}
    s_mul_i32 s{sC}, s{sTmp}, {ACT}
    s_add_u32 s{sSrc}, s{sSrc}, s{sC}
    s_add_u32 s{sSrc}, s{sSrc}, s{sHB}
    s_add_u32 s{sSrc}, s{sSrc}, {L_K}
    s_mul_i32 s{sC}, s{sKH}, {CH}
    s_add_u32 s{sDst}, s{sDst}, s{sC}
    """)
    def kv_issue(j0):
        a(f"s_add_u32 s{sTmp}, s{sG}, s{sKH}\ns_add_u32 s{sTmp}, s{sTmp}, {j0}\ns_and_b32 s{sTmp}, s{sTmp}, 7")
        a(f"s_mul_i32 s{sTmp}, s{sTmp}, 10240\ns_add_u32 s{sTmp}, s{sTmp}, s{sSrc}")
        lin_dma(a, 5, sTmp, 0, sDst, j0 * CH, 5, "sc1")
    a(f"""
    s_mul_i32 s{sTmp}, s{sKH}, 10240
    v_add_u32 v{vK}, s{sTmp}, v5
    v_add_u32 v{vK8}, s{sTmp}, v6
    v_mul_u32_u24 v7, 320, v14
    v_lshl_add_u32 v7, v15, 4, v7
    v_add_u32 v{vV}, s{sTmp}, v7
    s_mov_b32 s{sEX}, 0x000fffff
    s_mov_b32 s{sEX+1}, 0x000fffff
    v_and_b32 v9, 27, v0
    v_cmp_eq_u32 vcc, 24, v9
    v_mov_b32 v8, 0x3f803f80
    s_nop 0
    v_cndmask_b32 v8, 0, v8, vcc
    """)
    for i in range(16): a(f"v_mov_b32 v{VF+i}, v8")
    for i in range(0, 32, 2): a(f"v_mov_b64 v[{OO+i}:{OO+i+1}], 0")
    for i in range(0, 8, 2): a(f"v_mov_b64 v[{PP+8+i}:{PP+8+i+1}], 0")
    a(f"""
    v_and_b32 v10, 3, v0
    v_lshlrev_b32 v10, 1, v10
    s_add_u32 s{sTmp}, s{sG}, s{sKH}
    v_add_u32 v10, s{sTmp}, v10
    v_and_b32 v10, 7, v10
    v_bfe_u32 v11, v0, 2, 1
    v_mul_u32_u24 v11, 19, v11
    s_mul_i32 s{sTmp}, s{sR}, 20
    v_add_u32 v11, s{sTmp}, v11
    v_lshrrev_b32 v11, 7, v11
    v_lshl_add_u32 v10, v10, 5, v11
    s_and_b32 s{sTmp}, s{sQP}, 1
    s_lshl_b32 s{sTmp}, s{sTmp}, 4
    s_lshr_b32 s{sC}, s{sQP}, 1
    s_mul_i32 s{sC}, s{sC}, 5
    s_add_u32 s{sTmp}, s{sTmp}, s{sC}
    s_add_u32 s{sTmp}, s{sTmp}, 5
    v_add_u32 v10, s{sTmp}, v10
    v_lshlrev_b32 v12, 7, v10
    """)
    poll_local(a, "attn", 1, va=10, vt=11)
    stamp(a, 5)
    l0 = a.uid("att_nc0")
    a(f"s_cmp_lg_u32 s{sKH}, 0\ns_cbranch_scc1 {l0}")
    kv_issue(0)
    a.label(l0)
    a(f"""
    s_lshl_b32 s{sTmp}, s{sG}, 3
    s_lshl_b32 s{sC}, s{sQP}, 1
    s_add_u32 s{sTmp}, s{sTmp}, s{sC}
    s_mul_i32 s{sTmp}, s{sTmp}, 1280
    s_add_u32 s{sTmp}, s{sTmp}, s{sHB}
    buffer_load_dwordx4 v[{QA}:{QA+3}], v5, {WSR}, s{sTmp} offen sc1
    buffer_load_dwordx4 v[{QB}:{QB+3}], v5, {WSR}, s{sTmp} offen offset:1280 sc1
    v_mov_b64 v[{QA+4}:{QA+5}], 0
    v_mov_b64 v[{QB+4}:{QB+5}], 0
    s_mov_b32 exec_hi, 0
    buffer_load_dwordx2 v[{QA+4}:{QA+5}], v6, {WSR}, s{sTmp} offen offset:1024 sc1
    buffer_load_dwordx2 v[{QB+4}:{QB+5}], v6, {WSR}, s{sTmp} offen offset:{1280+1024} sc1
    s_mov_b32 exec_hi, -1
    """)
    a(f"""
    s_and_b32 s{sWs}, s{sR}, 7
    s_mul_i32 s{sWs}, s{sWs}, 102400
    s_mul_i32 s{sWd}, s{sW}, 5120
    s_add_u32 s{sWs}, s{sWs}, s{sWd}
    s_add_u32 s{sWs}, s{sWs}, {WS_WTO}
    v_lshlrev_b32 v13, 7, v0
    s_waitcnt vmcnt(0)
    s_barrier
    """)
    stamp(a, 6)
    base = [0]
    def rdK(st, c, kt):
        off = c * CH + kt * 1280 - base[0]
        assert 0 <= off and off + 1024 < 65536
        b = KF + 8*st
        return [f"ds_read_b128 v[{b}:{b+3}], v{vK} offset:{off}", f"ds_read_b64 v[{b+4}:{b+5}], v{vK8} offset:{off+1024}"]
    def rdV(st, c, kt):
        off = c * CH + 5120 + kt * 1280 - base[0]
        assert 0 <= off and off + 640 < 65536
        b = VF + 8*st
        return [f"s_mov_b64 exec, s[{sEX}:{sEX+1}]", f"ds_read_b128 v[{b}:{b+3}], v{vV} offset:{off}",
                f"ds_read_b128 v[{b+4}:{b+7}], v{vV} offset:{off+640}", f"s_mov_b64 exec, -1"]
    def qk(x, st, c=None):
        b = KF + 8*st; q = (QA, QB)[x]; sd = SS + 16*x
        cc = v(NM + 16*x, 16) if c is None else c
        return [f"v_mfma_f32_32x32x16_bf16 {v(sd,16)}, {v(b,4)}, {v(q,4)}, {cc}",
                f"v_mfma_f32_32x32x8_bf16 {v(sd,16)}, {v(b+4,2)}, {v(q+4,2)}, {v(sd,16)}"]
    def pv(x, st):
        b = VF + 8*st; p = PP + 8*x; o = OO + 16*x
        return [f"v_mfma_f32_32x32x16_bf16 {v(o,16)}, {v(b,4)}, {v(p,4)}, {v(o,16)}",
                f"v_mfma_f32_32x32x16_bf16 {v(o,16)}, {v(b+4,4)}, {v(p+4,4)}, {v(o,16)}"]
    def sm(x):
        sd = SS + 16*x; p = PP + 8*x; r = []
        for i in range(8):
            r.append(f"v_exp_f32 v{sd+2*i}, v{sd+2*i}")
            r.append(f"v_exp_f32 v{sd+2*i+1}, v{sd+2*i+1}")
            if i > 0: r.append(f"v_cvt_pk_bf16_f32 v{p+i-1}, v{sd+2*i-2}, v{sd+2*i-1}")
        r.append(f"v_cvt_pk_bf16_f32 v{p+7}, v{sd+14}, v{sd+15}")
        return r
    def setm():
        for x in range(2): a(f"v_mov_b32 v{10+x}, v{8+x}")
        a("s_nop 1")
        for x in range(2): a(f"v_permlane32_swap_b32 v{8+x}, v{10+x}")
        a("s_nop 1")
        for x in range(2): a(f"v_max_f32 v{8+x}, v{8+x}, v{10+x}")
        for x in range(2):
            for i in range(16): a(f"v_sub_f32 v{NM+16*x+i}, 0, v{8+x}")
    for x in rdK(0, 0, 0): a(x)
    a("s_waitcnt lgkmcnt(0)")
    for x in range(2):
        for m in qk(x, 0, "0"): a(m)
    a.nop(10)
    for x in range(2):
        sd = SS + 16*x
        a(f"v_max3_f32 v{8+x}, v{sd}, v{sd+1}, v{sd+2}")
        for i in range(3, 15, 2):
            a(f"v_max3_f32 v{8+x}, v{8+x}, v{sd+i}, v{sd+i+1}")
        a(f"v_max_f32 v{8+x}, v{8+x}, v{sd+15}")
    setm()
    a("s_nop 1")
    for m in qk(0, 0): a(m)
    a.nop(8)
    stamp(a, 7)
    def touch(off, nlines_per_wg, wsel):
        pass
    for c in range(8):
        for kt in range(4):
            st = kt & 1
            a(f"s_setprio {3-kt}")
            if c == 0 and kt == 1:
                a(f"s_add_u32 s{sC}, s{sLO}, {L_FG}")
                poll(a, 12, 11, f"s{sC}", "1", sleep=2)
                l1 = a.uid("att_h0"); l2 = a.uid("att_h1")
                a(f"s_cmp_lg_u32 s{sKH}, 0\ns_cbranch_scc1 {l1}")
                kv_issue(2); a(f"s_branch {l2}")
                a.label(l1); kv_issue(0); a.label(l2)
            last = c == 7 and kt == 3
            if kt == 3 and c < 7:
                j = c + 1
                if j == 1:
                    l1 = a.uid("att_w")
                    a(f"s_cmp_eq_u32 s{sKH}, 0\ns_cbranch_scc1 {l1}\ns_waitcnt vmcnt(0)")
                    a.label(l1)
                elif j in (2, 3): a("s_waitcnt vmcnt(5)")
                elif j in (4, 5): a(f"s_waitcnt vmcnt({prev_ops})")
                a("s_barrier")
                prev_ops = 0
                if j in (1, 2):
                    l1 = a.uid("att_h0"); l2 = a.uid("att_h1")
                    a(f"s_cmp_lg_u32 s{sKH}, 0\ns_cbranch_scc1 {l1}")
                    kv_issue(2*j + 2); a(f"s_branch {l2}")
                    a.label(l1); kv_issue(2*j); a.label(l2)
                elif j == 3:
                    l1 = a.uid("att_h0")
                    a(f"s_cmp_eq_u32 s{sKH}, 0\ns_cbranch_scc1 {l1}")
                    kv_issue(6)
                    a.label(l1)
                    prev_ops = 5
                elif j in (4, 5):
                    prev_ops = lin_dma(a, 5, sWs, (j-4)*40960, sWd, (j-4)*40960, 5)
                elif j == 6:
                    l1 = a.uid("att_h0")
                    a(f"s_cmp_lg_u32 s{sKH}, 0\ns_cbranch_scc1 {l1}")
                    lin_dma(a, 5, sWs, 81920, sWd, 81920, 5)
                    a.label(l1)
                if j >= 4:
                    npw = C.l2pf
                    if (j - 4) * 4 < npw:
                        l1 = a.uid("att_pf")
                        a(f"""
                        s_cmp_ge_u32 s{sW}, {min(4, npw - (j-4)*4)}
                        s_cbranch_scc1 {l1}
                        s_lshr_b32 s{sPF}, s{sW}, 1
                        s_add_u32 s{sPF}, s{sPF}, {(j-4)*2}
                        s_lshl_b32 s{sPF}, s{sPF}, 5
                        s_add_u32 s{sPF}, s{sPF}, s{sR}
                        s_lshl_b32 s{sPF}, s{sPF}, 13
                        s_bitcmp1_b32 s{sW}, 0
                        s_cbranch_scc1 {l1}u
                        buffer_load_dword v{DUM}, v13, {R(R_WG)}, s{sPF} offen
                        s_branch {l1}
                        """)
                        a.label(l1 + "u")
                        a(f"buffer_load_dword v{DUM}, v13, {R(R_WU)}, s{sPF} offen")
                        a.label(l1)
                if j == 6 and fast:
                    l1 = a.uid("att_pt")
                    a(f"""
                    s_cmp_lt_u32 s{sW}, 4
                    s_cbranch_scc1 {l1}
                    s_lshl_b32 s{sPF}, s{sG}, 5
                    s_add_u32 s{sPF}, s{sPF}, s{sR}
                    s_lshl_b32 s{sTmp}, s{sPF}, 9
                    s_mul_i32 s{sPF}, s{sPF}, 10240
                    s_and_b32 s{sC}, s{sW}, 1
                    s_mul_i32 s{sC}, s{sC}, 5120
                    s_add_u32 s{sPF}, s{sPF}, s{sC}
                    s_bfe_u32 s{sC}, s{sW}, 0x10001
                    s_mul_i32 s{sC}, s{sC}, {ACT}
                    s_add_u32 s{sPF}, s{sPF}, s{sC}
                    s_add_u32 s{sPF}, s{sPF}, s{sLO}
                    s_add_u32 s{sPF}, s{sPF}, {L_O}
                    s_mov_b32 exec_hi, 0xff
                    buffer_load_dword v{DUM}, v13, {WSR}, s{sPF} offen
                    s_add_u32 s{sTmp}, s{sTmp}, s{sLO}
                    s_add_u32 s{sTmp}, s{sTmp}, {L_ST1}
                    s_mov_b64 exec, 15
                    buffer_load_dword v{DUM}, v13, {WSR}, s{sTmp} offen
                    s_mov_b64 exec, -1
                    """)
                    a.label(l1)
            val = sm(0)
            mf = qk(1, st) + pv(1, st ^ 1)
            ex = rdV(st, c, kt)
            if kt == 3 and c % 2 == 1 and not last:
                base[0] += 2 * CH
                ex += [f"v_add_u32 v{r}, {2*CH}, v{r}" for r in (vK, vK8, vV)]
            if not last: ex += rdK(st ^ 1, c + (kt + 1) // 4, (kt + 1) % 4)
            a(mf[0]); [a(x) for x in ex[:4]]; [a(x) for x in val[0:6]]
            a(mf[1]); [a(x) for x in ex[4:]]; [a(x) for x in val[6:12]]
            a(mf[2]); [a(x) for x in val[12:18]]
            a(mf[3]); [a(x) for x in val[18:]]
            val = sm(1)
            mf = (qk(0, st ^ 1) if not last else ["s_nop 0", "s_nop 0"]) + pv(0, st)
            a("s_waitcnt lgkmcnt(0)")
            a(mf[0]); [a(x) for x in val[0:6]]
            a(mf[1]); [a(x) for x in val[6:12]]
            a(mf[2]); [a(x) for x in val[12:18]]
            a(mf[3]); [a(x) for x in val[18:]]
    a("s_nop 1")
    for m in pv(1, 1): a(m)
    stamp(a, 8)
    fb = a.uid("att_fb"); comb = a.uid("att_comb"); done = a.uid("att_done")
    XB = 102400
    a(f"""
    s_lshl_b32 s{sTmp}, s{sW}, 12
    s_add_u32 s{sC}, s{sTmp}, {XB}
    v_add_u32 v1, s{sC}, v5
    s_xor_b32 s{sTmp}, s{sTmp}, {4<<12}
    s_add_u32 s{sC}, s{sTmp}, {XB}
    v_add_u32 v2, s{sC}, v5
    s_mul_i32 s{sTmp}, s{sR}, 5
    v_add_u32 v3, s{sTmp}, v14
    v_lshrrev_b32 v4, 1, v3
    v_and_b32 v3, 1, v3
    v_lshlrev_b32 v3, 3, v3
    v_lshl_add_u32 v3, v4, 9, v3
    v_lshl_add_u32 v3, v15, 4, v3
    s_lshl_b32 s{sTmp}, s{sG}, 3
    s_lshl_b32 s{sC}, s{sQP}, 1
    s_add_u32 s{sTmp}, s{sTmp}, s{sC}
    s_add_u32 s{sTmp}, s{sTmp}, s{sKH}
    s_mul_i32 s{sPF}, s{sTmp}, 40960
    s_add_u32 s{sPF}, s{sPF}, s{sLO}
    s_add_u32 s{sPF}, s{sPF}, {L_O}
    """)
    a(f"v_mul_f32 v10, {f32(2.0**63)}, v{OO+12}\nv_mul_f32 v11, {f32(2.0**63)}, v{OO+16+12}")
    a(f"v_pk_add_f32 v[10:11], v[10:11], v[10:11]\nv_pk_mul_f32 v[10:11], v[10:11], 0")
    for i in range(0, 12, 2):
        a(f"v_pk_fma_f32 v[10:11], v[{OO+i}:{OO+i+1}], 0, v[10:11]\nv_pk_fma_f32 v[10:11], v[{OO+16+i}:{OO+16+i+1}], 0, v[10:11]")
    a(f"v_cmp_u_f32 vcc, v10, v11\ns_cbranch_vccnz {fb}")
    a.label(comb)
    swp = a.uid("att_swp")
    a(f"s_cmp_eq_u32 s{sKH}, 0\ns_cbranch_scc1 {swp}")
    for i in range(13): a(f"v_swap_b32 v{OO+i}, v{OO+16+i}")
    a("v_swap_b32 v8, v9")
    a.label(swp)
    a(f"v_mov_b32 v{OO+16+13}, v9\ns_barrier")
    for i in range(3):
        a(f"ds_write_b128 v1, v[{OO+16+4*i}:{OO+16+4*i+3}] offset:{1024*i}")
    a(f"ds_write_b64 v1, v[{OO+28}:{OO+29}] offset:3072")
    a("s_waitcnt lgkmcnt(0)\ns_barrier")
    a(f"ds_read_b64 v[76:77], v2 offset:3072")
    for i in range(3):
        a(f"ds_read_b128 v[{64+4*i}:{64+4*i+3}], v2 offset:{1024*i}")
    a(f"""
    s_waitcnt lgkmcnt(3)
    v_max_f32 v10, v8, v77
    v_sub_f32 v11, v8, v10
    v_sub_f32 v12, v77, v10
    v_exp_f32 v11, v11
    v_exp_f32 v12, v12
    s_nop 0
    v_mul_f32 v13, v11, v{OO+12}
    v_fmac_f32 v13, v12, v76
    v_rcp_f32 v13, v13
    s_waitcnt lgkmcnt(0)
    s_barrier
    v_mul_f32 v11, v11, v13
    v_mul_f32 v12, v12, v13
    """)
    for i in range(12):
        a(f"v_mul_f32 v{OO+i}, v11, v{OO+i}\nv_fmac_f32 v{OO+i}, v12, v{64+i}")
    for i in range(6):
        a(f"v_cvt_pk_bf16_f32 v{80+i}, v{OO+2*i}, v{OO+2*i+1}")
    a(f"""
    buffer_store_dwordx2 v[80:81], v3, {WSR}, s{sPF} offen {SB}
    buffer_store_dwordx2 v[82:83], v3, {WSR}, s{sPF} offen offset:512 {SB}
    s_mov_b32 exec_hi, 0
    buffer_store_dwordx2 v[84:85], v3, {WSR}, s{sPF} offen offset:1024 {SB}
    s_mov_b32 exec_hi, -1
    s_setprio 0
    """)
    publish_local(a, 2, SB)
    stamp(a, 9)
    def fallback():
        a.label(fb)
        sKb, sVb, sI = t+12, t+13, t+14
        def addr():
            a(f"""
            s_lshr_b32 s{sKb}, s{sI}, 2
            s_lshl_b32 s{sKb}, s{sKb}, 1
            s_add_u32 s{sKb}, s{sKb}, s{sKH}
            s_lshl_b32 s{sKb}, s{sKb}, 2
            s_and_b32 s{sVb}, s{sI}, 3
            s_add_u32 s{sKb}, s{sKb}, s{sVb}
            s_mul_i32 s{sKb}, s{sKb}, 1280
            s_add_u32 s{sKb}, s{sKb}, s{sHB}
            s_add_u32 s{sVb}, s{sKb}, {L_V}
            s_add_u32 s{sKb}, s{sKb}, {L_K}
            buffer_load_dwordx4 v[{KF}:{KF+3}], v5, {WSR}, s{sKb} offen sc1
            buffer_load_dwordx2 v[{KF+4}:{KF+5}], v6, {WSR}, s{sKb} offen offset:1024 sc1
            """)
        l1 = a.uid("att_fb1"); l2 = a.uid("att_fb2")
        a(f"s_mov_b32 s{sI}, 0\nv_mov_b32 v8, 0xff800000\nv_mov_b32 v9, 0xff800000")
        a.label(l1)
        addr()
        a("s_waitcnt vmcnt(0)")
        for x in range(2):
            for m in qk(x, 0, "0"): a(m)
        a.nop(12)
        for x in range(2):
            sd = SS + 16*x
            for i in range(0, 16, 2): a(f"v_max3_f32 v{8+x}, v{8+x}, v{sd+i}, v{sd+i+1}")
        a(f"s_add_u32 s{sI}, s{sI}, 1\ns_cmp_lt_u32 s{sI}, 32\ns_cbranch_scc1 {l1}")
        setm()
        for i in range(32): a(f"v_mov_b32 v{OO+i}, 0")
        a(f"s_mov_b32 s{sI}, 0")
        a.label(l2)
        addr()
        a(f"""
        s_mov_b64 exec, s[{sEX}:{sEX+1}]
        buffer_load_dwordx4 v[{VF}:{VF+3}], v7, {WSR}, s{sVb} offen sc1
        buffer_load_dwordx4 v[{VF+4}:{VF+7}], v7, {WSR}, s{sVb} offen offset:640 sc1
        s_mov_b64 exec, -1
        s_waitcnt vmcnt(0)
        """)
        for x in range(2):
            for m in qk(x, 0): a(m)
        a.nop(12)
        for x in range(2):
            for i in sm(x): a(i)
        a("s_nop 1")
        for x in range(2):
            for m in pv(x, 0): a(m)
        a(f"s_add_u32 s{sI}, s{sI}, 1\ns_cmp_lt_u32 s{sI}, 32\ns_cbranch_scc1 {l2}")
        a.nop(12)
        a(f"s_branch {comb}")
    return fallback

def proj_W_setup(a, down, sWs, sWd, sTmp):
    a(f"""
    s_sub_u32 s{sWd}, s{sW}, 4
    s_mul_i32 s{sWd}, s{sWd}, 5120
    s_and_b32 s{sWs}, s{sR}, 7
    s_mul_i32 s{sWs}, s{sWs}, {245760 if down else 102400}
    s_add_u32 s{sWs}, s{sWs}, s{sWd}
    s_add_u32 s{sWs}, s{sWs}, {WS_WTD if down else WS_WTO}
    """)

def phase_proj(a, down, SB):
    fast = SB == ""
    done = a.uid("prj_done"); ld = a.uid("prj_ld")
    t = T
    K = F if down else D
    NCH = K // 128
    NA, NW = 3, 5
    AB = 102400; FLG = 151552
    XB = 0
    sRT, sCT = t, t+1
    st0 = 13 if down else 10
    a(f"""
    s_lshr_b32 s{sRT}, s{sR}, 3
    s_and_b32 s{sCT}, s{sR}, 7
    s_lshl_b32 s{t+2}, s{sG}, 2
    s_add_u32 s{sRT}, s{sRT}, s{t+2}
    s_cmp_ge_u32 s{sW}, 4
    s_cbranch_scc1 {ld}
    """)
    sTH, sKH, sF, sRM, sT16 = t+2, t+3, t+4, t+5, t+11
    ACC = 96; FR = 16; RES = 72; VST = 140
    vF, vF2, vR, vR2 = 10, 11, 12, 13
    a(f"""
    s_and_b32 s{sTH}, s{sW}, 1
    s_lshr_b32 s{sKH}, s{sW}, 1
    v_and_b32 v15, 15, v0
    v_lshrrev_b32 v14, 4, v0
    s_lshl_b32 s{t+6}, s{sRT}, 1
    s_add_u32 s{t+6}, s{t+6}, s{sTH}
    s_lshl_b32 s{sT16}, s{t+6}, 1
    s_add_u32 s{sT16}, s{sT16}, s{sKH}
    s_mul_i32 s{sF}, s{t+6}, 40960
    s_mul_i32 s{t+7}, s{sCT}, 5120
    s_add_u32 s{sF}, s{sF}, s{t+7}
    s_lshl_b32 s{t+7}, s{sKH}, 8
    s_add_u32 s{sF}, s{sF}, s{t+7}
    s_mul_i32 s{sRM}, s{sT16}, {16*1280}
    s_mul_i32 s{t+7}, s{sCT}, 160
    s_add_u32 s{sRM}, s{sRM}, s{t+7}
    v_lshlrev_b32 v1, 4, v15
    v_lshl_add_u32 v{vF}, v14, 9, v1
    v_lshrrev_b32 v2, 5, v0
    v_lshl_add_u32 v1, v2, 9, v1
    v_and_b32 v2, 1, v14
    v_lshl_add_u32 v{vF2}, v2, 3, v1
    v_add_u32 v{vF2}, 4096, v{vF2}
    v_mul_u32_u24 v1, 1280, v15
    v_lshl_add_u32 v{vR}, v14, 4, v1
    v_lshl_add_u32 v{vR2}, v14, 3, v1
    """)
    def io(store, rowmajor, rsrc, soff, reg, bits):
        op = "store" if store else "load"
        v16, v8 = (vR, vR2) if rowmajor else (vF, vF2)
        o1, o2 = (64, 128) if rowmajor else (2048, 0)
        return [f"buffer_{op}_dwordx4 v[{reg}:{reg+3}], v{v16}, {rsrc}, {soff} offen {bits}",
                f"buffer_{op}_dwordx4 v[{reg+4}:{reg+7}], v{v16}, {rsrc}, {soff} offen offset:{o1} {bits}",
                f"buffer_{op}_dwordx2 v[{reg+8}:{reg+9}], v{v8}, {rsrc}, {soff} offen offset:{o2} {bits}"]
    if down:
        a(f"s_add_u32 s{t+7}, s{sF}, s{sLO}\ns_add_u32 s{t+7}, s{t+7}, {L_X1}")
        for x in io(False, False, WSR, f"s{t+7}", RES, "sc1"): a(x)
        a(f"s_lshl_b32 s{t+7}, s{sT16}, 10\ns_add_u32 s{t+7}, s{t+7}, s{sLO}\ns_add_u32 s{t+7}, s{t+7}, {L_ST1}\nv_lshlrev_b32 v1, 6, v15")
        for i in range(4):
            a(f"buffer_load_dwordx4 v[{VST+4*i}:{VST+4*i+3}], v1, {WSR}, s{t+7} offen offset:{16*i} sc1")
    else:
        l1 = a.uid("prj_r1"); l2 = a.uid("prj_r2")
        a(f"s_cmp_lg_u32 s{sL}, 0\ns_cbranch_scc1 {l1}")
        for x in io(False, True, R(R_X), f"s{sRM}", RES, ""): a(x)
        a(f"s_branch {l2}")
        a.label(l1)
        a(f"s_add_u32 s{t+7}, s{sF}, {L_X2}")
        for x in io(False, False, WSR, f"s{t+7}", RES, "sc1"): a(x)
        a.label(l2)
        if fast:
            a(f"""
            s_lshl_b32 s{t+7}, s{sG}, 5
            s_add_u32 s{t+7}, s{t+7}, s{sR}
            s_lshl_b32 s{t+7}, s{t+7}, 2
            s_add_u32 s{t+7}, s{t+7}, s{sW}
            s_mul_i32 s{t+7}, s{t+7}, 6144
            s_add_u32 s{t+7}, s{t+7}, s{sLO}
            s_add_u32 s{t+7}, s{t+7}, {L_H}
            v_lshlrev_b32 v1, 7, v0
            s_mov_b32 exec_hi, 0xffff
            buffer_load_dword v9, v1, {WSR}, s{t+7} offen
            s_mov_b32 exec_hi, -1
            """)
    a(f"""
    s_lshl_b32 s{t+7}, s{sTH}, 13
    s_lshl_b32 s{t+8}, s{sKH}, 11
    s_add_u32 s{t+7}, s{t+7}, s{t+8}
    s_add_u32 s{t+7}, s{t+7}, {AB}
    v_add_u32 v2, s{t+7}, v{vF}
    s_mul_i32 s{t+7}, s{sKH}, 5120
    v_lshlrev_b32 v6, 4, v0
    v_add_u32 v3, s{t+7}, v6
    v_mov_b32 v4, v2
    v_mov_b32 v5, v3
    s_lshl_b32 s{t+7}, s{sW}, 2
    s_add_u32 s{t+7}, s{t+7}, {FLG}
    v_mov_b32 v7, s{t+7}
    v_mov_b32 v8, 0
    ds_write_b32 v7, v8
    """)
    for i in range(0, 40, 2): a(f"v_mov_b64 v[{ACC+i}:{ACC+i+1}], 0")
    for i in range(0, 28, 2): a(f"v_mov_b64 v[{FR+28+i}:{FR+28+i+1}], 0")
    def reads(u):
        b = FR + 28*u; r = []
        for tm in range(2):
            r.append(f"ds_read_b128 v[{b+4*tm}:{b+4*tm+3}], v4 offset:{4096*u+256*tm}")
        for jn in range(5):
            d = b + 8 + 4*jn
            r.append(f"ds_read_b128 v[{d}:{d+3}], v5 offset:{10240*u+1024*jn}")
        return r
    def mfmas(u):
        b = FR + 28*u; m = []
        for jn in range(5):
            for tm in range(2):
                c = ACC + 20*tm + 4*jn
                m.append(f"v_mfma_f32_16x16x32_bf16 {v(c,4)}, {v(b+8+4*jn,4)}, {v(b+4*tm,4)}, {v(c,4)}")
        return m
    sC, sSa, sSw = t+8, t+9, t+10
    a(f"s_mov_b32 s{sC}, {NCH}\ns_mov_b32 s{sSa}, 0\ns_mov_b32 s{sSw}, 0\ns_waitcnt lgkmcnt(0)")
    lp = a.uid("prj_loop")
    a.label(lp)
    a("s_barrier")
    r0 = reads(0)
    for x in r0[:3]: a(x)
    interleave(a, mfmas(1), r0[3:])
    r1 = reads(1)
    for x in r1[:3]: a(x)
    a("s_waitcnt lgkmcnt(3)")
    upd = [f"s_add_u32 s{sSa}, s{sSa}, 16384", f"s_cmp_eq_u32 s{sSa}, {NA*16384}", f"s_cselect_b32 s{sSa}, 0, s{sSa}",
           f"s_add_u32 s{sSw}, s{sSw}, 20480", f"s_cmp_eq_u32 s{sSw}, {NW*20480}", f"s_cselect_b32 s{sSw}, 0, s{sSw}",
           f"v_add_u32 v4, s{sSa}, v2", f"v_add_u32 v5, s{sSw}, v3", f"s_sub_u32 s{sC}, s{sC}, 1"]
    interleave(a, mfmas(0), r1[3:] + upd)
    a(f"s_waitcnt lgkmcnt(0)\ns_cmp_lg_u32 s{sC}, 0\ns_cbranch_scc1 {lp}")
    a("s_barrier")
    for m in mfmas(1): a(m)
    stamp(a, st0 + 1)
    swp = a.uid("prj_swp")
    a(f"""
    s_mul_i32 s{t+7}, s{sW}, 5120
    v_add_u32 v2, s{t+7}, v6
    s_xor_b32 s{t+8}, s{sW}, 2
    s_mul_i32 s{t+7}, s{t+8}, 5120
    v_add_u32 v3, s{t+7}, v6
    v_xor_b32 v5, 8, v7
    v_mov_b32 v8, 1
    s_cmp_eq_u32 s{sKH}, 0
    s_cbranch_scc1 {swp}
    """)
    for i in range(20): a(f"v_swap_b32 v{ACC+i}, v{ACC+20+i}")
    a.label(swp)
    for j in range(5):
        a(f"ds_write_b128 v2, v[{ACC+20+4*j}:{ACC+20+4*j+3}] offset:{XB+1024*j}")
    a("ds_write_b32 v7, v8")
    a(f"s_mov_b32 s{t+8}, 0xffff0000\ns_waitcnt vmcnt(0)")
    if down:
        row_stats(a, VST, VST + 2, VST + 3)
        a(f"v_mul_f32 v{VST+2}, v{VST+3}, v{VST+3}")
    for i in range(10):
        a(f"v_lshlrev_b32 v{40+2*i}, 16, v{RES+i}\nv_and_b32 v{41+2*i}, s{t+8}, v{RES+i}")
    pl = a.uid("prj_x")
    a.label(pl)
    a(f"ds_read_b32 v8, v5\ns_waitcnt lgkmcnt(0)\nv_cmp_eq_u32 vcc, 0, v8\ns_cbranch_vccnz {pl}")
    for j in range(5):
        a(f"ds_read_b128 v[{16+4*j}:{16+4*j+3}], v3 offset:{XB+1024*j}")
    for j in range(5):
        a(f"s_waitcnt lgkmcnt({4-j})")
        for i in range(0, 4, 2):
            c = ACC + 4*j + i
            a(f"v_pk_add_f32 v[{c}:{c+1}], v[{c}:{c+1}], v[{16+4*j+i}:{17+4*j+i}]")
            if down: a(f"v_pk_fma_f32 v[{c}:{c+1}], v[{c}:{c+1}], v[{VST+2}:{VST+3}], v[{40+4*j+i}:{41+4*j+i}] op_sel_hi:[1,0,1]")
            else: a(f"v_pk_add_f32 v[{c}:{c+1}], v[{c}:{c+1}], v[{40+4*j+i}:{41+4*j+i}]")
            a(f"v_cvt_pk_bf16_f32 v{60+2*j+i//2}, v{c}, v{c+1}")
    fin = a.uid("prj_fin")
    if down:
        l1 = a.uid("prj_o1")
        a(f"s_cmp_eq_u32 s{sL}, 0\ns_cbranch_scc1 {l1}")
        srd(a, R_T, P_OUT, ACT)
        for x in io(True, True, R(R_T), f"s{sRM}", 60, ""): a(x)
        a(f"s_branch {done}")
        a.label(l1)
    a(f"s_add_u32 s{t+7}, s{sF}, s{sLO}\ns_add_u32 s{t+7}, s{t+7}, {L_X2 if down else L_X1}")
    for x in io(True, False, WSR, f"s{t+7}", 60, SB): a(x)
    a("v_mov_b64 v[16:17], 0\nv_mov_b64 v[18:19], 0")
    for i in range(10):
        a(f"v_lshlrev_b32 v8, 16, v{60+i}\nv_and_b32 v9, s{t+8}, v{60+i}")
        a(f"v_pk_add_f32 v[16:17], v[16:17], v[8:9]\nv_pk_fma_f32 v[18:19], v[8:9], v[8:9], v[18:19]")
    a(f"""
    v_add_f32 v16, v16, v17
    v_add_f32 v17, v18, v19
    s_lshl_b32 s{t+7}, s{sT16}, 10
    s_lshl_b32 s{t+8}, s{sCT}, 3
    v_permlane32_swap_b32 v16, v17
    s_add_u32 s{t+7}, s{t+7}, s{t+8}
    s_add_u32 s{t+7}, s{t+7}, s{sLO}
    v_add_f32 v16, v16, v17
    v_mov_b32 v17, v16
    s_add_u32 s{t+7}, s{t+7}, {L_ST2 if down else L_ST1}
    v_lshrrev_b32 v8, 5, v0
    v_permlane16_swap_b32 v16, v17
    v_lshlrev_b32 v8, 2, v8
    v_lshl_add_u32 v8, v15, 6, v8
    v_add_f32 v16, v16, v17
    buffer_store_dword v16, v8, {WSR}, s{t+7} offen {SB}
    """)
    publish_local(a, 5 if down else 3, SB)
    stamp(a, st0 + 2)
    a(f"s_branch {done}")
    a.label(ld)
    sAo, sAd, sWs, sWd, sTmp = t+2, t+3, t+4, t+5, t+6
    proj_W_setup(a, down, sWs, sWd, sTmp)
    a(f"""
    s_sub_u32 s{sAd}, s{sW}, 4
    s_lshl_b32 s{sAo}, s{sRT}, 1
    s_lshr_b32 s{sTmp}, s{sAd}, 1
    s_add_u32 s{sAo}, s{sAo}, s{sTmp}
    s_mul_i32 s{sAo}, s{sAo}, {K*64}
    s_and_b32 s{sTmp}, s{sAd}, 1
    s_lshl_b32 s{sTmp}, s{sTmp}, 12
    s_add_u32 s{sAo}, s{sAo}, s{sTmp}
    s_add_u32 s{sAo}, s{sAo}, s{sLO}
    s_add_u32 s{sAo}, s{sAo}, {L_H if down else L_O}
    s_lshl_b32 s{sAd}, s{sAd}, 12
    v_lshlrev_b32 v8, 4, v0
    """)
    issueA = lambda c: lin_dma(a, 8, sAo, c*8192, sAd, AB + (c % NA)*16384, 4, "sc1")
    issueW = lambda c: lin_dma(a, 8, sWs, c*20480, sWd, (c % NW)*20480, 5)
    def pf():
        poll_local(a, "down" if down else "wo", 4 if down else 2); stamp(a, st0)
    gemm_loader(a, NCH, NA, NW, C.dn_pre if down else 5, issueA, issueW, pf, wdone=0 if down else 5, LA=3)
    stamp(a, st0 + 1)
    a("s_barrier")
    a.label(done)

def phase_gu(a, SB):
    fast = SB == ""
    done = a.uid("gu_done"); ld = a.uid("gu_ld")
    t = T
    NA, NW, WB, WSL = 4, 4, 65536, 24576
    sRT, sCT = t, t+1
    a(f"""
    s_lshr_b32 s{sRT}, s{sR}, 4
    s_and_b32 s{sCT}, s{sR}, 15
    s_lshl_b32 s{t+2}, s{sG}, 1
    s_add_u32 s{sRT}, s{sRT}, s{t+2}
    s_cmp_ge_u32 s{sW}, 4
    s_cbranch_scc1 {ld}
    """)
    sWM, sWN, sTB, sF0 = t+2, t+3, t+4, t+6
    FR = 14; ACC = 94; VCS = 190; VST = 238
    a(f"""
    s_and_b32 s{sWM}, s{sW}, 1
    s_lshr_b32 s{sWN}, s{sW}, 1
    s_lshl_b32 s{sTB}, s{sRT}, 1
    s_add_u32 s{sTB}, s{sTB}, s{sWM}
    s_mul_i32 s{sF0}, s{sCT}, 96
    s_mul_i32 s{t+5}, s{sWN}, 48
    s_add_u32 s{sF0}, s{sF0}, s{t+5}
    s_lshl_b32 s{t+5}, s{sF0}, 2
    s_add_u32 s{t+5}, s{t+5}, {WS_CSG}
    s_add_u32 s{t+7}, s{t+5}, {F*4}
    v_lshrrev_b32 v12, 5, v0
    v_lshlrev_b32 v1, 5, v12
    """)
    for jn in range(3):
        for q in range(4):
            r = VCS + 16*jn + 4*q
            a(f"buffer_load_dwordx4 v[{r}:{r+3}], v1, {WSR}, s{t+5 if q < 2 else t+7} offen offset:{(16*jn+4*(q&1))*4}")
    if fast:
        l1 = a.uid("gu_pt")
        a(f"""
        s_or_b32 s{t+5}, s{sL}, s{sWN}
        s_cmp_lg_u32 s{t+5}, 0
        s_cbranch_scc1 {l1}
        s_lshl_b32 s{t+5}, s{sG}, 5
        s_add_u32 s{t+5}, s{t+5}, s{sR}
        s_lshl_b32 s{t+7}, s{t+5}, 9
        s_lshl_b32 s{t+5}, s{t+5}, 1
        s_add_u32 s{t+5}, s{t+5}, s{sWM}
        s_mul_i32 s{t+5}, s{t+5}, 5120
        s_add_u32 s{t+5}, s{t+5}, {L_X2}
        s_add_u32 s{t+7}, s{t+7}, {L_ST2}
        v_lshlrev_b32 v1, 7, v0
        s_mov_b32 exec_hi, 0xff
        buffer_load_dword v{VST}, v1, {WSR}, s{t+5} offen
        s_mov_b64 exec, 15
        buffer_load_dword v{VST}, v1, {WSR}, s{t+7} offen
        s_mov_b64 exec, -1
        """)
        a.label(l1)
    a(f"""
    s_lshl_b32 s{t+5}, s{sWM}, 13
    v_lshlrev_b32 v11, 4, v0
    v_add_u32 v2, s{t+5}, v11
    v_bfe_u32 v8, v0, 2, 2
    v_lshl_add_u32 v8, v12, 3, v8
    v_mul_u32_u24 v8, 192, v8
    v_and_b32 v9, 1, v0
    v_lshl_add_u32 v8, v9, 4, v8
    v_bfe_u32 v9, v0, 1, 1
    v_lshl_add_u32 v8, v9, 3, v8
    v_bfe_u32 v9, v0, 4, 1
    v_mul_u32_u24 v10, 12288, v9
    v_add_u32 v8, v8, v10
    v_add_u32 v8, {WB}, v8
    s_mul_i32 s{t+5}, s{sWN}, 3
    v_xor_b32 v10, s{t+5}, v9
    v_lshl_add_u32 v3, v10, 5, v8
    s_add_u32 s{t+5}, s{t+5}, 1
    v_xor_b32 v10, s{t+5}, v9
    v_lshl_add_u32 v4, v10, 5, v8
    """)
    for i in range(3): a(f"v_mov_b32 v{5+i}, v{2+i}")
    for i in range(0, 96, 2): a(f"v_mov_b64 v[{ACC+i}:{ACC+i+1}], 0")
    for i in range(0, 20, 2): a(f"v_mov_b64 v[{FR+60+i}:{FR+60+i+1}], 0")
    def reads(kk):
        b = FR + 20*kk; r = []
        for tm in range(2):
            r.append(f"ds_read_b128 v[{b+4*tm}:{b+4*tm+3}], v5 offset:{4096*tm+1024*kk}")
        for jn in range(3):
            for j in range(2):
                d = b + 8 + 4*jn + 2*j
                r.append(f"ds_read_b64_tr_b16 v[{d}:{d+1}], v{6+(jn&1)} offset:{192*(16*kk+4*j)+64*(jn>>1)}")
        return r
    def mfmas(kk):
        b = FR + 20*kk; m = []
        for jn in range(3):
            for tm in range(2):
                c = ACC + 16*(2*jn + tm)
                m.append(f"v_mfma_f32_32x32x16_bf16 {v(c,16)}, {v(b+8+4*jn,4)}, {v(b+4*tm,4)}, {v(c,16)}")
        return m
    sC, sSa, sSw = t+8, t+9, t+10
    a(f"s_mov_b32 s{sC}, 10\ns_mov_b32 s{sSa}, 0\ns_mov_b32 s{sSw}, 0")
    lp = a.uid("gu_loop"); hk = a.uid("gu_hk"); hb = a.uid("gu_hb")
    a.label(lp)
    a("s_barrier")
    r1 = reads(1)
    interleave(a, mfmas(3), reads(0) + r1[:7])
    a(r1[7])
    a("s_waitcnt lgkmcnt(8)")
    interleave(a, mfmas(0), reads(2))
    a("s_waitcnt lgkmcnt(8)")
    interleave(a, mfmas(1), reads(3))
    a("s_waitcnt lgkmcnt(8)")
    upd = [f"s_add_u32 s{sSa}, s{sSa}, 16384", f"s_and_b32 s{sSa}, s{sSa}, {NA*16384-1}",
           f"s_add_u32 s{sSw}, s{sSw}, {WSL}", f"s_cmp_eq_u32 s{sSw}, {NW*WSL}", f"s_cselect_b32 s{sSw}, 0, s{sSw}",
           f"v_add_u32 v5, s{sSa}, v2", f"v_add_u32 v6, s{sSw}, v3", f"v_add_u32 v7, s{sSw}, v4", f"s_sub_u32 s{sC}, s{sC}, 1"]
    interleave(a, mfmas(2), upd)
    a(f"s_waitcnt lgkmcnt(0)\ns_cmp_eq_u32 s{sC}, 9\ns_cbranch_scc1 {hk}")
    a.label(hb)
    a(f"s_cmp_lg_u32 s{sC}, 0\ns_cbranch_scc1 {lp}")
    a("s_barrier")
    for m in mfmas(3): a(m)
    stamp(a, 22)
    a("s_waitcnt vmcnt(0)")
    for i in range(1, 8): a(f"v_add_f32 v{VST}, v{VST}, v{VST+2*i}")
    a(f"""
    v_mul_f32 v14, {f32(1.0/D)}, v{VST}
    v_mul_f32 v15, {f32(1.0/D)}, v{VST}
    s_mul_i32 s{t+5}, s{sTB}, {2*F*64}
    s_lshl_b32 s{t+7}, s{sF0}, 6
    v_permlane32_swap_b32 v14, v15
    s_add_u32 s{t+5}, s{t+5}, s{t+7}
    s_add_u32 s{t+5}, s{t+5}, s{sLO}
    s_add_u32 s{t+5}, s{t+5}, {L_H}
    s_add_u32 s{t+7}, s{t+5}, {F*64}
    """)
    for jn in range(3):
        for tm in range(2):
            c = ACC + 16*(2*jn + tm); cs = VCS + 16*jn
            sel = "op_sel:[0,0,0] op_sel_hi:[1,0,1]" if tm == 0 else "op_sel:[0,1,0] op_sel_hi:[1,1,1]"
            for i in range(0, 16, 2):
                a(f"v_pk_fma_f32 v[{c+i}:{c+i+1}], v[{cs+i}:{cs+i+1}], v[14:15], v[{c+i}:{c+i+1}] {sel} neg_lo:[0,1,0] neg_hi:[0,1,0]")
            for i in range(8): a(f"v_max_f32 v{c+i}, 0, v{c+i}")
            for i in range(0, 8, 2): a(f"v_pk_mul_f32 v[{c+i}:{c+i+1}], v[{c+i}:{c+i+1}], v[{c+8+i}:{c+9+i}]")
            o = 24 + 4*(2*jn + tm)
            for i in range(4): a(f"v_cvt_pk_bf16_f32 v{o+i}, v{c+2*i}, v{c+2*i+1}")
            a(f"buffer_store_dwordx4 v[{o}:{o+3}], v11, {WSR}, s{t+5 if tm == 0 else t+7} offen offset:{1024*jn} {SB}")
    publish_local(a, 4, SB)
    stamp(a, 23)
    a(f"s_branch {done}")
    a.label(hk)
    a(f"s_lshl_b32 s{t+5}, s{sTB}, 12\ns_add_u32 s{t+5}, s{t+5}, s{sLO}\ns_add_u32 s{t+5}, s{t+5}, {L_ST1}\nv_lshlrev_b32 v1, 6, v0")
    for i in range(4):
        a(f"buffer_load_dwordx4 v[{VST+4*i}:{VST+4*i+3}], v1, {WSR}, s{t+5} offen offset:{16*i} sc1")
    a(f"s_branch {hb}")
    a.label(ld)
    sLW, sAo, sWo, sM, sTmp, sM2 = t+2, t+3, t+4, t+5, t+6, t+7
    a(f"""
    s_sub_u32 s{sLW}, s{sW}, 4
    s_mul_i32 s{sWo}, s{sLW}, {16*F*2}
    s_mul_i32 s{sTmp}, s{sCT}, 192
    s_add_u32 s{sWo}, s{sWo}, s{sTmp}
    s_mul_i32 s{sM2}, s{sLW}, 3072
    s_movk_i32 s{sTmp}, 5462
    """)
    for i in range(3):
        a(f"""
        v_add_u32 v1, {64*i}, v0
        v_mul_u32_u24 v2, s{sTmp}, v1
        v_lshrrev_b32 v2, 16, v2
        v_mad_i32_i24 v1, v2, -12, v1
        v_mul_u32_u24 v2, {F*2}, v2
        v_lshl_add_u32 v{9+i}, v1, 4, v2
        v_xor_b32 v1, 2, v1
        v_lshl_add_u32 v{12+i}, v1, 4, v2
        """)
    a(f"""
    s_lshl_b32 s{sAo}, s{sRT}, 2
    s_add_u32 s{sAo}, s{sAo}, s{sLW}
    s_mul_i32 s{sAo}, s{sAo}, 40960
    s_add_u32 s{sAo}, s{sAo}, s{sLO}
    s_add_u32 s{sAo}, s{sAo}, {L_X1}
    s_lshl_b32 s{sM}, s{sLW}, 12
    v_lshlrev_b32 v8, 4, v0
    """)
    issueA = lambda c: lin_dma(a, 8, sAo, c*4096, sM, (c % NA)*16384, 4, "sc1")
    def issueW(c):
        a(f"s_add_u32 s{sTmp}, s{sWo}, {c*64*F*2}")
        for i in range(3):
            for u in range(2):
                a(f"s_add_u32 m0, s{sM2}, {WB + (c % NW)*WSL + 12288*u + 1024*i}\ns_nop 0")
                a(f"buffer_load_dwordx4 v{9+3*u+i}, {R(R_WU if u else R_WG)}, s{sTmp} offen lds")
        return 6
    def pf():
        poll_local(a, "gu", 3); stamp(a, 21)
    gemm_loader(a, 10, NA, NW, C.gu_pre, issueA, issueW, pf)
    stamp(a, 22)
    a("s_barrier")
    a.label(done)

def build():
    assert C.gu_pre <= 3 and C.qk_pre <= 5
    a = Asm()
    K = NAME + "_kernel"
    a(f".globl {K}\n.p2align 8\n.type {K},@function")
    a.label(K)
    a(f"""
    s_load_dwordx16 s[16:31], s[0:1], 0
    s_load_dwordx4 s[32:35], s[0:1], 64
    s_cmp_ge_u32 s2, 256
    s_cbranch_scc1 L_exit
    s_and_b32 s{sG}, s2, 7
    s_lshr_b32 s{sR}, s2, 3
    v_lshrrev_b32 v1, 6, v0
    v_and_b32 v0, 63, v0
    v_readfirstlane_b32 s{sW}, v1
    s_mov_b32 s{sL}, 0
    s_mov_b32 s{sLO}, 0
    s_mov_b32 s{sEP}, 0
    s_mov_b32 s{sTMO}, 0
    """)
    if C.stamp: a("v_mov_b32 v255, 0\ns_memrealtime s[14:15]")
    stamp(a, 0)
    a("s_waitcnt lgkmcnt(0)")
    srd(a, R_WS, P_WS, WS_END)
    srd(a, R_X, P_X, ACT)
    srd(a, R_WQ, P_WQKV, D*3*D*2)
    srd(a, R_WG, P_WG, D*F*2)
    srd(a, R_WU, P_WU, D*F*2)
    srd(a, R_T, P_WS, WS_END)
    t = T
    a(f"""
    s_cmp_lg_u32 s{sW}, 0
    s_cbranch_scc1 L_nz
    s_getpc_b64 s[{t}:{t+1}]
    s_and_b32 s{t+2}, s{sR}, 7
    s_lshl_b32 s{t+2}, s{t+2}, 13
    v_lshlrev_b32 v1, 7, v0
    v_add_u32 v1, s{t+2}, v1
    v_min_u32 v1, L_fast_end-{K}-256, v1
    global_load_dword v251, v1, s[{t}:{t+1}]
    s_lshl_b32 s{t+2}, s{sG}, 5
    s_add_u32 s{t+2}, s{t+2}, s{sR}
    s_lshl_b32 s{t+3}, s{t+2}, 5
    s_add_u32 s{t+3}, s{t+3}, {WS_FL}
    s_lshl_b32 s{t+2}, s{t+2}, 7
    s_add_u32 s{t+2}, s{t+2}, {L_FG}
    s_add_u32 s{t+4}, s{t+2}, {LSTRIDE}
    v_lshlrev_b32 v1, 2, v0
    v_mov_b32 v3, 0
    s_mov_b64 exec, 0xff
    buffer_store_dword v3, v1, {WSR}, s{t+3} offen sc1
    buffer_store_dword v3, v1, {WSR}, s{t+2} offen sc1
    buffer_store_dword v3, v1, {WSR}, s{t+4} offen sc1
    s_mov_b64 exec, -1
    v_mov_b32 v1, {131072+15360+1024}
    ds_write_b32 v1, v3
    s_waitcnt lgkmcnt(0)
    """)
    a.label("L_nz")
    a(f"s_and_b32 s{t}, s{sR}, 15\ns_cmp_lg_u32 s{t}, 15\ns_cbranch_scc1 L_nb\ns_barrier")
    a.label("L_nb")
    MODE, CNT = phase_qkv(a, True, "sc1")
    assert CNT == 131072+15360+1024
    a(f"v_mov_b32 v1, {MODE}\nds_read_b32 v1, v1\ns_waitcnt lgkmcnt(0)\nv_cmp_eq_u32 vcc, 0, v1\ns_barrier\ns_cbranch_vccnz L_slow")
    tails = []
    for nm, SB in (("fast", ""), ("slow", "sc1")):
        a.label(f"L_{nm}")
        qkv_publish(a, SB)
        tails.append(phase_attn(a, SB))
        phase_proj(a, False, SB)
        phase_gu(a, SB)
        phase_proj(a, True, SB)
        a(f"s_cmp_lg_u32 s{sL}, 0\ns_cbranch_scc1 L_end")
        phase_qkv(a, False, SB)
        a(f"s_mov_b32 s{sL}, 1\ns_mov_b32 s{sLO}, {LSTRIDE}\ns_mov_b32 s{sEP}, 5\ns_branch L_{nm}")
        if nm == "fast":
            a.label("L_end")
            if C.stamp:
                a("s_waitcnt vmcnt(0)")
                stamp(a, 16)
                a(f"""
                s_memrealtime s[10:11]
                s_waitcnt lgkmcnt(0)
                v_writelane_b32 v255, s14, 62
                v_writelane_b32 v255, s10, 63
                v_writelane_b32 v255, s{sTMO}, 61
                s_lshl_b32 s10, s2, 3
                s_add_u32 s10, s10, s{sW}
                s_lshl_b32 s10, s10, 8
                s_add_u32 s10, s10, {WS_STAMP}
                v_lshlrev_b32 v1, 2, v0
                v_add_u32 v1, s10, v1
                global_store_dword v1, v255, s[{P_WS}:{P_WS+1}]
                """)
            a.label("L_exit")
            a("s_endpgm")
            a.label("L_fast_end")
    for f in tails: f()
    hdr = open("cdna_kernels/" + NAME + ".s.ref").read().split("; Override")[0]
    hdr += "; @launch grid=(256,1,1) block=(512,1,1) lds=163840\n"
    txt = hdr + '.amdgcn_target "amdgcn-amd-amdhsa--gfx950"\n.text\n' + a.text() + f'''.section .rodata,"a"
.p2align 6
.amdhsa_kernel {K}
  .amdhsa_next_free_vgpr 256
  .amdhsa_next_free_sgpr 102
  .amdhsa_accum_offset 256
  .amdhsa_group_segment_fixed_size 0
  .amdhsa_kernarg_size 80
  .amdhsa_user_sgpr_count 2
  .amdhsa_user_sgpr_kernarg_segment_ptr 1
  .amdhsa_system_sgpr_workgroup_id_x 1
.end_amdhsa_kernel
'''
    for p in check(a.lines): print("HAZARD", p)
    return txt

if __name__ == "__main__":
    out = sys.argv[1] if len(sys.argv) > 1 else "cdna_kernels/" + NAME + ".s"
    for kv in sys.argv[2:]:
        k, _, val = kv.partition("=")
        setattr(C, k, int(val) if val else True)
    open(out, "w").write(build())
    print("written", out)
```

```python
import sys, math, struct
sys.path.insert(0, "gen")
from asmlib import *

NAME = "interleave_layers__softmax_full_mha__glu_gated_reglu__prompt"
S, D, F, H, DH = 2048, 640, 1536, 32, 20
ACT = S * D * 2
HEADB = 81920
L_Q = 0
L_K = L_Q + ACT
L_V = L_K + ACT
L_O = L_V + ACT
L_X1 = L_O + ACT
L_X2 = L_X1 + ACT
L_H = L_X2 + ACT
L_ST1 = L_H + S * F * 2
L_ST2 = L_ST1 + S * 64
L_FG = L_ST2 + S * 64
LSTRIDE = L_FG + 32768
WS_WTO = 2 * LSTRIDE
WS_WTD = WS_WTO + D * D * 2
WS_WTG = WS_WTD + F * D * 2
WS_CSP = WS_WTG + 2 * F * D * 2
WS_CSG = WS_CSP + 10 * 12288
WS_CSQ = WS_CSG + 256 * 768
WS_FL = WS_CSQ + 256 * 512
WS_END = WS_FL + 8192
WS_SIZE = 268435456
WS_STAMP = 200 << 20
QSCALE = (DH ** -0.5) * math.log2(math.e)
def f32(x): return "0x%08x" % struct.unpack("<I", struct.pack("<f", x))[0]

P_X, P_WQKV, P_WO, P_BX, P_WG, P_WU, P_WD, P_OUT, P_DBG, P_WS = 16, 18, 20, 22, 24, 26, 28, 30, 32, 34
sL, sG, sR, sW, sLO, sEP, sTMO, sWG = 3, 4, 5, 6, 7, 8, 9, 13
R_WS, R_X, R_WQ, R_WG, R_WU, R_T = 36, 40, 44, 48, 52, 56
T = 60
WSR = f"s[{R_WS}:{R_WS+3}]"
def R(r): return f"s[{r}:{r+3}]"
SPIN = 200000

class Cfg:
    stamp = False
    dbg = 0
    look = 6
    gu_e = 12
    dn_e = 8
    qk_e = 8
    bud_gu = 10
    bud_dn = 5
    bud_qk = 6
    bud_q1 = 10
    dn_a = 3
    psleep = 1
    gran = 3
    nt_kv = 0
    nt_wo = 0
    nt_gu = 0
    nt_dn = 0
    nt_qk = 0
    htouch = 0
    warm = 0
    gu_e2 = 0
    wo_sets = 6
    q1pf = 1
    l2pf = 12
    rot = 0
    x_hit = 0
    tlb = 0
    rot_gu = 0
    rot_dn = 0
    rot_qk = 0
    dn_early = 99
    qk_early = 99
C = Cfg()

def stamp(a, i):
    if not C.stamp: return
    a(f"s_memtime s[10:11]\ns_mul_i32 s12, s{sL}, 24\ns_add_u32 m0, s12, {i}\ns_waitcnt lgkmcnt(0)\nv_writelane_b32 v255, s10, m0")
    if C.dbg == 7: a(f"s_memrealtime s[10:11]\ns_waitcnt lgkmcnt(0)\nv_writelane_b32 v254, s10, m0")

def dstamp(a, d, i):
    if C.stamp and C.dbg == d: a(f"s_memtime s[10:11]\ns_lshl_b32 s12, s{sL}, 5\ns_add_u32 m0, s12, {i}\ns_waitcnt lgkmcnt(0)\nv_writelane_b32 v254, s10, m0")

def srd(a, r, ptr, size):
    a(f"s_mov_b32 s{r}, s{ptr}\ns_mov_b32 s{r+1}, s{ptr+1}\ns_mov_b32 s{r+2}, {size}\ns_mov_b32 s{r+3}, 0x20000")

def interleave(a, mf, other):
    n = len(mf); k = 0
    for i, m in enumerate(mf):
        a(m)
        tgt = (len(other) * (i + 1) + n - 1) // n
        while k < tgt:
            a(other[k]); k += 1

def poll(a, vaddr, vtmp, soff, want, sleep=0, pre=False, wide=False):
    lp = a.uid("poll"); ok = a.uid("pollok")
    cnt = T + 22
    a(f"s_mov_b32 s{cnt}, s{sTMO}")
    if pre: a(f"s_branch {lp}c")
    a.label(lp)
    if wide: a(f"buffer_load_dwordx4 v[{vtmp}:{vtmp+3}], v{vaddr}, {WSR}, {soff} offen sc1")
    else: a(f"buffer_load_dword v{vtmp}, v{vaddr}, {WSR}, {soff} offen sc1")
    if pre: a.label(lp + "c")
    a(f"s_waitcnt vmcnt(0)")
    a(f"v_subrev_u32 v{vtmp}, {want}, v{vtmp}")
    if wide:
        for i in range(1, 4): a(f"v_subrev_u32 v{vtmp+i}, {want}, v{vtmp+i}\nv_max_u32 v{vtmp}, v{vtmp}, v{vtmp+i}")
    a(f"v_cmp_lt_u32 vcc, 15, v{vtmp}")
    a(f"s_cbranch_vccz {ok}")
    if sleep: a(f"s_sleep {sleep}")
    a(f"s_add_u32 s{cnt}, s{cnt}, 1\ns_cmp_lt_u32 s{cnt}, {SPIN}\ns_cbranch_scc1 {lp}")
    a(f"s_mov_b32 s{sTMO}, {SPIN}")
    a.label(ok)

def poll_local(a, kind, ep, va=1, vt=2, sleep=0):
    t = T + 20
    if kind == "wo":
        a(f"v_and_b32 v{va}, 31, v0\nv_lshlrev_b32 v{va}, 5, v{va}\ns_lshr_b32 s{t}, s{sR}, 3\ns_lshl_b32 s{t}, s{t}, 2\ns_add_u32 s{t}, s{t}, 16")
    elif kind == "gu":
        a(f"v_lshrrev_b32 v{va}, 2, v0\nv_lshlrev_b32 v{va}, 5, v{va}\nv_and_b32 v{vt}, 3, v0\nv_lshl_add_u32 v{va}, v{vt}, 2, v{va}")
        a(f"s_lshr_b32 s{t}, s{sR}, 4\ns_lshl_b32 s{t}, s{t}, 9")
    elif kind == "down":
        a(f"v_bfe_u32 v{va}, v0, 1, 4\nv_lshlrev_b32 v{va}, 5, v{va}\nv_and_b32 v{vt}, 1, v0\nv_lshl_add_u32 v{va}, v{vt}, 3, v{va}")
        a(f"s_lshr_b32 s{t}, s{sR}, 4\ns_lshl_b32 s{t}, s{t}, 9\ns_bfe_u32 s{t+1}, s{sR}, 0x10003\ns_lshl_b32 s{t+1}, s{t+1}, 2\ns_add_u32 s{t}, s{t}, s{t+1}")
    elif kind == "attn":
        a(f"""
        v_bfe_u32 v{va}, v0, 2, 1
        v_mul_u32_u24 v{va}, 19, v{va}
        s_mul_i32 s{t}, s{sR}, 20
        v_add_u32 v{va}, s{t}, v{va}
        v_lshrrev_b32 v{va}, 7, v{va}
        v_lshrrev_b32 v{vt}, 4, v0
        v_min_u32 v{vt}, 2, v{vt}
        v_mad_u32_u24 v{va}, v{vt}, 5, v{va}
        v_bfe_u32 v{vt}, v0, 3, 1
        v_lshl_add_u32 v{va}, v{vt}, 4, v{va}
        v_lshlrev_b32 v{va}, 5, v{va}
        v_and_b32 v{vt}, 3, v0
        v_lshl_add_u32 v{va}, v{vt}, 2, v{va}
        s_mov_b32 s{t}, 0
        """)
    a(f"s_lshl_b32 s{t+1}, s{sG}, 10\ns_add_u32 s{t}, s{t}, s{t+1}\ns_add_u32 s{t}, s{t}, {WS_FL}\ns_add_u32 s{t+1}, s{sEP}, {ep}")
    poll(a, va, vt, f"s{t}", f"s{t+1}", sleep=sleep)

sNR, sGO, sGW = 92, 94, 95
class Gate:
    def __init__(self, a, va, vt, fold=False, sleep=0):
        self.a, self.va, self.vt, self.fold, self.sleep = a, va, vt, fold, sleep
        self.ok = 0
    def load(self): self.a(f"buffer_load_dword v{self.vt}, v{self.va}, {WSR}, s{sGO} offen sc1")
    def upd(self):
        self.a(f"s_waitcnt vmcnt(0)\nv_subrev_u32 v{self.vt}, s{sGW}, v{self.vt}\nv_cmp_lt_u32 s[{sNR}:{sNR+1}], 15, v{self.vt}")
        if self.fold: self.a(f"s_or_b32 s{sNR}, s{sNR}, s{sNR+1}")
    def reset(self): self.a(f"s_mov_b32 s{sNR}, -1")
    def need(self, mask):
        a = self.a
        mask &= ~self.ok
        if not mask: return
        self.ok |= mask
        lp = a.uid("gt"); cnt = T + 22
        a(f"s_and_b32 s{cnt}, s{sNR}, {hex(mask)}\ns_cbranch_scc0 {lp}k\ns_mov_b32 s{cnt}, s{sTMO}")
        a.label(lp)
        self.load(); self.upd()
        a(f"s_and_b32 s{cnt+1}, s{sNR}, {hex(mask)}\ns_cbranch_scc0 {lp}k")
        if self.sleep: a(f"s_sleep {self.sleep}")
        a(f"s_add_u32 s{cnt}, s{cnt}, 1\ns_cmp_lt_u32 s{cnt}, {SPIN}\ns_cbranch_scc1 {lp}\ns_mov_b32 s{sTMO}, {SPIN}")
        a.label(lp + "k")
def span(lo, hi, w, bits):
    m = 0
    for p in range(lo // w, hi // w + 1): m |= ((1 << bits) - 1) << (bits * p)
    return m
def gate_local(a, kind, ep, va, vt, sRotCt=None, sleep=0):
    t = T + 20
    if kind == "wo":
        a(f"v_and_b32 v{va}, 31, v0\nv_lshlrev_b32 v{va}, 5, v{va}\ns_lshr_b32 s{sGO}, s{sR}, 3\ns_lshl_b32 s{sGO}, s{sGO}, 2\ns_add_u32 s{sGO}, s{sGO}, 16")
    elif kind == "down":
        a(f"v_lshrrev_b32 v{va}, 1, v0\nv_add_u32 v{va}, s{sRotCt}, v{va}\nv_and_b32 v{va}, 15, v{va}\nv_lshlrev_b32 v{va}, 5, v{va}\nv_and_b32 v{vt}, 1, v0\nv_lshl_add_u32 v{va}, v{vt}, 3, v{va}")
        a(f"s_lshr_b32 s{sGO}, s{sR}, 4\ns_lshl_b32 s{sGO}, s{sGO}, 9\ns_bfe_u32 s{t+1}, s{sR}, 0x10003\ns_lshl_b32 s{t+1}, s{t+1}, 2\ns_add_u32 s{sGO}, s{sGO}, s{t+1}")
    elif kind == "gu":
        a(f"v_lshrrev_b32 v{va}, 1, v0\nv_add_u32 v{va}, s{sRotCt}, v{va}\nv_and_b32 v{va}, 7, v{va}\nv_lshlrev_b32 v{va}, 5, v{va}\nv_and_b32 v{vt}, 1, v0\nv_lshl_add_u32 v{va}, v{vt}, 2, v{va}")
        a(f"s_lshr_b32 s{sGO}, s{sR}, 4\ns_lshl_b32 s{sGO}, s{sGO}, 9\ns_bfe_u32 s{t+1}, s{sW}, 0x10001\ns_lshl_b32 s{t+1}, s{t+1}, 8\ns_add_u32 s{sGO}, s{sGO}, s{t+1}")
        a(f"s_and_b32 s{t+1}, s{sW}, 1\ns_lshl_b32 s{t+1}, s{t+1}, 3\ns_add_u32 s{sGO}, s{sGO}, s{t+1}")
    a(f"s_lshl_b32 s{t+1}, s{sG}, 10\ns_add_u32 s{sGO}, s{sGO}, s{t+1}\ns_add_u32 s{sGO}, s{sGO}, {WS_FL}\ns_add_u32 s{sGW}, s{sEP}, {ep}")
    g = Gate(a, va, vt, sleep=sleep); g.reset()
    return g

def flag_setup(a, ep):
    t = T + 20
    a(f"s_lshl_b32 s{t}, s{sWG}, 3\ns_add_u32 s{t}, s{t}, s{sW}\ns_lshl_b32 s{t}, s{t}, 2\ns_add_u32 s{t}, s{t}, {WS_FL}\ns_add_u32 s{t+1}, s{sEP}, {ep}")
    a(f"v_mov_b32 v1, 0\nv_mov_b32 v2, s{t+1}")
def flag_store(a, SB, s=T+20):
    a(f"s_mov_b64 exec, 1\nbuffer_store_dword v2, v1, {WSR}, s{s} offen {SB}\ns_mov_b64 exec, -1")
def publish_local(a, ep, SB):
    flag_setup(a, ep)
    a("s_waitcnt vmcnt(0)")
    flag_store(a, SB)

def row_stats(a, vst, vmean, vrstd):
    for i in range(1, 8):
        a(f"v_add_f32 v{vst}, v{vst}, v{vst+2*i}\nv_add_f32 v{vst+1}, v{vst+1}, v{vst+2*i+1}")
    finish_stats(a, vst, vst + 1, vmean, vrstd)

def finish_stats(a, vs, vq, vmean, vrstd):
    a(f"v_mul_f32 v{vmean}, {f32(1.0/D)}, v{vs}")
    a(f"v_mul_f32 v{vq}, {f32(1.0/D)}, v{vq}")
    a(f"v_fma_f32 v{vq}, -v{vmean}, v{vmean}, v{vq}")
    a(f"v_max_f32 v{vq}, 0, v{vq}")
    a(f"v_add_f32 v{vq}, {f32(1e-5)}, v{vq}")
    a(f"v_rsq_f32 v{vrstd}, v{vq}")
    a("s_nop 0")

def lin_dma(a, vaddr, src_s, src_off, dst_s, dst_off, npieces, bits="", rsrc=WSR, tmp=T+19):
    i = 0
    while i < npieces:
        k = min(4, npieces - i)
        a(f"s_add_u32 m0, s{dst_s}, {dst_off + 1024*i}")
        a(f"s_add_u32 s{tmp}, s{src_s}, {src_off + 1024*i}")
        for j in range(k):
            a(f"buffer_load_dwordx4 v{vaddr}, {rsrc}, s{tmp} offen offset:{1024*j} {bits} lds")
        i += k
    return npieces


def states(x):
    return int(x.split()[1]) + 1 if x.startswith("s_nop") else 1

def gemm_unrolled(a, n, P, nr, reads, mfma, groups, inserts, fix, fix_from, epi, st_end):
    seq = []
    def add(ms, fill, pre=()):
        k = 0
        for i, (kk, tl) in enumerate(ms):
            tgt = (len(fill) * (i + 1) + len(ms) - 1) // len(ms)
            seq.append([list(pre) if i == 0 else [], mfma(kk, tl), tl, list(fill[k:tgt])]); k = tgt
    step = lambda kk: [(kk, tl) for tl in range(P)]
    a("s_barrier")
    for x in reads(0, 0) + reads(0, 1): a(x)
    w = f"s_waitcnt lgkmcnt({nr})"
    for c in range(n - 1):
        add(step(0), reads(c, 2), [w])
        add(step(1), reads(c, 3), [w])
        add(step(2), [], [w])
        seq[-2][3] += ["s_waitcnt lgkmcnt(0)"]; seq[-1][3] += ["s_barrier"]
        add(step(3), reads(c + 1, 0) + reads(c + 1, 1))
    nmain = len(seq)
    for i0, ins in inserts.items():
        i = i0; ins = list(ins)
        while ins:
            room = 4 - sum(states(x) for x in seq[i][3]) - len(seq[i+1][0])
            if ins[0].startswith("s_mov_b32 exec") and room < 3: room = 0
            while room > 0 and ins and "s_barrier" not in seq[i][3]:
                x = ins.pop(0); seq[i][3].append(x); room -= states(x)
            i += 1

        end = fix_from if i0 < fix_from else nmain
        assert i <= end
        if any(x.startswith("ds_") for x in inserts[i0]): assert any("s_waitcnt lgkmcnt(0)" in seq[j][3] for j in range(i, end)), (i, end)
    todo = {tl: list(fix(tl)) for tl in range(P)}
    used = lambda g: sum(states(x) for x in seq[g][3]) + len(seq[g+1][0])
    g = fix_from + 2
    while any(todo.values()):
        assert g + 2 < nmain, "no room for fix"
        if used(g) < 5 and "s_barrier" not in seq[g][3]:
            for back in range(P - 2, 1, -1):
                tl = seq[g - back][2]
                if not todo[tl] or g - back < fix_from: continue
                have = sum(used(x) + 1 for x in range(g - back, g)) + sum(states(x) for x in seq[g][3])
                room = sum(max(0, 5 - used(x)) for x in range(g - back, g))
                if have + room < 12: continue
                for x in range(g - back, g):
                    k = min(5 - used(x), 12 - have)
                    if k > 0: seq[x][3].append(f"s_nop {k-1}"); have += k
                while used(g) < 5 and todo[tl]: seq[g][3].append(todo[tl].pop(0))
            if used(g + 1) < 1: seq[g + 1][3].append("s_nop 0")
        g += 1

    c = n - 1
    g0 = groups[0]
    seq[-1][3] += reads(c, 2)
    add([(kk, tl) for kk in (0, 1) for tl in g0], reads(c, 3), [w])
    add([(kk, tl) for kk in (2, 3) for tl in g0], [], ["s_waitcnt lgkmcnt(0)"])
    seq[-len(g0)*2][3].append("s_barrier")
    for gi in range(1, len(groups)):
        ms = [(kk, tl) for kk in range(4) for tl in groups[gi]]
        if gi == 1:
            seq[-1][3].append("s_nop 4")
            add(ms[:1], ["s_nop 4"]); add(ms[1:], epi(gi - 1, False))
        else: add(ms, ["s_nop 0"] + epi(gi - 1, False))
    for pre, m, tl, post in seq:
        for x in pre: a(x)
        a(m)
        for x in post: a(x)
    stamp(a, st_end)
    a.nop(3)
    for x in epi(len(groups) - 1, True): a(x)

class Src:
    def __init__(self, sB, sB1, sThr, stride): self.__dict__.update(locals())
    def setup(self, a, sRot, n, tmp):
        a(f"s_mul_i32 s{tmp}, s{sRot}, {self.stride}\ns_add_u32 s{self.sB}, s{self.sB}, s{tmp}\ns_sub_u32 s{self.sB1}, s{self.sB}, {n*self.stride}")
    def sel(self, a, c, dst):
        a(f"s_cmp_gt_u32 s{self.sThr}, {c}\ns_cselect_b32 s{dst}, s{self.sB}, s{self.sB1}")

class Phase:
    def __init__(self, name, n, npa, npw, emitA, emitW, regA, regW, pollfn, budget, lag=1, after_bar=None, dbg=False, early=99):
        self.__dict__.update(locals())

class Loader:
    def __init__(self, a):
        self.a = a; self.q = []; self.live = {}; self.waitfn = None
    def free(self, reg, key):
        return key in self.live or all(reg[1] <= lo or hi <= reg[0] for lo, hi in self.live.values())
    def can(self, ph, kind, c):
        return self.free((ph.regA if kind == "A" else ph.regW)(c), (ph.name, kind, c))
    def issue(self, ph, kind, c, i0, k):
        assert self.can(ph, kind, c)
        self.live[(ph.name, kind, c)] = (ph.regA if kind == "A" else ph.regW)(c)
        (ph.emitA if kind == "A" else ph.emitW)(c, i0, k)
        self.q += [(ph.name, kind, c)] * k
    def release(self, ph, c):
        for k in "AW": self.live.pop((ph.name, k, c), None)
    def wait(self, tags):
        last = -1
        for i, t in enumerate(self.q):
            if t in tags: last = i
        if last >= 0:
            n = len(self.q) - 1 - last
            assert n < 64
            self.q = self.q[last+1:]
            if self.waitfn: self.waitfn(n)
            else: self.a(f"s_waitcnt vmcnt({n})")
    def pre(self, ph, pw, cnt):
        done = 0
        while pw < ph.n * ph.npw and done < cnt and self.can(ph, "W", pw // ph.npw):
            k = min(4, ph.npw - pw % ph.npw, cnt - done)
            self.issue(ph, "W", pw // ph.npw, pw % ph.npw, k); pw += k; done += k
        return pw
    def run(self, ph, nxt, pw=0, after_poll=None, tail=None, waitfn=None):
        a = self.a; n = ph.n
        pa = 0; pn = 0
        if ph.pollfn: ph.pollfn()
        if after_poll: after_poll()
        for c in range(n):
            done = 0
            while True:
                needed = pa < (c + 1) * ph.npa or pw < (c + 1) * ph.npw
                if not needed:
                    beyond = 0
                    for t in reversed(self.q):
                        if t[0] == ph.name and t[2] <= c: break
                        beyond += 1
                    if beyond >= C.look and (done >= ph.budget or c == 0): break
                ca = pa // ph.npa if ph.npa else n; cw = pw // ph.npw
                okA = ca < n and self.can(ph, "A", ca)
                okW = cw < n and self.can(ph, "W", cw)
                if okW and (cw <= ca or not okA):
                    k = ph.npw - pw % ph.npw
                    if not needed: k = min(2, k)
                    self.issue(ph, "W", cw, pw % ph.npw, k); pw += k
                elif okA:
                    k = ph.npa - pa % ph.npa
                    if not needed: k = min(2, k)
                    self.issue(ph, "A", ca, pa % ph.npa, k); pa += k
                elif nxt and ca == n and cw == n and pn < nxt.early and self.can(nxt, "W", pn // nxt.npw):
                    k = min(2, nxt.npw - pn % nxt.npw)
                    self.issue(nxt, "W", pn // nxt.npw, pn % nxt.npw, k); pn += k
                else:
                    assert not needed
                    break
                done += k
            if tail and pa == n * ph.npa and pw == n * ph.npw:
                tail(); tail = None; self.waitfn = waitfn
            if ph.after_bar and c > 0: ph.after_bar(c - 1)
            self.wait({(ph.name, "A", c), (ph.name, "W", c)})
            if ph.dbg and C.stamp: a(f"s_memtime s[10:11]\ns_waitcnt lgkmcnt(0)\nv_writelane_b32 v254, s10, {2*c}")
            a("s_barrier")
            if ph.dbg and C.stamp: a(f"s_memtime s[10:11]\ns_waitcnt lgkmcnt(0)\nv_writelane_b32 v254, s10, {2*c+1}")
            self.release(ph, c - ph.lag)
        if ph.after_bar: ph.after_bar(n - 1)
        if nxt: pn = self.pre(nxt, pn, min(ph.budget, max(0, nxt.early - pn)))
        return pn
    def end(self, ph):
        self.a("s_barrier")
        for c in range(ph.n): self.release(ph, c)

Q1_TAB = 131072 + 26624
Q1_NON = Q1_TAB + 1024
WB = 65536
def guW(c): return WB + ((3 - c) % 4) * 24576
def dnW(c): return ((c + 2) % 8) * 20480
def qkW(c): return WB + ((c + 4) % 6) * 16384

PSCR = 131072
PV = 180
def projjob_issue(a, sJob, sScr, t, loads=True):
    a(f"""
    s_and_b32 s{t+2}, s{sJob}, 7
    s_lshr_b32 s{t+3}, s{sJob}, 3
    s_cmp_lt_u32 s{t+3}, 20
    s_cselect_b32 s{R_T}, s{P_WO}, s{P_WD}
    s_cselect_b32 s{R_T+1}, s{P_WO+1}, s{P_WD+1}
    s_mov_b32 s{R_T+2}, {F*D*2}
    s_cselect_b32 s{R_T+2}, {D*D*2}, s{R_T+2}
    s_mov_b32 s{R_T+3}, 0x20000
    s_cselect_b32 s{t+4}, 0, 20
    s_cselect_b32 s{t+5}, 20, 48
    s_mov_b32 s{t+6}, {WS_WTD}
    s_cselect_b32 s{t+6}, {WS_WTO}, s{t+6}
    s_sub_u32 s{t+3}, s{t+3}, s{t+4}
    s_mul_i32 s{t+5}, s{t+5}, s{t+2}
    s_add_u32 s{t+5}, s{t+5}, s{t+3}
    s_mul_i32 s{t+5}, s{t+5}, 5120
    s_add_u32 s{t+6}, s{t+6}, s{t+5}
    s_mul_i32 s{t+3}, s{t+3}, {32*1280}
    s_mul_i32 s{t+2}, s{t+2}, 160
    s_add_u32 s{t+3}, s{t+3}, s{t+2}
    s_movk_i32 s{t+4}, 6554
    """)
    x, y = PV, PV + 1
    for i in range(5 if loads else 0):
        a(f"""
        v_add_u32 v{x}, {64*i}, v0
        v_mul_u32_u24 v{y}, s{t+4}, v{x}
        v_lshrrev_b32 v{y}, 16, v{y}
        v_mad_i32_i24 v{x}, v{y}, -10, v{x}
        v_mul_u32_u24 v{y}, 1280, v{y}
        v_lshl_add_u32 v{x}, v{x}, 4, v{y}
        s_add_u32 m0, s{sScr}, {1024*i}
        s_nop 0
        buffer_load_dwordx4 v{x}, {R(R_T)}, s{t+3} offen lds
        """)
def projjob_finish(a, sScr, t):
    x, y, z, d0 = PV, PV + 1, PV + 2, PV + 4
    a(f"""
    v_lshrrev_b32 v{x}, 4, v0
    v_bfe_u32 v{y}, v0, 2, 2
    v_lshl_add_u32 v{x}, v{x}, 3, v{y}
    v_mul_u32_u24 v{x}, 160, v{x}
    v_add_u32 v{x}, s{sScr}, v{x}
    v_and_b32 v{y}, 3, v0
    v_lshl_add_u32 v{z}, v{y}, 3, v{x}
    v_lshl_add_u32 v{y}, v{y}, 4, v{x}
    """)
    for jn in range(5):
        for j in range(2):
            d = d0 + 4*jn + 2*j
            if jn < 4: a(f"ds_read_b64_tr_b16 v[{d}:{d+1}], v{y} offset:{640*j + 64*(jn>>1) + 8*(jn&1)}")
            else: a(f"ds_read_b64_tr_b16 v[{d}:{d+1}], v{z} offset:{640*j + 128}")
    a(f"s_add_u32 s{t+5}, s{t+6}, 4096\ns_waitcnt lgkmcnt(0)")
    for jn in range(5):
        d = d0 + 4*jn
        a(f"buffer_store_dwordx4 v[{d}:{d+3}], v5, {WSR}, s{t+6 if jn < 4 else t+5} offen offset:{1024*(jn&3)} sc1")

def gujob_issue(a, sJob, t, loads=True):
    x, y = PV, PV + 1
    a(f"""
    s_mul_i32 s{t+2}, s{sJob}, 2731
    s_lshr_b32 s{t+2}, s{t+2}, 16
    s_mul_i32 s{t+3}, s{t+2}, 24
    s_sub_u32 s{t+3}, s{sJob}, s{t+3}
    s_mul_i32 s{t+4}, s{t+2}, {64*F*2}
    s_lshl_b32 s{t+5}, s{t+3}, 7
    s_add_u32 s{t+4}, s{t+4}, s{t+5}
    v_lshrrev_b32 v{x}, 3, v0
    v_mul_u32_u24 v{x}, {F*2}, v{x}
    v_and_b32 v{y}, 7, v0
    v_lshl_add_u32 v{x}, v{y}, 4, v{x}
    """)
    for i in range(8 if loads else 0):
        for u in range(2):
            a(f"s_mov_b32 m0, {PSCR + 8192*u + 1024*i}\ns_add_u32 s{t+5}, s{t+4}, {i*8*F*2}")
            a(f"buffer_load_dwordx4 v{x}, {R(R_WU if u else R_WG)}, s{t+5} offen lds")
def gujob_finish(a, t):
    x, y, z = PV, PV + 1, PV + 2
    ONE, FRG, CS = PV + 4, PV + 8, PV + 40
    a(f"""
    v_bfe_u32 v{x}, v0, 2, 2
    v_lshl_add_u32 v{x}, v14, 3, v{x}
    v_lshlrev_b32 v{x}, 7, v{x}
    v_and_b32 v{y}, 1, v0
    v_lshl_add_u32 v{x}, v{y}, 4, v{x}
    v_bfe_u32 v{y}, v0, 1, 1
    v_lshl_add_u32 v{x}, v{y}, 3, v{x}
    v_bfe_u32 v{y}, v0, 4, 1
    v_lshl_add_u32 v{x}, v{y}, 13, v{x}
    v_add_u32 v{x}, {PSCR}, v{x}
    v_lshlrev_b32 v{z}, 6, v14
    s_mul_i32 s{t+6}, s{t+2}, 12288
    s_lshl_b32 s{t+5}, s{t+3}, 9
    s_add_u32 s{t+6}, s{t+6}, s{t+5}
    s_add_u32 s{t+6}, s{t+6}, {WS_CSP}
    """)
    for i in range(4): a(f"v_mov_b32 v{ONE+i}, 0x3f803f80")
    for tt in range(4):
        f0 = FRG + 16*(tt & 1)
        for kk in range(4):
            for j in range(2):
                d = f0 + 4*kk + 2*j
                a(f"ds_read_b64_tr_b16 v[{d}:{d+1}], v{x} offset:{128*(16*kk+4*j) + 32*tt}")
        a(f"""
        s_lshl_b32 s{t+4}, s{t+3}, 2
        s_add_u32 s{t+4}, s{t+4}, {tt}
        s_mul_i32 s{t+5}, s{t+4}, 43
        s_lshr_b32 s{t+5}, s{t+5}, 8
        s_mul_i32 s{t+5}, s{t+5}, 234
        s_add_u32 s{t+4}, s{t+4}, s{t+5}
        s_mul_i32 s{t+5}, s{t+2}, 24
        s_add_u32 s{t+4}, s{t+4}, s{t+5}
        s_lshl_b32 s{t+4}, s{t+4}, 10
        s_add_u32 s{t+4}, s{t+4}, {WS_WTG}
        s_waitcnt lgkmcnt(0)
        """)
        for kk in range(4):
            a(f"v_mfma_f32_32x32x16_bf16 {v(CS,16)}, {v(f0+4*kk,4)}, {v(ONE,4)}, {v(CS,16) if kk else 0}")
        for kk in range(4):
            d = f0 + 4*kk
            a(f"buffer_store_dwordx4 v[{d}:{d+3}], v5, {WSR}, s{t+4} offen sc1\ns_add_u32 s{t+4}, s{t+4}, 6144")
        a("s_mov_b32 exec_lo, 1\ns_mov_b32 exec_hi, 1\ns_nop 1")
        for q in range(4):
            a(f"buffer_store_dwordx4 v[{CS+4*q}:{CS+4*q+3}], v{z}, {WSR}, s{t+6} offen offset:{128*tt+16*q} sc1")
        a("s_mov_b64 exec, -1")

def prep(a, stage):
    tj = 84; sJob, sScr = tj, tj + 1
    lg = a.uid("pg"); le = a.uid("pe")
    a(f"""
    s_lshr_b32 s{sScr}, s{sWG}, 4
    s_sub_u32 s{sJob}, s{sWG}, s{sScr}
    s_and_b32 s{sScr}, s{sW}, 3
    s_cmp_eq_u32 s{sScr}, 0
    s_cbranch_scc1 {lg}
    s_cmp_eq_u32 s{sScr}, 3
    s_cbranch_scc1 {le}
    s_sub_u32 s{sScr}, s{sScr}, 1
    s_mul_i32 s{tj+2}, s{sScr}, 240
    s_add_u32 s{sJob}, s{sJob}, s{tj+2}
    s_mul_i32 s{sScr}, s{sScr}, 5120
    s_add_u32 s{sScr}, s{sScr}, {PSCR + 16384}
    """)
    projjob_issue(a, sJob, sScr, tj, stage == 0)
    if stage: projjob_finish(a, sScr, tj)
    a(f"s_branch {le}")
    a.label(lg)
    gujob_issue(a, sJob, tj, stage == 0)
    if stage: gujob_finish(a, tj)
    a.label(le)

def nonce_put(a):
    t = T + 8
    nz = a.uid("non0")
    a(f"""
    s_cmp_lg_u32 s2, 0
    s_cbranch_scc1 {nz}
    s_memrealtime s[{t}:{t+1}]
    v_mov_b32 v1, 0
    s_waitcnt lgkmcnt(0)
    s_or_b32 s{t+2}, s{t}, 0x80000000
    v_mov_b32 v2, s{t+2}
    s_mov_b64 exec, 1
    global_store_dword v1, v2, s[{P_DBG}:{P_DBG+1}] sc1
    s_mov_b64 exec, -1
    """)
    a.label(nz)
    a(f"""
    s_lshl_b32 s{t+3}, s{sWG}, 5
    s_add_u32 s{t+3}, s{t+3}, {WS_FL}
    s_lshl_b32 s{t+4}, s{sWG}, 7
    s_add_u32 s{t+4}, s{t+4}, {L_FG}
    s_add_u32 s{t+5}, s{t+4}, {LSTRIDE}
    v_lshlrev_b32 v1, 2, v0
    v_mov_b32 v3, 0
    s_mov_b64 exec, 0xff
    buffer_store_dword v3, v1, {WSR}, s{t+3} offen sc1
    s_mov_b64 exec, 0x1ff
    buffer_store_dword v3, v1, {WSR}, s{t+4} offen sc1
    buffer_store_dword v3, v1, {WSR}, s{t+5} offen sc1
    s_mov_b64 exec, -1
    """)

def nonce_issue(a, v2, v3):
    a(f"v_mov_b32 v{v3}, 0\nglobal_load_dword v{v2}, v{v3}, s[{P_DBG}:{P_DBG+1}] sc1")
def nonce_get(a, v1, v2, v3):
    t = T + 14
    lp = a.uid("non"); ok = a.uid("nonok")
    a(f"s_mov_b32 s{t+6}, 0\nv_mov_b32 v{v3}, 0\ns_lshl_b32 s{t+4}, s{sWG}, 7\ns_add_u32 s{t+4}, s{t+4}, {L_FG}\ns_branch {lp}c")
    a.label(lp)
    a(f"global_load_dword v{v2}, v{v3}, s[{P_DBG}:{P_DBG+1}] sc1")
    a.label(lp + "c")
    a(f"""
    s_waitcnt vmcnt(0)
    v_cmp_eq_u32 vcc, 0, v{v2}
    s_cbranch_vccz {ok}
    s_sleep 4
    s_add_u32 s{t+6}, s{t+6}, 1
    s_cmp_lt_u32 s{t+6}, {SPIN}
    s_cbranch_scc1 {lp}
    s_mov_b32 s{sTMO}, {SPIN}
    """)
    a.label(ok)
    a(f"""
    v_readfirstlane_b32 s{sEP}, v{v2}
    s_getreg_b32 s{t+6}, hwreg(HW_REG_XCC_ID, 0, 4)
    v_mov_b32 v{v1}, {Q1_NON}
    ds_write_b32 v{v1}, v{v2}
    v_add_u32 v{v2}, s{t+6}, v{v2}
    s_mov_b64 exec, 1
    buffer_store_dword v{v2}, v{v3}, {WSR}, s{t+4} offen offset:32 sc1
    s_mov_b64 exec, -1
    s_waitcnt lgkmcnt(0)
    """)

def census(a, va, vt, issue):
    t = T + 20
    a(f"""
    v_and_b32 v{va}, 31, v0
    v_lshlrev_b32 v{va}, 7, v{va}
    s_lshl_b32 s{t}, s{sG}, 12
    s_add_u32 s{t}, s{t}, {L_FG + 32}
    """)
    if issue:
        a(f"buffer_load_dword v{vt}, v{va}, {WSR}, s{t} offen sc1")
        return
    poll(a, va, vt, f"s{t}", f"s{sEP}", sleep=4, pre=True)
    a(f"""
    s_getreg_b32 s{t}, hwreg(HW_REG_XCC_ID, 0, 4)
    v_cmp_ne_u32 vcc, s{t}, v{vt}
    s_cmp_eq_u64 vcc, 0
    s_cselect_b32 s{t}, 1, 0
    v_mov_b32 v{va}, {Q1_NON}
    v_mov_b32 v{vt}, s{t}
    ds_write_b32 v{va}, v{vt} offset:4
    s_waitcnt lgkmcnt(0)
    """)

sMODE = 14 - 14 + 98
def read_nonce_mode(a):
    a(f"v_mov_b32 v1, {Q1_NON}\nds_read_b64 v[2:3], v1\ns_waitcnt lgkmcnt(0)\nv_readfirstlane_b32 s{sEP}, v2\nv_readfirstlane_b32 s{sMODE}, v3")

def qkv_ids(a, t):
    a(f"s_lshr_b32 s{t}, s{sWG}, 4\ns_and_b32 s{t+1}, s{sR}, 15")

def qkv_compute(a, first, SB):
    t = T
    sRT, sCT, sTY, sC0 = t, t+1, t+2, t+3
    LQ = 0 if first else LSTRIDE
    sWM, sWN = t+5, t+6
    a(f"""
    s_mul_i32 s{sTY}, s{sCT}, 52
    s_lshr_b32 s{sTY}, s{sTY}, 8
    s_mul_i32 s{sC0}, s{sTY}, 5
    s_sub_u32 s{sC0}, s{sCT}, s{sC0}
    s_lshl_b32 s{sC0}, s{sC0}, 7
    s_and_b32 s{sWM}, s{sW}, 1
    s_lshr_b32 s{sWN}, s{sW}, 1
    v_lshrrev_b32 v14, 5, v0
    v_and_b32 v15, 31, v0
    """)
    ACC = 128; FR = 16; VST = 80; VCS = 96; VCV = 192; ONE = 196; AD = 200; MS = 244
    sCS = t+15
    a(f"s_lshl_b32 s{sCS}, s{sWG}, 9\ns_lshl_b32 s{t+7}, s{sWN}, 8\ns_add_u32 s{sCS}, s{sCS}, s{t+7}\ns_add_u32 s{sCS}, s{sCS}, {WS_CSQ}")
    a(f"v_lshlrev_b32 v{AD+8}, 5, v14\nv_lshlrev_b32 v{AD+9}, 2, v15")
    if first:
        a(f"""
        s_lshl_b32 s{t+7}, s{sWM}, 13
        v_lshlrev_b32 v1, 7, v15
        v_add_u32 v1, s{t+7}, v1
        v_bfe_u32 v8, v0, 1, 3
        v_xor_b32 v8, v8, v14
        """)
        for kk in range(4):
            a(f"v_xor_b32 v9, {2*kk}, v8\nv_lshl_add_u32 v{2+kk}, v9, 4, v1")
    else:
        a(f"s_lshl_b32 s{t+7}, s{sWM}, 13\nv_lshlrev_b32 v2, 4, v0\nv_add_u32 v2, s{t+7}, v2")
    a(f"""
    v_and_b32 v10, 3, v0
    v_and_b32 v11, 1, v0
    v_bfe_u32 v12, v0, 1, 1
    v_lshl_add_u32 v11, v11, 1, v12
    s_cmp_eq_u32 s{sTY}, 2
    s_cselect_b64 vcc, -1, 0
    v_cndmask_b32 v10, v11, v10, vcc
    v_bfe_u32 v8, v0, 2, 2
    v_lshl_add_u32 v9, v14, 3, v8
    v_lshlrev_b32 v9, 8, v9
    v_lshl_add_u32 v9, v10, 3, v9
    v_bfe_u32 v10, v0, 4, 1
    v_lshl_add_u32 v9, v10, 5, v9
    s_lshl_b32 s{t+7}, s{sWN}, 1
    v_xor_b32 v8, s{t+7}, v8
    v_lshl_add_u32 v6, v8, 6, v9
    v_xor_b32 v8, 1, v8
    v_lshl_add_u32 v7, v8, 6, v9
    """)
    nxa = 4 if first else 1
    W0 = 16384 if first else qkW(0)
    if first:
        for i in range(nxa): a(f"v_mov_b32 v{8+i}, v{2+i}")
        for i in (4, 5): a(f"v_add_u32 v{8+i}, {W0}, v{2+i}")
    else:
        for i in range(4): a(f"v_add_u32 v{8+i}, {WB + 49152*(i >> 1)}, v{6 + (i & 1)}")
    VM, VR = (32, 64) if first else (96, 212)
    for i in range(0, 64, 2): a(f"v_mov_b64 v[{ACC+i}:{ACC+i+1}], 0")
    if first:
        for i in range(0, 32, 2): a(f"v_mov_b64 v[{VCS+i}:{VCS+i+1}], 0")
        for i in range(4): a(f"v_mov_b32 v{ONE+i}, 0x3f803f80")
    def reads(kk):
        b = FR + 16*kk; r = []
        for tm in range(2):
            if first: r.append(f"ds_read_b128 v[{b+4*tm}:{b+4*tm+3}], v{8+kk} offset:{4096*tm}")
            else: r.append(f"ds_read_b128 v[{b+4*tm}:{b+4*tm+3}], v8 offset:{4096*tm+1024*kk}")
        for tn in range(2):
            for j in range(2):
                d = b + 8 + 4*tn + 2*j
                r.append(f"ds_read_b64_tr_b16 v[{d}:{d+1}], v{12+tn} offset:{4096*kk+1024*j}")
        return r
    def mfmas(kk, vtype, tns=(0, 1)):
        b = FR + 16*kk; m = []
        for tn in tns:
            W = v(b + 8 + 4*tn, 4)
            for tm in range(2):
                c = ACC + 16*(2*tn + tm)
                X = v(b + 4*tm, 4)
                A, B = (X, W) if vtype else (W, X)
                m.append(f"v_mfma_f32_32x32x16_bf16 {v(c,16)}, {A}, {B}, {v(c,16)}")
            if first:
                c = VCS + 16*tn; X = v(ONE, 4)
                A, B = (X, W) if vtype else (W, X)
                m.append(f"v_mfma_f32_32x32x16_bf16 {v(c,16)}, {A}, {B}, {v(c,16)}")
        return m
    sC, sSa, sSw, sMk, sDst = t+9, t+10, t+4, t+11, t+12
    vlab = a.uid("qkv_v"); fin = a.uid("qkv_fin"); done = a.uid("qkv_cdone")
    a(f"s_mov_b32 s{sC}, {10 if first else 9}\ns_mov_b32 s{sSa}, 0\ns_mov_b32 s{sSw}, {W0}")
    a(f"s_cmp_eq_u32 s{sTY}, 2\ns_cbranch_scc1 {vlab}")
    hooks = []
    def mainloop(vtype, epi):
        lp = a.uid("qkv_loop"); hk = a.uid("qkv_hk"); hb = a.uid("qkv_hb"); ent = a.uid("qkv_ent")
        stamp(a, 1 if first else 18)
        if not first:
            def rd(c, kk):
                b = FR + 16*kk; r = []
                for tm in range(2):
                    r.append(f"ds_read_b128 v[{b+4*tm}:{b+4*tm+3}], v2 offset:{(c % 4)*16384+4096*tm+1024*kk}")
                o = qkW(c) - WB
                for tn in range(2):
                    for j in range(2):
                        d = b + 8 + 4*tn + 2*j
                        r.append(f"ds_read_b64_tr_b16 v[{d}:{d+1}], v{8 + 2*(o // 49152) + tn} offset:{o % 49152 + 4096*kk+1024*j}")
                return r
            mf = lambda kk, tl: mfmas(kk, vtype, (tl >> 1,))[tl & 1]
            a(f"""
            s_lshl_b32 s{sC}, s{sRT}, 1
            s_add_u32 s{sC}, s{sC}, s{sWM}
            s_lshl_b32 s{sC}, s{sC}, 12
            s_add_u32 s{sC}, s{sC}, {L_ST2}
            v_lshlrev_b32 v3, 4, v0
            """)
            ins = {}
            for i in range(4): ins[28 + 2*i] = [f"buffer_load_dwordx4 v[{VST+4*i}:{VST+4*i+3}], v3, {WSR}, s{sC} offen offset:{1024*i} sc1"]
            b = Asm(); b("s_waitcnt vmcnt(0)"); row_stats(b, VST, MS, MS + 1)
            if vtype:
                a(f"v_lshlrev_b32 v4, 4, v14")
                for tm in range(2):
                    for q in range(16):
                        off = (32*tm + 8*(q >> 2) + (q & 3)) * 4
                        b(f"ds_bpermute_b32 v{VM+16*tm+q}, v4, v{MS} offset:{off}")
                        ins.setdefault(120, []).append(f"ds_bpermute_b32 v{VR+16*tm+q}, v4, v{MS+1} offset:{off}")
                fix = lambda tl: [f"v_fmac_f32 v{ACC+16*tl+i}, v{VCV+2*(tl>>1)}, v{VM+16*(tl&1)+i}" for i in range(16)]
                ff = 92
            else:
                qk_stats_fin(b)
                fix = lambda tl: [f"v_fmac_f32 v{ACC+16*tl+i}, v{MS+4*(tl&1)}, v{VCS+16*(tl>>1)+i}" for i in range(16)]
                ff = 80
            ins[60] = b.lines
            gemm_unrolled(a, 10, 4, 6, rd, mf, [(0, 1), (2, 3)], ins, fix, ff, epi, 19)
            return
        a("s_barrier")
        for x in reads(0) + reads(1): a(x)
        a(f"s_branch {ent}")
        a.label(lp)
        a("s_barrier")
        interleave(a, mfmas(3, vtype), reads(0) + reads(1))
        a.label(ent)
        a("s_waitcnt lgkmcnt(6)")
        interleave(a, mfmas(0, vtype), reads(2))
        a("s_waitcnt lgkmcnt(6)")
        interleave(a, mfmas(1, vtype), reads(3))
        a("s_waitcnt lgkmcnt(6)")
        if first:
            upd = [f"s_add_u32 s{sSa}, s{sSa}, 32768", f"s_and_b32 s{sSa}, s{sSa}, 0x1ffff", f"s_add_u32 s{sSw}, s{sSa}, 16384"]
        else:
            upd = [f"s_add_u32 s{sSa}, s{sSa}, 16384", f"s_and_b32 s{sSa}, s{sSa}, 0xffff",
                   f"s_add_u32 s{sSw}, s{sSw}, 16384", f"s_cmp_eq_u32 s{sSw}, 163840", f"s_cselect_b32 s{sSw}, {WB}, s{sSw}"]
        upd += [f"v_add_u32 v{8+i}, s{sSa}, v{2+i}" for i in range(nxa)] + [f"v_add_u32 v{12+i}, s{sSw}, v{6+i}" for i in range(2)] + [f"s_sub_u32 s{sC}, s{sC}, 1"]
        interleave(a, mfmas(2, vtype), upd)
        a(f"s_waitcnt lgkmcnt(0)")
        a(f"s_bitcmp1_b32 {HMASK1 if first else HMASK2}, s{sC}\ns_cbranch_scc1 {hk}")
        a.label(hb)
        a(f"s_cmp_lg_u32 s{sC}, 0\ns_cbranch_scc1 {lp}")
        a("s_barrier")
        hooks.append((hk, hb, vtype))
        if first:
            for m in mfmas(3, vtype): a(m)
            stamp(a, 2)
            read_nonce_mode(a)
            return
    HMASK1 = (1 << 8) | (1 << 6) | (1 << 3) | (1 << 1)
    HMASK2 = (1 << 5) | (1 << 2)
    if not first:
        for tn in range(2):
            for q in range(4):
                r = VCS + 16*tn + 4*q
                a(f"buffer_load_dwordx4 v[{r}:{r+3}], v{AD+8}, {WSR}, s{sCS} offen offset:{(32*tn+16*(q>>1)+4*(q&1))*4} sc1")
    a(f"""
    s_mul_i32 s{sDst}, s{sTY}, {ACT}
    s_lshl_b32 s{t+8}, s{sRT}, 2
    s_lshl_b32 s{t+7}, s{sWM}, 1
    s_add_u32 s{t+8}, s{t+8}, s{t+7}
    s_mul_i32 s{t+8}, s{t+8}, 1280
    s_add_u32 s{sDst}, s{sDst}, s{t+8}
    s_add_u32 s{sDst}, s{sDst}, {LQ}
    s_add_u32 s{t+14}, s{sDst}, {HEADB}
    s_lshr_b32 s{t+8}, s{sC0}, 3
    s_lshl_b32 s{t+7}, s{sWN}, 3
    s_add_u32 s{t+8}, s{t+8}, s{t+7}
    v_add_u32 v80, s{t+8}, v14
    s_mov_b32 s{t+13}, {HEADB}
    v_mov_b32 v86, 0x7fffffff
    s_mov_b32 s{sMk}, 0
    """)
    for sl in range(4):
        a(f"""
        v_add_u32 v81, {2*sl}, v80
        v_mul_u32_u24 v82, 205, v81
        v_lshrrev_b32 v82, 10, v82
        v_mad_i32_i24 v81, v82, -5, v81
        v_cmp_lt_u32 vcc, 2, v81
        v_lshlrev_b32 v82, 1, v82
        v_add_u32 v83, -3, v81
        v_cndmask_b32 v83, v81, v83, vcc
        v_addc_co_u32 v82, vcc, 0, v82, vcc
        v_lshlrev_b32 v83, 9, v83
        v_lshl_add_u32 v83, v15, 4, v83
        v_lshlrev_b32 v85, 3, v15
        v_add_u32 v85, 1024, v85
        v_cmp_eq_u32 vcc, 2, v81
        v_mul_lo_u32 v84, v82, s{t+13}
        s_cmp_lg_u64 vcc, 0
        v_cndmask_b32 v83, v83, v86, vcc
        v_cndmask_b32 v85, v86, v85, vcc
        s_cselect_b32 s{t+7}, {1 << sl}, 0
        s_or_b32 s{sMk}, s{sMk}, s{t+7}
        v_add_u32 v{AD+sl}, v83, v84
        v_add_u32 v{AD+4+sl}, v85, v84
        """)
    def qk_stats_fin(a):
        a(f"""
        s_cmp_eq_u32 s{sTY}, 0
        s_cselect_b32 s{t+7}, {f32(QSCALE)}, 1.0
        v_mul_f32 v{MS+2}, s{t+7}, v{MS+1}
        v_mul_f32 v{MS+6}, s{t+7}, v{MS+1}
        v_sub_f32 v{MS+4}, 0, v{MS}
        v_sub_f32 v{MS}, 0, v{MS}
        s_nop 1
        v_permlane32_swap_b32 v{MS}, v{MS+4}
        v_permlane32_swap_b32 v{MS+2}, v{MS+6}
        s_nop 1
        """)
    def epi_qk(tn, pk=True):
        r = []
        for tm in range(2):
            c = ACC + 16*(2*tn + tm); cs = VCS + 16*tn; m = MS + 4*tm
            for p in range(2):
                if pk:
                    for i in range(8*p, 8*p + 8, 2):
                        if first: r.append(f"v_pk_fma_f32 v[{c+i}:{c+i+1}], v[{cs+i}:{cs+i+1}], v[{m}:{m+1}], v[{c+i}:{c+i+1}] op_sel_hi:[1,0,1]")
                    for i in range(8*p, 8*p + 8, 2):
                        r.append(f"v_pk_mul_f32 v[{c+i}:{c+i+1}], v[{c+i}:{c+i+1}], v[{m+2}:{m+3}] op_sel_hi:[1,0]")
                else:
                    for i in range(8*p, 8*p + 8): r.append(f"v_mul_f32 v{c+i}, v{m+2}, v{c+i}")
                for i in range(4):
                    r.append(f"v_cvt_pk_bf16_f32 v{c+8*p+i}, v{c+8*p+2*i}, v{c+8*p+2*i+1}")
                r.append(f"buffer_store_dwordx4 v[{c+8*p}:{c+8*p+3}], v{AD+2*tn+p}, {WSR}, s{sDst} offen offset:{1280*tm} sc1")
        return r
    mainloop(False, epi_qk)
    if first:
        a(f"s_lshl_b32 s{t+7}, s{sWM}, 8\nv_lshlrev_b32 v1, 2, v0\nv_add_u32 v1, s{t+7}, v1")
        a(f"v_add_u32 v1, {Q1_TAB}, v1\nds_read_b32 v{MS}, v1\nds_read_b32 v{MS+1}, v1 offset:512\ns_waitcnt lgkmcnt(0)")
        qk_stats_fin(a)
        for x in epi_qk(0) + epi_qk(1): a(x)
    for sl in range(4):
        sk = a.uid("qk_b")
        a(f"s_bitcmp0_b32 s{sMk}, {sl}\ns_cbranch_scc1 {sk}")
        for tm in range(2):
            o = ACC + 16*(2*(sl >> 1) + tm) + 8*(sl & 1)
            a(f"buffer_store_dwordx2 v[{o}:{o+1}], v{AD+4+sl}, {WSR}, s{sDst} offen offset:{1280*tm} sc1")
            a(f"buffer_store_dwordx2 v[{o+2}:{o+3}], v{AD+4+sl}, {WSR}, s{t+14} offen offset:{1280*tm} sc1")
        a.label(sk)
    if first:
        a(f"s_mov_b32 exec_lo, 1\ns_mov_b32 exec_hi, 1")
        for tn in range(2):
            for q in range(4):
                r = VCS + 16*tn + 4*q
                a(f"buffer_store_dwordx4 v[{r}:{r+3}], v{AD+8}, {WSR}, s{sCS} offen offset:{(32*tn+16*(q>>1)+4*(q&1))*4}")
        a("s_mov_b64 exec, -1")
    a(f"s_branch {fin}")
    a.label(vlab)
    if not first:
        for tn in range(2):
            a(f"buffer_load_dword v{VCV+2*tn}, v{AD+9}, {WSR}, s{sCS} offen offset:{128*tn} sc1")
    a(f"""
    s_lshl_b32 s{t+8}, s{sRT}, 3
    s_lshl_b32 s{t+7}, s{sWM}, 2
    s_add_u32 s{t+8}, s{t+8}, s{t+7}
    s_mul_i32 s{sDst}, s{t+8}, 640
    s_add_u32 s{sDst}, s{sDst}, {L_V + LQ}
    s_lshl_b32 s{t+7}, s{sWN}, 6
    s_add_u32 s{t+8}, s{sC0}, s{t+7}
    v_add_u32 v80, s{t+8}, v15
    v_mul_u32_u24 v81, 320, v14
    s_mov_b32 s{t+13}, {HEADB}
    s_movk_i32 s{t+14}, 3277
    s_movk_i32 s{t+7}, -20
    """)
    for tn in range(2):
        a(f"""
        v_add_u32 v83, {32*tn}, v80
        v_mul_u32_u24 v84, s{t+14}, v83
        v_lshrrev_b32 v84, 16, v84
        v_mad_i32_i24 v83, v84, s{t+7}, v83
        v_lshl_add_u32 v83, v83, 4, v81
        v_mul_lo_u32 v85, v84, s{t+13}
        v_add_u32 v{AD+tn}, v83, v85
        """)
    def epi_v(tn, pk=True):
        r = []
        for tm in range(2):
            c = ACC + 16*(2*tn + tm); cv = VCV + 2*tn
            for p in range(2):
                if pk:
                    for i in range(8*p, 8*p + 8, 2):
                        if first: r.append(f"v_pk_fma_f32 v[{c+i}:{c+i+1}], v[{VM+16*tm+i}:{VM+16*tm+i+1}], v[{cv}:{cv+1}], v[{c+i}:{c+i+1}] op_sel_hi:[1,0,1]")
                    for i in range(8*p, 8*p + 8, 2):
                        r.append(f"v_pk_mul_f32 v[{c+i}:{c+i+1}], v[{c+i}:{c+i+1}], v[{VR+16*tm+i}:{VR+16*tm+i+1}]")
                else:
                    for i in range(8*p, 8*p + 8): r.append(f"v_mul_f32 v{c+i}, v{VR+16*tm+i}, v{c+i}")
                for i in range(4):
                    r.append(f"v_cvt_pk_bf16_f32 v{c+8*p+i}, v{c+8*p+2*i}, v{c+8*p+2*i+1}")
                r.append(f"buffer_store_dwordx4 v[{c+8*p}:{c+8*p+3}], v{AD+tn}, {WSR}, s{sDst} offen offset:{640*(2*tm+p)} sc1")
        return r
    def v_tab_reads(roff):
        a(f"v_lshlrev_b32 v1, 4, v14\nv_add_u32 v1, s{t+7}, v1")
        for tm in range(2):
            for q in range(4):
                a(f"ds_read_b128 v[{VM+16*tm+4*q}:{VM+16*tm+4*q+3}], v1 offset:{(32*tm+8*q)*4}")
                a(f"ds_read_b128 v[{VR+16*tm+4*q}:{VR+16*tm+4*q+3}], v1 offset:{roff+(32*tm+8*q)*4}")
    mainloop(True, epi_v)
    if first:
        a(f"s_lshl_b32 s{t+7}, s{sWM}, 8\ns_add_u32 s{t+7}, s{t+7}, {Q1_TAB}")
        v_tab_reads(512)
        a(f"v_sub_f32 v{VCV}, 0, v{VCS}\nv_sub_f32 v{VCV+2}, 0, v{VCS+16}")
        for tn in range(2):
            a(f"buffer_store_dword v{VCV+2*tn}, v{AD+9}, {WSR}, s{sCS} offen offset:{128*tn}")
        a("s_waitcnt lgkmcnt(0)")
        for x in epi_v(0) + epi_v(1): a(x)
    a.label(fin)
    stamp(a, 3 if first else 20)
    flag_setup(a, 1 if first else 6)
    a(f"s_lshl_b32 s{t+7}, s{sWG}, 5\ns_add_u32 s{t+7}, s{t+7}, s{sW}\ns_lshl_b32 s{t+7}, s{t+7}, 2\ns_add_u32 s{t+7}, s{t+7}, {L_FG + LQ}")
    a("s_waitcnt vmcnt(0)")
    if first:
        l1 = a.uid("q1f"); l2 = a.uid("q1g")
        a(f"s_cmp_eq_u32 s{sMODE}, 0\ns_cbranch_scc1 {l1}")
        flag_store(a, ""); a(f"s_branch {l2}")
        a.label(l1); flag_store(a, "sc1"); a.label(l2)
    else: flag_store(a, SB)
    flag_store(a, "sc1", t+7)
    a(f"s_branch {done}")
    for hk, hb, vtype in hooks:
        a.label(hk)
        if first:
            a(f"s_cmp_lg_u32 s{sW}, 0\ns_cbranch_scc1 {hb}")
            for val, fn in ((8, lambda: nonce_issue(a, 81, 82)), (6, lambda: nonce_get(a, 80, 81, 82)), (3, lambda: census(a, 80, 81, True)), (1, lambda: census(a, 80, 81, False))):
                nx = a.uid("hk")
                a(f"s_cmp_lg_u32 s{sC}, {val}\ns_cbranch_scc1 {nx}")
                fn(); a(f"s_branch {hb}")
                a.label(nx)
        a(f"s_branch {hb}")
    a.label(done)

def qkvW_setup(a, sWo, sLW, sCT, sTmp, vW):
    a(f"""
    v_lshrrev_b32 v2, 4, v0
    v_mul_u32_u24 v1, 3840, v2
    v_lshlrev_b32 v7, 2, v2
    v_and_b32 v3, 15, v0
    v_xor_b32 v3, v3, v7
    v_lshl_add_u32 v{vW}, v3, 4, v1
    s_mul_i32 s{sWo}, s{sLW}, {16*3840}
    s_lshl_b32 s{sTmp}, s{sCT}, 8
    s_add_u32 s{sWo}, s{sWo}, s{sTmp}
    """)

def qkv1_loader(a):
    t = T
    sRT, sCT = t, t+1
    sLW, sAo, sWo, sM, sTmp, sRot, sThr, sA1, sW1, sSel = t+2, t+3, t+4, t+5, t+6, t+8, t+9, t+10, t+11, t+12
    a(f"s_sub_u32 s{sLW}, s{sW}, 4")
    qkvW_setup(a, sWo, sLW, sCT, sTmp, 6)
    a(f"""
    s_lshl_b32 s{sM}, s{sLW}, 12
    s_lshl_b32 s{sAo}, s{sRT}, 2
    s_add_u32 s{sAo}, s{sAo}, s{sLW}
    s_mul_i32 s{sAo}, s{sAo}, {32*1280}
    v_lshrrev_b32 v1, 3, v0
    v_mul_u32_u24 v1, 1280, v1
    v_and_b32 v3, 7, v0
    v_xor_b32 v3, v3, v2
    v_lshl_add_u32 v4, v3, 4, v1
    v_xor_b32 v3, 4, v3
    v_lshl_add_u32 v5, v3, 4, v1
    s_lshr_b32 s{sRot}, s{sR}, 4
    s_mul_i32 s{sRot}, s{sRot}, 5
    s_add_u32 s{sRot}, s{sRot}, s{sCT}
    s_add_u32 s{sRot}, s{sRot}, s{sG}
    s_mul_i32 s{sTmp}, s{sRot}, 26
    s_lshr_b32 s{sTmp}, s{sTmp}, 8
    s_mul_i32 s{sTmp}, s{sTmp}, 10
    s_sub_u32 s{sRot}, s{sRot}, s{sTmp}
    """)
    if not C.rot: a(f"s_mov_b32 s{sRot}, 0")
    a(f"s_sub_u32 s{sThr}, 10, s{sRot}")
    SA = Src(sAo, sA1, sThr, 128); SW = Src(sWo, sW1, sThr, 64*3840)
    SA.setup(a, sRot, 10, sTmp); SW.setup(a, sRot, 10, sTmp)
    a("s_waitcnt lgkmcnt(0)")
    srd(a, R_X, P_X, ACT)
    srd(a, R_WQ, P_WQKV, D*3*D*2)
    def emitA(c, i0, k):
        SA.sel(a, c, sSel)
        for i in range(i0, i0 + k):
            a(f"s_add_u32 m0, s{sM}, {(c % 4)*32768 + 1024*i}\ns_add_u32 s{sTmp}, s{sSel}, {c*128 + i*8*1280}")
            a(f"buffer_load_dwordx4 v{4 + (i & 1)}, {R(R_X)}, s{sTmp} offen lds")
    def emitW(c, i0, k):
        SW.sel(a, c, sSel)
        for i in range(i0, i0 + k):
            a(f"s_add_u32 m0, s{sM}, {16384 + (c % 4)*32768 + 1024*i}\ns_add_u32 s{sTmp}, s{sSel}, {c*64*3840 + i*4*3840}")
            a(f"buffer_load_dwordx4 v6, {R(R_WQ)}, s{sTmp} offen lds")
    def xstats(c):
        if c == 0:
            other_srds(a)
            a(f"v_lshlrev_b32 v9, 4, v0\nv_add_u32 v9, s{sM}, v9\nv_add_u32 v8, 65536, v9\ns_mov_b32 s{t+7}, 0xffff0000")
            for i in range(0, 16, 2): a(f"v_mov_b64 v[{16+i}:{17+i}], 0")
        for i in range(4):
            a(f"ds_read_b128 v[{32+4*i}:{35+4*i}], v{9 if (c % 4) < 2 else 8} offset:{(c % 2)*32768 + 1024*i}")
        for i in range(4):
            a(f"s_waitcnt lgkmcnt({3-i})")
            for j in range(4):
                src = 32 + 4*i + j
                a(f"v_lshlrev_b32 v10, 16, v{src}\nv_and_b32 v11, s{t+7}, v{src}")
                a(f"v_add_f32 v{16+4*i}, v{16+4*i}, v10\nv_add_f32 v{17+4*i}, v{17+4*i}, v11\nv_fmac_f32 v{18+4*i}, v10, v10\nv_fmac_f32 v{19+4*i}, v11, v11")
    stamp(a, 1)
    ph = Phase("q1", 10, 4, 4, emitA, emitW, lambda c: ((c % 4)*32768, (c % 4)*32768 + 16384), lambda c: ((c % 4)*32768 + 16384, (c % 4 + 1)*32768),
               None, C.bud_q1, after_bar=xstats, dbg=(C.dbg == 1))
    def waitfn(w):
        l1 = a.uid("pw"); l2 = a.uid("pw"); l3 = a.uid("pw")
        a(f"s_cmp_eq_u32 s{sW}, 4\ns_cbranch_scc1 {l1}\ns_cmp_eq_u32 s{sW}, 7\ns_cbranch_scc1 {l2}\ns_waitcnt vmcnt({w+5})\ns_branch {l3}")
        a.label(l1); a(f"s_waitcnt vmcnt({w+16})\ns_branch {l3}")
        a.label(l2); a(f"s_waitcnt vmcnt({w})")
        a.label(l3)
    Loader(a).run(ph, None, tail=lambda: prep(a, 0), waitfn=waitfn)
    for i in range(4):
        a(f"v_add_f32 v{16+2*i}, v{16+4*i}, v{17+4*i}\nv_add_f32 v{17+2*i}, v{18+4*i}, v{19+4*i}")
    a("s_nop 1")
    for mod in ("quad_perm:[1,0,3,2]", "quad_perm:[2,3,0,1]", "row_half_mirror"):
        for j in range(8):
            a(f"v_add_f32_dpp v{16+j}, v{16+j}, v{16+j} {mod} row_mask:0xf bank_mask:0xf")
        a("s_nop 1")
    a(f"v_lshrrev_b32 v1, 3, v0\nv_lshlrev_b32 v1, 2, v1\ns_lshl_b32 s{sTmp}, s{sLW}, 7\ns_add_u32 s{sTmp}, s{sTmp}, {Q1_TAB}\nv_add_u32 v1, s{sTmp}, v1")
    for i in range(4):
        finish_stats(a, 16+2*i, 17+2*i, 24+2*i, 25+2*i)
        a(f"ds_write_b32 v1, v{24+2*i} offset:{32*i}\nds_write_b32 v1, v{25+2*i} offset:{512+32*i}")
    a("s_waitcnt lgkmcnt(0)")
    stamp(a, 2)
    a("s_barrier")
    read_nonce_mode(a)

def other_srds(a):
    srd(a, R_WS, P_WS, WS_END)
    srd(a, R_WG, P_WG, D*F*2)
    srd(a, R_WU, P_WU, D*F*2)
    srd(a, R_T, P_WS, WS_END)

def qkv1_idle(a):
    l2 = a.uid("idl"); l1 = a.uid("idl")
    tj = 84
    a(f"s_cmp_lt_u32 s{sW}, 4\ns_cbranch_scc1 {l1}")
    a(f"s_lshl_b32 s{tj}, s{T}, 2\ns_add_u32 s{tj}, s{tj}, s{sW}\ns_add_u32 s{tj}, s{tj}, 476\ns_mul_i32 s{tj+1}, s{sW}, 5120\nv_lshlrev_b32 v5, 4, v0")
    projjob_issue(a, tj, tj+1, tj)
    a("s_waitcnt vmcnt(0)")
    projjob_finish(a, tj+1, tj)
    a(f"s_branch {l2}")
    a.label(l1)
    if C.warm:
        l4 = a.uid("idl"); l5 = a.uid("idl")
        a(f"""
        s_cmp_eq_u32 s{sW}, 0
        s_cbranch_scc1 {l4}
        s_cmp_eq_u32 s{sW}, 2
        s_cselect_b32 s{R_T}, s{P_WU}, s{P_WD}
        s_cselect_b32 s{R_T+1}, s{P_WU+1}, s{P_WD+1}
        s_cmp_eq_u32 s{sW}, 1
        s_cselect_b32 s{R_T}, s{P_WG}, s{R_T}
        s_cselect_b32 s{R_T+1}, s{P_WG+1}, s{R_T+1}
        s_mov_b32 s{R_T+2}, {F*D*2}
        s_mov_b32 s{R_T+3}, 0x20000
        s_mul_i32 s{tj}, s{T}, {15*8192}
        v_lshlrev_b32 v1, 7, v0
        """)
        for i in range(15): a(f"buffer_load_dword v2, v1, {R(R_T)}, s{tj} offen\ns_add_u32 s{tj}, s{tj}, 8192")
        srd(a, R_T, P_WO, D*D*2)
        a(f"s_mul_i32 s{tj}, s{T}, 3\ns_add_u32 s{tj}, s{tj}, s{sW}\ns_sub_u32 s{tj}, s{tj}, 1\ns_mul_i32 s{tj}, s{tj}, {17408}")
        for i in range(2): a(f"buffer_load_dword v2, v1, {R(R_T)}, s{tj} offen\ns_add_u32 s{tj}, s{tj}, 8192")
        a("s_waitcnt vmcnt(0)")
        a.label(l4)
    if C.tlb:
        l3 = a.uid("idl")
        a(f"s_cmp_lg_u32 s{sW}, 2\ns_cbranch_scc1 {l3}\nv_lshlrev_b32 v1, 20, v0")
        for r in (R_WS, R_WG, R_WU): a(f"buffer_load_dword v2, v1, {R(r)}, 0 offen")
        srd(a, R_T, P_OUT, ACT)
        a(f"buffer_load_dword v2, v1, {R(R_T)}, 0 offen\ns_waitcnt vmcnt(0)")
        a.label(l3)
    a(f"s_cmp_lg_u32 s{sW}, 0\ns_cbranch_scc1 {l2}")
    nonce_issue(a, 81, 82)
    nonce_get(a, 80, 81, 82)
    census(a, 80, 81, True)
    census(a, 80, 81, False)
    a.label(l2)
    a("s_barrier")
    read_nonce_mode(a)

def phase_attn(a, SB, ld_label):
    fast = SB == ""
    t = T
    CH = 20480
    sQP, sKH, sSrc, sDst, sTmp, sC, sHB = t, t+1, t+2, t+3, t+4, t+5, t+8
    sEX = t+6
    sWs, sWd, sPF = t+9, t+10, t+11
    tj = 84; sJob, sScr = tj, tj + 1
    QAREA = 102400
    QA, QB = 16, 22
    NM, SS, PP, OO, KF, VF = 32, 64, 96, 112, 144, 160
    vK, vK8, vV = 2, 3, 4
    DUM = 176; XF = 177
    KVB = 'nt sc1' if C.nt_kv else 'sc1'
    stamp(a, 4)
    a(f"""
    s_and_b32 s{sQP}, s{sW}, 3
    s_lshr_b32 s{sKH}, s{sW}, 2
    v_lshlrev_b32 v5, 4, v0
    s_mul_i32 s{sHB}, s{sR}, {HEADB}
    s_add_u32 s{sHB}, s{sHB}, s{sLO}
    s_and_b32 s{sTmp}, s{sQP}, 1
    s_mul_i32 s{sSrc}, s{sTmp}, 5120
    s_mul_i32 s{sDst}, s{sTmp}, 10240
    s_lshr_b32 s{sTmp}, s{sQP}, 1
    s_mul_i32 s{sC}, s{sTmp}, 5120
    s_add_u32 s{sDst}, s{sDst}, s{sC}
    s_mul_i32 s{sC}, s{sTmp}, {ACT}
    s_add_u32 s{sSrc}, s{sSrc}, s{sC}
    s_add_u32 s{sSrc}, s{sSrc}, s{sHB}
    s_add_u32 s{sSrc}, s{sSrc}, {L_K}
    """)
    def kv_issue(j):
        GF.need(0x01010101 << j)
        a(f"s_add_u32 s{sTmp}, s{sG}, {j}\ns_and_b32 s{sTmp}, s{sTmp}, 7\ns_mul_i32 s{sTmp}, s{sTmp}, 10240\ns_add_u32 s{sTmp}, s{sTmp}, s{sSrc}")
        return lin_dma(a, 5, sTmp, 0, sDst, j * CH, 5, KVB)
    def init():
        a(f"""
        v_lshrrev_b32 v14, 5, v0
        v_and_b32 v15, 31, v0
        v_lshlrev_b32 v6, 3, v15
        s_mul_i32 s{sTmp}, s{sKH}, 10240
        v_add_u32 v{vK}, s{sTmp}, v5
        v_add_u32 v{vK8}, s{sTmp}, v6
        v_mul_u32_u24 v7, 320, v14
        v_lshl_add_u32 v7, v15, 4, v7
        v_add_u32 v{vV}, s{sTmp}, v7
        s_mov_b32 s{sEX}, 0x000fffff
        s_mov_b32 s{sEX+1}, 0x000fffff
        v_and_b32 v9, 27, v0
        v_cmp_eq_u32 vcc, 24, v9
        v_mov_b32 v8, 0x3f803f80
        s_nop 0
        v_cndmask_b32 v8, 0, v8, vcc
        v_mov_b32 v9, v8
        v_lshlrev_b32 v13, 7, v0
        v_mov_b32 v12, 0
        """)
        for i in range(0, 16, 2): a(f"v_mov_b64 v[{VF+i}:{VF+i+1}], v[8:9]")
        for i in range(0, 32, 2): a(f"v_mov_b64 v[{OO+i}:{OO+i+1}], 0")
        for i in range(0, 8, 2): a(f"v_mov_b64 v[{PP+8+i}:{PP+8+i+1}], 0")
        a(f"v_mov_b64 v[{QA+4}:{QA+5}], 0\nv_mov_b64 v[{QB+4}:{QB+5}], 0")
    init()
    l0 = a.uid("att_old"); l1 = a.uid("att_j")
    a(f"s_cmp_eq_u32 s{sKH}, 0\ns_cbranch_scc1 {l0}")
    poll_local(a, "attn", 1, va=10, vt=11)
    stamp(a, 5)
    a(f"""
    s_mul_i32 s{sC}, s{sQP}, 2560
    s_add_u32 s{sPF}, s{sC}, {QAREA}
    s_mul_i32 s{sTmp}, s{sG}, 10240
    s_add_u32 s{sTmp}, s{sTmp}, s{sC}
    s_add_u32 s{sTmp}, s{sTmp}, s{sHB}
    """)
    lin_dma(a, 5, sTmp, 0, sPF, 0, 2, KVB)
    a(f"s_mov_b32 exec_hi, 0\nbuffer_load_dwordx4 v5, {WSR}, s{T+19} offen offset:2048 {KVB} lds\ns_mov_b32 exec_hi, -1")
    a(f"s_mul_i32 s{sTmp}, s{sG}, 10240\ns_add_u32 s{sTmp}, s{sTmp}, s{sSrc}")
    lin_dma(a, 5, sTmp, 0, sDst, 0, 2, KVB)
    a(f"s_waitcnt vmcnt(0)")
    lin_dma(a, 5, sTmp, 2048, sDst, 2048, 3, KVB)
    a(f"s_branch {l1}")
    a.label(l0)
    a(f"""
    s_setprio 1
    v_add_u32 v10, s{sG}, v0
    v_and_b32 v10, 7, v10
    v_bfe_u32 v11, v0, 3, 1
    v_mul_u32_u24 v11, 19, v11
    s_mul_i32 s{sTmp}, s{sR}, 20
    v_add_u32 v11, s{sTmp}, v11
    v_lshrrev_b32 v11, 7, v11
    v_lshl_add_u32 v10, v10, 5, v11
    s_and_b32 s{sTmp}, s{sQP}, 1
    s_lshl_b32 s{sTmp}, s{sTmp}, 4
    s_lshr_b32 s{sC}, s{sQP}, 1
    s_mul_i32 s{sC}, s{sC}, 5
    s_add_u32 s{sTmp}, s{sTmp}, s{sC}
    s_add_u32 s{sTmp}, s{sTmp}, 5
    v_add_u32 v10, s{sTmp}, v10
    v_lshlrev_b32 v12, 7, v10
    v_lshrrev_b32 v11, 4, v0
    v_lshl_add_u32 v12, v11, 2, v12
    s_and_b32 s{sWs}, s{sR}, 7
    s_mul_i32 s{sWs}, s{sWs}, 102400
    s_mul_i32 s{sWd}, s{sW}, 5120
    s_add_u32 s{sWs}, s{sWs}, s{sWd}
    s_add_u32 s{sWs}, s{sWs}, {WS_WTO}
    s_add_u32 s{sGO}, s{sLO}, {L_FG}
    s_add_u32 s{sGW}, s{sEP}, 1
    """)
    a.label(l1)
    GF = Gate(a, 12, PV, fold=True, sleep=2)
    a(f"""
    s_mul_i32 s{sC}, s{sQP}, 2560
    s_add_u32 s{sC}, s{sC}, {QAREA}
    v_add_u32 v10, s{sC}, v5
    v_add_u32 v11, s{sC}, v6
    s_barrier
    ds_read_b128 v[{QA}:{QA+3}], v10
    ds_read_b128 v[{QB}:{QB+3}], v10 offset:1280
    s_mov_b32 exec_hi, 0
    ds_read_b64 v[{QA+4}:{QA+5}], v11 offset:1024
    ds_read_b64 v[{QB+4}:{QB+5}], v11 offset:{1280+1024}
    s_mov_b32 exec_hi, -1
    """)
    stamp(a, 6)
    l1 = a.uid("att_ap")
    a(f"s_cmp_lg_u32 s{sKH}, 0\ns_cbranch_scc1 {l1}")
    GF.load()
    a.label(l1)
    base = [0]
    def rdK(st, c, kt):
        off = c * CH + kt * 1280 - base[0]
        assert 0 <= off and off + 1024 < 65536
        b = KF + 8*st
        return [f"ds_read_b128 v[{b}:{b+3}], v{vK} offset:{off}", f"ds_read_b64 v[{b+4}:{b+5}], v{vK8} offset:{off+1024}"]
    def rdV(st, c, kt):
        off = c * CH + 5120 + kt * 1280 - base[0]
        assert 0 <= off and off + 640 < 65536
        b = VF + 8*st
        return [f"s_mov_b64 exec, s[{sEX}:{sEX+1}]", f"ds_read_b128 v[{b}:{b+3}], v{vV} offset:{off}",
                f"ds_read_b128 v[{b+4}:{b+7}], v{vV} offset:{off+640}", f"s_mov_b64 exec, -1"]
    def qk(x, st, c=None):
        b = KF + 8*st; q = (QA, QB)[x]; sd = SS + 16*x
        cc = v(NM + 16*x, 16) if c is None else c
        return [f"v_mfma_f32_32x32x16_bf16 {v(sd,16)}, {v(b,4)}, {v(q,4)}, {cc}",
                f"v_mfma_f32_32x32x8_bf16 {v(sd,16)}, {v(b+4,2)}, {v(q+4,2)}, {v(sd,16)}"]
    def pv(x, st):
        b = VF + 8*st; p = PP + 8*x; o = OO + 16*x
        return [f"v_mfma_f32_32x32x16_bf16 {v(o,16)}, {v(b,4)}, {v(p,4)}, {v(o,16)}",
                f"v_mfma_f32_32x32x16_bf16 {v(o,16)}, {v(b+4,4)}, {v(p+4,4)}, {v(o,16)}"]
    def sm(x):
        sd = SS + 16*x; p = PP + 8*x; r = []
        for i in range(8):
            r.append(f"v_exp_f32 v{sd+2*i}, v{sd+2*i}")
            r.append(f"v_exp_f32 v{sd+2*i+1}, v{sd+2*i+1}")
            if i > 0: r.append(f"v_cvt_pk_bf16_f32 v{p+i-1}, v{sd+2*i-2}, v{sd+2*i-1}")
        r.append(f"v_cvt_pk_bf16_f32 v{p+7}, v{sd+14}, v{sd+15}")
        return r
    def setm():
        for x in range(2): a(f"v_mov_b32 v{10+x}, v{8+x}")
        a("s_nop 0")
        for x in range(2): a(f"v_permlane32_swap_b32 v{8+x}, v{10+x}")
        a("s_nop 0")
        for x in range(2): a(f"v_max_f32 v{8+x}, v{8+x}, v{10+x}")
        for x in range(2):
            a(f"v_sub_f32 v{NM+16*x}, 0, v{8+x}\nv_sub_f32 v{NM+16*x+1}, 0, v{8+x}")
            for i in range(2, 16, 2): a(f"v_mov_b64 v[{NM+16*x+i}:{NM+16*x+i+1}], v[{NM+16*x}:{NM+16*x+1}]")
    for x in rdK(0, 0, 0): a(x)
    a("s_waitcnt lgkmcnt(0)")
    m = qk(0, 0, "0") + qk(1, 0, "0")
    for i in (0, 1, 2, 3): a(m[i])
    a.nop(10)
    for x in range(2):
        sd = SS + 16*x
        a(f"v_max3_f32 v{8+x}, v{sd}, v{sd+1}, v{sd+2}")
        for i in range(3, 15, 2):
            a(f"v_max3_f32 v{8+x}, v{8+x}, v{sd+i}, v{sd+i+1}")
        a(f"v_max_f32 v{8+x}, v{8+x}, v{sd+15}")
    setm()
    for i in range(16): a(f"v_sub_f32 v{SS+i}, v{SS+i}, v8")
    l1 = a.uid("att_w0"); l2 = a.uid("att_w1")
    sDone = t + 15
    a(f"s_cmp_eq_u32 s{sKH}, 0\ns_cbranch_scc1 {l1}\ns_waitcnt vmcnt(0)\ns_branch {l2}")
    a.label(l1)
    GF.upd()
    a(f"s_and_b32 s{sDone}, s{sNR}, 0x02020202\ns_cbranch_scc1 {l2}")
    GF.ok = 0x02020202; kv_issue(1); GF.ok = 0
    a.label(l2)
    a("s_barrier")
    stamp(a, 7)
    def l0only(fn):
        l = a.uid("l0")
        a(f"s_cmp_lg_u32 s{sL}, 0\ns_cbranch_scc1 {l}")
        fn(); a.label(l)
    def prepfin():
        l = a.uid("pf")
        a(f"s_and_b32 s{sC}, s{sR}, 15\ns_cmp_eq_u32 s{sC}, 15\ns_cbranch_scc1 {l}")
        prep(a, 1); a.label(l)
    def l2pf(i0, n):
        for i in range(i0, min(i0 + n, (C.l2pf + 3) // 4)):
            l = a.uid("pfs")
            a(f"""
            s_cmp_ge_u32 s{sW}, {C.l2pf - 4*i}
            s_cbranch_scc1 {l}
            s_lshr_b32 s{sPF}, s{sR}, 4
            s_mul_i32 s{sPF}, s{sPF}, {15 if C.rot_gu else 1}
            s_mul_i32 s{sC}, s{sW}, {1 if C.rot_gu else 2}
            s_add_u32 s{sPF}, s{sPF}, s{sC}
            s_add_u32 s{sPF}, s{sPF}, {4*i if C.rot_gu else 8*i}
            s_lshl_b32 s{sPF}, s{sPF}, 13
            s_and_b32 s{sC}, s{sR}, 15
            s_mul_i32 s{sC}, s{sC}, 245760
            s_add_u32 s{sPF}, s{sPF}, s{sC}
            s_add_u32 s{sPF}, s{sPF}, {WS_WTG}
            buffer_load_dword v{DUM}, v13, {WSR}, s{sPF} offen
            """)
            a.label(l)
    def wwo(c): lin_dma(a, 5, sWs, c*20480, sWd, c*20480, 5, 'nt' if C.nt_wo else '')
    def hook(j):
        if j == 1:
            kv_issue(2); kv_issue(3); a("s_waitcnt vmcnt(10)"); l0only(prepfin)
        else: a("s_waitcnt vmcnt(0)")
        if j == 3: kv_issue(6); kv_issue(7)
        if j == 2:
            def fp():
                a(f"""
                s_lshl_b32 s{sC}, s{sWG}, 5
                s_add_u32 s{sC}, s{sC}, s{sW}
                s_lshl_b32 s{sC}, s{sC}, 2
                s_add_u32 s{sC}, s{sC}, {L_FG + 16}
                v_mov_b32 v10, 0
                v_mov_b32 v11, s{sEP}
                s_mov_b64 exec, 1
                buffer_store_dword v11, v10, {WSR}, s{sC} offen sc1
                s_mov_b64 exec, -1
                """)
            l0only(fp)
            kv_issue(4); kv_issue(5)
        if j == 4:
            def fpw():
                a(f"s_lshl_b32 s{sC}, s{sW}, 13\ns_add_u32 s{sC}, s{sC}, {L_FG + 16}")
                poll(a, 13, PV, f"s{sC}", f"s{sEP}", sleep=2, wide=True)
            l0only(fpw)
        if j == 5:
            def cs():
                l = a.uid("cs")
                a(f"s_cmp_lg_u32 s{sW}, 3\ns_cbranch_scc1 {l}\ns_mov_b32 exec_hi, 0xffff")
                a(f"s_and_b32 s{sC}, s{sR}, 15\ns_mul_i32 s{sC}, s{sC}, 768\ns_add_u32 s{sC}, s{sC}, {WS_CSP}")
                for i in range(10):
                    a(f"buffer_load_dwordx4 v[{PV+4*i}:{PV+3+4*i}], v5, {WSR}, s{sC} offen\ns_add_u32 s{sC}, s{sC}, 12288")
                a("s_mov_b32 exec_hi, -1")
                a.label(l)
            l0only(cs)
            wwo(0); wwo(1); wwo(2); l2pf(0, 1)
        if j == 6:
            def cs():
                l = a.uid("cs")
                a(f"s_cmp_lg_u32 s{sW}, 3\ns_cbranch_scc1 {l}\ns_mov_b32 exec_hi, 0xffff")
                for i in range(1, 10):
                    a(f"v_pk_add_f32 v[{PV}:{PV+1}], v[{PV}:{PV+1}], v[{PV+4*i}:{PV+1+4*i}]\nv_pk_add_f32 v[{PV+2}:{PV+3}], v[{PV+2}:{PV+3}], v[{PV+2+4*i}:{PV+3+4*i}]")
                a(f"s_mul_i32 s{sC}, s{sWG}, 768\ns_add_u32 s{sC}, s{sC}, {WS_CSG}")
                a(f"buffer_store_dwordx4 v[{PV}:{PV+3}], v5, {WSR}, s{sC} offen\ns_mov_b32 exec_hi, -1")
                a.label(l)
            l0only(cs)
            wwo(3)
            if fast:
                a(f"""
                s_lshl_b32 s{sPF}, s{sWG}, 1
                s_and_b32 s{sC}, s{sW}, 1
                s_add_u32 s{sPF}, s{sPF}, s{sC}
                s_mul_i32 s{sPF}, s{sPF}, 5120
                s_add_u32 s{sC}, s{sLO}, {L_O}
                s_bitcmp1_b32 s{sW}, 1
                s_cselect_b32 s{sC}, {L_X1}, s{sC}
                s_add_u32 s{sPF}, s{sPF}, s{sC}
                s_mov_b32 exec_hi, 0xff
                buffer_load_dword v{DUM}, v13, {WSR}, s{sPF} offen
                s_lshl_b32 s{sTmp}, s{sWG}, 9
                s_add_u32 s{sTmp}, s{sTmp}, s{sLO}
                s_add_u32 s{sTmp}, s{sTmp}, {L_ST1}
                s_mov_b64 exec, 15
                buffer_load_dword v{DUM}, v13, {WSR}, s{sTmp} offen
                s_mov_b64 exec, -1
                """)
            l2pf(1, 1)
        if j == 7:
            wwo(4)
            if fast and C.htouch == 0:
                a(f"""
                s_lshl_b32 s{sPF}, s{sWG}, 2
                s_add_u32 s{sPF}, s{sPF}, s{sQP}
                s_mul_i32 s{sPF}, s{sPF}, 6144
                s_add_u32 s{sPF}, s{sPF}, s{sLO}
                s_add_u32 s{sPF}, s{sPF}, {L_H}
                s_mov_b32 exec_hi, 0xffff
                buffer_load_dword v{DUM}, v13, {WSR}, s{sPF} offen
                s_mov_b32 exec_hi, -1
                """)
            l2pf(2, 2)
    outl = []
    for c in range(8):
        for kt in range(4):
            st = kt & 1
            last = c == 7 and kt == 3
            if c == 0 and kt == 1:
                hk = a.uid("att_hk")
                a(f"s_cmp_eq_u32 s{sKH}, 0\ns_cbranch_scc1 {hk}"); a.label(hk + "r")
                def h0():
                    l = a.uid("h0")
                    a(f"s_cmp_eq_u32 s{sDone}, 0\ns_cbranch_scc1 {l}")
                    kv_issue(1)
                    a.label(l)
                outl.append((hk, h0))
            j = c + 1 if (kt == 3 and c < 6) else (7 if (c == 7 and kt == 0) else None)
            if j:
                hk = a.uid("att_hk")
                dstamp(a, 6, 3*j)
                a(f"s_cmp_eq_u32 s{sKH}, 0\ns_cbranch_scc1 {hk}"); a.label(hk + "r")
                dstamp(a, 6, 3*j+1)
                a("s_barrier")
                dstamp(a, 6, 3*j+2)
                outl.append((hk, (lambda jj: (lambda: hook(jj)))(j)))
            val = sm(0)
            mf = qk(1, st) + pv(1, st ^ 1)
            ex = rdV(st, c, kt)
            if kt == 3 and c in (2, 5):
                base[0] += 3 * CH
                ex += [f"v_add_u32 v{r}, {3*CH}, v{r}" for r in (vK, vK8, vV)]
            if not last: ex += rdK(st ^ 1, c + (kt + 1) // 4, (kt + 1) % 4)
            a(mf[0]); [a(x) for x in ex[:4]]; [a(x) for x in val[0:6]]
            a(mf[2]); [a(x) for x in ex[4:]]; [a(x) for x in val[6:12]]
            a(mf[1]); [a(x) for x in val[12:18]]
            a(mf[3]); [a(x) for x in val[18:]]
            val = sm(1)
            a("s_waitcnt lgkmcnt(0)")
            if not last:
                mf = qk(0, st ^ 1) + pv(0, st)
                a(mf[0]); [a(x) for x in val[0:6]]
                a(mf[2]); [a(x) for x in val[6:12]]
                a(mf[1]); [a(x) for x in val[12:18]]
                a(mf[3]); [a(x) for x in val[18:]]
            else:
                mf = pv(0, st) + pv(1, st)
                a(mf[0]); [a(x) for x in val[0:6]]
                a(mf[1]); [a(x) for x in val[6:16]]
                a(mf[2]); [a(x) for x in val[16:]]
                a("s_nop 1"); a(mf[3])
    stamp(a, 8)
    fb = a.uid("att_fb"); comb = a.uid("att_comb"); done = a.uid("att_done"); yng = a.uid("att_y")
    XB = 102400
    a(f"""
    s_mul_i32 s{sC}, s{sQP}, 7168
    s_add_u32 s{sC}, s{sC}, {XB}
    v_add_u32 v1, s{sC}, v5
    s_lshl_b32 s{sTmp}, s{sQP}, 2
    s_add_u32 s{sTmp}, s{sTmp}, {XB + 28672}
    v_mov_b32 v{XF}, s{sTmp}
    v_lshrrev_b32 v2, 1, v5
    v_add_u32 v2, s{sC}, v2
    s_mul_i32 s{sTmp}, s{sR}, 5
    v_add_u32 v3, s{sTmp}, v14
    v_lshrrev_b32 v4, 1, v3
    v_and_b32 v3, 1, v3
    v_lshlrev_b32 v3, 3, v3
    v_lshl_add_u32 v3, v4, 9, v3
    v_lshl_add_u32 v3, v15, 4, v3
    """)
    a(f"v_mul_f32 v10, {f32(2.0**63)}, v{OO+12}")
    a(f"v_pk_mul_f32 v[12:13], v[{OO}:{OO+1}], 0")
    for i in range(2, 12, 2): a(f"v_pk_fma_f32 v[12:13], v[{OO+i}:{OO+i+1}], 0, v[12:13]")
    a(f"v_mul_f32 v11, {f32(2.0**63)}, v{OO+16+12}")
    a(f"v_pk_add_f32 v[10:11], v[10:11], v[10:11]\nv_pk_fma_f32 v[12:13], v[10:11], 0, v[12:13]")
    for i in range(0, 12, 2): a(f"v_pk_fma_f32 v[12:13], v[{OO+16+i}:{OO+16+i+1}], 0, v[12:13]")
    a(f"v_cmp_u_f32 vcc, v12, v13\ns_cbranch_vccnz {fb}")
    a.label(comb)
    a(f"s_cmp_eq_u32 s{sKH}, 0\ns_cbranch_scc1 {yng}")
    def older():
        a.label(yng)
        a(f"v_mov_b32 v{OO+13}, v8\nv_mov_b32 v{OO+16+13}, v9\nv_mov_b32 v10, s{sEP}")
        for x in range(2):
            for i in range(3):
                a(f"ds_write_b128 v1, v[{OO+16*x+4*i}:{OO+16*x+4*i+3}] offset:{3584*x+1024*i}")
            a(f"ds_write_b64 v2, v[{OO+16*x+12}:{OO+16*x+13}] offset:{3584*x+3072}")
        a(f"ds_write_b32 v{XF}, v10")
        a(f"s_setprio 0")
        stamp(a, 9)
    pl = a.uid("att_x")
    a.label(pl)
    a(f"ds_read_b32 v10, v{XF}")
    for x in range(2):
        a(f"ds_read_b64 v[{76+16*x}:{77+16*x}], v2 offset:{3584*x+3072}")
    for x in range(2):
        for i in range(3):
            a(f"ds_read_b128 v[{64+16*x+4*i}:{64+16*x+4*i+3}], v1 offset:{3584*x+1024*i}")
    a(f"""
    s_lshl_b32 s{sTmp}, s{sG}, 2
    s_add_u32 s{sTmp}, s{sTmp}, s{sQP}
    s_mul_i32 s{sPF}, s{sTmp}, 81920
    s_add_u32 s{sPF}, s{sPF}, s{sLO}
    s_add_u32 s{sPF}, s{sPF}, {L_O}
    s_add_u32 s{sC}, s{sPF}, 40960
    s_waitcnt lgkmcnt(6)
    v_cmp_ne_u32 vcc, s{sEP}, v10
    s_cbranch_vccnz {pl}
    """)
    for x in range(2):
        f = 16 + 4*x
        a(f"v_max_f32 v{f+2}, v{8+x}, v{77+16*x}\nv_sub_f32 v{f}, v{8+x}, v{f+2}\nv_sub_f32 v{f+1}, v{77+16*x}, v{f+2}")
    for x in range(2):
        f = 16 + 4*x
        a(f"v_exp_f32 v{f}, v{f}\nv_exp_f32 v{f+1}, v{f+1}")
    for x in range(2):
        f = 16 + 4*x
        a(f"v_mul_f32 v{f+2}, v{f}, v{OO+16*x+12}\nv_fmac_f32 v{f+2}, v{f+1}, v{76+16*x}")
    a("v_rcp_f32 v18, v18\nv_rcp_f32 v22, v22\ns_waitcnt lgkmcnt(0)")
    for x in range(2):
        f = 16 + 4*x; o = OO + 16*x
        a(f"v_mul_f32 v{f}, v{f}, v{f+2}\nv_mul_f32 v{f+2}, v{f+1}, v{f+2}")
        for i in range(0, 12, 2):
            a(f"v_pk_mul_f32 v[{o+i}:{o+i+1}], v[{o+i}:{o+i+1}], v[{f}:{f+1}] op_sel_hi:[1,0]")
        for i in range(0, 12, 2):
            a(f"v_pk_fma_f32 v[{o+i}:{o+i+1}], v[{64+16*x+i}:{65+16*x+i}], v[{f+2}:{f+3}], v[{o+i}:{o+i+1}] op_sel_hi:[1,0,1]")
        for i in range(6):
            a(f"v_cvt_pk_bf16_f32 v{o+i}, v{o+2*i}, v{o+2*i+1}")
        sd = sPF if x == 0 else sC
        a(f"""
        buffer_store_dwordx2 v[{o}:{o+1}], v3, {WSR}, s{sd} offen {SB}
        buffer_store_dwordx2 v[{o+2}:{o+3}], v3, {WSR}, s{sd} offen offset:512 {SB}
        s_mov_b32 exec_hi, 0
        buffer_store_dwordx2 v[{o+4}:{o+5}], v3, {WSR}, s{sd} offen offset:1024 {SB}
        s_mov_b32 exec_hi, -1
        """)
    flag_setup(a, 2)
    a("s_barrier\ns_waitcnt vmcnt(0)")
    flag_store(a, SB)
    stamp(a, 9)
    a(f"s_branch {ld_label}")
    for hk, fn in outl:
        a.label(hk); fn(); a(f"s_branch {hk}r")
    older()
    def fallback():
        a.label(fb)
        sKb, sVb, sI = t+12, t+13, t+14
        def addr():
            a(f"""
            s_lshr_b32 s{sKb}, s{sI}, 2
            s_lshl_b32 s{sKb}, s{sKb}, 1
            s_add_u32 s{sKb}, s{sKb}, s{sKH}
            s_lshl_b32 s{sKb}, s{sKb}, 2
            s_and_b32 s{sVb}, s{sI}, 3
            s_add_u32 s{sKb}, s{sKb}, s{sVb}
            s_mul_i32 s{sKb}, s{sKb}, 1280
            s_add_u32 s{sKb}, s{sKb}, s{sHB}
            s_add_u32 s{sVb}, s{sKb}, {L_V}
            s_add_u32 s{sKb}, s{sKb}, {L_K}
            buffer_load_dwordx4 v[{KF}:{KF+3}], v5, {WSR}, s{sKb} offen sc1
            buffer_load_dwordx2 v[{KF+4}:{KF+5}], v6, {WSR}, s{sKb} offen offset:1024 sc1
            """)
        l1 = a.uid("att_fb1"); l2 = a.uid("att_fb2")
        a(f"s_mov_b32 s{sI}, 0\nv_mov_b32 v8, 0xff800000\nv_mov_b32 v9, 0xff800000")
        a.label(l1)
        addr()
        a("s_waitcnt vmcnt(0)")
        for x in range(2):
            for m in qk(x, 0, "0"): a(m)
        a.nop(12)
        for x in range(2):
            sd = SS + 16*x
            for i in range(0, 16, 2): a(f"v_max3_f32 v{8+x}, v{8+x}, v{sd+i}, v{sd+i+1}")
        a(f"s_add_u32 s{sI}, s{sI}, 1\ns_cmp_lt_u32 s{sI}, 32\ns_cbranch_scc1 {l1}")
        setm()
        for i in range(32): a(f"v_mov_b32 v{OO+i}, 0")
        a(f"s_mov_b32 s{sI}, 0")
        a.label(l2)
        addr()
        a(f"""
        s_mov_b64 exec, s[{sEX}:{sEX+1}]
        buffer_load_dwordx4 v[{VF}:{VF+3}], v7, {WSR}, s{sVb} offen sc1
        buffer_load_dwordx4 v[{VF+4}:{VF+7}], v7, {WSR}, s{sVb} offen offset:640 sc1
        s_mov_b64 exec, -1
        s_waitcnt vmcnt(0)
        """)
        for x in range(2):
            for m in qk(x, 0): a(m)
        a.nop(12)
        for x in range(2):
            for i in sm(x): a(i)
        a("s_nop 1")
        for x in range(2):
            for m in pv(x, 0): a(m)
        a(f"s_add_u32 s{sI}, s{sI}, 1\ns_cmp_lt_u32 s{sI}, 32\ns_cbranch_scc1 {l2}")
        a.nop(12)
        a(f"s_branch {comb}")
    return fallback

def xoff(SB, which):
    if SB == "": return (False, L_X1)
    return (True, L_X1) if which == 1 else (False, L_X2)
def add_x(a, dst, src, SB, which):
    lo, c = xoff(SB, which)
    a(f"s_add_u32 s{dst}, s{src}, {c}")
    if lo: a(f"s_add_u32 s{dst}, s{dst}, s{sLO}")

def proj_compute(a, down, SB, end_label):
    fast = SB == ""
    t = T
    K = F if down else D
    NCH = K // 128
    sRT, sCT = t, t+1
    st0 = 13 if down else 10
    sF, sRM, sST, sA, sA1, sThr, sSel = t+4, t+5, t+12, t+2, t+3, t+9, t+10
    NWS = 3 if down else C.wo_sets
    ACC = 14; RX = 34; AF = 54; WF = 134; RES = (220 if down else 54); VST = 200
    vF, vF2, vR, vR2 = 10, 11, 12, 13
    a(f"""
    s_lshr_b32 s{sRT}, s{sWG}, 3
    s_and_b32 s{sCT}, s{sR}, 7
    v_and_b32 v3, 15, v0
    v_lshrrev_b32 v7, 4, v0
    s_lshl_b32 s{t+6}, s{sRT}, 1
    s_lshr_b32 s{t+7}, s{sW}, 1
    s_add_u32 s{t+6}, s{t+6}, s{t+7}
    s_and_b32 s{t+8}, s{sW}, 1
    s_lshl_b32 s{t+8}, s{t+8}, 8
    s_mul_i32 s{sA}, s{t+6}, {K*64}
    s_add_u32 s{sA}, s{sA}, s{t+8}
    s_add_u32 s{sA}, s{sA}, s{sLO}
    s_add_u32 s{sA}, s{sA}, {L_H if down else L_O}
    s_mul_i32 s{sF}, s{t+6}, 40960
    s_mul_i32 s{t+7}, s{sCT}, 5120
    s_add_u32 s{sF}, s{sF}, s{t+7}
    s_add_u32 s{sF}, s{sF}, s{t+8}
    s_lshl_b32 s{sST}, s{sW}, 8
    s_lshl_b32 s{t+7}, s{sRT}, 12
    s_add_u32 s{sST}, s{sST}, s{t+7}
    s_add_u32 s{sST}, s{sST}, s{sLO}
    s_lshl_b32 s{sRM}, s{sRT}, 2
    s_add_u32 s{sRM}, s{sRM}, s{sW}
    s_mul_i32 s{sRM}, s{sRM}, {16*1280}
    s_mul_i32 s{t+7}, s{sCT}, 160
    s_add_u32 s{sRM}, s{sRM}, s{t+7}
    v_lshlrev_b32 v1, 4, v3
    v_lshl_add_u32 v{vF}, v7, 9, v1
    v_lshrrev_b32 v2, 5, v0
    v_lshl_add_u32 v1, v2, 9, v1
    v_and_b32 v2, 1, v7
    v_lshl_add_u32 v{vF2}, v2, 3, v1
    v_add_u32 v{vF2}, 4096, v{vF2}
    v_mul_u32_u24 v1, 1280, v3
    v_lshl_add_u32 v{vR}, v7, 4, v1
    v_lshl_add_u32 v{vR2}, v7, 3, v1
    v_add_u32 v9, 4096, v{vF}
    """)
    SA = Src(sA, sA1, sThr, 8192)
    if down:
        a(f"s_and_b32 s{t+7}, s{sRT}, 3\ns_mul_i32 s{t+7}, s{t+7}, {C.rot_dn}\ns_sub_u32 s{sThr}, 12, s{t+7}")
        SA.setup(a, t+7, 12, t+8)
    def io(store, rowmajor, rsrc, soff, reg, bits):
        op = "store" if store else "load"
        v16, v8 = (vR, vR2) if rowmajor else (vF, vF2)
        o1, o2 = (64, 128) if rowmajor else (2048, 0)
        return [f"buffer_{op}_dwordx4 v[{reg}:{reg+3}], v{v16}, {rsrc}, {soff} offen {bits}",
                f"buffer_{op}_dwordx4 v[{reg+4}:{reg+7}], v{v16}, {rsrc}, {soff} offen offset:{o1} {bits}",
                f"buffer_{op}_dwordx2 v[{reg+8}:{reg+9}], v{v8}, {rsrc}, {soff} offen offset:{o2} {bits}"]
    if down:
        add_x(a, t+7, sF, SB, 1)
        for x in io(False, False, WSR, f"s{t+7}", RES, "sc1"): a(x)
        a(f"s_add_u32 s{t+7}, s{sST}, {L_ST1}\nv_lshlrev_b32 v1, 4, v3")
        for i in range(4):
            a(f"buffer_load_dwordx4 v[{VST+4*i}:{VST+4*i+3}], v1, {WSR}, s{t+7} offen offset:{1024*i} sc1")
        if fast:
            a(f"s_lshl_b32 s{t+8}, s{sWG}, 9\ns_add_u32 s{t+8}, s{t+8}, {L_ST2}\nv_lshlrev_b32 v1, 7, v0\ns_mov_b64 exec, 15")
            a(f"buffer_load_dword v8, v1, {WSR}, s{t+8} offen\ns_mov_b64 exec, -1")
    else:
        l1 = a.uid("prj_r1"); l2 = a.uid("prj_r2")
        a(f"s_cmp_lg_u32 s{sL}, 0\ns_cbranch_scc1 {l1}")
        for x in io(False, True, R(R_X), f"s{sRM}", RES, ""): a(x)
        a(f"s_branch {l2}")
        a.label(l1)
        add_x(a, t+7, sF, SB, 2)
        for x in io(False, False, WSR, f"s{t+7}", RES, "sc1"): a(x)
        a.label(l2)
    a(f"v_lshlrev_b32 v4, 4, v0\nv_add_u32 v5, 61440, v4\nv_add_u32 v6, 122880, v4\ns_mov_b32 s{t+8}, 0xffff0000")
    def wadr(c):
        o = dnW(c) if down else c * 20480
        return 4 + o // 61440, o % 61440
    def reads(c, u):
        b = WF + 20*((4*c + u) % NWS); r, o = wadr(c)
        return [f"ds_read_b128 v[{b+4*jn}:{b+4*jn+3}], v{r} offset:{o + 5120*u + 1024*jn}" for jn in range(5)]
    NAS = 5
    def aload(c):
        r = []
        if down: r += [f"s_cmp_gt_u32 s{sThr}, {c}", f"s_cselect_b32 s{sSel}, s{sA}, s{sA1}", f"s_add_u32 s{sSel}, s{sSel}, {c*8192}"]
        else: r += [f"s_add_u32 s{sSel}, s{sA}, {c*8192}"]
        for u in range(4):
            d = AF + 16*(c % NAS) + 4*u
            r.append(f"buffer_load_dwordx4 v[{d}:{d+3}], v{vF if u < 2 else 9}, {WSR}, s{sSel} offen offset:{2048*(u & 1)} sc1")
        return r
    def mfmas(c, u, zero=False):
        b = WF + 20*((4*c + u) % NWS); x = AF + 16*(c % NAS) + 4*u
        return [f"v_mfma_f32_16x16x32_bf16 {v(ACC+4*jn,4)}, {v(b+4*jn,4)}, {v(x,4)}, {0 if zero else v(ACC+4*jn,4)}" for jn in range(5)]
    D_ = NWS - 1
    rd = lambda st_: reads(st_ // 4, st_ % 4) if st_ < 4*NCH else []
    if down: a(f"s_and_b32 s{t+7}, s{sRT}, 3\ns_mul_i32 s{t+7}, s{t+7}, {4 if C.rot_dn else 0}")
    G_ = gate_local(a, "down" if down else "wo", 4 if down else 2, 1, 2, t+7)
    def setup2():
        if not down: a("s_waitcnt vmcnt(0)")
        for i in range(10):
            a(f"v_lshlrev_b32 v{RX+2*i}, 16, v{RES+i}\nv_and_b32 v{RX+1+2*i}, s{t+8}, v{RES+i}")
        if down:
            row_stats(a, VST, VST + 2, VST + 3)
            a(f"v_mul_f32 v{VST+2}, v{VST+3}, v{VST+3}")
        a("s_barrier")
        for st_ in range(D_):
            for x in rd(st_): a(x)
    if not down: setup2()
    def al(c):
        G_.need(span(128*c, 128*c + 127, 96, 2) if down else span(128*c, 128*c + 127, 20, 1))
        if c == 0: stamp(a, st0)
        for x in aload(c): a(x)
    NPRE = C.dn_a if down else 5
    for c in range(NPRE): al(c)
    if down: setup2()
    issued = 4 * NPRE
    for c in range(NCH):
        for u in range(4):
            step = 4*c + u
            left = min(D_ - 1, 4*NCH - 1 - step)
            a(f"s_waitcnt vmcnt({issued - step - 1}) lgkmcnt({min(15, 5*left)})")
            if step == 4*NCH - 1 or (down and u == 2 and c + 1 < NCH): a("s_barrier")
            interleave(a, mfmas(c, u, step == 0), rd(step + D_))
            if u == 0 and c + NPRE < NCH:
                assert NPRE < NAS
                al(c + NPRE); issued += 4
    stamp(a, st0 + 1)
    add_x(a, t+7, sF, SB, 2 if down else 1)
    flag_setup(a, 5 if down else 3)
    for i in range(0, 20, 2):
        c = ACC + i
        if down: a(f"v_pk_fma_f32 v[{c}:{c+1}], v[{c}:{c+1}], v[{VST+2}:{VST+3}], v[{RX+i}:{RX+i+1}] op_sel_hi:[1,0,1]")
        else: a(f"v_pk_add_f32 v[{c}:{c+1}], v[{c}:{c+1}], v[{RX+i}:{RX+i+1}]")
        a(f"v_cvt_pk_bf16_f32 v{60+i//2}, v{c}, v{c+1}")
    if down:
        l1 = a.uid("prj_o1")
        a(f"s_cmp_eq_u32 s{sL}, 0\ns_cbranch_scc1 {l1}")
        srd(a, R_T, P_OUT, ACT)
        for x in io(True, True, R(R_T), f"s{sRM}", 60, ""): a(x)
        a(f"s_branch {end_label}")
        a.label(l1)
    for x in io(True, False, WSR, f"s{t+7}", 60, SB): a(x)
    a(f"v_pk_add_f32 v[72:73], v[{ACC}:{ACC+1}], v[{ACC+2}:{ACC+3}]\nv_pk_mul_f32 v[74:75], v[{ACC}:{ACC+1}], v[{ACC}:{ACC+1}]")
    a(f"v_pk_fma_f32 v[74:75], v[{ACC+2}:{ACC+3}], v[{ACC+2}:{ACC+3}], v[74:75]")
    for i in range(4, 20, 2):
        a(f"v_pk_add_f32 v[72:73], v[72:73], v[{ACC+i}:{ACC+i+1}]\nv_pk_fma_f32 v[74:75], v[{ACC+i}:{ACC+i+1}], v[{ACC+i}:{ACC+i+1}], v[74:75]")
    a(f"""
    v_add_f32 v72, v72, v73
    v_add_f32 v73, v74, v75
    s_lshr_b32 s{t+7}, s{sCT}, 1
    s_lshl_b32 s{t+7}, s{t+7}, 10
    v_permlane32_swap_b32 v72, v73
    s_and_b32 s{t+8}, s{sCT}, 1
    s_lshl_b32 s{t+8}, s{t+8}, 3
    v_add_f32 v72, v72, v73
    v_mov_b32 v73, v72
    s_add_u32 s{t+7}, s{t+7}, s{t+8}
    s_add_u32 s{t+7}, s{t+7}, s{sST}
    v_permlane16_swap_b32 v72, v73
    s_add_u32 s{t+7}, s{t+7}, {L_ST2 if down else L_ST1}
    v_lshrrev_b32 v8, 5, v0
    v_lshlrev_b32 v8, 2, v8
    v_lshl_add_u32 v8, v3, 4, v8
    v_add_f32 v72, v72, v73
    buffer_store_dword v72, v8, {WSR}, s{t+7} offen {SB}
    s_waitcnt vmcnt(0)
    """)
    flag_store(a, SB)
    stamp(a, st0 + 2)

def gu_compute(a, SB):
    t = T
    sRT, sCT, sWM, sWN, sTB, sF0 = t, t+1, t+2, t+3, t+4, t+6
    FR = 14; ACC = 94; VCS = 190; VST = 238; MS = 8
    a(f"""
    s_lshr_b32 s{sRT}, s{sWG}, 4
    s_and_b32 s{sCT}, s{sR}, 15
    s_and_b32 s{sWM}, s{sW}, 1
    s_lshr_b32 s{sWN}, s{sW}, 1
    s_lshl_b32 s{sTB}, s{sRT}, 1
    s_add_u32 s{sTB}, s{sTB}, s{sWM}
    s_mul_i32 s{sF0}, s{sCT}, 96
    s_mul_i32 s{t+5}, s{sWN}, 48
    s_add_u32 s{sF0}, s{sF0}, s{t+5}
    s_mul_i32 s{t+5}, s{sWG}, 768
    s_mul_i32 s{t+7}, s{sWN}, 384
    s_add_u32 s{t+5}, s{t+5}, s{t+7}
    s_add_u32 s{t+5}, s{t+5}, {WS_CSG}
    v_lshrrev_b32 v12, 5, v0
    v_lshlrev_b32 v1, 6, v12
    """)
    for jn in range(3):
        for q in range(4):
            r = VCS + 16*jn + 4*q
            a(f"buffer_load_dwordx4 v[{r}:{r+3}], v1, {WSR}, s{t+5} offen offset:{128*jn+16*q} sc1")
    a(f"""
    s_lshl_b32 s{t+5}, s{sWM}, 13
    v_lshlrev_b32 v11, 4, v0
    v_add_u32 v3, s{t+5}, v11
    s_mul_i32 s{t+5}, s{sWN}, 3072
    s_add_u32 s{t+5}, s{t+5}, {WB}
    v_add_u32 v4, s{t+5}, v11
    v_add_u32 v5, 49152, v4
    s_mul_i32 s{t+11}, s{sTB}, {2*F*64}
    s_lshl_b32 s{t+7}, s{sF0}, 6
    s_add_u32 s{t+11}, s{t+11}, s{t+7}
    s_add_u32 s{t+11}, s{t+11}, s{sLO}
    s_add_u32 s{t+11}, s{t+11}, {L_H}
    s_add_u32 s{t+12}, s{t+11}, {F*64}
    """)
    flag_setup(a, 4)
    for i in range(0, 96, 2): a(f"v_mov_b64 v[{ACC+i}:{ACC+i+1}], 0")
    def reads(c, kk):
        b = FR + 20*kk; r = []
        for tm in range(2):
            r.append(f"ds_read_b128 v[{b+4*tm}:{b+4*tm+3}], v3 offset:{(c % 4)*16384+4096*tm+1024*kk}")
        o = guW(c) - WB
        for jn in range(3):
            d = b + 8 + 4*jn
            r.append(f"ds_read_b128 v[{d}:{d+3}], v{4 + o // 49152} offset:{o % 49152 + 6144*kk+1024*jn}")
        return r
    def mfma(kk, tl):
        b = FR + 20*kk; c = ACC + 16*tl
        return f"v_mfma_f32_32x32x16_bf16 {v(c,16)}, {v(b+8+4*(tl>>1),4)}, {v(b+4*(tl&1),4)}, {v(c,16)}"
    def epi(jn, pk):
        r = []
        for tm in range(2):
            c = ACC + 16*(2*jn + tm)
            for i in range(8): r.append(f"v_max_f32 v{c+i}, 0, v{c+i}")
            if pk:
                for i in range(0, 8, 2): r.append(f"v_pk_mul_f32 v[{c+i}:{c+i+1}], v[{c+i}:{c+i+1}], v[{c+8+i}:{c+9+i}]")
            else:
                for i in range(8): r.append(f"v_mul_f32 v{c+i}, v{c+i}, v{c+8+i}")
            for i in range(4): r.append(f"v_cvt_pk_bf16_f32 v{c+i}, v{c+2*i}, v{c+2*i+1}")
            r.append(f"buffer_store_dwordx4 v[{c}:{c+3}], v11, {WSR}, s{t+11+tm} offen offset:{1024*jn} {SB}")
        return r
    a(f"s_lshl_b32 s{t+5}, s{sTB}, 12\ns_add_u32 s{t+5}, s{t+5}, s{sLO}\ns_add_u32 s{t+5}, s{t+5}, {L_ST1}")
    ins = {}
    for i in range(4): ins[48 + 3*i] = [f"buffer_load_dwordx4 v[{VST+4*i}:{VST+4*i+3}], v11, {WSR}, s{t+5} offen offset:{1024*i} sc1"]
    if SB == "" and C.htouch > 0:
        a(f"""
        v_mul_u32_u24 v6, 171, v0
        v_lshrrev_b32 v6, 12, v6
        v_mul_u32_u24 v7, {F*64 - 24*128}, v6
        v_lshl_add_u32 v6, v0, 7, v7
        """)
        ins[C.htouch] = ["s_mov_b32 exec_hi, 0xffff", f"buffer_load_dword v7, v6, {WSR}, s{t+11} offen", "s_mov_b32 exec_hi, -1"]
    ins[100] = ["s_waitcnt vmcnt(0)"] + [f"v_add_f32 v{VST}, v{VST}, v{VST+2*i}" for i in range(1, 8)] + \
         [f"v_mul_f32 v{MS}, {f32(-1.0/D)}, v{VST}", f"v_mul_f32 v{MS+1}, {f32(-1.0/D)}, v{VST}", "s_nop 1", f"v_permlane32_swap_b32 v{MS}, v{MS+1}"]
    fix = lambda tl: [f"v_fmac_f32 v{ACC+16*tl+i}, v{MS+(tl&1)}, v{VCS+16*(tl>>1)+i}" for i in range(16)]
    gemm_unrolled(a, 10, 6, 5, reads, mfma, [(0, 1), (2, 3), (4, 5)], ins, fix, 110, epi, 22)
    a("s_waitcnt vmcnt(0)")
    flag_store(a, SB)
    stamp(a, 23)

def loader_chain(a, SB, end_label, idle_label):
    t = T
    sLW, s4, s5, s6, aGU, aGU1, wGU, wGU1, wDN, wDN1, aQK, aQK1, wQK, wQK1, th10, th12, sTmp, sSel, thq = range(t, t + 19)
    sRot = sSel
    a(f"""
    s_sub_u32 s{sLW}, s{sW}, 4
    v_lshlrev_b32 v8, 4, v0
    s_mul_i32 s{s6}, s{sLW}, 6144
    s_and_b32 s{wGU}, s{sR}, 15
    s_mul_i32 s{wGU}, s{wGU}, 245760
    s_add_u32 s{wGU}, s{wGU}, s{s6}
    s_add_u32 s{wGU}, s{wGU}, {WS_WTG}
    s_lshr_b32 s{sRot}, s{sR}, 4
    s_mul_i32 s{sRot}, s{sRot}, {C.rot_gu}
    s_sub_u32 s{th10}, 10, s{sRot}
    """)
    S_aGU = Src(aGU, aGU1, th10, 4096); S_wGU = Src(wGU, wGU1, th10, 24576); S_wDN = Src(wDN, wDN1, th12, 20480)
    S_aQK = Src(aQK, aQK1, thq, 4096); S_wQK = Src(wQK, wQK1, thq, 64*3840)
    S_wGU.setup(a, sRot, 10, sTmp)
    def rest():
        a(f"""
        s_lshl_b32 s{s4}, s{sLW}, 12
        s_mul_i32 s{s5}, s{sLW}, 5120
        s_lshr_b32 s{aQK}, s{sWG}, 4
        s_lshl_b32 s{aQK}, s{aQK}, 2
        s_add_u32 s{aQK}, s{aQK}, s{sLW}
        s_mul_i32 s{aQK}, s{aQK}, 40960
        """)
        add_x(a, aGU, aQK, SB, 1)
        add_x(a, aQK, aQK, SB, 2)
        a(f"s_and_b32 s{wDN}, s{sR}, 15")
        qkvW_setup(a, wQK, sLW, wDN, sTmp, 6)
        a(f"s_sub_u32 s{sRot}, 10, s{th10}")
        S_aGU.setup(a, sRot, 10, sTmp)
        a(f"s_lshr_b32 s{sRot}, s{sR}, 4\ns_mul_i32 s{sRot}, s{sRot}, {C.rot_qk}\ns_sub_u32 s{thq}, 10, s{sRot}")
        for S_ in (S_aQK, S_wQK): S_.setup(a, sRot, 10, sTmp)
        a(f"""
        s_and_b32 s{wDN}, s{sR}, 7
        s_mul_i32 s{wDN}, s{wDN}, 245760
        s_add_u32 s{wDN}, s{wDN}, s{s5}
        s_add_u32 s{wDN}, s{wDN}, {WS_WTD}
        s_lshr_b32 s{sRot}, s{sR}, 3
        s_mul_i32 s{sRot}, s{sRot}, {C.rot_dn}
        s_sub_u32 s{th12}, 12, s{sRot}
        """)
        S_wDN.setup(a, sRot, 12, sTmp)
    G_ = [None, None]
    def lin(S_, dst, dfn, bits):
        def f(c, i0, k):
            if bits == "sc1":
                G_[0].need(span(64*c, 64*c + 63, 80, 2) if C.gran else 0xffff)
                if G_[1] is not None: stamp(a, G_[1]); G_[1] = None
            S_.sel(a, c, sSel)
            lin_dma(a, 8, sSel, c*S_.stride + 1024*i0, dst, dfn(c) + 1024*i0, k, bits)
        return f
    def pf(kind, ep, st, rot):
        def f():
            a(f"s_lshr_b32 s{sTmp}, s{sR}, 4\ns_mul_i32 s{sTmp}, s{sTmp}, {4 if rot else 0}")
            G_[0] = gate_local(a, kind, ep, 1, 2, sTmp, sleep=C.psleep); G_[1] = st
        return f
    def emitWQ(c, i0, k):
        S_wQK.sel(a, c, sSel)
        for i in range(i0, i0 + k):
            a(f"s_add_u32 m0, s{s4}, {qkW(c) + 1024*i}\ns_add_u32 s{sTmp}, s{sSel}, {c*64*3840 + i*4*3840}")
            a(f"buffer_load_dwordx4 v6, {R(R_WQ)}, s{sTmp} offen {'nt' if C.nt_qk else ''} lds")
    rA = lambda c: (c % 4) * 16384
    full = lambda c: G_[0].need(0xffff) if c == 1 else None
    reg = lambda f, sz: (lambda c: (f(c), f(c) + sz))
    gu = Phase("gu", 10, 4, 6, lin(S_aGU, s4, rA, "sc1"), lin(S_wGU, s6, guW, "nt" if C.nt_gu else ""), reg(rA, 16384), reg(guW, 24576), pf("gu", 3, 21, C.rot_gu), C.bud_gu, dbg=(C.dbg == 3), after_bar=full)
    dn = Phase("dn", 12, 0, 5, None, lin(S_wDN, s5, dnW, "nt" if C.nt_dn else ""), None, reg(dnW, 20480), None, C.bud_dn, lag=2, early=C.dn_early, dbg=(C.dbg == 4))
    qk = Phase("qk", 10, 4, 4, lin(S_aQK, s4, rA, "sc1"), emitWQ, reg(rA, 16384), reg(qkW, 16384), pf("gu", 5, 17, C.rot_qk), C.bud_qk, early=C.qk_early, dbg=(C.dbg == 2), after_bar=full)
    L = Loader(a)
    L.live["wo"] = (0, 102400)
    pn = L.pre(gu, 0, C.gu_e)
    rest()
    a("s_barrier")
    L.live.pop("wo")
    pn = L.pre(gu, pn, C.gu_e2)
    pn = L.run(gu, dn, pn); stamp(a, 22); L.end(gu); pn = L.pre(dn, pn, C.dn_e)
    pn = L.run(dn, qk, pn); stamp(a, 14); L.end(dn)
    a(f"s_cmp_lg_u32 s{sL}, 0\ns_cbranch_scc1 {end_label}")
    a(f"s_and_b32 s{sTmp}, s{sR}, 15\ns_cmp_eq_u32 s{sTmp}, 15\ns_cbranch_scc1 {idle_label}")
    pn = L.pre(qk, pn, C.qk_e)
    L.run(qk, None, pn); stamp(a, 19); L.end(qk)

def build():
    a = Asm()
    K = NAME + "_kernel"
    t = T
    a(f".globl {K}\n.p2align 8\n.type {K},@function")
    a.label(K)
    a(f"""
    s_load_dwordx16 s[16:31], s[0:1], 0
    s_load_dwordx4 s[32:35], s[0:1], 64
    s_cmp_ge_u32 s2, 256
    s_cbranch_scc1 L_exit
    s_and_b32 s{sG}, s2, 7
    s_lshr_b32 s{sR}, s2, 3
    v_lshrrev_b32 v1, 6, v0
    v_and_b32 v0, 63, v0
    v_readfirstlane_b32 s{sW}, v1
    s_lshl_b32 s{sWG}, s{sG}, 5
    s_add_u32 s{sWG}, s{sWG}, s{sR}
    s_mov_b32 s{sL}, 0
    s_mov_b32 s{sLO}, 0
    s_mov_b32 s{sEP}, 0
    s_mov_b32 s{sTMO}, 0
    """)
    if C.stamp: a("v_mov_b32 v255, 0\nv_mov_b32 v254, 0\ns_memrealtime s[14:15]")
    stamp(a, 0)
    qkv_ids(a, t)
    a(f"s_cmp_lt_u32 s{sW}, 4\ns_cbranch_scc1 L_q1c\ns_cmp_eq_u32 s{t+1}, 15\ns_cbranch_scc1 L_q1c")
    qkv1_loader(a)
    a("s_branch L_q1done")
    a.label("L_q1c")
    a("s_waitcnt lgkmcnt(0)")
    srd(a, R_X, P_X, ACT)
    srd(a, R_WQ, P_WQKV, D*3*D*2)
    if C.q1pf:
        a(f"""
        s_cmp_lt_u32 s{sW}, 2
        s_cbranch_scc1 L_npf
        s_cmp_gt_u32 s{sW}, 3
        s_cbranch_scc1 L_npf
        s_lshl_b32 s{t+8}, s{sWG}, 1
        s_add_u32 s{t+8}, s{t+8}, s{sW}
        s_sub_u32 s{t+8}, s{t+8}, 2
        s_mul_i32 s{t+9}, s{t+8}, 4864
        s_mul_i32 s{t+8}, s{t+8}, 5120
        v_lshlrev_b32 v1, 7, v0
        s_mov_b32 exec_hi, 0xff
        buffer_load_dword v251, v1, {R(R_X)}, s{t+8} offen
        s_mov_b32 exec_hi, 0x3f
        buffer_load_dword v251, v1, {R(R_WQ)}, s{t+9} offen
        s_mov_b32 exec_hi, -1
        """)
        a.label("L_npf")
    other_srds(a)
    a(f"""
    s_cmp_lg_u32 s{sW}, 1
    s_cbranch_scc1 L_n1
    s_getpc_b64 s[{t+8}:{t+9}]
    """)
    a.label("L_pc")
    a(f"""
    s_sub_u32 s{t+8}, s{t+8}, L_pc-{K}
    s_subb_u32 s{t+9}, s{t+9}, 0
    s_and_b32 s{t+10}, s{sR}, 15
    s_lshl_b32 s{t+10}, s{t+10}, 13
    v_lshlrev_b32 v1, 7, v0
    v_add_u32 v1, s{t+10}, v1
    v_min_u32 v1, L_fast_end-{K}, v1
    global_load_dword v251, v1, s[{t+8}:{t+9}]
    """)
    a.label("L_n1")
    a(f"s_cmp_lg_u32 s{sW}, 0\ns_cbranch_scc1 L_n0")
    nonce_put(a)
    a.label("L_n0")
    a(f"s_cmp_eq_u32 s{t+1}, 15\ns_cbranch_scc1 L_q1idle")
    qkv_compute(a, True, "sc1")
    a("s_branch L_q1done")
    a.label("L_q1idle")
    qkv1_idle(a)
    a.label("L_q1done")
    a(f"s_cmp_eq_u32 s{sMODE}, 0\ns_cbranch_scc1 L_slow")
    tails = []
    for nm, SB in (("fast", ""), ("slow", "sc1")):
        a.label(f"L_{nm}")
        tails.append(phase_attn(a, SB, f"L_{nm}_ld"))
        proj_compute(a, False, SB, None)
        gu_compute(a, SB)
        proj_compute(a, True, SB, "L_end")
        qkv_ids(a, t)
        a(f"s_cmp_eq_u32 s{t+1}, 15\ns_cbranch_scc1 L_{nm}_idle")
        qkv_compute(a, False, SB)
        a(f"s_branch L_{nm}_next")
        a.label(f"L_{nm}_ld")
        loader_chain(a, SB, "L_end", f"L_{nm}_idle")
        a(f"s_branch L_{nm}_next")
        a.label(f"L_{nm}_idle")
        a("s_waitcnt vmcnt(0)\ns_barrier")
        a.label(f"L_{nm}_next")
        a(f"s_mov_b32 s{sL}, 1\ns_mov_b32 s{sLO}, {LSTRIDE}\ns_add_u32 s{sEP}, s{sEP}, 5\ns_mov_b32 s{R_WQ+2}, 0\ns_branch L_{nm}")
        if nm == "fast":
            a.label("L_end")
            if C.stamp:
                a("s_waitcnt vmcnt(0)")
                stamp(a, 16)
                a(f"""
                s_memrealtime s[10:11]
                s_waitcnt lgkmcnt(0)
                v_writelane_b32 v255, s14, 62
                v_writelane_b32 v255, s10, 63
                v_writelane_b32 v255, s{sTMO}, 61
                s_lshl_b32 s10, s2, 3
                s_add_u32 s10, s10, s{sW}
                s_lshl_b32 s10, s10, 8
                s_add_u32 s10, s10, {WS_STAMP}
                v_lshlrev_b32 v1, 2, v0
                v_add_u32 v1, s10, v1
                global_store_dword v1, v255, s[{P_WS}:{P_WS+1}]
                v_add_u32 v1, {1<<20}, v1
                global_store_dword v1, v254, s[{P_WS}:{P_WS+1}]
                """)
            a.label("L_exit")
            a("s_endpgm")
            a.label("L_fast_end")
    for f in tails: f()
    hdr = open("cdna_kernels/" + NAME + ".s.ref").read().split("; Override")[0]
    hdr += "; @launch grid=(256,1,1) block=(512,1,1) lds=163840\n"
    txt = hdr + '.amdgcn_target "amdgcn-amd-amdhsa--gfx950"\n.text\n' + a.text() + f'''.section .rodata,"a"
.p2align 6
.amdhsa_kernel {K}
  .amdhsa_next_free_vgpr 256
  .amdhsa_next_free_sgpr 102
  .amdhsa_accum_offset 256
  .amdhsa_group_segment_fixed_size 0
  .amdhsa_kernarg_size 80
  .amdhsa_user_sgpr_count 2
  .amdhsa_user_sgpr_kernarg_segment_ptr 1
  .amdhsa_system_sgpr_workgroup_id_x 1
.end_amdhsa_kernel
'''
    for p in check(a.lines): print("HAZARD", p)
    return txt

if __name__ == "__main__":
    out = sys.argv[1] if len(sys.argv) > 1 else "cdna_kernels/" + NAME + ".s"
    for kv in sys.argv[2:]:
        k, _, val = kv.partition("=")
        assert hasattr(C, k), k
        setattr(C, k, int(val) if val else True)
    open(out, "w").write(build())
    print("written", out)
```

```python
import sys, math, struct
sys.path.insert(0, "gen")
from asmlib import *

NAME = "interleave_layers__softmax_full_mha__glu_gated_reglu__prompt"
S, D, F, H, DH = 2048, 640, 1536, 32, 20
ACT = S * D * 2
HEADB = 81920
L_Q = 0
L_K = L_Q + ACT
L_V = L_K + ACT
L_O = L_V + ACT
L_X1 = L_O + ACT
L_X2 = L_X1 + ACT
L_H = L_X2 + ACT
L_ST1 = L_H + S * F * 2
L_ST2 = L_ST1 + S * 64
L_FG = L_ST2 + S * 64
LSTRIDE = L_FG + 32768
WS_WTO = 2 * LSTRIDE
WS_WTD = WS_WTO + D * D * 2
WS_WTG = WS_WTD + F * D * 2
WS_CSP = WS_WTG + 2 * F * D * 2
WS_CSG = WS_CSP + 10 * 12288
WS_CSQ = WS_CSG + 256 * 768
WS_FL = WS_CSQ + 256 * 512
WS_END = WS_FL + 8192
WS_SIZE = 268435456
WS_STAMP = 200 << 20
QSCALE = (DH ** -0.5) * math.log2(math.e)
def f32(x): return "0x%08x" % struct.unpack("<I", struct.pack("<f", x))[0]

P_X, P_WQKV, P_WO, P_BX, P_WG, P_WU, P_WD, P_OUT, P_DBG, P_WS = 16, 18, 20, 22, 24, 26, 28, 30, 32, 34
sL, sG, sR, sW, sLO, sEP, sTMO, sWG = 3, 4, 5, 6, 7, 8, 9, 13
R_WS, R_X, R_WQ, R_WG, R_WU, R_T = 36, 40, 44, 48, 52, 56
T = 60
WSR = f"s[{R_WS}:{R_WS+3}]"
def R(r): return f"s[{r}:{r+3}]"
SPIN = 200000

class Cfg:
    stamp = False
    dbg = 0
    look = 6
    gu_e = 12
    dn_e = 8
    qk_e = 8
    bud_gu = 10
    bud_dn = 5
    bud_qk = 6
    bud_q1 = 10
    dn_a = 3
    psleep = 1
    gran = 3
    nt_kv = 0
    nt_wo = 0
    nt_gu = 0
    nt_dn = 0
    nt_qk = 0
    htouch = 0
    warm = 0
    gu_e2 = 0
    wo_sets = 6
    q1pf = 1
    l2pf = 12
    rot = 0
    x_hit = 0
    tlb = 0
    rot_gu = 0
    rot_dn = 0
    rot_qk = 0
    dn_early = 99
    qk_early = 99
C = Cfg()

def stamp(a, i):
    if not C.stamp: return
    a(f"s_memtime s[10:11]\ns_mul_i32 s12, s{sL}, 24\ns_add_u32 m0, s12, {i}\ns_waitcnt lgkmcnt(0)\nv_writelane_b32 v255, s10, m0")
    if C.dbg == 7: a(f"s_memrealtime s[10:11]\ns_waitcnt lgkmcnt(0)\nv_writelane_b32 v254, s10, m0")

def dstamp(a, d, i):
    if C.stamp and C.dbg == d: a(f"s_memtime s[10:11]\ns_lshl_b32 s12, s{sL}, 5\ns_add_u32 m0, s12, {i}\ns_waitcnt lgkmcnt(0)\nv_writelane_b32 v254, s10, m0")

def srd(a, r, ptr, size):
    a(f"s_mov_b32 s{r}, s{ptr}\ns_mov_b32 s{r+1}, s{ptr+1}\ns_mov_b32 s{r+2}, {size}\ns_mov_b32 s{r+3}, 0x20000")

def interleave(a, mf, other):
    n = len(mf); k = 0
    for i, m in enumerate(mf):
        a(m)
        tgt = (len(other) * (i + 1) + n - 1) // n
        while k < tgt:
            a(other[k]); k += 1

def poll(a, vaddr, vtmp, soff, want, sleep=0, pre=False, wide=False):
    lp = a.uid("poll"); ok = a.uid("pollok")
    cnt = T + 22
    a(f"s_mov_b32 s{cnt}, s{sTMO}")
    if pre: a(f"s_branch {lp}c")
    a.label(lp)
    if wide: a(f"buffer_load_dwordx4 v[{vtmp}:{vtmp+3}], v{vaddr}, {WSR}, {soff} offen sc1")
    else: a(f"buffer_load_dword v{vtmp}, v{vaddr}, {WSR}, {soff} offen sc1")
    if pre: a.label(lp + "c")
    a(f"s_waitcnt vmcnt(0)")
    a(f"v_subrev_u32 v{vtmp}, {want}, v{vtmp}")
    if wide:
        for i in range(1, 4): a(f"v_subrev_u32 v{vtmp+i}, {want}, v{vtmp+i}\nv_max_u32 v{vtmp}, v{vtmp}, v{vtmp+i}")
    a(f"v_cmp_lt_u32 vcc, 15, v{vtmp}")
    a(f"s_cbranch_vccz {ok}")
    if sleep: a(f"s_sleep {sleep}")
    a(f"s_add_u32 s{cnt}, s{cnt}, 1\ns_cmp_lt_u32 s{cnt}, {SPIN}\ns_cbranch_scc1 {lp}")
    a(f"s_mov_b32 s{sTMO}, {SPIN}")
    a.label(ok)

def poll_local(a, kind, ep, va=1, vt=2, sleep=0):
    t = T + 20
    if kind == "wo":
        a(f"v_and_b32 v{va}, 31, v0\nv_lshlrev_b32 v{va}, 5, v{va}\ns_lshr_b32 s{t}, s{sR}, 3\ns_lshl_b32 s{t}, s{t}, 2\ns_add_u32 s{t}, s{t}, 16")
    elif kind == "gu":
        a(f"v_lshrrev_b32 v{va}, 2, v0\nv_lshlrev_b32 v{va}, 5, v{va}\nv_and_b32 v{vt}, 3, v0\nv_lshl_add_u32 v{va}, v{vt}, 2, v{va}")
        a(f"s_lshr_b32 s{t}, s{sR}, 4\ns_lshl_b32 s{t}, s{t}, 9")
    elif kind == "down":
        a(f"v_bfe_u32 v{va}, v0, 1, 4\nv_lshlrev_b32 v{va}, 5, v{va}\nv_and_b32 v{vt}, 1, v0\nv_lshl_add_u32 v{va}, v{vt}, 3, v{va}")
        a(f"s_lshr_b32 s{t}, s{sR}, 4\ns_lshl_b32 s{t}, s{t}, 9\ns_bfe_u32 s{t+1}, s{sR}, 0x10003\ns_lshl_b32 s{t+1}, s{t+1}, 2\ns_add_u32 s{t}, s{t}, s{t+1}")
    elif kind == "attn":
        a(f"""
        v_bfe_u32 v{va}, v0, 2, 1
        v_mul_u32_u24 v{va}, 19, v{va}
        s_mul_i32 s{t}, s{sR}, 20
        v_add_u32 v{va}, s{t}, v{va}
        v_lshrrev_b32 v{va}, 7, v{va}
        v_lshrrev_b32 v{vt}, 4, v0
        v_min_u32 v{vt}, 2, v{vt}
        v_mad_u32_u24 v{va}, v{vt}, 5, v{va}
        v_bfe_u32 v{vt}, v0, 3, 1
        v_lshl_add_u32 v{va}, v{vt}, 4, v{va}
        v_lshlrev_b32 v{va}, 5, v{va}
        v_and_b32 v{vt}, 3, v0
        v_lshl_add_u32 v{va}, v{vt}, 2, v{va}
        s_mov_b32 s{t}, 0
        """)
    a(f"s_lshl_b32 s{t+1}, s{sG}, 10\ns_add_u32 s{t}, s{t}, s{t+1}\ns_add_u32 s{t}, s{t}, {WS_FL}\ns_add_u32 s{t+1}, s{sEP}, {ep}")
    poll(a, va, vt, f"s{t}", f"s{t+1}", sleep=sleep)

sNR, sGO, sGW = 92, 94, 95
class Gate:
    def __init__(self, a, va, vt, fold=False, sleep=0):
        self.a, self.va, self.vt, self.fold, self.sleep = a, va, vt, fold, sleep
        self.ok = 0
    def load(self): self.a(f"buffer_load_dword v{self.vt}, v{self.va}, {WSR}, s{sGO} offen sc1")
    def upd(self):
        self.a(f"s_waitcnt vmcnt(0)\nv_subrev_u32 v{self.vt}, s{sGW}, v{self.vt}\nv_cmp_lt_u32 s[{sNR}:{sNR+1}], 15, v{self.vt}")
        if self.fold: self.a(f"s_or_b32 s{sNR}, s{sNR}, s{sNR+1}")
    def reset(self): self.a(f"s_mov_b32 s{sNR}, -1")
    def need(self, mask):
        a = self.a
        mask &= ~self.ok
        if not mask: return
        self.ok |= mask
        lp = a.uid("gt"); cnt = T + 22
        a(f"s_and_b32 s{cnt}, s{sNR}, {hex(mask)}\ns_cbranch_scc0 {lp}k\ns_mov_b32 s{cnt}, s{sTMO}")
        a.label(lp)
        self.load(); self.upd()
        a(f"s_and_b32 s{cnt+1}, s{sNR}, {hex(mask)}\ns_cbranch_scc0 {lp}k")
        if self.sleep: a(f"s_sleep {self.sleep}")
        a(f"s_add_u32 s{cnt}, s{cnt}, 1\ns_cmp_lt_u32 s{cnt}, {SPIN}\ns_cbranch_scc1 {lp}\ns_mov_b32 s{sTMO}, {SPIN}")
        a.label(lp + "k")
def span(lo, hi, w, bits):
    m = 0
    for p in range(lo // w, hi // w + 1): m |= ((1 << bits) - 1) << (bits * p)
    return m
def gate_local(a, kind, ep, va, vt, sRotCt=None, sleep=0):
    t = T + 20
    if kind == "wo":
        a(f"v_and_b32 v{va}, 31, v0\nv_lshlrev_b32 v{va}, 5, v{va}\ns_lshr_b32 s{sGO}, s{sR}, 3\ns_lshl_b32 s{sGO}, s{sGO}, 2\ns_add_u32 s{sGO}, s{sGO}, 16")
    elif kind == "down":
        a(f"v_lshrrev_b32 v{va}, 1, v0\nv_add_u32 v{va}, s{sRotCt}, v{va}\nv_and_b32 v{va}, 15, v{va}\nv_lshlrev_b32 v{va}, 5, v{va}\nv_and_b32 v{vt}, 1, v0\nv_lshl_add_u32 v{va}, v{vt}, 3, v{va}")
        a(f"s_lshr_b32 s{sGO}, s{sR}, 4\ns_lshl_b32 s{sGO}, s{sGO}, 9\ns_bfe_u32 s{t+1}, s{sR}, 0x10003\ns_lshl_b32 s{t+1}, s{t+1}, 2\ns_add_u32 s{sGO}, s{sGO}, s{t+1}")
    elif kind == "gu":
        a(f"v_lshrrev_b32 v{va}, 1, v0\nv_add_u32 v{va}, s{sRotCt}, v{va}\nv_and_b32 v{va}, 7, v{va}\nv_lshlrev_b32 v{va}, 5, v{va}\nv_and_b32 v{vt}, 1, v0\nv_lshl_add_u32 v{va}, v{vt}, 2, v{va}")
        a(f"s_lshr_b32 s{sGO}, s{sR}, 4\ns_lshl_b32 s{sGO}, s{sGO}, 9\ns_bfe_u32 s{t+1}, s{sW}, 0x10001\ns_lshl_b32 s{t+1}, s{t+1}, 8\ns_add_u32 s{sGO}, s{sGO}, s{t+1}")
        a(f"s_and_b32 s{t+1}, s{sW}, 1\ns_lshl_b32 s{t+1}, s{t+1}, 3\ns_add_u32 s{sGO}, s{sGO}, s{t+1}")
    a(f"s_lshl_b32 s{t+1}, s{sG}, 10\ns_add_u32 s{sGO}, s{sGO}, s{t+1}\ns_add_u32 s{sGO}, s{sGO}, {WS_FL}\ns_add_u32 s{sGW}, s{sEP}, {ep}")
    g = Gate(a, va, vt, sleep=sleep); g.reset()
    return g

def flag_setup(a, ep):
    t = T + 20
    a(f"s_lshl_b32 s{t}, s{sWG}, 3\ns_add_u32 s{t}, s{t}, s{sW}\ns_lshl_b32 s{t}, s{t}, 2\ns_add_u32 s{t}, s{t}, {WS_FL}\ns_add_u32 s{t+1}, s{sEP}, {ep}")
    a(f"v_mov_b32 v1, 0\nv_mov_b32 v2, s{t+1}")
def flag_store(a, SB, s=T+20):
    a(f"s_mov_b64 exec, 1\nbuffer_store_dword v2, v1, {WSR}, s{s} offen {SB}\ns_mov_b64 exec, -1")
def publish_local(a, ep, SB):
    flag_setup(a, ep)
    a("s_waitcnt vmcnt(0)")
    flag_store(a, SB)

def row_stats(a, vst, vmean, vrstd):
    for i in range(1, 8):
        a(f"v_add_f32 v{vst}, v{vst}, v{vst+2*i}\nv_add_f32 v{vst+1}, v{vst+1}, v{vst+2*i+1}")
    finish_stats(a, vst, vst + 1, vmean, vrstd)

def finish_stats(a, vs, vq, vmean, vrstd):
    a(f"v_mul_f32 v{vmean}, {f32(1.0/D)}, v{vs}")
    a(f"v_mul_f32 v{vq}, {f32(1.0/D)}, v{vq}")
    a(f"v_fma_f32 v{vq}, -v{vmean}, v{vmean}, v{vq}")
    a(f"v_max_f32 v{vq}, 0, v{vq}")
    a(f"v_add_f32 v{vq}, {f32(1e-5)}, v{vq}")
    a(f"v_rsq_f32 v{vrstd}, v{vq}")
    a("s_nop 0")

def lin_dma(a, vaddr, src_s, src_off, dst_s, dst_off, npieces, bits="", rsrc=WSR, tmp=T+19):
    i = 0
    while i < npieces:
        k = min(4, npieces - i)
        a(f"s_add_u32 m0, s{dst_s}, {dst_off + 1024*i}")
        a(f"s_add_u32 s{tmp}, s{src_s}, {src_off + 1024*i}")
        for j in range(k):
            a(f"buffer_load_dwordx4 v{vaddr}, {rsrc}, s{tmp} offen offset:{1024*j} {bits} lds")
        i += k
    return npieces


def states(x):
    return int(x.split()[1]) + 1 if x.startswith("s_nop") else 1

def gemm_unrolled(a, n, P, nr, reads, mfma, groups, inserts, fix, fix_from, epi, st_end):
    seq = []
    def add(ms, fill, pre=()):
        k = 0
        for i, (kk, tl) in enumerate(ms):
            tgt = (len(fill) * (i + 1) + len(ms) - 1) // len(ms)
            seq.append([list(pre) if i == 0 else [], mfma(kk, tl), tl, list(fill[k:tgt])]); k = tgt
    step = lambda kk: [(kk, tl) for tl in range(P)]
    a("s_barrier")
    for x in reads(0, 0) + reads(0, 1): a(x)
    w = f"s_waitcnt lgkmcnt({nr})"
    for c in range(n - 1):
        add(step(0), reads(c, 2), [w])
        add(step(1), reads(c, 3), [w])
        add(step(2), [], [w])
        seq[-2][3] += ["s_waitcnt lgkmcnt(0)"]; seq[-1][3] += ["s_barrier"]
        add(step(3), reads(c + 1, 0) + reads(c + 1, 1))
    nmain = len(seq)
    for i0, ins in inserts.items():
        i = i0; ins = list(ins)
        while ins:
            room = 4 - sum(states(x) for x in seq[i][3]) - len(seq[i+1][0])
            if ins[0].startswith("s_mov_b32 exec") and room < 3: room = 0
            while room > 0 and ins and "s_barrier" not in seq[i][3]:
                x = ins.pop(0); seq[i][3].append(x); room -= states(x)
            i += 1

        end = fix_from if i0 < fix_from else nmain
        assert i <= end
        if any(x.startswith("ds_") for x in inserts[i0]): assert any("s_waitcnt lgkmcnt(0)" in seq[j][3] for j in range(i, end)), (i, end)
    todo = {tl: list(fix(tl)) for tl in range(P)}
    used = lambda g: sum(states(x) for x in seq[g][3]) + len(seq[g+1][0])
    g = fix_from + 2
    while any(todo.values()):
        assert g + 2 < nmain, "no room for fix"
        if used(g) < 5 and "s_barrier" not in seq[g][3]:
            for back in range(P - 2, 1, -1):
                tl = seq[g - back][2]
                if not todo[tl] or g - back < fix_from: continue
                have = sum(used(x) + 1 for x in range(g - back, g)) + sum(states(x) for x in seq[g][3])
                room = sum(max(0, 5 - used(x)) for x in range(g - back, g))
                if have + room < 12: continue
                for x in range(g - back, g):
                    k = min(5 - used(x), 12 - have)
                    if k > 0: seq[x][3].append(f"s_nop {k-1}"); have += k
                while used(g) < 5 and todo[tl]: seq[g][3].append(todo[tl].pop(0))
            if used(g + 1) < 1: seq[g + 1][3].append("s_nop 0")
        g += 1

    c = n - 1
    g0 = groups[0]
    seq[-1][3] += reads(c, 2)
    add([(kk, tl) for kk in (0, 1) for tl in g0], reads(c, 3), [w])
    add([(kk, tl) for kk in (2, 3) for tl in g0], [], ["s_waitcnt lgkmcnt(0)"])
    seq[-len(g0)*2][3].append("s_barrier")
    for gi in range(1, len(groups)):
        ms = [(kk, tl) for kk in range(4) for tl in groups[gi]]
        if gi == 1:
            seq[-1][3].append("s_nop 4")
            add(ms[:1], ["s_nop 4"]); add(ms[1:], epi(gi - 1, False))
        else: add(ms, ["s_nop 0"] + epi(gi - 1, False))
    for pre, m, tl, post in seq:
        for x in pre: a(x)
        a(m)
        for x in post: a(x)
    stamp(a, st_end)
    a.nop(3)
    for x in epi(len(groups) - 1, True): a(x)

class Src:
    def __init__(self, sB, sB1, sThr, stride): self.__dict__.update(locals())
    def setup(self, a, sRot, n, tmp):
        a(f"s_mul_i32 s{tmp}, s{sRot}, {self.stride}\ns_add_u32 s{self.sB}, s{self.sB}, s{tmp}\ns_sub_u32 s{self.sB1}, s{self.sB}, {n*self.stride}")
    def sel(self, a, c, dst):
        a(f"s_cmp_gt_u32 s{self.sThr}, {c}\ns_cselect_b32 s{dst}, s{self.sB}, s{self.sB1}")

class Phase:
    def __init__(self, name, n, npa, npw, emitA, emitW, regA, regW, pollfn, budget, lag=1, after_bar=None, dbg=False, early=99):
        self.__dict__.update(locals())

class Loader:
    def __init__(self, a):
        self.a = a; self.q = []; self.live = {}; self.waitfn = None
    def free(self, reg, key):
        return key in self.live or all(reg[1] <= lo or hi <= reg[0] for lo, hi in self.live.values())
    def can(self, ph, kind, c):
        return self.free((ph.regA if kind == "A" else ph.regW)(c), (ph.name, kind, c))
    def issue(self, ph, kind, c, i0, k):
        assert self.can(ph, kind, c)
        self.live[(ph.name, kind, c)] = (ph.regA if kind == "A" else ph.regW)(c)
        (ph.emitA if kind == "A" else ph.emitW)(c, i0, k)
        self.q += [(ph.name, kind, c)] * k
    def release(self, ph, c):
        for k in "AW": self.live.pop((ph.name, k, c), None)
    def wait(self, tags):
        last = -1
        for i, t in enumerate(self.q):
            if t in tags: last = i
        if last >= 0:
            n = len(self.q) - 1 - last
            assert n < 64
            self.q = self.q[last+1:]
            if self.waitfn: self.waitfn(n)
            else: self.a(f"s_waitcnt vmcnt({n})")
    def pre(self, ph, pw, cnt):
        done = 0
        while pw < ph.n * ph.npw and done < cnt and self.can(ph, "W", pw // ph.npw):
            k = min(4, ph.npw - pw % ph.npw, cnt - done)
            self.issue(ph, "W", pw // ph.npw, pw % ph.npw, k); pw += k; done += k
        return pw
    def run(self, ph, nxt, pw=0, after_poll=None, tail=None, waitfn=None):
        a = self.a; n = ph.n
        pa = 0; pn = 0
        if ph.pollfn: ph.pollfn()
        if after_poll: after_poll()
        for c in range(n):
            done = 0
            while True:
                needed = pa < (c + 1) * ph.npa or pw < (c + 1) * ph.npw
                if not needed:
                    beyond = 0
                    for t in reversed(self.q):
                        if t[0] == ph.name and t[2] <= c: break
                        beyond += 1
                    if beyond >= C.look and (done >= ph.budget or c == 0): break
                ca = pa // ph.npa if ph.npa else n; cw = pw // ph.npw
                okA = ca < n and self.can(ph, "A", ca)
                okW = cw < n and self.can(ph, "W", cw)
                if okW and (cw <= ca or not okA):
                    k = ph.npw - pw % ph.npw
                    if not needed: k = min(2, k)
                    self.issue(ph, "W", cw, pw % ph.npw, k); pw += k
                elif okA:
                    k = ph.npa - pa % ph.npa
                    if not needed: k = min(2, k)
                    self.issue(ph, "A", ca, pa % ph.npa, k); pa += k
                elif nxt and ca == n and cw == n and pn < nxt.early and self.can(nxt, "W", pn // nxt.npw):
                    k = min(2, nxt.npw - pn % nxt.npw)
                    self.issue(nxt, "W", pn // nxt.npw, pn % nxt.npw, k); pn += k
                else:
                    assert not needed
                    break
                done += k
            if tail and pa == n * ph.npa and pw == n * ph.npw:
                tail(); tail = None; self.waitfn = waitfn
            if ph.after_bar and c > 0: ph.after_bar(c - 1)
            self.wait({(ph.name, "A", c), (ph.name, "W", c)})
            if ph.dbg and C.stamp: a(f"s_memtime s[10:11]\ns_waitcnt lgkmcnt(0)\nv_writelane_b32 v254, s10, {2*c}")
            a("s_barrier")
            if ph.dbg and C.stamp: a(f"s_memtime s[10:11]\ns_waitcnt lgkmcnt(0)\nv_writelane_b32 v254, s10, {2*c+1}")
            self.release(ph, c - ph.lag)
        if ph.after_bar: ph.after_bar(n - 1)
        if nxt: pn = self.pre(nxt, pn, min(ph.budget, max(0, nxt.early - pn)))
        return pn
    def end(self, ph):
        self.a("s_barrier")
        for c in range(ph.n): self.release(ph, c)

Q1_TAB = 131072 + 26624
Q1_NON = Q1_TAB + 1024
WB = 65536
def guW(c): return WB + ((3 - c) % 4) * 24576
def dnW(c): return ((c + 2) % 8) * 20480
def qkW(c): return WB + ((c + 4) % 6) * 16384

PSCR = 131072
PV = 180
def projjob_issue(a, sJob, sScr, t, loads=True):
    a(f"""
    s_and_b32 s{t+2}, s{sJob}, 7
    s_lshr_b32 s{t+3}, s{sJob}, 3
    s_cmp_lt_u32 s{t+3}, 20
    s_cselect_b32 s{R_T}, s{P_WO}, s{P_WD}
    s_cselect_b32 s{R_T+1}, s{P_WO+1}, s{P_WD+1}
    s_mov_b32 s{R_T+2}, {F*D*2}
    s_cselect_b32 s{R_T+2}, {D*D*2}, s{R_T+2}
    s_mov_b32 s{R_T+3}, 0x20000
    s_cselect_b32 s{t+4}, 0, 20
    s_cselect_b32 s{t+5}, 20, 48
    s_mov_b32 s{t+6}, {WS_WTD}
    s_cselect_b32 s{t+6}, {WS_WTO}, s{t+6}
    s_sub_u32 s{t+3}, s{t+3}, s{t+4}
    s_mul_i32 s{t+5}, s{t+5}, s{t+2}
    s_add_u32 s{t+5}, s{t+5}, s{t+3}
    s_mul_i32 s{t+5}, s{t+5}, 5120
    s_add_u32 s{t+6}, s{t+6}, s{t+5}
    s_mul_i32 s{t+3}, s{t+3}, {32*1280}
    s_mul_i32 s{t+2}, s{t+2}, 160
    s_add_u32 s{t+3}, s{t+3}, s{t+2}
    s_movk_i32 s{t+4}, 6554
    """)
    x, y = PV, PV + 1
    for i in range(5 if loads else 0):
        a(f"""
        v_add_u32 v{x}, {64*i}, v0
        v_mul_u32_u24 v{y}, s{t+4}, v{x}
        v_lshrrev_b32 v{y}, 16, v{y}
        v_mad_i32_i24 v{x}, v{y}, -10, v{x}
        v_mul_u32_u24 v{y}, 1280, v{y}
        v_lshl_add_u32 v{x}, v{x}, 4, v{y}
        s_add_u32 m0, s{sScr}, {1024*i}
        s_nop 0
        buffer_load_dwordx4 v{x}, {R(R_T)}, s{t+3} offen lds
        """)
def projjob_finish(a, sScr, t):
    x, y, z, d0 = PV, PV + 1, PV + 2, PV + 4
    a(f"""
    v_lshrrev_b32 v{x}, 4, v0
    v_bfe_u32 v{y}, v0, 2, 2
    v_lshl_add_u32 v{x}, v{x}, 3, v{y}
    v_mul_u32_u24 v{x}, 160, v{x}
    v_add_u32 v{x}, s{sScr}, v{x}
    v_and_b32 v{y}, 3, v0
    v_lshl_add_u32 v{z}, v{y}, 3, v{x}
    v_lshl_add_u32 v{y}, v{y}, 4, v{x}
    """)
    for jn in range(5):
        for j in range(2):
            d = d0 + 4*jn + 2*j
            if jn < 4: a(f"ds_read_b64_tr_b16 v[{d}:{d+1}], v{y} offset:{640*j + 64*(jn>>1) + 8*(jn&1)}")
            else: a(f"ds_read_b64_tr_b16 v[{d}:{d+1}], v{z} offset:{640*j + 128}")
    a(f"s_add_u32 s{t+5}, s{t+6}, 4096\ns_waitcnt lgkmcnt(0)")
    for jn in range(5):
        d = d0 + 4*jn
        a(f"buffer_store_dwordx4 v[{d}:{d+3}], v5, {WSR}, s{t+6 if jn < 4 else t+5} offen offset:{1024*(jn&3)} sc1")

def gujob_issue(a, sJob, t, loads=True):
    x, y = PV, PV + 1
    a(f"""
    s_mul_i32 s{t+2}, s{sJob}, 2731
    s_lshr_b32 s{t+2}, s{t+2}, 16
    s_mul_i32 s{t+3}, s{t+2}, 24
    s_sub_u32 s{t+3}, s{sJob}, s{t+3}
    s_mul_i32 s{t+4}, s{t+2}, {64*F*2}
    s_lshl_b32 s{t+5}, s{t+3}, 7
    s_add_u32 s{t+4}, s{t+4}, s{t+5}
    v_lshrrev_b32 v{x}, 3, v0
    v_mul_u32_u24 v{x}, {F*2}, v{x}
    v_and_b32 v{y}, 7, v0
    v_lshl_add_u32 v{x}, v{y}, 4, v{x}
    """)
    for i in range(8 if loads else 0):
        for u in range(2):
            a(f"s_mov_b32 m0, {PSCR + 8192*u + 1024*i}\ns_add_u32 s{t+5}, s{t+4}, {i*8*F*2}")
            a(f"buffer_load_dwordx4 v{x}, {R(R_WU if u else R_WG)}, s{t+5} offen lds")
def gujob_finish(a, t):
    x, y, z = PV, PV + 1, PV + 2
    ONE, FRG, CS = PV + 4, PV + 8, PV + 40
    a(f"""
    v_bfe_u32 v{x}, v0, 2, 2
    v_lshl_add_u32 v{x}, v14, 3, v{x}
    v_lshlrev_b32 v{x}, 7, v{x}
    v_and_b32 v{y}, 1, v0
    v_lshl_add_u32 v{x}, v{y}, 4, v{x}
    v_bfe_u32 v{y}, v0, 1, 1
    v_lshl_add_u32 v{x}, v{y}, 3, v{x}
    v_bfe_u32 v{y}, v0, 4, 1
    v_lshl_add_u32 v{x}, v{y}, 13, v{x}
    v_add_u32 v{x}, {PSCR}, v{x}
    v_lshlrev_b32 v{z}, 6, v14
    s_mul_i32 s{t+6}, s{t+2}, 12288
    s_lshl_b32 s{t+5}, s{t+3}, 9
    s_add_u32 s{t+6}, s{t+6}, s{t+5}
    s_add_u32 s{t+6}, s{t+6}, {WS_CSP}
    """)
    for i in range(4): a(f"v_mov_b32 v{ONE+i}, 0x3f803f80")
    for tt in range(4):
        f0 = FRG + 16*(tt & 1)
        for kk in range(4):
            for j in range(2):
                d = f0 + 4*kk + 2*j
                a(f"ds_read_b64_tr_b16 v[{d}:{d+1}], v{x} offset:{128*(16*kk+4*j) + 32*tt}")
        a(f"""
        s_lshl_b32 s{t+4}, s{t+3}, 2
        s_add_u32 s{t+4}, s{t+4}, {tt}
        s_mul_i32 s{t+5}, s{t+4}, 43
        s_lshr_b32 s{t+5}, s{t+5}, 8
        s_mul_i32 s{t+5}, s{t+5}, 234
        s_add_u32 s{t+4}, s{t+4}, s{t+5}
        s_mul_i32 s{t+5}, s{t+2}, 24
        s_add_u32 s{t+4}, s{t+4}, s{t+5}
        s_lshl_b32 s{t+4}, s{t+4}, 10
        s_add_u32 s{t+4}, s{t+4}, {WS_WTG}
        s_waitcnt lgkmcnt(0)
        """)
        for kk in range(4):
            a(f"v_mfma_f32_32x32x16_bf16 {v(CS,16)}, {v(f0+4*kk,4)}, {v(ONE,4)}, {v(CS,16) if kk else 0}")
        for kk in range(4):
            d = f0 + 4*kk
            a(f"buffer_store_dwordx4 v[{d}:{d+3}], v5, {WSR}, s{t+4} offen sc1\ns_add_u32 s{t+4}, s{t+4}, 6144")
        a("s_mov_b32 exec_lo, 1\ns_mov_b32 exec_hi, 1\ns_nop 1")
        for q in range(4):
            a(f"buffer_store_dwordx4 v[{CS+4*q}:{CS+4*q+3}], v{z}, {WSR}, s{t+6} offen offset:{128*tt+16*q} sc1")
        a("s_mov_b64 exec, -1")

def prep(a, stage):
    tj = 84; sJob, sScr = tj, tj + 1
    lg = a.uid("pg"); le = a.uid("pe")
    a(f"""
    s_lshr_b32 s{sScr}, s{sWG}, 4
    s_sub_u32 s{sJob}, s{sWG}, s{sScr}
    s_and_b32 s{sScr}, s{sW}, 3
    s_cmp_eq_u32 s{sScr}, 0
    s_cbranch_scc1 {lg}
    s_cmp_eq_u32 s{sScr}, 3
    s_cbranch_scc1 {le}
    s_sub_u32 s{sScr}, s{sScr}, 1
    s_mul_i32 s{tj+2}, s{sScr}, 240
    s_add_u32 s{sJob}, s{sJob}, s{tj+2}
    s_mul_i32 s{sScr}, s{sScr}, 5120
    s_add_u32 s{sScr}, s{sScr}, {PSCR + 16384}
    """)
    projjob_issue(a, sJob, sScr, tj, stage == 0)
    if stage: projjob_finish(a, sScr, tj)
    a(f"s_branch {le}")
    a.label(lg)
    gujob_issue(a, sJob, tj, stage == 0)
    if stage: gujob_finish(a, tj)
    a.label(le)

def nonce_put(a):
    t = T + 8
    nz = a.uid("non0")
    a(f"""
    s_cmp_lg_u32 s2, 0
    s_cbranch_scc1 {nz}
    s_memrealtime s[{t}:{t+1}]
    v_mov_b32 v1, 0
    s_waitcnt lgkmcnt(0)
    s_or_b32 s{t+2}, s{t}, 0x80000000
    v_mov_b32 v2, s{t+2}
    s_mov_b64 exec, 1
    global_store_dword v1, v2, s[{P_DBG}:{P_DBG+1}] sc1
    s_mov_b64 exec, -1
    """)
    a.label(nz)
    a(f"""
    s_lshl_b32 s{t+3}, s{sWG}, 5
    s_add_u32 s{t+3}, s{t+3}, {WS_FL}
    s_lshl_b32 s{t+4}, s{sWG}, 7
    s_add_u32 s{t+4}, s{t+4}, {L_FG}
    s_add_u32 s{t+5}, s{t+4}, {LSTRIDE}
    v_lshlrev_b32 v1, 2, v0
    v_mov_b32 v3, 0
    s_mov_b64 exec, 0xff
    buffer_store_dword v3, v1, {WSR}, s{t+3} offen sc1
    s_mov_b64 exec, 0x1ff
    buffer_store_dword v3, v1, {WSR}, s{t+4} offen sc1
    buffer_store_dword v3, v1, {WSR}, s{t+5} offen sc1
    s_mov_b64 exec, -1
    """)

def nonce_issue(a, v2, v3):
    a(f"v_mov_b32 v{v3}, 0\nglobal_load_dword v{v2}, v{v3}, s[{P_DBG}:{P_DBG+1}] sc1")
def nonce_get(a, v1, v2, v3):
    t = T + 14
    lp = a.uid("non"); ok = a.uid("nonok")
    a(f"s_mov_b32 s{t+6}, 0\nv_mov_b32 v{v3}, 0\ns_lshl_b32 s{t+4}, s{sWG}, 7\ns_add_u32 s{t+4}, s{t+4}, {L_FG}\ns_branch {lp}c")
    a.label(lp)
    a(f"global_load_dword v{v2}, v{v3}, s[{P_DBG}:{P_DBG+1}] sc1")
    a.label(lp + "c")
    a(f"""
    s_waitcnt vmcnt(0)
    v_cmp_eq_u32 vcc, 0, v{v2}
    s_cbranch_vccz {ok}
    s_sleep 4
    s_add_u32 s{t+6}, s{t+6}, 1
    s_cmp_lt_u32 s{t+6}, {SPIN}
    s_cbranch_scc1 {lp}
    s_mov_b32 s{sTMO}, {SPIN}
    """)
    a.label(ok)
    a(f"""
    v_readfirstlane_b32 s{sEP}, v{v2}
    s_getreg_b32 s{t+6}, hwreg(HW_REG_XCC_ID, 0, 4)
    v_mov_b32 v{v1}, {Q1_NON}
    ds_write_b32 v{v1}, v{v2}
    v_add_u32 v{v2}, s{t+6}, v{v2}
    s_mov_b64 exec, 1
    buffer_store_dword v{v2}, v{v3}, {WSR}, s{t+4} offen offset:32 sc1
    s_mov_b64 exec, -1
    s_waitcnt lgkmcnt(0)
    """)

def census(a, va, vt, issue):
    t = T + 20
    a(f"""
    v_and_b32 v{va}, 31, v0
    v_lshlrev_b32 v{va}, 7, v{va}
    s_lshl_b32 s{t}, s{sG}, 12
    s_add_u32 s{t}, s{t}, {L_FG + 32}
    """)
    if issue:
        a(f"buffer_load_dword v{vt}, v{va}, {WSR}, s{t} offen sc1")
        return
    poll(a, va, vt, f"s{t}", f"s{sEP}", sleep=4, pre=True)
    a(f"""
    s_getreg_b32 s{t}, hwreg(HW_REG_XCC_ID, 0, 4)
    v_cmp_ne_u32 vcc, s{t}, v{vt}
    s_cmp_eq_u64 vcc, 0
    s_cselect_b32 s{t}, 1, 0
    v_mov_b32 v{va}, {Q1_NON}
    v_mov_b32 v{vt}, s{t}
    ds_write_b32 v{va}, v{vt} offset:4
    s_waitcnt lgkmcnt(0)
    """)

sMODE = 14 - 14 + 98
def read_nonce_mode(a):
    a(f"v_mov_b32 v1, {Q1_NON}\nds_read_b64 v[2:3], v1\ns_waitcnt lgkmcnt(0)\nv_readfirstlane_b32 s{sEP}, v2\nv_readfirstlane_b32 s{sMODE}, v3")

def qkv_ids(a, t):
    a(f"s_lshr_b32 s{t}, s{sWG}, 4\ns_and_b32 s{t+1}, s{sR}, 15")

def qkv_compute(a, first, SB):
    t = T
    sRT, sCT, sTY, sC0 = t, t+1, t+2, t+3
    LQ = 0 if first else LSTRIDE
    sWM, sWN = t+5, t+6
    a(f"""
    s_mul_i32 s{sTY}, s{sCT}, 52
    s_lshr_b32 s{sTY}, s{sTY}, 8
    s_mul_i32 s{sC0}, s{sTY}, 5
    s_sub_u32 s{sC0}, s{sCT}, s{sC0}
    s_lshl_b32 s{sC0}, s{sC0}, 7
    s_and_b32 s{sWM}, s{sW}, 1
    s_lshr_b32 s{sWN}, s{sW}, 1
    v_lshrrev_b32 v14, 5, v0
    v_and_b32 v15, 31, v0
    """)
    ACC = 128; FR = 16; VST = 80; VCS = 96; VCV = 192; ONE = 196; AD = 200; MS = 244
    sCS = t+15
    a(f"s_lshl_b32 s{sCS}, s{sWG}, 9\ns_lshl_b32 s{t+7}, s{sWN}, 8\ns_add_u32 s{sCS}, s{sCS}, s{t+7}\ns_add_u32 s{sCS}, s{sCS}, {WS_CSQ}")
    a(f"v_lshlrev_b32 v{AD+8}, 5, v14\nv_lshlrev_b32 v{AD+9}, 2, v15")
    if first:
        a(f"""
        s_lshl_b32 s{t+7}, s{sWM}, 13
        v_lshlrev_b32 v1, 7, v15
        v_add_u32 v1, s{t+7}, v1
        v_bfe_u32 v8, v0, 1, 3
        v_xor_b32 v8, v8, v14
        """)
        for kk in range(4):
            a(f"v_xor_b32 v9, {2*kk}, v8\nv_lshl_add_u32 v{2+kk}, v9, 4, v1")
    else:
        a(f"s_lshl_b32 s{t+7}, s{sWM}, 13\nv_lshlrev_b32 v2, 4, v0\nv_add_u32 v2, s{t+7}, v2")
    a(f"""
    v_and_b32 v10, 3, v0
    v_and_b32 v11, 1, v0
    v_bfe_u32 v12, v0, 1, 1
    v_lshl_add_u32 v11, v11, 1, v12
    s_cmp_eq_u32 s{sTY}, 2
    s_cselect_b64 vcc, -1, 0
    v_cndmask_b32 v10, v11, v10, vcc
    v_bfe_u32 v8, v0, 2, 2
    v_lshl_add_u32 v9, v14, 3, v8
    v_lshlrev_b32 v9, 8, v9
    v_lshl_add_u32 v9, v10, 3, v9
    v_bfe_u32 v10, v0, 4, 1
    v_lshl_add_u32 v9, v10, 5, v9
    s_lshl_b32 s{t+7}, s{sWN}, 1
    v_xor_b32 v8, s{t+7}, v8
    v_lshl_add_u32 v6, v8, 6, v9
    v_xor_b32 v8, 1, v8
    v_lshl_add_u32 v7, v8, 6, v9
    """)
    nxa = 4 if first else 1
    W0 = 16384 if first else qkW(0)
    if first:
        for i in range(nxa): a(f"v_mov_b32 v{8+i}, v{2+i}")
        for i in (4, 5): a(f"v_add_u32 v{8+i}, {W0}, v{2+i}")
    else:
        for i in range(4): a(f"v_add_u32 v{8+i}, {WB + 49152*(i >> 1)}, v{6 + (i & 1)}")
    VM, VR = (32, 64) if first else (96, 212)
    for i in range(0, 64, 2): a(f"v_mov_b64 v[{ACC+i}:{ACC+i+1}], 0")
    if first:
        for i in range(0, 32, 2): a(f"v_mov_b64 v[{VCS+i}:{VCS+i+1}], 0")
        for i in range(4): a(f"v_mov_b32 v{ONE+i}, 0x3f803f80")
    def reads(kk):
        b = FR + 16*kk; r = []
        for tm in range(2):
            if first: r.append(f"ds_read_b128 v[{b+4*tm}:{b+4*tm+3}], v{8+kk} offset:{4096*tm}")
            else: r.append(f"ds_read_b128 v[{b+4*tm}:{b+4*tm+3}], v8 offset:{4096*tm+1024*kk}")
        for tn in range(2):
            for j in range(2):
                d = b + 8 + 4*tn + 2*j
                r.append(f"ds_read_b64_tr_b16 v[{d}:{d+1}], v{12+tn} offset:{4096*kk+1024*j}")
        return r
    def mfmas(kk, vtype, tns=(0, 1)):
        b = FR + 16*kk; m = []
        for tn in tns:
            W = v(b + 8 + 4*tn, 4)
            for tm in range(2):
                c = ACC + 16*(2*tn + tm)
                X = v(b + 4*tm, 4)
                A, B = (X, W) if vtype else (W, X)
                m.append(f"v_mfma_f32_32x32x16_bf16 {v(c,16)}, {A}, {B}, {v(c,16)}")
            if first:
                c = VCS + 16*tn; X = v(ONE, 4)
                A, B = (X, W) if vtype else (W, X)
                m.append(f"v_mfma_f32_32x32x16_bf16 {v(c,16)}, {A}, {B}, {v(c,16)}")
        return m
    sC, sSa, sSw, sMk, sDst = t+9, t+10, t+4, t+11, t+12
    vlab = a.uid("qkv_v"); fin = a.uid("qkv_fin"); done = a.uid("qkv_cdone")
    a(f"s_mov_b32 s{sC}, {10 if first else 9}\ns_mov_b32 s{sSa}, 0\ns_mov_b32 s{sSw}, {W0}")
    a(f"s_cmp_eq_u32 s{sTY}, 2\ns_cbranch_scc1 {vlab}")
    hooks = []
    def mainloop(vtype, epi):
        lp = a.uid("qkv_loop"); hk = a.uid("qkv_hk"); hb = a.uid("qkv_hb"); ent = a.uid("qkv_ent")
        stamp(a, 1 if first else 18)
        if not first:
            def rd(c, kk):
                b = FR + 16*kk; r = []
                for tm in range(2):
                    r.append(f"ds_read_b128 v[{b+4*tm}:{b+4*tm+3}], v2 offset:{(c % 4)*16384+4096*tm+1024*kk}")
                o = qkW(c) - WB
                for tn in range(2):
                    for j in range(2):
                        d = b + 8 + 4*tn + 2*j
                        r.append(f"ds_read_b64_tr_b16 v[{d}:{d+1}], v{8 + 2*(o // 49152) + tn} offset:{o % 49152 + 4096*kk+1024*j}")
                return r
            mf = lambda kk, tl: mfmas(kk, vtype, (tl >> 1,))[tl & 1]
            a(f"""
            s_lshl_b32 s{sC}, s{sRT}, 1
            s_add_u32 s{sC}, s{sC}, s{sWM}
            s_lshl_b32 s{sC}, s{sC}, 12
            s_add_u32 s{sC}, s{sC}, {L_ST2}
            v_lshlrev_b32 v3, 4, v0
            """)
            ins = {}
            for i in range(4): ins[28 + 2*i] = [f"buffer_load_dwordx4 v[{VST+4*i}:{VST+4*i+3}], v3, {WSR}, s{sC} offen offset:{1024*i} sc1"]
            b = Asm(); b("s_waitcnt vmcnt(0)"); row_stats(b, VST, MS, MS + 1)
            if vtype:
                a(f"v_lshlrev_b32 v4, 4, v14")
                for tm in range(2):
                    for q in range(16):
                        off = (32*tm + 8*(q >> 2) + (q & 3)) * 4
                        b(f"ds_bpermute_b32 v{VM+16*tm+q}, v4, v{MS} offset:{off}")
                        ins.setdefault(120, []).append(f"ds_bpermute_b32 v{VR+16*tm+q}, v4, v{MS+1} offset:{off}")
                fix = lambda tl: [f"v_fmac_f32 v{ACC+16*tl+i}, v{VCV+2*(tl>>1)}, v{VM+16*(tl&1)+i}" for i in range(16)]
                ff = 92
            else:
                qk_stats_fin(b)
                fix = lambda tl: [f"v_fmac_f32 v{ACC+16*tl+i}, v{MS+4*(tl&1)}, v{VCS+16*(tl>>1)+i}" for i in range(16)]
                ff = 80
            ins[60] = b.lines
            gemm_unrolled(a, 10, 4, 6, rd, mf, [(0, 1), (2, 3)], ins, fix, ff, epi, 19)
            return
        a("s_barrier")
        for x in reads(0) + reads(1): a(x)
        a(f"s_branch {ent}")
        a.label(lp)
        a("s_barrier")
        interleave(a, mfmas(3, vtype), reads(0) + reads(1))
        a.label(ent)
        a("s_waitcnt lgkmcnt(6)")
        interleave(a, mfmas(0, vtype), reads(2))
        a("s_waitcnt lgkmcnt(6)")
        interleave(a, mfmas(1, vtype), reads(3))
        a("s_waitcnt lgkmcnt(6)")
        if first:
            upd = [f"s_add_u32 s{sSa}, s{sSa}, 32768", f"s_and_b32 s{sSa}, s{sSa}, 0x1ffff", f"s_add_u32 s{sSw}, s{sSa}, 16384"]
        else:
            upd = [f"s_add_u32 s{sSa}, s{sSa}, 16384", f"s_and_b32 s{sSa}, s{sSa}, 0xffff",
                   f"s_add_u32 s{sSw}, s{sSw}, 16384", f"s_cmp_eq_u32 s{sSw}, 163840", f"s_cselect_b32 s{sSw}, {WB}, s{sSw}"]
        upd += [f"v_add_u32 v{8+i}, s{sSa}, v{2+i}" for i in range(nxa)] + [f"v_add_u32 v{12+i}, s{sSw}, v{6+i}" for i in range(2)] + [f"s_sub_u32 s{sC}, s{sC}, 1"]
        interleave(a, mfmas(2, vtype), upd)
        a(f"s_waitcnt lgkmcnt(0)")
        a(f"s_bitcmp1_b32 {HMASK1 if first else HMASK2}, s{sC}\ns_cbranch_scc1 {hk}")
        a.label(hb)
        a(f"s_cmp_lg_u32 s{sC}, 0\ns_cbranch_scc1 {lp}")
        a("s_barrier")
        hooks.append((hk, hb, vtype))
        if first:
            for m in mfmas(3, vtype): a(m)
            stamp(a, 2)
            read_nonce_mode(a)
            return
    HMASK1 = (1 << 8) | (1 << 6) | (1 << 3) | (1 << 1)
    HMASK2 = (1 << 5) | (1 << 2)
    if not first:
        for tn in range(2):
            for q in range(4):
                r = VCS + 16*tn + 4*q
                a(f"buffer_load_dwordx4 v[{r}:{r+3}], v{AD+8}, {WSR}, s{sCS} offen offset:{(32*tn+16*(q>>1)+4*(q&1))*4} sc1")
    a(f"""
    s_mul_i32 s{sDst}, s{sTY}, {ACT}
    s_lshl_b32 s{t+8}, s{sRT}, 2
    s_lshl_b32 s{t+7}, s{sWM}, 1
    s_add_u32 s{t+8}, s{t+8}, s{t+7}
    s_mul_i32 s{t+8}, s{t+8}, 1280
    s_add_u32 s{sDst}, s{sDst}, s{t+8}
    s_add_u32 s{sDst}, s{sDst}, {LQ}
    s_add_u32 s{t+14}, s{sDst}, {HEADB}
    s_lshr_b32 s{t+8}, s{sC0}, 3
    s_lshl_b32 s{t+7}, s{sWN}, 3
    s_add_u32 s{t+8}, s{t+8}, s{t+7}
    v_add_u32 v80, s{t+8}, v14
    s_mov_b32 s{t+13}, {HEADB}
    v_mov_b32 v86, 0x7fffffff
    s_mov_b32 s{sMk}, 0
    """)
    for sl in range(4):
        a(f"""
        v_add_u32 v81, {2*sl}, v80
        v_mul_u32_u24 v82, 205, v81
        v_lshrrev_b32 v82, 10, v82
        v_mad_i32_i24 v81, v82, -5, v81
        v_cmp_lt_u32 vcc, 2, v81
        v_lshlrev_b32 v82, 1, v82
        v_add_u32 v83, -3, v81
        v_cndmask_b32 v83, v81, v83, vcc
        v_addc_co_u32 v82, vcc, 0, v82, vcc
        v_lshlrev_b32 v83, 9, v83
        v_lshl_add_u32 v83, v15, 4, v83
        v_lshlrev_b32 v85, 3, v15
        v_add_u32 v85, 1024, v85
        v_cmp_eq_u32 vcc, 2, v81
        v_mul_lo_u32 v84, v82, s{t+13}
        s_cmp_lg_u64 vcc, 0
        v_cndmask_b32 v83, v83, v86, vcc
        v_cndmask_b32 v85, v86, v85, vcc
        s_cselect_b32 s{t+7}, {1 << sl}, 0
        s_or_b32 s{sMk}, s{sMk}, s{t+7}
        v_add_u32 v{AD+sl}, v83, v84
        v_add_u32 v{AD+4+sl}, v85, v84
        """)
    def qk_stats_fin(a):
        a(f"""
        s_cmp_eq_u32 s{sTY}, 0
        s_cselect_b32 s{t+7}, {f32(QSCALE)}, 1.0
        v_mul_f32 v{MS+2}, s{t+7}, v{MS+1}
        v_mul_f32 v{MS+6}, s{t+7}, v{MS+1}
        v_sub_f32 v{MS+4}, 0, v{MS}
        v_sub_f32 v{MS}, 0, v{MS}
        s_nop 1
        v_permlane32_swap_b32 v{MS}, v{MS+4}
        v_permlane32_swap_b32 v{MS+2}, v{MS+6}
        s_nop 1
        """)
    def epi_qk(tn, pk=True):
        r = []
        for tm in range(2):
            c = ACC + 16*(2*tn + tm); cs = VCS + 16*tn; m = MS + 4*tm
            for p in range(2):
                if pk:
                    for i in range(8*p, 8*p + 8, 2):
                        if first: r.append(f"v_pk_fma_f32 v[{c+i}:{c+i+1}], v[{cs+i}:{cs+i+1}], v[{m}:{m+1}], v[{c+i}:{c+i+1}] op_sel_hi:[1,0,1]")
                    for i in range(8*p, 8*p + 8, 2):
                        r.append(f"v_pk_mul_f32 v[{c+i}:{c+i+1}], v[{c+i}:{c+i+1}], v[{m+2}:{m+3}] op_sel_hi:[1,0]")
                else:
                    for i in range(8*p, 8*p + 8): r.append(f"v_mul_f32 v{c+i}, v{m+2}, v{c+i}")
                for i in range(4):
                    r.append(f"v_cvt_pk_bf16_f32 v{c+8*p+i}, v{c+8*p+2*i}, v{c+8*p+2*i+1}")
                r.append(f"buffer_store_dwordx4 v[{c+8*p}:{c+8*p+3}], v{AD+2*tn+p}, {WSR}, s{sDst} offen offset:{1280*tm} sc1")
        return r
    mainloop(False, epi_qk)
    if first:
        a(f"s_lshl_b32 s{t+7}, s{sWM}, 8\nv_lshlrev_b32 v1, 2, v0\nv_add_u32 v1, s{t+7}, v1")
        a(f"v_add_u32 v1, {Q1_TAB}, v1\nds_read_b32 v{MS}, v1\nds_read_b32 v{MS+1}, v1 offset:512\ns_waitcnt lgkmcnt(0)")
        qk_stats_fin(a)
        for x in epi_qk(0) + epi_qk(1): a(x)
    for sl in range(4):
        sk = a.uid("qk_b")
        a(f"s_bitcmp0_b32 s{sMk}, {sl}\ns_cbranch_scc1 {sk}")
        for tm in range(2):
            o = ACC + 16*(2*(sl >> 1) + tm) + 8*(sl & 1)
            a(f"buffer_store_dwordx2 v[{o}:{o+1}], v{AD+4+sl}, {WSR}, s{sDst} offen offset:{1280*tm} sc1")
            a(f"buffer_store_dwordx2 v[{o+2}:{o+3}], v{AD+4+sl}, {WSR}, s{t+14} offen offset:{1280*tm} sc1")
        a.label(sk)
    if first:
        a(f"s_mov_b32 exec_lo, 1\ns_mov_b32 exec_hi, 1")
        for tn in range(2):
            for q in range(4):
                r = VCS + 16*tn + 4*q
                a(f"buffer_store_dwordx4 v[{r}:{r+3}], v{AD+8}, {WSR}, s{sCS} offen offset:{(32*tn+16*(q>>1)+4*(q&1))*4}")
        a("s_mov_b64 exec, -1")
    a(f"s_branch {fin}")
    a.label(vlab)
    if not first:
        for tn in range(2):
            a(f"buffer_load_dword v{VCV+2*tn}, v{AD+9}, {WSR}, s{sCS} offen offset:{128*tn} sc1")
    a(f"""
    s_lshl_b32 s{t+8}, s{sRT}, 3
    s_lshl_b32 s{t+7}, s{sWM}, 2
    s_add_u32 s{t+8}, s{t+8}, s{t+7}
    s_mul_i32 s{sDst}, s{t+8}, 640
    s_add_u32 s{sDst}, s{sDst}, {L_V + LQ}
    s_lshl_b32 s{t+7}, s{sWN}, 6
    s_add_u32 s{t+8}, s{sC0}, s{t+7}
    v_add_u32 v80, s{t+8}, v15
    v_mul_u32_u24 v81, 320, v14
    s_mov_b32 s{t+13}, {HEADB}
    s_movk_i32 s{t+14}, 3277
    s_movk_i32 s{t+7}, -20
    """)
    for tn in range(2):
        a(f"""
        v_add_u32 v83, {32*tn}, v80
        v_mul_u32_u24 v84, s{t+14}, v83
        v_lshrrev_b32 v84, 16, v84
        v_mad_i32_i24 v83, v84, s{t+7}, v83
        v_lshl_add_u32 v83, v83, 4, v81
        v_mul_lo_u32 v85, v84, s{t+13}
        v_add_u32 v{AD+tn}, v83, v85
        """)
    def epi_v(tn, pk=True):
        r = []
        for tm in range(2):
            c = ACC + 16*(2*tn + tm); cv = VCV + 2*tn
            for p in range(2):
                if pk:
                    for i in range(8*p, 8*p + 8, 2):
                        if first: r.append(f"v_pk_fma_f32 v[{c+i}:{c+i+1}], v[{VM+16*tm+i}:{VM+16*tm+i+1}], v[{cv}:{cv+1}], v[{c+i}:{c+i+1}] op_sel_hi:[1,0,1]")
                    for i in range(8*p, 8*p + 8, 2):
                        r.append(f"v_pk_mul_f32 v[{c+i}:{c+i+1}], v[{c+i}:{c+i+1}], v[{VR+16*tm+i}:{VR+16*tm+i+1}]")
                else:
                    for i in range(8*p, 8*p + 8): r.append(f"v_mul_f32 v{c+i}, v{VR+16*tm+i}, v{c+i}")
                for i in range(4):
                    r.append(f"v_cvt_pk_bf16_f32 v{c+8*p+i}, v{c+8*p+2*i}, v{c+8*p+2*i+1}")
                r.append(f"buffer_store_dwordx4 v[{c+8*p}:{c+8*p+3}], v{AD+tn}, {WSR}, s{sDst} offen offset:{640*(2*tm+p)} sc1")
        return r
    def v_tab_reads(roff):
        a(f"v_lshlrev_b32 v1, 4, v14\nv_add_u32 v1, s{t+7}, v1")
        for tm in range(2):
            for q in range(4):
                a(f"ds_read_b128 v[{VM+16*tm+4*q}:{VM+16*tm+4*q+3}], v1 offset:{(32*tm+8*q)*4}")
                a(f"ds_read_b128 v[{VR+16*tm+4*q}:{VR+16*tm+4*q+3}], v1 offset:{roff+(32*tm+8*q)*4}")
    mainloop(True, epi_v)
    if first:
        a(f"s_lshl_b32 s{t+7}, s{sWM}, 8\ns_add_u32 s{t+7}, s{t+7}, {Q1_TAB}")
        v_tab_reads(512)
        a(f"v_sub_f32 v{VCV}, 0, v{VCS}\nv_sub_f32 v{VCV+2}, 0, v{VCS+16}")
        for tn in range(2):
            a(f"buffer_store_dword v{VCV+2*tn}, v{AD+9}, {WSR}, s{sCS} offen offset:{128*tn}")
        a("s_waitcnt lgkmcnt(0)")
        for x in epi_v(0) + epi_v(1): a(x)
    a.label(fin)
    stamp(a, 3 if first else 20)
    flag_setup(a, 1 if first else 6)
    a(f"s_lshl_b32 s{t+7}, s{sWG}, 5\ns_add_u32 s{t+7}, s{t+7}, s{sW}\ns_lshl_b32 s{t+7}, s{t+7}, 2\ns_add_u32 s{t+7}, s{t+7}, {L_FG + LQ}")
    a("s_waitcnt vmcnt(0)")
    if first:
        l1 = a.uid("q1f"); l2 = a.uid("q1g")
        a(f"s_cmp_eq_u32 s{sMODE}, 0\ns_cbranch_scc1 {l1}")
        flag_store(a, ""); a(f"s_branch {l2}")
        a.label(l1); flag_store(a, "sc1"); a.label(l2)
    else: flag_store(a, SB)
    flag_store(a, "sc1", t+7)
    a(f"s_branch {done}")
    for hk, hb, vtype in hooks:
        a.label(hk)
        if first:
            a(f"s_cmp_lg_u32 s{sW}, 0\ns_cbranch_scc1 {hb}")
            for val, fn in ((8, lambda: nonce_issue(a, 81, 82)), (6, lambda: nonce_get(a, 80, 81, 82)), (3, lambda: census(a, 80, 81, True)), (1, lambda: census(a, 80, 81, False))):
                nx = a.uid("hk")
                a(f"s_cmp_lg_u32 s{sC}, {val}\ns_cbranch_scc1 {nx}")
                fn(); a(f"s_branch {hb}")
                a.label(nx)
        a(f"s_branch {hb}")
    a.label(done)

def qkvW_setup(a, sWo, sLW, sCT, sTmp, vW):
    a(f"""
    v_lshrrev_b32 v2, 4, v0
    v_mul_u32_u24 v1, 3840, v2
    v_lshlrev_b32 v7, 2, v2
    v_and_b32 v3, 15, v0
    v_xor_b32 v3, v3, v7
    v_lshl_add_u32 v{vW}, v3, 4, v1
    s_mul_i32 s{sWo}, s{sLW}, {16*3840}
    s_lshl_b32 s{sTmp}, s{sCT}, 8
    s_add_u32 s{sWo}, s{sWo}, s{sTmp}
    """)

def qkv1_loader(a):
    t = T
    sRT, sCT = t, t+1
    sLW, sAo, sWo, sM, sTmp, sRot, sThr, sA1, sW1, sSel = t+2, t+3, t+4, t+5, t+6, t+8, t+9, t+10, t+11, t+12
    a(f"s_sub_u32 s{sLW}, s{sW}, 4")
    qkvW_setup(a, sWo, sLW, sCT, sTmp, 6)
    a(f"""
    s_lshl_b32 s{sM}, s{sLW}, 12
    s_lshl_b32 s{sAo}, s{sRT}, 2
    s_add_u32 s{sAo}, s{sAo}, s{sLW}
    s_mul_i32 s{sAo}, s{sAo}, {32*1280}
    v_lshrrev_b32 v1, 3, v0
    v_mul_u32_u24 v1, 1280, v1
    v_and_b32 v3, 7, v0
    v_xor_b32 v3, v3, v2
    v_lshl_add_u32 v4, v3, 4, v1
    v_xor_b32 v3, 4, v3
    v_lshl_add_u32 v5, v3, 4, v1
    s_lshr_b32 s{sRot}, s{sR}, 4
    s_mul_i32 s{sRot}, s{sRot}, 5
    s_add_u32 s{sRot}, s{sRot}, s{sCT}
    s_add_u32 s{sRot}, s{sRot}, s{sG}
    s_mul_i32 s{sTmp}, s{sRot}, 26
    s_lshr_b32 s{sTmp}, s{sTmp}, 8
    s_mul_i32 s{sTmp}, s{sTmp}, 10
    s_sub_u32 s{sRot}, s{sRot}, s{sTmp}
    """)
    if not C.rot: a(f"s_mov_b32 s{sRot}, 0")
    a(f"s_sub_u32 s{sThr}, 10, s{sRot}")
    SA = Src(sAo, sA1, sThr, 128); SW = Src(sWo, sW1, sThr, 64*3840)
    SA.setup(a, sRot, 10, sTmp); SW.setup(a, sRot, 10, sTmp)
    a("s_waitcnt lgkmcnt(0)")
    srd(a, R_X, P_X, ACT)
    srd(a, R_WQ, P_WQKV, D*3*D*2)
    def emitA(c, i0, k):
        SA.sel(a, c, sSel)
        for i in range(i0, i0 + k):
            a(f"s_add_u32 m0, s{sM}, {(c % 4)*32768 + 1024*i}\ns_add_u32 s{sTmp}, s{sSel}, {c*128 + i*8*1280}")
            a(f"buffer_load_dwordx4 v{4 + (i & 1)}, {R(R_X)}, s{sTmp} offen lds")
    def emitW(c, i0, k):
        SW.sel(a, c, sSel)
        for i in range(i0, i0 + k):
            a(f"s_add_u32 m0, s{sM}, {16384 + (c % 4)*32768 + 1024*i}\ns_add_u32 s{sTmp}, s{sSel}, {c*64*3840 + i*4*3840}")
            a(f"buffer_load_dwordx4 v6, {R(R_WQ)}, s{sTmp} offen lds")
    def xstats(c):
        if c == 0:
            other_srds(a)
            a(f"v_lshlrev_b32 v9, 4, v0\nv_add_u32 v9, s{sM}, v9\nv_add_u32 v8, 65536, v9\ns_mov_b32 s{t+7}, 0xffff0000")
            for i in range(0, 16, 2): a(f"v_mov_b64 v[{16+i}:{17+i}], 0")
        for i in range(4):
            a(f"ds_read_b128 v[{32+4*i}:{35+4*i}], v{9 if (c % 4) < 2 else 8} offset:{(c % 2)*32768 + 1024*i}")
        for i in range(4):
            a(f"s_waitcnt lgkmcnt({3-i})")
            for j in range(4):
                src = 32 + 4*i + j
                a(f"v_lshlrev_b32 v10, 16, v{src}\nv_and_b32 v11, s{t+7}, v{src}")
                a(f"v_add_f32 v{16+4*i}, v{16+4*i}, v10\nv_add_f32 v{17+4*i}, v{17+4*i}, v11\nv_fmac_f32 v{18+4*i}, v10, v10\nv_fmac_f32 v{19+4*i}, v11, v11")
    stamp(a, 1)
    ph = Phase("q1", 10, 4, 4, emitA, emitW, lambda c: ((c % 4)*32768, (c % 4)*32768 + 16384), lambda c: ((c % 4)*32768 + 16384, (c % 4 + 1)*32768),
               None, C.bud_q1, after_bar=xstats, dbg=(C.dbg == 1))
    def waitfn(w):
        l1 = a.uid("pw"); l2 = a.uid("pw"); l3 = a.uid("pw")
        a(f"s_cmp_eq_u32 s{sW}, 4\ns_cbranch_scc1 {l1}\ns_cmp_eq_u32 s{sW}, 7\ns_cbranch_scc1 {l2}\ns_waitcnt vmcnt({w+5})\ns_branch {l3}")
        a.label(l1); a(f"s_waitcnt vmcnt({w+16})\ns_branch {l3}")
        a.label(l2); a(f"s_waitcnt vmcnt({w})")
        a.label(l3)
    Loader(a).run(ph, None, tail=lambda: prep(a, 0), waitfn=waitfn)
    for i in range(4):
        a(f"v_add_f32 v{16+2*i}, v{16+4*i}, v{17+4*i}\nv_add_f32 v{17+2*i}, v{18+4*i}, v{19+4*i}")
    a("s_nop 1")
    for mod in ("quad_perm:[1,0,3,2]", "quad_perm:[2,3,0,1]", "row_half_mirror"):
        for j in range(8):
            a(f"v_add_f32_dpp v{16+j}, v{16+j}, v{16+j} {mod} row_mask:0xf bank_mask:0xf")
        a("s_nop 1")
    a(f"v_lshrrev_b32 v1, 3, v0\nv_lshlrev_b32 v1, 2, v1\ns_lshl_b32 s{sTmp}, s{sLW}, 7\ns_add_u32 s{sTmp}, s{sTmp}, {Q1_TAB}\nv_add_u32 v1, s{sTmp}, v1")
    for i in range(4):
        finish_stats(a, 16+2*i, 17+2*i, 24+2*i, 25+2*i)
        a(f"ds_write_b32 v1, v{24+2*i} offset:{32*i}\nds_write_b32 v1, v{25+2*i} offset:{512+32*i}")
    a("s_waitcnt lgkmcnt(0)")
    stamp(a, 2)
    a("s_barrier")
    read_nonce_mode(a)

def other_srds(a):
    srd(a, R_WS, P_WS, WS_END)
    srd(a, R_WG, P_WG, D*F*2)
    srd(a, R_WU, P_WU, D*F*2)
    srd(a, R_T, P_WS, WS_END)

def qkv1_idle(a):
    l2 = a.uid("idl"); l1 = a.uid("idl")
    tj = 84
    a(f"s_cmp_lt_u32 s{sW}, 4\ns_cbranch_scc1 {l1}")
    a(f"s_lshl_b32 s{tj}, s{T}, 2\ns_add_u32 s{tj}, s{tj}, s{sW}\ns_add_u32 s{tj}, s{tj}, 476\ns_mul_i32 s{tj+1}, s{sW}, 5120\nv_lshlrev_b32 v5, 4, v0")
    projjob_issue(a, tj, tj+1, tj)
    a("s_waitcnt vmcnt(0)")
    projjob_finish(a, tj+1, tj)
    a(f"s_branch {l2}")
    a.label(l1)
    if C.warm:
        l4 = a.uid("idl"); l5 = a.uid("idl")
        a(f"""
        s_cmp_eq_u32 s{sW}, 0
        s_cbranch_scc1 {l4}
        s_cmp_eq_u32 s{sW}, 2
        s_cselect_b32 s{R_T}, s{P_WU}, s{P_WD}
        s_cselect_b32 s{R_T+1}, s{P_WU+1}, s{P_WD+1}
        s_cmp_eq_u32 s{sW}, 1
        s_cselect_b32 s{R_T}, s{P_WG}, s{R_T}
        s_cselect_b32 s{R_T+1}, s{P_WG+1}, s{R_T+1}
        s_mov_b32 s{R_T+2}, {F*D*2}
        s_mov_b32 s{R_T+3}, 0x20000
        s_mul_i32 s{tj}, s{T}, {15*8192}
        v_lshlrev_b32 v1, 7, v0
        """)
        for i in range(15): a(f"buffer_load_dword v2, v1, {R(R_T)}, s{tj} offen\ns_add_u32 s{tj}, s{tj}, 8192")
        srd(a, R_T, P_WO, D*D*2)
        a(f"s_mul_i32 s{tj}, s{T}, 3\ns_add_u32 s{tj}, s{tj}, s{sW}\ns_sub_u32 s{tj}, s{tj}, 1\ns_mul_i32 s{tj}, s{tj}, {17408}")
        for i in range(2): a(f"buffer_load_dword v2, v1, {R(R_T)}, s{tj} offen\ns_add_u32 s{tj}, s{tj}, 8192")
        a("s_waitcnt vmcnt(0)")
        a.label(l4)
    if C.tlb:
        l3 = a.uid("idl")
        a(f"s_cmp_lg_u32 s{sW}, 2\ns_cbranch_scc1 {l3}\nv_lshlrev_b32 v1, 20, v0")
        for r in (R_WS, R_WG, R_WU): a(f"buffer_load_dword v2, v1, {R(r)}, 0 offen")
        srd(a, R_T, P_OUT, ACT)
        a(f"buffer_load_dword v2, v1, {R(R_T)}, 0 offen\ns_waitcnt vmcnt(0)")
        a.label(l3)
    a(f"s_cmp_lg_u32 s{sW}, 0\ns_cbranch_scc1 {l2}")
    nonce_issue(a, 81, 82)
    nonce_get(a, 80, 81, 82)
    census(a, 80, 81, True)
    census(a, 80, 81, False)
    a.label(l2)
    a("s_barrier")
    read_nonce_mode(a)

def phase_attn(a, SB, ld_label):
    fast = SB == ""
    t = T
    CH = 20480
    sQP, sKH, sSrc, sDst, sTmp, sC, sHB = t, t+1, t+2, t+3, t+4, t+5, t+8
    sEX = t+6
    sWs, sWd, sPF = t+9, t+10, t+11
    tj = 84; sJob, sScr = tj, tj + 1
    QAREA = 102400
    QA, QB = 16, 22
    NM, SS, PP, OO, KF, VF = 32, 64, 96, 112, 144, 160
    vK, vK8, vV = 2, 3, 4
    DUM = 176; XF = 177
    KVB = 'nt sc1' if C.nt_kv else 'sc1'
    stamp(a, 4)
    a(f"""
    s_and_b32 s{sQP}, s{sW}, 3
    s_lshr_b32 s{sKH}, s{sW}, 2
    v_lshlrev_b32 v5, 4, v0
    s_mul_i32 s{sHB}, s{sR}, {HEADB}
    s_add_u32 s{sHB}, s{sHB}, s{sLO}
    s_and_b32 s{sTmp}, s{sQP}, 1
    s_mul_i32 s{sSrc}, s{sTmp}, 5120
    s_mul_i32 s{sDst}, s{sTmp}, 10240
    s_lshr_b32 s{sTmp}, s{sQP}, 1
    s_mul_i32 s{sC}, s{sTmp}, 5120
    s_add_u32 s{sDst}, s{sDst}, s{sC}
    s_mul_i32 s{sC}, s{sTmp}, {ACT}
    s_add_u32 s{sSrc}, s{sSrc}, s{sC}
    s_add_u32 s{sSrc}, s{sSrc}, s{sHB}
    s_add_u32 s{sSrc}, s{sSrc}, {L_K}
    """)
    def kv_issue(j):
        GF.need(0x01010101 << j)
        a(f"s_add_u32 s{sTmp}, s{sG}, {j}\ns_and_b32 s{sTmp}, s{sTmp}, 7\ns_mul_i32 s{sTmp}, s{sTmp}, 10240\ns_add_u32 s{sTmp}, s{sTmp}, s{sSrc}")
        return lin_dma(a, 5, sTmp, 0, sDst, j * CH, 5, KVB)
    def init():
        a(f"""
        v_lshrrev_b32 v14, 5, v0
        v_and_b32 v15, 31, v0
        v_lshlrev_b32 v6, 3, v15
        s_mul_i32 s{sTmp}, s{sKH}, 10240
        v_add_u32 v{vK}, s{sTmp}, v5
        v_add_u32 v{vK8}, s{sTmp}, v6
        v_mul_u32_u24 v7, 320, v14
        v_lshl_add_u32 v7, v15, 4, v7
        v_add_u32 v{vV}, s{sTmp}, v7
        s_mov_b32 s{sEX}, 0x000fffff
        s_mov_b32 s{sEX+1}, 0x000fffff
        v_and_b32 v9, 27, v0
        v_cmp_eq_u32 vcc, 24, v9
        v_mov_b32 v8, 0x3f803f80
        s_nop 0
        v_cndmask_b32 v8, 0, v8, vcc
        v_mov_b32 v9, v8
        v_lshlrev_b32 v13, 7, v0
        v_mov_b32 v12, 0
        """)
        for i in range(0, 16, 2): a(f"v_mov_b64 v[{VF+i}:{VF+i+1}], v[8:9]")
        for i in range(0, 32, 2): a(f"v_mov_b64 v[{OO+i}:{OO+i+1}], 0")
        for i in range(0, 8, 2): a(f"v_mov_b64 v[{PP+8+i}:{PP+8+i+1}], 0")
        a(f"v_mov_b64 v[{QA+4}:{QA+5}], 0\nv_mov_b64 v[{QB+4}:{QB+5}], 0")
    init()
    l0 = a.uid("att_old"); l1 = a.uid("att_j")
    a(f"s_cmp_eq_u32 s{sKH}, 0\ns_cbranch_scc1 {l0}")
    poll_local(a, "attn", 1, va=10, vt=11)
    stamp(a, 5)
    a(f"""
    s_mul_i32 s{sC}, s{sQP}, 2560
    s_add_u32 s{sPF}, s{sC}, {QAREA}
    s_mul_i32 s{sTmp}, s{sG}, 10240
    s_add_u32 s{sTmp}, s{sTmp}, s{sC}
    s_add_u32 s{sTmp}, s{sTmp}, s{sHB}
    """)
    lin_dma(a, 5, sTmp, 0, sPF, 0, 2, KVB)
    a(f"s_mov_b32 exec_hi, 0\nbuffer_load_dwordx4 v5, {WSR}, s{T+19} offen offset:2048 {KVB} lds\ns_mov_b32 exec_hi, -1")
    a(f"s_mul_i32 s{sTmp}, s{sG}, 10240\ns_add_u32 s{sTmp}, s{sTmp}, s{sSrc}")
    lin_dma(a, 5, sTmp, 0, sDst, 0, 2, KVB)
    a(f"s_waitcnt vmcnt(0)")
    lin_dma(a, 5, sTmp, 2048, sDst, 2048, 3, KVB)
    a(f"s_branch {l1}")
    a.label(l0)
    a(f"""
    s_setprio 1
    v_add_u32 v10, s{sG}, v0
    v_and_b32 v10, 7, v10
    v_bfe_u32 v11, v0, 3, 1
    v_mul_u32_u24 v11, 19, v11
    s_mul_i32 s{sTmp}, s{sR}, 20
    v_add_u32 v11, s{sTmp}, v11
    v_lshrrev_b32 v11, 7, v11
    v_lshl_add_u32 v10, v10, 5, v11
    s_and_b32 s{sTmp}, s{sQP}, 1
    s_lshl_b32 s{sTmp}, s{sTmp}, 4
    s_lshr_b32 s{sC}, s{sQP}, 1
    s_mul_i32 s{sC}, s{sC}, 5
    s_add_u32 s{sTmp}, s{sTmp}, s{sC}
    s_add_u32 s{sTmp}, s{sTmp}, 5
    v_add_u32 v10, s{sTmp}, v10
    v_lshlrev_b32 v12, 7, v10
    v_lshrrev_b32 v11, 4, v0
    v_lshl_add_u32 v12, v11, 2, v12
    s_and_b32 s{sWs}, s{sR}, 7
    s_mul_i32 s{sWs}, s{sWs}, 102400
    s_mul_i32 s{sWd}, s{sW}, 5120
    s_add_u32 s{sWs}, s{sWs}, s{sWd}
    s_add_u32 s{sWs}, s{sWs}, {WS_WTO}
    s_add_u32 s{sGO}, s{sLO}, {L_FG}
    s_add_u32 s{sGW}, s{sEP}, 1
    """)
    a.label(l1)
    GF = Gate(a, 12, PV, fold=True, sleep=2)
    a(f"""
    s_mul_i32 s{sC}, s{sQP}, 2560
    s_add_u32 s{sC}, s{sC}, {QAREA}
    v_add_u32 v10, s{sC}, v5
    v_add_u32 v11, s{sC}, v6
    s_barrier
    ds_read_b128 v[{QA}:{QA+3}], v10
    ds_read_b128 v[{QB}:{QB+3}], v10 offset:1280
    s_mov_b32 exec_hi, 0
    ds_read_b64 v[{QA+4}:{QA+5}], v11 offset:1024
    ds_read_b64 v[{QB+4}:{QB+5}], v11 offset:{1280+1024}
    s_mov_b32 exec_hi, -1
    """)
    stamp(a, 6)
    l1 = a.uid("att_ap")
    a(f"s_cmp_lg_u32 s{sKH}, 0\ns_cbranch_scc1 {l1}")
    GF.load()
    a.label(l1)
    base = [0]
    def rdK(st, c, kt):
        off = c * CH + kt * 1280 - base[0]
        assert 0 <= off and off + 1024 < 65536
        b = KF + 8*st
        return [f"ds_read_b128 v[{b}:{b+3}], v{vK} offset:{off}", f"ds_read_b64 v[{b+4}:{b+5}], v{vK8} offset:{off+1024}"]
    def rdV(st, c, kt):
        off = c * CH + 5120 + kt * 1280 - base[0]
        assert 0 <= off and off + 640 < 65536
        b = VF + 8*st
        return [f"s_mov_b64 exec, s[{sEX}:{sEX+1}]", f"ds_read_b128 v[{b}:{b+3}], v{vV} offset:{off}",
                f"ds_read_b128 v[{b+4}:{b+7}], v{vV} offset:{off+640}", f"s_mov_b64 exec, -1"]
    def qk(x, st, c=None):
        b = KF + 8*st; q = (QA, QB)[x]; sd = SS + 16*x
        cc = v(NM + 16*x, 16) if c is None else c
        return [f"v_mfma_f32_32x32x16_bf16 {v(sd,16)}, {v(b,4)}, {v(q,4)}, {cc}",
                f"v_mfma_f32_32x32x8_bf16 {v(sd,16)}, {v(b+4,2)}, {v(q+4,2)}, {v(sd,16)}"]
    def pv(x, st):
        b = VF + 8*st; p = PP + 8*x; o = OO + 16*x
        return [f"v_mfma_f32_32x32x16_bf16 {v(o,16)}, {v(b,4)}, {v(p,4)}, {v(o,16)}",
                f"v_mfma_f32_32x32x16_bf16 {v(o,16)}, {v(b+4,4)}, {v(p+4,4)}, {v(o,16)}"]
    def sm(x):
        sd = SS + 16*x; p = PP + 8*x; r = []
        for i in range(8):
            r.append(f"v_exp_f32 v{sd+2*i}, v{sd+2*i}")
            r.append(f"v_exp_f32 v{sd+2*i+1}, v{sd+2*i+1}")
            if i > 0: r.append(f"v_cvt_pk_bf16_f32 v{p+i-1}, v{sd+2*i-2}, v{sd+2*i-1}")
        r.append(f"v_cvt_pk_bf16_f32 v{p+7}, v{sd+14}, v{sd+15}")
        return r
    def setm():
        for x in range(2): a(f"v_mov_b32 v{10+x}, v{8+x}")
        a("s_nop 0")
        for x in range(2): a(f"v_permlane32_swap_b32 v{8+x}, v{10+x}")
        a("s_nop 0")
        for x in range(2): a(f"v_max_f32 v{8+x}, v{8+x}, v{10+x}")
        for x in range(2):
            a(f"v_sub_f32 v{NM+16*x}, 0, v{8+x}\nv_sub_f32 v{NM+16*x+1}, 0, v{8+x}")
            for i in range(2, 16, 2): a(f"v_mov_b64 v[{NM+16*x+i}:{NM+16*x+i+1}], v[{NM+16*x}:{NM+16*x+1}]")
    for x in rdK(0, 0, 0): a(x)
    a("s_waitcnt lgkmcnt(0)")
    m = qk(0, 0, "0") + qk(1, 0, "0")
    for i in (0, 1, 2, 3): a(m[i])
    a.nop(10)
    for x in range(2):
        sd = SS + 16*x
        a(f"v_max3_f32 v{8+x}, v{sd}, v{sd+1}, v{sd+2}")
        for i in range(3, 15, 2):
            a(f"v_max3_f32 v{8+x}, v{8+x}, v{sd+i}, v{sd+i+1}")
        a(f"v_max_f32 v{8+x}, v{8+x}, v{sd+15}")
    setm()
    for i in range(16): a(f"v_sub_f32 v{SS+i}, v{SS+i}, v8")
    l1 = a.uid("att_w0"); l2 = a.uid("att_w1")
    sDone = t + 15
    a(f"s_cmp_eq_u32 s{sKH}, 0\ns_cbranch_scc1 {l1}\ns_waitcnt vmcnt(0)\ns_branch {l2}")
    a.label(l1)
    GF.upd()
    a(f"s_and_b32 s{sDone}, s{sNR}, 0x02020202\ns_cbranch_scc1 {l2}")
    GF.ok = 0x02020202; kv_issue(1); GF.ok = 0
    a.label(l2)
    a("s_barrier")
    stamp(a, 7)
    def l0only(fn):
        l = a.uid("l0")
        a(f"s_cmp_lg_u32 s{sL}, 0\ns_cbranch_scc1 {l}")
        fn(); a.label(l)
    def prepfin():
        l = a.uid("pf")
        a(f"s_and_b32 s{sC}, s{sR}, 15\ns_cmp_eq_u32 s{sC}, 15\ns_cbranch_scc1 {l}")
        prep(a, 1); a.label(l)
    def l2pf(i0, n):
        for i in range(i0, min(i0 + n, (C.l2pf + 3) // 4)):
            l = a.uid("pfs")
            a(f"""
            s_cmp_ge_u32 s{sW}, {C.l2pf - 4*i}
            s_cbranch_scc1 {l}
            s_lshr_b32 s{sPF}, s{sR}, 4
            s_mul_i32 s{sPF}, s{sPF}, {15 if C.rot_gu else 1}
            s_mul_i32 s{sC}, s{sW}, {1 if C.rot_gu else 2}
            s_add_u32 s{sPF}, s{sPF}, s{sC}
            s_add_u32 s{sPF}, s{sPF}, {4*i if C.rot_gu else 8*i}
            s_lshl_b32 s{sPF}, s{sPF}, 13
            s_and_b32 s{sC}, s{sR}, 15
            s_mul_i32 s{sC}, s{sC}, 245760
            s_add_u32 s{sPF}, s{sPF}, s{sC}
            s_add_u32 s{sPF}, s{sPF}, {WS_WTG}
            buffer_load_dword v{DUM}, v13, {WSR}, s{sPF} offen
            """)
            a.label(l)
    def wwo(c): lin_dma(a, 5, sWs, c*20480, sWd, c*20480, 5, 'nt' if C.nt_wo else '')
    def hook(j):
        if j == 1:
            kv_issue(2); kv_issue(3); a("s_waitcnt vmcnt(10)"); l0only(prepfin)
        else: a("s_waitcnt vmcnt(0)")
        if j == 3: kv_issue(6); kv_issue(7)
        if j == 2:
            def fp():
                a(f"""
                s_lshl_b32 s{sC}, s{sWG}, 5
                s_add_u32 s{sC}, s{sC}, s{sW}
                s_lshl_b32 s{sC}, s{sC}, 2
                s_add_u32 s{sC}, s{sC}, {L_FG + 16}
                v_mov_b32 v10, 0
                v_mov_b32 v11, s{sEP}
                s_mov_b64 exec, 1
                buffer_store_dword v11, v10, {WSR}, s{sC} offen sc1
                s_mov_b64 exec, -1
                """)
            l0only(fp)
            kv_issue(4); kv_issue(5)
        if j == 4:
            def fpw():
                a(f"s_lshl_b32 s{sC}, s{sW}, 13\ns_add_u32 s{sC}, s{sC}, {L_FG + 16}")
                poll(a, 13, PV, f"s{sC}", f"s{sEP}", sleep=2, wide=True)
            l0only(fpw)
        if j == 5:
            def cs():
                l = a.uid("cs")
                a(f"s_cmp_lg_u32 s{sW}, 3\ns_cbranch_scc1 {l}\ns_mov_b32 exec_hi, 0xffff")
                a(f"s_and_b32 s{sC}, s{sR}, 15\ns_mul_i32 s{sC}, s{sC}, 768\ns_add_u32 s{sC}, s{sC}, {WS_CSP}")
                for i in range(10):
                    a(f"buffer_load_dwordx4 v[{PV+4*i}:{PV+3+4*i}], v5, {WSR}, s{sC} offen\ns_add_u32 s{sC}, s{sC}, 12288")
                a("s_mov_b32 exec_hi, -1")
                a.label(l)
            l0only(cs)
            wwo(0); wwo(1); wwo(2); l2pf(0, 1)
        if j == 6:
            def cs():
                l = a.uid("cs")
                a(f"s_cmp_lg_u32 s{sW}, 3\ns_cbranch_scc1 {l}\ns_mov_b32 exec_hi, 0xffff")
                for i in range(1, 10):
                    a(f"v_pk_add_f32 v[{PV}:{PV+1}], v[{PV}:{PV+1}], v[{PV+4*i}:{PV+1+4*i}]\nv_pk_add_f32 v[{PV+2}:{PV+3}], v[{PV+2}:{PV+3}], v[{PV+2+4*i}:{PV+3+4*i}]")
                a(f"s_mul_i32 s{sC}, s{sWG}, 768\ns_add_u32 s{sC}, s{sC}, {WS_CSG}")
                a(f"buffer_store_dwordx4 v[{PV}:{PV+3}], v5, {WSR}, s{sC} offen\ns_mov_b32 exec_hi, -1")
                a.label(l)
            l0only(cs)
            wwo(3)
            if fast:
                a(f"""
                s_lshl_b32 s{sPF}, s{sWG}, 1
                s_and_b32 s{sC}, s{sW}, 1
                s_add_u32 s{sPF}, s{sPF}, s{sC}
                s_mul_i32 s{sPF}, s{sPF}, 5120
                s_add_u32 s{sC}, s{sLO}, {L_O}
                s_bitcmp1_b32 s{sW}, 1
                s_cselect_b32 s{sC}, {L_X1}, s{sC}
                s_add_u32 s{sPF}, s{sPF}, s{sC}
                s_mov_b32 exec_hi, 0xff
                buffer_load_dword v{DUM}, v13, {WSR}, s{sPF} offen
                s_lshl_b32 s{sTmp}, s{sWG}, 9
                s_add_u32 s{sTmp}, s{sTmp}, s{sLO}
                s_add_u32 s{sTmp}, s{sTmp}, {L_ST1}
                s_mov_b64 exec, 15
                buffer_load_dword v{DUM}, v13, {WSR}, s{sTmp} offen
                s_mov_b64 exec, -1
                """)
            l2pf(1, 1)
        if j == 7:
            wwo(4)
            if fast and C.htouch == 0:
                a(f"""
                s_lshl_b32 s{sPF}, s{sWG}, 2
                s_add_u32 s{sPF}, s{sPF}, s{sQP}
                s_mul_i32 s{sPF}, s{sPF}, 6144
                s_add_u32 s{sPF}, s{sPF}, s{sLO}
                s_add_u32 s{sPF}, s{sPF}, {L_H}
                s_mov_b32 exec_hi, 0xffff
                buffer_load_dword v{DUM}, v13, {WSR}, s{sPF} offen
                s_mov_b32 exec_hi, -1
                """)
            l2pf(2, 2)
    outl = []
    for c in range(8):
        for kt in range(4):
            st = kt & 1
            last = c == 7 and kt == 3
            if c == 0 and kt == 1:
                hk = a.uid("att_hk")
                a(f"s_cmp_eq_u32 s{sKH}, 0\ns_cbranch_scc1 {hk}"); a.label(hk + "r")
                def h0():
                    l = a.uid("h0")
                    a(f"s_cmp_eq_u32 s{sDone}, 0\ns_cbranch_scc1 {l}")
                    kv_issue(1)
                    a.label(l)
                outl.append((hk, h0))
            j = c + 1 if (kt == 3 and c < 6) else (7 if (c == 7 and kt == 0) else None)
            if j:
                hk = a.uid("att_hk")
                dstamp(a, 6, 3*j)
                a(f"s_cmp_eq_u32 s{sKH}, 0\ns_cbranch_scc1 {hk}"); a.label(hk + "r")
                dstamp(a, 6, 3*j+1)
                a("s_barrier")
                dstamp(a, 6, 3*j+2)
                outl.append((hk, (lambda jj: (lambda: hook(jj)))(j)))
            val = sm(0)
            mf = qk(1, st) + pv(1, st ^ 1)
            ex = rdV(st, c, kt)
            if kt == 3 and c in (2, 5):
                base[0] += 3 * CH
                ex += [f"v_add_u32 v{r}, {3*CH}, v{r}" for r in (vK, vK8, vV)]
            if not last: ex += rdK(st ^ 1, c + (kt + 1) // 4, (kt + 1) % 4)
            a(mf[0]); [a(x) for x in ex[:4]]; [a(x) for x in val[0:6]]
            a(mf[2]); [a(x) for x in ex[4:]]; [a(x) for x in val[6:12]]
            a(mf[1]); [a(x) for x in val[12:18]]
            a(mf[3]); [a(x) for x in val[18:]]
            val = sm(1)
            a("s_waitcnt lgkmcnt(0)")
            if not last:
                mf = qk(0, st ^ 1) + pv(0, st)
                a(mf[0]); [a(x) for x in val[0:6]]
                a(mf[2]); [a(x) for x in val[6:12]]
                a(mf[1]); [a(x) for x in val[12:18]]
                a(mf[3]); [a(x) for x in val[18:]]
            else:
                mf = pv(0, st) + pv(1, st)
                a(mf[0]); [a(x) for x in val[0:6]]
                a(mf[1]); [a(x) for x in val[6:16]]
                a(mf[2]); [a(x) for x in val[16:]]
                a("s_nop 1"); a(mf[3])
    stamp(a, 8)
    fb = a.uid("att_fb"); comb = a.uid("att_comb"); done = a.uid("att_done"); yng = a.uid("att_y")
    XB = 102400
    a(f"""
    s_mul_i32 s{sC}, s{sQP}, 7168
    s_add_u32 s{sC}, s{sC}, {XB}
    v_add_u32 v1, s{sC}, v5
    s_lshl_b32 s{sTmp}, s{sQP}, 2
    s_add_u32 s{sTmp}, s{sTmp}, {XB + 28672}
    v_mov_b32 v{XF}, s{sTmp}
    v_lshrrev_b32 v2, 1, v5
    v_add_u32 v2, s{sC}, v2
    s_mul_i32 s{sTmp}, s{sR}, 5
    v_add_u32 v3, s{sTmp}, v14
    v_lshrrev_b32 v4, 1, v3
    v_and_b32 v3, 1, v3
    v_lshlrev_b32 v3, 3, v3
    v_lshl_add_u32 v3, v4, 9, v3
    v_lshl_add_u32 v3, v15, 4, v3
    """)
    a(f"v_mul_f32 v10, {f32(2.0**63)}, v{OO+12}")
    a(f"v_pk_mul_f32 v[12:13], v[{OO}:{OO+1}], 0")
    for i in range(2, 12, 2): a(f"v_pk_fma_f32 v[12:13], v[{OO+i}:{OO+i+1}], 0, v[12:13]")
    a(f"v_mul_f32 v11, {f32(2.0**63)}, v{OO+16+12}")
    a(f"v_pk_add_f32 v[10:11], v[10:11], v[10:11]\nv_pk_fma_f32 v[12:13], v[10:11], 0, v[12:13]")
    for i in range(0, 12, 2): a(f"v_pk_fma_f32 v[12:13], v[{OO+16+i}:{OO+16+i+1}], 0, v[12:13]")
    a(f"v_cmp_u_f32 vcc, v12, v13\ns_cbranch_vccnz {fb}")
    a.label(comb)
    a(f"s_cmp_eq_u32 s{sKH}, 0\ns_cbranch_scc1 {yng}")
    def older():
        a.label(yng)
        a(f"v_mov_b32 v{OO+13}, v8\nv_mov_b32 v{OO+16+13}, v9\nv_mov_b32 v10, s{sEP}")
        for x in range(2):
            for i in range(3):
                a(f"ds_write_b128 v1, v[{OO+16*x+4*i}:{OO+16*x+4*i+3}] offset:{3584*x+1024*i}")
            a(f"ds_write_b64 v2, v[{OO+16*x+12}:{OO+16*x+13}] offset:{3584*x+3072}")
        a(f"ds_write_b32 v{XF}, v10")
        a(f"s_setprio 0")
        stamp(a, 9)
    pl = a.uid("att_x")
    a.label(pl)
    a(f"ds_read_b32 v10, v{XF}")
    for x in range(2):
        a(f"ds_read_b64 v[{76+16*x}:{77+16*x}], v2 offset:{3584*x+3072}")
    for x in range(2):
        for i in range(3):
            a(f"ds_read_b128 v[{64+16*x+4*i}:{64+16*x+4*i+3}], v1 offset:{3584*x+1024*i}")
    a(f"""
    s_lshl_b32 s{sTmp}, s{sG}, 2
    s_add_u32 s{sTmp}, s{sTmp}, s{sQP}
    s_mul_i32 s{sPF}, s{sTmp}, 81920
    s_add_u32 s{sPF}, s{sPF}, s{sLO}
    s_add_u32 s{sPF}, s{sPF}, {L_O}
    s_add_u32 s{sC}, s{sPF}, 40960
    s_waitcnt lgkmcnt(6)
    v_cmp_ne_u32 vcc, s{sEP}, v10
    s_cbranch_vccnz {pl}
    """)
    for x in range(2):
        f = 16 + 4*x
        a(f"v_max_f32 v{f+2}, v{8+x}, v{77+16*x}\nv_sub_f32 v{f}, v{8+x}, v{f+2}\nv_sub_f32 v{f+1}, v{77+16*x}, v{f+2}")
    for x in range(2):
        f = 16 + 4*x
        a(f"v_exp_f32 v{f}, v{f}\nv_exp_f32 v{f+1}, v{f+1}")
    for x in range(2):
        f = 16 + 4*x
        a(f"v_mul_f32 v{f+2}, v{f}, v{OO+16*x+12}\nv_fmac_f32 v{f+2}, v{f+1}, v{76+16*x}")
    a("v_rcp_f32 v18, v18\nv_rcp_f32 v22, v22\ns_waitcnt lgkmcnt(0)")
    for x in range(2):
        f = 16 + 4*x; o = OO + 16*x
        a(f"v_mul_f32 v{f}, v{f}, v{f+2}\nv_mul_f32 v{f+2}, v{f+1}, v{f+2}")
        for i in range(0, 12, 2):
            a(f"v_pk_mul_f32 v[{o+i}:{o+i+1}], v[{o+i}:{o+i+1}], v[{f}:{f+1}] op_sel_hi:[1,0]")
        for i in range(0, 12, 2):
            a(f"v_pk_fma_f32 v[{o+i}:{o+i+1}], v[{64+16*x+i}:{65+16*x+i}], v[{f+2}:{f+3}], v[{o+i}:{o+i+1}] op_sel_hi:[1,0,1]")
        for i in range(6):
            a(f"v_cvt_pk_bf16_f32 v{o+i}, v{o+2*i}, v{o+2*i+1}")
        sd = sPF if x == 0 else sC
        a(f"""
        buffer_store_dwordx2 v[{o}:{o+1}], v3, {WSR}, s{sd} offen {SB}
        buffer_store_dwordx2 v[{o+2}:{o+3}], v3, {WSR}, s{sd} offen offset:512 {SB}
        s_mov_b32 exec_hi, 0
        buffer_store_dwordx2 v[{o+4}:{o+5}], v3, {WSR}, s{sd} offen offset:1024 {SB}
        s_mov_b32 exec_hi, -1
        """)
    flag_setup(a, 2)
    a("s_barrier\ns_waitcnt vmcnt(0)")
    flag_store(a, SB)
    stamp(a, 9)
    a(f"s_branch {ld_label}")
    for hk, fn in outl:
        a.label(hk); fn(); a(f"s_branch {hk}r")
    older()
    def fallback():
        a.label(fb)
        sKb, sVb, sI = t+12, t+13, t+14
        def addr():
            a(f"""
            s_lshr_b32 s{sKb}, s{sI}, 2
            s_lshl_b32 s{sKb}, s{sKb}, 1
            s_add_u32 s{sKb}, s{sKb}, s{sKH}
            s_lshl_b32 s{sKb}, s{sKb}, 2
            s_and_b32 s{sVb}, s{sI}, 3
            s_add_u32 s{sKb}, s{sKb}, s{sVb}
            s_mul_i32 s{sKb}, s{sKb}, 1280
            s_add_u32 s{sKb}, s{sKb}, s{sHB}
            s_add_u32 s{sVb}, s{sKb}, {L_V}
            s_add_u32 s{sKb}, s{sKb}, {L_K}
            buffer_load_dwordx4 v[{KF}:{KF+3}], v5, {WSR}, s{sKb} offen sc1
            buffer_load_dwordx2 v[{KF+4}:{KF+5}], v6, {WSR}, s{sKb} offen offset:1024 sc1
            """)
        l1 = a.uid("att_fb1"); l2 = a.uid("att_fb2")
        a(f"s_mov_b32 s{sI}, 0\nv_mov_b32 v8, 0xff800000\nv_mov_b32 v9, 0xff800000")
        a.label(l1)
        addr()
        a("s_waitcnt vmcnt(0)")
        for x in range(2):
            for m in qk(x, 0, "0"): a(m)
        a.nop(12)
        for x in range(2):
            sd = SS + 16*x
            for i in range(0, 16, 2): a(f"v_max3_f32 v{8+x}, v{8+x}, v{sd+i}, v{sd+i+1}")
        a(f"s_add_u32 s{sI}, s{sI}, 1\ns_cmp_lt_u32 s{sI}, 32\ns_cbranch_scc1 {l1}")
        setm()
        for i in range(32): a(f"v_mov_b32 v{OO+i}, 0")
        a(f"s_mov_b32 s{sI}, 0")
        a.label(l2)
        addr()
        a(f"""
        s_mov_b64 exec, s[{sEX}:{sEX+1}]
        buffer_load_dwordx4 v[{VF}:{VF+3}], v7, {WSR}, s{sVb} offen sc1
        buffer_load_dwordx4 v[{VF+4}:{VF+7}], v7, {WSR}, s{sVb} offen offset:640 sc1
        s_mov_b64 exec, -1
        s_waitcnt vmcnt(0)
        """)
        for x in range(2):
            for m in qk(x, 0): a(m)
        a.nop(12)
        for x in range(2):
            for i in sm(x): a(i)
        a("s_nop 1")
        for x in range(2):
            for m in pv(x, 0): a(m)
        a(f"s_add_u32 s{sI}, s{sI}, 1\ns_cmp_lt_u32 s{sI}, 32\ns_cbranch_scc1 {l2}")
        a.nop(12)
        a(f"s_branch {comb}")
    return fallback

def xoff(SB, which):
    if SB == "": return (False, L_X1)
    return (True, L_X1) if which == 1 else (False, L_X2)
def add_x(a, dst, src, SB, which):
    lo, c = xoff(SB, which)
    a(f"s_add_u32 s{dst}, s{src}, {c}")
    if lo: a(f"s_add_u32 s{dst}, s{dst}, s{sLO}")

def proj_compute(a, down, SB, end_label):
    fast = SB == ""
    t = T
    K = F if down else D
    NCH = K // 128
    sRT, sCT = t, t+1
    st0 = 13 if down else 10
    sF, sRM, sST, sA, sA1, sThr, sSel = t+4, t+5, t+12, t+2, t+3, t+9, t+10
    NWS = 3 if down else C.wo_sets
    ACC = 14; RX = 34; AF = 54; WF = 134; RES = (220 if down else 54); VST = 200
    vF, vF2, vR, vR2 = 10, 11, 12, 13
    a(f"""
    s_lshr_b32 s{sRT}, s{sWG}, 3
    s_and_b32 s{sCT}, s{sR}, 7
    v_and_b32 v3, 15, v0
    v_lshrrev_b32 v7, 4, v0
    s_lshl_b32 s{t+6}, s{sRT}, 1
    s_lshr_b32 s{t+7}, s{sW}, 1
    s_add_u32 s{t+6}, s{t+6}, s{t+7}
    s_and_b32 s{t+8}, s{sW}, 1
    s_lshl_b32 s{t+8}, s{t+8}, 8
    s_mul_i32 s{sA}, s{t+6}, {K*64}
    s_add_u32 s{sA}, s{sA}, s{t+8}
    s_add_u32 s{sA}, s{sA}, s{sLO}
    s_add_u32 s{sA}, s{sA}, {L_H if down else L_O}
    s_mul_i32 s{sF}, s{t+6}, 40960
    s_mul_i32 s{t+7}, s{sCT}, 5120
    s_add_u32 s{sF}, s{sF}, s{t+7}
    s_add_u32 s{sF}, s{sF}, s{t+8}
    s_lshl_b32 s{sST}, s{sW}, 8
    s_lshl_b32 s{t+7}, s{sRT}, 12
    s_add_u32 s{sST}, s{sST}, s{t+7}
    s_add_u32 s{sST}, s{sST}, s{sLO}
    s_lshl_b32 s{sRM}, s{sRT}, 2
    s_add_u32 s{sRM}, s{sRM}, s{sW}
    s_mul_i32 s{sRM}, s{sRM}, {16*1280}
    s_mul_i32 s{t+7}, s{sCT}, 160
    s_add_u32 s{sRM}, s{sRM}, s{t+7}
    v_lshlrev_b32 v1, 4, v3
    v_lshl_add_u32 v{vF}, v7, 9, v1
    v_lshrrev_b32 v2, 5, v0
    v_lshl_add_u32 v1, v2, 9, v1
    v_and_b32 v2, 1, v7
    v_lshl_add_u32 v{vF2}, v2, 3, v1
    v_add_u32 v{vF2}, 4096, v{vF2}
    v_mul_u32_u24 v1, 1280, v3
    v_lshl_add_u32 v{vR}, v7, 4, v1
    v_lshl_add_u32 v{vR2}, v7, 3, v1
    v_add_u32 v9, 4096, v{vF}
    """)
    SA = Src(sA, sA1, sThr, 8192)
    if down:
        a(f"s_and_b32 s{t+7}, s{sRT}, 3\ns_mul_i32 s{t+7}, s{t+7}, {C.rot_dn}\ns_sub_u32 s{sThr}, 12, s{t+7}")
        SA.setup(a, t+7, 12, t+8)
    def io(store, rowmajor, rsrc, soff, reg, bits):
        op = "store" if store else "load"
        v16, v8 = (vR, vR2) if rowmajor else (vF, vF2)
        o1, o2 = (64, 128) if rowmajor else (2048, 0)
        return [f"buffer_{op}_dwordx4 v[{reg}:{reg+3}], v{v16}, {rsrc}, {soff} offen {bits}",
                f"buffer_{op}_dwordx4 v[{reg+4}:{reg+7}], v{v16}, {rsrc}, {soff} offen offset:{o1} {bits}",
                f"buffer_{op}_dwordx2 v[{reg+8}:{reg+9}], v{v8}, {rsrc}, {soff} offen offset:{o2} {bits}"]
    if down:
        add_x(a, t+7, sF, SB, 1)
        for x in io(False, False, WSR, f"s{t+7}", RES, "sc1"): a(x)
        a(f"s_add_u32 s{t+7}, s{sST}, {L_ST1}\nv_lshlrev_b32 v1, 4, v3")
        for i in range(4):
            a(f"buffer_load_dwordx4 v[{VST+4*i}:{VST+4*i+3}], v1, {WSR}, s{t+7} offen offset:{1024*i} sc1")
        if fast:
            a(f"s_lshl_b32 s{t+8}, s{sWG}, 9\ns_add_u32 s{t+8}, s{t+8}, {L_ST2}\nv_lshlrev_b32 v1, 7, v0\ns_mov_b64 exec, 15")
            a(f"buffer_load_dword v8, v1, {WSR}, s{t+8} offen\ns_mov_b64 exec, -1")
    else:
        l1 = a.uid("prj_r1"); l2 = a.uid("prj_r2")
        a(f"s_cmp_lg_u32 s{sL}, 0\ns_cbranch_scc1 {l1}")
        for x in io(False, True, R(R_X), f"s{sRM}", RES, ""): a(x)
        a(f"s_branch {l2}")
        a.label(l1)
        add_x(a, t+7, sF, SB, 2)
        for x in io(False, False, WSR, f"s{t+7}", RES, "sc1"): a(x)
        a.label(l2)
    a(f"v_lshlrev_b32 v4, 4, v0\nv_add_u32 v5, 61440, v4\nv_add_u32 v6, 122880, v4\ns_mov_b32 s{t+8}, 0xffff0000")
    def wadr(c):
        o = dnW(c) if down else c * 20480
        return 4 + o // 61440, o % 61440
    def reads(c, u):
        b = WF + 20*((4*c + u) % NWS); r, o = wadr(c)
        return [f"ds_read_b128 v[{b+4*jn}:{b+4*jn+3}], v{r} offset:{o + 5120*u + 1024*jn}" for jn in range(5)]
    NAS = 5
    def aload(c):
        r = []
        if down: r += [f"s_cmp_gt_u32 s{sThr}, {c}", f"s_cselect_b32 s{sSel}, s{sA}, s{sA1}", f"s_add_u32 s{sSel}, s{sSel}, {c*8192}"]
        else: r += [f"s_add_u32 s{sSel}, s{sA}, {c*8192}"]
        for u in range(4):
            d = AF + 16*(c % NAS) + 4*u
            r.append(f"buffer_load_dwordx4 v[{d}:{d+3}], v{vF if u < 2 else 9}, {WSR}, s{sSel} offen offset:{2048*(u & 1)} sc1")
        return r
    def mfmas(c, u, zero=False):
        b = WF + 20*((4*c + u) % NWS); x = AF + 16*(c % NAS) + 4*u
        return [f"v_mfma_f32_16x16x32_bf16 {v(ACC+4*jn,4)}, {v(b+4*jn,4)}, {v(x,4)}, {0 if zero else v(ACC+4*jn,4)}" for jn in range(5)]
    D_ = NWS - 1
    rd = lambda st_: reads(st_ // 4, st_ % 4) if st_ < 4*NCH else []
    if down: a(f"s_and_b32 s{t+7}, s{sRT}, 3\ns_mul_i32 s{t+7}, s{t+7}, {4 if C.rot_dn else 0}")
    G_ = gate_local(a, "down" if down else "wo", 4 if down else 2, 1, 2, t+7)
    def setup2():
        if not down: a("s_waitcnt vmcnt(0)")
        for i in range(10):
            a(f"v_lshlrev_b32 v{RX+2*i}, 16, v{RES+i}\nv_and_b32 v{RX+1+2*i}, s{t+8}, v{RES+i}")
        if down:
            row_stats(a, VST, VST + 2, VST + 3)
            a(f"v_mul_f32 v{VST+2}, v{VST+3}, v{VST+3}")
        a("s_barrier")
        for st_ in range(D_):
            for x in rd(st_): a(x)
    if not down: setup2()
    def al(c):
        G_.need(span(128*c, 128*c + 127, 96, 2) if down else span(128*c, 128*c + 127, 20, 1))
        if c == 0: stamp(a, st0)
        for x in aload(c): a(x)
    NPRE = C.dn_a if down else 5
    for c in range(NPRE): al(c)
    if down: setup2()
    issued = 4 * NPRE
    for c in range(NCH):
        for u in range(4):
            step = 4*c + u
            left = min(D_ - 1, 4*NCH - 1 - step)
            a(f"s_waitcnt vmcnt({issued - step - 1}) lgkmcnt({min(15, 5*left)})")
            if step == 4*NCH - 1 or (down and u == 2 and c + 1 < NCH): a("s_barrier")
            interleave(a, mfmas(c, u, step == 0), rd(step + D_))
            if u == 0 and c + NPRE < NCH:
                assert NPRE < NAS
                al(c + NPRE); issued += 4
    stamp(a, st0 + 1)
    add_x(a, t+7, sF, SB, 2 if down else 1)
    flag_setup(a, 5 if down else 3)
    for i in range(0, 20, 2):
        c = ACC + i
        if down: a(f"v_pk_fma_f32 v[{c}:{c+1}], v[{c}:{c+1}], v[{VST+2}:{VST+3}], v[{RX+i}:{RX+i+1}] op_sel_hi:[1,0,1]")
        else: a(f"v_pk_add_f32 v[{c}:{c+1}], v[{c}:{c+1}], v[{RX+i}:{RX+i+1}]")
        a(f"v_cvt_pk_bf16_f32 v{60+i//2}, v{c}, v{c+1}")
    if down:
        l1 = a.uid("prj_o1")
        a(f"s_cmp_eq_u32 s{sL}, 0\ns_cbranch_scc1 {l1}")
        srd(a, R_T, P_OUT, ACT)
        for x in io(True, True, R(R_T), f"s{sRM}", 60, ""): a(x)
        a(f"s_branch {end_label}")
        a.label(l1)
    for x in io(True, False, WSR, f"s{t+7}", 60, SB): a(x)
    a(f"v_pk_add_f32 v[72:73], v[{ACC}:{ACC+1}], v[{ACC+2}:{ACC+3}]\nv_pk_mul_f32 v[74:75], v[{ACC}:{ACC+1}], v[{ACC}:{ACC+1}]")
    a(f"v_pk_fma_f32 v[74:75], v[{ACC+2}:{ACC+3}], v[{ACC+2}:{ACC+3}], v[74:75]")
    for i in range(4, 20, 2):
        a(f"v_pk_add_f32 v[72:73], v[72:73], v[{ACC+i}:{ACC+i+1}]\nv_pk_fma_f32 v[74:75], v[{ACC+i}:{ACC+i+1}], v[{ACC+i}:{ACC+i+1}], v[74:75]")
    a(f"""
    v_add_f32 v72, v72, v73
    v_add_f32 v73, v74, v75
    s_lshr_b32 s{t+7}, s{sCT}, 1
    s_lshl_b32 s{t+7}, s{t+7}, 10
    v_permlane32_swap_b32 v72, v73
    s_and_b32 s{t+8}, s{sCT}, 1
    s_lshl_b32 s{t+8}, s{t+8}, 3
    v_add_f32 v72, v72, v73
    v_mov_b32 v73, v72
    s_add_u32 s{t+7}, s{t+7}, s{t+8}
    s_add_u32 s{t+7}, s{t+7}, s{sST}
    v_permlane16_swap_b32 v72, v73
    s_add_u32 s{t+7}, s{t+7}, {L_ST2 if down else L_ST1}
    v_lshrrev_b32 v8, 5, v0
    v_lshlrev_b32 v8, 2, v8
    v_lshl_add_u32 v8, v3, 4, v8
    v_add_f32 v72, v72, v73
    buffer_store_dword v72, v8, {WSR}, s{t+7} offen {SB}
    s_waitcnt vmcnt(0)
    """)
    flag_store(a, SB)
    stamp(a, st0 + 2)

def gu_compute(a, SB):
    t = T
    sRT, sCT, sWM, sWN, sTB, sF0 = t, t+1, t+2, t+3, t+4, t+6
    FR = 14; ACC = 94; VCS = 190; VST = 238; MS = 8
    a(f"""
    s_lshr_b32 s{sRT}, s{sWG}, 4
    s_and_b32 s{sCT}, s{sR}, 15
    s_and_b32 s{sWM}, s{sW}, 1
    s_lshr_b32 s{sWN}, s{sW}, 1
    s_lshl_b32 s{sTB}, s{sRT}, 1
    s_add_u32 s{sTB}, s{sTB}, s{sWM}
    s_mul_i32 s{sF0}, s{sCT}, 96
    s_mul_i32 s{t+5}, s{sWN}, 48
    s_add_u32 s{sF0}, s{sF0}, s{t+5}
    s_mul_i32 s{t+5}, s{sWG}, 768
    s_mul_i32 s{t+7}, s{sWN}, 384
    s_add_u32 s{t+5}, s{t+5}, s{t+7}
    s_add_u32 s{t+5}, s{t+5}, {WS_CSG}
    v_lshrrev_b32 v12, 5, v0
    v_lshlrev_b32 v1, 6, v12
    """)
    for jn in range(3):
        for q in range(4):
            r = VCS + 16*jn + 4*q
            a(f"buffer_load_dwordx4 v[{r}:{r+3}], v1, {WSR}, s{t+5} offen offset:{128*jn+16*q} sc1")
    a(f"""
    s_lshl_b32 s{t+5}, s{sWM}, 13
    v_lshlrev_b32 v11, 4, v0
    v_add_u32 v3, s{t+5}, v11
    s_mul_i32 s{t+5}, s{sWN}, 3072
    s_add_u32 s{t+5}, s{t+5}, {WB}
    v_add_u32 v4, s{t+5}, v11
    v_add_u32 v5, 49152, v4
    s_mul_i32 s{t+11}, s{sTB}, {2*F*64}
    s_lshl_b32 s{t+7}, s{sF0}, 6
    s_add_u32 s{t+11}, s{t+11}, s{t+7}
    s_add_u32 s{t+11}, s{t+11}, s{sLO}
    s_add_u32 s{t+11}, s{t+11}, {L_H}
    s_add_u32 s{t+12}, s{t+11}, {F*64}
    """)
    flag_setup(a, 4)
    for i in range(0, 96, 2): a(f"v_mov_b64 v[{ACC+i}:{ACC+i+1}], 0")
    def reads(c, kk):
        b = FR + 20*kk; r = []
        for tm in range(2):
            r.append(f"ds_read_b128 v[{b+4*tm}:{b+4*tm+3}], v3 offset:{(c % 4)*16384+4096*tm+1024*kk}")
        o = guW(c) - WB
        for jn in range(3):
            d = b + 8 + 4*jn
            r.append(f"ds_read_b128 v[{d}:{d+3}], v{4 + o // 49152} offset:{o % 49152 + 6144*kk+1024*jn}")
        return r
    def mfma(kk, tl):
        b = FR + 20*kk; c = ACC + 16*tl
        return f"v_mfma_f32_32x32x16_bf16 {v(c,16)}, {v(b+8+4*(tl>>1),4)}, {v(b+4*(tl&1),4)}, {v(c,16)}"
    def epi(jn, pk):
        r = []
        for tm in range(2):
            c = ACC + 16*(2*jn + tm)
            for i in range(8): r.append(f"v_max_f32 v{c+i}, 0, v{c+i}")
            if pk:
                for i in range(0, 8, 2): r.append(f"v_pk_mul_f32 v[{c+i}:{c+i+1}], v[{c+i}:{c+i+1}], v[{c+8+i}:{c+9+i}]")
            else:
                for i in range(8): r.append(f"v_mul_f32 v{c+i}, v{c+i}, v{c+8+i}")
            for i in range(4): r.append(f"v_cvt_pk_bf16_f32 v{c+i}, v{c+2*i}, v{c+2*i+1}")
            r.append(f"buffer_store_dwordx4 v[{c}:{c+3}], v11, {WSR}, s{t+11+tm} offen offset:{1024*jn} {SB}")
        return r
    a(f"s_lshl_b32 s{t+5}, s{sTB}, 12\ns_add_u32 s{t+5}, s{t+5}, s{sLO}\ns_add_u32 s{t+5}, s{t+5}, {L_ST1}")
    ins = {}
    for i in range(4): ins[48 + 3*i] = [f"buffer_load_dwordx4 v[{VST+4*i}:{VST+4*i+3}], v11, {WSR}, s{t+5} offen offset:{1024*i} sc1"]
    if SB == "" and C.htouch > 0:
        a(f"""
        v_mul_u32_u24 v6, 171, v0
        v_lshrrev_b32 v6, 12, v6
        v_mul_u32_u24 v7, {F*64 - 24*128}, v6
        v_lshl_add_u32 v6, v0, 7, v7
        """)
        ins[C.htouch] = ["s_mov_b32 exec_hi, 0xffff", f"buffer_load_dword v7, v6, {WSR}, s{t+11} offen", "s_mov_b32 exec_hi, -1"]
    ins[100] = ["s_waitcnt vmcnt(0)"] + [f"v_add_f32 v{VST}, v{VST}, v{VST+2*i}" for i in range(1, 8)] + \
         [f"v_mul_f32 v{MS}, {f32(-1.0/D)}, v{VST}", f"v_mul_f32 v{MS+1}, {f32(-1.0/D)}, v{VST}", "s_nop 1", f"v_permlane32_swap_b32 v{MS}, v{MS+1}"]
    fix = lambda tl: [f"v_fmac_f32 v{ACC+16*tl+i}, v{MS+(tl&1)}, v{VCS+16*(tl>>1)+i}" for i in range(16)]
    gemm_unrolled(a, 10, 6, 5, reads, mfma, [(0, 1), (2, 3), (4, 5)], ins, fix, 110, epi, 22)
    a("s_waitcnt vmcnt(0)")
    flag_store(a, SB)
    stamp(a, 23)

def loader_chain(a, SB, end_label, idle_label):
    t = T
    sLW, s4, s5, s6, aGU, aGU1, wGU, wGU1, wDN, wDN1, aQK, aQK1, wQK, wQK1, th10, th12, sTmp, sSel, thq = range(t, t + 19)
    sRot = sSel
    a(f"""
    s_sub_u32 s{sLW}, s{sW}, 4
    v_lshlrev_b32 v8, 4, v0
    s_mul_i32 s{s6}, s{sLW}, 6144
    s_and_b32 s{wGU}, s{sR}, 15
    s_mul_i32 s{wGU}, s{wGU}, 245760
    s_add_u32 s{wGU}, s{wGU}, s{s6}
    s_add_u32 s{wGU}, s{wGU}, {WS_WTG}
    s_lshr_b32 s{sRot}, s{sR}, 4
    s_mul_i32 s{sRot}, s{sRot}, {C.rot_gu}
    s_sub_u32 s{th10}, 10, s{sRot}
    """)
    S_aGU = Src(aGU, aGU1, th10, 4096); S_wGU = Src(wGU, wGU1, th10, 24576); S_wDN = Src(wDN, wDN1, th12, 20480)
    S_aQK = Src(aQK, aQK1, thq, 4096); S_wQK = Src(wQK, wQK1, thq, 64*3840)
    S_wGU.setup(a, sRot, 10, sTmp)
    def rest():
        a(f"""
        s_lshl_b32 s{s4}, s{sLW}, 12
        s_mul_i32 s{s5}, s{sLW}, 5120
        s_lshr_b32 s{aQK}, s{sWG}, 4
        s_lshl_b32 s{aQK}, s{aQK}, 2
        s_add_u32 s{aQK}, s{aQK}, s{sLW}
        s_mul_i32 s{aQK}, s{aQK}, 40960
        """)
        add_x(a, aGU, aQK, SB, 1)
        add_x(a, aQK, aQK, SB, 2)
        a(f"s_and_b32 s{wDN}, s{sR}, 15")
        qkvW_setup(a, wQK, sLW, wDN, sTmp, 6)
        a(f"s_sub_u32 s{sRot}, 10, s{th10}")
        S_aGU.setup(a, sRot, 10, sTmp)
        a(f"s_lshr_b32 s{sRot}, s{sR}, 4\ns_mul_i32 s{sRot}, s{sRot}, {C.rot_qk}\ns_sub_u32 s{thq}, 10, s{sRot}")
        for S_ in (S_aQK, S_wQK): S_.setup(a, sRot, 10, sTmp)
        a(f"""
        s_and_b32 s{wDN}, s{sR}, 7
        s_mul_i32 s{wDN}, s{wDN}, 245760
        s_add_u32 s{wDN}, s{wDN}, s{s5}
        s_add_u32 s{wDN}, s{wDN}, {WS_WTD}
        s_lshr_b32 s{sRot}, s{sR}, 3
        s_mul_i32 s{sRot}, s{sRot}, {C.rot_dn}
        s_sub_u32 s{th12}, 12, s{sRot}
        """)
        S_wDN.setup(a, sRot, 12, sTmp)
    G_ = [None, None]
    def lin(S_, dst, dfn, bits):
        def f(c, i0, k):
            if bits == "sc1":
                G_[0].need(span(64*c, 64*c + 63, 80, 2) if C.gran else 0xffff)
                if G_[1] is not None: stamp(a, G_[1]); G_[1] = None
            S_.sel(a, c, sSel)
            lin_dma(a, 8, sSel, c*S_.stride + 1024*i0, dst, dfn(c) + 1024*i0, k, bits)
        return f
    def pf(kind, ep, st, rot):
        def f():
            a(f"s_lshr_b32 s{sTmp}, s{sR}, 4\ns_mul_i32 s{sTmp}, s{sTmp}, {4 if rot else 0}")
            G_[0] = gate_local(a, kind, ep, 1, 2, sTmp, sleep=C.psleep); G_[1] = st
        return f
    def emitWQ(c, i0, k):
        S_wQK.sel(a, c, sSel)
        for i in range(i0, i0 + k):
            a(f"s_add_u32 m0, s{s4}, {qkW(c) + 1024*i}\ns_add_u32 s{sTmp}, s{sSel}, {c*64*3840 + i*4*3840}")
            a(f"buffer_load_dwordx4 v6, {R(R_WQ)}, s{sTmp} offen {'nt' if C.nt_qk else ''} lds")
    rA = lambda c: (c % 4) * 16384
    full = lambda c: G_[0].need(0xffff) if c == 1 else None
    reg = lambda f, sz: (lambda c: (f(c), f(c) + sz))
    gu = Phase("gu", 10, 4, 6, lin(S_aGU, s4, rA, "sc1"), lin(S_wGU, s6, guW, "nt" if C.nt_gu else ""), reg(rA, 16384), reg(guW, 24576), pf("gu", 3, 21, C.rot_gu), C.bud_gu, dbg=(C.dbg == 3), after_bar=full)
    dn = Phase("dn", 12, 0, 5, None, lin(S_wDN, s5, dnW, "nt" if C.nt_dn else ""), None, reg(dnW, 20480), None, C.bud_dn, lag=2, early=C.dn_early, dbg=(C.dbg == 4))
    qk = Phase("qk", 10, 4, 4, lin(S_aQK, s4, rA, "sc1"), emitWQ, reg(rA, 16384), reg(qkW, 16384), pf("gu", 5, 17, C.rot_qk), C.bud_qk, early=C.qk_early, dbg=(C.dbg == 2), after_bar=full)
    L = Loader(a)
    L.live["wo"] = (0, 102400)
    pn = L.pre(gu, 0, C.gu_e)
    rest()
    a("s_barrier")
    L.live.pop("wo")
    pn = L.pre(gu, pn, C.gu_e2)
    pn = L.run(gu, dn, pn); stamp(a, 22); L.end(gu); pn = L.pre(dn, pn, C.dn_e)
    pn = L.run(dn, qk, pn); stamp(a, 14); L.end(dn)
    a(f"s_cmp_lg_u32 s{sL}, 0\ns_cbranch_scc1 {end_label}")
    a(f"s_and_b32 s{sTmp}, s{sR}, 15\ns_cmp_eq_u32 s{sTmp}, 15\ns_cbranch_scc1 {idle_label}")
    pn = L.pre(qk, pn, C.qk_e)
    L.run(qk, None, pn); stamp(a, 19); L.end(qk)

def build():
    a = Asm()
    K = NAME + "_kernel"
    t = T
    a(f".globl {K}\n.p2align 8\n.type {K},@function")
    a.label(K)
    a(f"""
    s_load_dwordx16 s[16:31], s[0:1], 0
    s_load_dwordx4 s[32:35], s[0:1], 64
    s_cmp_ge_u32 s2, 256
    s_cbranch_scc1 L_exit
    s_and_b32 s{sG}, s2, 7
    s_lshr_b32 s{sR}, s2, 3
    v_lshrrev_b32 v1, 6, v0
    v_and_b32 v0, 63, v0
    v_readfirstlane_b32 s{sW}, v1
    s_lshl_b32 s{sWG}, s{sG}, 5
    s_add_u32 s{sWG}, s{sWG}, s{sR}
    s_mov_b32 s{sL}, 0
    s_mov_b32 s{sLO}, 0
    s_mov_b32 s{sEP}, 0
    s_mov_b32 s{sTMO}, 0
    """)
    if C.stamp: a("v_mov_b32 v255, 0\nv_mov_b32 v254, 0\ns_memrealtime s[14:15]")
    stamp(a, 0)
    qkv_ids(a, t)
    a(f"s_cmp_lt_u32 s{sW}, 4\ns_cbranch_scc1 L_q1c\ns_cmp_eq_u32 s{t+1}, 15\ns_cbranch_scc1 L_q1c")
    qkv1_loader(a)
    a("s_branch L_q1done")
    a.label("L_q1c")
    a("s_waitcnt lgkmcnt(0)")
    srd(a, R_X, P_X, ACT)
    srd(a, R_WQ, P_WQKV, D*3*D*2)
    if C.q1pf:
        a(f"""
        s_cmp_lt_u32 s{sW}, 2
        s_cbranch_scc1 L_npf
        s_cmp_gt_u32 s{sW}, 3
        s_cbranch_scc1 L_npf
        s_lshl_b32 s{t+8}, s{sWG}, 1
        s_add_u32 s{t+8}, s{t+8}, s{sW}
        s_sub_u32 s{t+8}, s{t+8}, 2
        s_mul_i32 s{t+9}, s{t+8}, 4864
        s_mul_i32 s{t+8}, s{t+8}, 5120
        v_lshlrev_b32 v1, 7, v0
        s_mov_b32 exec_hi, 0xff
        buffer_load_dword v251, v1, {R(R_X)}, s{t+8} offen
        s_mov_b32 exec_hi, 0x3f
        buffer_load_dword v251, v1, {R(R_WQ)}, s{t+9} offen
        s_mov_b32 exec_hi, -1
        """)
        a.label("L_npf")
    other_srds(a)
    a(f"""
    s_cmp_lg_u32 s{sW}, 1
    s_cbranch_scc1 L_n1
    s_getpc_b64 s[{t+8}:{t+9}]
    """)
    a.label("L_pc")
    a(f"""
    s_sub_u32 s{t+8}, s{t+8}, L_pc-{K}
    s_subb_u32 s{t+9}, s{t+9}, 0
    s_and_b32 s{t+10}, s{sR}, 15
    s_lshl_b32 s{t+10}, s{t+10}, 13
    v_lshlrev_b32 v1, 7, v0
    v_add_u32 v1, s{t+10}, v1
    v_min_u32 v1, L_fast_end-{K}, v1
    global_load_dword v251, v1, s[{t+8}:{t+9}]
    """)
    a.label("L_n1")
    a(f"s_cmp_lg_u32 s{sW}, 0\ns_cbranch_scc1 L_n0")
    nonce_put(a)
    a.label("L_n0")
    a(f"s_cmp_eq_u32 s{t+1}, 15\ns_cbranch_scc1 L_q1idle")
    qkv_compute(a, True, "sc1")
    a("s_branch L_q1done")
    a.label("L_q1idle")
    qkv1_idle(a)
    a.label("L_q1done")
    a(f"s_cmp_eq_u32 s{sMODE}, 0\ns_cbranch_scc1 L_slow")
    tails = []
    for nm, SB in (("fast", ""), ("slow", "sc1")):
        a.label(f"L_{nm}")
        tails.append(phase_attn(a, SB, f"L_{nm}_ld"))
        proj_compute(a, False, SB, None)
        gu_compute(a, SB)
        proj_compute(a, True, SB, "L_end")
        qkv_ids(a, t)
        a(f"s_cmp_eq_u32 s{t+1}, 15\ns_cbranch_scc1 L_{nm}_idle")
        qkv_compute(a, False, SB)
        a(f"s_branch L_{nm}_next")
        a.label(f"L_{nm}_ld")
        loader_chain(a, SB, "L_end", f"L_{nm}_idle")
        a(f"s_branch L_{nm}_next")
        a.label(f"L_{nm}_idle")
        a("s_waitcnt vmcnt(0)\ns_barrier")
        a.label(f"L_{nm}_next")
        a(f"s_mov_b32 s{sL}, 1\ns_mov_b32 s{sLO}, {LSTRIDE}\ns_add_u32 s{sEP}, s{sEP}, 5\ns_mov_b32 s{R_WQ+2}, 0\ns_branch L_{nm}")
        if nm == "fast":
            a.label("L_end")
            a(f"""
            s_xor_b32 s{t}, s{sW}, 7
            s_or_b32 s{t}, s{t}, s2
            s_cmp_lg_u32 s{t}, 0
            s_cbranch_scc1 L_end2
            v_mov_b32 v1, 0
            s_mov_b64 exec, 1
            global_store_dword v1, v1, s[{P_DBG}:{P_DBG+1}] sc1
            s_mov_b64 exec, -1
            """)
            a.label("L_end2")
            if C.stamp:
                a("s_waitcnt vmcnt(0)")
                stamp(a, 16)
                a(f"""
                s_memrealtime s[10:11]
                s_waitcnt lgkmcnt(0)
                v_writelane_b32 v255, s14, 62
                v_writelane_b32 v255, s10, 63
                v_writelane_b32 v255, s{sTMO}, 61
                s_lshl_b32 s10, s2, 3
                s_add_u32 s10, s10, s{sW}
                s_lshl_b32 s10, s10, 8
                s_add_u32 s10, s10, {WS_STAMP}
                v_lshlrev_b32 v1, 2, v0
                v_add_u32 v1, s10, v1
                global_store_dword v1, v255, s[{P_WS}:{P_WS+1}]
                v_add_u32 v1, {1<<20}, v1
                global_store_dword v1, v254, s[{P_WS}:{P_WS+1}]
                """)
            a.label("L_exit")
            a("s_endpgm")
            a.label("L_fast_end")
    for f in tails: f()
    hdr = open("cdna_kernels/" + NAME + ".s.ref").read().split("; Override")[0]
    hdr += "; @launch grid=(256,1,1) block=(512,1,1) lds=163840\n"
    txt = hdr + '.amdgcn_target "amdgcn-amd-amdhsa--gfx950"\n.text\n' + a.text() + f'''.section .rodata,"a"
.p2align 6
.amdhsa_kernel {K}
  .amdhsa_next_free_vgpr 256
  .amdhsa_next_free_sgpr 102
  .amdhsa_accum_offset 256
  .amdhsa_group_segment_fixed_size 0
  .amdhsa_kernarg_size 80
  .amdhsa_user_sgpr_count 2
  .amdhsa_user_sgpr_kernarg_segment_ptr 1
  .amdhsa_system_sgpr_workgroup_id_x 1
.end_amdhsa_kernel
'''
    for p in check(a.lines): print("HAZARD", p)
    return txt

if __name__ == "__main__":
    out = sys.argv[1] if len(sys.argv) > 1 else "cdna_kernels/" + NAME + ".s"
    for kv in sys.argv[2:]:
        k, _, val = kv.partition("=")
        assert hasattr(C, k), k
        setattr(C, k, int(val) if val else True)
    open(out, "w").write(build())
    print("written", out)
```

```python
import sys, math, struct
sys.path.insert(0, "gen")
from asmlib import *

NAME = "interleave_layers__softmax_full_mha__glu_gated_reglu__prompt"
S, D, F, H, DH = 2048, 640, 1536, 32, 20
ACT = S * D * 2
HEADB = 81920
L_Q = 0
L_K = L_Q + ACT
L_V = L_K + ACT
L_O = L_V + ACT
L_X1 = L_O + ACT
L_X2 = L_X1 + ACT
L_H = L_X2 + ACT
L_ST1 = L_H + S * F * 2
L_ST2 = L_ST1 + S * 64
L_FG = L_ST2 + S * 64
LSTRIDE = L_FG + 32768
WS_WTO = 2 * LSTRIDE
WS_WTD = WS_WTO + D * D * 2
WS_WTG = WS_WTD + F * D * 2
WS_CSP = WS_WTG + 2 * F * D * 2
WS_CSG = WS_CSP + 10 * 12288
WS_CSQ = WS_CSG + 256 * 768
WS_FL = WS_CSQ + 256 * 512
WS_END = WS_FL + 8192
WS_SIZE = 268435456
WS_STAMP = 200 << 20
QSCALE = (DH ** -0.5) * math.log2(math.e)
def f32(x): return "0x%08x" % struct.unpack("<I", struct.pack("<f", x))[0]

P_X, P_WQKV, P_WO, P_BX, P_WG, P_WU, P_WD, P_OUT, P_DBG, P_WS = 16, 18, 20, 22, 24, 26, 28, 30, 32, 34
sL, sG, sR, sW, sLO, sEP, sTMO, sWG = 3, 4, 5, 6, 7, 8, 9, 13
R_WS, R_X, R_WQ, R_WG, R_WU, R_T = 36, 40, 44, 48, 52, 56
T = 60
WSR = f"s[{R_WS}:{R_WS+3}]"
def R(r): return f"s[{r}:{r+3}]"
SPIN = 200000

class Cfg:
    stamp = False
    dbg = 0
    dbgout = 0
    look = 6
    gu_e = 12
    dn_e = 8
    qk_e = 8
    bud_gu = 10
    bud_dn = 5
    bud_qk = 6
    bud_q1 = 10
    dn_a = 3
    psleep = 1
    gran = 3
    nt_kv = 0
    nt_wo = 0
    nt_gu = 0
    nt_dn = 0
    nt_qk = 0
    htouch = 0
    warm = 0
    gu_e2 = 0
    wo_sets = 6
    q1pf = 1
    l2pf = 12
    rot = 0
    x_hit = 0
    tlb = 0
    rot_gu = 0
    rot_dn = 0
    rot_qk = 0
    dn_early = 99
    qk_early = 99
C = Cfg()

def stamp(a, i):
    if not C.stamp: return
    a(f"s_memtime s[10:11]\ns_mul_i32 s12, s{sL}, 24\ns_add_u32 m0, s12, {i}\ns_waitcnt lgkmcnt(0)\nv_writelane_b32 v255, s10, m0")
    if C.dbg == 7: a(f"s_memrealtime s[10:11]\ns_waitcnt lgkmcnt(0)\nv_writelane_b32 v254, s10, m0")

def dstamp(a, d, i):
    if C.stamp and C.dbg == d: a(f"s_memtime s[10:11]\ns_lshl_b32 s12, s{sL}, 5\ns_add_u32 m0, s12, {i}\ns_waitcnt lgkmcnt(0)\nv_writelane_b32 v254, s10, m0")

def srd(a, r, ptr, size):
    a(f"s_mov_b32 s{r}, s{ptr}\ns_mov_b32 s{r+1}, s{ptr+1}\ns_mov_b32 s{r+2}, {size}\ns_mov_b32 s{r+3}, 0x20000")

def interleave(a, mf, other):
    n = len(mf); k = 0
    for i, m in enumerate(mf):
        a(m)
        tgt = (len(other) * (i + 1) + n - 1) // n
        while k < tgt:
            a(other[k]); k += 1

def poll(a, vaddr, vtmp, soff, want, sleep=0, pre=False, wide=False):
    lp = a.uid("poll"); ok = a.uid("pollok")
    cnt = T + 22
    a(f"s_mov_b32 s{cnt}, s{sTMO}")
    if pre: a(f"s_branch {lp}c")
    a.label(lp)
    if wide: a(f"buffer_load_dwordx4 v[{vtmp}:{vtmp+3}], v{vaddr}, {WSR}, {soff} offen sc1")
    else: a(f"buffer_load_dword v{vtmp}, v{vaddr}, {WSR}, {soff} offen sc1")
    if pre: a.label(lp + "c")
    a(f"s_waitcnt vmcnt(0)")
    a(f"v_subrev_u32 v{vtmp}, {want}, v{vtmp}")
    if wide:
        for i in range(1, 4): a(f"v_subrev_u32 v{vtmp+i}, {want}, v{vtmp+i}\nv_max_u32 v{vtmp}, v{vtmp}, v{vtmp+i}")
    a(f"v_cmp_lt_u32 vcc, 15, v{vtmp}")
    a(f"s_cbranch_vccz {ok}")
    if sleep: a(f"s_sleep {sleep}")
    a(f"s_add_u32 s{cnt}, s{cnt}, 1\ns_cmp_lt_u32 s{cnt}, {SPIN}\ns_cbranch_scc1 {lp}")
    a(f"s_mov_b32 s{sTMO}, {SPIN}")
    a.label(ok)

def poll_local(a, kind, ep, va=1, vt=2, sleep=0):
    t = T + 20
    if kind == "wo":
        a(f"v_and_b32 v{va}, 31, v0\nv_lshlrev_b32 v{va}, 5, v{va}\ns_lshr_b32 s{t}, s{sR}, 3\ns_lshl_b32 s{t}, s{t}, 2\ns_add_u32 s{t}, s{t}, 16")
    elif kind == "gu":
        a(f"v_lshrrev_b32 v{va}, 2, v0\nv_lshlrev_b32 v{va}, 5, v{va}\nv_and_b32 v{vt}, 3, v0\nv_lshl_add_u32 v{va}, v{vt}, 2, v{va}")
        a(f"s_lshr_b32 s{t}, s{sR}, 4\ns_lshl_b32 s{t}, s{t}, 9")
    elif kind == "down":
        a(f"v_bfe_u32 v{va}, v0, 1, 4\nv_lshlrev_b32 v{va}, 5, v{va}\nv_and_b32 v{vt}, 1, v0\nv_lshl_add_u32 v{va}, v{vt}, 3, v{va}")
        a(f"s_lshr_b32 s{t}, s{sR}, 4\ns_lshl_b32 s{t}, s{t}, 9\ns_bfe_u32 s{t+1}, s{sR}, 0x10003\ns_lshl_b32 s{t+1}, s{t+1}, 2\ns_add_u32 s{t}, s{t}, s{t+1}")
    elif kind == "attn":
        a(f"""
        v_bfe_u32 v{va}, v0, 2, 1
        v_mul_u32_u24 v{va}, 19, v{va}
        s_mul_i32 s{t}, s{sR}, 20
        v_add_u32 v{va}, s{t}, v{va}
        v_lshrrev_b32 v{va}, 7, v{va}
        v_lshrrev_b32 v{vt}, 4, v0
        v_min_u32 v{vt}, 2, v{vt}
        v_mad_u32_u24 v{va}, v{vt}, 5, v{va}
        v_bfe_u32 v{vt}, v0, 3, 1
        v_lshl_add_u32 v{va}, v{vt}, 4, v{va}
        v_lshlrev_b32 v{va}, 5, v{va}
        v_and_b32 v{vt}, 3, v0
        v_lshl_add_u32 v{va}, v{vt}, 2, v{va}
        s_mov_b32 s{t}, 0
        """)
    a(f"s_lshl_b32 s{t+1}, s{sG}, 10\ns_add_u32 s{t}, s{t}, s{t+1}\ns_add_u32 s{t}, s{t}, {WS_FL}\ns_add_u32 s{t+1}, s{sEP}, {ep}")
    poll(a, va, vt, f"s{t}", f"s{t+1}", sleep=sleep)

sNR, sGO, sGW = 92, 94, 95
class Gate:
    def __init__(self, a, va, vt, fold=False, sleep=0):
        self.a, self.va, self.vt, self.fold, self.sleep = a, va, vt, fold, sleep
        self.ok = 0
    def load(self): self.a(f"buffer_load_dword v{self.vt}, v{self.va}, {WSR}, s{sGO} offen sc1")
    def upd(self):
        self.a(f"s_waitcnt vmcnt(0)\nv_subrev_u32 v{self.vt}, s{sGW}, v{self.vt}\nv_cmp_lt_u32 s[{sNR}:{sNR+1}], 15, v{self.vt}")
        if self.fold: self.a(f"s_or_b32 s{sNR}, s{sNR}, s{sNR+1}")
    def reset(self): self.a(f"s_mov_b32 s{sNR}, -1")
    def need(self, mask):
        a = self.a
        mask &= ~self.ok
        if not mask: return
        self.ok |= mask
        lp = a.uid("gt"); cnt = T + 22
        a(f"s_and_b32 s{cnt}, s{sNR}, {hex(mask)}\ns_cbranch_scc0 {lp}k\ns_mov_b32 s{cnt}, s{sTMO}")
        a.label(lp)
        self.load(); self.upd()
        a(f"s_and_b32 s{cnt+1}, s{sNR}, {hex(mask)}\ns_cbranch_scc0 {lp}k")
        if self.sleep: a(f"s_sleep {self.sleep}")
        a(f"s_add_u32 s{cnt}, s{cnt}, 1\ns_cmp_lt_u32 s{cnt}, {SPIN}\ns_cbranch_scc1 {lp}\ns_mov_b32 s{sTMO}, {SPIN}")
        a.label(lp + "k")
def span(lo, hi, w, bits):
    m = 0
    for p in range(lo // w, hi // w + 1): m |= ((1 << bits) - 1) << (bits * p)
    return m
def gate_local(a, kind, ep, va, vt, sRotCt=None, sleep=0):
    t = T + 20
    if kind == "wo":
        a(f"v_and_b32 v{va}, 31, v0\nv_lshlrev_b32 v{va}, 5, v{va}\ns_lshr_b32 s{sGO}, s{sR}, 3\ns_lshl_b32 s{sGO}, s{sGO}, 2\ns_add_u32 s{sGO}, s{sGO}, 16")
    elif kind == "down":
        a(f"v_lshrrev_b32 v{va}, 1, v0\nv_add_u32 v{va}, s{sRotCt}, v{va}\nv_and_b32 v{va}, 15, v{va}\nv_lshlrev_b32 v{va}, 5, v{va}\nv_and_b32 v{vt}, 1, v0\nv_lshl_add_u32 v{va}, v{vt}, 3, v{va}")
        a(f"s_lshr_b32 s{sGO}, s{sR}, 4\ns_lshl_b32 s{sGO}, s{sGO}, 9\ns_bfe_u32 s{t+1}, s{sR}, 0x10003\ns_lshl_b32 s{t+1}, s{t+1}, 2\ns_add_u32 s{sGO}, s{sGO}, s{t+1}")
    elif kind == "gu":
        a(f"v_lshrrev_b32 v{va}, 1, v0\nv_add_u32 v{va}, s{sRotCt}, v{va}\nv_and_b32 v{va}, 7, v{va}\nv_lshlrev_b32 v{va}, 5, v{va}\nv_and_b32 v{vt}, 1, v0\nv_lshl_add_u32 v{va}, v{vt}, 2, v{va}")
        a(f"s_lshr_b32 s{sGO}, s{sR}, 4\ns_lshl_b32 s{sGO}, s{sGO}, 9\ns_bfe_u32 s{t+1}, s{sW}, 0x10001\ns_lshl_b32 s{t+1}, s{t+1}, 8\ns_add_u32 s{sGO}, s{sGO}, s{t+1}")
        a(f"s_and_b32 s{t+1}, s{sW}, 1\ns_lshl_b32 s{t+1}, s{t+1}, 3\ns_add_u32 s{sGO}, s{sGO}, s{t+1}")
    a(f"s_lshl_b32 s{t+1}, s{sG}, 10\ns_add_u32 s{sGO}, s{sGO}, s{t+1}\ns_add_u32 s{sGO}, s{sGO}, {WS_FL}\ns_add_u32 s{sGW}, s{sEP}, {ep}")
    g = Gate(a, va, vt, sleep=sleep); g.reset()
    return g

def flag_setup(a, ep):
    t = T + 20
    a(f"s_lshl_b32 s{t}, s{sWG}, 3\ns_add_u32 s{t}, s{t}, s{sW}\ns_lshl_b32 s{t}, s{t}, 2\ns_add_u32 s{t}, s{t}, {WS_FL}\ns_add_u32 s{t+1}, s{sEP}, {ep}")
    a(f"v_mov_b32 v1, 0\nv_mov_b32 v2, s{t+1}")
def flag_store(a, SB, s=T+20):
    a(f"s_mov_b64 exec, 1\nbuffer_store_dword v2, v1, {WSR}, s{s} offen {SB}\ns_mov_b64 exec, -1")
def publish_local(a, ep, SB):
    flag_setup(a, ep)
    a("s_waitcnt vmcnt(0)")
    flag_store(a, SB)

def row_stats(a, vst, vmean, vrstd):
    for i in range(1, 8):
        a(f"v_add_f32 v{vst}, v{vst}, v{vst+2*i}\nv_add_f32 v{vst+1}, v{vst+1}, v{vst+2*i+1}")
    finish_stats(a, vst, vst + 1, vmean, vrstd)

def finish_stats(a, vs, vq, vmean, vrstd):
    a(f"v_mul_f32 v{vmean}, {f32(1.0/D)}, v{vs}")
    a(f"v_mul_f32 v{vq}, {f32(1.0/D)}, v{vq}")
    a(f"v_fma_f32 v{vq}, -v{vmean}, v{vmean}, v{vq}")
    a(f"v_max_f32 v{vq}, 0, v{vq}")
    a(f"v_add_f32 v{vq}, {f32(1e-5)}, v{vq}")
    a(f"v_rsq_f32 v{vrstd}, v{vq}")
    a("s_nop 0")

def lin_dma(a, vaddr, src_s, src_off, dst_s, dst_off, npieces, bits="", rsrc=WSR, tmp=T+19):
    i = 0
    while i < npieces:
        k = min(4, npieces - i)
        a(f"s_add_u32 m0, s{dst_s}, {dst_off + 1024*i}")
        a(f"s_add_u32 s{tmp}, s{src_s}, {src_off + 1024*i}")
        for j in range(k):
            a(f"buffer_load_dwordx4 v{vaddr}, {rsrc}, s{tmp} offen offset:{1024*j} {bits} lds")
        i += k
    return npieces


def states(x):
    return int(x.split()[1]) + 1 if x.startswith("s_nop") else 1

def gemm_unrolled(a, n, P, nr, reads, mfma, groups, inserts, fix, fix_from, epi, st_end):
    seq = []
    def add(ms, fill, pre=()):
        k = 0
        for i, (kk, tl) in enumerate(ms):
            tgt = (len(fill) * (i + 1) + len(ms) - 1) // len(ms)
            seq.append([list(pre) if i == 0 else [], mfma(kk, tl), tl, list(fill[k:tgt])]); k = tgt
    step = lambda kk: [(kk, tl) for tl in range(P)]
    a("s_barrier")
    for x in reads(0, 0) + reads(0, 1): a(x)
    w = f"s_waitcnt lgkmcnt({nr})"
    for c in range(n - 1):
        add(step(0), reads(c, 2), [w])
        add(step(1), reads(c, 3), [w])
        add(step(2), [], [w])
        seq[-2][3] += ["s_waitcnt lgkmcnt(0)"]; seq[-1][3] += ["s_barrier"]
        add(step(3), reads(c + 1, 0) + reads(c + 1, 1))
    nmain = len(seq)
    for i0, ins in inserts.items():
        i = i0; ins = list(ins)
        while ins:
            room = 4 - sum(states(x) for x in seq[i][3]) - len(seq[i+1][0])
            if ins[0].startswith("s_mov_b32 exec") and room < 3: room = 0
            while room > 0 and ins and "s_barrier" not in seq[i][3]:
                x = ins.pop(0); seq[i][3].append(x); room -= states(x)
            i += 1

        end = fix_from if i0 < fix_from else nmain
        assert i <= end
        if any(x.startswith("ds_") for x in inserts[i0]): assert any("s_waitcnt lgkmcnt(0)" in seq[j][3] for j in range(i, end)), (i, end)
    todo = {tl: list(fix(tl)) for tl in range(P)}
    used = lambda g: sum(states(x) for x in seq[g][3]) + len(seq[g+1][0])
    g = fix_from + 2
    while any(todo.values()):
        assert g + 2 < nmain, "no room for fix"
        if used(g) < 5 and "s_barrier" not in seq[g][3]:
            for back in range(P - 2, 1, -1):
                tl = seq[g - back][2]
                if not todo[tl] or g - back < fix_from: continue
                have = sum(used(x) + 1 for x in range(g - back, g)) + sum(states(x) for x in seq[g][3])
                room = sum(max(0, 5 - used(x)) for x in range(g - back, g))
                if have + room < 12: continue
                for x in range(g - back, g):
                    k = min(5 - used(x), 12 - have)
                    if k > 0: seq[x][3].append(f"s_nop {k-1}"); have += k
                while used(g) < 5 and todo[tl]: seq[g][3].append(todo[tl].pop(0))
            if used(g + 1) < 1: seq[g + 1][3].append("s_nop 0")
        g += 1

    c = n - 1
    g0 = groups[0]
    seq[-1][3] += reads(c, 2)
    add([(kk, tl) for kk in (0, 1) for tl in g0], reads(c, 3), [w])
    add([(kk, tl) for kk in (2, 3) for tl in g0], [], ["s_waitcnt lgkmcnt(0)"])
    seq[-len(g0)*2][3].append("s_barrier")
    for gi in range(1, len(groups)):
        ms = [(kk, tl) for kk in range(4) for tl in groups[gi]]
        if gi == 1:
            seq[-1][3].append("s_nop 4")
            add(ms[:1], ["s_nop 4"]); add(ms[1:], epi(gi - 1, False))
        else: add(ms, ["s_nop 0"] + epi(gi - 1, False))
    for pre, m, tl, post in seq:
        for x in pre: a(x)
        a(m)
        for x in post: a(x)
    stamp(a, st_end)
    a.nop(3)
    for x in epi(len(groups) - 1, True): a(x)

class Src:
    def __init__(self, sB, sB1, sThr, stride): self.__dict__.update(locals())
    def setup(self, a, sRot, n, tmp):
        a(f"s_mul_i32 s{tmp}, s{sRot}, {self.stride}\ns_add_u32 s{self.sB}, s{self.sB}, s{tmp}\ns_sub_u32 s{self.sB1}, s{self.sB}, {n*self.stride}")
    def sel(self, a, c, dst):
        a(f"s_cmp_gt_u32 s{self.sThr}, {c}\ns_cselect_b32 s{dst}, s{self.sB}, s{self.sB1}")

class Phase:
    def __init__(self, name, n, npa, npw, emitA, emitW, regA, regW, pollfn, budget, lag=1, after_bar=None, dbg=False, early=99):
        self.__dict__.update(locals())

class Loader:
    def __init__(self, a):
        self.a = a; self.q = []; self.live = {}; self.waitfn = None
    def free(self, reg, key):
        return key in self.live or all(reg[1] <= lo or hi <= reg[0] for lo, hi in self.live.values())
    def can(self, ph, kind, c):
        return self.free((ph.regA if kind == "A" else ph.regW)(c), (ph.name, kind, c))
    def issue(self, ph, kind, c, i0, k):
        assert self.can(ph, kind, c)
        self.live[(ph.name, kind, c)] = (ph.regA if kind == "A" else ph.regW)(c)
        (ph.emitA if kind == "A" else ph.emitW)(c, i0, k)
        self.q += [(ph.name, kind, c)] * k
    def release(self, ph, c):
        for k in "AW": self.live.pop((ph.name, k, c), None)
    def wait(self, tags):
        last = -1
        for i, t in enumerate(self.q):
            if t in tags: last = i
        if last >= 0:
            n = len(self.q) - 1 - last
            assert n < 64
            self.q = self.q[last+1:]
            if self.waitfn: self.waitfn(n)
            else: self.a(f"s_waitcnt vmcnt({n})")
    def pre(self, ph, pw, cnt):
        done = 0
        while pw < ph.n * ph.npw and done < cnt and self.can(ph, "W", pw // ph.npw):
            k = min(4, ph.npw - pw % ph.npw, cnt - done)
            self.issue(ph, "W", pw // ph.npw, pw % ph.npw, k); pw += k; done += k
        return pw
    def run(self, ph, nxt, pw=0, after_poll=None, tail=None, waitfn=None):
        a = self.a; n = ph.n
        pa = 0; pn = 0
        if ph.pollfn: ph.pollfn()
        if after_poll: after_poll()
        for c in range(n):
            done = 0
            while True:
                needed = pa < (c + 1) * ph.npa or pw < (c + 1) * ph.npw
                if not needed:
                    beyond = 0
                    for t in reversed(self.q):
                        if t[0] == ph.name and t[2] <= c: break
                        beyond += 1
                    if beyond >= C.look and (done >= ph.budget or c == 0): break
                ca = pa // ph.npa if ph.npa else n; cw = pw // ph.npw
                okA = ca < n and self.can(ph, "A", ca)
                okW = cw < n and self.can(ph, "W", cw)
                if okW and (cw <= ca or not okA):
                    k = ph.npw - pw % ph.npw
                    if not needed: k = min(2, k)
                    self.issue(ph, "W", cw, pw % ph.npw, k); pw += k
                elif okA:
                    k = ph.npa - pa % ph.npa
                    if not needed: k = min(2, k)
                    self.issue(ph, "A", ca, pa % ph.npa, k); pa += k
                elif nxt and ca == n and cw == n and pn < nxt.early and self.can(nxt, "W", pn // nxt.npw):
                    k = min(2, nxt.npw - pn % nxt.npw)
                    self.issue(nxt, "W", pn // nxt.npw, pn % nxt.npw, k); pn += k
                else:
                    assert not needed
                    break
                done += k
            if tail and pa == n * ph.npa and pw == n * ph.npw:
                tail(); tail = None; self.waitfn = waitfn
            if ph.after_bar and c > 0: ph.after_bar(c - 1)
            self.wait({(ph.name, "A", c), (ph.name, "W", c)})
            if ph.dbg and C.stamp: a(f"s_memtime s[10:11]\ns_waitcnt lgkmcnt(0)\nv_writelane_b32 v254, s10, {2*c}")
            a("s_barrier")
            if ph.dbg and C.stamp: a(f"s_memtime s[10:11]\ns_waitcnt lgkmcnt(0)\nv_writelane_b32 v254, s10, {2*c+1}")
            self.release(ph, c - ph.lag)
        if ph.after_bar: ph.after_bar(n - 1)
        if nxt: pn = self.pre(nxt, pn, min(ph.budget, max(0, nxt.early - pn)))
        return pn
    def end(self, ph):
        self.a("s_barrier")
        for c in range(ph.n): self.release(ph, c)

Q1_TAB = 131072 + 26624
Q1_NON = Q1_TAB + 1024
WB = 65536
def guW(c): return WB + ((3 - c) % 4) * 24576
def dnW(c): return ((c + 2) % 8) * 20480
def qkW(c): return WB + ((c + 4) % 6) * 16384

PSCR = 131072
PV = 180
def projjob_issue(a, sJob, sScr, t, loads=True):
    a(f"""
    s_and_b32 s{t+2}, s{sJob}, 7
    s_lshr_b32 s{t+3}, s{sJob}, 3
    s_cmp_lt_u32 s{t+3}, 20
    s_cselect_b32 s{R_T}, s{P_WO}, s{P_WD}
    s_cselect_b32 s{R_T+1}, s{P_WO+1}, s{P_WD+1}
    s_mov_b32 s{R_T+2}, {F*D*2}
    s_cselect_b32 s{R_T+2}, {D*D*2}, s{R_T+2}
    s_mov_b32 s{R_T+3}, 0x20000
    s_cselect_b32 s{t+4}, 0, 20
    s_cselect_b32 s{t+5}, 20, 48
    s_mov_b32 s{t+6}, {WS_WTD}
    s_cselect_b32 s{t+6}, {WS_WTO}, s{t+6}
    s_sub_u32 s{t+3}, s{t+3}, s{t+4}
    s_mul_i32 s{t+5}, s{t+5}, s{t+2}
    s_add_u32 s{t+5}, s{t+5}, s{t+3}
    s_mul_i32 s{t+5}, s{t+5}, 5120
    s_add_u32 s{t+6}, s{t+6}, s{t+5}
    s_mul_i32 s{t+3}, s{t+3}, {32*1280}
    s_mul_i32 s{t+2}, s{t+2}, 160
    s_add_u32 s{t+3}, s{t+3}, s{t+2}
    s_movk_i32 s{t+4}, 6554
    """)
    x, y = PV, PV + 1
    for i in range(5 if loads else 0):
        a(f"""
        v_add_u32 v{x}, {64*i}, v0
        v_mul_u32_u24 v{y}, s{t+4}, v{x}
        v_lshrrev_b32 v{y}, 16, v{y}
        v_mad_i32_i24 v{x}, v{y}, -10, v{x}
        v_mul_u32_u24 v{y}, 1280, v{y}
        v_lshl_add_u32 v{x}, v{x}, 4, v{y}
        s_add_u32 m0, s{sScr}, {1024*i}
        s_nop 0
        buffer_load_dwordx4 v{x}, {R(R_T)}, s{t+3} offen lds
        """)
def projjob_finish(a, sScr, t):
    x, y, z, d0 = PV, PV + 1, PV + 2, PV + 4
    a(f"""
    v_lshrrev_b32 v{x}, 4, v0
    v_bfe_u32 v{y}, v0, 2, 2
    v_lshl_add_u32 v{x}, v{x}, 3, v{y}
    v_mul_u32_u24 v{x}, 160, v{x}
    v_add_u32 v{x}, s{sScr}, v{x}
    v_and_b32 v{y}, 3, v0
    v_lshl_add_u32 v{z}, v{y}, 3, v{x}
    v_lshl_add_u32 v{y}, v{y}, 4, v{x}
    """)
    for jn in range(5):
        for j in range(2):
            d = d0 + 4*jn + 2*j
            if jn < 4: a(f"ds_read_b64_tr_b16 v[{d}:{d+1}], v{y} offset:{640*j + 64*(jn>>1) + 8*(jn&1)}")
            else: a(f"ds_read_b64_tr_b16 v[{d}:{d+1}], v{z} offset:{640*j + 128}")
    a(f"s_add_u32 s{t+5}, s{t+6}, 4096\ns_waitcnt lgkmcnt(0)")
    for jn in range(5):
        d = d0 + 4*jn
        a(f"buffer_store_dwordx4 v[{d}:{d+3}], v5, {WSR}, s{t+6 if jn < 4 else t+5} offen offset:{1024*(jn&3)} sc1")

def gujob_issue(a, sJob, t, loads=True):
    x, y = PV, PV + 1
    a(f"""
    s_mul_i32 s{t+2}, s{sJob}, 2731
    s_lshr_b32 s{t+2}, s{t+2}, 16
    s_mul_i32 s{t+3}, s{t+2}, 24
    s_sub_u32 s{t+3}, s{sJob}, s{t+3}
    s_mul_i32 s{t+4}, s{t+2}, {64*F*2}
    s_lshl_b32 s{t+5}, s{t+3}, 7
    s_add_u32 s{t+4}, s{t+4}, s{t+5}
    v_lshrrev_b32 v{x}, 3, v0
    v_mul_u32_u24 v{x}, {F*2}, v{x}
    v_and_b32 v{y}, 7, v0
    v_lshl_add_u32 v{x}, v{y}, 4, v{x}
    """)
    for i in range(8 if loads else 0):
        for u in range(2):
            a(f"s_mov_b32 m0, {PSCR + 8192*u + 1024*i}\ns_add_u32 s{t+5}, s{t+4}, {i*8*F*2}")
            a(f"buffer_load_dwordx4 v{x}, {R(R_WU if u else R_WG)}, s{t+5} offen lds")
def gujob_finish(a, t):
    x, y, z = PV, PV + 1, PV + 2
    ONE, FRG, CS = PV + 4, PV + 8, PV + 40
    a(f"""
    v_bfe_u32 v{x}, v0, 2, 2
    v_lshl_add_u32 v{x}, v14, 3, v{x}
    v_lshlrev_b32 v{x}, 7, v{x}
    v_and_b32 v{y}, 1, v0
    v_lshl_add_u32 v{x}, v{y}, 4, v{x}
    v_bfe_u32 v{y}, v0, 1, 1
    v_lshl_add_u32 v{x}, v{y}, 3, v{x}
    v_bfe_u32 v{y}, v0, 4, 1
    v_lshl_add_u32 v{x}, v{y}, 13, v{x}
    v_add_u32 v{x}, {PSCR}, v{x}
    v_lshlrev_b32 v{z}, 6, v14
    s_mul_i32 s{t+6}, s{t+2}, 12288
    s_lshl_b32 s{t+5}, s{t+3}, 9
    s_add_u32 s{t+6}, s{t+6}, s{t+5}
    s_add_u32 s{t+6}, s{t+6}, {WS_CSP}
    """)
    for i in range(4): a(f"v_mov_b32 v{ONE+i}, 0x3f803f80")
    for tt in range(4):
        f0 = FRG + 16*(tt & 1)
        for kk in range(4):
            for j in range(2):
                d = f0 + 4*kk + 2*j
                a(f"ds_read_b64_tr_b16 v[{d}:{d+1}], v{x} offset:{128*(16*kk+4*j) + 32*tt}")
        a(f"""
        s_lshl_b32 s{t+4}, s{t+3}, 2
        s_add_u32 s{t+4}, s{t+4}, {tt}
        s_mul_i32 s{t+5}, s{t+4}, 43
        s_lshr_b32 s{t+5}, s{t+5}, 8
        s_mul_i32 s{t+5}, s{t+5}, 234
        s_add_u32 s{t+4}, s{t+4}, s{t+5}
        s_mul_i32 s{t+5}, s{t+2}, 24
        s_add_u32 s{t+4}, s{t+4}, s{t+5}
        s_lshl_b32 s{t+4}, s{t+4}, 10
        s_add_u32 s{t+4}, s{t+4}, {WS_WTG}
        s_waitcnt lgkmcnt(0)
        """)
        for kk in range(4):
            a(f"v_mfma_f32_32x32x16_bf16 {v(CS,16)}, {v(f0+4*kk,4)}, {v(ONE,4)}, {v(CS,16) if kk else 0}")
        for kk in range(4):
            d = f0 + 4*kk
            a(f"buffer_store_dwordx4 v[{d}:{d+3}], v5, {WSR}, s{t+4} offen sc1\ns_add_u32 s{t+4}, s{t+4}, 6144")
        a("s_mov_b32 exec_lo, 1\ns_mov_b32 exec_hi, 1\ns_nop 1")
        for q in range(4):
            a(f"buffer_store_dwordx4 v[{CS+4*q}:{CS+4*q+3}], v{z}, {WSR}, s{t+6} offen offset:{128*tt+16*q} sc1")
        a("s_mov_b64 exec, -1")

def prep(a, stage):
    tj = 84; sJob, sScr = tj, tj + 1
    lg = a.uid("pg"); le = a.uid("pe")
    a(f"""
    s_lshr_b32 s{sScr}, s{sWG}, 4
    s_sub_u32 s{sJob}, s{sWG}, s{sScr}
    s_and_b32 s{sScr}, s{sW}, 3
    s_cmp_eq_u32 s{sScr}, 0
    s_cbranch_scc1 {lg}
    s_cmp_eq_u32 s{sScr}, 3
    s_cbranch_scc1 {le}
    s_sub_u32 s{sScr}, s{sScr}, 1
    s_mul_i32 s{tj+2}, s{sScr}, 240
    s_add_u32 s{sJob}, s{sJob}, s{tj+2}
    s_mul_i32 s{sScr}, s{sScr}, 5120
    s_add_u32 s{sScr}, s{sScr}, {PSCR + 16384}
    """)
    projjob_issue(a, sJob, sScr, tj, stage == 0)
    if stage: projjob_finish(a, sScr, tj)
    a(f"s_branch {le}")
    a.label(lg)
    gujob_issue(a, sJob, tj, stage == 0)
    if stage: gujob_finish(a, tj)
    a.label(le)

def nonce_put(a):
    t = T + 8
    nz = a.uid("non0")
    a(f"""
    s_cmp_lg_u32 s2, 0
    s_cbranch_scc1 {nz}
    s_memrealtime s[{t}:{t+1}]
    v_mov_b32 v1, 0
    s_waitcnt lgkmcnt(0)
    s_or_b32 s{t+2}, s{t}, 0x80000000
    v_mov_b32 v2, s{t+2}
    s_mov_b64 exec, 1
    global_store_dword v1, v2, s[{P_DBG}:{P_DBG+1}] sc1
    s_mov_b64 exec, -1
    """)
    a.label(nz)
    a(f"""
    s_lshl_b32 s{t+3}, s{sWG}, 5
    s_add_u32 s{t+3}, s{t+3}, {WS_FL}
    s_lshl_b32 s{t+4}, s{sWG}, 7
    s_add_u32 s{t+4}, s{t+4}, {L_FG}
    s_add_u32 s{t+5}, s{t+4}, {LSTRIDE}
    v_lshlrev_b32 v1, 2, v0
    v_mov_b32 v3, 0
    s_mov_b64 exec, 0xff
    buffer_store_dword v3, v1, {WSR}, s{t+3} offen sc1
    s_mov_b64 exec, 0x1ff
    buffer_store_dword v3, v1, {WSR}, s{t+4} offen sc1
    buffer_store_dword v3, v1, {WSR}, s{t+5} offen sc1
    s_mov_b64 exec, -1
    """)

def nonce_issue(a, v2, v3):
    a(f"v_mov_b32 v{v3}, 0\nglobal_load_dword v{v2}, v{v3}, s[{P_DBG}:{P_DBG+1}] sc1")
def nonce_get(a, v1, v2, v3):
    t = T + 14
    lp = a.uid("non"); ok = a.uid("nonok")
    a(f"s_mov_b32 s{t+6}, 0\nv_mov_b32 v{v3}, 0\ns_lshl_b32 s{t+4}, s{sWG}, 7\ns_add_u32 s{t+4}, s{t+4}, {L_FG}\ns_branch {lp}c")
    a.label(lp)
    a(f"global_load_dword v{v2}, v{v3}, s[{P_DBG}:{P_DBG+1}] sc1")
    a.label(lp + "c")
    a(f"""
    s_waitcnt vmcnt(0)
    v_cmp_eq_u32 vcc, 0, v{v2}
    s_cbranch_vccz {ok}
    s_sleep 4
    s_add_u32 s{t+6}, s{t+6}, 1
    s_cmp_lt_u32 s{t+6}, {SPIN}
    s_cbranch_scc1 {lp}
    s_mov_b32 s{sTMO}, {SPIN}
    """)
    a.label(ok)
    a(f"""
    v_readfirstlane_b32 s{sEP}, v{v2}
    s_getreg_b32 s{t+6}, hwreg(HW_REG_XCC_ID, 0, 4)
    v_mov_b32 v{v1}, {Q1_NON}
    ds_write_b32 v{v1}, v{v2}
    v_add_u32 v{v2}, s{t+6}, v{v2}
    s_mov_b64 exec, 1
    buffer_store_dword v{v2}, v{v3}, {WSR}, s{t+4} offen offset:32 sc1
    s_mov_b64 exec, -1
    s_waitcnt lgkmcnt(0)
    """)

def census(a, va, vt, issue):
    t = T + 20
    a(f"""
    v_and_b32 v{va}, 31, v0
    v_lshlrev_b32 v{va}, 7, v{va}
    s_lshl_b32 s{t}, s{sG}, 12
    s_add_u32 s{t}, s{t}, {L_FG + 32}
    """)
    if issue:
        a(f"buffer_load_dword v{vt}, v{va}, {WSR}, s{t} offen sc1")
        return
    poll(a, va, vt, f"s{t}", f"s{sEP}", sleep=4, pre=True)
    a(f"""
    s_getreg_b32 s{t}, hwreg(HW_REG_XCC_ID, 0, 4)
    v_cmp_ne_u32 vcc, s{t}, v{vt}
    s_cmp_eq_u64 vcc, 0
    s_cselect_b32 s{t}, 1, 0
    v_mov_b32 v{va}, {Q1_NON}
    v_mov_b32 v{vt}, s{t}
    ds_write_b32 v{va}, v{vt} offset:4
    s_waitcnt lgkmcnt(0)
    """)

sMODE = 14 - 14 + 98
def read_nonce_mode(a):
    a(f"v_mov_b32 v1, {Q1_NON}\nds_read_b64 v[2:3], v1\ns_waitcnt lgkmcnt(0)\nv_readfirstlane_b32 s{sEP}, v2\nv_readfirstlane_b32 s{sMODE}, v3")

def qkv_ids(a, t):
    a(f"s_lshr_b32 s{t}, s{sWG}, 4\ns_and_b32 s{t+1}, s{sR}, 15")

def qkv_compute(a, first, SB):
    t = T
    sRT, sCT, sTY, sC0 = t, t+1, t+2, t+3
    LQ = 0 if first else LSTRIDE
    sWM, sWN = t+5, t+6
    a(f"""
    s_mul_i32 s{sTY}, s{sCT}, 52
    s_lshr_b32 s{sTY}, s{sTY}, 8
    s_mul_i32 s{sC0}, s{sTY}, 5
    s_sub_u32 s{sC0}, s{sCT}, s{sC0}
    s_lshl_b32 s{sC0}, s{sC0}, 7
    s_and_b32 s{sWM}, s{sW}, 1
    s_lshr_b32 s{sWN}, s{sW}, 1
    v_lshrrev_b32 v14, 5, v0
    v_and_b32 v15, 31, v0
    """)
    ACC = 128; FR = 16; VST = 80; VCS = 96; VCV = 192; ONE = 196; AD = 200; MS = 244
    sCS = t+15
    a(f"s_lshl_b32 s{sCS}, s{sWG}, 9\ns_lshl_b32 s{t+7}, s{sWN}, 8\ns_add_u32 s{sCS}, s{sCS}, s{t+7}\ns_add_u32 s{sCS}, s{sCS}, {WS_CSQ}")
    a(f"v_lshlrev_b32 v{AD+8}, 5, v14\nv_lshlrev_b32 v{AD+9}, 2, v15")
    if first:
        a(f"""
        s_lshl_b32 s{t+7}, s{sWM}, 13
        v_lshlrev_b32 v1, 7, v15
        v_add_u32 v1, s{t+7}, v1
        v_bfe_u32 v8, v0, 1, 3
        v_xor_b32 v8, v8, v14
        """)
        for kk in range(4):
            a(f"v_xor_b32 v9, {2*kk}, v8\nv_lshl_add_u32 v{2+kk}, v9, 4, v1")
    else:
        a(f"s_lshl_b32 s{t+7}, s{sWM}, 13\nv_lshlrev_b32 v2, 4, v0\nv_add_u32 v2, s{t+7}, v2")
    a(f"""
    v_and_b32 v10, 3, v0
    v_and_b32 v11, 1, v0
    v_bfe_u32 v12, v0, 1, 1
    v_lshl_add_u32 v11, v11, 1, v12
    s_cmp_eq_u32 s{sTY}, 2
    s_cselect_b64 vcc, -1, 0
    v_cndmask_b32 v10, v11, v10, vcc
    v_bfe_u32 v8, v0, 2, 2
    v_lshl_add_u32 v9, v14, 3, v8
    v_lshlrev_b32 v9, 8, v9
    v_lshl_add_u32 v9, v10, 3, v9
    v_bfe_u32 v10, v0, 4, 1
    v_lshl_add_u32 v9, v10, 5, v9
    s_lshl_b32 s{t+7}, s{sWN}, 1
    v_xor_b32 v8, s{t+7}, v8
    v_lshl_add_u32 v6, v8, 6, v9
    v_xor_b32 v8, 1, v8
    v_lshl_add_u32 v7, v8, 6, v9
    """)
    nxa = 4 if first else 1
    W0 = 16384 if first else qkW(0)
    if first:
        for i in range(nxa): a(f"v_mov_b32 v{8+i}, v{2+i}")
        for i in (4, 5): a(f"v_add_u32 v{8+i}, {W0}, v{2+i}")
    else:
        for i in range(4): a(f"v_add_u32 v{8+i}, {WB + 49152*(i >> 1)}, v{6 + (i & 1)}")
    VM, VR = (32, 64) if first else (96, 212)
    for i in range(0, 64, 2): a(f"v_mov_b64 v[{ACC+i}:{ACC+i+1}], 0")
    if first:
        for i in range(0, 32, 2): a(f"v_mov_b64 v[{VCS+i}:{VCS+i+1}], 0")
        for i in range(4): a(f"v_mov_b32 v{ONE+i}, 0x3f803f80")
    def reads(kk):
        b = FR + 16*kk; r = []
        for tm in range(2):
            if first: r.append(f"ds_read_b128 v[{b+4*tm}:{b+4*tm+3}], v{8+kk} offset:{4096*tm}")
            else: r.append(f"ds_read_b128 v[{b+4*tm}:{b+4*tm+3}], v8 offset:{4096*tm+1024*kk}")
        for tn in range(2):
            for j in range(2):
                d = b + 8 + 4*tn + 2*j
                r.append(f"ds_read_b64_tr_b16 v[{d}:{d+1}], v{12+tn} offset:{4096*kk+1024*j}")
        return r
    def mfmas(kk, vtype, tns=(0, 1)):
        b = FR + 16*kk; m = []
        for tn in tns:
            W = v(b + 8 + 4*tn, 4)
            for tm in range(2):
                c = ACC + 16*(2*tn + tm)
                X = v(b + 4*tm, 4)
                A, B = (X, W) if vtype else (W, X)
                m.append(f"v_mfma_f32_32x32x16_bf16 {v(c,16)}, {A}, {B}, {v(c,16)}")
            if first:
                c = VCS + 16*tn; X = v(ONE, 4)
                A, B = (X, W) if vtype else (W, X)
                m.append(f"v_mfma_f32_32x32x16_bf16 {v(c,16)}, {A}, {B}, {v(c,16)}")
        return m
    sC, sSa, sSw, sMk, sDst = t+9, t+10, t+4, t+11, t+12
    vlab = a.uid("qkv_v"); fin = a.uid("qkv_fin"); done = a.uid("qkv_cdone")
    a(f"s_mov_b32 s{sC}, {10 if first else 9}\ns_mov_b32 s{sSa}, 0\ns_mov_b32 s{sSw}, {W0}")
    a(f"s_cmp_eq_u32 s{sTY}, 2\ns_cbranch_scc1 {vlab}")
    hooks = []
    def mainloop(vtype, epi):
        lp = a.uid("qkv_loop"); hk = a.uid("qkv_hk"); hb = a.uid("qkv_hb"); ent = a.uid("qkv_ent")
        stamp(a, 1 if first else 18)
        if not first:
            def rd(c, kk):
                b = FR + 16*kk; r = []
                for tm in range(2):
                    r.append(f"ds_read_b128 v[{b+4*tm}:{b+4*tm+3}], v2 offset:{(c % 4)*16384+4096*tm+1024*kk}")
                o = qkW(c) - WB
                for tn in range(2):
                    for j in range(2):
                        d = b + 8 + 4*tn + 2*j
                        r.append(f"ds_read_b64_tr_b16 v[{d}:{d+1}], v{8 + 2*(o // 49152) + tn} offset:{o % 49152 + 4096*kk+1024*j}")
                return r
            mf = lambda kk, tl: mfmas(kk, vtype, (tl >> 1,))[tl & 1]
            a(f"""
            s_lshl_b32 s{sC}, s{sRT}, 1
            s_add_u32 s{sC}, s{sC}, s{sWM}
            s_lshl_b32 s{sC}, s{sC}, 12
            s_add_u32 s{sC}, s{sC}, {L_ST2}
            v_lshlrev_b32 v3, 4, v0
            """)
            ins = {}
            for i in range(4): ins[28 + 2*i] = [f"buffer_load_dwordx4 v[{VST+4*i}:{VST+4*i+3}], v3, {WSR}, s{sC} offen offset:{1024*i} sc1"]
            b = Asm(); b("s_waitcnt vmcnt(0)"); row_stats(b, VST, MS, MS + 1)
            if vtype:
                a(f"v_lshlrev_b32 v4, 4, v14")
                for tm in range(2):
                    for q in range(16):
                        off = (32*tm + 8*(q >> 2) + (q & 3)) * 4
                        b(f"ds_bpermute_b32 v{VM+16*tm+q}, v4, v{MS} offset:{off}")
                        ins.setdefault(120, []).append(f"ds_bpermute_b32 v{VR+16*tm+q}, v4, v{MS+1} offset:{off}")
                fix = lambda tl: [f"v_fmac_f32 v{ACC+16*tl+i}, v{VCV+2*(tl>>1)}, v{VM+16*(tl&1)+i}" for i in range(16)]
                ff = 92
            else:
                qk_stats_fin(b)
                fix = lambda tl: [f"v_fmac_f32 v{ACC+16*tl+i}, v{MS+4*(tl&1)}, v{VCS+16*(tl>>1)+i}" for i in range(16)]
                ff = 80
            ins[60] = b.lines
            gemm_unrolled(a, 10, 4, 6, rd, mf, [(0, 1), (2, 3)], ins, fix, ff, epi, 19)
            return
        a("s_barrier")
        for x in reads(0) + reads(1): a(x)
        a(f"s_branch {ent}")
        a.label(lp)
        a("s_barrier")
        interleave(a, mfmas(3, vtype), reads(0) + reads(1))
        a.label(ent)
        a("s_waitcnt lgkmcnt(6)")
        interleave(a, mfmas(0, vtype), reads(2))
        a("s_waitcnt lgkmcnt(6)")
        interleave(a, mfmas(1, vtype), reads(3))
        a("s_waitcnt lgkmcnt(6)")
        if first:
            upd = [f"s_add_u32 s{sSa}, s{sSa}, 32768", f"s_and_b32 s{sSa}, s{sSa}, 0x1ffff", f"s_add_u32 s{sSw}, s{sSa}, 16384"]
        else:
            upd = [f"s_add_u32 s{sSa}, s{sSa}, 16384", f"s_and_b32 s{sSa}, s{sSa}, 0xffff",
                   f"s_add_u32 s{sSw}, s{sSw}, 16384", f"s_cmp_eq_u32 s{sSw}, 163840", f"s_cselect_b32 s{sSw}, {WB}, s{sSw}"]
        upd += [f"v_add_u32 v{8+i}, s{sSa}, v{2+i}" for i in range(nxa)] + [f"v_add_u32 v{12+i}, s{sSw}, v{6+i}" for i in range(2)] + [f"s_sub_u32 s{sC}, s{sC}, 1"]
        interleave(a, mfmas(2, vtype), upd)
        a(f"s_waitcnt lgkmcnt(0)")
        a(f"s_bitcmp1_b32 {HMASK1 if first else HMASK2}, s{sC}\ns_cbranch_scc1 {hk}")
        a.label(hb)
        a(f"s_cmp_lg_u32 s{sC}, 0\ns_cbranch_scc1 {lp}")
        a("s_barrier")
        hooks.append((hk, hb, vtype))
        if first:
            for m in mfmas(3, vtype): a(m)
            stamp(a, 2)
            read_nonce_mode(a)
            return
    HMASK1 = (1 << 8) | (1 << 6) | (1 << 3) | (1 << 1)
    HMASK2 = (1 << 5) | (1 << 2)
    if not first:
        for tn in range(2):
            for q in range(4):
                r = VCS + 16*tn + 4*q
                a(f"buffer_load_dwordx4 v[{r}:{r+3}], v{AD+8}, {WSR}, s{sCS} offen offset:{(32*tn+16*(q>>1)+4*(q&1))*4} sc1")
    a(f"""
    s_mul_i32 s{sDst}, s{sTY}, {ACT}
    s_lshl_b32 s{t+8}, s{sRT}, 2
    s_lshl_b32 s{t+7}, s{sWM}, 1
    s_add_u32 s{t+8}, s{t+8}, s{t+7}
    s_mul_i32 s{t+8}, s{t+8}, 1280
    s_add_u32 s{sDst}, s{sDst}, s{t+8}
    s_add_u32 s{sDst}, s{sDst}, {LQ}
    s_add_u32 s{t+14}, s{sDst}, {HEADB}
    s_lshr_b32 s{t+8}, s{sC0}, 3
    s_lshl_b32 s{t+7}, s{sWN}, 3
    s_add_u32 s{t+8}, s{t+8}, s{t+7}
    v_add_u32 v80, s{t+8}, v14
    s_mov_b32 s{t+13}, {HEADB}
    v_mov_b32 v86, 0x7fffffff
    s_mov_b32 s{sMk}, 0
    """)
    for sl in range(4):
        a(f"""
        v_add_u32 v81, {2*sl}, v80
        v_mul_u32_u24 v82, 205, v81
        v_lshrrev_b32 v82, 10, v82
        v_mad_i32_i24 v81, v82, -5, v81
        v_cmp_lt_u32 vcc, 2, v81
        v_lshlrev_b32 v82, 1, v82
        v_add_u32 v83, -3, v81
        v_cndmask_b32 v83, v81, v83, vcc
        v_addc_co_u32 v82, vcc, 0, v82, vcc
        v_lshlrev_b32 v83, 9, v83
        v_lshl_add_u32 v83, v15, 4, v83
        v_lshlrev_b32 v85, 3, v15
        v_add_u32 v85, 1024, v85
        v_cmp_eq_u32 vcc, 2, v81
        v_mul_lo_u32 v84, v82, s{t+13}
        s_cmp_lg_u64 vcc, 0
        v_cndmask_b32 v83, v83, v86, vcc
        v_cndmask_b32 v85, v86, v85, vcc
        s_cselect_b32 s{t+7}, {1 << sl}, 0
        s_or_b32 s{sMk}, s{sMk}, s{t+7}
        v_add_u32 v{AD+sl}, v83, v84
        v_add_u32 v{AD+4+sl}, v85, v84
        """)
    def qk_stats_fin(a):
        a(f"""
        s_cmp_eq_u32 s{sTY}, 0
        s_cselect_b32 s{t+7}, {f32(QSCALE)}, 1.0
        v_mul_f32 v{MS+2}, s{t+7}, v{MS+1}
        v_mul_f32 v{MS+6}, s{t+7}, v{MS+1}
        v_sub_f32 v{MS+4}, 0, v{MS}
        v_sub_f32 v{MS}, 0, v{MS}
        s_nop 1
        v_permlane32_swap_b32 v{MS}, v{MS+4}
        v_permlane32_swap_b32 v{MS+2}, v{MS+6}
        s_nop 1
        """)
    def epi_qk(tn, pk=True):
        r = []
        for tm in range(2):
            c = ACC + 16*(2*tn + tm); cs = VCS + 16*tn; m = MS + 4*tm
            for p in range(2):
                if pk:
                    for i in range(8*p, 8*p + 8, 2):
                        if first: r.append(f"v_pk_fma_f32 v[{c+i}:{c+i+1}], v[{cs+i}:{cs+i+1}], v[{m}:{m+1}], v[{c+i}:{c+i+1}] op_sel_hi:[1,0,1]")
                    for i in range(8*p, 8*p + 8, 2):
                        r.append(f"v_pk_mul_f32 v[{c+i}:{c+i+1}], v[{c+i}:{c+i+1}], v[{m+2}:{m+3}] op_sel_hi:[1,0]")
                else:
                    for i in range(8*p, 8*p + 8): r.append(f"v_mul_f32 v{c+i}, v{m+2}, v{c+i}")
                for i in range(4):
                    r.append(f"v_cvt_pk_bf16_f32 v{c+8*p+i}, v{c+8*p+2*i}, v{c+8*p+2*i+1}")
                r.append(f"buffer_store_dwordx4 v[{c+8*p}:{c+8*p+3}], v{AD+2*tn+p}, {WSR}, s{sDst} offen offset:{1280*tm} sc1")
        return r
    mainloop(False, epi_qk)
    if first:
        a(f"s_lshl_b32 s{t+7}, s{sWM}, 8\nv_lshlrev_b32 v1, 2, v0\nv_add_u32 v1, s{t+7}, v1")
        a(f"v_add_u32 v1, {Q1_TAB}, v1\nds_read_b32 v{MS}, v1\nds_read_b32 v{MS+1}, v1 offset:512\ns_waitcnt lgkmcnt(0)")
        qk_stats_fin(a)
        for x in epi_qk(0) + epi_qk(1): a(x)
    for sl in range(4):
        sk = a.uid("qk_b")
        a(f"s_bitcmp0_b32 s{sMk}, {sl}\ns_cbranch_scc1 {sk}")
        for tm in range(2):
            o = ACC + 16*(2*(sl >> 1) + tm) + 8*(sl & 1)
            a(f"buffer_store_dwordx2 v[{o}:{o+1}], v{AD+4+sl}, {WSR}, s{sDst} offen offset:{1280*tm} sc1")
            a(f"buffer_store_dwordx2 v[{o+2}:{o+3}], v{AD+4+sl}, {WSR}, s{t+14} offen offset:{1280*tm} sc1")
        a.label(sk)
    if first:
        a(f"s_mov_b32 exec_lo, 1\ns_mov_b32 exec_hi, 1")
        for tn in range(2):
            for q in range(4):
                r = VCS + 16*tn + 4*q
                a(f"buffer_store_dwordx4 v[{r}:{r+3}], v{AD+8}, {WSR}, s{sCS} offen offset:{(32*tn+16*(q>>1)+4*(q&1))*4}")
        a("s_mov_b64 exec, -1")
    a(f"s_branch {fin}")
    a.label(vlab)
    if not first:
        for tn in range(2):
            a(f"buffer_load_dword v{VCV+2*tn}, v{AD+9}, {WSR}, s{sCS} offen offset:{128*tn} sc1")
    a(f"""
    s_lshl_b32 s{t+8}, s{sRT}, 3
    s_lshl_b32 s{t+7}, s{sWM}, 2
    s_add_u32 s{t+8}, s{t+8}, s{t+7}
    s_mul_i32 s{sDst}, s{t+8}, 640
    s_add_u32 s{sDst}, s{sDst}, {L_V + LQ}
    s_lshl_b32 s{t+7}, s{sWN}, 6
    s_add_u32 s{t+8}, s{sC0}, s{t+7}
    v_add_u32 v80, s{t+8}, v15
    v_mul_u32_u24 v81, 320, v14
    s_mov_b32 s{t+13}, {HEADB}
    s_movk_i32 s{t+14}, 3277
    s_movk_i32 s{t+7}, -20
    """)
    for tn in range(2):
        a(f"""
        v_add_u32 v83, {32*tn}, v80
        v_mul_u32_u24 v84, s{t+14}, v83
        v_lshrrev_b32 v84, 16, v84
        v_mad_i32_i24 v83, v84, s{t+7}, v83
        v_lshl_add_u32 v83, v83, 4, v81
        v_mul_lo_u32 v85, v84, s{t+13}
        v_add_u32 v{AD+tn}, v83, v85
        """)
    def epi_v(tn, pk=True):
        r = []
        for tm in range(2):
            c = ACC + 16*(2*tn + tm); cv = VCV + 2*tn
            for p in range(2):
                if pk:
                    for i in range(8*p, 8*p + 8, 2):
                        if first: r.append(f"v_pk_fma_f32 v[{c+i}:{c+i+1}], v[{VM+16*tm+i}:{VM+16*tm+i+1}], v[{cv}:{cv+1}], v[{c+i}:{c+i+1}] op_sel_hi:[1,0,1]")
                    for i in range(8*p, 8*p + 8, 2):
                        r.append(f"v_pk_mul_f32 v[{c+i}:{c+i+1}], v[{c+i}:{c+i+1}], v[{VR+16*tm+i}:{VR+16*tm+i+1}]")
                else:
                    for i in range(8*p, 8*p + 8): r.append(f"v_mul_f32 v{c+i}, v{VR+16*tm+i}, v{c+i}")
                for i in range(4):
                    r.append(f"v_cvt_pk_bf16_f32 v{c+8*p+i}, v{c+8*p+2*i}, v{c+8*p+2*i+1}")
                r.append(f"buffer_store_dwordx4 v[{c+8*p}:{c+8*p+3}], v{AD+tn}, {WSR}, s{sDst} offen offset:{640*(2*tm+p)} sc1")
        return r
    def v_tab_reads(roff):
        a(f"v_lshlrev_b32 v1, 4, v14\nv_add_u32 v1, s{t+7}, v1")
        for tm in range(2):
            for q in range(4):
                a(f"ds_read_b128 v[{VM+16*tm+4*q}:{VM+16*tm+4*q+3}], v1 offset:{(32*tm+8*q)*4}")
                a(f"ds_read_b128 v[{VR+16*tm+4*q}:{VR+16*tm+4*q+3}], v1 offset:{roff+(32*tm+8*q)*4}")
    mainloop(True, epi_v)
    if first:
        a(f"s_lshl_b32 s{t+7}, s{sWM}, 8\ns_add_u32 s{t+7}, s{t+7}, {Q1_TAB}")
        v_tab_reads(512)
        a(f"v_sub_f32 v{VCV}, 0, v{VCS}\nv_sub_f32 v{VCV+2}, 0, v{VCS+16}")
        for tn in range(2):
            a(f"buffer_store_dword v{VCV+2*tn}, v{AD+9}, {WSR}, s{sCS} offen offset:{128*tn}")
        a("s_waitcnt lgkmcnt(0)")
        for x in epi_v(0) + epi_v(1): a(x)
    a.label(fin)
    stamp(a, 3 if first else 20)
    flag_setup(a, 1 if first else 6)
    a(f"s_lshl_b32 s{t+7}, s{sWG}, 5\ns_add_u32 s{t+7}, s{t+7}, s{sW}\ns_lshl_b32 s{t+7}, s{t+7}, 2\ns_add_u32 s{t+7}, s{t+7}, {L_FG + LQ}")
    a("s_waitcnt vmcnt(0)")
    if first:
        l1 = a.uid("q1f"); l2 = a.uid("q1g")
        a(f"s_cmp_eq_u32 s{sMODE}, 0\ns_cbranch_scc1 {l1}")
        flag_store(a, ""); a(f"s_branch {l2}")
        a.label(l1); flag_store(a, "sc1"); a.label(l2)
    else: flag_store(a, SB)
    flag_store(a, "sc1", t+7)
    a(f"s_branch {done}")
    for hk, hb, vtype in hooks:
        a.label(hk)
        if first:
            a(f"s_cmp_lg_u32 s{sW}, 0\ns_cbranch_scc1 {hb}")
            for val, fn in ((8, lambda: nonce_issue(a, 81, 82)), (6, lambda: nonce_get(a, 80, 81, 82)), (3, lambda: census(a, 80, 81, True)), (1, lambda: census(a, 80, 81, False))):
                nx = a.uid("hk")
                a(f"s_cmp_lg_u32 s{sC}, {val}\ns_cbranch_scc1 {nx}")
                fn(); a(f"s_branch {hb}")
                a.label(nx)
        a(f"s_branch {hb}")
    a.label(done)

def qkvW_setup(a, sWo, sLW, sCT, sTmp, vW):
    a(f"""
    v_lshrrev_b32 v2, 4, v0
    v_mul_u32_u24 v1, 3840, v2
    v_lshlrev_b32 v7, 2, v2
    v_and_b32 v3, 15, v0
    v_xor_b32 v3, v3, v7
    v_lshl_add_u32 v{vW}, v3, 4, v1
    s_mul_i32 s{sWo}, s{sLW}, {16*3840}
    s_lshl_b32 s{sTmp}, s{sCT}, 8
    s_add_u32 s{sWo}, s{sWo}, s{sTmp}
    """)

def qkv1_loader(a):
    t = T
    sRT, sCT = t, t+1
    sLW, sAo, sWo, sM, sTmp, sRot, sThr, sA1, sW1, sSel = t+2, t+3, t+4, t+5, t+6, t+8, t+9, t+10, t+11, t+12
    a(f"s_sub_u32 s{sLW}, s{sW}, 4")
    qkvW_setup(a, sWo, sLW, sCT, sTmp, 6)
    a(f"""
    s_lshl_b32 s{sM}, s{sLW}, 12
    s_lshl_b32 s{sAo}, s{sRT}, 2
    s_add_u32 s{sAo}, s{sAo}, s{sLW}
    s_mul_i32 s{sAo}, s{sAo}, {32*1280}
    v_lshrrev_b32 v1, 3, v0
    v_mul_u32_u24 v1, 1280, v1
    v_and_b32 v3, 7, v0
    v_xor_b32 v3, v3, v2
    v_lshl_add_u32 v4, v3, 4, v1
    v_xor_b32 v3, 4, v3
    v_lshl_add_u32 v5, v3, 4, v1
    s_lshr_b32 s{sRot}, s{sR}, 4
    s_mul_i32 s{sRot}, s{sRot}, 5
    s_add_u32 s{sRot}, s{sRot}, s{sCT}
    s_add_u32 s{sRot}, s{sRot}, s{sG}
    s_mul_i32 s{sTmp}, s{sRot}, 26
    s_lshr_b32 s{sTmp}, s{sTmp}, 8
    s_mul_i32 s{sTmp}, s{sTmp}, 10
    s_sub_u32 s{sRot}, s{sRot}, s{sTmp}
    """)
    if not C.rot: a(f"s_mov_b32 s{sRot}, 0")
    a(f"s_sub_u32 s{sThr}, 10, s{sRot}")
    SA = Src(sAo, sA1, sThr, 128); SW = Src(sWo, sW1, sThr, 64*3840)
    SA.setup(a, sRot, 10, sTmp); SW.setup(a, sRot, 10, sTmp)
    a("s_waitcnt lgkmcnt(0)")
    srd(a, R_X, P_X, ACT)
    srd(a, R_WQ, P_WQKV, D*3*D*2)
    def emitA(c, i0, k):
        SA.sel(a, c, sSel)
        for i in range(i0, i0 + k):
            a(f"s_add_u32 m0, s{sM}, {(c % 4)*32768 + 1024*i}\ns_add_u32 s{sTmp}, s{sSel}, {c*128 + i*8*1280}")
            a(f"buffer_load_dwordx4 v{4 + (i & 1)}, {R(R_X)}, s{sTmp} offen lds")
    def emitW(c, i0, k):
        SW.sel(a, c, sSel)
        for i in range(i0, i0 + k):
            a(f"s_add_u32 m0, s{sM}, {16384 + (c % 4)*32768 + 1024*i}\ns_add_u32 s{sTmp}, s{sSel}, {c*64*3840 + i*4*3840}")
            a(f"buffer_load_dwordx4 v6, {R(R_WQ)}, s{sTmp} offen lds")
    def xstats(c):
        if c == 0:
            other_srds(a)
            a(f"v_lshlrev_b32 v9, 4, v0\nv_add_u32 v9, s{sM}, v9\nv_add_u32 v8, 65536, v9\ns_mov_b32 s{t+7}, 0xffff0000")
            for i in range(0, 16, 2): a(f"v_mov_b64 v[{16+i}:{17+i}], 0")
        for i in range(4):
            a(f"ds_read_b128 v[{32+4*i}:{35+4*i}], v{9 if (c % 4) < 2 else 8} offset:{(c % 2)*32768 + 1024*i}")
        for i in range(4):
            a(f"s_waitcnt lgkmcnt({3-i})")
            for j in range(4):
                src = 32 + 4*i + j
                a(f"v_lshlrev_b32 v10, 16, v{src}\nv_and_b32 v11, s{t+7}, v{src}")
                a(f"v_add_f32 v{16+4*i}, v{16+4*i}, v10\nv_add_f32 v{17+4*i}, v{17+4*i}, v11\nv_fmac_f32 v{18+4*i}, v10, v10\nv_fmac_f32 v{19+4*i}, v11, v11")
    stamp(a, 1)
    ph = Phase("q1", 10, 4, 4, emitA, emitW, lambda c: ((c % 4)*32768, (c % 4)*32768 + 16384), lambda c: ((c % 4)*32768 + 16384, (c % 4 + 1)*32768),
               None, C.bud_q1, after_bar=xstats, dbg=(C.dbg == 1))
    def waitfn(w):
        l1 = a.uid("pw"); l2 = a.uid("pw"); l3 = a.uid("pw")
        a(f"s_cmp_eq_u32 s{sW}, 4\ns_cbranch_scc1 {l1}\ns_cmp_eq_u32 s{sW}, 7\ns_cbranch_scc1 {l2}\ns_waitcnt vmcnt({w+5})\ns_branch {l3}")
        a.label(l1); a(f"s_waitcnt vmcnt({w+16})\ns_branch {l3}")
        a.label(l2); a(f"s_waitcnt vmcnt({w})")
        a.label(l3)
    Loader(a).run(ph, None, tail=lambda: prep(a, 0), waitfn=waitfn)
    for i in range(4):
        a(f"v_add_f32 v{16+2*i}, v{16+4*i}, v{17+4*i}\nv_add_f32 v{17+2*i}, v{18+4*i}, v{19+4*i}")
    a("s_nop 1")
    for mod in ("quad_perm:[1,0,3,2]", "quad_perm:[2,3,0,1]", "row_half_mirror"):
        for j in range(8):
            a(f"v_add_f32_dpp v{16+j}, v{16+j}, v{16+j} {mod} row_mask:0xf bank_mask:0xf")
        a("s_nop 1")
    a(f"v_lshrrev_b32 v1, 3, v0\nv_lshlrev_b32 v1, 2, v1\ns_lshl_b32 s{sTmp}, s{sLW}, 7\ns_add_u32 s{sTmp}, s{sTmp}, {Q1_TAB}\nv_add_u32 v1, s{sTmp}, v1")
    for i in range(4):
        finish_stats(a, 16+2*i, 17+2*i, 24+2*i, 25+2*i)
        a(f"ds_write_b32 v1, v{24+2*i} offset:{32*i}\nds_write_b32 v1, v{25+2*i} offset:{512+32*i}")
    a("s_waitcnt lgkmcnt(0)")
    stamp(a, 2)
    a("s_barrier")
    read_nonce_mode(a)

def other_srds(a):
    srd(a, R_WS, P_WS, WS_END)
    srd(a, R_WG, P_WG, D*F*2)
    srd(a, R_WU, P_WU, D*F*2)
    srd(a, R_T, P_WS, WS_END)

def qkv1_idle(a):
    l2 = a.uid("idl"); l1 = a.uid("idl")
    tj = 84
    a(f"s_cmp_lt_u32 s{sW}, 4\ns_cbranch_scc1 {l1}")
    a(f"s_lshl_b32 s{tj}, s{T}, 2\ns_add_u32 s{tj}, s{tj}, s{sW}\ns_add_u32 s{tj}, s{tj}, 476\ns_mul_i32 s{tj+1}, s{sW}, 5120\nv_lshlrev_b32 v5, 4, v0")
    projjob_issue(a, tj, tj+1, tj)
    a("s_waitcnt vmcnt(0)")
    projjob_finish(a, tj+1, tj)
    a(f"s_branch {l2}")
    a.label(l1)
    if C.warm:
        l4 = a.uid("idl"); l5 = a.uid("idl")
        a(f"""
        s_cmp_eq_u32 s{sW}, 0
        s_cbranch_scc1 {l4}
        s_cmp_eq_u32 s{sW}, 2
        s_cselect_b32 s{R_T}, s{P_WU}, s{P_WD}
        s_cselect_b32 s{R_T+1}, s{P_WU+1}, s{P_WD+1}
        s_cmp_eq_u32 s{sW}, 1
        s_cselect_b32 s{R_T}, s{P_WG}, s{R_T}
        s_cselect_b32 s{R_T+1}, s{P_WG+1}, s{R_T+1}
        s_mov_b32 s{R_T+2}, {F*D*2}
        s_mov_b32 s{R_T+3}, 0x20000
        s_mul_i32 s{tj}, s{T}, {15*8192}
        v_lshlrev_b32 v1, 7, v0
        """)
        for i in range(15): a(f"buffer_load_dword v2, v1, {R(R_T)}, s{tj} offen\ns_add_u32 s{tj}, s{tj}, 8192")
        srd(a, R_T, P_WO, D*D*2)
        a(f"s_mul_i32 s{tj}, s{T}, 3\ns_add_u32 s{tj}, s{tj}, s{sW}\ns_sub_u32 s{tj}, s{tj}, 1\ns_mul_i32 s{tj}, s{tj}, {17408}")
        for i in range(2): a(f"buffer_load_dword v2, v1, {R(R_T)}, s{tj} offen\ns_add_u32 s{tj}, s{tj}, 8192")
        a("s_waitcnt vmcnt(0)")
        a.label(l4)
    if C.tlb:
        l3 = a.uid("idl")
        a(f"s_cmp_lg_u32 s{sW}, 2\ns_cbranch_scc1 {l3}\nv_lshlrev_b32 v1, 20, v0")
        for r in (R_WS, R_WG, R_WU): a(f"buffer_load_dword v2, v1, {R(r)}, 0 offen")
        srd(a, R_T, P_OUT, ACT)
        a(f"buffer_load_dword v2, v1, {R(R_T)}, 0 offen\ns_waitcnt vmcnt(0)")
        a.label(l3)
    a(f"s_cmp_lg_u32 s{sW}, 0\ns_cbranch_scc1 {l2}")
    nonce_issue(a, 81, 82)
    nonce_get(a, 80, 81, 82)
    census(a, 80, 81, True)
    census(a, 80, 81, False)
    a.label(l2)
    a("s_barrier")
    read_nonce_mode(a)

def phase_attn(a, SB, ld_label):
    fast = SB == ""
    t = T
    CH = 20480
    sQP, sKH, sSrc, sDst, sTmp, sC, sHB = t, t+1, t+2, t+3, t+4, t+5, t+8
    sEX = t+6
    sWs, sWd, sPF = t+9, t+10, t+11
    tj = 84; sJob, sScr = tj, tj + 1
    QAREA = 102400
    QA, QB = 16, 22
    NM, SS, PP, OO, KF, VF = 32, 64, 96, 112, 144, 160
    vK, vK8, vV = 2, 3, 4
    DUM = 176; XF = 177
    KVB = 'nt sc1' if C.nt_kv else 'sc1'
    stamp(a, 4)
    a(f"""
    s_and_b32 s{sQP}, s{sW}, 3
    s_lshr_b32 s{sKH}, s{sW}, 2
    v_lshlrev_b32 v5, 4, v0
    s_mul_i32 s{sHB}, s{sR}, {HEADB}
    s_add_u32 s{sHB}, s{sHB}, s{sLO}
    s_and_b32 s{sTmp}, s{sQP}, 1
    s_mul_i32 s{sSrc}, s{sTmp}, 5120
    s_mul_i32 s{sDst}, s{sTmp}, 10240
    s_lshr_b32 s{sTmp}, s{sQP}, 1
    s_mul_i32 s{sC}, s{sTmp}, 5120
    s_add_u32 s{sDst}, s{sDst}, s{sC}
    s_mul_i32 s{sC}, s{sTmp}, {ACT}
    s_add_u32 s{sSrc}, s{sSrc}, s{sC}
    s_add_u32 s{sSrc}, s{sSrc}, s{sHB}
    s_add_u32 s{sSrc}, s{sSrc}, {L_K}
    """)
    def kv_issue(j):
        GF.need(0x01010101 << j)
        a(f"s_add_u32 s{sTmp}, s{sG}, {j}\ns_and_b32 s{sTmp}, s{sTmp}, 7\ns_mul_i32 s{sTmp}, s{sTmp}, 10240\ns_add_u32 s{sTmp}, s{sTmp}, s{sSrc}")
        return lin_dma(a, 5, sTmp, 0, sDst, j * CH, 5, KVB)
    def init():
        a(f"""
        v_lshrrev_b32 v14, 5, v0
        v_and_b32 v15, 31, v0
        v_lshlrev_b32 v6, 3, v15
        s_mul_i32 s{sTmp}, s{sKH}, 10240
        v_add_u32 v{vK}, s{sTmp}, v5
        v_add_u32 v{vK8}, s{sTmp}, v6
        v_mul_u32_u24 v7, 320, v14
        v_lshl_add_u32 v7, v15, 4, v7
        v_add_u32 v{vV}, s{sTmp}, v7
        s_mov_b32 s{sEX}, 0x000fffff
        s_mov_b32 s{sEX+1}, 0x000fffff
        v_and_b32 v9, 27, v0
        v_cmp_eq_u32 vcc, 24, v9
        v_mov_b32 v8, 0x3f803f80
        s_nop 0
        v_cndmask_b32 v8, 0, v8, vcc
        v_mov_b32 v9, v8
        v_lshlrev_b32 v13, 7, v0
        v_mov_b32 v12, 0
        """)
        for i in range(0, 16, 2): a(f"v_mov_b64 v[{VF+i}:{VF+i+1}], v[8:9]")
        for i in range(0, 32, 2): a(f"v_mov_b64 v[{OO+i}:{OO+i+1}], 0")
        for i in range(0, 8, 2): a(f"v_mov_b64 v[{PP+8+i}:{PP+8+i+1}], 0")
        a(f"v_mov_b64 v[{QA+4}:{QA+5}], 0\nv_mov_b64 v[{QB+4}:{QB+5}], 0")
    init()
    l0 = a.uid("att_old"); l1 = a.uid("att_j")
    a(f"s_cmp_eq_u32 s{sKH}, 0\ns_cbranch_scc1 {l0}")
    poll_local(a, "attn", 1, va=10, vt=11)
    stamp(a, 5)
    a(f"""
    s_mul_i32 s{sC}, s{sQP}, 2560
    s_add_u32 s{sPF}, s{sC}, {QAREA}
    s_mul_i32 s{sTmp}, s{sG}, 10240
    s_add_u32 s{sTmp}, s{sTmp}, s{sC}
    s_add_u32 s{sTmp}, s{sTmp}, s{sHB}
    """)
    lin_dma(a, 5, sTmp, 0, sPF, 0, 2, KVB)
    a(f"s_mov_b32 exec_hi, 0\nbuffer_load_dwordx4 v5, {WSR}, s{T+19} offen offset:2048 {KVB} lds\ns_mov_b32 exec_hi, -1")
    a(f"s_mul_i32 s{sTmp}, s{sG}, 10240\ns_add_u32 s{sTmp}, s{sTmp}, s{sSrc}")
    lin_dma(a, 5, sTmp, 0, sDst, 0, 2, KVB)
    a(f"s_waitcnt vmcnt(0)")
    lin_dma(a, 5, sTmp, 2048, sDst, 2048, 3, KVB)
    a(f"s_branch {l1}")
    a.label(l0)
    a(f"""
    s_setprio 1
    v_add_u32 v10, s{sG}, v0
    v_and_b32 v10, 7, v10
    v_bfe_u32 v11, v0, 3, 1
    v_mul_u32_u24 v11, 19, v11
    s_mul_i32 s{sTmp}, s{sR}, 20
    v_add_u32 v11, s{sTmp}, v11
    v_lshrrev_b32 v11, 7, v11
    v_lshl_add_u32 v10, v10, 5, v11
    s_and_b32 s{sTmp}, s{sQP}, 1
    s_lshl_b32 s{sTmp}, s{sTmp}, 4
    s_lshr_b32 s{sC}, s{sQP}, 1
    s_mul_i32 s{sC}, s{sC}, 5
    s_add_u32 s{sTmp}, s{sTmp}, s{sC}
    s_add_u32 s{sTmp}, s{sTmp}, 5
    v_add_u32 v10, s{sTmp}, v10
    v_lshlrev_b32 v12, 7, v10
    v_lshrrev_b32 v11, 4, v0
    v_lshl_add_u32 v12, v11, 2, v12
    s_and_b32 s{sWs}, s{sR}, 7
    s_mul_i32 s{sWs}, s{sWs}, 102400
    s_mul_i32 s{sWd}, s{sW}, 5120
    s_add_u32 s{sWs}, s{sWs}, s{sWd}
    s_add_u32 s{sWs}, s{sWs}, {WS_WTO}
    s_add_u32 s{sGO}, s{sLO}, {L_FG}
    s_add_u32 s{sGW}, s{sEP}, 1
    """)
    a.label(l1)
    GF = Gate(a, 12, PV, fold=True, sleep=2)
    a(f"""
    s_mul_i32 s{sC}, s{sQP}, 2560
    s_add_u32 s{sC}, s{sC}, {QAREA}
    v_add_u32 v10, s{sC}, v5
    v_add_u32 v11, s{sC}, v6
    s_barrier
    ds_read_b128 v[{QA}:{QA+3}], v10
    ds_read_b128 v[{QB}:{QB+3}], v10 offset:1280
    s_mov_b32 exec_hi, 0
    ds_read_b64 v[{QA+4}:{QA+5}], v11 offset:1024
    ds_read_b64 v[{QB+4}:{QB+5}], v11 offset:{1280+1024}
    s_mov_b32 exec_hi, -1
    """)
    stamp(a, 6)
    l1 = a.uid("att_ap")
    a(f"s_cmp_lg_u32 s{sKH}, 0\ns_cbranch_scc1 {l1}")
    GF.load()
    a.label(l1)
    base = [0]
    def rdK(st, c, kt):
        off = c * CH + kt * 1280 - base[0]
        assert 0 <= off and off + 1024 < 65536
        b = KF + 8*st
        return [f"ds_read_b128 v[{b}:{b+3}], v{vK} offset:{off}", f"ds_read_b64 v[{b+4}:{b+5}], v{vK8} offset:{off+1024}"]
    def rdV(st, c, kt):
        off = c * CH + 5120 + kt * 1280 - base[0]
        assert 0 <= off and off + 640 < 65536
        b = VF + 8*st
        return [f"s_mov_b64 exec, s[{sEX}:{sEX+1}]", f"ds_read_b128 v[{b}:{b+3}], v{vV} offset:{off}",
                f"ds_read_b128 v[{b+4}:{b+7}], v{vV} offset:{off+640}", f"s_mov_b64 exec, -1"]
    def qk(x, st, c=None):
        b = KF + 8*st; q = (QA, QB)[x]; sd = SS + 16*x
        cc = v(NM + 16*x, 16) if c is None else c
        return [f"v_mfma_f32_32x32x16_bf16 {v(sd,16)}, {v(b,4)}, {v(q,4)}, {cc}",
                f"v_mfma_f32_32x32x8_bf16 {v(sd,16)}, {v(b+4,2)}, {v(q+4,2)}, {v(sd,16)}"]
    def pv(x, st):
        b = VF + 8*st; p = PP + 8*x; o = OO + 16*x
        return [f"v_mfma_f32_32x32x16_bf16 {v(o,16)}, {v(b,4)}, {v(p,4)}, {v(o,16)}",
                f"v_mfma_f32_32x32x16_bf16 {v(o,16)}, {v(b+4,4)}, {v(p+4,4)}, {v(o,16)}"]
    def sm(x):
        sd = SS + 16*x; p = PP + 8*x; r = []
        for i in range(8):
            r.append(f"v_exp_f32 v{sd+2*i}, v{sd+2*i}")
            r.append(f"v_exp_f32 v{sd+2*i+1}, v{sd+2*i+1}")
            if i > 0: r.append(f"v_cvt_pk_bf16_f32 v{p+i-1}, v{sd+2*i-2}, v{sd+2*i-1}")
        r.append(f"v_cvt_pk_bf16_f32 v{p+7}, v{sd+14}, v{sd+15}")
        return r
    def setm():
        for x in range(2): a(f"v_mov_b32 v{10+x}, v{8+x}")
        a("s_nop 0")
        for x in range(2): a(f"v_permlane32_swap_b32 v{8+x}, v{10+x}")
        a("s_nop 0")
        for x in range(2): a(f"v_max_f32 v{8+x}, v{8+x}, v{10+x}")
        for x in range(2):
            a(f"v_sub_f32 v{NM+16*x}, 0, v{8+x}\nv_sub_f32 v{NM+16*x+1}, 0, v{8+x}")
            for i in range(2, 16, 2): a(f"v_mov_b64 v[{NM+16*x+i}:{NM+16*x+i+1}], v[{NM+16*x}:{NM+16*x+1}]")
    for x in rdK(0, 0, 0): a(x)
    a("s_waitcnt lgkmcnt(0)")
    m = qk(0, 0, "0") + qk(1, 0, "0")
    for i in (0, 1, 2, 3): a(m[i])
    a.nop(10)
    for x in range(2):
        sd = SS + 16*x
        a(f"v_max3_f32 v{8+x}, v{sd}, v{sd+1}, v{sd+2}")
        for i in range(3, 15, 2):
            a(f"v_max3_f32 v{8+x}, v{8+x}, v{sd+i}, v{sd+i+1}")
        a(f"v_max_f32 v{8+x}, v{8+x}, v{sd+15}")
    setm()
    for i in range(16): a(f"v_sub_f32 v{SS+i}, v{SS+i}, v8")
    l1 = a.uid("att_w0"); l2 = a.uid("att_w1")
    sDone = t + 15
    a(f"s_cmp_eq_u32 s{sKH}, 0\ns_cbranch_scc1 {l1}\ns_waitcnt vmcnt(0)\ns_branch {l2}")
    a.label(l1)
    GF.upd()
    a(f"s_and_b32 s{sDone}, s{sNR}, 0x02020202\ns_cbranch_scc1 {l2}")
    GF.ok = 0x02020202; kv_issue(1); GF.ok = 0
    a.label(l2)
    a("s_barrier")
    stamp(a, 7)
    def l0only(fn):
        l = a.uid("l0")
        a(f"s_cmp_lg_u32 s{sL}, 0\ns_cbranch_scc1 {l}")
        fn(); a.label(l)
    def prepfin():
        l = a.uid("pf")
        a(f"s_and_b32 s{sC}, s{sR}, 15\ns_cmp_eq_u32 s{sC}, 15\ns_cbranch_scc1 {l}")
        prep(a, 1); a.label(l)
    def l2pf(i0, n):
        for i in range(i0, min(i0 + n, (C.l2pf + 3) // 4)):
            l = a.uid("pfs")
            a(f"""
            s_cmp_ge_u32 s{sW}, {C.l2pf - 4*i}
            s_cbranch_scc1 {l}
            s_lshr_b32 s{sPF}, s{sR}, 4
            s_mul_i32 s{sPF}, s{sPF}, {15 if C.rot_gu else 1}
            s_mul_i32 s{sC}, s{sW}, {1 if C.rot_gu else 2}
            s_add_u32 s{sPF}, s{sPF}, s{sC}
            s_add_u32 s{sPF}, s{sPF}, {4*i if C.rot_gu else 8*i}
            s_lshl_b32 s{sPF}, s{sPF}, 13
            s_and_b32 s{sC}, s{sR}, 15
            s_mul_i32 s{sC}, s{sC}, 245760
            s_add_u32 s{sPF}, s{sPF}, s{sC}
            s_add_u32 s{sPF}, s{sPF}, {WS_WTG}
            buffer_load_dword v{DUM}, v13, {WSR}, s{sPF} offen
            """)
            a.label(l)
    def wwo(c): lin_dma(a, 5, sWs, c*20480, sWd, c*20480, 5, 'nt' if C.nt_wo else '')
    def hook(j):
        if j == 1:
            kv_issue(2); kv_issue(3); a("s_waitcnt vmcnt(10)"); l0only(prepfin)
        else: a("s_waitcnt vmcnt(0)")
        if j == 3: kv_issue(6); kv_issue(7)
        if j == 2:
            def fp():
                a(f"""
                s_lshl_b32 s{sC}, s{sWG}, 5
                s_add_u32 s{sC}, s{sC}, s{sW}
                s_lshl_b32 s{sC}, s{sC}, 2
                s_add_u32 s{sC}, s{sC}, {L_FG + 16}
                v_mov_b32 v10, 0
                v_mov_b32 v11, s{sEP}
                s_mov_b64 exec, 1
                buffer_store_dword v11, v10, {WSR}, s{sC} offen sc1
                s_mov_b64 exec, -1
                """)
            l0only(fp)
            kv_issue(4); kv_issue(5)
        if j == 4:
            def fpw():
                a(f"s_lshl_b32 s{sC}, s{sW}, 13\ns_add_u32 s{sC}, s{sC}, {L_FG + 16}")
                poll(a, 13, PV, f"s{sC}", f"s{sEP}", sleep=2, wide=True)
            l0only(fpw)
        if j == 5:
            def cs():
                l = a.uid("cs")
                a(f"s_cmp_lg_u32 s{sW}, 3\ns_cbranch_scc1 {l}\ns_mov_b32 exec_hi, 0xffff")
                a(f"s_and_b32 s{sC}, s{sR}, 15\ns_mul_i32 s{sC}, s{sC}, 768\ns_add_u32 s{sC}, s{sC}, {WS_CSP}")
                for i in range(10):
                    a(f"buffer_load_dwordx4 v[{PV+4*i}:{PV+3+4*i}], v5, {WSR}, s{sC} offen\ns_add_u32 s{sC}, s{sC}, 12288")
                a("s_mov_b32 exec_hi, -1")
                a.label(l)
            l0only(cs)
            wwo(0); wwo(1); wwo(2); l2pf(0, 1)
        if j == 6:
            def cs():
                l = a.uid("cs")
                a(f"s_cmp_lg_u32 s{sW}, 3\ns_cbranch_scc1 {l}\ns_mov_b32 exec_hi, 0xffff")
                for i in range(1, 10):
                    a(f"v_pk_add_f32 v[{PV}:{PV+1}], v[{PV}:{PV+1}], v[{PV+4*i}:{PV+1+4*i}]\nv_pk_add_f32 v[{PV+2}:{PV+3}], v[{PV+2}:{PV+3}], v[{PV+2+4*i}:{PV+3+4*i}]")
                a(f"s_mul_i32 s{sC}, s{sWG}, 768\ns_add_u32 s{sC}, s{sC}, {WS_CSG}")
                a(f"buffer_store_dwordx4 v[{PV}:{PV+3}], v5, {WSR}, s{sC} offen\ns_mov_b32 exec_hi, -1")
                a.label(l)
            l0only(cs)
            wwo(3)
            if fast:
                a(f"""
                s_lshl_b32 s{sPF}, s{sWG}, 1
                s_and_b32 s{sC}, s{sW}, 1
                s_add_u32 s{sPF}, s{sPF}, s{sC}
                s_mul_i32 s{sPF}, s{sPF}, 5120
                s_add_u32 s{sC}, s{sLO}, {L_O}
                s_bitcmp1_b32 s{sW}, 1
                s_cselect_b32 s{sC}, {L_X1}, s{sC}
                s_add_u32 s{sPF}, s{sPF}, s{sC}
                s_mov_b32 exec_hi, 0xff
                buffer_load_dword v{DUM}, v13, {WSR}, s{sPF} offen
                s_lshl_b32 s{sTmp}, s{sWG}, 9
                s_add_u32 s{sTmp}, s{sTmp}, s{sLO}
                s_add_u32 s{sTmp}, s{sTmp}, {L_ST1}
                s_mov_b64 exec, 15
                buffer_load_dword v{DUM}, v13, {WSR}, s{sTmp} offen
                s_mov_b64 exec, -1
                """)
            l2pf(1, 1)
        if j == 7:
            wwo(4)
            if fast and C.htouch == 0:
                a(f"""
                s_lshl_b32 s{sPF}, s{sWG}, 2
                s_add_u32 s{sPF}, s{sPF}, s{sQP}
                s_mul_i32 s{sPF}, s{sPF}, 6144
                s_add_u32 s{sPF}, s{sPF}, s{sLO}
                s_add_u32 s{sPF}, s{sPF}, {L_H}
                s_mov_b32 exec_hi, 0xffff
                buffer_load_dword v{DUM}, v13, {WSR}, s{sPF} offen
                s_mov_b32 exec_hi, -1
                """)
            l2pf(2, 2)
    outl = []
    for c in range(8):
        for kt in range(4):
            st = kt & 1
            last = c == 7 and kt == 3
            if c == 0 and kt == 1:
                hk = a.uid("att_hk")
                a(f"s_cmp_eq_u32 s{sKH}, 0\ns_cbranch_scc1 {hk}"); a.label(hk + "r")
                def h0():
                    l = a.uid("h0")
                    a(f"s_cmp_eq_u32 s{sDone}, 0\ns_cbranch_scc1 {l}")
                    kv_issue(1)
                    a.label(l)
                outl.append((hk, h0))
            j = c + 1 if (kt == 3 and c < 6) else (7 if (c == 7 and kt == 0) else None)
            if j:
                hk = a.uid("att_hk")
                dstamp(a, 6, 3*j)
                a(f"s_cmp_eq_u32 s{sKH}, 0\ns_cbranch_scc1 {hk}"); a.label(hk + "r")
                dstamp(a, 6, 3*j+1)
                a("s_barrier")
                dstamp(a, 6, 3*j+2)
                outl.append((hk, (lambda jj: (lambda: hook(jj)))(j)))
            val = sm(0)
            mf = qk(1, st) + pv(1, st ^ 1)
            ex = rdV(st, c, kt)
            if kt == 3 and c in (2, 5):
                base[0] += 3 * CH
                ex += [f"v_add_u32 v{r}, {3*CH}, v{r}" for r in (vK, vK8, vV)]
            if not last: ex += rdK(st ^ 1, c + (kt + 1) // 4, (kt + 1) % 4)
            a(mf[0]); [a(x) for x in ex[:4]]; [a(x) for x in val[0:6]]
            a(mf[2]); [a(x) for x in ex[4:]]; [a(x) for x in val[6:12]]
            a(mf[1]); [a(x) for x in val[12:18]]
            a(mf[3]); [a(x) for x in val[18:]]
            val = sm(1)
            a("s_waitcnt lgkmcnt(0)")
            if not last:
                mf = qk(0, st ^ 1) + pv(0, st)
                a(mf[0]); [a(x) for x in val[0:6]]
                a(mf[2]); [a(x) for x in val[6:12]]
                a(mf[1]); [a(x) for x in val[12:18]]
                a(mf[3]); [a(x) for x in val[18:]]
            else:
                mf = pv(0, st) + pv(1, st)
                a(mf[0]); [a(x) for x in val[0:6]]
                a(mf[1]); [a(x) for x in val[6:16]]
                a(mf[2]); [a(x) for x in val[16:]]
                a("s_nop 1"); a(mf[3])
    stamp(a, 8)
    fb = a.uid("att_fb"); comb = a.uid("att_comb"); done = a.uid("att_done"); yng = a.uid("att_y")
    XB = 102400
    a(f"""
    s_mul_i32 s{sC}, s{sQP}, 7168
    s_add_u32 s{sC}, s{sC}, {XB}
    v_add_u32 v1, s{sC}, v5
    s_lshl_b32 s{sTmp}, s{sQP}, 2
    s_add_u32 s{sTmp}, s{sTmp}, {XB + 28672}
    v_mov_b32 v{XF}, s{sTmp}
    v_lshrrev_b32 v2, 1, v5
    v_add_u32 v2, s{sC}, v2
    s_mul_i32 s{sTmp}, s{sR}, 5
    v_add_u32 v3, s{sTmp}, v14
    v_lshrrev_b32 v4, 1, v3
    v_and_b32 v3, 1, v3
    v_lshlrev_b32 v3, 3, v3
    v_lshl_add_u32 v3, v4, 9, v3
    v_lshl_add_u32 v3, v15, 4, v3
    """)
    a(f"v_mul_f32 v10, {f32(2.0**63)}, v{OO+12}")
    a(f"v_pk_mul_f32 v[12:13], v[{OO}:{OO+1}], 0")
    for i in range(2, 12, 2): a(f"v_pk_fma_f32 v[12:13], v[{OO+i}:{OO+i+1}], 0, v[12:13]")
    a(f"v_mul_f32 v11, {f32(2.0**63)}, v{OO+16+12}")
    a(f"v_pk_add_f32 v[10:11], v[10:11], v[10:11]\nv_pk_fma_f32 v[12:13], v[10:11], 0, v[12:13]")
    for i in range(0, 12, 2): a(f"v_pk_fma_f32 v[12:13], v[{OO+16+i}:{OO+16+i+1}], 0, v[12:13]")
    a(f"v_cmp_u_f32 vcc, v12, v13\ns_cbranch_vccnz {fb}")
    a.label(comb)
    a(f"s_cmp_eq_u32 s{sKH}, 0\ns_cbranch_scc1 {yng}")
    def older():
        a.label(yng)
        a(f"v_mov_b32 v{OO+13}, v8\nv_mov_b32 v{OO+16+13}, v9\nv_mov_b32 v10, s{sEP}")
        for x in range(2):
            for i in range(3):
                a(f"ds_write_b128 v1, v[{OO+16*x+4*i}:{OO+16*x+4*i+3}] offset:{3584*x+1024*i}")
            a(f"ds_write_b64 v2, v[{OO+16*x+12}:{OO+16*x+13}] offset:{3584*x+3072}")
        a(f"ds_write_b32 v{XF}, v10")
        a(f"s_setprio 0")
        stamp(a, 9)
    pl = a.uid("att_x")
    a.label(pl)
    a(f"ds_read_b32 v10, v{XF}")
    for x in range(2):
        a(f"ds_read_b64 v[{76+16*x}:{77+16*x}], v2 offset:{3584*x+3072}")
    for x in range(2):
        for i in range(3):
            a(f"ds_read_b128 v[{64+16*x+4*i}:{64+16*x+4*i+3}], v1 offset:{3584*x+1024*i}")
    a(f"""
    s_lshl_b32 s{sTmp}, s{sG}, 2
    s_add_u32 s{sTmp}, s{sTmp}, s{sQP}
    s_mul_i32 s{sPF}, s{sTmp}, 81920
    s_add_u32 s{sPF}, s{sPF}, s{sLO}
    s_add_u32 s{sPF}, s{sPF}, {L_O}
    s_add_u32 s{sC}, s{sPF}, 40960
    s_waitcnt lgkmcnt(6)
    v_cmp_ne_u32 vcc, s{sEP}, v10
    s_cbranch_vccnz {pl}
    """)
    for x in range(2):
        f = 16 + 4*x
        a(f"v_max_f32 v{f+2}, v{8+x}, v{77+16*x}\nv_sub_f32 v{f}, v{8+x}, v{f+2}\nv_sub_f32 v{f+1}, v{77+16*x}, v{f+2}")
    for x in range(2):
        f = 16 + 4*x
        a(f"v_exp_f32 v{f}, v{f}\nv_exp_f32 v{f+1}, v{f+1}")
    for x in range(2):
        f = 16 + 4*x
        a(f"v_mul_f32 v{f+2}, v{f}, v{OO+16*x+12}\nv_fmac_f32 v{f+2}, v{f+1}, v{76+16*x}")
    a("v_rcp_f32 v18, v18\nv_rcp_f32 v22, v22\ns_waitcnt lgkmcnt(0)")
    for x in range(2):
        f = 16 + 4*x; o = OO + 16*x
        a(f"v_mul_f32 v{f}, v{f}, v{f+2}\nv_mul_f32 v{f+2}, v{f+1}, v{f+2}")
        for i in range(0, 12, 2):
            a(f"v_pk_mul_f32 v[{o+i}:{o+i+1}], v[{o+i}:{o+i+1}], v[{f}:{f+1}] op_sel_hi:[1,0]")
        for i in range(0, 12, 2):
            a(f"v_pk_fma_f32 v[{o+i}:{o+i+1}], v[{64+16*x+i}:{65+16*x+i}], v[{f+2}:{f+3}], v[{o+i}:{o+i+1}] op_sel_hi:[1,0,1]")
        for i in range(6):
            a(f"v_cvt_pk_bf16_f32 v{o+i}, v{o+2*i}, v{o+2*i+1}")
        sd = sPF if x == 0 else sC
        a(f"""
        buffer_store_dwordx2 v[{o}:{o+1}], v3, {WSR}, s{sd} offen {SB}
        buffer_store_dwordx2 v[{o+2}:{o+3}], v3, {WSR}, s{sd} offen offset:512 {SB}
        s_mov_b32 exec_hi, 0
        buffer_store_dwordx2 v[{o+4}:{o+5}], v3, {WSR}, s{sd} offen offset:1024 {SB}
        s_mov_b32 exec_hi, -1
        """)
    flag_setup(a, 2)
    a("s_barrier\ns_waitcnt vmcnt(0)")
    flag_store(a, SB)
    stamp(a, 9)
    a(f"s_branch {ld_label}")
    for hk, fn in outl:
        a.label(hk); fn(); a(f"s_branch {hk}r")
    older()
    def fallback():
        a.label(fb)
        sKb, sVb, sI = t+12, t+13, t+14
        def addr():
            a(f"""
            s_lshr_b32 s{sKb}, s{sI}, 2
            s_lshl_b32 s{sKb}, s{sKb}, 1
            s_add_u32 s{sKb}, s{sKb}, s{sKH}
            s_lshl_b32 s{sKb}, s{sKb}, 2
            s_and_b32 s{sVb}, s{sI}, 3
            s_add_u32 s{sKb}, s{sKb}, s{sVb}
            s_mul_i32 s{sKb}, s{sKb}, 1280
            s_add_u32 s{sKb}, s{sKb}, s{sHB}
            s_add_u32 s{sVb}, s{sKb}, {L_V}
            s_add_u32 s{sKb}, s{sKb}, {L_K}
            buffer_load_dwordx4 v[{KF}:{KF+3}], v5, {WSR}, s{sKb} offen sc1
            buffer_load_dwordx2 v[{KF+4}:{KF+5}], v6, {WSR}, s{sKb} offen offset:1024 sc1
            """)
        l1 = a.uid("att_fb1"); l2 = a.uid("att_fb2")
        a(f"s_mov_b32 s{sI}, 0\nv_mov_b32 v8, 0xff800000\nv_mov_b32 v9, 0xff800000")
        a.label(l1)
        addr()
        a("s_waitcnt vmcnt(0)")
        for x in range(2):
            for m in qk(x, 0, "0"): a(m)
        a.nop(12)
        for x in range(2):
            sd = SS + 16*x
            for i in range(0, 16, 2): a(f"v_max3_f32 v{8+x}, v{8+x}, v{sd+i}, v{sd+i+1}")
        a(f"s_add_u32 s{sI}, s{sI}, 1\ns_cmp_lt_u32 s{sI}, 32\ns_cbranch_scc1 {l1}")
        setm()
        for i in range(32): a(f"v_mov_b32 v{OO+i}, 0")
        a(f"s_mov_b32 s{sI}, 0")
        a.label(l2)
        addr()
        a(f"""
        s_mov_b64 exec, s[{sEX}:{sEX+1}]
        buffer_load_dwordx4 v[{VF}:{VF+3}], v7, {WSR}, s{sVb} offen sc1
        buffer_load_dwordx4 v[{VF+4}:{VF+7}], v7, {WSR}, s{sVb} offen offset:640 sc1
        s_mov_b64 exec, -1
        s_waitcnt vmcnt(0)
        """)
        for x in range(2):
            for m in qk(x, 0): a(m)
        a.nop(12)
        for x in range(2):
            for i in sm(x): a(i)
        a("s_nop 1")
        for x in range(2):
            for m in pv(x, 0): a(m)
        a(f"s_add_u32 s{sI}, s{sI}, 1\ns_cmp_lt_u32 s{sI}, 32\ns_cbranch_scc1 {l2}")
        a.nop(12)
        a(f"s_branch {comb}")
    return fallback

def xoff(SB, which):
    if SB == "": return (False, L_X1)
    return (True, L_X1) if which == 1 else (False, L_X2)
def add_x(a, dst, src, SB, which):
    lo, c = xoff(SB, which)
    a(f"s_add_u32 s{dst}, s{src}, {c}")
    if lo: a(f"s_add_u32 s{dst}, s{dst}, s{sLO}")

def proj_compute(a, down, SB, end_label):
    fast = SB == ""
    t = T
    K = F if down else D
    NCH = K // 128
    sRT, sCT = t, t+1
    st0 = 13 if down else 10
    sF, sRM, sST, sA, sA1, sThr, sSel = t+4, t+5, t+12, t+2, t+3, t+9, t+10
    NWS = 3 if down else C.wo_sets
    ACC = 14; RX = 34; AF = 54; WF = 134; RES = (220 if down else 54); VST = 200
    vF, vF2, vR, vR2 = 10, 11, 12, 13
    a(f"""
    s_lshr_b32 s{sRT}, s{sWG}, 3
    s_and_b32 s{sCT}, s{sR}, 7
    v_and_b32 v3, 15, v0
    v_lshrrev_b32 v7, 4, v0
    s_lshl_b32 s{t+6}, s{sRT}, 1
    s_lshr_b32 s{t+7}, s{sW}, 1
    s_add_u32 s{t+6}, s{t+6}, s{t+7}
    s_and_b32 s{t+8}, s{sW}, 1
    s_lshl_b32 s{t+8}, s{t+8}, 8
    s_mul_i32 s{sA}, s{t+6}, {K*64}
    s_add_u32 s{sA}, s{sA}, s{t+8}
    s_add_u32 s{sA}, s{sA}, s{sLO}
    s_add_u32 s{sA}, s{sA}, {L_H if down else L_O}
    s_mul_i32 s{sF}, s{t+6}, 40960
    s_mul_i32 s{t+7}, s{sCT}, 5120
    s_add_u32 s{sF}, s{sF}, s{t+7}
    s_add_u32 s{sF}, s{sF}, s{t+8}
    s_lshl_b32 s{sST}, s{sW}, 8
    s_lshl_b32 s{t+7}, s{sRT}, 12
    s_add_u32 s{sST}, s{sST}, s{t+7}
    s_add_u32 s{sST}, s{sST}, s{sLO}
    s_lshl_b32 s{sRM}, s{sRT}, 2
    s_add_u32 s{sRM}, s{sRM}, s{sW}
    s_mul_i32 s{sRM}, s{sRM}, {16*1280}
    s_mul_i32 s{t+7}, s{sCT}, 160
    s_add_u32 s{sRM}, s{sRM}, s{t+7}
    v_lshlrev_b32 v1, 4, v3
    v_lshl_add_u32 v{vF}, v7, 9, v1
    v_lshrrev_b32 v2, 5, v0
    v_lshl_add_u32 v1, v2, 9, v1
    v_and_b32 v2, 1, v7
    v_lshl_add_u32 v{vF2}, v2, 3, v1
    v_add_u32 v{vF2}, 4096, v{vF2}
    v_mul_u32_u24 v1, 1280, v3
    v_lshl_add_u32 v{vR}, v7, 4, v1
    v_lshl_add_u32 v{vR2}, v7, 3, v1
    v_add_u32 v9, 4096, v{vF}
    """)
    SA = Src(sA, sA1, sThr, 8192)
    if down:
        a(f"s_and_b32 s{t+7}, s{sRT}, 3\ns_mul_i32 s{t+7}, s{t+7}, {C.rot_dn}\ns_sub_u32 s{sThr}, 12, s{t+7}")
        SA.setup(a, t+7, 12, t+8)
    def io(store, rowmajor, rsrc, soff, reg, bits):
        op = "store" if store else "load"
        v16, v8 = (vR, vR2) if rowmajor else (vF, vF2)
        o1, o2 = (64, 128) if rowmajor else (2048, 0)
        return [f"buffer_{op}_dwordx4 v[{reg}:{reg+3}], v{v16}, {rsrc}, {soff} offen {bits}",
                f"buffer_{op}_dwordx4 v[{reg+4}:{reg+7}], v{v16}, {rsrc}, {soff} offen offset:{o1} {bits}",
                f"buffer_{op}_dwordx2 v[{reg+8}:{reg+9}], v{v8}, {rsrc}, {soff} offen offset:{o2} {bits}"]
    if down:
        add_x(a, t+7, sF, SB, 1)
        for x in io(False, False, WSR, f"s{t+7}", RES, "sc1"): a(x)
        a(f"s_add_u32 s{t+7}, s{sST}, {L_ST1}\nv_lshlrev_b32 v1, 4, v3")
        for i in range(4):
            a(f"buffer_load_dwordx4 v[{VST+4*i}:{VST+4*i+3}], v1, {WSR}, s{t+7} offen offset:{1024*i} sc1")
        if fast:
            a(f"s_lshl_b32 s{t+8}, s{sWG}, 9\ns_add_u32 s{t+8}, s{t+8}, {L_ST2}\nv_lshlrev_b32 v1, 7, v0\ns_mov_b64 exec, 15")
            a(f"buffer_load_dword v8, v1, {WSR}, s{t+8} offen\ns_mov_b64 exec, -1")
    else:
        l1 = a.uid("prj_r1"); l2 = a.uid("prj_r2")
        a(f"s_cmp_lg_u32 s{sL}, 0\ns_cbranch_scc1 {l1}")
        for x in io(False, True, R(R_X), f"s{sRM}", RES, ""): a(x)
        a(f"s_branch {l2}")
        a.label(l1)
        add_x(a, t+7, sF, SB, 2)
        for x in io(False, False, WSR, f"s{t+7}", RES, "sc1"): a(x)
        a.label(l2)
    a(f"v_lshlrev_b32 v4, 4, v0\nv_add_u32 v5, 61440, v4\nv_add_u32 v6, 122880, v4\ns_mov_b32 s{t+8}, 0xffff0000")
    def wadr(c):
        o = dnW(c) if down else c * 20480
        return 4 + o // 61440, o % 61440
    def reads(c, u):
        b = WF + 20*((4*c + u) % NWS); r, o = wadr(c)
        return [f"ds_read_b128 v[{b+4*jn}:{b+4*jn+3}], v{r} offset:{o + 5120*u + 1024*jn}" for jn in range(5)]
    NAS = 5
    def aload(c):
        r = []
        if down: r += [f"s_cmp_gt_u32 s{sThr}, {c}", f"s_cselect_b32 s{sSel}, s{sA}, s{sA1}", f"s_add_u32 s{sSel}, s{sSel}, {c*8192}"]
        else: r += [f"s_add_u32 s{sSel}, s{sA}, {c*8192}"]
        for u in range(4):
            d = AF + 16*(c % NAS) + 4*u
            r.append(f"buffer_load_dwordx4 v[{d}:{d+3}], v{vF if u < 2 else 9}, {WSR}, s{sSel} offen offset:{2048*(u & 1)} sc1")
        return r
    def mfmas(c, u, zero=False):
        b = WF + 20*((4*c + u) % NWS); x = AF + 16*(c % NAS) + 4*u
        return [f"v_mfma_f32_16x16x32_bf16 {v(ACC+4*jn,4)}, {v(b+4*jn,4)}, {v(x,4)}, {0 if zero else v(ACC+4*jn,4)}" for jn in range(5)]
    D_ = NWS - 1
    rd = lambda st_: reads(st_ // 4, st_ % 4) if st_ < 4*NCH else []
    if down: a(f"s_and_b32 s{t+7}, s{sRT}, 3\ns_mul_i32 s{t+7}, s{t+7}, {4 if C.rot_dn else 0}")
    G_ = gate_local(a, "down" if down else "wo", 4 if down else 2, 1, 2, t+7)
    def setup2():
        if not down: a("s_waitcnt vmcnt(0)")
        for i in range(10):
            a(f"v_lshlrev_b32 v{RX+2*i}, 16, v{RES+i}\nv_and_b32 v{RX+1+2*i}, s{t+8}, v{RES+i}")
        if down:
            row_stats(a, VST, VST + 2, VST + 3)
            a(f"v_mul_f32 v{VST+2}, v{VST+3}, v{VST+3}")
        a("s_barrier")
        for st_ in range(D_):
            for x in rd(st_): a(x)
    if not down: setup2()
    def al(c):
        G_.need(span(128*c, 128*c + 127, 96, 2) if down else span(128*c, 128*c + 127, 20, 1))
        if c == 0: stamp(a, st0)
        for x in aload(c): a(x)
    NPRE = C.dn_a if down else 5
    for c in range(NPRE): al(c)
    if down: setup2()
    issued = 4 * NPRE
    for c in range(NCH):
        for u in range(4):
            step = 4*c + u
            left = min(D_ - 1, 4*NCH - 1 - step)
            a(f"s_waitcnt vmcnt({issued - step - 1}) lgkmcnt({min(15, 5*left)})")
            if step == 4*NCH - 1 or (down and u == 2 and c + 1 < NCH): a("s_barrier")
            interleave(a, mfmas(c, u, step == 0), rd(step + D_))
            if u == 0 and c + NPRE < NCH:
                assert NPRE < NAS
                al(c + NPRE); issued += 4
    stamp(a, st0 + 1)
    add_x(a, t+7, sF, SB, 2 if down else 1)
    flag_setup(a, 5 if down else 3)
    for i in range(0, 20, 2):
        c = ACC + i
        if down: a(f"v_pk_fma_f32 v[{c}:{c+1}], v[{c}:{c+1}], v[{VST+2}:{VST+3}], v[{RX+i}:{RX+i+1}] op_sel_hi:[1,0,1]")
        else: a(f"v_pk_add_f32 v[{c}:{c+1}], v[{c}:{c+1}], v[{RX+i}:{RX+i+1}]")
        a(f"v_cvt_pk_bf16_f32 v{60+i//2}, v{c}, v{c+1}")
    if down:
        l1 = a.uid("prj_o1")
        a(f"s_cmp_eq_u32 s{sL}, 0\ns_cbranch_scc1 {l1}")
        srd(a, R_T, P_OUT, ACT)
        for x in io(True, True, R(R_T), f"s{sRM}", 60, ""): a(x)
        a(f"s_branch {end_label}")
        a.label(l1)
    for x in io(True, False, WSR, f"s{t+7}", 60, SB): a(x)
    a(f"v_pk_add_f32 v[72:73], v[{ACC}:{ACC+1}], v[{ACC+2}:{ACC+3}]\nv_pk_mul_f32 v[74:75], v[{ACC}:{ACC+1}], v[{ACC}:{ACC+1}]")
    a(f"v_pk_fma_f32 v[74:75], v[{ACC+2}:{ACC+3}], v[{ACC+2}:{ACC+3}], v[74:75]")
    for i in range(4, 20, 2):
        a(f"v_pk_add_f32 v[72:73], v[72:73], v[{ACC+i}:{ACC+i+1}]\nv_pk_fma_f32 v[74:75], v[{ACC+i}:{ACC+i+1}], v[{ACC+i}:{ACC+i+1}], v[74:75]")
    a(f"""
    v_add_f32 v72, v72, v73
    v_add_f32 v73, v74, v75
    s_lshr_b32 s{t+7}, s{sCT}, 1
    s_lshl_b32 s{t+7}, s{t+7}, 10
    v_permlane32_swap_b32 v72, v73
    s_and_b32 s{t+8}, s{sCT}, 1
    s_lshl_b32 s{t+8}, s{t+8}, 3
    v_add_f32 v72, v72, v73
    v_mov_b32 v73, v72
    s_add_u32 s{t+7}, s{t+7}, s{t+8}
    s_add_u32 s{t+7}, s{t+7}, s{sST}
    v_permlane16_swap_b32 v72, v73
    s_add_u32 s{t+7}, s{t+7}, {L_ST2 if down else L_ST1}
    v_lshrrev_b32 v8, 5, v0
    v_lshlrev_b32 v8, 2, v8
    v_lshl_add_u32 v8, v3, 4, v8
    v_add_f32 v72, v72, v73
    buffer_store_dword v72, v8, {WSR}, s{t+7} offen {SB}
    s_waitcnt vmcnt(0)
    """)
    flag_store(a, SB)
    stamp(a, st0 + 2)

def gu_compute(a, SB):
    t = T
    sRT, sCT, sWM, sWN, sTB, sF0 = t, t+1, t+2, t+3, t+4, t+6
    FR = 14; ACC = 94; VCS = 190; VST = 238; MS = 8
    a(f"""
    s_lshr_b32 s{sRT}, s{sWG}, 4
    s_and_b32 s{sCT}, s{sR}, 15
    s_and_b32 s{sWM}, s{sW}, 1
    s_lshr_b32 s{sWN}, s{sW}, 1
    s_lshl_b32 s{sTB}, s{sRT}, 1
    s_add_u32 s{sTB}, s{sTB}, s{sWM}
    s_mul_i32 s{sF0}, s{sCT}, 96
    s_mul_i32 s{t+5}, s{sWN}, 48
    s_add_u32 s{sF0}, s{sF0}, s{t+5}
    s_mul_i32 s{t+5}, s{sWG}, 768
    s_mul_i32 s{t+7}, s{sWN}, 384
    s_add_u32 s{t+5}, s{t+5}, s{t+7}
    s_add_u32 s{t+5}, s{t+5}, {WS_CSG}
    v_lshrrev_b32 v12, 5, v0
    v_lshlrev_b32 v1, 6, v12
    """)
    for jn in range(3):
        for q in range(4):
            r = VCS + 16*jn + 4*q
            a(f"buffer_load_dwordx4 v[{r}:{r+3}], v1, {WSR}, s{t+5} offen offset:{128*jn+16*q} sc1")
    a(f"""
    s_lshl_b32 s{t+5}, s{sWM}, 13
    v_lshlrev_b32 v11, 4, v0
    v_add_u32 v3, s{t+5}, v11
    s_mul_i32 s{t+5}, s{sWN}, 3072
    s_add_u32 s{t+5}, s{t+5}, {WB}
    v_add_u32 v4, s{t+5}, v11
    v_add_u32 v5, 49152, v4
    s_mul_i32 s{t+11}, s{sTB}, {2*F*64}
    s_lshl_b32 s{t+7}, s{sF0}, 6
    s_add_u32 s{t+11}, s{t+11}, s{t+7}
    s_add_u32 s{t+11}, s{t+11}, s{sLO}
    s_add_u32 s{t+11}, s{t+11}, {L_H}
    s_add_u32 s{t+12}, s{t+11}, {F*64}
    """)
    flag_setup(a, 4)
    for i in range(0, 96, 2): a(f"v_mov_b64 v[{ACC+i}:{ACC+i+1}], 0")
    def reads(c, kk):
        b = FR + 20*kk; r = []
        for tm in range(2):
            r.append(f"ds_read_b128 v[{b+4*tm}:{b+4*tm+3}], v3 offset:{(c % 4)*16384+4096*tm+1024*kk}")
        o = guW(c) - WB
        for jn in range(3):
            d = b + 8 + 4*jn
            r.append(f"ds_read_b128 v[{d}:{d+3}], v{4 + o // 49152} offset:{o % 49152 + 6144*kk+1024*jn}")
        return r
    def mfma(kk, tl):
        b = FR + 20*kk; c = ACC + 16*tl
        return f"v_mfma_f32_32x32x16_bf16 {v(c,16)}, {v(b+8+4*(tl>>1),4)}, {v(b+4*(tl&1),4)}, {v(c,16)}"
    def epi(jn, pk):
        r = []
        for tm in range(2):
            c = ACC + 16*(2*jn + tm)
            for i in range(8): r.append(f"v_max_f32 v{c+i}, 0, v{c+i}")
            if pk:
                for i in range(0, 8, 2): r.append(f"v_pk_mul_f32 v[{c+i}:{c+i+1}], v[{c+i}:{c+i+1}], v[{c+8+i}:{c+9+i}]")
            else:
                for i in range(8): r.append(f"v_mul_f32 v{c+i}, v{c+i}, v{c+8+i}")
            for i in range(4): r.append(f"v_cvt_pk_bf16_f32 v{c+i}, v{c+2*i}, v{c+2*i+1}")
            r.append(f"buffer_store_dwordx4 v[{c}:{c+3}], v11, {WSR}, s{t+11+tm} offen offset:{1024*jn} {SB}")
        return r
    a(f"s_lshl_b32 s{t+5}, s{sTB}, 12\ns_add_u32 s{t+5}, s{t+5}, s{sLO}\ns_add_u32 s{t+5}, s{t+5}, {L_ST1}")
    ins = {}
    for i in range(4): ins[48 + 3*i] = [f"buffer_load_dwordx4 v[{VST+4*i}:{VST+4*i+3}], v11, {WSR}, s{t+5} offen offset:{1024*i} sc1"]
    if SB == "" and C.htouch > 0:
        a(f"""
        v_mul_u32_u24 v6, 171, v0
        v_lshrrev_b32 v6, 12, v6
        v_mul_u32_u24 v7, {F*64 - 24*128}, v6
        v_lshl_add_u32 v6, v0, 7, v7
        """)
        ins[C.htouch] = ["s_mov_b32 exec_hi, 0xffff", f"buffer_load_dword v7, v6, {WSR}, s{t+11} offen", "s_mov_b32 exec_hi, -1"]
    ins[100] = ["s_waitcnt vmcnt(0)"] + [f"v_add_f32 v{VST}, v{VST}, v{VST+2*i}" for i in range(1, 8)] + \
         [f"v_mul_f32 v{MS}, {f32(-1.0/D)}, v{VST}", f"v_mul_f32 v{MS+1}, {f32(-1.0/D)}, v{VST}", "s_nop 1", f"v_permlane32_swap_b32 v{MS}, v{MS+1}"]
    fix = lambda tl: [f"v_fmac_f32 v{ACC+16*tl+i}, v{MS+(tl&1)}, v{VCS+16*(tl>>1)+i}" for i in range(16)]
    gemm_unrolled(a, 10, 6, 5, reads, mfma, [(0, 1), (2, 3), (4, 5)], ins, fix, 110, epi, 22)
    a("s_waitcnt vmcnt(0)")
    flag_store(a, SB)
    stamp(a, 23)

def loader_chain(a, SB, end_label, idle_label):
    t = T
    sLW, s4, s5, s6, aGU, aGU1, wGU, wGU1, wDN, wDN1, aQK, aQK1, wQK, wQK1, th10, th12, sTmp, sSel, thq = range(t, t + 19)
    sRot = sSel
    a(f"""
    s_sub_u32 s{sLW}, s{sW}, 4
    v_lshlrev_b32 v8, 4, v0
    s_mul_i32 s{s6}, s{sLW}, 6144
    s_and_b32 s{wGU}, s{sR}, 15
    s_mul_i32 s{wGU}, s{wGU}, 245760
    s_add_u32 s{wGU}, s{wGU}, s{s6}
    s_add_u32 s{wGU}, s{wGU}, {WS_WTG}
    s_lshr_b32 s{sRot}, s{sR}, 4
    s_mul_i32 s{sRot}, s{sRot}, {C.rot_gu}
    s_sub_u32 s{th10}, 10, s{sRot}
    """)
    S_aGU = Src(aGU, aGU1, th10, 4096); S_wGU = Src(wGU, wGU1, th10, 24576); S_wDN = Src(wDN, wDN1, th12, 20480)
    S_aQK = Src(aQK, aQK1, thq, 4096); S_wQK = Src(wQK, wQK1, thq, 64*3840)
    S_wGU.setup(a, sRot, 10, sTmp)
    def rest():
        a(f"""
        s_lshl_b32 s{s4}, s{sLW}, 12
        s_mul_i32 s{s5}, s{sLW}, 5120
        s_lshr_b32 s{aQK}, s{sWG}, 4
        s_lshl_b32 s{aQK}, s{aQK}, 2
        s_add_u32 s{aQK}, s{aQK}, s{sLW}
        s_mul_i32 s{aQK}, s{aQK}, 40960
        """)
        add_x(a, aGU, aQK, SB, 1)
        add_x(a, aQK, aQK, SB, 2)
        a(f"s_and_b32 s{wDN}, s{sR}, 15")
        qkvW_setup(a, wQK, sLW, wDN, sTmp, 6)
        a(f"s_sub_u32 s{sRot}, 10, s{th10}")
        S_aGU.setup(a, sRot, 10, sTmp)
        a(f"s_lshr_b32 s{sRot}, s{sR}, 4\ns_mul_i32 s{sRot}, s{sRot}, {C.rot_qk}\ns_sub_u32 s{thq}, 10, s{sRot}")
        for S_ in (S_aQK, S_wQK): S_.setup(a, sRot, 10, sTmp)
        a(f"""
        s_and_b32 s{wDN}, s{sR}, 7
        s_mul_i32 s{wDN}, s{wDN}, 245760
        s_add_u32 s{wDN}, s{wDN}, s{s5}
        s_add_u32 s{wDN}, s{wDN}, {WS_WTD}
        s_lshr_b32 s{sRot}, s{sR}, 3
        s_mul_i32 s{sRot}, s{sRot}, {C.rot_dn}
        s_sub_u32 s{th12}, 12, s{sRot}
        """)
        S_wDN.setup(a, sRot, 12, sTmp)
    G_ = [None, None]
    def lin(S_, dst, dfn, bits):
        def f(c, i0, k):
            if bits == "sc1":
                G_[0].need(span(64*c, 64*c + 63, 80, 2) if C.gran else 0xffff)
                if G_[1] is not None: stamp(a, G_[1]); G_[1] = None
            S_.sel(a, c, sSel)
            lin_dma(a, 8, sSel, c*S_.stride + 1024*i0, dst, dfn(c) + 1024*i0, k, bits)
        return f
    def pf(kind, ep, st, rot):
        def f():
            a(f"s_lshr_b32 s{sTmp}, s{sR}, 4\ns_mul_i32 s{sTmp}, s{sTmp}, {4 if rot else 0}")
            G_[0] = gate_local(a, kind, ep, 1, 2, sTmp, sleep=C.psleep); G_[1] = st
        return f
    def emitWQ(c, i0, k):
        S_wQK.sel(a, c, sSel)
        for i in range(i0, i0 + k):
            a(f"s_add_u32 m0, s{s4}, {qkW(c) + 1024*i}\ns_add_u32 s{sTmp}, s{sSel}, {c*64*3840 + i*4*3840}")
            a(f"buffer_load_dwordx4 v6, {R(R_WQ)}, s{sTmp} offen {'nt' if C.nt_qk else ''} lds")
    rA = lambda c: (c % 4) * 16384
    full = lambda c: G_[0].need(0xffff) if c == 1 else None
    reg = lambda f, sz: (lambda c: (f(c), f(c) + sz))
    gu = Phase("gu", 10, 4, 6, lin(S_aGU, s4, rA, "sc1"), lin(S_wGU, s6, guW, "nt" if C.nt_gu else ""), reg(rA, 16384), reg(guW, 24576), pf("gu", 3, 21, C.rot_gu), C.bud_gu, dbg=(C.dbg == 3), after_bar=full)
    dn = Phase("dn", 12, 0, 5, None, lin(S_wDN, s5, dnW, "nt" if C.nt_dn else ""), None, reg(dnW, 20480), None, C.bud_dn, lag=2, early=C.dn_early, dbg=(C.dbg == 4))
    qk = Phase("qk", 10, 4, 4, lin(S_aQK, s4, rA, "sc1"), emitWQ, reg(rA, 16384), reg(qkW, 16384), pf("gu", 5, 17, C.rot_qk), C.bud_qk, early=C.qk_early, dbg=(C.dbg == 2), after_bar=full)
    L = Loader(a)
    L.live["wo"] = (0, 102400)
    pn = L.pre(gu, 0, C.gu_e)
    rest()
    a("s_barrier")
    L.live.pop("wo")
    pn = L.pre(gu, pn, C.gu_e2)
    pn = L.run(gu, dn, pn); stamp(a, 22); L.end(gu); pn = L.pre(dn, pn, C.dn_e)
    pn = L.run(dn, qk, pn); stamp(a, 14); L.end(dn)
    a(f"s_cmp_lg_u32 s{sL}, 0\ns_cbranch_scc1 {end_label}")
    a(f"s_and_b32 s{sTmp}, s{sR}, 15\ns_cmp_eq_u32 s{sTmp}, 15\ns_cbranch_scc1 {idle_label}")
    pn = L.pre(qk, pn, C.qk_e)
    L.run(qk, None, pn); stamp(a, 19); L.end(qk)

def build():
    a = Asm()
    K = NAME + "_kernel"
    t = T
    a(f".globl {K}\n.p2align 8\n.type {K},@function")
    a.label(K)
    a(f"""
    s_load_dwordx16 s[16:31], s[0:1], 0
    s_load_dwordx4 s[32:35], s[0:1], 64
    s_cmp_ge_u32 s2, 256
    s_cbranch_scc1 L_exit
    s_and_b32 s{sG}, s2, 7
    s_lshr_b32 s{sR}, s2, 3
    v_lshrrev_b32 v1, 6, v0
    v_and_b32 v0, 63, v0
    v_readfirstlane_b32 s{sW}, v1
    s_lshl_b32 s{sWG}, s{sG}, 5
    s_add_u32 s{sWG}, s{sWG}, s{sR}
    s_mov_b32 s{sL}, 0
    s_mov_b32 s{sLO}, 0
    s_mov_b32 s{sEP}, 0
    s_mov_b32 s{sTMO}, 0
    """)
    if C.stamp: a("v_mov_b32 v255, 0\nv_mov_b32 v254, 0\ns_memrealtime s[14:15]")
    stamp(a, 0)
    qkv_ids(a, t)
    a(f"s_cmp_lt_u32 s{sW}, 4\ns_cbranch_scc1 L_q1c\ns_cmp_eq_u32 s{t+1}, 15\ns_cbranch_scc1 L_q1c")
    qkv1_loader(a)
    a("s_branch L_q1done")
    a.label("L_q1c")
    a("s_waitcnt lgkmcnt(0)")
    srd(a, R_X, P_X, ACT)
    srd(a, R_WQ, P_WQKV, D*3*D*2)
    if C.q1pf:
        a(f"""
        s_cmp_lt_u32 s{sW}, 2
        s_cbranch_scc1 L_npf
        s_cmp_gt_u32 s{sW}, 3
        s_cbranch_scc1 L_npf
        s_lshl_b32 s{t+8}, s{sWG}, 1
        s_add_u32 s{t+8}, s{t+8}, s{sW}
        s_sub_u32 s{t+8}, s{t+8}, 2
        s_mul_i32 s{t+9}, s{t+8}, 4864
        s_mul_i32 s{t+8}, s{t+8}, 5120
        v_lshlrev_b32 v1, 7, v0
        s_mov_b32 exec_hi, 0xff
        buffer_load_dword v251, v1, {R(R_X)}, s{t+8} offen
        s_mov_b32 exec_hi, 0x3f
        buffer_load_dword v251, v1, {R(R_WQ)}, s{t+9} offen
        s_mov_b32 exec_hi, -1
        """)
        a.label("L_npf")
    other_srds(a)
    a(f"""
    s_cmp_lg_u32 s{sW}, 1
    s_cbranch_scc1 L_n1
    s_getpc_b64 s[{t+8}:{t+9}]
    """)
    a.label("L_pc")
    a(f"""
    s_sub_u32 s{t+8}, s{t+8}, L_pc-{K}
    s_subb_u32 s{t+9}, s{t+9}, 0
    s_and_b32 s{t+10}, s{sR}, 15
    s_lshl_b32 s{t+10}, s{t+10}, 13
    v_lshlrev_b32 v1, 7, v0
    v_add_u32 v1, s{t+10}, v1
    v_min_u32 v1, L_fast_end-{K}, v1
    global_load_dword v251, v1, s[{t+8}:{t+9}]
    """)
    a.label("L_n1")
    a(f"s_cmp_lg_u32 s{sW}, 0\ns_cbranch_scc1 L_n0")
    nonce_put(a)
    a.label("L_n0")
    a(f"s_cmp_eq_u32 s{t+1}, 15\ns_cbranch_scc1 L_q1idle")
    qkv_compute(a, True, "sc1")
    a("s_branch L_q1done")
    a.label("L_q1idle")
    qkv1_idle(a)
    a.label("L_q1done")
    a(f"s_cmp_eq_u32 s{sMODE}, 0\ns_cbranch_scc1 L_slow")
    tails = []
    for nm, SB in (("fast", ""), ("slow", "sc1")):
        a.label(f"L_{nm}")
        tails.append(phase_attn(a, SB, f"L_{nm}_ld"))
        proj_compute(a, False, SB, None)
        gu_compute(a, SB)
        proj_compute(a, True, SB, "L_end")
        qkv_ids(a, t)
        a(f"s_cmp_eq_u32 s{t+1}, 15\ns_cbranch_scc1 L_{nm}_idle")
        qkv_compute(a, False, SB)
        a(f"s_branch L_{nm}_next")
        a.label(f"L_{nm}_ld")
        loader_chain(a, SB, "L_end", f"L_{nm}_idle")
        a(f"s_branch L_{nm}_next")
        a.label(f"L_{nm}_idle")
        a("s_waitcnt vmcnt(0)\ns_barrier")
        a.label(f"L_{nm}_next")
        a(f"s_mov_b32 s{sL}, 1\ns_mov_b32 s{sLO}, {LSTRIDE}\ns_add_u32 s{sEP}, s{sEP}, 5\ns_mov_b32 s{R_WQ+2}, 0\ns_branch L_{nm}")
        if nm == "fast":
            a.label("L_end")
            a(f"""
            s_xor_b32 s{t}, s{sW}, 7
            s_or_b32 s{t}, s{t}, s2
            s_cmp_lg_u32 s{t}, 0
            s_cbranch_scc1 L_end2
            v_mov_b32 v1, 0
            s_mov_b64 exec, 1
            global_store_dword v1, v1, s[{P_DBG}:{P_DBG+1}] sc1
            s_mov_b64 exec, -1
            """)
            a.label("L_end2")
            if C.stamp:
                a("s_waitcnt vmcnt(0)")
                stamp(a, 16)
                a(f"""
                s_memrealtime s[10:11]
                s_waitcnt lgkmcnt(0)
                v_writelane_b32 v255, s14, 62
                v_writelane_b32 v255, s10, 63
                v_writelane_b32 v255, s{sTMO}, 61
                s_lshl_b32 s10, s2, 3
                s_add_u32 s10, s10, s{sW}
                s_lshl_b32 s10, s10, 8
                s_add_u32 s10, s10, {WS_STAMP}
                v_lshlrev_b32 v1, 2, v0
                v_add_u32 v1, s10, v1
                global_store_dword v1, v255, s[{P_WS}:{P_WS+1}]
                v_add_u32 v1, {1<<20}, v1
                global_store_dword v1, v254, s[{P_WS}:{P_WS+1}]
                """)
                if C.dbgout:
                    a(f"s_xor_b32 s{t}, s2, 8\ns_or_b32 s{t}, s{t}, s{sW}\ns_cmp_lg_u32 s{t}, 0\ns_cbranch_scc1 L_exit\nv_readlane_b32 s{t+1}, v254, 0\nv_mov_b32 v1, 0")
                    for k, i in enumerate([1, 2, 7, 8, 10, 12, 23, 15, 20, 31, 32, 36, 47, 40]):
                        a(f"v_readlane_b32 s{t}, v254, {i}\ns_sub_u32 s{t}, s{t}, s{t+1}\ns_nop 1\nv_mov_b32 v2, s{t}\nglobal_store_dword v1, v2, s[{P_DBG}:{P_DBG+1}] offset:{4+4*k}")
            a.label("L_exit")
            a("s_endpgm")
            a.label("L_fast_end")
    for f in tails: f()
    hdr = open("cdna_kernels/" + NAME + ".s.ref").read().split("; Override")[0]
    hdr += "; @launch grid=(256,1,1) block=(512,1,1) lds=163840\n"
    txt = hdr + '.amdgcn_target "amdgcn-amd-amdhsa--gfx950"\n.text\n' + a.text() + f'''.section .rodata,"a"
.p2align 6
.amdhsa_kernel {K}
  .amdhsa_next_free_vgpr 256
  .amdhsa_next_free_sgpr 102
  .amdhsa_accum_offset 256
  .amdhsa_group_segment_fixed_size 0
  .amdhsa_kernarg_size 80
  .amdhsa_user_sgpr_count 2
  .amdhsa_user_sgpr_kernarg_segment_ptr 1
  .amdhsa_system_sgpr_workgroup_id_x 1
.end_amdhsa_kernel
'''
    for p in check(a.lines): print("HAZARD", p)
    return txt

if __name__ == "__main__":
    out = sys.argv[1] if len(sys.argv) > 1 else "cdna_kernels/" + NAME + ".s"
    for kv in sys.argv[2:]:
        k, _, val = kv.partition("=")
        assert hasattr(C, k), k
        setattr(C, k, int(val) if val else True)
    open(out, "w").write(build())
    print("written", out)
```

```python
import sys, math, struct
sys.path.insert(0, "gen")
from asmlib import *

NAME = "interleave_layers__softmax_full_mha__glu_gated_reglu__prompt"
S, D, F, H, DH = 2048, 640, 1536, 32, 20
ACT = S * D * 2
HEADB = 81920
L_Q = 0
L_K = L_Q + ACT
L_V = L_K + ACT
L_O = L_V + ACT
L_X1 = L_O + ACT
L_X2 = L_X1 + ACT
L_H = L_X2 + ACT
L_ST1 = L_H + S * F * 2
L_ST2 = L_ST1 + S * 64
L_FG = L_ST2 + S * 64
LSTRIDE = L_FG + 32768
WS_ST0 = LSTRIDE + L_ST2
WS_WTO = 2 * LSTRIDE
WS_WTD = WS_WTO + D * D * 2
WS_WTG = WS_WTD + F * D * 2
WS_CSP = WS_WTG + 2 * F * D * 2
WS_CSG = WS_CSP + 10 * 12288
WS_CSQ = WS_CSG + 256 * 768
WS_FL = WS_CSQ + 256 * 512
WS_END = WS_FL + 8192
WS_SIZE = 268435456
WS_STAMP = 200 << 20
QSCALE = (DH ** -0.5) * math.log2(math.e)
def f32(x): return "0x%08x" % struct.unpack("<I", struct.pack("<f", x))[0]

P_X, P_WQKV, P_WO, P_BX, P_WG, P_WU, P_WD, P_OUT, P_DBG, P_WS = 16, 18, 20, 22, 24, 26, 28, 30, 32, 34
sL, sG, sR, sW, sLO, sEP, sTMO, sWG = 3, 4, 5, 6, 7, 8, 9, 13
R_WS, R_X, R_WQ, R_WG, R_WU, R_T = 36, 40, 44, 48, 52, 56
T = 60
WSR = f"s[{R_WS}:{R_WS+3}]"
def R(r): return f"s[{r}:{r+3}]"
SPIN = 200000

class Cfg:
    stamp = False
    dbg = 0
    dbgout = 0
    look = 6
    gu_e = 12
    dn_e = 4
    qk_e = 0
    bud_gu = 10
    bud_dn = 5
    bud_qk = 6
    bud_q1 = 10
    dn_a = 3
    psleep = 1
    gran = 3
    flip = 0
    q1prio = 0
    look_q1 = 6
    nocs = 0
    qloc = 1
    stage = 1
    cpf = 1
    l2pf0 = 1
    nt_kv = 0
    nt_wo = 0
    nt_gu = 0
    nt_dn = 0
    nt_qk = 0
    htouch = 0
    warm = 0
    gu_e2 = 0
    gu_p = 0
    dn_p = 20
    qk_p = 4
    wo_sets = 6
    q1pf = 1
    l2pf = 12
    rot = 0
    x_hit = 0
    tlb = 0
    rot_gu = 0
    rot_dn = 0
    rot_qk = 0
    dn_early = 99
    qk_early = 99
C = Cfg()

def stamp(a, i):
    if not C.stamp: return
    a(f"s_memtime s[10:11]\ns_mul_i32 s12, s{sL}, 24\ns_add_u32 m0, s12, {i}\ns_waitcnt lgkmcnt(0)\nv_writelane_b32 v255, s10, m0")
    if C.dbg == 7: a(f"s_memrealtime s[10:11]\ns_waitcnt lgkmcnt(0)\nv_writelane_b32 v254, s10, m0")

def dstamp(a, d, i):
    if C.stamp and C.dbg == d: a(f"s_memtime s[10:11]\ns_lshl_b32 s12, s{sL}, 5\ns_add_u32 m0, s12, {i}\ns_waitcnt lgkmcnt(0)\nv_writelane_b32 v254, s10, m0")

def srd(a, r, ptr, size):
    a(f"s_mov_b32 s{r}, s{ptr}\ns_mov_b32 s{r+1}, s{ptr+1}\ns_mov_b32 s{r+2}, {size}\ns_mov_b32 s{r+3}, 0x20000")

def interleave(a, mf, other):
    n = len(mf); k = 0
    for i, m in enumerate(mf):
        a(m)
        tgt = (len(other) * (i + 1) + n - 1) // n
        while k < tgt:
            a(other[k]); k += 1

def poll(a, vaddr, vtmp, soff, want, sleep=0, pre=False, wide=False):
    lp = a.uid("poll"); ok = a.uid("pollok")
    cnt = T + 22
    a(f"s_mov_b32 s{cnt}, s{sTMO}")
    if pre is not False: a(f"s_waitcnt vmcnt({pre})\ns_branch {lp}c")
    a.label(lp)
    if wide: a(f"buffer_load_dwordx4 v[{vtmp}:{vtmp+3}], v{vaddr}, {WSR}, {soff} offen sc1")
    else: a(f"buffer_load_dword v{vtmp}, v{vaddr}, {WSR}, {soff} offen sc1")
    a(f"s_waitcnt vmcnt(0)")
    if pre is not False: a.label(lp + "c")
    a(f"v_subrev_u32 v{vtmp}, {want}, v{vtmp}")
    if wide:
        for i in range(1, 4): a(f"v_subrev_u32 v{vtmp+i}, {want}, v{vtmp+i}\nv_max_u32 v{vtmp}, v{vtmp}, v{vtmp+i}")
    a(f"v_cmp_lt_u32 vcc, 15, v{vtmp}")
    a(f"s_cbranch_vccz {ok}")
    if sleep: a(f"s_sleep {sleep}")
    a(f"s_add_u32 s{cnt}, s{cnt}, 1\ns_cmp_lt_u32 s{cnt}, {SPIN}\ns_cbranch_scc1 {lp}")
    a(f"s_mov_b32 s{sTMO}, {SPIN}")
    a.label(ok)

def poll_local(a, kind, ep, va=1, vt=2, sleep=0):
    t = T + 20
    if kind == "wo":
        a(f"v_and_b32 v{va}, 31, v0\nv_lshlrev_b32 v{va}, 5, v{va}\ns_lshr_b32 s{t}, s{sR}, 3\ns_lshl_b32 s{t}, s{t}, 2\ns_add_u32 s{t}, s{t}, 16")
    elif kind == "gu":
        a(f"v_lshrrev_b32 v{va}, 2, v0\nv_lshlrev_b32 v{va}, 5, v{va}\nv_and_b32 v{vt}, 3, v0\nv_lshl_add_u32 v{va}, v{vt}, 2, v{va}")
        a(f"s_lshr_b32 s{t}, s{sR}, 4\ns_lshl_b32 s{t}, s{t}, 9")
    elif kind == "down":
        a(f"v_bfe_u32 v{va}, v0, 1, 4\nv_lshlrev_b32 v{va}, 5, v{va}\nv_and_b32 v{vt}, 1, v0\nv_lshl_add_u32 v{va}, v{vt}, 3, v{va}")
        a(f"s_lshr_b32 s{t}, s{sR}, 4\ns_lshl_b32 s{t}, s{t}, 9\ns_bfe_u32 s{t+1}, s{sR}, 0x10003\ns_lshl_b32 s{t+1}, s{t+1}, 2\ns_add_u32 s{t}, s{t}, s{t+1}")
    elif kind == "attn":
        a(f"""
        v_bfe_u32 v{va}, v0, 2, 1
        v_mul_u32_u24 v{va}, 19, v{va}
        s_mul_i32 s{t}, s{sR}, 20
        v_add_u32 v{va}, s{t}, v{va}
        v_lshrrev_b32 v{va}, 7, v{va}
        v_lshrrev_b32 v{vt}, 4, v0
        v_min_u32 v{vt}, 2, v{vt}
        v_mad_u32_u24 v{va}, v{vt}, 5, v{va}
        v_bfe_u32 v{vt}, v0, 3, 1
        v_lshl_add_u32 v{va}, v{vt}, 4, v{va}
        v_lshlrev_b32 v{va}, 5, v{va}
        v_and_b32 v{vt}, 3, v0
        v_lshl_add_u32 v{va}, v{vt}, 2, v{va}
        s_mov_b32 s{t}, 0
        """)
    a(f"s_lshl_b32 s{t+1}, s{sG}, 10\ns_add_u32 s{t}, s{t}, s{t+1}\ns_add_u32 s{t}, s{t}, {WS_FL}\ns_add_u32 s{t+1}, s{sEP}, {ep}")
    poll(a, va, vt, f"s{t}", f"s{t+1}", sleep=sleep)

sNR, sGO, sGW = 92, 94, 95
class Gate:
    def __init__(self, a, va, vt, fold=False, sleep=0):
        self.a, self.va, self.vt, self.fold, self.sleep = a, va, vt, fold, sleep
        self.ok = 0
    def load(self): self.a(f"buffer_load_dword v{self.vt}, v{self.va}, {WSR}, s{sGO} offen sc1")
    def upd(self):
        self.a(f"s_waitcnt vmcnt(0)\nv_subrev_u32 v{self.vt}, s{sGW}, v{self.vt}\nv_cmp_lt_u32 s[{sNR}:{sNR+1}], 15, v{self.vt}")
        if self.fold: self.a(f"s_or_b32 s{sNR}, s{sNR}, s{sNR+1}")
    def reset(self): self.a(f"s_mov_b32 s{sNR}, -1")
    def need(self, mask):
        a = self.a
        mask &= ~self.ok
        if not mask: return
        self.ok |= mask
        lp = a.uid("gt"); cnt = T + 22
        a(f"s_and_b32 s{cnt}, s{sNR}, {hex(mask)}\ns_cbranch_scc0 {lp}k\ns_mov_b32 s{cnt}, s{sTMO}")
        a.label(lp)
        self.load(); self.upd()
        a(f"s_and_b32 s{cnt+1}, s{sNR}, {hex(mask)}\ns_cbranch_scc0 {lp}k")
        if self.sleep: a(f"s_sleep {self.sleep}")
        a(f"s_add_u32 s{cnt}, s{cnt}, 1\ns_cmp_lt_u32 s{cnt}, {SPIN}\ns_cbranch_scc1 {lp}\ns_mov_b32 s{sTMO}, {SPIN}")
        a.label(lp + "k")
def span(lo, hi, w, bits):
    m = 0
    for p in range(lo // w, hi // w + 1): m |= ((1 << bits) - 1) << (bits * p)
    return m
def gate_local(a, kind, ep, va, vt, sRotCt=None, sleep=0):
    t = T + 20
    if kind == "wo":
        a(f"v_and_b32 v{va}, 31, v0\nv_lshlrev_b32 v{va}, 5, v{va}\ns_lshr_b32 s{sGO}, s{sR}, 3\ns_lshl_b32 s{sGO}, s{sGO}, 2\ns_add_u32 s{sGO}, s{sGO}, 16")
    elif kind == "down":
        a(f"v_lshrrev_b32 v{va}, 1, v0\nv_add_u32 v{va}, s{sRotCt}, v{va}\nv_and_b32 v{va}, 15, v{va}\nv_lshlrev_b32 v{va}, 5, v{va}\nv_and_b32 v{vt}, 1, v0\nv_lshl_add_u32 v{va}, v{vt}, 3, v{va}")
        a(f"s_lshr_b32 s{sGO}, s{sR}, 4\ns_lshl_b32 s{sGO}, s{sGO}, 9\ns_bfe_u32 s{t+1}, s{sR}, 0x10003\ns_lshl_b32 s{t+1}, s{t+1}, 2\ns_add_u32 s{sGO}, s{sGO}, s{t+1}")
    elif kind == "gu":
        a(f"v_lshrrev_b32 v{va}, 1, v0\nv_add_u32 v{va}, s{sRotCt}, v{va}\nv_and_b32 v{va}, 7, v{va}\nv_lshlrev_b32 v{va}, 5, v{va}\nv_and_b32 v{vt}, 1, v0\nv_lshl_add_u32 v{va}, v{vt}, 2, v{va}")
        a(f"s_lshr_b32 s{sGO}, s{sR}, 4\ns_lshl_b32 s{sGO}, s{sGO}, 9\ns_bfe_u32 s{t+1}, s{sW}, 0x10001\ns_lshl_b32 s{t+1}, s{t+1}, 8\ns_add_u32 s{sGO}, s{sGO}, s{t+1}")
        a(f"s_and_b32 s{t+1}, s{sW}, 1\ns_lshl_b32 s{t+1}, s{t+1}, 3\ns_add_u32 s{sGO}, s{sGO}, s{t+1}")
    a(f"s_lshl_b32 s{t+1}, s{sG}, 10\ns_add_u32 s{sGO}, s{sGO}, s{t+1}\ns_add_u32 s{sGO}, s{sGO}, {WS_FL}\ns_add_u32 s{sGW}, s{sEP}, {ep}")
    g = Gate(a, va, vt, sleep=sleep); g.reset()
    return g

def flag_setup(a, ep):
    t = T + 20
    a(f"s_lshl_b32 s{t}, s{sWG}, 3\ns_add_u32 s{t}, s{t}, s{sW}\ns_lshl_b32 s{t}, s{t}, 2\ns_add_u32 s{t}, s{t}, {WS_FL}\ns_add_u32 s{t+1}, s{sEP}, {ep}")
    a(f"v_mov_b32 v1, 0\nv_mov_b32 v2, s{t+1}")
def flag_store(a, SB, s=T+20):
    a(f"s_mov_b64 exec, 1\nbuffer_store_dword v2, v1, {WSR}, s{s} offen {SB}\ns_mov_b64 exec, -1")
def publish_local(a, ep, SB):
    flag_setup(a, ep)
    a("s_waitcnt vmcnt(0)")
    flag_store(a, SB)

def row_stats(a, vst, vmean, vrstd):
    for i in range(1, 8):
        a(f"v_add_f32 v{vst}, v{vst}, v{vst+2*i}\nv_add_f32 v{vst+1}, v{vst+1}, v{vst+2*i+1}")
    finish_stats(a, vst, vst + 1, vmean, vrstd)

def finish_stats(a, vs, vq, vmean, vrstd):
    a(f"v_mul_f32 v{vmean}, {f32(1.0/D)}, v{vs}")
    a(f"v_mul_f32 v{vq}, {f32(1.0/D)}, v{vq}")
    a(f"v_fma_f32 v{vq}, -v{vmean}, v{vmean}, v{vq}")
    a(f"v_max_f32 v{vq}, 0, v{vq}")
    a(f"v_add_f32 v{vq}, {f32(1e-5)}, v{vq}")
    a(f"v_rsq_f32 v{vrstd}, v{vq}")
    a("s_nop 0")

def lin_dma(a, vaddr, src_s, src_off, dst_s, dst_off, npieces, bits="", rsrc=WSR, tmp=T+19):
    i = 0
    while i < npieces:
        k = min(4, npieces - i)
        a(f"s_add_u32 m0, s{dst_s}, {dst_off + 1024*i}")
        a(f"s_add_u32 s{tmp}, s{src_s}, {src_off + 1024*i}")
        for j in range(k):
            a(f"buffer_load_dwordx4 v{vaddr}, {rsrc}, s{tmp} offen offset:{1024*j} {bits} lds")
        i += k
    return npieces


def states(x):
    return int(x.split()[1]) + 1 if x.startswith("s_nop") else 1

def gemm_unrolled(a, n, P, nr, reads, mfma, groups, inserts, fix, fix_from, epi, st_end, alt=None):
    seq = []
    def add(ms, fill, pre=()):
        k = 0
        for i, (kk, tl) in enumerate(ms):
            tgt = (len(fill) * (i + 1) + len(ms) - 1) // len(ms)
            seq.append([list(pre) if i == 0 else [], mfma(kk, tl), tl, list(fill[k:tgt])]); k = tgt
    step = lambda kk: [(kk, tl) for tl in range(P)]
    a("s_barrier")
    for x in reads(0, 0) + reads(0, 1): a(x)
    w = f"s_waitcnt lgkmcnt({nr})"
    for c in range(n - 1):
        add(step(0), reads(c, 2), [w])
        add(step(1), reads(c, 3), [w])
        add(step(2), [], [w])
        seq[-2][3] += ["s_waitcnt lgkmcnt(0)"]; seq[-1][3] += ["s_barrier"]
        add(step(3), reads(c + 1, 0) + reads(c + 1, 1))
    nmain = len(seq)
    for i0, ins in inserts.items():
        i = i0; ins = list(ins)
        while ins:
            room = 4 - sum(states(x) for x in seq[i][3]) - len(seq[i+1][0])
            if ins[0].startswith("s_mov_b32 exec") and room < 3: room = 0
            while room > 0 and ins and "s_barrier" not in seq[i][3]:
                x = ins.pop(0); seq[i][3].append(x); room -= states(x)
            i += 1

        end = fix_from if i0 < fix_from else nmain
        assert i <= end
        if any(x.startswith("ds_") for x in inserts[i0]): assert any("s_waitcnt lgkmcnt(0)" in seq[j][3] for j in range(i, end)), (i, end)
    todo = {tl: list(fix(tl)) for tl in range(P)}
    used = lambda g: sum(states(x) for x in seq[g][3]) + len(seq[g+1][0])
    g = fix_from + 2
    while any(todo.values()):
        assert g + 2 < nmain, "no room for fix"
        if used(g) < 5 and "s_barrier" not in seq[g][3]:
            for back in range(P - 2, 1, -1):
                tl = seq[g - back][2]
                if not todo[tl] or g - back < fix_from: continue
                have = sum(used(x) + 1 for x in range(g - back, g)) + sum(states(x) for x in seq[g][3])
                room = sum(max(0, 5 - used(x)) for x in range(g - back, g))
                if have + room < 12: continue
                for x in range(g - back, g):
                    k = min(5 - used(x), 12 - have)
                    if k > 0: seq[x][3].append(f"s_nop {k-1}"); have += k
                while used(g) < 5 and todo[tl]: seq[g][3].append(todo[tl].pop(0))
            if used(g + 1) < 1: seq[g + 1][3].append("s_nop 0")
        g += 1

    c = n - 1
    g0 = groups[0]
    seq[-1][3] += reads(c, 2)
    add([(kk, tl) for kk in (0, 1) for tl in g0], reads(c, 3), [w])
    add([(kk, tl) for kk in (2, 3) for tl in g0], [], ["s_waitcnt lgkmcnt(0)"])
    seq[-len(g0)*2][3].append("s_barrier")
    seq[-1][3].append("s_nop 4")
    def flush():
        for pre, m, tl, post in seq:
            for x in pre: a(x)
            a(m)
            for x in post: a(x)
        del seq[:]
    def tail(epi):
        for gi in range(1, len(groups)):
            ms = [(kk, tl) for kk in range(4) for tl in groups[gi]]
            if gi == 1: add(ms[:1], ["s_nop 4"]); add(ms[1:], epi(gi - 1, False))
            else: add(ms, ["s_nop 0"] + epi(gi - 1, False))
        flush()
        stamp(a, st_end)
        a.nop(3)
        for x in epi(len(groups) - 1, True): a(x)
    if alt:
        cond, epi2, post1, post2 = alt
        l = a.uid("alt")
        seq[-1][3][-1:] = [cond, f"s_cbranch_scc1 {l}", "s_nop 2"]
        flush(); tail(epi); post1()
        a.label(l); a("s_nop 2"); tail(epi2); post2()
    else: tail(epi)

class Src:
    def __init__(self, sB, sB1, sThr, stride): self.__dict__.update(locals())
    def setup(self, a, sRot, n, tmp):
        a(f"s_mul_i32 s{tmp}, s{sRot}, {self.stride}\ns_add_u32 s{self.sB}, s{self.sB}, s{tmp}\ns_sub_u32 s{self.sB1}, s{self.sB}, {n*self.stride}")
    def sel(self, a, c, dst):
        a(f"s_cmp_gt_u32 s{self.sThr}, {c}\ns_cselect_b32 s{dst}, s{self.sB}, s{self.sB1}")

class Phase:
    def __init__(self, name, n, npa, npw, emitA, emitW, regA, regW, pollfn, budget, lag=1, after_bar=None, dbg=False, early=99):
        self.__dict__.update(locals())

class Loader:
    def __init__(self, a):
        self.a = a; self.q = []; self.live = {}; self.waitfn = None; self.total = 0
    def free(self, reg, key):
        return key in self.live or all(reg[1] <= lo or hi <= reg[0] for lo, hi in self.live.values())
    def can(self, ph, kind, c):
        return self.free((ph.regA if kind == "A" else ph.regW)(c), (ph.name, kind, c))
    def issue(self, ph, kind, c, i0, k):
        assert self.can(ph, kind, c)
        self.live[(ph.name, kind, c)] = (ph.regA if kind == "A" else ph.regW)(c)
        (ph.emitA if kind == "A" else ph.emitW)(c, i0, k)
        self.q += [(ph.name, kind, c)] * k; self.total += k
    def release(self, ph, c):
        for k in "AW": self.live.pop((ph.name, k, c), None)
    def wait(self, tags):
        last = -1
        for i, t in enumerate(self.q):
            if t in tags: last = i
        if last >= 0:
            n = len(self.q) - 1 - last
            assert n < 64
            self.q = self.q[last+1:]
            if self.waitfn: self.waitfn(n)
            else: self.a(f"s_waitcnt vmcnt({n})")
    def pre(self, ph, pw, cnt):
        done = 0
        while pw < ph.n * ph.npw and done < cnt and self.can(ph, "W", pw // ph.npw):
            k = min(4, ph.npw - pw % ph.npw, cnt - done)
            self.issue(ph, "W", pw // ph.npw, pw % ph.npw, k); pw += k; done += k
        return pw
    def run(self, ph, nxt, pw=0, after_poll=None, tail=None, waitfn=None):
        a = self.a; n = ph.n
        pa = 0; pn = 0
        if ph.pollfn: ph.pollfn()
        if after_poll: after_poll()
        for c in range(n):
            done = 0
            while True:
                needed = pa < (c + 1) * ph.npa or pw < (c + 1) * ph.npw
                if not needed:
                    beyond = 0
                    for t in reversed(self.q):
                        if t[0] == ph.name and t[2] <= c: break
                        beyond += 1
                    if beyond >= getattr(ph, 'look', C.look) and (done >= ph.budget or c == 0): break
                ca = pa // ph.npa if ph.npa else n; cw = pw // ph.npw
                okA = ca < n and self.can(ph, "A", ca)
                okW = cw < n and self.can(ph, "W", cw)
                if okW and (cw <= ca or not okA):
                    k = ph.npw - pw % ph.npw
                    if not needed: k = min(2, k)
                    self.issue(ph, "W", cw, pw % ph.npw, k); pw += k
                elif okA:
                    k = ph.npa - pa % ph.npa
                    if not needed: k = min(2, k)
                    self.issue(ph, "A", ca, pa % ph.npa, k); pa += k
                elif nxt and ca == n and cw == n and pn < nxt.early and self.can(nxt, "W", pn // nxt.npw):
                    k = min(2, nxt.npw - pn % nxt.npw)
                    self.issue(nxt, "W", pn // nxt.npw, pn % nxt.npw, k); pn += k
                else:
                    assert not needed
                    break
                done += k
            if tail and pa == n * ph.npa and pw == n * ph.npw:
                tail(); tail = None; self.waitfn = waitfn
            if ph.after_bar and c > 0: ph.after_bar(c - 1)
            self.wait({(ph.name, "A", c), (ph.name, "W", c)})
            if ph.dbg and C.stamp: a(f"s_memtime s[10:11]\ns_waitcnt lgkmcnt(0)\nv_writelane_b32 v254, s10, {2*c}")
            a("s_barrier")
            if ph.dbg and C.stamp: a(f"s_memtime s[10:11]\ns_waitcnt lgkmcnt(0)\nv_writelane_b32 v254, s10, {2*c+1}")
            self.release(ph, c - ph.lag)
        if ph.after_bar: ph.after_bar(n - 1)
        if nxt: pn = self.pre(nxt, pn, min(ph.budget, max(0, nxt.early - pn)))
        return pn
    def end(self, ph):
        self.a("s_barrier")
        for c in range(ph.n): self.release(ph, c)

Q1_TAB = 131072 + 26624
Q1_NON = Q1_TAB + 2048
Q1_CS = Q1_NON + 64
WB = 65536
def guW(c): return WB + ((3 - c) % 4) * 24576
def dnW(c): return ((c + 2) % 8) * 20480
def qkW(c): return WB + ((c + 4) % 6) * 16384

PSCR = 131072
PV = 180
def projjob_issue(a, sJob, sScr, t, loads=True):
    a(f"""
    s_and_b32 s{t+2}, s{sJob}, 7
    s_lshr_b32 s{t+3}, s{sJob}, 3
    s_cmp_lt_u32 s{t+3}, 20
    s_cselect_b32 s{R_T}, s{P_WO}, s{P_WD}
    s_cselect_b32 s{R_T+1}, s{P_WO+1}, s{P_WD+1}
    s_mov_b32 s{R_T+2}, {F*D*2}
    s_cselect_b32 s{R_T+2}, {D*D*2}, s{R_T+2}
    s_mov_b32 s{R_T+3}, 0x20000
    s_cselect_b32 s{t+4}, 0, 20
    s_cselect_b32 s{t+5}, 20, 48
    s_mov_b32 s{t+6}, {WS_WTD}
    s_cselect_b32 s{t+6}, {WS_WTO}, s{t+6}
    s_sub_u32 s{t+3}, s{t+3}, s{t+4}
    s_mul_i32 s{t+5}, s{t+5}, s{t+2}
    s_add_u32 s{t+5}, s{t+5}, s{t+3}
    s_mul_i32 s{t+5}, s{t+5}, 5120
    s_add_u32 s{t+6}, s{t+6}, s{t+5}
    s_mul_i32 s{t+3}, s{t+3}, {32*1280}
    s_mul_i32 s{t+2}, s{t+2}, 160
    s_add_u32 s{t+3}, s{t+3}, s{t+2}
    s_movk_i32 s{t+4}, 6554
    """)
    x, y = PV, PV + 1
    for i in range(5 if loads else 0):
        a(f"""
        v_add_u32 v{x}, {64*i}, v0
        v_mul_u32_u24 v{y}, s{t+4}, v{x}
        v_lshrrev_b32 v{y}, 16, v{y}
        v_mad_i32_i24 v{x}, v{y}, -10, v{x}
        v_mul_u32_u24 v{y}, 1280, v{y}
        v_lshl_add_u32 v{x}, v{x}, 4, v{y}
        s_add_u32 m0, s{sScr}, {1024*i}
        s_nop 0
        buffer_load_dwordx4 v{x}, {R(R_T)}, s{t+3} offen lds
        """)
def projjob_finish(a, sScr, t):
    x, y, z, d0 = PV, PV + 1, PV + 2, PV + 4
    a(f"""
    v_lshrrev_b32 v{x}, 4, v0
    v_bfe_u32 v{y}, v0, 2, 2
    v_lshl_add_u32 v{x}, v{x}, 3, v{y}
    v_mul_u32_u24 v{x}, 160, v{x}
    v_add_u32 v{x}, s{sScr}, v{x}
    v_and_b32 v{y}, 3, v0
    v_lshl_add_u32 v{z}, v{y}, 3, v{x}
    v_lshl_add_u32 v{y}, v{y}, 4, v{x}
    """)
    for jn in range(5):
        for j in range(2):
            d = d0 + 4*jn + 2*j
            if jn < 4: a(f"ds_read_b64_tr_b16 v[{d}:{d+1}], v{y} offset:{640*j + 64*(jn>>1) + 8*(jn&1)}")
            else: a(f"ds_read_b64_tr_b16 v[{d}:{d+1}], v{z} offset:{640*j + 128}")
    a(f"s_add_u32 s{t+5}, s{t+6}, 4096\ns_waitcnt lgkmcnt(0)")
    for jn in range(5):
        d = d0 + 4*jn
        a(f"buffer_store_dwordx4 v[{d}:{d+3}], v5, {WSR}, s{t+6 if jn < 4 else t+5} offen offset:{1024*(jn&3)} sc1")

def gujob_issue(a, sJob, t, loads=True):
    x, y = PV, PV + 1
    a(f"""
    s_mul_i32 s{t+2}, s{sJob}, 2731
    s_lshr_b32 s{t+2}, s{t+2}, 16
    s_mul_i32 s{t+3}, s{t+2}, 24
    s_sub_u32 s{t+3}, s{sJob}, s{t+3}
    s_mul_i32 s{t+4}, s{t+2}, {64*F*2}
    s_lshl_b32 s{t+5}, s{t+3}, 7
    s_add_u32 s{t+4}, s{t+4}, s{t+5}
    v_lshrrev_b32 v{x}, 3, v0
    v_mul_u32_u24 v{x}, {F*2}, v{x}
    v_and_b32 v{y}, 7, v0
    v_lshl_add_u32 v{x}, v{y}, 4, v{x}
    """)
    for i in range(8 if loads else 0):
        for u in range(2):
            a(f"s_mov_b32 m0, {PSCR + 8192*u + 1024*i}\ns_add_u32 s{t+5}, s{t+4}, {i*8*F*2}")
            a(f"buffer_load_dwordx4 v{x}, {R(R_WU if u else R_WG)}, s{t+5} offen lds")
def gujob_finish(a, t):
    x, y, z = PV, PV + 1, PV + 2
    ONE, FRG, CS = PV + 4, PV + 8, PV + 40
    a(f"""
    v_bfe_u32 v{x}, v0, 2, 2
    v_lshl_add_u32 v{x}, v14, 3, v{x}
    v_lshlrev_b32 v{x}, 7, v{x}
    v_and_b32 v{y}, 1, v0
    v_lshl_add_u32 v{x}, v{y}, 4, v{x}
    v_bfe_u32 v{y}, v0, 1, 1
    v_lshl_add_u32 v{x}, v{y}, 3, v{x}
    v_bfe_u32 v{y}, v0, 4, 1
    v_lshl_add_u32 v{x}, v{y}, 13, v{x}
    v_add_u32 v{x}, {PSCR}, v{x}
    v_lshlrev_b32 v{z}, 6, v14
    s_mul_i32 s{t+6}, s{t+2}, 12288
    s_lshl_b32 s{t+5}, s{t+3}, 9
    s_add_u32 s{t+6}, s{t+6}, s{t+5}
    s_add_u32 s{t+6}, s{t+6}, {WS_CSP}
    """)
    for i in range(4): a(f"v_mov_b32 v{ONE+i}, 0x3f803f80")
    for tt in range(4):
        f0 = FRG + 16*(tt & 1)
        for kk in range(4):
            for j in range(2):
                d = f0 + 4*kk + 2*j
                a(f"ds_read_b64_tr_b16 v[{d}:{d+1}], v{x} offset:{128*(16*kk+4*j) + 32*tt}")
        a(f"""
        s_lshl_b32 s{t+4}, s{t+3}, 2
        s_add_u32 s{t+4}, s{t+4}, {tt}
        s_mul_i32 s{t+5}, s{t+4}, 43
        s_lshr_b32 s{t+5}, s{t+5}, 8
        s_mul_i32 s{t+5}, s{t+5}, 234
        s_add_u32 s{t+4}, s{t+4}, s{t+5}
        s_mul_i32 s{t+5}, s{t+2}, 24
        s_add_u32 s{t+4}, s{t+4}, s{t+5}
        s_lshl_b32 s{t+4}, s{t+4}, 10
        s_add_u32 s{t+4}, s{t+4}, {WS_WTG}
        s_waitcnt lgkmcnt(0)
        """)
        for kk in range(4):
            a(f"v_mfma_f32_32x32x16_bf16 {v(CS,16)}, {v(f0+4*kk,4)}, {v(ONE,4)}, {v(CS,16) if kk else 0}")
        for kk in range(4):
            d = f0 + 4*kk
            a(f"buffer_store_dwordx4 v[{d}:{d+3}], v5, {WSR}, s{t+4} offen sc1\ns_add_u32 s{t+4}, s{t+4}, 6144")
        a("s_mov_b32 exec_lo, 1\ns_mov_b32 exec_hi, 1\ns_nop 1")
        for q in range(4):
            a(f"buffer_store_dwordx4 v[{CS+4*q}:{CS+4*q+3}], v{z}, {WSR}, s{t+6} offen offset:{128*tt+16*q} sc1")
        a("s_mov_b64 exec, -1")

def prep(a, stage):
    tj = 84; sJob, sScr = tj, tj + 1
    lg = a.uid("pg"); le = a.uid("pe")
    if stage == 0:
        a(f"""
        s_sub_u32 s{sScr}, s{sW}, 1
        s_lshl_b32 s{sJob}, s{sScr}, 8
        s_add_u32 s{sJob}, s{sJob}, s{sWG}
        s_add_u32 s{sJob}, s{sJob}, 160
        s_mul_i32 s{sScr}, s{sScr}, 5120
        s_add_u32 s{sScr}, s{sScr}, {PSCR + 16384}
        """)
    a(f"s_cmp_eq_u32 s{sW}, 0\ns_cbranch_scc1 {lg}\ns_cmp_ge_u32 s{sJob}, 544\ns_cbranch_scc1 {le}")
    projjob_issue(a, sJob, sScr, tj) if stage == 0 else projjob_finish(a, sScr, tj)
    a(f"s_branch {le}")
    a.label(lg)
    a(f"s_cmp_ge_u32 s{sWG}, 240\ns_cbranch_scc1 {le}")
    gujob_issue(a, sWG, tj) if stage == 0 else gujob_finish(a, tj)
    a.label(le)

def xstat_fin(a):
    t = T + 16
    a(f"s_mov_b32 s{t}, 0xffff0000\nv_mov_b64 v[232:233], 0\ns_waitcnt vmcnt(0)")
    for i in range(12):
        a(f"v_lshlrev_b32 v234, 16, v{220+i}\nv_and_b32 v235, s{t}, v{220+i}\nv_add_f32 v232, v232, v234\nv_fmac_f32 v233, v234, v234\nv_add_f32 v232, v232, v235\nv_fmac_f32 v233, v235, v235")
    for mod in ("quad_perm:[1,0,3,2]", "quad_perm:[2,3,0,1]"):
        a(f"s_nop 1\nv_add_f32_dpp v232, v232, v232 {mod} row_mask:0xf bank_mask:0xf\nv_add_f32_dpp v233, v233, v233 {mod} row_mask:0xf bank_mask:0xf")
    a(f"""
    v_bfe_u32 v234, v0, 3, 2
    v_lshlrev_b32 v234, 10, v234
    v_bfe_u32 v235, v0, 2, 1
    v_lshl_add_u32 v234, v235, 3, v234
    v_lshrrev_b32 v235, 5, v0
    v_lshl_add_u32 v234, v235, 4, v234
    s_lshr_b32 s{t}, s{sWG}, 3
    s_lshl_b32 s{t}, s{t}, 12
    s_and_b32 s{t+1}, s{sWG}, 7
    s_lshl_b32 s{t+1}, s{t+1}, 2
    s_add_u32 s{t+1}, s{t+1}, s{sW}
    s_lshl_b32 s{t+1}, s{t+1}, 5
    s_add_u32 s{t}, s{t}, s{t+1}
    s_add_u32 s{t}, s{t}, {WS_ST0}
    s_mov_b32 exec_lo, 0x11111111
    s_mov_b32 exec_hi, 0x11111111
    buffer_store_dwordx2 v[232:233], v234, {WSR}, s{t} offen sc1
    s_mov_b64 exec, -1
    """)

def nonce_put(a):
    t = T + 8
    a(f"""
    s_memrealtime s[{t}:{t+1}]
    v_mov_b32 v1, 0
    s_waitcnt lgkmcnt(0)
    s_or_b32 s{t+2}, s{t}, 0x80000000
    v_mov_b32 v2, s{t+2}
    s_mov_b64 exec, 1
    global_store_dword v1, v2, s[{P_DBG}:{P_DBG+1}] sc1
    s_mov_b64 exec, -1
    """)
def flags_zero(a):
    t = T + 16
    a(f"""
    s_lshl_b32 s{t}, s{sWG}, 5
    s_add_u32 s{t}, s{t}, {WS_FL}
    s_lshl_b32 s{t+1}, s{sWG}, 7
    s_add_u32 s{t+1}, s{t+1}, {L_FG}
    s_add_u32 s{t+2}, s{t+1}, {LSTRIDE}
    v_lshlrev_b32 v236, 2, v0
    v_mov_b32 v237, 0
    s_mov_b64 exec, 0xff
    buffer_store_dword v237, v236, {WSR}, s{t} offen sc1
    s_mov_b64 exec, 0x3ff
    buffer_store_dword v237, v236, {WSR}, s{t+1} offen sc1
    buffer_store_dword v237, v236, {WSR}, s{t+2} offen sc1
    s_mov_b64 exec, -1
    """)

def nonce_issue(a, v2, v3):
    a(f"v_mov_b32 v{v3}, 0\nglobal_load_dword v{v2}, v{v3}, s[{P_DBG}:{P_DBG+1}] sc1")
def nonce_get(a, v1, v2, v3, cnt=0):
    t = T + 14
    lp = a.uid("non"); ok = a.uid("nonok")
    a(f"s_mov_b32 s{t+6}, 0\nv_mov_b32 v{v3}, 0\ns_lshl_b32 s{t+4}, s{sWG}, 7\ns_add_u32 s{t+4}, s{t+4}, {L_FG}\ns_waitcnt vmcnt({cnt})\ns_branch {lp}c")
    a.label(lp)
    a(f"global_load_dword v{v2}, v{v3}, s[{P_DBG}:{P_DBG+1}] sc1\ns_waitcnt vmcnt(0)")
    a.label(lp + "c")
    a(f"""
    v_cmp_eq_u32 vcc, 0, v{v2}
    s_cbranch_vccz {ok}
    s_sleep 4
    s_add_u32 s{t+6}, s{t+6}, 1
    s_cmp_lt_u32 s{t+6}, {SPIN}
    s_cbranch_scc1 {lp}
    s_mov_b32 s{sTMO}, {SPIN}
    """)
    a.label(ok)
    a(f"""
    v_readfirstlane_b32 s{sEP}, v{v2}
    s_getreg_b32 s{t+6}, hwreg(HW_REG_XCC_ID, 0, 4)
    v_mov_b32 v{v1}, {Q1_NON}
    ds_write_b32 v{v1}, v{v2}
    v_add_u32 v{v2}, s{t+6}, v{v2}
    s_mov_b64 exec, 1
    buffer_store_dword v{v2}, v{v3}, {WSR}, s{t+4} offen offset:32 sc1
    s_mov_b64 exec, -1
    s_waitcnt lgkmcnt(0)
    """)

def census(a, va, vt, issue, cnt=0):
    t = T + 20
    a(f"""
    v_and_b32 v{va}, 31, v0
    v_lshlrev_b32 v{va}, 7, v{va}
    s_lshl_b32 s{t}, s{sG}, 12
    s_add_u32 s{t}, s{t}, {L_FG + 32}
    """)
    if issue:
        a(f"buffer_load_dword v{vt}, v{va}, {WSR}, s{t} offen sc1")
        return
    poll(a, va, vt, f"s{t}", f"s{sEP}", sleep=4, pre=cnt)
    a(f"""
    s_getreg_b32 s{t}, hwreg(HW_REG_XCC_ID, 0, 4)
    v_cmp_ne_u32 vcc, s{t}, v{vt}
    s_cmp_eq_u64 vcc, 0
    s_cselect_b32 s{t}, 1, 0
    v_mov_b32 v{va}, {Q1_NON}
    v_mov_b32 v{vt}, s{t}
    ds_write_b32 v{va}, v{vt} offset:4
    s_waitcnt lgkmcnt(0)
    """)

sMODE = 14 - 14 + 98
def read_nonce_mode(a):
    a(f"v_mov_b32 v1, {Q1_NON}\nds_read_b64 v[2:3], v1\ns_waitcnt lgkmcnt(0)\nv_readfirstlane_b32 s{sEP}, v2\nv_readfirstlane_b32 s{sMODE}, v3")

def qkv_ids(a, t):
    a(f"s_lshr_b32 s{t}, s{sWG}, 4\ns_and_b32 s{t+1}, s{sR}, 15")

def qkv_compute(a, first, SB):
    t = T
    sRT, sCT, sTY, sC0 = t, t+1, t+2, t+3
    LQ = 0 if first else LSTRIDE
    sWM, sWN = t+5, t+6
    a(f"""
    s_mul_i32 s{sTY}, s{sCT}, 52
    s_lshr_b32 s{sTY}, s{sTY}, 8
    s_mul_i32 s{sC0}, s{sTY}, 5
    s_sub_u32 s{sC0}, s{sCT}, s{sC0}
    s_lshl_b32 s{sC0}, s{sC0}, 7
    s_and_b32 s{sWM}, s{sW}, 1
    s_lshr_b32 s{sWN}, s{sW}, 1
    v_lshrrev_b32 v14, 5, v0
    v_and_b32 v15, 31, v0
    """)
    ACC = 128; FR = 16; VST = 80; VCS = 96; VCV = 192; ONE = 196; AD = 200; MS = 244
    sCS = t+15
    a(f"s_lshl_b32 s{sCS}, s{sWG}, 9\ns_lshl_b32 s{t+7}, s{sWN}, 8\ns_add_u32 s{sCS}, s{sCS}, s{t+7}\ns_add_u32 s{sCS}, s{sCS}, {WS_CSQ}")
    a(f"v_lshlrev_b32 v{AD+8}, 5, v14\nv_lshlrev_b32 v{AD+9}, 2, v15")
    if first:
        a(f"""
        s_lshl_b32 s{t+7}, s{sWM}, 13
        v_lshlrev_b32 v1, 7, v15
        v_add_u32 v1, s{t+7}, v1
        v_bfe_u32 v8, v0, 1, 3
        v_xor_b32 v8, v8, v14
        """)
        for kk in range(4):
            a(f"v_xor_b32 v9, {2*kk}, v8\nv_lshl_add_u32 v{2+kk}, v9, 4, v1")
    else:
        a(f"s_lshl_b32 s{t+7}, s{sWM}, 13\nv_lshlrev_b32 v2, 4, v0\nv_add_u32 v2, s{t+7}, v2")
    a(f"""
    v_and_b32 v10, 3, v0
    v_and_b32 v11, 1, v0
    v_bfe_u32 v12, v0, 1, 1
    v_lshl_add_u32 v11, v11, 1, v12
    s_cmp_eq_u32 s{sTY}, 2
    s_cselect_b64 vcc, -1, 0
    v_cndmask_b32 v10, v11, v10, vcc
    v_bfe_u32 v8, v0, 2, 2
    v_lshl_add_u32 v9, v14, 3, v8
    v_lshlrev_b32 v9, 8, v9
    v_lshl_add_u32 v9, v10, 3, v9
    v_bfe_u32 v10, v0, 4, 1
    v_lshl_add_u32 v9, v10, 5, v9
    s_lshl_b32 s{t+7}, s{sWN}, 1
    v_xor_b32 v8, s{t+7}, v8
    v_lshl_add_u32 v6, v8, 6, v9
    v_xor_b32 v8, 1, v8
    v_lshl_add_u32 v7, v8, 6, v9
    """)
    nxa = 4 if first else 1
    W0 = 16384 if first else qkW(0)
    if first:
        for i in range(nxa): a(f"v_mov_b32 v{8+i}, v{2+i}")
        for i in (4, 5): a(f"v_add_u32 v{8+i}, {W0}, v{2+i}")
    else:
        for i in range(4): a(f"v_add_u32 v{8+i}, {WB + 49152*(i >> 1)}, v{6 + (i & 1)}")
    VM, VR = (32, 64) if first else (96, 212)
    for i in range(0, 64, 2): a(f"v_mov_b64 v[{ACC+i}:{ACC+i+1}], 0")
    def reads(kk):
        b = FR + 16*kk; r = []
        for tm in range(2):
            if first: r.append(f"ds_read_b128 v[{b+4*tm}:{b+4*tm+3}], v{8+kk} offset:{4096*tm}")
            else: r.append(f"ds_read_b128 v[{b+4*tm}:{b+4*tm+3}], v8 offset:{4096*tm+1024*kk}")
        for tn in range(2):
            for j in range(2):
                d = b + 8 + 4*tn + 2*j
                r.append(f"ds_read_b64_tr_b16 v[{d}:{d+1}], v{12+tn} offset:{4096*kk+1024*j}")
        return r
    def mfmas(kk, vtype, tns=(0, 1)):
        b = FR + 16*kk; m = []
        for tn in tns:
            W = v(b + 8 + 4*tn, 4)
            for tm in range(2):
                c = ACC + 16*(2*tn + tm)
                X = v(b + 4*tm, 4)
                A, B = (X, W) if vtype else (W, X)
                m.append(f"v_mfma_f32_32x32x16_bf16 {v(c,16)}, {A}, {B}, {v(c,16)}")
        return m
    sC, sSa, sSw, sMk, sDst, sD1 = t+9, t+10, t+4, t+11, t+12, 96
    qloc = C.qloc and SB == '' and not first
    vlab = a.uid("qkv_v"); fin = a.uid("qkv_fin"); done = a.uid("qkv_cdone")
    a(f"s_mov_b32 s{sC}, {10 if first else 9}\ns_mov_b32 s{sSa}, 0\ns_mov_b32 s{sSw}, {W0}")
    a(f"s_cmp_eq_u32 s{sTY}, 2\ns_cbranch_scc1 {vlab}")
    def v_tab_reads(roff):
        a(f"v_lshlrev_b32 v1, 4, v14\nv_add_u32 v1, s{t+7}, v1")
        for tm in range(2):
            for q in range(4):
                a(f"ds_read_b128 v[{VM+16*tm+4*q}:{VM+16*tm+4*q+3}], v1 offset:{(32*tm+8*q)*4}")
                a(f"ds_read_b128 v[{VR+16*tm+4*q}:{VR+16*tm+4*q+3}], v1 offset:{roff+(32*tm+8*q)*4}")
    hooks = []
    def mainloop(vtype, epi, alt=None):
        lp = a.uid("qkv_loop"); hk = a.uid("qkv_hk"); hb = a.uid("qkv_hb"); ent = a.uid("qkv_ent")
        if first: xstat_fin(a)
        stamp(a, 1 if first else 18)
        if not first:
            def rd(c, kk):
                b = FR + 16*kk; r = []
                for tm in range(2):
                    r.append(f"ds_read_b128 v[{b+4*tm}:{b+4*tm+3}], v2 offset:{(c % 4)*16384+4096*tm+1024*kk}")
                o = qkW(c) - WB
                for tn in range(2):
                    for j in range(2):
                        d = b + 8 + 4*tn + 2*j
                        r.append(f"ds_read_b64_tr_b16 v[{d}:{d+1}], v{8 + 2*(o // 49152) + tn} offset:{o % 49152 + 4096*kk+1024*j}")
                return r
            mf = lambda kk, tl: mfmas(kk, vtype, (tl >> 1,))[tl & 1]
            a(f"""
            s_lshl_b32 s{sC}, s{sRT}, 1
            s_add_u32 s{sC}, s{sC}, s{sWM}
            s_lshl_b32 s{sC}, s{sC}, 12
            s_add_u32 s{sC}, s{sC}, {L_ST2}
            v_lshlrev_b32 v3, 4, v0
            """)
            ins = {}
            for i in range(4): ins[28 + 2*i] = [f"buffer_load_dwordx4 v[{VST+4*i}:{VST+4*i+3}], v3, {WSR}, s{sC} offen offset:{1024*i} sc1"]
            b = Asm(); b("s_waitcnt vmcnt(0)"); row_stats(b, VST, MS, MS + 1)
            if vtype:
                b(f"v_sub_f32 v{VCV}, 0, v{VCV}\nv_sub_f32 v{VCV+2}, 0, v{VCV+2}")
                a(f"v_lshlrev_b32 v4, 4, v14")
                for tm in range(2):
                    for q in range(16):
                        off = (32*tm + 8*(q >> 2) + (q & 3)) * 4
                        b(f"ds_bpermute_b32 v{VM+16*tm+q}, v4, v{MS} offset:{off}")
                        ins.setdefault(120, []).append(f"ds_bpermute_b32 v{VR+16*tm+q}, v4, v{MS+1} offset:{off}")
                fix = lambda tl: [f"v_fmac_f32 v{ACC+16*tl+i}, v{VCV+2*(tl>>1)}, v{VM+16*(tl&1)+i}" for i in range(16)]
                ff = 92
            else:
                qk_stats_fin(b)
                fix = lambda tl: [f"v_fmac_f32 v{ACC+16*tl+i}, v{MS+4*(tl&1)}, v{VCS+16*(tl>>1)+i}" for i in range(16)]
                ff = 80
            ins[60] = b.lines
            gemm_unrolled(a, 10, 4, 6, rd, mf, [(0, 1), (2, 3)], ins, fix, ff, epi, 19, alt)
            return
        a("s_barrier")
        for x in reads(0) + reads(1): a(x)
        a(f"s_branch {ent}")
        a.label(lp)
        a("s_barrier")
        interleave(a, mfmas(3, vtype), reads(0) + reads(1))
        a.label(ent)
        a("s_waitcnt lgkmcnt(6)")
        interleave(a, mfmas(0, vtype), reads(2))
        a("s_waitcnt lgkmcnt(6)")
        interleave(a, mfmas(1, vtype), reads(3))
        a("s_waitcnt lgkmcnt(6)")
        if first:
            upd = [f"s_add_u32 s{sSa}, s{sSa}, 32768", f"s_and_b32 s{sSa}, s{sSa}, 0x1ffff", f"s_add_u32 s{sSw}, s{sSa}, 16384"]
        else:
            upd = [f"s_add_u32 s{sSa}, s{sSa}, 16384", f"s_and_b32 s{sSa}, s{sSa}, 0xffff",
                   f"s_add_u32 s{sSw}, s{sSw}, 16384", f"s_cmp_eq_u32 s{sSw}, 163840", f"s_cselect_b32 s{sSw}, {WB}, s{sSw}"]
        upd += [f"v_add_u32 v{8+i}, s{sSa}, v{2+i}" for i in range(nxa)] + [f"v_add_u32 v{12+i}, s{sSw}, v{6+i}" for i in range(2)] + [f"s_sub_u32 s{sC}, s{sC}, 1"]
        interleave(a, mfmas(2, vtype), upd)
        a(f"s_waitcnt lgkmcnt(0)")
        a(f"s_bitcmp1_b32 {HMASK1 if first else HMASK2}, s{sC}\ns_cbranch_scc1 {hk}")
        a.label(hb)
        a(f"s_cmp_lg_u32 s{sC}, 0\ns_cbranch_scc1 {lp}")
        hooks.append((hk, hb, vtype))
        b = Asm(); b("s_waitcnt vmcnt(0)"); row_stats(b, VST, MS, MS + 1)
        interleave(a, mfmas(3, vtype), b.lines)
        if vtype:
            a(f"""
            s_lshl_b32 s{t+7}, s{sW}, 9
            s_add_u32 s{t+7}, s{t+7}, {Q1_TAB}
            v_lshlrev_b32 v1, 2, v0
            v_add_u32 v1, s{t+7}, v1
            ds_write_b32 v1, v{MS}
            ds_write_b32 v1, v{MS+1} offset:256
            """)
            v_tab_reads(256)
        else: qk_stats_fin(a)
        a(f"s_lshl_b32 s{t+7}, s{sWN}, 8\ns_add_u32 s{t+7}, s{t+7}, {Q1_CS}\nv_add_u32 v4, s{t+7}, v{AD+9 if vtype else AD+8}")
        a("s_barrier")
        stamp(a, 2)
        for tn in range(2):
            if vtype: a(f"ds_read_b32 v{VCV+2*tn}, v4 offset:{128*tn}")
            else:
                for q in range(4):
                    r = VCS + 16*tn + 4*q
                    a(f"ds_read_b128 v[{r}:{r+3}], v4 offset:{(32*tn+16*(q>>1)+4*(q&1))*4}")
        read_nonce_mode(a)
        if vtype: a(f"v_sub_f32 v{VCV}, 0, v{VCV}\nv_sub_f32 v{VCV+2}, 0, v{VCV+2}")
        for x in epi(0) + epi(1): a(x)
    HMASK1 = (1 << 8) | (1 << 2)
    HMASK2 = (1 << 5) | (1 << 2)
    if not first:
        for tn in range(2):
            for q in range(4):
                r = VCS + 16*tn + 4*q
                a(f"buffer_load_dwordx4 v[{r}:{r+3}], v{AD+8}, {WSR}, s{sCS} offen offset:{(32*tn+16*(q>>1)+4*(q&1))*4} sc1")
    a(f"""
    s_mul_i32 s{sDst}, s{sTY}, {ACT}
    s_lshl_b32 s{t+8}, s{sRT}, 2
    s_lshl_b32 s{t+7}, s{sWM}, 1
    s_add_u32 s{t+8}, s{t+8}, s{t+7}
    s_mul_i32 s{t+8}, s{t+8}, 1280
    s_add_u32 s{sDst}, s{sDst}, s{t+8}
    s_add_u32 s{sDst}, s{sDst}, {LQ}
    s_lshr_b32 s{t+8}, s{sC0}, 3
    s_lshl_b32 s{t+7}, s{sWN}, 3
    s_add_u32 s{t+8}, s{t+8}, s{t+7}
    v_add_u32 v80, s{t+8}, v14
    s_mov_b32 s{t+13}, {HEADB}
    v_mov_b32 v86, 0x7fffffff
    s_mov_b32 s{sMk}, 0
    s_add_u32 s{sD1}, s{sDst}, 1280
    """)
    if qloc:
        a(f"""
        s_lshl_b32 s{t+8}, s{sRT}, 1
        s_add_u32 s{t+8}, s{t+8}, s{sWM}
        s_mul_i32 s{t+8}, s{t+8}, {2*F*64}
        s_add_u32 s{t+8}, s{t+8}, {L_H + 57344}
        s_add_u32 s{t+7}, s{t+8}, {F*64}
        s_cmp_eq_u32 s{sTY}, 0
        s_cselect_b32 s{sDst}, s{t+8}, s{sDst}
        s_cselect_b32 s{sD1}, s{t+7}, s{sD1}
        s_cselect_b32 s{t+13}, 1280, s{t+13}
        """)
    a(f"s_add_u32 s{t+14}, s{sDst}, s{t+13}\ns_add_u32 s{sD1+1}, s{sD1}, s{t+13}")
    for sl in range(4):
        a(f"""
        v_add_u32 v81, {2*sl}, v80
        v_mul_u32_u24 v82, 205, v81
        v_lshrrev_b32 v82, 10, v82
        v_mad_i32_i24 v81, v82, -5, v81
        v_cmp_lt_u32 vcc, 2, v81
        v_lshlrev_b32 v82, 1, v82
        v_add_u32 v83, -3, v81
        v_cndmask_b32 v83, v81, v83, vcc
        v_addc_co_u32 v82, vcc, 0, v82, vcc
        v_lshlrev_b32 v83, 9, v83
        v_lshl_add_u32 v83, v15, 4, v83
        v_lshlrev_b32 v85, 3, v15
        v_add_u32 v85, 1024, v85
        v_cmp_eq_u32 vcc, 2, v81
        v_mul_lo_u32 v84, v82, s{t+13}
        s_cmp_lg_u64 vcc, 0
        v_cndmask_b32 v83, v83, v86, vcc
        v_cndmask_b32 v85, v86, v85, vcc
        s_cselect_b32 s{t+7}, {1 << sl}, 0
        s_or_b32 s{sMk}, s{sMk}, s{t+7}
        v_add_u32 v{AD+sl}, v83, v84
        v_add_u32 v{AD+4+sl}, v85, v84
        """)
    def qk_stats_fin(a):
        a(f"""
        s_cmp_eq_u32 s{sTY}, 0
        s_cselect_b32 s{t+7}, {f32(QSCALE)}, 1.0
        v_mul_f32 v{MS+2}, s{t+7}, v{MS+1}
        v_mul_f32 v{MS+6}, s{t+7}, v{MS+1}
        v_sub_f32 v{MS+4}, 0, v{MS}
        v_sub_f32 v{MS}, 0, v{MS}
        s_nop 1
        v_permlane32_swap_b32 v{MS}, v{MS+4}
        v_permlane32_swap_b32 v{MS+2}, v{MS+6}
        s_nop 1
        """)
    def epi_qk(tn, pk=True, bits='sc1'):
        r = []
        for tm in range(2):
            c = ACC + 16*(2*tn + tm); cs = VCS + 16*tn; m = MS + 4*tm
            for p in range(2):
                if pk:
                    for i in range(8*p, 8*p + 8, 2):
                        if first: r.append(f"v_pk_fma_f32 v[{c+i}:{c+i+1}], v[{cs+i}:{cs+i+1}], v[{m}:{m+1}], v[{c+i}:{c+i+1}] op_sel_hi:[1,0,1]")
                    for i in range(8*p, 8*p + 8, 2):
                        r.append(f"v_pk_mul_f32 v[{c+i}:{c+i+1}], v[{c+i}:{c+i+1}], v[{m+2}:{m+3}] op_sel_hi:[1,0]")
                else:
                    for i in range(8*p, 8*p + 8): r.append(f"v_mul_f32 v{c+i}, v{m+2}, v{c+i}")
                for i in range(4):
                    r.append(f"v_cvt_pk_bf16_f32 v{c+8*p+i}, v{c+8*p+2*i}, v{c+8*p+2*i+1}")
                r.append(f"buffer_store_dwordx4 v[{c+8*p}:{c+8*p+3}], v{AD+2*tn+p}, {WSR}, s{sD1 if tm else sDst} offen {bits}")
        return r
    def bparts(bits):
        for sl in range(4):
            sk = a.uid("qk_b")
            a(f"s_bitcmp0_b32 s{sMk}, {sl}\ns_cbranch_scc1 {sk}")
            for tm in range(2):
                o = ACC + 16*(2*(sl >> 1) + tm) + 8*(sl & 1)
                a(f"buffer_store_dwordx2 v[{o}:{o+1}], v{AD+4+sl}, {WSR}, s{sD1 if tm else sDst} offen {bits}")
                a(f"buffer_store_dwordx2 v[{o+2}:{o+3}], v{AD+4+sl}, {WSR}, s{sD1+1 if tm else t+14} offen {bits}")
            a.label(sk)
        a(f"s_branch {fin}")
    if qloc: mainloop(False, epi_qk, (f"s_cmp_eq_u32 s{sTY}, 0", lambda tn, pk: epi_qk(tn, pk, ""), lambda: bparts("sc1"), lambda: bparts("")))
    else:
        mainloop(False, epi_qk); bparts("sc1")
    a.label(vlab)
    if not first:
        for tn in range(2):
            a(f"buffer_load_dword v{VCV+2*tn}, v{AD+9}, {WSR}, s{sCS} offen offset:{128*tn} sc1")
    a(f"""
    s_lshl_b32 s{t+8}, s{sRT}, 3
    s_lshl_b32 s{t+7}, s{sWM}, 2
    s_add_u32 s{t+8}, s{t+8}, s{t+7}
    s_mul_i32 s{sDst}, s{t+8}, 640
    s_add_u32 s{sDst}, s{sDst}, {L_V + LQ}
    s_lshl_b32 s{t+7}, s{sWN}, 6
    s_add_u32 s{t+8}, s{sC0}, s{t+7}
    v_add_u32 v80, s{t+8}, v15
    v_mul_u32_u24 v81, 320, v14
    s_mov_b32 s{t+13}, {HEADB}
    s_movk_i32 s{t+14}, 3277
    s_movk_i32 s{t+7}, -20
    """)
    for tn in range(2):
        a(f"""
        v_add_u32 v83, {32*tn}, v80
        v_mul_u32_u24 v84, s{t+14}, v83
        v_lshrrev_b32 v84, 16, v84
        v_mad_i32_i24 v83, v84, s{t+7}, v83
        v_lshl_add_u32 v83, v83, 4, v81
        v_mul_lo_u32 v85, v84, s{t+13}
        v_add_u32 v{AD+tn}, v83, v85
        """)
    def epi_v(tn, pk=True):
        r = []
        for tm in range(2):
            c = ACC + 16*(2*tn + tm); cv = VCV + 2*tn
            for p in range(2):
                if pk:
                    for i in range(8*p, 8*p + 8, 2):
                        if first: r.append(f"v_pk_fma_f32 v[{c+i}:{c+i+1}], v[{VM+16*tm+i}:{VM+16*tm+i+1}], v[{cv}:{cv+1}], v[{c+i}:{c+i+1}] op_sel_hi:[1,0,1]")
                    for i in range(8*p, 8*p + 8, 2):
                        r.append(f"v_pk_mul_f32 v[{c+i}:{c+i+1}], v[{c+i}:{c+i+1}], v[{VR+16*tm+i}:{VR+16*tm+i+1}]")
                else:
                    for i in range(8*p, 8*p + 8): r.append(f"v_mul_f32 v{c+i}, v{VR+16*tm+i}, v{c+i}")
                for i in range(4):
                    r.append(f"v_cvt_pk_bf16_f32 v{c+8*p+i}, v{c+8*p+2*i}, v{c+8*p+2*i+1}")
                r.append(f"buffer_store_dwordx4 v[{c+8*p}:{c+8*p+3}], v{AD+tn}, {WSR}, s{sDst} offen offset:{640*(2*tm+p)} sc1")
        return r
    mainloop(True, epi_v)
    a.label(fin)
    stamp(a, 3 if first else 20)
    flag_setup(a, 1 if first else 6)
    a(f"s_lshl_b32 s{t+7}, s{sWG}, 5\ns_add_u32 s{t+7}, s{t+7}, s{sW}\ns_lshl_b32 s{t+7}, s{t+7}, 2\ns_add_u32 s{t+7}, s{t+7}, {L_FG + LQ}")
    a("s_waitcnt vmcnt(0)")
    if first:
        l1 = a.uid("q1f"); l2 = a.uid("q1g")
        a(f"s_cmp_eq_u32 s{sMODE}, 0\ns_cbranch_scc1 {l1}")
        flag_store(a, ""); a(f"s_branch {l2}")
        a.label(l1); flag_store(a, "sc1"); a.label(l2)
    else: flag_store(a, SB)
    flag_store(a, "sc1", t+7)
    a(f"s_branch {done}")
    for hk, hb, vtype in hooks:
        a.label(hk)
        if first:
            nx = a.uid("hk")
            a(f"s_cmp_lg_u32 s{sC}, 2\ns_cbranch_scc1 {nx}")
            a(f"""
            s_lshl_b32 s{t+7}, s{sRT}, 1
            s_add_u32 s{t+7}, s{t+7}, s{sWM}
            s_lshl_b32 s{t+7}, s{t+7}, 12
            s_add_u32 s{t+7}, s{t+7}, {WS_ST0}
            v_lshlrev_b32 v1, 4, v0
            """)
            for i in range(4):
                a(f"buffer_load_dwordx4 v[{VST+4*i}:{VST+4*i+3}], v1, {WSR}, s{t+7} offen offset:{1024*i} sc1")
            a(f"s_branch {hb}")
            a.label(nx)
            a("s_waitcnt vmcnt(0)")
        a(f"s_branch {hb}")
    a.label(done)

def qkvW_setup(a, sWo, sLW, sCT, sTmp, vW):
    a(f"""
    v_lshrrev_b32 v2, 4, v0
    v_mul_u32_u24 v1, 3840, v2
    v_lshlrev_b32 v7, 2, v2
    v_and_b32 v3, 15, v0
    v_xor_b32 v3, v3, v7
    v_lshl_add_u32 v{vW}, v3, 4, v1
    s_mul_i32 s{sWo}, s{sLW}, {16*3840}
    s_lshl_b32 s{sTmp}, s{sCT}, 8
    s_add_u32 s{sWo}, s{sWo}, s{sTmp}
    """)

def qkv1_loader(a):
    t = T
    sRT, sCT = t, t+1
    sLW, sAo, sWo, sM, sTmp, sRot, sThr, sA1, sW1, sSel = t+2, t+3, t+4, t+5, t+6, t+8, t+9, t+10, t+11, t+12
    a(f"s_sub_u32 s{sLW}, s{sW}, 4")
    qkvW_setup(a, sWo, sLW, sCT, sTmp, 6)
    a(f"""
    s_lshl_b32 s{sM}, s{sLW}, 12
    s_lshl_b32 s{sAo}, s{sRT}, 2
    s_add_u32 s{sAo}, s{sAo}, s{sLW}
    s_mul_i32 s{sAo}, s{sAo}, {32*1280}
    v_lshrrev_b32 v1, 3, v0
    v_mul_u32_u24 v1, 1280, v1
    v_and_b32 v3, 7, v0
    v_xor_b32 v3, v3, v2
    v_lshl_add_u32 v4, v3, 4, v1
    v_xor_b32 v3, 4, v3
    v_lshl_add_u32 v5, v3, 4, v1
    s_lshr_b32 s{sRot}, s{sR}, 4
    s_mul_i32 s{sRot}, s{sRot}, 5
    s_add_u32 s{sRot}, s{sRot}, s{sCT}
    s_add_u32 s{sRot}, s{sRot}, s{sG}
    s_mul_i32 s{sTmp}, s{sRot}, 26
    s_lshr_b32 s{sTmp}, s{sTmp}, 8
    s_mul_i32 s{sTmp}, s{sTmp}, 10
    s_sub_u32 s{sRot}, s{sRot}, s{sTmp}
    """)
    if not C.rot: a(f"s_mov_b32 s{sRot}, 0")
    if C.rot == 2: a(f"s_lshr_b32 s{sRot}, s{sR}, 4\ns_mul_i32 s{sRot}, s{sRot}, 5")
    a(f"s_sub_u32 s{sThr}, 10, s{sRot}")
    SA = Src(sAo, sA1, sThr, 128); SW = Src(sWo, sW1, sThr, 64*3840)
    SA.setup(a, sRot, 10, sTmp); SW.setup(a, sRot, 10, sTmp)
    a("s_waitcnt lgkmcnt(0)")
    srd(a, R_X, P_X, ACT)
    srd(a, R_WQ, P_WQKV, D*3*D*2)
    def emitA(c, i0, k):
        SA.sel(a, c, sSel)
        for i in range(i0, i0 + k):
            a(f"s_add_u32 m0, s{sM}, {(c % 4)*32768 + 1024*i}\ns_add_u32 s{sTmp}, s{sSel}, {c*128 + i*8*1280}")
            a(f"buffer_load_dwordx4 v{4 + (i & 1)}, {R(R_X)}, s{sTmp} offen lds")
    def emitW(c, i0, k):
        SW.sel(a, c, sSel)
        for i in range(i0, i0 + k):
            a(f"s_add_u32 m0, s{sM}, {16384 + (c % 4)*32768 + 1024*i}\ns_add_u32 s{sTmp}, s{sSel}, {c*64*3840 + i*4*3840}")
            a(f"buffer_load_dwordx4 v6, {R(R_WQ)}, s{sTmp} offen lds")
    LD = Loader(a); mark = [0]
    def xstats(c):
        if c == 0:
            other_srds(a)
            a(f"""
            v_bfe_u32 v8, v0, 2, 2
            v_lshrrev_b32 v9, 5, v0
            v_lshl_add_u32 v9, v9, 3, v8
            v_lshlrev_b32 v9, 8, v9
            v_and_b32 v10, 3, v0
            v_lshl_add_u32 v9, v10, 3, v9
            v_bfe_u32 v10, v0, 4, 1
            v_lshl_add_u32 v9, v10, 5, v9
            v_xor_b32 v8, s{sLW}, v8
            v_lshl_add_u32 v9, v8, 6, v9
            v_add_u32 v9, 16384, v9
            v_add_u32 v8, 65536, v9
            """)
            for i in range(4): a(f"v_mov_b32 v{12+i}, 0x3f803f80")
        for kk in range(0 if C.nocs else 4):
            for j in range(2):
                a(f"ds_read_b64_tr_b16 v[{16+4*kk+2*j}:{17+4*kk+2*j}], v{9 if (c % 4) < 2 else 8} offset:{(c % 2)*32768 + 4096*kk + 1024*j}")
        a("s_waitcnt lgkmcnt(0)")
        for kk in range(0 if C.nocs else 4):
            a(f"v_mfma_f32_32x32x16_bf16 v[32:47], v[12:15], v[{16+4*kk}:{19+4*kk}], {'v[32:47]' if (c or kk) else 0}")
        n = LD.total - mark[0]
        if c in (0, 4): mark[0] = LD.total
        st = {0: lambda: (flags_zero(a), nonce_issue(a, 81, 82)), 2: lambda: nonce_get(a, 80, 81, 82, n), 4: lambda: census(a, 80, 81, True), 6: lambda: census(a, 80, 81, False, n)}
        if c in st:
            l = a.uid("w7")
            a(f"s_cmp_lg_u32 s{sW}, 7\ns_cbranch_scc1 {l}")
            st[c](); a.label(l)
    if C.q1prio: a("s_setprio 2")
    stamp(a, 1)
    ph = Phase("q1", 10, 4, 4, emitA, emitW, lambda c: ((c % 4)*32768, (c % 4)*32768 + 16384), lambda c: ((c % 4)*32768 + 16384, (c % 4 + 1)*32768),
               None, C.bud_q1, after_bar=xstats, dbg=(C.dbg == 1))
    def waitfn(w):
        l1 = a.uid("pw"); l2 = a.uid("pw"); l3 = a.uid("pw")
        a(f"s_cmp_eq_u32 s{sW}, 4\ns_cbranch_scc1 {l1}\ns_cmp_eq_u32 s{sW}, 7\ns_cbranch_scc1 {l2}\ns_waitcnt vmcnt({w+5})\ns_branch {l3}")
        a.label(l1); a(f"s_waitcnt vmcnt({w+16})\ns_branch {l3}")
        a.label(l2); a(f"s_waitcnt vmcnt({w})")
        a.label(l3)
    ph.look = C.look_q1
    LD.run(ph, None)
    a(f"""
    v_and_b32 v1, 31, v0
    v_lshlrev_b32 v1, 2, v1
    s_lshl_b32 s{sTmp}, s{sLW}, 7
    v_add_u32 v1, s{sTmp}, v1
    v_add_u32 v2, {Q1_CS}, v1
    s_lshl_b32 s{sTmp}, s{sWG}, 9
    s_add_u32 s{sTmp}, s{sTmp}, {WS_CSQ}
    s_setprio 0
    s_nop 3
    ds_write_b32 v2, v32
    buffer_store_dword v32, v1, {WSR}, s{sTmp} offen
    s_waitcnt lgkmcnt(0)
    """)
    stamp(a, 2)
    a("s_barrier")
    read_nonce_mode(a)

def other_srds(a):
    srd(a, R_WS, P_WS, WS_END)
    srd(a, R_WG, P_WG, D*F*2)
    srd(a, R_WU, P_WU, D*F*2)
    srd(a, R_T, P_WS, WS_END)

def qkv1_idle(a):
    l2 = a.uid("idl"); l1 = a.uid("idl"); l3 = a.uid("idl"); l4 = a.uid("idl"); lj = a.uid("idl")
    tj = 84; K = NAME + "_kernel"
    a(f"v_lshlrev_b32 v5, 4, v0\ns_cmp_lt_u32 s{sW}, 4\ns_cbranch_scc1 {l1}")
    a(f"s_xor_b32 s{tj}, s{sW}, 7\ns_or_b32 s{tj}, s{tj}, s{T}\ns_cmp_lg_u32 s{tj}, 0\ns_cbranch_scc1 {l3}")
    nonce_put(a)
    a.label(l3)
    a(f"s_getpc_b64 s[{tj+4}:{tj+5}]")
    a.label("L_pc")
    a(f"""
    s_sub_u32 s{tj+4}, s{tj+4}, L_pc-{K}
    s_subb_u32 s{tj+5}, s{tj+5}, 0
    s_and_b32 s{tj}, s{T}, 1
    s_lshl_b32 s{tj}, s{tj}, 2
    s_add_u32 s{tj}, s{tj}, s{sW}
    s_sub_u32 s{tj}, s{tj}, 4
    s_lshl_b32 s{tj}, s{tj}, 13
    v_lshlrev_b32 v1, 7, v0
    v_add_u32 v2, s{tj}, v1
    global_load_dword v251, v2, s[{tj+4}:{tj+5}]
    """)
    a(f"s_lshl_b32 s{tj}, s{T}, 2\ns_add_u32 s{tj}, s{tj}, s{sW}\ns_add_u32 s{tj+2}, s{tj}, {60 - 4}\ns_lshl_b32 s{tj+2}, s{tj+2}, 13")
    for i in range(4):
        if C.q1pf: a(f"buffer_load_dword v251, v1, {R(R_WQ)}, s{tj+2} offen\ns_add_u32 s{tj+2}, s{tj+2}, {64*8192}")
        if i == 0: a("s_barrier")
    a(f"s_branch {l2}")
    a.label(l1)
    xstat_fin(a)
    a(f"s_cmp_lg_u32 s{sW}, 0\ns_cbranch_scc1 {l4}")
    flags_zero(a)
    a.label(l4)
    a(f"s_waitcnt vmcnt(0)\ns_barrier\ns_cmp_lg_u32 s{sW}, 0\ns_cbranch_scc1 {l2}")
    nonce_issue(a, 81, 82)
    nonce_get(a, 80, 81, 82)
    a.label(l2)
    a(f"s_mul_i32 s{tj}, s{T}, 10\ns_add_u32 s{tj+7}, s{tj}, 10\ns_add_u32 s{tj}, s{tj}, s{sW}\ns_mul_i32 s{tj+1}, s{sW}, 5120")
    a.label(lj)
    projjob_issue(a, tj, tj+1, tj)
    a("s_waitcnt vmcnt(0)")
    projjob_finish(a, tj+1, tj)
    a(f"s_add_u32 s{tj}, s{tj}, 8\ns_cmp_lt_u32 s{tj}, s{tj+7}\ns_cbranch_scc1 {lj}")
    l5 = a.uid("idl")
    a(f"s_waitcnt vmcnt(0)\ns_barrier\ns_cmp_lg_u32 s{sW}, 0\ns_cbranch_scc1 {l5}")
    a(f"""
    s_lshl_b32 s{tj}, s{sWG}, 7
    s_add_u32 s{tj}, s{tj}, {L_FG + 36}
    v_mov_b32 v1, 0
    v_mov_b32 v2, s{sEP}
    """)
    flag_store(a, "sc1", tj)
    census(a, 80, 81, True)
    census(a, 80, 81, False)
    a.label(l5)
    a("s_barrier")
    read_nonce_mode(a)

def phase_attn(a, SB, ld_label):
    fast = SB == ""
    t = T
    CH = 20480
    sQP, sKH, sSrc, sDst, sTmp, sC, sHB = t, t+1, t+2, t+3, t+4, t+5, t+8
    sEX = t+6
    sWs, sWd, sPF = t+9, t+10, t+11
    tj = 84; sJob, sScr = tj, tj + 1
    QAREA = 102400
    QA, QB = 16, 22
    NM, SS, PP, OO, KF, VF = 32, 64, 96, 112, 144, 160
    vK, vK8, vV = 2, 3, 4
    DUM = 176; XF = 177
    KVB = 'nt sc1' if C.nt_kv else 'sc1'
    stamp(a, 4)
    a(f"""
    s_and_b32 s{sQP}, s{sW}, 3
    s_lshr_b32 s{sKH}, s{sW}, 2
    v_lshlrev_b32 v5, 4, v0
    s_mul_i32 s{sHB}, s{sR}, {HEADB}
    s_add_u32 s{sHB}, s{sHB}, s{sLO}
    s_and_b32 s{sTmp}, s{sQP}, 1
    s_mul_i32 s{sSrc}, s{sTmp}, 5120
    s_mul_i32 s{sDst}, s{sTmp}, 10240
    s_lshr_b32 s{sTmp}, s{sQP}, 1
    s_mul_i32 s{sC}, s{sTmp}, 5120
    s_add_u32 s{sDst}, s{sDst}, s{sC}
    s_mul_i32 s{sC}, s{sTmp}, {ACT}
    s_add_u32 s{sSrc}, s{sSrc}, s{sC}
    s_add_u32 s{sSrc}, s{sSrc}, s{sHB}
    s_add_u32 s{sSrc}, s{sSrc}, {L_K}
    """)
    def kv_issue(j):
        GF.need(0x01010101 << j)
        a(f"s_add_u32 s{sTmp}, s{sG}, {j}\ns_and_b32 s{sTmp}, s{sTmp}, 7\ns_mul_i32 s{sTmp}, s{sTmp}, 10240\ns_add_u32 s{sTmp}, s{sTmp}, s{sSrc}")
        return lin_dma(a, 5, sTmp, 0, sDst, j * CH, 5, KVB)
    def init():
        a(f"""
        v_lshrrev_b32 v14, 5, v0
        v_and_b32 v15, 31, v0
        v_lshlrev_b32 v6, 3, v15
        s_mul_i32 s{sTmp}, s{sKH}, 10240
        v_add_u32 v{vK}, s{sTmp}, v5
        v_add_u32 v{vK8}, s{sTmp}, v6
        v_mul_u32_u24 v7, 320, v14
        v_lshl_add_u32 v7, v15, 4, v7
        v_add_u32 v{vV}, s{sTmp}, v7
        s_mov_b32 s{sEX}, 0x000fffff
        s_mov_b32 s{sEX+1}, 0x000fffff
        v_and_b32 v9, 27, v0
        v_cmp_eq_u32 vcc, 24, v9
        v_mov_b32 v8, 0x3f803f80
        s_nop 0
        v_cndmask_b32 v8, 0, v8, vcc
        v_mov_b32 v9, v8
        v_lshlrev_b32 v13, 7, v0
        v_mov_b32 v12, 0
        """)
        for i in range(0, 16, 2): a(f"v_mov_b64 v[{VF+i}:{VF+i+1}], v[8:9]")
        for i in range(0, 32, 2): a(f"v_mov_b64 v[{OO+i}:{OO+i+1}], 0")
        for i in range(0, 8, 2): a(f"v_mov_b64 v[{PP+8+i}:{PP+8+i+1}], 0")
        a(f"v_mov_b64 v[{QA+4}:{QA+5}], 0\nv_mov_b64 v[{QB+4}:{QB+5}], 0")
    init()
    l0 = a.uid("att_old"); l1 = a.uid("att_j")
    a(f"s_cmp_eq_u32 s{sKH}, 0\ns_cbranch_scc1 {l0}")
    poll_local(a, "attn", 1, va=10, vt=11)
    stamp(a, 5)
    a(f"""
    s_mul_i32 s{sC}, s{sQP}, 2560
    s_add_u32 s{sPF}, s{sC}, {QAREA}
    s_mul_i32 s{sTmp}, s{sG}, 10240
    s_add_u32 s{sTmp}, s{sTmp}, s{sC}
    s_add_u32 s{sTmp}, s{sTmp}, s{sHB}
    """)
    a(f"s_add_u32 s{sC}, s{sTmp}, 1280")
    if fast and C.qloc:
        a(f"""
        s_lshl_b32 s{sWs}, s{sG}, 2
        s_add_u32 s{sWs}, s{sWs}, s{sQP}
        s_mul_i32 s{sWs}, s{sWs}, {2*F*64}
        s_mul_i32 s{sWd}, s{sR}, 1280
        s_add_u32 s{sWs}, s{sWs}, s{sWd}
        s_add_u32 s{sWs}, s{sWs}, {L_H + 57344}
        s_add_u32 s{sWd}, s{sWs}, {F*64}
        s_cmp_lg_u32 s{sL}, 0
        s_cselect_b32 s{sTmp}, s{sWs}, s{sTmp}
        s_cselect_b32 s{sC}, s{sWd}, s{sC}
        """)
    for x, sr in ((0, sTmp), (1, sC)):
        a(f"""
        s_add_u32 m0, s{sPF}, {1280*x}
        s_mov_b64 exec, -1
        buffer_load_dwordx4 v5, {WSR}, s{sr} offen {KVB} lds
        s_mov_b64 exec, 0xffff
        buffer_load_dwordx4 v5, {WSR}, s{sr} offen offset:1024 {KVB} lds
        """)
    a("s_mov_b64 exec, -1")
    a(f"s_mul_i32 s{sTmp}, s{sG}, 10240\ns_add_u32 s{sTmp}, s{sTmp}, s{sSrc}")
    lin_dma(a, 5, sTmp, 0, sDst, 0, 2, KVB)
    if C.stage: a(f"s_waitcnt vmcnt({C.stage - 1})")
    lin_dma(a, 5, sTmp, 2048, sDst, 2048, 3, KVB)
    if C.stage != 1: a(f"s_waitcnt vmcnt(3)")
    a(f"s_branch {l1}")
    a.label(l0)
    a(f"""
    s_setprio 1
    v_add_u32 v10, s{sG}, v0
    v_and_b32 v10, 7, v10
    v_bfe_u32 v11, v0, 3, 1
    v_mul_u32_u24 v11, 19, v11
    s_mul_i32 s{sTmp}, s{sR}, 20
    v_add_u32 v11, s{sTmp}, v11
    v_lshrrev_b32 v11, 7, v11
    v_lshl_add_u32 v10, v10, 5, v11
    s_and_b32 s{sTmp}, s{sQP}, 1
    s_lshl_b32 s{sTmp}, s{sTmp}, 4
    s_lshr_b32 s{sC}, s{sQP}, 1
    s_mul_i32 s{sC}, s{sC}, 5
    s_add_u32 s{sTmp}, s{sTmp}, s{sC}
    s_add_u32 s{sTmp}, s{sTmp}, 5
    v_add_u32 v10, s{sTmp}, v10
    v_lshlrev_b32 v12, 7, v10
    v_lshrrev_b32 v11, 4, v0
    v_lshl_add_u32 v12, v11, 2, v12
    s_and_b32 s{sWs}, s{sR}, 7
    s_mul_i32 s{sWs}, s{sWs}, 102400
    s_mul_i32 s{sWd}, s{sW}, 5120
    s_add_u32 s{sWs}, s{sWs}, s{sWd}
    s_add_u32 s{sWs}, s{sWs}, {WS_WTO}
    s_add_u32 s{sGO}, s{sLO}, {L_FG}
    s_add_u32 s{sGW}, s{sEP}, 1
    """)
    def cpf(lo, hi):
        l = a.uid("cpf"); pc = a.uid("pc")
        a(f"s_or_b32 s{sC}, s{sL}, s{sW}\ns_cmp_lg_u32 s{sC}, 0\ns_cbranch_scc1 {l}\ns_getpc_b64 s[{t+12}:{t+13}]")
        a.label(pc)
        a(f"""
        s_sub_u32 s{t+12}, s{t+12}, {pc}-{NAME}_kernel
        s_subb_u32 s{t+13}, s{t+13}, 0
        s_lshl_b32 s{sC}, s{sR}, 11
        s_add_u32 s{sC}, s{sC}, {lo}-{NAME}_kernel
        v_add_u32 v{PV+2}, s{sC}, v13
        v_min_u32 v{PV+2}, {hi}-{NAME}_kernel, v{PV+2}
        s_mov_b64 exec, 0xffff
        global_load_dword v{DUM}, v{PV+2}, s[{t+12}:{t+13}]
        s_mov_b64 exec, -1
        """)
        a.label(l)
    if fast and C.cpf: cpf("L_fast", "L_fast_post")
    a.label(l1)
    GF = Gate(a, 12, PV, fold=True, sleep=2)
    a(f"""
    s_mul_i32 s{sC}, s{sQP}, 2560
    s_add_u32 s{sC}, s{sC}, {QAREA}
    v_add_u32 v10, s{sC}, v5
    v_add_u32 v11, s{sC}, v6
    s_barrier
    ds_read_b128 v[{QA}:{QA+3}], v10
    ds_read_b128 v[{QB}:{QB+3}], v10 offset:1280
    s_mov_b32 exec_hi, 0
    ds_read_b64 v[{QA+4}:{QA+5}], v11 offset:1024
    ds_read_b64 v[{QB+4}:{QB+5}], v11 offset:{1280+1024}
    s_mov_b32 exec_hi, -1
    """)
    stamp(a, 6)
    l1 = a.uid("att_ap")
    a(f"s_cmp_lg_u32 s{sKH}, 0\ns_cbranch_scc1 {l1}")
    GF.load()
    a.label(l1)
    base = [0]
    def rdK(st, c, kt):
        off = c * CH + kt * 1280 - base[0]
        assert 0 <= off and off + 1024 < 65536
        b = KF + 8*st
        return [f"ds_read_b128 v[{b}:{b+3}], v{vK} offset:{off}", f"ds_read_b64 v[{b+4}:{b+5}], v{vK8} offset:{off+1024}"]
    def rdV(st, c, kt):
        off = c * CH + 5120 + kt * 1280 - base[0]
        assert 0 <= off and off + 640 < 65536
        b = VF + 8*st
        return [f"s_mov_b64 exec, s[{sEX}:{sEX+1}]", f"ds_read_b128 v[{b}:{b+3}], v{vV} offset:{off}",
                f"ds_read_b128 v[{b+4}:{b+7}], v{vV} offset:{off+640}", f"s_mov_b64 exec, -1"]
    def qk(x, st, c=None):
        b = KF + 8*st; q = (QA, QB)[x]; sd = SS + 16*x
        cc = v(NM + 16*x, 16) if c is None else c
        return [f"v_mfma_f32_32x32x16_bf16 {v(sd,16)}, {v(b,4)}, {v(q,4)}, {cc}",
                f"v_mfma_f32_32x32x8_bf16 {v(sd,16)}, {v(b+4,2)}, {v(q+4,2)}, {v(sd,16)}"]
    def pv(x, st):
        b = VF + 8*st; p = PP + 8*x; o = OO + 16*x
        return [f"v_mfma_f32_32x32x16_bf16 {v(o,16)}, {v(b,4)}, {v(p,4)}, {v(o,16)}",
                f"v_mfma_f32_32x32x16_bf16 {v(o,16)}, {v(b+4,4)}, {v(p+4,4)}, {v(o,16)}"]
    def sm(x):
        sd = SS + 16*x; p = PP + 8*x; r = []
        for i in range(8):
            r.append(f"v_exp_f32 v{sd+2*i}, v{sd+2*i}")
            r.append(f"v_exp_f32 v{sd+2*i+1}, v{sd+2*i+1}")
            if i > 0: r.append(f"v_cvt_pk_bf16_f32 v{p+i-1}, v{sd+2*i-2}, v{sd+2*i-1}")
        r.append(f"v_cvt_pk_bf16_f32 v{p+7}, v{sd+14}, v{sd+15}")
        return r
    def setm():
        for x in range(2): a(f"v_mov_b32 v{10+x}, v{8+x}")
        a("s_nop 0")
        for x in range(2): a(f"v_permlane32_swap_b32 v{8+x}, v{10+x}")
        a("s_nop 0")
        for x in range(2): a(f"v_max_f32 v{8+x}, v{8+x}, v{10+x}")
        for x in range(2):
            a(f"v_sub_f32 v{NM+16*x}, 0, v{8+x}\nv_sub_f32 v{NM+16*x+1}, 0, v{8+x}")
            for i in range(2, 16, 2): a(f"v_mov_b64 v[{NM+16*x+i}:{NM+16*x+i+1}], v[{NM+16*x}:{NM+16*x+1}]")
    for x in rdK(0, 0, 0): a(x)
    a("s_waitcnt lgkmcnt(0)")
    m = qk(0, 0, "0") + qk(1, 0, "0")
    for i in (0, 1, 2, 3): a(m[i])
    a.nop(10)
    for x in range(2):
        sd = SS + 16*x
        a(f"v_max3_f32 v{8+x}, v{sd}, v{sd+1}, v{sd+2}")
        for i in range(3, 15, 2):
            a(f"v_max3_f32 v{8+x}, v{8+x}, v{sd+i}, v{sd+i+1}")
        a(f"v_max_f32 v{8+x}, v{8+x}, v{sd+15}")
    setm()
    for i in range(16): a(f"v_sub_f32 v{SS+i}, v{SS+i}, v8")
    l1 = a.uid("att_w0"); l2 = a.uid("att_w1")
    sDone = t + 15
    a(f"s_cmp_eq_u32 s{sKH}, 0\ns_cbranch_scc1 {l1}\ns_waitcnt vmcnt(0)\ns_barrier\ns_branch {l2}")
    a.label(l1)
    a("s_barrier")
    GF.upd()
    a(f"s_and_b32 s{sDone}, s{sNR}, 0x02020202\ns_cbranch_scc1 {l2}")
    GF.ok = 0x02020202; kv_issue(1); GF.ok = 0
    a.label(l2)
    stamp(a, 7)
    def l0only(fn):
        l = a.uid("l0")
        a(f"s_cmp_lg_u32 s{sL}, 0\ns_cbranch_scc1 {l}")
        fn(); a.label(l)
    def l2pf(i0, n):
        for i in range(i0, min(i0 + n, (C.l2pf + 3) // 4)):
            l = a.uid("pfs")
            a(f"""
            s_cmp_ge_u32 s{sW}, {C.l2pf - 4*i}
            s_cbranch_scc1 {l}
            s_lshr_b32 s{sPF}, s{sR}, 4
            s_mul_i32 s{sPF}, s{sPF}, {15 if C.rot_gu else 1}
            s_mul_i32 s{sC}, s{sW}, {1 if C.rot_gu else 2}
            s_add_u32 s{sPF}, s{sPF}, s{sC}
            s_add_u32 s{sPF}, s{sPF}, {4*i if C.rot_gu else 8*i}
            s_lshl_b32 s{sPF}, s{sPF}, 13
            s_and_b32 s{sC}, s{sR}, 15
            s_mul_i32 s{sC}, s{sC}, 245760
            s_add_u32 s{sPF}, s{sPF}, s{sC}
            s_add_u32 s{sPF}, s{sPF}, {WS_WTG}
            buffer_load_dword v{DUM}, v13, {WSR}, s{sPF} offen
            """)
            a.label(l)
    def wwo(c): lin_dma(a, 5, sWs, c*20480, sWd, c*20480, 5, 'nt' if C.nt_wo else '')
    def fp():
        a(f"""
        s_lshl_b32 s{sC}, s{sWG}, 5
        s_add_u32 s{sC}, s{sC}, s{sW}
        s_lshl_b32 s{sC}, s{sC}, 2
        s_add_u32 s{sC}, s{sC}, {L_FG + 16}
        v_mov_b32 v10, 0
        v_mov_b32 v11, s{sEP}
        s_mov_b64 exec, 1
        buffer_store_dword v11, v10, {WSR}, s{sC} offen sc1
        s_mov_b64 exec, -1
        """)
    def cs1():
        l = a.uid("cs")
        a(f"s_cmp_lg_u32 s{sW}, 3\ns_cbranch_scc1 {l}\ns_mov_b32 exec_hi, 0xffff")
        a(f"s_and_b32 s{sC}, s{sR}, 15\ns_mul_i32 s{sC}, s{sC}, 768\ns_add_u32 s{sC}, s{sC}, {WS_CSP}")
        for i in range(10):
            a(f"buffer_load_dwordx4 v[{PV+4*i}:{PV+3+4*i}], v5, {WSR}, s{sC} offen\ns_add_u32 s{sC}, s{sC}, 12288")
        a("s_mov_b32 exec_hi, -1")
        a.label(l)
    def cs2():
        l = a.uid("cs")
        a(f"s_cmp_lg_u32 s{sW}, 3\ns_cbranch_scc1 {l}\ns_mov_b32 exec_hi, 0xffff")
        for i in range(1, 10):
            a(f"v_pk_add_f32 v[{PV}:{PV+1}], v[{PV}:{PV+1}], v[{PV+4*i}:{PV+1+4*i}]\nv_pk_add_f32 v[{PV+2}:{PV+3}], v[{PV+2}:{PV+3}], v[{PV+2+4*i}:{PV+3+4*i}]")
        a(f"s_mul_i32 s{sC}, s{sWG}, 768\ns_add_u32 s{sC}, s{sC}, {WS_CSG}")
        a(f"buffer_store_dwordx4 v[{PV}:{PV+3}], v5, {WSR}, s{sC} offen\ns_mov_b32 exec_hi, -1")
        a.label(l)
    def fpw():
        a(f"s_lshl_b32 s{sC}, s{sW}, 13\ns_add_u32 s{sC}, s{sC}, {L_FG + 16}")
        poll(a, 13, PV, f"s{sC}", f"s{sEP}", sleep=2, wide=True)
    def wow():
        a(f"v_and_b32 v{PV+1}, 15, v0\nv_lshlrev_b32 v{PV+1}, 11, v{PV+1}\ns_mov_b32 s{sC}, {L_FG + 15*128 + 36}")
        poll(a, PV + 1, PV, f"s{sC}", f"s{sEP}", sleep=2)
    def l1only(fn):
        l = a.uid("l1")
        a(f"s_cmp_eq_u32 s{sL}, 0\ns_cbranch_scc1 {l}")
        fn(); a.label(l)
    def hook(j):
        if j == 1:
            kv_issue(2); kv_issue(3); a("s_waitcnt vmcnt(10)")
        elif j == 2:
            a("s_waitcnt vmcnt(5)"); l0only(lambda: prep(a, 0)); l1only(lambda: kv_issue(4))
            GF.ok &= ~(0x01010101 << 4)
        else: a("s_waitcnt vmcnt(0)")
        if j == 3: l0only(lambda: (prep(a, 1), kv_issue(4))); l1only(lambda: (kv_issue(5), kv_issue(6)))
        if j == 4:
            GF.ok &= ~(0x01010101 * 0xe0)
            l0only(lambda: (fp(), kv_issue(5), kv_issue(6))); l1only(lambda: kv_issue(7))
        if j == 5:
            GF.ok &= ~(0x01010101 * 0xe0)
            l0only(lambda: (wow(), kv_issue(7)))
            wwo(0); wwo(1); wwo(2); l1only(lambda: l2pf(0, 1))
        if j == 6:
            l0only(fpw)
            wwo(3)
            if fast and C.cpf: cpf("L_fast_tail", "L_fast_end")
            if fast:
                a(f"""
                s_lshl_b32 s{sPF}, s{sWG}, 1
                s_and_b32 s{sC}, s{sW}, 1
                s_add_u32 s{sPF}, s{sPF}, s{sC}
                s_mul_i32 s{sPF}, s{sPF}, 5120
                s_add_u32 s{sC}, s{sLO}, {L_O}
                s_bitcmp1_b32 s{sW}, 1
                s_cselect_b32 s{sC}, {L_X1}, s{sC}
                s_add_u32 s{sPF}, s{sPF}, s{sC}
                s_mov_b32 exec_hi, 0xff
                buffer_load_dword v{DUM}, v13, {WSR}, s{sPF} offen
                s_lshl_b32 s{sTmp}, s{sWG}, 9
                s_add_u32 s{sTmp}, s{sTmp}, s{sLO}
                s_add_u32 s{sTmp}, s{sTmp}, {L_ST1}
                s_mov_b64 exec, 15
                buffer_load_dword v{DUM}, v13, {WSR}, s{sTmp} offen
                s_mov_b64 exec, -1
                """)
            l1only(lambda: l2pf(1, 1))
        if j == 7:
            l0only(cs1)
            wwo(4)
            if fast and C.htouch == 0:
                a(f"""
                s_lshl_b32 s{sPF}, s{sWG}, 2
                s_add_u32 s{sPF}, s{sPF}, s{sQP}
                s_mul_i32 s{sPF}, s{sPF}, 6144
                s_add_u32 s{sPF}, s{sPF}, s{sLO}
                s_add_u32 s{sPF}, s{sPF}, {L_H}
                s_mov_b32 exec_hi, 0xffff
                buffer_load_dword v{DUM}, v13, {WSR}, s{sPF} offen
                s_mov_b32 exec_hi, -1
                """)
            l1only(lambda: l2pf(2, 2)); l0only(lambda: l2pf(0, C.l2pf0))
    outl = []
    for c in range(8):
        for kt in range(4):
            st = kt & 1
            last = c == 7 and kt == 3
            if c == 0 and kt == 1:
                hk = a.uid("att_hk")
                a(f"s_cmp_eq_u32 s{sKH}, 0\ns_cbranch_scc1 {hk}"); a.label(hk + "r")
                def h0():
                    l = a.uid("h0")
                    a(f"s_cmp_eq_u32 s{sDone}, 0\ns_cbranch_scc1 {l}")
                    kv_issue(1)
                    a.label(l)
                outl.append((hk, h0))
            j = c + 1 if (kt == 3 and c < 6) else (7 if (c == 7 and kt == 0) else None)
            if j:
                hk = a.uid("att_hk")
                dstamp(a, 6, 3*j)
                a(f"s_cmp_eq_u32 s{sKH}, 0\ns_cbranch_scc1 {hk}")
                if C.flip and j < 7: a("s_setprio 2")
                a.label(hk + "r")
                dstamp(a, 6, 3*j+1)
                a("s_barrier")
                dstamp(a, 6, 3*j+2)
                outl.append((hk, (lambda jj: (lambda: hook(jj)))(j)))
            if C.flip and 1 <= c < 7 and kt == C.flip - 1: a("s_setprio 1")
            val = sm(0)
            mf = qk(1, st) + pv(1, st ^ 1)
            ex = rdV(st, c, kt)
            if kt == 3 and c in (2, 5):
                base[0] += 3 * CH
                ex += [f"v_add_u32 v{r}, {3*CH}, v{r}" for r in (vK, vK8, vV)]
            if not last: ex += rdK(st ^ 1, c + (kt + 1) // 4, (kt + 1) % 4)
            a(mf[0]); [a(x) for x in ex[:4]]; [a(x) for x in val[0:6]]
            a(mf[2]); [a(x) for x in ex[4:]]; [a(x) for x in val[6:12]]
            a(mf[1]); [a(x) for x in val[12:18]]
            a(mf[3]); [a(x) for x in val[18:]]
            val = sm(1)
            a("s_waitcnt lgkmcnt(0)")
            if not last:
                mf = qk(0, st ^ 1) + pv(0, st)
                a(mf[0]); [a(x) for x in val[0:6]]
                a(mf[2]); [a(x) for x in val[6:12]]
                a(mf[1]); [a(x) for x in val[12:18]]
                a(mf[3]); [a(x) for x in val[18:]]
            else:
                mf = pv(0, st) + pv(1, st)
                a(mf[0]); [a(x) for x in val[0:6]]
                a(mf[1]); [a(x) for x in val[6:16]]
                a(mf[2]); [a(x) for x in val[16:]]
                a("s_nop 1"); a(mf[3])
    if fast: a.label("L_fast_tail")
    stamp(a, 8)
    fb = a.uid("att_fb"); comb = a.uid("att_comb"); done = a.uid("att_done"); yng = a.uid("att_y")
    XB = 102400
    a(f"""
    s_mul_i32 s{sC}, s{sQP}, 7168
    s_add_u32 s{sC}, s{sC}, {XB}
    v_add_u32 v1, s{sC}, v5
    s_lshl_b32 s{sTmp}, s{sQP}, 2
    s_add_u32 s{sTmp}, s{sTmp}, {XB + 28672}
    v_mov_b32 v{XF}, s{sTmp}
    v_lshrrev_b32 v2, 1, v5
    v_add_u32 v2, s{sC}, v2
    s_mul_i32 s{sTmp}, s{sR}, 5
    v_add_u32 v3, s{sTmp}, v14
    v_lshrrev_b32 v4, 1, v3
    v_and_b32 v3, 1, v3
    v_lshlrev_b32 v3, 3, v3
    v_lshl_add_u32 v3, v4, 9, v3
    v_lshl_add_u32 v3, v15, 4, v3
    """)
    a(f"v_mul_f32 v10, {f32(2.0**63)}, v{OO+12}")
    a(f"v_pk_mul_f32 v[12:13], v[{OO}:{OO+1}], 0")
    for i in range(2, 12, 2): a(f"v_pk_fma_f32 v[12:13], v[{OO+i}:{OO+i+1}], 0, v[12:13]")
    a(f"v_mul_f32 v11, {f32(2.0**63)}, v{OO+16+12}")
    a(f"v_pk_add_f32 v[10:11], v[10:11], v[10:11]\nv_pk_fma_f32 v[12:13], v[10:11], 0, v[12:13]")
    for i in range(0, 12, 2): a(f"v_pk_fma_f32 v[12:13], v[{OO+16+i}:{OO+16+i+1}], 0, v[12:13]")
    a(f"v_cmp_u_f32 vcc, v12, v13\ns_cbranch_vccnz {fb}")
    a.label(comb)
    a(f"s_cmp_eq_u32 s{sKH}, 0\ns_cbranch_scc1 {yng}")
    def older():
        a.label(yng)
        a(f"v_mov_b32 v{OO+13}, v8\nv_mov_b32 v{OO+16+13}, v9\nv_mov_b32 v10, s{sEP}")
        for x in range(2):
            for i in range(3):
                a(f"ds_write_b128 v1, v[{OO+16*x+4*i}:{OO+16*x+4*i+3}] offset:{3584*x+1024*i}")
            a(f"ds_write_b64 v2, v[{OO+16*x+12}:{OO+16*x+13}] offset:{3584*x+3072}")
        a(f"ds_write_b32 v{XF}, v10\ns_waitcnt vmcnt(0)")
        l0only(cs2)
        a(f"s_setprio 0")
        stamp(a, 9)
    pl = a.uid("att_x")
    a(f"s_mov_b32 s{t+12}, 0")
    a.label(pl)
    a(f"ds_read_b32 v10, v{XF}")
    for x in range(2):
        a(f"ds_read_b64 v[{76+16*x}:{77+16*x}], v2 offset:{3584*x+3072}")
    for x in range(2):
        for i in range(3):
            a(f"ds_read_b128 v[{64+16*x+4*i}:{64+16*x+4*i+3}], v1 offset:{3584*x+1024*i}")
    a(f"""
    s_lshl_b32 s{sTmp}, s{sG}, 2
    s_add_u32 s{sTmp}, s{sTmp}, s{sQP}
    s_mul_i32 s{sPF}, s{sTmp}, 81920
    s_add_u32 s{sPF}, s{sPF}, s{sLO}
    s_add_u32 s{sPF}, s{sPF}, {L_O}
    s_add_u32 s{sC}, s{sPF}, 40960
    s_waitcnt lgkmcnt(6)
    v_cmp_ne_u32 vcc, s{sEP}, v10
    s_cbranch_vccz {pl}k
    s_add_u32 s{t+12}, s{t+12}, 1
    s_cmp_lt_u32 s{t+12}, {4*SPIN}
    s_cbranch_scc1 {pl}
    """)
    a.label(pl + "k")
    for x in range(2):
        f = 16 + 4*x
        a(f"v_max_f32 v{f+2}, v{8+x}, v{77+16*x}\nv_sub_f32 v{f}, v{8+x}, v{f+2}\nv_sub_f32 v{f+1}, v{77+16*x}, v{f+2}")
    for x in range(2):
        f = 16 + 4*x
        a(f"v_exp_f32 v{f}, v{f}\nv_exp_f32 v{f+1}, v{f+1}")
    for x in range(2):
        f = 16 + 4*x
        a(f"v_mul_f32 v{f+2}, v{f}, v{OO+16*x+12}\nv_fmac_f32 v{f+2}, v{f+1}, v{76+16*x}")
    a("v_rcp_f32 v18, v18\nv_rcp_f32 v22, v22\ns_waitcnt lgkmcnt(0)")
    for x in range(2):
        f = 16 + 4*x; o = OO + 16*x
        a(f"v_mul_f32 v{f}, v{f}, v{f+2}\nv_mul_f32 v{f+2}, v{f+1}, v{f+2}")
        for i in range(0, 12, 2):
            a(f"v_pk_mul_f32 v[{o+i}:{o+i+1}], v[{o+i}:{o+i+1}], v[{f}:{f+1}] op_sel_hi:[1,0]")
        for i in range(0, 12, 2):
            a(f"v_pk_fma_f32 v[{o+i}:{o+i+1}], v[{64+16*x+i}:{65+16*x+i}], v[{f+2}:{f+3}], v[{o+i}:{o+i+1}] op_sel_hi:[1,0,1]")
        for i in range(6):
            a(f"v_cvt_pk_bf16_f32 v{o+i}, v{o+2*i}, v{o+2*i+1}")
        sd = sPF if x == 0 else sC
        a(f"""
        buffer_store_dwordx2 v[{o}:{o+1}], v3, {WSR}, s{sd} offen {SB}
        buffer_store_dwordx2 v[{o+2}:{o+3}], v3, {WSR}, s{sd} offen offset:512 {SB}
        s_mov_b32 exec_hi, 0
        buffer_store_dwordx2 v[{o+4}:{o+5}], v3, {WSR}, s{sd} offen offset:1024 {SB}
        s_mov_b32 exec_hi, -1
        """)
    flag_setup(a, 2)
    a("s_setprio 0\ns_barrier\ns_waitcnt vmcnt(0)")
    flag_store(a, SB)
    stamp(a, 9)
    a(f"s_branch {ld_label}")
    for hk, fn in outl:
        a.label(hk); fn(); a(f"s_branch {hk}r")
    older()
    def fallback():
        a.label(fb)
        sKb, sVb, sI = t+12, t+13, t+14
        def addr():
            a(f"""
            s_lshr_b32 s{sKb}, s{sI}, 2
            s_lshl_b32 s{sKb}, s{sKb}, 1
            s_add_u32 s{sKb}, s{sKb}, s{sKH}
            s_lshl_b32 s{sKb}, s{sKb}, 2
            s_and_b32 s{sVb}, s{sI}, 3
            s_add_u32 s{sKb}, s{sKb}, s{sVb}
            s_mul_i32 s{sKb}, s{sKb}, 1280
            s_add_u32 s{sKb}, s{sKb}, s{sHB}
            s_add_u32 s{sVb}, s{sKb}, {L_V}
            s_add_u32 s{sKb}, s{sKb}, {L_K}
            buffer_load_dwordx4 v[{KF}:{KF+3}], v5, {WSR}, s{sKb} offen sc1
            buffer_load_dwordx2 v[{KF+4}:{KF+5}], v6, {WSR}, s{sKb} offen offset:1024 sc1
            """)
        l1 = a.uid("att_fb1"); l2 = a.uid("att_fb2")
        a(f"s_mov_b32 s{sI}, 0\nv_mov_b32 v8, 0xff800000\nv_mov_b32 v9, 0xff800000")
        a.label(l1)
        addr()
        a("s_waitcnt vmcnt(0)")
        for x in range(2):
            for m in qk(x, 0, "0"): a(m)
        a.nop(12)
        for x in range(2):
            sd = SS + 16*x
            for i in range(0, 16, 2): a(f"v_max3_f32 v{8+x}, v{8+x}, v{sd+i}, v{sd+i+1}")
        a(f"s_add_u32 s{sI}, s{sI}, 1\ns_cmp_lt_u32 s{sI}, 32\ns_cbranch_scc1 {l1}")
        setm()
        for i in range(32): a(f"v_mov_b32 v{OO+i}, 0")
        a(f"s_mov_b32 s{sI}, 0")
        a.label(l2)
        addr()
        a(f"""
        s_mov_b64 exec, s[{sEX}:{sEX+1}]
        buffer_load_dwordx4 v[{VF}:{VF+3}], v7, {WSR}, s{sVb} offen sc1
        buffer_load_dwordx4 v[{VF+4}:{VF+7}], v7, {WSR}, s{sVb} offen offset:640 sc1
        s_mov_b64 exec, -1
        s_waitcnt vmcnt(0)
        """)
        for x in range(2):
            for m in qk(x, 0): a(m)
        a.nop(12)
        for x in range(2):
            for i in sm(x): a(i)
        a("s_nop 1")
        for x in range(2):
            for m in pv(x, 0): a(m)
        a(f"s_add_u32 s{sI}, s{sI}, 1\ns_cmp_lt_u32 s{sI}, 32\ns_cbranch_scc1 {l2}")
        a.nop(12)
        a(f"s_branch {comb}")
    return fallback

def xoff(SB, which):
    if SB == "": return (False, L_X1)
    return (True, L_X1) if which == 1 else (False, L_X2)
def add_x(a, dst, src, SB, which):
    lo, c = xoff(SB, which)
    a(f"s_add_u32 s{dst}, s{src}, {c}")
    if lo: a(f"s_add_u32 s{dst}, s{dst}, s{sLO}")

def proj_compute(a, down, SB, end_label):
    fast = SB == ""
    t = T
    K = F if down else D
    NCH = K // 128
    sRT, sCT = t, t+1
    st0 = 13 if down else 10
    sF, sRM, sST, sA, sA1, sThr, sSel = t+4, t+5, t+12, t+2, t+3, t+9, t+10
    NWS = 3 if down else C.wo_sets
    ACC = 14; RX = 34; AF = 54; WF = 134; RES = (220 if down else 54); VST = 200
    vF, vF2, vR, vR2 = 10, 11, 12, 13
    a(f"""
    s_lshr_b32 s{sRT}, s{sWG}, 3
    s_and_b32 s{sCT}, s{sR}, 7
    v_and_b32 v3, 15, v0
    v_lshrrev_b32 v7, 4, v0
    s_lshl_b32 s{t+6}, s{sRT}, 1
    s_lshr_b32 s{t+7}, s{sW}, 1
    s_add_u32 s{t+6}, s{t+6}, s{t+7}
    s_and_b32 s{t+8}, s{sW}, 1
    s_lshl_b32 s{t+8}, s{t+8}, 8
    s_mul_i32 s{sA}, s{t+6}, {K*64}
    s_add_u32 s{sA}, s{sA}, s{t+8}
    s_add_u32 s{sA}, s{sA}, s{sLO}
    s_add_u32 s{sA}, s{sA}, {L_H if down else L_O}
    s_mul_i32 s{sF}, s{t+6}, 40960
    s_mul_i32 s{t+7}, s{sCT}, 5120
    s_add_u32 s{sF}, s{sF}, s{t+7}
    s_add_u32 s{sF}, s{sF}, s{t+8}
    s_lshl_b32 s{sST}, s{sW}, 8
    s_lshl_b32 s{t+7}, s{sRT}, 12
    s_add_u32 s{sST}, s{sST}, s{t+7}
    s_add_u32 s{sST}, s{sST}, s{sLO}
    s_lshl_b32 s{sRM}, s{sRT}, 2
    s_add_u32 s{sRM}, s{sRM}, s{sW}
    s_mul_i32 s{sRM}, s{sRM}, {16*1280}
    s_mul_i32 s{t+7}, s{sCT}, 160
    s_add_u32 s{sRM}, s{sRM}, s{t+7}
    v_lshlrev_b32 v1, 4, v3
    v_lshl_add_u32 v{vF}, v7, 9, v1
    v_lshrrev_b32 v2, 5, v0
    v_lshl_add_u32 v1, v2, 9, v1
    v_and_b32 v2, 1, v7
    v_lshl_add_u32 v{vF2}, v2, 3, v1
    v_add_u32 v{vF2}, 4096, v{vF2}
    v_mul_u32_u24 v1, 1280, v3
    v_lshl_add_u32 v{vR}, v7, 4, v1
    v_lshl_add_u32 v{vR2}, v7, 3, v1
    v_add_u32 v9, 4096, v{vF}
    """)
    SA = Src(sA, sA1, sThr, 8192)
    if down:
        a(f"s_and_b32 s{t+7}, s{sRT}, 3\ns_mul_i32 s{t+7}, s{t+7}, {C.rot_dn}\ns_sub_u32 s{sThr}, 12, s{t+7}")
        SA.setup(a, t+7, 12, t+8)
    def io(store, rowmajor, rsrc, soff, reg, bits):
        op = "store" if store else "load"
        v16, v8 = (vR, vR2) if rowmajor else (vF, vF2)
        o1, o2 = (64, 128) if rowmajor else (2048, 0)
        return [f"buffer_{op}_dwordx4 v[{reg}:{reg+3}], v{v16}, {rsrc}, {soff} offen {bits}",
                f"buffer_{op}_dwordx4 v[{reg+4}:{reg+7}], v{v16}, {rsrc}, {soff} offen offset:{o1} {bits}",
                f"buffer_{op}_dwordx2 v[{reg+8}:{reg+9}], v{v8}, {rsrc}, {soff} offen offset:{o2} {bits}"]
    if down:
        add_x(a, t+7, sF, SB, 1)
        for x in io(False, False, WSR, f"s{t+7}", RES, "sc1"): a(x)
        a(f"s_add_u32 s{t+7}, s{sST}, {L_ST1}\nv_lshlrev_b32 v1, 4, v3")
        for i in range(4):
            a(f"buffer_load_dwordx4 v[{VST+4*i}:{VST+4*i+3}], v1, {WSR}, s{t+7} offen offset:{1024*i} sc1")
        if fast:
            a(f"s_lshl_b32 s{t+8}, s{sWG}, 9\ns_add_u32 s{t+8}, s{t+8}, {L_ST2}\nv_lshlrev_b32 v1, 7, v0\ns_mov_b64 exec, 15")
            a(f"buffer_load_dword v8, v1, {WSR}, s{t+8} offen\ns_mov_b64 exec, -1")
    else:
        l1 = a.uid("prj_r1"); l2 = a.uid("prj_r2")
        a(f"s_cmp_lg_u32 s{sL}, 0\ns_cbranch_scc1 {l1}")
        for x in io(False, True, R(R_X), f"s{sRM}", RES, ""): a(x)
        a(f"s_branch {l2}")
        a.label(l1)
        add_x(a, t+7, sF, SB, 2)
        for x in io(False, False, WSR, f"s{t+7}", RES, "sc1"): a(x)
        a.label(l2)
    a(f"v_lshlrev_b32 v4, 4, v0\nv_add_u32 v5, 61440, v4\nv_add_u32 v6, 122880, v4\ns_mov_b32 s{t+8}, 0xffff0000")
    def wadr(c):
        o = dnW(c) if down else c * 20480
        return 4 + o // 61440, o % 61440
    def reads(c, u):
        b = WF + 20*((4*c + u) % NWS); r, o = wadr(c)
        return [f"ds_read_b128 v[{b+4*jn}:{b+4*jn+3}], v{r} offset:{o + 5120*u + 1024*jn}" for jn in range(5)]
    NAS = 5
    def aload(c):
        r = []
        if down: r += [f"s_cmp_gt_u32 s{sThr}, {c}", f"s_cselect_b32 s{sSel}, s{sA}, s{sA1}", f"s_add_u32 s{sSel}, s{sSel}, {c*8192}"]
        else: r += [f"s_add_u32 s{sSel}, s{sA}, {c*8192}"]
        for u in range(4):
            d = AF + 16*(c % NAS) + 4*u
            r.append(f"buffer_load_dwordx4 v[{d}:{d+3}], v{vF if u < 2 else 9}, {WSR}, s{sSel} offen offset:{2048*(u & 1)} sc1")
        return r
    def mfmas(c, u, zero=False):
        b = WF + 20*((4*c + u) % NWS); x = AF + 16*(c % NAS) + 4*u
        return [f"v_mfma_f32_16x16x32_bf16 {v(ACC+4*jn,4)}, {v(b+4*jn,4)}, {v(x,4)}, {0 if zero else v(ACC+4*jn,4)}" for jn in range(5)]
    D_ = NWS - 1
    rd = lambda st_: reads(st_ // 4, st_ % 4) if st_ < 4*NCH else []
    if down: a(f"s_and_b32 s{t+7}, s{sRT}, 3\ns_mul_i32 s{t+7}, s{t+7}, {4 if C.rot_dn else 0}")
    G_ = gate_local(a, "down" if down else "wo", 4 if down else 2, 1, 2, t+7)
    def setup2():
        if not down: a("s_waitcnt vmcnt(0)")
        for i in range(10):
            a(f"v_lshlrev_b32 v{RX+2*i}, 16, v{RES+i}\nv_and_b32 v{RX+1+2*i}, s{t+8}, v{RES+i}")
        if down:
            row_stats(a, VST, VST + 2, VST + 3)
            a(f"v_mul_f32 v{VST+2}, v{VST+3}, v{VST+3}")
        a("s_barrier")
        for st_ in range(D_):
            for x in rd(st_): a(x)
    if not down: setup2()
    def al(c):
        G_.need(span(128*c, 128*c + 127, 96, 2) if down else span(128*c, 128*c + 127, 20, 1))
        if c == 0: stamp(a, st0)
        for x in aload(c): a(x)
    NPRE = C.dn_a if down else 5
    for c in range(NPRE): al(c)
    if down: setup2()
    issued = 4 * NPRE
    for c in range(NCH):
        for u in range(4):
            step = 4*c + u
            left = min(D_ - 1, 4*NCH - 1 - step)
            a(f"s_waitcnt vmcnt({issued - step - 1}) lgkmcnt({min(15, 5*left)})")
            if step == 4*NCH - 1 or (down and u == 2 and c + 1 < NCH): a("s_barrier")
            interleave(a, mfmas(c, u, step == 0), rd(step + D_))
            if u == 0 and c + NPRE < NCH:
                assert NPRE < NAS
                al(c + NPRE); issued += 4
    stamp(a, st0 + 1)
    add_x(a, t+7, sF, SB, 2 if down else 1)
    flag_setup(a, 5 if down else 3)
    for i in range(0, 20, 2):
        c = ACC + i
        if down: a(f"v_pk_fma_f32 v[{c}:{c+1}], v[{c}:{c+1}], v[{VST+2}:{VST+3}], v[{RX+i}:{RX+i+1}] op_sel_hi:[1,0,1]")
        else: a(f"v_pk_add_f32 v[{c}:{c+1}], v[{c}:{c+1}], v[{RX+i}:{RX+i+1}]")
        a(f"v_cvt_pk_bf16_f32 v{60+i//2}, v{c}, v{c+1}")
    if down:
        l1 = a.uid("prj_o1")
        a(f"s_cmp_eq_u32 s{sL}, 0\ns_cbranch_scc1 {l1}")
        srd(a, R_T, P_OUT, ACT)
        for x in io(True, True, R(R_T), f"s{sRM}", 60, ""): a(x)
        a(f"s_branch {end_label}")
        a.label(l1)
    for x in io(True, False, WSR, f"s{t+7}", 60, SB): a(x)
    a(f"v_pk_add_f32 v[72:73], v[{ACC}:{ACC+1}], v[{ACC+2}:{ACC+3}]\nv_pk_mul_f32 v[74:75], v[{ACC}:{ACC+1}], v[{ACC}:{ACC+1}]")
    a(f"v_pk_fma_f32 v[74:75], v[{ACC+2}:{ACC+3}], v[{ACC+2}:{ACC+3}], v[74:75]")
    for i in range(4, 20, 2):
        a(f"v_pk_add_f32 v[72:73], v[72:73], v[{ACC+i}:{ACC+i+1}]\nv_pk_fma_f32 v[74:75], v[{ACC+i}:{ACC+i+1}], v[{ACC+i}:{ACC+i+1}], v[74:75]")
    a(f"""
    v_add_f32 v72, v72, v73
    v_add_f32 v73, v74, v75
    s_lshr_b32 s{t+7}, s{sCT}, 1
    s_lshl_b32 s{t+7}, s{t+7}, 10
    v_permlane32_swap_b32 v72, v73
    s_and_b32 s{t+8}, s{sCT}, 1
    s_lshl_b32 s{t+8}, s{t+8}, 3
    v_add_f32 v72, v72, v73
    v_mov_b32 v73, v72
    s_add_u32 s{t+7}, s{t+7}, s{t+8}
    s_add_u32 s{t+7}, s{t+7}, s{sST}
    v_permlane16_swap_b32 v72, v73
    s_add_u32 s{t+7}, s{t+7}, {L_ST2 if down else L_ST1}
    v_lshrrev_b32 v8, 5, v0
    v_lshlrev_b32 v8, 2, v8
    v_lshl_add_u32 v8, v3, 4, v8
    v_add_f32 v72, v72, v73
    buffer_store_dword v72, v8, {WSR}, s{t+7} offen {SB}
    s_waitcnt vmcnt(0)
    """)
    flag_store(a, SB)
    a("s_barrier")
    stamp(a, st0 + 2)

def gu_compute(a, SB):
    t = T
    sRT, sCT, sWM, sWN, sTB, sF0 = t, t+1, t+2, t+3, t+4, t+6
    FR = 14; ACC = 94; VCS = 190; VST = 238; MS = 8
    a(f"""
    s_lshr_b32 s{sRT}, s{sWG}, 4
    s_and_b32 s{sCT}, s{sR}, 15
    s_and_b32 s{sWM}, s{sW}, 1
    s_lshr_b32 s{sWN}, s{sW}, 1
    s_lshl_b32 s{sTB}, s{sRT}, 1
    s_add_u32 s{sTB}, s{sTB}, s{sWM}
    s_mul_i32 s{sF0}, s{sCT}, 96
    s_mul_i32 s{t+5}, s{sWN}, 48
    s_add_u32 s{sF0}, s{sF0}, s{t+5}
    s_mul_i32 s{t+5}, s{sWG}, 768
    s_mul_i32 s{t+7}, s{sWN}, 384
    s_add_u32 s{t+5}, s{t+5}, s{t+7}
    s_add_u32 s{t+5}, s{t+5}, {WS_CSG}
    v_lshrrev_b32 v12, 5, v0
    v_lshlrev_b32 v1, 6, v12
    """)
    for jn in range(3):
        for q in range(4):
            r = VCS + 16*jn + 4*q
            a(f"buffer_load_dwordx4 v[{r}:{r+3}], v1, {WSR}, s{t+5} offen offset:{128*jn+16*q} sc1")
    a(f"""
    s_lshl_b32 s{t+5}, s{sWM}, 13
    v_lshlrev_b32 v11, 4, v0
    v_add_u32 v3, s{t+5}, v11
    s_mul_i32 s{t+5}, s{sWN}, 3072
    s_add_u32 s{t+5}, s{t+5}, {WB}
    v_add_u32 v4, s{t+5}, v11
    v_add_u32 v5, 49152, v4
    s_mul_i32 s{t+11}, s{sTB}, {2*F*64}
    s_lshl_b32 s{t+7}, s{sF0}, 6
    s_add_u32 s{t+11}, s{t+11}, s{t+7}
    s_add_u32 s{t+11}, s{t+11}, s{sLO}
    s_add_u32 s{t+11}, s{t+11}, {L_H}
    s_add_u32 s{t+12}, s{t+11}, {F*64}
    """)
    flag_setup(a, 4)
    for i in range(0, 96, 2): a(f"v_mov_b64 v[{ACC+i}:{ACC+i+1}], 0")
    def reads(c, kk):
        b = FR + 20*kk; r = []
        for tm in range(2):
            r.append(f"ds_read_b128 v[{b+4*tm}:{b+4*tm+3}], v3 offset:{(c % 4)*16384+4096*tm+1024*kk}")
        o = guW(c) - WB
        for jn in range(3):
            d = b + 8 + 4*jn
            r.append(f"ds_read_b128 v[{d}:{d+3}], v{4 + o // 49152} offset:{o % 49152 + 6144*kk+1024*jn}")
        return r
    def mfma(kk, tl):
        b = FR + 20*kk; c = ACC + 16*tl
        return f"v_mfma_f32_32x32x16_bf16 {v(c,16)}, {v(b+8+4*(tl>>1),4)}, {v(b+4*(tl&1),4)}, {v(c,16)}"
    def epi(jn, pk):
        r = []
        for tm in range(2):
            c = ACC + 16*(2*jn + tm)
            for i in range(8): r.append(f"v_max_f32 v{c+i}, 0, v{c+i}")
            if pk:
                for i in range(0, 8, 2): r.append(f"v_pk_mul_f32 v[{c+i}:{c+i+1}], v[{c+i}:{c+i+1}], v[{c+8+i}:{c+9+i}]")
            else:
                for i in range(8): r.append(f"v_mul_f32 v{c+i}, v{c+i}, v{c+8+i}")
            for i in range(4): r.append(f"v_cvt_pk_bf16_f32 v{c+i}, v{c+2*i}, v{c+2*i+1}")
            r.append(f"buffer_store_dwordx4 v[{c}:{c+3}], v11, {WSR}, s{t+11+tm} offen offset:{1024*jn} {SB}")
        return r
    a(f"s_lshl_b32 s{t+5}, s{sTB}, 12\ns_add_u32 s{t+5}, s{t+5}, s{sLO}\ns_add_u32 s{t+5}, s{t+5}, {L_ST1}")
    ins = {}
    for i in range(4): ins[48 + 3*i] = [f"buffer_load_dwordx4 v[{VST+4*i}:{VST+4*i+3}], v11, {WSR}, s{t+5} offen offset:{1024*i} sc1"]
    if SB == "" and C.htouch > 0:
        a(f"""
        v_mul_u32_u24 v6, 171, v0
        v_lshrrev_b32 v6, 12, v6
        v_mul_u32_u24 v7, {F*64 - 24*128}, v6
        v_lshl_add_u32 v6, v0, 7, v7
        """)
        ins[C.htouch] = ["s_mov_b32 exec_hi, 0xffff", f"buffer_load_dword v7, v6, {WSR}, s{t+11} offen", "s_mov_b32 exec_hi, -1"]
    ins[100] = ["s_waitcnt vmcnt(0)"] + [f"v_add_f32 v{VST}, v{VST}, v{VST+2*i}" for i in range(1, 8)] + \
         [f"v_mul_f32 v{MS}, {f32(-1.0/D)}, v{VST}", f"v_mul_f32 v{MS+1}, {f32(-1.0/D)}, v{VST}", "s_nop 1", f"v_permlane32_swap_b32 v{MS}, v{MS+1}"]
    fix = lambda tl: [f"v_fmac_f32 v{ACC+16*tl+i}, v{MS+(tl&1)}, v{VCS+16*(tl>>1)+i}" for i in range(16)]
    gemm_unrolled(a, 10, 6, 5, reads, mfma, [(0, 1), (2, 3), (4, 5)], ins, fix, 110, epi, 22)
    a("s_waitcnt vmcnt(0)")
    flag_store(a, SB)
    a("s_barrier")
    stamp(a, 23)

def loader_chain(a, SB, end_label, idle_label):
    t = T
    sLW, s4, s5, s6, aGU, aGU1, wGU, wGU1, wDN, wDN1, aQK, aQK1, wQK, wQK1, th10, th12, sTmp, sSel, thq = range(t, t + 19)
    sRot = sSel
    a(f"""
    s_sub_u32 s{sLW}, s{sW}, 4
    v_lshlrev_b32 v8, 4, v0
    s_mul_i32 s{s6}, s{sLW}, 6144
    s_and_b32 s{wGU}, s{sR}, 15
    s_mul_i32 s{wGU}, s{wGU}, 245760
    s_add_u32 s{wGU}, s{wGU}, s{s6}
    s_add_u32 s{wGU}, s{wGU}, {WS_WTG}
    s_lshr_b32 s{sRot}, s{sR}, 4
    s_mul_i32 s{sRot}, s{sRot}, {C.rot_gu}
    s_sub_u32 s{th10}, 10, s{sRot}
    """)
    S_aGU = Src(aGU, aGU1, th10, 4096); S_wGU = Src(wGU, wGU1, th10, 24576); S_wDN = Src(wDN, wDN1, th12, 20480)
    S_aQK = Src(aQK, aQK1, thq, 4096); S_wQK = Src(wQK, wQK1, thq, 64*3840)
    S_wGU.setup(a, sRot, 10, sTmp)
    def rest():
        a(f"""
        s_lshl_b32 s{s4}, s{sLW}, 12
        s_mul_i32 s{s5}, s{sLW}, 5120
        s_lshr_b32 s{aQK}, s{sWG}, 4
        s_lshl_b32 s{aQK}, s{aQK}, 2
        s_add_u32 s{aQK}, s{aQK}, s{sLW}
        s_mul_i32 s{aQK}, s{aQK}, 40960
        """)
        add_x(a, aGU, aQK, SB, 1)
        add_x(a, aQK, aQK, SB, 2)
        a(f"s_and_b32 s{wDN}, s{sR}, 15")
        qkvW_setup(a, wQK, sLW, wDN, sTmp, 6)
        a(f"s_sub_u32 s{sRot}, 10, s{th10}")
        S_aGU.setup(a, sRot, 10, sTmp)
        a(f"s_lshr_b32 s{sRot}, s{sR}, 4\ns_mul_i32 s{sRot}, s{sRot}, {C.rot_qk}\ns_sub_u32 s{thq}, 10, s{sRot}")
        for S_ in (S_aQK, S_wQK): S_.setup(a, sRot, 10, sTmp)
        a(f"""
        s_and_b32 s{wDN}, s{sR}, 7
        s_mul_i32 s{wDN}, s{wDN}, 245760
        s_add_u32 s{wDN}, s{wDN}, s{s5}
        s_add_u32 s{wDN}, s{wDN}, {WS_WTD}
        s_lshr_b32 s{sRot}, s{sR}, 3
        s_mul_i32 s{sRot}, s{sRot}, {C.rot_dn}
        s_sub_u32 s{th12}, 12, s{sRot}
        """)
        S_wDN.setup(a, sRot, 12, sTmp)
    G_ = [None, None]
    def lin(S_, dst, dfn, bits):
        def f(c, i0, k):
            if bits == "sc1":
                G_[0].need(span(64*c, 64*c + 63, 80, 2) if C.gran else 0xffff)
                if G_[1] is not None: stamp(a, G_[1]); G_[1] = None
            S_.sel(a, c, sSel)
            lin_dma(a, 8, sSel, c*S_.stride + 1024*i0, dst, dfn(c) + 1024*i0, k, bits)
        return f
    def pf(kind, ep, st, rot):
        def f():
            a(f"s_lshr_b32 s{sTmp}, s{sR}, 4\ns_mul_i32 s{sTmp}, s{sTmp}, {4 if rot else 0}")
            G_[0] = gate_local(a, kind, ep, 1, 2, sTmp, sleep=C.psleep); G_[1] = st
        return f
    def emitWQ(c, i0, k):
        S_wQK.sel(a, c, sSel)
        for i in range(i0, i0 + k):
            a(f"s_add_u32 m0, s{s4}, {qkW(c) + 1024*i}\ns_add_u32 s{sTmp}, s{sSel}, {c*64*3840 + i*4*3840}")
            a(f"buffer_load_dwordx4 v6, {R(R_WQ)}, s{sTmp} offen {'nt' if C.nt_qk else ''} lds")
    rA = lambda c: (c % 4) * 16384
    full = lambda c: G_[0].need(0xffff) if c == 1 else None
    reg = lambda f, sz: (lambda c: (f(c), f(c) + sz))
    gu = Phase("gu", 10, 4, 6, lin(S_aGU, s4, rA, "sc1"), lin(S_wGU, s6, guW, "nt" if C.nt_gu else ""), reg(rA, 16384), reg(guW, 24576), pf("gu", 3, 21, C.rot_gu), C.bud_gu, dbg=(C.dbg == 3), after_bar=full)
    dn = Phase("dn", 12, 0, 5, None, lin(S_wDN, s5, dnW, "nt" if C.nt_dn else ""), None, reg(dnW, 20480), None, C.bud_dn, lag=2, early=C.dn_early, dbg=(C.dbg == 4))
    qk = Phase("qk", 10, 4, 4, lin(S_aQK, s4, rA, "sc1"), emitWQ, reg(rA, 16384), reg(qkW, 16384), pf("gu", 5, 17, C.rot_qk), C.bud_qk, early=C.qk_early, dbg=(C.dbg == 2), after_bar=full)
    L = Loader(a)
    L.live["wo"] = (0, 102400)
    pn = L.pre(gu, 0, C.gu_e)
    rest()
    a("s_barrier")
    L.live.pop("wo")
    pn = L.pre(gu, pn, C.gu_e2)
    a("s_barrier"); pn = L.pre(gu, pn, C.gu_p)
    pn = L.run(gu, dn, pn); stamp(a, 22); L.end(gu); pn = L.pre(dn, pn, C.dn_e)
    a("s_barrier"); pn = L.pre(dn, pn, C.dn_p)
    pn = L.run(dn, qk, pn); stamp(a, 14); L.end(dn)
    a(f"s_cmp_lg_u32 s{sL}, 0\ns_cbranch_scc1 {end_label}")
    pn = L.pre(qk, pn, C.qk_e)
    a("s_barrier")
    a(f"s_and_b32 s{sTmp}, s{sR}, 15\ns_cmp_eq_u32 s{sTmp}, 15\ns_cbranch_scc1 {idle_label}")
    pn = L.pre(qk, pn, C.qk_p)
    L.run(qk, None, pn); stamp(a, 19); L.end(qk)

def build():
    a = Asm()
    K = NAME + "_kernel"
    t = T
    a(f".globl {K}\n.p2align 8\n.type {K},@function")
    a.label(K)
    a(f"""
    s_load_dwordx16 s[16:31], s[0:1], 0
    s_load_dwordx4 s[32:35], s[0:1], 64
    s_cmp_ge_u32 s2, 256
    s_cbranch_scc1 L_exit
    s_and_b32 s{sG}, s2, 7
    s_lshr_b32 s{sR}, s2, 3
    v_lshrrev_b32 v1, 6, v0
    v_and_b32 v0, 63, v0
    v_readfirstlane_b32 s{sW}, v1
    s_lshl_b32 s{sWG}, s{sG}, 5
    s_add_u32 s{sWG}, s{sWG}, s{sR}
    s_mov_b32 s{sL}, 0
    s_mov_b32 s{sLO}, 0
    s_mov_b32 s{sEP}, 0
    s_mov_b32 s{sTMO}, 0
    """)
    if C.stamp: a("v_mov_b32 v255, 0\nv_mov_b32 v254, 0\ns_memrealtime s[14:15]")
    stamp(a, 0)
    qkv_ids(a, t)
    a(f"s_cmp_lt_u32 s{sW}, 4\ns_cbranch_scc1 L_q1c\ns_cmp_eq_u32 s{t+1}, 15\ns_cbranch_scc1 L_q1c")
    qkv1_loader(a)
    a("s_branch L_q1done")
    a.label("L_q1c")
    a("s_waitcnt lgkmcnt(0)")
    srd(a, R_X, P_X, ACT)
    srd(a, R_WQ, P_WQKV, D*3*D*2)
    a(f"""
    s_cmp_gt_u32 s{sW}, 3
    s_cbranch_scc1 L_npf
    s_lshl_b32 s{t+8}, s{sWG}, 2
    s_add_u32 s{t+8}, s{t+8}, s{sW}
    s_mul_i32 s{t+8}, s{t+8}, 2560
    v_lshrrev_b32 v1, 5, v0
    v_mul_u32_u24 v1, 1280, v1
    v_and_b32 v2, 31, v0
    v_lshl_add_u32 v1, v2, 4, v1
    v_mov_b64 v[228:229], 0
    v_mov_b64 v[230:231], 0
    buffer_load_dwordx4 v[220:223], v1, {R(R_X)}, s{t+8} offen
    buffer_load_dwordx4 v[224:227], v1, {R(R_X)}, s{t+8} offen offset:512
    s_mov_b32 exec_lo, 0xffff
    s_mov_b32 exec_hi, 0xffff
    buffer_load_dwordx4 v[228:231], v1, {R(R_X)}, s{t+8} offen offset:1024
    s_mov_b64 exec, -1
    """)
    a.label("L_npf")
    other_srds(a)
    a(f"s_cmp_eq_u32 s{t+1}, 15\ns_cbranch_scc1 L_q1idle")
    qkv_compute(a, True, "sc1")
    a("s_branch L_q1done")
    a.label("L_q1idle")
    qkv1_idle(a)
    a.label("L_q1done")
    a(f"s_cmp_eq_u32 s{sMODE}, 0\ns_cbranch_scc1 L_slow")
    tails = []
    for nm, SB in (("fast", ""), ("slow", "sc1")):
        a.label(f"L_{nm}")
        tails.append(phase_attn(a, SB, f"L_{nm}_ld"))
        if nm == "fast": a.label("L_fast_post")
        proj_compute(a, False, SB, None)
        gu_compute(a, SB)
        proj_compute(a, True, SB, "L_end")
        qkv_ids(a, t)
        a(f"s_cmp_eq_u32 s{t+1}, 15\ns_cbranch_scc1 L_{nm}_idle")
        qkv_compute(a, False, SB)
        a(f"s_branch L_{nm}_next")
        a.label(f"L_{nm}_ld")
        loader_chain(a, SB, "L_end", f"L_{nm}_idle")
        a(f"s_branch L_{nm}_next")
        a.label(f"L_{nm}_idle")
        a("s_waitcnt vmcnt(0)\ns_barrier")
        a.label(f"L_{nm}_next")
        a(f"s_mov_b32 s{sL}, 1\ns_mov_b32 s{sLO}, {LSTRIDE}\ns_add_u32 s{sEP}, s{sEP}, 5\ns_mov_b32 s{R_WQ+2}, 0\ns_branch L_{nm}")
        if nm == "fast":
            a.label("L_end")
            a(f"""
            s_xor_b32 s{t}, s{sW}, 7
            s_or_b32 s{t}, s{t}, s2
            s_cmp_lg_u32 s{t}, 0
            s_cbranch_scc1 L_end2
            v_mov_b32 v1, 0
            s_mov_b64 exec, 1
            global_store_dword v1, v1, s[{P_DBG}:{P_DBG+1}] sc1
            s_mov_b64 exec, -1
            """)
            a.label("L_end2")
            if C.stamp:
                a("s_waitcnt vmcnt(0)")
                stamp(a, 16)
                a(f"""
                s_memrealtime s[10:11]
                s_waitcnt lgkmcnt(0)
                v_writelane_b32 v255, s14, 62
                v_writelane_b32 v255, s10, 63
                v_writelane_b32 v255, s{sTMO}, 61
                s_lshl_b32 s10, s2, 3
                s_add_u32 s10, s10, s{sW}
                s_lshl_b32 s10, s10, 8
                s_add_u32 s10, s10, {WS_STAMP}
                v_lshlrev_b32 v1, 2, v0
                v_add_u32 v1, s10, v1
                global_store_dword v1, v255, s[{P_WS}:{P_WS+1}]
                v_add_u32 v1, {1<<20}, v1
                global_store_dword v1, v254, s[{P_WS}:{P_WS+1}]
                """)
                if C.dbgout:
                    a(f"s_xor_b32 s{t}, s2, 8\ns_or_b32 s{t}, s{t}, s{sW}\ns_cmp_lg_u32 s{t}, 0\ns_cbranch_scc1 L_exit\nv_readlane_b32 s{t+1}, v254, 0\nv_mov_b32 v1, 0")
                    for k, i in enumerate([1, 2, 7, 8, 10, 12, 23, 15, 20, 31, 32, 36, 47, 40]):
                        a(f"v_readlane_b32 s{t}, v254, {i}\ns_sub_u32 s{t}, s{t}, s{t+1}\ns_nop 1\nv_mov_b32 v2, s{t}\nglobal_store_dword v1, v2, s[{P_DBG}:{P_DBG+1}] offset:{4+4*k}")
            a.label("L_exit")
            a("s_endpgm")
            a.label("L_fast_end")
    for f in tails: f()
    hdr = open("cdna_kernels/" + NAME + ".s.ref").read().split("; Override")[0]
    hdr += "; @launch grid=(256,1,1) block=(512,1,1) lds=163840\n"
    txt = hdr + '.amdgcn_target "amdgcn-amd-amdhsa--gfx950"\n.text\n' + a.text() + f'''.section .rodata,"a"
.p2align 6
.amdhsa_kernel {K}
  .amdhsa_next_free_vgpr 256
  .amdhsa_next_free_sgpr 102
  .amdhsa_accum_offset 256
  .amdhsa_group_segment_fixed_size 0
  .amdhsa_kernarg_size 80
  .amdhsa_user_sgpr_count 2
  .amdhsa_user_sgpr_kernarg_segment_ptr 1
  .amdhsa_system_sgpr_workgroup_id_x 1
.end_amdhsa_kernel
'''
    for p in check(a.lines): print("HAZARD", p)
    return txt

if __name__ == "__main__":
    out = sys.argv[1] if len(sys.argv) > 1 else "cdna_kernels/" + NAME + ".s"
    for kv in sys.argv[2:]:
        k, _, val = kv.partition("=")
        assert hasattr(C, k), k
        setattr(C, k, int(val) if val else True)
    open(out, "w").write(build())
    print("written", out)
```

```python
import sys, math, struct
sys.path.insert(0, "gen")
from asmlib import *

NAME = "interleave_layers__softmax_full_mha__glu_gated_reglu__prompt"
S, D, F, H, DH = 2048, 640, 1536, 32, 20
ACT = S * D * 2
HEADB = 81920
L_Q = 0
L_K = L_Q + ACT
L_V = L_K + ACT
L_O = L_V + ACT
L_X1 = L_O + ACT
L_X2 = L_X1 + ACT
L_H = L_X2 + ACT
L_ST1 = L_H + S * F * 2
L_ST2 = L_ST1 + S * 64
L_FG = L_ST2 + S * 64
LSTRIDE = L_FG + 32768
WS_ST0 = LSTRIDE + L_ST2
WS_WTO = 2 * LSTRIDE
WS_WTD = WS_WTO + D * D * 2
WS_WTG = WS_WTD + F * D * 2
WS_CSP = WS_WTG + 2 * F * D * 2
WS_CSG = WS_CSP + 10 * 12288
WS_CSQ = WS_CSG + 256 * 768
WS_FL = WS_CSQ + 256 * 512
WS_END = WS_FL + 8192
WS_SIZE = 268435456
WS_STAMP = 200 << 20
QSCALE = (DH ** -0.5) * math.log2(math.e)
def f32(x): return "0x%08x" % struct.unpack("<I", struct.pack("<f", x))[0]

P_X, P_WQKV, P_WO, P_BX, P_WG, P_WU, P_WD, P_OUT, P_DBG, P_WS = 16, 18, 20, 22, 24, 26, 28, 30, 32, 34
sL, sG, sR, sW, sLO, sEP, sTMO, sWG = 3, 4, 5, 6, 7, 8, 9, 13
R_WS, R_X, R_WQ, R_WG, R_WU, R_T = 36, 40, 44, 48, 52, 56
T = 60
WSR = f"s[{R_WS}:{R_WS+3}]"
def R(r): return f"s[{r}:{r+3}]"
SPIN = 200000

class Cfg:
    stamp = False
    dbg = 0
    dbgout = 0
    pi = 0
    pj = 0
    look = 6
    gu_e = 12
    dn_e = 4
    qk_e = 0
    bud_gu = 10
    bud_dn = 5
    bud_qk = 6
    bud_q1 = 10
    dn_a = 3
    psleep = 1
    gran = 3
    flip = 0
    q1prio = 0
    look_q1 = 6
    nocs = 0
    qloc = 1
    stage = 1
    cpf = 1
    l2pf0 = 1
    nt_kv = 0
    nt_wo = 0
    nt_gu = 0
    nt_dn = 0
    nt_qk = 0
    htouch = 0
    warm = 0
    gu_e2 = 0
    gu_p = 0
    dn_p = 20
    qk_p = 4
    wo_sets = 6
    q1pf = 1
    l2pf = 12
    rot = 0
    x_hit = 0
    tlb = 0
    rot_gu = 0
    rot_dn = 0
    rot_qk = 0
    dn_early = 99
    qk_early = 99
C = Cfg()

def stamp(a, i):
    if not C.stamp: return
    a(f"s_memtime s[10:11]\ns_mul_i32 s12, s{sL}, 24\ns_add_u32 m0, s12, {i}\ns_waitcnt lgkmcnt(0)\nv_writelane_b32 v255, s10, m0")
    if C.dbg == 7: a(f"s_memrealtime s[10:11]\ns_waitcnt lgkmcnt(0)\nv_writelane_b32 v254, s10, m0")

def dstamp(a, d, i):
    if C.stamp and C.dbg == d: a(f"s_memtime s[10:11]\ns_lshl_b32 s12, s{sL}, 5\ns_add_u32 m0, s12, {i}\ns_waitcnt lgkmcnt(0)\nv_writelane_b32 v254, s10, m0")

def srd(a, r, ptr, size):
    a(f"s_mov_b32 s{r}, s{ptr}\ns_mov_b32 s{r+1}, s{ptr+1}\ns_mov_b32 s{r+2}, {size}\ns_mov_b32 s{r+3}, 0x20000")

def interleave(a, mf, other):
    n = len(mf); k = 0
    for i, m in enumerate(mf):
        a(m)
        tgt = (len(other) * (i + 1) + n - 1) // n
        while k < tgt:
            a(other[k]); k += 1

def poll(a, vaddr, vtmp, soff, want, sleep=0, pre=False, wide=False):
    lp = a.uid("poll"); ok = a.uid("pollok")
    cnt = T + 22
    a(f"s_mov_b32 s{cnt}, s{sTMO}")
    if pre is not False: a(f"s_waitcnt vmcnt({pre})\ns_branch {lp}c")
    a.label(lp)
    if wide: a(f"buffer_load_dwordx4 v[{vtmp}:{vtmp+3}], v{vaddr}, {WSR}, {soff} offen sc1")
    else: a(f"buffer_load_dword v{vtmp}, v{vaddr}, {WSR}, {soff} offen sc1")
    a(f"s_waitcnt vmcnt(0)")
    if pre is not False: a.label(lp + "c")
    a(f"v_subrev_u32 v{vtmp}, {want}, v{vtmp}")
    if wide:
        for i in range(1, 4): a(f"v_subrev_u32 v{vtmp+i}, {want}, v{vtmp+i}\nv_max_u32 v{vtmp}, v{vtmp}, v{vtmp+i}")
    a(f"v_cmp_lt_u32 vcc, 15, v{vtmp}")
    a(f"s_cbranch_vccz {ok}")
    if sleep: a(f"s_sleep {sleep}")
    a(f"s_add_u32 s{cnt}, s{cnt}, 1\ns_cmp_lt_u32 s{cnt}, {SPIN}\ns_cbranch_scc1 {lp}")
    a(f"s_mov_b32 s{sTMO}, {SPIN}")
    a.label(ok)

def poll_local(a, kind, ep, va=1, vt=2, sleep=0):
    t = T + 20
    if kind == "wo":
        a(f"v_and_b32 v{va}, 31, v0\nv_lshlrev_b32 v{va}, 5, v{va}\ns_lshr_b32 s{t}, s{sR}, 3\ns_lshl_b32 s{t}, s{t}, 2\ns_add_u32 s{t}, s{t}, 16")
    elif kind == "gu":
        a(f"v_lshrrev_b32 v{va}, 2, v0\nv_lshlrev_b32 v{va}, 5, v{va}\nv_and_b32 v{vt}, 3, v0\nv_lshl_add_u32 v{va}, v{vt}, 2, v{va}")
        a(f"s_lshr_b32 s{t}, s{sR}, 4\ns_lshl_b32 s{t}, s{t}, 9")
    elif kind == "down":
        a(f"v_bfe_u32 v{va}, v0, 1, 4\nv_lshlrev_b32 v{va}, 5, v{va}\nv_and_b32 v{vt}, 1, v0\nv_lshl_add_u32 v{va}, v{vt}, 3, v{va}")
        a(f"s_lshr_b32 s{t}, s{sR}, 4\ns_lshl_b32 s{t}, s{t}, 9\ns_bfe_u32 s{t+1}, s{sR}, 0x10003\ns_lshl_b32 s{t+1}, s{t+1}, 2\ns_add_u32 s{t}, s{t}, s{t+1}")
    elif kind == "attn":
        a(f"""
        v_bfe_u32 v{va}, v0, 2, 1
        v_mul_u32_u24 v{va}, 19, v{va}
        s_mul_i32 s{t}, s{sR}, 20
        v_add_u32 v{va}, s{t}, v{va}
        v_lshrrev_b32 v{va}, 7, v{va}
        v_lshrrev_b32 v{vt}, 4, v0
        v_min_u32 v{vt}, 2, v{vt}
        v_mad_u32_u24 v{va}, v{vt}, 5, v{va}
        v_bfe_u32 v{vt}, v0, 3, 1
        v_lshl_add_u32 v{va}, v{vt}, 4, v{va}
        v_lshlrev_b32 v{va}, 5, v{va}
        v_and_b32 v{vt}, 3, v0
        v_lshl_add_u32 v{va}, v{vt}, 2, v{va}
        s_mov_b32 s{t}, 0
        """)
    a(f"s_lshl_b32 s{t+1}, s{sG}, 10\ns_add_u32 s{t}, s{t}, s{t+1}\ns_add_u32 s{t}, s{t}, {WS_FL}\ns_add_u32 s{t+1}, s{sEP}, {ep}")
    poll(a, va, vt, f"s{t}", f"s{t+1}", sleep=sleep)

sNR, sGO, sGW = 92, 94, 95
class Gate:
    def __init__(self, a, va, vt, fold=False, sleep=0):
        self.a, self.va, self.vt, self.fold, self.sleep = a, va, vt, fold, sleep
        self.ok = 0
    def load(self): self.a(f"buffer_load_dword v{self.vt}, v{self.va}, {WSR}, s{sGO} offen sc1")
    def upd(self):
        self.a(f"s_waitcnt vmcnt(0)\nv_subrev_u32 v{self.vt}, s{sGW}, v{self.vt}\nv_cmp_lt_u32 s[{sNR}:{sNR+1}], 15, v{self.vt}")
        if self.fold: self.a(f"s_or_b32 s{sNR}, s{sNR}, s{sNR+1}")
    def reset(self): self.a(f"s_mov_b32 s{sNR}, -1")
    def need(self, mask):
        a = self.a
        mask &= ~self.ok
        if not mask: return
        self.ok |= mask
        lp = a.uid("gt"); cnt = T + 22
        a(f"s_and_b32 s{cnt}, s{sNR}, {hex(mask)}\ns_cbranch_scc0 {lp}k\ns_mov_b32 s{cnt}, s{sTMO}")
        a.label(lp)
        self.load(); self.upd()
        a(f"s_and_b32 s{cnt+1}, s{sNR}, {hex(mask)}\ns_cbranch_scc0 {lp}k")
        if self.sleep: a(f"s_sleep {self.sleep}")
        a(f"s_add_u32 s{cnt}, s{cnt}, 1\ns_cmp_lt_u32 s{cnt}, {SPIN}\ns_cbranch_scc1 {lp}\ns_mov_b32 s{sTMO}, {SPIN}")
        a.label(lp + "k")
def span(lo, hi, w, bits):
    m = 0
    for p in range(lo // w, hi // w + 1): m |= ((1 << bits) - 1) << (bits * p)
    return m
def gate_local(a, kind, ep, va, vt, sRotCt=None, sleep=0):
    t = T + 20
    if kind == "wo":
        a(f"v_and_b32 v{va}, 31, v0\nv_lshlrev_b32 v{va}, 5, v{va}\ns_lshr_b32 s{sGO}, s{sR}, 3\ns_lshl_b32 s{sGO}, s{sGO}, 2\ns_add_u32 s{sGO}, s{sGO}, 16")
    elif kind == "down":
        a(f"v_lshrrev_b32 v{va}, 1, v0\nv_add_u32 v{va}, s{sRotCt}, v{va}\nv_and_b32 v{va}, 15, v{va}\nv_lshlrev_b32 v{va}, 5, v{va}\nv_and_b32 v{vt}, 1, v0\nv_lshl_add_u32 v{va}, v{vt}, 3, v{va}")
        a(f"s_lshr_b32 s{sGO}, s{sR}, 4\ns_lshl_b32 s{sGO}, s{sGO}, 9\ns_bfe_u32 s{t+1}, s{sR}, 0x10003\ns_lshl_b32 s{t+1}, s{t+1}, 2\ns_add_u32 s{sGO}, s{sGO}, s{t+1}")
    elif kind == "gu":
        a(f"v_lshrrev_b32 v{va}, 1, v0\nv_add_u32 v{va}, s{sRotCt}, v{va}\nv_and_b32 v{va}, 7, v{va}\nv_lshlrev_b32 v{va}, 5, v{va}\nv_and_b32 v{vt}, 1, v0\nv_lshl_add_u32 v{va}, v{vt}, 2, v{va}")
        a(f"s_lshr_b32 s{sGO}, s{sR}, 4\ns_lshl_b32 s{sGO}, s{sGO}, 9\ns_bfe_u32 s{t+1}, s{sW}, 0x10001\ns_lshl_b32 s{t+1}, s{t+1}, 8\ns_add_u32 s{sGO}, s{sGO}, s{t+1}")
        a(f"s_and_b32 s{t+1}, s{sW}, 1\ns_lshl_b32 s{t+1}, s{t+1}, 3\ns_add_u32 s{sGO}, s{sGO}, s{t+1}")
    a(f"s_lshl_b32 s{t+1}, s{sG}, 10\ns_add_u32 s{sGO}, s{sGO}, s{t+1}\ns_add_u32 s{sGO}, s{sGO}, {WS_FL}\ns_add_u32 s{sGW}, s{sEP}, {ep}")
    g = Gate(a, va, vt, sleep=sleep); g.reset()
    return g

def flag_setup(a, ep):
    t = T + 20
    a(f"s_lshl_b32 s{t}, s{sWG}, 3\ns_add_u32 s{t}, s{t}, s{sW}\ns_lshl_b32 s{t}, s{t}, 2\ns_add_u32 s{t}, s{t}, {WS_FL}\ns_add_u32 s{t+1}, s{sEP}, {ep}")
    a(f"v_mov_b32 v1, 0\nv_mov_b32 v2, s{t+1}")
def flag_store(a, SB, s=T+20):
    a(f"s_mov_b64 exec, 1\nbuffer_store_dword v2, v1, {WSR}, s{s} offen {SB}\ns_mov_b64 exec, -1")
def publish_local(a, ep, SB):
    flag_setup(a, ep)
    a("s_waitcnt vmcnt(0)")
    flag_store(a, SB)

def row_stats(a, vst, vmean, vrstd):
    for i in range(1, 8):
        a(f"v_add_f32 v{vst}, v{vst}, v{vst+2*i}\nv_add_f32 v{vst+1}, v{vst+1}, v{vst+2*i+1}")
    finish_stats(a, vst, vst + 1, vmean, vrstd)

def finish_stats(a, vs, vq, vmean, vrstd):
    a(f"v_mul_f32 v{vmean}, {f32(1.0/D)}, v{vs}")
    a(f"v_mul_f32 v{vq}, {f32(1.0/D)}, v{vq}")
    a(f"v_fma_f32 v{vq}, -v{vmean}, v{vmean}, v{vq}")
    a(f"v_max_f32 v{vq}, 0, v{vq}")
    a(f"v_add_f32 v{vq}, {f32(1e-5)}, v{vq}")
    a(f"v_rsq_f32 v{vrstd}, v{vq}")
    a("s_nop 0")

def lin_dma(a, vaddr, src_s, src_off, dst_s, dst_off, npieces, bits="", rsrc=WSR, tmp=T+19):
    i = 0
    while i < npieces:
        k = min(4, npieces - i)
        a(f"s_add_u32 m0, s{dst_s}, {dst_off + 1024*i}")
        a(f"s_add_u32 s{tmp}, s{src_s}, {src_off + 1024*i}")
        for j in range(k):
            a(f"buffer_load_dwordx4 v{vaddr}, {rsrc}, s{tmp} offen offset:{1024*j} {bits} lds")
        i += k
    return npieces


def states(x):
    return int(x.split()[1]) + 1 if x.startswith("s_nop") else 1

def gemm_unrolled(a, n, P, nr, reads, mfma, groups, inserts, fix, fix_from, epi, st_end, alt=None):
    seq = []
    def add(ms, fill, pre=()):
        k = 0
        for i, (kk, tl) in enumerate(ms):
            tgt = (len(fill) * (i + 1) + len(ms) - 1) // len(ms)
            seq.append([list(pre) if i == 0 else [], mfma(kk, tl), tl, list(fill[k:tgt])]); k = tgt
    step = lambda kk: [(kk, tl) for tl in range(P)]
    a("s_barrier")
    for x in reads(0, 0) + reads(0, 1): a(x)
    w = f"s_waitcnt lgkmcnt({nr})"
    for c in range(n - 1):
        add(step(0), reads(c, 2), [w])
        add(step(1), reads(c, 3), [w])
        add(step(2), [], [w])
        seq[-2][3] += ["s_waitcnt lgkmcnt(0)"]; seq[-1][3] += ["s_barrier"]
        add(step(3), reads(c + 1, 0) + reads(c + 1, 1))
    nmain = len(seq)
    for i0, ins in inserts.items():
        i = i0; ins = list(ins)
        while ins:
            room = 4 - sum(states(x) for x in seq[i][3]) - len(seq[i+1][0])
            if ins[0].startswith("s_mov_b32 exec") and room < 3: room = 0
            while room > 0 and ins and "s_barrier" not in seq[i][3]:
                x = ins.pop(0); seq[i][3].append(x); room -= states(x)
            i += 1

        end = fix_from if i0 < fix_from else nmain
        assert i <= end
        if any(x.startswith("ds_") for x in inserts[i0]): assert any("s_waitcnt lgkmcnt(0)" in seq[j][3] for j in range(i, end)), (i, end)
    todo = {tl: list(fix(tl)) for tl in range(P)}
    used = lambda g: sum(states(x) for x in seq[g][3]) + len(seq[g+1][0])
    g = fix_from + 2
    while any(todo.values()):
        assert g + 2 < nmain, "no room for fix"
        if used(g) < 5 and "s_barrier" not in seq[g][3]:
            for back in range(P - 2, 1, -1):
                tl = seq[g - back][2]
                if not todo[tl] or g - back < fix_from: continue
                have = sum(used(x) + 1 for x in range(g - back, g)) + sum(states(x) for x in seq[g][3])
                room = sum(max(0, 5 - used(x)) for x in range(g - back, g))
                if have + room < 12: continue
                for x in range(g - back, g):
                    k = min(5 - used(x), 12 - have)
                    if k > 0: seq[x][3].append(f"s_nop {k-1}"); have += k
                while used(g) < 5 and todo[tl]: seq[g][3].append(todo[tl].pop(0))
            if used(g + 1) < 1: seq[g + 1][3].append("s_nop 0")
        g += 1

    c = n - 1
    g0 = groups[0]
    seq[-1][3] += reads(c, 2)
    add([(kk, tl) for kk in (0, 1) for tl in g0], reads(c, 3), [w])
    add([(kk, tl) for kk in (2, 3) for tl in g0], [], ["s_waitcnt lgkmcnt(0)"])
    seq[-len(g0)*2][3].append("s_barrier")
    seq[-1][3].append("s_nop 4")
    def flush():
        for pre, m, tl, post in seq:
            for x in pre: a(x)
            a(m)
            for x in post: a(x)
        del seq[:]
    def tail(epi):
        for gi in range(1, len(groups)):
            ms = [(kk, tl) for kk in range(4) for tl in groups[gi]]
            if gi == 1: add(ms[:1], ["s_nop 4"]); add(ms[1:], epi(gi - 1, False))
            else: add(ms, ["s_nop 0"] + epi(gi - 1, False))
        flush()
        stamp(a, st_end)
        a.nop(3)
        for x in epi(len(groups) - 1, True): a(x)
    if alt:
        cond, epi2, post1, post2 = alt
        l = a.uid("alt")
        seq[-1][3][-1:] = [cond, f"s_cbranch_scc1 {l}", "s_nop 2"]
        flush(); tail(epi); post1()
        a.label(l); a("s_nop 2"); tail(epi2); post2()
    else: tail(epi)

class Src:
    def __init__(self, sB, sB1, sThr, stride): self.__dict__.update(locals())
    def setup(self, a, sRot, n, tmp):
        a(f"s_mul_i32 s{tmp}, s{sRot}, {self.stride}\ns_add_u32 s{self.sB}, s{self.sB}, s{tmp}\ns_sub_u32 s{self.sB1}, s{self.sB}, {n*self.stride}")
    def sel(self, a, c, dst):
        a(f"s_cmp_gt_u32 s{self.sThr}, {c}\ns_cselect_b32 s{dst}, s{self.sB}, s{self.sB1}")

class Phase:
    def __init__(self, name, n, npa, npw, emitA, emitW, regA, regW, pollfn, budget, lag=1, after_bar=None, dbg=False, early=99):
        self.__dict__.update(locals())

class Loader:
    def __init__(self, a):
        self.a = a; self.q = []; self.live = {}; self.waitfn = None; self.total = 0
    def free(self, reg, key):
        return key in self.live or all(reg[1] <= lo or hi <= reg[0] for lo, hi in self.live.values())
    def can(self, ph, kind, c):
        return self.free((ph.regA if kind == "A" else ph.regW)(c), (ph.name, kind, c))
    def issue(self, ph, kind, c, i0, k):
        assert self.can(ph, kind, c)
        self.live[(ph.name, kind, c)] = (ph.regA if kind == "A" else ph.regW)(c)
        (ph.emitA if kind == "A" else ph.emitW)(c, i0, k)
        self.q += [(ph.name, kind, c)] * k; self.total += k
    def release(self, ph, c):
        for k in "AW": self.live.pop((ph.name, k, c), None)
    def wait(self, tags):
        last = -1
        for i, t in enumerate(self.q):
            if t in tags: last = i
        if last >= 0:
            n = len(self.q) - 1 - last
            assert n < 64
            self.q = self.q[last+1:]
            if self.waitfn: self.waitfn(n)
            else: self.a(f"s_waitcnt vmcnt({n})")
    def pre(self, ph, pw, cnt):
        done = 0
        while pw < ph.n * ph.npw and done < cnt and self.can(ph, "W", pw // ph.npw):
            k = min(4, ph.npw - pw % ph.npw, cnt - done)
            self.issue(ph, "W", pw // ph.npw, pw % ph.npw, k); pw += k; done += k
        return pw
    def run(self, ph, nxt, pw=0, after_poll=None, tail=None, waitfn=None):
        a = self.a; n = ph.n
        pa = 0; pn = 0
        if ph.pollfn: ph.pollfn()
        if after_poll: after_poll()
        for c in range(n):
            done = 0
            while True:
                needed = pa < (c + 1) * ph.npa or pw < (c + 1) * ph.npw
                if not needed:
                    beyond = 0
                    for t in reversed(self.q):
                        if t[0] == ph.name and t[2] <= c: break
                        beyond += 1
                    if beyond >= getattr(ph, 'look', C.look) and (done >= ph.budget or c == 0): break
                ca = pa // ph.npa if ph.npa else n; cw = pw // ph.npw
                okA = ca < n and self.can(ph, "A", ca)
                okW = cw < n and self.can(ph, "W", cw)
                if okW and (cw <= ca or not okA):
                    k = ph.npw - pw % ph.npw
                    if not needed: k = min(2, k)
                    self.issue(ph, "W", cw, pw % ph.npw, k); pw += k
                elif okA:
                    k = ph.npa - pa % ph.npa
                    if not needed: k = min(2, k)
                    self.issue(ph, "A", ca, pa % ph.npa, k); pa += k
                elif nxt and ca == n and cw == n and pn < nxt.early and self.can(nxt, "W", pn // nxt.npw):
                    k = min(2, nxt.npw - pn % nxt.npw)
                    self.issue(nxt, "W", pn // nxt.npw, pn % nxt.npw, k); pn += k
                else:
                    assert not needed
                    break
                done += k
            if tail and pa == n * ph.npa and pw == n * ph.npw:
                tail(); tail = None; self.waitfn = waitfn
            if ph.after_bar and c > 0: ph.after_bar(c - 1)
            self.wait({(ph.name, "A", c), (ph.name, "W", c)})
            if ph.dbg and C.stamp: a(f"s_memtime s[10:11]\ns_waitcnt lgkmcnt(0)\nv_writelane_b32 v254, s10, {2*c}")
            a("s_barrier")
            if ph.dbg and C.stamp: a(f"s_memtime s[10:11]\ns_waitcnt lgkmcnt(0)\nv_writelane_b32 v254, s10, {2*c+1}")
            self.release(ph, c - ph.lag)
        if ph.after_bar: ph.after_bar(n - 1)
        if nxt: pn = self.pre(nxt, pn, min(ph.budget, max(0, nxt.early - pn)))
        return pn
    def end(self, ph):
        self.a("s_barrier")
        for c in range(ph.n): self.release(ph, c)

Q1_TAB = 131072 + 26624
Q1_NON = Q1_TAB + 2048
Q1_CS = Q1_NON + 64
WB = 65536
def guW(c): return WB + ((3 - c) % 4) * 24576
def dnW(c): return ((c + 2) % 8) * 20480
def qkW(c): return WB + ((c + 4) % 6) * 16384

PSCR = 131072
PV = 180
def projjob_issue(a, sJob, sScr, t, loads=True):
    a(f"""
    s_and_b32 s{t+2}, s{sJob}, 7
    s_lshr_b32 s{t+3}, s{sJob}, 3
    s_cmp_lt_u32 s{t+3}, 20
    s_cselect_b32 s{R_T}, s{P_WO}, s{P_WD}
    s_cselect_b32 s{R_T+1}, s{P_WO+1}, s{P_WD+1}
    s_mov_b32 s{R_T+2}, {F*D*2}
    s_cselect_b32 s{R_T+2}, {D*D*2}, s{R_T+2}
    s_mov_b32 s{R_T+3}, 0x20000
    s_cselect_b32 s{t+4}, 0, 20
    s_cselect_b32 s{t+5}, 20, 48
    s_mov_b32 s{t+6}, {WS_WTD}
    s_cselect_b32 s{t+6}, {WS_WTO}, s{t+6}
    s_sub_u32 s{t+3}, s{t+3}, s{t+4}
    s_mul_i32 s{t+5}, s{t+5}, s{t+2}
    s_add_u32 s{t+5}, s{t+5}, s{t+3}
    s_mul_i32 s{t+5}, s{t+5}, 5120
    s_add_u32 s{t+6}, s{t+6}, s{t+5}
    s_mul_i32 s{t+3}, s{t+3}, {32*1280}
    s_mul_i32 s{t+2}, s{t+2}, 160
    s_add_u32 s{t+3}, s{t+3}, s{t+2}
    s_movk_i32 s{t+4}, 6554
    """)
    x, y = PV, PV + 1
    for i in range(5 if loads else 0):
        a(f"""
        v_add_u32 v{x}, {64*i}, v0
        v_mul_u32_u24 v{y}, s{t+4}, v{x}
        v_lshrrev_b32 v{y}, 16, v{y}
        v_mad_i32_i24 v{x}, v{y}, -10, v{x}
        v_mul_u32_u24 v{y}, 1280, v{y}
        v_lshl_add_u32 v{x}, v{x}, 4, v{y}
        s_add_u32 m0, s{sScr}, {1024*i}
        s_nop 0
        buffer_load_dwordx4 v{x}, {R(R_T)}, s{t+3} offen lds
        """)
def projjob_finish(a, sScr, t):
    x, y, z, d0 = PV, PV + 1, PV + 2, PV + 4
    a(f"""
    v_lshrrev_b32 v{x}, 4, v0
    v_bfe_u32 v{y}, v0, 2, 2
    v_lshl_add_u32 v{x}, v{x}, 3, v{y}
    v_mul_u32_u24 v{x}, 160, v{x}
    v_add_u32 v{x}, s{sScr}, v{x}
    v_and_b32 v{y}, 3, v0
    v_lshl_add_u32 v{z}, v{y}, 3, v{x}
    v_lshl_add_u32 v{y}, v{y}, 4, v{x}
    """)
    for jn in range(5):
        for j in range(2):
            d = d0 + 4*jn + 2*j
            if jn < 4: a(f"ds_read_b64_tr_b16 v[{d}:{d+1}], v{y} offset:{640*j + 64*(jn>>1) + 8*(jn&1)}")
            else: a(f"ds_read_b64_tr_b16 v[{d}:{d+1}], v{z} offset:{640*j + 128}")
    a(f"s_add_u32 s{t+5}, s{t+6}, 4096\ns_waitcnt lgkmcnt(0)")
    for jn in range(5):
        d = d0 + 4*jn
        a(f"buffer_store_dwordx4 v[{d}:{d+3}], v5, {WSR}, s{t+6 if jn < 4 else t+5} offen offset:{1024*(jn&3)} sc1")

def gujob_issue(a, sJob, t, loads=True):
    x, y = PV, PV + 1
    a(f"""
    s_mul_i32 s{t+2}, s{sJob}, 2731
    s_lshr_b32 s{t+2}, s{t+2}, 16
    s_mul_i32 s{t+3}, s{t+2}, 24
    s_sub_u32 s{t+3}, s{sJob}, s{t+3}
    s_mul_i32 s{t+4}, s{t+2}, {64*F*2}
    s_lshl_b32 s{t+5}, s{t+3}, 7
    s_add_u32 s{t+4}, s{t+4}, s{t+5}
    v_lshrrev_b32 v{x}, 3, v0
    v_mul_u32_u24 v{x}, {F*2}, v{x}
    v_and_b32 v{y}, 7, v0
    v_lshl_add_u32 v{x}, v{y}, 4, v{x}
    """)
    for i in range(8 if loads else 0):
        for u in range(2):
            a(f"s_mov_b32 m0, {PSCR + 8192*u + 1024*i}\ns_add_u32 s{t+5}, s{t+4}, {i*8*F*2}")
            a(f"buffer_load_dwordx4 v{x}, {R(R_WU if u else R_WG)}, s{t+5} offen lds")
def gujob_finish(a, t):
    x, y, z = PV, PV + 1, PV + 2
    ONE, FRG, CS = PV + 4, PV + 8, PV + 40
    a(f"""
    v_bfe_u32 v{x}, v0, 2, 2
    v_lshl_add_u32 v{x}, v14, 3, v{x}
    v_lshlrev_b32 v{x}, 7, v{x}
    v_and_b32 v{y}, 1, v0
    v_lshl_add_u32 v{x}, v{y}, 4, v{x}
    v_bfe_u32 v{y}, v0, 1, 1
    v_lshl_add_u32 v{x}, v{y}, 3, v{x}
    v_bfe_u32 v{y}, v0, 4, 1
    v_lshl_add_u32 v{x}, v{y}, 13, v{x}
    v_add_u32 v{x}, {PSCR}, v{x}
    v_lshlrev_b32 v{z}, 6, v14
    s_mul_i32 s{t+6}, s{t+2}, 12288
    s_lshl_b32 s{t+5}, s{t+3}, 9
    s_add_u32 s{t+6}, s{t+6}, s{t+5}
    s_add_u32 s{t+6}, s{t+6}, {WS_CSP}
    """)
    for i in range(4): a(f"v_mov_b32 v{ONE+i}, 0x3f803f80")
    for tt in range(4):
        f0 = FRG + 16*(tt & 1)
        for kk in range(4):
            for j in range(2):
                d = f0 + 4*kk + 2*j
                a(f"ds_read_b64_tr_b16 v[{d}:{d+1}], v{x} offset:{128*(16*kk+4*j) + 32*tt}")
        a(f"""
        s_lshl_b32 s{t+4}, s{t+3}, 2
        s_add_u32 s{t+4}, s{t+4}, {tt}
        s_mul_i32 s{t+5}, s{t+4}, 43
        s_lshr_b32 s{t+5}, s{t+5}, 8
        s_mul_i32 s{t+5}, s{t+5}, 234
        s_add_u32 s{t+4}, s{t+4}, s{t+5}
        s_mul_i32 s{t+5}, s{t+2}, 24
        s_add_u32 s{t+4}, s{t+4}, s{t+5}
        s_lshl_b32 s{t+4}, s{t+4}, 10
        s_add_u32 s{t+4}, s{t+4}, {WS_WTG}
        s_waitcnt lgkmcnt(0)
        """)
        for kk in range(4):
            a(f"v_mfma_f32_32x32x16_bf16 {v(CS,16)}, {v(f0+4*kk,4)}, {v(ONE,4)}, {v(CS,16) if kk else 0}")
        for kk in range(4):
            d = f0 + 4*kk
            a(f"buffer_store_dwordx4 v[{d}:{d+3}], v5, {WSR}, s{t+4} offen sc1\ns_add_u32 s{t+4}, s{t+4}, 6144")
        a("s_mov_b32 exec_lo, 1\ns_mov_b32 exec_hi, 1\ns_nop 1")
        for q in range(4):
            a(f"buffer_store_dwordx4 v[{CS+4*q}:{CS+4*q+3}], v{z}, {WSR}, s{t+6} offen offset:{128*tt+16*q} sc1")
        a("s_mov_b64 exec, -1")

def prep(a, stage):
    tj = 84; sJob, sScr = tj, tj + 1
    lg = a.uid("pg"); le = a.uid("pe")
    if stage == 0:
        a(f"""
        s_sub_u32 s{sScr}, s{sW}, 1
        s_lshl_b32 s{sJob}, s{sScr}, 8
        s_add_u32 s{sJob}, s{sJob}, s{sWG}
        s_add_u32 s{sJob}, s{sJob}, 160
        s_mul_i32 s{sScr}, s{sScr}, 5120
        s_add_u32 s{sScr}, s{sScr}, {PSCR + 16384}
        """)
    a(f"s_cmp_eq_u32 s{sW}, 0\ns_cbranch_scc1 {lg}\ns_cmp_ge_u32 s{sJob}, 544\ns_cbranch_scc1 {le}")
    projjob_issue(a, sJob, sScr, tj) if stage == 0 else projjob_finish(a, sScr, tj)
    a(f"s_branch {le}")
    a.label(lg)
    a(f"s_cmp_ge_u32 s{sWG}, 240\ns_cbranch_scc1 {le}")
    gujob_issue(a, sWG, tj) if stage == 0 else gujob_finish(a, tj)
    a.label(le)

def xstat_fin(a):
    t = T + 16
    a(f"s_mov_b32 s{t}, 0xffff0000\nv_mov_b64 v[232:233], 0\ns_waitcnt vmcnt(0)")
    for i in range(12):
        a(f"v_lshlrev_b32 v234, 16, v{220+i}\nv_and_b32 v235, s{t}, v{220+i}\nv_add_f32 v232, v232, v234\nv_fmac_f32 v233, v234, v234\nv_add_f32 v232, v232, v235\nv_fmac_f32 v233, v235, v235")
    for mod in ("quad_perm:[1,0,3,2]", "quad_perm:[2,3,0,1]"):
        a(f"s_nop 1\nv_add_f32_dpp v232, v232, v232 {mod} row_mask:0xf bank_mask:0xf\nv_add_f32_dpp v233, v233, v233 {mod} row_mask:0xf bank_mask:0xf")
    a(f"""
    v_bfe_u32 v234, v0, 3, 2
    v_lshlrev_b32 v234, 10, v234
    v_bfe_u32 v235, v0, 2, 1
    v_lshl_add_u32 v234, v235, 3, v234
    v_lshrrev_b32 v235, 5, v0
    v_lshl_add_u32 v234, v235, 4, v234
    s_lshr_b32 s{t}, s{sWG}, 3
    s_lshl_b32 s{t}, s{t}, 12
    s_and_b32 s{t+1}, s{sWG}, 7
    s_lshl_b32 s{t+1}, s{t+1}, 2
    s_add_u32 s{t+1}, s{t+1}, s{sW}
    s_lshl_b32 s{t+1}, s{t+1}, 5
    s_add_u32 s{t}, s{t}, s{t+1}
    s_add_u32 s{t}, s{t}, {WS_ST0}
    s_mov_b32 exec_lo, 0x11111111
    s_mov_b32 exec_hi, 0x11111111
    buffer_store_dwordx2 v[232:233], v234, {WSR}, s{t} offen sc1
    s_mov_b64 exec, -1
    """)

def nonce_put(a):
    t = T + 8
    a(f"""
    s_memrealtime s[{t}:{t+1}]
    v_mov_b32 v1, 0
    s_waitcnt lgkmcnt(0)
    s_or_b32 s{t+2}, s{t}, 0x80000000
    v_mov_b32 v2, s{t+2}
    s_mov_b64 exec, 1
    global_store_dword v1, v2, s[{P_DBG}:{P_DBG+1}] sc1
    s_mov_b64 exec, -1
    """)
def flags_zero(a):
    t = T + 16
    a(f"""
    s_lshl_b32 s{t}, s{sWG}, 5
    s_add_u32 s{t}, s{t}, {WS_FL}
    s_lshl_b32 s{t+1}, s{sWG}, 7
    s_add_u32 s{t+1}, s{t+1}, {L_FG}
    s_add_u32 s{t+2}, s{t+1}, {LSTRIDE}
    v_lshlrev_b32 v236, 2, v0
    v_mov_b32 v237, 0
    s_mov_b64 exec, 0xff
    buffer_store_dword v237, v236, {WSR}, s{t} offen sc1
    s_mov_b64 exec, 0x3ff
    buffer_store_dword v237, v236, {WSR}, s{t+1} offen sc1
    buffer_store_dword v237, v236, {WSR}, s{t+2} offen sc1
    s_mov_b64 exec, -1
    """)

def nonce_issue(a, v2, v3):
    a(f"v_mov_b32 v{v3}, 0\nglobal_load_dword v{v2}, v{v3}, s[{P_DBG}:{P_DBG+1}] sc1")
def nonce_get(a, v1, v2, v3, cnt=0):
    t = T + 14
    lp = a.uid("non"); ok = a.uid("nonok")
    a(f"s_mov_b32 s{t+6}, 0\nv_mov_b32 v{v3}, 0\ns_lshl_b32 s{t+4}, s{sWG}, 7\ns_add_u32 s{t+4}, s{t+4}, {L_FG}\ns_waitcnt vmcnt({cnt})\ns_branch {lp}c")
    a.label(lp)
    a(f"global_load_dword v{v2}, v{v3}, s[{P_DBG}:{P_DBG+1}] sc1\ns_waitcnt vmcnt(0)")
    a.label(lp + "c")
    a(f"""
    v_cmp_eq_u32 vcc, 0, v{v2}
    s_cbranch_vccz {ok}
    s_sleep 4
    s_add_u32 s{t+6}, s{t+6}, 1
    s_cmp_lt_u32 s{t+6}, {SPIN}
    s_cbranch_scc1 {lp}
    s_mov_b32 s{sTMO}, {SPIN}
    """)
    a.label(ok)
    a(f"""
    v_readfirstlane_b32 s{sEP}, v{v2}
    s_getreg_b32 s{t+6}, hwreg(HW_REG_XCC_ID, 0, 4)
    v_mov_b32 v{v1}, {Q1_NON}
    ds_write_b32 v{v1}, v{v2}
    v_add_u32 v{v2}, s{t+6}, v{v2}
    s_mov_b64 exec, 1
    buffer_store_dword v{v2}, v{v3}, {WSR}, s{t+4} offen offset:32 sc1
    s_mov_b64 exec, -1
    s_waitcnt lgkmcnt(0)
    """)

def census(a, va, vt, issue, cnt=0):
    t = T + 20
    a(f"""
    v_and_b32 v{va}, 31, v0
    v_lshlrev_b32 v{va}, 7, v{va}
    s_lshl_b32 s{t}, s{sG}, 12
    s_add_u32 s{t}, s{t}, {L_FG + 32}
    """)
    if issue:
        a(f"buffer_load_dword v{vt}, v{va}, {WSR}, s{t} offen sc1")
        return
    poll(a, va, vt, f"s{t}", f"s{sEP}", sleep=4, pre=cnt)
    a(f"""
    s_getreg_b32 s{t}, hwreg(HW_REG_XCC_ID, 0, 4)
    v_cmp_ne_u32 vcc, s{t}, v{vt}
    s_cmp_eq_u64 vcc, 0
    s_cselect_b32 s{t}, 1, 0
    v_mov_b32 v{va}, {Q1_NON}
    v_mov_b32 v{vt}, s{t}
    ds_write_b32 v{va}, v{vt} offset:4
    s_waitcnt lgkmcnt(0)
    """)

sMODE = 14 - 14 + 98
def read_nonce_mode(a):
    a(f"v_mov_b32 v1, {Q1_NON}\nds_read_b64 v[2:3], v1\ns_waitcnt lgkmcnt(0)\nv_readfirstlane_b32 s{sEP}, v2\nv_readfirstlane_b32 s{sMODE}, v3")

def qkv_ids(a, t):
    a(f"s_lshr_b32 s{t}, s{sWG}, 4\ns_and_b32 s{t+1}, s{sR}, 15")

def qkv_compute(a, first, SB):
    t = T
    sRT, sCT, sTY, sC0 = t, t+1, t+2, t+3
    LQ = 0 if first else LSTRIDE
    sWM, sWN = t+5, t+6
    a(f"""
    s_mul_i32 s{sTY}, s{sCT}, 52
    s_lshr_b32 s{sTY}, s{sTY}, 8
    s_mul_i32 s{sC0}, s{sTY}, 5
    s_sub_u32 s{sC0}, s{sCT}, s{sC0}
    s_lshl_b32 s{sC0}, s{sC0}, 7
    s_and_b32 s{sWM}, s{sW}, 1
    s_lshr_b32 s{sWN}, s{sW}, 1
    v_lshrrev_b32 v14, 5, v0
    v_and_b32 v15, 31, v0
    """)
    ACC = 128; FR = 16; VST = 80; VCS = 96; VCV = 192; ONE = 196; AD = 200; MS = 244
    sCS = t+15
    a(f"s_lshl_b32 s{sCS}, s{sWG}, 9\ns_lshl_b32 s{t+7}, s{sWN}, 8\ns_add_u32 s{sCS}, s{sCS}, s{t+7}\ns_add_u32 s{sCS}, s{sCS}, {WS_CSQ}")
    a(f"v_lshlrev_b32 v{AD+8}, 5, v14\nv_lshlrev_b32 v{AD+9}, 2, v15")
    if first:
        a(f"""
        s_lshl_b32 s{t+7}, s{sWM}, 13
        v_lshlrev_b32 v1, 7, v15
        v_add_u32 v1, s{t+7}, v1
        v_bfe_u32 v8, v0, 1, 3
        v_xor_b32 v8, v8, v14
        """)
        for kk in range(4):
            a(f"v_xor_b32 v9, {2*kk}, v8\nv_lshl_add_u32 v{2+kk}, v9, 4, v1")
    else:
        a(f"s_lshl_b32 s{t+7}, s{sWM}, 13\nv_lshlrev_b32 v2, 4, v0\nv_add_u32 v2, s{t+7}, v2")
    a(f"""
    v_and_b32 v10, 3, v0
    v_and_b32 v11, 1, v0
    v_bfe_u32 v12, v0, 1, 1
    v_lshl_add_u32 v11, v11, 1, v12
    s_cmp_eq_u32 s{sTY}, 2
    s_cselect_b64 vcc, -1, 0
    v_cndmask_b32 v10, v11, v10, vcc
    v_bfe_u32 v8, v0, 2, 2
    v_lshl_add_u32 v9, v14, 3, v8
    v_lshlrev_b32 v9, 8, v9
    v_lshl_add_u32 v9, v10, 3, v9
    v_bfe_u32 v10, v0, 4, 1
    v_lshl_add_u32 v9, v10, 5, v9
    s_lshl_b32 s{t+7}, s{sWN}, 1
    v_xor_b32 v8, s{t+7}, v8
    v_lshl_add_u32 v6, v8, 6, v9
    v_xor_b32 v8, 1, v8
    v_lshl_add_u32 v7, v8, 6, v9
    """)
    nxa = 4 if first else 1
    W0 = 16384 if first else qkW(0)
    if first:
        for i in range(nxa): a(f"v_mov_b32 v{8+i}, v{2+i}")
        for i in (4, 5): a(f"v_add_u32 v{8+i}, {W0}, v{2+i}")
    else:
        for i in range(4): a(f"v_add_u32 v{8+i}, {WB + 49152*(i >> 1)}, v{6 + (i & 1)}")
    VM, VR = (32, 64) if first else (96, 212)
    for i in range(0, 64, 2): a(f"v_mov_b64 v[{ACC+i}:{ACC+i+1}], 0")
    def reads(kk):
        b = FR + 16*kk; r = []
        for tm in range(2):
            if first: r.append(f"ds_read_b128 v[{b+4*tm}:{b+4*tm+3}], v{8+kk} offset:{4096*tm}")
            else: r.append(f"ds_read_b128 v[{b+4*tm}:{b+4*tm+3}], v8 offset:{4096*tm+1024*kk}")
        for tn in range(2):
            for j in range(2):
                d = b + 8 + 4*tn + 2*j
                r.append(f"ds_read_b64_tr_b16 v[{d}:{d+1}], v{12+tn} offset:{4096*kk+1024*j}")
        return r
    def mfmas(kk, vtype, tns=(0, 1)):
        b = FR + 16*kk; m = []
        for tn in tns:
            W = v(b + 8 + 4*tn, 4)
            for tm in range(2):
                c = ACC + 16*(2*tn + tm)
                X = v(b + 4*tm, 4)
                A, B = (X, W) if vtype else (W, X)
                m.append(f"v_mfma_f32_32x32x16_bf16 {v(c,16)}, {A}, {B}, {v(c,16)}")
        return m
    sC, sSa, sSw, sMk, sDst, sD1 = t+9, t+10, t+4, t+11, t+12, 96
    qloc = C.qloc and SB == '' and not first
    vlab = a.uid("qkv_v"); fin = a.uid("qkv_fin"); done = a.uid("qkv_cdone")
    a(f"s_mov_b32 s{sC}, {10 if first else 9}\ns_mov_b32 s{sSa}, 0\ns_mov_b32 s{sSw}, {W0}")
    a(f"s_cmp_eq_u32 s{sTY}, 2\ns_cbranch_scc1 {vlab}")
    def v_tab_reads(roff):
        a(f"v_lshlrev_b32 v1, 4, v14\nv_add_u32 v1, s{t+7}, v1")
        for tm in range(2):
            for q in range(4):
                a(f"ds_read_b128 v[{VM+16*tm+4*q}:{VM+16*tm+4*q+3}], v1 offset:{(32*tm+8*q)*4}")
                a(f"ds_read_b128 v[{VR+16*tm+4*q}:{VR+16*tm+4*q+3}], v1 offset:{roff+(32*tm+8*q)*4}")
    hooks = []
    def mainloop(vtype, epi, alt=None):
        lp = a.uid("qkv_loop"); hk = a.uid("qkv_hk"); hb = a.uid("qkv_hb"); ent = a.uid("qkv_ent")
        if first: xstat_fin(a)
        stamp(a, 1 if first else 18)
        if not first:
            def rd(c, kk):
                b = FR + 16*kk; r = []
                for tm in range(2):
                    r.append(f"ds_read_b128 v[{b+4*tm}:{b+4*tm+3}], v2 offset:{(c % 4)*16384+4096*tm+1024*kk}")
                o = qkW(c) - WB
                for tn in range(2):
                    for j in range(2):
                        d = b + 8 + 4*tn + 2*j
                        r.append(f"ds_read_b64_tr_b16 v[{d}:{d+1}], v{8 + 2*(o // 49152) + tn} offset:{o % 49152 + 4096*kk+1024*j}")
                return r
            mf = lambda kk, tl: mfmas(kk, vtype, (tl >> 1,))[tl & 1]
            a(f"""
            s_lshl_b32 s{sC}, s{sRT}, 1
            s_add_u32 s{sC}, s{sC}, s{sWM}
            s_lshl_b32 s{sC}, s{sC}, 12
            s_add_u32 s{sC}, s{sC}, {L_ST2}
            v_lshlrev_b32 v3, 4, v0
            """)
            ins = {}
            for i in range(4): ins[28 + 2*i] = [f"buffer_load_dwordx4 v[{VST+4*i}:{VST+4*i+3}], v3, {WSR}, s{sC} offen offset:{1024*i} sc1"]
            b = Asm(); b("s_waitcnt vmcnt(0)"); row_stats(b, VST, MS, MS + 1)
            if vtype:
                b(f"v_sub_f32 v{VCV}, 0, v{VCV}\nv_sub_f32 v{VCV+2}, 0, v{VCV+2}")
                a(f"v_lshlrev_b32 v4, 4, v14")
                for tm in range(2):
                    for q in range(16):
                        off = (32*tm + 8*(q >> 2) + (q & 3)) * 4
                        b(f"ds_bpermute_b32 v{VM+16*tm+q}, v4, v{MS} offset:{off}")
                        ins.setdefault(120, []).append(f"ds_bpermute_b32 v{VR+16*tm+q}, v4, v{MS+1} offset:{off}")
                fix = lambda tl: [f"v_fmac_f32 v{ACC+16*tl+i}, v{VCV+2*(tl>>1)}, v{VM+16*(tl&1)+i}" for i in range(16)]
                ff = 92
            else:
                qk_stats_fin(b)
                fix = lambda tl: [f"v_fmac_f32 v{ACC+16*tl+i}, v{MS+4*(tl&1)}, v{VCS+16*(tl>>1)+i}" for i in range(16)]
                ff = 80
            ins[60] = b.lines
            gemm_unrolled(a, 10, 4, 6, rd, mf, [(0, 1), (2, 3)], ins, fix, ff, epi, 19, alt)
            return
        a("s_barrier")
        for x in reads(0) + reads(1): a(x)
        a(f"s_branch {ent}")
        a.label(lp)
        a("s_barrier")
        interleave(a, mfmas(3, vtype), reads(0) + reads(1))
        a.label(ent)
        a("s_waitcnt lgkmcnt(6)")
        interleave(a, mfmas(0, vtype), reads(2))
        a("s_waitcnt lgkmcnt(6)")
        interleave(a, mfmas(1, vtype), reads(3))
        a("s_waitcnt lgkmcnt(6)")
        if first:
            upd = [f"s_add_u32 s{sSa}, s{sSa}, 32768", f"s_and_b32 s{sSa}, s{sSa}, 0x1ffff", f"s_add_u32 s{sSw}, s{sSa}, 16384"]
        else:
            upd = [f"s_add_u32 s{sSa}, s{sSa}, 16384", f"s_and_b32 s{sSa}, s{sSa}, 0xffff",
                   f"s_add_u32 s{sSw}, s{sSw}, 16384", f"s_cmp_eq_u32 s{sSw}, 163840", f"s_cselect_b32 s{sSw}, {WB}, s{sSw}"]
        upd += [f"v_add_u32 v{8+i}, s{sSa}, v{2+i}" for i in range(nxa)] + [f"v_add_u32 v{12+i}, s{sSw}, v{6+i}" for i in range(2)] + [f"s_sub_u32 s{sC}, s{sC}, 1"]
        interleave(a, mfmas(2, vtype), upd)
        a(f"s_waitcnt lgkmcnt(0)")
        a(f"s_bitcmp1_b32 {HMASK1 if first else HMASK2}, s{sC}\ns_cbranch_scc1 {hk}")
        a.label(hb)
        a(f"s_cmp_lg_u32 s{sC}, 0\ns_cbranch_scc1 {lp}")
        hooks.append((hk, hb, vtype))
        b = Asm(); b("s_waitcnt vmcnt(0)"); row_stats(b, VST, MS, MS + 1)
        interleave(a, mfmas(3, vtype), b.lines)
        if vtype:
            a(f"""
            s_lshl_b32 s{t+7}, s{sW}, 9
            s_add_u32 s{t+7}, s{t+7}, {Q1_TAB}
            v_lshlrev_b32 v1, 2, v0
            v_add_u32 v1, s{t+7}, v1
            ds_write_b32 v1, v{MS}
            ds_write_b32 v1, v{MS+1} offset:256
            """)
            v_tab_reads(256)
        else: qk_stats_fin(a)
        a(f"s_lshl_b32 s{t+7}, s{sWN}, 8\ns_add_u32 s{t+7}, s{t+7}, {Q1_CS}\nv_add_u32 v4, s{t+7}, v{AD+9 if vtype else AD+8}")
        a("s_barrier")
        stamp(a, 2)
        for tn in range(2):
            if vtype: a(f"ds_read_b32 v{VCV+2*tn}, v4 offset:{128*tn}")
            else:
                for q in range(4):
                    r = VCS + 16*tn + 4*q
                    a(f"ds_read_b128 v[{r}:{r+3}], v4 offset:{(32*tn+16*(q>>1)+4*(q&1))*4}")
        read_nonce_mode(a)
        if vtype: a(f"v_sub_f32 v{VCV}, 0, v{VCV}\nv_sub_f32 v{VCV+2}, 0, v{VCV+2}")
        for x in epi(0) + epi(1): a(x)
    HMASK1 = (1 << 8) | (1 << 2)
    HMASK2 = (1 << 5) | (1 << 2)
    if not first:
        for tn in range(2):
            for q in range(4):
                r = VCS + 16*tn + 4*q
                a(f"buffer_load_dwordx4 v[{r}:{r+3}], v{AD+8}, {WSR}, s{sCS} offen offset:{(32*tn+16*(q>>1)+4*(q&1))*4} sc1")
    a(f"""
    s_mul_i32 s{sDst}, s{sTY}, {ACT}
    s_lshl_b32 s{t+8}, s{sRT}, 2
    s_lshl_b32 s{t+7}, s{sWM}, 1
    s_add_u32 s{t+8}, s{t+8}, s{t+7}
    s_mul_i32 s{t+8}, s{t+8}, 1280
    s_add_u32 s{sDst}, s{sDst}, s{t+8}
    s_add_u32 s{sDst}, s{sDst}, {LQ}
    s_lshr_b32 s{t+8}, s{sC0}, 3
    s_lshl_b32 s{t+7}, s{sWN}, 3
    s_add_u32 s{t+8}, s{t+8}, s{t+7}
    v_add_u32 v80, s{t+8}, v14
    s_mov_b32 s{t+13}, {HEADB}
    v_mov_b32 v86, 0x7fffffff
    s_mov_b32 s{sMk}, 0
    s_add_u32 s{sD1}, s{sDst}, 1280
    """)
    if qloc:
        a(f"""
        s_lshl_b32 s{t+8}, s{sRT}, 1
        s_add_u32 s{t+8}, s{t+8}, s{sWM}
        s_mul_i32 s{t+8}, s{t+8}, {2*F*64}
        s_add_u32 s{t+8}, s{t+8}, {L_H + 57344}
        s_add_u32 s{t+7}, s{t+8}, {F*64}
        s_cmp_eq_u32 s{sTY}, 0
        s_cselect_b32 s{sDst}, s{t+8}, s{sDst}
        s_cselect_b32 s{sD1}, s{t+7}, s{sD1}
        s_cselect_b32 s{t+13}, 1280, s{t+13}
        """)
    a(f"s_add_u32 s{t+14}, s{sDst}, s{t+13}\ns_add_u32 s{sD1+1}, s{sD1}, s{t+13}")
    for sl in range(4):
        a(f"""
        v_add_u32 v81, {2*sl}, v80
        v_mul_u32_u24 v82, 205, v81
        v_lshrrev_b32 v82, 10, v82
        v_mad_i32_i24 v81, v82, -5, v81
        v_cmp_lt_u32 vcc, 2, v81
        v_lshlrev_b32 v82, 1, v82
        v_add_u32 v83, -3, v81
        v_cndmask_b32 v83, v81, v83, vcc
        v_addc_co_u32 v82, vcc, 0, v82, vcc
        v_lshlrev_b32 v83, 9, v83
        v_lshl_add_u32 v83, v15, 4, v83
        v_lshlrev_b32 v85, 3, v15
        v_add_u32 v85, 1024, v85
        v_cmp_eq_u32 vcc, 2, v81
        v_mul_lo_u32 v84, v82, s{t+13}
        s_cmp_lg_u64 vcc, 0
        v_cndmask_b32 v83, v83, v86, vcc
        v_cndmask_b32 v85, v86, v85, vcc
        s_cselect_b32 s{t+7}, {1 << sl}, 0
        s_or_b32 s{sMk}, s{sMk}, s{t+7}
        v_add_u32 v{AD+sl}, v83, v84
        v_add_u32 v{AD+4+sl}, v85, v84
        """)
    def qk_stats_fin(a):
        a(f"""
        s_cmp_eq_u32 s{sTY}, 0
        s_cselect_b32 s{t+7}, {f32(QSCALE)}, 1.0
        v_mul_f32 v{MS+2}, s{t+7}, v{MS+1}
        v_mul_f32 v{MS+6}, s{t+7}, v{MS+1}
        v_sub_f32 v{MS+4}, 0, v{MS}
        v_sub_f32 v{MS}, 0, v{MS}
        s_nop 1
        v_permlane32_swap_b32 v{MS}, v{MS+4}
        v_permlane32_swap_b32 v{MS+2}, v{MS+6}
        s_nop 1
        """)
    def epi_qk(tn, pk=True, bits='sc1'):
        r = []
        for tm in range(2):
            c = ACC + 16*(2*tn + tm); cs = VCS + 16*tn; m = MS + 4*tm
            for p in range(2):
                if pk:
                    for i in range(8*p, 8*p + 8, 2):
                        if first: r.append(f"v_pk_fma_f32 v[{c+i}:{c+i+1}], v[{cs+i}:{cs+i+1}], v[{m}:{m+1}], v[{c+i}:{c+i+1}] op_sel_hi:[1,0,1]")
                    for i in range(8*p, 8*p + 8, 2):
                        r.append(f"v_pk_mul_f32 v[{c+i}:{c+i+1}], v[{c+i}:{c+i+1}], v[{m+2}:{m+3}] op_sel_hi:[1,0]")
                else:
                    for i in range(8*p, 8*p + 8): r.append(f"v_mul_f32 v{c+i}, v{m+2}, v{c+i}")
                for i in range(4):
                    r.append(f"v_cvt_pk_bf16_f32 v{c+8*p+i}, v{c+8*p+2*i}, v{c+8*p+2*i+1}")
                r.append(f"buffer_store_dwordx4 v[{c+8*p}:{c+8*p+3}], v{AD+2*tn+p}, {WSR}, s{sD1 if tm else sDst} offen {bits}")
        return r
    def bparts(bits):
        for sl in range(4):
            sk = a.uid("qk_b")
            a(f"s_bitcmp0_b32 s{sMk}, {sl}\ns_cbranch_scc1 {sk}")
            for tm in range(2):
                o = ACC + 16*(2*(sl >> 1) + tm) + 8*(sl & 1)
                a(f"buffer_store_dwordx2 v[{o}:{o+1}], v{AD+4+sl}, {WSR}, s{sD1 if tm else sDst} offen {bits}")
                a(f"buffer_store_dwordx2 v[{o+2}:{o+3}], v{AD+4+sl}, {WSR}, s{sD1+1 if tm else t+14} offen {bits}")
            a.label(sk)
        a(f"s_branch {fin}")
    if qloc: mainloop(False, epi_qk, (f"s_cmp_eq_u32 s{sTY}, 0", lambda tn, pk: epi_qk(tn, pk, ""), lambda: bparts("sc1"), lambda: bparts("")))
    else:
        mainloop(False, epi_qk); bparts("sc1")
    a.label(vlab)
    if not first:
        for tn in range(2):
            a(f"buffer_load_dword v{VCV+2*tn}, v{AD+9}, {WSR}, s{sCS} offen offset:{128*tn} sc1")
    a(f"""
    s_lshl_b32 s{t+8}, s{sRT}, 3
    s_lshl_b32 s{t+7}, s{sWM}, 2
    s_add_u32 s{t+8}, s{t+8}, s{t+7}
    s_mul_i32 s{sDst}, s{t+8}, 640
    s_add_u32 s{sDst}, s{sDst}, {L_V + LQ}
    s_lshl_b32 s{t+7}, s{sWN}, 6
    s_add_u32 s{t+8}, s{sC0}, s{t+7}
    v_add_u32 v80, s{t+8}, v15
    v_mul_u32_u24 v81, 320, v14
    s_mov_b32 s{t+13}, {HEADB}
    s_movk_i32 s{t+14}, 3277
    s_movk_i32 s{t+7}, -20
    """)
    for tn in range(2):
        a(f"""
        v_add_u32 v83, {32*tn}, v80
        v_mul_u32_u24 v84, s{t+14}, v83
        v_lshrrev_b32 v84, 16, v84
        v_mad_i32_i24 v83, v84, s{t+7}, v83
        v_lshl_add_u32 v83, v83, 4, v81
        v_mul_lo_u32 v85, v84, s{t+13}
        v_add_u32 v{AD+tn}, v83, v85
        """)
    def epi_v(tn, pk=True):
        r = []
        for tm in range(2):
            c = ACC + 16*(2*tn + tm); cv = VCV + 2*tn
            for p in range(2):
                if pk:
                    for i in range(8*p, 8*p + 8, 2):
                        if first: r.append(f"v_pk_fma_f32 v[{c+i}:{c+i+1}], v[{VM+16*tm+i}:{VM+16*tm+i+1}], v[{cv}:{cv+1}], v[{c+i}:{c+i+1}] op_sel_hi:[1,0,1]")
                    for i in range(8*p, 8*p + 8, 2):
                        r.append(f"v_pk_mul_f32 v[{c+i}:{c+i+1}], v[{c+i}:{c+i+1}], v[{VR+16*tm+i}:{VR+16*tm+i+1}]")
                else:
                    for i in range(8*p, 8*p + 8): r.append(f"v_mul_f32 v{c+i}, v{VR+16*tm+i}, v{c+i}")
                for i in range(4):
                    r.append(f"v_cvt_pk_bf16_f32 v{c+8*p+i}, v{c+8*p+2*i}, v{c+8*p+2*i+1}")
                r.append(f"buffer_store_dwordx4 v[{c+8*p}:{c+8*p+3}], v{AD+tn}, {WSR}, s{sDst} offen offset:{640*(2*tm+p)} sc1")
        return r
    mainloop(True, epi_v)
    a.label(fin)
    stamp(a, 3 if first else 20)
    flag_setup(a, 1 if first else 6)
    a(f"s_lshl_b32 s{t+7}, s{sWG}, 5\ns_add_u32 s{t+7}, s{t+7}, s{sW}\ns_lshl_b32 s{t+7}, s{t+7}, 2\ns_add_u32 s{t+7}, s{t+7}, {L_FG + LQ}")
    a("s_waitcnt vmcnt(0)")
    if first:
        l1 = a.uid("q1f"); l2 = a.uid("q1g")
        a(f"s_cmp_eq_u32 s{sMODE}, 0\ns_cbranch_scc1 {l1}")
        flag_store(a, ""); a(f"s_branch {l2}")
        a.label(l1); flag_store(a, "sc1"); a.label(l2)
    else: flag_store(a, SB)
    flag_store(a, "sc1", t+7)
    a(f"s_branch {done}")
    for hk, hb, vtype in hooks:
        a.label(hk)
        if first:
            nx = a.uid("hk")
            a(f"s_cmp_lg_u32 s{sC}, 2\ns_cbranch_scc1 {nx}")
            a(f"""
            s_lshl_b32 s{t+7}, s{sRT}, 1
            s_add_u32 s{t+7}, s{t+7}, s{sWM}
            s_lshl_b32 s{t+7}, s{t+7}, 12
            s_add_u32 s{t+7}, s{t+7}, {WS_ST0}
            v_lshlrev_b32 v1, 4, v0
            """)
            for i in range(4):
                a(f"buffer_load_dwordx4 v[{VST+4*i}:{VST+4*i+3}], v1, {WSR}, s{t+7} offen offset:{1024*i} sc1")
            a(f"s_branch {hb}")
            a.label(nx)
            a("s_waitcnt vmcnt(0)")
        a(f"s_branch {hb}")
    a.label(done)

def qkvW_setup(a, sWo, sLW, sCT, sTmp, vW):
    a(f"""
    v_lshrrev_b32 v2, 4, v0
    v_mul_u32_u24 v1, 3840, v2
    v_lshlrev_b32 v7, 2, v2
    v_and_b32 v3, 15, v0
    v_xor_b32 v3, v3, v7
    v_lshl_add_u32 v{vW}, v3, 4, v1
    s_mul_i32 s{sWo}, s{sLW}, {16*3840}
    s_lshl_b32 s{sTmp}, s{sCT}, 8
    s_add_u32 s{sWo}, s{sWo}, s{sTmp}
    """)

def qkv1_loader(a):
    t = T
    sRT, sCT = t, t+1
    sLW, sAo, sWo, sM, sTmp, sRot, sThr, sA1, sW1, sSel = t+2, t+3, t+4, t+5, t+6, t+8, t+9, t+10, t+11, t+12
    a(f"s_sub_u32 s{sLW}, s{sW}, 4")
    qkvW_setup(a, sWo, sLW, sCT, sTmp, 6)
    a(f"""
    s_lshl_b32 s{sM}, s{sLW}, 12
    s_lshl_b32 s{sAo}, s{sRT}, 2
    s_add_u32 s{sAo}, s{sAo}, s{sLW}
    s_mul_i32 s{sAo}, s{sAo}, {32*1280}
    v_lshrrev_b32 v1, 3, v0
    v_mul_u32_u24 v1, 1280, v1
    v_and_b32 v3, 7, v0
    v_xor_b32 v3, v3, v2
    v_lshl_add_u32 v4, v3, 4, v1
    v_xor_b32 v3, 4, v3
    v_lshl_add_u32 v5, v3, 4, v1
    s_lshr_b32 s{sRot}, s{sR}, 4
    s_mul_i32 s{sRot}, s{sRot}, 5
    s_add_u32 s{sRot}, s{sRot}, s{sCT}
    s_add_u32 s{sRot}, s{sRot}, s{sG}
    s_mul_i32 s{sTmp}, s{sRot}, 26
    s_lshr_b32 s{sTmp}, s{sTmp}, 8
    s_mul_i32 s{sTmp}, s{sTmp}, 10
    s_sub_u32 s{sRot}, s{sRot}, s{sTmp}
    """)
    if not C.rot: a(f"s_mov_b32 s{sRot}, 0")
    if C.rot == 2: a(f"s_lshr_b32 s{sRot}, s{sR}, 4\ns_mul_i32 s{sRot}, s{sRot}, 5")
    a(f"s_sub_u32 s{sThr}, 10, s{sRot}")
    SA = Src(sAo, sA1, sThr, 128); SW = Src(sWo, sW1, sThr, 64*3840)
    SA.setup(a, sRot, 10, sTmp); SW.setup(a, sRot, 10, sTmp)
    a("s_waitcnt lgkmcnt(0)")
    srd(a, R_X, P_X, ACT)
    srd(a, R_WQ, P_WQKV, D*3*D*2)
    def emitA(c, i0, k):
        SA.sel(a, c, sSel)
        for i in range(i0, i0 + k):
            a(f"s_add_u32 m0, s{sM}, {(c % 4)*32768 + 1024*i}\ns_add_u32 s{sTmp}, s{sSel}, {c*128 + i*8*1280}")
            a(f"buffer_load_dwordx4 v{4 + (i & 1)}, {R(R_X)}, s{sTmp} offen lds")
    def emitW(c, i0, k):
        SW.sel(a, c, sSel)
        for i in range(i0, i0 + k):
            a(f"s_add_u32 m0, s{sM}, {16384 + (c % 4)*32768 + 1024*i}\ns_add_u32 s{sTmp}, s{sSel}, {c*64*3840 + i*4*3840}")
            a(f"buffer_load_dwordx4 v6, {R(R_WQ)}, s{sTmp} offen lds")
    LD = Loader(a); mark = [0]
    def xstats(c):
        if c == 0:
            other_srds(a)
            a(f"""
            v_bfe_u32 v8, v0, 2, 2
            v_lshrrev_b32 v9, 5, v0
            v_lshl_add_u32 v9, v9, 3, v8
            v_lshlrev_b32 v9, 8, v9
            v_and_b32 v10, 3, v0
            v_lshl_add_u32 v9, v10, 3, v9
            v_bfe_u32 v10, v0, 4, 1
            v_lshl_add_u32 v9, v10, 5, v9
            v_xor_b32 v8, s{sLW}, v8
            v_lshl_add_u32 v9, v8, 6, v9
            v_add_u32 v9, 16384, v9
            v_add_u32 v8, 65536, v9
            """)
            for i in range(4): a(f"v_mov_b32 v{12+i}, 0x3f803f80")
        for kk in range(0 if C.nocs else 4):
            for j in range(2):
                a(f"ds_read_b64_tr_b16 v[{16+4*kk+2*j}:{17+4*kk+2*j}], v{9 if (c % 4) < 2 else 8} offset:{(c % 2)*32768 + 4096*kk + 1024*j}")
        a("s_waitcnt lgkmcnt(0)")
        for kk in range(0 if C.nocs else 4):
            a(f"v_mfma_f32_32x32x16_bf16 v[32:47], v[12:15], v[{16+4*kk}:{19+4*kk}], {'v[32:47]' if (c or kk) else 0}")
        n = LD.total - mark[0]
        if c in (0, 4): mark[0] = LD.total
        st = {0: lambda: (flags_zero(a), nonce_issue(a, 81, 82)), 2: lambda: nonce_get(a, 80, 81, 82, n), 4: lambda: census(a, 80, 81, True), 6: lambda: census(a, 80, 81, False, n)}
        if c in st:
            l = a.uid("w7")
            a(f"s_cmp_lg_u32 s{sW}, 7\ns_cbranch_scc1 {l}")
            st[c](); a.label(l)
    if C.q1prio: a("s_setprio 2")
    stamp(a, 1)
    ph = Phase("q1", 10, 4, 4, emitA, emitW, lambda c: ((c % 4)*32768, (c % 4)*32768 + 16384), lambda c: ((c % 4)*32768 + 16384, (c % 4 + 1)*32768),
               None, C.bud_q1, after_bar=xstats, dbg=(C.dbg == 1))
    def waitfn(w):
        l1 = a.uid("pw"); l2 = a.uid("pw"); l3 = a.uid("pw")
        a(f"s_cmp_eq_u32 s{sW}, 4\ns_cbranch_scc1 {l1}\ns_cmp_eq_u32 s{sW}, 7\ns_cbranch_scc1 {l2}\ns_waitcnt vmcnt({w+5})\ns_branch {l3}")
        a.label(l1); a(f"s_waitcnt vmcnt({w+16})\ns_branch {l3}")
        a.label(l2); a(f"s_waitcnt vmcnt({w})")
        a.label(l3)
    ph.look = C.look_q1
    LD.run(ph, None)
    a(f"""
    v_and_b32 v1, 31, v0
    v_lshlrev_b32 v1, 2, v1
    s_lshl_b32 s{sTmp}, s{sLW}, 7
    v_add_u32 v1, s{sTmp}, v1
    v_add_u32 v2, {Q1_CS}, v1
    s_lshl_b32 s{sTmp}, s{sWG}, 9
    s_add_u32 s{sTmp}, s{sTmp}, {WS_CSQ}
    s_setprio 0
    s_nop 3
    ds_write_b32 v2, v32
    buffer_store_dword v32, v1, {WSR}, s{sTmp} offen
    s_waitcnt lgkmcnt(0)
    """)
    stamp(a, 2)
    a("s_barrier")
    read_nonce_mode(a)

def other_srds(a):
    srd(a, R_WS, P_WS, WS_END)
    srd(a, R_WG, P_WG, D*F*2)
    srd(a, R_WU, P_WU, D*F*2)
    srd(a, R_T, P_WS, WS_END)

def qkv1_idle(a):
    l2 = a.uid("idl"); l1 = a.uid("idl"); l3 = a.uid("idl"); l4 = a.uid("idl"); lj = a.uid("idl")
    tj = 84; K = NAME + "_kernel"
    a(f"v_lshlrev_b32 v5, 4, v0\ns_cmp_lt_u32 s{sW}, 4\ns_cbranch_scc1 {l1}")
    a(f"s_xor_b32 s{tj}, s{sW}, 7\ns_or_b32 s{tj}, s{tj}, s{T}\ns_cmp_lg_u32 s{tj}, 0\ns_cbranch_scc1 {l3}")
    nonce_put(a)
    a.label(l3)
    a(f"s_getpc_b64 s[{tj+4}:{tj+5}]")
    a.label("L_pc")
    a(f"""
    s_sub_u32 s{tj+4}, s{tj+4}, L_pc-{K}
    s_subb_u32 s{tj+5}, s{tj+5}, 0
    s_and_b32 s{tj}, s{T}, 1
    s_lshl_b32 s{tj}, s{tj}, 2
    s_add_u32 s{tj}, s{tj}, s{sW}
    s_sub_u32 s{tj}, s{tj}, 4
    s_lshl_b32 s{tj}, s{tj}, 13
    v_lshlrev_b32 v1, 7, v0
    v_add_u32 v2, s{tj}, v1
    global_load_dword v251, v2, s[{tj+4}:{tj+5}]
    """)
    a(f"s_lshl_b32 s{tj}, s{T}, 2\ns_add_u32 s{tj}, s{tj}, s{sW}\ns_add_u32 s{tj+2}, s{tj}, {60 - 4}\ns_lshl_b32 s{tj+2}, s{tj+2}, 13")
    for i in range(4):
        if C.q1pf: a(f"buffer_load_dword v251, v1, {R(R_WQ)}, s{tj+2} offen\ns_add_u32 s{tj+2}, s{tj+2}, {64*8192}")
        if i == 0: a("s_barrier")
    a(f"s_branch {l2}")
    a.label(l1)
    xstat_fin(a)
    a(f"s_cmp_lg_u32 s{sW}, 0\ns_cbranch_scc1 {l4}")
    flags_zero(a)
    a.label(l4)
    a(f"s_waitcnt vmcnt(0)\ns_barrier\ns_cmp_lg_u32 s{sW}, 0\ns_cbranch_scc1 {l2}")
    nonce_issue(a, 81, 82)
    nonce_get(a, 80, 81, 82)
    a.label(l2)
    a(f"s_mul_i32 s{tj}, s{T}, 10\ns_add_u32 s{tj+7}, s{tj}, 10\ns_add_u32 s{tj}, s{tj}, s{sW}\ns_mul_i32 s{tj+1}, s{sW}, 5120")
    a.label(lj)
    projjob_issue(a, tj, tj+1, tj)
    a("s_waitcnt vmcnt(0)")
    projjob_finish(a, tj+1, tj)
    a(f"s_add_u32 s{tj}, s{tj}, 8\ns_cmp_lt_u32 s{tj}, s{tj+7}\ns_cbranch_scc1 {lj}")
    l5 = a.uid("idl")
    a(f"s_waitcnt vmcnt(0)\ns_barrier\ns_cmp_lg_u32 s{sW}, 0\ns_cbranch_scc1 {l5}")
    a(f"""
    s_lshl_b32 s{tj}, s{sWG}, 7
    s_add_u32 s{tj}, s{tj}, {L_FG + 36}
    v_mov_b32 v1, 0
    v_mov_b32 v2, s{sEP}
    """)
    flag_store(a, "sc1", tj)
    census(a, 80, 81, True)
    census(a, 80, 81, False)
    a.label(l5)
    a("s_barrier")
    read_nonce_mode(a)

def phase_attn(a, SB, ld_label):
    fast = SB == ""
    t = T
    CH = 20480
    sQP, sKH, sSrc, sDst, sTmp, sC, sHB = t, t+1, t+2, t+3, t+4, t+5, t+8
    sEX = t+6
    sWs, sWd, sPF = t+9, t+10, t+11
    tj = 84; sJob, sScr = tj, tj + 1
    QAREA = 102400
    QA, QB = 16, 22
    NM, SS, PP, OO, KF, VF = 32, 64, 96, 112, 144, 160
    vK, vK8, vV = 2, 3, 4
    DUM = 176; XF = 177
    KVB = 'nt sc1' if C.nt_kv else 'sc1'
    stamp(a, 4)
    a(f"""
    s_and_b32 s{sQP}, s{sW}, 3
    s_lshr_b32 s{sKH}, s{sW}, 2
    v_lshlrev_b32 v5, 4, v0
    s_mul_i32 s{sHB}, s{sR}, {HEADB}
    s_add_u32 s{sHB}, s{sHB}, s{sLO}
    s_and_b32 s{sTmp}, s{sQP}, 1
    s_mul_i32 s{sSrc}, s{sTmp}, 5120
    s_mul_i32 s{sDst}, s{sTmp}, 10240
    s_lshr_b32 s{sTmp}, s{sQP}, 1
    s_mul_i32 s{sC}, s{sTmp}, 5120
    s_add_u32 s{sDst}, s{sDst}, s{sC}
    s_mul_i32 s{sC}, s{sTmp}, {ACT}
    s_add_u32 s{sSrc}, s{sSrc}, s{sC}
    s_add_u32 s{sSrc}, s{sSrc}, s{sHB}
    s_add_u32 s{sSrc}, s{sSrc}, {L_K}
    """)
    def kv_issue(j):
        GF.need(0x01010101 << j)
        a(f"s_add_u32 s{sTmp}, s{sG}, {j}\ns_and_b32 s{sTmp}, s{sTmp}, 7\ns_mul_i32 s{sTmp}, s{sTmp}, 10240\ns_add_u32 s{sTmp}, s{sTmp}, s{sSrc}")
        return lin_dma(a, 5, sTmp, 0, sDst, j * CH, 5, KVB)
    def init():
        a(f"""
        v_lshrrev_b32 v14, 5, v0
        v_and_b32 v15, 31, v0
        v_lshlrev_b32 v6, 3, v15
        s_mul_i32 s{sTmp}, s{sKH}, 10240
        v_add_u32 v{vK}, s{sTmp}, v5
        v_add_u32 v{vK8}, s{sTmp}, v6
        v_mul_u32_u24 v7, 320, v14
        v_lshl_add_u32 v7, v15, 4, v7
        v_add_u32 v{vV}, s{sTmp}, v7
        s_mov_b32 s{sEX}, 0x000fffff
        s_mov_b32 s{sEX+1}, 0x000fffff
        v_and_b32 v9, 27, v0
        v_cmp_eq_u32 vcc, 24, v9
        v_mov_b32 v8, 0x3f803f80
        s_nop 0
        v_cndmask_b32 v8, 0, v8, vcc
        v_mov_b32 v9, v8
        v_lshlrev_b32 v13, 7, v0
        v_mov_b32 v12, 0
        """)
        for i in range(0, 16, 2): a(f"v_mov_b64 v[{VF+i}:{VF+i+1}], v[8:9]")
        for i in range(0, 32, 2): a(f"v_mov_b64 v[{OO+i}:{OO+i+1}], 0")
        for i in range(0, 8, 2): a(f"v_mov_b64 v[{PP+8+i}:{PP+8+i+1}], 0")
        a(f"v_mov_b64 v[{QA+4}:{QA+5}], 0\nv_mov_b64 v[{QB+4}:{QB+5}], 0")
    init()
    l0 = a.uid("att_old"); l1 = a.uid("att_j")
    a(f"s_cmp_eq_u32 s{sKH}, 0\ns_cbranch_scc1 {l0}")
    poll_local(a, "attn", 1, va=10, vt=11)
    stamp(a, 5)
    a(f"""
    s_mul_i32 s{sC}, s{sQP}, 2560
    s_add_u32 s{sPF}, s{sC}, {QAREA}
    s_mul_i32 s{sTmp}, s{sG}, 10240
    s_add_u32 s{sTmp}, s{sTmp}, s{sC}
    s_add_u32 s{sTmp}, s{sTmp}, s{sHB}
    """)
    a(f"s_add_u32 s{sC}, s{sTmp}, 1280")
    if fast and C.qloc:
        a(f"""
        s_lshl_b32 s{sWs}, s{sG}, 2
        s_add_u32 s{sWs}, s{sWs}, s{sQP}
        s_mul_i32 s{sWs}, s{sWs}, {2*F*64}
        s_mul_i32 s{sWd}, s{sR}, 1280
        s_add_u32 s{sWs}, s{sWs}, s{sWd}
        s_add_u32 s{sWs}, s{sWs}, {L_H + 57344}
        s_add_u32 s{sWd}, s{sWs}, {F*64}
        s_cmp_lg_u32 s{sL}, 0
        s_cselect_b32 s{sTmp}, s{sWs}, s{sTmp}
        s_cselect_b32 s{sC}, s{sWd}, s{sC}
        """)
    for x, sr in ((0, sTmp), (1, sC)):
        a(f"""
        s_add_u32 m0, s{sPF}, {1280*x}
        s_mov_b64 exec, -1
        buffer_load_dwordx4 v5, {WSR}, s{sr} offen {KVB} lds
        s_mov_b64 exec, 0xffff
        buffer_load_dwordx4 v5, {WSR}, s{sr} offen offset:1024 {KVB} lds
        """)
    a("s_mov_b64 exec, -1")
    a(f"s_mul_i32 s{sTmp}, s{sG}, 10240\ns_add_u32 s{sTmp}, s{sTmp}, s{sSrc}")
    lin_dma(a, 5, sTmp, 0, sDst, 0, 2, KVB)
    if C.stage: a(f"s_waitcnt vmcnt({C.stage - 1})")
    lin_dma(a, 5, sTmp, 2048, sDst, 2048, 3, KVB)
    if C.stage != 1: a(f"s_waitcnt vmcnt(3)")
    a(f"s_branch {l1}")
    a.label(l0)
    a(f"""
    s_setprio 1
    v_add_u32 v10, s{sG}, v0
    v_and_b32 v10, 7, v10
    v_bfe_u32 v11, v0, 3, 1
    v_mul_u32_u24 v11, 19, v11
    s_mul_i32 s{sTmp}, s{sR}, 20
    v_add_u32 v11, s{sTmp}, v11
    v_lshrrev_b32 v11, 7, v11
    v_lshl_add_u32 v10, v10, 5, v11
    s_and_b32 s{sTmp}, s{sQP}, 1
    s_lshl_b32 s{sTmp}, s{sTmp}, 4
    s_lshr_b32 s{sC}, s{sQP}, 1
    s_mul_i32 s{sC}, s{sC}, 5
    s_add_u32 s{sTmp}, s{sTmp}, s{sC}
    s_add_u32 s{sTmp}, s{sTmp}, 5
    v_add_u32 v10, s{sTmp}, v10
    v_lshlrev_b32 v12, 7, v10
    v_lshrrev_b32 v11, 4, v0
    v_lshl_add_u32 v12, v11, 2, v12
    s_and_b32 s{sWs}, s{sR}, 7
    s_mul_i32 s{sWs}, s{sWs}, 102400
    s_mul_i32 s{sWd}, s{sW}, 5120
    s_add_u32 s{sWs}, s{sWs}, s{sWd}
    s_add_u32 s{sWs}, s{sWs}, {WS_WTO}
    s_add_u32 s{sGO}, s{sLO}, {L_FG}
    s_add_u32 s{sGW}, s{sEP}, 1
    """)
    def cpf(lo, hi):
        l = a.uid("cpf"); pc = a.uid("pc")
        a(f"s_or_b32 s{sC}, s{sL}, s{sW}\ns_cmp_lg_u32 s{sC}, 0\ns_cbranch_scc1 {l}\ns_getpc_b64 s[{t+12}:{t+13}]")
        a.label(pc)
        a(f"""
        s_sub_u32 s{t+12}, s{t+12}, {pc}-{NAME}_kernel
        s_subb_u32 s{t+13}, s{t+13}, 0
        s_lshl_b32 s{sC}, s{sR}, 11
        s_add_u32 s{sC}, s{sC}, {lo}-{NAME}_kernel
        v_add_u32 v{PV+2}, s{sC}, v13
        v_min_u32 v{PV+2}, {hi}-{NAME}_kernel, v{PV+2}
        s_mov_b64 exec, 0xffff
        global_load_dword v{DUM}, v{PV+2}, s[{t+12}:{t+13}]
        s_mov_b64 exec, -1
        """)
        a.label(l)
    if fast and C.cpf: cpf("L_fast", "L_fast_post")
    a.label(l1)
    GF = Gate(a, 12, PV, fold=True, sleep=2)
    a(f"""
    s_mul_i32 s{sC}, s{sQP}, 2560
    s_add_u32 s{sC}, s{sC}, {QAREA}
    v_add_u32 v10, s{sC}, v5
    v_add_u32 v11, s{sC}, v6
    s_barrier
    ds_read_b128 v[{QA}:{QA+3}], v10
    ds_read_b128 v[{QB}:{QB+3}], v10 offset:1280
    s_mov_b32 exec_hi, 0
    ds_read_b64 v[{QA+4}:{QA+5}], v11 offset:1024
    ds_read_b64 v[{QB+4}:{QB+5}], v11 offset:{1280+1024}
    s_mov_b32 exec_hi, -1
    """)
    stamp(a, 6)
    l1 = a.uid("att_ap")
    a(f"s_cmp_lg_u32 s{sKH}, 0\ns_cbranch_scc1 {l1}")
    GF.load()
    a.label(l1)
    base = [0]
    def rdK(st, c, kt):
        off = c * CH + kt * 1280 - base[0]
        assert 0 <= off and off + 1024 < 65536
        b = KF + 8*st
        return [f"ds_read_b128 v[{b}:{b+3}], v{vK} offset:{off}", f"ds_read_b64 v[{b+4}:{b+5}], v{vK8} offset:{off+1024}"]
    def rdV(st, c, kt):
        off = c * CH + 5120 + kt * 1280 - base[0]
        assert 0 <= off and off + 640 < 65536
        b = VF + 8*st
        return [f"s_mov_b64 exec, s[{sEX}:{sEX+1}]", f"ds_read_b128 v[{b}:{b+3}], v{vV} offset:{off}",
                f"ds_read_b128 v[{b+4}:{b+7}], v{vV} offset:{off+640}", f"s_mov_b64 exec, -1"]
    def qk(x, st, c=None):
        b = KF + 8*st; q = (QA, QB)[x]; sd = SS + 16*x
        cc = v(NM + 16*x, 16) if c is None else c
        return [f"v_mfma_f32_32x32x16_bf16 {v(sd,16)}, {v(b,4)}, {v(q,4)}, {cc}",
                f"v_mfma_f32_32x32x8_bf16 {v(sd,16)}, {v(b+4,2)}, {v(q+4,2)}, {v(sd,16)}"]
    def pv(x, st):
        b = VF + 8*st; p = PP + 8*x; o = OO + 16*x
        return [f"v_mfma_f32_32x32x16_bf16 {v(o,16)}, {v(b,4)}, {v(p,4)}, {v(o,16)}",
                f"v_mfma_f32_32x32x16_bf16 {v(o,16)}, {v(b+4,4)}, {v(p+4,4)}, {v(o,16)}"]
    def sm(x):
        sd = SS + 16*x; p = PP + 8*x; r = []
        for i in range(8):
            r.append(f"v_exp_f32 v{sd+2*i}, v{sd+2*i}")
            r.append(f"v_exp_f32 v{sd+2*i+1}, v{sd+2*i+1}")
            if i > 0: r.append(f"v_cvt_pk_bf16_f32 v{p+i-1}, v{sd+2*i-2}, v{sd+2*i-1}")
        r.append(f"v_cvt_pk_bf16_f32 v{p+7}, v{sd+14}, v{sd+15}")
        return r
    def setm():
        for x in range(2): a(f"v_mov_b32 v{10+x}, v{8+x}")
        a("s_nop 0")
        for x in range(2): a(f"v_permlane32_swap_b32 v{8+x}, v{10+x}")
        a("s_nop 0")
        for x in range(2): a(f"v_max_f32 v{8+x}, v{8+x}, v{10+x}")
        for x in range(2):
            a(f"v_sub_f32 v{NM+16*x}, 0, v{8+x}\nv_sub_f32 v{NM+16*x+1}, 0, v{8+x}")
            for i in range(2, 16, 2): a(f"v_mov_b64 v[{NM+16*x+i}:{NM+16*x+i+1}], v[{NM+16*x}:{NM+16*x+1}]")
    for x in rdK(0, 0, 0): a(x)
    a("s_waitcnt lgkmcnt(0)")
    m = qk(0, 0, "0") + qk(1, 0, "0")
    for i in (0, 1, 2, 3): a(m[i])
    a.nop(10)
    for x in range(2):
        sd = SS + 16*x
        a(f"v_max3_f32 v{8+x}, v{sd}, v{sd+1}, v{sd+2}")
        for i in range(3, 15, 2):
            a(f"v_max3_f32 v{8+x}, v{8+x}, v{sd+i}, v{sd+i+1}")
        a(f"v_max_f32 v{8+x}, v{8+x}, v{sd+15}")
    setm()
    for i in range(16): a(f"v_sub_f32 v{SS+i}, v{SS+i}, v8")
    l1 = a.uid("att_w0"); l2 = a.uid("att_w1")
    sDone = t + 15
    a(f"s_cmp_eq_u32 s{sKH}, 0\ns_cbranch_scc1 {l1}\ns_waitcnt vmcnt(0)\ns_barrier\ns_branch {l2}")
    a.label(l1)
    a("s_barrier")
    GF.upd()
    a(f"s_and_b32 s{sDone}, s{sNR}, 0x02020202\ns_cbranch_scc1 {l2}")
    GF.ok = 0x02020202; kv_issue(1); GF.ok = 0
    a.label(l2)
    stamp(a, 7)
    def l0only(fn):
        l = a.uid("l0")
        a(f"s_cmp_lg_u32 s{sL}, 0\ns_cbranch_scc1 {l}")
        fn(); a.label(l)
    def l2pf(i0, n):
        for i in range(i0, min(i0 + n, (C.l2pf + 3) // 4)):
            l = a.uid("pfs")
            a(f"""
            s_cmp_ge_u32 s{sW}, {C.l2pf - 4*i}
            s_cbranch_scc1 {l}
            s_lshr_b32 s{sPF}, s{sR}, 4
            s_mul_i32 s{sPF}, s{sPF}, {15 if C.rot_gu else 1}
            s_mul_i32 s{sC}, s{sW}, {1 if C.rot_gu else 2}
            s_add_u32 s{sPF}, s{sPF}, s{sC}
            s_add_u32 s{sPF}, s{sPF}, {4*i if C.rot_gu else 8*i}
            s_lshl_b32 s{sPF}, s{sPF}, 13
            s_and_b32 s{sC}, s{sR}, 15
            s_mul_i32 s{sC}, s{sC}, 245760
            s_add_u32 s{sPF}, s{sPF}, s{sC}
            s_add_u32 s{sPF}, s{sPF}, {WS_WTG}
            buffer_load_dword v{DUM}, v13, {WSR}, s{sPF} offen
            """)
            a.label(l)
    def wwo(c): lin_dma(a, 5, sWs, c*20480, sWd, c*20480, 5, 'nt' if C.nt_wo else '')
    def fp():
        a(f"""
        s_lshl_b32 s{sC}, s{sWG}, 5
        s_add_u32 s{sC}, s{sC}, s{sW}
        s_lshl_b32 s{sC}, s{sC}, 2
        s_add_u32 s{sC}, s{sC}, {L_FG + 16}
        v_mov_b32 v10, 0
        v_mov_b32 v11, s{sEP}
        s_mov_b64 exec, 1
        buffer_store_dword v11, v10, {WSR}, s{sC} offen sc1
        s_mov_b64 exec, -1
        """)
    def cs1():
        l = a.uid("cs")
        a(f"s_cmp_lg_u32 s{sW}, 3\ns_cbranch_scc1 {l}\ns_mov_b32 exec_hi, 0xffff")
        a(f"s_and_b32 s{sC}, s{sR}, 15\ns_mul_i32 s{sC}, s{sC}, 768\ns_add_u32 s{sC}, s{sC}, {WS_CSP}")
        for i in range(10):
            a(f"buffer_load_dwordx4 v[{PV+4*i}:{PV+3+4*i}], v5, {WSR}, s{sC} offen\ns_add_u32 s{sC}, s{sC}, 12288")
        a("s_mov_b32 exec_hi, -1")
        a.label(l)
    def cs2():
        l = a.uid("cs")
        a(f"s_cmp_lg_u32 s{sW}, 3\ns_cbranch_scc1 {l}\ns_mov_b32 exec_hi, 0xffff")
        for i in range(1, 10):
            a(f"v_pk_add_f32 v[{PV}:{PV+1}], v[{PV}:{PV+1}], v[{PV+4*i}:{PV+1+4*i}]\nv_pk_add_f32 v[{PV+2}:{PV+3}], v[{PV+2}:{PV+3}], v[{PV+2+4*i}:{PV+3+4*i}]")
        a(f"s_mul_i32 s{sC}, s{sWG}, 768\ns_add_u32 s{sC}, s{sC}, {WS_CSG}")
        a(f"buffer_store_dwordx4 v[{PV}:{PV+3}], v5, {WSR}, s{sC} offen\ns_mov_b32 exec_hi, -1")
        a.label(l)
    def fpw():
        a(f"s_lshl_b32 s{sC}, s{sW}, 13\ns_add_u32 s{sC}, s{sC}, {L_FG + 16}")
        poll(a, 13, PV, f"s{sC}", f"s{sEP}", sleep=2, wide=True)
    def wow():
        a(f"v_and_b32 v{PV+1}, 15, v0\nv_lshlrev_b32 v{PV+1}, 11, v{PV+1}\ns_mov_b32 s{sC}, {L_FG + 15*128 + 36}")
        poll(a, PV + 1, PV, f"s{sC}", f"s{sEP}", sleep=2)
    def l1only(fn):
        l = a.uid("l1")
        a(f"s_cmp_eq_u32 s{sL}, 0\ns_cbranch_scc1 {l}")
        fn(); a.label(l)
    def hook(j):
        if j == 1:
            kv_issue(2); kv_issue(3); a("s_waitcnt vmcnt(10)")
        elif j == 2:
            a("s_waitcnt vmcnt(5)"); l0only(lambda: prep(a, 0)); l1only(lambda: kv_issue(4))
            GF.ok &= ~(0x01010101 << 4)
        else: a("s_waitcnt vmcnt(0)")
        if j == 3: l0only(lambda: (prep(a, 1), kv_issue(4))); l1only(lambda: (kv_issue(5), kv_issue(6)))
        if j == 4:
            GF.ok &= ~(0x01010101 * 0xe0)
            l0only(lambda: (fp(), kv_issue(5), kv_issue(6))); l1only(lambda: kv_issue(7))
        if j == 5:
            GF.ok &= ~(0x01010101 * 0xe0)
            l0only(lambda: (wow(), kv_issue(7)))
            wwo(0); wwo(1); wwo(2); l1only(lambda: l2pf(0, 1))
        if j == 6:
            l0only(fpw)
            wwo(3)
            if fast and C.cpf: cpf("L_fast_tail", "L_fast_end")
            if fast:
                a(f"""
                s_lshl_b32 s{sPF}, s{sWG}, 1
                s_and_b32 s{sC}, s{sW}, 1
                s_add_u32 s{sPF}, s{sPF}, s{sC}
                s_mul_i32 s{sPF}, s{sPF}, 5120
                s_add_u32 s{sC}, s{sLO}, {L_O}
                s_bitcmp1_b32 s{sW}, 1
                s_cselect_b32 s{sC}, {L_X1}, s{sC}
                s_add_u32 s{sPF}, s{sPF}, s{sC}
                s_mov_b32 exec_hi, 0xff
                buffer_load_dword v{DUM}, v13, {WSR}, s{sPF} offen
                s_lshl_b32 s{sTmp}, s{sWG}, 9
                s_add_u32 s{sTmp}, s{sTmp}, s{sLO}
                s_add_u32 s{sTmp}, s{sTmp}, {L_ST1}
                s_mov_b64 exec, 15
                buffer_load_dword v{DUM}, v13, {WSR}, s{sTmp} offen
                s_mov_b64 exec, -1
                """)
            l1only(lambda: l2pf(1, 1))
        if j == 7:
            l0only(cs1)
            wwo(4)
            if fast and C.htouch == 0:
                a(f"""
                s_lshl_b32 s{sPF}, s{sWG}, 2
                s_add_u32 s{sPF}, s{sPF}, s{sQP}
                s_mul_i32 s{sPF}, s{sPF}, 6144
                s_add_u32 s{sPF}, s{sPF}, s{sLO}
                s_add_u32 s{sPF}, s{sPF}, {L_H}
                s_mov_b32 exec_hi, 0xffff
                buffer_load_dword v{DUM}, v13, {WSR}, s{sPF} offen
                s_mov_b32 exec_hi, -1
                """)
            l1only(lambda: l2pf(2, 2)); l0only(lambda: l2pf(0, C.l2pf0))
    outl = []
    for c in range(8):
        for kt in range(4):
            st = kt & 1
            last = c == 7 and kt == 3
            if c == 0 and kt == 1:
                hk = a.uid("att_hk")
                a(f"s_cmp_eq_u32 s{sKH}, 0\ns_cbranch_scc1 {hk}"); a.label(hk + "r")
                def h0():
                    l = a.uid("h0")
                    a(f"s_cmp_eq_u32 s{sDone}, 0\ns_cbranch_scc1 {l}")
                    kv_issue(1)
                    a.label(l)
                outl.append((hk, h0))
            j = c + 1 if (kt == 3 and c < 6) else (7 if (c == 7 and kt == 0) else None)
            if j:
                hk = a.uid("att_hk")
                dstamp(a, 6, 3*j)
                a(f"s_cmp_eq_u32 s{sKH}, 0\ns_cbranch_scc1 {hk}")
                if C.flip and j < 7: a("s_setprio 2")
                a.label(hk + "r")
                dstamp(a, 6, 3*j+1)
                a("s_barrier")
                dstamp(a, 6, 3*j+2)
                outl.append((hk, (lambda jj: (lambda: hook(jj)))(j)))
            if C.flip and 1 <= c < 7 and kt == C.flip - 1: a("s_setprio 1")
            val = sm(0)
            mf = qk(1, st) + pv(1, st ^ 1)
            ex = rdV(st, c, kt)
            if kt == 3 and c in (2, 5):
                base[0] += 3 * CH
                ex += [f"v_add_u32 v{r}, {3*CH}, v{r}" for r in (vK, vK8, vV)]
            if not last: ex += rdK(st ^ 1, c + (kt + 1) // 4, (kt + 1) % 4)
            a(mf[0]); [a(x) for x in ex[:4]]; [a(x) for x in val[0:6]]
            a(mf[2]); [a(x) for x in ex[4:]]; [a(x) for x in val[6:12]]
            a(mf[1]); [a(x) for x in val[12:18]]
            a(mf[3]); [a(x) for x in val[18:]]
            val = sm(1)
            a("s_waitcnt lgkmcnt(0)")
            if not last:
                mf = qk(0, st ^ 1) + pv(0, st)
                a(mf[0]); [a(x) for x in val[0:6]]
                a(mf[2]); [a(x) for x in val[6:12]]
                a(mf[1]); [a(x) for x in val[12:18]]
                a(mf[3]); [a(x) for x in val[18:]]
            else:
                mf = pv(0, st) + pv(1, st)
                a(mf[0]); [a(x) for x in val[0:6]]
                a(mf[1]); [a(x) for x in val[6:16]]
                a(mf[2]); [a(x) for x in val[16:]]
                a("s_nop 1"); a(mf[3])
    if fast: a.label("L_fast_tail")
    stamp(a, 8)
    fb = a.uid("att_fb"); comb = a.uid("att_comb"); done = a.uid("att_done"); yng = a.uid("att_y")
    XB = 102400
    a(f"""
    s_mul_i32 s{sC}, s{sQP}, 7168
    s_add_u32 s{sC}, s{sC}, {XB}
    v_add_u32 v1, s{sC}, v5
    s_lshl_b32 s{sTmp}, s{sQP}, 2
    s_add_u32 s{sTmp}, s{sTmp}, {XB + 28672}
    v_mov_b32 v{XF}, s{sTmp}
    v_lshrrev_b32 v2, 1, v5
    v_add_u32 v2, s{sC}, v2
    s_mul_i32 s{sTmp}, s{sR}, 5
    v_add_u32 v3, s{sTmp}, v14
    v_lshrrev_b32 v4, 1, v3
    v_and_b32 v3, 1, v3
    v_lshlrev_b32 v3, 3, v3
    v_lshl_add_u32 v3, v4, 9, v3
    v_lshl_add_u32 v3, v15, 4, v3
    """)
    a(f"v_mul_f32 v10, {f32(2.0**63)}, v{OO+12}")
    a(f"v_pk_mul_f32 v[12:13], v[{OO}:{OO+1}], 0")
    for i in range(2, 12, 2): a(f"v_pk_fma_f32 v[12:13], v[{OO+i}:{OO+i+1}], 0, v[12:13]")
    a(f"v_mul_f32 v11, {f32(2.0**63)}, v{OO+16+12}")
    a(f"v_pk_add_f32 v[10:11], v[10:11], v[10:11]\nv_pk_fma_f32 v[12:13], v[10:11], 0, v[12:13]")
    for i in range(0, 12, 2): a(f"v_pk_fma_f32 v[12:13], v[{OO+16+i}:{OO+16+i+1}], 0, v[12:13]")
    a(f"v_cmp_u_f32 vcc, v12, v13\ns_cbranch_vccnz {fb}")
    a.label(comb)
    a(f"s_cmp_eq_u32 s{sKH}, 0\ns_cbranch_scc1 {yng}")
    def older():
        a.label(yng)
        a(f"v_mov_b32 v{OO+13}, v8\nv_mov_b32 v{OO+16+13}, v9\nv_mov_b32 v10, s{sEP}")
        for x in range(2):
            for i in range(3):
                a(f"ds_write_b128 v1, v[{OO+16*x+4*i}:{OO+16*x+4*i+3}] offset:{3584*x+1024*i}")
            a(f"ds_write_b64 v2, v[{OO+16*x+12}:{OO+16*x+13}] offset:{3584*x+3072}")
        a(f"ds_write_b32 v{XF}, v10\ns_waitcnt vmcnt(0)")
        l0only(cs2)
        a(f"s_setprio 0")
        stamp(a, 9)
    pl = a.uid("att_x")
    a(f"s_mov_b32 s{t+12}, 0")
    a.label(pl)
    a(f"ds_read_b32 v10, v{XF}")
    for x in range(2):
        a(f"ds_read_b64 v[{76+16*x}:{77+16*x}], v2 offset:{3584*x+3072}")
    for x in range(2):
        for i in range(3):
            a(f"ds_read_b128 v[{64+16*x+4*i}:{64+16*x+4*i+3}], v1 offset:{3584*x+1024*i}")
    a(f"""
    s_lshl_b32 s{sTmp}, s{sG}, 2
    s_add_u32 s{sTmp}, s{sTmp}, s{sQP}
    s_mul_i32 s{sPF}, s{sTmp}, 81920
    s_add_u32 s{sPF}, s{sPF}, s{sLO}
    s_add_u32 s{sPF}, s{sPF}, {L_O}
    s_add_u32 s{sC}, s{sPF}, 40960
    s_waitcnt lgkmcnt(6)
    v_cmp_ne_u32 vcc, s{sEP}, v10
    s_cbranch_vccz {pl}k
    s_add_u32 s{t+12}, s{t+12}, 1
    s_cmp_lt_u32 s{t+12}, {4*SPIN}
    s_cbranch_scc1 {pl}
    """)
    a.label(pl + "k")
    for x in range(2):
        f = 16 + 4*x
        a(f"v_max_f32 v{f+2}, v{8+x}, v{77+16*x}\nv_sub_f32 v{f}, v{8+x}, v{f+2}\nv_sub_f32 v{f+1}, v{77+16*x}, v{f+2}")
    for x in range(2):
        f = 16 + 4*x
        a(f"v_exp_f32 v{f}, v{f}\nv_exp_f32 v{f+1}, v{f+1}")
    for x in range(2):
        f = 16 + 4*x
        a(f"v_mul_f32 v{f+2}, v{f}, v{OO+16*x+12}\nv_fmac_f32 v{f+2}, v{f+1}, v{76+16*x}")
    a("v_rcp_f32 v18, v18\nv_rcp_f32 v22, v22\ns_waitcnt lgkmcnt(0)")
    for x in range(2):
        f = 16 + 4*x; o = OO + 16*x
        a(f"v_mul_f32 v{f}, v{f}, v{f+2}\nv_mul_f32 v{f+2}, v{f+1}, v{f+2}")
        for i in range(0, 12, 2):
            a(f"v_pk_mul_f32 v[{o+i}:{o+i+1}], v[{o+i}:{o+i+1}], v[{f}:{f+1}] op_sel_hi:[1,0]")
        for i in range(0, 12, 2):
            a(f"v_pk_fma_f32 v[{o+i}:{o+i+1}], v[{64+16*x+i}:{65+16*x+i}], v[{f+2}:{f+3}], v[{o+i}:{o+i+1}] op_sel_hi:[1,0,1]")
        for i in range(6):
            a(f"v_cvt_pk_bf16_f32 v{o+i}, v{o+2*i}, v{o+2*i+1}")
        sd = sPF if x == 0 else sC
        a(f"""
        buffer_store_dwordx2 v[{o}:{o+1}], v3, {WSR}, s{sd} offen {SB}
        buffer_store_dwordx2 v[{o+2}:{o+3}], v3, {WSR}, s{sd} offen offset:512 {SB}
        s_mov_b32 exec_hi, 0
        buffer_store_dwordx2 v[{o+4}:{o+5}], v3, {WSR}, s{sd} offen offset:1024 {SB}
        s_mov_b32 exec_hi, -1
        """)
    flag_setup(a, 2)
    a("s_setprio 0\ns_barrier\ns_waitcnt vmcnt(0)")
    flag_store(a, SB)
    stamp(a, 9)
    a(f"s_branch {ld_label}")
    for hk, fn in outl:
        a.label(hk); fn(); a(f"s_branch {hk}r")
    older()
    def fallback():
        a.label(fb)
        sKb, sVb, sI = t+12, t+13, t+14
        def addr():
            a(f"""
            s_lshr_b32 s{sKb}, s{sI}, 2
            s_lshl_b32 s{sKb}, s{sKb}, 1
            s_add_u32 s{sKb}, s{sKb}, s{sKH}
            s_lshl_b32 s{sKb}, s{sKb}, 2
            s_and_b32 s{sVb}, s{sI}, 3
            s_add_u32 s{sKb}, s{sKb}, s{sVb}
            s_mul_i32 s{sKb}, s{sKb}, 1280
            s_add_u32 s{sKb}, s{sKb}, s{sHB}
            s_add_u32 s{sVb}, s{sKb}, {L_V}
            s_add_u32 s{sKb}, s{sKb}, {L_K}
            buffer_load_dwordx4 v[{KF}:{KF+3}], v5, {WSR}, s{sKb} offen sc1
            buffer_load_dwordx2 v[{KF+4}:{KF+5}], v6, {WSR}, s{sKb} offen offset:1024 sc1
            """)
        l1 = a.uid("att_fb1"); l2 = a.uid("att_fb2")
        a(f"s_mov_b32 s{sI}, 0\nv_mov_b32 v8, 0xff800000\nv_mov_b32 v9, 0xff800000")
        a.label(l1)
        addr()
        a("s_waitcnt vmcnt(0)")
        for x in range(2):
            for m in qk(x, 0, "0"): a(m)
        a.nop(12)
        for x in range(2):
            sd = SS + 16*x
            for i in range(0, 16, 2): a(f"v_max3_f32 v{8+x}, v{8+x}, v{sd+i}, v{sd+i+1}")
        a(f"s_add_u32 s{sI}, s{sI}, 1\ns_cmp_lt_u32 s{sI}, 32\ns_cbranch_scc1 {l1}")
        setm()
        for i in range(32): a(f"v_mov_b32 v{OO+i}, 0")
        a(f"s_mov_b32 s{sI}, 0")
        a.label(l2)
        addr()
        a(f"""
        s_mov_b64 exec, s[{sEX}:{sEX+1}]
        buffer_load_dwordx4 v[{VF}:{VF+3}], v7, {WSR}, s{sVb} offen sc1
        buffer_load_dwordx4 v[{VF+4}:{VF+7}], v7, {WSR}, s{sVb} offen offset:640 sc1
        s_mov_b64 exec, -1
        s_waitcnt vmcnt(0)
        """)
        for x in range(2):
            for m in qk(x, 0): a(m)
        a.nop(12)
        for x in range(2):
            for i in sm(x): a(i)
        a("s_nop 1")
        for x in range(2):
            for m in pv(x, 0): a(m)
        a(f"s_add_u32 s{sI}, s{sI}, 1\ns_cmp_lt_u32 s{sI}, 32\ns_cbranch_scc1 {l2}")
        a.nop(12)
        a(f"s_branch {comb}")
    return fallback

def xoff(SB, which):
    if SB == "": return (False, L_X1)
    return (True, L_X1) if which == 1 else (False, L_X2)
def add_x(a, dst, src, SB, which):
    lo, c = xoff(SB, which)
    a(f"s_add_u32 s{dst}, s{src}, {c}")
    if lo: a(f"s_add_u32 s{dst}, s{dst}, s{sLO}")

def proj_compute(a, down, SB, end_label):
    fast = SB == ""
    t = T
    K = F if down else D
    NCH = K // 128
    sRT, sCT = t, t+1
    st0 = 13 if down else 10
    sF, sRM, sST, sA, sA1, sThr, sSel = t+4, t+5, t+12, t+2, t+3, t+9, t+10
    NWS = 3 if down else C.wo_sets
    ACC = 14; RX = 34; AF = 54; WF = 134; RES = (220 if down else 54); VST = 200
    vF, vF2, vR, vR2 = 10, 11, 12, 13
    a(f"""
    s_lshr_b32 s{sRT}, s{sWG}, 3
    s_and_b32 s{sCT}, s{sR}, 7
    v_and_b32 v3, 15, v0
    v_lshrrev_b32 v7, 4, v0
    s_lshl_b32 s{t+6}, s{sRT}, 1
    s_lshr_b32 s{t+7}, s{sW}, 1
    s_add_u32 s{t+6}, s{t+6}, s{t+7}
    s_and_b32 s{t+8}, s{sW}, 1
    s_lshl_b32 s{t+8}, s{t+8}, 8
    s_mul_i32 s{sA}, s{t+6}, {K*64}
    s_add_u32 s{sA}, s{sA}, s{t+8}
    s_add_u32 s{sA}, s{sA}, s{sLO}
    s_add_u32 s{sA}, s{sA}, {L_H if down else L_O}
    s_mul_i32 s{sF}, s{t+6}, 40960
    s_mul_i32 s{t+7}, s{sCT}, 5120
    s_add_u32 s{sF}, s{sF}, s{t+7}
    s_add_u32 s{sF}, s{sF}, s{t+8}
    s_lshl_b32 s{sST}, s{sW}, 8
    s_lshl_b32 s{t+7}, s{sRT}, 12
    s_add_u32 s{sST}, s{sST}, s{t+7}
    s_add_u32 s{sST}, s{sST}, s{sLO}
    s_lshl_b32 s{sRM}, s{sRT}, 2
    s_add_u32 s{sRM}, s{sRM}, s{sW}
    s_mul_i32 s{sRM}, s{sRM}, {16*1280}
    s_mul_i32 s{t+7}, s{sCT}, 160
    s_add_u32 s{sRM}, s{sRM}, s{t+7}
    v_lshlrev_b32 v1, 4, v3
    v_lshl_add_u32 v{vF}, v7, 9, v1
    v_lshrrev_b32 v2, 5, v0
    v_lshl_add_u32 v1, v2, 9, v1
    v_and_b32 v2, 1, v7
    v_lshl_add_u32 v{vF2}, v2, 3, v1
    v_add_u32 v{vF2}, 4096, v{vF2}
    v_mul_u32_u24 v1, 1280, v3
    v_lshl_add_u32 v{vR}, v7, 4, v1
    v_lshl_add_u32 v{vR2}, v7, 3, v1
    v_add_u32 v9, 4096, v{vF}
    """)
    SA = Src(sA, sA1, sThr, 8192)
    if down:
        a(f"s_and_b32 s{t+7}, s{sRT}, 3\ns_mul_i32 s{t+7}, s{t+7}, {C.rot_dn}\ns_sub_u32 s{sThr}, 12, s{t+7}")
        SA.setup(a, t+7, 12, t+8)
    def io(store, rowmajor, rsrc, soff, reg, bits):
        op = "store" if store else "load"
        v16, v8 = (vR, vR2) if rowmajor else (vF, vF2)
        o1, o2 = (64, 128) if rowmajor else (2048, 0)
        return [f"buffer_{op}_dwordx4 v[{reg}:{reg+3}], v{v16}, {rsrc}, {soff} offen {bits}",
                f"buffer_{op}_dwordx4 v[{reg+4}:{reg+7}], v{v16}, {rsrc}, {soff} offen offset:{o1} {bits}",
                f"buffer_{op}_dwordx2 v[{reg+8}:{reg+9}], v{v8}, {rsrc}, {soff} offen offset:{o2} {bits}"]
    if down:
        add_x(a, t+7, sF, SB, 1)
        for x in io(False, False, WSR, f"s{t+7}", RES, "sc1"): a(x)
        a(f"s_add_u32 s{t+7}, s{sST}, {L_ST1}\nv_lshlrev_b32 v1, 4, v3")
        for i in range(4):
            a(f"buffer_load_dwordx4 v[{VST+4*i}:{VST+4*i+3}], v1, {WSR}, s{t+7} offen offset:{1024*i} sc1")
        if fast:
            a(f"s_lshl_b32 s{t+8}, s{sWG}, 9\ns_add_u32 s{t+8}, s{t+8}, {L_ST2}\nv_lshlrev_b32 v1, 7, v0\ns_mov_b64 exec, 15")
            a(f"buffer_load_dword v8, v1, {WSR}, s{t+8} offen\ns_mov_b64 exec, -1")
    else:
        l1 = a.uid("prj_r1"); l2 = a.uid("prj_r2")
        a(f"s_cmp_lg_u32 s{sL}, 0\ns_cbranch_scc1 {l1}")
        for x in io(False, True, R(R_X), f"s{sRM}", RES, ""): a(x)
        a(f"s_branch {l2}")
        a.label(l1)
        add_x(a, t+7, sF, SB, 2)
        for x in io(False, False, WSR, f"s{t+7}", RES, "sc1"): a(x)
        a.label(l2)
    a(f"v_lshlrev_b32 v4, 4, v0\nv_add_u32 v5, 61440, v4\nv_add_u32 v6, 122880, v4\ns_mov_b32 s{t+8}, 0xffff0000")
    def wadr(c):
        o = dnW(c) if down else c * 20480
        return 4 + o // 61440, o % 61440
    def reads(c, u):
        b = WF + 20*((4*c + u) % NWS); r, o = wadr(c)
        return [f"ds_read_b128 v[{b+4*jn}:{b+4*jn+3}], v{r} offset:{o + 5120*u + 1024*jn}" for jn in range(5)]
    NAS = 5
    def aload(c):
        r = []
        if down: r += [f"s_cmp_gt_u32 s{sThr}, {c}", f"s_cselect_b32 s{sSel}, s{sA}, s{sA1}", f"s_add_u32 s{sSel}, s{sSel}, {c*8192}"]
        else: r += [f"s_add_u32 s{sSel}, s{sA}, {c*8192}"]
        for u in range(4):
            d = AF + 16*(c % NAS) + 4*u
            r.append(f"buffer_load_dwordx4 v[{d}:{d+3}], v{vF if u < 2 else 9}, {WSR}, s{sSel} offen offset:{2048*(u & 1)} sc1")
        return r
    def mfmas(c, u, zero=False):
        b = WF + 20*((4*c + u) % NWS); x = AF + 16*(c % NAS) + 4*u
        return [f"v_mfma_f32_16x16x32_bf16 {v(ACC+4*jn,4)}, {v(b+4*jn,4)}, {v(x,4)}, {0 if zero else v(ACC+4*jn,4)}" for jn in range(5)]
    D_ = NWS - 1
    rd = lambda st_: reads(st_ // 4, st_ % 4) if st_ < 4*NCH else []
    if down: a(f"s_and_b32 s{t+7}, s{sRT}, 3\ns_mul_i32 s{t+7}, s{t+7}, {4 if C.rot_dn else 0}")
    G_ = gate_local(a, "down" if down else "wo", 4 if down else 2, 1, 2, t+7)
    def setup2():
        if not down: a("s_waitcnt vmcnt(0)")
        for i in range(10):
            a(f"v_lshlrev_b32 v{RX+2*i}, 16, v{RES+i}\nv_and_b32 v{RX+1+2*i}, s{t+8}, v{RES+i}")
        if down:
            row_stats(a, VST, VST + 2, VST + 3)
            a(f"v_mul_f32 v{VST+2}, v{VST+3}, v{VST+3}")
        a("s_barrier")
        for st_ in range(D_):
            for x in rd(st_): a(x)
    if not down: setup2()
    def al(c):
        G_.need(span(128*c, 128*c + 127, 96, 2) if down else span(128*c, 128*c + 127, 20, 1))
        if c == 0: stamp(a, st0)
        for x in aload(c): a(x)
    NPRE = C.dn_a if down else 5
    for c in range(NPRE): al(c)
    if down: setup2()
    issued = 4 * NPRE
    for c in range(NCH):
        for u in range(4):
            step = 4*c + u
            left = min(D_ - 1, 4*NCH - 1 - step)
            a(f"s_waitcnt vmcnt({issued - step - 1}) lgkmcnt({min(15, 5*left)})")
            if step == 4*NCH - 1 or (down and u == 2 and c + 1 < NCH): a("s_barrier")
            interleave(a, mfmas(c, u, step == 0), rd(step + D_))
            if u == 0 and c + NPRE < NCH:
                assert NPRE < NAS
                al(c + NPRE); issued += 4
    stamp(a, st0 + 1)
    add_x(a, t+7, sF, SB, 2 if down else 1)
    flag_setup(a, 5 if down else 3)
    for i in range(0, 20, 2):
        c = ACC + i
        if down: a(f"v_pk_fma_f32 v[{c}:{c+1}], v[{c}:{c+1}], v[{VST+2}:{VST+3}], v[{RX+i}:{RX+i+1}] op_sel_hi:[1,0,1]")
        else: a(f"v_pk_add_f32 v[{c}:{c+1}], v[{c}:{c+1}], v[{RX+i}:{RX+i+1}]")
        a(f"v_cvt_pk_bf16_f32 v{60+i//2}, v{c}, v{c+1}")
    if down:
        l1 = a.uid("prj_o1")
        a(f"s_cmp_eq_u32 s{sL}, 0\ns_cbranch_scc1 {l1}")
        srd(a, R_T, P_OUT, ACT)
        for x in io(True, True, R(R_T), f"s{sRM}", 60, ""): a(x)
        a(f"s_branch {end_label}")
        a.label(l1)
    for x in io(True, False, WSR, f"s{t+7}", 60, SB): a(x)
    a(f"v_pk_add_f32 v[72:73], v[{ACC}:{ACC+1}], v[{ACC+2}:{ACC+3}]\nv_pk_mul_f32 v[74:75], v[{ACC}:{ACC+1}], v[{ACC}:{ACC+1}]")
    a(f"v_pk_fma_f32 v[74:75], v[{ACC+2}:{ACC+3}], v[{ACC+2}:{ACC+3}], v[74:75]")
    for i in range(4, 20, 2):
        a(f"v_pk_add_f32 v[72:73], v[72:73], v[{ACC+i}:{ACC+i+1}]\nv_pk_fma_f32 v[74:75], v[{ACC+i}:{ACC+i+1}], v[{ACC+i}:{ACC+i+1}], v[74:75]")
    a(f"""
    v_add_f32 v72, v72, v73
    v_add_f32 v73, v74, v75
    s_lshr_b32 s{t+7}, s{sCT}, 1
    s_lshl_b32 s{t+7}, s{t+7}, 10
    v_permlane32_swap_b32 v72, v73
    s_and_b32 s{t+8}, s{sCT}, 1
    s_lshl_b32 s{t+8}, s{t+8}, 3
    v_add_f32 v72, v72, v73
    v_mov_b32 v73, v72
    s_add_u32 s{t+7}, s{t+7}, s{t+8}
    s_add_u32 s{t+7}, s{t+7}, s{sST}
    v_permlane16_swap_b32 v72, v73
    s_add_u32 s{t+7}, s{t+7}, {L_ST2 if down else L_ST1}
    v_lshrrev_b32 v8, 5, v0
    v_lshlrev_b32 v8, 2, v8
    v_lshl_add_u32 v8, v3, 4, v8
    v_add_f32 v72, v72, v73
    buffer_store_dword v72, v8, {WSR}, s{t+7} offen {SB}
    s_waitcnt vmcnt(0)
    """)
    flag_store(a, SB)
    a("s_barrier")
    stamp(a, st0 + 2)

def gu_compute(a, SB):
    t = T
    sRT, sCT, sWM, sWN, sTB, sF0 = t, t+1, t+2, t+3, t+4, t+6
    FR = 14; ACC = 94; VCS = 190; VST = 238; MS = 8
    a(f"""
    s_lshr_b32 s{sRT}, s{sWG}, 4
    s_and_b32 s{sCT}, s{sR}, 15
    s_and_b32 s{sWM}, s{sW}, 1
    s_lshr_b32 s{sWN}, s{sW}, 1
    s_lshl_b32 s{sTB}, s{sRT}, 1
    s_add_u32 s{sTB}, s{sTB}, s{sWM}
    s_mul_i32 s{sF0}, s{sCT}, 96
    s_mul_i32 s{t+5}, s{sWN}, 48
    s_add_u32 s{sF0}, s{sF0}, s{t+5}
    s_mul_i32 s{t+5}, s{sWG}, 768
    s_mul_i32 s{t+7}, s{sWN}, 384
    s_add_u32 s{t+5}, s{t+5}, s{t+7}
    s_add_u32 s{t+5}, s{t+5}, {WS_CSG}
    v_lshrrev_b32 v12, 5, v0
    v_lshlrev_b32 v1, 6, v12
    """)
    for jn in range(3):
        for q in range(4):
            r = VCS + 16*jn + 4*q
            a(f"buffer_load_dwordx4 v[{r}:{r+3}], v1, {WSR}, s{t+5} offen offset:{128*jn+16*q} sc1")
    a(f"""
    s_lshl_b32 s{t+5}, s{sWM}, 13
    v_lshlrev_b32 v11, 4, v0
    v_add_u32 v3, s{t+5}, v11
    s_mul_i32 s{t+5}, s{sWN}, 3072
    s_add_u32 s{t+5}, s{t+5}, {WB}
    v_add_u32 v4, s{t+5}, v11
    v_add_u32 v5, 49152, v4
    s_mul_i32 s{t+11}, s{sTB}, {2*F*64}
    s_lshl_b32 s{t+7}, s{sF0}, 6
    s_add_u32 s{t+11}, s{t+11}, s{t+7}
    s_add_u32 s{t+11}, s{t+11}, s{sLO}
    s_add_u32 s{t+11}, s{t+11}, {L_H}
    s_add_u32 s{t+12}, s{t+11}, {F*64}
    """)
    flag_setup(a, 4)
    for i in range(0, 96, 2): a(f"v_mov_b64 v[{ACC+i}:{ACC+i+1}], 0")
    def reads(c, kk):
        b = FR + 20*kk; r = []
        for tm in range(2):
            r.append(f"ds_read_b128 v[{b+4*tm}:{b+4*tm+3}], v3 offset:{(c % 4)*16384+4096*tm+1024*kk}")
        o = guW(c) - WB
        for jn in range(3):
            d = b + 8 + 4*jn
            r.append(f"ds_read_b128 v[{d}:{d+3}], v{4 + o // 49152} offset:{o % 49152 + 6144*kk+1024*jn}")
        return r
    def mfma(kk, tl):
        b = FR + 20*kk; c = ACC + 16*tl
        return f"v_mfma_f32_32x32x16_bf16 {v(c,16)}, {v(b+8+4*(tl>>1),4)}, {v(b+4*(tl&1),4)}, {v(c,16)}"
    def epi(jn, pk):
        r = []
        for tm in range(2):
            c = ACC + 16*(2*jn + tm)
            for i in range(8): r.append(f"v_max_f32 v{c+i}, 0, v{c+i}")
            if pk:
                for i in range(0, 8, 2): r.append(f"v_pk_mul_f32 v[{c+i}:{c+i+1}], v[{c+i}:{c+i+1}], v[{c+8+i}:{c+9+i}]")
            else:
                for i in range(8): r.append(f"v_mul_f32 v{c+i}, v{c+i}, v{c+8+i}")
            for i in range(4): r.append(f"v_cvt_pk_bf16_f32 v{c+i}, v{c+2*i}, v{c+2*i+1}")
            r.append(f"buffer_store_dwordx4 v[{c}:{c+3}], v11, {WSR}, s{t+11+tm} offen offset:{1024*jn} {SB}")
        return r
    a(f"s_lshl_b32 s{t+5}, s{sTB}, 12\ns_add_u32 s{t+5}, s{t+5}, s{sLO}\ns_add_u32 s{t+5}, s{t+5}, {L_ST1}")
    ins = {}
    for i in range(4): ins[48 + 3*i] = [f"buffer_load_dwordx4 v[{VST+4*i}:{VST+4*i+3}], v11, {WSR}, s{t+5} offen offset:{1024*i} sc1"]
    if SB == "" and C.htouch > 0:
        a(f"""
        v_mul_u32_u24 v6, 171, v0
        v_lshrrev_b32 v6, 12, v6
        v_mul_u32_u24 v7, {F*64 - 24*128}, v6
        v_lshl_add_u32 v6, v0, 7, v7
        """)
        ins[C.htouch] = ["s_mov_b32 exec_hi, 0xffff", f"buffer_load_dword v7, v6, {WSR}, s{t+11} offen", "s_mov_b32 exec_hi, -1"]
    ins[100] = ["s_waitcnt vmcnt(0)"] + [f"v_add_f32 v{VST}, v{VST}, v{VST+2*i}" for i in range(1, 8)] + \
         [f"v_mul_f32 v{MS}, {f32(-1.0/D)}, v{VST}", f"v_mul_f32 v{MS+1}, {f32(-1.0/D)}, v{VST}", "s_nop 1", f"v_permlane32_swap_b32 v{MS}, v{MS+1}"]
    fix = lambda tl: [f"v_fmac_f32 v{ACC+16*tl+i}, v{MS+(tl&1)}, v{VCS+16*(tl>>1)+i}" for i in range(16)]
    gemm_unrolled(a, 10, 6, 5, reads, mfma, [(0, 1), (2, 3), (4, 5)], ins, fix, 110, epi, 22)
    a("s_waitcnt vmcnt(0)")
    flag_store(a, SB)
    a("s_barrier")
    stamp(a, 23)

def loader_chain(a, SB, end_label, idle_label):
    t = T
    sLW, s4, s5, s6, aGU, aGU1, wGU, wGU1, wDN, wDN1, aQK, aQK1, wQK, wQK1, th10, th12, sTmp, sSel, thq = range(t, t + 19)
    sRot = sSel
    a(f"""
    s_sub_u32 s{sLW}, s{sW}, 4
    v_lshlrev_b32 v8, 4, v0
    s_mul_i32 s{s6}, s{sLW}, 6144
    s_and_b32 s{wGU}, s{sR}, 15
    s_mul_i32 s{wGU}, s{wGU}, 245760
    s_add_u32 s{wGU}, s{wGU}, s{s6}
    s_add_u32 s{wGU}, s{wGU}, {WS_WTG}
    s_lshr_b32 s{sRot}, s{sR}, 4
    s_mul_i32 s{sRot}, s{sRot}, {C.rot_gu}
    s_sub_u32 s{th10}, 10, s{sRot}
    """)
    S_aGU = Src(aGU, aGU1, th10, 4096); S_wGU = Src(wGU, wGU1, th10, 24576); S_wDN = Src(wDN, wDN1, th12, 20480)
    S_aQK = Src(aQK, aQK1, thq, 4096); S_wQK = Src(wQK, wQK1, thq, 64*3840)
    S_wGU.setup(a, sRot, 10, sTmp)
    def rest():
        a(f"""
        s_lshl_b32 s{s4}, s{sLW}, 12
        s_mul_i32 s{s5}, s{sLW}, 5120
        s_lshr_b32 s{aQK}, s{sWG}, 4
        s_lshl_b32 s{aQK}, s{aQK}, 2
        s_add_u32 s{aQK}, s{aQK}, s{sLW}
        s_mul_i32 s{aQK}, s{aQK}, 40960
        """)
        add_x(a, aGU, aQK, SB, 1)
        add_x(a, aQK, aQK, SB, 2)
        a(f"s_and_b32 s{wDN}, s{sR}, 15")
        qkvW_setup(a, wQK, sLW, wDN, sTmp, 6)
        a(f"s_sub_u32 s{sRot}, 10, s{th10}")
        S_aGU.setup(a, sRot, 10, sTmp)
        a(f"s_lshr_b32 s{sRot}, s{sR}, 4\ns_mul_i32 s{sRot}, s{sRot}, {C.rot_qk}\ns_sub_u32 s{thq}, 10, s{sRot}")
        for S_ in (S_aQK, S_wQK): S_.setup(a, sRot, 10, sTmp)
        a(f"""
        s_and_b32 s{wDN}, s{sR}, 7
        s_mul_i32 s{wDN}, s{wDN}, 245760
        s_add_u32 s{wDN}, s{wDN}, s{s5}
        s_add_u32 s{wDN}, s{wDN}, {WS_WTD}
        s_lshr_b32 s{sRot}, s{sR}, 3
        s_mul_i32 s{sRot}, s{sRot}, {C.rot_dn}
        s_sub_u32 s{th12}, 12, s{sRot}
        """)
        S_wDN.setup(a, sRot, 12, sTmp)
    G_ = [None, None]
    def lin(S_, dst, dfn, bits):
        def f(c, i0, k):
            if bits == "sc1":
                G_[0].need(span(64*c, 64*c + 63, 80, 2) if C.gran else 0xffff)
                if G_[1] is not None: stamp(a, G_[1]); G_[1] = None
            S_.sel(a, c, sSel)
            lin_dma(a, 8, sSel, c*S_.stride + 1024*i0, dst, dfn(c) + 1024*i0, k, bits)
        return f
    def pf(kind, ep, st, rot):
        def f():
            a(f"s_lshr_b32 s{sTmp}, s{sR}, 4\ns_mul_i32 s{sTmp}, s{sTmp}, {4 if rot else 0}")
            G_[0] = gate_local(a, kind, ep, 1, 2, sTmp, sleep=C.psleep); G_[1] = st
        return f
    def emitWQ(c, i0, k):
        S_wQK.sel(a, c, sSel)
        for i in range(i0, i0 + k):
            a(f"s_add_u32 m0, s{s4}, {qkW(c) + 1024*i}\ns_add_u32 s{sTmp}, s{sSel}, {c*64*3840 + i*4*3840}")
            a(f"buffer_load_dwordx4 v6, {R(R_WQ)}, s{sTmp} offen {'nt' if C.nt_qk else ''} lds")
    rA = lambda c: (c % 4) * 16384
    full = lambda c: G_[0].need(0xffff) if c == 1 else None
    reg = lambda f, sz: (lambda c: (f(c), f(c) + sz))
    gu = Phase("gu", 10, 4, 6, lin(S_aGU, s4, rA, "sc1"), lin(S_wGU, s6, guW, "nt" if C.nt_gu else ""), reg(rA, 16384), reg(guW, 24576), pf("gu", 3, 21, C.rot_gu), C.bud_gu, dbg=(C.dbg == 3), after_bar=full)
    dn = Phase("dn", 12, 0, 5, None, lin(S_wDN, s5, dnW, "nt" if C.nt_dn else ""), None, reg(dnW, 20480), None, C.bud_dn, lag=2, early=C.dn_early, dbg=(C.dbg == 4))
    qk = Phase("qk", 10, 4, 4, lin(S_aQK, s4, rA, "sc1"), emitWQ, reg(rA, 16384), reg(qkW, 16384), pf("gu", 5, 17, C.rot_qk), C.bud_qk, early=C.qk_early, dbg=(C.dbg == 2), after_bar=full)
    L = Loader(a)
    L.live["wo"] = (0, 102400)
    pn = L.pre(gu, 0, C.gu_e)
    rest()
    a("s_barrier")
    L.live.pop("wo")
    pn = L.pre(gu, pn, C.gu_e2)
    a("s_barrier"); pn = L.pre(gu, pn, C.gu_p)
    pn = L.run(gu, dn, pn); stamp(a, 22); L.end(gu); pn = L.pre(dn, pn, C.dn_e)
    a("s_barrier"); pn = L.pre(dn, pn, C.dn_p)
    pn = L.run(dn, qk, pn); stamp(a, 14); L.end(dn)
    a(f"s_cmp_lg_u32 s{sL}, 0\ns_cbranch_scc1 {end_label}")
    pn = L.pre(qk, pn, C.qk_e)
    a("s_barrier")
    a(f"s_and_b32 s{sTmp}, s{sR}, 15\ns_cmp_eq_u32 s{sTmp}, 15\ns_cbranch_scc1 {idle_label}")
    pn = L.pre(qk, pn, C.qk_p)
    L.run(qk, None, pn); stamp(a, 19); L.end(qk)

def build():
    a = Asm()
    K = NAME + "_kernel"
    t = T
    a(f".globl {K}\n.p2align 8\n.type {K},@function")
    a.label(K)
    a(f"""
    s_load_dwordx16 s[16:31], s[0:1], 0
    s_load_dwordx4 s[32:35], s[0:1], 64
    s_cmp_ge_u32 s2, 256
    s_cbranch_scc1 L_exit
    s_and_b32 s{sG}, s2, 7
    s_lshr_b32 s{sR}, s2, 3
    v_lshrrev_b32 v1, 6, v0
    v_and_b32 v0, 63, v0
    v_readfirstlane_b32 s{sW}, v1
    s_lshl_b32 s{sWG}, s{sG}, 5
    s_add_u32 s{sWG}, s{sWG}, s{sR}
    s_mov_b32 s{sL}, 0
    s_mov_b32 s{sLO}, 0
    s_mov_b32 s{sEP}, 0
    s_mov_b32 s{sTMO}, 0
    """)
    if C.stamp: a("v_mov_b32 v255, 0\nv_mov_b32 v254, 0\ns_memrealtime s[14:15]")
    stamp(a, 0)
    qkv_ids(a, t)
    a(f"s_cmp_lt_u32 s{sW}, 4\ns_cbranch_scc1 L_q1c\ns_cmp_eq_u32 s{t+1}, 15\ns_cbranch_scc1 L_q1c")
    qkv1_loader(a)
    a("s_branch L_q1done")
    a.label("L_q1c")
    a("s_waitcnt lgkmcnt(0)")
    srd(a, R_X, P_X, ACT)
    srd(a, R_WQ, P_WQKV, D*3*D*2)
    a(f"""
    s_cmp_gt_u32 s{sW}, 3
    s_cbranch_scc1 L_npf
    s_lshl_b32 s{t+8}, s{sWG}, 2
    s_add_u32 s{t+8}, s{t+8}, s{sW}
    s_mul_i32 s{t+8}, s{t+8}, 2560
    v_lshrrev_b32 v1, 5, v0
    v_mul_u32_u24 v1, 1280, v1
    v_and_b32 v2, 31, v0
    v_lshl_add_u32 v1, v2, 4, v1
    v_mov_b64 v[228:229], 0
    v_mov_b64 v[230:231], 0
    buffer_load_dwordx4 v[220:223], v1, {R(R_X)}, s{t+8} offen
    buffer_load_dwordx4 v[224:227], v1, {R(R_X)}, s{t+8} offen offset:512
    s_mov_b32 exec_lo, 0xffff
    s_mov_b32 exec_hi, 0xffff
    buffer_load_dwordx4 v[228:231], v1, {R(R_X)}, s{t+8} offen offset:1024
    s_mov_b64 exec, -1
    """)
    a.label("L_npf")
    other_srds(a)
    a(f"s_cmp_eq_u32 s{t+1}, 15\ns_cbranch_scc1 L_q1idle")
    qkv_compute(a, True, "sc1")
    a("s_branch L_q1done")
    a.label("L_q1idle")
    qkv1_idle(a)
    a.label("L_q1done")
    a(f"s_cmp_eq_u32 s{sMODE}, 0\ns_cbranch_scc1 L_slow")
    tails = []
    for nm, SB in (("fast", ""), ("slow", "sc1")):
        a.label(f"L_{nm}")
        tails.append(phase_attn(a, SB, f"L_{nm}_ld"))
        if nm == "fast": a.label("L_fast_post")
        proj_compute(a, False, SB, None)
        gu_compute(a, SB)
        proj_compute(a, True, SB, "L_end")
        qkv_ids(a, t)
        a(f"s_cmp_eq_u32 s{t+1}, 15\ns_cbranch_scc1 L_{nm}_idle")
        qkv_compute(a, False, SB)
        a(f"s_branch L_{nm}_next")
        a.label(f"L_{nm}_ld")
        loader_chain(a, SB, "L_end", f"L_{nm}_idle")
        a(f"s_branch L_{nm}_next")
        a.label(f"L_{nm}_idle")
        a("s_waitcnt vmcnt(0)\ns_barrier")
        a.label(f"L_{nm}_next")
        a(f"s_mov_b32 s{sL}, 1\ns_mov_b32 s{sLO}, {LSTRIDE}\ns_add_u32 s{sEP}, s{sEP}, 5\ns_mov_b32 s{R_WQ+2}, 0\ns_branch L_{nm}")
        if nm == "fast":
            a.label("L_end")
            a(f"""
            s_xor_b32 s{t}, s{sW}, 7
            s_or_b32 s{t}, s{t}, s2
            s_cmp_lg_u32 s{t}, 0
            s_cbranch_scc1 L_end2
            v_mov_b32 v1, 0
            s_mov_b64 exec, 1
            global_store_dword v1, v1, s[{P_DBG}:{P_DBG+1}] sc1
            s_mov_b64 exec, -1
            """)
            a.label("L_end2")
            if C.stamp:
                a("s_waitcnt vmcnt(0)")
                stamp(a, 16)
                a(f"""
                s_memrealtime s[10:11]
                s_waitcnt lgkmcnt(0)
                v_writelane_b32 v255, s14, 62
                v_writelane_b32 v255, s10, 63
                v_writelane_b32 v255, s{sTMO}, 61
                s_lshl_b32 s10, s2, 3
                s_add_u32 s10, s10, s{sW}
                s_lshl_b32 s10, s10, 8
                s_add_u32 s10, s10, {WS_STAMP}
                v_lshlrev_b32 v1, 2, v0
                v_add_u32 v1, s10, v1
                global_store_dword v1, v255, s[{P_WS}:{P_WS+1}]
                v_add_u32 v1, {1<<20}, v1
                global_store_dword v1, v254, s[{P_WS}:{P_WS+1}]
                """)
                if C.pj:
                    a(f"""
                    s_xor_b32 s{t}, s2, 8
                    s_or_b32 s{t}, s{t}, s{sW}
                    s_cmp_lg_u32 s{t}, 0
                    s_cbranch_scc1 L_exit
                    v_readlane_b32 s{t+1}, v254, {C.pi}
                    v_readlane_b32 s{t+2}, v254, {C.pj}
                    v_readlane_b32 s{t+3}, v254, 40
                    s_sub_u32 s{t+1}, s{t+2}, s{t+1}
                    s_add_u32 s{t+1}, s{t+1}, 1000
                    """)
                    a.label("L_probe")
                    a(f"""
                    s_memrealtime s[{t+4}:{t+5}]
                    s_waitcnt lgkmcnt(0)
                    s_sub_u32 s{t+6}, s{t+4}, s{t+3}
                    s_cmp_lt_u32 s{t+6}, s{t+1}
                    s_cbranch_scc1 L_probe
                    """)
                if C.dbgout:
                    a(f"s_xor_b32 s{t}, s2, 8\ns_or_b32 s{t}, s{t}, s{sW}\ns_cmp_lg_u32 s{t}, 0\ns_cbranch_scc1 L_exit\nv_readlane_b32 s{t+1}, v254, 0\nv_mov_b32 v1, 0")
                    for k, i in enumerate([1, 2, 7, 8, 10, 12, 23, 15, 20, 31, 32, 36, 47, 40]):
                        a(f"v_readlane_b32 s{t}, v254, {i}\ns_sub_u32 s{t}, s{t}, s{t+1}\ns_nop 1\nv_mov_b32 v2, s{t}\nglobal_store_dword v1, v2, s[{P_DBG}:{P_DBG+1}] offset:{4+4*k}")
            a.label("L_exit")
            a("s_endpgm")
            a.label("L_fast_end")
    for f in tails: f()
    hdr = open("cdna_kernels/" + NAME + ".s.ref").read().split("; Override")[0]
    hdr += "; @launch grid=(256,1,1) block=(512,1,1) lds=163840\n"
    txt = hdr + '.amdgcn_target "amdgcn-amd-amdhsa--gfx950"\n.text\n' + a.text() + f'''.section .rodata,"a"
.p2align 6
.amdhsa_kernel {K}
  .amdhsa_next_free_vgpr 256
  .amdhsa_next_free_sgpr 102
  .amdhsa_accum_offset 256
  .amdhsa_group_segment_fixed_size 0
  .amdhsa_kernarg_size 80
  .amdhsa_user_sgpr_count 2
  .amdhsa_user_sgpr_kernarg_segment_ptr 1
  .amdhsa_system_sgpr_workgroup_id_x 1
.end_amdhsa_kernel
'''
    for p in check(a.lines): print("HAZARD", p)
    return txt

if __name__ == "__main__":
    out = sys.argv[1] if len(sys.argv) > 1 else "cdna_kernels/" + NAME + ".s"
    for kv in sys.argv[2:]:
        k, _, val = kv.partition("=")
        assert hasattr(C, k), k
        setattr(C, k, int(val) if val else True)
    open(out, "w").write(build())
    print("written", out)
```

```python
import sys, math, struct
sys.path.insert(0, "gen")
from asmlib import *

NAME = "interleave_layers__softmax_full_mha__glu_gated_reglu__prompt"
S, D, F, H, DH = 2048, 640, 1536, 32, 20
ACT = S * D * 2
HEADB = 81920
L_Q = 0
L_K = L_Q + ACT
L_V = L_K + ACT
L_O = L_V + ACT
L_X1 = L_O + ACT
L_X2 = L_X1 + ACT
L_H = L_X2 + ACT
L_ST1 = L_H + S * F * 2
L_ST2 = L_ST1 + S * 64
L_FG = L_ST2 + S * 64
LSTRIDE = L_FG + 32768
WS_ST0 = LSTRIDE + L_ST2
WS_WTO = 2 * LSTRIDE
WS_WTD = WS_WTO + D * D * 2
WS_WTG = WS_WTD + F * D * 2
WS_CSP = WS_WTG + 2 * F * D * 2
WS_CSG = WS_CSP + 10 * 12288
WS_CSQ = WS_CSG + 256 * 768
WS_FL = WS_CSQ + 256 * 512
WS_END = WS_FL + 8192
WS_SIZE = 268435456
WS_STAMP = 200 << 20
QSCALE = (DH ** -0.5) * math.log2(math.e)
def f32(x): return "0x%08x" % struct.unpack("<I", struct.pack("<f", x))[0]

P_X, P_WQKV, P_WO, P_BX, P_WG, P_WU, P_WD, P_OUT, P_DBG, P_WS = 16, 18, 20, 22, 24, 26, 28, 30, 32, 34
sL, sG, sR, sW, sLO, sEP, sTMO, sWG = 3, 4, 5, 6, 7, 8, 9, 13
R_WS, R_X, R_WQ, R_WG, R_WU, R_T = 36, 40, 44, 48, 52, 56
T = 60
WSR = f"s[{R_WS}:{R_WS+3}]"
def R(r): return f"s[{r}:{r+3}]"
SPIN = 200000

class Cfg:
    stamp = False
    dbg = 0
    dbgout = 0
    pi = 0
    pj = 0
    look = 6
    gu_e = 12
    dn_e = 4
    qk_e = 0
    bud_gu = 10
    bud_dn = 5
    bud_qk = 6
    bud_q1 = 10
    dn_a = 3
    psleep = 1
    gran = 3
    flip = 0
    wb = 0
    outb = 0
    q1prio = 0
    look_q1 = 6
    nocs = 0
    qloc = 1
    stage = 1
    cpf = 1
    l2pf0 = 1
    nt_kv = 0
    nt_wo = 0
    nt_gu = 0
    nt_dn = 0
    nt_qk = 0
    htouch = 0
    warm = 0
    gu_e2 = 0
    gu_p = 0
    dn_p = 20
    qk_p = 4
    wo_sets = 6
    q1pf = 1
    l2pf = 12
    rot = 0
    x_hit = 0
    tlb = 0
    rot_gu = 0
    rot_dn = 0
    rot_qk = 0
    dn_early = 99
    qk_early = 99
C = Cfg()

def stamp(a, i):
    if not C.stamp: return
    a(f"s_memtime s[10:11]\ns_mul_i32 s12, s{sL}, 24\ns_add_u32 m0, s12, {i}\ns_waitcnt lgkmcnt(0)\nv_writelane_b32 v255, s10, m0")
    if C.dbg == 7: a(f"s_memrealtime s[10:11]\ns_waitcnt lgkmcnt(0)\nv_writelane_b32 v254, s10, m0")

def dstamp(a, d, i):
    if C.stamp and C.dbg == d: a(f"s_memtime s[10:11]\ns_lshl_b32 s12, s{sL}, 5\ns_add_u32 m0, s12, {i}\ns_waitcnt lgkmcnt(0)\nv_writelane_b32 v254, s10, m0")

def srd(a, r, ptr, size):
    a(f"s_mov_b32 s{r}, s{ptr}\ns_mov_b32 s{r+1}, s{ptr+1}\ns_mov_b32 s{r+2}, {size}\ns_mov_b32 s{r+3}, 0x20000")

def interleave(a, mf, other):
    n = len(mf); k = 0
    for i, m in enumerate(mf):
        a(m)
        tgt = (len(other) * (i + 1) + n - 1) // n
        while k < tgt:
            a(other[k]); k += 1

def poll(a, vaddr, vtmp, soff, want, sleep=0, pre=False, wide=False):
    lp = a.uid("poll"); ok = a.uid("pollok")
    cnt = T + 22
    a(f"s_mov_b32 s{cnt}, s{sTMO}")
    if pre is not False: a(f"s_waitcnt vmcnt({pre})\ns_branch {lp}c")
    a.label(lp)
    if wide: a(f"buffer_load_dwordx4 v[{vtmp}:{vtmp+3}], v{vaddr}, {WSR}, {soff} offen sc1")
    else: a(f"buffer_load_dword v{vtmp}, v{vaddr}, {WSR}, {soff} offen sc1")
    a(f"s_waitcnt vmcnt(0)")
    if pre is not False: a.label(lp + "c")
    a(f"v_subrev_u32 v{vtmp}, {want}, v{vtmp}")
    if wide:
        for i in range(1, 4): a(f"v_subrev_u32 v{vtmp+i}, {want}, v{vtmp+i}\nv_max_u32 v{vtmp}, v{vtmp}, v{vtmp+i}")
    a(f"v_cmp_lt_u32 vcc, 15, v{vtmp}")
    a(f"s_cbranch_vccz {ok}")
    if sleep: a(f"s_sleep {sleep}")
    a(f"s_add_u32 s{cnt}, s{cnt}, 1\ns_cmp_lt_u32 s{cnt}, {SPIN}\ns_cbranch_scc1 {lp}")
    a(f"s_mov_b32 s{sTMO}, {SPIN}")
    a.label(ok)

def poll_local(a, kind, ep, va=1, vt=2, sleep=0):
    t = T + 20
    if kind == "wo":
        a(f"v_and_b32 v{va}, 31, v0\nv_lshlrev_b32 v{va}, 5, v{va}\ns_lshr_b32 s{t}, s{sR}, 3\ns_lshl_b32 s{t}, s{t}, 2\ns_add_u32 s{t}, s{t}, 16")
    elif kind == "gu":
        a(f"v_lshrrev_b32 v{va}, 2, v0\nv_lshlrev_b32 v{va}, 5, v{va}\nv_and_b32 v{vt}, 3, v0\nv_lshl_add_u32 v{va}, v{vt}, 2, v{va}")
        a(f"s_lshr_b32 s{t}, s{sR}, 4\ns_lshl_b32 s{t}, s{t}, 9")
    elif kind == "down":
        a(f"v_bfe_u32 v{va}, v0, 1, 4\nv_lshlrev_b32 v{va}, 5, v{va}\nv_and_b32 v{vt}, 1, v0\nv_lshl_add_u32 v{va}, v{vt}, 3, v{va}")
        a(f"s_lshr_b32 s{t}, s{sR}, 4\ns_lshl_b32 s{t}, s{t}, 9\ns_bfe_u32 s{t+1}, s{sR}, 0x10003\ns_lshl_b32 s{t+1}, s{t+1}, 2\ns_add_u32 s{t}, s{t}, s{t+1}")
    elif kind == "attn":
        a(f"""
        v_bfe_u32 v{va}, v0, 2, 1
        v_mul_u32_u24 v{va}, 19, v{va}
        s_mul_i32 s{t}, s{sR}, 20
        v_add_u32 v{va}, s{t}, v{va}
        v_lshrrev_b32 v{va}, 7, v{va}
        v_lshrrev_b32 v{vt}, 4, v0
        v_min_u32 v{vt}, 2, v{vt}
        v_mad_u32_u24 v{va}, v{vt}, 5, v{va}
        v_bfe_u32 v{vt}, v0, 3, 1
        v_lshl_add_u32 v{va}, v{vt}, 4, v{va}
        v_lshlrev_b32 v{va}, 5, v{va}
        v_and_b32 v{vt}, 3, v0
        v_lshl_add_u32 v{va}, v{vt}, 2, v{va}
        s_mov_b32 s{t}, 0
        """)
    a(f"s_lshl_b32 s{t+1}, s{sG}, 10\ns_add_u32 s{t}, s{t}, s{t+1}\ns_add_u32 s{t}, s{t}, {WS_FL}\ns_add_u32 s{t+1}, s{sEP}, {ep}")
    poll(a, va, vt, f"s{t}", f"s{t+1}", sleep=sleep)

sNR, sGO, sGW = 92, 94, 95
class Gate:
    def __init__(self, a, va, vt, fold=False, sleep=0):
        self.a, self.va, self.vt, self.fold, self.sleep = a, va, vt, fold, sleep
        self.ok = 0
    def load(self): self.a(f"buffer_load_dword v{self.vt}, v{self.va}, {WSR}, s{sGO} offen sc1")
    def upd(self):
        self.a(f"s_waitcnt vmcnt(0)\nv_subrev_u32 v{self.vt}, s{sGW}, v{self.vt}\nv_cmp_lt_u32 s[{sNR}:{sNR+1}], 15, v{self.vt}")
        if self.fold: self.a(f"s_or_b32 s{sNR}, s{sNR}, s{sNR+1}")
    def reset(self): self.a(f"s_mov_b32 s{sNR}, -1")
    def need(self, mask):
        a = self.a
        mask &= ~self.ok
        if not mask: return
        self.ok |= mask
        lp = a.uid("gt"); cnt = T + 22
        a(f"s_and_b32 s{cnt}, s{sNR}, {hex(mask)}\ns_cbranch_scc0 {lp}k\ns_mov_b32 s{cnt}, s{sTMO}")
        a.label(lp)
        self.load(); self.upd()
        a(f"s_and_b32 s{cnt+1}, s{sNR}, {hex(mask)}\ns_cbranch_scc0 {lp}k")
        if self.sleep: a(f"s_sleep {self.sleep}")
        a(f"s_add_u32 s{cnt}, s{cnt}, 1\ns_cmp_lt_u32 s{cnt}, {SPIN}\ns_cbranch_scc1 {lp}\ns_mov_b32 s{sTMO}, {SPIN}")
        a.label(lp + "k")
def span(lo, hi, w, bits):
    m = 0
    for p in range(lo // w, hi // w + 1): m |= ((1 << bits) - 1) << (bits * p)
    return m
def gate_local(a, kind, ep, va, vt, sRotCt=None, sleep=0):
    t = T + 20
    if kind == "wo":
        a(f"v_and_b32 v{va}, 31, v0\nv_lshlrev_b32 v{va}, 5, v{va}\ns_lshr_b32 s{sGO}, s{sR}, 3\ns_lshl_b32 s{sGO}, s{sGO}, 2\ns_add_u32 s{sGO}, s{sGO}, 16")
    elif kind == "down":
        a(f"v_lshrrev_b32 v{va}, 1, v0\nv_add_u32 v{va}, s{sRotCt}, v{va}\nv_and_b32 v{va}, 15, v{va}\nv_lshlrev_b32 v{va}, 5, v{va}\nv_and_b32 v{vt}, 1, v0\nv_lshl_add_u32 v{va}, v{vt}, 3, v{va}")
        a(f"s_lshr_b32 s{sGO}, s{sR}, 4\ns_lshl_b32 s{sGO}, s{sGO}, 9\ns_bfe_u32 s{t+1}, s{sR}, 0x10003\ns_lshl_b32 s{t+1}, s{t+1}, 2\ns_add_u32 s{sGO}, s{sGO}, s{t+1}")
    elif kind == "gu":
        a(f"v_lshrrev_b32 v{va}, 1, v0\nv_add_u32 v{va}, s{sRotCt}, v{va}\nv_and_b32 v{va}, 7, v{va}\nv_lshlrev_b32 v{va}, 5, v{va}\nv_and_b32 v{vt}, 1, v0\nv_lshl_add_u32 v{va}, v{vt}, 2, v{va}")
        a(f"s_lshr_b32 s{sGO}, s{sR}, 4\ns_lshl_b32 s{sGO}, s{sGO}, 9\ns_bfe_u32 s{t+1}, s{sW}, 0x10001\ns_lshl_b32 s{t+1}, s{t+1}, 8\ns_add_u32 s{sGO}, s{sGO}, s{t+1}")
        a(f"s_and_b32 s{t+1}, s{sW}, 1\ns_lshl_b32 s{t+1}, s{t+1}, 3\ns_add_u32 s{sGO}, s{sGO}, s{t+1}")
    a(f"s_lshl_b32 s{t+1}, s{sG}, 10\ns_add_u32 s{sGO}, s{sGO}, s{t+1}\ns_add_u32 s{sGO}, s{sGO}, {WS_FL}\ns_add_u32 s{sGW}, s{sEP}, {ep}")
    g = Gate(a, va, vt, sleep=sleep); g.reset()
    return g

def flag_setup(a, ep):
    t = T + 20
    a(f"s_lshl_b32 s{t}, s{sWG}, 3\ns_add_u32 s{t}, s{t}, s{sW}\ns_lshl_b32 s{t}, s{t}, 2\ns_add_u32 s{t}, s{t}, {WS_FL}\ns_add_u32 s{t+1}, s{sEP}, {ep}")
    a(f"v_mov_b32 v1, 0\nv_mov_b32 v2, s{t+1}")
def flag_store(a, SB, s=T+20):
    a(f"s_mov_b64 exec, 1\nbuffer_store_dword v2, v1, {WSR}, s{s} offen {SB}\ns_mov_b64 exec, -1")
def publish_local(a, ep, SB):
    flag_setup(a, ep)
    a("s_waitcnt vmcnt(0)")
    flag_store(a, SB)

def row_stats(a, vst, vmean, vrstd):
    for i in range(1, 8):
        a(f"v_add_f32 v{vst}, v{vst}, v{vst+2*i}\nv_add_f32 v{vst+1}, v{vst+1}, v{vst+2*i+1}")
    finish_stats(a, vst, vst + 1, vmean, vrstd)

def finish_stats(a, vs, vq, vmean, vrstd):
    a(f"v_mul_f32 v{vmean}, {f32(1.0/D)}, v{vs}")
    a(f"v_mul_f32 v{vq}, {f32(1.0/D)}, v{vq}")
    a(f"v_fma_f32 v{vq}, -v{vmean}, v{vmean}, v{vq}")
    a(f"v_max_f32 v{vq}, 0, v{vq}")
    a(f"v_add_f32 v{vq}, {f32(1e-5)}, v{vq}")
    a(f"v_rsq_f32 v{vrstd}, v{vq}")
    a("s_nop 0")

def lin_dma(a, vaddr, src_s, src_off, dst_s, dst_off, npieces, bits="", rsrc=WSR, tmp=T+19):
    i = 0
    while i < npieces:
        k = min(4, npieces - i)
        a(f"s_add_u32 m0, s{dst_s}, {dst_off + 1024*i}")
        a(f"s_add_u32 s{tmp}, s{src_s}, {src_off + 1024*i}")
        for j in range(k):
            a(f"buffer_load_dwordx4 v{vaddr}, {rsrc}, s{tmp} offen offset:{1024*j} {bits} lds")
        i += k
    return npieces


def states(x):
    return int(x.split()[1]) + 1 if x.startswith("s_nop") else 1

def gemm_unrolled(a, n, P, nr, reads, mfma, groups, inserts, fix, fix_from, epi, st_end, alt=None):
    seq = []
    def add(ms, fill, pre=()):
        k = 0
        for i, (kk, tl) in enumerate(ms):
            tgt = (len(fill) * (i + 1) + len(ms) - 1) // len(ms)
            seq.append([list(pre) if i == 0 else [], mfma(kk, tl), tl, list(fill[k:tgt])]); k = tgt
    step = lambda kk: [(kk, tl) for tl in range(P)]
    a("s_barrier")
    for x in reads(0, 0) + reads(0, 1): a(x)
    w = f"s_waitcnt lgkmcnt({nr})"
    for c in range(n - 1):
        add(step(0), reads(c, 2), [w])
        add(step(1), reads(c, 3), [w])
        add(step(2), [], [w])
        seq[-2][3] += ["s_waitcnt lgkmcnt(0)"]; seq[-1][3] += ["s_barrier"]
        add(step(3), reads(c + 1, 0) + reads(c + 1, 1))
    nmain = len(seq)
    for i0, ins in inserts.items():
        i = i0; ins = list(ins)
        while ins:
            room = 4 - sum(states(x) for x in seq[i][3]) - len(seq[i+1][0])
            if ins[0].startswith("s_mov_b32 exec") and room < 3: room = 0
            while room > 0 and ins and "s_barrier" not in seq[i][3]:
                x = ins.pop(0); seq[i][3].append(x); room -= states(x)
            i += 1

        end = fix_from if i0 < fix_from else nmain
        assert i <= end
        if any(x.startswith("ds_") for x in inserts[i0]): assert any("s_waitcnt lgkmcnt(0)" in seq[j][3] for j in range(i, end)), (i, end)
    todo = {tl: list(fix(tl)) for tl in range(P)}
    used = lambda g: sum(states(x) for x in seq[g][3]) + len(seq[g+1][0])
    g = fix_from + 2
    while any(todo.values()):
        assert g + 2 < nmain, "no room for fix"
        if used(g) < 5 and "s_barrier" not in seq[g][3]:
            for back in range(P - 2, 1, -1):
                tl = seq[g - back][2]
                if not todo[tl] or g - back < fix_from: continue
                have = sum(used(x) + 1 for x in range(g - back, g)) + sum(states(x) for x in seq[g][3])
                room = sum(max(0, 5 - used(x)) for x in range(g - back, g))
                if have + room < 12: continue
                for x in range(g - back, g):
                    k = min(5 - used(x), 12 - have)
                    if k > 0: seq[x][3].append(f"s_nop {k-1}"); have += k
                while used(g) < 5 and todo[tl]: seq[g][3].append(todo[tl].pop(0))
            if used(g + 1) < 1: seq[g + 1][3].append("s_nop 0")
        g += 1

    c = n - 1
    g0 = groups[0]
    seq[-1][3] += reads(c, 2)
    add([(kk, tl) for kk in (0, 1) for tl in g0], reads(c, 3), [w])
    add([(kk, tl) for kk in (2, 3) for tl in g0], [], ["s_waitcnt lgkmcnt(0)"])
    seq[-len(g0)*2][3].append("s_barrier")
    seq[-1][3].append("s_nop 4")
    def flush():
        for pre, m, tl, post in seq:
            for x in pre: a(x)
            a(m)
            for x in post: a(x)
        del seq[:]
    def tail(epi):
        for gi in range(1, len(groups)):
            ms = [(kk, tl) for kk in range(4) for tl in groups[gi]]
            if gi == 1: add(ms[:1], ["s_nop 4"]); add(ms[1:], epi(gi - 1, False))
            else: add(ms, ["s_nop 0"] + epi(gi - 1, False))
        flush()
        stamp(a, st_end)
        a.nop(3)
        for x in epi(len(groups) - 1, True): a(x)
    if alt:
        cond, epi2, post1, post2 = alt
        l = a.uid("alt")
        seq[-1][3][-1:] = [cond, f"s_cbranch_scc1 {l}", "s_nop 2"]
        flush(); tail(epi); post1()
        a.label(l); a("s_nop 2"); tail(epi2); post2()
    else: tail(epi)

class Src:
    def __init__(self, sB, sB1, sThr, stride): self.__dict__.update(locals())
    def setup(self, a, sRot, n, tmp):
        a(f"s_mul_i32 s{tmp}, s{sRot}, {self.stride}\ns_add_u32 s{self.sB}, s{self.sB}, s{tmp}\ns_sub_u32 s{self.sB1}, s{self.sB}, {n*self.stride}")
    def sel(self, a, c, dst):
        a(f"s_cmp_gt_u32 s{self.sThr}, {c}\ns_cselect_b32 s{dst}, s{self.sB}, s{self.sB1}")

class Phase:
    def __init__(self, name, n, npa, npw, emitA, emitW, regA, regW, pollfn, budget, lag=1, after_bar=None, dbg=False, early=99):
        self.__dict__.update(locals())

class Loader:
    def __init__(self, a):
        self.a = a; self.q = []; self.live = {}; self.waitfn = None; self.total = 0
    def free(self, reg, key):
        return key in self.live or all(reg[1] <= lo or hi <= reg[0] for lo, hi in self.live.values())
    def can(self, ph, kind, c):
        return self.free((ph.regA if kind == "A" else ph.regW)(c), (ph.name, kind, c))
    def issue(self, ph, kind, c, i0, k):
        assert self.can(ph, kind, c)
        self.live[(ph.name, kind, c)] = (ph.regA if kind == "A" else ph.regW)(c)
        (ph.emitA if kind == "A" else ph.emitW)(c, i0, k)
        self.q += [(ph.name, kind, c)] * k; self.total += k
    def release(self, ph, c):
        for k in "AW": self.live.pop((ph.name, k, c), None)
    def wait(self, tags):
        last = -1
        for i, t in enumerate(self.q):
            if t in tags: last = i
        if last >= 0:
            n = len(self.q) - 1 - last
            assert n < 64
            self.q = self.q[last+1:]
            if self.waitfn: self.waitfn(n)
            else: self.a(f"s_waitcnt vmcnt({n})")
    def pre(self, ph, pw, cnt):
        done = 0
        while pw < ph.n * ph.npw and done < cnt and self.can(ph, "W", pw // ph.npw):
            k = min(4, ph.npw - pw % ph.npw, cnt - done)
            self.issue(ph, "W", pw // ph.npw, pw % ph.npw, k); pw += k; done += k
        return pw
    def run(self, ph, nxt, pw=0, after_poll=None, tail=None, waitfn=None, lastexit=None):
        a = self.a; n = ph.n
        pa = 0; pn = 0
        if ph.pollfn: ph.pollfn()
        if after_poll: after_poll()
        for c in range(n):
            done = 0
            if lastexit and pw == n * ph.npw:
                lastexit(n - c + 1); lastexit = None
            while True:
                needed = pa < (c + 1) * ph.npa or pw < (c + 1) * ph.npw
                if not needed:
                    beyond = 0
                    for t in reversed(self.q):
                        if t[0] == ph.name and t[2] <= c: break
                        beyond += 1
                    if beyond >= getattr(ph, 'look', C.look) and (done >= ph.budget or c == 0): break
                ca = pa // ph.npa if ph.npa else n; cw = pw // ph.npw
                okA = ca < n and self.can(ph, "A", ca)
                okW = cw < n and self.can(ph, "W", cw)
                if okW and (cw <= ca or not okA):
                    k = ph.npw - pw % ph.npw
                    if not needed: k = min(2, k)
                    self.issue(ph, "W", cw, pw % ph.npw, k); pw += k
                elif okA:
                    k = ph.npa - pa % ph.npa
                    if not needed: k = min(2, k)
                    self.issue(ph, "A", ca, pa % ph.npa, k); pa += k
                elif nxt and ca == n and cw == n and pn < nxt.early and self.can(nxt, "W", pn // nxt.npw):
                    k = min(2, nxt.npw - pn % nxt.npw)
                    self.issue(nxt, "W", pn // nxt.npw, pn % nxt.npw, k); pn += k
                else:
                    assert not needed
                    break
                done += k
            if tail and pa == n * ph.npa and pw == n * ph.npw:
                tail(); tail = None; self.waitfn = waitfn
            if ph.after_bar and c > 0: ph.after_bar(c - 1)
            self.wait({(ph.name, "A", c), (ph.name, "W", c)})
            if ph.dbg and C.stamp: a(f"s_memtime s[10:11]\ns_waitcnt lgkmcnt(0)\nv_writelane_b32 v254, s10, {2*c}")
            a("s_barrier")
            if ph.dbg and C.stamp: a(f"s_memtime s[10:11]\ns_waitcnt lgkmcnt(0)\nv_writelane_b32 v254, s10, {2*c+1}")
            self.release(ph, c - ph.lag)
        if ph.after_bar: ph.after_bar(n - 1)
        if nxt: pn = self.pre(nxt, pn, min(ph.budget, max(0, nxt.early - pn)))
        return pn
    def end(self, ph):
        self.a("s_barrier")
        for c in range(ph.n): self.release(ph, c)

Q1_TAB = 131072 + 26624
Q1_NON = Q1_TAB + 2048
Q1_CS = Q1_NON + 64
WB = 65536
def guW(c): return WB + ((3 - c) % 4) * 24576
def dnW(c): return ((c + 2) % 8) * 20480
def qkW(c): return WB + ((c + 4) % 6) * 16384

PSCR = 131072
PV = 180
def projjob_issue(a, sJob, sScr, t, loads=True):
    a(f"""
    s_and_b32 s{t+2}, s{sJob}, 7
    s_lshr_b32 s{t+3}, s{sJob}, 3
    s_cmp_lt_u32 s{t+3}, 20
    s_cselect_b32 s{R_T}, s{P_WO}, s{P_WD}
    s_cselect_b32 s{R_T+1}, s{P_WO+1}, s{P_WD+1}
    s_mov_b32 s{R_T+2}, {F*D*2}
    s_cselect_b32 s{R_T+2}, {D*D*2}, s{R_T+2}
    s_mov_b32 s{R_T+3}, 0x20000
    s_cselect_b32 s{t+4}, 0, 20
    s_cselect_b32 s{t+5}, 20, 48
    s_mov_b32 s{t+6}, {WS_WTD}
    s_cselect_b32 s{t+6}, {WS_WTO}, s{t+6}
    s_sub_u32 s{t+3}, s{t+3}, s{t+4}
    s_mul_i32 s{t+5}, s{t+5}, s{t+2}
    s_add_u32 s{t+5}, s{t+5}, s{t+3}
    s_mul_i32 s{t+5}, s{t+5}, 5120
    s_add_u32 s{t+6}, s{t+6}, s{t+5}
    s_mul_i32 s{t+3}, s{t+3}, {32*1280}
    s_mul_i32 s{t+2}, s{t+2}, 160
    s_add_u32 s{t+3}, s{t+3}, s{t+2}
    s_movk_i32 s{t+4}, 6554
    """)
    x, y = PV, PV + 1
    for i in range(5 if loads else 0):
        a(f"""
        v_add_u32 v{x}, {64*i}, v0
        v_mul_u32_u24 v{y}, s{t+4}, v{x}
        v_lshrrev_b32 v{y}, 16, v{y}
        v_mad_i32_i24 v{x}, v{y}, -10, v{x}
        v_mul_u32_u24 v{y}, 1280, v{y}
        v_lshl_add_u32 v{x}, v{x}, 4, v{y}
        s_add_u32 m0, s{sScr}, {1024*i}
        s_nop 0
        buffer_load_dwordx4 v{x}, {R(R_T)}, s{t+3} offen lds
        """)
def projjob_finish(a, sScr, t):
    x, y, z, d0 = PV, PV + 1, PV + 2, PV + 4
    a(f"""
    v_lshrrev_b32 v{x}, 4, v0
    v_bfe_u32 v{y}, v0, 2, 2
    v_lshl_add_u32 v{x}, v{x}, 3, v{y}
    v_mul_u32_u24 v{x}, 160, v{x}
    v_add_u32 v{x}, s{sScr}, v{x}
    v_and_b32 v{y}, 3, v0
    v_lshl_add_u32 v{z}, v{y}, 3, v{x}
    v_lshl_add_u32 v{y}, v{y}, 4, v{x}
    """)
    for jn in range(5):
        for j in range(2):
            d = d0 + 4*jn + 2*j
            if jn < 4: a(f"ds_read_b64_tr_b16 v[{d}:{d+1}], v{y} offset:{640*j + 64*(jn>>1) + 8*(jn&1)}")
            else: a(f"ds_read_b64_tr_b16 v[{d}:{d+1}], v{z} offset:{640*j + 128}")
    a(f"s_add_u32 s{t+5}, s{t+6}, 4096\ns_waitcnt lgkmcnt(0)")
    for jn in range(5):
        d = d0 + 4*jn
        a(f"buffer_store_dwordx4 v[{d}:{d+3}], v5, {WSR}, s{t+6 if jn < 4 else t+5} offen offset:{1024*(jn&3)} sc1")

def gujob_issue(a, sJob, t, loads=True):
    x, y = PV, PV + 1
    a(f"""
    s_mul_i32 s{t+2}, s{sJob}, 2731
    s_lshr_b32 s{t+2}, s{t+2}, 16
    s_mul_i32 s{t+3}, s{t+2}, 24
    s_sub_u32 s{t+3}, s{sJob}, s{t+3}
    s_mul_i32 s{t+4}, s{t+2}, {64*F*2}
    s_lshl_b32 s{t+5}, s{t+3}, 7
    s_add_u32 s{t+4}, s{t+4}, s{t+5}
    v_lshrrev_b32 v{x}, 3, v0
    v_mul_u32_u24 v{x}, {F*2}, v{x}
    v_and_b32 v{y}, 7, v0
    v_lshl_add_u32 v{x}, v{y}, 4, v{x}
    """)
    for i in range(8 if loads else 0):
        for u in range(2):
            a(f"s_mov_b32 m0, {PSCR + 8192*u + 1024*i}\ns_add_u32 s{t+5}, s{t+4}, {i*8*F*2}")
            a(f"buffer_load_dwordx4 v{x}, {R(R_WU if u else R_WG)}, s{t+5} offen lds")
def gujob_finish(a, t):
    x, y, z = PV, PV + 1, PV + 2
    ONE, FRG, CS = PV + 4, PV + 8, PV + 40
    a(f"""
    v_bfe_u32 v{x}, v0, 2, 2
    v_lshl_add_u32 v{x}, v14, 3, v{x}
    v_lshlrev_b32 v{x}, 7, v{x}
    v_and_b32 v{y}, 1, v0
    v_lshl_add_u32 v{x}, v{y}, 4, v{x}
    v_bfe_u32 v{y}, v0, 1, 1
    v_lshl_add_u32 v{x}, v{y}, 3, v{x}
    v_bfe_u32 v{y}, v0, 4, 1
    v_lshl_add_u32 v{x}, v{y}, 13, v{x}
    v_add_u32 v{x}, {PSCR}, v{x}
    v_lshlrev_b32 v{z}, 6, v14
    s_mul_i32 s{t+6}, s{t+2}, 12288
    s_lshl_b32 s{t+5}, s{t+3}, 9
    s_add_u32 s{t+6}, s{t+6}, s{t+5}
    s_add_u32 s{t+6}, s{t+6}, {WS_CSP}
    """)
    for i in range(4): a(f"v_mov_b32 v{ONE+i}, 0x3f803f80")
    for tt in range(4):
        f0 = FRG + 16*(tt & 1)
        for kk in range(4):
            for j in range(2):
                d = f0 + 4*kk + 2*j
                a(f"ds_read_b64_tr_b16 v[{d}:{d+1}], v{x} offset:{128*(16*kk+4*j) + 32*tt}")
        a(f"""
        s_lshl_b32 s{t+4}, s{t+3}, 2
        s_add_u32 s{t+4}, s{t+4}, {tt}
        s_mul_i32 s{t+5}, s{t+4}, 43
        s_lshr_b32 s{t+5}, s{t+5}, 8
        s_mul_i32 s{t+5}, s{t+5}, 234
        s_add_u32 s{t+4}, s{t+4}, s{t+5}
        s_mul_i32 s{t+5}, s{t+2}, 24
        s_add_u32 s{t+4}, s{t+4}, s{t+5}
        s_lshl_b32 s{t+4}, s{t+4}, 10
        s_add_u32 s{t+4}, s{t+4}, {WS_WTG}
        s_waitcnt lgkmcnt(0)
        """)
        for kk in range(4):
            a(f"v_mfma_f32_32x32x16_bf16 {v(CS,16)}, {v(f0+4*kk,4)}, {v(ONE,4)}, {v(CS,16) if kk else 0}")
        for kk in range(4):
            d = f0 + 4*kk
            a(f"buffer_store_dwordx4 v[{d}:{d+3}], v5, {WSR}, s{t+4} offen sc1\ns_add_u32 s{t+4}, s{t+4}, 6144")
        a("s_mov_b32 exec_lo, 1\ns_mov_b32 exec_hi, 1\ns_nop 1")
        for q in range(4):
            a(f"buffer_store_dwordx4 v[{CS+4*q}:{CS+4*q+3}], v{z}, {WSR}, s{t+6} offen offset:{128*tt+16*q} sc1")
        a("s_mov_b64 exec, -1")

def prep(a, stage):
    tj = 84; sJob, sScr = tj, tj + 1
    lg = a.uid("pg"); le = a.uid("pe")
    if stage == 0:
        a(f"""
        s_sub_u32 s{sScr}, s{sW}, 1
        s_lshl_b32 s{sJob}, s{sScr}, 8
        s_add_u32 s{sJob}, s{sJob}, s{sWG}
        s_add_u32 s{sJob}, s{sJob}, 160
        s_mul_i32 s{sScr}, s{sScr}, 5120
        s_add_u32 s{sScr}, s{sScr}, {PSCR + 16384}
        """)
    a(f"s_cmp_eq_u32 s{sW}, 0\ns_cbranch_scc1 {lg}\ns_cmp_ge_u32 s{sJob}, 544\ns_cbranch_scc1 {le}")
    projjob_issue(a, sJob, sScr, tj) if stage == 0 else projjob_finish(a, sScr, tj)
    a(f"s_branch {le}")
    a.label(lg)
    a(f"s_cmp_ge_u32 s{sWG}, 240\ns_cbranch_scc1 {le}")
    gujob_issue(a, sWG, tj) if stage == 0 else gujob_finish(a, tj)
    a.label(le)

def xstat_fin(a):
    t = T + 16
    a(f"s_mov_b32 s{t}, 0xffff0000\nv_mov_b64 v[232:233], 0\ns_waitcnt vmcnt(0)")
    for i in range(12):
        a(f"v_lshlrev_b32 v234, 16, v{220+i}\nv_and_b32 v235, s{t}, v{220+i}\nv_add_f32 v232, v232, v234\nv_fmac_f32 v233, v234, v234\nv_add_f32 v232, v232, v235\nv_fmac_f32 v233, v235, v235")
    for mod in ("quad_perm:[1,0,3,2]", "quad_perm:[2,3,0,1]"):
        a(f"s_nop 1\nv_add_f32_dpp v232, v232, v232 {mod} row_mask:0xf bank_mask:0xf\nv_add_f32_dpp v233, v233, v233 {mod} row_mask:0xf bank_mask:0xf")
    a(f"""
    v_bfe_u32 v234, v0, 3, 2
    v_lshlrev_b32 v234, 10, v234
    v_bfe_u32 v235, v0, 2, 1
    v_lshl_add_u32 v234, v235, 3, v234
    v_lshrrev_b32 v235, 5, v0
    v_lshl_add_u32 v234, v235, 4, v234
    s_lshr_b32 s{t}, s{sWG}, 3
    s_lshl_b32 s{t}, s{t}, 12
    s_and_b32 s{t+1}, s{sWG}, 7
    s_lshl_b32 s{t+1}, s{t+1}, 2
    s_add_u32 s{t+1}, s{t+1}, s{sW}
    s_lshl_b32 s{t+1}, s{t+1}, 5
    s_add_u32 s{t}, s{t}, s{t+1}
    s_add_u32 s{t}, s{t}, {WS_ST0}
    s_mov_b32 exec_lo, 0x11111111
    s_mov_b32 exec_hi, 0x11111111
    buffer_store_dwordx2 v[232:233], v234, {WSR}, s{t} offen sc1
    s_mov_b64 exec, -1
    """)

def nonce_put(a):
    t = T + 8
    a(f"""
    s_memrealtime s[{t}:{t+1}]
    v_mov_b32 v1, 0
    s_waitcnt lgkmcnt(0)
    s_or_b32 s{t+2}, s{t}, 0x80000000
    v_mov_b32 v2, s{t+2}
    s_mov_b64 exec, 1
    global_store_dword v1, v2, s[{P_DBG}:{P_DBG+1}] sc1
    s_mov_b64 exec, -1
    """)
def flags_zero(a):
    t = T + 16
    a(f"""
    s_lshl_b32 s{t}, s{sWG}, 5
    s_add_u32 s{t}, s{t}, {WS_FL}
    s_lshl_b32 s{t+1}, s{sWG}, 7
    s_add_u32 s{t+1}, s{t+1}, {L_FG}
    s_add_u32 s{t+2}, s{t+1}, {LSTRIDE}
    v_lshlrev_b32 v236, 2, v0
    v_mov_b32 v237, 0
    s_mov_b64 exec, 0xff
    buffer_store_dword v237, v236, {WSR}, s{t} offen sc1
    s_mov_b64 exec, 0x3ff
    buffer_store_dword v237, v236, {WSR}, s{t+1} offen sc1
    buffer_store_dword v237, v236, {WSR}, s{t+2} offen sc1
    s_mov_b64 exec, -1
    """)

def nonce_issue(a, v2, v3):
    a(f"v_mov_b32 v{v3}, 0\nglobal_load_dword v{v2}, v{v3}, s[{P_DBG}:{P_DBG+1}] sc1")
def nonce_get(a, v1, v2, v3, cnt=0):
    t = T + 14
    lp = a.uid("non"); ok = a.uid("nonok")
    a(f"s_mov_b32 s{t+6}, 0\nv_mov_b32 v{v3}, 0\ns_lshl_b32 s{t+4}, s{sWG}, 7\ns_add_u32 s{t+4}, s{t+4}, {L_FG}\ns_waitcnt vmcnt({cnt})\ns_branch {lp}c")
    a.label(lp)
    a(f"global_load_dword v{v2}, v{v3}, s[{P_DBG}:{P_DBG+1}] sc1\ns_waitcnt vmcnt(0)")
    a.label(lp + "c")
    a(f"""
    v_cmp_eq_u32 vcc, 0, v{v2}
    s_cbranch_vccz {ok}
    s_sleep 4
    s_add_u32 s{t+6}, s{t+6}, 1
    s_cmp_lt_u32 s{t+6}, {SPIN}
    s_cbranch_scc1 {lp}
    s_mov_b32 s{sTMO}, {SPIN}
    """)
    a.label(ok)
    a(f"""
    v_readfirstlane_b32 s{sEP}, v{v2}
    s_getreg_b32 s{t+6}, hwreg(HW_REG_XCC_ID, 0, 4)
    v_mov_b32 v{v1}, {Q1_NON}
    ds_write_b32 v{v1}, v{v2}
    v_add_u32 v{v2}, s{t+6}, v{v2}
    s_mov_b64 exec, 1
    buffer_store_dword v{v2}, v{v3}, {WSR}, s{t+4} offen offset:32 sc1
    s_mov_b64 exec, -1
    s_waitcnt lgkmcnt(0)
    """)

def census(a, va, vt, issue, cnt=0):
    t = T + 20
    a(f"""
    v_and_b32 v{va}, 31, v0
    v_lshlrev_b32 v{va}, 7, v{va}
    s_lshl_b32 s{t}, s{sG}, 12
    s_add_u32 s{t}, s{t}, {L_FG + 32}
    """)
    if issue:
        a(f"buffer_load_dword v{vt}, v{va}, {WSR}, s{t} offen sc1")
        return
    poll(a, va, vt, f"s{t}", f"s{sEP}", sleep=4, pre=cnt)
    a(f"""
    s_getreg_b32 s{t}, hwreg(HW_REG_XCC_ID, 0, 4)
    v_cmp_ne_u32 vcc, s{t}, v{vt}
    s_cmp_eq_u64 vcc, 0
    s_cselect_b32 s{t}, 1, 0
    v_mov_b32 v{va}, {Q1_NON}
    v_mov_b32 v{vt}, s{t}
    ds_write_b32 v{va}, v{vt} offset:4
    s_waitcnt lgkmcnt(0)
    """)

sMODE = 14 - 14 + 98
def read_nonce_mode(a):
    a(f"v_mov_b32 v1, {Q1_NON}\nds_read_b64 v[2:3], v1\ns_waitcnt lgkmcnt(0)\nv_readfirstlane_b32 s{sEP}, v2\nv_readfirstlane_b32 s{sMODE}, v3")

def qkv_ids(a, t):
    a(f"s_lshr_b32 s{t}, s{sWG}, 4\ns_and_b32 s{t+1}, s{sR}, 15")

def qkv_compute(a, first, SB):
    t = T
    sRT, sCT, sTY, sC0 = t, t+1, t+2, t+3
    LQ = 0 if first else LSTRIDE
    sWM, sWN = t+5, t+6
    a(f"""
    s_mul_i32 s{sTY}, s{sCT}, 52
    s_lshr_b32 s{sTY}, s{sTY}, 8
    s_mul_i32 s{sC0}, s{sTY}, 5
    s_sub_u32 s{sC0}, s{sCT}, s{sC0}
    s_lshl_b32 s{sC0}, s{sC0}, 7
    s_and_b32 s{sWM}, s{sW}, 1
    s_lshr_b32 s{sWN}, s{sW}, 1
    v_lshrrev_b32 v14, 5, v0
    v_and_b32 v15, 31, v0
    """)
    ACC = 128; FR = 16; VST = 80; VCS = 96; VCV = 192; ONE = 196; AD = 200; MS = 244
    sCS = t+15
    a(f"s_lshl_b32 s{sCS}, s{sWG}, 9\ns_lshl_b32 s{t+7}, s{sWN}, 8\ns_add_u32 s{sCS}, s{sCS}, s{t+7}\ns_add_u32 s{sCS}, s{sCS}, {WS_CSQ}")
    a(f"v_lshlrev_b32 v{AD+8}, 5, v14\nv_lshlrev_b32 v{AD+9}, 2, v15")
    if first:
        a(f"""
        s_lshl_b32 s{t+7}, s{sWM}, 13
        v_lshlrev_b32 v1, 7, v15
        v_add_u32 v1, s{t+7}, v1
        v_bfe_u32 v8, v0, 1, 3
        v_xor_b32 v8, v8, v14
        """)
        for kk in range(4):
            a(f"v_xor_b32 v9, {2*kk}, v8\nv_lshl_add_u32 v{2+kk}, v9, 4, v1")
    else:
        a(f"s_lshl_b32 s{t+7}, s{sWM}, 13\nv_lshlrev_b32 v2, 4, v0\nv_add_u32 v2, s{t+7}, v2")
    a(f"""
    v_and_b32 v10, 3, v0
    v_and_b32 v11, 1, v0
    v_bfe_u32 v12, v0, 1, 1
    v_lshl_add_u32 v11, v11, 1, v12
    s_cmp_eq_u32 s{sTY}, 2
    s_cselect_b64 vcc, -1, 0
    v_cndmask_b32 v10, v11, v10, vcc
    v_bfe_u32 v8, v0, 2, 2
    v_lshl_add_u32 v9, v14, 3, v8
    v_lshlrev_b32 v9, 8, v9
    v_lshl_add_u32 v9, v10, 3, v9
    v_bfe_u32 v10, v0, 4, 1
    v_lshl_add_u32 v9, v10, 5, v9
    s_lshl_b32 s{t+7}, s{sWN}, 1
    v_xor_b32 v8, s{t+7}, v8
    v_lshl_add_u32 v6, v8, 6, v9
    v_xor_b32 v8, 1, v8
    v_lshl_add_u32 v7, v8, 6, v9
    """)
    nxa = 4 if first else 1
    W0 = 16384 if first else qkW(0)
    if first:
        for i in range(nxa): a(f"v_mov_b32 v{8+i}, v{2+i}")
        for i in (4, 5): a(f"v_add_u32 v{8+i}, {W0}, v{2+i}")
    else:
        for i in range(4): a(f"v_add_u32 v{8+i}, {WB + 49152*(i >> 1)}, v{6 + (i & 1)}")
    VM, VR = (32, 64) if first else (96, 212)
    for i in range(0, 64, 2): a(f"v_mov_b64 v[{ACC+i}:{ACC+i+1}], 0")
    def reads(kk):
        b = FR + 16*kk; r = []
        for tm in range(2):
            if first: r.append(f"ds_read_b128 v[{b+4*tm}:{b+4*tm+3}], v{8+kk} offset:{4096*tm}")
            else: r.append(f"ds_read_b128 v[{b+4*tm}:{b+4*tm+3}], v8 offset:{4096*tm+1024*kk}")
        for tn in range(2):
            for j in range(2):
                d = b + 8 + 4*tn + 2*j
                r.append(f"ds_read_b64_tr_b16 v[{d}:{d+1}], v{12+tn} offset:{4096*kk+1024*j}")
        return r
    def mfmas(kk, vtype, tns=(0, 1)):
        b = FR + 16*kk; m = []
        for tn in tns:
            W = v(b + 8 + 4*tn, 4)
            for tm in range(2):
                c = ACC + 16*(2*tn + tm)
                X = v(b + 4*tm, 4)
                A, B = (X, W) if vtype else (W, X)
                m.append(f"v_mfma_f32_32x32x16_bf16 {v(c,16)}, {A}, {B}, {v(c,16)}")
        return m
    sC, sSa, sSw, sMk, sDst, sD1 = t+9, t+10, t+4, t+11, t+12, 96
    qloc = C.qloc and SB == '' and not first
    vlab = a.uid("qkv_v"); fin = a.uid("qkv_fin"); done = a.uid("qkv_cdone")
    a(f"s_mov_b32 s{sC}, {10 if first else 9}\ns_mov_b32 s{sSa}, 0\ns_mov_b32 s{sSw}, {W0}")
    a(f"s_cmp_eq_u32 s{sTY}, 2\ns_cbranch_scc1 {vlab}")
    def v_tab_reads(roff):
        a(f"v_lshlrev_b32 v1, 4, v14\nv_add_u32 v1, s{t+7}, v1")
        for tm in range(2):
            for q in range(4):
                a(f"ds_read_b128 v[{VM+16*tm+4*q}:{VM+16*tm+4*q+3}], v1 offset:{(32*tm+8*q)*4}")
                a(f"ds_read_b128 v[{VR+16*tm+4*q}:{VR+16*tm+4*q+3}], v1 offset:{roff+(32*tm+8*q)*4}")
    hooks = []
    def mainloop(vtype, epi, alt=None):
        lp = a.uid("qkv_loop"); hk = a.uid("qkv_hk"); hb = a.uid("qkv_hb"); ent = a.uid("qkv_ent")
        if first: xstat_fin(a)
        stamp(a, 1 if first else 18)
        if not first:
            def rd(c, kk):
                b = FR + 16*kk; r = []
                for tm in range(2):
                    r.append(f"ds_read_b128 v[{b+4*tm}:{b+4*tm+3}], v2 offset:{(c % 4)*16384+4096*tm+1024*kk}")
                o = qkW(c) - WB
                for tn in range(2):
                    for j in range(2):
                        d = b + 8 + 4*tn + 2*j
                        r.append(f"ds_read_b64_tr_b16 v[{d}:{d+1}], v{8 + 2*(o // 49152) + tn} offset:{o % 49152 + 4096*kk+1024*j}")
                return r
            mf = lambda kk, tl: mfmas(kk, vtype, (tl >> 1,))[tl & 1]
            a(f"""
            s_lshl_b32 s{sC}, s{sRT}, 1
            s_add_u32 s{sC}, s{sC}, s{sWM}
            s_lshl_b32 s{sC}, s{sC}, 12
            s_add_u32 s{sC}, s{sC}, {L_ST2}
            v_lshlrev_b32 v3, 4, v0
            """)
            ins = {}
            for i in range(4): ins[28 + 2*i] = [f"buffer_load_dwordx4 v[{VST+4*i}:{VST+4*i+3}], v3, {WSR}, s{sC} offen offset:{1024*i} sc1"]
            b = Asm(); b("s_waitcnt vmcnt(0)"); row_stats(b, VST, MS, MS + 1)
            if vtype:
                b(f"v_sub_f32 v{VCV}, 0, v{VCV}\nv_sub_f32 v{VCV+2}, 0, v{VCV+2}")
                a(f"v_lshlrev_b32 v4, 4, v14")
                for tm in range(2):
                    for q in range(16):
                        off = (32*tm + 8*(q >> 2) + (q & 3)) * 4
                        b(f"ds_bpermute_b32 v{VM+16*tm+q}, v4, v{MS} offset:{off}")
                        ins.setdefault(120, []).append(f"ds_bpermute_b32 v{VR+16*tm+q}, v4, v{MS+1} offset:{off}")
                fix = lambda tl: [f"v_fmac_f32 v{ACC+16*tl+i}, v{VCV+2*(tl>>1)}, v{VM+16*(tl&1)+i}" for i in range(16)]
                ff = 92
            else:
                qk_stats_fin(b)
                fix = lambda tl: [f"v_fmac_f32 v{ACC+16*tl+i}, v{MS+4*(tl&1)}, v{VCS+16*(tl>>1)+i}" for i in range(16)]
                ff = 80
            ins[60] = b.lines
            gemm_unrolled(a, 10, 4, 6, rd, mf, [(0, 1), (2, 3)], ins, fix, ff, epi, 19, alt)
            return
        a("s_barrier")
        for x in reads(0) + reads(1): a(x)
        a(f"s_branch {ent}")
        a.label(lp)
        a("s_barrier")
        interleave(a, mfmas(3, vtype), reads(0) + reads(1))
        a.label(ent)
        a("s_waitcnt lgkmcnt(6)")
        interleave(a, mfmas(0, vtype), reads(2))
        a("s_waitcnt lgkmcnt(6)")
        interleave(a, mfmas(1, vtype), reads(3))
        a("s_waitcnt lgkmcnt(6)")
        if first:
            upd = [f"s_add_u32 s{sSa}, s{sSa}, 32768", f"s_and_b32 s{sSa}, s{sSa}, 0x1ffff", f"s_add_u32 s{sSw}, s{sSa}, 16384"]
        else:
            upd = [f"s_add_u32 s{sSa}, s{sSa}, 16384", f"s_and_b32 s{sSa}, s{sSa}, 0xffff",
                   f"s_add_u32 s{sSw}, s{sSw}, 16384", f"s_cmp_eq_u32 s{sSw}, 163840", f"s_cselect_b32 s{sSw}, {WB}, s{sSw}"]
        upd += [f"v_add_u32 v{8+i}, s{sSa}, v{2+i}" for i in range(nxa)] + [f"v_add_u32 v{12+i}, s{sSw}, v{6+i}" for i in range(2)] + [f"s_sub_u32 s{sC}, s{sC}, 1"]
        interleave(a, mfmas(2, vtype), upd)
        a(f"s_waitcnt lgkmcnt(0)")
        a(f"s_bitcmp1_b32 {HMASK1 if first else HMASK2}, s{sC}\ns_cbranch_scc1 {hk}")
        a.label(hb)
        a(f"s_cmp_lg_u32 s{sC}, 0\ns_cbranch_scc1 {lp}")
        hooks.append((hk, hb, vtype))
        b = Asm(); b("s_waitcnt vmcnt(0)"); row_stats(b, VST, MS, MS + 1)
        interleave(a, mfmas(3, vtype), b.lines)
        if vtype:
            a(f"""
            s_lshl_b32 s{t+7}, s{sW}, 9
            s_add_u32 s{t+7}, s{t+7}, {Q1_TAB}
            v_lshlrev_b32 v1, 2, v0
            v_add_u32 v1, s{t+7}, v1
            ds_write_b32 v1, v{MS}
            ds_write_b32 v1, v{MS+1} offset:256
            """)
            v_tab_reads(256)
        else: qk_stats_fin(a)
        a(f"s_lshl_b32 s{t+7}, s{sWN}, 8\ns_add_u32 s{t+7}, s{t+7}, {Q1_CS}\nv_add_u32 v4, s{t+7}, v{AD+9 if vtype else AD+8}")
        a("s_barrier")
        stamp(a, 2)
        for tn in range(2):
            if vtype: a(f"ds_read_b32 v{VCV+2*tn}, v4 offset:{128*tn}")
            else:
                for q in range(4):
                    r = VCS + 16*tn + 4*q
                    a(f"ds_read_b128 v[{r}:{r+3}], v4 offset:{(32*tn+16*(q>>1)+4*(q&1))*4}")
        read_nonce_mode(a)
        if vtype: a(f"v_sub_f32 v{VCV}, 0, v{VCV}\nv_sub_f32 v{VCV+2}, 0, v{VCV+2}")
        for x in epi(0) + epi(1): a(x)
    HMASK1 = (1 << 8) | (1 << 2)
    HMASK2 = (1 << 5) | (1 << 2)
    if not first:
        for tn in range(2):
            for q in range(4):
                r = VCS + 16*tn + 4*q
                a(f"buffer_load_dwordx4 v[{r}:{r+3}], v{AD+8}, {WSR}, s{sCS} offen offset:{(32*tn+16*(q>>1)+4*(q&1))*4} sc1")
    a(f"""
    s_mul_i32 s{sDst}, s{sTY}, {ACT}
    s_lshl_b32 s{t+8}, s{sRT}, 2
    s_lshl_b32 s{t+7}, s{sWM}, 1
    s_add_u32 s{t+8}, s{t+8}, s{t+7}
    s_mul_i32 s{t+8}, s{t+8}, 1280
    s_add_u32 s{sDst}, s{sDst}, s{t+8}
    s_add_u32 s{sDst}, s{sDst}, {LQ}
    s_lshr_b32 s{t+8}, s{sC0}, 3
    s_lshl_b32 s{t+7}, s{sWN}, 3
    s_add_u32 s{t+8}, s{t+8}, s{t+7}
    v_add_u32 v80, s{t+8}, v14
    s_mov_b32 s{t+13}, {HEADB}
    v_mov_b32 v86, 0x7fffffff
    s_mov_b32 s{sMk}, 0
    s_add_u32 s{sD1}, s{sDst}, 1280
    """)
    if qloc:
        a(f"""
        s_lshl_b32 s{t+8}, s{sRT}, 1
        s_add_u32 s{t+8}, s{t+8}, s{sWM}
        s_mul_i32 s{t+8}, s{t+8}, {2*F*64}
        s_add_u32 s{t+8}, s{t+8}, {L_H + 57344}
        s_add_u32 s{t+7}, s{t+8}, {F*64}
        s_cmp_eq_u32 s{sTY}, 0
        s_cselect_b32 s{sDst}, s{t+8}, s{sDst}
        s_cselect_b32 s{sD1}, s{t+7}, s{sD1}
        s_cselect_b32 s{t+13}, 1280, s{t+13}
        """)
    a(f"s_add_u32 s{t+14}, s{sDst}, s{t+13}\ns_add_u32 s{sD1+1}, s{sD1}, s{t+13}")
    for sl in range(4):
        a(f"""
        v_add_u32 v81, {2*sl}, v80
        v_mul_u32_u24 v82, 205, v81
        v_lshrrev_b32 v82, 10, v82
        v_mad_i32_i24 v81, v82, -5, v81
        v_cmp_lt_u32 vcc, 2, v81
        v_lshlrev_b32 v82, 1, v82
        v_add_u32 v83, -3, v81
        v_cndmask_b32 v83, v81, v83, vcc
        v_addc_co_u32 v82, vcc, 0, v82, vcc
        v_lshlrev_b32 v83, 9, v83
        v_lshl_add_u32 v83, v15, 4, v83
        v_lshlrev_b32 v85, 3, v15
        v_add_u32 v85, 1024, v85
        v_cmp_eq_u32 vcc, 2, v81
        v_mul_lo_u32 v84, v82, s{t+13}
        s_cmp_lg_u64 vcc, 0
        v_cndmask_b32 v83, v83, v86, vcc
        v_cndmask_b32 v85, v86, v85, vcc
        s_cselect_b32 s{t+7}, {1 << sl}, 0
        s_or_b32 s{sMk}, s{sMk}, s{t+7}
        v_add_u32 v{AD+sl}, v83, v84
        v_add_u32 v{AD+4+sl}, v85, v84
        """)
    def qk_stats_fin(a):
        a(f"""
        s_cmp_eq_u32 s{sTY}, 0
        s_cselect_b32 s{t+7}, {f32(QSCALE)}, 1.0
        v_mul_f32 v{MS+2}, s{t+7}, v{MS+1}
        v_mul_f32 v{MS+6}, s{t+7}, v{MS+1}
        v_sub_f32 v{MS+4}, 0, v{MS}
        v_sub_f32 v{MS}, 0, v{MS}
        s_nop 1
        v_permlane32_swap_b32 v{MS}, v{MS+4}
        v_permlane32_swap_b32 v{MS+2}, v{MS+6}
        s_nop 1
        """)
    def epi_qk(tn, pk=True, bits='sc1'):
        r = []
        for tm in range(2):
            c = ACC + 16*(2*tn + tm); cs = VCS + 16*tn; m = MS + 4*tm
            for p in range(2):
                if pk:
                    for i in range(8*p, 8*p + 8, 2):
                        if first: r.append(f"v_pk_fma_f32 v[{c+i}:{c+i+1}], v[{cs+i}:{cs+i+1}], v[{m}:{m+1}], v[{c+i}:{c+i+1}] op_sel_hi:[1,0,1]")
                    for i in range(8*p, 8*p + 8, 2):
                        r.append(f"v_pk_mul_f32 v[{c+i}:{c+i+1}], v[{c+i}:{c+i+1}], v[{m+2}:{m+3}] op_sel_hi:[1,0]")
                else:
                    for i in range(8*p, 8*p + 8): r.append(f"v_mul_f32 v{c+i}, v{m+2}, v{c+i}")
                for i in range(4):
                    r.append(f"v_cvt_pk_bf16_f32 v{c+8*p+i}, v{c+8*p+2*i}, v{c+8*p+2*i+1}")
                r.append(f"buffer_store_dwordx4 v[{c+8*p}:{c+8*p+3}], v{AD+2*tn+p}, {WSR}, s{sD1 if tm else sDst} offen {bits}")
        return r
    def bparts(bits):
        for sl in range(4):
            sk = a.uid("qk_b")
            a(f"s_bitcmp0_b32 s{sMk}, {sl}\ns_cbranch_scc1 {sk}")
            for tm in range(2):
                o = ACC + 16*(2*(sl >> 1) + tm) + 8*(sl & 1)
                a(f"buffer_store_dwordx2 v[{o}:{o+1}], v{AD+4+sl}, {WSR}, s{sD1 if tm else sDst} offen {bits}")
                a(f"buffer_store_dwordx2 v[{o+2}:{o+3}], v{AD+4+sl}, {WSR}, s{sD1+1 if tm else t+14} offen {bits}")
            a.label(sk)
        a(f"s_branch {fin}")
    if qloc: mainloop(False, epi_qk, (f"s_cmp_eq_u32 s{sTY}, 0", lambda tn, pk: epi_qk(tn, pk, ""), lambda: bparts("sc1"), lambda: bparts("")))
    else:
        mainloop(False, epi_qk); bparts("sc1")
    a.label(vlab)
    if not first:
        for tn in range(2):
            a(f"buffer_load_dword v{VCV+2*tn}, v{AD+9}, {WSR}, s{sCS} offen offset:{128*tn} sc1")
    a(f"""
    s_lshl_b32 s{t+8}, s{sRT}, 3
    s_lshl_b32 s{t+7}, s{sWM}, 2
    s_add_u32 s{t+8}, s{t+8}, s{t+7}
    s_mul_i32 s{sDst}, s{t+8}, 640
    s_add_u32 s{sDst}, s{sDst}, {L_V + LQ}
    s_lshl_b32 s{t+7}, s{sWN}, 6
    s_add_u32 s{t+8}, s{sC0}, s{t+7}
    v_add_u32 v80, s{t+8}, v15
    v_mul_u32_u24 v81, 320, v14
    s_mov_b32 s{t+13}, {HEADB}
    s_movk_i32 s{t+14}, 3277
    s_movk_i32 s{t+7}, -20
    """)
    for tn in range(2):
        a(f"""
        v_add_u32 v83, {32*tn}, v80
        v_mul_u32_u24 v84, s{t+14}, v83
        v_lshrrev_b32 v84, 16, v84
        v_mad_i32_i24 v83, v84, s{t+7}, v83
        v_lshl_add_u32 v83, v83, 4, v81
        v_mul_lo_u32 v85, v84, s{t+13}
        v_add_u32 v{AD+tn}, v83, v85
        """)
    def epi_v(tn, pk=True):
        r = []
        for tm in range(2):
            c = ACC + 16*(2*tn + tm); cv = VCV + 2*tn
            for p in range(2):
                if pk:
                    for i in range(8*p, 8*p + 8, 2):
                        if first: r.append(f"v_pk_fma_f32 v[{c+i}:{c+i+1}], v[{VM+16*tm+i}:{VM+16*tm+i+1}], v[{cv}:{cv+1}], v[{c+i}:{c+i+1}] op_sel_hi:[1,0,1]")
                    for i in range(8*p, 8*p + 8, 2):
                        r.append(f"v_pk_mul_f32 v[{c+i}:{c+i+1}], v[{c+i}:{c+i+1}], v[{VR+16*tm+i}:{VR+16*tm+i+1}]")
                else:
                    for i in range(8*p, 8*p + 8): r.append(f"v_mul_f32 v{c+i}, v{VR+16*tm+i}, v{c+i}")
                for i in range(4):
                    r.append(f"v_cvt_pk_bf16_f32 v{c+8*p+i}, v{c+8*p+2*i}, v{c+8*p+2*i+1}")
                r.append(f"buffer_store_dwordx4 v[{c+8*p}:{c+8*p+3}], v{AD+tn}, {WSR}, s{sDst} offen offset:{640*(2*tm+p)} sc1")
        return r
    mainloop(True, epi_v)
    a.label(fin)
    stamp(a, 3 if first else 20)
    flag_setup(a, 1 if first else 6)
    a(f"s_lshl_b32 s{t+7}, s{sWG}, 5\ns_add_u32 s{t+7}, s{t+7}, s{sW}\ns_lshl_b32 s{t+7}, s{t+7}, 2\ns_add_u32 s{t+7}, s{t+7}, {L_FG + LQ}")
    a("s_waitcnt vmcnt(0)")
    if first:
        l1 = a.uid("q1f"); l2 = a.uid("q1g")
        a(f"s_cmp_eq_u32 s{sMODE}, 0\ns_cbranch_scc1 {l1}")
        flag_store(a, ""); a(f"s_branch {l2}")
        a.label(l1); flag_store(a, "sc1"); a.label(l2)
    else: flag_store(a, SB)
    flag_store(a, "sc1", t+7)
    a(f"s_branch {done}")
    for hk, hb, vtype in hooks:
        a.label(hk)
        if first:
            nx = a.uid("hk")
            a(f"s_cmp_lg_u32 s{sC}, 2\ns_cbranch_scc1 {nx}")
            a(f"""
            s_lshl_b32 s{t+7}, s{sRT}, 1
            s_add_u32 s{t+7}, s{t+7}, s{sWM}
            s_lshl_b32 s{t+7}, s{t+7}, 12
            s_add_u32 s{t+7}, s{t+7}, {WS_ST0}
            v_lshlrev_b32 v1, 4, v0
            """)
            for i in range(4):
                a(f"buffer_load_dwordx4 v[{VST+4*i}:{VST+4*i+3}], v1, {WSR}, s{t+7} offen offset:{1024*i} sc1")
            a(f"s_branch {hb}")
            a.label(nx)
            a("s_waitcnt vmcnt(0)")
        a(f"s_branch {hb}")
    a.label(done)

def qkvW_setup(a, sWo, sLW, sCT, sTmp, vW):
    a(f"""
    v_lshrrev_b32 v2, 4, v0
    v_mul_u32_u24 v1, 3840, v2
    v_lshlrev_b32 v7, 2, v2
    v_and_b32 v3, 15, v0
    v_xor_b32 v3, v3, v7
    v_lshl_add_u32 v{vW}, v3, 4, v1
    s_mul_i32 s{sWo}, s{sLW}, {16*3840}
    s_lshl_b32 s{sTmp}, s{sCT}, 8
    s_add_u32 s{sWo}, s{sWo}, s{sTmp}
    """)

def qkv1_loader(a):
    t = T
    sRT, sCT = t, t+1
    sLW, sAo, sWo, sM, sTmp, sRot, sThr, sA1, sW1, sSel = t+2, t+3, t+4, t+5, t+6, t+8, t+9, t+10, t+11, t+12
    a(f"s_sub_u32 s{sLW}, s{sW}, 4")
    qkvW_setup(a, sWo, sLW, sCT, sTmp, 6)
    a(f"""
    s_lshl_b32 s{sM}, s{sLW}, 12
    s_lshl_b32 s{sAo}, s{sRT}, 2
    s_add_u32 s{sAo}, s{sAo}, s{sLW}
    s_mul_i32 s{sAo}, s{sAo}, {32*1280}
    v_lshrrev_b32 v1, 3, v0
    v_mul_u32_u24 v1, 1280, v1
    v_and_b32 v3, 7, v0
    v_xor_b32 v3, v3, v2
    v_lshl_add_u32 v4, v3, 4, v1
    v_xor_b32 v3, 4, v3
    v_lshl_add_u32 v5, v3, 4, v1
    s_lshr_b32 s{sRot}, s{sR}, 4
    s_mul_i32 s{sRot}, s{sRot}, 5
    s_add_u32 s{sRot}, s{sRot}, s{sCT}
    s_add_u32 s{sRot}, s{sRot}, s{sG}
    s_mul_i32 s{sTmp}, s{sRot}, 26
    s_lshr_b32 s{sTmp}, s{sTmp}, 8
    s_mul_i32 s{sTmp}, s{sTmp}, 10
    s_sub_u32 s{sRot}, s{sRot}, s{sTmp}
    """)
    if not C.rot: a(f"s_mov_b32 s{sRot}, 0")
    if C.rot == 2: a(f"s_lshr_b32 s{sRot}, s{sR}, 4\ns_mul_i32 s{sRot}, s{sRot}, 5")
    a(f"s_sub_u32 s{sThr}, 10, s{sRot}")
    SA = Src(sAo, sA1, sThr, 128); SW = Src(sWo, sW1, sThr, 64*3840)
    SA.setup(a, sRot, 10, sTmp); SW.setup(a, sRot, 10, sTmp)
    a("s_waitcnt lgkmcnt(0)")
    srd(a, R_X, P_X, ACT)
    srd(a, R_WQ, P_WQKV, D*3*D*2)
    def emitA(c, i0, k):
        SA.sel(a, c, sSel)
        for i in range(i0, i0 + k):
            a(f"s_add_u32 m0, s{sM}, {(c % 4)*32768 + 1024*i}\ns_add_u32 s{sTmp}, s{sSel}, {c*128 + i*8*1280}")
            a(f"buffer_load_dwordx4 v{4 + (i & 1)}, {R(R_X)}, s{sTmp} offen lds")
    def emitW(c, i0, k):
        SW.sel(a, c, sSel)
        for i in range(i0, i0 + k):
            a(f"s_add_u32 m0, s{sM}, {16384 + (c % 4)*32768 + 1024*i}\ns_add_u32 s{sTmp}, s{sSel}, {c*64*3840 + i*4*3840}")
            a(f"buffer_load_dwordx4 v6, {R(R_WQ)}, s{sTmp} offen lds")
    LD = Loader(a); mark = [0]
    def xstats(c):
        if c == 0:
            other_srds(a)
            a(f"""
            v_bfe_u32 v8, v0, 2, 2
            v_lshrrev_b32 v9, 5, v0
            v_lshl_add_u32 v9, v9, 3, v8
            v_lshlrev_b32 v9, 8, v9
            v_and_b32 v10, 3, v0
            v_lshl_add_u32 v9, v10, 3, v9
            v_bfe_u32 v10, v0, 4, 1
            v_lshl_add_u32 v9, v10, 5, v9
            v_xor_b32 v8, s{sLW}, v8
            v_lshl_add_u32 v9, v8, 6, v9
            v_add_u32 v9, 16384, v9
            v_add_u32 v8, 65536, v9
            """)
            for i in range(4): a(f"v_mov_b32 v{12+i}, 0x3f803f80")
        for kk in range(0 if C.nocs else 4):
            for j in range(2):
                a(f"ds_read_b64_tr_b16 v[{16+4*kk+2*j}:{17+4*kk+2*j}], v{9 if (c % 4) < 2 else 8} offset:{(c % 2)*32768 + 4096*kk + 1024*j}")
        a("s_waitcnt lgkmcnt(0)")
        for kk in range(0 if C.nocs else 4):
            a(f"v_mfma_f32_32x32x16_bf16 v[32:47], v[12:15], v[{16+4*kk}:{19+4*kk}], {'v[32:47]' if (c or kk) else 0}")
        n = LD.total - mark[0]
        if c in (0, 4): mark[0] = LD.total
        st = {0: lambda: (flags_zero(a), nonce_issue(a, 81, 82)), 2: lambda: nonce_get(a, 80, 81, 82, n), 4: lambda: census(a, 80, 81, True), 6: lambda: census(a, 80, 81, False, n)}
        if c in st:
            l = a.uid("w7")
            a(f"s_cmp_lg_u32 s{sW}, 7\ns_cbranch_scc1 {l}")
            st[c](); a.label(l)
    if C.q1prio: a("s_setprio 2")
    stamp(a, 1)
    ph = Phase("q1", 10, 4, 4, emitA, emitW, lambda c: ((c % 4)*32768, (c % 4)*32768 + 16384), lambda c: ((c % 4)*32768 + 16384, (c % 4 + 1)*32768),
               None, C.bud_q1, after_bar=xstats, dbg=(C.dbg == 1))
    def waitfn(w):
        l1 = a.uid("pw"); l2 = a.uid("pw"); l3 = a.uid("pw")
        a(f"s_cmp_eq_u32 s{sW}, 4\ns_cbranch_scc1 {l1}\ns_cmp_eq_u32 s{sW}, 7\ns_cbranch_scc1 {l2}\ns_waitcnt vmcnt({w+5})\ns_branch {l3}")
        a.label(l1); a(f"s_waitcnt vmcnt({w+16})\ns_branch {l3}")
        a.label(l2); a(f"s_waitcnt vmcnt({w})")
        a.label(l3)
    ph.look = C.look_q1
    LD.run(ph, None)
    a(f"""
    v_and_b32 v1, 31, v0
    v_lshlrev_b32 v1, 2, v1
    s_lshl_b32 s{sTmp}, s{sLW}, 7
    v_add_u32 v1, s{sTmp}, v1
    v_add_u32 v2, {Q1_CS}, v1
    s_lshl_b32 s{sTmp}, s{sWG}, 9
    s_add_u32 s{sTmp}, s{sTmp}, {WS_CSQ}
    s_setprio 0
    s_nop 3
    ds_write_b32 v2, v32
    buffer_store_dword v32, v1, {WSR}, s{sTmp} offen
    s_waitcnt lgkmcnt(0)
    """)
    stamp(a, 2)
    a("s_barrier")
    read_nonce_mode(a)

def other_srds(a):
    srd(a, R_WS, P_WS, WS_END)
    srd(a, R_WG, P_WG, D*F*2)
    srd(a, R_WU, P_WU, D*F*2)
    srd(a, R_T, P_WS, WS_END)

def qkv1_idle(a):
    l2 = a.uid("idl"); l1 = a.uid("idl"); l3 = a.uid("idl"); l4 = a.uid("idl"); lj = a.uid("idl")
    tj = 84; K = NAME + "_kernel"
    a(f"v_lshlrev_b32 v5, 4, v0\ns_cmp_lt_u32 s{sW}, 4\ns_cbranch_scc1 {l1}")
    a(f"s_xor_b32 s{tj}, s{sW}, 7\ns_or_b32 s{tj}, s{tj}, s{T}\ns_cmp_lg_u32 s{tj}, 0\ns_cbranch_scc1 {l3}")
    nonce_put(a)
    a.label(l3)
    a(f"s_getpc_b64 s[{tj+4}:{tj+5}]")
    a.label("L_pc")
    a(f"""
    s_sub_u32 s{tj+4}, s{tj+4}, L_pc-{K}
    s_subb_u32 s{tj+5}, s{tj+5}, 0
    s_and_b32 s{tj}, s{T}, 1
    s_lshl_b32 s{tj}, s{tj}, 2
    s_add_u32 s{tj}, s{tj}, s{sW}
    s_sub_u32 s{tj}, s{tj}, 4
    s_lshl_b32 s{tj}, s{tj}, 13
    v_lshlrev_b32 v1, 7, v0
    v_add_u32 v2, s{tj}, v1
    global_load_dword v251, v2, s[{tj+4}:{tj+5}]
    """)
    a(f"s_lshl_b32 s{tj}, s{T}, 2\ns_add_u32 s{tj}, s{tj}, s{sW}\ns_add_u32 s{tj+2}, s{tj}, {60 - 4}\ns_lshl_b32 s{tj+2}, s{tj+2}, 13")
    for i in range(4):
        if C.q1pf: a(f"buffer_load_dword v251, v1, {R(R_WQ)}, s{tj+2} offen\ns_add_u32 s{tj+2}, s{tj+2}, {64*8192}")
        if i == 0: a("s_barrier")
    a(f"s_branch {l2}")
    a.label(l1)
    xstat_fin(a)
    a(f"s_cmp_lg_u32 s{sW}, 0\ns_cbranch_scc1 {l4}")
    flags_zero(a)
    a.label(l4)
    a(f"s_waitcnt vmcnt(0)\ns_barrier\ns_cmp_lg_u32 s{sW}, 0\ns_cbranch_scc1 {l2}")
    nonce_issue(a, 81, 82)
    nonce_get(a, 80, 81, 82)
    a.label(l2)
    a(f"s_mul_i32 s{tj}, s{T}, 10\ns_add_u32 s{tj+7}, s{tj}, 10\ns_add_u32 s{tj}, s{tj}, s{sW}\ns_mul_i32 s{tj+1}, s{sW}, 5120")
    a.label(lj)
    projjob_issue(a, tj, tj+1, tj)
    a("s_waitcnt vmcnt(0)")
    projjob_finish(a, tj+1, tj)
    a(f"s_add_u32 s{tj}, s{tj}, 8\ns_cmp_lt_u32 s{tj}, s{tj+7}\ns_cbranch_scc1 {lj}")
    l5 = a.uid("idl")
    a(f"s_waitcnt vmcnt(0)\ns_barrier\ns_cmp_lg_u32 s{sW}, 0\ns_cbranch_scc1 {l5}")
    a(f"""
    s_lshl_b32 s{tj}, s{sWG}, 7
    s_add_u32 s{tj}, s{tj}, {L_FG + 36}
    v_mov_b32 v1, 0
    v_mov_b32 v2, s{sEP}
    """)
    flag_store(a, "sc1", tj)
    census(a, 80, 81, True)
    census(a, 80, 81, False)
    a.label(l5)
    a("s_barrier")
    read_nonce_mode(a)

def phase_attn(a, SB, ld_label):
    fast = SB == ""
    t = T
    CH = 20480
    sQP, sKH, sSrc, sDst, sTmp, sC, sHB = t, t+1, t+2, t+3, t+4, t+5, t+8
    sEX = t+6
    sWs, sWd, sPF = t+9, t+10, t+11
    tj = 84; sJob, sScr = tj, tj + 1
    QAREA = 102400
    QA, QB = 16, 22
    NM, SS, PP, OO, KF, VF = 32, 64, 96, 112, 144, 160
    vK, vK8, vV = 2, 3, 4
    DUM = 176; XF = 177
    KVB = 'nt sc1' if C.nt_kv else 'sc1'
    stamp(a, 4)
    a(f"""
    s_and_b32 s{sQP}, s{sW}, 3
    s_lshr_b32 s{sKH}, s{sW}, 2
    v_lshlrev_b32 v5, 4, v0
    s_mul_i32 s{sHB}, s{sR}, {HEADB}
    s_add_u32 s{sHB}, s{sHB}, s{sLO}
    s_and_b32 s{sTmp}, s{sQP}, 1
    s_mul_i32 s{sSrc}, s{sTmp}, 5120
    s_mul_i32 s{sDst}, s{sTmp}, 10240
    s_lshr_b32 s{sTmp}, s{sQP}, 1
    s_mul_i32 s{sC}, s{sTmp}, 5120
    s_add_u32 s{sDst}, s{sDst}, s{sC}
    s_mul_i32 s{sC}, s{sTmp}, {ACT}
    s_add_u32 s{sSrc}, s{sSrc}, s{sC}
    s_add_u32 s{sSrc}, s{sSrc}, s{sHB}
    s_add_u32 s{sSrc}, s{sSrc}, {L_K}
    """)
    def kv_issue(j):
        GF.need(0x01010101 << j)
        a(f"s_add_u32 s{sTmp}, s{sG}, {j}\ns_and_b32 s{sTmp}, s{sTmp}, 7\ns_mul_i32 s{sTmp}, s{sTmp}, 10240\ns_add_u32 s{sTmp}, s{sTmp}, s{sSrc}")
        return lin_dma(a, 5, sTmp, 0, sDst, j * CH, 5, KVB)
    def init():
        a(f"""
        v_lshrrev_b32 v14, 5, v0
        v_and_b32 v15, 31, v0
        v_lshlrev_b32 v6, 3, v15
        s_mul_i32 s{sTmp}, s{sKH}, 10240
        v_add_u32 v{vK}, s{sTmp}, v5
        v_add_u32 v{vK8}, s{sTmp}, v6
        v_mul_u32_u24 v7, 320, v14
        v_lshl_add_u32 v7, v15, 4, v7
        v_add_u32 v{vV}, s{sTmp}, v7
        s_mov_b32 s{sEX}, 0x000fffff
        s_mov_b32 s{sEX+1}, 0x000fffff
        v_and_b32 v9, 27, v0
        v_cmp_eq_u32 vcc, 24, v9
        v_mov_b32 v8, 0x3f803f80
        s_nop 0
        v_cndmask_b32 v8, 0, v8, vcc
        v_mov_b32 v9, v8
        v_lshlrev_b32 v13, 7, v0
        v_mov_b32 v12, 0
        """)
        for i in range(0, 16, 2): a(f"v_mov_b64 v[{VF+i}:{VF+i+1}], v[8:9]")
        for i in range(0, 32, 2): a(f"v_mov_b64 v[{OO+i}:{OO+i+1}], 0")
        for i in range(0, 8, 2): a(f"v_mov_b64 v[{PP+8+i}:{PP+8+i+1}], 0")
        a(f"v_mov_b64 v[{QA+4}:{QA+5}], 0\nv_mov_b64 v[{QB+4}:{QB+5}], 0")
    init()
    l0 = a.uid("att_old"); l1 = a.uid("att_j")
    a(f"s_cmp_eq_u32 s{sKH}, 0\ns_cbranch_scc1 {l0}")
    poll_local(a, "attn", 1, va=10, vt=11)
    stamp(a, 5)
    a(f"""
    s_mul_i32 s{sC}, s{sQP}, 2560
    s_add_u32 s{sPF}, s{sC}, {QAREA}
    s_mul_i32 s{sTmp}, s{sG}, 10240
    s_add_u32 s{sTmp}, s{sTmp}, s{sC}
    s_add_u32 s{sTmp}, s{sTmp}, s{sHB}
    """)
    a(f"s_add_u32 s{sC}, s{sTmp}, 1280")
    if fast and C.qloc:
        a(f"""
        s_lshl_b32 s{sWs}, s{sG}, 2
        s_add_u32 s{sWs}, s{sWs}, s{sQP}
        s_mul_i32 s{sWs}, s{sWs}, {2*F*64}
        s_mul_i32 s{sWd}, s{sR}, 1280
        s_add_u32 s{sWs}, s{sWs}, s{sWd}
        s_add_u32 s{sWs}, s{sWs}, {L_H + 57344}
        s_add_u32 s{sWd}, s{sWs}, {F*64}
        s_cmp_lg_u32 s{sL}, 0
        s_cselect_b32 s{sTmp}, s{sWs}, s{sTmp}
        s_cselect_b32 s{sC}, s{sWd}, s{sC}
        """)
    for x, sr in ((0, sTmp), (1, sC)):
        a(f"""
        s_add_u32 m0, s{sPF}, {1280*x}
        s_mov_b64 exec, -1
        buffer_load_dwordx4 v5, {WSR}, s{sr} offen {KVB} lds
        s_mov_b64 exec, 0xffff
        buffer_load_dwordx4 v5, {WSR}, s{sr} offen offset:1024 {KVB} lds
        """)
    a("s_mov_b64 exec, -1")
    a(f"s_mul_i32 s{sTmp}, s{sG}, 10240\ns_add_u32 s{sTmp}, s{sTmp}, s{sSrc}")
    lin_dma(a, 5, sTmp, 0, sDst, 0, 2, KVB)
    if C.stage: a(f"s_waitcnt vmcnt({C.stage - 1})")
    lin_dma(a, 5, sTmp, 2048, sDst, 2048, 3, KVB)
    if C.stage != 1: a(f"s_waitcnt vmcnt(3)")
    a(f"s_branch {l1}")
    a.label(l0)
    a(f"""
    s_setprio 1
    v_add_u32 v10, s{sG}, v0
    v_and_b32 v10, 7, v10
    v_bfe_u32 v11, v0, 3, 1
    v_mul_u32_u24 v11, 19, v11
    s_mul_i32 s{sTmp}, s{sR}, 20
    v_add_u32 v11, s{sTmp}, v11
    v_lshrrev_b32 v11, 7, v11
    v_lshl_add_u32 v10, v10, 5, v11
    s_and_b32 s{sTmp}, s{sQP}, 1
    s_lshl_b32 s{sTmp}, s{sTmp}, 4
    s_lshr_b32 s{sC}, s{sQP}, 1
    s_mul_i32 s{sC}, s{sC}, 5
    s_add_u32 s{sTmp}, s{sTmp}, s{sC}
    s_add_u32 s{sTmp}, s{sTmp}, 5
    v_add_u32 v10, s{sTmp}, v10
    v_lshlrev_b32 v12, 7, v10
    v_lshrrev_b32 v11, 4, v0
    v_lshl_add_u32 v12, v11, 2, v12
    s_and_b32 s{sWs}, s{sR}, 7
    s_mul_i32 s{sWs}, s{sWs}, 102400
    s_mul_i32 s{sWd}, s{sW}, 5120
    s_add_u32 s{sWs}, s{sWs}, s{sWd}
    s_add_u32 s{sWs}, s{sWs}, {WS_WTO}
    s_add_u32 s{sGO}, s{sLO}, {L_FG}
    s_add_u32 s{sGW}, s{sEP}, 1
    """)
    def cpf(lo, hi):
        l = a.uid("cpf"); pc = a.uid("pc")
        a(f"s_or_b32 s{sC}, s{sL}, s{sW}\ns_cmp_lg_u32 s{sC}, 0\ns_cbranch_scc1 {l}\ns_getpc_b64 s[{t+12}:{t+13}]")
        a.label(pc)
        a(f"""
        s_sub_u32 s{t+12}, s{t+12}, {pc}-{NAME}_kernel
        s_subb_u32 s{t+13}, s{t+13}, 0
        s_lshl_b32 s{sC}, s{sR}, 11
        s_add_u32 s{sC}, s{sC}, {lo}-{NAME}_kernel
        v_add_u32 v{PV+2}, s{sC}, v13
        v_min_u32 v{PV+2}, {hi}-{NAME}_kernel, v{PV+2}
        s_mov_b64 exec, 0xffff
        global_load_dword v{DUM}, v{PV+2}, s[{t+12}:{t+13}]
        s_mov_b64 exec, -1
        """)
        a.label(l)
    if fast and C.cpf: cpf("L_fast", "L_fast_post")
    a.label(l1)
    GF = Gate(a, 12, PV, fold=True, sleep=2)
    a(f"""
    s_mul_i32 s{sC}, s{sQP}, 2560
    s_add_u32 s{sC}, s{sC}, {QAREA}
    v_add_u32 v10, s{sC}, v5
    v_add_u32 v11, s{sC}, v6
    s_barrier
    ds_read_b128 v[{QA}:{QA+3}], v10
    ds_read_b128 v[{QB}:{QB+3}], v10 offset:1280
    s_mov_b32 exec_hi, 0
    ds_read_b64 v[{QA+4}:{QA+5}], v11 offset:1024
    ds_read_b64 v[{QB+4}:{QB+5}], v11 offset:{1280+1024}
    s_mov_b32 exec_hi, -1
    """)
    stamp(a, 6)
    l1 = a.uid("att_ap")
    a(f"s_cmp_lg_u32 s{sKH}, 0\ns_cbranch_scc1 {l1}")
    GF.load()
    a.label(l1)
    base = [0]
    def rdK(st, c, kt):
        off = c * CH + kt * 1280 - base[0]
        assert 0 <= off and off + 1024 < 65536
        b = KF + 8*st
        return [f"ds_read_b128 v[{b}:{b+3}], v{vK} offset:{off}", f"ds_read_b64 v[{b+4}:{b+5}], v{vK8} offset:{off+1024}"]
    def rdV(st, c, kt):
        off = c * CH + 5120 + kt * 1280 - base[0]
        assert 0 <= off and off + 640 < 65536
        b = VF + 8*st
        return [f"s_mov_b64 exec, s[{sEX}:{sEX+1}]", f"ds_read_b128 v[{b}:{b+3}], v{vV} offset:{off}",
                f"ds_read_b128 v[{b+4}:{b+7}], v{vV} offset:{off+640}", f"s_mov_b64 exec, -1"]
    def qk(x, st, c=None):
        b = KF + 8*st; q = (QA, QB)[x]; sd = SS + 16*x
        cc = v(NM + 16*x, 16) if c is None else c
        return [f"v_mfma_f32_32x32x16_bf16 {v(sd,16)}, {v(b,4)}, {v(q,4)}, {cc}",
                f"v_mfma_f32_32x32x8_bf16 {v(sd,16)}, {v(b+4,2)}, {v(q+4,2)}, {v(sd,16)}"]
    def pv(x, st):
        b = VF + 8*st; p = PP + 8*x; o = OO + 16*x
        return [f"v_mfma_f32_32x32x16_bf16 {v(o,16)}, {v(b,4)}, {v(p,4)}, {v(o,16)}",
                f"v_mfma_f32_32x32x16_bf16 {v(o,16)}, {v(b+4,4)}, {v(p+4,4)}, {v(o,16)}"]
    def sm(x):
        sd = SS + 16*x; p = PP + 8*x; r = []
        for i in range(8):
            r.append(f"v_exp_f32 v{sd+2*i}, v{sd+2*i}")
            r.append(f"v_exp_f32 v{sd+2*i+1}, v{sd+2*i+1}")
            if i > 0: r.append(f"v_cvt_pk_bf16_f32 v{p+i-1}, v{sd+2*i-2}, v{sd+2*i-1}")
        r.append(f"v_cvt_pk_bf16_f32 v{p+7}, v{sd+14}, v{sd+15}")
        return r
    def setm():
        for x in range(2): a(f"v_mov_b32 v{10+x}, v{8+x}")
        a("s_nop 0")
        for x in range(2): a(f"v_permlane32_swap_b32 v{8+x}, v{10+x}")
        a("s_nop 0")
        for x in range(2): a(f"v_max_f32 v{8+x}, v{8+x}, v{10+x}")
        for x in range(2):
            a(f"v_sub_f32 v{NM+16*x}, 0, v{8+x}\nv_sub_f32 v{NM+16*x+1}, 0, v{8+x}")
            for i in range(2, 16, 2): a(f"v_mov_b64 v[{NM+16*x+i}:{NM+16*x+i+1}], v[{NM+16*x}:{NM+16*x+1}]")
    for x in rdK(0, 0, 0): a(x)
    a("s_waitcnt lgkmcnt(0)")
    m = qk(0, 0, "0") + qk(1, 0, "0")
    for i in (0, 1, 2, 3): a(m[i])
    a.nop(10)
    for x in range(2):
        sd = SS + 16*x
        a(f"v_max3_f32 v{8+x}, v{sd}, v{sd+1}, v{sd+2}")
        for i in range(3, 15, 2):
            a(f"v_max3_f32 v{8+x}, v{8+x}, v{sd+i}, v{sd+i+1}")
        a(f"v_max_f32 v{8+x}, v{8+x}, v{sd+15}")
    setm()
    for i in range(16): a(f"v_sub_f32 v{SS+i}, v{SS+i}, v8")
    l1 = a.uid("att_w0"); l2 = a.uid("att_w1")
    sDone = t + 15
    a(f"s_cmp_eq_u32 s{sKH}, 0\ns_cbranch_scc1 {l1}\ns_waitcnt vmcnt(0)\ns_barrier\ns_branch {l2}")
    a.label(l1)
    a("s_barrier")
    GF.upd()
    a(f"s_and_b32 s{sDone}, s{sNR}, 0x02020202\ns_cbranch_scc1 {l2}")
    GF.ok = 0x02020202; kv_issue(1); GF.ok = 0
    a.label(l2)
    stamp(a, 7)
    def l0only(fn):
        l = a.uid("l0")
        a(f"s_cmp_lg_u32 s{sL}, 0\ns_cbranch_scc1 {l}")
        fn(); a.label(l)
    def l2pf(i0, n):
        for i in range(i0, min(i0 + n, (C.l2pf + 3) // 4)):
            l = a.uid("pfs")
            a(f"""
            s_cmp_ge_u32 s{sW}, {C.l2pf - 4*i}
            s_cbranch_scc1 {l}
            s_lshr_b32 s{sPF}, s{sR}, 4
            s_mul_i32 s{sPF}, s{sPF}, {15 if C.rot_gu else 1}
            s_mul_i32 s{sC}, s{sW}, {1 if C.rot_gu else 2}
            s_add_u32 s{sPF}, s{sPF}, s{sC}
            s_add_u32 s{sPF}, s{sPF}, {4*i if C.rot_gu else 8*i}
            s_lshl_b32 s{sPF}, s{sPF}, 13
            s_and_b32 s{sC}, s{sR}, 15
            s_mul_i32 s{sC}, s{sC}, 245760
            s_add_u32 s{sPF}, s{sPF}, s{sC}
            s_add_u32 s{sPF}, s{sPF}, {WS_WTG}
            buffer_load_dword v{DUM}, v13, {WSR}, s{sPF} offen
            """)
            a.label(l)
    def wwo(c): lin_dma(a, 5, sWs, c*20480, sWd, c*20480, 5, 'nt' if C.nt_wo else '')
    def fp():
        a(f"""
        s_lshl_b32 s{sC}, s{sWG}, 5
        s_add_u32 s{sC}, s{sC}, s{sW}
        s_lshl_b32 s{sC}, s{sC}, 2
        s_add_u32 s{sC}, s{sC}, {L_FG + 16}
        v_mov_b32 v10, 0
        v_mov_b32 v11, s{sEP}
        s_mov_b64 exec, 1
        buffer_store_dword v11, v10, {WSR}, s{sC} offen sc1
        s_mov_b64 exec, -1
        """)
    def cs1():
        l = a.uid("cs")
        a(f"s_cmp_lg_u32 s{sW}, 3\ns_cbranch_scc1 {l}\ns_mov_b32 exec_hi, 0xffff")
        a(f"s_and_b32 s{sC}, s{sR}, 15\ns_mul_i32 s{sC}, s{sC}, 768\ns_add_u32 s{sC}, s{sC}, {WS_CSP}")
        for i in range(10):
            a(f"buffer_load_dwordx4 v[{PV+4*i}:{PV+3+4*i}], v5, {WSR}, s{sC} offen\ns_add_u32 s{sC}, s{sC}, 12288")
        a("s_mov_b32 exec_hi, -1")
        a.label(l)
    def cs2():
        l = a.uid("cs")
        a(f"s_cmp_lg_u32 s{sW}, 3\ns_cbranch_scc1 {l}\ns_mov_b32 exec_hi, 0xffff")
        for i in range(1, 10):
            a(f"v_pk_add_f32 v[{PV}:{PV+1}], v[{PV}:{PV+1}], v[{PV+4*i}:{PV+1+4*i}]\nv_pk_add_f32 v[{PV+2}:{PV+3}], v[{PV+2}:{PV+3}], v[{PV+2+4*i}:{PV+3+4*i}]")
        a(f"s_mul_i32 s{sC}, s{sWG}, 768\ns_add_u32 s{sC}, s{sC}, {WS_CSG}")
        a(f"buffer_store_dwordx4 v[{PV}:{PV+3}], v5, {WSR}, s{sC} offen\ns_mov_b32 exec_hi, -1")
        a.label(l)
    def fpw():
        a(f"s_lshl_b32 s{sC}, s{sW}, 13\ns_add_u32 s{sC}, s{sC}, {L_FG + 16}")
        poll(a, 13, PV, f"s{sC}", f"s{sEP}", sleep=2, wide=True)
    def wow():
        a(f"v_and_b32 v{PV+1}, 15, v0\nv_lshlrev_b32 v{PV+1}, 11, v{PV+1}\ns_mov_b32 s{sC}, {L_FG + 15*128 + 36}")
        poll(a, PV + 1, PV, f"s{sC}", f"s{sEP}", sleep=2)
    def l1only(fn):
        l = a.uid("l1")
        a(f"s_cmp_eq_u32 s{sL}, 0\ns_cbranch_scc1 {l}")
        fn(); a.label(l)
    def hook(j):
        if j == 1:
            kv_issue(2); kv_issue(3); a("s_waitcnt vmcnt(10)")
        elif j == 2:
            a("s_waitcnt vmcnt(5)"); l0only(lambda: prep(a, 0)); l1only(lambda: kv_issue(4))
            GF.ok &= ~(0x01010101 << 4)
        else: a("s_waitcnt vmcnt(0)")
        if j == 3: l0only(lambda: (prep(a, 1), kv_issue(4))); l1only(lambda: (kv_issue(5), kv_issue(6)))
        if j == 4:
            GF.ok &= ~(0x01010101 * 0xe0)
            l0only(lambda: (fp(), kv_issue(5), kv_issue(6))); l1only(lambda: kv_issue(7))
        if j == 5:
            GF.ok &= ~(0x01010101 * 0xe0)
            l0only(lambda: (wow(), kv_issue(7)))
            wwo(0); wwo(1); wwo(2); l1only(lambda: l2pf(0, 1))
        if j == 6:
            l0only(fpw)
            wwo(3)
            if fast and C.cpf: cpf("L_fast_tail", "L_fast_end")
            if fast:
                a(f"""
                s_lshl_b32 s{sPF}, s{sWG}, 1
                s_and_b32 s{sC}, s{sW}, 1
                s_add_u32 s{sPF}, s{sPF}, s{sC}
                s_mul_i32 s{sPF}, s{sPF}, 5120
                s_add_u32 s{sC}, s{sLO}, {L_O}
                s_bitcmp1_b32 s{sW}, 1
                s_cselect_b32 s{sC}, {L_X1}, s{sC}
                s_add_u32 s{sPF}, s{sPF}, s{sC}
                s_mov_b32 exec_hi, 0xff
                buffer_load_dword v{DUM}, v13, {WSR}, s{sPF} offen
                s_lshl_b32 s{sTmp}, s{sWG}, 9
                s_add_u32 s{sTmp}, s{sTmp}, s{sLO}
                s_add_u32 s{sTmp}, s{sTmp}, {L_ST1}
                s_mov_b64 exec, 15
                buffer_load_dword v{DUM}, v13, {WSR}, s{sTmp} offen
                s_mov_b64 exec, -1
                """)
            l1only(lambda: l2pf(1, 1))
        if j == 7:
            l0only(cs1)
            wwo(4)
            if fast and C.htouch == 0:
                a(f"""
                s_lshl_b32 s{sPF}, s{sWG}, 2
                s_add_u32 s{sPF}, s{sPF}, s{sQP}
                s_mul_i32 s{sPF}, s{sPF}, 6144
                s_add_u32 s{sPF}, s{sPF}, s{sLO}
                s_add_u32 s{sPF}, s{sPF}, {L_H}
                s_mov_b32 exec_hi, 0xffff
                buffer_load_dword v{DUM}, v13, {WSR}, s{sPF} offen
                s_mov_b32 exec_hi, -1
                """)
            l1only(lambda: l2pf(2, 2)); l0only(lambda: l2pf(0, C.l2pf0))
    outl = []
    for c in range(8):
        for kt in range(4):
            st = kt & 1
            last = c == 7 and kt == 3
            if c == 0 and kt == 1:
                hk = a.uid("att_hk")
                a(f"s_cmp_eq_u32 s{sKH}, 0\ns_cbranch_scc1 {hk}"); a.label(hk + "r")
                def h0():
                    l = a.uid("h0")
                    a(f"s_cmp_eq_u32 s{sDone}, 0\ns_cbranch_scc1 {l}")
                    kv_issue(1)
                    a.label(l)
                outl.append((hk, h0))
            j = c + 1 if (kt == 3 and c < 6) else (7 if (c == 7 and kt == 0) else None)
            if j:
                hk = a.uid("att_hk")
                dstamp(a, 6, 3*j)
                a(f"s_cmp_eq_u32 s{sKH}, 0\ns_cbranch_scc1 {hk}")
                if C.flip and j < 7: a("s_setprio 2")
                a.label(hk + "r")
                dstamp(a, 6, 3*j+1)
                a("s_barrier")
                dstamp(a, 6, 3*j+2)
                outl.append((hk, (lambda jj: (lambda: hook(jj)))(j)))
            if C.flip and 1 <= c < 7 and kt == C.flip - 1: a("s_setprio 1")
            val = sm(0)
            mf = qk(1, st) + pv(1, st ^ 1)
            ex = rdV(st, c, kt)
            if kt == 3 and c in (2, 5):
                base[0] += 3 * CH
                ex += [f"v_add_u32 v{r}, {3*CH}, v{r}" for r in (vK, vK8, vV)]
            if not last: ex += rdK(st ^ 1, c + (kt + 1) // 4, (kt + 1) % 4)
            a(mf[0]); [a(x) for x in ex[:4]]; [a(x) for x in val[0:6]]
            a(mf[2]); [a(x) for x in ex[4:]]; [a(x) for x in val[6:12]]
            a(mf[1]); [a(x) for x in val[12:18]]
            a(mf[3]); [a(x) for x in val[18:]]
            val = sm(1)
            a("s_waitcnt lgkmcnt(0)")
            if not last:
                mf = qk(0, st ^ 1) + pv(0, st)
                a(mf[0]); [a(x) for x in val[0:6]]
                a(mf[2]); [a(x) for x in val[6:12]]
                a(mf[1]); [a(x) for x in val[12:18]]
                a(mf[3]); [a(x) for x in val[18:]]
            else:
                mf = pv(0, st) + pv(1, st)
                a(mf[0]); [a(x) for x in val[0:6]]
                a(mf[1]); [a(x) for x in val[6:16]]
                a(mf[2]); [a(x) for x in val[16:]]
                a("s_nop 1"); a(mf[3])
    if fast: a.label("L_fast_tail")
    stamp(a, 8)
    fb = a.uid("att_fb"); comb = a.uid("att_comb"); done = a.uid("att_done"); yng = a.uid("att_y")
    XB = 102400
    a(f"""
    s_mul_i32 s{sC}, s{sQP}, 7168
    s_add_u32 s{sC}, s{sC}, {XB}
    v_add_u32 v1, s{sC}, v5
    s_lshl_b32 s{sTmp}, s{sQP}, 2
    s_add_u32 s{sTmp}, s{sTmp}, {XB + 28672}
    v_mov_b32 v{XF}, s{sTmp}
    v_lshrrev_b32 v2, 1, v5
    v_add_u32 v2, s{sC}, v2
    s_mul_i32 s{sTmp}, s{sR}, 5
    v_add_u32 v3, s{sTmp}, v14
    v_lshrrev_b32 v4, 1, v3
    v_and_b32 v3, 1, v3
    v_lshlrev_b32 v3, 3, v3
    v_lshl_add_u32 v3, v4, 9, v3
    v_lshl_add_u32 v3, v15, 4, v3
    """)
    a(f"v_mul_f32 v10, {f32(2.0**63)}, v{OO+12}")
    a(f"v_pk_mul_f32 v[12:13], v[{OO}:{OO+1}], 0")
    for i in range(2, 12, 2): a(f"v_pk_fma_f32 v[12:13], v[{OO+i}:{OO+i+1}], 0, v[12:13]")
    a(f"v_mul_f32 v11, {f32(2.0**63)}, v{OO+16+12}")
    a(f"v_pk_add_f32 v[10:11], v[10:11], v[10:11]\nv_pk_fma_f32 v[12:13], v[10:11], 0, v[12:13]")
    for i in range(0, 12, 2): a(f"v_pk_fma_f32 v[12:13], v[{OO+16+i}:{OO+16+i+1}], 0, v[12:13]")
    a(f"v_cmp_u_f32 vcc, v12, v13\ns_cbranch_vccnz {fb}")
    a.label(comb)
    a(f"s_cmp_eq_u32 s{sKH}, 0\ns_cbranch_scc1 {yng}")
    def older():
        a.label(yng)
        a(f"v_mov_b32 v{OO+13}, v8\nv_mov_b32 v{OO+16+13}, v9\nv_mov_b32 v10, s{sEP}")
        for x in range(2):
            for i in range(3):
                a(f"ds_write_b128 v1, v[{OO+16*x+4*i}:{OO+16*x+4*i+3}] offset:{3584*x+1024*i}")
            a(f"ds_write_b64 v2, v[{OO+16*x+12}:{OO+16*x+13}] offset:{3584*x+3072}")
        a(f"ds_write_b32 v{XF}, v10\ns_waitcnt vmcnt(0)")
        l0only(cs2)
        a(f"s_setprio 0")
        stamp(a, 9)
    pl = a.uid("att_x")
    a(f"s_mov_b32 s{t+12}, 0")
    a.label(pl)
    a(f"ds_read_b32 v10, v{XF}")
    for x in range(2):
        a(f"ds_read_b64 v[{76+16*x}:{77+16*x}], v2 offset:{3584*x+3072}")
    for x in range(2):
        for i in range(3):
            a(f"ds_read_b128 v[{64+16*x+4*i}:{64+16*x+4*i+3}], v1 offset:{3584*x+1024*i}")
    a(f"""
    s_lshl_b32 s{sTmp}, s{sG}, 2
    s_add_u32 s{sTmp}, s{sTmp}, s{sQP}
    s_mul_i32 s{sPF}, s{sTmp}, 81920
    s_add_u32 s{sPF}, s{sPF}, s{sLO}
    s_add_u32 s{sPF}, s{sPF}, {L_O}
    s_add_u32 s{sC}, s{sPF}, 40960
    s_waitcnt lgkmcnt(6)
    v_cmp_ne_u32 vcc, s{sEP}, v10
    s_cbranch_vccz {pl}k
    s_add_u32 s{t+12}, s{t+12}, 1
    s_cmp_lt_u32 s{t+12}, {4*SPIN}
    s_cbranch_scc1 {pl}
    """)
    a.label(pl + "k")
    for x in range(2):
        f = 16 + 4*x
        a(f"v_max_f32 v{f+2}, v{8+x}, v{77+16*x}\nv_sub_f32 v{f}, v{8+x}, v{f+2}\nv_sub_f32 v{f+1}, v{77+16*x}, v{f+2}")
    for x in range(2):
        f = 16 + 4*x
        a(f"v_exp_f32 v{f}, v{f}\nv_exp_f32 v{f+1}, v{f+1}")
    for x in range(2):
        f = 16 + 4*x
        a(f"v_mul_f32 v{f+2}, v{f}, v{OO+16*x+12}\nv_fmac_f32 v{f+2}, v{f+1}, v{76+16*x}")
    a("v_rcp_f32 v18, v18\nv_rcp_f32 v22, v22\ns_waitcnt lgkmcnt(0)")
    for x in range(2):
        f = 16 + 4*x; o = OO + 16*x
        a(f"v_mul_f32 v{f}, v{f}, v{f+2}\nv_mul_f32 v{f+2}, v{f+1}, v{f+2}")
        for i in range(0, 12, 2):
            a(f"v_pk_mul_f32 v[{o+i}:{o+i+1}], v[{o+i}:{o+i+1}], v[{f}:{f+1}] op_sel_hi:[1,0]")
        for i in range(0, 12, 2):
            a(f"v_pk_fma_f32 v[{o+i}:{o+i+1}], v[{64+16*x+i}:{65+16*x+i}], v[{f+2}:{f+3}], v[{o+i}:{o+i+1}] op_sel_hi:[1,0,1]")
        for i in range(6):
            a(f"v_cvt_pk_bf16_f32 v{o+i}, v{o+2*i}, v{o+2*i+1}")
        sd = sPF if x == 0 else sC
        a(f"""
        buffer_store_dwordx2 v[{o}:{o+1}], v3, {WSR}, s{sd} offen {SB}
        buffer_store_dwordx2 v[{o+2}:{o+3}], v3, {WSR}, s{sd} offen offset:512 {SB}
        s_mov_b32 exec_hi, 0
        buffer_store_dwordx2 v[{o+4}:{o+5}], v3, {WSR}, s{sd} offen offset:1024 {SB}
        s_mov_b32 exec_hi, -1
        """)
    flag_setup(a, 2)
    a("s_setprio 0\ns_barrier\ns_waitcnt vmcnt(0)")
    flag_store(a, SB)
    stamp(a, 9)
    a(f"s_branch {ld_label}")
    for hk, fn in outl:
        a.label(hk); fn(); a(f"s_branch {hk}r")
    older()
    def fallback():
        a.label(fb)
        sKb, sVb, sI = t+12, t+13, t+14
        def addr():
            a(f"""
            s_lshr_b32 s{sKb}, s{sI}, 2
            s_lshl_b32 s{sKb}, s{sKb}, 1
            s_add_u32 s{sKb}, s{sKb}, s{sKH}
            s_lshl_b32 s{sKb}, s{sKb}, 2
            s_and_b32 s{sVb}, s{sI}, 3
            s_add_u32 s{sKb}, s{sKb}, s{sVb}
            s_mul_i32 s{sKb}, s{sKb}, 1280
            s_add_u32 s{sKb}, s{sKb}, s{sHB}
            s_add_u32 s{sVb}, s{sKb}, {L_V}
            s_add_u32 s{sKb}, s{sKb}, {L_K}
            buffer_load_dwordx4 v[{KF}:{KF+3}], v5, {WSR}, s{sKb} offen sc1
            buffer_load_dwordx2 v[{KF+4}:{KF+5}], v6, {WSR}, s{sKb} offen offset:1024 sc1
            """)
        l1 = a.uid("att_fb1"); l2 = a.uid("att_fb2")
        a(f"s_mov_b32 s{sI}, 0\nv_mov_b32 v8, 0xff800000\nv_mov_b32 v9, 0xff800000")
        a.label(l1)
        addr()
        a("s_waitcnt vmcnt(0)")
        for x in range(2):
            for m in qk(x, 0, "0"): a(m)
        a.nop(12)
        for x in range(2):
            sd = SS + 16*x
            for i in range(0, 16, 2): a(f"v_max3_f32 v{8+x}, v{8+x}, v{sd+i}, v{sd+i+1}")
        a(f"s_add_u32 s{sI}, s{sI}, 1\ns_cmp_lt_u32 s{sI}, 32\ns_cbranch_scc1 {l1}")
        setm()
        for i in range(32): a(f"v_mov_b32 v{OO+i}, 0")
        a(f"s_mov_b32 s{sI}, 0")
        a.label(l2)
        addr()
        a(f"""
        s_mov_b64 exec, s[{sEX}:{sEX+1}]
        buffer_load_dwordx4 v[{VF}:{VF+3}], v7, {WSR}, s{sVb} offen sc1
        buffer_load_dwordx4 v[{VF+4}:{VF+7}], v7, {WSR}, s{sVb} offen offset:640 sc1
        s_mov_b64 exec, -1
        s_waitcnt vmcnt(0)
        """)
        for x in range(2):
            for m in qk(x, 0): a(m)
        a.nop(12)
        for x in range(2):
            for i in sm(x): a(i)
        a("s_nop 1")
        for x in range(2):
            for m in pv(x, 0): a(m)
        a(f"s_add_u32 s{sI}, s{sI}, 1\ns_cmp_lt_u32 s{sI}, 32\ns_cbranch_scc1 {l2}")
        a.nop(12)
        a(f"s_branch {comb}")
    return fallback

def xoff(SB, which):
    if SB == "": return (False, L_X1)
    return (True, L_X1) if which == 1 else (False, L_X2)
def add_x(a, dst, src, SB, which):
    lo, c = xoff(SB, which)
    a(f"s_add_u32 s{dst}, s{src}, {c}")
    if lo: a(f"s_add_u32 s{dst}, s{dst}, s{sLO}")

def proj_compute(a, down, SB, end_label):
    fast = SB == ""
    t = T
    K = F if down else D
    NCH = K // 128
    sRT, sCT = t, t+1
    st0 = 13 if down else 10
    sF, sRM, sST, sA, sA1, sThr, sSel = t+4, t+5, t+12, t+2, t+3, t+9, t+10
    NWS = 3 if down else C.wo_sets
    ACC = 14; RX = 34; AF = 54; WF = 134; RES = (220 if down else 54); VST = 200
    vF, vF2, vR, vR2 = 10, 11, 12, 13
    a(f"""
    s_lshr_b32 s{sRT}, s{sWG}, 3
    s_and_b32 s{sCT}, s{sR}, 7
    v_and_b32 v3, 15, v0
    v_lshrrev_b32 v7, 4, v0
    s_lshl_b32 s{t+6}, s{sRT}, 1
    s_lshr_b32 s{t+7}, s{sW}, 1
    s_add_u32 s{t+6}, s{t+6}, s{t+7}
    s_and_b32 s{t+8}, s{sW}, 1
    s_lshl_b32 s{t+8}, s{t+8}, 8
    s_mul_i32 s{sA}, s{t+6}, {K*64}
    s_add_u32 s{sA}, s{sA}, s{t+8}
    s_add_u32 s{sA}, s{sA}, s{sLO}
    s_add_u32 s{sA}, s{sA}, {L_H if down else L_O}
    s_mul_i32 s{sF}, s{t+6}, 40960
    s_mul_i32 s{t+7}, s{sCT}, 5120
    s_add_u32 s{sF}, s{sF}, s{t+7}
    s_add_u32 s{sF}, s{sF}, s{t+8}
    s_lshl_b32 s{sST}, s{sW}, 8
    s_lshl_b32 s{t+7}, s{sRT}, 12
    s_add_u32 s{sST}, s{sST}, s{t+7}
    s_add_u32 s{sST}, s{sST}, s{sLO}
    s_lshl_b32 s{sRM}, s{sRT}, 2
    s_add_u32 s{sRM}, s{sRM}, s{sW}
    s_mul_i32 s{sRM}, s{sRM}, {16*1280}
    s_mul_i32 s{t+7}, s{sCT}, 160
    s_add_u32 s{sRM}, s{sRM}, s{t+7}
    v_lshlrev_b32 v1, 4, v3
    v_lshl_add_u32 v{vF}, v7, 9, v1
    v_lshrrev_b32 v2, 5, v0
    v_lshl_add_u32 v1, v2, 9, v1
    v_and_b32 v2, 1, v7
    v_lshl_add_u32 v{vF2}, v2, 3, v1
    v_add_u32 v{vF2}, 4096, v{vF2}
    v_mul_u32_u24 v1, 1280, v3
    v_lshl_add_u32 v{vR}, v7, 4, v1
    v_lshl_add_u32 v{vR2}, v7, 3, v1
    v_add_u32 v9, 4096, v{vF}
    """)
    SA = Src(sA, sA1, sThr, 8192)
    if down:
        a(f"s_and_b32 s{t+7}, s{sRT}, 3\ns_mul_i32 s{t+7}, s{t+7}, {C.rot_dn}\ns_sub_u32 s{sThr}, 12, s{t+7}")
        SA.setup(a, t+7, 12, t+8)
    def io(store, rowmajor, rsrc, soff, reg, bits):
        op = "store" if store else "load"
        v16, v8 = (vR, vR2) if rowmajor else (vF, vF2)
        o1, o2 = (64, 128) if rowmajor else (2048, 0)
        return [f"buffer_{op}_dwordx4 v[{reg}:{reg+3}], v{v16}, {rsrc}, {soff} offen {bits}",
                f"buffer_{op}_dwordx4 v[{reg+4}:{reg+7}], v{v16}, {rsrc}, {soff} offen offset:{o1} {bits}",
                f"buffer_{op}_dwordx2 v[{reg+8}:{reg+9}], v{v8}, {rsrc}, {soff} offen offset:{o2} {bits}"]
    if down:
        add_x(a, t+7, sF, SB, 1)
        for x in io(False, False, WSR, f"s{t+7}", RES, "sc1"): a(x)
        a(f"s_add_u32 s{t+7}, s{sST}, {L_ST1}\nv_lshlrev_b32 v1, 4, v3")
        for i in range(4):
            a(f"buffer_load_dwordx4 v[{VST+4*i}:{VST+4*i+3}], v1, {WSR}, s{t+7} offen offset:{1024*i} sc1")
        if fast:
            a(f"s_lshl_b32 s{t+8}, s{sWG}, 9\ns_add_u32 s{t+8}, s{t+8}, {L_ST2}\nv_lshlrev_b32 v1, 7, v0\ns_mov_b64 exec, 15")
            a(f"buffer_load_dword v8, v1, {WSR}, s{t+8} offen\ns_mov_b64 exec, -1")
    else:
        l1 = a.uid("prj_r1"); l2 = a.uid("prj_r2")
        a(f"s_cmp_lg_u32 s{sL}, 0\ns_cbranch_scc1 {l1}")
        for x in io(False, True, R(R_X), f"s{sRM}", RES, ""): a(x)
        a(f"s_branch {l2}")
        a.label(l1)
        add_x(a, t+7, sF, SB, 2)
        for x in io(False, False, WSR, f"s{t+7}", RES, "sc1"): a(x)
        a.label(l2)
    a(f"v_lshlrev_b32 v4, 4, v0\nv_add_u32 v5, 61440, v4\nv_add_u32 v6, 122880, v4\ns_mov_b32 s{t+8}, 0xffff0000")
    def wadr(c):
        o = dnW(c) if down else c * 20480
        return 4 + o // 61440, o % 61440
    def reads(c, u):
        b = WF + 20*((4*c + u) % NWS); r, o = wadr(c)
        return [f"ds_read_b128 v[{b+4*jn}:{b+4*jn+3}], v{r} offset:{o + 5120*u + 1024*jn}" for jn in range(5)]
    NAS = 5
    def aload(c):
        r = []
        if down: r += [f"s_cmp_gt_u32 s{sThr}, {c}", f"s_cselect_b32 s{sSel}, s{sA}, s{sA1}", f"s_add_u32 s{sSel}, s{sSel}, {c*8192}"]
        else: r += [f"s_add_u32 s{sSel}, s{sA}, {c*8192}"]
        for u in range(4):
            d = AF + 16*(c % NAS) + 4*u
            r.append(f"buffer_load_dwordx4 v[{d}:{d+3}], v{vF if u < 2 else 9}, {WSR}, s{sSel} offen offset:{2048*(u & 1)} sc1")
        return r
    def mfmas(c, u, zero=False):
        b = WF + 20*((4*c + u) % NWS); x = AF + 16*(c % NAS) + 4*u
        return [f"v_mfma_f32_16x16x32_bf16 {v(ACC+4*jn,4)}, {v(b+4*jn,4)}, {v(x,4)}, {0 if zero else v(ACC+4*jn,4)}" for jn in range(5)]
    D_ = NWS - 1
    rd = lambda st_: reads(st_ // 4, st_ % 4) if st_ < 4*NCH else []
    if down: a(f"s_and_b32 s{t+7}, s{sRT}, 3\ns_mul_i32 s{t+7}, s{t+7}, {4 if C.rot_dn else 0}")
    G_ = gate_local(a, "down" if down else "wo", 4 if down else 2, 1, 2, t+7)
    def setup2():
        if not down: a("s_waitcnt vmcnt(0)")
        for i in range(10):
            a(f"v_lshlrev_b32 v{RX+2*i}, 16, v{RES+i}\nv_and_b32 v{RX+1+2*i}, s{t+8}, v{RES+i}")
        if down:
            row_stats(a, VST, VST + 2, VST + 3)
            a(f"v_mul_f32 v{VST+2}, v{VST+3}, v{VST+3}")
        a("s_barrier")
        for st_ in range(D_):
            for x in rd(st_): a(x)
    if not down: setup2()
    def al(c):
        G_.need(span(128*c, 128*c + 127, 96, 2) if down else span(128*c, 128*c + 127, 20, 1))
        if c == 0: stamp(a, st0)
        for x in aload(c): a(x)
    NPRE = C.dn_a if down else 5
    for c in range(NPRE): al(c)
    if down: setup2()
    issued = 4 * NPRE
    for c in range(NCH):
        for u in range(4):
            step = 4*c + u
            left = min(D_ - 1, 4*NCH - 1 - step)
            a(f"s_waitcnt vmcnt({issued - step - 1}) lgkmcnt({min(15, 5*left)})")
            if step == 4*NCH - 1 or (down and u == 2 and c + 1 < NCH): a("s_barrier")
            interleave(a, mfmas(c, u, step == 0), rd(step + D_))
            if u == 0 and c + NPRE < NCH:
                assert NPRE < NAS
                al(c + NPRE); issued += 4
    stamp(a, st0 + 1)
    add_x(a, t+7, sF, SB, 2 if down else 1)
    flag_setup(a, 5 if down else 3)
    for i in range(0, 20, 2):
        c = ACC + i
        if down: a(f"v_pk_fma_f32 v[{c}:{c+1}], v[{c}:{c+1}], v[{VST+2}:{VST+3}], v[{RX+i}:{RX+i+1}] op_sel_hi:[1,0,1]")
        else: a(f"v_pk_add_f32 v[{c}:{c+1}], v[{c}:{c+1}], v[{RX+i}:{RX+i+1}]")
        a(f"v_cvt_pk_bf16_f32 v{60+i//2}, v{c}, v{c+1}")
    if down:
        l1 = a.uid("prj_o1")
        a(f"s_cmp_eq_u32 s{sL}, 0\ns_cbranch_scc1 {l1}")
        srd(a, R_T, P_OUT, ACT)
        for x in io(True, True, R(R_T), f"s{sRM}", 60, ["", "sc1", "nt"][C.outb]): a(x)
        a(f"s_branch {end_label}")
        a.label(l1)
    for x in io(True, False, WSR, f"s{t+7}", 60, SB): a(x)
    a(f"v_pk_add_f32 v[72:73], v[{ACC}:{ACC+1}], v[{ACC+2}:{ACC+3}]\nv_pk_mul_f32 v[74:75], v[{ACC}:{ACC+1}], v[{ACC}:{ACC+1}]")
    a(f"v_pk_fma_f32 v[74:75], v[{ACC+2}:{ACC+3}], v[{ACC+2}:{ACC+3}], v[74:75]")
    for i in range(4, 20, 2):
        a(f"v_pk_add_f32 v[72:73], v[72:73], v[{ACC+i}:{ACC+i+1}]\nv_pk_fma_f32 v[74:75], v[{ACC+i}:{ACC+i+1}], v[{ACC+i}:{ACC+i+1}], v[74:75]")
    a(f"""
    v_add_f32 v72, v72, v73
    v_add_f32 v73, v74, v75
    s_lshr_b32 s{t+7}, s{sCT}, 1
    s_lshl_b32 s{t+7}, s{t+7}, 10
    v_permlane32_swap_b32 v72, v73
    s_and_b32 s{t+8}, s{sCT}, 1
    s_lshl_b32 s{t+8}, s{t+8}, 3
    v_add_f32 v72, v72, v73
    v_mov_b32 v73, v72
    s_add_u32 s{t+7}, s{t+7}, s{t+8}
    s_add_u32 s{t+7}, s{t+7}, s{sST}
    v_permlane16_swap_b32 v72, v73
    s_add_u32 s{t+7}, s{t+7}, {L_ST2 if down else L_ST1}
    v_lshrrev_b32 v8, 5, v0
    v_lshlrev_b32 v8, 2, v8
    v_lshl_add_u32 v8, v3, 4, v8
    v_add_f32 v72, v72, v73
    buffer_store_dword v72, v8, {WSR}, s{t+7} offen {SB}
    s_waitcnt vmcnt(0)
    """)
    flag_store(a, SB)
    a("s_barrier")
    stamp(a, st0 + 2)

def gu_compute(a, SB):
    t = T
    sRT, sCT, sWM, sWN, sTB, sF0 = t, t+1, t+2, t+3, t+4, t+6
    FR = 14; ACC = 94; VCS = 190; VST = 238; MS = 8
    a(f"""
    s_lshr_b32 s{sRT}, s{sWG}, 4
    s_and_b32 s{sCT}, s{sR}, 15
    s_and_b32 s{sWM}, s{sW}, 1
    s_lshr_b32 s{sWN}, s{sW}, 1
    s_lshl_b32 s{sTB}, s{sRT}, 1
    s_add_u32 s{sTB}, s{sTB}, s{sWM}
    s_mul_i32 s{sF0}, s{sCT}, 96
    s_mul_i32 s{t+5}, s{sWN}, 48
    s_add_u32 s{sF0}, s{sF0}, s{t+5}
    s_mul_i32 s{t+5}, s{sWG}, 768
    s_mul_i32 s{t+7}, s{sWN}, 384
    s_add_u32 s{t+5}, s{t+5}, s{t+7}
    s_add_u32 s{t+5}, s{t+5}, {WS_CSG}
    v_lshrrev_b32 v12, 5, v0
    v_lshlrev_b32 v1, 6, v12
    """)
    for jn in range(3):
        for q in range(4):
            r = VCS + 16*jn + 4*q
            a(f"buffer_load_dwordx4 v[{r}:{r+3}], v1, {WSR}, s{t+5} offen offset:{128*jn+16*q} sc1")
    a(f"""
    s_lshl_b32 s{t+5}, s{sWM}, 13
    v_lshlrev_b32 v11, 4, v0
    v_add_u32 v3, s{t+5}, v11
    s_mul_i32 s{t+5}, s{sWN}, 3072
    s_add_u32 s{t+5}, s{t+5}, {WB}
    v_add_u32 v4, s{t+5}, v11
    v_add_u32 v5, 49152, v4
    s_mul_i32 s{t+11}, s{sTB}, {2*F*64}
    s_lshl_b32 s{t+7}, s{sF0}, 6
    s_add_u32 s{t+11}, s{t+11}, s{t+7}
    s_add_u32 s{t+11}, s{t+11}, s{sLO}
    s_add_u32 s{t+11}, s{t+11}, {L_H}
    s_add_u32 s{t+12}, s{t+11}, {F*64}
    """)
    flag_setup(a, 4)
    for i in range(0, 96, 2): a(f"v_mov_b64 v[{ACC+i}:{ACC+i+1}], 0")
    def reads(c, kk):
        b = FR + 20*kk; r = []
        for tm in range(2):
            r.append(f"ds_read_b128 v[{b+4*tm}:{b+4*tm+3}], v3 offset:{(c % 4)*16384+4096*tm+1024*kk}")
        o = guW(c) - WB
        for jn in range(3):
            d = b + 8 + 4*jn
            r.append(f"ds_read_b128 v[{d}:{d+3}], v{4 + o // 49152} offset:{o % 49152 + 6144*kk+1024*jn}")
        return r
    def mfma(kk, tl):
        b = FR + 20*kk; c = ACC + 16*tl
        return f"v_mfma_f32_32x32x16_bf16 {v(c,16)}, {v(b+8+4*(tl>>1),4)}, {v(b+4*(tl&1),4)}, {v(c,16)}"
    def epi(jn, pk):
        r = []
        for tm in range(2):
            c = ACC + 16*(2*jn + tm)
            for i in range(8): r.append(f"v_max_f32 v{c+i}, 0, v{c+i}")
            if pk:
                for i in range(0, 8, 2): r.append(f"v_pk_mul_f32 v[{c+i}:{c+i+1}], v[{c+i}:{c+i+1}], v[{c+8+i}:{c+9+i}]")
            else:
                for i in range(8): r.append(f"v_mul_f32 v{c+i}, v{c+i}, v{c+8+i}")
            for i in range(4): r.append(f"v_cvt_pk_bf16_f32 v{c+i}, v{c+2*i}, v{c+2*i+1}")
            r.append(f"buffer_store_dwordx4 v[{c}:{c+3}], v11, {WSR}, s{t+11+tm} offen offset:{1024*jn} {SB}")
        return r
    a(f"s_lshl_b32 s{t+5}, s{sTB}, 12\ns_add_u32 s{t+5}, s{t+5}, s{sLO}\ns_add_u32 s{t+5}, s{t+5}, {L_ST1}")
    ins = {}
    for i in range(4): ins[48 + 3*i] = [f"buffer_load_dwordx4 v[{VST+4*i}:{VST+4*i+3}], v11, {WSR}, s{t+5} offen offset:{1024*i} sc1"]
    if SB == "" and C.htouch > 0:
        a(f"""
        v_mul_u32_u24 v6, 171, v0
        v_lshrrev_b32 v6, 12, v6
        v_mul_u32_u24 v7, {F*64 - 24*128}, v6
        v_lshl_add_u32 v6, v0, 7, v7
        """)
        ins[C.htouch] = ["s_mov_b32 exec_hi, 0xffff", f"buffer_load_dword v7, v6, {WSR}, s{t+11} offen", "s_mov_b32 exec_hi, -1"]
    ins[100] = ["s_waitcnt vmcnt(0)"] + [f"v_add_f32 v{VST}, v{VST}, v{VST+2*i}" for i in range(1, 8)] + \
         [f"v_mul_f32 v{MS}, {f32(-1.0/D)}, v{VST}", f"v_mul_f32 v{MS+1}, {f32(-1.0/D)}, v{VST}", "s_nop 1", f"v_permlane32_swap_b32 v{MS}, v{MS+1}"]
    fix = lambda tl: [f"v_fmac_f32 v{ACC+16*tl+i}, v{MS+(tl&1)}, v{VCS+16*(tl>>1)+i}" for i in range(16)]
    gemm_unrolled(a, 10, 6, 5, reads, mfma, [(0, 1), (2, 3), (4, 5)], ins, fix, 110, epi, 22)
    a("s_waitcnt vmcnt(0)")
    flag_store(a, SB)
    a("s_barrier")
    stamp(a, 23)

def loader_chain(a, SB, end_label, idle_label):
    t = T
    sLW, s4, s5, s6, aGU, aGU1, wGU, wGU1, wDN, wDN1, aQK, aQK1, wQK, wQK1, th10, th12, sTmp, sSel, thq = range(t, t + 19)
    sRot = sSel
    a(f"""
    s_sub_u32 s{sLW}, s{sW}, 4
    v_lshlrev_b32 v8, 4, v0
    s_mul_i32 s{s6}, s{sLW}, 6144
    s_and_b32 s{wGU}, s{sR}, 15
    s_mul_i32 s{wGU}, s{wGU}, 245760
    s_add_u32 s{wGU}, s{wGU}, s{s6}
    s_add_u32 s{wGU}, s{wGU}, {WS_WTG}
    s_lshr_b32 s{sRot}, s{sR}, 4
    s_mul_i32 s{sRot}, s{sRot}, {C.rot_gu}
    s_sub_u32 s{th10}, 10, s{sRot}
    """)
    S_aGU = Src(aGU, aGU1, th10, 4096); S_wGU = Src(wGU, wGU1, th10, 24576); S_wDN = Src(wDN, wDN1, th12, 20480)
    S_aQK = Src(aQK, aQK1, thq, 4096); S_wQK = Src(wQK, wQK1, thq, 64*3840)
    S_wGU.setup(a, sRot, 10, sTmp)
    def rest():
        a(f"""
        s_lshl_b32 s{s4}, s{sLW}, 12
        s_mul_i32 s{s5}, s{sLW}, 5120
        s_lshr_b32 s{aQK}, s{sWG}, 4
        s_lshl_b32 s{aQK}, s{aQK}, 2
        s_add_u32 s{aQK}, s{aQK}, s{sLW}
        s_mul_i32 s{aQK}, s{aQK}, 40960
        """)
        add_x(a, aGU, aQK, SB, 1)
        add_x(a, aQK, aQK, SB, 2)
        a(f"s_and_b32 s{wDN}, s{sR}, 15")
        qkvW_setup(a, wQK, sLW, wDN, sTmp, 6)
        a(f"s_sub_u32 s{sRot}, 10, s{th10}")
        S_aGU.setup(a, sRot, 10, sTmp)
        a(f"s_lshr_b32 s{sRot}, s{sR}, 4\ns_mul_i32 s{sRot}, s{sRot}, {C.rot_qk}\ns_sub_u32 s{thq}, 10, s{sRot}")
        for S_ in (S_aQK, S_wQK): S_.setup(a, sRot, 10, sTmp)
        a(f"""
        s_and_b32 s{wDN}, s{sR}, 7
        s_mul_i32 s{wDN}, s{wDN}, 245760
        s_add_u32 s{wDN}, s{wDN}, s{s5}
        s_add_u32 s{wDN}, s{wDN}, {WS_WTD}
        s_lshr_b32 s{sRot}, s{sR}, 3
        s_mul_i32 s{sRot}, s{sRot}, {C.rot_dn}
        s_sub_u32 s{th12}, 12, s{sRot}
        """)
        S_wDN.setup(a, sRot, 12, sTmp)
    G_ = [None, None]
    def lin(S_, dst, dfn, bits):
        def f(c, i0, k):
            if bits == "sc1":
                G_[0].need(span(64*c, 64*c + 63, 80, 2) if C.gran else 0xffff)
                if G_[1] is not None: stamp(a, G_[1]); G_[1] = None
            S_.sel(a, c, sSel)
            lin_dma(a, 8, sSel, c*S_.stride + 1024*i0, dst, dfn(c) + 1024*i0, k, bits)
        return f
    def pf(kind, ep, st, rot):
        def f():
            a(f"s_lshr_b32 s{sTmp}, s{sR}, 4\ns_mul_i32 s{sTmp}, s{sTmp}, {4 if rot else 0}")
            G_[0] = gate_local(a, kind, ep, 1, 2, sTmp, sleep=C.psleep); G_[1] = st
        return f
    def emitWQ(c, i0, k):
        S_wQK.sel(a, c, sSel)
        for i in range(i0, i0 + k):
            a(f"s_add_u32 m0, s{s4}, {qkW(c) + 1024*i}\ns_add_u32 s{sTmp}, s{sSel}, {c*64*3840 + i*4*3840}")
            a(f"buffer_load_dwordx4 v6, {R(R_WQ)}, s{sTmp} offen {'nt' if C.nt_qk else ''} lds")
    rA = lambda c: (c % 4) * 16384
    full = lambda c: G_[0].need(0xffff) if c == 1 else None
    reg = lambda f, sz: (lambda c: (f(c), f(c) + sz))
    gu = Phase("gu", 10, 4, 6, lin(S_aGU, s4, rA, "sc1"), lin(S_wGU, s6, guW, "nt" if C.nt_gu else ""), reg(rA, 16384), reg(guW, 24576), pf("gu", 3, 21, C.rot_gu), C.bud_gu, dbg=(C.dbg == 3), after_bar=full)
    dn = Phase("dn", 12, 0, 5, None, lin(S_wDN, s5, dnW, "nt" if C.nt_dn else ""), None, reg(dnW, 20480), None, C.bud_dn, lag=2, early=C.dn_early, dbg=(C.dbg == 4))
    qk = Phase("qk", 10, 4, 4, lin(S_aQK, s4, rA, "sc1"), emitWQ, reg(rA, 16384), reg(qkW, 16384), pf("gu", 5, 17, C.rot_qk), C.bud_qk, early=C.qk_early, dbg=(C.dbg == 2), after_bar=full)
    L = Loader(a)
    L.live["wo"] = (0, 102400)
    pn = L.pre(gu, 0, C.gu_e)
    rest()
    a("s_barrier")
    L.live.pop("wo")
    pn = L.pre(gu, pn, C.gu_e2)
    a("s_barrier"); pn = L.pre(gu, pn, C.gu_p)
    pn = L.run(gu, dn, pn); stamp(a, 22); L.end(gu); pn = L.pre(dn, pn, C.dn_e)
    a("s_barrier"); pn = L.pre(dn, pn, C.dn_p)
    def lastexit(nb):
        l = a.uid("lx"); l2 = a.uid("lx")
        a(f"s_cmp_eq_u32 s{sL}, 0\ns_cbranch_scc1 {l}\ns_waitcnt vmcnt(0)")
        if C.wb and SB == "":
            a(f"s_xor_b32 s{sTmp}, s{sW}, 4\ns_or_b32 s{sTmp}, s{sTmp}, s{sR}\ns_cmp_lg_u32 s{sTmp}, 0\ns_cbranch_scc1 {l2}\nbuffer_wbl2 sc1")
            a.label(l2)
        for _ in range(nb): a("s_barrier")
        a(f"s_branch {end_label}")
        a.label(l)
    pn = L.run(dn, qk, pn, lastexit=lastexit); stamp(a, 14); L.end(dn)
    a(f"s_cmp_lg_u32 s{sL}, 0\ns_cbranch_scc1 {end_label}")
    pn = L.pre(qk, pn, C.qk_e)
    a("s_barrier")
    a(f"s_and_b32 s{sTmp}, s{sR}, 15\ns_cmp_eq_u32 s{sTmp}, 15\ns_cbranch_scc1 {idle_label}")
    pn = L.pre(qk, pn, C.qk_p)
    L.run(qk, None, pn); stamp(a, 19); L.end(qk)

def build():
    a = Asm()
    K = NAME + "_kernel"
    t = T
    a(f".globl {K}\n.p2align 8\n.type {K},@function")
    a.label(K)
    a(f"""
    s_load_dwordx16 s[16:31], s[0:1], 0
    s_load_dwordx4 s[32:35], s[0:1], 64
    s_cmp_ge_u32 s2, 256
    s_cbranch_scc1 L_exit
    s_and_b32 s{sG}, s2, 7
    s_lshr_b32 s{sR}, s2, 3
    v_lshrrev_b32 v1, 6, v0
    v_and_b32 v0, 63, v0
    v_readfirstlane_b32 s{sW}, v1
    s_lshl_b32 s{sWG}, s{sG}, 5
    s_add_u32 s{sWG}, s{sWG}, s{sR}
    s_mov_b32 s{sL}, 0
    s_mov_b32 s{sLO}, 0
    s_mov_b32 s{sEP}, 0
    s_mov_b32 s{sTMO}, 0
    """)
    if C.stamp: a("v_mov_b32 v255, 0\nv_mov_b32 v254, 0\ns_memrealtime s[14:15]")
    stamp(a, 0)
    qkv_ids(a, t)
    a(f"s_cmp_lt_u32 s{sW}, 4\ns_cbranch_scc1 L_q1c\ns_cmp_eq_u32 s{t+1}, 15\ns_cbranch_scc1 L_q1c")
    qkv1_loader(a)
    a("s_branch L_q1done")
    a.label("L_q1c")
    a("s_waitcnt lgkmcnt(0)")
    srd(a, R_X, P_X, ACT)
    srd(a, R_WQ, P_WQKV, D*3*D*2)
    a(f"""
    s_cmp_gt_u32 s{sW}, 3
    s_cbranch_scc1 L_npf
    s_lshl_b32 s{t+8}, s{sWG}, 2
    s_add_u32 s{t+8}, s{t+8}, s{sW}
    s_mul_i32 s{t+8}, s{t+8}, 2560
    v_lshrrev_b32 v1, 5, v0
    v_mul_u32_u24 v1, 1280, v1
    v_and_b32 v2, 31, v0
    v_lshl_add_u32 v1, v2, 4, v1
    v_mov_b64 v[228:229], 0
    v_mov_b64 v[230:231], 0
    buffer_load_dwordx4 v[220:223], v1, {R(R_X)}, s{t+8} offen
    buffer_load_dwordx4 v[224:227], v1, {R(R_X)}, s{t+8} offen offset:512
    s_mov_b32 exec_lo, 0xffff
    s_mov_b32 exec_hi, 0xffff
    buffer_load_dwordx4 v[228:231], v1, {R(R_X)}, s{t+8} offen offset:1024
    s_mov_b64 exec, -1
    """)
    a.label("L_npf")
    other_srds(a)
    a(f"s_cmp_eq_u32 s{t+1}, 15\ns_cbranch_scc1 L_q1idle")
    qkv_compute(a, True, "sc1")
    a("s_branch L_q1done")
    a.label("L_q1idle")
    qkv1_idle(a)
    a.label("L_q1done")
    a(f"s_cmp_eq_u32 s{sMODE}, 0\ns_cbranch_scc1 L_slow")
    tails = []
    for nm, SB in (("fast", ""), ("slow", "sc1")):
        a.label(f"L_{nm}")
        tails.append(phase_attn(a, SB, f"L_{nm}_ld"))
        if nm == "fast": a.label("L_fast_post")
        proj_compute(a, False, SB, None)
        gu_compute(a, SB)
        proj_compute(a, True, SB, "L_end")
        qkv_ids(a, t)
        a(f"s_cmp_eq_u32 s{t+1}, 15\ns_cbranch_scc1 L_{nm}_idle")
        qkv_compute(a, False, SB)
        a(f"s_branch L_{nm}_next")
        a.label(f"L_{nm}_ld")
        loader_chain(a, SB, "L_end", f"L_{nm}_idle")
        a(f"s_branch L_{nm}_next")
        a.label(f"L_{nm}_idle")
        a("s_waitcnt vmcnt(0)\ns_barrier")
        a.label(f"L_{nm}_next")
        a(f"s_mov_b32 s{sL}, 1\ns_mov_b32 s{sLO}, {LSTRIDE}\ns_add_u32 s{sEP}, s{sEP}, 5\ns_mov_b32 s{R_WQ+2}, 0\ns_branch L_{nm}")
        if nm == "fast":
            a.label("L_end")
            a(f"""
            s_xor_b32 s{t}, s{sW}, 7
            s_or_b32 s{t}, s{t}, s2
            s_cmp_lg_u32 s{t}, 0
            s_cbranch_scc1 L_end2
            v_mov_b32 v1, 0
            s_mov_b64 exec, 1
            global_store_dword v1, v1, s[{P_DBG}:{P_DBG+1}] sc1
            s_mov_b64 exec, -1
            """)
            a.label("L_end2")
            if C.stamp:
                a("s_waitcnt vmcnt(0)")
                stamp(a, 16)
                a(f"""
                s_memrealtime s[10:11]
                s_waitcnt lgkmcnt(0)
                v_writelane_b32 v255, s14, 62
                v_writelane_b32 v255, s10, 63
                v_writelane_b32 v255, s{sTMO}, 61
                s_lshl_b32 s10, s2, 3
                s_add_u32 s10, s10, s{sW}
                s_lshl_b32 s10, s10, 8
                s_add_u32 s10, s10, {WS_STAMP}
                v_lshlrev_b32 v1, 2, v0
                v_add_u32 v1, s10, v1
                global_store_dword v1, v255, s[{P_WS}:{P_WS+1}]
                v_add_u32 v1, {1<<20}, v1
                global_store_dword v1, v254, s[{P_WS}:{P_WS+1}]
                """)
                if C.pj:
                    a(f"""
                    s_xor_b32 s{t}, s2, 8
                    s_or_b32 s{t}, s{t}, s{sW}
                    s_cmp_lg_u32 s{t}, 0
                    s_cbranch_scc1 L_exit
                    v_readlane_b32 s{t+1}, v254, {C.pi}
                    v_readlane_b32 s{t+2}, v254, {C.pj}
                    v_readlane_b32 s{t+3}, v254, 40
                    s_sub_u32 s{t+1}, s{t+2}, s{t+1}
                    s_add_u32 s{t+1}, s{t+1}, 1000
                    """)
                    a.label("L_probe")
                    a(f"""
                    s_memrealtime s[{t+4}:{t+5}]
                    s_waitcnt lgkmcnt(0)
                    s_sub_u32 s{t+6}, s{t+4}, s{t+3}
                    s_cmp_lt_u32 s{t+6}, s{t+1}
                    s_cbranch_scc1 L_probe
                    """)
                if C.dbgout:
                    a(f"s_xor_b32 s{t}, s2, 8\ns_or_b32 s{t}, s{t}, s{sW}\ns_cmp_lg_u32 s{t}, 0\ns_cbranch_scc1 L_exit\nv_readlane_b32 s{t+1}, v254, 0\nv_mov_b32 v1, 0")
                    for k, i in enumerate([1, 2, 7, 8, 10, 12, 23, 15, 20, 31, 32, 36, 47, 40]):
                        a(f"v_readlane_b32 s{t}, v254, {i}\ns_sub_u32 s{t}, s{t}, s{t+1}\ns_nop 1\nv_mov_b32 v2, s{t}\nglobal_store_dword v1, v2, s[{P_DBG}:{P_DBG+1}] offset:{4+4*k}")
            a.label("L_exit")
            a("s_endpgm")
            a.label("L_fast_end")
    for f in tails: f()
    hdr = open("cdna_kernels/" + NAME + ".s.ref").read().split("; Override")[0]
    hdr += "; @launch grid=(256,1,1) block=(512,1,1) lds=163840\n"
    txt = hdr + '.amdgcn_target "amdgcn-amd-amdhsa--gfx950"\n.text\n' + a.text() + f'''.section .rodata,"a"
.p2align 6
.amdhsa_kernel {K}
  .amdhsa_next_free_vgpr 256
  .amdhsa_next_free_sgpr 102
  .amdhsa_accum_offset 256
  .amdhsa_group_segment_fixed_size 0
  .amdhsa_kernarg_size 80
  .amdhsa_user_sgpr_count 2
  .amdhsa_user_sgpr_kernarg_segment_ptr 1
  .amdhsa_system_sgpr_workgroup_id_x 1
.end_amdhsa_kernel
'''
    for p in check(a.lines): print("HAZARD", p)
    return txt

if __name__ == "__main__":
    out = sys.argv[1] if len(sys.argv) > 1 else "cdna_kernels/" + NAME + ".s"
    for kv in sys.argv[2:]:
        k, _, val = kv.partition("=")
        assert hasattr(C, k), k
        setattr(C, k, int(val) if val else True)
    open(out, "w").write(build())
    print("written", out)
```

```python
import sys, math, struct
sys.path.insert(0, "gen")
from asmlib import *

NAME = "interleave_layers__softmax_full_mha__glu_gated_reglu__prompt"
S, D, F, H, DH = 2048, 640, 1536, 32, 20
ACT = S * D * 2
HEADB = 81920
L_Q = 0
L_K = L_Q + ACT
L_V = L_K + ACT
L_O = L_V + ACT
L_X1 = L_O + ACT
L_X2 = L_X1 + ACT
L_H = L_X2 + ACT
L_ST1 = L_H + S * F * 2
L_ST2 = L_ST1 + S * 64
L_FG = L_ST2 + S * 64
LSTRIDE = L_FG + 32768
WS_ST0 = LSTRIDE + L_ST2
WS_WTO = 2 * LSTRIDE
WS_WTD = WS_WTO + D * D * 2
WS_WTG = WS_WTD + F * D * 2
WS_CSP = WS_WTG + 2 * F * D * 2
WS_CSG = WS_CSP + 10 * 12288
WS_CSQ = WS_CSG + 256 * 768
WS_FL = WS_CSQ + 256 * 512
WS_END = WS_FL + 8192
WS_SIZE = 268435456
WS_STAMP = 200 << 20
QSCALE = (DH ** -0.5) * math.log2(math.e)
def f32(x): return "0x%08x" % struct.unpack("<I", struct.pack("<f", x))[0]

P_X, P_WQKV, P_WO, P_BX, P_WG, P_WU, P_WD, P_OUT, P_DBG, P_WS = 16, 18, 20, 22, 24, 26, 28, 30, 32, 34
sL, sG, sR, sW, sLO, sEP, sTMO, sWG = 3, 4, 5, 6, 7, 8, 9, 13
R_WS, R_X, R_WQ, R_WG, R_WU, R_T = 36, 40, 44, 48, 52, 56
T = 60
WSR = f"s[{R_WS}:{R_WS+3}]"
def R(r): return f"s[{r}:{r+3}]"
SPIN = 200000

class Cfg:
    stamp = False
    dbg = 0
    dbgout = 0
    pi = 0
    pj = 0
    pm = 1
    pw = 0
    look = 6
    gu_e = 12
    dn_e = 4
    qk_e = 0
    bud_gu = 10
    bud_dn = 5
    bud_qk = 6
    bud_q1 = 10
    dn_a = 3
    psleep = 1
    gran = 3
    flip = 0
    wb = 0
    outb = 0
    q1prio = 0
    look_q1 = 6
    nocs = 0
    qloc = 1
    stage = 1
    cpf = 1
    l2pf0 = 1
    nt_kv = 0
    nt_wo = 0
    nt_gu = 0
    nt_dn = 0
    nt_qk = 0
    htouch = 0
    warm = 0
    gu_e2 = 0
    gu_p = 0
    dn_p = 20
    qk_p = 4
    wo_sets = 6
    q1pf = 1
    l2pf = 12
    rot = 0
    x_hit = 0
    tlb = 0
    rot_gu = 0
    rot_dn = 0
    rot_qk = 0
    dn_early = 99
    qk_early = 99
C = Cfg()

def stamp(a, i):
    if not C.stamp: return
    a(f"s_memtime s[10:11]\ns_mul_i32 s12, s{sL}, 24\ns_add_u32 m0, s12, {i}\ns_waitcnt lgkmcnt(0)\nv_writelane_b32 v255, s10, m0")
    if C.dbg == 7: a(f"s_memrealtime s[10:11]\ns_waitcnt lgkmcnt(0)\nv_writelane_b32 v254, s10, m0")

def dstamp(a, d, i):
    if C.stamp and C.dbg == d: a(f"s_memtime s[10:11]\ns_lshl_b32 s12, s{sL}, 5\ns_add_u32 m0, s12, {i}\ns_waitcnt lgkmcnt(0)\nv_writelane_b32 v254, s10, m0")

def srd(a, r, ptr, size):
    a(f"s_mov_b32 s{r}, s{ptr}\ns_mov_b32 s{r+1}, s{ptr+1}\ns_mov_b32 s{r+2}, {size}\ns_mov_b32 s{r+3}, 0x20000")

def interleave(a, mf, other):
    n = len(mf); k = 0
    for i, m in enumerate(mf):
        a(m)
        tgt = (len(other) * (i + 1) + n - 1) // n
        while k < tgt:
            a(other[k]); k += 1

def poll(a, vaddr, vtmp, soff, want, sleep=0, pre=False, wide=False):
    lp = a.uid("poll"); ok = a.uid("pollok")
    cnt = T + 22
    a(f"s_mov_b32 s{cnt}, s{sTMO}")
    if pre is not False: a(f"s_waitcnt vmcnt({pre})\ns_branch {lp}c")
    a.label(lp)
    if wide: a(f"buffer_load_dwordx4 v[{vtmp}:{vtmp+3}], v{vaddr}, {WSR}, {soff} offen sc1")
    else: a(f"buffer_load_dword v{vtmp}, v{vaddr}, {WSR}, {soff} offen sc1")
    a(f"s_waitcnt vmcnt(0)")
    if pre is not False: a.label(lp + "c")
    a(f"v_subrev_u32 v{vtmp}, {want}, v{vtmp}")
    if wide:
        for i in range(1, 4): a(f"v_subrev_u32 v{vtmp+i}, {want}, v{vtmp+i}\nv_max_u32 v{vtmp}, v{vtmp}, v{vtmp+i}")
    a(f"v_cmp_lt_u32 vcc, 15, v{vtmp}")
    a(f"s_cbranch_vccz {ok}")
    if sleep: a(f"s_sleep {sleep}")
    a(f"s_add_u32 s{cnt}, s{cnt}, 1\ns_cmp_lt_u32 s{cnt}, {SPIN}\ns_cbranch_scc1 {lp}")
    a(f"s_mov_b32 s{sTMO}, {SPIN}")
    a.label(ok)

def poll_local(a, kind, ep, va=1, vt=2, sleep=0):
    t = T + 20
    if kind == "wo":
        a(f"v_and_b32 v{va}, 31, v0\nv_lshlrev_b32 v{va}, 5, v{va}\ns_lshr_b32 s{t}, s{sR}, 3\ns_lshl_b32 s{t}, s{t}, 2\ns_add_u32 s{t}, s{t}, 16")
    elif kind == "gu":
        a(f"v_lshrrev_b32 v{va}, 2, v0\nv_lshlrev_b32 v{va}, 5, v{va}\nv_and_b32 v{vt}, 3, v0\nv_lshl_add_u32 v{va}, v{vt}, 2, v{va}")
        a(f"s_lshr_b32 s{t}, s{sR}, 4\ns_lshl_b32 s{t}, s{t}, 9")
    elif kind == "down":
        a(f"v_bfe_u32 v{va}, v0, 1, 4\nv_lshlrev_b32 v{va}, 5, v{va}\nv_and_b32 v{vt}, 1, v0\nv_lshl_add_u32 v{va}, v{vt}, 3, v{va}")
        a(f"s_lshr_b32 s{t}, s{sR}, 4\ns_lshl_b32 s{t}, s{t}, 9\ns_bfe_u32 s{t+1}, s{sR}, 0x10003\ns_lshl_b32 s{t+1}, s{t+1}, 2\ns_add_u32 s{t}, s{t}, s{t+1}")
    elif kind == "attn":
        a(f"""
        v_bfe_u32 v{va}, v0, 2, 1
        v_mul_u32_u24 v{va}, 19, v{va}
        s_mul_i32 s{t}, s{sR}, 20
        v_add_u32 v{va}, s{t}, v{va}
        v_lshrrev_b32 v{va}, 7, v{va}
        v_lshrrev_b32 v{vt}, 4, v0
        v_min_u32 v{vt}, 2, v{vt}
        v_mad_u32_u24 v{va}, v{vt}, 5, v{va}
        v_bfe_u32 v{vt}, v0, 3, 1
        v_lshl_add_u32 v{va}, v{vt}, 4, v{va}
        v_lshlrev_b32 v{va}, 5, v{va}
        v_and_b32 v{vt}, 3, v0
        v_lshl_add_u32 v{va}, v{vt}, 2, v{va}
        s_mov_b32 s{t}, 0
        """)
    a(f"s_lshl_b32 s{t+1}, s{sG}, 10\ns_add_u32 s{t}, s{t}, s{t+1}\ns_add_u32 s{t}, s{t}, {WS_FL}\ns_add_u32 s{t+1}, s{sEP}, {ep}")
    poll(a, va, vt, f"s{t}", f"s{t+1}", sleep=sleep)

sNR, sGO, sGW = 92, 94, 95
class Gate:
    def __init__(self, a, va, vt, fold=False, sleep=0):
        self.a, self.va, self.vt, self.fold, self.sleep = a, va, vt, fold, sleep
        self.ok = 0
    def load(self): self.a(f"buffer_load_dword v{self.vt}, v{self.va}, {WSR}, s{sGO} offen sc1")
    def upd(self):
        self.a(f"s_waitcnt vmcnt(0)\nv_subrev_u32 v{self.vt}, s{sGW}, v{self.vt}\nv_cmp_lt_u32 s[{sNR}:{sNR+1}], 15, v{self.vt}")
        if self.fold: self.a(f"s_or_b32 s{sNR}, s{sNR}, s{sNR+1}")
    def reset(self): self.a(f"s_mov_b32 s{sNR}, -1")
    def need(self, mask):
        a = self.a
        mask &= ~self.ok
        if not mask: return
        self.ok |= mask
        lp = a.uid("gt"); cnt = T + 22
        a(f"s_and_b32 s{cnt}, s{sNR}, {hex(mask)}\ns_cbranch_scc0 {lp}k\ns_mov_b32 s{cnt}, s{sTMO}")
        a.label(lp)
        self.load(); self.upd()
        a(f"s_and_b32 s{cnt+1}, s{sNR}, {hex(mask)}\ns_cbranch_scc0 {lp}k")
        if self.sleep: a(f"s_sleep {self.sleep}")
        a(f"s_add_u32 s{cnt}, s{cnt}, 1\ns_cmp_lt_u32 s{cnt}, {SPIN}\ns_cbranch_scc1 {lp}\ns_mov_b32 s{sTMO}, {SPIN}")
        a.label(lp + "k")
def span(lo, hi, w, bits):
    m = 0
    for p in range(lo // w, hi // w + 1): m |= ((1 << bits) - 1) << (bits * p)
    return m
def gate_local(a, kind, ep, va, vt, sRotCt=None, sleep=0):
    t = T + 20
    if kind == "wo":
        a(f"v_and_b32 v{va}, 31, v0\nv_lshlrev_b32 v{va}, 5, v{va}\ns_lshr_b32 s{sGO}, s{sR}, 3\ns_lshl_b32 s{sGO}, s{sGO}, 2\ns_add_u32 s{sGO}, s{sGO}, 16")
    elif kind == "down":
        a(f"v_lshrrev_b32 v{va}, 1, v0\nv_add_u32 v{va}, s{sRotCt}, v{va}\nv_and_b32 v{va}, 15, v{va}\nv_lshlrev_b32 v{va}, 5, v{va}\nv_and_b32 v{vt}, 1, v0\nv_lshl_add_u32 v{va}, v{vt}, 3, v{va}")
        a(f"s_lshr_b32 s{sGO}, s{sR}, 4\ns_lshl_b32 s{sGO}, s{sGO}, 9\ns_bfe_u32 s{t+1}, s{sR}, 0x10003\ns_lshl_b32 s{t+1}, s{t+1}, 2\ns_add_u32 s{sGO}, s{sGO}, s{t+1}")
    elif kind == "gu":
        a(f"v_lshrrev_b32 v{va}, 1, v0\nv_add_u32 v{va}, s{sRotCt}, v{va}\nv_and_b32 v{va}, 7, v{va}\nv_lshlrev_b32 v{va}, 5, v{va}\nv_and_b32 v{vt}, 1, v0\nv_lshl_add_u32 v{va}, v{vt}, 2, v{va}")
        a(f"s_lshr_b32 s{sGO}, s{sR}, 4\ns_lshl_b32 s{sGO}, s{sGO}, 9\ns_bfe_u32 s{t+1}, s{sW}, 0x10001\ns_lshl_b32 s{t+1}, s{t+1}, 8\ns_add_u32 s{sGO}, s{sGO}, s{t+1}")
        a(f"s_and_b32 s{t+1}, s{sW}, 1\ns_lshl_b32 s{t+1}, s{t+1}, 3\ns_add_u32 s{sGO}, s{sGO}, s{t+1}")
    a(f"s_lshl_b32 s{t+1}, s{sG}, 10\ns_add_u32 s{sGO}, s{sGO}, s{t+1}\ns_add_u32 s{sGO}, s{sGO}, {WS_FL}\ns_add_u32 s{sGW}, s{sEP}, {ep}")
    g = Gate(a, va, vt, sleep=sleep); g.reset()
    return g

def flag_setup(a, ep):
    t = T + 20
    a(f"s_lshl_b32 s{t}, s{sWG}, 3\ns_add_u32 s{t}, s{t}, s{sW}\ns_lshl_b32 s{t}, s{t}, 2\ns_add_u32 s{t}, s{t}, {WS_FL}\ns_add_u32 s{t+1}, s{sEP}, {ep}")
    a(f"v_mov_b32 v1, 0\nv_mov_b32 v2, s{t+1}")
def flag_store(a, SB, s=T+20):
    a(f"s_mov_b64 exec, 1\nbuffer_store_dword v2, v1, {WSR}, s{s} offen {SB}\ns_mov_b64 exec, -1")
def publish_local(a, ep, SB):
    flag_setup(a, ep)
    a("s_waitcnt vmcnt(0)")
    flag_store(a, SB)

def row_stats(a, vst, vmean, vrstd):
    for i in range(1, 8):
        a(f"v_add_f32 v{vst}, v{vst}, v{vst+2*i}\nv_add_f32 v{vst+1}, v{vst+1}, v{vst+2*i+1}")
    finish_stats(a, vst, vst + 1, vmean, vrstd)

def finish_stats(a, vs, vq, vmean, vrstd):
    a(f"v_mul_f32 v{vmean}, {f32(1.0/D)}, v{vs}")
    a(f"v_mul_f32 v{vq}, {f32(1.0/D)}, v{vq}")
    a(f"v_fma_f32 v{vq}, -v{vmean}, v{vmean}, v{vq}")
    a(f"v_max_f32 v{vq}, 0, v{vq}")
    a(f"v_add_f32 v{vq}, {f32(1e-5)}, v{vq}")
    a(f"v_rsq_f32 v{vrstd}, v{vq}")
    a("s_nop 0")

def lin_dma(a, vaddr, src_s, src_off, dst_s, dst_off, npieces, bits="", rsrc=WSR, tmp=T+19):
    i = 0
    while i < npieces:
        k = min(4, npieces - i)
        a(f"s_add_u32 m0, s{dst_s}, {dst_off + 1024*i}")
        a(f"s_add_u32 s{tmp}, s{src_s}, {src_off + 1024*i}")
        for j in range(k):
            a(f"buffer_load_dwordx4 v{vaddr}, {rsrc}, s{tmp} offen offset:{1024*j} {bits} lds")
        i += k
    return npieces


def states(x):
    return int(x.split()[1]) + 1 if x.startswith("s_nop") else 1

def gemm_unrolled(a, n, P, nr, reads, mfma, groups, inserts, fix, fix_from, epi, st_end, alt=None):
    seq = []
    def add(ms, fill, pre=()):
        k = 0
        for i, (kk, tl) in enumerate(ms):
            tgt = (len(fill) * (i + 1) + len(ms) - 1) // len(ms)
            seq.append([list(pre) if i == 0 else [], mfma(kk, tl), tl, list(fill[k:tgt])]); k = tgt
    step = lambda kk: [(kk, tl) for tl in range(P)]
    a("s_barrier")
    for x in reads(0, 0) + reads(0, 1): a(x)
    w = f"s_waitcnt lgkmcnt({nr})"
    for c in range(n - 1):
        add(step(0), reads(c, 2), [w])
        add(step(1), reads(c, 3), [w])
        add(step(2), [], [w])
        seq[-2][3] += ["s_waitcnt lgkmcnt(0)"]; seq[-1][3] += ["s_barrier"]
        add(step(3), reads(c + 1, 0) + reads(c + 1, 1))
    nmain = len(seq)
    for i0, ins in inserts.items():
        i = i0; ins = list(ins)
        while ins:
            room = 4 - sum(states(x) for x in seq[i][3]) - len(seq[i+1][0])
            if ins[0].startswith("s_mov_b32 exec") and room < 3: room = 0
            while room > 0 and ins and "s_barrier" not in seq[i][3]:
                x = ins.pop(0); seq[i][3].append(x); room -= states(x)
            i += 1

        end = fix_from if i0 < fix_from else nmain
        assert i <= end
        if any(x.startswith("ds_") for x in inserts[i0]): assert any("s_waitcnt lgkmcnt(0)" in seq[j][3] for j in range(i, end)), (i, end)
    todo = {tl: list(fix(tl)) for tl in range(P)}
    used = lambda g: sum(states(x) for x in seq[g][3]) + len(seq[g+1][0])
    g = fix_from + 2
    while any(todo.values()):
        assert g + 2 < nmain, "no room for fix"
        if used(g) < 5 and "s_barrier" not in seq[g][3]:
            for back in range(P - 2, 1, -1):
                tl = seq[g - back][2]
                if not todo[tl] or g - back < fix_from: continue
                have = sum(used(x) + 1 for x in range(g - back, g)) + sum(states(x) for x in seq[g][3])
                room = sum(max(0, 5 - used(x)) for x in range(g - back, g))
                if have + room < 12: continue
                for x in range(g - back, g):
                    k = min(5 - used(x), 12 - have)
                    if k > 0: seq[x][3].append(f"s_nop {k-1}"); have += k
                while used(g) < 5 and todo[tl]: seq[g][3].append(todo[tl].pop(0))
            if used(g + 1) < 1: seq[g + 1][3].append("s_nop 0")
        g += 1

    c = n - 1
    g0 = groups[0]
    seq[-1][3] += reads(c, 2)
    add([(kk, tl) for kk in (0, 1) for tl in g0], reads(c, 3), [w])
    add([(kk, tl) for kk in (2, 3) for tl in g0], [], ["s_waitcnt lgkmcnt(0)"])
    seq[-len(g0)*2][3].append("s_barrier")
    seq[-1][3].append("s_nop 4")
    def flush():
        for pre, m, tl, post in seq:
            for x in pre: a(x)
            a(m)
            for x in post: a(x)
        del seq[:]
    def tail(epi):
        for gi in range(1, len(groups)):
            ms = [(kk, tl) for kk in range(4) for tl in groups[gi]]
            if gi == 1: add(ms[:1], ["s_nop 4"]); add(ms[1:], epi(gi - 1, False))
            else: add(ms, ["s_nop 0"] + epi(gi - 1, False))
        flush()
        stamp(a, st_end)
        a.nop(3)
        for x in epi(len(groups) - 1, True): a(x)
    if alt:
        cond, epi2, post1, post2 = alt
        l = a.uid("alt")
        seq[-1][3][-1:] = [cond, f"s_cbranch_scc1 {l}", "s_nop 2"]
        flush(); tail(epi); post1()
        a.label(l); a("s_nop 2"); tail(epi2); post2()
    else: tail(epi)

class Src:
    def __init__(self, sB, sB1, sThr, stride): self.__dict__.update(locals())
    def setup(self, a, sRot, n, tmp):
        a(f"s_mul_i32 s{tmp}, s{sRot}, {self.stride}\ns_add_u32 s{self.sB}, s{self.sB}, s{tmp}\ns_sub_u32 s{self.sB1}, s{self.sB}, {n*self.stride}")
    def sel(self, a, c, dst):
        a(f"s_cmp_gt_u32 s{self.sThr}, {c}\ns_cselect_b32 s{dst}, s{self.sB}, s{self.sB1}")

class Phase:
    def __init__(self, name, n, npa, npw, emitA, emitW, regA, regW, pollfn, budget, lag=1, after_bar=None, dbg=False, early=99):
        self.__dict__.update(locals())

class Loader:
    def __init__(self, a):
        self.a = a; self.q = []; self.live = {}; self.waitfn = None; self.total = 0
    def free(self, reg, key):
        return key in self.live or all(reg[1] <= lo or hi <= reg[0] for lo, hi in self.live.values())
    def can(self, ph, kind, c):
        return self.free((ph.regA if kind == "A" else ph.regW)(c), (ph.name, kind, c))
    def issue(self, ph, kind, c, i0, k):
        assert self.can(ph, kind, c)
        self.live[(ph.name, kind, c)] = (ph.regA if kind == "A" else ph.regW)(c)
        (ph.emitA if kind == "A" else ph.emitW)(c, i0, k)
        self.q += [(ph.name, kind, c)] * k; self.total += k
    def release(self, ph, c):
        for k in "AW": self.live.pop((ph.name, k, c), None)
    def wait(self, tags):
        last = -1
        for i, t in enumerate(self.q):
            if t in tags: last = i
        if last >= 0:
            n = len(self.q) - 1 - last
            assert n < 64
            self.q = self.q[last+1:]
            if self.waitfn: self.waitfn(n)
            else: self.a(f"s_waitcnt vmcnt({n})")
    def pre(self, ph, pw, cnt):
        done = 0
        while pw < ph.n * ph.npw and done < cnt and self.can(ph, "W", pw // ph.npw):
            k = min(4, ph.npw - pw % ph.npw, cnt - done)
            self.issue(ph, "W", pw // ph.npw, pw % ph.npw, k); pw += k; done += k
        return pw
    def run(self, ph, nxt, pw=0, after_poll=None, tail=None, waitfn=None, lastexit=None):
        a = self.a; n = ph.n
        pa = 0; pn = 0
        if ph.pollfn: ph.pollfn()
        if after_poll: after_poll()
        for c in range(n):
            done = 0
            if lastexit and pw == n * ph.npw:
                lastexit(n - c + 1); lastexit = None
            while True:
                needed = pa < (c + 1) * ph.npa or pw < (c + 1) * ph.npw
                if not needed:
                    beyond = 0
                    for t in reversed(self.q):
                        if t[0] == ph.name and t[2] <= c: break
                        beyond += 1
                    if beyond >= getattr(ph, 'look', C.look) and (done >= ph.budget or c == 0): break
                ca = pa // ph.npa if ph.npa else n; cw = pw // ph.npw
                okA = ca < n and self.can(ph, "A", ca)
                okW = cw < n and self.can(ph, "W", cw)
                if okW and (cw <= ca or not okA):
                    k = ph.npw - pw % ph.npw
                    if not needed: k = min(2, k)
                    self.issue(ph, "W", cw, pw % ph.npw, k); pw += k
                elif okA:
                    k = ph.npa - pa % ph.npa
                    if not needed: k = min(2, k)
                    self.issue(ph, "A", ca, pa % ph.npa, k); pa += k
                elif nxt and ca == n and cw == n and pn < nxt.early and self.can(nxt, "W", pn // nxt.npw):
                    k = min(2, nxt.npw - pn % nxt.npw)
                    self.issue(nxt, "W", pn // nxt.npw, pn % nxt.npw, k); pn += k
                else:
                    assert not needed
                    break
                done += k
            if tail and pa == n * ph.npa and pw == n * ph.npw:
                tail(); tail = None; self.waitfn = waitfn
            if ph.after_bar and c > 0: ph.after_bar(c - 1)
            self.wait({(ph.name, "A", c), (ph.name, "W", c)})
            if ph.dbg and C.stamp: a(f"s_memtime s[10:11]\ns_waitcnt lgkmcnt(0)\nv_writelane_b32 v254, s10, {2*c}")
            a("s_barrier")
            if ph.dbg and C.stamp: a(f"s_memtime s[10:11]\ns_waitcnt lgkmcnt(0)\nv_writelane_b32 v254, s10, {2*c+1}")
            self.release(ph, c - ph.lag)
        if ph.after_bar: ph.after_bar(n - 1)
        if nxt: pn = self.pre(nxt, pn, min(ph.budget, max(0, nxt.early - pn)))
        return pn
    def end(self, ph):
        self.a("s_barrier")
        for c in range(ph.n): self.release(ph, c)

Q1_TAB = 131072 + 26624
Q1_NON = Q1_TAB + 2048
Q1_CS = Q1_NON + 64
WB = 65536
def guW(c): return WB + ((3 - c) % 4) * 24576
def dnW(c): return ((c + 2) % 8) * 20480
def qkW(c): return WB + ((c + 4) % 6) * 16384

PSCR = 131072
PV = 180
def projjob_issue(a, sJob, sScr, t, loads=True):
    a(f"""
    s_and_b32 s{t+2}, s{sJob}, 7
    s_lshr_b32 s{t+3}, s{sJob}, 3
    s_cmp_lt_u32 s{t+3}, 20
    s_cselect_b32 s{R_T}, s{P_WO}, s{P_WD}
    s_cselect_b32 s{R_T+1}, s{P_WO+1}, s{P_WD+1}
    s_mov_b32 s{R_T+2}, {F*D*2}
    s_cselect_b32 s{R_T+2}, {D*D*2}, s{R_T+2}
    s_mov_b32 s{R_T+3}, 0x20000
    s_cselect_b32 s{t+4}, 0, 20
    s_cselect_b32 s{t+5}, 20, 48
    s_mov_b32 s{t+6}, {WS_WTD}
    s_cselect_b32 s{t+6}, {WS_WTO}, s{t+6}
    s_sub_u32 s{t+3}, s{t+3}, s{t+4}
    s_mul_i32 s{t+5}, s{t+5}, s{t+2}
    s_add_u32 s{t+5}, s{t+5}, s{t+3}
    s_mul_i32 s{t+5}, s{t+5}, 5120
    s_add_u32 s{t+6}, s{t+6}, s{t+5}
    s_mul_i32 s{t+3}, s{t+3}, {32*1280}
    s_mul_i32 s{t+2}, s{t+2}, 160
    s_add_u32 s{t+3}, s{t+3}, s{t+2}
    s_movk_i32 s{t+4}, 6554
    """)
    x, y = PV, PV + 1
    for i in range(5 if loads else 0):
        a(f"""
        v_add_u32 v{x}, {64*i}, v0
        v_mul_u32_u24 v{y}, s{t+4}, v{x}
        v_lshrrev_b32 v{y}, 16, v{y}
        v_mad_i32_i24 v{x}, v{y}, -10, v{x}
        v_mul_u32_u24 v{y}, 1280, v{y}
        v_lshl_add_u32 v{x}, v{x}, 4, v{y}
        s_add_u32 m0, s{sScr}, {1024*i}
        s_nop 0
        buffer_load_dwordx4 v{x}, {R(R_T)}, s{t+3} offen lds
        """)
def projjob_finish(a, sScr, t):
    x, y, z, d0 = PV, PV + 1, PV + 2, PV + 4
    a(f"""
    v_lshrrev_b32 v{x}, 4, v0
    v_bfe_u32 v{y}, v0, 2, 2
    v_lshl_add_u32 v{x}, v{x}, 3, v{y}
    v_mul_u32_u24 v{x}, 160, v{x}
    v_add_u32 v{x}, s{sScr}, v{x}
    v_and_b32 v{y}, 3, v0
    v_lshl_add_u32 v{z}, v{y}, 3, v{x}
    v_lshl_add_u32 v{y}, v{y}, 4, v{x}
    """)
    for jn in range(5):
        for j in range(2):
            d = d0 + 4*jn + 2*j
            if jn < 4: a(f"ds_read_b64_tr_b16 v[{d}:{d+1}], v{y} offset:{640*j + 64*(jn>>1) + 8*(jn&1)}")
            else: a(f"ds_read_b64_tr_b16 v[{d}:{d+1}], v{z} offset:{640*j + 128}")
    a(f"s_add_u32 s{t+5}, s{t+6}, 4096\ns_waitcnt lgkmcnt(0)")
    for jn in range(5):
        d = d0 + 4*jn
        a(f"buffer_store_dwordx4 v[{d}:{d+3}], v5, {WSR}, s{t+6 if jn < 4 else t+5} offen offset:{1024*(jn&3)} sc1")

def gujob_issue(a, sJob, t, loads=True):
    x, y = PV, PV + 1
    a(f"""
    s_mul_i32 s{t+2}, s{sJob}, 2731
    s_lshr_b32 s{t+2}, s{t+2}, 16
    s_mul_i32 s{t+3}, s{t+2}, 24
    s_sub_u32 s{t+3}, s{sJob}, s{t+3}
    s_mul_i32 s{t+4}, s{t+2}, {64*F*2}
    s_lshl_b32 s{t+5}, s{t+3}, 7
    s_add_u32 s{t+4}, s{t+4}, s{t+5}
    v_lshrrev_b32 v{x}, 3, v0
    v_mul_u32_u24 v{x}, {F*2}, v{x}
    v_and_b32 v{y}, 7, v0
    v_lshl_add_u32 v{x}, v{y}, 4, v{x}
    """)
    for i in range(8 if loads else 0):
        for u in range(2):
            a(f"s_mov_b32 m0, {PSCR + 8192*u + 1024*i}\ns_add_u32 s{t+5}, s{t+4}, {i*8*F*2}")
            a(f"buffer_load_dwordx4 v{x}, {R(R_WU if u else R_WG)}, s{t+5} offen lds")
def gujob_finish(a, t):
    x, y, z = PV, PV + 1, PV + 2
    ONE, FRG, CS = PV + 4, PV + 8, PV + 40
    a(f"""
    v_bfe_u32 v{x}, v0, 2, 2
    v_lshl_add_u32 v{x}, v14, 3, v{x}
    v_lshlrev_b32 v{x}, 7, v{x}
    v_and_b32 v{y}, 1, v0
    v_lshl_add_u32 v{x}, v{y}, 4, v{x}
    v_bfe_u32 v{y}, v0, 1, 1
    v_lshl_add_u32 v{x}, v{y}, 3, v{x}
    v_bfe_u32 v{y}, v0, 4, 1
    v_lshl_add_u32 v{x}, v{y}, 13, v{x}
    v_add_u32 v{x}, {PSCR}, v{x}
    v_lshlrev_b32 v{z}, 6, v14
    s_mul_i32 s{t+6}, s{t+2}, 12288
    s_lshl_b32 s{t+5}, s{t+3}, 9
    s_add_u32 s{t+6}, s{t+6}, s{t+5}
    s_add_u32 s{t+6}, s{t+6}, {WS_CSP}
    """)
    for i in range(4): a(f"v_mov_b32 v{ONE+i}, 0x3f803f80")
    for tt in range(4):
        f0 = FRG + 16*(tt & 1)
        for kk in range(4):
            for j in range(2):
                d = f0 + 4*kk + 2*j
                a(f"ds_read_b64_tr_b16 v[{d}:{d+1}], v{x} offset:{128*(16*kk+4*j) + 32*tt}")
        a(f"""
        s_lshl_b32 s{t+4}, s{t+3}, 2
        s_add_u32 s{t+4}, s{t+4}, {tt}
        s_mul_i32 s{t+5}, s{t+4}, 43
        s_lshr_b32 s{t+5}, s{t+5}, 8
        s_mul_i32 s{t+5}, s{t+5}, 234
        s_add_u32 s{t+4}, s{t+4}, s{t+5}
        s_mul_i32 s{t+5}, s{t+2}, 24
        s_add_u32 s{t+4}, s{t+4}, s{t+5}
        s_lshl_b32 s{t+4}, s{t+4}, 10
        s_add_u32 s{t+4}, s{t+4}, {WS_WTG}
        s_waitcnt lgkmcnt(0)
        """)
        for kk in range(4):
            a(f"v_mfma_f32_32x32x16_bf16 {v(CS,16)}, {v(f0+4*kk,4)}, {v(ONE,4)}, {v(CS,16) if kk else 0}")
        for kk in range(4):
            d = f0 + 4*kk
            a(f"buffer_store_dwordx4 v[{d}:{d+3}], v5, {WSR}, s{t+4} offen sc1\ns_add_u32 s{t+4}, s{t+4}, 6144")
        a("s_mov_b32 exec_lo, 1\ns_mov_b32 exec_hi, 1\ns_nop 1")
        for q in range(4):
            a(f"buffer_store_dwordx4 v[{CS+4*q}:{CS+4*q+3}], v{z}, {WSR}, s{t+6} offen offset:{128*tt+16*q} sc1")
        a("s_mov_b64 exec, -1")

def prep(a, stage):
    tj = 84; sJob, sScr = tj, tj + 1
    lg = a.uid("pg"); le = a.uid("pe")
    if stage == 0:
        a(f"""
        s_sub_u32 s{sScr}, s{sW}, 1
        s_lshl_b32 s{sJob}, s{sScr}, 8
        s_add_u32 s{sJob}, s{sJob}, s{sWG}
        s_add_u32 s{sJob}, s{sJob}, 160
        s_mul_i32 s{sScr}, s{sScr}, 5120
        s_add_u32 s{sScr}, s{sScr}, {PSCR + 16384}
        """)
    a(f"s_cmp_eq_u32 s{sW}, 0\ns_cbranch_scc1 {lg}\ns_cmp_ge_u32 s{sJob}, 544\ns_cbranch_scc1 {le}")
    projjob_issue(a, sJob, sScr, tj) if stage == 0 else projjob_finish(a, sScr, tj)
    a(f"s_branch {le}")
    a.label(lg)
    a(f"s_cmp_ge_u32 s{sWG}, 240\ns_cbranch_scc1 {le}")
    gujob_issue(a, sWG, tj) if stage == 0 else gujob_finish(a, tj)
    a.label(le)

def xstat_fin(a):
    t = T + 16
    a(f"s_mov_b32 s{t}, 0xffff0000\nv_mov_b64 v[232:233], 0\ns_waitcnt vmcnt(0)")
    for i in range(12):
        a(f"v_lshlrev_b32 v234, 16, v{220+i}\nv_and_b32 v235, s{t}, v{220+i}\nv_add_f32 v232, v232, v234\nv_fmac_f32 v233, v234, v234\nv_add_f32 v232, v232, v235\nv_fmac_f32 v233, v235, v235")
    for mod in ("quad_perm:[1,0,3,2]", "quad_perm:[2,3,0,1]"):
        a(f"s_nop 1\nv_add_f32_dpp v232, v232, v232 {mod} row_mask:0xf bank_mask:0xf\nv_add_f32_dpp v233, v233, v233 {mod} row_mask:0xf bank_mask:0xf")
    a(f"""
    v_bfe_u32 v234, v0, 3, 2
    v_lshlrev_b32 v234, 10, v234
    v_bfe_u32 v235, v0, 2, 1
    v_lshl_add_u32 v234, v235, 3, v234
    v_lshrrev_b32 v235, 5, v0
    v_lshl_add_u32 v234, v235, 4, v234
    s_lshr_b32 s{t}, s{sWG}, 3
    s_lshl_b32 s{t}, s{t}, 12
    s_and_b32 s{t+1}, s{sWG}, 7
    s_lshl_b32 s{t+1}, s{t+1}, 2
    s_add_u32 s{t+1}, s{t+1}, s{sW}
    s_lshl_b32 s{t+1}, s{t+1}, 5
    s_add_u32 s{t}, s{t}, s{t+1}
    s_add_u32 s{t}, s{t}, {WS_ST0}
    s_mov_b32 exec_lo, 0x11111111
    s_mov_b32 exec_hi, 0x11111111
    buffer_store_dwordx2 v[232:233], v234, {WSR}, s{t} offen sc1
    s_mov_b64 exec, -1
    """)

def nonce_put(a):
    t = T + 8
    a(f"""
    s_memrealtime s[{t}:{t+1}]
    v_mov_b32 v1, 0
    s_waitcnt lgkmcnt(0)
    s_or_b32 s{t+2}, s{t}, 0x80000000
    v_mov_b32 v2, s{t+2}
    s_mov_b64 exec, 1
    global_store_dword v1, v2, s[{P_DBG}:{P_DBG+1}] sc1
    s_mov_b64 exec, -1
    """)
def flags_zero(a):
    t = T + 16
    a(f"""
    s_lshl_b32 s{t}, s{sWG}, 5
    s_add_u32 s{t}, s{t}, {WS_FL}
    s_lshl_b32 s{t+1}, s{sWG}, 7
    s_add_u32 s{t+1}, s{t+1}, {L_FG}
    s_add_u32 s{t+2}, s{t+1}, {LSTRIDE}
    v_lshlrev_b32 v236, 2, v0
    v_mov_b32 v237, 0
    s_mov_b64 exec, 0xff
    buffer_store_dword v237, v236, {WSR}, s{t} offen sc1
    s_mov_b64 exec, 0x3ff
    buffer_store_dword v237, v236, {WSR}, s{t+1} offen sc1
    buffer_store_dword v237, v236, {WSR}, s{t+2} offen sc1
    s_mov_b64 exec, -1
    """)

def nonce_issue(a, v2, v3):
    a(f"v_mov_b32 v{v3}, 0\nglobal_load_dword v{v2}, v{v3}, s[{P_DBG}:{P_DBG+1}] sc1")
def nonce_get(a, v1, v2, v3, cnt=0):
    t = T + 14
    lp = a.uid("non"); ok = a.uid("nonok")
    a(f"s_mov_b32 s{t+6}, 0\nv_mov_b32 v{v3}, 0\ns_lshl_b32 s{t+4}, s{sWG}, 7\ns_add_u32 s{t+4}, s{t+4}, {L_FG}\ns_waitcnt vmcnt({cnt})\ns_branch {lp}c")
    a.label(lp)
    a(f"global_load_dword v{v2}, v{v3}, s[{P_DBG}:{P_DBG+1}] sc1\ns_waitcnt vmcnt(0)")
    a.label(lp + "c")
    a(f"""
    v_cmp_eq_u32 vcc, 0, v{v2}
    s_cbranch_vccz {ok}
    s_sleep 4
    s_add_u32 s{t+6}, s{t+6}, 1
    s_cmp_lt_u32 s{t+6}, {SPIN}
    s_cbranch_scc1 {lp}
    s_mov_b32 s{sTMO}, {SPIN}
    """)
    a.label(ok)
    a(f"""
    v_readfirstlane_b32 s{sEP}, v{v2}
    s_getreg_b32 s{t+6}, hwreg(HW_REG_XCC_ID, 0, 4)
    v_mov_b32 v{v1}, {Q1_NON}
    ds_write_b32 v{v1}, v{v2}
    v_add_u32 v{v2}, s{t+6}, v{v2}
    s_mov_b64 exec, 1
    buffer_store_dword v{v2}, v{v3}, {WSR}, s{t+4} offen offset:32 sc1
    s_mov_b64 exec, -1
    s_waitcnt lgkmcnt(0)
    """)

def census(a, va, vt, issue, cnt=0):
    t = T + 20
    a(f"""
    v_and_b32 v{va}, 31, v0
    v_lshlrev_b32 v{va}, 7, v{va}
    s_lshl_b32 s{t}, s{sG}, 12
    s_add_u32 s{t}, s{t}, {L_FG + 32}
    """)
    if issue:
        a(f"buffer_load_dword v{vt}, v{va}, {WSR}, s{t} offen sc1")
        return
    poll(a, va, vt, f"s{t}", f"s{sEP}", sleep=4, pre=cnt)
    a(f"""
    s_getreg_b32 s{t}, hwreg(HW_REG_XCC_ID, 0, 4)
    v_cmp_ne_u32 vcc, s{t}, v{vt}
    s_cmp_eq_u64 vcc, 0
    s_cselect_b32 s{t}, 1, 0
    v_mov_b32 v{va}, {Q1_NON}
    v_mov_b32 v{vt}, s{t}
    ds_write_b32 v{va}, v{vt} offset:4
    s_waitcnt lgkmcnt(0)
    """)

sMODE = 14 - 14 + 98
def read_nonce_mode(a):
    a(f"v_mov_b32 v1, {Q1_NON}\nds_read_b64 v[2:3], v1\ns_waitcnt lgkmcnt(0)\nv_readfirstlane_b32 s{sEP}, v2\nv_readfirstlane_b32 s{sMODE}, v3")

def qkv_ids(a, t):
    a(f"s_lshr_b32 s{t}, s{sWG}, 4\ns_and_b32 s{t+1}, s{sR}, 15")

def qkv_compute(a, first, SB):
    t = T
    sRT, sCT, sTY, sC0 = t, t+1, t+2, t+3
    LQ = 0 if first else LSTRIDE
    sWM, sWN = t+5, t+6
    a(f"""
    s_mul_i32 s{sTY}, s{sCT}, 52
    s_lshr_b32 s{sTY}, s{sTY}, 8
    s_mul_i32 s{sC0}, s{sTY}, 5
    s_sub_u32 s{sC0}, s{sCT}, s{sC0}
    s_lshl_b32 s{sC0}, s{sC0}, 7
    s_and_b32 s{sWM}, s{sW}, 1
    s_lshr_b32 s{sWN}, s{sW}, 1
    v_lshrrev_b32 v14, 5, v0
    v_and_b32 v15, 31, v0
    """)
    ACC = 128; FR = 16; VST = 80; VCS = 96; VCV = 192; ONE = 196; AD = 200; MS = 244
    sCS = t+15
    a(f"s_lshl_b32 s{sCS}, s{sWG}, 9\ns_lshl_b32 s{t+7}, s{sWN}, 8\ns_add_u32 s{sCS}, s{sCS}, s{t+7}\ns_add_u32 s{sCS}, s{sCS}, {WS_CSQ}")
    a(f"v_lshlrev_b32 v{AD+8}, 5, v14\nv_lshlrev_b32 v{AD+9}, 2, v15")
    if first:
        a(f"""
        s_lshl_b32 s{t+7}, s{sWM}, 13
        v_lshlrev_b32 v1, 7, v15
        v_add_u32 v1, s{t+7}, v1
        v_bfe_u32 v8, v0, 1, 3
        v_xor_b32 v8, v8, v14
        """)
        for kk in range(4):
            a(f"v_xor_b32 v9, {2*kk}, v8\nv_lshl_add_u32 v{2+kk}, v9, 4, v1")
    else:
        a(f"s_lshl_b32 s{t+7}, s{sWM}, 13\nv_lshlrev_b32 v2, 4, v0\nv_add_u32 v2, s{t+7}, v2")
    a(f"""
    v_and_b32 v10, 3, v0
    v_and_b32 v11, 1, v0
    v_bfe_u32 v12, v0, 1, 1
    v_lshl_add_u32 v11, v11, 1, v12
    s_cmp_eq_u32 s{sTY}, 2
    s_cselect_b64 vcc, -1, 0
    v_cndmask_b32 v10, v11, v10, vcc
    v_bfe_u32 v8, v0, 2, 2
    v_lshl_add_u32 v9, v14, 3, v8
    v_lshlrev_b32 v9, 8, v9
    v_lshl_add_u32 v9, v10, 3, v9
    v_bfe_u32 v10, v0, 4, 1
    v_lshl_add_u32 v9, v10, 5, v9
    s_lshl_b32 s{t+7}, s{sWN}, 1
    v_xor_b32 v8, s{t+7}, v8
    v_lshl_add_u32 v6, v8, 6, v9
    v_xor_b32 v8, 1, v8
    v_lshl_add_u32 v7, v8, 6, v9
    """)
    nxa = 4 if first else 1
    W0 = 16384 if first else qkW(0)
    if first:
        for i in range(nxa): a(f"v_mov_b32 v{8+i}, v{2+i}")
        for i in (4, 5): a(f"v_add_u32 v{8+i}, {W0}, v{2+i}")
    else:
        for i in range(4): a(f"v_add_u32 v{8+i}, {WB + 49152*(i >> 1)}, v{6 + (i & 1)}")
    VM, VR = (32, 64) if first else (96, 212)
    for i in range(0, 64, 2): a(f"v_mov_b64 v[{ACC+i}:{ACC+i+1}], 0")
    def reads(kk):
        b = FR + 16*kk; r = []
        for tm in range(2):
            if first: r.append(f"ds_read_b128 v[{b+4*tm}:{b+4*tm+3}], v{8+kk} offset:{4096*tm}")
            else: r.append(f"ds_read_b128 v[{b+4*tm}:{b+4*tm+3}], v8 offset:{4096*tm+1024*kk}")
        for tn in range(2):
            for j in range(2):
                d = b + 8 + 4*tn + 2*j
                r.append(f"ds_read_b64_tr_b16 v[{d}:{d+1}], v{12+tn} offset:{4096*kk+1024*j}")
        return r
    def mfmas(kk, vtype, tns=(0, 1)):
        b = FR + 16*kk; m = []
        for tn in tns:
            W = v(b + 8 + 4*tn, 4)
            for tm in range(2):
                c = ACC + 16*(2*tn + tm)
                X = v(b + 4*tm, 4)
                A, B = (X, W) if vtype else (W, X)
                m.append(f"v_mfma_f32_32x32x16_bf16 {v(c,16)}, {A}, {B}, {v(c,16)}")
        return m
    sC, sSa, sSw, sMk, sDst, sD1 = t+9, t+10, t+4, t+11, t+12, 96
    qloc = C.qloc and SB == '' and not first
    vlab = a.uid("qkv_v"); fin = a.uid("qkv_fin"); done = a.uid("qkv_cdone")
    a(f"s_mov_b32 s{sC}, {10 if first else 9}\ns_mov_b32 s{sSa}, 0\ns_mov_b32 s{sSw}, {W0}")
    a(f"s_cmp_eq_u32 s{sTY}, 2\ns_cbranch_scc1 {vlab}")
    def v_tab_reads(roff):
        a(f"v_lshlrev_b32 v1, 4, v14\nv_add_u32 v1, s{t+7}, v1")
        for tm in range(2):
            for q in range(4):
                a(f"ds_read_b128 v[{VM+16*tm+4*q}:{VM+16*tm+4*q+3}], v1 offset:{(32*tm+8*q)*4}")
                a(f"ds_read_b128 v[{VR+16*tm+4*q}:{VR+16*tm+4*q+3}], v1 offset:{roff+(32*tm+8*q)*4}")
    hooks = []
    def mainloop(vtype, epi, alt=None):
        lp = a.uid("qkv_loop"); hk = a.uid("qkv_hk"); hb = a.uid("qkv_hb"); ent = a.uid("qkv_ent")
        if first: xstat_fin(a)
        stamp(a, 1 if first else 18)
        if not first:
            def rd(c, kk):
                b = FR + 16*kk; r = []
                for tm in range(2):
                    r.append(f"ds_read_b128 v[{b+4*tm}:{b+4*tm+3}], v2 offset:{(c % 4)*16384+4096*tm+1024*kk}")
                o = qkW(c) - WB
                for tn in range(2):
                    for j in range(2):
                        d = b + 8 + 4*tn + 2*j
                        r.append(f"ds_read_b64_tr_b16 v[{d}:{d+1}], v{8 + 2*(o // 49152) + tn} offset:{o % 49152 + 4096*kk+1024*j}")
                return r
            mf = lambda kk, tl: mfmas(kk, vtype, (tl >> 1,))[tl & 1]
            a(f"""
            s_lshl_b32 s{sC}, s{sRT}, 1
            s_add_u32 s{sC}, s{sC}, s{sWM}
            s_lshl_b32 s{sC}, s{sC}, 12
            s_add_u32 s{sC}, s{sC}, {L_ST2}
            v_lshlrev_b32 v3, 4, v0
            """)
            ins = {}
            for i in range(4): ins[28 + 2*i] = [f"buffer_load_dwordx4 v[{VST+4*i}:{VST+4*i+3}], v3, {WSR}, s{sC} offen offset:{1024*i} sc1"]
            b = Asm(); b("s_waitcnt vmcnt(0)"); row_stats(b, VST, MS, MS + 1)
            if vtype:
                b(f"v_sub_f32 v{VCV}, 0, v{VCV}\nv_sub_f32 v{VCV+2}, 0, v{VCV+2}")
                a(f"v_lshlrev_b32 v4, 4, v14")
                for tm in range(2):
                    for q in range(16):
                        off = (32*tm + 8*(q >> 2) + (q & 3)) * 4
                        b(f"ds_bpermute_b32 v{VM+16*tm+q}, v4, v{MS} offset:{off}")
                        ins.setdefault(120, []).append(f"ds_bpermute_b32 v{VR+16*tm+q}, v4, v{MS+1} offset:{off}")
                fix = lambda tl: [f"v_fmac_f32 v{ACC+16*tl+i}, v{VCV+2*(tl>>1)}, v{VM+16*(tl&1)+i}" for i in range(16)]
                ff = 92
            else:
                qk_stats_fin(b)
                fix = lambda tl: [f"v_fmac_f32 v{ACC+16*tl+i}, v{MS+4*(tl&1)}, v{VCS+16*(tl>>1)+i}" for i in range(16)]
                ff = 80
            ins[60] = b.lines
            gemm_unrolled(a, 10, 4, 6, rd, mf, [(0, 1), (2, 3)], ins, fix, ff, epi, 19, alt)
            return
        a("s_barrier")
        for x in reads(0) + reads(1): a(x)
        a(f"s_branch {ent}")
        a.label(lp)
        a("s_barrier")
        interleave(a, mfmas(3, vtype), reads(0) + reads(1))
        a.label(ent)
        a("s_waitcnt lgkmcnt(6)")
        interleave(a, mfmas(0, vtype), reads(2))
        a("s_waitcnt lgkmcnt(6)")
        interleave(a, mfmas(1, vtype), reads(3))
        a("s_waitcnt lgkmcnt(6)")
        if first:
            upd = [f"s_add_u32 s{sSa}, s{sSa}, 32768", f"s_and_b32 s{sSa}, s{sSa}, 0x1ffff", f"s_add_u32 s{sSw}, s{sSa}, 16384"]
        else:
            upd = [f"s_add_u32 s{sSa}, s{sSa}, 16384", f"s_and_b32 s{sSa}, s{sSa}, 0xffff",
                   f"s_add_u32 s{sSw}, s{sSw}, 16384", f"s_cmp_eq_u32 s{sSw}, 163840", f"s_cselect_b32 s{sSw}, {WB}, s{sSw}"]
        upd += [f"v_add_u32 v{8+i}, s{sSa}, v{2+i}" for i in range(nxa)] + [f"v_add_u32 v{12+i}, s{sSw}, v{6+i}" for i in range(2)] + [f"s_sub_u32 s{sC}, s{sC}, 1"]
        interleave(a, mfmas(2, vtype), upd)
        a(f"s_waitcnt lgkmcnt(0)")
        a(f"s_bitcmp1_b32 {HMASK1 if first else HMASK2}, s{sC}\ns_cbranch_scc1 {hk}")
        a.label(hb)
        a(f"s_cmp_lg_u32 s{sC}, 0\ns_cbranch_scc1 {lp}")
        hooks.append((hk, hb, vtype))
        b = Asm(); b("s_waitcnt vmcnt(0)"); row_stats(b, VST, MS, MS + 1)
        interleave(a, mfmas(3, vtype), b.lines)
        if vtype:
            a(f"""
            s_lshl_b32 s{t+7}, s{sW}, 9
            s_add_u32 s{t+7}, s{t+7}, {Q1_TAB}
            v_lshlrev_b32 v1, 2, v0
            v_add_u32 v1, s{t+7}, v1
            ds_write_b32 v1, v{MS}
            ds_write_b32 v1, v{MS+1} offset:256
            """)
            v_tab_reads(256)
        else: qk_stats_fin(a)
        a(f"s_lshl_b32 s{t+7}, s{sWN}, 8\ns_add_u32 s{t+7}, s{t+7}, {Q1_CS}\nv_add_u32 v4, s{t+7}, v{AD+9 if vtype else AD+8}")
        a("s_barrier")
        stamp(a, 2)
        for tn in range(2):
            if vtype: a(f"ds_read_b32 v{VCV+2*tn}, v4 offset:{128*tn}")
            else:
                for q in range(4):
                    r = VCS + 16*tn + 4*q
                    a(f"ds_read_b128 v[{r}:{r+3}], v4 offset:{(32*tn+16*(q>>1)+4*(q&1))*4}")
        read_nonce_mode(a)
        if vtype: a(f"v_sub_f32 v{VCV}, 0, v{VCV}\nv_sub_f32 v{VCV+2}, 0, v{VCV+2}")
        for x in epi(0) + epi(1): a(x)
    HMASK1 = (1 << 8) | (1 << 2)
    HMASK2 = (1 << 5) | (1 << 2)
    if not first:
        for tn in range(2):
            for q in range(4):
                r = VCS + 16*tn + 4*q
                a(f"buffer_load_dwordx4 v[{r}:{r+3}], v{AD+8}, {WSR}, s{sCS} offen offset:{(32*tn+16*(q>>1)+4*(q&1))*4} sc1")
    a(f"""
    s_mul_i32 s{sDst}, s{sTY}, {ACT}
    s_lshl_b32 s{t+8}, s{sRT}, 2
    s_lshl_b32 s{t+7}, s{sWM}, 1
    s_add_u32 s{t+8}, s{t+8}, s{t+7}
    s_mul_i32 s{t+8}, s{t+8}, 1280
    s_add_u32 s{sDst}, s{sDst}, s{t+8}
    s_add_u32 s{sDst}, s{sDst}, {LQ}
    s_lshr_b32 s{t+8}, s{sC0}, 3
    s_lshl_b32 s{t+7}, s{sWN}, 3
    s_add_u32 s{t+8}, s{t+8}, s{t+7}
    v_add_u32 v80, s{t+8}, v14
    s_mov_b32 s{t+13}, {HEADB}
    v_mov_b32 v86, 0x7fffffff
    s_mov_b32 s{sMk}, 0
    s_add_u32 s{sD1}, s{sDst}, 1280
    """)
    if qloc:
        a(f"""
        s_lshl_b32 s{t+8}, s{sRT}, 1
        s_add_u32 s{t+8}, s{t+8}, s{sWM}
        s_mul_i32 s{t+8}, s{t+8}, {2*F*64}
        s_add_u32 s{t+8}, s{t+8}, {L_H + 57344}
        s_add_u32 s{t+7}, s{t+8}, {F*64}
        s_cmp_eq_u32 s{sTY}, 0
        s_cselect_b32 s{sDst}, s{t+8}, s{sDst}
        s_cselect_b32 s{sD1}, s{t+7}, s{sD1}
        s_cselect_b32 s{t+13}, 1280, s{t+13}
        """)
    a(f"s_add_u32 s{t+14}, s{sDst}, s{t+13}\ns_add_u32 s{sD1+1}, s{sD1}, s{t+13}")
    for sl in range(4):
        a(f"""
        v_add_u32 v81, {2*sl}, v80
        v_mul_u32_u24 v82, 205, v81
        v_lshrrev_b32 v82, 10, v82
        v_mad_i32_i24 v81, v82, -5, v81
        v_cmp_lt_u32 vcc, 2, v81
        v_lshlrev_b32 v82, 1, v82
        v_add_u32 v83, -3, v81
        v_cndmask_b32 v83, v81, v83, vcc
        v_addc_co_u32 v82, vcc, 0, v82, vcc
        v_lshlrev_b32 v83, 9, v83
        v_lshl_add_u32 v83, v15, 4, v83
        v_lshlrev_b32 v85, 3, v15
        v_add_u32 v85, 1024, v85
        v_cmp_eq_u32 vcc, 2, v81
        v_mul_lo_u32 v84, v82, s{t+13}
        s_cmp_lg_u64 vcc, 0
        v_cndmask_b32 v83, v83, v86, vcc
        v_cndmask_b32 v85, v86, v85, vcc
        s_cselect_b32 s{t+7}, {1 << sl}, 0
        s_or_b32 s{sMk}, s{sMk}, s{t+7}
        v_add_u32 v{AD+sl}, v83, v84
        v_add_u32 v{AD+4+sl}, v85, v84
        """)
    def qk_stats_fin(a):
        a(f"""
        s_cmp_eq_u32 s{sTY}, 0
        s_cselect_b32 s{t+7}, {f32(QSCALE)}, 1.0
        v_mul_f32 v{MS+2}, s{t+7}, v{MS+1}
        v_mul_f32 v{MS+6}, s{t+7}, v{MS+1}
        v_sub_f32 v{MS+4}, 0, v{MS}
        v_sub_f32 v{MS}, 0, v{MS}
        s_nop 1
        v_permlane32_swap_b32 v{MS}, v{MS+4}
        v_permlane32_swap_b32 v{MS+2}, v{MS+6}
        s_nop 1
        """)
    def epi_qk(tn, pk=True, bits='sc1'):
        r = []
        for tm in range(2):
            c = ACC + 16*(2*tn + tm); cs = VCS + 16*tn; m = MS + 4*tm
            for p in range(2):
                if pk:
                    for i in range(8*p, 8*p + 8, 2):
                        if first: r.append(f"v_pk_fma_f32 v[{c+i}:{c+i+1}], v[{cs+i}:{cs+i+1}], v[{m}:{m+1}], v[{c+i}:{c+i+1}] op_sel_hi:[1,0,1]")
                    for i in range(8*p, 8*p + 8, 2):
                        r.append(f"v_pk_mul_f32 v[{c+i}:{c+i+1}], v[{c+i}:{c+i+1}], v[{m+2}:{m+3}] op_sel_hi:[1,0]")
                else:
                    for i in range(8*p, 8*p + 8): r.append(f"v_mul_f32 v{c+i}, v{m+2}, v{c+i}")
                for i in range(4):
                    r.append(f"v_cvt_pk_bf16_f32 v{c+8*p+i}, v{c+8*p+2*i}, v{c+8*p+2*i+1}")
                r.append(f"buffer_store_dwordx4 v[{c+8*p}:{c+8*p+3}], v{AD+2*tn+p}, {WSR}, s{sD1 if tm else sDst} offen {bits}")
        return r
    def bparts(bits):
        for sl in range(4):
            sk = a.uid("qk_b")
            a(f"s_bitcmp0_b32 s{sMk}, {sl}\ns_cbranch_scc1 {sk}")
            for tm in range(2):
                o = ACC + 16*(2*(sl >> 1) + tm) + 8*(sl & 1)
                a(f"buffer_store_dwordx2 v[{o}:{o+1}], v{AD+4+sl}, {WSR}, s{sD1 if tm else sDst} offen {bits}")
                a(f"buffer_store_dwordx2 v[{o+2}:{o+3}], v{AD+4+sl}, {WSR}, s{sD1+1 if tm else t+14} offen {bits}")
            a.label(sk)
        a(f"s_branch {fin}")
    if qloc: mainloop(False, epi_qk, (f"s_cmp_eq_u32 s{sTY}, 0", lambda tn, pk: epi_qk(tn, pk, ""), lambda: bparts("sc1"), lambda: bparts("")))
    else:
        mainloop(False, epi_qk); bparts("sc1")
    a.label(vlab)
    if not first:
        for tn in range(2):
            a(f"buffer_load_dword v{VCV+2*tn}, v{AD+9}, {WSR}, s{sCS} offen offset:{128*tn} sc1")
    a(f"""
    s_lshl_b32 s{t+8}, s{sRT}, 3
    s_lshl_b32 s{t+7}, s{sWM}, 2
    s_add_u32 s{t+8}, s{t+8}, s{t+7}
    s_mul_i32 s{sDst}, s{t+8}, 640
    s_add_u32 s{sDst}, s{sDst}, {L_V + LQ}
    s_lshl_b32 s{t+7}, s{sWN}, 6
    s_add_u32 s{t+8}, s{sC0}, s{t+7}
    v_add_u32 v80, s{t+8}, v15
    v_mul_u32_u24 v81, 320, v14
    s_mov_b32 s{t+13}, {HEADB}
    s_movk_i32 s{t+14}, 3277
    s_movk_i32 s{t+7}, -20
    """)
    for tn in range(2):
        a(f"""
        v_add_u32 v83, {32*tn}, v80
        v_mul_u32_u24 v84, s{t+14}, v83
        v_lshrrev_b32 v84, 16, v84
        v_mad_i32_i24 v83, v84, s{t+7}, v83
        v_lshl_add_u32 v83, v83, 4, v81
        v_mul_lo_u32 v85, v84, s{t+13}
        v_add_u32 v{AD+tn}, v83, v85
        """)
    def epi_v(tn, pk=True):
        r = []
        for tm in range(2):
            c = ACC + 16*(2*tn + tm); cv = VCV + 2*tn
            for p in range(2):
                if pk:
                    for i in range(8*p, 8*p + 8, 2):
                        if first: r.append(f"v_pk_fma_f32 v[{c+i}:{c+i+1}], v[{VM+16*tm+i}:{VM+16*tm+i+1}], v[{cv}:{cv+1}], v[{c+i}:{c+i+1}] op_sel_hi:[1,0,1]")
                    for i in range(8*p, 8*p + 8, 2):
                        r.append(f"v_pk_mul_f32 v[{c+i}:{c+i+1}], v[{c+i}:{c+i+1}], v[{VR+16*tm+i}:{VR+16*tm+i+1}]")
                else:
                    for i in range(8*p, 8*p + 8): r.append(f"v_mul_f32 v{c+i}, v{VR+16*tm+i}, v{c+i}")
                for i in range(4):
                    r.append(f"v_cvt_pk_bf16_f32 v{c+8*p+i}, v{c+8*p+2*i}, v{c+8*p+2*i+1}")
                r.append(f"buffer_store_dwordx4 v[{c+8*p}:{c+8*p+3}], v{AD+tn}, {WSR}, s{sDst} offen offset:{640*(2*tm+p)} sc1")
        return r
    mainloop(True, epi_v)
    a.label(fin)
    stamp(a, 3 if first else 20)
    flag_setup(a, 1 if first else 6)
    a(f"s_lshl_b32 s{t+7}, s{sWG}, 5\ns_add_u32 s{t+7}, s{t+7}, s{sW}\ns_lshl_b32 s{t+7}, s{t+7}, 2\ns_add_u32 s{t+7}, s{t+7}, {L_FG + LQ}")
    a("s_waitcnt vmcnt(0)")
    if first:
        l1 = a.uid("q1f"); l2 = a.uid("q1g")
        a(f"s_cmp_eq_u32 s{sMODE}, 0\ns_cbranch_scc1 {l1}")
        flag_store(a, ""); a(f"s_branch {l2}")
        a.label(l1); flag_store(a, "sc1"); a.label(l2)
    else: flag_store(a, SB)
    flag_store(a, "sc1", t+7)
    a(f"s_branch {done}")
    for hk, hb, vtype in hooks:
        a.label(hk)
        if first:
            nx = a.uid("hk")
            a(f"s_cmp_lg_u32 s{sC}, 2\ns_cbranch_scc1 {nx}")
            a(f"""
            s_lshl_b32 s{t+7}, s{sRT}, 1
            s_add_u32 s{t+7}, s{t+7}, s{sWM}
            s_lshl_b32 s{t+7}, s{t+7}, 12
            s_add_u32 s{t+7}, s{t+7}, {WS_ST0}
            v_lshlrev_b32 v1, 4, v0
            """)
            for i in range(4):
                a(f"buffer_load_dwordx4 v[{VST+4*i}:{VST+4*i+3}], v1, {WSR}, s{t+7} offen offset:{1024*i} sc1")
            a(f"s_branch {hb}")
            a.label(nx)
            a("s_waitcnt vmcnt(0)")
        a(f"s_branch {hb}")
    a.label(done)

def qkvW_setup(a, sWo, sLW, sCT, sTmp, vW):
    a(f"""
    v_lshrrev_b32 v2, 4, v0
    v_mul_u32_u24 v1, 3840, v2
    v_lshlrev_b32 v7, 2, v2
    v_and_b32 v3, 15, v0
    v_xor_b32 v3, v3, v7
    v_lshl_add_u32 v{vW}, v3, 4, v1
    s_mul_i32 s{sWo}, s{sLW}, {16*3840}
    s_lshl_b32 s{sTmp}, s{sCT}, 8
    s_add_u32 s{sWo}, s{sWo}, s{sTmp}
    """)

def qkv1_loader(a):
    t = T
    sRT, sCT = t, t+1
    sLW, sAo, sWo, sM, sTmp, sRot, sThr, sA1, sW1, sSel = t+2, t+3, t+4, t+5, t+6, t+8, t+9, t+10, t+11, t+12
    a(f"s_sub_u32 s{sLW}, s{sW}, 4")
    qkvW_setup(a, sWo, sLW, sCT, sTmp, 6)
    a(f"""
    s_lshl_b32 s{sM}, s{sLW}, 12
    s_lshl_b32 s{sAo}, s{sRT}, 2
    s_add_u32 s{sAo}, s{sAo}, s{sLW}
    s_mul_i32 s{sAo}, s{sAo}, {32*1280}
    v_lshrrev_b32 v1, 3, v0
    v_mul_u32_u24 v1, 1280, v1
    v_and_b32 v3, 7, v0
    v_xor_b32 v3, v3, v2
    v_lshl_add_u32 v4, v3, 4, v1
    v_xor_b32 v3, 4, v3
    v_lshl_add_u32 v5, v3, 4, v1
    s_lshr_b32 s{sRot}, s{sR}, 4
    s_mul_i32 s{sRot}, s{sRot}, 5
    s_add_u32 s{sRot}, s{sRot}, s{sCT}
    s_add_u32 s{sRot}, s{sRot}, s{sG}
    s_mul_i32 s{sTmp}, s{sRot}, 26
    s_lshr_b32 s{sTmp}, s{sTmp}, 8
    s_mul_i32 s{sTmp}, s{sTmp}, 10
    s_sub_u32 s{sRot}, s{sRot}, s{sTmp}
    """)
    if not C.rot: a(f"s_mov_b32 s{sRot}, 0")
    if C.rot == 2: a(f"s_lshr_b32 s{sRot}, s{sR}, 4\ns_mul_i32 s{sRot}, s{sRot}, 5")
    a(f"s_sub_u32 s{sThr}, 10, s{sRot}")
    SA = Src(sAo, sA1, sThr, 128); SW = Src(sWo, sW1, sThr, 64*3840)
    SA.setup(a, sRot, 10, sTmp); SW.setup(a, sRot, 10, sTmp)
    a("s_waitcnt lgkmcnt(0)")
    srd(a, R_X, P_X, ACT)
    srd(a, R_WQ, P_WQKV, D*3*D*2)
    def emitA(c, i0, k):
        SA.sel(a, c, sSel)
        for i in range(i0, i0 + k):
            a(f"s_add_u32 m0, s{sM}, {(c % 4)*32768 + 1024*i}\ns_add_u32 s{sTmp}, s{sSel}, {c*128 + i*8*1280}")
            a(f"buffer_load_dwordx4 v{4 + (i & 1)}, {R(R_X)}, s{sTmp} offen lds")
    def emitW(c, i0, k):
        SW.sel(a, c, sSel)
        for i in range(i0, i0 + k):
            a(f"s_add_u32 m0, s{sM}, {16384 + (c % 4)*32768 + 1024*i}\ns_add_u32 s{sTmp}, s{sSel}, {c*64*3840 + i*4*3840}")
            a(f"buffer_load_dwordx4 v6, {R(R_WQ)}, s{sTmp} offen lds")
    LD = Loader(a); mark = [0]
    def xstats(c):
        if c == 0:
            other_srds(a)
            a(f"""
            v_bfe_u32 v8, v0, 2, 2
            v_lshrrev_b32 v9, 5, v0
            v_lshl_add_u32 v9, v9, 3, v8
            v_lshlrev_b32 v9, 8, v9
            v_and_b32 v10, 3, v0
            v_lshl_add_u32 v9, v10, 3, v9
            v_bfe_u32 v10, v0, 4, 1
            v_lshl_add_u32 v9, v10, 5, v9
            v_xor_b32 v8, s{sLW}, v8
            v_lshl_add_u32 v9, v8, 6, v9
            v_add_u32 v9, 16384, v9
            v_add_u32 v8, 65536, v9
            """)
            for i in range(4): a(f"v_mov_b32 v{12+i}, 0x3f803f80")
        for kk in range(0 if C.nocs else 4):
            for j in range(2):
                a(f"ds_read_b64_tr_b16 v[{16+4*kk+2*j}:{17+4*kk+2*j}], v{9 if (c % 4) < 2 else 8} offset:{(c % 2)*32768 + 4096*kk + 1024*j}")
        a("s_waitcnt lgkmcnt(0)")
        for kk in range(0 if C.nocs else 4):
            a(f"v_mfma_f32_32x32x16_bf16 v[32:47], v[12:15], v[{16+4*kk}:{19+4*kk}], {'v[32:47]' if (c or kk) else 0}")
        n = LD.total - mark[0]
        if c in (0, 4): mark[0] = LD.total
        st = {0: lambda: (flags_zero(a), nonce_issue(a, 81, 82)), 2: lambda: nonce_get(a, 80, 81, 82, n), 4: lambda: census(a, 80, 81, True), 6: lambda: census(a, 80, 81, False, n)}
        if c in st:
            l = a.uid("w7")
            a(f"s_cmp_lg_u32 s{sW}, 7\ns_cbranch_scc1 {l}")
            st[c](); a.label(l)
    if C.q1prio: a("s_setprio 2")
    stamp(a, 1)
    ph = Phase("q1", 10, 4, 4, emitA, emitW, lambda c: ((c % 4)*32768, (c % 4)*32768 + 16384), lambda c: ((c % 4)*32768 + 16384, (c % 4 + 1)*32768),
               None, C.bud_q1, after_bar=xstats, dbg=(C.dbg == 1))
    def waitfn(w):
        l1 = a.uid("pw"); l2 = a.uid("pw"); l3 = a.uid("pw")
        a(f"s_cmp_eq_u32 s{sW}, 4\ns_cbranch_scc1 {l1}\ns_cmp_eq_u32 s{sW}, 7\ns_cbranch_scc1 {l2}\ns_waitcnt vmcnt({w+5})\ns_branch {l3}")
        a.label(l1); a(f"s_waitcnt vmcnt({w+16})\ns_branch {l3}")
        a.label(l2); a(f"s_waitcnt vmcnt({w})")
        a.label(l3)
    ph.look = C.look_q1
    LD.run(ph, None)
    a(f"""
    v_and_b32 v1, 31, v0
    v_lshlrev_b32 v1, 2, v1
    s_lshl_b32 s{sTmp}, s{sLW}, 7
    v_add_u32 v1, s{sTmp}, v1
    v_add_u32 v2, {Q1_CS}, v1
    s_lshl_b32 s{sTmp}, s{sWG}, 9
    s_add_u32 s{sTmp}, s{sTmp}, {WS_CSQ}
    s_setprio 0
    s_nop 3
    ds_write_b32 v2, v32
    buffer_store_dword v32, v1, {WSR}, s{sTmp} offen
    s_waitcnt lgkmcnt(0)
    """)
    stamp(a, 2)
    a("s_barrier")
    read_nonce_mode(a)

def other_srds(a):
    srd(a, R_WS, P_WS, WS_END)
    srd(a, R_WG, P_WG, D*F*2)
    srd(a, R_WU, P_WU, D*F*2)
    srd(a, R_T, P_WS, WS_END)

def qkv1_idle(a):
    l2 = a.uid("idl"); l1 = a.uid("idl"); l3 = a.uid("idl"); l4 = a.uid("idl"); lj = a.uid("idl")
    tj = 84; K = NAME + "_kernel"
    a(f"v_lshlrev_b32 v5, 4, v0\ns_cmp_lt_u32 s{sW}, 4\ns_cbranch_scc1 {l1}")
    a(f"s_xor_b32 s{tj}, s{sW}, 7\ns_or_b32 s{tj}, s{tj}, s{T}\ns_cmp_lg_u32 s{tj}, 0\ns_cbranch_scc1 {l3}")
    nonce_put(a)
    a.label(l3)
    a(f"s_getpc_b64 s[{tj+4}:{tj+5}]")
    a.label("L_pc")
    a(f"""
    s_sub_u32 s{tj+4}, s{tj+4}, L_pc-{K}
    s_subb_u32 s{tj+5}, s{tj+5}, 0
    s_and_b32 s{tj}, s{T}, 1
    s_lshl_b32 s{tj}, s{tj}, 2
    s_add_u32 s{tj}, s{tj}, s{sW}
    s_sub_u32 s{tj}, s{tj}, 4
    s_lshl_b32 s{tj}, s{tj}, 13
    v_lshlrev_b32 v1, 7, v0
    v_add_u32 v2, s{tj}, v1
    global_load_dword v251, v2, s[{tj+4}:{tj+5}]
    """)
    a(f"s_lshl_b32 s{tj}, s{T}, 2\ns_add_u32 s{tj}, s{tj}, s{sW}\ns_add_u32 s{tj+2}, s{tj}, {60 - 4}\ns_lshl_b32 s{tj+2}, s{tj+2}, 13")
    for i in range(4):
        if C.q1pf: a(f"buffer_load_dword v251, v1, {R(R_WQ)}, s{tj+2} offen\ns_add_u32 s{tj+2}, s{tj+2}, {64*8192}")
        if i == 0: a("s_barrier")
    a(f"s_branch {l2}")
    a.label(l1)
    xstat_fin(a)
    a(f"s_cmp_lg_u32 s{sW}, 0\ns_cbranch_scc1 {l4}")
    flags_zero(a)
    a.label(l4)
    a(f"s_waitcnt vmcnt(0)\ns_barrier\ns_cmp_lg_u32 s{sW}, 0\ns_cbranch_scc1 {l2}")
    nonce_issue(a, 81, 82)
    nonce_get(a, 80, 81, 82)
    a.label(l2)
    a(f"s_mul_i32 s{tj}, s{T}, 10\ns_add_u32 s{tj+7}, s{tj}, 10\ns_add_u32 s{tj}, s{tj}, s{sW}\ns_mul_i32 s{tj+1}, s{sW}, 5120")
    a.label(lj)
    projjob_issue(a, tj, tj+1, tj)
    a("s_waitcnt vmcnt(0)")
    projjob_finish(a, tj+1, tj)
    a(f"s_add_u32 s{tj}, s{tj}, 8\ns_cmp_lt_u32 s{tj}, s{tj+7}\ns_cbranch_scc1 {lj}")
    l5 = a.uid("idl")
    a(f"s_waitcnt vmcnt(0)\ns_barrier\ns_cmp_lg_u32 s{sW}, 0\ns_cbranch_scc1 {l5}")
    a(f"""
    s_lshl_b32 s{tj}, s{sWG}, 7
    s_add_u32 s{tj}, s{tj}, {L_FG + 36}
    v_mov_b32 v1, 0
    v_mov_b32 v2, s{sEP}
    """)
    flag_store(a, "sc1", tj)
    census(a, 80, 81, True)
    census(a, 80, 81, False)
    a.label(l5)
    a("s_barrier")
    read_nonce_mode(a)

def phase_attn(a, SB, ld_label):
    fast = SB == ""
    t = T
    CH = 20480
    sQP, sKH, sSrc, sDst, sTmp, sC, sHB = t, t+1, t+2, t+3, t+4, t+5, t+8
    sEX = t+6
    sWs, sWd, sPF = t+9, t+10, t+11
    tj = 84; sJob, sScr = tj, tj + 1
    QAREA = 102400
    QA, QB = 16, 22
    NM, SS, PP, OO, KF, VF = 32, 64, 96, 112, 144, 160
    vK, vK8, vV = 2, 3, 4
    DUM = 176; XF = 177
    KVB = 'nt sc1' if C.nt_kv else 'sc1'
    stamp(a, 4)
    a(f"""
    s_and_b32 s{sQP}, s{sW}, 3
    s_lshr_b32 s{sKH}, s{sW}, 2
    v_lshlrev_b32 v5, 4, v0
    s_mul_i32 s{sHB}, s{sR}, {HEADB}
    s_add_u32 s{sHB}, s{sHB}, s{sLO}
    s_and_b32 s{sTmp}, s{sQP}, 1
    s_mul_i32 s{sSrc}, s{sTmp}, 5120
    s_mul_i32 s{sDst}, s{sTmp}, 10240
    s_lshr_b32 s{sTmp}, s{sQP}, 1
    s_mul_i32 s{sC}, s{sTmp}, 5120
    s_add_u32 s{sDst}, s{sDst}, s{sC}
    s_mul_i32 s{sC}, s{sTmp}, {ACT}
    s_add_u32 s{sSrc}, s{sSrc}, s{sC}
    s_add_u32 s{sSrc}, s{sSrc}, s{sHB}
    s_add_u32 s{sSrc}, s{sSrc}, {L_K}
    """)
    def kv_issue(j):
        GF.need(0x01010101 << j)
        a(f"s_add_u32 s{sTmp}, s{sG}, {j}\ns_and_b32 s{sTmp}, s{sTmp}, 7\ns_mul_i32 s{sTmp}, s{sTmp}, 10240\ns_add_u32 s{sTmp}, s{sTmp}, s{sSrc}")
        return lin_dma(a, 5, sTmp, 0, sDst, j * CH, 5, KVB)
    def init():
        a(f"""
        v_lshrrev_b32 v14, 5, v0
        v_and_b32 v15, 31, v0
        v_lshlrev_b32 v6, 3, v15
        s_mul_i32 s{sTmp}, s{sKH}, 10240
        v_add_u32 v{vK}, s{sTmp}, v5
        v_add_u32 v{vK8}, s{sTmp}, v6
        v_mul_u32_u24 v7, 320, v14
        v_lshl_add_u32 v7, v15, 4, v7
        v_add_u32 v{vV}, s{sTmp}, v7
        s_mov_b32 s{sEX}, 0x000fffff
        s_mov_b32 s{sEX+1}, 0x000fffff
        v_and_b32 v9, 27, v0
        v_cmp_eq_u32 vcc, 24, v9
        v_mov_b32 v8, 0x3f803f80
        s_nop 0
        v_cndmask_b32 v8, 0, v8, vcc
        v_mov_b32 v9, v8
        v_lshlrev_b32 v13, 7, v0
        v_mov_b32 v12, 0
        """)
        for i in range(0, 16, 2): a(f"v_mov_b64 v[{VF+i}:{VF+i+1}], v[8:9]")
        for i in range(0, 32, 2): a(f"v_mov_b64 v[{OO+i}:{OO+i+1}], 0")
        for i in range(0, 8, 2): a(f"v_mov_b64 v[{PP+8+i}:{PP+8+i+1}], 0")
        a(f"v_mov_b64 v[{QA+4}:{QA+5}], 0\nv_mov_b64 v[{QB+4}:{QB+5}], 0")
    init()
    l0 = a.uid("att_old"); l1 = a.uid("att_j")
    a(f"s_cmp_eq_u32 s{sKH}, 0\ns_cbranch_scc1 {l0}")
    poll_local(a, "attn", 1, va=10, vt=11)
    stamp(a, 5)
    a(f"""
    s_mul_i32 s{sC}, s{sQP}, 2560
    s_add_u32 s{sPF}, s{sC}, {QAREA}
    s_mul_i32 s{sTmp}, s{sG}, 10240
    s_add_u32 s{sTmp}, s{sTmp}, s{sC}
    s_add_u32 s{sTmp}, s{sTmp}, s{sHB}
    """)
    a(f"s_add_u32 s{sC}, s{sTmp}, 1280")
    if fast and C.qloc:
        a(f"""
        s_lshl_b32 s{sWs}, s{sG}, 2
        s_add_u32 s{sWs}, s{sWs}, s{sQP}
        s_mul_i32 s{sWs}, s{sWs}, {2*F*64}
        s_mul_i32 s{sWd}, s{sR}, 1280
        s_add_u32 s{sWs}, s{sWs}, s{sWd}
        s_add_u32 s{sWs}, s{sWs}, {L_H + 57344}
        s_add_u32 s{sWd}, s{sWs}, {F*64}
        s_cmp_lg_u32 s{sL}, 0
        s_cselect_b32 s{sTmp}, s{sWs}, s{sTmp}
        s_cselect_b32 s{sC}, s{sWd}, s{sC}
        """)
    for x, sr in ((0, sTmp), (1, sC)):
        a(f"""
        s_add_u32 m0, s{sPF}, {1280*x}
        s_mov_b64 exec, -1
        buffer_load_dwordx4 v5, {WSR}, s{sr} offen {KVB} lds
        s_mov_b64 exec, 0xffff
        buffer_load_dwordx4 v5, {WSR}, s{sr} offen offset:1024 {KVB} lds
        """)
    a("s_mov_b64 exec, -1")
    a(f"s_mul_i32 s{sTmp}, s{sG}, 10240\ns_add_u32 s{sTmp}, s{sTmp}, s{sSrc}")
    lin_dma(a, 5, sTmp, 0, sDst, 0, 2, KVB)
    if C.stage: a(f"s_waitcnt vmcnt({C.stage - 1})")
    lin_dma(a, 5, sTmp, 2048, sDst, 2048, 3, KVB)
    if C.stage != 1: a(f"s_waitcnt vmcnt(3)")
    a(f"s_branch {l1}")
    a.label(l0)
    a(f"""
    s_setprio 1
    v_add_u32 v10, s{sG}, v0
    v_and_b32 v10, 7, v10
    v_bfe_u32 v11, v0, 3, 1
    v_mul_u32_u24 v11, 19, v11
    s_mul_i32 s{sTmp}, s{sR}, 20
    v_add_u32 v11, s{sTmp}, v11
    v_lshrrev_b32 v11, 7, v11
    v_lshl_add_u32 v10, v10, 5, v11
    s_and_b32 s{sTmp}, s{sQP}, 1
    s_lshl_b32 s{sTmp}, s{sTmp}, 4
    s_lshr_b32 s{sC}, s{sQP}, 1
    s_mul_i32 s{sC}, s{sC}, 5
    s_add_u32 s{sTmp}, s{sTmp}, s{sC}
    s_add_u32 s{sTmp}, s{sTmp}, 5
    v_add_u32 v10, s{sTmp}, v10
    v_lshlrev_b32 v12, 7, v10
    v_lshrrev_b32 v11, 4, v0
    v_lshl_add_u32 v12, v11, 2, v12
    s_and_b32 s{sWs}, s{sR}, 7
    s_mul_i32 s{sWs}, s{sWs}, 102400
    s_mul_i32 s{sWd}, s{sW}, 5120
    s_add_u32 s{sWs}, s{sWs}, s{sWd}
    s_add_u32 s{sWs}, s{sWs}, {WS_WTO}
    s_add_u32 s{sGO}, s{sLO}, {L_FG}
    s_add_u32 s{sGW}, s{sEP}, 1
    """)
    def cpf(lo, hi):
        l = a.uid("cpf"); pc = a.uid("pc")
        a(f"s_or_b32 s{sC}, s{sL}, s{sW}\ns_cmp_lg_u32 s{sC}, 0\ns_cbranch_scc1 {l}\ns_getpc_b64 s[{t+12}:{t+13}]")
        a.label(pc)
        a(f"""
        s_sub_u32 s{t+12}, s{t+12}, {pc}-{NAME}_kernel
        s_subb_u32 s{t+13}, s{t+13}, 0
        s_lshl_b32 s{sC}, s{sR}, 11
        s_add_u32 s{sC}, s{sC}, {lo}-{NAME}_kernel
        v_add_u32 v{PV+2}, s{sC}, v13
        v_min_u32 v{PV+2}, {hi}-{NAME}_kernel, v{PV+2}
        s_mov_b64 exec, 0xffff
        global_load_dword v{DUM}, v{PV+2}, s[{t+12}:{t+13}]
        s_mov_b64 exec, -1
        """)
        a.label(l)
    if fast and C.cpf: cpf("L_fast", "L_fast_post")
    a.label(l1)
    GF = Gate(a, 12, PV, fold=True, sleep=2)
    a(f"""
    s_mul_i32 s{sC}, s{sQP}, 2560
    s_add_u32 s{sC}, s{sC}, {QAREA}
    v_add_u32 v10, s{sC}, v5
    v_add_u32 v11, s{sC}, v6
    s_barrier
    ds_read_b128 v[{QA}:{QA+3}], v10
    ds_read_b128 v[{QB}:{QB+3}], v10 offset:1280
    s_mov_b32 exec_hi, 0
    ds_read_b64 v[{QA+4}:{QA+5}], v11 offset:1024
    ds_read_b64 v[{QB+4}:{QB+5}], v11 offset:{1280+1024}
    s_mov_b32 exec_hi, -1
    """)
    stamp(a, 6)
    l1 = a.uid("att_ap")
    a(f"s_cmp_lg_u32 s{sKH}, 0\ns_cbranch_scc1 {l1}")
    GF.load()
    a.label(l1)
    base = [0]
    def rdK(st, c, kt):
        off = c * CH + kt * 1280 - base[0]
        assert 0 <= off and off + 1024 < 65536
        b = KF + 8*st
        return [f"ds_read_b128 v[{b}:{b+3}], v{vK} offset:{off}", f"ds_read_b64 v[{b+4}:{b+5}], v{vK8} offset:{off+1024}"]
    def rdV(st, c, kt):
        off = c * CH + 5120 + kt * 1280 - base[0]
        assert 0 <= off and off + 640 < 65536
        b = VF + 8*st
        return [f"s_mov_b64 exec, s[{sEX}:{sEX+1}]", f"ds_read_b128 v[{b}:{b+3}], v{vV} offset:{off}",
                f"ds_read_b128 v[{b+4}:{b+7}], v{vV} offset:{off+640}", f"s_mov_b64 exec, -1"]
    def qk(x, st, c=None):
        b = KF + 8*st; q = (QA, QB)[x]; sd = SS + 16*x
        cc = v(NM + 16*x, 16) if c is None else c
        return [f"v_mfma_f32_32x32x16_bf16 {v(sd,16)}, {v(b,4)}, {v(q,4)}, {cc}",
                f"v_mfma_f32_32x32x8_bf16 {v(sd,16)}, {v(b+4,2)}, {v(q+4,2)}, {v(sd,16)}"]
    def pv(x, st):
        b = VF + 8*st; p = PP + 8*x; o = OO + 16*x
        return [f"v_mfma_f32_32x32x16_bf16 {v(o,16)}, {v(b,4)}, {v(p,4)}, {v(o,16)}",
                f"v_mfma_f32_32x32x16_bf16 {v(o,16)}, {v(b+4,4)}, {v(p+4,4)}, {v(o,16)}"]
    def sm(x):
        sd = SS + 16*x; p = PP + 8*x; r = []
        for i in range(8):
            r.append(f"v_exp_f32 v{sd+2*i}, v{sd+2*i}")
            r.append(f"v_exp_f32 v{sd+2*i+1}, v{sd+2*i+1}")
            if i > 0: r.append(f"v_cvt_pk_bf16_f32 v{p+i-1}, v{sd+2*i-2}, v{sd+2*i-1}")
        r.append(f"v_cvt_pk_bf16_f32 v{p+7}, v{sd+14}, v{sd+15}")
        return r
    def setm():
        for x in range(2): a(f"v_mov_b32 v{10+x}, v{8+x}")
        a("s_nop 0")
        for x in range(2): a(f"v_permlane32_swap_b32 v{8+x}, v{10+x}")
        a("s_nop 0")
        for x in range(2): a(f"v_max_f32 v{8+x}, v{8+x}, v{10+x}")
        for x in range(2):
            a(f"v_sub_f32 v{NM+16*x}, 0, v{8+x}\nv_sub_f32 v{NM+16*x+1}, 0, v{8+x}")
            for i in range(2, 16, 2): a(f"v_mov_b64 v[{NM+16*x+i}:{NM+16*x+i+1}], v[{NM+16*x}:{NM+16*x+1}]")
    for x in rdK(0, 0, 0): a(x)
    a("s_waitcnt lgkmcnt(0)")
    m = qk(0, 0, "0") + qk(1, 0, "0")
    for i in (0, 1, 2, 3): a(m[i])
    a.nop(10)
    for x in range(2):
        sd = SS + 16*x
        a(f"v_max3_f32 v{8+x}, v{sd}, v{sd+1}, v{sd+2}")
        for i in range(3, 15, 2):
            a(f"v_max3_f32 v{8+x}, v{8+x}, v{sd+i}, v{sd+i+1}")
        a(f"v_max_f32 v{8+x}, v{8+x}, v{sd+15}")
    setm()
    for i in range(16): a(f"v_sub_f32 v{SS+i}, v{SS+i}, v8")
    l1 = a.uid("att_w0"); l2 = a.uid("att_w1")
    sDone = t + 15
    a(f"s_cmp_eq_u32 s{sKH}, 0\ns_cbranch_scc1 {l1}\ns_waitcnt vmcnt(0)\ns_barrier\ns_branch {l2}")
    a.label(l1)
    a("s_barrier")
    GF.upd()
    a(f"s_and_b32 s{sDone}, s{sNR}, 0x02020202\ns_cbranch_scc1 {l2}")
    GF.ok = 0x02020202; kv_issue(1); GF.ok = 0
    a.label(l2)
    stamp(a, 7)
    def l0only(fn):
        l = a.uid("l0")
        a(f"s_cmp_lg_u32 s{sL}, 0\ns_cbranch_scc1 {l}")
        fn(); a.label(l)
    def l2pf(i0, n):
        for i in range(i0, min(i0 + n, (C.l2pf + 3) // 4)):
            l = a.uid("pfs")
            a(f"""
            s_cmp_ge_u32 s{sW}, {C.l2pf - 4*i}
            s_cbranch_scc1 {l}
            s_lshr_b32 s{sPF}, s{sR}, 4
            s_mul_i32 s{sPF}, s{sPF}, {15 if C.rot_gu else 1}
            s_mul_i32 s{sC}, s{sW}, {1 if C.rot_gu else 2}
            s_add_u32 s{sPF}, s{sPF}, s{sC}
            s_add_u32 s{sPF}, s{sPF}, {4*i if C.rot_gu else 8*i}
            s_lshl_b32 s{sPF}, s{sPF}, 13
            s_and_b32 s{sC}, s{sR}, 15
            s_mul_i32 s{sC}, s{sC}, 245760
            s_add_u32 s{sPF}, s{sPF}, s{sC}
            s_add_u32 s{sPF}, s{sPF}, {WS_WTG}
            buffer_load_dword v{DUM}, v13, {WSR}, s{sPF} offen
            """)
            a.label(l)
    def wwo(c): lin_dma(a, 5, sWs, c*20480, sWd, c*20480, 5, 'nt' if C.nt_wo else '')
    def fp():
        a(f"""
        s_lshl_b32 s{sC}, s{sWG}, 5
        s_add_u32 s{sC}, s{sC}, s{sW}
        s_lshl_b32 s{sC}, s{sC}, 2
        s_add_u32 s{sC}, s{sC}, {L_FG + 16}
        v_mov_b32 v10, 0
        v_mov_b32 v11, s{sEP}
        s_mov_b64 exec, 1
        buffer_store_dword v11, v10, {WSR}, s{sC} offen sc1
        s_mov_b64 exec, -1
        """)
    def cs1():
        l = a.uid("cs")
        a(f"s_cmp_lg_u32 s{sW}, 3\ns_cbranch_scc1 {l}\ns_mov_b32 exec_hi, 0xffff")
        a(f"s_and_b32 s{sC}, s{sR}, 15\ns_mul_i32 s{sC}, s{sC}, 768\ns_add_u32 s{sC}, s{sC}, {WS_CSP}")
        for i in range(10):
            a(f"buffer_load_dwordx4 v[{PV+4*i}:{PV+3+4*i}], v5, {WSR}, s{sC} offen\ns_add_u32 s{sC}, s{sC}, 12288")
        a("s_mov_b32 exec_hi, -1")
        a.label(l)
    def cs2():
        l = a.uid("cs")
        a(f"s_cmp_lg_u32 s{sW}, 3\ns_cbranch_scc1 {l}\ns_mov_b32 exec_hi, 0xffff")
        for i in range(1, 10):
            a(f"v_pk_add_f32 v[{PV}:{PV+1}], v[{PV}:{PV+1}], v[{PV+4*i}:{PV+1+4*i}]\nv_pk_add_f32 v[{PV+2}:{PV+3}], v[{PV+2}:{PV+3}], v[{PV+2+4*i}:{PV+3+4*i}]")
        a(f"s_mul_i32 s{sC}, s{sWG}, 768\ns_add_u32 s{sC}, s{sC}, {WS_CSG}")
        a(f"buffer_store_dwordx4 v[{PV}:{PV+3}], v5, {WSR}, s{sC} offen\ns_mov_b32 exec_hi, -1")
        a.label(l)
    def fpw():
        a(f"s_lshl_b32 s{sC}, s{sW}, 13\ns_add_u32 s{sC}, s{sC}, {L_FG + 16}")
        poll(a, 13, PV, f"s{sC}", f"s{sEP}", sleep=2, wide=True)
    def wow():
        a(f"v_and_b32 v{PV+1}, 15, v0\nv_lshlrev_b32 v{PV+1}, 11, v{PV+1}\ns_mov_b32 s{sC}, {L_FG + 15*128 + 36}")
        poll(a, PV + 1, PV, f"s{sC}", f"s{sEP}", sleep=2)
    def l1only(fn):
        l = a.uid("l1")
        a(f"s_cmp_eq_u32 s{sL}, 0\ns_cbranch_scc1 {l}")
        fn(); a.label(l)
    def hook(j):
        if j == 1:
            kv_issue(2); kv_issue(3); a("s_waitcnt vmcnt(10)")
        elif j == 2:
            a("s_waitcnt vmcnt(5)"); l0only(lambda: prep(a, 0)); l1only(lambda: kv_issue(4))
            GF.ok &= ~(0x01010101 << 4)
        else: a("s_waitcnt vmcnt(0)")
        if j == 3: l0only(lambda: (prep(a, 1), kv_issue(4))); l1only(lambda: (kv_issue(5), kv_issue(6)))
        if j == 4:
            GF.ok &= ~(0x01010101 * 0xe0)
            l0only(lambda: (fp(), kv_issue(5), kv_issue(6))); l1only(lambda: kv_issue(7))
        if j == 5:
            GF.ok &= ~(0x01010101 * 0xe0)
            l0only(lambda: (wow(), kv_issue(7)))
            wwo(0); wwo(1); wwo(2); l1only(lambda: l2pf(0, 1))
        if j == 6:
            l0only(fpw)
            wwo(3)
            if fast and C.cpf: cpf("L_fast_tail", "L_fast_end")
            if fast:
                a(f"""
                s_lshl_b32 s{sPF}, s{sWG}, 1
                s_and_b32 s{sC}, s{sW}, 1
                s_add_u32 s{sPF}, s{sPF}, s{sC}
                s_mul_i32 s{sPF}, s{sPF}, 5120
                s_add_u32 s{sC}, s{sLO}, {L_O}
                s_bitcmp1_b32 s{sW}, 1
                s_cselect_b32 s{sC}, {L_X1}, s{sC}
                s_add_u32 s{sPF}, s{sPF}, s{sC}
                s_mov_b32 exec_hi, 0xff
                buffer_load_dword v{DUM}, v13, {WSR}, s{sPF} offen
                s_lshl_b32 s{sTmp}, s{sWG}, 9
                s_add_u32 s{sTmp}, s{sTmp}, s{sLO}
                s_add_u32 s{sTmp}, s{sTmp}, {L_ST1}
                s_mov_b64 exec, 15
                buffer_load_dword v{DUM}, v13, {WSR}, s{sTmp} offen
                s_mov_b64 exec, -1
                """)
            l1only(lambda: l2pf(1, 1))
        if j == 7:
            l0only(cs1)
            wwo(4)
            if fast and C.htouch == 0:
                a(f"""
                s_lshl_b32 s{sPF}, s{sWG}, 2
                s_add_u32 s{sPF}, s{sPF}, s{sQP}
                s_mul_i32 s{sPF}, s{sPF}, 6144
                s_add_u32 s{sPF}, s{sPF}, s{sLO}
                s_add_u32 s{sPF}, s{sPF}, {L_H}
                s_mov_b32 exec_hi, 0xffff
                buffer_load_dword v{DUM}, v13, {WSR}, s{sPF} offen
                s_mov_b32 exec_hi, -1
                """)
            l1only(lambda: l2pf(2, 2)); l0only(lambda: l2pf(0, C.l2pf0))
    outl = []
    for c in range(8):
        for kt in range(4):
            st = kt & 1
            last = c == 7 and kt == 3
            if c == 0 and kt == 1:
                hk = a.uid("att_hk")
                a(f"s_cmp_eq_u32 s{sKH}, 0\ns_cbranch_scc1 {hk}"); a.label(hk + "r")
                def h0():
                    l = a.uid("h0")
                    a(f"s_cmp_eq_u32 s{sDone}, 0\ns_cbranch_scc1 {l}")
                    kv_issue(1)
                    a.label(l)
                outl.append((hk, h0))
            j = c + 1 if (kt == 3 and c < 6) else (7 if (c == 7 and kt == 0) else None)
            if j:
                hk = a.uid("att_hk")
                dstamp(a, 6, 3*j)
                a(f"s_cmp_eq_u32 s{sKH}, 0\ns_cbranch_scc1 {hk}")
                if C.flip and j < 7: a("s_setprio 2")
                a.label(hk + "r")
                dstamp(a, 6, 3*j+1)
                a("s_barrier")
                dstamp(a, 6, 3*j+2)
                outl.append((hk, (lambda jj: (lambda: hook(jj)))(j)))
            if C.flip and 1 <= c < 7 and kt == C.flip - 1: a("s_setprio 1")
            val = sm(0)
            mf = qk(1, st) + pv(1, st ^ 1)
            ex = rdV(st, c, kt)
            if kt == 3 and c in (2, 5):
                base[0] += 3 * CH
                ex += [f"v_add_u32 v{r}, {3*CH}, v{r}" for r in (vK, vK8, vV)]
            if not last: ex += rdK(st ^ 1, c + (kt + 1) // 4, (kt + 1) % 4)
            a(mf[0]); [a(x) for x in ex[:4]]; [a(x) for x in val[0:6]]
            a(mf[2]); [a(x) for x in ex[4:]]; [a(x) for x in val[6:12]]
            a(mf[1]); [a(x) for x in val[12:18]]
            a(mf[3]); [a(x) for x in val[18:]]
            val = sm(1)
            a("s_waitcnt lgkmcnt(0)")
            if not last:
                mf = qk(0, st ^ 1) + pv(0, st)
                a(mf[0]); [a(x) for x in val[0:6]]
                a(mf[2]); [a(x) for x in val[6:12]]
                a(mf[1]); [a(x) for x in val[12:18]]
                a(mf[3]); [a(x) for x in val[18:]]
            else:
                mf = pv(0, st) + pv(1, st)
                a(mf[0]); [a(x) for x in val[0:6]]
                a(mf[1]); [a(x) for x in val[6:16]]
                a(mf[2]); [a(x) for x in val[16:]]
                a("s_nop 1"); a(mf[3])
    if fast: a.label("L_fast_tail")
    stamp(a, 8)
    fb = a.uid("att_fb"); comb = a.uid("att_comb"); done = a.uid("att_done"); yng = a.uid("att_y")
    XB = 102400
    a(f"""
    s_mul_i32 s{sC}, s{sQP}, 7168
    s_add_u32 s{sC}, s{sC}, {XB}
    v_add_u32 v1, s{sC}, v5
    s_lshl_b32 s{sTmp}, s{sQP}, 2
    s_add_u32 s{sTmp}, s{sTmp}, {XB + 28672}
    v_mov_b32 v{XF}, s{sTmp}
    v_lshrrev_b32 v2, 1, v5
    v_add_u32 v2, s{sC}, v2
    s_mul_i32 s{sTmp}, s{sR}, 5
    v_add_u32 v3, s{sTmp}, v14
    v_lshrrev_b32 v4, 1, v3
    v_and_b32 v3, 1, v3
    v_lshlrev_b32 v3, 3, v3
    v_lshl_add_u32 v3, v4, 9, v3
    v_lshl_add_u32 v3, v15, 4, v3
    """)
    a(f"v_mul_f32 v10, {f32(2.0**63)}, v{OO+12}")
    a(f"v_pk_mul_f32 v[12:13], v[{OO}:{OO+1}], 0")
    for i in range(2, 12, 2): a(f"v_pk_fma_f32 v[12:13], v[{OO+i}:{OO+i+1}], 0, v[12:13]")
    a(f"v_mul_f32 v11, {f32(2.0**63)}, v{OO+16+12}")
    a(f"v_pk_add_f32 v[10:11], v[10:11], v[10:11]\nv_pk_fma_f32 v[12:13], v[10:11], 0, v[12:13]")
    for i in range(0, 12, 2): a(f"v_pk_fma_f32 v[12:13], v[{OO+16+i}:{OO+16+i+1}], 0, v[12:13]")
    a(f"v_cmp_u_f32 vcc, v12, v13\ns_cbranch_vccnz {fb}")
    a.label(comb)
    a(f"s_cmp_eq_u32 s{sKH}, 0\ns_cbranch_scc1 {yng}")
    def older():
        a.label(yng)
        a(f"v_mov_b32 v{OO+13}, v8\nv_mov_b32 v{OO+16+13}, v9\nv_mov_b32 v10, s{sEP}")
        for x in range(2):
            for i in range(3):
                a(f"ds_write_b128 v1, v[{OO+16*x+4*i}:{OO+16*x+4*i+3}] offset:{3584*x+1024*i}")
            a(f"ds_write_b64 v2, v[{OO+16*x+12}:{OO+16*x+13}] offset:{3584*x+3072}")
        a(f"ds_write_b32 v{XF}, v10\ns_waitcnt vmcnt(0)")
        l0only(cs2)
        a(f"s_setprio 0")
        stamp(a, 9)
    pl = a.uid("att_x")
    a(f"s_mov_b32 s{t+12}, 0")
    a.label(pl)
    a(f"ds_read_b32 v10, v{XF}")
    for x in range(2):
        a(f"ds_read_b64 v[{76+16*x}:{77+16*x}], v2 offset:{3584*x+3072}")
    for x in range(2):
        for i in range(3):
            a(f"ds_read_b128 v[{64+16*x+4*i}:{64+16*x+4*i+3}], v1 offset:{3584*x+1024*i}")
    a(f"""
    s_lshl_b32 s{sTmp}, s{sG}, 2
    s_add_u32 s{sTmp}, s{sTmp}, s{sQP}
    s_mul_i32 s{sPF}, s{sTmp}, 81920
    s_add_u32 s{sPF}, s{sPF}, s{sLO}
    s_add_u32 s{sPF}, s{sPF}, {L_O}
    s_add_u32 s{sC}, s{sPF}, 40960
    s_waitcnt lgkmcnt(6)
    v_cmp_ne_u32 vcc, s{sEP}, v10
    s_cbranch_vccz {pl}k
    s_add_u32 s{t+12}, s{t+12}, 1
    s_cmp_lt_u32 s{t+12}, {4*SPIN}
    s_cbranch_scc1 {pl}
    """)
    a.label(pl + "k")
    for x in range(2):
        f = 16 + 4*x
        a(f"v_max_f32 v{f+2}, v{8+x}, v{77+16*x}\nv_sub_f32 v{f}, v{8+x}, v{f+2}\nv_sub_f32 v{f+1}, v{77+16*x}, v{f+2}")
    for x in range(2):
        f = 16 + 4*x
        a(f"v_exp_f32 v{f}, v{f}\nv_exp_f32 v{f+1}, v{f+1}")
    for x in range(2):
        f = 16 + 4*x
        a(f"v_mul_f32 v{f+2}, v{f}, v{OO+16*x+12}\nv_fmac_f32 v{f+2}, v{f+1}, v{76+16*x}")
    a("v_rcp_f32 v18, v18\nv_rcp_f32 v22, v22\ns_waitcnt lgkmcnt(0)")
    for x in range(2):
        f = 16 + 4*x; o = OO + 16*x
        a(f"v_mul_f32 v{f}, v{f}, v{f+2}\nv_mul_f32 v{f+2}, v{f+1}, v{f+2}")
        for i in range(0, 12, 2):
            a(f"v_pk_mul_f32 v[{o+i}:{o+i+1}], v[{o+i}:{o+i+1}], v[{f}:{f+1}] op_sel_hi:[1,0]")
        for i in range(0, 12, 2):
            a(f"v_pk_fma_f32 v[{o+i}:{o+i+1}], v[{64+16*x+i}:{65+16*x+i}], v[{f+2}:{f+3}], v[{o+i}:{o+i+1}] op_sel_hi:[1,0,1]")
        for i in range(6):
            a(f"v_cvt_pk_bf16_f32 v{o+i}, v{o+2*i}, v{o+2*i+1}")
        sd = sPF if x == 0 else sC
        a(f"""
        buffer_store_dwordx2 v[{o}:{o+1}], v3, {WSR}, s{sd} offen {SB}
        buffer_store_dwordx2 v[{o+2}:{o+3}], v3, {WSR}, s{sd} offen offset:512 {SB}
        s_mov_b32 exec_hi, 0
        buffer_store_dwordx2 v[{o+4}:{o+5}], v3, {WSR}, s{sd} offen offset:1024 {SB}
        s_mov_b32 exec_hi, -1
        """)
    flag_setup(a, 2)
    a("s_setprio 0\ns_barrier\ns_waitcnt vmcnt(0)")
    flag_store(a, SB)
    stamp(a, 9)
    a(f"s_branch {ld_label}")
    for hk, fn in outl:
        a.label(hk); fn(); a(f"s_branch {hk}r")
    older()
    def fallback():
        a.label(fb)
        sKb, sVb, sI = t+12, t+13, t+14
        def addr():
            a(f"""
            s_lshr_b32 s{sKb}, s{sI}, 2
            s_lshl_b32 s{sKb}, s{sKb}, 1
            s_add_u32 s{sKb}, s{sKb}, s{sKH}
            s_lshl_b32 s{sKb}, s{sKb}, 2
            s_and_b32 s{sVb}, s{sI}, 3
            s_add_u32 s{sKb}, s{sKb}, s{sVb}
            s_mul_i32 s{sKb}, s{sKb}, 1280
            s_add_u32 s{sKb}, s{sKb}, s{sHB}
            s_add_u32 s{sVb}, s{sKb}, {L_V}
            s_add_u32 s{sKb}, s{sKb}, {L_K}
            buffer_load_dwordx4 v[{KF}:{KF+3}], v5, {WSR}, s{sKb} offen sc1
            buffer_load_dwordx2 v[{KF+4}:{KF+5}], v6, {WSR}, s{sKb} offen offset:1024 sc1
            """)
        l1 = a.uid("att_fb1"); l2 = a.uid("att_fb2")
        a(f"s_mov_b32 s{sI}, 0\nv_mov_b32 v8, 0xff800000\nv_mov_b32 v9, 0xff800000")
        a.label(l1)
        addr()
        a("s_waitcnt vmcnt(0)")
        for x in range(2):
            for m in qk(x, 0, "0"): a(m)
        a.nop(12)
        for x in range(2):
            sd = SS + 16*x
            for i in range(0, 16, 2): a(f"v_max3_f32 v{8+x}, v{8+x}, v{sd+i}, v{sd+i+1}")
        a(f"s_add_u32 s{sI}, s{sI}, 1\ns_cmp_lt_u32 s{sI}, 32\ns_cbranch_scc1 {l1}")
        setm()
        for i in range(32): a(f"v_mov_b32 v{OO+i}, 0")
        a(f"s_mov_b32 s{sI}, 0")
        a.label(l2)
        addr()
        a(f"""
        s_mov_b64 exec, s[{sEX}:{sEX+1}]
        buffer_load_dwordx4 v[{VF}:{VF+3}], v7, {WSR}, s{sVb} offen sc1
        buffer_load_dwordx4 v[{VF+4}:{VF+7}], v7, {WSR}, s{sVb} offen offset:640 sc1
        s_mov_b64 exec, -1
        s_waitcnt vmcnt(0)
        """)
        for x in range(2):
            for m in qk(x, 0): a(m)
        a.nop(12)
        for x in range(2):
            for i in sm(x): a(i)
        a("s_nop 1")
        for x in range(2):
            for m in pv(x, 0): a(m)
        a(f"s_add_u32 s{sI}, s{sI}, 1\ns_cmp_lt_u32 s{sI}, 32\ns_cbranch_scc1 {l2}")
        a.nop(12)
        a(f"s_branch {comb}")
    return fallback

def xoff(SB, which):
    if SB == "": return (False, L_X1)
    return (True, L_X1) if which == 1 else (False, L_X2)
def add_x(a, dst, src, SB, which):
    lo, c = xoff(SB, which)
    a(f"s_add_u32 s{dst}, s{src}, {c}")
    if lo: a(f"s_add_u32 s{dst}, s{dst}, s{sLO}")

def proj_compute(a, down, SB, end_label):
    fast = SB == ""
    t = T
    K = F if down else D
    NCH = K // 128
    sRT, sCT = t, t+1
    st0 = 13 if down else 10
    sF, sRM, sST, sA, sA1, sThr, sSel = t+4, t+5, t+12, t+2, t+3, t+9, t+10
    NWS = 3 if down else C.wo_sets
    ACC = 14; RX = 34; AF = 54; WF = 134; RES = (220 if down else 54); VST = 200
    vF, vF2, vR, vR2 = 10, 11, 12, 13
    a(f"""
    s_lshr_b32 s{sRT}, s{sWG}, 3
    s_and_b32 s{sCT}, s{sR}, 7
    v_and_b32 v3, 15, v0
    v_lshrrev_b32 v7, 4, v0
    s_lshl_b32 s{t+6}, s{sRT}, 1
    s_lshr_b32 s{t+7}, s{sW}, 1
    s_add_u32 s{t+6}, s{t+6}, s{t+7}
    s_and_b32 s{t+8}, s{sW}, 1
    s_lshl_b32 s{t+8}, s{t+8}, 8
    s_mul_i32 s{sA}, s{t+6}, {K*64}
    s_add_u32 s{sA}, s{sA}, s{t+8}
    s_add_u32 s{sA}, s{sA}, s{sLO}
    s_add_u32 s{sA}, s{sA}, {L_H if down else L_O}
    s_mul_i32 s{sF}, s{t+6}, 40960
    s_mul_i32 s{t+7}, s{sCT}, 5120
    s_add_u32 s{sF}, s{sF}, s{t+7}
    s_add_u32 s{sF}, s{sF}, s{t+8}
    s_lshl_b32 s{sST}, s{sW}, 8
    s_lshl_b32 s{t+7}, s{sRT}, 12
    s_add_u32 s{sST}, s{sST}, s{t+7}
    s_add_u32 s{sST}, s{sST}, s{sLO}
    s_lshl_b32 s{sRM}, s{sRT}, 2
    s_add_u32 s{sRM}, s{sRM}, s{sW}
    s_mul_i32 s{sRM}, s{sRM}, {16*1280}
    s_mul_i32 s{t+7}, s{sCT}, 160
    s_add_u32 s{sRM}, s{sRM}, s{t+7}
    v_lshlrev_b32 v1, 4, v3
    v_lshl_add_u32 v{vF}, v7, 9, v1
    v_lshrrev_b32 v2, 5, v0
    v_lshl_add_u32 v1, v2, 9, v1
    v_and_b32 v2, 1, v7
    v_lshl_add_u32 v{vF2}, v2, 3, v1
    v_add_u32 v{vF2}, 4096, v{vF2}
    v_mul_u32_u24 v1, 1280, v3
    v_lshl_add_u32 v{vR}, v7, 4, v1
    v_lshl_add_u32 v{vR2}, v7, 3, v1
    v_add_u32 v9, 4096, v{vF}
    """)
    SA = Src(sA, sA1, sThr, 8192)
    if down:
        a(f"s_and_b32 s{t+7}, s{sRT}, 3\ns_mul_i32 s{t+7}, s{t+7}, {C.rot_dn}\ns_sub_u32 s{sThr}, 12, s{t+7}")
        SA.setup(a, t+7, 12, t+8)
    def io(store, rowmajor, rsrc, soff, reg, bits):
        op = "store" if store else "load"
        v16, v8 = (vR, vR2) if rowmajor else (vF, vF2)
        o1, o2 = (64, 128) if rowmajor else (2048, 0)
        return [f"buffer_{op}_dwordx4 v[{reg}:{reg+3}], v{v16}, {rsrc}, {soff} offen {bits}",
                f"buffer_{op}_dwordx4 v[{reg+4}:{reg+7}], v{v16}, {rsrc}, {soff} offen offset:{o1} {bits}",
                f"buffer_{op}_dwordx2 v[{reg+8}:{reg+9}], v{v8}, {rsrc}, {soff} offen offset:{o2} {bits}"]
    if down:
        add_x(a, t+7, sF, SB, 1)
        for x in io(False, False, WSR, f"s{t+7}", RES, "sc1"): a(x)
        a(f"s_add_u32 s{t+7}, s{sST}, {L_ST1}\nv_lshlrev_b32 v1, 4, v3")
        for i in range(4):
            a(f"buffer_load_dwordx4 v[{VST+4*i}:{VST+4*i+3}], v1, {WSR}, s{t+7} offen offset:{1024*i} sc1")
        if fast:
            a(f"s_lshl_b32 s{t+8}, s{sWG}, 9\ns_add_u32 s{t+8}, s{t+8}, {L_ST2}\nv_lshlrev_b32 v1, 7, v0\ns_mov_b64 exec, 15")
            a(f"buffer_load_dword v8, v1, {WSR}, s{t+8} offen\ns_mov_b64 exec, -1")
    else:
        l1 = a.uid("prj_r1"); l2 = a.uid("prj_r2")
        a(f"s_cmp_lg_u32 s{sL}, 0\ns_cbranch_scc1 {l1}")
        for x in io(False, True, R(R_X), f"s{sRM}", RES, ""): a(x)
        a(f"s_branch {l2}")
        a.label(l1)
        add_x(a, t+7, sF, SB, 2)
        for x in io(False, False, WSR, f"s{t+7}", RES, "sc1"): a(x)
        a.label(l2)
    a(f"v_lshlrev_b32 v4, 4, v0\nv_add_u32 v5, 61440, v4\nv_add_u32 v6, 122880, v4\ns_mov_b32 s{t+8}, 0xffff0000")
    def wadr(c):
        o = dnW(c) if down else c * 20480
        return 4 + o // 61440, o % 61440
    def reads(c, u):
        b = WF + 20*((4*c + u) % NWS); r, o = wadr(c)
        return [f"ds_read_b128 v[{b+4*jn}:{b+4*jn+3}], v{r} offset:{o + 5120*u + 1024*jn}" for jn in range(5)]
    NAS = 5
    def aload(c):
        r = []
        if down: r += [f"s_cmp_gt_u32 s{sThr}, {c}", f"s_cselect_b32 s{sSel}, s{sA}, s{sA1}", f"s_add_u32 s{sSel}, s{sSel}, {c*8192}"]
        else: r += [f"s_add_u32 s{sSel}, s{sA}, {c*8192}"]
        for u in range(4):
            d = AF + 16*(c % NAS) + 4*u
            r.append(f"buffer_load_dwordx4 v[{d}:{d+3}], v{vF if u < 2 else 9}, {WSR}, s{sSel} offen offset:{2048*(u & 1)} sc1")
        return r
    def mfmas(c, u, zero=False):
        b = WF + 20*((4*c + u) % NWS); x = AF + 16*(c % NAS) + 4*u
        return [f"v_mfma_f32_16x16x32_bf16 {v(ACC+4*jn,4)}, {v(b+4*jn,4)}, {v(x,4)}, {0 if zero else v(ACC+4*jn,4)}" for jn in range(5)]
    D_ = NWS - 1
    rd = lambda st_: reads(st_ // 4, st_ % 4) if st_ < 4*NCH else []
    if down: a(f"s_and_b32 s{t+7}, s{sRT}, 3\ns_mul_i32 s{t+7}, s{t+7}, {4 if C.rot_dn else 0}")
    G_ = gate_local(a, "down" if down else "wo", 4 if down else 2, 1, 2, t+7)
    def setup2():
        if not down: a("s_waitcnt vmcnt(0)")
        for i in range(10):
            a(f"v_lshlrev_b32 v{RX+2*i}, 16, v{RES+i}\nv_and_b32 v{RX+1+2*i}, s{t+8}, v{RES+i}")
        if down:
            row_stats(a, VST, VST + 2, VST + 3)
            a(f"v_mul_f32 v{VST+2}, v{VST+3}, v{VST+3}")
        a("s_barrier")
        for st_ in range(D_):
            for x in rd(st_): a(x)
    if not down: setup2()
    def al(c):
        G_.need(span(128*c, 128*c + 127, 96, 2) if down else span(128*c, 128*c + 127, 20, 1))
        if c == 0: stamp(a, st0)
        for x in aload(c): a(x)
    NPRE = C.dn_a if down else 5
    for c in range(NPRE): al(c)
    if down: setup2()
    issued = 4 * NPRE
    for c in range(NCH):
        for u in range(4):
            step = 4*c + u
            left = min(D_ - 1, 4*NCH - 1 - step)
            a(f"s_waitcnt vmcnt({issued - step - 1}) lgkmcnt({min(15, 5*left)})")
            if step == 4*NCH - 1 or (down and u == 2 and c + 1 < NCH): a("s_barrier")
            interleave(a, mfmas(c, u, step == 0), rd(step + D_))
            if u == 0 and c + NPRE < NCH:
                assert NPRE < NAS
                al(c + NPRE); issued += 4
    stamp(a, st0 + 1)
    add_x(a, t+7, sF, SB, 2 if down else 1)
    flag_setup(a, 5 if down else 3)
    for i in range(0, 20, 2):
        c = ACC + i
        if down: a(f"v_pk_fma_f32 v[{c}:{c+1}], v[{c}:{c+1}], v[{VST+2}:{VST+3}], v[{RX+i}:{RX+i+1}] op_sel_hi:[1,0,1]")
        else: a(f"v_pk_add_f32 v[{c}:{c+1}], v[{c}:{c+1}], v[{RX+i}:{RX+i+1}]")
        a(f"v_cvt_pk_bf16_f32 v{60+i//2}, v{c}, v{c+1}")
    if down:
        l1 = a.uid("prj_o1")
        a(f"s_cmp_eq_u32 s{sL}, 0\ns_cbranch_scc1 {l1}")
        srd(a, R_T, P_OUT, ACT)
        for x in io(True, True, R(R_T), f"s{sRM}", 60, ["", "sc1", "nt"][C.outb]): a(x)
        a(f"s_branch {end_label}")
        a.label(l1)
    for x in io(True, False, WSR, f"s{t+7}", 60, SB): a(x)
    a(f"v_pk_add_f32 v[72:73], v[{ACC}:{ACC+1}], v[{ACC+2}:{ACC+3}]\nv_pk_mul_f32 v[74:75], v[{ACC}:{ACC+1}], v[{ACC}:{ACC+1}]")
    a(f"v_pk_fma_f32 v[74:75], v[{ACC+2}:{ACC+3}], v[{ACC+2}:{ACC+3}], v[74:75]")
    for i in range(4, 20, 2):
        a(f"v_pk_add_f32 v[72:73], v[72:73], v[{ACC+i}:{ACC+i+1}]\nv_pk_fma_f32 v[74:75], v[{ACC+i}:{ACC+i+1}], v[{ACC+i}:{ACC+i+1}], v[74:75]")
    a(f"""
    v_add_f32 v72, v72, v73
    v_add_f32 v73, v74, v75
    s_lshr_b32 s{t+7}, s{sCT}, 1
    s_lshl_b32 s{t+7}, s{t+7}, 10
    v_permlane32_swap_b32 v72, v73
    s_and_b32 s{t+8}, s{sCT}, 1
    s_lshl_b32 s{t+8}, s{t+8}, 3
    v_add_f32 v72, v72, v73
    v_mov_b32 v73, v72
    s_add_u32 s{t+7}, s{t+7}, s{t+8}
    s_add_u32 s{t+7}, s{t+7}, s{sST}
    v_permlane16_swap_b32 v72, v73
    s_add_u32 s{t+7}, s{t+7}, {L_ST2 if down else L_ST1}
    v_lshrrev_b32 v8, 5, v0
    v_lshlrev_b32 v8, 2, v8
    v_lshl_add_u32 v8, v3, 4, v8
    v_add_f32 v72, v72, v73
    buffer_store_dword v72, v8, {WSR}, s{t+7} offen {SB}
    s_waitcnt vmcnt(0)
    """)
    flag_store(a, SB)
    a("s_barrier")
    stamp(a, st0 + 2)

def gu_compute(a, SB):
    t = T
    sRT, sCT, sWM, sWN, sTB, sF0 = t, t+1, t+2, t+3, t+4, t+6
    FR = 14; ACC = 94; VCS = 190; VST = 238; MS = 8
    a(f"""
    s_lshr_b32 s{sRT}, s{sWG}, 4
    s_and_b32 s{sCT}, s{sR}, 15
    s_and_b32 s{sWM}, s{sW}, 1
    s_lshr_b32 s{sWN}, s{sW}, 1
    s_lshl_b32 s{sTB}, s{sRT}, 1
    s_add_u32 s{sTB}, s{sTB}, s{sWM}
    s_mul_i32 s{sF0}, s{sCT}, 96
    s_mul_i32 s{t+5}, s{sWN}, 48
    s_add_u32 s{sF0}, s{sF0}, s{t+5}
    s_mul_i32 s{t+5}, s{sWG}, 768
    s_mul_i32 s{t+7}, s{sWN}, 384
    s_add_u32 s{t+5}, s{t+5}, s{t+7}
    s_add_u32 s{t+5}, s{t+5}, {WS_CSG}
    v_lshrrev_b32 v12, 5, v0
    v_lshlrev_b32 v1, 6, v12
    """)
    for jn in range(3):
        for q in range(4):
            r = VCS + 16*jn + 4*q
            a(f"buffer_load_dwordx4 v[{r}:{r+3}], v1, {WSR}, s{t+5} offen offset:{128*jn+16*q} sc1")
    a(f"""
    s_lshl_b32 s{t+5}, s{sWM}, 13
    v_lshlrev_b32 v11, 4, v0
    v_add_u32 v3, s{t+5}, v11
    s_mul_i32 s{t+5}, s{sWN}, 3072
    s_add_u32 s{t+5}, s{t+5}, {WB}
    v_add_u32 v4, s{t+5}, v11
    v_add_u32 v5, 49152, v4
    s_mul_i32 s{t+11}, s{sTB}, {2*F*64}
    s_lshl_b32 s{t+7}, s{sF0}, 6
    s_add_u32 s{t+11}, s{t+11}, s{t+7}
    s_add_u32 s{t+11}, s{t+11}, s{sLO}
    s_add_u32 s{t+11}, s{t+11}, {L_H}
    s_add_u32 s{t+12}, s{t+11}, {F*64}
    """)
    flag_setup(a, 4)
    for i in range(0, 96, 2): a(f"v_mov_b64 v[{ACC+i}:{ACC+i+1}], 0")
    def reads(c, kk):
        b = FR + 20*kk; r = []
        for tm in range(2):
            r.append(f"ds_read_b128 v[{b+4*tm}:{b+4*tm+3}], v3 offset:{(c % 4)*16384+4096*tm+1024*kk}")
        o = guW(c) - WB
        for jn in range(3):
            d = b + 8 + 4*jn
            r.append(f"ds_read_b128 v[{d}:{d+3}], v{4 + o // 49152} offset:{o % 49152 + 6144*kk+1024*jn}")
        return r
    def mfma(kk, tl):
        b = FR + 20*kk; c = ACC + 16*tl
        return f"v_mfma_f32_32x32x16_bf16 {v(c,16)}, {v(b+8+4*(tl>>1),4)}, {v(b+4*(tl&1),4)}, {v(c,16)}"
    def epi(jn, pk):
        r = []
        for tm in range(2):
            c = ACC + 16*(2*jn + tm)
            for i in range(8): r.append(f"v_max_f32 v{c+i}, 0, v{c+i}")
            if pk:
                for i in range(0, 8, 2): r.append(f"v_pk_mul_f32 v[{c+i}:{c+i+1}], v[{c+i}:{c+i+1}], v[{c+8+i}:{c+9+i}]")
            else:
                for i in range(8): r.append(f"v_mul_f32 v{c+i}, v{c+i}, v{c+8+i}")
            for i in range(4): r.append(f"v_cvt_pk_bf16_f32 v{c+i}, v{c+2*i}, v{c+2*i+1}")
            r.append(f"buffer_store_dwordx4 v[{c}:{c+3}], v11, {WSR}, s{t+11+tm} offen offset:{1024*jn} {SB}")
        return r
    a(f"s_lshl_b32 s{t+5}, s{sTB}, 12\ns_add_u32 s{t+5}, s{t+5}, s{sLO}\ns_add_u32 s{t+5}, s{t+5}, {L_ST1}")
    ins = {}
    for i in range(4): ins[48 + 3*i] = [f"buffer_load_dwordx4 v[{VST+4*i}:{VST+4*i+3}], v11, {WSR}, s{t+5} offen offset:{1024*i} sc1"]
    if SB == "" and C.htouch > 0:
        a(f"""
        v_mul_u32_u24 v6, 171, v0
        v_lshrrev_b32 v6, 12, v6
        v_mul_u32_u24 v7, {F*64 - 24*128}, v6
        v_lshl_add_u32 v6, v0, 7, v7
        """)
        ins[C.htouch] = ["s_mov_b32 exec_hi, 0xffff", f"buffer_load_dword v7, v6, {WSR}, s{t+11} offen", "s_mov_b32 exec_hi, -1"]
    ins[100] = ["s_waitcnt vmcnt(0)"] + [f"v_add_f32 v{VST}, v{VST}, v{VST+2*i}" for i in range(1, 8)] + \
         [f"v_mul_f32 v{MS}, {f32(-1.0/D)}, v{VST}", f"v_mul_f32 v{MS+1}, {f32(-1.0/D)}, v{VST}", "s_nop 1", f"v_permlane32_swap_b32 v{MS}, v{MS+1}"]
    fix = lambda tl: [f"v_fmac_f32 v{ACC+16*tl+i}, v{MS+(tl&1)}, v{VCS+16*(tl>>1)+i}" for i in range(16)]
    gemm_unrolled(a, 10, 6, 5, reads, mfma, [(0, 1), (2, 3), (4, 5)], ins, fix, 110, epi, 22)
    a("s_waitcnt vmcnt(0)")
    flag_store(a, SB)
    a("s_barrier")
    stamp(a, 23)

def loader_chain(a, SB, end_label, idle_label):
    t = T
    sLW, s4, s5, s6, aGU, aGU1, wGU, wGU1, wDN, wDN1, aQK, aQK1, wQK, wQK1, th10, th12, sTmp, sSel, thq = range(t, t + 19)
    sRot = sSel
    a(f"""
    s_sub_u32 s{sLW}, s{sW}, 4
    v_lshlrev_b32 v8, 4, v0
    s_mul_i32 s{s6}, s{sLW}, 6144
    s_and_b32 s{wGU}, s{sR}, 15
    s_mul_i32 s{wGU}, s{wGU}, 245760
    s_add_u32 s{wGU}, s{wGU}, s{s6}
    s_add_u32 s{wGU}, s{wGU}, {WS_WTG}
    s_lshr_b32 s{sRot}, s{sR}, 4
    s_mul_i32 s{sRot}, s{sRot}, {C.rot_gu}
    s_sub_u32 s{th10}, 10, s{sRot}
    """)
    S_aGU = Src(aGU, aGU1, th10, 4096); S_wGU = Src(wGU, wGU1, th10, 24576); S_wDN = Src(wDN, wDN1, th12, 20480)
    S_aQK = Src(aQK, aQK1, thq, 4096); S_wQK = Src(wQK, wQK1, thq, 64*3840)
    S_wGU.setup(a, sRot, 10, sTmp)
    def rest():
        a(f"""
        s_lshl_b32 s{s4}, s{sLW}, 12
        s_mul_i32 s{s5}, s{sLW}, 5120
        s_lshr_b32 s{aQK}, s{sWG}, 4
        s_lshl_b32 s{aQK}, s{aQK}, 2
        s_add_u32 s{aQK}, s{aQK}, s{sLW}
        s_mul_i32 s{aQK}, s{aQK}, 40960
        """)
        add_x(a, aGU, aQK, SB, 1)
        add_x(a, aQK, aQK, SB, 2)
        a(f"s_and_b32 s{wDN}, s{sR}, 15")
        qkvW_setup(a, wQK, sLW, wDN, sTmp, 6)
        a(f"s_sub_u32 s{sRot}, 10, s{th10}")
        S_aGU.setup(a, sRot, 10, sTmp)
        a(f"s_lshr_b32 s{sRot}, s{sR}, 4\ns_mul_i32 s{sRot}, s{sRot}, {C.rot_qk}\ns_sub_u32 s{thq}, 10, s{sRot}")
        for S_ in (S_aQK, S_wQK): S_.setup(a, sRot, 10, sTmp)
        a(f"""
        s_and_b32 s{wDN}, s{sR}, 7
        s_mul_i32 s{wDN}, s{wDN}, 245760
        s_add_u32 s{wDN}, s{wDN}, s{s5}
        s_add_u32 s{wDN}, s{wDN}, {WS_WTD}
        s_lshr_b32 s{sRot}, s{sR}, 3
        s_mul_i32 s{sRot}, s{sRot}, {C.rot_dn}
        s_sub_u32 s{th12}, 12, s{sRot}
        """)
        S_wDN.setup(a, sRot, 12, sTmp)
    G_ = [None, None]
    def lin(S_, dst, dfn, bits):
        def f(c, i0, k):
            if bits == "sc1":
                G_[0].need(span(64*c, 64*c + 63, 80, 2) if C.gran else 0xffff)
                if G_[1] is not None: stamp(a, G_[1]); G_[1] = None
            S_.sel(a, c, sSel)
            lin_dma(a, 8, sSel, c*S_.stride + 1024*i0, dst, dfn(c) + 1024*i0, k, bits)
        return f
    def pf(kind, ep, st, rot):
        def f():
            a(f"s_lshr_b32 s{sTmp}, s{sR}, 4\ns_mul_i32 s{sTmp}, s{sTmp}, {4 if rot else 0}")
            G_[0] = gate_local(a, kind, ep, 1, 2, sTmp, sleep=C.psleep); G_[1] = st
        return f
    def emitWQ(c, i0, k):
        S_wQK.sel(a, c, sSel)
        for i in range(i0, i0 + k):
            a(f"s_add_u32 m0, s{s4}, {qkW(c) + 1024*i}\ns_add_u32 s{sTmp}, s{sSel}, {c*64*3840 + i*4*3840}")
            a(f"buffer_load_dwordx4 v6, {R(R_WQ)}, s{sTmp} offen {'nt' if C.nt_qk else ''} lds")
    rA = lambda c: (c % 4) * 16384
    full = lambda c: G_[0].need(0xffff) if c == 1 else None
    reg = lambda f, sz: (lambda c: (f(c), f(c) + sz))
    gu = Phase("gu", 10, 4, 6, lin(S_aGU, s4, rA, "sc1"), lin(S_wGU, s6, guW, "nt" if C.nt_gu else ""), reg(rA, 16384), reg(guW, 24576), pf("gu", 3, 21, C.rot_gu), C.bud_gu, dbg=(C.dbg == 3), after_bar=full)
    dn = Phase("dn", 12, 0, 5, None, lin(S_wDN, s5, dnW, "nt" if C.nt_dn else ""), None, reg(dnW, 20480), None, C.bud_dn, lag=2, early=C.dn_early, dbg=(C.dbg == 4))
    qk = Phase("qk", 10, 4, 4, lin(S_aQK, s4, rA, "sc1"), emitWQ, reg(rA, 16384), reg(qkW, 16384), pf("gu", 5, 17, C.rot_qk), C.bud_qk, early=C.qk_early, dbg=(C.dbg == 2), after_bar=full)
    L = Loader(a)
    L.live["wo"] = (0, 102400)
    pn = L.pre(gu, 0, C.gu_e)
    rest()
    a("s_barrier")
    L.live.pop("wo")
    pn = L.pre(gu, pn, C.gu_e2)
    a("s_barrier"); pn = L.pre(gu, pn, C.gu_p)
    pn = L.run(gu, dn, pn); stamp(a, 22); L.end(gu); pn = L.pre(dn, pn, C.dn_e)
    a("s_barrier"); pn = L.pre(dn, pn, C.dn_p)
    def lastexit(nb):
        l = a.uid("lx"); l2 = a.uid("lx")
        a(f"s_cmp_eq_u32 s{sL}, 0\ns_cbranch_scc1 {l}\ns_waitcnt vmcnt(0)")
        if C.wb and SB == "":
            a(f"s_xor_b32 s{sTmp}, s{sW}, 4\ns_or_b32 s{sTmp}, s{sTmp}, s{sR}\ns_cmp_lg_u32 s{sTmp}, 0\ns_cbranch_scc1 {l2}\nbuffer_wbl2 sc1")
            a.label(l2)
        for _ in range(nb): a("s_barrier")
        a(f"s_branch {end_label}")
        a.label(l)
    pn = L.run(dn, qk, pn, lastexit=lastexit); stamp(a, 14); L.end(dn)
    a(f"s_cmp_lg_u32 s{sL}, 0\ns_cbranch_scc1 {end_label}")
    pn = L.pre(qk, pn, C.qk_e)
    a("s_barrier")
    a(f"s_and_b32 s{sTmp}, s{sR}, 15\ns_cmp_eq_u32 s{sTmp}, 15\ns_cbranch_scc1 {idle_label}")
    pn = L.pre(qk, pn, C.qk_p)
    L.run(qk, None, pn); stamp(a, 19); L.end(qk)

def build():
    a = Asm()
    K = NAME + "_kernel"
    t = T
    a(f".globl {K}\n.p2align 8\n.type {K},@function")
    a.label(K)
    a(f"""
    s_load_dwordx16 s[16:31], s[0:1], 0
    s_load_dwordx4 s[32:35], s[0:1], 64
    s_cmp_ge_u32 s2, 256
    s_cbranch_scc1 L_exit
    s_and_b32 s{sG}, s2, 7
    s_lshr_b32 s{sR}, s2, 3
    v_lshrrev_b32 v1, 6, v0
    v_and_b32 v0, 63, v0
    v_readfirstlane_b32 s{sW}, v1
    s_lshl_b32 s{sWG}, s{sG}, 5
    s_add_u32 s{sWG}, s{sWG}, s{sR}
    s_mov_b32 s{sL}, 0
    s_mov_b32 s{sLO}, 0
    s_mov_b32 s{sEP}, 0
    s_mov_b32 s{sTMO}, 0
    """)
    if C.stamp: a("v_mov_b32 v255, 0\nv_mov_b32 v254, 0\ns_memrealtime s[14:15]")
    stamp(a, 0)
    qkv_ids(a, t)
    a(f"s_cmp_lt_u32 s{sW}, 4\ns_cbranch_scc1 L_q1c\ns_cmp_eq_u32 s{t+1}, 15\ns_cbranch_scc1 L_q1c")
    qkv1_loader(a)
    a("s_branch L_q1done")
    a.label("L_q1c")
    a("s_waitcnt lgkmcnt(0)")
    srd(a, R_X, P_X, ACT)
    srd(a, R_WQ, P_WQKV, D*3*D*2)
    a(f"""
    s_cmp_gt_u32 s{sW}, 3
    s_cbranch_scc1 L_npf
    s_lshl_b32 s{t+8}, s{sWG}, 2
    s_add_u32 s{t+8}, s{t+8}, s{sW}
    s_mul_i32 s{t+8}, s{t+8}, 2560
    v_lshrrev_b32 v1, 5, v0
    v_mul_u32_u24 v1, 1280, v1
    v_and_b32 v2, 31, v0
    v_lshl_add_u32 v1, v2, 4, v1
    v_mov_b64 v[228:229], 0
    v_mov_b64 v[230:231], 0
    buffer_load_dwordx4 v[220:223], v1, {R(R_X)}, s{t+8} offen
    buffer_load_dwordx4 v[224:227], v1, {R(R_X)}, s{t+8} offen offset:512
    s_mov_b32 exec_lo, 0xffff
    s_mov_b32 exec_hi, 0xffff
    buffer_load_dwordx4 v[228:231], v1, {R(R_X)}, s{t+8} offen offset:1024
    s_mov_b64 exec, -1
    """)
    a.label("L_npf")
    other_srds(a)
    a(f"s_cmp_eq_u32 s{t+1}, 15\ns_cbranch_scc1 L_q1idle")
    qkv_compute(a, True, "sc1")
    a("s_branch L_q1done")
    a.label("L_q1idle")
    qkv1_idle(a)
    a.label("L_q1done")
    a(f"s_cmp_eq_u32 s{sMODE}, 0\ns_cbranch_scc1 L_slow")
    tails = []
    for nm, SB in (("fast", ""), ("slow", "sc1")):
        a.label(f"L_{nm}")
        tails.append(phase_attn(a, SB, f"L_{nm}_ld"))
        if nm == "fast": a.label("L_fast_post")
        proj_compute(a, False, SB, None)
        gu_compute(a, SB)
        proj_compute(a, True, SB, "L_end")
        qkv_ids(a, t)
        a(f"s_cmp_eq_u32 s{t+1}, 15\ns_cbranch_scc1 L_{nm}_idle")
        qkv_compute(a, False, SB)
        a(f"s_branch L_{nm}_next")
        a.label(f"L_{nm}_ld")
        loader_chain(a, SB, "L_end", f"L_{nm}_idle")
        a(f"s_branch L_{nm}_next")
        a.label(f"L_{nm}_idle")
        a("s_waitcnt vmcnt(0)\ns_barrier")
        a.label(f"L_{nm}_next")
        a(f"s_mov_b32 s{sL}, 1\ns_mov_b32 s{sLO}, {LSTRIDE}\ns_add_u32 s{sEP}, s{sEP}, 5\ns_mov_b32 s{R_WQ+2}, 0\ns_branch L_{nm}")
        if nm == "fast":
            a.label("L_end")
            a(f"""
            s_xor_b32 s{t}, s{sW}, 7
            s_or_b32 s{t}, s{t}, s2
            s_cmp_lg_u32 s{t}, 0
            s_cbranch_scc1 L_end2
            v_mov_b32 v1, 0
            s_mov_b64 exec, 1
            global_store_dword v1, v1, s[{P_DBG}:{P_DBG+1}] sc1
            s_mov_b64 exec, -1
            """)
            a.label("L_end2")
            if C.stamp:
                a("s_waitcnt vmcnt(0)")
                stamp(a, 16)
                a(f"""
                s_memrealtime s[10:11]
                s_waitcnt lgkmcnt(0)
                v_writelane_b32 v255, s14, 62
                v_writelane_b32 v255, s10, 63
                v_writelane_b32 v255, s{sTMO}, 61
                s_lshl_b32 s10, s2, 3
                s_add_u32 s10, s10, s{sW}
                s_lshl_b32 s10, s10, 8
                s_add_u32 s10, s10, {WS_STAMP}
                v_lshlrev_b32 v1, 2, v0
                v_add_u32 v1, s10, v1
                global_store_dword v1, v255, s[{P_WS}:{P_WS+1}]
                v_add_u32 v1, {1<<20}, v1
                global_store_dword v1, v254, s[{P_WS}:{P_WS+1}]
                """)
                if C.pj:
                    a(f"""
                    s_xor_b32 s{t}, s2, 8
                    s_xor_b32 s{t+1}, s{sW}, {C.pw}
                    s_or_b32 s{t}, s{t}, s{t+1}
                    s_cmp_lg_u32 s{t}, 0
                    s_cbranch_scc1 L_exit
                    v_readlane_b32 s{t+1}, v254, {C.pi}
                    v_readlane_b32 s{t+2}, v254, {C.pj % 64}
                    v_readlane_b32 s{t+3}, v254, 40
                    {f"s_mov_b32 s{t+1}, s14" if C.pi == 63 else ""}
                    s_sub_u32 s{t+1}, s{t+2}, s{t+1}
                    s_mul_i32 s{t+1}, s{t+1}, {C.pm}
                    s_add_u32 s{t+1}, s{t+1}, 1000
                    """)
                    a.label("L_probe")
                    a(f"""
                    s_memrealtime s[{t+4}:{t+5}]
                    s_waitcnt lgkmcnt(0)
                    s_sub_u32 s{t+6}, s{t+4}, s{t+3}
                    s_cmp_lt_u32 s{t+6}, s{t+1}
                    s_cbranch_scc1 L_probe
                    """)
                if C.dbgout:
                    a(f"s_xor_b32 s{t}, s2, 8\ns_or_b32 s{t}, s{t}, s{sW}\ns_cmp_lg_u32 s{t}, 0\ns_cbranch_scc1 L_exit\nv_readlane_b32 s{t+1}, v254, 0\nv_mov_b32 v1, 0")
                    for k, i in enumerate([1, 2, 7, 8, 10, 12, 23, 15, 20, 31, 32, 36, 47, 40]):
                        a(f"v_readlane_b32 s{t}, v254, {i}\ns_sub_u32 s{t}, s{t}, s{t+1}\ns_nop 1\nv_mov_b32 v2, s{t}\nglobal_store_dword v1, v2, s[{P_DBG}:{P_DBG+1}] offset:{4+4*k}")
            a.label("L_exit")
            a("s_endpgm")
            a.label("L_fast_end")
    for f in tails: f()
    hdr = open("cdna_kernels/" + NAME + ".s.ref").read().split("; Override")[0]
    hdr += "; @launch grid=(256,1,1) block=(512,1,1) lds=163840\n"
    txt = hdr + '.amdgcn_target "amdgcn-amd-amdhsa--gfx950"\n.text\n' + a.text() + f'''.section .rodata,"a"
.p2align 6
.amdhsa_kernel {K}
  .amdhsa_next_free_vgpr 256
  .amdhsa_next_free_sgpr 102
  .amdhsa_accum_offset 256
  .amdhsa_group_segment_fixed_size 0
  .amdhsa_kernarg_size 80
  .amdhsa_user_sgpr_count 2
  .amdhsa_user_sgpr_kernarg_segment_ptr 1
  .amdhsa_system_sgpr_workgroup_id_x 1
.end_amdhsa_kernel
'''
    for p in check(a.lines): print("HAZARD", p)
    return txt

if __name__ == "__main__":
    out = sys.argv[1] if len(sys.argv) > 1 else "cdna_kernels/" + NAME + ".s"
    for kv in sys.argv[2:]:
        k, _, val = kv.partition("=")
        assert hasattr(C, k), k
        setattr(C, k, int(val) if val else True)
    open(out, "w").write(build())
    print("written", out)
```

```python
import sys, math, struct
sys.path.insert(0, "gen")
from asmlib import *

NAME = "interleave_layers__softmax_full_mha__glu_gated_reglu__prompt"
S, D, F, H, DH = 2048, 640, 1536, 32, 20
ACT = S * D * 2
HEADB = 81920
L_Q = 0
L_K = L_Q + ACT
L_V = L_K + ACT
L_O = L_V + ACT
L_X1 = L_O + ACT
L_X2 = L_X1 + ACT
L_H = L_X2 + ACT
L_ST1 = L_H + S * F * 2
L_ST2 = L_ST1 + S * 64
L_FG = L_ST2 + S * 64
LSTRIDE = L_FG + 32768
WS_ST0 = LSTRIDE + L_ST2
WS_WTO = 2 * LSTRIDE
WS_WTD = WS_WTO + D * D * 2
WS_WTG = WS_WTD + F * D * 2
WS_CSP = WS_WTG + 2 * F * D * 2
WS_CSG = WS_CSP + 10 * 12288
WS_CSQ = WS_CSG + 256 * 768
WS_FL = WS_CSQ + 256 * 512
WS_END = WS_FL + 8192
WS_SIZE = 268435456
WS_STAMP = 200 << 20
QSCALE = (DH ** -0.5) * math.log2(math.e)
def f32(x): return "0x%08x" % struct.unpack("<I", struct.pack("<f", x))[0]

P_X, P_WQKV, P_WO, P_BX, P_WG, P_WU, P_WD, P_OUT, P_DBG, P_WS = 16, 18, 20, 22, 24, 26, 28, 30, 32, 34
sL, sG, sR, sW, sLO, sEP, sTMO, sWG = 3, 4, 5, 6, 7, 8, 9, 13
R_WS, R_X, R_WQ, R_WG, R_WU, R_T = 36, 40, 44, 48, 52, 56
T = 60
WSR = f"s[{R_WS}:{R_WS+3}]"
def R(r): return f"s[{r}:{r+3}]"
SPIN = 200000

class Cfg:
    stamp = False
    dbg = 0
    dbgout = 0
    pi = 0
    pj = 0
    pm = 1
    pw = 0
    look = 6
    gu_e = 12
    dn_e = 4
    qk_e = 0
    bud_gu = 10
    bud_dn = 5
    bud_qk = 6
    bud_q1 = 10
    dn_a = 3
    psleep = 1
    gran = 3
    flip = 0
    g16 = 1
    e16 = 3
    wb = 0
    outb = 0
    q1prio = 0
    look_q1 = 6
    nocs = 0
    qloc = 1
    stage = 1
    cpf = 1
    l2pf0 = 1
    nt_kv = 0
    nt_wo = 0
    nt_gu = 0
    nt_dn = 0
    nt_qk = 0
    htouch = 0
    warm = 0
    gu_e2 = 0
    gu_p = 0
    dn_p = 20
    qk_p = 4
    wo_sets = 6
    q1pf = 1
    l2pf = 12
    rot = 0
    x_hit = 0
    tlb = 0
    rot_gu = 0
    rot_dn = 0
    rot_qk = 0
    dn_early = 99
    qk_early = 99
C = Cfg()

def stamp(a, i):
    if not C.stamp: return
    a(f"s_memtime s[10:11]\ns_mul_i32 s12, s{sL}, 24\ns_add_u32 m0, s12, {i}\ns_waitcnt lgkmcnt(0)\nv_writelane_b32 v255, s10, m0")
    if C.dbg == 7: a(f"s_memrealtime s[10:11]\ns_waitcnt lgkmcnt(0)\nv_writelane_b32 v254, s10, m0")

def dstamp(a, d, i):
    if C.stamp and C.dbg == d: a(f"s_memtime s[10:11]\ns_lshl_b32 s12, s{sL}, 5\ns_add_u32 m0, s12, {i}\ns_waitcnt lgkmcnt(0)\nv_writelane_b32 v254, s10, m0")

def srd(a, r, ptr, size):
    a(f"s_mov_b32 s{r}, s{ptr}\ns_mov_b32 s{r+1}, s{ptr+1}\ns_mov_b32 s{r+2}, {size}\ns_mov_b32 s{r+3}, 0x20000")

def interleave(a, mf, other):
    n = len(mf); k = 0
    for i, m in enumerate(mf):
        a(m)
        tgt = (len(other) * (i + 1) + n - 1) // n
        while k < tgt:
            a(other[k]); k += 1

def poll(a, vaddr, vtmp, soff, want, sleep=0, pre=False, wide=False):
    lp = a.uid("poll"); ok = a.uid("pollok")
    cnt = T + 22
    a(f"s_mov_b32 s{cnt}, s{sTMO}")
    if pre is not False: a(f"s_waitcnt vmcnt({pre})\ns_branch {lp}c")
    a.label(lp)
    if wide: a(f"buffer_load_dwordx4 v[{vtmp}:{vtmp+3}], v{vaddr}, {WSR}, {soff} offen sc1")
    else: a(f"buffer_load_dword v{vtmp}, v{vaddr}, {WSR}, {soff} offen sc1")
    a(f"s_waitcnt vmcnt(0)")
    if pre is not False: a.label(lp + "c")
    a(f"v_subrev_u32 v{vtmp}, {want}, v{vtmp}")
    if wide:
        for i in range(1, 4): a(f"v_subrev_u32 v{vtmp+i}, {want}, v{vtmp+i}\nv_max_u32 v{vtmp}, v{vtmp}, v{vtmp+i}")
    a(f"v_cmp_lt_u32 vcc, 15, v{vtmp}")
    a(f"s_cbranch_vccz {ok}")
    if sleep: a(f"s_sleep {sleep}")
    a(f"s_add_u32 s{cnt}, s{cnt}, 1\ns_cmp_lt_u32 s{cnt}, {SPIN}\ns_cbranch_scc1 {lp}")
    a(f"s_mov_b32 s{sTMO}, {SPIN}")
    a.label(ok)

def poll_local(a, kind, ep, va=1, vt=2, sleep=0):
    t = T + 20
    if kind == "wo":
        a(f"v_and_b32 v{va}, 31, v0\nv_lshlrev_b32 v{va}, 5, v{va}\ns_lshr_b32 s{t}, s{sR}, 3\ns_lshl_b32 s{t}, s{t}, 2\ns_add_u32 s{t}, s{t}, 16")
    elif kind == "gu":
        a(f"v_lshrrev_b32 v{va}, 2, v0\nv_lshlrev_b32 v{va}, 5, v{va}\nv_and_b32 v{vt}, 3, v0\nv_lshl_add_u32 v{va}, v{vt}, 2, v{va}")
        a(f"s_lshr_b32 s{t}, s{sR}, 4\ns_lshl_b32 s{t}, s{t}, 9")
    elif kind == "down":
        a(f"v_bfe_u32 v{va}, v0, 1, 4\nv_lshlrev_b32 v{va}, 5, v{va}\nv_and_b32 v{vt}, 1, v0\nv_lshl_add_u32 v{va}, v{vt}, 3, v{va}")
        a(f"s_lshr_b32 s{t}, s{sR}, 4\ns_lshl_b32 s{t}, s{t}, 9\ns_bfe_u32 s{t+1}, s{sR}, 0x10003\ns_lshl_b32 s{t+1}, s{t+1}, 2\ns_add_u32 s{t}, s{t}, s{t+1}")
    elif kind == "attn":
        a(f"""
        v_bfe_u32 v{va}, v0, 2, 1
        v_mul_u32_u24 v{va}, 19, v{va}
        s_mul_i32 s{t}, s{sR}, 20
        v_add_u32 v{va}, s{t}, v{va}
        v_lshrrev_b32 v{va}, 7, v{va}
        v_lshrrev_b32 v{vt}, 4, v0
        v_min_u32 v{vt}, 2, v{vt}
        v_mad_u32_u24 v{va}, v{vt}, 5, v{va}
        v_bfe_u32 v{vt}, v0, 3, 1
        v_lshl_add_u32 v{va}, v{vt}, 4, v{va}
        v_lshlrev_b32 v{va}, 5, v{va}
        v_and_b32 v{vt}, 3, v0
        v_lshl_add_u32 v{va}, v{vt}, 2, v{va}
        s_mov_b32 s{t}, 0
        """)
    a(f"s_lshl_b32 s{t+1}, s{sG}, 10\ns_add_u32 s{t}, s{t}, s{t+1}\ns_add_u32 s{t}, s{t}, {WS_FL}\ns_add_u32 s{t+1}, s{sEP}, {ep}")
    poll(a, va, vt, f"s{t}", f"s{t+1}", sleep=sleep)

sNR, sGO, sGW = 92, 94, 95
class Gate:
    def __init__(self, a, va, vt, fold=False, sleep=0):
        self.a, self.va, self.vt, self.fold, self.sleep = a, va, vt, fold, sleep
        self.ok = 0
    def load(self): self.a(f"buffer_load_dword v{self.vt}, v{self.va}, {WSR}, s{sGO} offen sc1")
    def upd(self):
        self.a(f"s_waitcnt vmcnt(0)\nv_subrev_u32 v{self.vt}, s{sGW}, v{self.vt}\nv_cmp_lt_u32 s[{sNR}:{sNR+1}], 15, v{self.vt}")
        if self.fold: self.a(f"s_or_b32 s{sNR}, s{sNR}, s{sNR+1}")
    def reset(self): self.a(f"s_mov_b32 s{sNR}, -1")
    def need(self, mask):
        a = self.a
        mask &= ~self.ok
        if not mask: return
        self.ok |= mask
        lp = a.uid("gt"); cnt = T + 22
        a(f"s_and_b32 s{cnt}, s{sNR}, {hex(mask)}\ns_cbranch_scc0 {lp}k\ns_mov_b32 s{cnt}, s{sTMO}")
        a.label(lp)
        self.load(); self.upd()
        a(f"s_and_b32 s{cnt+1}, s{sNR}, {hex(mask)}\ns_cbranch_scc0 {lp}k")
        if self.sleep: a(f"s_sleep {self.sleep}")
        a(f"s_add_u32 s{cnt}, s{cnt}, 1\ns_cmp_lt_u32 s{cnt}, {SPIN}\ns_cbranch_scc1 {lp}\ns_mov_b32 s{sTMO}, {SPIN}")
        a.label(lp + "k")
def span(lo, hi, w, bits):
    m = 0
    for p in range(lo // w, hi // w + 1): m |= ((1 << bits) - 1) << (bits * p)
    return m
def gate_local(a, kind, ep, va, vt, sRotCt=None, sleep=0):
    t = T + 20
    if kind == "wo":
        a(f"v_and_b32 v{va}, 31, v0\nv_lshlrev_b32 v{va}, 5, v{va}\ns_lshr_b32 s{sGO}, s{sR}, 3\ns_lshl_b32 s{sGO}, s{sGO}, 2\ns_add_u32 s{sGO}, s{sGO}, 16")
    elif kind == "down":
        a(f"v_lshrrev_b32 v{va}, 1, v0\nv_add_u32 v{va}, s{sRotCt}, v{va}\nv_and_b32 v{va}, 15, v{va}\nv_lshlrev_b32 v{va}, 5, v{va}\nv_and_b32 v{vt}, 1, v0\nv_lshl_add_u32 v{va}, v{vt}, 3, v{va}")
        a(f"s_lshr_b32 s{sGO}, s{sR}, 4\ns_lshl_b32 s{sGO}, s{sGO}, 9\ns_bfe_u32 s{t+1}, s{sR}, 0x10003\ns_lshl_b32 s{t+1}, s{t+1}, 2\ns_add_u32 s{sGO}, s{sGO}, s{t+1}")
    elif kind == "gu":
        a(f"v_lshrrev_b32 v{va}, 1, v0\nv_add_u32 v{va}, s{sRotCt}, v{va}\nv_and_b32 v{va}, 7, v{va}\nv_lshlrev_b32 v{va}, 5, v{va}\nv_and_b32 v{vt}, 1, v0\nv_lshl_add_u32 v{va}, v{vt}, 2, v{va}")
        a(f"s_lshr_b32 s{sGO}, s{sR}, 4\ns_lshl_b32 s{sGO}, s{sGO}, 9\ns_bfe_u32 s{t+1}, s{sW}, 0x10001\ns_lshl_b32 s{t+1}, s{t+1}, 8\ns_add_u32 s{sGO}, s{sGO}, s{t+1}")
        a(f"s_and_b32 s{t+1}, s{sW}, 1\ns_lshl_b32 s{t+1}, s{t+1}, 3\ns_add_u32 s{sGO}, s{sGO}, s{t+1}")
    a(f"s_lshl_b32 s{t+1}, s{sG}, 10\ns_add_u32 s{sGO}, s{sGO}, s{t+1}\ns_add_u32 s{sGO}, s{sGO}, {WS_FL}\ns_add_u32 s{sGW}, s{sEP}, {ep}")
    g = Gate(a, va, vt, sleep=sleep); g.reset()
    return g

def flag_setup(a, ep):
    t = T + 20
    a(f"s_lshl_b32 s{t}, s{sWG}, 3\ns_add_u32 s{t}, s{t}, s{sW}\ns_lshl_b32 s{t}, s{t}, 2\ns_add_u32 s{t}, s{t}, {WS_FL}\ns_add_u32 s{t+1}, s{sEP}, {ep}")
    a(f"v_mov_b32 v1, 0\nv_mov_b32 v2, s{t+1}")
def flag_store(a, SB, s=T+20):
    a(f"s_mov_b64 exec, 1\nbuffer_store_dword v2, v1, {WSR}, s{s} offen {SB}\ns_mov_b64 exec, -1")
def publish_local(a, ep, SB):
    flag_setup(a, ep)
    a("s_waitcnt vmcnt(0)")
    flag_store(a, SB)

def row_stats(a, vst, vmean, vrstd):
    for i in range(1, 8):
        a(f"v_add_f32 v{vst}, v{vst}, v{vst+2*i}\nv_add_f32 v{vst+1}, v{vst+1}, v{vst+2*i+1}")
    finish_stats(a, vst, vst + 1, vmean, vrstd)

def finish_stats(a, vs, vq, vmean, vrstd):
    a(f"v_mul_f32 v{vmean}, {f32(1.0/D)}, v{vs}")
    a(f"v_mul_f32 v{vq}, {f32(1.0/D)}, v{vq}")
    a(f"v_fma_f32 v{vq}, -v{vmean}, v{vmean}, v{vq}")
    a(f"v_max_f32 v{vq}, 0, v{vq}")
    a(f"v_add_f32 v{vq}, {f32(1e-5)}, v{vq}")
    a(f"v_rsq_f32 v{vrstd}, v{vq}")
    a("s_nop 0")

def lin_dma(a, vaddr, src_s, src_off, dst_s, dst_off, npieces, bits="", rsrc=WSR, tmp=T+19):
    i = 0
    while i < npieces:
        k = min(4, npieces - i)
        a(f"s_add_u32 m0, s{dst_s}, {dst_off + 1024*i}")
        a(f"s_add_u32 s{tmp}, s{src_s}, {src_off + 1024*i}")
        for j in range(k):
            a(f"buffer_load_dwordx4 v{vaddr}, {rsrc}, s{tmp} offen offset:{1024*j} {bits} lds")
        i += k
    return npieces


def states(x):
    return int(x.split()[1]) + 1 if x.startswith("s_nop") else 1

def gemm_unrolled(a, n, P, nr, reads, mfma, groups, inserts, fix, fix_from, epi, st_end, alt=None):
    seq = []
    def add(ms, fill, pre=()):
        k = 0
        for i, (kk, tl) in enumerate(ms):
            tgt = (len(fill) * (i + 1) + len(ms) - 1) // len(ms)
            seq.append([list(pre) if i == 0 else [], mfma(kk, tl), tl, list(fill[k:tgt])]); k = tgt
    step = lambda kk: [(kk, tl) for tl in range(P)]
    a("s_barrier")
    for x in reads(0, 0) + reads(0, 1): a(x)
    w = f"s_waitcnt lgkmcnt({nr})"
    for c in range(n - 1):
        add(step(0), reads(c, 2), [w])
        add(step(1), reads(c, 3), [w])
        add(step(2), [], [w])
        seq[-2][3] += ["s_waitcnt lgkmcnt(0)"]; seq[-1][3] += ["s_barrier"]
        add(step(3), reads(c + 1, 0) + reads(c + 1, 1))
    nmain = len(seq)
    for i0, ins in inserts.items():
        i = i0; ins = list(ins)
        while ins:
            room = 4 - sum(states(x) for x in seq[i][3]) - len(seq[i+1][0])
            if ins[0].startswith("s_mov_b32 exec") and room < 3: room = 0
            while room > 0 and ins and "s_barrier" not in seq[i][3]:
                x = ins.pop(0); seq[i][3].append(x); room -= states(x)
            i += 1

        end = fix_from if i0 < fix_from else nmain
        assert i <= end and all(not (i0 < k < i) for k in inserts if len(inserts[i0]) > 1), (i0, i)
        if any(x.startswith("ds_") for x in inserts[i0]): assert any("s_waitcnt lgkmcnt(0)" in seq[j][3] for j in range(i, end)), (i, end)
    todo = {tl: list(fix(tl)) for tl in range(P)}
    used = lambda g: sum(states(x) for x in seq[g][3]) + len(seq[g+1][0])
    g = fix_from + 2
    while any(todo.values()):
        assert g + 2 < nmain, "no room for fix"
        if used(g) < 5 and "s_barrier" not in seq[g][3]:
            for back in range(P - 2, 1, -1):
                tl = seq[g - back][2]
                if not todo[tl] or g - back < fix_from: continue
                have = sum(used(x) + 1 for x in range(g - back, g)) + sum(states(x) for x in seq[g][3])
                room = sum(max(0, 5 - used(x)) for x in range(g - back, g))
                if have + room < 12: continue
                for x in range(g - back, g):
                    k = min(5 - used(x), 12 - have)
                    if k > 0: seq[x][3].append(f"s_nop {k-1}"); have += k
                while used(g) < 5 and todo[tl]: seq[g][3].append(todo[tl].pop(0))
            if used(g + 1) < 1: seq[g + 1][3].append("s_nop 0")
        g += 1

    c = n - 1
    g0 = groups[0]
    seq[-1][3] += reads(c, 2)
    add([(kk, tl) for kk in (0, 1) for tl in g0], reads(c, 3), [w])
    add([(kk, tl) for kk in (2, 3) for tl in g0], [], ["s_waitcnt lgkmcnt(0)"])
    seq[-len(g0)*2][3].append("s_barrier")
    seq[-1][3].append("s_nop 4")
    def flush():
        for pre, m, tl, post in seq:
            for x in pre: a(x)
            a(m)
            for x in post: a(x)
        del seq[:]
    def tail(epi):
        for gi in range(1, len(groups)):
            ms = [(kk, tl) for kk in range(4) for tl in groups[gi]]
            if gi == 1: add(ms[:1], ["s_nop 4"]); add(ms[1:], epi(gi - 1, False))
            else: add(ms, ["s_nop 0"] + epi(gi - 1, False))
        flush()
        stamp(a, st_end)
        a.nop(3)
        for x in epi(len(groups) - 1, True): a(x)
    if alt:
        cond, epi2, post1, post2 = alt
        l = a.uid("alt")
        seq[-1][3][-1:] = [cond, f"s_cbranch_scc1 {l}", "s_nop 2"]
        flush(); tail(epi); post1()
        a.label(l); a("s_nop 2"); tail(epi2); post2()
    else: tail(epi)

def gemm16(a, n, P, reads, mfma, groups, inserts, fix, fix_from, epi, st_end):
    seq = []
    def add(ms, fill, span, pre=()):
        k = 0
        for i, (u, tl, z) in enumerate(ms):
            tgt = min(len(fill), (len(fill) * (i + 1) + span - 1) // span)
            seq.append([list(pre) if i == 0 else [], mfma(u, tl, z), tl, list(fill[k:tgt])]); k = tgt
        assert k == len(fill)
    w0 = "s_waitcnt lgkmcnt(0)"
    a("s_barrier")
    for x in reads(0, 0): a(x)
    nr = len(reads(0, 0))
    for c in range(n - 1):
        add([(0, tl, c == 0) for tl in range(P)], reads(c, 1), nr, [w0])
        seq[-2][3] += [w0]; seq[-1][3] += ["s_barrier"]
        add([(1, tl, False) for tl in range(P)], reads(c + 1, 0), nr)
    nmain = len(seq)
    used = lambda g: sum(states(x) * (2 if x.startswith(("buffer", "v_perm", "v_rsq")) else 1) for x in seq[g][3]) + len(seq[g+1][0])
    for i0, ins in inserts.items():
        i = i0; ins = list(ins)
        while ins:
            while used(i) < C.g16 and ins and "s_barrier" not in seq[i][3]: seq[i][3].append(ins.pop(0))
            i += 1
        assert i <= fix_from
        if any(x.startswith("ds_") for x in inserts[i0]): assert any(w0 in seq[j][3] + seq[j][0] for j in range(i, fix_from))
    todo = {tl: list(fix(tl)) for tl in range(P)}
    g = fix_from
    while any(todo.values()):
        assert g + 4 < nmain
        for back in sorted(range(P - 3, 7, -1), key=lambda b_: -len(todo[seq[g - b_][2]])):
            tl = seq[g - back][2]
            while used(g) < C.g16 and todo[tl] and "s_barrier" not in seq[g][3]: seq[g][3].append(todo[tl].pop(0))
        g += 1
    c = n - 1
    g0 = groups[0]
    add([(0, tl, False) for tl in g0 + groups[1]], reads(c, 1), nr, [w0])
    add([(1, tl, False) for tl in g0], ["s_barrier"], 1, [w0])
    rest = [(1, tl, False) for tl in groups[1]]
    for gi in range(2, len(groups)): rest += [(u, tl, False) for u in range(2) for tl in groups[gi]]
    e0 = epi(0, False); e1 = epi(1, False)
    k1 = len(groups[1])
    add(rest[:2], ["s_nop 1", "s_nop 1"], 2)
    nleft = len(rest) - 2
    add(rest[2:], (e0 + e1)[:C.e16*nleft], nleft)
    for pre, m, tl, post in seq:
        for x in pre: a(x)
        a(m)
        for x in post: a(x)
    for x in (e0 + e1)[C.e16*nleft:]: a(x)
    stamp(a, st_end)
    for gi in range(2, len(groups)):
        for x in epi(gi, True): a(x)

class Src:
    def __init__(self, sB, sB1, sThr, stride): self.__dict__.update(locals())
    def setup(self, a, sRot, n, tmp):
        a(f"s_mul_i32 s{tmp}, s{sRot}, {self.stride}\ns_add_u32 s{self.sB}, s{self.sB}, s{tmp}\ns_sub_u32 s{self.sB1}, s{self.sB}, {n*self.stride}")
    def sel(self, a, c, dst):
        a(f"s_cmp_gt_u32 s{self.sThr}, {c}\ns_cselect_b32 s{dst}, s{self.sB}, s{self.sB1}")

class Phase:
    def __init__(self, name, n, npa, npw, emitA, emitW, regA, regW, pollfn, budget, lag=1, after_bar=None, dbg=False, early=99):
        self.__dict__.update(locals())

class Loader:
    def __init__(self, a):
        self.a = a; self.q = []; self.live = {}; self.waitfn = None; self.total = 0
    def free(self, reg, key):
        return key in self.live or all(reg[1] <= lo or hi <= reg[0] for lo, hi in self.live.values())
    def can(self, ph, kind, c):
        return self.free((ph.regA if kind == "A" else ph.regW)(c), (ph.name, kind, c))
    def issue(self, ph, kind, c, i0, k):
        assert self.can(ph, kind, c)
        self.live[(ph.name, kind, c)] = (ph.regA if kind == "A" else ph.regW)(c)
        (ph.emitA if kind == "A" else ph.emitW)(c, i0, k)
        self.q += [(ph.name, kind, c)] * k; self.total += k
    def release(self, ph, c):
        for k in "AW": self.live.pop((ph.name, k, c), None)
    def wait(self, tags):
        last = -1
        for i, t in enumerate(self.q):
            if t in tags: last = i
        if last >= 0:
            n = len(self.q) - 1 - last
            assert n < 64
            self.q = self.q[last+1:]
            if self.waitfn: self.waitfn(n)
            else: self.a(f"s_waitcnt vmcnt({n})")
    def pre(self, ph, pw, cnt):
        done = 0
        while pw < ph.n * ph.npw and done < cnt and self.can(ph, "W", pw // ph.npw):
            k = min(4, ph.npw - pw % ph.npw, cnt - done)
            self.issue(ph, "W", pw // ph.npw, pw % ph.npw, k); pw += k; done += k
        return pw
    def run(self, ph, nxt, pw=0, after_poll=None, tail=None, waitfn=None, lastexit=None):
        a = self.a; n = ph.n
        pa = 0; pn = 0
        if ph.pollfn: ph.pollfn()
        if after_poll: after_poll()
        for c in range(n):
            done = 0
            if lastexit and pw == n * ph.npw:
                lastexit(n - c + 1); lastexit = None
            while True:
                needed = pa < (c + 1) * ph.npa or pw < (c + 1) * ph.npw
                if not needed:
                    beyond = 0
                    for t in reversed(self.q):
                        if t[0] == ph.name and t[2] <= c: break
                        beyond += 1
                    if beyond >= getattr(ph, 'look', C.look) and (done >= ph.budget or c == 0): break
                ca = pa // ph.npa if ph.npa else n; cw = pw // ph.npw
                okA = ca < n and self.can(ph, "A", ca)
                okW = cw < n and self.can(ph, "W", cw)
                if okW and (cw <= ca or not okA):
                    k = ph.npw - pw % ph.npw
                    if not needed: k = min(2, k)
                    self.issue(ph, "W", cw, pw % ph.npw, k); pw += k
                elif okA:
                    k = ph.npa - pa % ph.npa
                    if not needed: k = min(2, k)
                    self.issue(ph, "A", ca, pa % ph.npa, k); pa += k
                elif nxt and ca == n and cw == n and pn < nxt.early and self.can(nxt, "W", pn // nxt.npw):
                    k = min(2, nxt.npw - pn % nxt.npw)
                    self.issue(nxt, "W", pn // nxt.npw, pn % nxt.npw, k); pn += k
                else:
                    assert not needed
                    break
                done += k
            if tail and pa == n * ph.npa and pw == n * ph.npw:
                tail(); tail = None; self.waitfn = waitfn
            if ph.after_bar and c > 0: ph.after_bar(c - 1)
            self.wait({(ph.name, "A", c), (ph.name, "W", c)})
            if ph.dbg and C.stamp: a(f"s_memtime s[10:11]\ns_waitcnt lgkmcnt(0)\nv_writelane_b32 v254, s10, {2*c}")
            a("s_barrier")
            if ph.dbg and C.stamp: a(f"s_memtime s[10:11]\ns_waitcnt lgkmcnt(0)\nv_writelane_b32 v254, s10, {2*c+1}")
            self.release(ph, c - ph.lag)
        if ph.after_bar: ph.after_bar(n - 1)
        if nxt: pn = self.pre(nxt, pn, min(ph.budget, max(0, nxt.early - pn)))
        return pn
    def end(self, ph):
        self.a("s_barrier")
        for c in range(ph.n): self.release(ph, c)

Q1_TAB = 131072 + 26624
Q1_NON = Q1_TAB + 2048
Q1_CS = Q1_NON + 64
WB = 65536
def guW(c): return WB + ((3 - c) % 4) * 24576
def dnW(c): return ((c + 2) % 8) * 20480
def qkW(c): return WB + ((c + 4) % 6) * 16384

PSCR = 131072
PV = 180
def projjob_issue(a, sJob, sScr, t, loads=True):
    a(f"""
    s_and_b32 s{t+2}, s{sJob}, 7
    s_lshr_b32 s{t+3}, s{sJob}, 3
    s_cmp_lt_u32 s{t+3}, 20
    s_cselect_b32 s{R_T}, s{P_WO}, s{P_WD}
    s_cselect_b32 s{R_T+1}, s{P_WO+1}, s{P_WD+1}
    s_mov_b32 s{R_T+2}, {F*D*2}
    s_cselect_b32 s{R_T+2}, {D*D*2}, s{R_T+2}
    s_mov_b32 s{R_T+3}, 0x20000
    s_cselect_b32 s{t+4}, 0, 20
    s_cselect_b32 s{t+5}, 20, 48
    s_mov_b32 s{t+6}, {WS_WTD}
    s_cselect_b32 s{t+6}, {WS_WTO}, s{t+6}
    s_sub_u32 s{t+3}, s{t+3}, s{t+4}
    s_mul_i32 s{t+5}, s{t+5}, s{t+2}
    s_add_u32 s{t+5}, s{t+5}, s{t+3}
    s_mul_i32 s{t+5}, s{t+5}, 5120
    s_add_u32 s{t+6}, s{t+6}, s{t+5}
    s_mul_i32 s{t+3}, s{t+3}, {32*1280}
    s_mul_i32 s{t+2}, s{t+2}, 160
    s_add_u32 s{t+3}, s{t+3}, s{t+2}
    s_movk_i32 s{t+4}, 6554
    """)
    x, y = PV, PV + 1
    for i in range(5 if loads else 0):
        a(f"""
        v_add_u32 v{x}, {64*i}, v0
        v_mul_u32_u24 v{y}, s{t+4}, v{x}
        v_lshrrev_b32 v{y}, 16, v{y}
        v_mad_i32_i24 v{x}, v{y}, -10, v{x}
        v_mul_u32_u24 v{y}, 1280, v{y}
        v_lshl_add_u32 v{x}, v{x}, 4, v{y}
        s_add_u32 m0, s{sScr}, {1024*i}
        s_nop 0
        buffer_load_dwordx4 v{x}, {R(R_T)}, s{t+3} offen lds
        """)
def projjob_finish(a, sScr, t):
    x, y, z, d0 = PV, PV + 1, PV + 2, PV + 4
    a(f"""
    v_lshrrev_b32 v{x}, 4, v0
    v_bfe_u32 v{y}, v0, 2, 2
    v_lshl_add_u32 v{x}, v{x}, 3, v{y}
    v_mul_u32_u24 v{x}, 160, v{x}
    v_add_u32 v{x}, s{sScr}, v{x}
    v_and_b32 v{y}, 3, v0
    v_lshl_add_u32 v{z}, v{y}, 3, v{x}
    v_lshl_add_u32 v{y}, v{y}, 4, v{x}
    """)
    for jn in range(5):
        for j in range(2):
            d = d0 + 4*jn + 2*j
            if jn < 4: a(f"ds_read_b64_tr_b16 v[{d}:{d+1}], v{y} offset:{640*j + 64*(jn>>1) + 8*(jn&1)}")
            else: a(f"ds_read_b64_tr_b16 v[{d}:{d+1}], v{z} offset:{640*j + 128}")
    a(f"s_add_u32 s{t+5}, s{t+6}, 4096\ns_waitcnt lgkmcnt(0)")
    for jn in range(5):
        d = d0 + 4*jn
        a(f"buffer_store_dwordx4 v[{d}:{d+3}], v5, {WSR}, s{t+6 if jn < 4 else t+5} offen offset:{1024*(jn&3)} sc1")

def gujob_issue(a, sJob, t, loads=True):
    x, y = PV, PV + 1
    a(f"""
    s_mul_i32 s{t+2}, s{sJob}, 2731
    s_lshr_b32 s{t+2}, s{t+2}, 16
    s_mul_i32 s{t+3}, s{t+2}, 24
    s_sub_u32 s{t+3}, s{sJob}, s{t+3}
    s_mul_i32 s{t+4}, s{t+2}, {64*F*2}
    s_lshl_b32 s{t+5}, s{t+3}, 7
    s_add_u32 s{t+4}, s{t+4}, s{t+5}
    v_lshrrev_b32 v{x}, 3, v0
    v_mul_u32_u24 v{x}, {F*2}, v{x}
    v_and_b32 v{y}, 7, v0
    v_lshl_add_u32 v{x}, v{y}, 4, v{x}
    """)
    for i in range(8 if loads else 0):
        for u in range(2):
            a(f"s_mov_b32 m0, {PSCR + 8192*u + 1024*i}\ns_add_u32 s{t+5}, s{t+4}, {i*8*F*2}")
            a(f"buffer_load_dwordx4 v{x}, {R(R_WU if u else R_WG)}, s{t+5} offen lds")
def gujob_finish(a, t):
    x, y, z = PV, PV + 1, PV + 2
    ONE, FRG, CS = PV + 4, PV + 8, PV + 40
    a(f"""
    v_lshrrev_b32 v{z}, 4, v0
    v_bfe_u32 v{x}, v0, 2, 2
    v_lshl_add_u32 v{x}, v{z}, 3, v{x}
    v_lshlrev_b32 v{x}, 7, v{x}
    v_and_b32 v{y}, 3, v0
    v_lshl_add_u32 v{x}, v{y}, 3, v{x}
    v_add_u32 v{x}, {PSCR}, v{x}
    v_lshlrev_b32 v{z}, 4, v{z}
    s_mul_i32 s{t+6}, s{t+2}, 12288
    s_lshl_b32 s{t+5}, s{t+3}, 9
    s_add_u32 s{t+6}, s{t+6}, s{t+5}
    s_add_u32 s{t+6}, s{t+6}, {WS_CSP}
    """)
    for i in range(4): a(f"v_mov_b32 v{ONE+i}, 0x3f803f80")
    for tt in range(4):
        f0 = FRG + 16*(tt & 1)
        for u in range(2):
            for m in range(2):
                for j in range(2):
                    d = f0 + 8*u + 4*m + 2*j
                    a(f"ds_read_b64_tr_b16 v[{d}:{d+1}], v{x} offset:{8192*m + 128*(32*u+4*j) + 32*tt}")
        a(f"""
        s_lshl_b32 s{t+4}, s{t+3}, 2
        s_add_u32 s{t+4}, s{t+4}, {tt}
        s_mul_i32 s{t+5}, s{t+4}, 43
        s_lshr_b32 s{t+5}, s{t+5}, 8
        s_mul_i32 s{t+5}, s{t+5}, 228
        s_lshl_b32 s{t+4}, s{t+4}, 1
        s_add_u32 s{t+4}, s{t+4}, s{t+5}
        s_mul_i32 s{t+5}, s{t+2}, 24
        s_add_u32 s{t+4}, s{t+4}, s{t+5}
        s_lshl_b32 s{t+4}, s{t+4}, 10
        s_add_u32 s{t+4}, s{t+4}, {WS_WTG}
        s_add_u32 s{t+5}, s{t+4}, 12288
        s_waitcnt lgkmcnt(0)
        """)
        for u in range(2):
            for m in range(2):
                a(f"v_mfma_f32_16x16x32_bf16 {v(CS+4*m,4)}, {v(f0+8*u+4*m,4)}, {v(ONE,4)}, {v(CS+4*m,4) if u else 0}")
        for u in range(2):
            for m in range(2):
                d = f0 + 8*u + 4*m
                a(f"buffer_store_dwordx4 v[{d}:{d+3}], v5, {WSR}, s{t+4+u} offen offset:{1024*m} sc1")
        a("s_mov_b32 exec_lo, 0x10001\ns_mov_b32 exec_hi, 0x10001\ns_nop 1")
        for m in range(2):
            a(f"buffer_store_dwordx4 v[{CS+4*m}:{CS+4*m+3}], v{z}, {WSR}, s{t+6} offen offset:{128*tt+64*m} sc1")
        a("s_mov_b64 exec, -1")

def prep(a, stage):
    tj = 84; sJob, sScr = tj, tj + 1
    lg = a.uid("pg"); le = a.uid("pe")
    if stage == 0:
        a(f"""
        s_sub_u32 s{sScr}, s{sW}, 1
        s_lshl_b32 s{sJob}, s{sScr}, 8
        s_add_u32 s{sJob}, s{sJob}, s{sWG}
        s_add_u32 s{sJob}, s{sJob}, 160
        s_mul_i32 s{sScr}, s{sScr}, 5120
        s_add_u32 s{sScr}, s{sScr}, {PSCR + 16384}
        """)
    a(f"s_cmp_eq_u32 s{sW}, 0\ns_cbranch_scc1 {lg}\ns_cmp_ge_u32 s{sJob}, 544\ns_cbranch_scc1 {le}")
    projjob_issue(a, sJob, sScr, tj) if stage == 0 else projjob_finish(a, sScr, tj)
    a(f"s_branch {le}")
    a.label(lg)
    a(f"s_cmp_ge_u32 s{sWG}, 240\ns_cbranch_scc1 {le}")
    gujob_issue(a, sWG, tj) if stage == 0 else gujob_finish(a, tj)
    a.label(le)

def xstat_fin(a):
    t = T + 16
    a(f"s_mov_b32 s{t}, 0xffff0000\nv_mov_b64 v[232:233], 0\ns_waitcnt vmcnt(0)")
    for i in range(12):
        a(f"v_lshlrev_b32 v234, 16, v{220+i}\nv_and_b32 v235, s{t}, v{220+i}\nv_add_f32 v232, v232, v234\nv_fmac_f32 v233, v234, v234\nv_add_f32 v232, v232, v235\nv_fmac_f32 v233, v235, v235")
    for mod in ("quad_perm:[1,0,3,2]", "quad_perm:[2,3,0,1]"):
        a(f"s_nop 1\nv_add_f32_dpp v232, v232, v232 {mod} row_mask:0xf bank_mask:0xf\nv_add_f32_dpp v233, v233, v233 {mod} row_mask:0xf bank_mask:0xf")
    a(f"""
    v_bfe_u32 v234, v0, 3, 2
    v_lshlrev_b32 v234, 10, v234
    v_bfe_u32 v235, v0, 2, 1
    v_lshl_add_u32 v234, v235, 3, v234
    v_lshrrev_b32 v235, 5, v0
    v_lshl_add_u32 v234, v235, 4, v234
    s_lshr_b32 s{t}, s{sWG}, 3
    s_lshl_b32 s{t}, s{t}, 12
    s_and_b32 s{t+1}, s{sWG}, 7
    s_lshl_b32 s{t+1}, s{t+1}, 2
    s_add_u32 s{t+1}, s{t+1}, s{sW}
    s_lshl_b32 s{t+1}, s{t+1}, 5
    s_add_u32 s{t}, s{t}, s{t+1}
    s_add_u32 s{t}, s{t}, {WS_ST0}
    s_mov_b32 exec_lo, 0x11111111
    s_mov_b32 exec_hi, 0x11111111
    buffer_store_dwordx2 v[232:233], v234, {WSR}, s{t} offen sc1
    s_mov_b64 exec, -1
    """)

def nonce_put(a):
    t = T + 8
    a(f"""
    s_memrealtime s[{t}:{t+1}]
    v_mov_b32 v1, 0
    s_waitcnt lgkmcnt(0)
    s_or_b32 s{t+2}, s{t}, 0x80000000
    v_mov_b32 v2, s{t+2}
    s_mov_b64 exec, 1
    global_store_dword v1, v2, s[{P_DBG}:{P_DBG+1}] sc1
    s_mov_b64 exec, -1
    """)
def flags_zero(a):
    t = T + 16
    a(f"""
    s_lshl_b32 s{t}, s{sWG}, 5
    s_add_u32 s{t}, s{t}, {WS_FL}
    s_lshl_b32 s{t+1}, s{sWG}, 7
    s_add_u32 s{t+1}, s{t+1}, {L_FG}
    s_add_u32 s{t+2}, s{t+1}, {LSTRIDE}
    v_lshlrev_b32 v236, 2, v0
    v_mov_b32 v237, 0
    s_mov_b64 exec, 0xff
    buffer_store_dword v237, v236, {WSR}, s{t} offen sc1
    s_mov_b64 exec, 0x3ff
    buffer_store_dword v237, v236, {WSR}, s{t+1} offen sc1
    buffer_store_dword v237, v236, {WSR}, s{t+2} offen sc1
    s_mov_b64 exec, -1
    """)

def nonce_issue(a, v2, v3):
    a(f"v_mov_b32 v{v3}, 0\nglobal_load_dword v{v2}, v{v3}, s[{P_DBG}:{P_DBG+1}] sc1")
def nonce_get(a, v1, v2, v3, cnt=0):
    t = T + 14
    lp = a.uid("non"); ok = a.uid("nonok")
    a(f"s_mov_b32 s{t+6}, 0\nv_mov_b32 v{v3}, 0\ns_lshl_b32 s{t+4}, s{sWG}, 7\ns_add_u32 s{t+4}, s{t+4}, {L_FG}\ns_waitcnt vmcnt({cnt})\ns_branch {lp}c")
    a.label(lp)
    a(f"global_load_dword v{v2}, v{v3}, s[{P_DBG}:{P_DBG+1}] sc1\ns_waitcnt vmcnt(0)")
    a.label(lp + "c")
    a(f"""
    v_cmp_eq_u32 vcc, 0, v{v2}
    s_cbranch_vccz {ok}
    s_sleep 4
    s_add_u32 s{t+6}, s{t+6}, 1
    s_cmp_lt_u32 s{t+6}, {SPIN}
    s_cbranch_scc1 {lp}
    s_mov_b32 s{sTMO}, {SPIN}
    """)
    a.label(ok)
    a(f"""
    v_readfirstlane_b32 s{sEP}, v{v2}
    s_getreg_b32 s{t+6}, hwreg(HW_REG_XCC_ID, 0, 4)
    v_mov_b32 v{v1}, {Q1_NON}
    ds_write_b32 v{v1}, v{v2}
    v_add_u32 v{v2}, s{t+6}, v{v2}
    s_mov_b64 exec, 1
    buffer_store_dword v{v2}, v{v3}, {WSR}, s{t+4} offen offset:32 sc1
    s_mov_b64 exec, -1
    s_waitcnt lgkmcnt(0)
    """)

def census(a, va, vt, issue, cnt=0):
    t = T + 20
    a(f"""
    v_and_b32 v{va}, 31, v0
    v_lshlrev_b32 v{va}, 7, v{va}
    s_lshl_b32 s{t}, s{sG}, 12
    s_add_u32 s{t}, s{t}, {L_FG + 32}
    """)
    if issue:
        a(f"buffer_load_dword v{vt}, v{va}, {WSR}, s{t} offen sc1")
        return
    poll(a, va, vt, f"s{t}", f"s{sEP}", sleep=4, pre=cnt)
    a(f"""
    s_getreg_b32 s{t}, hwreg(HW_REG_XCC_ID, 0, 4)
    v_cmp_ne_u32 vcc, s{t}, v{vt}
    s_cmp_eq_u64 vcc, 0
    s_cselect_b32 s{t}, 1, 0
    v_mov_b32 v{va}, {Q1_NON}
    v_mov_b32 v{vt}, s{t}
    ds_write_b32 v{va}, v{vt} offset:4
    s_waitcnt lgkmcnt(0)
    """)

sMODE = 14 - 14 + 98
def read_nonce_mode(a):
    a(f"v_mov_b32 v1, {Q1_NON}\nds_read_b64 v[2:3], v1\ns_waitcnt lgkmcnt(0)\nv_readfirstlane_b32 s{sEP}, v2\nv_readfirstlane_b32 s{sMODE}, v3")

def qkv_ids(a, t):
    a(f"s_lshr_b32 s{t}, s{sWG}, 4\ns_and_b32 s{t+1}, s{sR}, 15")

def qkv_compute(a, first, SB):
    t = T
    sRT, sCT, sTY, sC0 = t, t+1, t+2, t+3
    LQ = 0 if first else LSTRIDE
    sWM, sWN = t+5, t+6
    a(f"""
    s_mul_i32 s{sTY}, s{sCT}, 52
    s_lshr_b32 s{sTY}, s{sTY}, 8
    s_mul_i32 s{sC0}, s{sTY}, 5
    s_sub_u32 s{sC0}, s{sCT}, s{sC0}
    s_lshl_b32 s{sC0}, s{sC0}, 7
    s_and_b32 s{sWM}, s{sW}, 1
    s_lshr_b32 s{sWN}, s{sW}, 1
    v_lshrrev_b32 v14, 5, v0
    v_and_b32 v15, 31, v0
    """)
    ACC = 128; FR = 16; VST = 80; VCS = 96; VCV = 192; ONE = 196; AD = 200; MS = 244
    sCS = t+15
    a(f"s_lshl_b32 s{sCS}, s{sWG}, 9\ns_lshl_b32 s{t+7}, s{sWN}, 8\ns_add_u32 s{sCS}, s{sCS}, s{t+7}\ns_add_u32 s{sCS}, s{sCS}, {WS_CSQ}")
    a(f"v_lshlrev_b32 v{AD+8}, 5, v14\nv_lshlrev_b32 v{AD+9}, 2, v15")
    if first:
        a(f"""
        s_lshl_b32 s{t+7}, s{sWM}, 13
        v_lshlrev_b32 v1, 7, v15
        v_add_u32 v1, s{t+7}, v1
        v_bfe_u32 v8, v0, 1, 3
        v_xor_b32 v8, v8, v14
        """)
        for kk in range(4):
            a(f"v_xor_b32 v9, {2*kk}, v8\nv_lshl_add_u32 v{2+kk}, v9, 4, v1")
    else:
        a(f"s_lshl_b32 s{t+7}, s{sWM}, 13\nv_lshlrev_b32 v2, 4, v0\nv_add_u32 v2, s{t+7}, v2")
    a(f"""
    v_and_b32 v10, 3, v0
    v_and_b32 v11, 1, v0
    v_bfe_u32 v12, v0, 1, 1
    v_lshl_add_u32 v11, v11, 1, v12
    s_cmp_eq_u32 s{sTY}, 2
    s_cselect_b64 vcc, -1, 0
    v_cndmask_b32 v10, v11, v10, vcc
    v_bfe_u32 v8, v0, 2, 2
    v_lshl_add_u32 v9, v14, 3, v8
    v_lshlrev_b32 v9, 8, v9
    v_lshl_add_u32 v9, v10, 3, v9
    v_bfe_u32 v10, v0, 4, 1
    v_lshl_add_u32 v9, v10, 5, v9
    s_lshl_b32 s{t+7}, s{sWN}, 1
    v_xor_b32 v8, s{t+7}, v8
    v_lshl_add_u32 v6, v8, 6, v9
    v_xor_b32 v8, 1, v8
    v_lshl_add_u32 v7, v8, 6, v9
    """)
    nxa = 4 if first else 1
    W0 = 16384 if first else qkW(0)
    if first:
        for i in range(nxa): a(f"v_mov_b32 v{8+i}, v{2+i}")
        for i in (4, 5): a(f"v_add_u32 v{8+i}, {W0}, v{2+i}")
    else:
        for i in range(4): a(f"v_add_u32 v{8+i}, {WB + 49152*(i >> 1)}, v{6 + (i & 1)}")
    VM, VR = (32, 64) if first else (96, 212)
    for i in range(0, 64, 2): a(f"v_mov_b64 v[{ACC+i}:{ACC+i+1}], 0")
    def reads(kk):
        b = FR + 16*kk; r = []
        for tm in range(2):
            if first: r.append(f"ds_read_b128 v[{b+4*tm}:{b+4*tm+3}], v{8+kk} offset:{4096*tm}")
            else: r.append(f"ds_read_b128 v[{b+4*tm}:{b+4*tm+3}], v8 offset:{4096*tm+1024*kk}")
        for tn in range(2):
            for j in range(2):
                d = b + 8 + 4*tn + 2*j
                r.append(f"ds_read_b64_tr_b16 v[{d}:{d+1}], v{12+tn} offset:{4096*kk+1024*j}")
        return r
    def mfmas(kk, vtype, tns=(0, 1)):
        b = FR + 16*kk; m = []
        for tn in tns:
            W = v(b + 8 + 4*tn, 4)
            for tm in range(2):
                c = ACC + 16*(2*tn + tm)
                X = v(b + 4*tm, 4)
                A, B = (X, W) if vtype else (W, X)
                m.append(f"v_mfma_f32_32x32x16_bf16 {v(c,16)}, {A}, {B}, {v(c,16)}")
        return m
    sC, sSa, sSw, sMk, sDst, sD1 = t+9, t+10, t+4, t+11, t+12, 96
    qloc = C.qloc and SB == '' and not first
    vlab = a.uid("qkv_v"); fin = a.uid("qkv_fin"); done = a.uid("qkv_cdone")
    a(f"s_mov_b32 s{sC}, {10 if first else 9}\ns_mov_b32 s{sSa}, 0\ns_mov_b32 s{sSw}, {W0}")
    a(f"s_cmp_eq_u32 s{sTY}, 2\ns_cbranch_scc1 {vlab}")
    def v_tab_reads(roff):
        a(f"v_lshlrev_b32 v1, 4, v14\nv_add_u32 v1, s{t+7}, v1")
        for tm in range(2):
            for q in range(4):
                a(f"ds_read_b128 v[{VM+16*tm+4*q}:{VM+16*tm+4*q+3}], v1 offset:{(32*tm+8*q)*4}")
                a(f"ds_read_b128 v[{VR+16*tm+4*q}:{VR+16*tm+4*q+3}], v1 offset:{roff+(32*tm+8*q)*4}")
    hooks = []
    def mainloop(vtype, epi, alt=None):
        lp = a.uid("qkv_loop"); hk = a.uid("qkv_hk"); hb = a.uid("qkv_hb"); ent = a.uid("qkv_ent")
        if first: xstat_fin(a)
        stamp(a, 1 if first else 18)
        if not first:
            def rd(c, kk):
                b = FR + 16*kk; r = []
                for tm in range(2):
                    r.append(f"ds_read_b128 v[{b+4*tm}:{b+4*tm+3}], v2 offset:{(c % 4)*16384+4096*tm+1024*kk}")
                o = qkW(c) - WB
                for tn in range(2):
                    for j in range(2):
                        d = b + 8 + 4*tn + 2*j
                        r.append(f"ds_read_b64_tr_b16 v[{d}:{d+1}], v{8 + 2*(o // 49152) + tn} offset:{o % 49152 + 4096*kk+1024*j}")
                return r
            mf = lambda kk, tl: mfmas(kk, vtype, (tl >> 1,))[tl & 1]
            a(f"""
            s_lshl_b32 s{sC}, s{sRT}, 1
            s_add_u32 s{sC}, s{sC}, s{sWM}
            s_lshl_b32 s{sC}, s{sC}, 12
            s_add_u32 s{sC}, s{sC}, {L_ST2}
            v_lshlrev_b32 v3, 4, v0
            """)
            ins = {}
            for i in range(4): ins[28 + 2*i] = [f"buffer_load_dwordx4 v[{VST+4*i}:{VST+4*i+3}], v3, {WSR}, s{sC} offen offset:{1024*i} sc1"]
            b = Asm(); b("s_waitcnt vmcnt(0)"); row_stats(b, VST, MS, MS + 1)
            if vtype:
                b(f"v_sub_f32 v{VCV}, 0, v{VCV}\nv_sub_f32 v{VCV+2}, 0, v{VCV+2}")
                a(f"s_lshl_b32 s{t+7}, s{sW}, 9\ns_add_u32 s{t+7}, s{t+7}, {qkW(4)}\nv_lshlrev_b32 v4, 2, v0\nv_add_u32 v4, s{t+7}, v4\nv_lshlrev_b32 v5, 4, v14\nv_add_u32 v5, s{t+7}, v5")
                ins[77] = [f"ds_write_b32 v4, v{MS}", f"ds_write_b32 v4, v{MS+1} offset:256"]
                for tm in range(2):
                    for q in range(4):
                        ins[77].append(f"ds_read_b128 v[{VM+16*tm+4*q}:{VM+16*tm+4*q+3}], v5 offset:{(32*tm+8*q)*4}")
                        ins.setdefault(120, []).append(f"ds_read_b128 v[{VR+16*tm+4*q}:{VR+16*tm+4*q+3}], v5 offset:{256+(32*tm+8*q)*4}")
                fix = lambda tl: [f"v_fmac_f32 v{ACC+16*tl+i}, v{VCV+2*(tl>>1)}, v{VM+16*(tl&1)+i}" for i in range(16)]
                ff = 92
            else:
                qk_stats_fin(b)
                fix = lambda tl: [f"v_fmac_f32 v{ACC+16*tl+i}, v{MS+4*(tl&1)}, v{VCS+16*(tl>>1)+i}" for i in range(16)]
                ff = 80
            ins = dict(sorted({**ins, 56: b.lines}.items()))
            gemm_unrolled(a, 10, 4, 6, rd, mf, [(0, 1), (2, 3)], ins, fix, ff, epi, 19, alt)
            return
        a("s_barrier")
        for x in reads(0) + reads(1): a(x)
        a(f"s_branch {ent}")
        a.label(lp)
        a("s_barrier")
        interleave(a, mfmas(3, vtype), reads(0) + reads(1))
        a.label(ent)
        a("s_waitcnt lgkmcnt(6)")
        interleave(a, mfmas(0, vtype), reads(2))
        a("s_waitcnt lgkmcnt(6)")
        interleave(a, mfmas(1, vtype), reads(3))
        a("s_waitcnt lgkmcnt(6)")
        if first:
            upd = [f"s_add_u32 s{sSa}, s{sSa}, 32768", f"s_and_b32 s{sSa}, s{sSa}, 0x1ffff", f"s_add_u32 s{sSw}, s{sSa}, 16384"]
        else:
            upd = [f"s_add_u32 s{sSa}, s{sSa}, 16384", f"s_and_b32 s{sSa}, s{sSa}, 0xffff",
                   f"s_add_u32 s{sSw}, s{sSw}, 16384", f"s_cmp_eq_u32 s{sSw}, 163840", f"s_cselect_b32 s{sSw}, {WB}, s{sSw}"]
        upd += [f"v_add_u32 v{8+i}, s{sSa}, v{2+i}" for i in range(nxa)] + [f"v_add_u32 v{12+i}, s{sSw}, v{6+i}" for i in range(2)] + [f"s_sub_u32 s{sC}, s{sC}, 1"]
        interleave(a, mfmas(2, vtype), upd)
        a(f"s_waitcnt lgkmcnt(0)")
        a(f"s_bitcmp1_b32 {HMASK1 if first else HMASK2}, s{sC}\ns_cbranch_scc1 {hk}")
        a.label(hb)
        a(f"s_cmp_lg_u32 s{sC}, 0\ns_cbranch_scc1 {lp}")
        hooks.append((hk, hb, vtype))
        b = Asm(); b("s_waitcnt vmcnt(0)"); row_stats(b, VST, MS, MS + 1)
        interleave(a, mfmas(3, vtype), b.lines)
        if vtype:
            a(f"""
            s_lshl_b32 s{t+7}, s{sW}, 9
            s_add_u32 s{t+7}, s{t+7}, {Q1_TAB}
            v_lshlrev_b32 v1, 2, v0
            v_add_u32 v1, s{t+7}, v1
            ds_write_b32 v1, v{MS}
            ds_write_b32 v1, v{MS+1} offset:256
            """)
            v_tab_reads(256)
        else: qk_stats_fin(a)
        a(f"s_lshl_b32 s{t+7}, s{sWN}, 8\ns_add_u32 s{t+7}, s{t+7}, {Q1_CS}\nv_add_u32 v4, s{t+7}, v{AD+9 if vtype else AD+8}")
        a("s_barrier")
        stamp(a, 2)
        for tn in range(2):
            if vtype: a(f"ds_read_b32 v{VCV+2*tn}, v4 offset:{128*tn}")
            else:
                for q in range(4):
                    r = VCS + 16*tn + 4*q
                    a(f"ds_read_b128 v[{r}:{r+3}], v4 offset:{(32*tn+16*(q>>1)+4*(q&1))*4}")
        read_nonce_mode(a)
        if vtype: a(f"v_sub_f32 v{VCV}, 0, v{VCV}\nv_sub_f32 v{VCV+2}, 0, v{VCV+2}")
        for x in epi(0) + epi(1): a(x)
    HMASK1 = (1 << 8) | (1 << 2)
    HMASK2 = (1 << 5) | (1 << 2)
    if not first:
        for tn in range(2):
            for q in range(4):
                r = VCS + 16*tn + 4*q
                a(f"buffer_load_dwordx4 v[{r}:{r+3}], v{AD+8}, {WSR}, s{sCS} offen offset:{(32*tn+16*(q>>1)+4*(q&1))*4} sc1")
    a(f"""
    s_mul_i32 s{sDst}, s{sTY}, {ACT}
    s_lshl_b32 s{t+8}, s{sRT}, 2
    s_lshl_b32 s{t+7}, s{sWM}, 1
    s_add_u32 s{t+8}, s{t+8}, s{t+7}
    s_mul_i32 s{t+8}, s{t+8}, 1280
    s_add_u32 s{sDst}, s{sDst}, s{t+8}
    s_add_u32 s{sDst}, s{sDst}, {LQ}
    s_lshr_b32 s{t+8}, s{sC0}, 3
    s_lshl_b32 s{t+7}, s{sWN}, 3
    s_add_u32 s{t+8}, s{t+8}, s{t+7}
    v_add_u32 v80, s{t+8}, v14
    s_mov_b32 s{t+13}, {HEADB}
    v_mov_b32 v86, 0x7fffffff
    s_mov_b32 s{sMk}, 0
    s_add_u32 s{sD1}, s{sDst}, 1280
    """)
    if qloc:
        a(f"""
        s_lshl_b32 s{t+8}, s{sRT}, 1
        s_add_u32 s{t+8}, s{t+8}, s{sWM}
        s_mul_i32 s{t+8}, s{t+8}, {2*F*64}
        s_add_u32 s{t+8}, s{t+8}, {L_H + 57344}
        s_add_u32 s{t+7}, s{t+8}, {F*64}
        s_cmp_eq_u32 s{sTY}, 0
        s_cselect_b32 s{sDst}, s{t+8}, s{sDst}
        s_cselect_b32 s{sD1}, s{t+7}, s{sD1}
        s_cselect_b32 s{t+13}, 1280, s{t+13}
        """)
    a(f"s_add_u32 s{t+14}, s{sDst}, s{t+13}\ns_add_u32 s{sD1+1}, s{sD1}, s{t+13}")
    for sl in range(4):
        a(f"""
        v_add_u32 v81, {2*sl}, v80
        v_mul_u32_u24 v82, 205, v81
        v_lshrrev_b32 v82, 10, v82
        v_mad_i32_i24 v81, v82, -5, v81
        v_cmp_lt_u32 vcc, 2, v81
        v_lshlrev_b32 v82, 1, v82
        v_add_u32 v83, -3, v81
        v_cndmask_b32 v83, v81, v83, vcc
        v_addc_co_u32 v82, vcc, 0, v82, vcc
        v_lshlrev_b32 v83, 9, v83
        v_lshl_add_u32 v83, v15, 4, v83
        v_lshlrev_b32 v85, 3, v15
        v_add_u32 v85, 1024, v85
        v_cmp_eq_u32 vcc, 2, v81
        v_mul_lo_u32 v84, v82, s{t+13}
        s_cmp_lg_u64 vcc, 0
        v_cndmask_b32 v83, v83, v86, vcc
        v_cndmask_b32 v85, v86, v85, vcc
        s_cselect_b32 s{t+7}, {1 << sl}, 0
        s_or_b32 s{sMk}, s{sMk}, s{t+7}
        v_add_u32 v{AD+sl}, v83, v84
        v_add_u32 v{AD+4+sl}, v85, v84
        """)
    def qk_stats_fin(a):
        a(f"""
        s_cmp_eq_u32 s{sTY}, 0
        s_cselect_b32 s{t+7}, {f32(QSCALE)}, 1.0
        v_mul_f32 v{MS+2}, s{t+7}, v{MS+1}
        v_mul_f32 v{MS+6}, s{t+7}, v{MS+1}
        v_sub_f32 v{MS+4}, 0, v{MS}
        v_sub_f32 v{MS}, 0, v{MS}
        s_nop 1
        v_permlane32_swap_b32 v{MS}, v{MS+4}
        v_permlane32_swap_b32 v{MS+2}, v{MS+6}
        s_nop 1
        """)
    def epi_qk(tn, pk=True, bits='sc1'):
        r = []
        for tm in range(2):
            c = ACC + 16*(2*tn + tm); cs = VCS + 16*tn; m = MS + 4*tm
            for p in range(2):
                if pk:
                    for i in range(8*p, 8*p + 8, 2):
                        if first: r.append(f"v_pk_fma_f32 v[{c+i}:{c+i+1}], v[{cs+i}:{cs+i+1}], v[{m}:{m+1}], v[{c+i}:{c+i+1}] op_sel_hi:[1,0,1]")
                    for i in range(8*p, 8*p + 8, 2):
                        r.append(f"v_pk_mul_f32 v[{c+i}:{c+i+1}], v[{c+i}:{c+i+1}], v[{m+2}:{m+3}] op_sel_hi:[1,0]")
                else:
                    for i in range(8*p, 8*p + 8): r.append(f"v_mul_f32 v{c+i}, v{m+2}, v{c+i}")
                for i in range(4):
                    r.append(f"v_cvt_pk_bf16_f32 v{c+8*p+i}, v{c+8*p+2*i}, v{c+8*p+2*i+1}")
                r.append(f"buffer_store_dwordx4 v[{c+8*p}:{c+8*p+3}], v{AD+2*tn+p}, {WSR}, s{sD1 if tm else sDst} offen {bits}")
        return r
    def bparts(bits):
        for sl in range(4):
            sk = a.uid("qk_b")
            a(f"s_bitcmp0_b32 s{sMk}, {sl}\ns_cbranch_scc1 {sk}")
            for tm in range(2):
                o = ACC + 16*(2*(sl >> 1) + tm) + 8*(sl & 1)
                a(f"buffer_store_dwordx2 v[{o}:{o+1}], v{AD+4+sl}, {WSR}, s{sD1 if tm else sDst} offen {bits}")
                a(f"buffer_store_dwordx2 v[{o+2}:{o+3}], v{AD+4+sl}, {WSR}, s{sD1+1 if tm else t+14} offen {bits}")
            a.label(sk)
        a(f"s_branch {fin}")
    if qloc: mainloop(False, epi_qk, (f"s_cmp_eq_u32 s{sTY}, 0", lambda tn, pk: epi_qk(tn, pk, ""), lambda: bparts("sc1"), lambda: bparts("")))
    else:
        mainloop(False, epi_qk); bparts("sc1")
    a.label(vlab)
    if not first:
        for tn in range(2):
            a(f"buffer_load_dword v{VCV+2*tn}, v{AD+9}, {WSR}, s{sCS} offen offset:{128*tn} sc1")
    a(f"""
    s_lshl_b32 s{t+8}, s{sRT}, 3
    s_lshl_b32 s{t+7}, s{sWM}, 2
    s_add_u32 s{t+8}, s{t+8}, s{t+7}
    s_mul_i32 s{sDst}, s{t+8}, 640
    s_add_u32 s{sDst}, s{sDst}, {L_V + LQ}
    s_lshl_b32 s{t+7}, s{sWN}, 6
    s_add_u32 s{t+8}, s{sC0}, s{t+7}
    v_add_u32 v80, s{t+8}, v15
    v_mul_u32_u24 v81, 320, v14
    s_mov_b32 s{t+13}, {HEADB}
    s_movk_i32 s{t+14}, 3277
    s_movk_i32 s{t+7}, -20
    """)
    for tn in range(2):
        a(f"""
        v_add_u32 v83, {32*tn}, v80
        v_mul_u32_u24 v84, s{t+14}, v83
        v_lshrrev_b32 v84, 16, v84
        v_mad_i32_i24 v83, v84, s{t+7}, v83
        v_lshl_add_u32 v83, v83, 4, v81
        v_mul_lo_u32 v85, v84, s{t+13}
        v_add_u32 v{AD+tn}, v83, v85
        """)
    def epi_v(tn, pk=True):
        r = []
        for tm in range(2):
            c = ACC + 16*(2*tn + tm); cv = VCV + 2*tn
            for p in range(2):
                if pk:
                    for i in range(8*p, 8*p + 8, 2):
                        if first: r.append(f"v_pk_fma_f32 v[{c+i}:{c+i+1}], v[{VM+16*tm+i}:{VM+16*tm+i+1}], v[{cv}:{cv+1}], v[{c+i}:{c+i+1}] op_sel_hi:[1,0,1]")
                    for i in range(8*p, 8*p + 8, 2):
                        r.append(f"v_pk_mul_f32 v[{c+i}:{c+i+1}], v[{c+i}:{c+i+1}], v[{VR+16*tm+i}:{VR+16*tm+i+1}]")
                else:
                    for i in range(8*p, 8*p + 8): r.append(f"v_mul_f32 v{c+i}, v{VR+16*tm+i}, v{c+i}")
                for i in range(4):
                    r.append(f"v_cvt_pk_bf16_f32 v{c+8*p+i}, v{c+8*p+2*i}, v{c+8*p+2*i+1}")
                r.append(f"buffer_store_dwordx4 v[{c+8*p}:{c+8*p+3}], v{AD+tn}, {WSR}, s{sDst} offen offset:{640*(2*tm+p)} sc1")
        return r
    mainloop(True, epi_v)
    a.label(fin)
    stamp(a, 3 if first else 20)
    flag_setup(a, 1 if first else 6)
    a(f"s_lshl_b32 s{t+7}, s{sWG}, 5\ns_add_u32 s{t+7}, s{t+7}, s{sW}\ns_lshl_b32 s{t+7}, s{t+7}, 2\ns_add_u32 s{t+7}, s{t+7}, {L_FG + LQ}")
    a("s_waitcnt vmcnt(0)")
    if first:
        l1 = a.uid("q1f"); l2 = a.uid("q1g")
        a(f"s_cmp_eq_u32 s{sMODE}, 0\ns_cbranch_scc1 {l1}")
        flag_store(a, ""); a(f"s_branch {l2}")
        a.label(l1); flag_store(a, "sc1"); a.label(l2)
    else: flag_store(a, SB)
    flag_store(a, "sc1", t+7)
    a(f"s_branch {done}")
    for hk, hb, vtype in hooks:
        a.label(hk)
        if first:
            nx = a.uid("hk")
            a(f"s_cmp_lg_u32 s{sC}, 2\ns_cbranch_scc1 {nx}")
            a(f"""
            s_lshl_b32 s{t+7}, s{sRT}, 1
            s_add_u32 s{t+7}, s{t+7}, s{sWM}
            s_lshl_b32 s{t+7}, s{t+7}, 12
            s_add_u32 s{t+7}, s{t+7}, {WS_ST0}
            v_lshlrev_b32 v1, 4, v0
            """)
            for i in range(4):
                a(f"buffer_load_dwordx4 v[{VST+4*i}:{VST+4*i+3}], v1, {WSR}, s{t+7} offen offset:{1024*i} sc1")
            a(f"s_branch {hb}")
            a.label(nx)
            a("s_waitcnt vmcnt(0)")
        a(f"s_branch {hb}")
    a.label(done)

def qkvW_setup(a, sWo, sLW, sCT, sTmp, vW):
    a(f"""
    v_lshrrev_b32 v2, 4, v0
    v_mul_u32_u24 v1, 3840, v2
    v_lshlrev_b32 v7, 2, v2
    v_and_b32 v3, 15, v0
    v_xor_b32 v3, v3, v7
    v_lshl_add_u32 v{vW}, v3, 4, v1
    s_mul_i32 s{sWo}, s{sLW}, {16*3840}
    s_lshl_b32 s{sTmp}, s{sCT}, 8
    s_add_u32 s{sWo}, s{sWo}, s{sTmp}
    """)

def qkv1_loader(a):
    t = T
    sRT, sCT = t, t+1
    sLW, sAo, sWo, sM, sTmp, sRot, sThr, sA1, sW1, sSel = t+2, t+3, t+4, t+5, t+6, t+8, t+9, t+10, t+11, t+12
    a(f"s_sub_u32 s{sLW}, s{sW}, 4")
    qkvW_setup(a, sWo, sLW, sCT, sTmp, 6)
    a(f"""
    s_lshl_b32 s{sM}, s{sLW}, 12
    s_lshl_b32 s{sAo}, s{sRT}, 2
    s_add_u32 s{sAo}, s{sAo}, s{sLW}
    s_mul_i32 s{sAo}, s{sAo}, {32*1280}
    v_lshrrev_b32 v1, 3, v0
    v_mul_u32_u24 v1, 1280, v1
    v_and_b32 v3, 7, v0
    v_xor_b32 v3, v3, v2
    v_lshl_add_u32 v4, v3, 4, v1
    v_xor_b32 v3, 4, v3
    v_lshl_add_u32 v5, v3, 4, v1
    s_lshr_b32 s{sRot}, s{sR}, 4
    s_mul_i32 s{sRot}, s{sRot}, 5
    s_add_u32 s{sRot}, s{sRot}, s{sCT}
    s_add_u32 s{sRot}, s{sRot}, s{sG}
    s_mul_i32 s{sTmp}, s{sRot}, 26
    s_lshr_b32 s{sTmp}, s{sTmp}, 8
    s_mul_i32 s{sTmp}, s{sTmp}, 10
    s_sub_u32 s{sRot}, s{sRot}, s{sTmp}
    """)
    if not C.rot: a(f"s_mov_b32 s{sRot}, 0")
    if C.rot == 2: a(f"s_lshr_b32 s{sRot}, s{sR}, 4\ns_mul_i32 s{sRot}, s{sRot}, 5")
    a(f"s_sub_u32 s{sThr}, 10, s{sRot}")
    SA = Src(sAo, sA1, sThr, 128); SW = Src(sWo, sW1, sThr, 64*3840)
    SA.setup(a, sRot, 10, sTmp); SW.setup(a, sRot, 10, sTmp)
    a("s_waitcnt lgkmcnt(0)")
    srd(a, R_X, P_X, ACT)
    srd(a, R_WQ, P_WQKV, D*3*D*2)
    def emitA(c, i0, k):
        SA.sel(a, c, sSel)
        for i in range(i0, i0 + k):
            a(f"s_add_u32 m0, s{sM}, {(c % 4)*32768 + 1024*i}\ns_add_u32 s{sTmp}, s{sSel}, {c*128 + i*8*1280}")
            a(f"buffer_load_dwordx4 v{4 + (i & 1)}, {R(R_X)}, s{sTmp} offen lds")
    def emitW(c, i0, k):
        SW.sel(a, c, sSel)
        for i in range(i0, i0 + k):
            a(f"s_add_u32 m0, s{sM}, {16384 + (c % 4)*32768 + 1024*i}\ns_add_u32 s{sTmp}, s{sSel}, {c*64*3840 + i*4*3840}")
            a(f"buffer_load_dwordx4 v6, {R(R_WQ)}, s{sTmp} offen lds")
    LD = Loader(a); mark = [0]
    def xstats(c):
        if c == 0:
            other_srds(a)
            a(f"""
            v_bfe_u32 v8, v0, 2, 2
            v_lshrrev_b32 v9, 5, v0
            v_lshl_add_u32 v9, v9, 3, v8
            v_lshlrev_b32 v9, 8, v9
            v_and_b32 v10, 3, v0
            v_lshl_add_u32 v9, v10, 3, v9
            v_bfe_u32 v10, v0, 4, 1
            v_lshl_add_u32 v9, v10, 5, v9
            v_xor_b32 v8, s{sLW}, v8
            v_lshl_add_u32 v9, v8, 6, v9
            v_add_u32 v9, 16384, v9
            v_add_u32 v8, 65536, v9
            """)
            for i in range(4): a(f"v_mov_b32 v{12+i}, 0x3f803f80")
        for kk in range(0 if C.nocs else 4):
            for j in range(2):
                a(f"ds_read_b64_tr_b16 v[{16+4*kk+2*j}:{17+4*kk+2*j}], v{9 if (c % 4) < 2 else 8} offset:{(c % 2)*32768 + 4096*kk + 1024*j}")
        a("s_waitcnt lgkmcnt(0)")
        for kk in range(0 if C.nocs else 4):
            a(f"v_mfma_f32_32x32x16_bf16 v[32:47], v[12:15], v[{16+4*kk}:{19+4*kk}], {'v[32:47]' if (c or kk) else 0}")
        n = LD.total - mark[0]
        if c in (0, 4): mark[0] = LD.total
        st = {0: lambda: (flags_zero(a), nonce_issue(a, 81, 82)), 2: lambda: nonce_get(a, 80, 81, 82, n), 4: lambda: census(a, 80, 81, True), 6: lambda: census(a, 80, 81, False, n)}
        if c in st:
            l = a.uid("w7")
            a(f"s_cmp_lg_u32 s{sW}, 7\ns_cbranch_scc1 {l}")
            st[c](); a.label(l)
    if C.q1prio: a("s_setprio 2")
    stamp(a, 1)
    ph = Phase("q1", 10, 4, 4, emitA, emitW, lambda c: ((c % 4)*32768, (c % 4)*32768 + 16384), lambda c: ((c % 4)*32768 + 16384, (c % 4 + 1)*32768),
               None, C.bud_q1, after_bar=xstats, dbg=(C.dbg == 1))
    def waitfn(w):
        l1 = a.uid("pw"); l2 = a.uid("pw"); l3 = a.uid("pw")
        a(f"s_cmp_eq_u32 s{sW}, 4\ns_cbranch_scc1 {l1}\ns_cmp_eq_u32 s{sW}, 7\ns_cbranch_scc1 {l2}\ns_waitcnt vmcnt({w+5})\ns_branch {l3}")
        a.label(l1); a(f"s_waitcnt vmcnt({w+16})\ns_branch {l3}")
        a.label(l2); a(f"s_waitcnt vmcnt({w})")
        a.label(l3)
    ph.look = C.look_q1
    LD.run(ph, None)
    a(f"""
    v_and_b32 v1, 31, v0
    v_lshlrev_b32 v1, 2, v1
    s_lshl_b32 s{sTmp}, s{sLW}, 7
    v_add_u32 v1, s{sTmp}, v1
    v_add_u32 v2, {Q1_CS}, v1
    s_lshl_b32 s{sTmp}, s{sWG}, 9
    s_add_u32 s{sTmp}, s{sTmp}, {WS_CSQ}
    s_setprio 0
    s_nop 3
    ds_write_b32 v2, v32
    buffer_store_dword v32, v1, {WSR}, s{sTmp} offen
    s_waitcnt lgkmcnt(0)
    """)
    stamp(a, 2)
    a("s_barrier")
    read_nonce_mode(a)

def other_srds(a):
    srd(a, R_WS, P_WS, WS_END)
    srd(a, R_WG, P_WG, D*F*2)
    srd(a, R_WU, P_WU, D*F*2)
    srd(a, R_T, P_WS, WS_END)

def qkv1_idle(a):
    l2 = a.uid("idl"); l1 = a.uid("idl"); l3 = a.uid("idl"); l4 = a.uid("idl"); lj = a.uid("idl")
    tj = 84; K = NAME + "_kernel"
    a(f"v_lshlrev_b32 v5, 4, v0\ns_cmp_lt_u32 s{sW}, 4\ns_cbranch_scc1 {l1}")
    a(f"s_xor_b32 s{tj}, s{sW}, 7\ns_or_b32 s{tj}, s{tj}, s{T}\ns_cmp_lg_u32 s{tj}, 0\ns_cbranch_scc1 {l3}")
    nonce_put(a)
    a.label(l3)
    a(f"s_getpc_b64 s[{tj+4}:{tj+5}]")
    a.label("L_pc")
    a(f"""
    s_sub_u32 s{tj+4}, s{tj+4}, L_pc-{K}
    s_subb_u32 s{tj+5}, s{tj+5}, 0
    s_and_b32 s{tj}, s{T}, 1
    s_lshl_b32 s{tj}, s{tj}, 2
    s_add_u32 s{tj}, s{tj}, s{sW}
    s_sub_u32 s{tj}, s{tj}, 4
    s_lshl_b32 s{tj}, s{tj}, 13
    v_lshlrev_b32 v1, 7, v0
    v_add_u32 v2, s{tj}, v1
    global_load_dword v251, v2, s[{tj+4}:{tj+5}]
    """)
    a(f"s_lshl_b32 s{tj}, s{T}, 2\ns_add_u32 s{tj}, s{tj}, s{sW}\ns_add_u32 s{tj+2}, s{tj}, {60 - 4}\ns_lshl_b32 s{tj+2}, s{tj+2}, 13")
    for i in range(4):
        if C.q1pf: a(f"buffer_load_dword v251, v1, {R(R_WQ)}, s{tj+2} offen\ns_add_u32 s{tj+2}, s{tj+2}, {64*8192}")
        if i == 0: a("s_barrier")
    a(f"s_branch {l2}")
    a.label(l1)
    xstat_fin(a)
    a(f"s_cmp_lg_u32 s{sW}, 0\ns_cbranch_scc1 {l4}")
    flags_zero(a)
    a.label(l4)
    a(f"s_waitcnt vmcnt(0)\ns_barrier\ns_cmp_lg_u32 s{sW}, 0\ns_cbranch_scc1 {l2}")
    nonce_issue(a, 81, 82)
    nonce_get(a, 80, 81, 82)
    a.label(l2)
    a(f"s_mul_i32 s{tj}, s{T}, 10\ns_add_u32 s{tj+7}, s{tj}, 10\ns_add_u32 s{tj}, s{tj}, s{sW}\ns_mul_i32 s{tj+1}, s{sW}, 5120")
    a.label(lj)
    projjob_issue(a, tj, tj+1, tj)
    a("s_waitcnt vmcnt(0)")
    projjob_finish(a, tj+1, tj)
    a(f"s_add_u32 s{tj}, s{tj}, 8\ns_cmp_lt_u32 s{tj}, s{tj+7}\ns_cbranch_scc1 {lj}")
    l5 = a.uid("idl")
    a(f"s_waitcnt vmcnt(0)\ns_barrier\ns_cmp_lg_u32 s{sW}, 0\ns_cbranch_scc1 {l5}")
    a(f"""
    s_lshl_b32 s{tj}, s{sWG}, 7
    s_add_u32 s{tj}, s{tj}, {L_FG + 36}
    v_mov_b32 v1, 0
    v_mov_b32 v2, s{sEP}
    """)
    flag_store(a, "sc1", tj)
    census(a, 80, 81, True)
    census(a, 80, 81, False)
    a.label(l5)
    a("s_barrier")
    read_nonce_mode(a)

def phase_attn(a, SB, ld_label):
    fast = SB == ""
    t = T
    CH = 20480
    sQP, sKH, sSrc, sDst, sTmp, sC, sHB = t, t+1, t+2, t+3, t+4, t+5, t+8
    sEX = t+6
    sWs, sWd, sPF = t+9, t+10, t+11
    tj = 84; sJob, sScr = tj, tj + 1
    QAREA = 102400
    QA, QB = 16, 22
    NM, SS, PP, OO, KF, VF = 32, 64, 96, 112, 144, 160
    vK, vK8, vV = 2, 3, 4
    DUM = 176; XF = 177
    KVB = 'nt sc1' if C.nt_kv else 'sc1'
    stamp(a, 4)
    a(f"""
    s_and_b32 s{sQP}, s{sW}, 3
    s_lshr_b32 s{sKH}, s{sW}, 2
    v_lshlrev_b32 v5, 4, v0
    s_mul_i32 s{sHB}, s{sR}, {HEADB}
    s_add_u32 s{sHB}, s{sHB}, s{sLO}
    s_and_b32 s{sTmp}, s{sQP}, 1
    s_mul_i32 s{sSrc}, s{sTmp}, 5120
    s_mul_i32 s{sDst}, s{sTmp}, 10240
    s_lshr_b32 s{sTmp}, s{sQP}, 1
    s_mul_i32 s{sC}, s{sTmp}, 5120
    s_add_u32 s{sDst}, s{sDst}, s{sC}
    s_mul_i32 s{sC}, s{sTmp}, {ACT}
    s_add_u32 s{sSrc}, s{sSrc}, s{sC}
    s_add_u32 s{sSrc}, s{sSrc}, s{sHB}
    s_add_u32 s{sSrc}, s{sSrc}, {L_K}
    """)
    def kv_issue(j):
        GF.need(0x01010101 << j)
        a(f"s_add_u32 s{sTmp}, s{sG}, {j}\ns_and_b32 s{sTmp}, s{sTmp}, 7\ns_mul_i32 s{sTmp}, s{sTmp}, 10240\ns_add_u32 s{sTmp}, s{sTmp}, s{sSrc}")
        return lin_dma(a, 5, sTmp, 0, sDst, j * CH, 5, KVB)
    def init():
        a(f"""
        v_lshrrev_b32 v14, 5, v0
        v_and_b32 v15, 31, v0
        v_lshlrev_b32 v6, 3, v15
        s_mul_i32 s{sTmp}, s{sKH}, 10240
        v_add_u32 v{vK}, s{sTmp}, v5
        v_add_u32 v{vK8}, s{sTmp}, v6
        v_mul_u32_u24 v7, 320, v14
        v_lshl_add_u32 v7, v15, 4, v7
        v_add_u32 v{vV}, s{sTmp}, v7
        s_mov_b32 s{sEX}, 0x000fffff
        s_mov_b32 s{sEX+1}, 0x000fffff
        v_and_b32 v9, 27, v0
        v_cmp_eq_u32 vcc, 24, v9
        v_mov_b32 v8, 0x3f803f80
        s_nop 0
        v_cndmask_b32 v8, 0, v8, vcc
        v_mov_b32 v9, v8
        v_lshlrev_b32 v13, 7, v0
        v_mov_b32 v12, 0
        """)
        for i in range(0, 16, 2): a(f"v_mov_b64 v[{VF+i}:{VF+i+1}], v[8:9]")
        for i in range(0, 32, 2): a(f"v_mov_b64 v[{OO+i}:{OO+i+1}], 0")
        for i in range(0, 8, 2): a(f"v_mov_b64 v[{PP+8+i}:{PP+8+i+1}], 0")
        a(f"v_mov_b64 v[{QA+4}:{QA+5}], 0\nv_mov_b64 v[{QB+4}:{QB+5}], 0")
    init()
    l0 = a.uid("att_old"); l1 = a.uid("att_j")
    a(f"s_cmp_eq_u32 s{sKH}, 0\ns_cbranch_scc1 {l0}")
    poll_local(a, "attn", 1, va=10, vt=11)
    stamp(a, 5)
    a(f"""
    s_mul_i32 s{sC}, s{sQP}, 2560
    s_add_u32 s{sPF}, s{sC}, {QAREA}
    s_mul_i32 s{sTmp}, s{sG}, 10240
    s_add_u32 s{sTmp}, s{sTmp}, s{sC}
    s_add_u32 s{sTmp}, s{sTmp}, s{sHB}
    """)
    a(f"s_add_u32 s{sC}, s{sTmp}, 1280")
    if fast and C.qloc:
        a(f"""
        s_lshl_b32 s{sWs}, s{sG}, 2
        s_add_u32 s{sWs}, s{sWs}, s{sQP}
        s_mul_i32 s{sWs}, s{sWs}, {2*F*64}
        s_mul_i32 s{sWd}, s{sR}, 1280
        s_add_u32 s{sWs}, s{sWs}, s{sWd}
        s_add_u32 s{sWs}, s{sWs}, {L_H + 57344}
        s_add_u32 s{sWd}, s{sWs}, {F*64}
        s_cmp_lg_u32 s{sL}, 0
        s_cselect_b32 s{sTmp}, s{sWs}, s{sTmp}
        s_cselect_b32 s{sC}, s{sWd}, s{sC}
        """)
    for x, sr in ((0, sTmp), (1, sC)):
        a(f"""
        s_add_u32 m0, s{sPF}, {1280*x}
        s_mov_b64 exec, -1
        buffer_load_dwordx4 v5, {WSR}, s{sr} offen {KVB} lds
        s_mov_b64 exec, 0xffff
        buffer_load_dwordx4 v5, {WSR}, s{sr} offen offset:1024 {KVB} lds
        """)
    a("s_mov_b64 exec, -1")
    a(f"s_mul_i32 s{sTmp}, s{sG}, 10240\ns_add_u32 s{sTmp}, s{sTmp}, s{sSrc}")
    lin_dma(a, 5, sTmp, 0, sDst, 0, 2, KVB)
    if C.stage: a(f"s_waitcnt vmcnt({C.stage - 1})")
    lin_dma(a, 5, sTmp, 2048, sDst, 2048, 3, KVB)
    if C.stage != 1: a(f"s_waitcnt vmcnt(3)")
    a(f"s_branch {l1}")
    a.label(l0)
    a(f"""
    s_setprio 1
    v_add_u32 v10, s{sG}, v0
    v_and_b32 v10, 7, v10
    v_bfe_u32 v11, v0, 3, 1
    v_mul_u32_u24 v11, 19, v11
    s_mul_i32 s{sTmp}, s{sR}, 20
    v_add_u32 v11, s{sTmp}, v11
    v_lshrrev_b32 v11, 7, v11
    v_lshl_add_u32 v10, v10, 5, v11
    s_and_b32 s{sTmp}, s{sQP}, 1
    s_lshl_b32 s{sTmp}, s{sTmp}, 4
    s_lshr_b32 s{sC}, s{sQP}, 1
    s_mul_i32 s{sC}, s{sC}, 5
    s_add_u32 s{sTmp}, s{sTmp}, s{sC}
    s_add_u32 s{sTmp}, s{sTmp}, 5
    v_add_u32 v10, s{sTmp}, v10
    v_lshlrev_b32 v12, 7, v10
    v_lshrrev_b32 v11, 4, v0
    v_lshl_add_u32 v12, v11, 2, v12
    s_and_b32 s{sWs}, s{sR}, 7
    s_mul_i32 s{sWs}, s{sWs}, 102400
    s_mul_i32 s{sWd}, s{sW}, 5120
    s_add_u32 s{sWs}, s{sWs}, s{sWd}
    s_add_u32 s{sWs}, s{sWs}, {WS_WTO}
    s_add_u32 s{sGO}, s{sLO}, {L_FG}
    s_add_u32 s{sGW}, s{sEP}, 1
    """)
    def cpf(lo, hi):
        l = a.uid("cpf"); pc = a.uid("pc")
        a(f"s_or_b32 s{sC}, s{sL}, s{sW}\ns_cmp_lg_u32 s{sC}, 0\ns_cbranch_scc1 {l}\ns_getpc_b64 s[{t+12}:{t+13}]")
        a.label(pc)
        a(f"""
        s_sub_u32 s{t+12}, s{t+12}, {pc}-{NAME}_kernel
        s_subb_u32 s{t+13}, s{t+13}, 0
        s_lshl_b32 s{sC}, s{sR}, 11
        s_add_u32 s{sC}, s{sC}, {lo}-{NAME}_kernel
        v_add_u32 v{PV+2}, s{sC}, v13
        v_min_u32 v{PV+2}, {hi}-{NAME}_kernel, v{PV+2}
        s_mov_b64 exec, 0xffff
        global_load_dword v{DUM}, v{PV+2}, s[{t+12}:{t+13}]
        s_mov_b64 exec, -1
        """)
        a.label(l)
    if fast and C.cpf: cpf("L_fast", "L_fast_post")
    a.label(l1)
    GF = Gate(a, 12, PV, fold=True, sleep=2)
    a(f"""
    s_mul_i32 s{sC}, s{sQP}, 2560
    s_add_u32 s{sC}, s{sC}, {QAREA}
    v_add_u32 v10, s{sC}, v5
    v_add_u32 v11, s{sC}, v6
    s_barrier
    ds_read_b128 v[{QA}:{QA+3}], v10
    ds_read_b128 v[{QB}:{QB+3}], v10 offset:1280
    s_mov_b32 exec_hi, 0
    ds_read_b64 v[{QA+4}:{QA+5}], v11 offset:1024
    ds_read_b64 v[{QB+4}:{QB+5}], v11 offset:{1280+1024}
    s_mov_b32 exec_hi, -1
    """)
    stamp(a, 6)
    l1 = a.uid("att_ap")
    a(f"s_cmp_lg_u32 s{sKH}, 0\ns_cbranch_scc1 {l1}")
    GF.load()
    a.label(l1)
    base = [0]
    def rdK(st, c, kt):
        off = c * CH + kt * 1280 - base[0]
        assert 0 <= off and off + 1024 < 65536
        b = KF + 8*st
        return [f"ds_read_b128 v[{b}:{b+3}], v{vK} offset:{off}", f"ds_read_b64 v[{b+4}:{b+5}], v{vK8} offset:{off+1024}"]
    def rdV(st, c, kt):
        off = c * CH + 5120 + kt * 1280 - base[0]
        assert 0 <= off and off + 640 < 65536
        b = VF + 8*st
        return [f"s_mov_b64 exec, s[{sEX}:{sEX+1}]", f"ds_read_b128 v[{b}:{b+3}], v{vV} offset:{off}",
                f"ds_read_b128 v[{b+4}:{b+7}], v{vV} offset:{off+640}", f"s_mov_b64 exec, -1"]
    def qk(x, st, c=None):
        b = KF + 8*st; q = (QA, QB)[x]; sd = SS + 16*x
        cc = v(NM + 16*x, 16) if c is None else c
        return [f"v_mfma_f32_32x32x16_bf16 {v(sd,16)}, {v(b,4)}, {v(q,4)}, {cc}",
                f"v_mfma_f32_32x32x8_bf16 {v(sd,16)}, {v(b+4,2)}, {v(q+4,2)}, {v(sd,16)}"]
    def pv(x, st):
        b = VF + 8*st; p = PP + 8*x; o = OO + 16*x
        return [f"v_mfma_f32_32x32x16_bf16 {v(o,16)}, {v(b,4)}, {v(p,4)}, {v(o,16)}",
                f"v_mfma_f32_32x32x16_bf16 {v(o,16)}, {v(b+4,4)}, {v(p+4,4)}, {v(o,16)}"]
    def sm(x):
        sd = SS + 16*x; p = PP + 8*x; r = []
        for i in range(8):
            r.append(f"v_exp_f32 v{sd+2*i}, v{sd+2*i}")
            r.append(f"v_exp_f32 v{sd+2*i+1}, v{sd+2*i+1}")
            if i > 0: r.append(f"v_cvt_pk_bf16_f32 v{p+i-1}, v{sd+2*i-2}, v{sd+2*i-1}")
        r.append(f"v_cvt_pk_bf16_f32 v{p+7}, v{sd+14}, v{sd+15}")
        return r
    def setm():
        for x in range(2): a(f"v_mov_b32 v{10+x}, v{8+x}")
        a("s_nop 0")
        for x in range(2): a(f"v_permlane32_swap_b32 v{8+x}, v{10+x}")
        a("s_nop 0")
        for x in range(2): a(f"v_max_f32 v{8+x}, v{8+x}, v{10+x}")
        for x in range(2):
            a(f"v_sub_f32 v{NM+16*x}, 0, v{8+x}\nv_sub_f32 v{NM+16*x+1}, 0, v{8+x}")
            for i in range(2, 16, 2): a(f"v_mov_b64 v[{NM+16*x+i}:{NM+16*x+i+1}], v[{NM+16*x}:{NM+16*x+1}]")
    for x in rdK(0, 0, 0): a(x)
    a("s_waitcnt lgkmcnt(0)")
    m = qk(0, 0, "0") + qk(1, 0, "0")
    for i in (0, 1, 2, 3): a(m[i])
    a.nop(10)
    for x in range(2):
        sd = SS + 16*x
        a(f"v_max3_f32 v{8+x}, v{sd}, v{sd+1}, v{sd+2}")
        for i in range(3, 15, 2):
            a(f"v_max3_f32 v{8+x}, v{8+x}, v{sd+i}, v{sd+i+1}")
        a(f"v_max_f32 v{8+x}, v{8+x}, v{sd+15}")
    setm()
    for i in range(16): a(f"v_sub_f32 v{SS+i}, v{SS+i}, v8")
    l1 = a.uid("att_w0"); l2 = a.uid("att_w1")
    sDone = t + 15
    a(f"s_cmp_eq_u32 s{sKH}, 0\ns_cbranch_scc1 {l1}\ns_waitcnt vmcnt(0)\ns_barrier\ns_branch {l2}")
    a.label(l1)
    a("s_barrier")
    GF.upd()
    a(f"s_and_b32 s{sDone}, s{sNR}, 0x02020202\ns_cbranch_scc1 {l2}")
    GF.ok = 0x02020202; kv_issue(1); GF.ok = 0
    a.label(l2)
    stamp(a, 7)
    def l0only(fn):
        l = a.uid("l0")
        a(f"s_cmp_lg_u32 s{sL}, 0\ns_cbranch_scc1 {l}")
        fn(); a.label(l)
    def l2pf(i0, n):
        for i in range(i0, min(i0 + n, (C.l2pf + 3) // 4)):
            l = a.uid("pfs")
            a(f"""
            s_cmp_ge_u32 s{sW}, {C.l2pf - 4*i}
            s_cbranch_scc1 {l}
            s_lshr_b32 s{sPF}, s{sR}, 4
            s_mul_i32 s{sPF}, s{sPF}, {15 if C.rot_gu else 1}
            s_mul_i32 s{sC}, s{sW}, {1 if C.rot_gu else 2}
            s_add_u32 s{sPF}, s{sPF}, s{sC}
            s_add_u32 s{sPF}, s{sPF}, {4*i if C.rot_gu else 8*i}
            s_lshl_b32 s{sPF}, s{sPF}, 13
            s_and_b32 s{sC}, s{sR}, 15
            s_mul_i32 s{sC}, s{sC}, 245760
            s_add_u32 s{sPF}, s{sPF}, s{sC}
            s_add_u32 s{sPF}, s{sPF}, {WS_WTG}
            buffer_load_dword v{DUM}, v13, {WSR}, s{sPF} offen
            """)
            a.label(l)
    def wwo(c): lin_dma(a, 5, sWs, c*20480, sWd, c*20480, 5, 'nt' if C.nt_wo else '')
    def fp():
        a(f"""
        s_lshl_b32 s{sC}, s{sWG}, 5
        s_add_u32 s{sC}, s{sC}, s{sW}
        s_lshl_b32 s{sC}, s{sC}, 2
        s_add_u32 s{sC}, s{sC}, {L_FG + 16}
        v_mov_b32 v10, 0
        v_mov_b32 v11, s{sEP}
        s_mov_b64 exec, 1
        buffer_store_dword v11, v10, {WSR}, s{sC} offen sc1
        s_mov_b64 exec, -1
        """)
    def cs1():
        l = a.uid("cs")
        a(f"s_cmp_lg_u32 s{sW}, 3\ns_cbranch_scc1 {l}\ns_mov_b32 exec_hi, 0xffff")
        a(f"s_and_b32 s{sC}, s{sR}, 15\ns_mul_i32 s{sC}, s{sC}, 768\ns_add_u32 s{sC}, s{sC}, {WS_CSP}")
        for i in range(10):
            a(f"buffer_load_dwordx4 v[{PV+4*i}:{PV+3+4*i}], v5, {WSR}, s{sC} offen\ns_add_u32 s{sC}, s{sC}, 12288")
        a("s_mov_b32 exec_hi, -1")
        a.label(l)
    def cs2():
        l = a.uid("cs")
        a(f"s_cmp_lg_u32 s{sW}, 3\ns_cbranch_scc1 {l}\ns_mov_b32 exec_hi, 0xffff")
        for i in range(1, 10):
            a(f"v_pk_add_f32 v[{PV}:{PV+1}], v[{PV}:{PV+1}], v[{PV+4*i}:{PV+1+4*i}]\nv_pk_add_f32 v[{PV+2}:{PV+3}], v[{PV+2}:{PV+3}], v[{PV+2+4*i}:{PV+3+4*i}]")
        a(f"s_mul_i32 s{sC}, s{sWG}, 768\ns_add_u32 s{sC}, s{sC}, {WS_CSG}")
        a(f"buffer_store_dwordx4 v[{PV}:{PV+3}], v5, {WSR}, s{sC} offen\ns_mov_b32 exec_hi, -1")
        a.label(l)
    def fpw():
        a(f"s_lshl_b32 s{sC}, s{sW}, 13\ns_add_u32 s{sC}, s{sC}, {L_FG + 16}")
        poll(a, 13, PV, f"s{sC}", f"s{sEP}", sleep=2, wide=True)
    def wow():
        a(f"v_and_b32 v{PV+1}, 15, v0\nv_lshlrev_b32 v{PV+1}, 11, v{PV+1}\ns_mov_b32 s{sC}, {L_FG + 15*128 + 36}")
        poll(a, PV + 1, PV, f"s{sC}", f"s{sEP}", sleep=2)
    def l1only(fn):
        l = a.uid("l1")
        a(f"s_cmp_eq_u32 s{sL}, 0\ns_cbranch_scc1 {l}")
        fn(); a.label(l)
    def hook(j):
        if j == 1:
            kv_issue(2); kv_issue(3); a("s_waitcnt vmcnt(10)")
        elif j == 2:
            a("s_waitcnt vmcnt(5)"); l0only(lambda: prep(a, 0)); l1only(lambda: kv_issue(4))
            GF.ok &= ~(0x01010101 << 4)
        else: a("s_waitcnt vmcnt(0)")
        if j == 3: l0only(lambda: (prep(a, 1), kv_issue(4))); l1only(lambda: (kv_issue(5), kv_issue(6)))
        if j == 4:
            GF.ok &= ~(0x01010101 * 0xe0)
            l0only(lambda: (wow(), fp(), kv_issue(5), kv_issue(6))); l1only(lambda: kv_issue(7))
        if j == 5:
            GF.ok &= ~(0x01010101 * 0xe0)
            l0only(lambda: kv_issue(7))
            wwo(0); wwo(1); l1only(lambda: l2pf(0, 1))
        if j == 6:
            l0only(fpw)
            wwo(2); wwo(3)
            if fast and C.cpf: cpf("L_fast_tail", "L_fast_end")
            if fast:
                a(f"""
                s_lshl_b32 s{sPF}, s{sWG}, 1
                s_and_b32 s{sC}, s{sW}, 1
                s_add_u32 s{sPF}, s{sPF}, s{sC}
                s_mul_i32 s{sPF}, s{sPF}, 5120
                s_add_u32 s{sC}, s{sLO}, {L_O}
                s_bitcmp1_b32 s{sW}, 1
                s_cselect_b32 s{sC}, {L_X1}, s{sC}
                s_add_u32 s{sPF}, s{sPF}, s{sC}
                s_mov_b32 exec_hi, 0xff
                buffer_load_dword v{DUM}, v13, {WSR}, s{sPF} offen
                s_lshl_b32 s{sTmp}, s{sWG}, 9
                s_add_u32 s{sTmp}, s{sTmp}, s{sLO}
                s_add_u32 s{sTmp}, s{sTmp}, {L_ST1}
                s_mov_b64 exec, 15
                buffer_load_dword v{DUM}, v13, {WSR}, s{sTmp} offen
                s_mov_b64 exec, -1
                """)
            l1only(lambda: l2pf(1, 1))
        if j == 7:
            l0only(cs1)
            wwo(4)
            if fast and C.htouch == 0:
                a(f"""
                s_lshl_b32 s{sPF}, s{sWG}, 2
                s_add_u32 s{sPF}, s{sPF}, s{sQP}
                s_mul_i32 s{sPF}, s{sPF}, 6144
                s_add_u32 s{sPF}, s{sPF}, s{sLO}
                s_add_u32 s{sPF}, s{sPF}, {L_H}
                s_mov_b32 exec_hi, 0xffff
                buffer_load_dword v{DUM}, v13, {WSR}, s{sPF} offen
                s_mov_b32 exec_hi, -1
                """)
            l1only(lambda: l2pf(2, 2)); l0only(lambda: l2pf(0, C.l2pf0))
    outl = []
    for c in range(8):
        for kt in range(4):
            st = kt & 1
            last = c == 7 and kt == 3
            if c == 0 and kt == 1:
                hk = a.uid("att_hk")
                a(f"s_cmp_eq_u32 s{sKH}, 0\ns_cbranch_scc1 {hk}"); a.label(hk + "r")
                def h0():
                    l = a.uid("h0")
                    a(f"s_cmp_eq_u32 s{sDone}, 0\ns_cbranch_scc1 {l}")
                    kv_issue(1)
                    a.label(l)
                outl.append((hk, h0))
            j = c + 1 if (kt == 3 and c < 6) else (7 if (c == 7 and kt == 0) else None)
            if j:
                hk = a.uid("att_hk")
                dstamp(a, 6, 3*j)
                a(f"s_cmp_eq_u32 s{sKH}, 0\ns_cbranch_scc1 {hk}")
                if C.flip and j < 7: a("s_setprio 2")
                a.label(hk + "r")
                dstamp(a, 6, 3*j+1)
                a("s_barrier")
                dstamp(a, 6, 3*j+2)
                outl.append((hk, (lambda jj: (lambda: hook(jj)))(j)))
            if C.flip and 1 <= c < 7 and kt == C.flip - 1: a("s_setprio 1")
            val = sm(0)
            mf = qk(1, st) + pv(1, st ^ 1)
            ex = rdV(st, c, kt)
            if kt == 3 and c in (2, 5):
                base[0] += 3 * CH
                ex += [f"v_add_u32 v{r}, {3*CH}, v{r}" for r in (vK, vK8, vV)]
            if not last: ex += rdK(st ^ 1, c + (kt + 1) // 4, (kt + 1) % 4)
            a(mf[0]); [a(x) for x in ex[:4]]; [a(x) for x in val[0:6]]
            a(mf[2]); [a(x) for x in ex[4:]]; [a(x) for x in val[6:12]]
            a(mf[1]); [a(x) for x in val[12:18]]
            a(mf[3]); [a(x) for x in val[18:]]
            val = sm(1)
            a("s_waitcnt lgkmcnt(0)")
            if not last:
                mf = qk(0, st ^ 1) + pv(0, st)
                a(mf[0]); [a(x) for x in val[0:6]]
                a(mf[2]); [a(x) for x in val[6:12]]
                a(mf[1]); [a(x) for x in val[12:18]]
                a(mf[3]); [a(x) for x in val[18:]]
            else:
                mf = pv(0, st) + pv(1, st)
                a(mf[0]); [a(x) for x in val[0:6]]
                a(mf[1]); [a(x) for x in val[6:16]]
                a(mf[2]); [a(x) for x in val[16:]]
                a("s_nop 1"); a(mf[3])
    if fast: a.label("L_fast_tail")
    stamp(a, 8)
    fb = a.uid("att_fb"); comb = a.uid("att_comb"); done = a.uid("att_done"); yng = a.uid("att_y")
    XB = 102400
    a(f"""
    s_mul_i32 s{sC}, s{sQP}, 7168
    s_add_u32 s{sC}, s{sC}, {XB}
    v_add_u32 v1, s{sC}, v5
    s_lshl_b32 s{sTmp}, s{sQP}, 2
    s_add_u32 s{sTmp}, s{sTmp}, {XB + 28672}
    v_mov_b32 v{XF}, s{sTmp}
    v_lshrrev_b32 v2, 1, v5
    v_add_u32 v2, s{sC}, v2
    s_mul_i32 s{sTmp}, s{sR}, 5
    v_add_u32 v3, s{sTmp}, v14
    v_lshrrev_b32 v4, 1, v3
    v_and_b32 v3, 1, v3
    v_lshlrev_b32 v3, 3, v3
    v_lshl_add_u32 v3, v4, 9, v3
    v_lshl_add_u32 v3, v15, 4, v3
    """)
    a(f"v_mul_f32 v10, {f32(2.0**63)}, v{OO+12}")
    a(f"v_pk_mul_f32 v[12:13], v[{OO}:{OO+1}], 0")
    for i in range(2, 12, 2): a(f"v_pk_fma_f32 v[12:13], v[{OO+i}:{OO+i+1}], 0, v[12:13]")
    a(f"v_mul_f32 v11, {f32(2.0**63)}, v{OO+16+12}")
    a(f"v_pk_add_f32 v[10:11], v[10:11], v[10:11]\nv_pk_fma_f32 v[12:13], v[10:11], 0, v[12:13]")
    for i in range(0, 12, 2): a(f"v_pk_fma_f32 v[12:13], v[{OO+16+i}:{OO+16+i+1}], 0, v[12:13]")
    a(f"v_cmp_u_f32 vcc, v12, v13\ns_cbranch_vccnz {fb}")
    a.label(comb)
    a(f"s_cmp_eq_u32 s{sKH}, 0\ns_cbranch_scc1 {yng}")
    def older():
        a.label(yng)
        a(f"v_mov_b32 v{OO+13}, v8\nv_mov_b32 v{OO+16+13}, v9\nv_mov_b32 v10, s{sEP}")
        for x in range(2):
            for i in range(3):
                a(f"ds_write_b128 v1, v[{OO+16*x+4*i}:{OO+16*x+4*i+3}] offset:{3584*x+1024*i}")
            a(f"ds_write_b64 v2, v[{OO+16*x+12}:{OO+16*x+13}] offset:{3584*x+3072}")
        a(f"ds_write_b32 v{XF}, v10\ns_waitcnt vmcnt(0)")
        l0only(cs2)
        a(f"s_setprio 0")
        stamp(a, 9)
    pl = a.uid("att_x")
    a(f"s_mov_b32 s{t+12}, 0")
    a.label(pl)
    a(f"ds_read_b32 v10, v{XF}")
    for x in range(2):
        a(f"ds_read_b64 v[{76+16*x}:{77+16*x}], v2 offset:{3584*x+3072}")
    for x in range(2):
        for i in range(3):
            a(f"ds_read_b128 v[{64+16*x+4*i}:{64+16*x+4*i+3}], v1 offset:{3584*x+1024*i}")
    a(f"""
    s_lshl_b32 s{sTmp}, s{sG}, 2
    s_add_u32 s{sTmp}, s{sTmp}, s{sQP}
    s_mul_i32 s{sPF}, s{sTmp}, 81920
    s_add_u32 s{sPF}, s{sPF}, s{sLO}
    s_add_u32 s{sPF}, s{sPF}, {L_O}
    s_add_u32 s{sC}, s{sPF}, 40960
    s_waitcnt lgkmcnt(6)
    v_cmp_ne_u32 vcc, s{sEP}, v10
    s_cbranch_vccz {pl}k
    s_add_u32 s{t+12}, s{t+12}, 1
    s_cmp_lt_u32 s{t+12}, {4*SPIN}
    s_cbranch_scc1 {pl}
    """)
    a.label(pl + "k")
    for x in range(2):
        f = 16 + 4*x
        a(f"v_max_f32 v{f+2}, v{8+x}, v{77+16*x}\nv_sub_f32 v{f}, v{8+x}, v{f+2}\nv_sub_f32 v{f+1}, v{77+16*x}, v{f+2}")
    for x in range(2):
        f = 16 + 4*x
        a(f"v_exp_f32 v{f}, v{f}\nv_exp_f32 v{f+1}, v{f+1}")
    for x in range(2):
        f = 16 + 4*x
        a(f"v_mul_f32 v{f+2}, v{f}, v{OO+16*x+12}\nv_fmac_f32 v{f+2}, v{f+1}, v{76+16*x}")
    a("v_rcp_f32 v18, v18\nv_rcp_f32 v22, v22\ns_waitcnt lgkmcnt(0)")
    for x in range(2):
        f = 16 + 4*x; o = OO + 16*x
        a(f"v_mul_f32 v{f}, v{f}, v{f+2}\nv_mul_f32 v{f+2}, v{f+1}, v{f+2}")
        for i in range(0, 12, 2):
            a(f"v_pk_mul_f32 v[{o+i}:{o+i+1}], v[{o+i}:{o+i+1}], v[{f}:{f+1}] op_sel_hi:[1,0]")
        for i in range(0, 12, 2):
            a(f"v_pk_fma_f32 v[{o+i}:{o+i+1}], v[{64+16*x+i}:{65+16*x+i}], v[{f+2}:{f+3}], v[{o+i}:{o+i+1}] op_sel_hi:[1,0,1]")
        for i in range(6):
            a(f"v_cvt_pk_bf16_f32 v{o+i}, v{o+2*i}, v{o+2*i+1}")
        sd = sPF if x == 0 else sC
        a(f"""
        buffer_store_dwordx2 v[{o}:{o+1}], v3, {WSR}, s{sd} offen {SB}
        buffer_store_dwordx2 v[{o+2}:{o+3}], v3, {WSR}, s{sd} offen offset:512 {SB}
        s_mov_b32 exec_hi, 0
        buffer_store_dwordx2 v[{o+4}:{o+5}], v3, {WSR}, s{sd} offen offset:1024 {SB}
        s_mov_b32 exec_hi, -1
        """)
    flag_setup(a, 2)
    a("s_setprio 0\ns_barrier\ns_waitcnt vmcnt(0)")
    flag_store(a, SB)
    stamp(a, 9)
    a(f"s_branch {ld_label}")
    for hk, fn in outl:
        a.label(hk); fn(); a(f"s_branch {hk}r")
    older()
    def fallback():
        a.label(fb)
        sKb, sVb, sI = t+12, t+13, t+14
        def addr():
            a(f"""
            s_lshr_b32 s{sKb}, s{sI}, 2
            s_lshl_b32 s{sKb}, s{sKb}, 1
            s_add_u32 s{sKb}, s{sKb}, s{sKH}
            s_lshl_b32 s{sKb}, s{sKb}, 2
            s_and_b32 s{sVb}, s{sI}, 3
            s_add_u32 s{sKb}, s{sKb}, s{sVb}
            s_mul_i32 s{sKb}, s{sKb}, 1280
            s_add_u32 s{sKb}, s{sKb}, s{sHB}
            s_add_u32 s{sVb}, s{sKb}, {L_V}
            s_add_u32 s{sKb}, s{sKb}, {L_K}
            buffer_load_dwordx4 v[{KF}:{KF+3}], v5, {WSR}, s{sKb} offen sc1
            buffer_load_dwordx2 v[{KF+4}:{KF+5}], v6, {WSR}, s{sKb} offen offset:1024 sc1
            """)
        l1 = a.uid("att_fb1"); l2 = a.uid("att_fb2")
        a(f"s_mov_b32 s{sI}, 0\nv_mov_b32 v8, 0xff800000\nv_mov_b32 v9, 0xff800000")
        a.label(l1)
        addr()
        a("s_waitcnt vmcnt(0)")
        for x in range(2):
            for m in qk(x, 0, "0"): a(m)
        a.nop(12)
        for x in range(2):
            sd = SS + 16*x
            for i in range(0, 16, 2): a(f"v_max3_f32 v{8+x}, v{8+x}, v{sd+i}, v{sd+i+1}")
        a(f"s_add_u32 s{sI}, s{sI}, 1\ns_cmp_lt_u32 s{sI}, 32\ns_cbranch_scc1 {l1}")
        setm()
        for i in range(32): a(f"v_mov_b32 v{OO+i}, 0")
        a(f"s_mov_b32 s{sI}, 0")
        a.label(l2)
        addr()
        a(f"""
        s_mov_b64 exec, s[{sEX}:{sEX+1}]
        buffer_load_dwordx4 v[{VF}:{VF+3}], v7, {WSR}, s{sVb} offen sc1
        buffer_load_dwordx4 v[{VF+4}:{VF+7}], v7, {WSR}, s{sVb} offen offset:640 sc1
        s_mov_b64 exec, -1
        s_waitcnt vmcnt(0)
        """)
        for x in range(2):
            for m in qk(x, 0): a(m)
        a.nop(12)
        for x in range(2):
            for i in sm(x): a(i)
        a("s_nop 1")
        for x in range(2):
            for m in pv(x, 0): a(m)
        a(f"s_add_u32 s{sI}, s{sI}, 1\ns_cmp_lt_u32 s{sI}, 32\ns_cbranch_scc1 {l2}")
        a.nop(12)
        a(f"s_branch {comb}")
    return fallback

def xoff(SB, which):
    if SB == "": return (False, L_X1)
    return (True, L_X1) if which == 1 else (False, L_X2)
def add_x(a, dst, src, SB, which):
    lo, c = xoff(SB, which)
    a(f"s_add_u32 s{dst}, s{src}, {c}")
    if lo: a(f"s_add_u32 s{dst}, s{dst}, s{sLO}")

def proj_compute(a, down, SB, end_label):
    fast = SB == ""
    t = T
    K = F if down else D
    NCH = K // 128
    sRT, sCT = t, t+1
    st0 = 13 if down else 10
    sF, sRM, sST, sA, sA1, sThr, sSel = t+4, t+5, t+12, t+2, t+3, t+9, t+10
    NWS = 3 if down else C.wo_sets
    ACC = 14; RX = 34; AF = 54; WF = 134; RES = (220 if down else 54); VST = 200
    vF, vF2, vR, vR2 = 10, 11, 12, 13
    a(f"""
    s_lshr_b32 s{sRT}, s{sWG}, 3
    s_and_b32 s{sCT}, s{sR}, 7
    v_and_b32 v3, 15, v0
    v_lshrrev_b32 v7, 4, v0
    s_lshl_b32 s{t+6}, s{sRT}, 1
    s_lshr_b32 s{t+7}, s{sW}, 1
    s_add_u32 s{t+6}, s{t+6}, s{t+7}
    s_and_b32 s{t+8}, s{sW}, 1
    s_lshl_b32 s{t+8}, s{t+8}, 8
    s_mul_i32 s{sA}, s{t+6}, {K*64}
    s_add_u32 s{sA}, s{sA}, s{t+8}
    s_add_u32 s{sA}, s{sA}, s{sLO}
    s_add_u32 s{sA}, s{sA}, {L_H if down else L_O}
    s_mul_i32 s{sF}, s{t+6}, 40960
    s_mul_i32 s{t+7}, s{sCT}, 5120
    s_add_u32 s{sF}, s{sF}, s{t+7}
    s_add_u32 s{sF}, s{sF}, s{t+8}
    s_lshl_b32 s{sST}, s{sW}, 8
    s_lshl_b32 s{t+7}, s{sRT}, 12
    s_add_u32 s{sST}, s{sST}, s{t+7}
    s_add_u32 s{sST}, s{sST}, s{sLO}
    s_lshl_b32 s{sRM}, s{sRT}, 2
    s_add_u32 s{sRM}, s{sRM}, s{sW}
    s_mul_i32 s{sRM}, s{sRM}, {16*1280}
    s_mul_i32 s{t+7}, s{sCT}, 160
    s_add_u32 s{sRM}, s{sRM}, s{t+7}
    v_lshlrev_b32 v1, 4, v3
    v_lshl_add_u32 v{vF}, v7, 9, v1
    v_lshrrev_b32 v2, 5, v0
    v_lshl_add_u32 v1, v2, 9, v1
    v_and_b32 v2, 1, v7
    v_lshl_add_u32 v{vF2}, v2, 3, v1
    v_add_u32 v{vF2}, 4096, v{vF2}
    v_mul_u32_u24 v1, 1280, v3
    v_lshl_add_u32 v{vR}, v7, 4, v1
    v_lshl_add_u32 v{vR2}, v7, 3, v1
    v_add_u32 v9, 4096, v{vF}
    """)
    SA = Src(sA, sA1, sThr, 8192)
    if down:
        a(f"s_and_b32 s{t+7}, s{sRT}, 3\ns_mul_i32 s{t+7}, s{t+7}, {C.rot_dn}\ns_sub_u32 s{sThr}, 12, s{t+7}")
        SA.setup(a, t+7, 12, t+8)
    def io(store, rowmajor, rsrc, soff, reg, bits):
        op = "store" if store else "load"
        v16, v8 = (vR, vR2) if rowmajor else (vF, vF2)
        o1, o2 = (64, 128) if rowmajor else (2048, 0)
        return [f"buffer_{op}_dwordx4 v[{reg}:{reg+3}], v{v16}, {rsrc}, {soff} offen {bits}",
                f"buffer_{op}_dwordx4 v[{reg+4}:{reg+7}], v{v16}, {rsrc}, {soff} offen offset:{o1} {bits}",
                f"buffer_{op}_dwordx2 v[{reg+8}:{reg+9}], v{v8}, {rsrc}, {soff} offen offset:{o2} {bits}"]
    if down:
        add_x(a, t+7, sF, SB, 1)
        for x in io(False, False, WSR, f"s{t+7}", RES, "sc1"): a(x)
        a(f"s_add_u32 s{t+7}, s{sST}, {L_ST1}\nv_lshlrev_b32 v1, 4, v3")
        for i in range(4):
            a(f"buffer_load_dwordx4 v[{VST+4*i}:{VST+4*i+3}], v1, {WSR}, s{t+7} offen offset:{1024*i} sc1")
        if fast:
            a(f"s_lshl_b32 s{t+8}, s{sWG}, 9\ns_add_u32 s{t+8}, s{t+8}, {L_ST2}\nv_lshlrev_b32 v1, 7, v0\ns_mov_b64 exec, 15")
            a(f"buffer_load_dword v8, v1, {WSR}, s{t+8} offen\ns_mov_b64 exec, -1")
    else:
        l1 = a.uid("prj_r1"); l2 = a.uid("prj_r2")
        a(f"s_cmp_lg_u32 s{sL}, 0\ns_cbranch_scc1 {l1}")
        for x in io(False, True, R(R_X), f"s{sRM}", RES, ""): a(x)
        a(f"s_branch {l2}")
        a.label(l1)
        add_x(a, t+7, sF, SB, 2)
        for x in io(False, False, WSR, f"s{t+7}", RES, "sc1"): a(x)
        a.label(l2)
    a(f"v_lshlrev_b32 v4, 4, v0\nv_add_u32 v5, 61440, v4\nv_add_u32 v6, 122880, v4\ns_mov_b32 s{t+8}, 0xffff0000")
    def wadr(c):
        o = dnW(c) if down else c * 20480
        return 4 + o // 61440, o % 61440
    def reads(c, u):
        b = WF + 20*((4*c + u) % NWS); r, o = wadr(c)
        return [f"ds_read_b128 v[{b+4*jn}:{b+4*jn+3}], v{r} offset:{o + 5120*u + 1024*jn}" for jn in range(5)]
    NAS = 5
    def aload(c):
        r = []
        if down: r += [f"s_cmp_gt_u32 s{sThr}, {c}", f"s_cselect_b32 s{sSel}, s{sA}, s{sA1}", f"s_add_u32 s{sSel}, s{sSel}, {c*8192}"]
        else: r += [f"s_add_u32 s{sSel}, s{sA}, {c*8192}"]
        for u in range(4):
            d = AF + 16*(c % NAS) + 4*u
            r.append(f"buffer_load_dwordx4 v[{d}:{d+3}], v{vF if u < 2 else 9}, {WSR}, s{sSel} offen offset:{2048*(u & 1)} sc1")
        return r
    def mfmas(c, u, zero=False):
        b = WF + 20*((4*c + u) % NWS); x = AF + 16*(c % NAS) + 4*u
        return [f"v_mfma_f32_16x16x32_bf16 {v(ACC+4*jn,4)}, {v(b+4*jn,4)}, {v(x,4)}, {0 if zero else v(ACC+4*jn,4)}" for jn in range(5)]
    D_ = NWS - 1
    rd = lambda st_: reads(st_ // 4, st_ % 4) if st_ < 4*NCH else []
    if down: a(f"s_and_b32 s{t+7}, s{sRT}, 3\ns_mul_i32 s{t+7}, s{t+7}, {4 if C.rot_dn else 0}")
    G_ = gate_local(a, "down" if down else "wo", 4 if down else 2, 1, 2, t+7)
    def setup2():
        if not down: a("s_waitcnt vmcnt(0)")
        for i in range(10):
            a(f"v_lshlrev_b32 v{RX+2*i}, 16, v{RES+i}\nv_and_b32 v{RX+1+2*i}, s{t+8}, v{RES+i}")
        if down:
            row_stats(a, VST, VST + 2, VST + 3)
            a(f"v_mul_f32 v{VST+2}, v{VST+3}, v{VST+3}")
        a("s_barrier")
        for st_ in range(D_):
            for x in rd(st_): a(x)
    if not down: setup2()
    def al(c):
        G_.need(span(128*c, 128*c + 127, 96, 2) if down else span(128*c, 128*c + 127, 20, 1))
        if c == 0: stamp(a, st0)
        for x in aload(c): a(x)
    NPRE = C.dn_a if down else 5
    for c in range(NPRE): al(c)
    if down: setup2()
    issued = 4 * NPRE
    for c in range(NCH):
        for u in range(4):
            step = 4*c + u
            left = min(D_ - 1, 4*NCH - 1 - step)
            a(f"s_waitcnt vmcnt({issued - step - 1}) lgkmcnt({min(15, 5*left)})")
            if step == 4*NCH - 1 or (down and u == 2 and c + 1 < NCH): a("s_barrier")
            interleave(a, mfmas(c, u, step == 0), rd(step + D_))
            if u == 0 and c + NPRE < NCH:
                assert NPRE < NAS
                al(c + NPRE); issued += 4
    stamp(a, st0 + 1)
    add_x(a, t+7, sF, SB, 2 if down else 1)
    flag_setup(a, 5 if down else 3)
    for i in range(0, 20, 2):
        c = ACC + i
        if down: a(f"v_pk_fma_f32 v[{c}:{c+1}], v[{c}:{c+1}], v[{VST+2}:{VST+3}], v[{RX+i}:{RX+i+1}] op_sel_hi:[1,0,1]")
        else: a(f"v_pk_add_f32 v[{c}:{c+1}], v[{c}:{c+1}], v[{RX+i}:{RX+i+1}]")
        a(f"v_cvt_pk_bf16_f32 v{60+i//2}, v{c}, v{c+1}")
    if down:
        l1 = a.uid("prj_o1")
        a(f"s_cmp_eq_u32 s{sL}, 0\ns_cbranch_scc1 {l1}")
        srd(a, R_T, P_OUT, ACT)
        for x in io(True, True, R(R_T), f"s{sRM}", 60, ["", "sc1", "nt"][C.outb]): a(x)
        a(f"s_branch {end_label}")
        a.label(l1)
    for x in io(True, False, WSR, f"s{t+7}", 60, SB): a(x)
    a(f"v_pk_add_f32 v[72:73], v[{ACC}:{ACC+1}], v[{ACC+2}:{ACC+3}]\nv_pk_mul_f32 v[74:75], v[{ACC}:{ACC+1}], v[{ACC}:{ACC+1}]")
    a(f"v_pk_fma_f32 v[74:75], v[{ACC+2}:{ACC+3}], v[{ACC+2}:{ACC+3}], v[74:75]")
    for i in range(4, 20, 2):
        a(f"v_pk_add_f32 v[72:73], v[72:73], v[{ACC+i}:{ACC+i+1}]\nv_pk_fma_f32 v[74:75], v[{ACC+i}:{ACC+i+1}], v[{ACC+i}:{ACC+i+1}], v[74:75]")
    a(f"""
    v_add_f32 v72, v72, v73
    v_add_f32 v73, v74, v75
    s_lshr_b32 s{t+7}, s{sCT}, 1
    s_lshl_b32 s{t+7}, s{t+7}, 10
    v_permlane32_swap_b32 v72, v73
    s_and_b32 s{t+8}, s{sCT}, 1
    s_lshl_b32 s{t+8}, s{t+8}, 3
    v_add_f32 v72, v72, v73
    v_mov_b32 v73, v72
    s_add_u32 s{t+7}, s{t+7}, s{t+8}
    s_add_u32 s{t+7}, s{t+7}, s{sST}
    v_permlane16_swap_b32 v72, v73
    s_add_u32 s{t+7}, s{t+7}, {L_ST2 if down else L_ST1}
    v_lshrrev_b32 v8, 5, v0
    v_lshlrev_b32 v8, 2, v8
    v_lshl_add_u32 v8, v3, 4, v8
    v_add_f32 v72, v72, v73
    buffer_store_dword v72, v8, {WSR}, s{t+7} offen {SB}
    s_waitcnt vmcnt(0)
    """)
    flag_store(a, SB)
    a("s_barrier")
    stamp(a, st0 + 2)

def gu_compute(a, SB):
    t = T
    sRT, sCT, sWM, sWN, sTB, sF0 = t, t+1, t+2, t+3, t+4, t+6
    FR = 16; ACC = 96; VCS = 192; VST = 216; MS = 232
    a(f"""
    s_lshr_b32 s{sRT}, s{sWG}, 4
    s_and_b32 s{sCT}, s{sR}, 15
    s_and_b32 s{sWM}, s{sW}, 1
    s_lshr_b32 s{sWN}, s{sW}, 1
    s_lshl_b32 s{sTB}, s{sRT}, 1
    s_add_u32 s{sTB}, s{sTB}, s{sWM}
    s_mul_i32 s{sF0}, s{sCT}, 96
    s_mul_i32 s{t+5}, s{sWN}, 48
    s_add_u32 s{sF0}, s{sF0}, s{t+5}
    s_mul_i32 s{t+5}, s{sWG}, 768
    s_mul_i32 s{t+7}, s{sWN}, 384
    s_add_u32 s{t+5}, s{t+5}, s{t+7}
    s_add_u32 s{t+5}, s{t+5}, {WS_CSG}
    v_lshrrev_b32 v12, 4, v0
    v_lshlrev_b32 v1, 4, v12
    """)
    for f in range(6):
        a(f"buffer_load_dwordx4 v[{VCS+4*f}:{VCS+4*f+3}], v1, {WSR}, s{t+5} offen offset:{64*f} sc1")
    a(f"""
    v_and_b32 v13, 15, v0
    v_lshlrev_b32 v3, 4, v13
    v_lshl_add_u32 v3, v12, 9, v3
    s_lshl_b32 s{t+5}, s{sWM}, 13
    v_add_u32 v3, s{t+5}, v3
    v_lshlrev_b32 v11, 4, v0
    s_mul_i32 s{t+5}, s{sWN}, 6144
    s_add_u32 s{t+5}, s{t+5}, {WB}
    v_add_u32 v4, s{t+5}, v11
    v_add_u32 v5, 49152, v4
    v_lshlrev_b32 v6, 2, v13
    s_mul_i32 s{t+11}, s{sTB}, {2*F*64}
    s_lshl_b32 s{t+7}, s{sF0}, 6
    s_add_u32 s{t+11}, s{t+11}, s{t+7}
    s_add_u32 s{t+11}, s{t+11}, s{sLO}
    s_add_u32 s{t+11}, s{t+11}, {L_H}
    s_add_u32 s{t+12}, s{t+11}, {F*64}
    """)
    flag_setup(a, 4)
    def reads(c, u):
        b = FR + 40*u; o = guW(c) - WB
        ra = [f"ds_read_b128 v[{b+4*tt}:{b+4*tt+3}], v3 offset:{(c % 4)*16384 + 4096*(tt >> 1) + 256*(tt & 1) + 2048*u}" for tt in range(4)]
        rw = [f"ds_read_b128 v[{b+16+4*f}:{b+19+4*f}], v{4 + o // 49152} offset:{o % 49152 + 12288*u + 1024*f}" for f in range(6)]
        return ra + rw
    def mfma(u, tl, z):
        b = FR + 40*u; c = ACC + 4*tl
        return f"v_mfma_f32_16x16x32_bf16 {v(c,4)}, {v(b+16+4*(tl>>2),4)}, {v(b+4*(tl&3),4)}, {0 if z else v(c,4)}"
    def epi(jn, pk):
        r = []
        g = ACC + 32*jn; u_ = g + 16
        for tp in range(2):
            c = g + 8*tp; d = u_ + 8*tp
            for i in range(8): r.append(f"v_max_f32 v{c+i}, 0, v{c+i}")
            if pk:
                for i in range(0, 8, 2): r.append(f"v_pk_mul_f32 v[{c+i}:{c+i+1}], v[{c+i}:{c+i+1}], v[{d+i}:{d+i+1}]")
            else:
                for i in range(8): r.append(f"v_mul_f32 v{c+i}, v{c+i}, v{d+i}")
            for i in range(4): r.append(f"v_cvt_pk_bf16_f32 v{c+i}, v{c+2*i}, v{c+2*i+1}")
            r += ["s_nop 0", f"v_permlane16_swap_b32 v{c}, v{c+2}", f"v_permlane16_swap_b32 v{c+1}, v{c+3}"]
            r.append(f"buffer_store_dwordx4 v[{c}:{c+3}], v11, {WSR}, s{t+11+tp} offen offset:{1024*jn} {SB}")
        return r
    a(f"s_lshl_b32 s{t+5}, s{sTB}, 12\ns_add_u32 s{t+5}, s{t+5}, s{sLO}\ns_add_u32 s{t+5}, s{t+5}, {L_ST1}")
    ins = {}
    for i in range(4): ins[84 + 3*i] = [f"buffer_load_dwordx4 v[{VST+4*i}:{VST+4*i+3}], v11, {WSR}, s{t+5} offen offset:{1024*i} sc1"]
    ins[130] = ["s_waitcnt vmcnt(0)"] + [f"v_add_f32 v{VST}, v{VST}, v{VST+2*i}" for i in range(1, 8)] + \
         [f"v_mul_f32 v{MS}, {f32(-1.0/D)}, v{VST}", f"v_mul_f32 v{MS+1}, {f32(-1.0/D)}, v{VST}", "s_nop 0", f"v_permlane16_swap_b32 v{MS}, v{MS+1}",
          f"v_mov_b32 v{MS+2}, v{MS}", f"v_mov_b32 v{MS+3}, v{MS+1}", "s_nop 0", f"v_permlane32_swap_b32 v{MS}, v{MS+2}", f"v_permlane32_swap_b32 v{MS+1}, v{MS+3}"]
    fix = lambda tl: [f"v_fmac_f32 v{ACC+4*tl+i}, v{MS+(tl&3)}, v{VCS+4*(tl>>2)+i}" for i in range(4)]
    gemm16(a, 10, 24, reads, mfma, [tuple(range(8*j, 8*j+8)) for j in range(3)], ins, fix, 170, epi, 22)
    a("s_waitcnt vmcnt(0)")
    flag_store(a, SB)
    a("s_barrier")
    stamp(a, 23)

def loader_chain(a, SB, end_label, idle_label):
    t = T
    sLW, s4, s5, s6, aGU, aGU1, wGU, wGU1, wDN, wDN1, aQK, aQK1, wQK, wQK1, th10, th12, sTmp, sSel, thq = range(t, t + 19)
    sRot = sSel
    a(f"""
    s_sub_u32 s{sLW}, s{sW}, 4
    v_lshlrev_b32 v8, 4, v0
    s_mul_i32 s{s6}, s{sLW}, 6144
    s_and_b32 s{wGU}, s{sR}, 15
    s_mul_i32 s{wGU}, s{wGU}, 245760
    s_add_u32 s{wGU}, s{wGU}, s{s6}
    s_add_u32 s{wGU}, s{wGU}, {WS_WTG}
    s_lshr_b32 s{sRot}, s{sR}, 4
    s_mul_i32 s{sRot}, s{sRot}, {C.rot_gu}
    s_sub_u32 s{th10}, 10, s{sRot}
    """)
    S_aGU = Src(aGU, aGU1, th10, 4096); S_wGU = Src(wGU, wGU1, th10, 24576); S_wDN = Src(wDN, wDN1, th12, 20480)
    S_aQK = Src(aQK, aQK1, thq, 4096); S_wQK = Src(wQK, wQK1, thq, 64*3840)
    S_wGU.setup(a, sRot, 10, sTmp)
    def rest():
        a(f"""
        s_lshl_b32 s{s4}, s{sLW}, 12
        s_mul_i32 s{s5}, s{sLW}, 5120
        s_lshr_b32 s{aQK}, s{sWG}, 4
        s_lshl_b32 s{aQK}, s{aQK}, 2
        s_add_u32 s{aQK}, s{aQK}, s{sLW}
        s_mul_i32 s{aQK}, s{aQK}, 40960
        """)
        add_x(a, aGU, aQK, SB, 1)
        add_x(a, aQK, aQK, SB, 2)
        a(f"s_and_b32 s{wDN}, s{sR}, 15")
        qkvW_setup(a, wQK, sLW, wDN, sTmp, 6)
        a(f"s_sub_u32 s{sRot}, 10, s{th10}")
        S_aGU.setup(a, sRot, 10, sTmp)
        a(f"s_lshr_b32 s{sRot}, s{sR}, 4\ns_mul_i32 s{sRot}, s{sRot}, {C.rot_qk}\ns_sub_u32 s{thq}, 10, s{sRot}")
        for S_ in (S_aQK, S_wQK): S_.setup(a, sRot, 10, sTmp)
        a(f"""
        s_and_b32 s{wDN}, s{sR}, 7
        s_mul_i32 s{wDN}, s{wDN}, 245760
        s_add_u32 s{wDN}, s{wDN}, s{s5}
        s_add_u32 s{wDN}, s{wDN}, {WS_WTD}
        s_lshr_b32 s{sRot}, s{sR}, 3
        s_mul_i32 s{sRot}, s{sRot}, {C.rot_dn}
        s_sub_u32 s{th12}, 12, s{sRot}
        """)
        S_wDN.setup(a, sRot, 12, sTmp)
    G_ = [None, None]
    def lin(S_, dst, dfn, bits):
        def f(c, i0, k):
            if bits == "sc1":
                G_[0].need(span(64*c, 64*c + 63, 80, 2) if C.gran else 0xffff)
                if G_[1] is not None: stamp(a, G_[1]); G_[1] = None
            S_.sel(a, c, sSel)
            lin_dma(a, 8, sSel, c*S_.stride + 1024*i0, dst, dfn(c) + 1024*i0, k, bits)
        return f
    def pf(kind, ep, st, rot):
        def f():
            a(f"s_lshr_b32 s{sTmp}, s{sR}, 4\ns_mul_i32 s{sTmp}, s{sTmp}, {4 if rot else 0}")
            G_[0] = gate_local(a, kind, ep, 1, 2, sTmp, sleep=C.psleep); G_[1] = st
        return f
    def emitWQ(c, i0, k):
        S_wQK.sel(a, c, sSel)
        for i in range(i0, i0 + k):
            a(f"s_add_u32 m0, s{s4}, {qkW(c) + 1024*i}\ns_add_u32 s{sTmp}, s{sSel}, {c*64*3840 + i*4*3840}")
            a(f"buffer_load_dwordx4 v6, {R(R_WQ)}, s{sTmp} offen {'nt' if C.nt_qk else ''} lds")
    rA = lambda c: (c % 4) * 16384
    full = lambda c: G_[0].need(0xffff) if c == 1 else None
    reg = lambda f, sz: (lambda c: (f(c), f(c) + sz))
    gu = Phase("gu", 10, 4, 6, lin(S_aGU, s4, rA, "sc1"), lin(S_wGU, s6, guW, "nt" if C.nt_gu else ""), reg(rA, 16384), reg(guW, 24576), pf("gu", 3, 21, C.rot_gu), C.bud_gu, dbg=(C.dbg == 3), after_bar=full)
    dn = Phase("dn", 12, 0, 5, None, lin(S_wDN, s5, dnW, "nt" if C.nt_dn else ""), None, reg(dnW, 20480), None, C.bud_dn, lag=2, early=C.dn_early, dbg=(C.dbg == 4))
    qk = Phase("qk", 10, 4, 4, lin(S_aQK, s4, rA, "sc1"), emitWQ, reg(rA, 16384), reg(qkW, 16384), pf("gu", 5, 17, C.rot_qk), C.bud_qk, early=C.qk_early, dbg=(C.dbg == 2), after_bar=full)
    L = Loader(a)
    L.live["wo"] = (0, 102400)
    pn = L.pre(gu, 0, C.gu_e)
    rest()
    a("s_barrier")
    L.live.pop("wo")
    pn = L.pre(gu, pn, C.gu_e2)
    a("s_barrier"); pn = L.pre(gu, pn, C.gu_p)
    pn = L.run(gu, dn, pn); stamp(a, 22); L.end(gu); pn = L.pre(dn, pn, C.dn_e)
    a("s_barrier"); pn = L.pre(dn, pn, C.dn_p)
    def lastexit(nb):
        l = a.uid("lx"); l2 = a.uid("lx")
        a(f"s_cmp_eq_u32 s{sL}, 0\ns_cbranch_scc1 {l}\ns_waitcnt vmcnt(0)")
        if C.wb and SB == "":
            a(f"s_xor_b32 s{sTmp}, s{sW}, 4\ns_or_b32 s{sTmp}, s{sTmp}, s{sR}\ns_cmp_lg_u32 s{sTmp}, 0\ns_cbranch_scc1 {l2}\nbuffer_wbl2 sc1")
            a.label(l2)
        for _ in range(nb): a("s_barrier")
        a(f"s_branch {end_label}")
        a.label(l)
    pn = L.run(dn, qk, pn, lastexit=lastexit); stamp(a, 14); L.end(dn)
    a(f"s_cmp_lg_u32 s{sL}, 0\ns_cbranch_scc1 {end_label}")
    pn = L.pre(qk, pn, C.qk_e)
    a("s_barrier")
    a(f"s_and_b32 s{sTmp}, s{sR}, 15\ns_cmp_eq_u32 s{sTmp}, 15\ns_cbranch_scc1 {idle_label}")
    pn = L.pre(qk, pn, C.qk_p)
    L.run(qk, None, pn); stamp(a, 19); L.end(qk)

def build():
    a = Asm()
    K = NAME + "_kernel"
    t = T
    a(f".globl {K}\n.p2align 8\n.type {K},@function")
    a.label(K)
    a(f"""
    s_load_dwordx16 s[16:31], s[0:1], 0
    s_load_dwordx4 s[32:35], s[0:1], 64
    s_cmp_ge_u32 s2, 256
    s_cbranch_scc1 L_exit
    s_and_b32 s{sG}, s2, 7
    s_lshr_b32 s{sR}, s2, 3
    v_lshrrev_b32 v1, 6, v0
    v_and_b32 v0, 63, v0
    v_readfirstlane_b32 s{sW}, v1
    s_lshl_b32 s{sWG}, s{sG}, 5
    s_add_u32 s{sWG}, s{sWG}, s{sR}
    s_mov_b32 s{sL}, 0
    s_mov_b32 s{sLO}, 0
    s_mov_b32 s{sEP}, 0
    s_mov_b32 s{sTMO}, 0
    """)
    if C.stamp: a("v_mov_b32 v255, 0\nv_mov_b32 v254, 0\ns_memrealtime s[14:15]")
    stamp(a, 0)
    qkv_ids(a, t)
    a(f"s_cmp_lt_u32 s{sW}, 4\ns_cbranch_scc1 L_q1c\ns_cmp_eq_u32 s{t+1}, 15\ns_cbranch_scc1 L_q1c")
    qkv1_loader(a)
    a("s_branch L_q1done")
    a.label("L_q1c")
    a("s_waitcnt lgkmcnt(0)")
    srd(a, R_X, P_X, ACT)
    srd(a, R_WQ, P_WQKV, D*3*D*2)
    a(f"""
    s_cmp_gt_u32 s{sW}, 3
    s_cbranch_scc1 L_npf
    s_lshl_b32 s{t+8}, s{sWG}, 2
    s_add_u32 s{t+8}, s{t+8}, s{sW}
    s_mul_i32 s{t+8}, s{t+8}, 2560
    v_lshrrev_b32 v1, 5, v0
    v_mul_u32_u24 v1, 1280, v1
    v_and_b32 v2, 31, v0
    v_lshl_add_u32 v1, v2, 4, v1
    v_mov_b64 v[228:229], 0
    v_mov_b64 v[230:231], 0
    buffer_load_dwordx4 v[220:223], v1, {R(R_X)}, s{t+8} offen
    buffer_load_dwordx4 v[224:227], v1, {R(R_X)}, s{t+8} offen offset:512
    s_mov_b32 exec_lo, 0xffff
    s_mov_b32 exec_hi, 0xffff
    buffer_load_dwordx4 v[228:231], v1, {R(R_X)}, s{t+8} offen offset:1024
    s_mov_b64 exec, -1
    """)
    a.label("L_npf")
    other_srds(a)
    a(f"s_cmp_eq_u32 s{t+1}, 15\ns_cbranch_scc1 L_q1idle")
    qkv_compute(a, True, "sc1")
    a("s_branch L_q1done")
    a.label("L_q1idle")
    qkv1_idle(a)
    a.label("L_q1done")
    a(f"s_cmp_eq_u32 s{sMODE}, 0\ns_cbranch_scc1 L_slow")
    tails = []
    for nm, SB in (("fast", ""), ("slow", "sc1")):
        a.label(f"L_{nm}")
        tails.append(phase_attn(a, SB, f"L_{nm}_ld"))
        if nm == "fast": a.label("L_fast_post")
        proj_compute(a, False, SB, None)
        gu_compute(a, SB)
        proj_compute(a, True, SB, "L_end")
        qkv_ids(a, t)
        a(f"s_cmp_eq_u32 s{t+1}, 15\ns_cbranch_scc1 L_{nm}_idle")
        qkv_compute(a, False, SB)
        a(f"s_branch L_{nm}_next")
        a.label(f"L_{nm}_ld")
        loader_chain(a, SB, "L_end", f"L_{nm}_idle")
        a(f"s_branch L_{nm}_next")
        a.label(f"L_{nm}_idle")
        a("s_waitcnt vmcnt(0)\ns_barrier")
        a.label(f"L_{nm}_next")
        a(f"s_mov_b32 s{sL}, 1\ns_mov_b32 s{sLO}, {LSTRIDE}\ns_add_u32 s{sEP}, s{sEP}, 5\ns_mov_b32 s{R_WQ+2}, 0\ns_branch L_{nm}")
        if nm == "fast":
            a.label("L_end")
            a(f"""
            s_xor_b32 s{t}, s{sW}, 7
            s_or_b32 s{t}, s{t}, s2
            s_cmp_lg_u32 s{t}, 0
            s_cbranch_scc1 L_end2
            v_mov_b32 v1, 0
            s_mov_b64 exec, 1
            global_store_dword v1, v1, s[{P_DBG}:{P_DBG+1}] sc1
            s_mov_b64 exec, -1
            """)
            a.label("L_end2")
            if C.stamp:
                a("s_waitcnt vmcnt(0)")
                stamp(a, 16)
                a(f"""
                s_memrealtime s[10:11]
                s_waitcnt lgkmcnt(0)
                v_writelane_b32 v255, s14, 62
                v_writelane_b32 v255, s10, 63
                v_writelane_b32 v255, s{sTMO}, 61
                s_lshl_b32 s10, s2, 3
                s_add_u32 s10, s10, s{sW}
                s_lshl_b32 s10, s10, 8
                s_add_u32 s10, s10, {WS_STAMP}
                v_lshlrev_b32 v1, 2, v0
                v_add_u32 v1, s10, v1
                global_store_dword v1, v255, s[{P_WS}:{P_WS+1}]
                v_add_u32 v1, {1<<20}, v1
                global_store_dword v1, v254, s[{P_WS}:{P_WS+1}]
                """)
                if C.pj:
                    a(f"""
                    s_xor_b32 s{t}, s2, 8
                    s_xor_b32 s{t+1}, s{sW}, {C.pw}
                    s_or_b32 s{t}, s{t}, s{t+1}
                    s_cmp_lg_u32 s{t}, 0
                    s_cbranch_scc1 L_exit
                    v_readlane_b32 s{t+1}, v254, {C.pi}
                    v_readlane_b32 s{t+2}, v254, {C.pj % 64}
                    v_readlane_b32 s{t+3}, v254, 40
                    {f"s_mov_b32 s{t+1}, s14" if C.pi == 63 else ""}
                    s_sub_u32 s{t+1}, s{t+2}, s{t+1}
                    s_mul_i32 s{t+1}, s{t+1}, {C.pm}
                    s_add_u32 s{t+1}, s{t+1}, 1000
                    """)
                    a.label("L_probe")
                    a(f"""
                    s_memrealtime s[{t+4}:{t+5}]
                    s_waitcnt lgkmcnt(0)
                    s_sub_u32 s{t+6}, s{t+4}, s{t+3}
                    s_cmp_lt_u32 s{t+6}, s{t+1}
                    s_cbranch_scc1 L_probe
                    """)
                if C.dbgout:
                    a(f"s_xor_b32 s{t}, s2, 8\ns_or_b32 s{t}, s{t}, s{sW}\ns_cmp_lg_u32 s{t}, 0\ns_cbranch_scc1 L_exit\nv_readlane_b32 s{t+1}, v254, 0\nv_mov_b32 v1, 0")
                    for k, i in enumerate([1, 2, 7, 8, 10, 12, 23, 15, 20, 31, 32, 36, 47, 40]):
                        a(f"v_readlane_b32 s{t}, v254, {i}\ns_sub_u32 s{t}, s{t}, s{t+1}\ns_nop 1\nv_mov_b32 v2, s{t}\nglobal_store_dword v1, v2, s[{P_DBG}:{P_DBG+1}] offset:{4+4*k}")
            a.label("L_exit")
            a("s_endpgm")
            a.label("L_fast_end")
    for f in tails: f()
    hdr = open("cdna_kernels/" + NAME + ".s.ref").read().split("; Override")[0]
    hdr += "; @launch grid=(256,1,1) block=(512,1,1) lds=163840\n"
    txt = hdr + '.amdgcn_target "amdgcn-amd-amdhsa--gfx950"\n.text\n' + a.text() + f'''.section .rodata,"a"
.p2align 6
.amdhsa_kernel {K}
  .amdhsa_next_free_vgpr 256
  .amdhsa_next_free_sgpr 102
  .amdhsa_accum_offset 256
  .amdhsa_group_segment_fixed_size 0
  .amdhsa_kernarg_size 80
  .amdhsa_user_sgpr_count 2
  .amdhsa_user_sgpr_kernarg_segment_ptr 1
  .amdhsa_system_sgpr_workgroup_id_x 1
.end_amdhsa_kernel
'''
    for p in check(a.lines): print("HAZARD", p)
    return txt

if __name__ == "__main__":
    out = sys.argv[1] if len(sys.argv) > 1 else "cdna_kernels/" + NAME + ".s"
    for kv in sys.argv[2:]:
        k, _, val = kv.partition("=")
        assert hasattr(C, k), k
        setattr(C, k, int(val) if val else True)
    open(out, "w").write(build())
    print("written", out)
```

```python
import sys, math, struct
sys.path.insert(0, "gen")
from asmlib import *

NAME = "interleave_layers__softmax_full_mha__glu_gated_reglu__prompt"
S, D, F, H, DH = 2048, 640, 1536, 32, 20
ACT = S * D * 2
HEADB = 81920
L_Q = 0
L_K = L_Q + ACT
L_V = L_K + ACT
L_O = L_V + ACT
L_X1 = L_O + ACT
L_X2 = L_X1 + ACT
L_H = L_X2 + ACT
L_ST1 = L_H + S * F * 2
L_ST2 = L_ST1 + S * 64
L_FG = L_ST2 + S * 64
LSTRIDE = L_FG + 32768
WS_ST0 = LSTRIDE + L_ST2
WS_WTO = 2 * LSTRIDE
WS_WTD = WS_WTO + D * D * 2
WS_WTG = WS_WTD + F * D * 2
WS_CSP = WS_WTG + 2 * F * D * 2
WS_CSG = WS_CSP + 10 * 12288
WS_CSQ = WS_CSG + 256 * 768
WS_FL = WS_CSQ + 256 * 512
WS_END = WS_FL + 8192
WS_SIZE = 268435456
WS_STAMP = 200 << 20
QSCALE = (DH ** -0.5) * math.log2(math.e)
def f32(x): return "0x%08x" % struct.unpack("<I", struct.pack("<f", x))[0]

P_X, P_WQKV, P_WO, P_BX, P_WG, P_WU, P_WD, P_OUT, P_DBG, P_WS = 16, 18, 20, 22, 24, 26, 28, 30, 32, 34
sL, sG, sR, sW, sLO, sEP, sTMO, sWG = 3, 4, 5, 6, 7, 8, 9, 13
R_WS, R_X, R_WQ, R_WG, R_WU, R_T = 36, 40, 44, 48, 52, 56
T = 60
WSR = f"s[{R_WS}:{R_WS+3}]"
def R(r): return f"s[{r}:{r+3}]"
SPIN = 200000

class Cfg:
    stamp = False
    dbg = 0
    dbgout = 0
    pi = 0
    pj = 0
    pm = 1
    pw = 0
    look = 6
    gu_e = 12
    dn_e = 4
    qk_e = 0
    bud_gu = 10
    bud_dn = 3
    bud_qk = 6
    bud_q1 = 10
    dn_a = 3
    psleep = 1
    gran = 3
    flip = 0
    gfull = 1
    dn_a0 = 2
    wo_a0 = 2
    x_a = 0
    x_d = 0
    dn_full = 5
    wo_a = 4
    wo_nas = 5
    c0 = 1
    g16 = 1
    e16 = 3
    wb = 0
    outb = 0
    q1prio = 0
    look_q1 = 6
    nocs = 0
    qloc = 1
    stage = 1
    cpf = 1
    l2pf0 = 1
    nt_kv = 0
    nt_wo = 0
    nt_gu = 0
    nt_dn = 0
    nt_qk = 0
    htouch = 0
    warm = 0
    gu_e2 = 0
    gu_p = 0
    dn_p = 20
    qk_p = 4
    wo_sets = 6
    q1pf = 1
    l2pf = 8
    rot = 0
    x_hit = 0
    tlb = 0
    rot_gu = 0
    rot_dn = 0
    rot_qk = 0
    dn_early = 99
    qk_early = 99
C = Cfg()

def stamp(a, i):
    if not C.stamp: return
    a(f"s_memtime s[10:11]\ns_mul_i32 s12, s{sL}, 24\ns_add_u32 m0, s12, {i}\ns_waitcnt lgkmcnt(0)\nv_writelane_b32 v255, s10, m0")
    if C.dbg == 7: a(f"s_memrealtime s[10:11]\ns_waitcnt lgkmcnt(0)\nv_writelane_b32 v254, s10, m0")

def dstamp(a, d, i):
    if C.stamp and C.dbg == d: a(f"s_memtime s[10:11]\ns_lshl_b32 s12, s{sL}, 5\ns_add_u32 m0, s12, {i}\ns_waitcnt lgkmcnt(0)\nv_writelane_b32 v254, s10, m0")

def srd(a, r, ptr, size):
    a(f"s_mov_b32 s{r}, s{ptr}\ns_mov_b32 s{r+1}, s{ptr+1}\ns_mov_b32 s{r+2}, {size}\ns_mov_b32 s{r+3}, 0x20000")

def interleave(a, mf, other):
    n = len(mf); k = 0
    for i, m in enumerate(mf):
        a(m)
        tgt = (len(other) * (i + 1) + n - 1) // n
        while k < tgt:
            a(other[k]); k += 1

def poll(a, vaddr, vtmp, soff, want, sleep=0, pre=False, wide=False):
    lp = a.uid("poll"); ok = a.uid("pollok")
    cnt = T + 22
    a(f"s_mov_b32 s{cnt}, s{sTMO}")
    if pre is not False: a(f"s_waitcnt vmcnt({pre})\ns_branch {lp}c")
    a.label(lp)
    if wide: a(f"buffer_load_dwordx4 v[{vtmp}:{vtmp+3}], v{vaddr}, {WSR}, {soff} offen sc1")
    else: a(f"buffer_load_dword v{vtmp}, v{vaddr}, {WSR}, {soff} offen sc1")
    a(f"s_waitcnt vmcnt(0)")
    if pre is not False: a.label(lp + "c")
    a(f"v_subrev_u32 v{vtmp}, {want}, v{vtmp}")
    if wide:
        for i in range(1, 4): a(f"v_subrev_u32 v{vtmp+i}, {want}, v{vtmp+i}\nv_max_u32 v{vtmp}, v{vtmp}, v{vtmp+i}")
    a(f"v_cmp_lt_u32 vcc, 15, v{vtmp}")
    a(f"s_cbranch_vccz {ok}")
    if sleep: a(f"s_sleep {sleep}")
    a(f"s_add_u32 s{cnt}, s{cnt}, 1\ns_cmp_lt_u32 s{cnt}, {SPIN}\ns_cbranch_scc1 {lp}")
    a(f"s_mov_b32 s{sTMO}, {SPIN}")
    a.label(ok)

def poll_local(a, kind, ep, va=1, vt=2, sleep=0):
    t = T + 20
    if kind == "wo":
        a(f"v_and_b32 v{va}, 31, v0\nv_lshlrev_b32 v{va}, 5, v{va}\ns_lshr_b32 s{t}, s{sR}, 3\ns_lshl_b32 s{t}, s{t}, 2\ns_add_u32 s{t}, s{t}, 16")
    elif kind == "gu":
        a(f"v_lshrrev_b32 v{va}, 2, v0\nv_lshlrev_b32 v{va}, 5, v{va}\nv_and_b32 v{vt}, 3, v0\nv_lshl_add_u32 v{va}, v{vt}, 2, v{va}")
        a(f"s_lshr_b32 s{t}, s{sR}, 4\ns_lshl_b32 s{t}, s{t}, 9")
    elif kind == "down":
        a(f"v_bfe_u32 v{va}, v0, 1, 4\nv_lshlrev_b32 v{va}, 5, v{va}\nv_and_b32 v{vt}, 1, v0\nv_lshl_add_u32 v{va}, v{vt}, 3, v{va}")
        a(f"s_lshr_b32 s{t}, s{sR}, 4\ns_lshl_b32 s{t}, s{t}, 9\ns_bfe_u32 s{t+1}, s{sR}, 0x10003\ns_lshl_b32 s{t+1}, s{t+1}, 2\ns_add_u32 s{t}, s{t}, s{t+1}")
    elif kind == "attn":
        a(f"""
        v_bfe_u32 v{va}, v0, 2, 1
        v_mul_u32_u24 v{va}, 19, v{va}
        s_mul_i32 s{t}, s{sR}, 20
        v_add_u32 v{va}, s{t}, v{va}
        v_lshrrev_b32 v{va}, 7, v{va}
        v_lshrrev_b32 v{vt}, 4, v0
        v_min_u32 v{vt}, 2, v{vt}
        v_mad_u32_u24 v{va}, v{vt}, 5, v{va}
        v_bfe_u32 v{vt}, v0, 3, 1
        v_lshl_add_u32 v{va}, v{vt}, 4, v{va}
        v_lshlrev_b32 v{va}, 5, v{va}
        v_and_b32 v{vt}, 3, v0
        v_lshl_add_u32 v{va}, v{vt}, 2, v{va}
        s_mov_b32 s{t}, 0
        """)
    a(f"s_lshl_b32 s{t+1}, s{sG}, 10\ns_add_u32 s{t}, s{t}, s{t+1}\ns_add_u32 s{t}, s{t}, {WS_FL}\ns_add_u32 s{t+1}, s{sEP}, {ep}")
    poll(a, va, vt, f"s{t}", f"s{t+1}", sleep=sleep)

sNR, sGO, sGW = 92, 94, 95
class Gate:
    def __init__(self, a, va, vt, fold=False, sleep=0):
        self.a, self.va, self.vt, self.fold, self.sleep = a, va, vt, fold, sleep
        self.ok = 0
    def load(self): self.a(f"buffer_load_dword v{self.vt}, v{self.va}, {WSR}, s{sGO} offen sc1")
    def upd(self):
        self.a(f"s_waitcnt vmcnt(0)\nv_subrev_u32 v{self.vt}, s{sGW}, v{self.vt}\nv_cmp_lt_u32 s[{sNR}:{sNR+1}], 15, v{self.vt}")
        if self.fold: self.a(f"s_or_b32 s{sNR}, s{sNR}, s{sNR+1}")
    def reset(self): self.a(f"s_mov_b32 s{sNR}, -1")
    def need(self, mask):
        a = self.a
        mask &= ~self.ok
        if not mask: return
        self.ok |= mask
        lp = a.uid("gt"); cnt = T + 22
        a(f"s_and_b32 s{cnt}, s{sNR}, {hex(mask)}\ns_cbranch_scc0 {lp}k\ns_mov_b32 s{cnt}, s{sTMO}")
        a.label(lp)
        self.load(); self.upd()
        a(f"s_and_b32 s{cnt+1}, s{sNR}, {hex(mask)}\ns_cbranch_scc0 {lp}k")
        if self.sleep: a(f"s_sleep {self.sleep}")
        a(f"s_add_u32 s{cnt}, s{cnt}, 1\ns_cmp_lt_u32 s{cnt}, {SPIN}\ns_cbranch_scc1 {lp}\ns_mov_b32 s{sTMO}, {SPIN}")
        a.label(lp + "k")
def span(lo, hi, w, bits):
    m = 0
    for p in range(lo // w, hi // w + 1): m |= ((1 << bits) - 1) << (bits * p)
    return m
def gate_local(a, kind, ep, va, vt, sRotCt=None, sleep=0):
    t = T + 20
    if kind == "wo":
        a(f"v_and_b32 v{va}, 31, v0\nv_lshlrev_b32 v{va}, 5, v{va}\ns_lshr_b32 s{sGO}, s{sR}, 3\ns_lshl_b32 s{sGO}, s{sGO}, 2\ns_add_u32 s{sGO}, s{sGO}, 16")
    elif kind == "down":
        a(f"v_lshrrev_b32 v{va}, 1, v0\nv_add_u32 v{va}, s{sRotCt}, v{va}\nv_and_b32 v{va}, 15, v{va}\nv_lshlrev_b32 v{va}, 5, v{va}\nv_and_b32 v{vt}, 1, v0\nv_lshl_add_u32 v{va}, v{vt}, 3, v{va}")
        a(f"s_lshr_b32 s{sGO}, s{sR}, 4\ns_lshl_b32 s{sGO}, s{sGO}, 9\ns_bfe_u32 s{t+1}, s{sR}, 0x10003\ns_lshl_b32 s{t+1}, s{t+1}, 2\ns_add_u32 s{sGO}, s{sGO}, s{t+1}")
    elif kind == "gu":
        a(f"v_lshrrev_b32 v{va}, 1, v0\nv_add_u32 v{va}, s{sRotCt}, v{va}\nv_and_b32 v{va}, 7, v{va}\nv_lshlrev_b32 v{va}, 5, v{va}\nv_and_b32 v{vt}, 1, v0\nv_lshl_add_u32 v{va}, v{vt}, 2, v{va}")
        a(f"s_lshr_b32 s{sGO}, s{sR}, 4\ns_lshl_b32 s{sGO}, s{sGO}, 9\ns_bfe_u32 s{t+1}, s{sW}, 0x10001\ns_lshl_b32 s{t+1}, s{t+1}, 8\ns_add_u32 s{sGO}, s{sGO}, s{t+1}")
        a(f"s_and_b32 s{t+1}, s{sW}, 1\ns_lshl_b32 s{t+1}, s{t+1}, 3\ns_add_u32 s{sGO}, s{sGO}, s{t+1}")
    a(f"s_lshl_b32 s{t+1}, s{sG}, 10\ns_add_u32 s{sGO}, s{sGO}, s{t+1}\ns_add_u32 s{sGO}, s{sGO}, {WS_FL}\ns_add_u32 s{sGW}, s{sEP}, {ep}")
    g = Gate(a, va, vt, sleep=sleep); g.reset()
    return g

def flag_setup(a, ep):
    t = T + 20
    a(f"s_lshl_b32 s{t}, s{sWG}, 3\ns_add_u32 s{t}, s{t}, s{sW}\ns_lshl_b32 s{t}, s{t}, 2\ns_add_u32 s{t}, s{t}, {WS_FL}\ns_add_u32 s{t+1}, s{sEP}, {ep}")
    a(f"v_mov_b32 v1, 0\nv_mov_b32 v2, s{t+1}")
def flag_store(a, SB, s=T+20):
    a(f"s_mov_b64 exec, 1\nbuffer_store_dword v2, v1, {WSR}, s{s} offen {SB}\ns_mov_b64 exec, -1")
def publish_local(a, ep, SB):
    flag_setup(a, ep)
    a("s_waitcnt vmcnt(0)")
    flag_store(a, SB)

def row_stats(a, vst, vmean, vrstd):
    for i in range(1, 8):
        a(f"v_add_f32 v{vst}, v{vst}, v{vst+2*i}\nv_add_f32 v{vst+1}, v{vst+1}, v{vst+2*i+1}")
    finish_stats(a, vst, vst + 1, vmean, vrstd)

def finish_stats(a, vs, vq, vmean, vrstd):
    a(f"v_mul_f32 v{vmean}, {f32(1.0/D)}, v{vs}")
    a(f"v_mul_f32 v{vq}, {f32(1.0/D)}, v{vq}")
    a(f"v_fma_f32 v{vq}, -v{vmean}, v{vmean}, v{vq}")
    a(f"v_max_f32 v{vq}, 0, v{vq}")
    a(f"v_add_f32 v{vq}, {f32(1e-5)}, v{vq}")
    a(f"v_rsq_f32 v{vrstd}, v{vq}")
    a("s_nop 0")

def lin_dma(a, vaddr, src_s, src_off, dst_s, dst_off, npieces, bits="", rsrc=WSR, tmp=T+19):
    i = 0
    while i < npieces:
        k = min(4, npieces - i)
        a(f"s_add_u32 m0, s{dst_s}, {dst_off + 1024*i}")
        a(f"s_add_u32 s{tmp}, s{src_s}, {src_off + 1024*i}")
        for j in range(k):
            a(f"buffer_load_dwordx4 v{vaddr}, {rsrc}, s{tmp} offen offset:{1024*j} {bits} lds")
        i += k
    return npieces


def states(x):
    return int(x.split()[1]) + 1 if x.startswith("s_nop") else 1

def gemm_unrolled(a, n, P, nr, reads, mfma, groups, inserts, fix, fix_from, epi, st_end, alt=None):
    seq = []
    def add(ms, fill, pre=()):
        k = 0
        for i, (kk, tl) in enumerate(ms):
            tgt = (len(fill) * (i + 1) + len(ms) - 1) // len(ms)
            seq.append([list(pre) if i == 0 else [], mfma(kk, tl), tl, list(fill[k:tgt])]); k = tgt
    step = lambda kk: [(kk, tl) for tl in range(P)]
    a("s_barrier")
    for x in reads(0, 0) + reads(0, 1): a(x)
    w = f"s_waitcnt lgkmcnt({nr})"
    for c in range(n - 1):
        add(step(0), reads(c, 2), [w])
        add(step(1), reads(c, 3), [w])
        add(step(2), [], [w])
        seq[-2][3] += ["s_waitcnt lgkmcnt(0)"]; seq[-1][3] += ["s_barrier"]
        add(step(3), reads(c + 1, 0) + reads(c + 1, 1))
    nmain = len(seq)
    for i0, ins in inserts.items():
        i = i0; ins = list(ins)
        while ins:
            room = 4 - sum(states(x) for x in seq[i][3]) - len(seq[i+1][0])
            if ins[0].startswith("s_mov_b32 exec") and room < 3: room = 0
            while room > 0 and ins and "s_barrier" not in seq[i][3]:
                x = ins.pop(0); seq[i][3].append(x); room -= states(x)
            i += 1

        end = fix_from if i0 < fix_from else nmain
        assert i <= end and all(not (i0 < k < i) for k in inserts if len(inserts[i0]) > 1), (i0, i)
        if any(x.startswith("ds_") for x in inserts[i0]): assert any("s_waitcnt lgkmcnt(0)" in seq[j][3] for j in range(i, end)), (i, end)
    todo = {tl: list(fix(tl)) for tl in range(P)}
    used = lambda g: sum(states(x) for x in seq[g][3]) + len(seq[g+1][0])
    g = fix_from + 2
    while any(todo.values()):
        assert g + 2 < nmain, "no room for fix"
        if used(g) < 5 and "s_barrier" not in seq[g][3]:
            for back in range(P - 2, 1, -1):
                tl = seq[g - back][2]
                if not todo[tl] or g - back < fix_from: continue
                have = sum(used(x) + 1 for x in range(g - back, g)) + sum(states(x) for x in seq[g][3])
                room = sum(max(0, 5 - used(x)) for x in range(g - back, g))
                if have + room < 12: continue
                for x in range(g - back, g):
                    k = min(5 - used(x), 12 - have)
                    if k > 0: seq[x][3].append(f"s_nop {k-1}"); have += k
                while used(g) < 5 and todo[tl]: seq[g][3].append(todo[tl].pop(0))
            if used(g + 1) < 1: seq[g + 1][3].append("s_nop 0")
        g += 1

    c = n - 1
    g0 = groups[0]
    seq[-1][3] += reads(c, 2)
    add([(kk, tl) for kk in (0, 1) for tl in g0], reads(c, 3), [w])
    add([(kk, tl) for kk in (2, 3) for tl in g0], [], ["s_waitcnt lgkmcnt(0)"])
    seq[-len(g0)*2][3].append("s_barrier")
    seq[-1][3].append("s_nop 4")
    def flush():
        for pre, m, tl, post in seq:
            for x in pre: a(x)
            a(m)
            for x in post: a(x)
        del seq[:]
    def tail(epi):
        for gi in range(1, len(groups)):
            ms = [(kk, tl) for kk in range(4) for tl in groups[gi]]
            if gi == 1: add(ms[:1], ["s_nop 4"]); add(ms[1:], epi(gi - 1, False))
            else: add(ms, ["s_nop 0"] + epi(gi - 1, False))
        flush()
        stamp(a, st_end)
        a.nop(3)
        for x in epi(len(groups) - 1, True): a(x)
    if alt:
        cond, epi2, post1, post2 = alt
        l = a.uid("alt")
        seq[-1][3][-1:] = [cond, f"s_cbranch_scc1 {l}", "s_nop 2"]
        flush(); tail(epi); post1()
        a.label(l); a("s_nop 2"); tail(epi2); post2()
    else: tail(epi)

def gemm16(a, n, P, reads, mfma, groups, inserts, fix, fix_from, epi, st_end):
    seq = []
    def add(ms, fill, span, pre=()):
        k = 0
        for i, (u, tl, z) in enumerate(ms):
            tgt = min(len(fill), (len(fill) * (i + 1) + span - 1) // span)
            seq.append([list(pre) if i == 0 else [], mfma(u, tl, z), tl, list(fill[k:tgt])]); k = tgt
        assert k == len(fill)
    w0 = "s_waitcnt lgkmcnt(0)"
    a("s_barrier")
    for x in reads(0, 0): a(x)
    nr = len(reads(0, 0))
    for c in range(n - 1):
        add([(0, tl, c == 0) for tl in range(P)], reads(c, 1), nr, [w0])
        seq[-2][3] += [w0]; seq[-1][3] += ["s_barrier"]
        add([(1, tl, False) for tl in range(P)], reads(c + 1, 0), nr)
    nmain = len(seq)
    used = lambda g: sum(states(x) * (2 if x.startswith(("buffer", "v_perm", "v_rsq")) else 1) for x in seq[g][3]) + len(seq[g+1][0])
    for i0, ins in inserts.items():
        i = i0; ins = list(ins)
        while ins:
            while used(i) < C.g16 and ins and "s_barrier" not in seq[i][3]: seq[i][3].append(ins.pop(0))
            i += 1
        assert i <= fix_from
        if any(x.startswith("ds_") for x in inserts[i0]): assert any(w0 in seq[j][3] + seq[j][0] for j in range(i, fix_from))
    todo = {tl: list(fix(tl)) for tl in range(P)}
    g = fix_from
    while any(todo.values()):
        assert g + 4 < nmain
        for back in sorted(range(P - 3, 7, -1), key=lambda b_: -len(todo[seq[g - b_][2]])):
            tl = seq[g - back][2]
            while used(g) < C.g16 and todo[tl] and "s_barrier" not in seq[g][3]: seq[g][3].append(todo[tl].pop(0))
        g += 1
    c = n - 1
    g0 = groups[0]
    add([(0, tl, False) for tl in g0 + groups[1]], reads(c, 1), nr, [w0])
    add([(1, tl, False) for tl in g0], ["s_barrier"], 1, [w0])
    rest = [(1, tl, False) for tl in groups[1]]
    for gi in range(2, len(groups)): rest += [(u, tl, False) for u in range(2) for tl in groups[gi]]
    e0 = epi(0, False); e1 = epi(1, False)
    k1 = len(groups[1])
    add(rest[:2], ["s_nop 1", "s_nop 1"], 2)
    nleft = len(rest) - 2
    add(rest[2:], (e0 + e1)[:C.e16*nleft], nleft)
    for pre, m, tl, post in seq:
        for x in pre: a(x)
        a(m)
        for x in post: a(x)
    for x in (e0 + e1)[C.e16*nleft:]: a(x)
    stamp(a, st_end)
    for gi in range(2, len(groups)):
        for x in epi(gi, True): a(x)

class Src:
    def __init__(self, sB, sB1, sThr, stride): self.__dict__.update(locals())
    def setup(self, a, sRot, n, tmp):
        a(f"s_mul_i32 s{tmp}, s{sRot}, {self.stride}\ns_add_u32 s{self.sB}, s{self.sB}, s{tmp}\ns_sub_u32 s{self.sB1}, s{self.sB}, {n*self.stride}")
    def sel(self, a, c, dst):
        a(f"s_cmp_gt_u32 s{self.sThr}, {c}\ns_cselect_b32 s{dst}, s{self.sB}, s{self.sB1}")

class Phase:
    def __init__(self, name, n, npa, npw, emitA, emitW, regA, regW, pollfn, budget, lag=1, after_bar=None, dbg=False, early=99):
        self.__dict__.update(locals())

class Loader:
    def __init__(self, a):
        self.a = a; self.q = []; self.live = {}; self.waitfn = None; self.total = 0
    def free(self, reg, key):
        return key in self.live or all(reg[1] <= lo or hi <= reg[0] for lo, hi in self.live.values())
    def can(self, ph, kind, c):
        return self.free((ph.regA if kind == "A" else ph.regW)(c), (ph.name, kind, c))
    def issue(self, ph, kind, c, i0, k):
        assert self.can(ph, kind, c)
        self.live[(ph.name, kind, c)] = (ph.regA if kind == "A" else ph.regW)(c)
        (ph.emitA if kind == "A" else ph.emitW)(c, i0, k)
        self.q += [(ph.name, kind, c)] * k; self.total += k
    def release(self, ph, c):
        for k in "AW": self.live.pop((ph.name, k, c), None)
    def wait(self, tags):
        last = -1
        for i, t in enumerate(self.q):
            if t in tags: last = i
        if last >= 0:
            n = len(self.q) - 1 - last
            assert n < 64
            self.q = self.q[last+1:]
            if self.waitfn: self.waitfn(n)
            else: self.a(f"s_waitcnt vmcnt({n})")
    def pre(self, ph, pw, cnt):
        done = 0
        while pw < ph.n * ph.npw and done < cnt and self.can(ph, "W", pw // ph.npw):
            k = min(4, ph.npw - pw % ph.npw, cnt - done)
            self.issue(ph, "W", pw // ph.npw, pw % ph.npw, k); pw += k; done += k
        return pw
    def run(self, ph, nxt, pw=0, after_poll=None, tail=None, waitfn=None, lastexit=None):
        a = self.a; n = ph.n
        pa = 0; pn = 0
        if ph.pollfn: ph.pollfn()
        if after_poll: after_poll()
        for c in range(1 if getattr(ph, "skip0", False) else 0, n):
            done = 0
            if lastexit and pw == n * ph.npw:
                assert all(t_[0] == ph.name for t_ in self.q)
                lastexit([sum(1 for t_ in self.q if t_[2] > cc) for cc in range(c, n)]); lastexit = None
            while True:
                needed = pa < (c + 1) * ph.npa or pw < (c + 1) * ph.npw
                if not needed:
                    beyond = 0
                    for t in reversed(self.q):
                        if t[0] == ph.name and t[2] <= c: break
                        beyond += 1
                    if beyond >= getattr(ph, 'look', C.look) and (done >= ph.budget or c == 0): break
                ca = pa // ph.npa if ph.npa else n; cw = pw // ph.npw
                okA = ca < n and self.can(ph, "A", ca)
                okW = cw < n and self.can(ph, "W", cw)
                if okW and (cw <= ca or not okA):
                    k = ph.npw - pw % ph.npw
                    if not needed: k = min(2, k)
                    self.issue(ph, "W", cw, pw % ph.npw, k); pw += k
                elif okA:
                    k = ph.npa - pa % ph.npa
                    if not needed: k = min(2, k)
                    self.issue(ph, "A", ca, pa % ph.npa, k); pa += k
                elif nxt and ca == n and cw == n and pn < nxt.early and self.can(nxt, "W", pn // nxt.npw):
                    k = min(2, nxt.npw - pn % nxt.npw)
                    self.issue(nxt, "W", pn // nxt.npw, pn % nxt.npw, k); pn += k
                else:
                    assert not needed
                    break
                done += k
            if tail and pa == n * ph.npa and pw == n * ph.npw:
                tail(); tail = None; self.waitfn = waitfn
            if ph.after_bar and c > 0: ph.after_bar(c - 1)
            self.wait({(ph.name, "A", c), (ph.name, "W", c)})
            if ph.dbg and C.stamp: a(f"s_memtime s[10:11]\ns_waitcnt lgkmcnt(0)\nv_writelane_b32 v254, s10, {2*c}")
            a("s_barrier")
            if ph.dbg and C.stamp: a(f"s_memtime s[10:11]\ns_waitcnt lgkmcnt(0)\nv_writelane_b32 v254, s10, {2*c+1}")
            self.release(ph, c - ph.lag)
        if ph.after_bar: ph.after_bar(n - 1)
        if nxt: pn = self.pre(nxt, pn, min(ph.budget, max(0, nxt.early - pn)))
        return pn
    def end(self, ph):
        self.a("s_barrier")
        for c in range(ph.n): self.release(ph, c)

Q1_TAB = 131072 + 26624
Q1_NON = Q1_TAB + 2048
Q1_CS = Q1_NON + 64
WB = 65536
def guW(c): return WB + ((3 - c) % 4) * 24576
def dnW(c): return ((c + 2) % 8) * 20480
def qkW(c): return WB + ((c + 4) % 6) * 16384

PSCR = 131072
PV = 180
def projjob_issue(a, sJob, sScr, t, loads=True):
    a(f"""
    s_and_b32 s{t+2}, s{sJob}, 7
    s_lshr_b32 s{t+3}, s{sJob}, 3
    s_cmp_lt_u32 s{t+3}, 20
    s_cselect_b32 s{R_T}, s{P_WO}, s{P_WD}
    s_cselect_b32 s{R_T+1}, s{P_WO+1}, s{P_WD+1}
    s_mov_b32 s{R_T+2}, {F*D*2}
    s_cselect_b32 s{R_T+2}, {D*D*2}, s{R_T+2}
    s_mov_b32 s{R_T+3}, 0x20000
    s_cselect_b32 s{t+4}, 0, 20
    s_cselect_b32 s{t+5}, 20, 48
    s_mov_b32 s{t+6}, {WS_WTD}
    s_cselect_b32 s{t+6}, {WS_WTO}, s{t+6}
    s_sub_u32 s{t+3}, s{t+3}, s{t+4}
    s_mul_i32 s{t+5}, s{t+5}, s{t+2}
    s_add_u32 s{t+5}, s{t+5}, s{t+3}
    s_mul_i32 s{t+5}, s{t+5}, 5120
    s_add_u32 s{t+6}, s{t+6}, s{t+5}
    s_mul_i32 s{t+3}, s{t+3}, {32*1280}
    s_mul_i32 s{t+2}, s{t+2}, 160
    s_add_u32 s{t+3}, s{t+3}, s{t+2}
    s_movk_i32 s{t+4}, 6554
    """)
    x, y = PV, PV + 1
    for i in range(5 if loads else 0):
        a(f"""
        v_add_u32 v{x}, {64*i}, v0
        v_mul_u32_u24 v{y}, s{t+4}, v{x}
        v_lshrrev_b32 v{y}, 16, v{y}
        v_mad_i32_i24 v{x}, v{y}, -10, v{x}
        v_mul_u32_u24 v{y}, 1280, v{y}
        v_lshl_add_u32 v{x}, v{x}, 4, v{y}
        s_add_u32 m0, s{sScr}, {1024*i}
        s_nop 0
        buffer_load_dwordx4 v{x}, {R(R_T)}, s{t+3} offen lds
        """)
def projjob_finish(a, sScr, t):
    x, y, z, d0 = PV, PV + 1, PV + 2, PV + 4
    a(f"""
    v_lshrrev_b32 v{x}, 4, v0
    v_bfe_u32 v{y}, v0, 2, 2
    v_lshl_add_u32 v{x}, v{x}, 3, v{y}
    v_mul_u32_u24 v{x}, 160, v{x}
    v_add_u32 v{x}, s{sScr}, v{x}
    v_and_b32 v{y}, 3, v0
    v_lshl_add_u32 v{z}, v{y}, 3, v{x}
    v_lshl_add_u32 v{y}, v{y}, 4, v{x}
    """)
    for jn in range(5):
        for j in range(2):
            d = d0 + 4*jn + 2*j
            if jn < 4: a(f"ds_read_b64_tr_b16 v[{d}:{d+1}], v{y} offset:{640*j + 64*(jn>>1) + 8*(jn&1)}")
            else: a(f"ds_read_b64_tr_b16 v[{d}:{d+1}], v{z} offset:{640*j + 128}")
    a(f"s_add_u32 s{t+5}, s{t+6}, 4096\ns_waitcnt lgkmcnt(0)")
    for jn in range(5):
        d = d0 + 4*jn
        a(f"buffer_store_dwordx4 v[{d}:{d+3}], v5, {WSR}, s{t+6 if jn < 4 else t+5} offen offset:{1024*(jn&3)} sc1")

def gujob_issue(a, sJob, t, loads=True):
    x, y = PV, PV + 1
    a(f"""
    s_mul_i32 s{t+2}, s{sJob}, 2731
    s_lshr_b32 s{t+2}, s{t+2}, 16
    s_mul_i32 s{t+3}, s{t+2}, 24
    s_sub_u32 s{t+3}, s{sJob}, s{t+3}
    s_mul_i32 s{t+4}, s{t+2}, {64*F*2}
    s_lshl_b32 s{t+5}, s{t+3}, 7
    s_add_u32 s{t+4}, s{t+4}, s{t+5}
    v_lshrrev_b32 v{x}, 3, v0
    v_mul_u32_u24 v{x}, {F*2}, v{x}
    v_and_b32 v{y}, 7, v0
    v_lshl_add_u32 v{x}, v{y}, 4, v{x}
    """)
    for i in range(8 if loads else 0):
        for u in range(2):
            a(f"s_mov_b32 m0, {PSCR + 8192*u + 1024*i}\ns_add_u32 s{t+5}, s{t+4}, {i*8*F*2}")
            a(f"buffer_load_dwordx4 v{x}, {R(R_WU if u else R_WG)}, s{t+5} offen lds")
def gujob_finish(a, t):
    x, y, z = PV, PV + 1, PV + 2
    ONE, FRG, CS = PV + 4, PV + 8, PV + 40
    a(f"""
    v_lshrrev_b32 v{z}, 4, v0
    v_bfe_u32 v{x}, v0, 2, 2
    v_lshl_add_u32 v{x}, v{z}, 3, v{x}
    v_lshlrev_b32 v{x}, 7, v{x}
    v_and_b32 v{y}, 3, v0
    v_lshl_add_u32 v{x}, v{y}, 3, v{x}
    v_add_u32 v{x}, {PSCR}, v{x}
    v_lshlrev_b32 v{z}, 4, v{z}
    s_mul_i32 s{t+6}, s{t+2}, 12288
    s_lshl_b32 s{t+5}, s{t+3}, 9
    s_add_u32 s{t+6}, s{t+6}, s{t+5}
    s_add_u32 s{t+6}, s{t+6}, {WS_CSP}
    """)
    for i in range(4): a(f"v_mov_b32 v{ONE+i}, 0x3f803f80")
    for tt in range(4):
        f0 = FRG + 16*(tt & 1)
        for u in range(2):
            for m in range(2):
                for j in range(2):
                    d = f0 + 8*u + 4*m + 2*j
                    a(f"ds_read_b64_tr_b16 v[{d}:{d+1}], v{x} offset:{8192*m + 128*(32*u+4*j) + 32*tt}")
        a(f"""
        s_lshl_b32 s{t+4}, s{t+3}, 2
        s_add_u32 s{t+4}, s{t+4}, {tt}
        s_mul_i32 s{t+5}, s{t+4}, 43
        s_lshr_b32 s{t+5}, s{t+5}, 8
        s_mul_i32 s{t+5}, s{t+5}, 228
        s_lshl_b32 s{t+4}, s{t+4}, 1
        s_add_u32 s{t+4}, s{t+4}, s{t+5}
        s_mul_i32 s{t+5}, s{t+2}, 24
        s_add_u32 s{t+4}, s{t+4}, s{t+5}
        s_lshl_b32 s{t+4}, s{t+4}, 10
        s_add_u32 s{t+4}, s{t+4}, {WS_WTG}
        s_add_u32 s{t+5}, s{t+4}, 12288
        s_waitcnt lgkmcnt(0)
        """)
        for u in range(2):
            for m in range(2):
                a(f"v_mfma_f32_16x16x32_bf16 {v(CS+4*m,4)}, {v(f0+8*u+4*m,4)}, {v(ONE,4)}, {v(CS+4*m,4) if u else 0}")
        for u in range(2):
            for m in range(2):
                d = f0 + 8*u + 4*m
                a(f"buffer_store_dwordx4 v[{d}:{d+3}], v5, {WSR}, s{t+4+u} offen offset:{1024*m} sc1")
        a("s_mov_b32 exec_lo, 0x10001\ns_mov_b32 exec_hi, 0x10001\ns_nop 1")
        for m in range(2):
            a(f"buffer_store_dwordx4 v[{CS+4*m}:{CS+4*m+3}], v{z}, {WSR}, s{t+6} offen offset:{128*tt+64*m} sc1")
        a("s_mov_b64 exec, -1")

def prep(a, stage):
    tj = 84; sJob, sScr = tj, tj + 1
    lg = a.uid("pg"); le = a.uid("pe")
    if stage == 0:
        a(f"""
        s_sub_u32 s{sScr}, s{sW}, 1
        s_lshl_b32 s{sJob}, s{sScr}, 8
        s_add_u32 s{sJob}, s{sJob}, s{sWG}
        s_add_u32 s{sJob}, s{sJob}, 160
        s_mul_i32 s{sScr}, s{sScr}, 5120
        s_add_u32 s{sScr}, s{sScr}, {PSCR + 16384}
        """)
    a(f"s_cmp_eq_u32 s{sW}, 0\ns_cbranch_scc1 {lg}\ns_cmp_ge_u32 s{sJob}, 544\ns_cbranch_scc1 {le}")
    projjob_issue(a, sJob, sScr, tj) if stage == 0 else projjob_finish(a, sScr, tj)
    a(f"s_branch {le}")
    a.label(lg)
    a(f"s_cmp_ge_u32 s{sWG}, 240\ns_cbranch_scc1 {le}")
    gujob_issue(a, sWG, tj) if stage == 0 else gujob_finish(a, tj)
    a.label(le)

def xstat_fin(a):
    t = T + 16
    a(f"s_mov_b32 s{t}, 0xffff0000\nv_mov_b64 v[232:233], 0\ns_waitcnt vmcnt(0)")
    for i in range(12):
        a(f"v_lshlrev_b32 v234, 16, v{220+i}\nv_and_b32 v235, s{t}, v{220+i}\nv_add_f32 v232, v232, v234\nv_fmac_f32 v233, v234, v234\nv_add_f32 v232, v232, v235\nv_fmac_f32 v233, v235, v235")
    for mod in ("quad_perm:[1,0,3,2]", "quad_perm:[2,3,0,1]"):
        a(f"s_nop 1\nv_add_f32_dpp v232, v232, v232 {mod} row_mask:0xf bank_mask:0xf\nv_add_f32_dpp v233, v233, v233 {mod} row_mask:0xf bank_mask:0xf")
    a(f"""
    v_bfe_u32 v234, v0, 3, 2
    v_lshlrev_b32 v234, 10, v234
    v_bfe_u32 v235, v0, 2, 1
    v_lshl_add_u32 v234, v235, 3, v234
    v_lshrrev_b32 v235, 5, v0
    v_lshl_add_u32 v234, v235, 4, v234
    s_lshr_b32 s{t}, s{sWG}, 3
    s_lshl_b32 s{t}, s{t}, 12
    s_and_b32 s{t+1}, s{sWG}, 7
    s_lshl_b32 s{t+1}, s{t+1}, 2
    s_add_u32 s{t+1}, s{t+1}, s{sW}
    s_lshl_b32 s{t+1}, s{t+1}, 5
    s_add_u32 s{t}, s{t}, s{t+1}
    s_add_u32 s{t}, s{t}, {WS_ST0}
    s_mov_b32 exec_lo, 0x11111111
    s_mov_b32 exec_hi, 0x11111111
    buffer_store_dwordx2 v[232:233], v234, {WSR}, s{t} offen sc1
    s_mov_b64 exec, -1
    """)

def nonce_put(a):
    t = T + 8
    a(f"""
    s_memrealtime s[{t}:{t+1}]
    v_mov_b32 v1, 0
    s_waitcnt lgkmcnt(0)
    s_or_b32 s{t+2}, s{t}, 0x80000000
    v_mov_b32 v2, s{t+2}
    s_mov_b64 exec, 1
    global_store_dword v1, v2, s[{P_DBG}:{P_DBG+1}] sc1
    s_mov_b64 exec, -1
    """)
def flags_zero(a):
    t = T + 16
    a(f"""
    s_lshl_b32 s{t}, s{sWG}, 5
    s_add_u32 s{t}, s{t}, {WS_FL}
    s_lshl_b32 s{t+1}, s{sWG}, 7
    s_add_u32 s{t+1}, s{t+1}, {L_FG}
    s_add_u32 s{t+2}, s{t+1}, {LSTRIDE}
    v_lshlrev_b32 v236, 2, v0
    v_mov_b32 v237, 0
    s_mov_b64 exec, 0xff
    buffer_store_dword v237, v236, {WSR}, s{t} offen sc1
    s_mov_b64 exec, 0x3ff
    buffer_store_dword v237, v236, {WSR}, s{t+1} offen sc1
    buffer_store_dword v237, v236, {WSR}, s{t+2} offen sc1
    s_mov_b64 exec, -1
    """)

def nonce_issue(a, v2, v3):
    a(f"v_mov_b32 v{v3}, 0\nglobal_load_dword v{v2}, v{v3}, s[{P_DBG}:{P_DBG+1}] sc1")
def nonce_get(a, v1, v2, v3, cnt=0):
    t = T + 14
    lp = a.uid("non"); ok = a.uid("nonok")
    a(f"s_mov_b32 s{t+6}, 0\nv_mov_b32 v{v3}, 0\ns_lshl_b32 s{t+4}, s{sWG}, 7\ns_add_u32 s{t+4}, s{t+4}, {L_FG}\ns_waitcnt vmcnt({cnt})\ns_branch {lp}c")
    a.label(lp)
    a(f"global_load_dword v{v2}, v{v3}, s[{P_DBG}:{P_DBG+1}] sc1\ns_waitcnt vmcnt(0)")
    a.label(lp + "c")
    a(f"""
    v_cmp_eq_u32 vcc, 0, v{v2}
    s_cbranch_vccz {ok}
    s_sleep 4
    s_add_u32 s{t+6}, s{t+6}, 1
    s_cmp_lt_u32 s{t+6}, {SPIN}
    s_cbranch_scc1 {lp}
    s_mov_b32 s{sTMO}, {SPIN}
    """)
    a.label(ok)
    a(f"""
    v_readfirstlane_b32 s{sEP}, v{v2}
    s_getreg_b32 s{t+6}, hwreg(HW_REG_XCC_ID, 0, 4)
    v_mov_b32 v{v1}, {Q1_NON}
    ds_write_b32 v{v1}, v{v2}
    v_add_u32 v{v2}, s{t+6}, v{v2}
    s_mov_b64 exec, 1
    buffer_store_dword v{v2}, v{v3}, {WSR}, s{t+4} offen offset:32 sc1
    s_mov_b64 exec, -1
    s_waitcnt lgkmcnt(0)
    """)

def census(a, va, vt, issue, cnt=0):
    t = T + 20
    a(f"""
    v_and_b32 v{va}, 31, v0
    v_lshlrev_b32 v{va}, 7, v{va}
    s_lshl_b32 s{t}, s{sG}, 12
    s_add_u32 s{t}, s{t}, {L_FG + 32}
    """)
    if issue:
        a(f"buffer_load_dword v{vt}, v{va}, {WSR}, s{t} offen sc1")
        return
    poll(a, va, vt, f"s{t}", f"s{sEP}", sleep=4, pre=cnt)
    a(f"""
    s_getreg_b32 s{t}, hwreg(HW_REG_XCC_ID, 0, 4)
    v_cmp_ne_u32 vcc, s{t}, v{vt}
    s_cmp_eq_u64 vcc, 0
    s_cselect_b32 s{t}, 1, 0
    v_mov_b32 v{va}, {Q1_NON}
    v_mov_b32 v{vt}, s{t}
    ds_write_b32 v{va}, v{vt} offset:4
    s_waitcnt lgkmcnt(0)
    """)

sMODE = 14 - 14 + 98
def read_nonce_mode(a):
    a(f"v_mov_b32 v1, {Q1_NON}\nds_read_b64 v[2:3], v1\ns_waitcnt lgkmcnt(0)\nv_readfirstlane_b32 s{sEP}, v2\nv_readfirstlane_b32 s{sMODE}, v3")

def qkv_ids(a, t):
    a(f"s_lshr_b32 s{t}, s{sWG}, 4\ns_and_b32 s{t+1}, s{sR}, 15")

def qkv_compute(a, first, SB):
    t = T
    sRT, sCT, sTY, sC0 = t, t+1, t+2, t+3
    LQ = 0 if first else LSTRIDE
    sWM, sWN = t+5, t+6
    a(f"""
    s_mul_i32 s{sTY}, s{sCT}, 52
    s_lshr_b32 s{sTY}, s{sTY}, 8
    s_mul_i32 s{sC0}, s{sTY}, 5
    s_sub_u32 s{sC0}, s{sCT}, s{sC0}
    s_lshl_b32 s{sC0}, s{sC0}, 7
    s_and_b32 s{sWM}, s{sW}, 1
    s_lshr_b32 s{sWN}, s{sW}, 1
    v_lshrrev_b32 v14, 5, v0
    v_and_b32 v15, 31, v0
    """)
    ACC = 128; FR = 16; VST = 80; VCS = 96; VCV = 192; ONE = 196; AD = 200; MS = 244
    sCS = t+15
    a(f"s_lshl_b32 s{sCS}, s{sWG}, 9\ns_lshl_b32 s{t+7}, s{sWN}, 8\ns_add_u32 s{sCS}, s{sCS}, s{t+7}\ns_add_u32 s{sCS}, s{sCS}, {WS_CSQ}")
    a(f"v_lshlrev_b32 v{AD+8}, 5, v14\nv_lshlrev_b32 v{AD+9}, 2, v15")
    if first:
        a(f"""
        s_lshl_b32 s{t+7}, s{sWM}, 13
        v_lshlrev_b32 v1, 7, v15
        v_add_u32 v1, s{t+7}, v1
        v_bfe_u32 v8, v0, 1, 3
        v_xor_b32 v8, v8, v14
        """)
        for kk in range(4):
            a(f"v_xor_b32 v9, {2*kk}, v8\nv_lshl_add_u32 v{2+kk}, v9, 4, v1")
    else:
        a(f"s_lshl_b32 s{t+7}, s{sWM}, 13\nv_lshlrev_b32 v2, 4, v0\nv_add_u32 v2, s{t+7}, v2")
    a(f"""
    v_and_b32 v10, 3, v0
    v_and_b32 v11, 1, v0
    v_bfe_u32 v12, v0, 1, 1
    v_lshl_add_u32 v11, v11, 1, v12
    s_cmp_eq_u32 s{sTY}, 2
    s_cselect_b64 vcc, -1, 0
    v_cndmask_b32 v10, v11, v10, vcc
    v_bfe_u32 v8, v0, 2, 2
    v_lshl_add_u32 v9, v14, 3, v8
    v_lshlrev_b32 v9, 8, v9
    v_lshl_add_u32 v9, v10, 3, v9
    v_bfe_u32 v10, v0, 4, 1
    v_lshl_add_u32 v9, v10, 5, v9
    s_lshl_b32 s{t+7}, s{sWN}, 1
    v_xor_b32 v8, s{t+7}, v8
    v_lshl_add_u32 v6, v8, 6, v9
    v_xor_b32 v8, 1, v8
    v_lshl_add_u32 v7, v8, 6, v9
    """)
    nxa = 4 if first else 1
    W0 = 16384 if first else qkW(0)
    if first:
        for i in range(nxa): a(f"v_mov_b32 v{8+i}, v{2+i}")
        for i in (4, 5): a(f"v_add_u32 v{8+i}, {W0}, v{2+i}")
    else:
        for i in range(4): a(f"v_add_u32 v{8+i}, {WB + 49152*(i >> 1)}, v{6 + (i & 1)}")
    VM, VR = (32, 64) if first else (96, 212)
    for i in range(0, 64, 2): a(f"v_mov_b64 v[{ACC+i}:{ACC+i+1}], 0")
    def reads(kk):
        b = FR + 16*kk; r = []
        for tm in range(2):
            if first: r.append(f"ds_read_b128 v[{b+4*tm}:{b+4*tm+3}], v{8+kk} offset:{4096*tm}")
            else: r.append(f"ds_read_b128 v[{b+4*tm}:{b+4*tm+3}], v8 offset:{4096*tm+1024*kk}")
        for tn in range(2):
            for j in range(2):
                d = b + 8 + 4*tn + 2*j
                r.append(f"ds_read_b64_tr_b16 v[{d}:{d+1}], v{12+tn} offset:{4096*kk+1024*j}")
        return r
    def mfmas(kk, vtype, tns=(0, 1)):
        b = FR + 16*kk; m = []
        for tn in tns:
            W = v(b + 8 + 4*tn, 4)
            for tm in range(2):
                c = ACC + 16*(2*tn + tm)
                X = v(b + 4*tm, 4)
                A, B = (X, W) if vtype else (W, X)
                m.append(f"v_mfma_f32_32x32x16_bf16 {v(c,16)}, {A}, {B}, {v(c,16)}")
        return m
    sC, sSa, sSw, sMk, sDst, sD1 = t+9, t+10, t+4, t+11, t+12, 96
    qloc = C.qloc and SB == '' and not first
    vlab = a.uid("qkv_v"); fin = a.uid("qkv_fin"); done = a.uid("qkv_cdone")
    a(f"s_mov_b32 s{sC}, {10 if first else 9}\ns_mov_b32 s{sSa}, 0\ns_mov_b32 s{sSw}, {W0}")
    a(f"s_cmp_eq_u32 s{sTY}, 2\ns_cbranch_scc1 {vlab}")
    def v_tab_reads(roff):
        a(f"v_lshlrev_b32 v1, 4, v14\nv_add_u32 v1, s{t+7}, v1")
        for tm in range(2):
            for q in range(4):
                a(f"ds_read_b128 v[{VM+16*tm+4*q}:{VM+16*tm+4*q+3}], v1 offset:{(32*tm+8*q)*4}")
                a(f"ds_read_b128 v[{VR+16*tm+4*q}:{VR+16*tm+4*q+3}], v1 offset:{roff+(32*tm+8*q)*4}")
    hooks = []
    def mainloop(vtype, epi, alt=None):
        lp = a.uid("qkv_loop"); hk = a.uid("qkv_hk"); hb = a.uid("qkv_hb"); ent = a.uid("qkv_ent")
        if first: xstat_fin(a)
        stamp(a, 1 if first else 18)
        if not first:
            def rd(c, kk):
                b = FR + 16*kk; r = []
                for tm in range(2):
                    r.append(f"ds_read_b128 v[{b+4*tm}:{b+4*tm+3}], v2 offset:{(c % 4)*16384+4096*tm+1024*kk}")
                o = qkW(c) - WB
                for tn in range(2):
                    for j in range(2):
                        d = b + 8 + 4*tn + 2*j
                        r.append(f"ds_read_b64_tr_b16 v[{d}:{d+1}], v{8 + 2*(o // 49152) + tn} offset:{o % 49152 + 4096*kk+1024*j}")
                return r
            mf = lambda kk, tl: mfmas(kk, vtype, (tl >> 1,))[tl & 1]
            a(f"""
            s_lshl_b32 s{sC}, s{sRT}, 1
            s_add_u32 s{sC}, s{sC}, s{sWM}
            s_lshl_b32 s{sC}, s{sC}, 12
            s_add_u32 s{sC}, s{sC}, {L_ST2}
            v_lshlrev_b32 v3, 4, v0
            """)
            ins = {}
            for i in range(4): ins[28 + 2*i] = [f"buffer_load_dwordx4 v[{VST+4*i}:{VST+4*i+3}], v3, {WSR}, s{sC} offen offset:{1024*i} sc1"]
            b = Asm(); b("s_waitcnt vmcnt(0)"); row_stats(b, VST, MS, MS + 1)
            if vtype:
                b(f"v_sub_f32 v{VCV}, 0, v{VCV}\nv_sub_f32 v{VCV+2}, 0, v{VCV+2}")
                a(f"s_lshl_b32 s{t+7}, s{sW}, 9\ns_add_u32 s{t+7}, s{t+7}, {qkW(4)}\nv_lshlrev_b32 v4, 2, v0\nv_add_u32 v4, s{t+7}, v4\nv_lshlrev_b32 v5, 4, v14\nv_add_u32 v5, s{t+7}, v5")
                ins[77] = [f"ds_write_b32 v4, v{MS}", f"ds_write_b32 v4, v{MS+1} offset:256"]
                for tm in range(2):
                    for q in range(4):
                        ins[77].append(f"ds_read_b128 v[{VM+16*tm+4*q}:{VM+16*tm+4*q+3}], v5 offset:{(32*tm+8*q)*4}")
                        ins.setdefault(120, []).append(f"ds_read_b128 v[{VR+16*tm+4*q}:{VR+16*tm+4*q+3}], v5 offset:{256+(32*tm+8*q)*4}")
                fix = lambda tl: [f"v_fmac_f32 v{ACC+16*tl+i}, v{VCV+2*(tl>>1)}, v{VM+16*(tl&1)+i}" for i in range(16)]
                ff = 92
            else:
                qk_stats_fin(b)
                fix = lambda tl: [f"v_fmac_f32 v{ACC+16*tl+i}, v{MS+4*(tl&1)}, v{VCS+16*(tl>>1)+i}" for i in range(16)]
                ff = 80
            ins = dict(sorted({**ins, 56: b.lines}.items()))
            gemm_unrolled(a, 10, 4, 6, rd, mf, [(0, 1), (2, 3)], ins, fix, ff, epi, 19, alt)
            return
        a("s_barrier")
        for x in reads(0) + reads(1): a(x)
        a(f"s_branch {ent}")
        a.label(lp)
        a("s_barrier")
        interleave(a, mfmas(3, vtype), reads(0) + reads(1))
        a.label(ent)
        a("s_waitcnt lgkmcnt(6)")
        interleave(a, mfmas(0, vtype), reads(2))
        a("s_waitcnt lgkmcnt(6)")
        interleave(a, mfmas(1, vtype), reads(3))
        a("s_waitcnt lgkmcnt(6)")
        if first:
            upd = [f"s_add_u32 s{sSa}, s{sSa}, 32768", f"s_and_b32 s{sSa}, s{sSa}, 0x1ffff", f"s_add_u32 s{sSw}, s{sSa}, 16384"]
        else:
            upd = [f"s_add_u32 s{sSa}, s{sSa}, 16384", f"s_and_b32 s{sSa}, s{sSa}, 0xffff",
                   f"s_add_u32 s{sSw}, s{sSw}, 16384", f"s_cmp_eq_u32 s{sSw}, 163840", f"s_cselect_b32 s{sSw}, {WB}, s{sSw}"]
        upd += [f"v_add_u32 v{8+i}, s{sSa}, v{2+i}" for i in range(nxa)] + [f"v_add_u32 v{12+i}, s{sSw}, v{6+i}" for i in range(2)] + [f"s_sub_u32 s{sC}, s{sC}, 1"]
        interleave(a, mfmas(2, vtype), upd)
        a(f"s_waitcnt lgkmcnt(0)")
        a(f"s_bitcmp1_b32 {HMASK1 if first else HMASK2}, s{sC}\ns_cbranch_scc1 {hk}")
        a.label(hb)
        a(f"s_cmp_lg_u32 s{sC}, 0\ns_cbranch_scc1 {lp}")
        hooks.append((hk, hb, vtype))
        b = Asm(); b("s_waitcnt vmcnt(0)"); row_stats(b, VST, MS, MS + 1)
        interleave(a, mfmas(3, vtype), b.lines)
        if vtype:
            a(f"""
            s_lshl_b32 s{t+7}, s{sW}, 9
            s_add_u32 s{t+7}, s{t+7}, {Q1_TAB}
            v_lshlrev_b32 v1, 2, v0
            v_add_u32 v1, s{t+7}, v1
            ds_write_b32 v1, v{MS}
            ds_write_b32 v1, v{MS+1} offset:256
            """)
            v_tab_reads(256)
        else: qk_stats_fin(a)
        a(f"s_lshl_b32 s{t+7}, s{sWN}, 8\ns_add_u32 s{t+7}, s{t+7}, {Q1_CS}\nv_add_u32 v4, s{t+7}, v{AD+9 if vtype else AD+8}")
        a("s_barrier")
        stamp(a, 2)
        for tn in range(2):
            if vtype: a(f"ds_read_b32 v{VCV+2*tn}, v4 offset:{128*tn}")
            else:
                for q in range(4):
                    r = VCS + 16*tn + 4*q
                    a(f"ds_read_b128 v[{r}:{r+3}], v4 offset:{(32*tn+16*(q>>1)+4*(q&1))*4}")
        read_nonce_mode(a)
        if vtype: a(f"v_sub_f32 v{VCV}, 0, v{VCV}\nv_sub_f32 v{VCV+2}, 0, v{VCV+2}")
        for x in epi(0) + epi(1): a(x)
    HMASK1 = (1 << 8) | (1 << 2)
    HMASK2 = (1 << 5) | (1 << 2)
    if not first:
        for tn in range(2):
            for q in range(4):
                r = VCS + 16*tn + 4*q
                a(f"buffer_load_dwordx4 v[{r}:{r+3}], v{AD+8}, {WSR}, s{sCS} offen offset:{(32*tn+16*(q>>1)+4*(q&1))*4} sc1")
    a(f"""
    s_mul_i32 s{sDst}, s{sTY}, {ACT}
    s_lshl_b32 s{t+8}, s{sRT}, 2
    s_lshl_b32 s{t+7}, s{sWM}, 1
    s_add_u32 s{t+8}, s{t+8}, s{t+7}
    s_mul_i32 s{t+8}, s{t+8}, 1280
    s_add_u32 s{sDst}, s{sDst}, s{t+8}
    s_add_u32 s{sDst}, s{sDst}, {LQ}
    s_lshr_b32 s{t+8}, s{sC0}, 3
    s_lshl_b32 s{t+7}, s{sWN}, 3
    s_add_u32 s{t+8}, s{t+8}, s{t+7}
    v_add_u32 v80, s{t+8}, v14
    s_mov_b32 s{t+13}, {HEADB}
    v_mov_b32 v86, 0x7fffffff
    s_mov_b32 s{sMk}, 0
    s_add_u32 s{sD1}, s{sDst}, 1280
    """)
    if qloc:
        a(f"""
        s_lshl_b32 s{t+8}, s{sRT}, 1
        s_add_u32 s{t+8}, s{t+8}, s{sWM}
        s_mul_i32 s{t+8}, s{t+8}, {2*F*64}
        s_add_u32 s{t+8}, s{t+8}, {L_H + 57344}
        s_add_u32 s{t+7}, s{t+8}, {F*64}
        s_cmp_eq_u32 s{sTY}, 0
        s_cselect_b32 s{sDst}, s{t+8}, s{sDst}
        s_cselect_b32 s{sD1}, s{t+7}, s{sD1}
        s_cselect_b32 s{t+13}, 1280, s{t+13}
        """)
    a(f"s_add_u32 s{t+14}, s{sDst}, s{t+13}\ns_add_u32 s{sD1+1}, s{sD1}, s{t+13}")
    for sl in range(4):
        a(f"""
        v_add_u32 v81, {2*sl}, v80
        v_mul_u32_u24 v82, 205, v81
        v_lshrrev_b32 v82, 10, v82
        v_mad_i32_i24 v81, v82, -5, v81
        v_cmp_lt_u32 vcc, 2, v81
        v_lshlrev_b32 v82, 1, v82
        v_add_u32 v83, -3, v81
        v_cndmask_b32 v83, v81, v83, vcc
        v_addc_co_u32 v82, vcc, 0, v82, vcc
        v_lshlrev_b32 v83, 9, v83
        v_lshl_add_u32 v83, v15, 4, v83
        v_lshlrev_b32 v85, 3, v15
        v_add_u32 v85, 1024, v85
        v_cmp_eq_u32 vcc, 2, v81
        v_mul_lo_u32 v84, v82, s{t+13}
        s_cmp_lg_u64 vcc, 0
        v_cndmask_b32 v83, v83, v86, vcc
        v_cndmask_b32 v85, v86, v85, vcc
        s_cselect_b32 s{t+7}, {1 << sl}, 0
        s_or_b32 s{sMk}, s{sMk}, s{t+7}
        v_add_u32 v{AD+sl}, v83, v84
        v_add_u32 v{AD+4+sl}, v85, v84
        """)
    def qk_stats_fin(a):
        a(f"""
        s_cmp_eq_u32 s{sTY}, 0
        s_cselect_b32 s{t+7}, {f32(QSCALE)}, 1.0
        v_mul_f32 v{MS+2}, s{t+7}, v{MS+1}
        v_mul_f32 v{MS+6}, s{t+7}, v{MS+1}
        v_sub_f32 v{MS+4}, 0, v{MS}
        v_sub_f32 v{MS}, 0, v{MS}
        s_nop 1
        v_permlane32_swap_b32 v{MS}, v{MS+4}
        v_permlane32_swap_b32 v{MS+2}, v{MS+6}
        s_nop 1
        """)
    def epi_qk(tn, pk=True, bits='sc1'):
        r = []
        for tm in range(2):
            c = ACC + 16*(2*tn + tm); cs = VCS + 16*tn; m = MS + 4*tm
            for p in range(2):
                if pk:
                    for i in range(8*p, 8*p + 8, 2):
                        if first: r.append(f"v_pk_fma_f32 v[{c+i}:{c+i+1}], v[{cs+i}:{cs+i+1}], v[{m}:{m+1}], v[{c+i}:{c+i+1}] op_sel_hi:[1,0,1]")
                    for i in range(8*p, 8*p + 8, 2):
                        r.append(f"v_pk_mul_f32 v[{c+i}:{c+i+1}], v[{c+i}:{c+i+1}], v[{m+2}:{m+3}] op_sel_hi:[1,0]")
                else:
                    for i in range(8*p, 8*p + 8): r.append(f"v_mul_f32 v{c+i}, v{m+2}, v{c+i}")
                for i in range(4):
                    r.append(f"v_cvt_pk_bf16_f32 v{c+8*p+i}, v{c+8*p+2*i}, v{c+8*p+2*i+1}")
                r.append(f"buffer_store_dwordx4 v[{c+8*p}:{c+8*p+3}], v{AD+2*tn+p}, {WSR}, s{sD1 if tm else sDst} offen {bits}")
        return r
    def bparts(bits):
        for sl in range(4):
            sk = a.uid("qk_b")
            a(f"s_bitcmp0_b32 s{sMk}, {sl}\ns_cbranch_scc1 {sk}")
            for tm in range(2):
                o = ACC + 16*(2*(sl >> 1) + tm) + 8*(sl & 1)
                a(f"buffer_store_dwordx2 v[{o}:{o+1}], v{AD+4+sl}, {WSR}, s{sD1 if tm else sDst} offen {bits}")
                a(f"buffer_store_dwordx2 v[{o+2}:{o+3}], v{AD+4+sl}, {WSR}, s{sD1+1 if tm else t+14} offen {bits}")
            a.label(sk)
        a(f"s_branch {fin}")
    if qloc: mainloop(False, epi_qk, (f"s_cmp_eq_u32 s{sTY}, 0", lambda tn, pk: epi_qk(tn, pk, ""), lambda: bparts("sc1"), lambda: bparts("")))
    else:
        mainloop(False, epi_qk); bparts("sc1")
    a.label(vlab)
    if not first:
        for tn in range(2):
            a(f"buffer_load_dword v{VCV+2*tn}, v{AD+9}, {WSR}, s{sCS} offen offset:{128*tn} sc1")
    a(f"""
    s_lshl_b32 s{t+8}, s{sRT}, 3
    s_lshl_b32 s{t+7}, s{sWM}, 2
    s_add_u32 s{t+8}, s{t+8}, s{t+7}
    s_mul_i32 s{sDst}, s{t+8}, 640
    s_add_u32 s{sDst}, s{sDst}, {L_V + LQ}
    s_lshl_b32 s{t+7}, s{sWN}, 6
    s_add_u32 s{t+8}, s{sC0}, s{t+7}
    v_add_u32 v80, s{t+8}, v15
    v_mul_u32_u24 v81, 320, v14
    s_mov_b32 s{t+13}, {HEADB}
    s_movk_i32 s{t+14}, 3277
    s_movk_i32 s{t+7}, -20
    """)
    for tn in range(2):
        a(f"""
        v_add_u32 v83, {32*tn}, v80
        v_mul_u32_u24 v84, s{t+14}, v83
        v_lshrrev_b32 v84, 16, v84
        v_mad_i32_i24 v83, v84, s{t+7}, v83
        v_lshl_add_u32 v83, v83, 4, v81
        v_mul_lo_u32 v85, v84, s{t+13}
        v_add_u32 v{AD+tn}, v83, v85
        """)
    def epi_v(tn, pk=True):
        r = []
        for tm in range(2):
            c = ACC + 16*(2*tn + tm); cv = VCV + 2*tn
            for p in range(2):
                if pk:
                    for i in range(8*p, 8*p + 8, 2):
                        if first: r.append(f"v_pk_fma_f32 v[{c+i}:{c+i+1}], v[{VM+16*tm+i}:{VM+16*tm+i+1}], v[{cv}:{cv+1}], v[{c+i}:{c+i+1}] op_sel_hi:[1,0,1]")
                    for i in range(8*p, 8*p + 8, 2):
                        r.append(f"v_pk_mul_f32 v[{c+i}:{c+i+1}], v[{c+i}:{c+i+1}], v[{VR+16*tm+i}:{VR+16*tm+i+1}]")
                else:
                    for i in range(8*p, 8*p + 8): r.append(f"v_mul_f32 v{c+i}, v{VR+16*tm+i}, v{c+i}")
                for i in range(4):
                    r.append(f"v_cvt_pk_bf16_f32 v{c+8*p+i}, v{c+8*p+2*i}, v{c+8*p+2*i+1}")
                r.append(f"buffer_store_dwordx4 v[{c+8*p}:{c+8*p+3}], v{AD+tn}, {WSR}, s{sDst} offen offset:{640*(2*tm+p)} sc1")
        return r
    mainloop(True, epi_v)
    a.label(fin)
    stamp(a, 3 if first else 20)
    flag_setup(a, 1 if first else 6)
    a(f"s_lshl_b32 s{t+7}, s{sWG}, 5\ns_add_u32 s{t+7}, s{t+7}, s{sW}\ns_lshl_b32 s{t+7}, s{t+7}, 2\ns_add_u32 s{t+7}, s{t+7}, {L_FG + LQ}")
    a("s_waitcnt vmcnt(0)")
    if first:
        l1 = a.uid("q1f"); l2 = a.uid("q1g")
        a(f"s_cmp_eq_u32 s{sMODE}, 0\ns_cbranch_scc1 {l1}")
        flag_store(a, ""); a(f"s_branch {l2}")
        a.label(l1); flag_store(a, "sc1"); a.label(l2)
    else: flag_store(a, SB)
    flag_store(a, "sc1", t+7)
    a(f"s_branch {done}")
    for hk, hb, vtype in hooks:
        a.label(hk)
        if first:
            nx = a.uid("hk")
            a(f"s_cmp_lg_u32 s{sC}, 2\ns_cbranch_scc1 {nx}")
            a(f"""
            s_lshl_b32 s{t+7}, s{sRT}, 1
            s_add_u32 s{t+7}, s{t+7}, s{sWM}
            s_lshl_b32 s{t+7}, s{t+7}, 12
            s_add_u32 s{t+7}, s{t+7}, {WS_ST0}
            v_lshlrev_b32 v1, 4, v0
            """)
            for i in range(4):
                a(f"buffer_load_dwordx4 v[{VST+4*i}:{VST+4*i+3}], v1, {WSR}, s{t+7} offen offset:{1024*i} sc1")
            a(f"s_branch {hb}")
            a.label(nx)
            a("s_waitcnt vmcnt(0)")
        a(f"s_branch {hb}")
    a.label(done)

def qkvW_setup(a, sWo, sLW, sCT, sTmp, vW):
    a(f"""
    v_lshrrev_b32 v2, 4, v0
    v_mul_u32_u24 v1, 3840, v2
    v_lshlrev_b32 v7, 2, v2
    v_and_b32 v3, 15, v0
    v_xor_b32 v3, v3, v7
    v_lshl_add_u32 v{vW}, v3, 4, v1
    s_mul_i32 s{sWo}, s{sLW}, {16*3840}
    s_lshl_b32 s{sTmp}, s{sCT}, 8
    s_add_u32 s{sWo}, s{sWo}, s{sTmp}
    """)

def qkv1_loader(a):
    t = T
    sRT, sCT = t, t+1
    sLW, sAo, sWo, sM, sTmp, sRot, sThr, sA1, sW1, sSel = t+2, t+3, t+4, t+5, t+6, t+8, t+9, t+10, t+11, t+12
    a(f"s_sub_u32 s{sLW}, s{sW}, 4")
    qkvW_setup(a, sWo, sLW, sCT, sTmp, 6)
    a(f"""
    s_lshl_b32 s{sM}, s{sLW}, 12
    s_lshl_b32 s{sAo}, s{sRT}, 2
    s_add_u32 s{sAo}, s{sAo}, s{sLW}
    s_mul_i32 s{sAo}, s{sAo}, {32*1280}
    v_lshrrev_b32 v1, 3, v0
    v_mul_u32_u24 v1, 1280, v1
    v_and_b32 v3, 7, v0
    v_xor_b32 v3, v3, v2
    v_lshl_add_u32 v4, v3, 4, v1
    v_xor_b32 v3, 4, v3
    v_lshl_add_u32 v5, v3, 4, v1
    s_lshr_b32 s{sRot}, s{sR}, 4
    s_mul_i32 s{sRot}, s{sRot}, 5
    s_add_u32 s{sRot}, s{sRot}, s{sCT}
    s_add_u32 s{sRot}, s{sRot}, s{sG}
    s_mul_i32 s{sTmp}, s{sRot}, 26
    s_lshr_b32 s{sTmp}, s{sTmp}, 8
    s_mul_i32 s{sTmp}, s{sTmp}, 10
    s_sub_u32 s{sRot}, s{sRot}, s{sTmp}
    """)
    if not C.rot: a(f"s_mov_b32 s{sRot}, 0")
    if C.rot == 2: a(f"s_lshr_b32 s{sRot}, s{sR}, 4\ns_mul_i32 s{sRot}, s{sRot}, 5")
    a(f"s_sub_u32 s{sThr}, 10, s{sRot}")
    SA = Src(sAo, sA1, sThr, 128); SW = Src(sWo, sW1, sThr, 64*3840)
    SA.setup(a, sRot, 10, sTmp); SW.setup(a, sRot, 10, sTmp)
    a("s_waitcnt lgkmcnt(0)")
    srd(a, R_X, P_X, ACT)
    srd(a, R_WQ, P_WQKV, D*3*D*2)
    def emitA(c, i0, k):
        SA.sel(a, c, sSel)
        for i in range(i0, i0 + k):
            a(f"s_add_u32 m0, s{sM}, {(c % 4)*32768 + 1024*i}\ns_add_u32 s{sTmp}, s{sSel}, {c*128 + i*8*1280}")
            a(f"buffer_load_dwordx4 v{4 + (i & 1)}, {R(R_X)}, s{sTmp} offen lds")
    def emitW(c, i0, k):
        SW.sel(a, c, sSel)
        for i in range(i0, i0 + k):
            a(f"s_add_u32 m0, s{sM}, {16384 + (c % 4)*32768 + 1024*i}\ns_add_u32 s{sTmp}, s{sSel}, {c*64*3840 + i*4*3840}")
            a(f"buffer_load_dwordx4 v6, {R(R_WQ)}, s{sTmp} offen lds")
    LD = Loader(a); mark = [0]
    def xstats(c):
        if c == 0:
            other_srds(a)
            a(f"""
            v_bfe_u32 v8, v0, 2, 2
            v_lshrrev_b32 v9, 5, v0
            v_lshl_add_u32 v9, v9, 3, v8
            v_lshlrev_b32 v9, 8, v9
            v_and_b32 v10, 3, v0
            v_lshl_add_u32 v9, v10, 3, v9
            v_bfe_u32 v10, v0, 4, 1
            v_lshl_add_u32 v9, v10, 5, v9
            v_xor_b32 v8, s{sLW}, v8
            v_lshl_add_u32 v9, v8, 6, v9
            v_add_u32 v9, 16384, v9
            v_add_u32 v8, 65536, v9
            """)
            for i in range(4): a(f"v_mov_b32 v{12+i}, 0x3f803f80")
        for kk in range(0 if C.nocs else 4):
            for j in range(2):
                a(f"ds_read_b64_tr_b16 v[{16+4*kk+2*j}:{17+4*kk+2*j}], v{9 if (c % 4) < 2 else 8} offset:{(c % 2)*32768 + 4096*kk + 1024*j}")
        a("s_waitcnt lgkmcnt(0)")
        for kk in range(0 if C.nocs else 4):
            a(f"v_mfma_f32_32x32x16_bf16 v[32:47], v[12:15], v[{16+4*kk}:{19+4*kk}], {'v[32:47]' if (c or kk) else 0}")
        n = LD.total - mark[0]
        if c in (0, 4): mark[0] = LD.total
        st = {0: lambda: (flags_zero(a), nonce_issue(a, 81, 82)), 2: lambda: nonce_get(a, 80, 81, 82, n), 4: lambda: census(a, 80, 81, True), 6: lambda: census(a, 80, 81, False, n)}
        if c in st:
            l = a.uid("w7")
            a(f"s_cmp_lg_u32 s{sW}, 7\ns_cbranch_scc1 {l}")
            st[c](); a.label(l)
    if C.q1prio: a("s_setprio 2")
    stamp(a, 1)
    ph = Phase("q1", 10, 4, 4, emitA, emitW, lambda c: ((c % 4)*32768, (c % 4)*32768 + 16384), lambda c: ((c % 4)*32768 + 16384, (c % 4 + 1)*32768),
               None, C.bud_q1, after_bar=xstats, dbg=(C.dbg == 1))
    def waitfn(w):
        l1 = a.uid("pw"); l2 = a.uid("pw"); l3 = a.uid("pw")
        a(f"s_cmp_eq_u32 s{sW}, 4\ns_cbranch_scc1 {l1}\ns_cmp_eq_u32 s{sW}, 7\ns_cbranch_scc1 {l2}\ns_waitcnt vmcnt({w+5})\ns_branch {l3}")
        a.label(l1); a(f"s_waitcnt vmcnt({w+16})\ns_branch {l3}")
        a.label(l2); a(f"s_waitcnt vmcnt({w})")
        a.label(l3)
    ph.look = C.look_q1
    LD.run(ph, None)
    a(f"""
    v_and_b32 v1, 31, v0
    v_lshlrev_b32 v1, 2, v1
    s_lshl_b32 s{sTmp}, s{sLW}, 7
    v_add_u32 v1, s{sTmp}, v1
    v_add_u32 v2, {Q1_CS}, v1
    s_lshl_b32 s{sTmp}, s{sWG}, 9
    s_add_u32 s{sTmp}, s{sTmp}, {WS_CSQ}
    s_setprio 0
    s_nop 3
    ds_write_b32 v2, v32
    buffer_store_dword v32, v1, {WSR}, s{sTmp} offen
    s_waitcnt lgkmcnt(0)
    """)
    stamp(a, 2)
    a("s_barrier")
    read_nonce_mode(a)

def other_srds(a):
    srd(a, R_WS, P_WS, WS_END)
    srd(a, R_WG, P_WG, D*F*2)
    srd(a, R_WU, P_WU, D*F*2)
    srd(a, R_T, P_WS, WS_END)

def qkv1_idle(a):
    l2 = a.uid("idl"); l1 = a.uid("idl"); l3 = a.uid("idl"); l4 = a.uid("idl"); lj = a.uid("idl")
    tj = 84; K = NAME + "_kernel"
    a(f"v_lshlrev_b32 v5, 4, v0\ns_cmp_lt_u32 s{sW}, 4\ns_cbranch_scc1 {l1}")
    a(f"s_xor_b32 s{tj}, s{sW}, 7\ns_or_b32 s{tj}, s{tj}, s{T}\ns_cmp_lg_u32 s{tj}, 0\ns_cbranch_scc1 {l3}")
    nonce_put(a)
    a.label(l3)
    a(f"s_getpc_b64 s[{tj+4}:{tj+5}]")
    a.label("L_pc")
    a(f"""
    s_sub_u32 s{tj+4}, s{tj+4}, L_pc-{K}
    s_subb_u32 s{tj+5}, s{tj+5}, 0
    s_and_b32 s{tj}, s{T}, 1
    s_lshl_b32 s{tj}, s{tj}, 2
    s_add_u32 s{tj}, s{tj}, s{sW}
    s_sub_u32 s{tj}, s{tj}, 4
    s_lshl_b32 s{tj}, s{tj}, 13
    v_lshlrev_b32 v1, 7, v0
    v_add_u32 v2, s{tj}, v1
    global_load_dword v251, v2, s[{tj+4}:{tj+5}]
    """)
    a(f"s_lshl_b32 s{tj}, s{T}, 2\ns_add_u32 s{tj}, s{tj}, s{sW}\ns_add_u32 s{tj+2}, s{tj}, {60 - 4}\ns_lshl_b32 s{tj+2}, s{tj+2}, 13")
    for i in range(4):
        if C.q1pf: a(f"buffer_load_dword v251, v1, {R(R_WQ)}, s{tj+2} offen\ns_add_u32 s{tj+2}, s{tj+2}, {64*8192}")
        if i == 0: a("s_barrier")
    a(f"s_branch {l2}")
    a.label(l1)
    xstat_fin(a)
    a(f"s_cmp_lg_u32 s{sW}, 0\ns_cbranch_scc1 {l4}")
    flags_zero(a)
    a.label(l4)
    a(f"s_waitcnt vmcnt(0)\ns_barrier\ns_cmp_lg_u32 s{sW}, 0\ns_cbranch_scc1 {l2}")
    nonce_issue(a, 81, 82)
    nonce_get(a, 80, 81, 82)
    a.label(l2)
    a(f"s_mul_i32 s{tj}, s{T}, 10\ns_add_u32 s{tj+7}, s{tj}, 10\ns_add_u32 s{tj}, s{tj}, s{sW}\ns_mul_i32 s{tj+1}, s{sW}, 5120")
    a.label(lj)
    projjob_issue(a, tj, tj+1, tj)
    a("s_waitcnt vmcnt(0)")
    projjob_finish(a, tj+1, tj)
    a(f"s_add_u32 s{tj}, s{tj}, 8\ns_cmp_lt_u32 s{tj}, s{tj+7}\ns_cbranch_scc1 {lj}")
    l5 = a.uid("idl")
    a(f"s_waitcnt vmcnt(0)\ns_barrier\ns_cmp_lg_u32 s{sW}, 0\ns_cbranch_scc1 {l5}")
    a(f"""
    s_lshl_b32 s{tj}, s{sWG}, 7
    s_add_u32 s{tj}, s{tj}, {L_FG + 36}
    v_mov_b32 v1, 0
    v_mov_b32 v2, s{sEP}
    """)
    flag_store(a, "sc1", tj)
    census(a, 80, 81, True)
    census(a, 80, 81, False)
    a.label(l5)
    a("s_barrier")
    read_nonce_mode(a)

def phase_attn(a, SB, ld_label):
    fast = SB == ""
    t = T
    CH = 20480
    sQP, sKH, sSrc, sDst, sTmp, sC, sHB = t, t+1, t+2, t+3, t+4, t+5, t+8
    sEX = t+6
    sWs, sWd, sPF = t+9, t+10, t+11
    tj = 84; sJob, sScr = tj, tj + 1
    QAREA = 102400
    QA, QB = 16, 22
    NM, SS, PP, OO, KF, VF = 32, 64, 96, 112, 144, 160
    vK, vK8, vV = 2, 3, 4
    DUM = 176; XF = 177; vX1, vX2, vO = 28, 29, 30; sO, sFB = 96, 99; XB = 102400; PR = 32
    assert C.c0
    KVB = 'nt sc1' if C.nt_kv else 'sc1'
    stamp(a, 4)
    a(f"""
    s_and_b32 s{sQP}, s{sW}, 3
    s_lshr_b32 s{sKH}, s{sW}, 2
    v_lshlrev_b32 v5, 4, v0
    s_mul_i32 s{sHB}, s{sR}, {HEADB}
    s_add_u32 s{sHB}, s{sHB}, s{sLO}
    s_and_b32 s{sTmp}, s{sQP}, 1
    s_mul_i32 s{sSrc}, s{sTmp}, 5120
    s_mul_i32 s{sDst}, s{sTmp}, 10240
    s_lshr_b32 s{sTmp}, s{sQP}, 1
    s_mul_i32 s{sC}, s{sTmp}, 5120
    s_add_u32 s{sDst}, s{sDst}, s{sC}
    s_mul_i32 s{sC}, s{sTmp}, {ACT}
    s_add_u32 s{sSrc}, s{sSrc}, s{sC}
    s_add_u32 s{sSrc}, s{sSrc}, s{sHB}
    s_add_u32 s{sSrc}, s{sSrc}, {L_K}
    """)
    def kv_issue(j):
        GF.need(0x01010101 << j)
        a(f"s_add_u32 s{sTmp}, s{sG}, {j}\ns_and_b32 s{sTmp}, s{sTmp}, 7\ns_mul_i32 s{sTmp}, s{sTmp}, 10240\ns_add_u32 s{sTmp}, s{sTmp}, s{sSrc}")
        return lin_dma(a, 5, sTmp, 0, sDst, j * CH, 5, KVB)
    def init():
        a(f"""
        v_lshrrev_b32 v14, 5, v0
        v_and_b32 v15, 31, v0
        v_lshlrev_b32 v6, 3, v15
        s_mul_i32 s{sTmp}, s{sKH}, 10240
        v_add_u32 v{vK}, s{sTmp}, v5
        v_add_u32 v{vK8}, s{sTmp}, v6
        v_mul_u32_u24 v7, 320, v14
        v_lshl_add_u32 v7, v15, 4, v7
        v_add_u32 v{vV}, s{sTmp}, v7
        s_mov_b32 s{sEX}, 0x000fffff
        s_mov_b32 s{sEX+1}, 0x000fffff
        s_mov_b32 s{t+16}, -1
        s_mov_b32 s{t+17}, 0
        v_and_b32 v9, 27, v0
        v_cmp_eq_u32 vcc, 24, v9
        v_mov_b32 v8, 0x3f803f80
        s_nop 0
        v_cndmask_b32 v8, 0, v8, vcc
        v_mov_b32 v9, v8
        v_lshlrev_b32 v13, 7, v0
        v_mov_b32 v12, 0
        """)
        for i in range(0, 16, 2): a(f"v_mov_b64 v[{VF+i}:{VF+i+1}], v[8:9]")
        for i in range(0, 32, 2): a(f"v_mov_b64 v[{OO+i}:{OO+i+1}], 0")
        for i in range(0, 8, 2): a(f"v_mov_b64 v[{PP+8+i}:{PP+8+i+1}], 0")
        a(f"v_mov_b64 v[{QA+4}:{QA+5}], 0\nv_mov_b64 v[{QB+4}:{QB+5}], 0")
        a(f"""
        s_mul_i32 s{sC}, s{sQP}, 7168
        s_add_u32 s{sC}, s{sC}, {XB}
        v_add_u32 v{vX1}, s{sC}, v5
        v_lshrrev_b32 v{vX2}, 1, v5
        v_add_u32 v{vX2}, s{sC}, v{vX2}
        s_lshl_b32 s{sTmp}, s{sQP}, 2
        s_add_u32 s{sTmp}, s{sTmp}, {XB + 28672}
        v_mov_b32 v{XF}, s{sTmp}
        s_mul_i32 s{sTmp}, s{sR}, 5
        v_add_u32 v{vO}, s{sTmp}, v14
        v_lshrrev_b32 v10, 1, v{vO}
        v_and_b32 v{vO}, 1, v{vO}
        v_lshlrev_b32 v{vO}, 3, v{vO}
        v_lshl_add_u32 v{vO}, v10, 9, v{vO}
        v_lshl_add_u32 v{vO}, v15, 4, v{vO}
        s_lshl_b32 s{sTmp}, s{sG}, 2
        s_add_u32 s{sTmp}, s{sTmp}, s{sQP}
        s_mul_i32 s{sO}, s{sTmp}, 81920
        s_add_u32 s{sO}, s{sO}, s{sLO}
        s_add_u32 s{sO}, s{sO}, {L_O}
        s_add_u32 s{sO+1}, s{sO}, 40960
        s_mov_b32 s{sFB}, 0
        """)
        if C.c0:
            for st_ in range(2): a(f"v_mov_b32 v{KF+8*st_+4}, 0x3f803f80\nv_mov_b32 v{KF+8*st_+5}, 0x3f80")
    init()
    l0 = a.uid("att_old"); l1 = a.uid("att_j")
    a(f"s_cmp_eq_u32 s{sKH}, 0\ns_cbranch_scc1 {l0}")
    poll_local(a, "attn", 1, va=10, vt=11)
    stamp(a, 5)
    a(f"""
    s_mul_i32 s{sC}, s{sQP}, 2560
    s_add_u32 s{sPF}, s{sC}, {QAREA}
    s_mul_i32 s{sTmp}, s{sG}, 10240
    s_add_u32 s{sTmp}, s{sTmp}, s{sC}
    s_add_u32 s{sTmp}, s{sTmp}, s{sHB}
    """)
    a(f"s_add_u32 s{sC}, s{sTmp}, 1280")
    if fast and C.qloc:
        a(f"""
        s_lshl_b32 s{sWs}, s{sG}, 2
        s_add_u32 s{sWs}, s{sWs}, s{sQP}
        s_mul_i32 s{sWs}, s{sWs}, {2*F*64}
        s_mul_i32 s{sWd}, s{sR}, 1280
        s_add_u32 s{sWs}, s{sWs}, s{sWd}
        s_add_u32 s{sWs}, s{sWs}, {L_H + 57344}
        s_add_u32 s{sWd}, s{sWs}, {F*64}
        s_cmp_lg_u32 s{sL}, 0
        s_cselect_b32 s{sTmp}, s{sWs}, s{sTmp}
        s_cselect_b32 s{sC}, s{sWd}, s{sC}
        """)
    for x, sr in ((0, sTmp), (1, sC)):
        a(f"""
        s_add_u32 m0, s{sPF}, {1280*x}
        s_mov_b64 exec, -1
        buffer_load_dwordx4 v5, {WSR}, s{sr} offen {KVB} lds
        s_mov_b64 exec, 0xffff
        buffer_load_dwordx4 v5, {WSR}, s{sr} offen offset:1024 {KVB} lds
        """)
    a("s_mov_b64 exec, -1")
    a(f"s_mul_i32 s{sTmp}, s{sG}, 10240\ns_add_u32 s{sTmp}, s{sTmp}, s{sSrc}")
    lin_dma(a, 5, sTmp, 0, sDst, 0, 2, KVB)
    if C.stage: a(f"s_waitcnt vmcnt({C.stage - 1})")
    lin_dma(a, 5, sTmp, 2048, sDst, 2048, 3, KVB)
    if C.stage != 1: a(f"s_waitcnt vmcnt(3)")
    a(f"s_branch {l1}")
    a.label(l0)
    a(f"""
    s_setprio 1
    v_add_u32 v10, s{sG}, v0
    v_and_b32 v10, 7, v10
    v_bfe_u32 v11, v0, 3, 1
    v_mul_u32_u24 v11, 19, v11
    s_mul_i32 s{sTmp}, s{sR}, 20
    v_add_u32 v11, s{sTmp}, v11
    v_lshrrev_b32 v11, 7, v11
    v_lshl_add_u32 v10, v10, 5, v11
    s_and_b32 s{sTmp}, s{sQP}, 1
    s_lshl_b32 s{sTmp}, s{sTmp}, 4
    s_lshr_b32 s{sC}, s{sQP}, 1
    s_mul_i32 s{sC}, s{sC}, 5
    s_add_u32 s{sTmp}, s{sTmp}, s{sC}
    s_add_u32 s{sTmp}, s{sTmp}, 5
    v_add_u32 v10, s{sTmp}, v10
    v_lshlrev_b32 v12, 7, v10
    v_lshrrev_b32 v11, 4, v0
    v_lshl_add_u32 v12, v11, 2, v12
    s_and_b32 s{sWs}, s{sR}, 7
    s_mul_i32 s{sWs}, s{sWs}, 102400
    s_mul_i32 s{sWd}, s{sW}, 5120
    s_add_u32 s{sWs}, s{sWs}, s{sWd}
    s_add_u32 s{sWs}, s{sWs}, {WS_WTO}
    s_add_u32 s{sGO}, s{sLO}, {L_FG}
    s_add_u32 s{sGW}, s{sEP}, 1
    """)
    def cpf(lo, hi):
        l = a.uid("cpf"); pc = a.uid("pc")
        a(f"s_or_b32 s{sC}, s{sL}, s{sW}\ns_cmp_lg_u32 s{sC}, 0\ns_cbranch_scc1 {l}\ns_getpc_b64 s[{t+12}:{t+13}]")
        a.label(pc)
        a(f"""
        s_sub_u32 s{t+12}, s{t+12}, {pc}-{NAME}_kernel
        s_subb_u32 s{t+13}, s{t+13}, 0
        s_lshl_b32 s{sC}, s{sR}, 11
        s_add_u32 s{sC}, s{sC}, {lo}-{NAME}_kernel
        v_add_u32 v{PV+2}, s{sC}, v13
        v_min_u32 v{PV+2}, {hi}-{NAME}_kernel, v{PV+2}
        s_mov_b64 exec, 0xffff
        global_load_dword v{DUM}, v{PV+2}, s[{t+12}:{t+13}]
        s_mov_b64 exec, -1
        """)
        a.label(l)
    if fast and C.cpf: cpf("L_fast", "L_fast_post")
    a.label(l1)
    GF = Gate(a, 12, PV, fold=True, sleep=2)
    a(f"""
    s_mul_i32 s{sC}, s{sQP}, 2560
    s_add_u32 s{sC}, s{sC}, {QAREA}
    v_add_u32 v10, s{sC}, v5
    v_add_u32 v11, s{sC}, v6
    s_barrier
    ds_read_b128 v[{QA}:{QA+3}], v10
    ds_read_b128 v[{QB}:{QB+3}], v10 offset:1280
    s_mov_b32 exec_hi, 0
    ds_read_b64 v[{QA+4}:{QA+5}], v11 offset:1024
    ds_read_b64 v[{QB+4}:{QB+5}], v11 offset:{1280+1024}
    s_mov_b32 exec_hi, -1
    """)
    stamp(a, 6)
    l1 = a.uid("att_ap")
    a(f"s_cmp_lg_u32 s{sKH}, 0\ns_cbranch_scc1 {l1}")
    GF.load()
    a.label(l1)
    base = [0]
    def rdK(st, c, kt):
        off = c * CH + kt * 1280 - base[0]
        assert 0 <= off and off + 1024 < 65536
        b = KF + 8*st
        if C.c0: return [f"s_mov_b64 exec, s[{t+16}:{t+17}]", f"ds_read_b64 v[{b+4}:{b+5}], v{vK8} offset:{off+1024}", "s_mov_b64 exec, -1", f"ds_read_b128 v[{b}:{b+3}], v{vK} offset:{off}"]
        return [f"ds_read_b128 v[{b}:{b+3}], v{vK} offset:{off}", f"ds_read_b64 v[{b+4}:{b+5}], v{vK8} offset:{off+1024}"]
    def rdV(st, c, kt):
        off = c * CH + 5120 + kt * 1280 - base[0]
        assert 0 <= off and off + 640 < 65536
        b = VF + 8*st
        return [f"s_mov_b64 exec, s[{sEX}:{sEX+1}]", f"ds_read_b128 v[{b}:{b+3}], v{vV} offset:{off}",
                f"ds_read_b128 v[{b+4}:{b+7}], v{vV} offset:{off+640}", f"s_mov_b64 exec, -1"]
    def qk(x, st, c=None):
        b = KF + 8*st; q = (QA, QB)[x]; sd = SS + 16*x
        cc = v(NM + 16*x, 16) if (c is None and not C.c0) else '0'
        return [f"v_mfma_f32_32x32x16_bf16 {v(sd,16)}, {v(b,4)}, {v(q,4)}, {cc}",
                f"v_mfma_f32_32x32x8_bf16 {v(sd,16)}, {v(b+4,2)}, {v(q+4,2)}, {v(sd,16)}"]
    def pv(x, st):
        b = VF + 8*st; p = PP + 8*x; o = OO + 16*x
        return [f"v_mfma_f32_32x32x16_bf16 {v(o,16)}, {v(b,4)}, {v(p,4)}, {v(o,16)}",
                f"v_mfma_f32_32x32x16_bf16 {v(o,16)}, {v(b+4,4)}, {v(p+4,4)}, {v(o,16)}"]
    def sm(x):
        sd = SS + 16*x; p = PP + 8*x; r = []
        for i in range(8):
            r.append(f"v_exp_f32 v{sd+2*i}, v{sd+2*i}")
            r.append(f"v_exp_f32 v{sd+2*i+1}, v{sd+2*i+1}")
            if i > 0: r.append(f"v_cvt_pk_bf16_f32 v{p+i-1}, v{sd+2*i-2}, v{sd+2*i-1}")
        r.append(f"v_cvt_pk_bf16_f32 v{p+7}, v{sd+14}, v{sd+15}")
        return r
    def setm():
        for x in range(2): a(f"v_mov_b32 v{10+x}, v{8+x}")
        a("s_nop 0")
        for x in range(2): a(f"v_permlane32_swap_b32 v{8+x}, v{10+x}")
        a("s_nop 0")
        for x in range(2): a(f"v_max_f32 v{8+x}, v{8+x}, v{10+x}")
        if C.c0:
            a("s_mov_b32 exec_lo, 0")
            for x in range(2):
                q = (QA, QB)[x] + 4; r = NM + 4*x
                a(f"""
                v_sub_f32 v{r}, 0, v{8+x}
                v_and_b32 v{r+1}, 0xffff0000, v{r}
                v_sub_f32 v{r+2}, v{r}, v{r+1}
                v_and_b32 v{r+3}, 0xffff0000, v{r+2}
                v_sub_f32 v{r+2}, v{r+2}, v{r+3}
                v_lshrrev_b32 v{r+1}, 16, v{r+1}
                v_or_b32 v{q}, v{r+1}, v{r+3}
                v_lshrrev_b32 v{q+1}, 16, v{r+2}
                """)
            a("s_mov_b32 exec_lo, -1")
            return
        for x in range(2):
            a(f"v_sub_f32 v{NM+16*x}, 0, v{8+x}\nv_sub_f32 v{NM+16*x+1}, 0, v{8+x}")
            for i in range(2, 16, 2): a(f"v_mov_b64 v[{NM+16*x+i}:{NM+16*x+i+1}], v[{NM+16*x}:{NM+16*x+1}]")
    for x in rdK(0, 0, 0): a(x)
    a("s_waitcnt lgkmcnt(0)")
    m = qk(0, 0, "0") + qk(1, 0, "0")
    for i in (0, 1, 2, 3): a(m[i])
    a.nop(10)
    for x in range(2):
        sd = SS + 16*x
        a(f"v_max3_f32 v{8+x}, v{sd}, v{sd+1}, v{sd+2}")
        for i in range(3, 15, 2):
            a(f"v_max3_f32 v{8+x}, v{8+x}, v{sd+i}, v{sd+i+1}")
        a(f"v_max_f32 v{8+x}, v{8+x}, v{sd+15}")
    setm()
    for i in range(16): a(f"v_sub_f32 v{SS+i}, v{SS+i}, v8")
    l1 = a.uid("att_w0"); l2 = a.uid("att_w1")
    sDone = t + 15
    a(f"s_cmp_eq_u32 s{sKH}, 0\ns_cbranch_scc1 {l1}\ns_waitcnt vmcnt(0)\ns_barrier\ns_branch {l2}")
    a.label(l1)
    a("s_barrier")
    GF.upd()
    a(f"s_and_b32 s{sDone}, s{sNR}, 0x02020202\ns_cbranch_scc1 {l2}")
    GF.ok = 0x02020202; kv_issue(1); GF.ok = 0
    a.label(l2)
    stamp(a, 7)
    def l0only(fn):
        l = a.uid("l0")
        a(f"s_cmp_lg_u32 s{sL}, 0\ns_cbranch_scc1 {l}")
        fn(); a.label(l)
    def l2pf(i0, n):
        for i in range(i0, min(i0 + n, (C.l2pf + 3) // 4)):
            l = a.uid("pfs")
            a(f"""
            s_cmp_ge_u32 s{sW}, {C.l2pf - 4*i}
            s_cbranch_scc1 {l}
            s_lshr_b32 s{sPF}, s{sR}, 4
            s_mul_i32 s{sPF}, s{sPF}, {15 if C.rot_gu else 1}
            s_mul_i32 s{sC}, s{sW}, {1 if C.rot_gu else 2}
            s_add_u32 s{sPF}, s{sPF}, s{sC}
            s_add_u32 s{sPF}, s{sPF}, {4*i if C.rot_gu else 8*i}
            s_lshl_b32 s{sPF}, s{sPF}, 13
            s_and_b32 s{sC}, s{sR}, 15
            s_mul_i32 s{sC}, s{sC}, 245760
            s_add_u32 s{sPF}, s{sPF}, s{sC}
            s_add_u32 s{sPF}, s{sPF}, {WS_WTG}
            buffer_load_dword v{DUM}, v13, {WSR}, s{sPF} offen
            """)
            a.label(l)
    def wwo(c): lin_dma(a, 5, sWs, c*20480, sWd, c*20480, 5, 'nt' if C.nt_wo else '')
    def fp():
        a(f"""
        s_lshl_b32 s{sC}, s{sWG}, 5
        s_add_u32 s{sC}, s{sC}, s{sW}
        s_lshl_b32 s{sC}, s{sC}, 2
        s_add_u32 s{sC}, s{sC}, {L_FG + 16}
        v_mov_b32 v10, 0
        v_mov_b32 v11, s{sEP}
        s_mov_b64 exec, 1
        buffer_store_dword v11, v10, {WSR}, s{sC} offen sc1
        s_mov_b64 exec, -1
        """)
    def cs1():
        l = a.uid("cs")
        a(f"s_cmp_lg_u32 s{sW}, 3\ns_cbranch_scc1 {l}\ns_mov_b32 exec_hi, 0xffff")
        a(f"s_and_b32 s{sC}, s{sR}, 15\ns_mul_i32 s{sC}, s{sC}, 768\ns_add_u32 s{sC}, s{sC}, {WS_CSP}")
        for i in range(10):
            a(f"buffer_load_dwordx4 v[{PV+4*i}:{PV+3+4*i}], v5, {WSR}, s{sC} offen\ns_add_u32 s{sC}, s{sC}, 12288")
        a("s_mov_b32 exec_hi, -1")
        a.label(l)
    def cs2():
        l = a.uid("cs")
        a(f"s_cmp_lg_u32 s{sW}, 3\ns_cbranch_scc1 {l}\ns_mov_b32 exec_hi, 0xffff")
        for i in range(1, 10):
            a(f"v_pk_add_f32 v[{PV}:{PV+1}], v[{PV}:{PV+1}], v[{PV+4*i}:{PV+1+4*i}]\nv_pk_add_f32 v[{PV+2}:{PV+3}], v[{PV+2}:{PV+3}], v[{PV+2+4*i}:{PV+3+4*i}]")
        a(f"s_mul_i32 s{sC}, s{sWG}, 768\ns_add_u32 s{sC}, s{sC}, {WS_CSG}")
        a(f"buffer_store_dwordx4 v[{PV}:{PV+3}], v5, {WSR}, s{sC} offen\ns_mov_b32 exec_hi, -1")
        a.label(l)
    def fpw():
        a(f"s_lshl_b32 s{sC}, s{sW}, 13\ns_add_u32 s{sC}, s{sC}, {L_FG + 16}")
        poll(a, 13, PV, f"s{sC}", f"s{sEP}", sleep=2, wide=True)
    def wow():
        a(f"v_and_b32 v{PV+1}, 15, v0\nv_lshlrev_b32 v{PV+1}, 11, v{PV+1}\ns_mov_b32 s{sC}, {L_FG + 15*128 + 36}")
        poll(a, PV + 1, PV, f"s{sC}", f"s{sEP}", sleep=2)
    def l1only(fn):
        l = a.uid("l1")
        a(f"s_cmp_eq_u32 s{sL}, 0\ns_cbranch_scc1 {l}")
        fn(); a.label(l)
    def hook(j):
        if j == 1:
            kv_issue(2); kv_issue(3); a("s_waitcnt vmcnt(10)")
        elif j == 2:
            a("s_waitcnt vmcnt(5)"); l0only(lambda: prep(a, 0)); l1only(lambda: kv_issue(4))
            GF.ok &= ~(0x01010101 << 4)
        elif j < 7:
            a(f"s_waitcnt vmcnt({5 if j == 3 else 10})")
            if j < 6: l0only(lambda: a("s_waitcnt vmcnt(0)" if j < 5 else "s_waitcnt vmcnt(5)"))
        if j == 3: l0only(lambda: (prep(a, 1), kv_issue(4))); l1only(lambda: (kv_issue(5), kv_issue(6)))
        if j == 4:
            GF.ok &= ~(0x01010101 * 0xe0)
            l0only(lambda: (wow(), fp(), kv_issue(5), kv_issue(6))); l1only(lambda: kv_issue(7))
        if j == 5:
            GF.ok &= ~(0x01010101 * 0xe0)
            l0only(lambda: kv_issue(7))
            wwo(0); wwo(1); l1only(lambda: l2pf(0, 1))
        if j == 6:
            l0only(fpw)
            wwo(2); wwo(3)
            if fast and C.cpf: cpf("L_fast_tail", "L_fast_end")
            if fast:
                a(f"""
                s_lshl_b32 s{sPF}, s{sWG}, 1
                s_and_b32 s{sC}, s{sW}, 1
                s_add_u32 s{sPF}, s{sPF}, s{sC}
                s_mul_i32 s{sPF}, s{sPF}, 5120
                s_add_u32 s{sC}, s{sLO}, {L_O}
                s_bitcmp1_b32 s{sW}, 1
                s_cselect_b32 s{sC}, {L_X1}, s{sC}
                s_add_u32 s{sPF}, s{sPF}, s{sC}
                s_mov_b32 exec_hi, 0xff
                buffer_load_dword v{DUM}, v13, {WSR}, s{sPF} offen
                s_lshl_b32 s{sTmp}, s{sWG}, 9
                s_add_u32 s{sTmp}, s{sTmp}, s{sLO}
                s_add_u32 s{sTmp}, s{sTmp}, {L_ST1}
                s_mov_b64 exec, 15
                buffer_load_dword v{DUM}, v13, {WSR}, s{sTmp} offen
                s_mov_b64 exec, -1
                """)
            l1only(lambda: l2pf(1, 1))
        if j == 7:
            l0only(cs1)
            wwo(4)
            if fast and C.htouch == 0:
                a(f"""
                s_lshl_b32 s{sPF}, s{sWG}, 2
                s_add_u32 s{sPF}, s{sPF}, s{sQP}
                s_mul_i32 s{sPF}, s{sPF}, 6144
                s_add_u32 s{sPF}, s{sPF}, s{sLO}
                s_add_u32 s{sPF}, s{sPF}, {L_H}
                s_mov_b32 exec_hi, 0xffff
                buffer_load_dword v{DUM}, v13, {WSR}, s{sPF} offen
                s_mov_b32 exec_hi, -1
                """)
            l1only(lambda: l2pf(2, 2)); l0only(lambda: l2pf(0, C.l2pf0))
    def xreads():
        r = [f"ds_read_b32 v31, v{XF}"]
        for x in range(2): r.append(f"ds_read_b64 v[{PR+12+16*x}:{PR+13+16*x}], v{vX2} offset:{3584*x+3072}")
        for x in range(2):
            for i in range(3): r.append(f"ds_read_b128 v[{PR+16*x+4*i}:{PR+16*x+4*i+3}], v{vX1} offset:{3584*x+1024*i}")
        return r
    outl = []
    for c in range(8):
        for kt in range(4):
            st = kt & 1
            last = c == 7 and kt == 3
            if c == 0 and kt == 1:
                hk = a.uid("att_hk")
                a(f"s_cmp_eq_u32 s{sKH}, 0\ns_cbranch_scc1 {hk}"); a.label(hk + "r")
                def h0():
                    l = a.uid("h0")
                    a(f"s_cmp_eq_u32 s{sDone}, 0\ns_cbranch_scc1 {l}")
                    kv_issue(1)
                    a.label(l)
                outl.append((hk, h0))
            j = c + 1 if (kt == 3 and c < 6) else (7 if (c == 7 and kt == 0) else None)
            if j:
                hk = a.uid("att_hk")
                dstamp(a, 6, 3*j)
                a(f"s_cmp_eq_u32 s{sKH}, 0\ns_cbranch_scc1 {hk}")
                if C.flip and j < 7: a("s_setprio 2")
                a.label(hk + "r")
                dstamp(a, 6, 3*j+1)
                a("s_barrier")
                dstamp(a, 6, 3*j+2)
                outl.append((hk, (lambda jj: (lambda: hook(jj)))(j)))
            if C.flip and 1 <= c < 7 and kt == C.flip - 1: a("s_setprio 1")
            val = sm(0)
            mf = qk(1, st) + pv(1, st ^ 1)
            ex = rdV(st, c, kt)
            if kt == 3 and c in (2, 5):
                base[0] += 3 * CH
                ex += [f"v_add_u32 v{r}, {3*CH}, v{r}" for r in (vK, vK8, vV)]
            if not last: ex += rdK(st ^ 1, c + (kt + 1) // 4, (kt + 1) % 4)
            cut = 4
            if C.c0 and len(ex) == 8: del ex[3]; cut = 6
            a(mf[0]); [a(x) for x in ex[:cut]]; [a(x) for x in val[0:6]]
            a(mf[2]); [a(x) for x in ex[cut:]]; [a(x) for x in val[6:12]]
            a(mf[1]); [a(x) for x in val[12:18]]
            a(mf[3]); [a(x) for x in val[18:]]
            val = sm(1)
            a("s_waitcnt lgkmcnt(0)")
            if not last:
                mf = qk(0, st ^ 1) + pv(0, st)
                a(mf[0]); [a(x) for x in val[0:6]]
                a(mf[2]); [a(x) for x in val[6:12]]
                a(mf[1]); [a(x) for x in val[12:18]]
                a(mf[3]); [a(x) for x in val[18:]]
            else:
                mf = pv(0, st) + pv(1, st)
                a(mf[0]); [a(x) for x in val[0:6]]
                a(mf[1]); [a(x) for x in xreads()]; [a(x) for x in val[6:16]]
                a(mf[2]); [a(x) for x in val[16:]]
                a("s_nop 1"); a(mf[3])
    if fast: a.label("L_fast_tail")
    stamp(a, 8)
    fb = a.uid("att_fb"); comb = a.uid("att_comb"); done = a.uid("att_done"); yng = a.uid("att_y")
    def check():
        a(f"v_mul_f32 v10, {f32(2.0**63)}, v{OO+12}\nv_mul_f32 v11, {f32(2.0**63)}, v{OO+16+12}")
        a(f"v_add_f32 v10, v10, v10\nv_add_f32 v11, v11, v11\nv_mul_f32 v10, 0, v10\nv_mul_f32 v11, 0, v11")
        for i in range(12): a(f"v_fmac_f32 v10, 0, v{OO+i}\nv_fmac_f32 v11, 0, v{OO+16+i}")
        a(f"v_cmp_u_f32 vcc, v10, v11\ns_cbranch_vccnz {fb}")
    a(f"s_cmp_eq_u32 s{sKH}, 0\ns_cbranch_scc1 {yng}")
    def older():
        a.label(yng)
        a.nop(10)
        check()
        a.label(yng + "c")
        a(f"v_mov_b32 v{OO+13}, v8\nv_mov_b32 v{OO+16+13}, v9\nv_mov_b32 v10, s{sEP}")
        for x in range(2):
            for i in range(3):
                a(f"ds_write_b128 v{vX1}, v[{OO+16*x+4*i}:{OO+16*x+4*i+3}] offset:{3584*x+1024*i}")
            a(f"ds_write_b64 v{vX2}, v[{OO+16*x+12}:{OO+16*x+13}] offset:{3584*x+3072}")
        a(f"ds_write_b32 v{XF}, v10\ns_waitcnt vmcnt(0) lgkmcnt(0)")
        l0only(cs2)
        a(f"s_setprio 0")
        stamp(a, 9)
    pl = a.uid("att_x")
    a(f"s_waitcnt lgkmcnt(0)\nv_cmp_ne_u32 vcc, s{sEP}, v31\ns_cbranch_vccnz {pl}")
    a.label(pl + "k")
    def respin():
        a.label(comb)
        a(f"s_mov_b32 s{sFB}, 1\ns_cmp_eq_u32 s{sKH}, 0\ns_cbranch_scc1 {yng}c")
        a.label(pl)
        a(f"s_mov_b32 s{t+12}, 0")
        a.label(pl + "l")
        for x in xreads(): a(x)
        a(f"""
        s_waitcnt lgkmcnt(0)
        v_cmp_ne_u32 vcc, s{sEP}, v31
        s_cbranch_vccz {pl}k
        s_add_u32 s{t+12}, s{t+12}, 1
        s_cmp_lt_u32 s{t+12}, {4*SPIN}
        s_cbranch_scc1 {pl}l
        s_branch {pl}k
        """)
    FF = 64
    for x in range(2):
        f = FF + 4*x
        a(f"v_max_f32 v{f+2}, v{8+x}, v{PR+13+16*x}\nv_sub_f32 v{f}, v{8+x}, v{f+2}\nv_sub_f32 v{f+1}, v{PR+13+16*x}, v{f+2}")
    for x in range(2):
        f = FF + 4*x
        a(f"v_exp_f32 v{f}, v{f}\nv_exp_f32 v{f+1}, v{f+1}")
    for x in range(2):
        f = FF + 4*x; o = OO + 16*x; pk = 72 + 6*x
        a(f"v_mul_f32 v{f+2}, v{f}, v{o+12}\nv_fmac_f32 v{f+2}, v{f+1}, v{PR+12+16*x}\nv_rcp_f32 v{f+2}, v{f+2}\ns_nop 0")
        a(f"v_mul_f32 v{f}, v{f}, v{f+2}\nv_mul_f32 v{f+2}, v{f+1}, v{f+2}")
        for i in range(0, 12, 2):
            a(f"v_pk_mul_f32 v[{o+i}:{o+i+1}], v[{o+i}:{o+i+1}], v[{f}:{f+1}] op_sel_hi:[1,0]")
        for i in range(0, 12, 2):
            a(f"v_pk_fma_f32 v[{o+i}:{o+i+1}], v[{PR+16*x+i}:{PR+1+16*x+i}], v[{f+2}:{f+3}], v[{o+i}:{o+i+1}] op_sel_hi:[1,0,1]")
        for i in range(6):
            a(f"v_cvt_pk_bf16_f32 v{pk+i}, v{o+2*i}, v{o+2*i+1}")
        a(f"""
        buffer_store_dwordx2 v[{pk}:{pk+1}], v{vO}, {WSR}, s{sO+x} offen {SB}
        buffer_store_dwordx2 v[{pk+2}:{pk+3}], v{vO}, {WSR}, s{sO+x} offen offset:512 {SB}
        s_mov_b32 exec_hi, 0
        buffer_store_dwordx2 v[{pk+4}:{pk+5}], v{vO}, {WSR}, s{sO+x} offen offset:1024 {SB}
        s_mov_b32 exec_hi, -1
        """)
    nck = a.uid("att_nc")
    a(f"s_cmp_lg_u32 s{sFB}, 0\ns_cbranch_scc1 {nck}")
    check()
    a.label(nck)
    flag_setup(a, 2)
    a("s_setprio 0\ns_waitcnt vmcnt(0)")
    flag_store(a, SB)
    a("s_barrier")
    stamp(a, 9)
    a(f"s_branch {ld_label}")
    for hk, fn in outl:
        a.label(hk); fn(); a(f"s_branch {hk}r")
    respin()
    older()
    def fallback():
        a.label(fb)
        sKb, sVb, sI = t+12, t+13, t+14
        def addr():
            a(f"""
            s_lshr_b32 s{sKb}, s{sI}, 2
            s_lshl_b32 s{sKb}, s{sKb}, 1
            s_add_u32 s{sKb}, s{sKb}, s{sKH}
            s_lshl_b32 s{sKb}, s{sKb}, 2
            s_and_b32 s{sVb}, s{sI}, 3
            s_add_u32 s{sKb}, s{sKb}, s{sVb}
            s_mul_i32 s{sKb}, s{sKb}, 1280
            s_add_u32 s{sKb}, s{sKb}, s{sHB}
            s_add_u32 s{sVb}, s{sKb}, {L_V}
            s_add_u32 s{sKb}, s{sKb}, {L_K}
            buffer_load_dwordx4 v[{KF}:{KF+3}], v5, {WSR}, s{sKb} offen sc1
            s_mov_b32 exec_hi, {0 if C.c0 else -1}
            buffer_load_dwordx2 v[{KF+4}:{KF+5}], v6, {WSR}, s{sKb} offen offset:1024 sc1
            s_mov_b32 exec_hi, -1
            """)
        l1 = a.uid("att_fb1"); l2 = a.uid("att_fb2")
        a(f"s_mov_b32 s{sI}, 0\nv_mov_b32 v8, 0xff800000\nv_mov_b32 v9, 0xff800000")
        a(f"s_mov_b32 exec_lo, 0\nv_mov_b64 v[{QA+4}:{QA+5}], 0\nv_mov_b64 v[{QB+4}:{QB+5}], 0\ns_mov_b32 exec_lo, -1")
        a.label(l1)
        addr()
        a("s_waitcnt vmcnt(0)")
        for x in range(2):
            for m in qk(x, 0, "0"): a(m)
        a.nop(12)
        for x in range(2):
            sd = SS + 16*x
            for i in range(0, 16, 2): a(f"v_max3_f32 v{8+x}, v{8+x}, v{sd+i}, v{sd+i+1}")
        a(f"s_add_u32 s{sI}, s{sI}, 1\ns_cmp_lt_u32 s{sI}, 32\ns_cbranch_scc1 {l1}")
        setm()
        for i in range(32): a(f"v_mov_b32 v{OO+i}, 0")
        a(f"s_mov_b32 s{sI}, 0")
        a.label(l2)
        addr()
        a(f"""
        s_mov_b64 exec, s[{sEX}:{sEX+1}]
        buffer_load_dwordx4 v[{VF}:{VF+3}], v7, {WSR}, s{sVb} offen sc1
        buffer_load_dwordx4 v[{VF+4}:{VF+7}], v7, {WSR}, s{sVb} offen offset:640 sc1
        s_mov_b64 exec, -1
        s_waitcnt vmcnt(0)
        """)
        for x in range(2):
            for m in qk(x, 0): a(m)
        a.nop(12)
        for x in range(2):
            for i in sm(x): a(i)
        a("s_nop 1")
        for x in range(2):
            for m in pv(x, 0): a(m)
        a(f"s_add_u32 s{sI}, s{sI}, 1\ns_cmp_lt_u32 s{sI}, 32\ns_cbranch_scc1 {l2}")
        a.nop(12)
        a(f"s_branch {comb}")
    return fallback

def xoff(SB, which):
    if SB == "": return (False, L_X1)
    return (True, L_X1) if which == 1 else (False, L_X2)
def add_x(a, dst, src, SB, which):
    lo, c = xoff(SB, which)
    a(f"s_add_u32 s{dst}, s{src}, {c}")
    if lo: a(f"s_add_u32 s{dst}, s{dst}, s{sLO}")

def proj_compute(a, down, SB, end_label):
    fast = SB == ""
    t = T
    K = F if down else D
    NCH = K // 128
    sRT, sCT = t, t+1
    st0 = 13 if down else 10
    sF, sRM, sST, sA, sA1, sThr, sSel = t+4, t+5, t+12, t+2, t+3, t+9, t+10
    NWS = 3 if down else C.wo_sets
    ACC = 14; RX = 34; AF = 54; WF = 134 if down else 54 + 16*C.wo_nas; RES = (220 if down else 54); VST = 200
    assert WF + 20*NWS <= 254
    vF, vF2, vR, vR2 = 10, 11, 12, 13
    a(f"""
    s_lshr_b32 s{sRT}, s{sWG}, 3
    s_and_b32 s{sCT}, s{sR}, 7
    v_and_b32 v3, 15, v0
    v_lshrrev_b32 v7, 4, v0
    s_lshl_b32 s{t+6}, s{sRT}, 1
    s_lshr_b32 s{t+7}, s{sW}, 1
    s_add_u32 s{t+6}, s{t+6}, s{t+7}
    s_and_b32 s{t+8}, s{sW}, 1
    s_lshl_b32 s{t+8}, s{t+8}, 8
    s_mul_i32 s{sA}, s{t+6}, {K*64}
    s_add_u32 s{sA}, s{sA}, s{t+8}
    s_add_u32 s{sA}, s{sA}, s{sLO}
    s_add_u32 s{sA}, s{sA}, {L_H if down else L_O}
    s_mul_i32 s{sF}, s{t+6}, 40960
    s_mul_i32 s{t+7}, s{sCT}, 5120
    s_add_u32 s{sF}, s{sF}, s{t+7}
    s_add_u32 s{sF}, s{sF}, s{t+8}
    s_lshl_b32 s{sST}, s{sW}, 8
    s_lshl_b32 s{t+7}, s{sRT}, 12
    s_add_u32 s{sST}, s{sST}, s{t+7}
    s_add_u32 s{sST}, s{sST}, s{sLO}
    s_lshl_b32 s{sRM}, s{sRT}, 2
    s_add_u32 s{sRM}, s{sRM}, s{sW}
    s_mul_i32 s{sRM}, s{sRM}, {16*1280}
    s_mul_i32 s{t+7}, s{sCT}, 160
    s_add_u32 s{sRM}, s{sRM}, s{t+7}
    v_lshlrev_b32 v1, 4, v3
    v_lshl_add_u32 v{vF}, v7, 9, v1
    v_lshrrev_b32 v2, 5, v0
    v_lshl_add_u32 v1, v2, 9, v1
    v_and_b32 v2, 1, v7
    v_lshl_add_u32 v{vF2}, v2, 3, v1
    v_add_u32 v{vF2}, 4096, v{vF2}
    v_mul_u32_u24 v1, 1280, v3
    v_lshl_add_u32 v{vR}, v7, 4, v1
    v_lshl_add_u32 v{vR2}, v7, 3, v1
    v_add_u32 v9, 4096, v{vF}
    """)
    if C.x_a == 1 and not down: a(f"s_lshr_b32 s{sA}, s{sW}, 1\ns_mul_i32 s{sA}, s{sA}, 40960\ns_add_u32 s{sA}, s{sA}, s{t+8}\ns_add_u32 s{sA}, s{sA}, {WS_WTG}")
    SA = Src(sA, sA1, sThr, 8192)
    if down:
        a(f"s_and_b32 s{t+7}, s{sRT}, 3\ns_mul_i32 s{t+7}, s{t+7}, {C.rot_dn}\ns_sub_u32 s{sThr}, 12, s{t+7}")
        SA.setup(a, t+7, 12, t+8)
    def io(store, rowmajor, rsrc, soff, reg, bits):
        op = "store" if store else "load"
        v16, v8 = (vR, vR2) if rowmajor else (vF, vF2)
        o1, o2 = (64, 128) if rowmajor else (2048, 0)
        return [f"buffer_{op}_dwordx4 v[{reg}:{reg+3}], v{v16}, {rsrc}, {soff} offen {bits}",
                f"buffer_{op}_dwordx4 v[{reg+4}:{reg+7}], v{v16}, {rsrc}, {soff} offen offset:{o1} {bits}",
                f"buffer_{op}_dwordx2 v[{reg+8}:{reg+9}], v{v8}, {rsrc}, {soff} offen offset:{o2} {bits}"]
    if down:
        add_x(a, t+7, sF, SB, 1)
        for x in io(False, False, WSR, f"s{t+7}", RES, "sc1"): a(x)
        a(f"s_add_u32 s{t+7}, s{sST}, {L_ST1}\nv_lshlrev_b32 v1, 4, v3")
        for i in range(4):
            a(f"buffer_load_dwordx4 v[{VST+4*i}:{VST+4*i+3}], v1, {WSR}, s{t+7} offen offset:{1024*i} sc1")
        if fast:
            a(f"s_lshl_b32 s{t+8}, s{sWG}, 9\ns_add_u32 s{t+8}, s{t+8}, {L_ST2}\nv_lshlrev_b32 v1, 7, v0\ns_mov_b64 exec, 15")
            a(f"buffer_load_dword v8, v1, {WSR}, s{t+8} offen\ns_mov_b64 exec, -1")
    else:
        l1 = a.uid("prj_r1"); l2 = a.uid("prj_r2")
        a(f"s_cmp_lg_u32 s{sL}, 0\ns_cbranch_scc1 {l1}")
        for x in io(False, True, R(R_X), f"s{sRM}", RES, ""): a(x)
        a(f"s_branch {l2}")
        a.label(l1)
        add_x(a, t+7, sF, SB, 2)
        for x in io(False, False, WSR, f"s{t+7}", RES, "sc1"): a(x)
        a.label(l2)
    a(f"v_lshlrev_b32 v4, 4, v0\nv_add_u32 v5, 61440, v4\nv_add_u32 v6, 122880, v4\ns_mov_b32 s{t+8}, 0xffff0000")
    def wadr(c):
        o = dnW(c) if down else c * 20480
        return 4 + o // 61440, o % 61440
    def reads(c, u):
        b = WF + 20*((4*c + u) % NWS); r, o = wadr(c)
        return [f"ds_read_b128 v[{b+4*jn}:{b+4*jn+3}], v{r} offset:{o + 5120*u + 1024*jn}" for jn in range(5)]
    NAS = 5 if down else C.wo_nas
    def aload(c):
        r = []
        if down and C.rot_dn: r += [f"s_cmp_gt_u32 s{sThr}, {c}", f"s_cselect_b32 s{sSel}, s{sA}, s{sA1}", f"s_add_u32 s{sSel}, s{sSel}, {c*8192}"]
        else: r += [f"s_add_u32 s{sSel}, s{sA}, {c*8192}"]
        for u in range(4):
            d = AF + 16*(c % NAS) + 4*u
            r.append(f"buffer_load_dwordx4 v[{d}:{d+3}], v{vF if u < 2 else 9}, {WSR}, s{sSel} offen offset:{2048*(u & 1)} sc1")
        return r
    def mfmas(c, u, zero=False):
        b = WF + 20*((4*c + u) % NWS); x = AF + 16*(c % NAS) + 4*u
        return [f"v_mfma_f32_16x16x32_bf16 {v(ACC+4*jn,4)}, {v(b+4*jn,4)}, {v(x,4)}, {0 if zero else v(ACC+4*jn,4)}" for jn in range(5)]
    D_ = NWS - 1
    rd = lambda st_: reads(st_ // 4, st_ % 4) if st_ < 4*NCH else []
    if down: a(f"s_and_b32 s{t+7}, s{sRT}, 3\ns_mul_i32 s{t+7}, s{t+7}, {4 if C.rot_dn else 0}")
    G_ = gate_local(a, "down" if down else "wo", 4 if down else 2, 1, 2, t+7)
    def setup2():
        if not down: a("s_waitcnt vmcnt(0)")
        for i in range(10):
            a(f"v_lshlrev_b32 v{RX+2*i}, 16, v{RES+i}\nv_and_b32 v{RX+1+2*i}, s{t+8}, v{RES+i}")
        if down:
            row_stats(a, VST, VST + 2, VST + 3)
            a(f"v_mul_f32 v{VST+2}, v{VST+3}, v{VST+3}")
        if not down: a("s_barrier")
        for st_ in range(D_):
            for x in rd(st_): a(x)
    if down: G_.load(); G_.upd()
    setup2()
    def al(c):
        G_.need(span(128*c, 128*c + 127, 96, 2) if down else (span(128*c, 128*c + 127, 20, 1) if C.x_a != 3 else 0xffffffff))
        if c == 0: stamp(a, st0)
        for x in aload(c):
            if C.x_d == 1 and down and c >= 3 and x.startswith("buffer"): x = x.replace(WSR, R(R_WQ)).replace(f"s{sSel} offen", "0 offen").replace("sc1", "")
            a(x)
    NPRE = C.dn_a if down else C.wo_a
    N0 = C.dn_a0 if down else C.wo_a0
    assert NPRE < NAS or NCH <= NAS
    for c in range(N0): al(c)
    stamp(a, 21 if down else 5)
    nis = N0; pend = []; nld = 4*N0
    for c in range(NCH):
        for u in range(4):
            step = 4*c + u
            left = min(D_ - 1, 4*NCH - 1 - step)
            assert nld > step
            a(f"s_waitcnt vmcnt({nld - step - 1}) lgkmcnt({min(15, 5*left)})")
            if down and C.stamp and C.dbg == 8 and u in (0, 2): a(f"s_memtime s[10:11]\ns_waitcnt lgkmcnt(0)\nv_writelane_b32 v254, s10, {2*c + u//2}")
            if step == 4*NCH - 1 or (down and u == 2 and c + 1 < NCH): a("s_barrier")
            if not pend and nis < min(NCH, c + NPRE + 1):
                full = down and nis >= C.dn_full
                G_.need(0xffffffff if full else (span(128*nis, 128*nis + 127, 96, 2) if down else span(128*nis, 128*nis + 127, 20, 1)))
                ld = aload(nis); nis += 1
                for x in ld[:-4]: a(x)
                pend = ld[-4:]
            k = 2 if nld - step < 4*NPRE - 2 else 1
            mf = mfmas(c, u, step == 0); r_ = rd(step + D_)
            for i in range(5):
                a(mf[i])
                if r_: a(r_[i])
                if pend and i in ((4,) if k == 1 else (1, 4)): a(pend.pop(0)); nld += 1
    stamp(a, st0 + 1)
    add_x(a, t+7, sF, SB, 2 if down else 1)
    flag_setup(a, 5 if down else 3)
    for i in range(0, 20, 2):
        c = ACC + i
        if down: a(f"v_pk_fma_f32 v[{c}:{c+1}], v[{c}:{c+1}], v[{VST+2}:{VST+3}], v[{RX+i}:{RX+i+1}] op_sel_hi:[1,0,1]")
        else: a(f"v_pk_add_f32 v[{c}:{c+1}], v[{c}:{c+1}], v[{RX+i}:{RX+i+1}]")
        a(f"v_cvt_pk_bf16_f32 v{60+i//2}, v{c}, v{c+1}")
    if down:
        l1 = a.uid("prj_o1")
        a(f"s_cmp_eq_u32 s{sL}, 0\ns_cbranch_scc1 {l1}")
        srd(a, R_T, P_OUT, ACT)
        for x in io(True, True, R(R_T), f"s{sRM}", 60, ["", "sc1", "nt"][C.outb]): a(x)
        a(f"s_branch {end_label}")
        a.label(l1)
    for x in io(True, False, WSR, f"s{t+7}", 60, SB): a(x)
    a(f"v_pk_add_f32 v[72:73], v[{ACC}:{ACC+1}], v[{ACC+2}:{ACC+3}]\nv_pk_mul_f32 v[74:75], v[{ACC}:{ACC+1}], v[{ACC}:{ACC+1}]")
    a(f"v_pk_fma_f32 v[74:75], v[{ACC+2}:{ACC+3}], v[{ACC+2}:{ACC+3}], v[74:75]")
    for i in range(4, 20, 2):
        a(f"v_pk_add_f32 v[72:73], v[72:73], v[{ACC+i}:{ACC+i+1}]\nv_pk_fma_f32 v[74:75], v[{ACC+i}:{ACC+i+1}], v[{ACC+i}:{ACC+i+1}], v[74:75]")
    a(f"""
    v_add_f32 v72, v72, v73
    v_add_f32 v73, v74, v75
    s_lshr_b32 s{t+7}, s{sCT}, 1
    s_lshl_b32 s{t+7}, s{t+7}, 10
    v_permlane32_swap_b32 v72, v73
    s_and_b32 s{t+8}, s{sCT}, 1
    s_lshl_b32 s{t+8}, s{t+8}, 3
    v_add_f32 v72, v72, v73
    v_mov_b32 v73, v72
    s_add_u32 s{t+7}, s{t+7}, s{t+8}
    s_add_u32 s{t+7}, s{t+7}, s{sST}
    v_permlane16_swap_b32 v72, v73
    s_add_u32 s{t+7}, s{t+7}, {L_ST2 if down else L_ST1}
    v_lshrrev_b32 v8, 5, v0
    v_lshlrev_b32 v8, 2, v8
    v_lshl_add_u32 v8, v3, 4, v8
    v_add_f32 v72, v72, v73
    buffer_store_dword v72, v8, {WSR}, s{t+7} offen {SB}
    s_waitcnt vmcnt(0)
    """)
    flag_store(a, SB)
    a("s_barrier")
    stamp(a, st0 + 2)

def gu_compute(a, SB):
    t = T
    sRT, sCT, sWM, sWN, sTB, sF0 = t, t+1, t+2, t+3, t+4, t+6
    FR = 16; ACC = 96; VCS = 192; VST = 216; MS = 232
    a(f"""
    s_lshr_b32 s{sRT}, s{sWG}, 4
    s_and_b32 s{sCT}, s{sR}, 15
    s_and_b32 s{sWM}, s{sW}, 1
    s_lshr_b32 s{sWN}, s{sW}, 1
    s_lshl_b32 s{sTB}, s{sRT}, 1
    s_add_u32 s{sTB}, s{sTB}, s{sWM}
    s_mul_i32 s{sF0}, s{sCT}, 96
    s_mul_i32 s{t+5}, s{sWN}, 48
    s_add_u32 s{sF0}, s{sF0}, s{t+5}
    s_mul_i32 s{t+5}, s{sWG}, 768
    s_mul_i32 s{t+7}, s{sWN}, 384
    s_add_u32 s{t+5}, s{t+5}, s{t+7}
    s_add_u32 s{t+5}, s{t+5}, {WS_CSG}
    v_lshrrev_b32 v12, 4, v0
    v_lshlrev_b32 v1, 4, v12
    """)
    for f in range(6):
        a(f"buffer_load_dwordx4 v[{VCS+4*f}:{VCS+4*f+3}], v1, {WSR}, s{t+5} offen offset:{64*f} sc1")
    a(f"""
    v_and_b32 v13, 15, v0
    v_lshlrev_b32 v3, 4, v13
    v_lshl_add_u32 v3, v12, 9, v3
    s_lshl_b32 s{t+5}, s{sWM}, 13
    v_add_u32 v3, s{t+5}, v3
    v_lshlrev_b32 v11, 4, v0
    s_mul_i32 s{t+5}, s{sWN}, 6144
    s_add_u32 s{t+5}, s{t+5}, {WB}
    v_add_u32 v4, s{t+5}, v11
    v_add_u32 v5, 49152, v4
    v_lshlrev_b32 v6, 2, v13
    s_mul_i32 s{t+11}, s{sTB}, {2*F*64}
    s_lshl_b32 s{t+7}, s{sF0}, 6
    s_add_u32 s{t+11}, s{t+11}, s{t+7}
    s_add_u32 s{t+11}, s{t+11}, s{sLO}
    s_add_u32 s{t+11}, s{t+11}, {L_H}
    s_add_u32 s{t+12}, s{t+11}, {F*64}
    """)
    flag_setup(a, 4)
    def reads(c, u):
        b = FR + 40*u; o = guW(c) - WB
        ra = [f"ds_read_b128 v[{b+4*tt}:{b+4*tt+3}], v3 offset:{(c % 4)*16384 + 4096*(tt >> 1) + 256*(tt & 1) + 2048*u}" for tt in range(4)]
        rw = [f"ds_read_b128 v[{b+16+4*f}:{b+19+4*f}], v{4 + o // 49152} offset:{o % 49152 + 12288*u + 1024*f}" for f in range(6)]
        return ra + rw
    def mfma(u, tl, z):
        b = FR + 40*u; c = ACC + 4*tl
        return f"v_mfma_f32_16x16x32_bf16 {v(c,4)}, {v(b+16+4*(tl>>2),4)}, {v(b+4*(tl&3),4)}, {0 if z else v(c,4)}"
    def epi(jn, pk):
        r = []
        g = ACC + 32*jn; u_ = g + 16
        for tp in range(2):
            c = g + 8*tp; d = u_ + 8*tp
            for i in range(8): r.append(f"v_max_f32 v{c+i}, 0, v{c+i}")
            if pk:
                for i in range(0, 8, 2): r.append(f"v_pk_mul_f32 v[{c+i}:{c+i+1}], v[{c+i}:{c+i+1}], v[{d+i}:{d+i+1}]")
            else:
                for i in range(8): r.append(f"v_mul_f32 v{c+i}, v{c+i}, v{d+i}")
            for i in range(4): r.append(f"v_cvt_pk_bf16_f32 v{c+i}, v{c+2*i}, v{c+2*i+1}")
            r += ["s_nop 0", f"v_permlane16_swap_b32 v{c}, v{c+2}", f"v_permlane16_swap_b32 v{c+1}, v{c+3}"]
            r.append(f"buffer_store_dwordx4 v[{c}:{c+3}], v11, {WSR}, s{t+11+tp} offen offset:{1024*jn} {SB}")
        return r
    a(f"s_lshl_b32 s{t+5}, s{sTB}, 12\ns_add_u32 s{t+5}, s{t+5}, s{sLO}\ns_add_u32 s{t+5}, s{t+5}, {L_ST1}")
    ins = {}
    for i in range(4): ins[36 + 48*C.gfull + 3*i] = [f"buffer_load_dwordx4 v[{VST+4*i}:{VST+4*i+3}], v11, {WSR}, s{t+5} offen offset:{1024*i} sc1"]
    ins[82 + 48*C.gfull] = ["s_waitcnt vmcnt(0)"] + [f"v_add_f32 v{VST}, v{VST}, v{VST+2*i}" for i in range(1, 8)] + \
         [f"v_mul_f32 v{MS}, {f32(-1.0/D)}, v{VST}", f"v_mul_f32 v{MS+1}, {f32(-1.0/D)}, v{VST}", "s_nop 0", f"v_permlane16_swap_b32 v{MS}, v{MS+1}",
          f"v_mov_b32 v{MS+2}, v{MS}", f"v_mov_b32 v{MS+3}, v{MS+1}", "s_nop 0", f"v_permlane32_swap_b32 v{MS}, v{MS+2}", f"v_permlane32_swap_b32 v{MS+1}, v{MS+3}"]
    fix = lambda tl: [f"v_fmac_f32 v{ACC+4*tl+i}, v{MS+(tl&3)}, v{VCS+4*(tl>>2)+i}" for i in range(4)]
    gemm16(a, 10, 24, reads, mfma, [tuple(range(8*j, 8*j+8)) for j in range(3)], ins, fix, 122 + 48*C.gfull, epi, 22)
    a("s_waitcnt vmcnt(0)")
    flag_store(a, SB)
    a("s_barrier")
    stamp(a, 23)

def loader_chain(a, SB, end_label, idle_label):
    t = T
    sLW, s4, s5, s6, aGU, aGU1, wGU, wGU1, wDN, wDN1, aQK, aQK1, wQK, wQK1, th10, th12, sTmp, sSel, thq = range(t, t + 19)
    sRot = sSel
    a(f"""
    s_sub_u32 s{sLW}, s{sW}, 4
    v_lshlrev_b32 v8, 4, v0
    s_mul_i32 s{s6}, s{sLW}, 6144
    s_and_b32 s{wGU}, s{sR}, 15
    s_mul_i32 s{wGU}, s{wGU}, 245760
    s_add_u32 s{wGU}, s{wGU}, s{s6}
    s_add_u32 s{wGU}, s{wGU}, {WS_WTG}
    s_lshr_b32 s{sRot}, s{sR}, 4
    s_mul_i32 s{sRot}, s{sRot}, {C.rot_gu}
    s_sub_u32 s{th10}, 10, s{sRot}
    """)
    S_aGU = Src(aGU, aGU1, th10, 4096); S_wGU = Src(wGU, wGU1, th10, 24576); S_wDN = Src(wDN, wDN1, th12, 20480)
    S_aQK = Src(aQK, aQK1, thq, 4096); S_wQK = Src(wQK, wQK1, thq, 64*3840)
    S_wGU.setup(a, sRot, 10, sTmp)
    def rest():
        a(f"""
        s_lshl_b32 s{s4}, s{sLW}, 12
        s_mul_i32 s{s5}, s{sLW}, 5120
        s_lshr_b32 s{aQK}, s{sWG}, 4
        s_lshl_b32 s{aQK}, s{aQK}, 2
        s_add_u32 s{aQK}, s{aQK}, s{sLW}
        s_mul_i32 s{aQK}, s{aQK}, 40960
        """)
        add_x(a, aGU, aQK, SB, 1)
        add_x(a, aQK, aQK, SB, 2)
        a(f"s_and_b32 s{wDN}, s{sR}, 15")
        qkvW_setup(a, wQK, sLW, wDN, sTmp, 6)
        a(f"s_sub_u32 s{sRot}, 10, s{th10}")
        S_aGU.setup(a, sRot, 10, sTmp)
        a(f"s_lshr_b32 s{sRot}, s{sR}, 4\ns_mul_i32 s{sRot}, s{sRot}, {C.rot_qk}\ns_sub_u32 s{thq}, 10, s{sRot}")
        for S_ in (S_aQK, S_wQK): S_.setup(a, sRot, 10, sTmp)
        a(f"""
        s_and_b32 s{wDN}, s{sR}, 7
        s_mul_i32 s{wDN}, s{wDN}, 245760
        s_add_u32 s{wDN}, s{wDN}, s{s5}
        s_add_u32 s{wDN}, s{wDN}, {WS_WTD}
        s_lshr_b32 s{sRot}, s{sR}, 3
        s_mul_i32 s{sRot}, s{sRot}, {C.rot_dn}
        s_sub_u32 s{th12}, 12, s{sRot}
        """)
        S_wDN.setup(a, sRot, 12, sTmp)
    G_ = [None, None]
    def lin(S_, dst, dfn, bits):
        def f(c, i0, k):
            if bits == "sc1":
                G_[0].need(span(64*c, 64*c + 63, 80, 2) if C.gran else 0xffff)
                if G_[1] is not None: stamp(a, G_[1]); G_[1] = None
            S_.sel(a, c, sSel)
            lin_dma(a, 8, sSel, c*S_.stride + 1024*i0, dst, dfn(c) + 1024*i0, k, bits)
        return f
    def pf(kind, ep, st, rot):
        def f():
            a(f"s_lshr_b32 s{sTmp}, s{sR}, 4\ns_mul_i32 s{sTmp}, s{sTmp}, {4 if rot else 0}")
            G_[0] = gate_local(a, kind, ep, 1, 2, sTmp, sleep=C.psleep); G_[1] = st
        return f
    def emitWQ(c, i0, k):
        S_wQK.sel(a, c, sSel)
        for i in range(i0, i0 + k):
            a(f"s_add_u32 m0, s{s4}, {qkW(c) + 1024*i}\ns_add_u32 s{sTmp}, s{sSel}, {c*64*3840 + i*4*3840}")
            a(f"buffer_load_dwordx4 v6, {R(R_WQ)}, s{sTmp} offen {'nt' if C.nt_qk else ''} lds")
    rA = lambda c: (c % 4) * 16384
    full = lambda c: G_[0].need(0xffff) if c == 1 else None
    reg = lambda f, sz: (lambda c: (f(c), f(c) + sz))
    gu = Phase("gu", 10, 4, 6, lin(S_aGU, s4, rA, "sc1"), lin(S_wGU, s6, guW, "nt" if C.nt_gu else ""), reg(rA, 16384), reg(guW, 24576), pf("gu", 3, 21, C.rot_gu), C.bud_gu, dbg=(C.dbg == 3), after_bar=lambda c: G_[0].need(0xffff) if c == C.gfull else None)
    dn = Phase("dn", 12, 0, 5, None, lin(S_wDN, s5, dnW, "nt" if C.nt_dn else ""), None, reg(dnW, 20480), None, C.bud_dn, lag=2, early=C.dn_early, dbg=(C.dbg == 4))
    qk = Phase("qk", 10, 4, 4, lin(S_aQK, s4, rA, "sc1"), emitWQ, reg(rA, 16384), reg(qkW, 16384), pf("gu", 5, 17, C.rot_qk), C.bud_qk, early=C.qk_early, dbg=(C.dbg == 2), after_bar=full)
    L = Loader(a)
    L.live["wo"] = (0, 102400)
    pn = L.pre(gu, 0, C.gu_e)
    rest()
    a("s_barrier")
    L.live.pop("wo")
    pn = L.pre(gu, pn, C.gu_e2)
    a("s_barrier"); pn = L.pre(gu, pn, C.gu_p)
    pn = L.run(gu, dn, pn); stamp(a, 22); L.end(gu); pn = L.pre(dn, pn, C.dn_e)
    L.wait({("dn", "W", 0)}); a("s_barrier"); pn = L.pre(dn, pn, C.dn_p)
    dn.skip0 = True
    def lastexit(ws_):
        l = a.uid("lx")
        a(f"s_cmp_eq_u32 s{sL}, 0\ns_cbranch_scc1 {l}")
        for w_ in ws_: a(f"s_waitcnt vmcnt({w_})\ns_barrier")
        a(f"s_barrier\ns_branch {end_label}")
        a.label(l)
    pn = L.run(dn, qk, pn, lastexit=lastexit); stamp(a, 14); L.end(dn)
    a(f"s_cmp_lg_u32 s{sL}, 0\ns_cbranch_scc1 {end_label}")
    pn = L.pre(qk, pn, C.qk_e)
    a("s_barrier")
    a(f"s_and_b32 s{sTmp}, s{sR}, 15\ns_cmp_eq_u32 s{sTmp}, 15\ns_cbranch_scc1 {idle_label}")
    pn = L.pre(qk, pn, C.qk_p)
    L.run(qk, None, pn); stamp(a, 19); L.end(qk)

def build():
    a = Asm()
    K = NAME + "_kernel"
    t = T
    a(f".globl {K}\n.p2align 8\n.type {K},@function")
    a.label(K)
    a(f"""
    s_load_dwordx16 s[16:31], s[0:1], 0
    s_load_dwordx4 s[32:35], s[0:1], 64
    s_cmp_ge_u32 s2, 256
    s_cbranch_scc1 L_exit
    s_and_b32 s{sG}, s2, 7
    s_lshr_b32 s{sR}, s2, 3
    v_lshrrev_b32 v1, 6, v0
    v_and_b32 v0, 63, v0
    v_readfirstlane_b32 s{sW}, v1
    s_lshl_b32 s{sWG}, s{sG}, 5
    s_add_u32 s{sWG}, s{sWG}, s{sR}
    s_mov_b32 s{sL}, 0
    s_mov_b32 s{sLO}, 0
    s_mov_b32 s{sEP}, 0
    s_mov_b32 s{sTMO}, 0
    """)
    if C.stamp: a("v_mov_b32 v255, 0\nv_mov_b32 v254, 0\ns_memrealtime s[14:15]")
    stamp(a, 0)
    qkv_ids(a, t)
    a(f"s_cmp_lt_u32 s{sW}, 4\ns_cbranch_scc1 L_q1c\ns_cmp_eq_u32 s{t+1}, 15\ns_cbranch_scc1 L_q1c")
    qkv1_loader(a)
    a("s_branch L_q1done")
    a.label("L_q1c")
    a("s_waitcnt lgkmcnt(0)")
    srd(a, R_X, P_X, ACT)
    srd(a, R_WQ, P_WQKV, D*3*D*2)
    a(f"""
    s_cmp_gt_u32 s{sW}, 3
    s_cbranch_scc1 L_npf
    s_lshl_b32 s{t+8}, s{sWG}, 2
    s_add_u32 s{t+8}, s{t+8}, s{sW}
    s_mul_i32 s{t+8}, s{t+8}, 2560
    v_lshrrev_b32 v1, 5, v0
    v_mul_u32_u24 v1, 1280, v1
    v_and_b32 v2, 31, v0
    v_lshl_add_u32 v1, v2, 4, v1
    v_mov_b64 v[228:229], 0
    v_mov_b64 v[230:231], 0
    buffer_load_dwordx4 v[220:223], v1, {R(R_X)}, s{t+8} offen
    buffer_load_dwordx4 v[224:227], v1, {R(R_X)}, s{t+8} offen offset:512
    s_mov_b32 exec_lo, 0xffff
    s_mov_b32 exec_hi, 0xffff
    buffer_load_dwordx4 v[228:231], v1, {R(R_X)}, s{t+8} offen offset:1024
    s_mov_b64 exec, -1
    """)
    a.label("L_npf")
    other_srds(a)
    a(f"s_cmp_eq_u32 s{t+1}, 15\ns_cbranch_scc1 L_q1idle")
    qkv_compute(a, True, "sc1")
    a("s_branch L_q1done")
    a.label("L_q1idle")
    qkv1_idle(a)
    a.label("L_q1done")
    a(f"s_cmp_eq_u32 s{sMODE}, 0\ns_cbranch_scc1 L_slow")
    tails = []
    for nm, SB in (("fast", ""), ("slow", "sc1")):
        a.label(f"L_{nm}")
        tails.append(phase_attn(a, SB, f"L_{nm}_ld"))
        if nm == "fast": a.label("L_fast_post")
        proj_compute(a, False, SB, None)
        gu_compute(a, SB)
        proj_compute(a, True, SB, "L_end")
        qkv_ids(a, t)
        a(f"s_cmp_eq_u32 s{t+1}, 15\ns_cbranch_scc1 L_{nm}_idle")
        qkv_compute(a, False, SB)
        a(f"s_branch L_{nm}_next")
        a.label(f"L_{nm}_ld")
        loader_chain(a, SB, "L_end", f"L_{nm}_idle")
        a(f"s_branch L_{nm}_next")
        a.label(f"L_{nm}_idle")
        a("s_waitcnt vmcnt(0)\ns_barrier")
        a.label(f"L_{nm}_next")
        a(f"s_mov_b32 s{sL}, 1\ns_mov_b32 s{sLO}, {LSTRIDE}\ns_add_u32 s{sEP}, s{sEP}, 5\ns_mov_b32 s{R_WQ+2}, 0\ns_branch L_{nm}")
        if nm == "fast":
            a.label("L_end")
            a(f"""
            s_xor_b32 s{t}, s{sW}, 7
            s_or_b32 s{t}, s{t}, s2
            s_cmp_lg_u32 s{t}, 0
            s_cbranch_scc1 L_end2
            v_mov_b32 v1, 0
            s_mov_b64 exec, 1
            global_store_dword v1, v1, s[{P_DBG}:{P_DBG+1}] sc1
            s_mov_b64 exec, -1
            """)
            a.label("L_end2")
            if C.stamp:
                a("s_waitcnt vmcnt(0)")
                stamp(a, 16)
                a(f"""
                s_memrealtime s[10:11]
                s_waitcnt lgkmcnt(0)
                v_writelane_b32 v255, s14, 62
                v_writelane_b32 v255, s10, 63
                v_writelane_b32 v255, s{sTMO}, 61
                s_lshl_b32 s10, s2, 3
                s_add_u32 s10, s10, s{sW}
                s_lshl_b32 s10, s10, 8
                s_add_u32 s10, s10, {WS_STAMP}
                v_lshlrev_b32 v1, 2, v0
                v_add_u32 v1, s10, v1
                global_store_dword v1, v255, s[{P_WS}:{P_WS+1}]
                v_add_u32 v1, {1<<20}, v1
                global_store_dword v1, v254, s[{P_WS}:{P_WS+1}]
                """)
                if C.pj:
                    a(f"""
                    s_xor_b32 s{t}, s2, 8
                    s_xor_b32 s{t+1}, s{sW}, {C.pw}
                    s_or_b32 s{t}, s{t}, s{t+1}
                    s_cmp_lg_u32 s{t}, 0
                    s_cbranch_scc1 L_exit
                    v_readlane_b32 s{t+1}, v254, {C.pi}
                    v_readlane_b32 s{t+2}, v254, {C.pj % 64}
                    v_readlane_b32 s{t+3}, v254, 40
                    {f"s_mov_b32 s{t+1}, s14" if C.pi == 63 else ""}
                    s_sub_u32 s{t+1}, s{t+2}, s{t+1}
                    s_mul_i32 s{t+1}, s{t+1}, {C.pm}
                    s_add_u32 s{t+1}, s{t+1}, 1000
                    """)
                    a.label("L_probe")
                    a(f"""
                    s_memrealtime s[{t+4}:{t+5}]
                    s_waitcnt lgkmcnt(0)
                    s_sub_u32 s{t+6}, s{t+4}, s{t+3}
                    s_cmp_lt_u32 s{t+6}, s{t+1}
                    s_cbranch_scc1 L_probe
                    """)
                if C.dbgout:
                    a(f"s_xor_b32 s{t}, s2, 8\ns_or_b32 s{t}, s{t}, s{sW}\ns_cmp_lg_u32 s{t}, 0\ns_cbranch_scc1 L_exit\nv_readlane_b32 s{t+1}, v254, 0\nv_mov_b32 v1, 0")
                    for k, i in enumerate([1, 2, 7, 8, 10, 12, 23, 15, 20, 31, 32, 36, 47, 40]):
                        a(f"v_readlane_b32 s{t}, v254, {i}\ns_sub_u32 s{t}, s{t}, s{t+1}\ns_nop 1\nv_mov_b32 v2, s{t}\nglobal_store_dword v1, v2, s[{P_DBG}:{P_DBG+1}] offset:{4+4*k}")
            a.label("L_exit")
            a("s_endpgm")
            a.label("L_fast_end")
    for f in tails: f()
    hdr = open("cdna_kernels/" + NAME + ".s.ref").read().split("; Override")[0]
    hdr += "; @launch grid=(256,1,1) block=(512,1,1) lds=163840\n"
    txt = hdr + '.amdgcn_target "amdgcn-amd-amdhsa--gfx950"\n.text\n' + a.text() + f'''.section .rodata,"a"
.p2align 6
.amdhsa_kernel {K}
  .amdhsa_next_free_vgpr 256
  .amdhsa_next_free_sgpr 102
  .amdhsa_accum_offset 256
  .amdhsa_group_segment_fixed_size 0
  .amdhsa_kernarg_size 80
  .amdhsa_user_sgpr_count 2
  .amdhsa_user_sgpr_kernarg_segment_ptr 1
  .amdhsa_system_sgpr_workgroup_id_x 1
.end_amdhsa_kernel
'''
    for p in check(a.lines): print("HAZARD", p)
    return txt

if __name__ == "__main__":
    out = sys.argv[1] if len(sys.argv) > 1 else "cdna_kernels/" + NAME + ".s"
    for kv in sys.argv[2:]:
        k, _, val = kv.partition("=")
        assert hasattr(C, k), k
        setattr(C, k, int(val) if val else True)
    open(out, "w").write(build())
    print("written", out)
```

```python
import sys, math, struct
sys.path.insert(0, "gen")
from asmlib import *

NAME = "interleave_layers__softmax_full_mha__glu_gated_reglu__prompt"
S, D, F, H, DH = 2048, 640, 1536, 32, 20
ACT = S * D * 2
HEADB = 81920
L_Q = 0
L_K = L_Q + ACT
L_V = L_K + ACT
L_O = L_V + ACT
L_X1 = L_O + ACT
L_X2 = L_X1 + ACT
L_H = L_X2 + ACT
L_ST1 = L_H + S * F * 2
L_ST2 = L_ST1 + S * 64
L_FG = L_ST2 + S * 64
LSTRIDE = L_FG + 32768
WS_ST0 = LSTRIDE + L_ST2
WS_WTO = 2 * LSTRIDE
WS_WTD = WS_WTO + D * D * 2
WS_WTG = WS_WTD + F * D * 2
WS_CSP = WS_WTG + 2 * F * D * 2
WS_CSG = WS_CSP + 10 * 12288
WS_CSQ = WS_CSG + 256 * 768
WS_FL = WS_CSQ + 256 * 512
WS_END = WS_FL + 8192
WS_SIZE = 268435456
WS_STAMP = 200 << 20
QSCALE = (DH ** -0.5) * math.log2(math.e)
def f32(x): return "0x%08x" % struct.unpack("<I", struct.pack("<f", x))[0]

P_X, P_WQKV, P_WO, P_BX, P_WG, P_WU, P_WD, P_OUT, P_DBG, P_WS = 16, 18, 20, 22, 24, 26, 28, 30, 32, 34
sL, sG, sR, sW, sLO, sEP, sTMO, sWG = 3, 4, 5, 6, 7, 8, 9, 13
R_WS, R_X, R_WQ, R_WG, R_WU, R_T = 36, 40, 44, 48, 52, 56
T = 60
WSR = f"s[{R_WS}:{R_WS+3}]"
def R(r): return f"s[{r}:{r+3}]"
SPIN = 200000

class Cfg:
    stamp = False
    dbg = 0
    dbgout = 0
    pi = 0
    pj = 0
    pm = 1
    pw = 0
    look = 6
    gu_e = 12
    dn_e = 4
    qk_e = 0
    bud_gu = 10
    bud_dn = 3
    bud_qk = 6
    bud_q1 = 8
    dn_a = 3
    psleep = 1
    gran = 3
    flip = 0
    gfull = 1
    dn_a0 = 2
    wo_a0 = 2
    x_a = 0
    x_d = 0
    c_i = 6
    c_c = 7
    c_f = 8
    pp = 0
    thr_e = 0
    thr_p = 0
    qk_s0 = 4
    dn_lag = 2
    dn_full = 5
    wo_a = 4
    wo_nas = 5
    c0 = 1
    g16 = 1
    e16 = 3
    wb = 0
    outb = 0
    q1prio = 0
    look_q1 = 6
    nocs = 0
    qloc = 1
    stage = 1
    cpf = 1
    l2pf0 = 1
    nt_kv = 0
    nt_wo = 0
    nt_gu = 0
    nt_dn = 0
    nt_qk = 0
    htouch = 0
    warm = 0
    gu_e2 = 0
    gu_p = 0
    dn_p = 20
    qk_p = 0
    wo_sets = 6
    q1pf = 1
    l2pf = 8
    rot = 0
    x_hit = 0
    tlb = 0
    rot_gu = 0
    rot_dn = 0
    rot_qk = 0
    dn_early = 99
    qk_early = 99
C = Cfg()

def stamp(a, i):
    if not C.stamp: return
    a(f"s_memtime s[10:11]\ns_mul_i32 s12, s{sL}, 24\ns_add_u32 m0, s12, {i}\ns_waitcnt lgkmcnt(0)\nv_writelane_b32 v255, s10, m0")
    if C.dbg == 7: a(f"s_memrealtime s[10:11]\ns_waitcnt lgkmcnt(0)\nv_writelane_b32 v254, s10, m0")

def dstamp(a, d, i):
    if C.stamp and C.dbg == d: a(f"s_memtime s[10:11]\ns_lshl_b32 s12, s{sL}, 5\ns_add_u32 m0, s12, {i}\ns_waitcnt lgkmcnt(0)\nv_writelane_b32 v254, s10, m0")

def srd(a, r, ptr, size):
    a(f"s_mov_b32 s{r}, s{ptr}\ns_mov_b32 s{r+1}, s{ptr+1}\ns_mov_b32 s{r+2}, {size}\ns_mov_b32 s{r+3}, 0x20000")

def interleave(a, mf, other):
    n = len(mf); k = 0
    for i, m in enumerate(mf):
        a(m)
        tgt = (len(other) * (i + 1) + n - 1) // n
        while k < tgt:
            a(other[k]); k += 1

def poll(a, vaddr, vtmp, soff, want, sleep=0, pre=False, wide=False):
    lp = a.uid("poll"); ok = a.uid("pollok")
    cnt = T + 22
    a(f"s_mov_b32 s{cnt}, s{sTMO}")
    if pre is not False: a(f"s_waitcnt vmcnt({pre})\ns_branch {lp}c")
    a.label(lp)
    if wide: a(f"buffer_load_dwordx4 v[{vtmp}:{vtmp+3}], v{vaddr}, {WSR}, {soff} offen sc1")
    else: a(f"buffer_load_dword v{vtmp}, v{vaddr}, {WSR}, {soff} offen sc1")
    a(f"s_waitcnt vmcnt(0)")
    if pre is not False: a.label(lp + "c")
    a(f"v_subrev_u32 v{vtmp}, {want}, v{vtmp}")
    if wide:
        for i in range(1, 4): a(f"v_subrev_u32 v{vtmp+i}, {want}, v{vtmp+i}\nv_max_u32 v{vtmp}, v{vtmp}, v{vtmp+i}")
    a(f"v_cmp_lt_u32 vcc, 15, v{vtmp}")
    a(f"s_cbranch_vccz {ok}")
    if sleep: a(f"s_sleep {sleep}")
    a(f"s_add_u32 s{cnt}, s{cnt}, 1\ns_cmp_lt_u32 s{cnt}, {SPIN}\ns_cbranch_scc1 {lp}")
    a(f"s_mov_b32 s{sTMO}, {SPIN}")
    a.label(ok)

def poll_local(a, kind, ep, va=1, vt=2, sleep=0):
    t = T + 20
    if kind == "wo":
        a(f"v_and_b32 v{va}, 31, v0\nv_lshlrev_b32 v{va}, 5, v{va}\ns_lshr_b32 s{t}, s{sR}, 3\ns_lshl_b32 s{t}, s{t}, 2\ns_add_u32 s{t}, s{t}, 16")
    elif kind == "gu":
        a(f"v_lshrrev_b32 v{va}, 2, v0\nv_lshlrev_b32 v{va}, 5, v{va}\nv_and_b32 v{vt}, 3, v0\nv_lshl_add_u32 v{va}, v{vt}, 2, v{va}")
        a(f"s_lshr_b32 s{t}, s{sR}, 4\ns_lshl_b32 s{t}, s{t}, 9")
    elif kind == "down":
        a(f"v_bfe_u32 v{va}, v0, 1, 4\nv_lshlrev_b32 v{va}, 5, v{va}\nv_and_b32 v{vt}, 1, v0\nv_lshl_add_u32 v{va}, v{vt}, 3, v{va}")
        a(f"s_lshr_b32 s{t}, s{sR}, 4\ns_lshl_b32 s{t}, s{t}, 9\ns_bfe_u32 s{t+1}, s{sR}, 0x10003\ns_lshl_b32 s{t+1}, s{t+1}, 2\ns_add_u32 s{t}, s{t}, s{t+1}")
    elif kind == "attn":
        a(f"""
        v_bfe_u32 v{va}, v0, 2, 1
        v_mul_u32_u24 v{va}, 19, v{va}
        s_mul_i32 s{t}, s{sR}, 20
        v_add_u32 v{va}, s{t}, v{va}
        v_lshrrev_b32 v{va}, 7, v{va}
        v_lshrrev_b32 v{vt}, 4, v0
        v_min_u32 v{vt}, 2, v{vt}
        v_mad_u32_u24 v{va}, v{vt}, 5, v{va}
        v_bfe_u32 v{vt}, v0, 3, 1
        v_lshl_add_u32 v{va}, v{vt}, 4, v{va}
        v_lshlrev_b32 v{va}, 5, v{va}
        v_and_b32 v{vt}, 3, v0
        v_lshl_add_u32 v{va}, v{vt}, 2, v{va}
        s_mov_b32 s{t}, 0
        """)
    a(f"s_lshl_b32 s{t+1}, s{sG}, 10\ns_add_u32 s{t}, s{t}, s{t+1}\ns_add_u32 s{t}, s{t}, {WS_FL}\ns_add_u32 s{t+1}, s{sEP}, {ep}")
    poll(a, va, vt, f"s{t}", f"s{t+1}", sleep=sleep)

sNR, sGO, sGW = 92, 94, 95
class Gate:
    def __init__(self, a, va, vt, fold=False, sleep=0):
        self.a, self.va, self.vt, self.fold, self.sleep = a, va, vt, fold, sleep
        self.ok = 0
    def load(self): self.a(f"buffer_load_dword v{self.vt}, v{self.va}, {WSR}, s{sGO} offen sc1")
    def upd(self):
        self.a(f"s_waitcnt vmcnt(0)\nv_subrev_u32 v{self.vt}, s{sGW}, v{self.vt}\nv_cmp_lt_u32 s[{sNR}:{sNR+1}], 15, v{self.vt}")
        if self.fold: self.a(f"s_or_b32 s{sNR}, s{sNR}, s{sNR+1}")
    def reset(self): self.a(f"s_mov_b32 s{sNR}, -1")
    def need(self, mask):
        a = self.a
        mask &= ~self.ok
        if not mask: return
        self.ok |= mask
        lp = a.uid("gt"); cnt = T + 22
        a(f"s_and_b32 s{cnt}, s{sNR}, {hex(mask)}\ns_cbranch_scc0 {lp}k\ns_mov_b32 s{cnt}, s{sTMO}")
        if C.pp and not self.fold:
            v2 = self.vt2
            a(f"buffer_load_dword v{v2}, v{self.va}, {WSR}, s{sGO} offen sc1\ns_sleep {C.pp}")
            a.label(lp)
            for x_, y_ in ((self.vt, v2), (v2, self.vt)):
                a(f"buffer_load_dword v{x_}, v{self.va}, {WSR}, s{sGO} offen sc1\ns_waitcnt vmcnt(1)\nv_subrev_u32 v{y_}, s{sGW}, v{y_}\nv_cmp_lt_u32 s[{sNR}:{sNR+1}], 15, v{y_}")
                a(f"s_and_b32 s{cnt+1}, s{sNR}, {hex(mask)}\ns_cbranch_scc0 {lp}k")
        else:
            a.label(lp)
            self.load(); self.upd()
            a(f"s_and_b32 s{cnt+1}, s{sNR}, {hex(mask)}\ns_cbranch_scc0 {lp}k")
            if self.sleep: a(f"s_sleep {self.sleep}")
        a(f"s_add_u32 s{cnt}, s{cnt}, 1\ns_cmp_lt_u32 s{cnt}, {SPIN}\ns_cbranch_scc1 {lp}\ns_mov_b32 s{sTMO}, {SPIN}")
        a.label(lp + "k")
def span(lo, hi, w, bits):
    m = 0
    for p in range(lo // w, hi // w + 1): m |= ((1 << bits) - 1) << (bits * p)
    return m
def gate_local(a, kind, ep, va, vt, sRotCt=None, sleep=0):
    t = T + 20
    if kind == "wo":
        a(f"v_and_b32 v{va}, 31, v0\nv_lshlrev_b32 v{va}, 5, v{va}\ns_lshr_b32 s{sGO}, s{sR}, 3\ns_lshl_b32 s{sGO}, s{sGO}, 2\ns_add_u32 s{sGO}, s{sGO}, 16")
    elif kind == "down":
        a(f"v_lshrrev_b32 v{va}, 1, v0\nv_add_u32 v{va}, s{sRotCt}, v{va}\nv_and_b32 v{va}, 15, v{va}\nv_lshlrev_b32 v{va}, 5, v{va}\nv_and_b32 v{vt}, 1, v0\nv_lshl_add_u32 v{va}, v{vt}, 3, v{va}")
        a(f"s_lshr_b32 s{sGO}, s{sR}, 4\ns_lshl_b32 s{sGO}, s{sGO}, 9\ns_bfe_u32 s{t+1}, s{sR}, 0x10003\ns_lshl_b32 s{t+1}, s{t+1}, 2\ns_add_u32 s{sGO}, s{sGO}, s{t+1}")
    elif kind == "gu":
        a(f"v_lshrrev_b32 v{va}, 1, v0\nv_add_u32 v{va}, s{sRotCt}, v{va}\nv_and_b32 v{va}, 7, v{va}\nv_lshlrev_b32 v{va}, 5, v{va}\nv_and_b32 v{vt}, 1, v0\nv_lshl_add_u32 v{va}, v{vt}, 2, v{va}")
        a(f"s_lshr_b32 s{sGO}, s{sR}, 4\ns_lshl_b32 s{sGO}, s{sGO}, 9\ns_bfe_u32 s{t+1}, s{sW}, 0x10001\ns_lshl_b32 s{t+1}, s{t+1}, 8\ns_add_u32 s{sGO}, s{sGO}, s{t+1}")
        a(f"s_and_b32 s{t+1}, s{sW}, 1\ns_lshl_b32 s{t+1}, s{t+1}, 3\ns_add_u32 s{sGO}, s{sGO}, s{t+1}")
    a(f"s_lshl_b32 s{t+1}, s{sG}, 10\ns_add_u32 s{sGO}, s{sGO}, s{t+1}\ns_add_u32 s{sGO}, s{sGO}, {WS_FL}\ns_add_u32 s{sGW}, s{sEP}, {ep}")
    g = Gate(a, va, vt, sleep=sleep); g.reset(); g.vt2 = 8 if kind != 'gu' else 3
    return g

def flag_setup(a, ep):
    t = T + 20
    a(f"s_lshl_b32 s{t}, s{sWG}, 3\ns_add_u32 s{t}, s{t}, s{sW}\ns_lshl_b32 s{t}, s{t}, 2\ns_add_u32 s{t}, s{t}, {WS_FL}\ns_add_u32 s{t+1}, s{sEP}, {ep}")
    a(f"v_mov_b32 v1, 0\nv_mov_b32 v2, s{t+1}")
def flag_store(a, SB, s=T+20):
    a(f"s_mov_b64 exec, 1\nbuffer_store_dword v2, v1, {WSR}, s{s} offen {SB}\ns_mov_b64 exec, -1")
def publish_local(a, ep, SB):
    flag_setup(a, ep)
    a("s_waitcnt vmcnt(0)")
    flag_store(a, SB)

def row_stats(a, vst, vmean, vrstd):
    for i in range(1, 8):
        a(f"v_add_f32 v{vst}, v{vst}, v{vst+2*i}\nv_add_f32 v{vst+1}, v{vst+1}, v{vst+2*i+1}")
    finish_stats(a, vst, vst + 1, vmean, vrstd)

def finish_stats(a, vs, vq, vmean, vrstd):
    a(f"v_mul_f32 v{vmean}, {f32(1.0/D)}, v{vs}")
    a(f"v_mul_f32 v{vq}, {f32(1.0/D)}, v{vq}")
    a(f"v_fma_f32 v{vq}, -v{vmean}, v{vmean}, v{vq}")
    a(f"v_max_f32 v{vq}, 0, v{vq}")
    a(f"v_add_f32 v{vq}, {f32(1e-5)}, v{vq}")
    a(f"v_rsq_f32 v{vrstd}, v{vq}")
    a("s_nop 0")

def lin_dma(a, vaddr, src_s, src_off, dst_s, dst_off, npieces, bits="", rsrc=WSR, tmp=T+19):
    i = 0
    while i < npieces:
        k = min(4, npieces - i)
        a(f"s_add_u32 m0, s{dst_s}, {dst_off + 1024*i}")
        a(f"s_add_u32 s{tmp}, s{src_s}, {src_off + 1024*i}")
        for j in range(k):
            a(f"buffer_load_dwordx4 v{vaddr}, {rsrc}, s{tmp} offen offset:{1024*j} {bits} lds")
        i += k
    return npieces


def states(x):
    return int(x.split()[1]) + 1 if x.startswith("s_nop") else 1

def gemm_unrolled(a, n, P, nr, reads, mfma, groups, inserts, fix, fix_from, epi, st_end, alt=None, after_e=(), late=()):
    seq = []
    def add(ms, fill, pre=()):
        k = 0
        for i, (kk, tl) in enumerate(ms):
            tgt = (len(fill) * (i + 1) + len(ms) - 1) // len(ms)
            seq.append([list(pre) if i == 0 else [], mfma(kk, tl), tl, list(fill[k:tgt])]); k = tgt
    step = lambda kk: [(kk, tl) for tl in range(P)]
    a("s_barrier")
    for x in reads(0, 0) + reads(0, 1): a(x)
    w = f"s_waitcnt lgkmcnt({nr})"
    for c in range(n - 1):
        add(step(0), reads(c, 2), [w])
        add(step(1), reads(c, 3), [w])
        add(step(2), [], [w])
        seq[-2][3] += ["s_waitcnt lgkmcnt(0)"]; seq[-1][3] += ["s_barrier"]
        add(step(3), reads(c + 1, 0) + reads(c + 1, 1))
    nmain = len(seq)
    for i0, ins in inserts.items():
        i = i0; ins = list(ins)
        while ins:
            room = 4 - sum(states(x) for x in seq[i][3]) - len(seq[i+1][0])
            if ins[0].startswith("s_mov_b32 exec") and room < 3: room = 0
            while room > 0 and ins and "s_barrier" not in seq[i][3]:
                x = ins.pop(0); seq[i][3].append(x); room -= states(x)
            i += 1

        end = fix_from if i0 < fix_from else nmain
        assert i <= end and all(not (i0 < k < i) for k in inserts if len(inserts[i0]) > 1), (i0, i)
        if any(x.startswith("ds_") for x in inserts[i0]): assert any("s_waitcnt lgkmcnt(0)" in seq[j][3] for j in range(i, end)), (i, end)
    todo = {tl: list(fix(tl)) for tl in range(P)}
    used = lambda g: sum(states(x) for x in seq[g][3]) + len(seq[g+1][0])
    g = fix_from + 2
    while any(todo.values()):
        assert g + 2 < nmain, "no room for fix"
        if used(g) < 5 and "s_barrier" not in seq[g][3]:
            for back in range(P - 2, 1, -1):
                tl = seq[g - back][2]
                if not todo[tl] or g - back < fix_from: continue
                have = sum(used(x) + 1 for x in range(g - back, g)) + sum(states(x) for x in seq[g][3])
                room = sum(max(0, 5 - used(x)) for x in range(g - back, g))
                if have + room < 12: continue
                for x in range(g - back, g):
                    k = min(5 - used(x), 12 - have)
                    if k > 0: seq[x][3].append(f"s_nop {k-1}"); have += k
                while used(g) < 5 and todo[tl]: seq[g][3].append(todo[tl].pop(0))
            if used(g + 1) < 1: seq[g + 1][3].append("s_nop 0")
        g += 1

    c = n - 1
    g0 = groups[0]
    seq[-1][3] += reads(c, 2)
    add([(kk, tl) for kk in (0, 1) for tl in g0], reads(c, 3), [w])
    add([(kk, tl) for kk in (2, 3) for tl in g0], list(late), ["s_waitcnt lgkmcnt(0)"])
    if after_e:
        seq[-2][3].append("s_barrier"); seq[-1][3] += list(after_e)
    else: seq[-len(g0)*2][3].append("s_barrier")
    seq[-1][3].append("s_nop 4")
    def flush():
        for pre, m, tl, post in seq:
            for x in pre: a(x)
            a(m)
            for x in post: a(x)
        del seq[:]
    def tail(epi):
        for gi in range(1, len(groups)):
            ms = [(kk, tl) for kk in range(4) for tl in groups[gi]]
            if gi == 1: add(ms[:1], ["s_nop 4"]); add(ms[1:], epi(gi - 1, False))
            else: add(ms, ["s_nop 0"] + epi(gi - 1, False))
        flush()
        stamp(a, st_end)
        a.nop(3)
        for x in epi(len(groups) - 1, True): a(x)
    if alt:
        cond, epi2, post1, post2 = alt
        l = a.uid("alt")
        seq[-1][3][-1:] = [cond, f"s_cbranch_scc1 {l}", "s_nop 2"]
        flush(); tail(epi); post1()
        a.label(l); a("s_nop 2"); tail(epi2); post2()
    else: tail(epi)

def gemm16(a, n, P, reads, mfma, groups, inserts, fix, fix_from, epi, st_end):
    seq = []
    def add(ms, fill, span, pre=()):
        k = 0
        for i, (u, tl, z) in enumerate(ms):
            tgt = min(len(fill), (len(fill) * (i + 1) + span - 1) // span)
            seq.append([list(pre) if i == 0 else [], mfma(u, tl, z), tl, list(fill[k:tgt])]); k = tgt
        assert k == len(fill)
    w0 = "s_waitcnt lgkmcnt(0)"
    a("s_barrier")
    for x in reads(0, 0): a(x)
    nr = len(reads(0, 0))
    for c in range(n - 1):
        add([(0, tl, c == 0) for tl in range(P)], reads(c, 1), nr, [w0])
        seq[-2][3] += [w0]; seq[-1][3] += ["s_barrier"]
        add([(1, tl, False) for tl in range(P)], reads(c + 1, 0), nr)
    nmain = len(seq)
    used = lambda g: sum(states(x) * (2 if x.startswith(("buffer", "v_perm", "v_rsq")) else 1) for x in seq[g][3]) + len(seq[g+1][0])
    for i0, ins in inserts.items():
        i = i0; ins = list(ins)
        while ins:
            while used(i) < C.g16 and ins and "s_barrier" not in seq[i][3]: seq[i][3].append(ins.pop(0))
            i += 1
        assert i <= fix_from
        if any(x.startswith("ds_") for x in inserts[i0]): assert any(w0 in seq[j][3] + seq[j][0] for j in range(i, fix_from))
    todo = {tl: list(fix(tl)) for tl in range(P)}
    g = fix_from
    while any(todo.values()):
        assert g + 4 < nmain
        for back in sorted(range(P - 3, 7, -1), key=lambda b_: -len(todo[seq[g - b_][2]])):
            tl = seq[g - back][2]
            while used(g) < C.g16 and todo[tl] and "s_barrier" not in seq[g][3]: seq[g][3].append(todo[tl].pop(0))
        g += 1
    c = n - 1
    g0 = groups[0]
    add([(0, tl, False) for tl in g0 + groups[1]], reads(c, 1), nr, [w0])
    add([(1, tl, False) for tl in g0], ["s_barrier"], 1, [w0])
    rest = [(1, tl, False) for tl in groups[1]]
    for gi in range(2, len(groups)): rest += [(u, tl, False) for u in range(2) for tl in groups[gi]]
    e0 = epi(0, False); e1 = epi(1, False)
    k1 = len(groups[1])
    add(rest[:2], ["s_nop 1", "s_nop 1"], 2)
    nleft = len(rest) - 2
    add(rest[2:], (e0 + e1)[:C.e16*nleft], nleft)
    for pre, m, tl, post in seq:
        for x in pre: a(x)
        a(m)
        for x in post: a(x)
    for x in (e0 + e1)[C.e16*nleft:]: a(x)
    stamp(a, st_end)
    for gi in range(2, len(groups)):
        for x in epi(gi, True): a(x)

class Src:
    def __init__(self, sB, sB1, sThr, stride): self.__dict__.update(locals())
    def setup(self, a, sRot, n, tmp):
        a(f"s_mul_i32 s{tmp}, s{sRot}, {self.stride}\ns_add_u32 s{self.sB}, s{self.sB}, s{tmp}\ns_sub_u32 s{self.sB1}, s{self.sB}, {n*self.stride}")
    def sel(self, a, c, dst):
        a(f"s_cmp_gt_u32 s{self.sThr}, {c}\ns_cselect_b32 s{dst}, s{self.sB}, s{self.sB1}")

class Phase:
    def __init__(self, name, n, npa, npw, emitA, emitW, regA, regW, pollfn, budget, lag=1, after_bar=None, dbg=False, early=99):
        self.__dict__.update(locals())

class Loader:
    def __init__(self, a):
        self.a = a; self.q = []; self.live = {}; self.waitfn = None; self.total = 0
    def free(self, reg, key):
        return key in self.live or all(reg[1] <= lo or hi <= reg[0] for lo, hi in self.live.values())
    def can(self, ph, kind, c):
        return self.free((ph.regA if kind == "A" else ph.regW)(c), (ph.name, kind, c))
    def issue(self, ph, kind, c, i0, k):
        assert self.can(ph, kind, c)
        self.live[(ph.name, kind, c)] = (ph.regA if kind == "A" else ph.regW)(c)
        (ph.emitA if kind == "A" else ph.emitW)(c, i0, k)
        self.q += [(ph.name, kind, c)] * k; self.total += k
    def release(self, ph, c):
        for k in "AW": self.live.pop((ph.name, k, c), None)
    def wait(self, tags):
        last = -1
        for i, t in enumerate(self.q):
            if t in tags: last = i
        if last >= 0:
            self.q = self.q[last+1:]
            n7 = len(self.q); n = sum(1 for t in self.q if t[0] != "x7")
            assert n7 < 64
            if n7 != n:
                l = self.a.uid("w7")
                self.a(f"s_waitcnt vmcnt({n7})\ns_cmp_eq_u32 s{sW}, 7\ns_cbranch_scc1 {l}\ns_waitcnt vmcnt({n})")
                self.a.label(l)
            else: self.a(f"s_waitcnt vmcnt({n})")
    def pre(self, ph, pw, cnt, thr=0):
        done = 0
        while pw < ph.n * ph.npw and done < cnt and self.can(ph, "W", pw // ph.npw):
            k = min(4, ph.npw - pw % ph.npw, cnt - done)
            if thr:
                k = 1
                if len(self.q) >= thr:
                    self.a(f"s_waitcnt vmcnt({thr-1})"); self.q = self.q[len(self.q) - (thr - 1):]
            self.issue(ph, "W", pw // ph.npw, pw % ph.npw, k); pw += k; done += k
        return pw
    def run(self, ph, nxt, pw=0, after_poll=None, tail=None, waitfn=None, lastexit=None):
        a = self.a; n = ph.n
        pa = 0; pn = 0
        if ph.pollfn: ph.pollfn()
        if after_poll: after_poll()
        for c in range(1 if getattr(ph, "skip0", False) else 0, n):
            done = 0
            if lastexit and pw == n * ph.npw:
                assert all(t_[0] == ph.name for t_ in self.q)
                lastexit([sum(1 for t_ in self.q if t_[2] > cc) for cc in range(c, n)]); lastexit = None
            while True:
                needed = pa < (c + 1) * ph.npa or pw < (c + 1) * ph.npw
                if not needed:
                    beyond = 0
                    for t in reversed(self.q):
                        if t[0] == ph.name and t[2] <= c: break
                        beyond += t[0] != "x7"
                    if beyond >= getattr(ph, 'look', C.look) and (done >= ph.budget or c == 0): break
                ca = pa // ph.npa if ph.npa else n; cw = pw // ph.npw
                okA = ca < n and self.can(ph, "A", ca)
                okW = cw < n and self.can(ph, "W", cw)
                if okW and (cw <= ca or not okA):
                    k = ph.npw - pw % ph.npw
                    if not needed: k = min(2, k)
                    self.issue(ph, "W", cw, pw % ph.npw, k); pw += k
                elif okA:
                    k = ph.npa - pa % ph.npa
                    if not needed: k = min(2, k)
                    self.issue(ph, "A", ca, pa % ph.npa, k); pa += k
                elif nxt and ca == n and cw == n and pn < nxt.early and self.can(nxt, "W", pn // nxt.npw):
                    k = min(2, nxt.npw - pn % nxt.npw)
                    self.issue(nxt, "W", pn // nxt.npw, pn % nxt.npw, k); pn += k
                else:
                    assert not needed
                    break
                done += k
            if tail and pa == n * ph.npa and pw == n * ph.npw:
                tail(); tail = None; self.waitfn = waitfn
            if ph.after_bar and c > 0: ph.after_bar(c - 1)
            self.wait({(ph.name, "A", c), (ph.name, "W", c)})
            if ph.dbg and C.stamp: a(f"s_memtime s[10:11]\ns_waitcnt lgkmcnt(0)\nv_writelane_b32 v254, s10, {2*c}")
            a("s_barrier")
            if ph.dbg and C.stamp: a(f"s_memtime s[10:11]\ns_waitcnt lgkmcnt(0)\nv_writelane_b32 v254, s10, {2*c+1}")
            self.release(ph, c - ph.lag)
        if ph.after_bar: ph.after_bar(n - 1)
        if nxt: pn = self.pre(nxt, pn, min(ph.budget, max(0, nxt.early - pn)))
        return pn
    def end(self, ph):
        self.a("s_barrier")
        for c in range(ph.n): self.release(ph, c)

Q1_TAB = 98304
Q1_NON = Q1_TAB + 2048
Q1_CS = Q1_NON + 64
WB = 65536
def guW(c): return WB + ((3 - c) % 4) * 24576
def dnW(c): return ((c + 2) % 8) * 20480
def qkW(c): return WB + ((c + C.qk_s0) % 6) * 16384

PSCR = 131072
PV = 180
def projjob_issue(a, sJob, sScr, t, loads=True):
    a(f"""
    s_and_b32 s{t+2}, s{sJob}, 7
    s_lshr_b32 s{t+3}, s{sJob}, 3
    s_cmp_lt_u32 s{t+3}, 20
    s_cselect_b32 s{R_T}, s{P_WO}, s{P_WD}
    s_cselect_b32 s{R_T+1}, s{P_WO+1}, s{P_WD+1}
    s_mov_b32 s{R_T+2}, {F*D*2}
    s_cselect_b32 s{R_T+2}, {D*D*2}, s{R_T+2}
    s_mov_b32 s{R_T+3}, 0x20000
    s_cselect_b32 s{t+4}, 0, 20
    s_cselect_b32 s{t+5}, 20, 48
    s_mov_b32 s{t+6}, {WS_WTD}
    s_cselect_b32 s{t+6}, {WS_WTO}, s{t+6}
    s_sub_u32 s{t+3}, s{t+3}, s{t+4}
    s_mul_i32 s{t+5}, s{t+5}, s{t+2}
    s_add_u32 s{t+5}, s{t+5}, s{t+3}
    s_mul_i32 s{t+5}, s{t+5}, 5120
    s_add_u32 s{t+6}, s{t+6}, s{t+5}
    s_mul_i32 s{t+3}, s{t+3}, {32*1280}
    s_mul_i32 s{t+2}, s{t+2}, 160
    s_add_u32 s{t+3}, s{t+3}, s{t+2}
    s_movk_i32 s{t+4}, 6554
    """)
    x, y = PV, PV + 1
    for i in range(5 if loads else 0):
        a(f"""
        v_add_u32 v{x}, {64*i}, v0
        v_mul_u32_u24 v{y}, s{t+4}, v{x}
        v_lshrrev_b32 v{y}, 16, v{y}
        v_mad_i32_i24 v{x}, v{y}, -10, v{x}
        v_mul_u32_u24 v{y}, 1280, v{y}
        v_lshl_add_u32 v{x}, v{x}, 4, v{y}
        s_add_u32 m0, s{sScr}, {1024*i}
        s_nop 0
        buffer_load_dwordx4 v{x}, {R(R_T)}, s{t+3} offen lds
        """)
def projjob_finish(a, sScr, t):
    x, y, z, d0 = PV, PV + 1, PV + 2, PV + 4
    a(f"""
    v_lshrrev_b32 v{x}, 4, v0
    v_bfe_u32 v{y}, v0, 2, 2
    v_lshl_add_u32 v{x}, v{x}, 3, v{y}
    v_mul_u32_u24 v{x}, 160, v{x}
    v_add_u32 v{x}, s{sScr}, v{x}
    v_and_b32 v{y}, 3, v0
    v_lshl_add_u32 v{z}, v{y}, 3, v{x}
    v_lshl_add_u32 v{y}, v{y}, 4, v{x}
    """)
    for jn in range(5):
        for j in range(2):
            d = d0 + 4*jn + 2*j
            if jn < 4: a(f"ds_read_b64_tr_b16 v[{d}:{d+1}], v{y} offset:{640*j + 64*(jn>>1) + 8*(jn&1)}")
            else: a(f"ds_read_b64_tr_b16 v[{d}:{d+1}], v{z} offset:{640*j + 128}")
    a(f"s_add_u32 s{t+5}, s{t+6}, 4096\ns_waitcnt lgkmcnt(0)")
    for jn in range(5):
        d = d0 + 4*jn
        a(f"buffer_store_dwordx4 v[{d}:{d+3}], v5, {WSR}, s{t+6 if jn < 4 else t+5} offen offset:{1024*(jn&3)} sc1")

def gujob_issue(a, sJob, t, loads=True):
    x, y = PV, PV + 1
    a(f"""
    s_mul_i32 s{t+2}, s{sJob}, 2731
    s_lshr_b32 s{t+2}, s{t+2}, 16
    s_mul_i32 s{t+3}, s{t+2}, 24
    s_sub_u32 s{t+3}, s{sJob}, s{t+3}
    s_mul_i32 s{t+4}, s{t+2}, {64*F*2}
    s_lshl_b32 s{t+5}, s{t+3}, 7
    s_add_u32 s{t+4}, s{t+4}, s{t+5}
    v_lshrrev_b32 v{x}, 3, v0
    v_mul_u32_u24 v{x}, {F*2}, v{x}
    v_and_b32 v{y}, 7, v0
    v_lshl_add_u32 v{x}, v{y}, 4, v{x}
    """)
    a(f"""
    s_and_b32 s{t+1}, s{sW}, 1
    s_cselect_b32 s{R_T}, s{P_WU}, s{P_WG}
    s_cselect_b32 s{R_T+1}, s{P_WU+1}, s{P_WG+1}
    s_mov_b32 s{R_T+2}, {F*D*2}
    s_mov_b32 s{R_T+3}, 0x20000
    s_lshl_b32 s{t+6}, s{t+1}, 13
    """)
    for i in range(8):
        a(f"s_add_u32 m0, s{t+6}, {PSCR + 1024*i}\ns_add_u32 s{t+5}, s{t+4}, {i*8*F*2}")
        a(f"buffer_load_dwordx4 v{x}, {R(R_T)}, s{t+5} offen lds")
def gujob_finish(a, t):
    x, y, z = PV, PV + 1, PV + 2
    ONE, FRG, CS = PV + 4, PV + 8, PV + 40
    a(f"""
    v_lshrrev_b32 v{z}, 4, v0
    v_bfe_u32 v{x}, v0, 2, 2
    v_lshl_add_u32 v{x}, v{z}, 3, v{x}
    v_lshlrev_b32 v{x}, 7, v{x}
    v_and_b32 v{y}, 3, v0
    v_lshl_add_u32 v{x}, v{y}, 3, v{x}
    s_add_u32 s{t+6}, s{t+6}, {PSCR}
    v_add_u32 v{x}, s{t+6}, v{x}
    v_lshlrev_b32 v{z}, 4, v{z}
    """)
    for tt in range(4):
        for u in range(2):
            for j in range(2):
                d = FRG + 8*tt + 4*u + 2*j
                a(f"ds_read_b64_tr_b16 v[{d}:{d+1}], v{x} offset:{128*(32*u+4*j) + 32*tt}")
    a(f"""
    s_mul_i32 s{t+6}, s{t+2}, 12288
    s_lshl_b32 s{t+5}, s{t+3}, 9
    s_add_u32 s{t+6}, s{t+6}, s{t+5}
    s_lshl_b32 s{t+5}, s{t+1}, 6
    s_add_u32 s{t+6}, s{t+6}, s{t+5}
    s_add_u32 s{t+6}, s{t+6}, {WS_CSP}
    """)
    for i in range(4): a(f"v_mov_b32 v{ONE+i}, 0x3f803f80")
    a("s_nop 0\ns_waitcnt lgkmcnt(0)")
    for u in range(2):
        for tt in range(4):
            a(f"v_mfma_f32_16x16x32_bf16 {v(CS+4*tt,4)}, {v(FRG+8*tt+4*u,4)}, {v(ONE,4)}, {v(CS+4*tt,4) if u else 0}")
    for tt in range(4):
        a(f"""
        s_lshl_b32 s{t+4}, s{t+3}, 2
        s_add_u32 s{t+4}, s{t+4}, {tt}
        s_mul_i32 s{t+5}, s{t+4}, 43
        s_lshr_b32 s{t+5}, s{t+5}, 8
        s_mul_i32 s{t+5}, s{t+5}, 228
        s_lshl_b32 s{t+4}, s{t+4}, 1
        s_add_u32 s{t+4}, s{t+4}, s{t+5}
        s_mul_i32 s{t+5}, s{t+2}, 24
        s_add_u32 s{t+4}, s{t+4}, s{t+5}
        s_add_u32 s{t+4}, s{t+4}, s{t+1}
        s_lshl_b32 s{t+4}, s{t+4}, 10
        s_add_u32 s{t+4}, s{t+4}, {WS_WTG}
        s_add_u32 s{t+5}, s{t+4}, 12288
        """)
        for u in range(2):
            d = FRG + 8*tt + 4*u
            a(f"buffer_store_dwordx4 v[{d}:{d+3}], v5, {WSR}, s{t+4+u} offen sc1")
    a("s_mov_b32 exec_lo, 0x10001\ns_mov_b32 exec_hi, 0x10001")
    for tt in range(4):
        a(f"buffer_store_dwordx4 v[{CS+4*tt}:{CS+4*tt+3}], v{z}, {WSR}, s{t+6} offen offset:{128*tt} sc1")
    a("s_mov_b64 exec, -1")

def prep(a, stage):
    tj = 84; sJob, sScr = tj, tj + 1
    lg = a.uid("pg"); le = a.uid("pe")
    if stage == 0:
        a(f"""
        s_sub_u32 s{sScr}, s{sW}, 1
        s_lshl_b32 s{sJob}, s{sScr}, 8
        s_add_u32 s{sJob}, s{sJob}, s{sWG}
        s_add_u32 s{sJob}, s{sJob}, 160
        s_mul_i32 s{sScr}, s{sScr}, 5120
        s_add_u32 s{sScr}, s{sScr}, {PSCR + 16384}
        """)
    a(f"s_cmp_eq_u32 s{sW}, 0\ns_cbranch_scc1 {lg}\ns_cmp_eq_u32 s{sW}, 3\ns_cbranch_scc1 {lg}\ns_cmp_ge_u32 s{sJob}, 544\ns_cbranch_scc1 {le}")
    projjob_issue(a, sJob, sScr, tj) if stage == 0 else projjob_finish(a, sScr, tj)
    a(f"s_branch {le}")
    a.label(lg)
    a(f"s_cmp_ge_u32 s{sWG}, 240\ns_cbranch_scc1 {le}")
    gujob_issue(a, sWG, tj) if stage == 0 else gujob_finish(a, tj)
    a.label(le)

def xstat_fin(a):
    t = T + 16
    a(f"s_mov_b32 s{t}, 0xffff0000\nv_mov_b64 v[232:233], 0\ns_waitcnt vmcnt(0)")
    for i in range(12):
        a(f"v_lshlrev_b32 v234, 16, v{220+i}\nv_and_b32 v235, s{t}, v{220+i}\nv_add_f32 v232, v232, v234\nv_fmac_f32 v233, v234, v234\nv_add_f32 v232, v232, v235\nv_fmac_f32 v233, v235, v235")
    for mod in ("quad_perm:[1,0,3,2]", "quad_perm:[2,3,0,1]"):
        a(f"s_nop 1\nv_add_f32_dpp v232, v232, v232 {mod} row_mask:0xf bank_mask:0xf\nv_add_f32_dpp v233, v233, v233 {mod} row_mask:0xf bank_mask:0xf")
    a(f"""
    v_bfe_u32 v234, v0, 3, 2
    v_lshlrev_b32 v234, 10, v234
    v_bfe_u32 v235, v0, 2, 1
    v_lshl_add_u32 v234, v235, 3, v234
    v_lshrrev_b32 v235, 5, v0
    v_lshl_add_u32 v234, v235, 4, v234
    s_lshr_b32 s{t}, s{sWG}, 3
    s_lshl_b32 s{t}, s{t}, 12
    s_and_b32 s{t+1}, s{sWG}, 7
    s_lshl_b32 s{t+1}, s{t+1}, 2
    s_add_u32 s{t+1}, s{t+1}, s{sW}
    s_lshl_b32 s{t+1}, s{t+1}, 5
    s_add_u32 s{t}, s{t}, s{t+1}
    s_add_u32 s{t}, s{t}, {WS_ST0}
    s_mov_b32 exec_lo, 0x11111111
    s_mov_b32 exec_hi, 0x11111111
    buffer_store_dwordx2 v[232:233], v234, {WSR}, s{t} offen sc1
    s_mov_b64 exec, -1
    """)

def nonce_put(a):
    t = T + 8
    a(f"""
    s_memrealtime s[{t}:{t+1}]
    v_mov_b32 v1, 0
    s_waitcnt lgkmcnt(0)
    s_or_b32 s{t+2}, s{t}, 0x80000000
    v_mov_b32 v2, s{t+2}
    s_mov_b64 exec, 1
    global_store_dword v1, v2, s[{P_DBG}:{P_DBG+1}] sc1
    s_mov_b64 exec, -1
    """)
def flags_zero(a):
    t = T + 16
    a(f"""
    s_lshl_b32 s{t}, s{sWG}, 5
    s_add_u32 s{t}, s{t}, {WS_FL}
    s_lshl_b32 s{t+1}, s{sWG}, 7
    s_add_u32 s{t+1}, s{t+1}, {L_FG}
    s_add_u32 s{t+2}, s{t+1}, {LSTRIDE}
    v_lshlrev_b32 v236, 2, v0
    v_mov_b32 v237, 0
    s_mov_b64 exec, 0xff
    buffer_store_dword v237, v236, {WSR}, s{t} offen sc1
    s_mov_b64 exec, 0x3ff
    buffer_store_dword v237, v236, {WSR}, s{t+1} offen sc1
    buffer_store_dword v237, v236, {WSR}, s{t+2} offen sc1
    s_mov_b64 exec, -1
    """)

def nonce_issue(a, v2, v3):
    a(f"v_mov_b32 v{v3}, 0\nglobal_load_dword v{v2}, v{v3}, s[{P_DBG}:{P_DBG+1}] sc1")
def nonce_get(a, v1, v2, v3, cnt=0):
    t = T + 14
    lp = a.uid("non"); ok = a.uid("nonok")
    a(f"s_mov_b32 s{t+6}, 0\nv_mov_b32 v{v3}, 0\ns_lshl_b32 s{t+4}, s{sWG}, 7\ns_add_u32 s{t+4}, s{t+4}, {L_FG}\ns_waitcnt vmcnt({cnt})\ns_branch {lp}c")
    a.label(lp)
    a(f"global_load_dword v{v2}, v{v3}, s[{P_DBG}:{P_DBG+1}] sc1\ns_waitcnt vmcnt(0)")
    a.label(lp + "c")
    a(f"""
    v_cmp_eq_u32 vcc, 0, v{v2}
    s_cbranch_vccz {ok}
    s_sleep 4
    s_add_u32 s{t+6}, s{t+6}, 1
    s_cmp_lt_u32 s{t+6}, {SPIN}
    s_cbranch_scc1 {lp}
    s_mov_b32 s{sTMO}, {SPIN}
    """)
    a.label(ok)
    a(f"""
    v_readfirstlane_b32 s{sEP}, v{v2}
    s_getreg_b32 s{t+6}, hwreg(HW_REG_XCC_ID, 0, 4)
    v_add_u32 v{v2}, s{t+6}, v{v2}
    s_mov_b64 exec, 1
    buffer_store_dword v{v2}, v{v3}, {WSR}, s{t+4} offen offset:32 sc1
    s_mov_b64 exec, -1
    s_waitcnt lgkmcnt(0)
    """)

def census(a, va, vt, issue, cnt=0):
    t = T + 20
    a(f"""
    v_and_b32 v{va}, 31, v0
    v_lshlrev_b32 v{va}, 7, v{va}
    s_lshl_b32 s{t}, s{sG}, 12
    s_add_u32 s{t}, s{t}, {L_FG + 32}
    """)
    if issue:
        a(f"buffer_load_dword v{vt}, v{va}, {WSR}, s{t} offen sc1")
        return
    poll(a, va, vt, f"s{t}", f"s{sEP}", sleep=4, pre=cnt)
    a(f"""
    s_getreg_b32 s{t}, hwreg(HW_REG_XCC_ID, 0, 4)
    v_cmp_ne_u32 vcc, s{t}, v{vt}
    s_cmp_eq_u64 vcc, 0
    s_cselect_b32 s{t}, 1, 0
    v_mov_b32 v{va}, {Q1_NON}
    v_mov_b32 v{vt}, s{t}
    ds_write_b32 v{va}, v{vt} offset:4
    v_mov_b32 v{vt}, s{sEP}
    ds_write_b32 v{va}, v{vt}
    s_waitcnt lgkmcnt(0)
    """)

sMODE = 14 - 14 + 98
def read_nonce_mode(a):
    a(f"v_mov_b32 v1, {Q1_NON}\nds_read_b64 v[2:3], v1\ns_waitcnt lgkmcnt(0)\nv_readfirstlane_b32 s{sEP}, v2\nv_readfirstlane_b32 s{sMODE}, v3")

def qkv_ids(a, t):
    a(f"s_lshr_b32 s{t}, s{sWG}, 4\ns_and_b32 s{t+1}, s{sR}, 15")

def qkv_compute(a, first, SB):
    t = T
    sRT, sCT, sTY, sC0 = t, t+1, t+2, t+3
    LQ = 0 if first else LSTRIDE
    sWM, sWN = t+5, t+6
    a(f"""
    s_mul_i32 s{sTY}, s{sCT}, 52
    s_lshr_b32 s{sTY}, s{sTY}, 8
    s_mul_i32 s{sC0}, s{sTY}, 5
    s_sub_u32 s{sC0}, s{sCT}, s{sC0}
    s_lshl_b32 s{sC0}, s{sC0}, 7
    s_and_b32 s{sWM}, s{sW}, 1
    s_lshr_b32 s{sWN}, s{sW}, 1
    v_lshrrev_b32 v14, 5, v0
    v_and_b32 v15, 31, v0
    """)
    ACC = 128; FR = 16; VST = 80; VCS = 96; VCV = 192; ONE = 196; AD = 200; MS = 244
    sCS = t+15
    a(f"s_lshl_b32 s{sCS}, s{sWG}, 9\ns_lshl_b32 s{t+7}, s{sWN}, 8\ns_add_u32 s{sCS}, s{sCS}, s{t+7}\ns_add_u32 s{sCS}, s{sCS}, {WS_CSQ}")
    a(f"v_lshlrev_b32 v{AD+8}, 5, v14\nv_lshlrev_b32 v{AD+9}, 2, v15")
    if first:
        a(f"""
        s_lshl_b32 s{t+7}, s{sWM}, 13
        v_lshlrev_b32 v1, 7, v15
        v_add_u32 v1, s{t+7}, v1
        v_bfe_u32 v8, v0, 1, 3
        v_xor_b32 v8, v8, v14
        """)
        for kk in range(4):
            a(f"v_xor_b32 v9, {2*kk}, v8\nv_lshl_add_u32 v{2+kk}, v9, 4, v1")
    else:
        a(f"s_lshl_b32 s{t+7}, s{sWM}, 13\nv_lshlrev_b32 v2, 4, v0\nv_add_u32 v2, s{t+7}, v2")
    a(f"""
    v_and_b32 v10, 3, v0
    v_and_b32 v11, 1, v0
    v_bfe_u32 v12, v0, 1, 1
    v_lshl_add_u32 v11, v11, 1, v12
    s_cmp_eq_u32 s{sTY}, 2
    s_cselect_b64 vcc, -1, 0
    v_cndmask_b32 v10, v11, v10, vcc
    v_bfe_u32 v8, v0, 2, 2
    v_lshl_add_u32 v9, v14, 3, v8
    v_lshlrev_b32 v9, 8, v9
    v_lshl_add_u32 v9, v10, 3, v9
    v_bfe_u32 v10, v0, 4, 1
    v_lshl_add_u32 v9, v10, 5, v9
    s_lshl_b32 s{t+7}, s{sWN}, 1
    v_xor_b32 v8, s{t+7}, v8
    v_lshl_add_u32 v6, v8, 6, v9
    v_xor_b32 v8, 1, v8
    v_lshl_add_u32 v7, v8, 6, v9
    """)
    nxa = 4 if first else 1
    W0 = 16384 if first else qkW(0)
    for i in range(4): a(f"v_add_u32 v{8+i}, {WB + 49152*(i >> 1)}, v{6 + (i & 1)}")
    VM, VR = (96, 212)
    assert Q1_TAB == qkW(4)
    for i in range(0, 64, 2): a(f"v_mov_b64 v[{ACC+i}:{ACC+i+1}], 0")
    def reads(kk):
        b = FR + 16*kk; r = []
        for tm in range(2):
            if first: r.append(f"ds_read_b128 v[{b+4*tm}:{b+4*tm+3}], v{8+kk} offset:{4096*tm}")
            else: r.append(f"ds_read_b128 v[{b+4*tm}:{b+4*tm+3}], v8 offset:{4096*tm+1024*kk}")
        for tn in range(2):
            for j in range(2):
                d = b + 8 + 4*tn + 2*j
                r.append(f"ds_read_b64_tr_b16 v[{d}:{d+1}], v{12+tn} offset:{4096*kk+1024*j}")
        return r
    def mfmas(kk, vtype, tns=(0, 1)):
        b = FR + 16*kk; m = []
        for tn in tns:
            W = v(b + 8 + 4*tn, 4)
            for tm in range(2):
                c = ACC + 16*(2*tn + tm)
                X = v(b + 4*tm, 4)
                A, B = (X, W) if vtype else (W, X)
                m.append(f"v_mfma_f32_32x32x16_bf16 {v(c,16)}, {A}, {B}, {v(c,16)}")
        return m
    sC, sSa, sSw, sMk, sDst, sD1 = t+9, t+10, t+4, t+11, t+12, 96
    qloc = C.qloc and SB == '' and not first
    vlab = a.uid("qkv_v"); fin = a.uid("qkv_fin"); done = a.uid("qkv_cdone")
    a(f"s_mov_b32 s{sC}, {10 if first else 9}\ns_mov_b32 s{sSa}, 0\ns_mov_b32 s{sSw}, {W0}")
    a(f"s_cmp_eq_u32 s{sTY}, 2\ns_cbranch_scc1 {vlab}")
    def v_tab_reads(roff):
        a(f"v_lshlrev_b32 v1, 4, v14\nv_add_u32 v1, s{t+7}, v1")
        for tm in range(2):
            for q in range(4):
                a(f"ds_read_b128 v[{VM+16*tm+4*q}:{VM+16*tm+4*q+3}], v1 offset:{(32*tm+8*q)*4}")
                a(f"ds_read_b128 v[{VR+16*tm+4*q}:{VR+16*tm+4*q+3}], v1 offset:{roff+(32*tm+8*q)*4}")
    hooks = []
    def mainloop(vtype, epi, alt=None):
        lp = a.uid("qkv_loop"); hk = a.uid("qkv_hk"); hb = a.uid("qkv_hb"); ent = a.uid("qkv_ent")
        if first: xstat_fin(a)
        stamp(a, 1 if first else 18)
        def rd(c, kk):
            b = FR + 16*kk; r = []
            for tm in range(2):
                if first: r.append(f"ds_read_b128 v[{b+4*tm}:{b+4*tm+3}], v{2+kk} offset:{(c % 4)*16384+4096*tm}")
                else: r.append(f"ds_read_b128 v[{b+4*tm}:{b+4*tm+3}], v2 offset:{(c % 4)*16384+4096*tm+1024*kk}")
            o = qkW(c) - WB
            for tn in range(2):
                for j in range(2):
                    d = b + 8 + 4*tn + 2*j
                    r.append(f"ds_read_b64_tr_b16 v[{d}:{d+1}], v{8 + 2*(o // 49152) + tn} offset:{o % 49152 + 4096*kk+1024*j}")
            return r
        mf = lambda kk, tl: mfmas(kk, vtype, (tl >> 1,))[tl & 1]
        a(f"""
        s_lshl_b32 s{sC}, s{sRT}, 1
        s_add_u32 s{sC}, s{sC}, s{sWM}
        s_lshl_b32 s{sC}, s{sC}, 12
        s_add_u32 s{sC}, s{sC}, {WS_ST0 if first else L_ST2}
        v_lshlrev_b32 v6, 4, v0
        """)
        p_ld, p_st, p_b, p_r = (28, 56, 77, 120)
        ins = {}
        if first: ins[20] = ["s_waitcnt vmcnt(0)"]
        for i in range(4): ins[p_ld + 2*i] = [f"buffer_load_dwordx4 v[{VST+4*i}:{VST+4*i+3}], v6, {WSR}, s{sC} offen offset:{1024*i} sc1"]
        b = Asm(); b("s_waitcnt vmcnt(0)"); row_stats(b, VST, MS, MS + 1)
        neg = [f"v_sub_f32 v{VCV}, 0, v{VCV}", f"v_sub_f32 v{VCV+2}, 0, v{VCV+2}"]
        if vtype:
            if not first: b("\n".join(neg))
            a(f"s_lshl_b32 s{t+7}, s{sW}, 9\ns_add_u32 s{t+7}, s{t+7}, {qkW(4)}\nv_lshlrev_b32 v12, 2, v0\nv_add_u32 v12, s{t+7}, v12\nv_lshlrev_b32 v13, 4, v14\nv_add_u32 v13, s{t+7}, v13")
            ins[p_b] = [f"ds_write_b32 v12, v{MS}", f"ds_write_b32 v12, v{MS+1} offset:256"]
            for tm in range(2):
                for q in range(4):
                    ins[p_b].append(f"ds_read_b128 v[{VM+16*tm+4*q}:{VM+16*tm+4*q+3}], v13 offset:{(32*tm+8*q)*4}")
                    ins.setdefault(p_r, []).append(f"ds_read_b128 v[{VR+16*tm+4*q}:{VR+16*tm+4*q+3}], v13 offset:{256+(32*tm+8*q)*4}")
            fix = lambda tl: [f"v_fmac_f32 v{ACC+16*tl+i}, v{VCV+2*(tl>>1)}, v{VM+16*(tl&1)+i}" for i in range(16)]
            ff = 92
        else:
            qk_stats_fin(b)
            fix = lambda tl: [f"v_fmac_f32 v{ACC+16*tl+i}, v{MS+4*(tl&1)}, v{VCS+16*(tl>>1)+i}" for i in range(16)]
            ff = 80
        ins = dict(sorted({**ins, p_st: b.lines}.items()))
        if not first:
            gemm_unrolled(a, 10, 4, 6, rd, mf, [(0, 1), (2, 3)], ins, fix, ff, epi, 19, alt)
            return
        ins = {20: ["s_waitcnt vmcnt(0)"]}
        a(f"s_lshl_b32 s{t+7}, s{sWM}, 8\ns_add_u32 s{t+7}, s{t+7}, {Q1_TAB}")
        if vtype:
            a(f"v_lshlrev_b32 v13, 4, v14\nv_add_u32 v13, s{t+7}, v13")
            sr = [f"ds_read_b128 v[{R_+16*tm+4*q}:{R_+16*tm+4*q+3}], v13 offset:{o_+(32*tm+8*q)*4}" for R_, o_ in ((VM, 0), (VR, 512)) for tm in range(2) for q in range(4)]
            sf = neg
        else:
            a(f"v_add_u32 v13, s{t+7}, v{AD+9}\ns_cmp_eq_u32 s{sTY}, 0\ns_cselect_b32 s{sC}, {f32(QSCALE)}, 1.0")
            sr = [f"ds_read_b32 v{MS+4*tm+2*k_}, v13 offset:{128*tm+512*k_}" for tm in range(2) for k_ in range(2)]
            sf = [x for tm in range(2) for x in (f"v_sub_f32 v{MS+4*tm}, 0, v{MS+4*tm}", f"v_mul_f32 v{MS+4*tm+2}, s{sC}, v{MS+4*tm+2}")]
        a(f"s_lshl_b32 s{t+7}, s{sWN}, 8\ns_add_u32 s{t+7}, s{t+7}, {Q1_CS}\nv_add_u32 v7, s{t+7}, v{AD+9 if vtype else AD+8}\nv_mov_b32 v1, {Q1_NON}")
        ae = [f"ds_read_b64 v[{ONE}:{ONE+1}], v1"]
        for tn in range(2):
            if vtype: ae.append(f"ds_read_b32 v{VCV+2*tn}, v7 offset:{128*tn}")
            else: ae += [f"ds_read_b128 v[{VCS+16*tn+4*q}:{VCS+16*tn+4*q+3}], v7 offset:{(32*tn+16*(q>>1)+4*(q&1))*4}" for q in range(4)]
        def epi1(tn, pk):
            r = []
            if tn == 0: r = ["s_waitcnt lgkmcnt(0)", f"v_readfirstlane_b32 s{sEP}, v{ONE}", f"v_readfirstlane_b32 s{sMODE}, v{ONE+1}"] + sf
            if not pk: r += fix(2*tn) + fix(2*tn + 1)
            return r + epi(tn, pk)
        gemm_unrolled(a, 10, 4, 6, rd, mf, [(0, 1), (2, 3)], ins, lambda tl: [], 0, epi1, 2, None, ae + (sr if C.c_f == 9 else []), sr if C.c_f < 9 else [])
    HMASK1 = (1 << 8) | (1 << 2)
    HMASK2 = (1 << 5) | (1 << 2)
    if not first:
        for tn in range(2):
            for q in range(4):
                r = VCS + 16*tn + 4*q
                a(f"buffer_load_dwordx4 v[{r}:{r+3}], v{AD+8}, {WSR}, s{sCS} offen offset:{(32*tn+16*(q>>1)+4*(q&1))*4} sc1")
    a(f"""
    s_mul_i32 s{sDst}, s{sTY}, {ACT}
    s_lshl_b32 s{t+8}, s{sRT}, 2
    s_lshl_b32 s{t+7}, s{sWM}, 1
    s_add_u32 s{t+8}, s{t+8}, s{t+7}
    s_mul_i32 s{t+8}, s{t+8}, 1280
    s_add_u32 s{sDst}, s{sDst}, s{t+8}
    s_add_u32 s{sDst}, s{sDst}, {LQ}
    s_lshr_b32 s{t+8}, s{sC0}, 3
    s_lshl_b32 s{t+7}, s{sWN}, 3
    s_add_u32 s{t+8}, s{t+8}, s{t+7}
    v_add_u32 v80, s{t+8}, v14
    s_mov_b32 s{t+13}, {HEADB}
    v_mov_b32 v86, 0x7fffffff
    s_mov_b32 s{sMk}, 0
    s_add_u32 s{sD1}, s{sDst}, 1280
    """)
    if qloc:
        a(f"""
        s_lshl_b32 s{t+8}, s{sRT}, 1
        s_add_u32 s{t+8}, s{t+8}, s{sWM}
        s_mul_i32 s{t+8}, s{t+8}, {2*F*64}
        s_add_u32 s{t+8}, s{t+8}, {L_H + 57344}
        s_add_u32 s{t+7}, s{t+8}, {F*64}
        s_cmp_eq_u32 s{sTY}, 0
        s_cselect_b32 s{sDst}, s{t+8}, s{sDst}
        s_cselect_b32 s{sD1}, s{t+7}, s{sD1}
        s_cselect_b32 s{t+13}, 1280, s{t+13}
        """)
    a(f"s_add_u32 s{t+14}, s{sDst}, s{t+13}\ns_add_u32 s{sD1+1}, s{sD1}, s{t+13}")
    for sl in range(4):
        a(f"""
        v_add_u32 v81, {2*sl}, v80
        v_mul_u32_u24 v82, 205, v81
        v_lshrrev_b32 v82, 10, v82
        v_mad_i32_i24 v81, v82, -5, v81
        v_cmp_lt_u32 vcc, 2, v81
        v_lshlrev_b32 v82, 1, v82
        v_add_u32 v83, -3, v81
        v_cndmask_b32 v83, v81, v83, vcc
        v_addc_co_u32 v82, vcc, 0, v82, vcc
        v_lshlrev_b32 v83, 9, v83
        v_lshl_add_u32 v83, v15, 4, v83
        v_lshlrev_b32 v85, 3, v15
        v_add_u32 v85, 1024, v85
        v_cmp_eq_u32 vcc, 2, v81
        v_mul_lo_u32 v84, v82, s{t+13}
        s_cmp_lg_u64 vcc, 0
        v_cndmask_b32 v83, v83, v86, vcc
        v_cndmask_b32 v85, v86, v85, vcc
        s_cselect_b32 s{t+7}, {1 << sl}, 0
        s_or_b32 s{sMk}, s{sMk}, s{t+7}
        v_add_u32 v{AD+sl}, v83, v84
        v_add_u32 v{AD+4+sl}, v85, v84
        """)
    def qk_stats_fin(a):
        a(f"""
        s_cmp_eq_u32 s{sTY}, 0
        s_cselect_b32 s{t+7}, {f32(QSCALE)}, 1.0
        v_mul_f32 v{MS+2}, s{t+7}, v{MS+1}
        v_mul_f32 v{MS+6}, s{t+7}, v{MS+1}
        v_sub_f32 v{MS+4}, 0, v{MS}
        v_sub_f32 v{MS}, 0, v{MS}
        s_nop 1
        v_permlane32_swap_b32 v{MS}, v{MS+4}
        v_permlane32_swap_b32 v{MS+2}, v{MS+6}
        s_nop 1
        """)
    def epi_qk(tn, pk=True, bits='sc1'):
        r = []
        for tm in range(2):
            c = ACC + 16*(2*tn + tm); cs = VCS + 16*tn; m = MS + 4*tm
            for p in range(2):
                if pk:
                    for i in range(8*p, 8*p + 8, 2):
                        if first: r.append(f"v_pk_fma_f32 v[{c+i}:{c+i+1}], v[{cs+i}:{cs+i+1}], v[{m}:{m+1}], v[{c+i}:{c+i+1}] op_sel_hi:[1,0,1]")
                    for i in range(8*p, 8*p + 8, 2):
                        r.append(f"v_pk_mul_f32 v[{c+i}:{c+i+1}], v[{c+i}:{c+i+1}], v[{m+2}:{m+3}] op_sel_hi:[1,0]")
                else:
                    for i in range(8*p, 8*p + 8): r.append(f"v_mul_f32 v{c+i}, v{m+2}, v{c+i}")
                for i in range(4):
                    r.append(f"v_cvt_pk_bf16_f32 v{c+8*p+i}, v{c+8*p+2*i}, v{c+8*p+2*i+1}")
                r.append(f"buffer_store_dwordx4 v[{c+8*p}:{c+8*p+3}], v{AD+2*tn+p}, {WSR}, s{sD1 if tm else sDst} offen {bits}")
        return r
    def bparts(bits):
        for sl in range(4):
            sk = a.uid("qk_b")
            a(f"s_bitcmp0_b32 s{sMk}, {sl}\ns_cbranch_scc1 {sk}")
            for tm in range(2):
                o = ACC + 16*(2*(sl >> 1) + tm) + 8*(sl & 1)
                a(f"buffer_store_dwordx2 v[{o}:{o+1}], v{AD+4+sl}, {WSR}, s{sD1 if tm else sDst} offen {bits}")
                a(f"buffer_store_dwordx2 v[{o+2}:{o+3}], v{AD+4+sl}, {WSR}, s{sD1+1 if tm else t+14} offen {bits}")
            a.label(sk)
        a(f"s_branch {fin}")
    if qloc: mainloop(False, epi_qk, (f"s_cmp_eq_u32 s{sTY}, 0", lambda tn, pk: epi_qk(tn, pk, ""), lambda: bparts("sc1"), lambda: bparts("")))
    else:
        mainloop(False, epi_qk); bparts("sc1")
    a.label(vlab)
    if not first:
        for tn in range(2):
            a(f"buffer_load_dword v{VCV+2*tn}, v{AD+9}, {WSR}, s{sCS} offen offset:{128*tn} sc1")
    a(f"""
    s_lshl_b32 s{t+8}, s{sRT}, 3
    s_lshl_b32 s{t+7}, s{sWM}, 2
    s_add_u32 s{t+8}, s{t+8}, s{t+7}
    s_mul_i32 s{sDst}, s{t+8}, 640
    s_add_u32 s{sDst}, s{sDst}, {L_V + LQ}
    s_lshl_b32 s{t+7}, s{sWN}, 6
    s_add_u32 s{t+8}, s{sC0}, s{t+7}
    v_add_u32 v80, s{t+8}, v15
    v_mul_u32_u24 v81, 320, v14
    s_mov_b32 s{t+13}, {HEADB}
    s_movk_i32 s{t+14}, 3277
    s_movk_i32 s{t+7}, -20
    """)
    for tn in range(2):
        a(f"""
        v_add_u32 v83, {32*tn}, v80
        v_mul_u32_u24 v84, s{t+14}, v83
        v_lshrrev_b32 v84, 16, v84
        v_mad_i32_i24 v83, v84, s{t+7}, v83
        v_lshl_add_u32 v83, v83, 4, v81
        v_mul_lo_u32 v85, v84, s{t+13}
        v_add_u32 v{AD+tn}, v83, v85
        """)
    def epi_v(tn, pk=True):
        r = []
        for tm in range(2):
            c = ACC + 16*(2*tn + tm); cv = VCV + 2*tn
            for p in range(2):
                if pk:
                    for i in range(8*p, 8*p + 8, 2):
                        if first: r.append(f"v_pk_fma_f32 v[{c+i}:{c+i+1}], v[{VM+16*tm+i}:{VM+16*tm+i+1}], v[{cv}:{cv+1}], v[{c+i}:{c+i+1}] op_sel_hi:[1,0,1]")
                    for i in range(8*p, 8*p + 8, 2):
                        r.append(f"v_pk_mul_f32 v[{c+i}:{c+i+1}], v[{c+i}:{c+i+1}], v[{VR+16*tm+i}:{VR+16*tm+i+1}]")
                else:
                    for i in range(8*p, 8*p + 8): r.append(f"v_mul_f32 v{c+i}, v{VR+16*tm+i}, v{c+i}")
                for i in range(4):
                    r.append(f"v_cvt_pk_bf16_f32 v{c+8*p+i}, v{c+8*p+2*i}, v{c+8*p+2*i+1}")
                r.append(f"buffer_store_dwordx4 v[{c+8*p}:{c+8*p+3}], v{AD+tn}, {WSR}, s{sDst} offen offset:{640*(2*tm+p)} sc1")
        return r
    mainloop(True, epi_v)
    a.label(fin)
    stamp(a, 3 if first else 20)
    flag_setup(a, 1 if first else 6)
    a(f"s_lshl_b32 s{t+7}, s{sWG}, 5\ns_add_u32 s{t+7}, s{t+7}, s{sW}\ns_lshl_b32 s{t+7}, s{t+7}, 2\ns_add_u32 s{t+7}, s{t+7}, {L_FG + LQ}")
    a("s_waitcnt vmcnt(0)")
    if first:
        l1 = a.uid("q1f"); l2 = a.uid("q1g")
        a(f"s_cmp_eq_u32 s{sMODE}, 0\ns_cbranch_scc1 {l1}")
        flag_store(a, ""); a(f"s_branch {l2}")
        a.label(l1); flag_store(a, "sc1"); a.label(l2)
    else: flag_store(a, SB)
    flag_store(a, "sc1", t+7)
    a.label(done)

def qkvW_setup(a, sWo, sLW, sCT, sTmp, vW):
    a(f"""
    v_lshrrev_b32 v2, 4, v0
    v_mul_u32_u24 v1, 3840, v2
    v_lshlrev_b32 v7, 2, v2
    v_and_b32 v3, 15, v0
    v_xor_b32 v3, v3, v7
    v_lshl_add_u32 v{vW}, v3, 4, v1
    s_mul_i32 s{sWo}, s{sLW}, {16*3840}
    s_lshl_b32 s{sTmp}, s{sCT}, 8
    s_add_u32 s{sWo}, s{sWo}, s{sTmp}
    """)

def qkv1_loader(a):
    t = T
    sRT, sCT = t, t+1
    sLW, sAo, sWo, sM, sTmp, sRot, sThr, sA1, sW1, sSel = t+2, t+3, t+4, t+5, t+6, t+8, t+9, t+10, t+11, t+12
    a(f"s_sub_u32 s{sLW}, s{sW}, 4")
    qkvW_setup(a, sWo, sLW, sCT, sTmp, 6)
    a(f"""
    s_lshl_b32 s{sM}, s{sLW}, 12
    s_lshl_b32 s{sAo}, s{sRT}, 2
    s_add_u32 s{sAo}, s{sAo}, s{sLW}
    s_mul_i32 s{sAo}, s{sAo}, {32*1280}
    v_lshrrev_b32 v1, 3, v0
    v_mul_u32_u24 v1, 1280, v1
    v_and_b32 v3, 7, v0
    v_xor_b32 v3, v3, v2
    v_lshl_add_u32 v4, v3, 4, v1
    v_xor_b32 v3, 4, v3
    v_lshl_add_u32 v5, v3, 4, v1
    """)
    a("s_waitcnt lgkmcnt(0)")
    srd(a, R_X, P_X, ACT)
    srd(a, R_WQ, P_WQKV, D*3*D*2)
    def emitA(c, i0, k):
        for i in range(i0, i0 + k):
            a(f"s_add_u32 m0, s{sM}, {(c % 4)*16384 + 1024*i}\ns_add_u32 s{sTmp}, s{sAo}, {c*128 + i*8*1280}")
            a(f"buffer_load_dwordx4 v{4 + (i & 1)}, {R(R_X)}, s{sTmp} offen lds")
    def emitW(c, i0, k):
        for i in range(i0, i0 + k):
            a(f"s_add_u32 m0, s{sM}, {qkW(c) + 1024*i}\ns_add_u32 s{sTmp}, s{sWo}, {c*64*3840 + i*4*3840}")
            a(f"buffer_load_dwordx4 v6, {R(R_WQ)}, s{sTmp} offen lds")
    LD = Loader(a); mark = [0]
    def xstats(c):
        if c == 0:
            other_srds(a)
            a(f"""
            v_bfe_u32 v8, v0, 2, 2
            v_lshrrev_b32 v9, 5, v0
            v_lshl_add_u32 v9, v9, 3, v8
            v_lshlrev_b32 v9, 8, v9
            v_and_b32 v10, 3, v0
            v_lshl_add_u32 v9, v10, 3, v9
            v_bfe_u32 v10, v0, 4, 1
            v_lshl_add_u32 v9, v10, 5, v9
            v_xor_b32 v8, s{sLW}, v8
            v_lshl_add_u32 v9, v8, 6, v9
            v_add_u32 v9, {WB}, v9
            v_add_u32 v8, 49152, v9
            """)
            for i in range(4): a(f"v_mov_b32 v{12+i}, 0x3f803f80")
        for kk in range(0 if C.nocs else 4):
            for j in range(2):
                a(f"ds_read_b64_tr_b16 v[{16+4*kk+2*j}:{17+4*kk+2*j}], v{9 if qkW(c) - WB < 49152 else 8} offset:{(qkW(c) - WB) % 49152 + 4096*kk + 1024*j}")
        a("s_waitcnt lgkmcnt(0)")
        for kk in range(0 if C.nocs else 4):
            a(f"v_mfma_f32_32x32x16_bf16 v[32:47], v[12:15], v[{16+4*kk}:{19+4*kk}], {'v[32:47]' if (c or kk) else 0}")
        n = LD.total - mark[0]
        if c in (0, C.c_i, C.c_c): mark[0] = LD.total
        def st_issue():
            census(a, 80, 81, False, n)
            a(f"s_lshl_b32 s{t+7}, s{sRT}, 13\ns_add_u32 s{t+7}, s{t+7}, {WS_ST0}\ns_add_u32 s{t+13}, s{t+7}, 4096\nv_lshlrev_b32 v82, 4, v0")
            for h_ in range(2):
                for i in range(4): a(f"buffer_load_dwordx4 v[{96+16*h_+4*i}:{99+16*h_+4*i}], v82, {WSR}, s{t+13 if h_ else t+7} offen offset:{1024*i} sc1")
        def st_fin():
            a(f"s_waitcnt vmcnt({n})\nv_lshlrev_b32 v82, 2, v0\nv_add_u32 v82, {Q1_TAB}, v82")
            for h_ in range(2):
                row_stats(a, 96 + 16*h_, 84, 85)
                a(f"ds_write_b32 v82, v84 offset:{256*h_}\nds_write_b32 v82, v85 offset:{512+256*h_}")
            a("s_waitcnt lgkmcnt(0)")
        st = {0: lambda: (flags_zero(a), nonce_issue(a, 81, 82)), 2: lambda: nonce_get(a, 80, 81, 82, n), C.c_i: lambda: census(a, 80, 81, True), C.c_c: st_issue, C.c_f: st_fin}
        if c in st:
            l = a.uid("w7")
            a(f"s_cmp_lg_u32 s{sW}, 7\ns_cbranch_scc1 {l}")
            st[c](); a.label(l)
            LD.q += [("x7", "x", 99)] * {0: 4, 2: 1, C.c_i: 1, C.c_c: 8, C.c_f: 0}[c]
    if C.q1prio: a("s_setprio 2")
    stamp(a, 1)
    ph = Phase("q1", 10, 4, 4, emitA, emitW, lambda c: ((c % 4)*16384, (c % 4)*16384 + 16384), lambda c: (qkW(c), qkW(c) + 16384),
               None, C.bud_q1, after_bar=xstats, dbg=(C.dbg == 1))
    def waitfn(w):
        l1 = a.uid("pw"); l2 = a.uid("pw"); l3 = a.uid("pw")
        a(f"s_cmp_eq_u32 s{sW}, 4\ns_cbranch_scc1 {l1}\ns_cmp_eq_u32 s{sW}, 7\ns_cbranch_scc1 {l2}\ns_waitcnt vmcnt({w+5})\ns_branch {l3}")
        a.label(l1); a(f"s_waitcnt vmcnt({w+16})\ns_branch {l3}")
        a.label(l2); a(f"s_waitcnt vmcnt({w})")
        a.label(l3)
    ph.look = C.look_q1
    LD.run(ph, None)
    a(f"""
    v_and_b32 v1, 31, v0
    v_lshlrev_b32 v1, 2, v1
    s_lshl_b32 s{sTmp}, s{sLW}, 7
    v_add_u32 v1, s{sTmp}, v1
    v_add_u32 v2, {Q1_CS}, v1
    s_lshl_b32 s{sTmp}, s{sWG}, 9
    s_add_u32 s{sTmp}, s{sTmp}, {WS_CSQ}
    s_setprio 0
    s_nop 3
    ds_write_b32 v2, v32
    buffer_store_dword v32, v1, {WSR}, s{sTmp} offen
    s_waitcnt lgkmcnt(0)
    """)
    stamp(a, 2)
    a("s_barrier")
    read_nonce_mode(a)

def other_srds(a):
    srd(a, R_WS, P_WS, WS_END)
    srd(a, R_WG, P_WG, D*F*2)
    srd(a, R_WU, P_WU, D*F*2)
    srd(a, R_T, P_WS, WS_END)

def qkv1_idle(a):
    l2 = a.uid("idl"); l1 = a.uid("idl"); l3 = a.uid("idl"); l4 = a.uid("idl"); lj = a.uid("idl")
    tj = 84; K = NAME + "_kernel"
    a(f"v_lshlrev_b32 v5, 4, v0\ns_cmp_lt_u32 s{sW}, 4\ns_cbranch_scc1 {l1}")
    a(f"s_xor_b32 s{tj}, s{sW}, 7\ns_or_b32 s{tj}, s{tj}, s{T}\ns_cmp_lg_u32 s{tj}, 0\ns_cbranch_scc1 {l3}")
    nonce_put(a)
    a.label(l3)
    a(f"s_getpc_b64 s[{tj+4}:{tj+5}]")
    a.label("L_pc")
    a(f"""
    s_sub_u32 s{tj+4}, s{tj+4}, L_pc-{K}
    s_subb_u32 s{tj+5}, s{tj+5}, 0
    s_and_b32 s{tj}, s{T}, 1
    s_lshl_b32 s{tj}, s{tj}, 2
    s_add_u32 s{tj}, s{tj}, s{sW}
    s_sub_u32 s{tj}, s{tj}, 4
    s_lshl_b32 s{tj}, s{tj}, 13
    v_lshlrev_b32 v1, 7, v0
    v_add_u32 v2, s{tj}, v1
    global_load_dword v251, v2, s[{tj+4}:{tj+5}]
    """)
    a(f"s_lshl_b32 s{tj}, s{T}, 2\ns_add_u32 s{tj}, s{tj}, s{sW}\ns_add_u32 s{tj+2}, s{tj}, {60 - 4}\ns_lshl_b32 s{tj+2}, s{tj+2}, 13")
    for i in range(4):
        if C.q1pf: a(f"buffer_load_dword v251, v1, {R(R_WQ)}, s{tj+2} offen\ns_add_u32 s{tj+2}, s{tj+2}, {64*8192}")
        if i == 0: a("s_barrier")
    a(f"s_branch {l2}")
    a.label(l1)
    xstat_fin(a)
    a(f"s_cmp_lg_u32 s{sW}, 0\ns_cbranch_scc1 {l4}")
    flags_zero(a)
    a.label(l4)
    a(f"s_waitcnt vmcnt(0)\ns_barrier\ns_cmp_lg_u32 s{sW}, 0\ns_cbranch_scc1 {l2}")
    nonce_issue(a, 81, 82)
    nonce_get(a, 80, 81, 82)
    a.label(l2)
    a(f"s_mul_i32 s{tj}, s{T}, 10\ns_add_u32 s{tj+7}, s{tj}, 10\ns_add_u32 s{tj}, s{tj}, s{sW}\ns_mul_i32 s{tj+1}, s{sW}, 5120")
    a.label(lj)
    projjob_issue(a, tj, tj+1, tj)
    a("s_waitcnt vmcnt(0)")
    projjob_finish(a, tj+1, tj)
    a(f"s_add_u32 s{tj}, s{tj}, 8\ns_cmp_lt_u32 s{tj}, s{tj+7}\ns_cbranch_scc1 {lj}")
    l5 = a.uid("idl")
    a(f"s_waitcnt vmcnt(0)\ns_barrier\ns_cmp_lg_u32 s{sW}, 0\ns_cbranch_scc1 {l5}")
    a(f"""
    s_lshl_b32 s{tj}, s{sWG}, 7
    s_add_u32 s{tj}, s{tj}, {L_FG + 36}
    v_mov_b32 v1, 0
    v_mov_b32 v2, s{sEP}
    """)
    flag_store(a, "sc1", tj)
    census(a, 80, 81, True)
    census(a, 80, 81, False)
    a.label(l5)
    a("s_barrier")
    read_nonce_mode(a)

def phase_attn(a, SB, ld_label):
    fast = SB == ""
    t = T
    CH = 20480
    sQP, sKH, sSrc, sDst, sTmp, sC, sHB = t, t+1, t+2, t+3, t+4, t+5, t+8
    sEX = t+6
    sWs, sWd, sPF = t+9, t+10, t+11
    tj = 84; sJob, sScr = tj, tj + 1
    QAREA = 102400
    QA, QB = 16, 22
    NM, SS, PP, OO, KF, VF = 32, 64, 96, 112, 144, 160
    vK, vK8, vV = 2, 3, 4
    DUM = 176; XF = 177; vX1, vX2, vO = 28, 29, 30; sO, sFB = 96, 99; XB = 102400; PR = 32
    assert C.c0
    KVB = 'nt sc1' if C.nt_kv else 'sc1'
    stamp(a, 4)
    a(f"""
    s_and_b32 s{sQP}, s{sW}, 3
    s_lshr_b32 s{sKH}, s{sW}, 2
    v_lshlrev_b32 v5, 4, v0
    s_mul_i32 s{sHB}, s{sR}, {HEADB}
    s_add_u32 s{sHB}, s{sHB}, s{sLO}
    s_and_b32 s{sTmp}, s{sQP}, 1
    s_mul_i32 s{sSrc}, s{sTmp}, 5120
    s_mul_i32 s{sDst}, s{sTmp}, 10240
    s_lshr_b32 s{sTmp}, s{sQP}, 1
    s_mul_i32 s{sC}, s{sTmp}, 5120
    s_add_u32 s{sDst}, s{sDst}, s{sC}
    s_mul_i32 s{sC}, s{sTmp}, {ACT}
    s_add_u32 s{sSrc}, s{sSrc}, s{sC}
    s_add_u32 s{sSrc}, s{sSrc}, s{sHB}
    s_add_u32 s{sSrc}, s{sSrc}, {L_K}
    """)
    def kv_issue(j):
        GF.need(0x01010101 << j)
        a(f"s_add_u32 s{sTmp}, s{sG}, {j}\ns_and_b32 s{sTmp}, s{sTmp}, 7\ns_mul_i32 s{sTmp}, s{sTmp}, 10240\ns_add_u32 s{sTmp}, s{sTmp}, s{sSrc}")
        return lin_dma(a, 5, sTmp, 0, sDst, j * CH, 5, KVB)
    def init():
        a(f"""
        v_lshrrev_b32 v14, 5, v0
        v_and_b32 v15, 31, v0
        v_lshlrev_b32 v6, 3, v15
        s_mul_i32 s{sTmp}, s{sKH}, 10240
        v_add_u32 v{vK}, s{sTmp}, v5
        v_add_u32 v{vK8}, s{sTmp}, v6
        v_mul_u32_u24 v7, 320, v14
        v_lshl_add_u32 v7, v15, 4, v7
        v_add_u32 v{vV}, s{sTmp}, v7
        s_mov_b32 s{sEX}, 0x000fffff
        s_mov_b32 s{sEX+1}, 0x000fffff
        s_mov_b32 s{t+16}, -1
        s_mov_b32 s{t+17}, 0
        v_and_b32 v9, 27, v0
        v_cmp_eq_u32 vcc, 24, v9
        v_mov_b32 v8, 0x3f803f80
        s_nop 0
        v_cndmask_b32 v8, 0, v8, vcc
        v_mov_b32 v9, v8
        v_lshlrev_b32 v13, 7, v0
        v_mov_b32 v12, 0
        """)
        for i in range(0, 16, 2): a(f"v_mov_b64 v[{VF+i}:{VF+i+1}], v[8:9]")
        for i in range(0, 32, 2): a(f"v_mov_b64 v[{OO+i}:{OO+i+1}], 0")
        for i in range(0, 8, 2): a(f"v_mov_b64 v[{PP+8+i}:{PP+8+i+1}], 0")
        a(f"v_mov_b64 v[{QA+4}:{QA+5}], 0\nv_mov_b64 v[{QB+4}:{QB+5}], 0")
        a(f"""
        s_mul_i32 s{sC}, s{sQP}, 7168
        s_add_u32 s{sC}, s{sC}, {XB}
        v_add_u32 v{vX1}, s{sC}, v5
        v_lshrrev_b32 v{vX2}, 1, v5
        v_add_u32 v{vX2}, s{sC}, v{vX2}
        s_lshl_b32 s{sTmp}, s{sQP}, 2
        s_add_u32 s{sTmp}, s{sTmp}, {XB + 28672}
        v_mov_b32 v{XF}, s{sTmp}
        s_mul_i32 s{sTmp}, s{sR}, 5
        v_add_u32 v{vO}, s{sTmp}, v14
        v_lshrrev_b32 v10, 1, v{vO}
        v_and_b32 v{vO}, 1, v{vO}
        v_lshlrev_b32 v{vO}, 3, v{vO}
        v_lshl_add_u32 v{vO}, v10, 9, v{vO}
        v_lshl_add_u32 v{vO}, v15, 4, v{vO}
        s_lshl_b32 s{sTmp}, s{sG}, 2
        s_add_u32 s{sTmp}, s{sTmp}, s{sQP}
        s_mul_i32 s{sO}, s{sTmp}, 81920
        s_add_u32 s{sO}, s{sO}, s{sLO}
        s_add_u32 s{sO}, s{sO}, {L_O}
        s_add_u32 s{sO+1}, s{sO}, 40960
        s_mov_b32 s{sFB}, 0
        """)
        if C.c0:
            for st_ in range(2): a(f"v_mov_b32 v{KF+8*st_+4}, 0x3f803f80\nv_mov_b32 v{KF+8*st_+5}, 0x3f80")
    init()
    l0 = a.uid("att_old"); l1 = a.uid("att_j")
    a(f"s_cmp_eq_u32 s{sKH}, 0\ns_cbranch_scc1 {l0}")
    poll_local(a, "attn", 1, va=10, vt=11)
    stamp(a, 5)
    a(f"""
    s_mul_i32 s{sC}, s{sQP}, 2560
    s_add_u32 s{sPF}, s{sC}, {QAREA}
    s_mul_i32 s{sTmp}, s{sG}, 10240
    s_add_u32 s{sTmp}, s{sTmp}, s{sC}
    s_add_u32 s{sTmp}, s{sTmp}, s{sHB}
    """)
    a(f"s_add_u32 s{sC}, s{sTmp}, 1280")
    if fast and C.qloc:
        a(f"""
        s_lshl_b32 s{sWs}, s{sG}, 2
        s_add_u32 s{sWs}, s{sWs}, s{sQP}
        s_mul_i32 s{sWs}, s{sWs}, {2*F*64}
        s_mul_i32 s{sWd}, s{sR}, 1280
        s_add_u32 s{sWs}, s{sWs}, s{sWd}
        s_add_u32 s{sWs}, s{sWs}, {L_H + 57344}
        s_add_u32 s{sWd}, s{sWs}, {F*64}
        s_cmp_lg_u32 s{sL}, 0
        s_cselect_b32 s{sTmp}, s{sWs}, s{sTmp}
        s_cselect_b32 s{sC}, s{sWd}, s{sC}
        """)
    for x, sr in ((0, sTmp), (1, sC)):
        a(f"""
        s_add_u32 m0, s{sPF}, {1280*x}
        s_mov_b64 exec, -1
        buffer_load_dwordx4 v5, {WSR}, s{sr} offen {KVB} lds
        s_mov_b64 exec, 0xffff
        buffer_load_dwordx4 v5, {WSR}, s{sr} offen offset:1024 {KVB} lds
        """)
    a("s_mov_b64 exec, -1")
    a(f"s_mul_i32 s{sTmp}, s{sG}, 10240\ns_add_u32 s{sTmp}, s{sTmp}, s{sSrc}")
    lin_dma(a, 5, sTmp, 0, sDst, 0, 2, KVB)
    if C.stage: a(f"s_waitcnt vmcnt({C.stage - 1})")
    lin_dma(a, 5, sTmp, 2048, sDst, 2048, 3, KVB)
    if C.stage != 1: a(f"s_waitcnt vmcnt(3)")
    a(f"s_branch {l1}")
    a.label(l0)
    a(f"""
    s_setprio 1
    v_add_u32 v10, s{sG}, v0
    v_and_b32 v10, 7, v10
    v_bfe_u32 v11, v0, 3, 1
    v_mul_u32_u24 v11, 19, v11
    s_mul_i32 s{sTmp}, s{sR}, 20
    v_add_u32 v11, s{sTmp}, v11
    v_lshrrev_b32 v11, 7, v11
    v_lshl_add_u32 v10, v10, 5, v11
    s_and_b32 s{sTmp}, s{sQP}, 1
    s_lshl_b32 s{sTmp}, s{sTmp}, 4
    s_lshr_b32 s{sC}, s{sQP}, 1
    s_mul_i32 s{sC}, s{sC}, 5
    s_add_u32 s{sTmp}, s{sTmp}, s{sC}
    s_add_u32 s{sTmp}, s{sTmp}, 5
    v_add_u32 v10, s{sTmp}, v10
    v_lshlrev_b32 v12, 7, v10
    v_lshrrev_b32 v11, 4, v0
    v_lshl_add_u32 v12, v11, 2, v12
    s_and_b32 s{sWs}, s{sR}, 7
    s_mul_i32 s{sWs}, s{sWs}, 102400
    s_mul_i32 s{sWd}, s{sW}, 5120
    s_add_u32 s{sWs}, s{sWs}, s{sWd}
    s_add_u32 s{sWs}, s{sWs}, {WS_WTO}
    s_add_u32 s{sGO}, s{sLO}, {L_FG}
    s_add_u32 s{sGW}, s{sEP}, 1
    """)
    def cpf(lo, hi):
        l = a.uid("cpf"); pc = a.uid("pc")
        a(f"s_or_b32 s{sC}, s{sL}, s{sW}\ns_cmp_lg_u32 s{sC}, 0\ns_cbranch_scc1 {l}\ns_getpc_b64 s[{t+12}:{t+13}]")
        a.label(pc)
        a(f"""
        s_sub_u32 s{t+12}, s{t+12}, {pc}-{NAME}_kernel
        s_subb_u32 s{t+13}, s{t+13}, 0
        s_lshl_b32 s{sC}, s{sR}, 11
        s_add_u32 s{sC}, s{sC}, {lo}-{NAME}_kernel
        v_add_u32 v{PV+2}, s{sC}, v13
        v_min_u32 v{PV+2}, {hi}-{NAME}_kernel, v{PV+2}
        s_mov_b64 exec, 0xffff
        global_load_dword v{DUM}, v{PV+2}, s[{t+12}:{t+13}]
        s_mov_b64 exec, -1
        """)
        a.label(l)
    if fast and C.cpf: cpf("L_fast", "L_fast_post")
    a.label(l1)
    GF = Gate(a, 12, PV, fold=True, sleep=2)
    a(f"""
    s_mul_i32 s{sC}, s{sQP}, 2560
    s_add_u32 s{sC}, s{sC}, {QAREA}
    v_add_u32 v10, s{sC}, v5
    v_add_u32 v11, s{sC}, v6
    s_barrier
    ds_read_b128 v[{QA}:{QA+3}], v10
    ds_read_b128 v[{QB}:{QB+3}], v10 offset:1280
    s_mov_b32 exec_hi, 0
    ds_read_b64 v[{QA+4}:{QA+5}], v11 offset:1024
    ds_read_b64 v[{QB+4}:{QB+5}], v11 offset:{1280+1024}
    s_mov_b32 exec_hi, -1
    """)
    stamp(a, 6)
    l1 = a.uid("att_ap")
    a(f"s_cmp_lg_u32 s{sKH}, 0\ns_cbranch_scc1 {l1}")
    GF.load()
    a.label(l1)
    base = [0]
    def rdK(st, c, kt):
        off = c * CH + kt * 1280 - base[0]
        assert 0 <= off and off + 1024 < 65536
        b = KF + 8*st
        if C.c0: return [f"s_mov_b64 exec, s[{t+16}:{t+17}]", f"ds_read_b64 v[{b+4}:{b+5}], v{vK8} offset:{off+1024}", "s_mov_b64 exec, -1", f"ds_read_b128 v[{b}:{b+3}], v{vK} offset:{off}"]
        return [f"ds_read_b128 v[{b}:{b+3}], v{vK} offset:{off}", f"ds_read_b64 v[{b+4}:{b+5}], v{vK8} offset:{off+1024}"]
    def rdV(st, c, kt):
        off = c * CH + 5120 + kt * 1280 - base[0]
        assert 0 <= off and off + 640 < 65536
        b = VF + 8*st
        return [f"s_mov_b64 exec, s[{sEX}:{sEX+1}]", f"ds_read_b128 v[{b}:{b+3}], v{vV} offset:{off}",
                f"ds_read_b128 v[{b+4}:{b+7}], v{vV} offset:{off+640}", f"s_mov_b64 exec, -1"]
    def qk(x, st, c=None):
        b = KF + 8*st; q = (QA, QB)[x]; sd = SS + 16*x
        cc = v(NM + 16*x, 16) if (c is None and not C.c0) else '0'
        return [f"v_mfma_f32_32x32x16_bf16 {v(sd,16)}, {v(b,4)}, {v(q,4)}, {cc}",
                f"v_mfma_f32_32x32x8_bf16 {v(sd,16)}, {v(b+4,2)}, {v(q+4,2)}, {v(sd,16)}"]
    def pv(x, st):
        b = VF + 8*st; p = PP + 8*x; o = OO + 16*x
        return [f"v_mfma_f32_32x32x16_bf16 {v(o,16)}, {v(b,4)}, {v(p,4)}, {v(o,16)}",
                f"v_mfma_f32_32x32x16_bf16 {v(o,16)}, {v(b+4,4)}, {v(p+4,4)}, {v(o,16)}"]
    def sm(x):
        sd = SS + 16*x; p = PP + 8*x; r = []
        for i in range(8):
            r.append(f"v_exp_f32 v{sd+2*i}, v{sd+2*i}")
            r.append(f"v_exp_f32 v{sd+2*i+1}, v{sd+2*i+1}")
            if i > 0: r.append(f"v_cvt_pk_bf16_f32 v{p+i-1}, v{sd+2*i-2}, v{sd+2*i-1}")
        r.append(f"v_cvt_pk_bf16_f32 v{p+7}, v{sd+14}, v{sd+15}")
        return r
    def setm():
        for x in range(2): a(f"v_mov_b32 v{10+x}, v{8+x}")
        a("s_nop 0")
        for x in range(2): a(f"v_permlane32_swap_b32 v{8+x}, v{10+x}")
        a("s_nop 0")
        for x in range(2): a(f"v_max_f32 v{8+x}, v{8+x}, v{10+x}")
        if C.c0:
            a("s_mov_b32 exec_lo, 0")
            for x in range(2):
                q = (QA, QB)[x] + 4; r = NM + 4*x
                a(f"""
                v_sub_f32 v{r}, 0, v{8+x}
                v_and_b32 v{r+1}, 0xffff0000, v{r}
                v_sub_f32 v{r+2}, v{r}, v{r+1}
                v_and_b32 v{r+3}, 0xffff0000, v{r+2}
                v_sub_f32 v{r+2}, v{r+2}, v{r+3}
                v_lshrrev_b32 v{r+1}, 16, v{r+1}
                v_or_b32 v{q}, v{r+1}, v{r+3}
                v_lshrrev_b32 v{q+1}, 16, v{r+2}
                """)
            a("s_mov_b32 exec_lo, -1")
            return
        for x in range(2):
            a(f"v_sub_f32 v{NM+16*x}, 0, v{8+x}\nv_sub_f32 v{NM+16*x+1}, 0, v{8+x}")
            for i in range(2, 16, 2): a(f"v_mov_b64 v[{NM+16*x+i}:{NM+16*x+i+1}], v[{NM+16*x}:{NM+16*x+1}]")
    for x in rdK(0, 0, 0): a(x)
    a("s_waitcnt lgkmcnt(0)")
    m = qk(0, 0, "0") + qk(1, 0, "0")
    for i in (0, 1, 2, 3): a(m[i])
    a.nop(10)
    for x in range(2):
        sd = SS + 16*x
        a(f"v_max3_f32 v{8+x}, v{sd}, v{sd+1}, v{sd+2}")
        for i in range(3, 15, 2):
            a(f"v_max3_f32 v{8+x}, v{8+x}, v{sd+i}, v{sd+i+1}")
        a(f"v_max_f32 v{8+x}, v{8+x}, v{sd+15}")
    setm()
    for i in range(16): a(f"v_sub_f32 v{SS+i}, v{SS+i}, v8")
    l1 = a.uid("att_w0"); l2 = a.uid("att_w1")
    sDone = t + 15
    a(f"s_cmp_eq_u32 s{sKH}, 0\ns_cbranch_scc1 {l1}\ns_waitcnt vmcnt(0)\ns_barrier\ns_branch {l2}")
    a.label(l1)
    a("s_barrier")
    GF.upd()
    a(f"s_and_b32 s{sDone}, s{sNR}, 0x02020202\ns_cbranch_scc1 {l2}")
    GF.ok = 0x02020202; kv_issue(1); GF.ok = 0
    a.label(l2)
    stamp(a, 7)
    def l0only(fn):
        l = a.uid("l0")
        a(f"s_cmp_lg_u32 s{sL}, 0\ns_cbranch_scc1 {l}")
        fn(); a.label(l)
    def l2pf(i0, n):
        for i in range(i0, min(i0 + n, (C.l2pf + 3) // 4)):
            l = a.uid("pfs")
            a(f"""
            s_cmp_ge_u32 s{sW}, {C.l2pf - 4*i}
            s_cbranch_scc1 {l}
            s_lshr_b32 s{sPF}, s{sR}, 4
            s_mul_i32 s{sPF}, s{sPF}, {15 if C.rot_gu else 1}
            s_mul_i32 s{sC}, s{sW}, {1 if C.rot_gu else 2}
            s_add_u32 s{sPF}, s{sPF}, s{sC}
            s_add_u32 s{sPF}, s{sPF}, {4*i if C.rot_gu else 8*i}
            s_lshl_b32 s{sPF}, s{sPF}, 13
            s_and_b32 s{sC}, s{sR}, 15
            s_mul_i32 s{sC}, s{sC}, 245760
            s_add_u32 s{sPF}, s{sPF}, s{sC}
            s_add_u32 s{sPF}, s{sPF}, {WS_WTG}
            buffer_load_dword v{DUM}, v13, {WSR}, s{sPF} offen
            """)
            a.label(l)
    def wwo(c): lin_dma(a, 5, sWs, c*20480, sWd, c*20480, 5, 'nt' if C.nt_wo else '')
    def fp():
        a(f"""
        s_lshl_b32 s{sC}, s{sWG}, 5
        s_add_u32 s{sC}, s{sC}, s{sW}
        s_lshl_b32 s{sC}, s{sC}, 2
        s_add_u32 s{sC}, s{sC}, {L_FG + 16}
        v_mov_b32 v10, 0
        v_mov_b32 v11, s{sEP}
        s_mov_b64 exec, 1
        buffer_store_dword v11, v10, {WSR}, s{sC} offen sc1
        s_mov_b64 exec, -1
        """)
    def cs1():
        l = a.uid("cs")
        a(f"s_cmp_lg_u32 s{sW}, 3\ns_cbranch_scc1 {l}\ns_mov_b32 exec_hi, 0xffff")
        a(f"s_and_b32 s{sC}, s{sR}, 15\ns_mul_i32 s{sC}, s{sC}, 768\ns_add_u32 s{sC}, s{sC}, {WS_CSP}")
        for i in range(10):
            a(f"buffer_load_dwordx4 v[{PV+4*i}:{PV+3+4*i}], v5, {WSR}, s{sC} offen\ns_add_u32 s{sC}, s{sC}, 12288")
        a("s_mov_b32 exec_hi, -1")
        a.label(l)
    def cs2():
        l = a.uid("cs")
        a(f"s_cmp_lg_u32 s{sW}, 3\ns_cbranch_scc1 {l}\ns_mov_b32 exec_hi, 0xffff")
        for i in range(1, 10):
            a(f"v_pk_add_f32 v[{PV}:{PV+1}], v[{PV}:{PV+1}], v[{PV+4*i}:{PV+1+4*i}]\nv_pk_add_f32 v[{PV+2}:{PV+3}], v[{PV+2}:{PV+3}], v[{PV+2+4*i}:{PV+3+4*i}]")
        a(f"s_mul_i32 s{sC}, s{sWG}, 768\ns_add_u32 s{sC}, s{sC}, {WS_CSG}")
        a(f"buffer_store_dwordx4 v[{PV}:{PV+3}], v5, {WSR}, s{sC} offen\ns_mov_b32 exec_hi, -1")
        a.label(l)
    def fpw():
        a(f"s_lshl_b32 s{sC}, s{sW}, 13\ns_add_u32 s{sC}, s{sC}, {L_FG + 16}")
        poll(a, 13, PV, f"s{sC}", f"s{sEP}", sleep=2, wide=True)
    def wow():
        a(f"v_and_b32 v{PV+1}, 15, v0\nv_lshlrev_b32 v{PV+1}, 11, v{PV+1}\ns_mov_b32 s{sC}, {L_FG + 15*128 + 36}")
        poll(a, PV + 1, PV, f"s{sC}", f"s{sEP}", sleep=2)
    def l1only(fn):
        l = a.uid("l1")
        a(f"s_cmp_eq_u32 s{sL}, 0\ns_cbranch_scc1 {l}")
        fn(); a.label(l)
    def hook(j):
        if j == 1:
            kv_issue(2); kv_issue(3); a("s_waitcnt vmcnt(10)")
        elif j == 2:
            a("s_waitcnt vmcnt(5)"); l0only(lambda: prep(a, 0)); l1only(lambda: kv_issue(4))
            GF.ok &= ~(0x01010101 << 4)
        elif j < 7:
            a(f"s_waitcnt vmcnt({5 if j == 3 else 10})")
            if j < 6: l0only(lambda: a("s_waitcnt vmcnt(0)" if j < 5 else "s_waitcnt vmcnt(5)"))
        if j == 3: l0only(lambda: (prep(a, 1), kv_issue(4))); l1only(lambda: (kv_issue(5), kv_issue(6)))
        if j == 4:
            GF.ok &= ~(0x01010101 * 0xe0)
            l0only(lambda: (wow(), fp(), kv_issue(5), kv_issue(6))); l1only(lambda: kv_issue(7))
        if j == 5:
            GF.ok &= ~(0x01010101 * 0xe0)
            l0only(lambda: kv_issue(7))
            wwo(0); wwo(1); l1only(lambda: l2pf(0, 1))
        if j == 6:
            l0only(fpw)
            wwo(2); wwo(3)
            if fast and C.cpf: cpf("L_fast_tail", "L_fast_end")
            if fast:
                a(f"""
                s_lshl_b32 s{sPF}, s{sWG}, 1
                s_and_b32 s{sC}, s{sW}, 1
                s_add_u32 s{sPF}, s{sPF}, s{sC}
                s_mul_i32 s{sPF}, s{sPF}, 5120
                s_add_u32 s{sC}, s{sLO}, {L_O}
                s_bitcmp1_b32 s{sW}, 1
                s_cselect_b32 s{sC}, {L_X1}, s{sC}
                s_add_u32 s{sPF}, s{sPF}, s{sC}
                s_mov_b32 exec_hi, 0xff
                buffer_load_dword v{DUM}, v13, {WSR}, s{sPF} offen
                s_lshl_b32 s{sTmp}, s{sWG}, 9
                s_add_u32 s{sTmp}, s{sTmp}, s{sLO}
                s_add_u32 s{sTmp}, s{sTmp}, {L_ST1}
                s_mov_b64 exec, 15
                buffer_load_dword v{DUM}, v13, {WSR}, s{sTmp} offen
                s_mov_b64 exec, -1
                """)
            l1only(lambda: l2pf(1, 1))
        if j == 7:
            l0only(cs1)
            wwo(4)
            if fast and C.htouch == 0:
                a(f"""
                s_lshl_b32 s{sPF}, s{sWG}, 2
                s_add_u32 s{sPF}, s{sPF}, s{sQP}
                s_mul_i32 s{sPF}, s{sPF}, 6144
                s_add_u32 s{sPF}, s{sPF}, s{sLO}
                s_add_u32 s{sPF}, s{sPF}, {L_H}
                s_mov_b32 exec_hi, 0xffff
                buffer_load_dword v{DUM}, v13, {WSR}, s{sPF} offen
                s_mov_b32 exec_hi, -1
                """)
            l1only(lambda: l2pf(2, 2)); l0only(lambda: l2pf(0, C.l2pf0))
    def xreads():
        r = [f"ds_read_b32 v31, v{XF}"]
        for x in range(2): r.append(f"ds_read_b64 v[{PR+12+16*x}:{PR+13+16*x}], v{vX2} offset:{3584*x+3072}")
        for x in range(2):
            for i in range(3): r.append(f"ds_read_b128 v[{PR+16*x+4*i}:{PR+16*x+4*i+3}], v{vX1} offset:{3584*x+1024*i}")
        return r
    outl = []
    for c in range(8):
        for kt in range(4):
            st = kt & 1
            last = c == 7 and kt == 3
            if c == 0 and kt == 1:
                hk = a.uid("att_hk")
                a(f"s_cmp_eq_u32 s{sKH}, 0\ns_cbranch_scc1 {hk}"); a.label(hk + "r")
                def h0():
                    l = a.uid("h0")
                    a(f"s_cmp_eq_u32 s{sDone}, 0\ns_cbranch_scc1 {l}")
                    kv_issue(1)
                    a.label(l)
                outl.append((hk, h0))
            j = c + 1 if (kt == 3 and c < 6) else (7 if (c == 7 and kt == 0) else None)
            if j:
                hk = a.uid("att_hk")
                dstamp(a, 6, 3*j)
                a(f"s_cmp_eq_u32 s{sKH}, 0\ns_cbranch_scc1 {hk}")
                if C.flip and j < 7: a("s_setprio 2")
                a.label(hk + "r")
                dstamp(a, 6, 3*j+1)
                a("s_barrier")
                dstamp(a, 6, 3*j+2)
                outl.append((hk, (lambda jj: (lambda: hook(jj)))(j)))
            if C.flip and 1 <= c < 7 and kt == C.flip - 1: a("s_setprio 1")
            val = sm(0)
            mf = qk(1, st) + pv(1, st ^ 1)
            ex = rdV(st, c, kt)
            if kt == 3 and c in (2, 5):
                base[0] += 3 * CH
                ex += [f"v_add_u32 v{r}, {3*CH}, v{r}" for r in (vK, vK8, vV)]
            if not last: ex += rdK(st ^ 1, c + (kt + 1) // 4, (kt + 1) % 4)
            cut = 4
            if C.c0 and len(ex) == 8: del ex[3]; cut = 6
            a(mf[0]); [a(x) for x in ex[:cut]]; [a(x) for x in val[0:6]]
            a(mf[2]); [a(x) for x in ex[cut:]]; [a(x) for x in val[6:12]]
            a(mf[1]); [a(x) for x in val[12:18]]
            a(mf[3]); [a(x) for x in val[18:]]
            val = sm(1)
            a("s_waitcnt lgkmcnt(0)")
            if not last:
                mf = qk(0, st ^ 1) + pv(0, st)
                a(mf[0]); [a(x) for x in val[0:6]]
                a(mf[2]); [a(x) for x in val[6:12]]
                a(mf[1]); [a(x) for x in val[12:18]]
                a(mf[3]); [a(x) for x in val[18:]]
            else:
                mf = pv(0, st) + pv(1, st)
                a(mf[0]); [a(x) for x in val[0:6]]
                a(mf[1]); [a(x) for x in xreads()]; [a(x) for x in val[6:16]]
                a(mf[2]); [a(x) for x in val[16:]]
                a("s_nop 1"); a(mf[3])
    if fast: a.label("L_fast_tail")
    stamp(a, 8)
    fb = a.uid("att_fb"); comb = a.uid("att_comb"); done = a.uid("att_done"); yng = a.uid("att_y")
    def check():
        a(f"v_mul_f32 v10, {f32(2.0**63)}, v{OO+12}\nv_mul_f32 v11, {f32(2.0**63)}, v{OO+16+12}")
        a(f"v_add_f32 v10, v10, v10\nv_add_f32 v11, v11, v11\nv_mul_f32 v10, 0, v10\nv_mul_f32 v11, 0, v11")
        for i in range(12): a(f"v_fmac_f32 v10, 0, v{OO+i}\nv_fmac_f32 v11, 0, v{OO+16+i}")
        a(f"v_cmp_u_f32 vcc, v10, v11\ns_cbranch_vccnz {fb}")
    a(f"s_cmp_eq_u32 s{sKH}, 0\ns_cbranch_scc1 {yng}")
    def older():
        a.label(yng)
        a.nop(10)
        check()
        a.label(yng + "c")
        a(f"v_mov_b32 v{OO+13}, v8\nv_mov_b32 v{OO+16+13}, v9\nv_mov_b32 v10, s{sEP}")
        for x in range(2):
            for i in range(3):
                a(f"ds_write_b128 v{vX1}, v[{OO+16*x+4*i}:{OO+16*x+4*i+3}] offset:{3584*x+1024*i}")
            a(f"ds_write_b64 v{vX2}, v[{OO+16*x+12}:{OO+16*x+13}] offset:{3584*x+3072}")
        a(f"ds_write_b32 v{XF}, v10\ns_waitcnt vmcnt(0) lgkmcnt(0)")
        l0only(cs2)
        a(f"s_setprio 0")
        stamp(a, 9)
    pl = a.uid("att_x")
    a(f"s_waitcnt lgkmcnt(0)\nv_cmp_ne_u32 vcc, s{sEP}, v31\ns_cbranch_vccnz {pl}")
    a.label(pl + "k")
    def respin():
        a.label(comb)
        a(f"s_mov_b32 s{sFB}, 1\ns_cmp_eq_u32 s{sKH}, 0\ns_cbranch_scc1 {yng}c")
        a.label(pl)
        a(f"s_mov_b32 s{t+12}, 0")
        a.label(pl + "l")
        for x in xreads(): a(x)
        a(f"""
        s_waitcnt lgkmcnt(0)
        v_cmp_ne_u32 vcc, s{sEP}, v31
        s_cbranch_vccz {pl}k
        s_add_u32 s{t+12}, s{t+12}, 1
        s_cmp_lt_u32 s{t+12}, {4*SPIN}
        s_cbranch_scc1 {pl}l
        s_branch {pl}k
        """)
    FF = 64
    for x in range(2):
        f = FF + 4*x
        a(f"v_max_f32 v{f+2}, v{8+x}, v{PR+13+16*x}\nv_sub_f32 v{f}, v{8+x}, v{f+2}\nv_sub_f32 v{f+1}, v{PR+13+16*x}, v{f+2}")
    for x in range(2):
        f = FF + 4*x
        a(f"v_exp_f32 v{f}, v{f}\nv_exp_f32 v{f+1}, v{f+1}")
    for x in range(2):
        f = FF + 4*x; o = OO + 16*x; pk = 72 + 6*x
        a(f"v_mul_f32 v{f+2}, v{f}, v{o+12}\nv_fmac_f32 v{f+2}, v{f+1}, v{PR+12+16*x}\nv_rcp_f32 v{f+2}, v{f+2}\ns_nop 0")
        a(f"v_mul_f32 v{f}, v{f}, v{f+2}\nv_mul_f32 v{f+2}, v{f+1}, v{f+2}")
        for i in range(0, 12, 2):
            a(f"v_pk_mul_f32 v[{o+i}:{o+i+1}], v[{o+i}:{o+i+1}], v[{f}:{f+1}] op_sel_hi:[1,0]")
        for i in range(0, 12, 2):
            a(f"v_pk_fma_f32 v[{o+i}:{o+i+1}], v[{PR+16*x+i}:{PR+1+16*x+i}], v[{f+2}:{f+3}], v[{o+i}:{o+i+1}] op_sel_hi:[1,0,1]")
        for i in range(6):
            a(f"v_cvt_pk_bf16_f32 v{pk+i}, v{o+2*i}, v{o+2*i+1}")
        a(f"""
        buffer_store_dwordx2 v[{pk}:{pk+1}], v{vO}, {WSR}, s{sO+x} offen {SB}
        buffer_store_dwordx2 v[{pk+2}:{pk+3}], v{vO}, {WSR}, s{sO+x} offen offset:512 {SB}
        s_mov_b32 exec_hi, 0
        buffer_store_dwordx2 v[{pk+4}:{pk+5}], v{vO}, {WSR}, s{sO+x} offen offset:1024 {SB}
        s_mov_b32 exec_hi, -1
        """)
    nck = a.uid("att_nc")
    a(f"s_cmp_lg_u32 s{sFB}, 0\ns_cbranch_scc1 {nck}")
    check()
    a.label(nck)
    flag_setup(a, 2)
    a("s_setprio 0\ns_waitcnt vmcnt(0)")
    flag_store(a, SB)
    a("s_barrier")
    stamp(a, 9)
    a(f"s_branch {ld_label}")
    for hk, fn in outl:
        a.label(hk); fn(); a(f"s_branch {hk}r")
    respin()
    older()
    def fallback():
        a.label(fb)
        sKb, sVb, sI = t+12, t+13, t+14
        def addr():
            a(f"""
            s_lshr_b32 s{sKb}, s{sI}, 2
            s_lshl_b32 s{sKb}, s{sKb}, 1
            s_add_u32 s{sKb}, s{sKb}, s{sKH}
            s_lshl_b32 s{sKb}, s{sKb}, 2
            s_and_b32 s{sVb}, s{sI}, 3
            s_add_u32 s{sKb}, s{sKb}, s{sVb}
            s_mul_i32 s{sKb}, s{sKb}, 1280
            s_add_u32 s{sKb}, s{sKb}, s{sHB}
            s_add_u32 s{sVb}, s{sKb}, {L_V}
            s_add_u32 s{sKb}, s{sKb}, {L_K}
            buffer_load_dwordx4 v[{KF}:{KF+3}], v5, {WSR}, s{sKb} offen sc1
            s_mov_b32 exec_hi, {0 if C.c0 else -1}
            buffer_load_dwordx2 v[{KF+4}:{KF+5}], v6, {WSR}, s{sKb} offen offset:1024 sc1
            s_mov_b32 exec_hi, -1
            """)
        l1 = a.uid("att_fb1"); l2 = a.uid("att_fb2")
        a(f"s_mov_b32 s{sI}, 0\nv_mov_b32 v8, 0xff800000\nv_mov_b32 v9, 0xff800000")
        a(f"s_mov_b32 exec_lo, 0\nv_mov_b64 v[{QA+4}:{QA+5}], 0\nv_mov_b64 v[{QB+4}:{QB+5}], 0\ns_mov_b32 exec_lo, -1")
        a.label(l1)
        addr()
        a("s_waitcnt vmcnt(0)")
        for x in range(2):
            for m in qk(x, 0, "0"): a(m)
        a.nop(12)
        for x in range(2):
            sd = SS + 16*x
            for i in range(0, 16, 2): a(f"v_max3_f32 v{8+x}, v{8+x}, v{sd+i}, v{sd+i+1}")
        a(f"s_add_u32 s{sI}, s{sI}, 1\ns_cmp_lt_u32 s{sI}, 32\ns_cbranch_scc1 {l1}")
        setm()
        for i in range(32): a(f"v_mov_b32 v{OO+i}, 0")
        a(f"s_mov_b32 s{sI}, 0")
        a.label(l2)
        addr()
        a(f"""
        s_mov_b64 exec, s[{sEX}:{sEX+1}]
        buffer_load_dwordx4 v[{VF}:{VF+3}], v7, {WSR}, s{sVb} offen sc1
        buffer_load_dwordx4 v[{VF+4}:{VF+7}], v7, {WSR}, s{sVb} offen offset:640 sc1
        s_mov_b64 exec, -1
        s_waitcnt vmcnt(0)
        """)
        for x in range(2):
            for m in qk(x, 0): a(m)
        a.nop(12)
        for x in range(2):
            for i in sm(x): a(i)
        a("s_nop 1")
        for x in range(2):
            for m in pv(x, 0): a(m)
        a(f"s_add_u32 s{sI}, s{sI}, 1\ns_cmp_lt_u32 s{sI}, 32\ns_cbranch_scc1 {l2}")
        a.nop(12)
        a(f"s_branch {comb}")
    return fallback

def xoff(SB, which):
    if SB == "": return (False, L_X1)
    return (True, L_X1) if which == 1 else (False, L_X2)
def add_x(a, dst, src, SB, which):
    lo, c = xoff(SB, which)
    a(f"s_add_u32 s{dst}, s{src}, {c}")
    if lo: a(f"s_add_u32 s{dst}, s{dst}, s{sLO}")

def proj_compute(a, down, SB, end_label):
    fast = SB == ""
    t = T
    K = F if down else D
    NCH = K // 128
    sRT, sCT = t, t+1
    st0 = 13 if down else 10
    sF, sRM, sST, sA, sA1, sThr, sSel = t+4, t+5, t+12, t+2, t+3, t+9, t+10
    NWS = 3 if down else C.wo_sets
    ACC = 14; RX = 34; AF = 54; WF = 134 if down else 54 + 16*C.wo_nas; RES = (220 if down else 54); VST = 200
    assert WF + 20*NWS <= 254
    vF, vF2, vR, vR2 = 10, 11, 12, 13
    a(f"""
    s_lshr_b32 s{sRT}, s{sWG}, 3
    s_and_b32 s{sCT}, s{sR}, 7
    v_and_b32 v3, 15, v0
    v_lshrrev_b32 v7, 4, v0
    s_lshl_b32 s{t+6}, s{sRT}, 1
    s_lshr_b32 s{t+7}, s{sW}, 1
    s_add_u32 s{t+6}, s{t+6}, s{t+7}
    s_and_b32 s{t+8}, s{sW}, 1
    s_lshl_b32 s{t+8}, s{t+8}, 8
    s_mul_i32 s{sA}, s{t+6}, {K*64}
    s_add_u32 s{sA}, s{sA}, s{t+8}
    s_add_u32 s{sA}, s{sA}, s{sLO}
    s_add_u32 s{sA}, s{sA}, {L_H if down else L_O}
    s_mul_i32 s{sF}, s{t+6}, 40960
    s_mul_i32 s{t+7}, s{sCT}, 5120
    s_add_u32 s{sF}, s{sF}, s{t+7}
    s_add_u32 s{sF}, s{sF}, s{t+8}
    s_lshl_b32 s{sST}, s{sW}, 8
    s_lshl_b32 s{t+7}, s{sRT}, 12
    s_add_u32 s{sST}, s{sST}, s{t+7}
    s_add_u32 s{sST}, s{sST}, s{sLO}
    s_lshl_b32 s{sRM}, s{sRT}, 2
    s_add_u32 s{sRM}, s{sRM}, s{sW}
    s_mul_i32 s{sRM}, s{sRM}, {16*1280}
    s_mul_i32 s{t+7}, s{sCT}, 160
    s_add_u32 s{sRM}, s{sRM}, s{t+7}
    v_lshlrev_b32 v1, 4, v3
    v_lshl_add_u32 v{vF}, v7, 9, v1
    v_lshrrev_b32 v2, 5, v0
    v_lshl_add_u32 v1, v2, 9, v1
    v_and_b32 v2, 1, v7
    v_lshl_add_u32 v{vF2}, v2, 3, v1
    v_add_u32 v{vF2}, 4096, v{vF2}
    v_mul_u32_u24 v1, 1280, v3
    v_lshl_add_u32 v{vR}, v7, 4, v1
    v_lshl_add_u32 v{vR2}, v7, 3, v1
    v_add_u32 v9, 4096, v{vF}
    """)
    if C.x_a == 1 and not down: a(f"s_lshr_b32 s{sA}, s{sW}, 1\ns_mul_i32 s{sA}, s{sA}, 40960\ns_add_u32 s{sA}, s{sA}, s{t+8}\ns_add_u32 s{sA}, s{sA}, {WS_WTG}")
    SA = Src(sA, sA1, sThr, 8192)
    if down:
        a(f"s_and_b32 s{t+7}, s{sRT}, 3\ns_mul_i32 s{t+7}, s{t+7}, {C.rot_dn}\ns_sub_u32 s{sThr}, 12, s{t+7}")
        SA.setup(a, t+7, 12, t+8)
    def io(store, rowmajor, rsrc, soff, reg, bits):
        op = "store" if store else "load"
        v16, v8 = (vR, vR2) if rowmajor else (vF, vF2)
        o1, o2 = (64, 128) if rowmajor else (2048, 0)
        return [f"buffer_{op}_dwordx4 v[{reg}:{reg+3}], v{v16}, {rsrc}, {soff} offen {bits}",
                f"buffer_{op}_dwordx4 v[{reg+4}:{reg+7}], v{v16}, {rsrc}, {soff} offen offset:{o1} {bits}",
                f"buffer_{op}_dwordx2 v[{reg+8}:{reg+9}], v{v8}, {rsrc}, {soff} offen offset:{o2} {bits}"]
    if down:
        add_x(a, t+7, sF, SB, 1)
        for x in io(False, False, WSR, f"s{t+7}", RES, "sc1"): a(x)
        a(f"s_add_u32 s{t+7}, s{sST}, {L_ST1}\nv_lshlrev_b32 v1, 4, v3")
        for i in range(4):
            a(f"buffer_load_dwordx4 v[{VST+4*i}:{VST+4*i+3}], v1, {WSR}, s{t+7} offen offset:{1024*i} sc1")
        if fast:
            a(f"s_lshl_b32 s{t+8}, s{sWG}, 9\ns_add_u32 s{t+8}, s{t+8}, {L_ST2}\nv_lshlrev_b32 v1, 7, v0\ns_mov_b64 exec, 15")
            a(f"buffer_load_dword v8, v1, {WSR}, s{t+8} offen\ns_mov_b64 exec, -1")
    else:
        l1 = a.uid("prj_r1"); l2 = a.uid("prj_r2")
        a(f"s_cmp_lg_u32 s{sL}, 0\ns_cbranch_scc1 {l1}")
        for x in io(False, True, R(R_X), f"s{sRM}", RES, ""): a(x)
        a(f"s_branch {l2}")
        a.label(l1)
        add_x(a, t+7, sF, SB, 2)
        for x in io(False, False, WSR, f"s{t+7}", RES, "sc1"): a(x)
        a.label(l2)
    a(f"v_lshlrev_b32 v4, 4, v0\nv_add_u32 v5, 61440, v4\nv_add_u32 v6, 122880, v4\ns_mov_b32 s{t+8}, 0xffff0000")
    def wadr(c):
        o = dnW(c) if down else c * 20480
        return 4 + o // 61440, o % 61440
    def reads(c, u):
        b = WF + 20*((4*c + u) % NWS); r, o = wadr(c)
        return [f"ds_read_b128 v[{b+4*jn}:{b+4*jn+3}], v{r} offset:{o + 5120*u + 1024*jn}" for jn in range(5)]
    NAS = 5 if down else C.wo_nas
    def aload(c):
        r = []
        if down and C.rot_dn: r += [f"s_cmp_gt_u32 s{sThr}, {c}", f"s_cselect_b32 s{sSel}, s{sA}, s{sA1}", f"s_add_u32 s{sSel}, s{sSel}, {c*8192}"]
        else: r += [f"s_add_u32 s{sSel}, s{sA}, {c*8192}"]
        for u in range(4):
            d = AF + 16*(c % NAS) + 4*u
            r.append(f"buffer_load_dwordx4 v[{d}:{d+3}], v{vF if u < 2 else 9}, {WSR}, s{sSel} offen offset:{2048*(u & 1)} sc1")
        return r
    def mfmas(c, u, zero=False):
        b = WF + 20*((4*c + u) % NWS); x = AF + 16*(c % NAS) + 4*u
        return [f"v_mfma_f32_16x16x32_bf16 {v(ACC+4*jn,4)}, {v(b+4*jn,4)}, {v(x,4)}, {0 if zero else v(ACC+4*jn,4)}" for jn in range(5)]
    D_ = NWS - 1
    rd = lambda st_: reads(st_ // 4, st_ % 4) if st_ < 4*NCH else []
    if down: a(f"s_and_b32 s{t+7}, s{sRT}, 3\ns_mul_i32 s{t+7}, s{t+7}, {4 if C.rot_dn else 0}")
    G_ = gate_local(a, "down" if down else "wo", 4 if down else 2, 1, 2, t+7)
    def setup2():
        if not down: a("s_waitcnt vmcnt(0)")
        for i in range(10):
            a(f"v_lshlrev_b32 v{RX+2*i}, 16, v{RES+i}\nv_and_b32 v{RX+1+2*i}, s{t+8}, v{RES+i}")
        if down:
            row_stats(a, VST, VST + 2, VST + 3)
            a(f"v_mul_f32 v{VST+2}, v{VST+3}, v{VST+3}")
        if not down: a("s_barrier")
        for st_ in range(D_):
            for x in rd(st_): a(x)
    if down: G_.load(); G_.upd()
    setup2()
    def al(c):
        G_.need(span(128*c, 128*c + 127, 96, 2) if down else (span(128*c, 128*c + 127, 20, 1) if C.x_a != 3 else 0xffffffff))
        if c == 0: stamp(a, st0)
        for x in aload(c):
            if C.x_d == 1 and down and c >= 3 and x.startswith("buffer"): x = x.replace(WSR, R(R_WQ)).replace(f"s{sSel} offen", "0 offen").replace("sc1", "")
            a(x)
    NPRE = C.dn_a if down else C.wo_a
    N0 = C.dn_a0 if down else C.wo_a0
    assert NPRE < NAS or NCH <= NAS
    for c in range(N0): al(c)
    stamp(a, 21 if down else 5)
    nis = N0; pend = []; nld = 4*N0
    for c in range(NCH):
        for u in range(4):
            step = 4*c + u
            left = min(D_ - 1, 4*NCH - 1 - step)
            assert nld > step
            a(f"s_waitcnt vmcnt({nld - step - 1}) lgkmcnt({min(15, 5*left)})")
            if down and C.stamp and C.dbg == 8 and u in (0, 2): a(f"s_memtime s[10:11]\ns_waitcnt lgkmcnt(0)\nv_writelane_b32 v254, s10, {2*c + u//2}")
            if step == 4*NCH - 1 or (down and u == 2 and c + 1 < NCH): a("s_barrier")
            if not pend and nis < min(NCH, c + NPRE + 1):
                full = down and nis >= C.dn_full
                G_.need(0xffffffff if full else (span(128*nis, 128*nis + 127, 96, 2) if down else span(128*nis, 128*nis + 127, 20, 1)))
                ld = aload(nis); nis += 1
                for x in ld[:-4]: a(x)
                pend = ld[-4:]
            k = 2 if nld - step < 4*NPRE - 2 else 1
            mf = mfmas(c, u, step == 0); r_ = rd(step + D_)
            for i in range(5):
                a(mf[i])
                if r_: a(r_[i])
                if pend and i in ((4,) if k == 1 else (1, 4)): a(pend.pop(0)); nld += 1
    stamp(a, st0 + 1)
    add_x(a, t+7, sF, SB, 2 if down else 1)
    flag_setup(a, 5 if down else 3)
    for i in range(0, 20, 2):
        c = ACC + i
        if down: a(f"v_pk_fma_f32 v[{c}:{c+1}], v[{c}:{c+1}], v[{VST+2}:{VST+3}], v[{RX+i}:{RX+i+1}] op_sel_hi:[1,0,1]")
        else: a(f"v_pk_add_f32 v[{c}:{c+1}], v[{c}:{c+1}], v[{RX+i}:{RX+i+1}]")
        a(f"v_cvt_pk_bf16_f32 v{60+i//2}, v{c}, v{c+1}")
    if down:
        l1 = a.uid("prj_o1")
        a(f"s_cmp_eq_u32 s{sL}, 0\ns_cbranch_scc1 {l1}")
        srd(a, R_T, P_OUT, ACT)
        for x in io(True, True, R(R_T), f"s{sRM}", 60, ["", "sc1", "nt"][C.outb]): a(x)
        a(f"s_branch {end_label}")
        a.label(l1)
    for x in io(True, False, WSR, f"s{t+7}", 60, SB): a(x)
    a(f"v_pk_add_f32 v[72:73], v[{ACC}:{ACC+1}], v[{ACC+2}:{ACC+3}]\nv_pk_mul_f32 v[74:75], v[{ACC}:{ACC+1}], v[{ACC}:{ACC+1}]")
    a(f"v_pk_fma_f32 v[74:75], v[{ACC+2}:{ACC+3}], v[{ACC+2}:{ACC+3}], v[74:75]")
    for i in range(4, 20, 2):
        a(f"v_pk_add_f32 v[72:73], v[72:73], v[{ACC+i}:{ACC+i+1}]\nv_pk_fma_f32 v[74:75], v[{ACC+i}:{ACC+i+1}], v[{ACC+i}:{ACC+i+1}], v[74:75]")
    a(f"""
    v_add_f32 v72, v72, v73
    v_add_f32 v73, v74, v75
    s_lshr_b32 s{t+7}, s{sCT}, 1
    s_lshl_b32 s{t+7}, s{t+7}, 10
    v_permlane32_swap_b32 v72, v73
    s_and_b32 s{t+8}, s{sCT}, 1
    s_lshl_b32 s{t+8}, s{t+8}, 3
    v_add_f32 v72, v72, v73
    v_mov_b32 v73, v72
    s_add_u32 s{t+7}, s{t+7}, s{t+8}
    s_add_u32 s{t+7}, s{t+7}, s{sST}
    v_permlane16_swap_b32 v72, v73
    s_add_u32 s{t+7}, s{t+7}, {L_ST2 if down else L_ST1}
    v_lshrrev_b32 v8, 5, v0
    v_lshlrev_b32 v8, 2, v8
    v_lshl_add_u32 v8, v3, 4, v8
    v_add_f32 v72, v72, v73
    buffer_store_dword v72, v8, {WSR}, s{t+7} offen {SB}
    s_waitcnt vmcnt(0)
    """)
    flag_store(a, SB)
    a("s_barrier")
    stamp(a, st0 + 2)

def gu_compute(a, SB):
    t = T
    sRT, sCT, sWM, sWN, sTB, sF0 = t, t+1, t+2, t+3, t+4, t+6
    FR = 16; ACC = 96; VCS = 192; VST = 216; MS = 232
    a(f"""
    s_lshr_b32 s{sRT}, s{sWG}, 4
    s_and_b32 s{sCT}, s{sR}, 15
    s_and_b32 s{sWM}, s{sW}, 1
    s_lshr_b32 s{sWN}, s{sW}, 1
    s_lshl_b32 s{sTB}, s{sRT}, 1
    s_add_u32 s{sTB}, s{sTB}, s{sWM}
    s_mul_i32 s{sF0}, s{sCT}, 96
    s_mul_i32 s{t+5}, s{sWN}, 48
    s_add_u32 s{sF0}, s{sF0}, s{t+5}
    s_mul_i32 s{t+5}, s{sWG}, 768
    s_mul_i32 s{t+7}, s{sWN}, 384
    s_add_u32 s{t+5}, s{t+5}, s{t+7}
    s_add_u32 s{t+5}, s{t+5}, {WS_CSG}
    v_lshrrev_b32 v12, 4, v0
    v_lshlrev_b32 v1, 4, v12
    """)
    for f in range(6):
        a(f"buffer_load_dwordx4 v[{VCS+4*f}:{VCS+4*f+3}], v1, {WSR}, s{t+5} offen offset:{64*f} sc1")
    a(f"""
    v_and_b32 v13, 15, v0
    v_lshlrev_b32 v3, 4, v13
    v_lshl_add_u32 v3, v12, 9, v3
    s_lshl_b32 s{t+5}, s{sWM}, 13
    v_add_u32 v3, s{t+5}, v3
    v_lshlrev_b32 v11, 4, v0
    s_mul_i32 s{t+5}, s{sWN}, 6144
    s_add_u32 s{t+5}, s{t+5}, {WB}
    v_add_u32 v4, s{t+5}, v11
    v_add_u32 v5, 49152, v4
    v_lshlrev_b32 v6, 2, v13
    s_mul_i32 s{t+11}, s{sTB}, {2*F*64}
    s_lshl_b32 s{t+7}, s{sF0}, 6
    s_add_u32 s{t+11}, s{t+11}, s{t+7}
    s_add_u32 s{t+11}, s{t+11}, s{sLO}
    s_add_u32 s{t+11}, s{t+11}, {L_H}
    s_add_u32 s{t+12}, s{t+11}, {F*64}
    """)
    flag_setup(a, 4)
    def reads(c, u):
        b = FR + 40*u; o = guW(c) - WB
        ra = [f"ds_read_b128 v[{b+4*tt}:{b+4*tt+3}], v3 offset:{(c % 4)*16384 + 4096*(tt >> 1) + 256*(tt & 1) + 2048*u}" for tt in range(4)]
        rw = [f"ds_read_b128 v[{b+16+4*f}:{b+19+4*f}], v{4 + o // 49152} offset:{o % 49152 + 12288*u + 1024*f}" for f in range(6)]
        return ra + rw
    def mfma(u, tl, z):
        b = FR + 40*u; c = ACC + 4*tl
        return f"v_mfma_f32_16x16x32_bf16 {v(c,4)}, {v(b+16+4*(tl>>2),4)}, {v(b+4*(tl&3),4)}, {0 if z else v(c,4)}"
    def epi(jn, pk):
        r = []
        g = ACC + 32*jn; u_ = g + 16
        for tp in range(2):
            c = g + 8*tp; d = u_ + 8*tp
            for i in range(8): r.append(f"v_max_f32 v{c+i}, 0, v{c+i}")
            if pk:
                for i in range(0, 8, 2): r.append(f"v_pk_mul_f32 v[{c+i}:{c+i+1}], v[{c+i}:{c+i+1}], v[{d+i}:{d+i+1}]")
            else:
                for i in range(8): r.append(f"v_mul_f32 v{c+i}, v{c+i}, v{d+i}")
            for i in range(4): r.append(f"v_cvt_pk_bf16_f32 v{c+i}, v{c+2*i}, v{c+2*i+1}")
            r += ["s_nop 0", f"v_permlane16_swap_b32 v{c}, v{c+2}", f"v_permlane16_swap_b32 v{c+1}, v{c+3}"]
            r.append(f"buffer_store_dwordx4 v[{c}:{c+3}], v11, {WSR}, s{t+11+tp} offen offset:{1024*jn} {SB}")
        return r
    a(f"s_lshl_b32 s{t+5}, s{sTB}, 12\ns_add_u32 s{t+5}, s{t+5}, s{sLO}\ns_add_u32 s{t+5}, s{t+5}, {L_ST1}")
    ins = {}
    for i in range(4): ins[36 + 48*C.gfull + 3*i] = [f"buffer_load_dwordx4 v[{VST+4*i}:{VST+4*i+3}], v11, {WSR}, s{t+5} offen offset:{1024*i} sc1"]
    ins[82 + 48*C.gfull] = ["s_waitcnt vmcnt(0)"] + [f"v_add_f32 v{VST}, v{VST}, v{VST+2*i}" for i in range(1, 8)] + \
         [f"v_mul_f32 v{MS}, {f32(-1.0/D)}, v{VST}", f"v_mul_f32 v{MS+1}, {f32(-1.0/D)}, v{VST}", "s_nop 0", f"v_permlane16_swap_b32 v{MS}, v{MS+1}",
          f"v_mov_b32 v{MS+2}, v{MS}", f"v_mov_b32 v{MS+3}, v{MS+1}", "s_nop 0", f"v_permlane32_swap_b32 v{MS}, v{MS+2}", f"v_permlane32_swap_b32 v{MS+1}, v{MS+3}"]
    fix = lambda tl: [f"v_fmac_f32 v{ACC+4*tl+i}, v{MS+(tl&3)}, v{VCS+4*(tl>>2)+i}" for i in range(4)]
    gemm16(a, 10, 24, reads, mfma, [tuple(range(8*j, 8*j+8)) for j in range(3)], ins, fix, 122 + 48*C.gfull, epi, 22)
    a("s_waitcnt vmcnt(0)")
    flag_store(a, SB)
    a("s_barrier")
    stamp(a, 23)

def loader_chain(a, SB, end_label, idle_label):
    t = T
    sLW, s4, s5, s6, aGU, aGU1, wGU, wGU1, wDN, wDN1, aQK, aQK1, wQK, wQK1, th10, th12, sTmp, sSel, thq = range(t, t + 19)
    sRot = sSel
    a(f"""
    s_sub_u32 s{sLW}, s{sW}, 4
    v_lshlrev_b32 v8, 4, v0
    s_mul_i32 s{s6}, s{sLW}, 6144
    s_and_b32 s{wGU}, s{sR}, 15
    s_mul_i32 s{wGU}, s{wGU}, 245760
    s_add_u32 s{wGU}, s{wGU}, s{s6}
    s_add_u32 s{wGU}, s{wGU}, {WS_WTG}
    s_lshr_b32 s{sRot}, s{sR}, 4
    s_mul_i32 s{sRot}, s{sRot}, {C.rot_gu}
    s_sub_u32 s{th10}, 10, s{sRot}
    """)
    S_aGU = Src(aGU, aGU1, th10, 4096); S_wGU = Src(wGU, wGU1, th10, 24576); S_wDN = Src(wDN, wDN1, th12, 20480)
    S_aQK = Src(aQK, aQK1, thq, 4096); S_wQK = Src(wQK, wQK1, thq, 64*3840)
    S_wGU.setup(a, sRot, 10, sTmp)
    def rest():
        a(f"""
        s_lshl_b32 s{s4}, s{sLW}, 12
        s_mul_i32 s{s5}, s{sLW}, 5120
        s_lshr_b32 s{aQK}, s{sWG}, 4
        s_lshl_b32 s{aQK}, s{aQK}, 2
        s_add_u32 s{aQK}, s{aQK}, s{sLW}
        s_mul_i32 s{aQK}, s{aQK}, 40960
        """)
        add_x(a, aGU, aQK, SB, 1)
        add_x(a, aQK, aQK, SB, 2)
        a(f"s_and_b32 s{wDN}, s{sR}, 15")
        qkvW_setup(a, wQK, sLW, wDN, sTmp, 6)
        a(f"s_sub_u32 s{sRot}, 10, s{th10}")
        S_aGU.setup(a, sRot, 10, sTmp)
        a(f"s_lshr_b32 s{sRot}, s{sR}, 4\ns_mul_i32 s{sRot}, s{sRot}, {C.rot_qk}\ns_sub_u32 s{thq}, 10, s{sRot}")
        for S_ in (S_aQK, S_wQK): S_.setup(a, sRot, 10, sTmp)
        a(f"""
        s_and_b32 s{wDN}, s{sR}, 7
        s_mul_i32 s{wDN}, s{wDN}, 245760
        s_add_u32 s{wDN}, s{wDN}, s{s5}
        s_add_u32 s{wDN}, s{wDN}, {WS_WTD}
        s_lshr_b32 s{sRot}, s{sR}, 3
        s_mul_i32 s{sRot}, s{sRot}, {C.rot_dn}
        s_sub_u32 s{th12}, 12, s{sRot}
        """)
        S_wDN.setup(a, sRot, 12, sTmp)
    G_ = [None, None]
    def lin(S_, dst, dfn, bits):
        def f(c, i0, k):
            if bits == "sc1":
                G_[0].need(span(64*c, 64*c + 63, 80, 2) if C.gran else 0xffff)
                if G_[1] is not None: stamp(a, G_[1]); G_[1] = None
            S_.sel(a, c, sSel)
            lin_dma(a, 8, sSel, c*S_.stride + 1024*i0, dst, dfn(c) + 1024*i0, k, bits)
        return f
    def pf(kind, ep, st, rot):
        def f():
            a(f"s_lshr_b32 s{sTmp}, s{sR}, 4\ns_mul_i32 s{sTmp}, s{sTmp}, {4 if rot else 0}")
            G_[0] = gate_local(a, kind, ep, 1, 2, sTmp, sleep=C.psleep); G_[1] = st
        return f
    def emitWQ(c, i0, k):
        S_wQK.sel(a, c, sSel)
        for i in range(i0, i0 + k):
            a(f"s_add_u32 m0, s{s4}, {qkW(c) + 1024*i}\ns_add_u32 s{sTmp}, s{sSel}, {c*64*3840 + i*4*3840}")
            a(f"buffer_load_dwordx4 v6, {R(R_WQ)}, s{sTmp} offen {'nt' if C.nt_qk else ''} lds")
    rA = lambda c: (c % 4) * 16384
    full = lambda c: G_[0].need(0xffff) if c == 1 else None
    reg = lambda f, sz: (lambda c: (f(c), f(c) + sz))
    gu = Phase("gu", 10, 4, 6, lin(S_aGU, s4, rA, "sc1"), lin(S_wGU, s6, guW, "nt" if C.nt_gu else ""), reg(rA, 16384), reg(guW, 24576), pf("gu", 3, 21, C.rot_gu), C.bud_gu, dbg=(C.dbg == 3), after_bar=lambda c: G_[0].need(0xffff) if c == C.gfull else None)
    dn = Phase("dn", 12, 0, 5, None, lin(S_wDN, s5, dnW, "nt" if C.nt_dn else ""), None, reg(dnW, 20480), None, C.bud_dn, lag=2, early=C.dn_early, dbg=(C.dbg == 4))
    qk = Phase("qk", 10, 4, 4, lin(S_aQK, s4, rA, "sc1"), emitWQ, reg(rA, 16384), reg(qkW, 16384), pf("gu", 5, 17, C.rot_qk), C.bud_qk, early=C.qk_early, dbg=(C.dbg == 2), after_bar=full)
    L = Loader(a)
    L.live["wo"] = (0, 102400)
    pn = L.pre(gu, 0, C.gu_e, C.thr_p)
    rest()
    a("s_barrier")
    L.live.pop("wo")
    pn = L.pre(gu, pn, C.gu_e2, C.thr_e)
    a("s_barrier"); pn = L.pre(gu, pn, C.gu_p)
    pn = L.run(gu, dn, pn); stamp(a, 22); L.end(gu); pn = L.pre(dn, pn, C.dn_e, C.thr_e)
    L.wait({("dn", "W", 0)}); a("s_barrier"); pn = L.pre(dn, pn, C.dn_p, C.thr_p)
    dn.skip0 = True
    def lastexit(ws_):
        l = a.uid("lx")
        a(f"s_cmp_eq_u32 s{sL}, 0\ns_cbranch_scc1 {l}")
        for w_ in ws_: a(f"s_waitcnt vmcnt({w_})\ns_barrier")
        a(f"s_barrier\ns_branch {end_label}")
        a.label(l)
    pn = L.run(dn, qk, pn, lastexit=lastexit); stamp(a, 14); L.end(dn)
    a(f"s_cmp_lg_u32 s{sL}, 0\ns_cbranch_scc1 {end_label}")
    pn = L.pre(qk, pn, C.qk_e, C.thr_e)
    a("s_barrier")
    a(f"s_and_b32 s{sTmp}, s{sR}, 15\ns_cmp_eq_u32 s{sTmp}, 15\ns_cbranch_scc1 {idle_label}")
    pn = L.pre(qk, pn, C.qk_p)
    L.run(qk, None, pn); stamp(a, 19); L.end(qk)

def build():
    a = Asm()
    K = NAME + "_kernel"
    t = T
    a(f".globl {K}\n.p2align 8\n.type {K},@function")
    a.label(K)
    a(f"""
    s_load_dwordx16 s[16:31], s[0:1], 0
    s_load_dwordx4 s[32:35], s[0:1], 64
    s_cmp_ge_u32 s2, 256
    s_cbranch_scc1 L_exit
    s_and_b32 s{sG}, s2, 7
    s_lshr_b32 s{sR}, s2, 3
    v_lshrrev_b32 v1, 6, v0
    v_and_b32 v0, 63, v0
    v_readfirstlane_b32 s{sW}, v1
    s_lshl_b32 s{sWG}, s{sG}, 5
    s_add_u32 s{sWG}, s{sWG}, s{sR}
    s_mov_b32 s{sL}, 0
    s_mov_b32 s{sLO}, 0
    s_mov_b32 s{sEP}, 0
    s_mov_b32 s{sTMO}, 0
    """)
    if C.stamp: a("v_mov_b32 v255, 0\nv_mov_b32 v254, 0\ns_memrealtime s[14:15]")
    stamp(a, 0)
    qkv_ids(a, t)
    a(f"s_cmp_lt_u32 s{sW}, 4\ns_cbranch_scc1 L_q1c\ns_cmp_eq_u32 s{t+1}, 15\ns_cbranch_scc1 L_q1c")
    qkv1_loader(a)
    a("s_branch L_q1done")
    a.label("L_q1c")
    a("s_waitcnt lgkmcnt(0)")
    srd(a, R_X, P_X, ACT)
    srd(a, R_WQ, P_WQKV, D*3*D*2)
    a(f"""
    s_cmp_gt_u32 s{sW}, 3
    s_cbranch_scc1 L_npf
    s_lshl_b32 s{t+8}, s{sWG}, 2
    s_add_u32 s{t+8}, s{t+8}, s{sW}
    s_mul_i32 s{t+8}, s{t+8}, 2560
    v_lshrrev_b32 v1, 5, v0
    v_mul_u32_u24 v1, 1280, v1
    v_and_b32 v2, 31, v0
    v_lshl_add_u32 v1, v2, 4, v1
    v_mov_b64 v[228:229], 0
    v_mov_b64 v[230:231], 0
    buffer_load_dwordx4 v[220:223], v1, {R(R_X)}, s{t+8} offen
    buffer_load_dwordx4 v[224:227], v1, {R(R_X)}, s{t+8} offen offset:512
    s_mov_b32 exec_lo, 0xffff
    s_mov_b32 exec_hi, 0xffff
    buffer_load_dwordx4 v[228:231], v1, {R(R_X)}, s{t+8} offen offset:1024
    s_mov_b64 exec, -1
    """)
    a.label("L_npf")
    other_srds(a)
    a(f"s_cmp_eq_u32 s{t+1}, 15\ns_cbranch_scc1 L_q1idle")
    qkv_compute(a, True, "sc1")
    a("s_branch L_q1done")
    a.label("L_q1idle")
    qkv1_idle(a)
    a.label("L_q1done")
    a(f"s_cmp_eq_u32 s{sMODE}, 0\ns_cbranch_scc1 L_slow")
    tails = []
    for nm, SB in (("fast", ""), ("slow", "sc1")):
        a.label(f"L_{nm}")
        tails.append(phase_attn(a, SB, f"L_{nm}_ld"))
        if nm == "fast": a.label("L_fast_post")
        proj_compute(a, False, SB, None)
        gu_compute(a, SB)
        proj_compute(a, True, SB, "L_end")
        qkv_ids(a, t)
        a(f"s_cmp_eq_u32 s{t+1}, 15\ns_cbranch_scc1 L_{nm}_idle")
        qkv_compute(a, False, SB)
        a(f"s_branch L_{nm}_next")
        a.label(f"L_{nm}_ld")
        loader_chain(a, SB, "L_end", f"L_{nm}_idle")
        a(f"s_branch L_{nm}_next")
        a.label(f"L_{nm}_idle")
        a("s_waitcnt vmcnt(0)\ns_barrier")
        a.label(f"L_{nm}_next")
        a(f"s_mov_b32 s{sL}, 1\ns_mov_b32 s{sLO}, {LSTRIDE}\ns_add_u32 s{sEP}, s{sEP}, 5\ns_mov_b32 s{R_WQ+2}, 0\ns_branch L_{nm}")
        if nm == "fast":
            a.label("L_end")
            a(f"""
            s_xor_b32 s{t}, s{sW}, 7
            s_or_b32 s{t}, s{t}, s2
            s_cmp_lg_u32 s{t}, 0
            s_cbranch_scc1 L_end2
            v_mov_b32 v1, 0
            s_mov_b64 exec, 1
            global_store_dword v1, v1, s[{P_DBG}:{P_DBG+1}] sc1
            s_mov_b64 exec, -1
            """)
            a.label("L_end2")
            if C.stamp:
                a("s_waitcnt vmcnt(0)")
                stamp(a, 16)
                a(f"""
                s_memrealtime s[10:11]
                s_waitcnt lgkmcnt(0)
                v_writelane_b32 v255, s14, 62
                v_writelane_b32 v255, s10, 63
                v_writelane_b32 v255, s{sTMO}, 61
                s_lshl_b32 s10, s2, 3
                s_add_u32 s10, s10, s{sW}
                s_lshl_b32 s10, s10, 8
                s_add_u32 s10, s10, {WS_STAMP}
                v_lshlrev_b32 v1, 2, v0
                v_add_u32 v1, s10, v1
                global_store_dword v1, v255, s[{P_WS}:{P_WS+1}]
                v_add_u32 v1, {1<<20}, v1
                global_store_dword v1, v254, s[{P_WS}:{P_WS+1}]
                """)
                if C.pj:
                    a(f"""
                    s_xor_b32 s{t}, s2, 8
                    s_xor_b32 s{t+1}, s{sW}, {C.pw}
                    s_or_b32 s{t}, s{t}, s{t+1}
                    s_cmp_lg_u32 s{t}, 0
                    s_cbranch_scc1 L_exit
                    v_readlane_b32 s{t+1}, v254, {C.pi}
                    v_readlane_b32 s{t+2}, v254, {C.pj % 64}
                    v_readlane_b32 s{t+3}, v254, 40
                    {f"s_mov_b32 s{t+1}, s14" if C.pi == 63 else ""}
                    s_sub_u32 s{t+1}, s{t+2}, s{t+1}
                    s_mul_i32 s{t+1}, s{t+1}, {C.pm}
                    s_add_u32 s{t+1}, s{t+1}, 1000
                    """)
                    a.label("L_probe")
                    a(f"""
                    s_memrealtime s[{t+4}:{t+5}]
                    s_waitcnt lgkmcnt(0)
                    s_sub_u32 s{t+6}, s{t+4}, s{t+3}
                    s_cmp_lt_u32 s{t+6}, s{t+1}
                    s_cbranch_scc1 L_probe
                    """)
                if C.dbgout:
                    a(f"s_xor_b32 s{t}, s2, 8\ns_or_b32 s{t}, s{t}, s{sW}\ns_cmp_lg_u32 s{t}, 0\ns_cbranch_scc1 L_exit\nv_readlane_b32 s{t+1}, v254, 0\nv_mov_b32 v1, 0")
                    for k, i in enumerate([1, 2, 7, 8, 10, 12, 23, 15, 20, 31, 32, 36, 47, 40]):
                        a(f"v_readlane_b32 s{t}, v254, {i}\ns_sub_u32 s{t}, s{t}, s{t+1}\ns_nop 1\nv_mov_b32 v2, s{t}\nglobal_store_dword v1, v2, s[{P_DBG}:{P_DBG+1}] offset:{4+4*k}")
            a.label("L_exit")
            a("s_endpgm")
            a.label("L_fast_end")
    for f in tails: f()
    hdr = open("cdna_kernels/" + NAME + ".s.ref").read().split("; Override")[0]
    hdr += "; @launch grid=(256,1,1) block=(512,1,1) lds=163840\n"
    txt = hdr + '.amdgcn_target "amdgcn-amd-amdhsa--gfx950"\n.text\n' + a.text() + f'''.section .rodata,"a"
.p2align 6
.amdhsa_kernel {K}
  .amdhsa_next_free_vgpr 256
  .amdhsa_next_free_sgpr 102
  .amdhsa_accum_offset 256
  .amdhsa_group_segment_fixed_size 0
  .amdhsa_kernarg_size 80
  .amdhsa_user_sgpr_count 2
  .amdhsa_user_sgpr_kernarg_segment_ptr 1
  .amdhsa_system_sgpr_workgroup_id_x 1
.end_amdhsa_kernel
'''
    for p in check(a.lines): print("HAZARD", p)
    return txt

if __name__ == "__main__":
    out = sys.argv[1] if len(sys.argv) > 1 else "cdna_kernels/" + NAME + ".s"
    for kv in sys.argv[2:]:
        k, _, val = kv.partition("=")
        assert hasattr(C, k), k
        setattr(C, k, int(val) if val else True)
    open(out, "w").write(build())
    print("written", out)
```

```python
import sys, math, struct
sys.path.insert(0, "gen")
from asmlib import *

NAME = "interleave_layers__softmax_full_mha__glu_gated_reglu__prompt"
S, D, F, H, DH = 2048, 640, 1536, 32, 20
ACT = S * D * 2
HEADB = 81920
L_Q = 0
L_K = L_Q + ACT
L_V = L_K + ACT
L_O = L_V + ACT
L_X1 = L_O + ACT
L_X2 = L_X1 + ACT
L_H = L_X2 + ACT
L_ST1 = L_H + S * F * 2
L_ST2 = L_ST1 + S * 64
L_FG = L_ST2 + S * 64
LSTRIDE = L_FG + 32768
WS_ST0 = LSTRIDE + L_ST2
WS_WTO = 2 * LSTRIDE
WS_WTD = WS_WTO + D * D * 2
WS_WTG = WS_WTD + F * D * 2
WS_CSP = WS_WTG + 2 * F * D * 2
WS_CSG = WS_CSP + 10 * 12288
WS_CSQ = WS_CSG + 256 * 768
WS_FL = WS_CSQ + 256 * 512
WS_END = WS_FL + 8192
WS_SIZE = 268435456
WS_STAMP = 200 << 20
QSCALE = (DH ** -0.5) * math.log2(math.e)
def f32(x): return "0x%08x" % struct.unpack("<I", struct.pack("<f", x))[0]

P_X, P_WQKV, P_WO, P_BX, P_WG, P_WU, P_WD, P_OUT, P_DBG, P_WS = 16, 18, 20, 22, 24, 26, 28, 30, 32, 34
sL, sG, sR, sW, sLO, sEP, sTMO, sWG = 3, 4, 5, 6, 7, 8, 9, 13
R_WS, R_X, R_WQ, R_WG, R_WU, R_T = 36, 40, 44, 48, 52, 56
T = 60
WSR = f"s[{R_WS}:{R_WS+3}]"
def R(r): return f"s[{r}:{r+3}]"
SPIN = 200000

class Cfg:
    stamp = False
    dbg = 0
    dbgout = 0
    pi = 0
    pj = 0
    pm = 1
    pw = 0
    look = 6
    gu_e = 12
    dn_e = 4
    qk_e = 0
    bud_gu = 10
    bud_dn = 3
    bud_qk = 6
    bud_q1 = 8
    dn_a = 3
    psleep = 1
    gran = 3
    flip = 0
    gfull = 1
    dn_a0 = 2
    wo_a0 = 2
    x_a = 0
    x_d = 0
    c_i = 6
    c_c = 7
    c_f = 8
    pp = 0
    alias = 0
    ldprio = 0
    grp = 2
    qpf = 0
    qpf0 = 1
    qpl = 16
    qps = 1
    thr_e = 0
    thr_p = 0
    qk_s0 = 4
    dn_lag = 2
    dn_full = 5
    wo_a = 4
    wo_nas = 5
    c0 = 1
    g16 = 1
    e16 = 3
    wb = 0
    outb = 0
    q1prio = 0
    look_q1 = 6
    nocs = 0
    qloc = 1
    stage = 1
    cpf = 1
    l2pf0 = 0
    nt_kv = 0
    nt_wo = 0
    nt_gu = 0
    nt_dn = 0
    nt_qk = 0
    htouch = 0
    warm = 0
    gu_e2 = 0
    gu_p = 0
    dn_p = 20
    qk_p = 0
    wo_sets = 6
    q1pf = 1
    l2pf = 8
    rot = 0
    x_hit = 0
    tlb = 0
    rot_gu = 0
    rot_dn = 0
    rot_qk = 0
    dn_early = 99
    qk_early = 99
C = Cfg()

def stamp(a, i):
    if not C.stamp: return
    a(f"s_memtime s[10:11]\ns_mul_i32 s12, s{sL}, 24\ns_add_u32 m0, s12, {i}\ns_waitcnt lgkmcnt(0)\nv_writelane_b32 v255, s10, m0")
    if C.dbg == 7: a(f"s_memrealtime s[10:11]\ns_waitcnt lgkmcnt(0)\nv_writelane_b32 v254, s10, m0")

def dstamp(a, d, i):
    if C.stamp and C.dbg == d: a(f"s_memtime s[10:11]\ns_lshl_b32 s12, s{sL}, 5\ns_add_u32 m0, s12, {i}\ns_waitcnt lgkmcnt(0)\nv_writelane_b32 v254, s10, m0")

def srd(a, r, ptr, size):
    a(f"s_mov_b32 s{r}, s{ptr}\ns_mov_b32 s{r+1}, s{ptr+1}\ns_mov_b32 s{r+2}, {size}\ns_mov_b32 s{r+3}, 0x20000")

def interleave(a, mf, other):
    n = len(mf); k = 0
    for i, m in enumerate(mf):
        a(m)
        tgt = (len(other) * (i + 1) + n - 1) // n
        while k < tgt:
            a(other[k]); k += 1

def poll(a, vaddr, vtmp, soff, want, sleep=0, pre=False, wide=False):
    lp = a.uid("poll"); ok = a.uid("pollok")
    cnt = T + 22
    a(f"s_mov_b32 s{cnt}, s{sTMO}")
    if pre is not False: a(f"s_waitcnt vmcnt({pre})\ns_branch {lp}c")
    a.label(lp)
    if wide: a(f"buffer_load_dwordx4 v[{vtmp}:{vtmp+3}], v{vaddr}, {WSR}, {soff} offen sc1")
    else: a(f"buffer_load_dword v{vtmp}, v{vaddr}, {WSR}, {soff} offen sc1")
    a(f"s_waitcnt vmcnt(0)")
    if pre is not False: a.label(lp + "c")
    a(f"v_subrev_u32 v{vtmp}, {want}, v{vtmp}")
    if wide:
        for i in range(1, 4): a(f"v_subrev_u32 v{vtmp+i}, {want}, v{vtmp+i}\nv_max_u32 v{vtmp}, v{vtmp}, v{vtmp+i}")
    a(f"v_cmp_lt_u32 vcc, 15, v{vtmp}")
    a(f"s_cbranch_vccz {ok}")
    if sleep: a(f"s_sleep {sleep}")
    a(f"s_add_u32 s{cnt}, s{cnt}, 1\ns_cmp_lt_u32 s{cnt}, {SPIN}\ns_cbranch_scc1 {lp}")
    a(f"s_mov_b32 s{sTMO}, {SPIN}")
    a.label(ok)

def poll_local(a, kind, ep, va=1, vt=2, sleep=0):
    t = T + 20
    if kind == "wo":
        a(f"v_and_b32 v{va}, 31, v0\nv_lshlrev_b32 v{va}, 5, v{va}\ns_lshr_b32 s{t}, s{sR}, 3\ns_lshl_b32 s{t}, s{t}, 2\ns_add_u32 s{t}, s{t}, 16")
    elif kind == "gu":
        a(f"v_lshrrev_b32 v{va}, 2, v0\nv_lshlrev_b32 v{va}, 5, v{va}\nv_and_b32 v{vt}, 3, v0\nv_lshl_add_u32 v{va}, v{vt}, 2, v{va}")
        a(f"s_lshr_b32 s{t}, s{sR}, 4\ns_lshl_b32 s{t}, s{t}, 9")
    elif kind == "down":
        a(f"v_bfe_u32 v{va}, v0, 1, 4\nv_lshlrev_b32 v{va}, 5, v{va}\nv_and_b32 v{vt}, 1, v0\nv_lshl_add_u32 v{va}, v{vt}, 3, v{va}")
        a(f"s_lshr_b32 s{t}, s{sR}, 4\ns_lshl_b32 s{t}, s{t}, 9\ns_bfe_u32 s{t+1}, s{sR}, 0x10003\ns_lshl_b32 s{t+1}, s{t+1}, 2\ns_add_u32 s{t}, s{t}, s{t+1}")
    elif kind == "attn":
        a(f"""
        v_bfe_u32 v{va}, v0, 2, 1
        v_mul_u32_u24 v{va}, 19, v{va}
        s_mul_i32 s{t}, s{sR}, 20
        v_add_u32 v{va}, s{t}, v{va}
        v_lshrrev_b32 v{va}, 7, v{va}
        v_lshrrev_b32 v{vt}, 4, v0
        v_min_u32 v{vt}, 2, v{vt}
        v_mad_u32_u24 v{va}, v{vt}, 5, v{va}
        v_bfe_u32 v{vt}, v0, 3, 1
        v_lshl_add_u32 v{va}, v{vt}, 4, v{va}
        v_lshlrev_b32 v{va}, 5, v{va}
        v_and_b32 v{vt}, 3, v0
        v_lshl_add_u32 v{va}, v{vt}, 2, v{va}
        s_mov_b32 s{t}, 0
        """)
    a(f"s_lshl_b32 s{t+1}, s{sG}, 10\ns_add_u32 s{t}, s{t}, s{t+1}\ns_add_u32 s{t}, s{t}, {WS_FL}\ns_add_u32 s{t+1}, s{sEP}, {ep}")
    poll(a, va, vt, f"s{t}", f"s{t+1}", sleep=sleep)

sNR, sGO, sGW = 92, 94, 95
class Gate:
    def __init__(self, a, va, vt, fold=False, sleep=0):
        self.a, self.va, self.vt, self.fold, self.sleep = a, va, vt, fold, sleep
        self.ok = 0
    def load(self): self.a(f"buffer_load_dword v{self.vt}, v{self.va}, {WSR}, s{sGO} offen sc1")
    def upd(self):
        self.a(f"s_waitcnt vmcnt(0)\nv_subrev_u32 v{self.vt}, s{sGW}, v{self.vt}\nv_cmp_lt_u32 s[{sNR}:{sNR+1}], 15, v{self.vt}")
        if self.fold: self.a(f"s_or_b32 s{sNR}, s{sNR}, s{sNR+1}")
    def reset(self): self.a(f"s_mov_b32 s{sNR}, -1")
    def need(self, mask):
        a = self.a
        mask &= ~self.ok
        if not mask: return
        self.ok |= mask
        lp = a.uid("gt"); cnt = T + 22
        a(f"s_and_b32 s{cnt}, s{sNR}, {hex(mask)}\ns_cbranch_scc0 {lp}k\ns_mov_b32 s{cnt}, s{sTMO}")
        if C.pp and not self.fold:
            v2 = self.vt2
            a(f"buffer_load_dword v{v2}, v{self.va}, {WSR}, s{sGO} offen sc1\ns_sleep {C.pp}")
            a.label(lp)
            for x_, y_ in ((self.vt, v2), (v2, self.vt)):
                a(f"buffer_load_dword v{x_}, v{self.va}, {WSR}, s{sGO} offen sc1\ns_waitcnt vmcnt(1)\nv_subrev_u32 v{y_}, s{sGW}, v{y_}\nv_cmp_lt_u32 s[{sNR}:{sNR+1}], 15, v{y_}")
                a(f"s_and_b32 s{cnt+1}, s{sNR}, {hex(mask)}\ns_cbranch_scc0 {lp}k")
        else:
            a.label(lp)
            self.load(); self.upd()
            a(f"s_and_b32 s{cnt+1}, s{sNR}, {hex(mask)}\ns_cbranch_scc0 {lp}k")
            if self.sleep: a(f"s_sleep {self.sleep}")
        a(f"s_add_u32 s{cnt}, s{cnt}, 1\ns_cmp_lt_u32 s{cnt}, {SPIN}\ns_cbranch_scc1 {lp}\ns_mov_b32 s{sTMO}, {SPIN}")
        a.label(lp + "k")
def span(lo, hi, w, bits):
    m = 0
    for p in range(lo // w, hi // w + 1): m |= ((1 << bits) - 1) << (bits * p)
    return m
def gate_local(a, kind, ep, va, vt, sRotCt=None, sleep=0):
    t = T + 20
    if kind == "wo":
        a(f"v_and_b32 v{va}, 31, v0\nv_lshlrev_b32 v{va}, 5, v{va}\ns_lshr_b32 s{sGO}, s{sR}, 3\ns_lshl_b32 s{sGO}, s{sGO}, 2\ns_add_u32 s{sGO}, s{sGO}, 16")
    elif kind == "down":
        a(f"v_lshrrev_b32 v{va}, 1, v0\nv_add_u32 v{va}, s{sRotCt}, v{va}\nv_and_b32 v{va}, 15, v{va}\nv_lshlrev_b32 v{va}, 5, v{va}\nv_and_b32 v{vt}, 1, v0\nv_lshl_add_u32 v{va}, v{vt}, 3, v{va}")
        a(f"s_lshr_b32 s{sGO}, s{sR}, 4\ns_lshl_b32 s{sGO}, s{sGO}, 9\ns_bfe_u32 s{t+1}, s{sR}, 0x10003\ns_lshl_b32 s{t+1}, s{t+1}, 2\ns_add_u32 s{sGO}, s{sGO}, s{t+1}")
    elif kind == "gu":
        a(f"v_lshrrev_b32 v{va}, 1, v0\nv_add_u32 v{va}, s{sRotCt}, v{va}\nv_and_b32 v{va}, 7, v{va}\nv_lshlrev_b32 v{va}, 5, v{va}\nv_and_b32 v{vt}, 1, v0\nv_lshl_add_u32 v{va}, v{vt}, 2, v{va}")
        a(f"s_lshr_b32 s{sGO}, s{sR}, 4\ns_lshl_b32 s{sGO}, s{sGO}, 9\ns_bfe_u32 s{t+1}, s{sW}, 0x10001\ns_lshl_b32 s{t+1}, s{t+1}, 8\ns_add_u32 s{sGO}, s{sGO}, s{t+1}")
        a(f"s_and_b32 s{t+1}, s{sW}, 1\ns_lshl_b32 s{t+1}, s{t+1}, 3\ns_add_u32 s{sGO}, s{sGO}, s{t+1}")
    a(f"s_lshl_b32 s{t+1}, s{sG}, 10\ns_add_u32 s{sGO}, s{sGO}, s{t+1}\ns_add_u32 s{sGO}, s{sGO}, {WS_FL}\ns_add_u32 s{sGW}, s{sEP}, {ep}")
    g = Gate(a, va, vt, sleep=sleep); g.reset(); g.vt2 = 8 if kind != 'gu' else 3
    return g

def flag_setup(a, ep):
    t = T + 20
    a(f"s_lshl_b32 s{t}, s{sWG}, 3\ns_add_u32 s{t}, s{t}, s{sW}\ns_lshl_b32 s{t}, s{t}, 2\ns_add_u32 s{t}, s{t}, {WS_FL}\ns_add_u32 s{t+1}, s{sEP}, {ep}")
    a(f"v_mov_b32 v1, 0\nv_mov_b32 v2, s{t+1}")
def flag_store(a, SB, s=T+20):
    a(f"s_mov_b64 exec, 1\nbuffer_store_dword v2, v1, {WSR}, s{s} offen {SB}\ns_mov_b64 exec, -1")
def publish_local(a, ep, SB):
    flag_setup(a, ep)
    a("s_waitcnt vmcnt(0)")
    flag_store(a, SB)

def row_stats(a, vst, vmean, vrstd):
    for i in range(1, 8):
        a(f"v_add_f32 v{vst}, v{vst}, v{vst+2*i}\nv_add_f32 v{vst+1}, v{vst+1}, v{vst+2*i+1}")
    finish_stats(a, vst, vst + 1, vmean, vrstd)

def finish_stats(a, vs, vq, vmean, vrstd):
    a(f"v_mul_f32 v{vmean}, {f32(1.0/D)}, v{vs}")
    a(f"v_mul_f32 v{vq}, {f32(1.0/D)}, v{vq}")
    a(f"v_fma_f32 v{vq}, -v{vmean}, v{vmean}, v{vq}")
    a(f"v_max_f32 v{vq}, 0, v{vq}")
    a(f"v_add_f32 v{vq}, {f32(1e-5)}, v{vq}")
    a(f"v_rsq_f32 v{vrstd}, v{vq}")
    a("s_nop 0")

def lin_dma(a, vaddr, src_s, src_off, dst_s, dst_off, npieces, bits="", rsrc=WSR, tmp=T+19):
    i = 0
    while i < npieces:
        k = min(4, npieces - i)
        a(f"s_add_u32 m0, s{dst_s}, {dst_off + 1024*i}")
        a(f"s_add_u32 s{tmp}, s{src_s}, {src_off + 1024*i}")
        for j in range(k):
            a(f"buffer_load_dwordx4 v{vaddr}, {rsrc}, s{tmp} offen offset:{1024*j} {bits} lds")
        i += k
    return npieces


def states(x):
    return int(x.split()[1]) + 1 if x.startswith("s_nop") else 1

def gemm_unrolled(a, n, P, nr, reads, mfma, groups, inserts, fix, fix_from, epi, st_end, alt=None, after_e=(), late=()):
    seq = []
    def add(ms, fill, pre=()):
        k = 0
        for i, (kk, tl) in enumerate(ms):
            tgt = (len(fill) * (i + 1) + len(ms) - 1) // len(ms)
            seq.append([list(pre) if i == 0 else [], mfma(kk, tl), tl, list(fill[k:tgt])]); k = tgt
    step = lambda kk: [(kk, tl) for tl in range(P)]
    a("s_barrier")
    for x in reads(0, 0) + reads(0, 1): a(x)
    w = f"s_waitcnt lgkmcnt({nr})"
    for c in range(n - 1):
        add(step(0), reads(c, 2), [w])
        add(step(1), reads(c, 3), [w])
        add(step(2), [], [w])
        seq[-2][3] += ["s_waitcnt lgkmcnt(0)"]; seq[-1][3] += ["s_barrier"]
        add(step(3), reads(c + 1, 0) + reads(c + 1, 1))
    nmain = len(seq)
    for i0, ins in inserts.items():
        i = i0; ins = list(ins)
        while ins:
            room = 4 - sum(states(x) for x in seq[i][3]) - len(seq[i+1][0])
            if ins[0].startswith("s_mov_b32 exec") and room < 3: room = 0
            while room > 0 and ins and "s_barrier" not in seq[i][3]:
                x = ins.pop(0); seq[i][3].append(x); room -= states(x)
            i += 1

        end = fix_from if i0 < fix_from else nmain
        assert i <= end and all(not (i0 < k < i) for k in inserts if len(inserts[i0]) > 1), (i0, i)
        if any(x.startswith("ds_") for x in inserts[i0]): assert any("s_waitcnt lgkmcnt(0)" in seq[j][3] for j in range(i, end)), (i, end)
    todo = {tl: list(fix(tl)) for tl in range(P)}
    used = lambda g: sum(states(x) for x in seq[g][3]) + len(seq[g+1][0])
    g = fix_from + 2
    while any(todo.values()):
        assert g + 2 < nmain, "no room for fix"
        if used(g) < 5 and "s_barrier" not in seq[g][3]:
            for back in range(P - 2, 1, -1):
                tl = seq[g - back][2]
                if not todo[tl] or g - back < fix_from: continue
                have = sum(used(x) + 1 for x in range(g - back, g)) + sum(states(x) for x in seq[g][3])
                room = sum(max(0, 5 - used(x)) for x in range(g - back, g))
                if have + room < 12: continue
                for x in range(g - back, g):
                    k = min(5 - used(x), 12 - have)
                    if k > 0: seq[x][3].append(f"s_nop {k-1}"); have += k
                while used(g) < 5 and todo[tl]: seq[g][3].append(todo[tl].pop(0))
            if used(g + 1) < 1: seq[g + 1][3].append("s_nop 0")
        g += 1

    c = n - 1
    g0 = groups[0]
    seq[-1][3] += reads(c, 2)
    add([(kk, tl) for kk in (0, 1) for tl in g0], reads(c, 3), [w])
    add([(kk, tl) for kk in (2, 3) for tl in g0], list(late), ["s_waitcnt lgkmcnt(0)"])
    if after_e:
        seq[-2][3].append("s_barrier"); seq[-1][3] += list(after_e)
    else: seq[-len(g0)*2][3].append("s_barrier")
    seq[-1][3].append("s_nop 4")
    def flush():
        for pre, m, tl, post in seq:
            for x in pre: a(x)
            a(m)
            for x in post: a(x)
        del seq[:]
    def tail(epi):
        for gi in range(1, len(groups)):
            ms = [(kk, tl) for kk in range(4) for tl in groups[gi]]
            if gi == 1: add(ms[:1], ["s_nop 4"]); add(ms[1:], epi(gi - 1, False))
            else: add(ms, ["s_nop 0"] + epi(gi - 1, False))
        flush()
        stamp(a, st_end)
        a.nop(3)
        for x in epi(len(groups) - 1, True): a(x)
    if alt:
        cond, epi2, post1, post2 = alt
        l = a.uid("alt")
        seq[-1][3][-1:] = [cond, f"s_cbranch_scc1 {l}", "s_nop 2"]
        flush(); tail(epi); post1()
        a.label(l); a("s_nop 2"); tail(epi2); post2()
    else: tail(epi)

def gemm16(a, n, P, reads, mfma, groups, inserts, fix, fix_from, epi, st_end):
    seq = []
    def add(ms, fill, span, pre=()):
        k = 0
        for i, (u, tl, z) in enumerate(ms):
            tgt = min(len(fill), (len(fill) * (i + 1) + span - 1) // span)
            seq.append([list(pre) if i == 0 else [], mfma(u, tl, z), tl, list(fill[k:tgt])]); k = tgt
        assert k == len(fill)
    w0 = "s_waitcnt lgkmcnt(0)"
    a("s_barrier")
    for x in reads(0, 0): a(x)
    nr = len(reads(0, 0))
    for c in range(n - 1):
        add([(0, tl, c == 0) for tl in range(P)], reads(c, 1), nr, [w0])
        seq[-2][3] += [w0]; seq[-1][3] += ["s_barrier"]
        add([(1, tl, False) for tl in range(P)], reads(c + 1, 0), nr)
    nmain = len(seq)
    used = lambda g: sum(states(x) * (2 if x.startswith(("buffer", "v_perm", "v_rsq")) else 1) for x in seq[g][3]) + len(seq[g+1][0])
    for i0, ins in inserts.items():
        i = i0; ins = list(ins)
        while ins:
            while used(i) < C.g16 and ins and "s_barrier" not in seq[i][3]: seq[i][3].append(ins.pop(0))
            i += 1
        assert i <= fix_from
        if any(x.startswith("ds_") for x in inserts[i0]): assert any(w0 in seq[j][3] + seq[j][0] for j in range(i, fix_from))
    todo = {tl: list(fix(tl)) for tl in range(P)}
    g = fix_from
    while any(todo.values()):
        assert g + 4 < nmain
        for back in sorted(range(P - 3, 7, -1), key=lambda b_: -len(todo[seq[g - b_][2]])):
            tl = seq[g - back][2]
            while used(g) < C.g16 and todo[tl] and "s_barrier" not in seq[g][3]: seq[g][3].append(todo[tl].pop(0))
        g += 1
    c = n - 1
    g0 = groups[0]
    add([(0, tl, False) for tl in g0 + groups[1]], reads(c, 1), nr, [w0])
    add([(1, tl, False) for tl in g0], ["s_barrier"], 1, [w0])
    rest = [(1, tl, False) for tl in groups[1]]
    for gi in range(2, len(groups)): rest += [(u, tl, False) for u in range(2) for tl in groups[gi]]
    e0 = epi(0, False); e1 = epi(1, False)
    k1 = len(groups[1])
    add(rest[:2], ["s_nop 1", "s_nop 1"], 2)
    nleft = len(rest) - 2
    add(rest[2:], (e0 + e1)[:C.e16*nleft], nleft)
    for pre, m, tl, post in seq:
        for x in pre: a(x)
        a(m)
        for x in post: a(x)
    for x in (e0 + e1)[C.e16*nleft:]: a(x)
    stamp(a, st_end)
    for gi in range(2, len(groups)):
        for x in epi(gi, True): a(x)

class Src:
    def __init__(self, sB, sB1, sThr, stride): self.__dict__.update(locals())
    def setup(self, a, sRot, n, tmp):
        a(f"s_mul_i32 s{tmp}, s{sRot}, {self.stride}\ns_add_u32 s{self.sB}, s{self.sB}, s{tmp}\ns_sub_u32 s{self.sB1}, s{self.sB}, {n*self.stride}")
    def sel(self, a, c, dst):
        if getattr(self, "norot", False):
            a(f"s_mov_b32 s{dst}, s{self.sB}"); return
        a(f"s_cmp_gt_u32 s{self.sThr}, {c}\ns_cselect_b32 s{dst}, s{self.sB}, s{self.sB1}")

class Phase:
    def __init__(self, name, n, npa, npw, emitA, emitW, regA, regW, pollfn, budget, lag=1, after_bar=None, dbg=False, early=99):
        self.__dict__.update(locals())

class Loader:
    def __init__(self, a):
        self.a = a; self.q = []; self.live = {}; self.waitfn = None; self.total = 0
    def free(self, reg, key):
        return key in self.live or all(reg[1] <= lo or hi <= reg[0] for lo, hi in self.live.values())
    def can(self, ph, kind, c):
        return self.free((ph.regA if kind == "A" else ph.regW)(c), (ph.name, kind, c))
    def issue(self, ph, kind, c, i0, k):
        assert self.can(ph, kind, c)
        self.live[(ph.name, kind, c)] = (ph.regA if kind == "A" else ph.regW)(c)
        (ph.emitA if kind == "A" else ph.emitW)(c, i0, k)
        self.q += [(ph.name, kind, c)] * k; self.total += k
    def release(self, ph, c):
        for k in "AW": self.live.pop((ph.name, k, c), None)
    def wait(self, tags):
        last = -1
        for i, t in enumerate(self.q):
            if t in tags: last = i
        if last >= 0:
            self.q = self.q[last+1:]
            n7 = len(self.q); n = sum(1 for t in self.q if t[0] != "x7")
            assert n7 < 64
            if n7 != n:
                l = self.a.uid("w7")
                self.a(f"s_waitcnt vmcnt({n7})\ns_cmp_eq_u32 s{sW}, 7\ns_cbranch_scc1 {l}\ns_waitcnt vmcnt({n})")
                self.a.label(l)
            else: self.a(f"s_waitcnt vmcnt({n})")
    def pre(self, ph, pw, cnt, thr=0):
        done = 0
        while pw < ph.n * ph.npw and done < cnt and self.can(ph, "W", pw // ph.npw):
            k = min(4, ph.npw - pw % ph.npw, cnt - done)
            if thr:
                k = 1
                if len(self.q) >= thr:
                    self.a(f"s_waitcnt vmcnt({thr-1})"); self.q = self.q[len(self.q) - (thr - 1):]
            self.issue(ph, "W", pw // ph.npw, pw % ph.npw, k); pw += k; done += k
        return pw
    def run(self, ph, nxt, pw=0, after_poll=None, tail=None, waitfn=None, lastexit=None):
        a = self.a; n = ph.n
        pa = 0; pn = 0
        if ph.pollfn: ph.pollfn()
        if after_poll: after_poll()
        for c in range(1 if getattr(ph, "skip0", False) else 0, n):
            done = 0
            if lastexit and pw == n * ph.npw:
                assert all(t_[0] == ph.name for t_ in self.q)
                lastexit([len(self.q) - 1 - max([-1] + [i_ for i_, t_ in enumerate(self.q) if t_[2] <= cc]) for cc in range(c, n)]); lastexit = None
            while True:
                needed = pa < (c + 1) * ph.npa or pw < (c + 1) * ph.npw
                if not needed:
                    beyond = 0
                    for t in reversed(self.q):
                        if t[0] == ph.name and t[2] <= c: break
                        beyond += t[0] != "x7"
                    if beyond >= getattr(ph, 'look', C.look) and (done >= ph.budget or c == 0): break
                ca = pa // ph.npa if ph.npa else n; cw = pw // ph.npw
                okA = ca < n and self.can(ph, "A", ca)
                okW = cw < n and self.can(ph, "W", cw)
                if okW and (cw <= ca or not okA):
                    k = ph.npw - pw % ph.npw
                    if not needed: k = min(C.grp, k)
                    self.issue(ph, "W", cw, pw % ph.npw, k); pw += k
                elif okA:
                    k = ph.npa - pa % ph.npa
                    if not needed: k = min(C.grp, k)
                    self.issue(ph, "A", ca, pa % ph.npa, k); pa += k
                elif nxt and ca == n and cw == n and pn < nxt.early and self.can(nxt, "W", pn // nxt.npw):
                    k = min(2, nxt.npw - pn % nxt.npw)
                    self.issue(nxt, "W", pn // nxt.npw, pn % nxt.npw, k); pn += k
                else:
                    assert not needed
                    break
                done += k
            if tail and pa == n * ph.npa and pw == n * ph.npw:
                tail(); tail = None; self.waitfn = waitfn
            if ph.after_bar and c > 0: ph.after_bar(c - 1)
            self.wait({(ph.name, "A", c), (ph.name, "W", c)})
            if ph.dbg and C.stamp: a(f"s_memtime s[10:11]\ns_waitcnt lgkmcnt(0)\nv_writelane_b32 v254, s10, {2*c}")
            a("s_barrier")
            if ph.dbg and C.stamp: a(f"s_memtime s[10:11]\ns_waitcnt lgkmcnt(0)\nv_writelane_b32 v254, s10, {2*c+1}")
            self.release(ph, c - ph.lag)
        if ph.after_bar: ph.after_bar(n - 1)
        if nxt: pn = self.pre(nxt, pn, min(ph.budget, max(0, nxt.early - pn)))
        return pn
    def end(self, ph):
        self.a("s_barrier")
        for c in range(ph.n): self.release(ph, c)

Q1_TAB = 98304
Q1_NON = Q1_TAB + 2048
Q1_CS = Q1_NON + 64
WB = 65536
def guW(c): return WB + ((3 - c) % 4) * 24576
def dnW(c): return ((c + 2) % 8) * 20480
def qkW(c): return WB + ((c + C.qk_s0) % 6) * 16384

PSCR = 131072
PV = 180
def projjob_issue(a, sJob, sScr, t, loads=True):
    a(f"""
    s_and_b32 s{t+2}, s{sJob}, 7
    s_lshr_b32 s{t+3}, s{sJob}, 3
    s_cmp_lt_u32 s{t+3}, 20
    s_cselect_b32 s{R_T}, s{P_WO}, s{P_WD}
    s_cselect_b32 s{R_T+1}, s{P_WO+1}, s{P_WD+1}
    s_mov_b32 s{R_T+2}, {F*D*2}
    s_cselect_b32 s{R_T+2}, {D*D*2}, s{R_T+2}
    s_mov_b32 s{R_T+3}, 0x20000
    s_cselect_b32 s{t+4}, 0, 20
    s_cselect_b32 s{t+5}, 20, 48
    s_mov_b32 s{t+6}, {WS_WTD}
    s_cselect_b32 s{t+6}, {WS_WTO}, s{t+6}
    s_sub_u32 s{t+3}, s{t+3}, s{t+4}
    s_mul_i32 s{t+5}, s{t+5}, s{t+2}
    s_add_u32 s{t+5}, s{t+5}, s{t+3}
    s_mul_i32 s{t+5}, s{t+5}, 5120
    s_add_u32 s{t+6}, s{t+6}, s{t+5}
    s_mul_i32 s{t+3}, s{t+3}, {32*1280}
    s_mul_i32 s{t+2}, s{t+2}, 160
    s_add_u32 s{t+3}, s{t+3}, s{t+2}
    s_movk_i32 s{t+4}, 6554
    """)
    x, y = PV, PV + 1
    for i in range(5 if loads else 0):
        a(f"""
        v_add_u32 v{x}, {64*i}, v0
        v_mul_u32_u24 v{y}, s{t+4}, v{x}
        v_lshrrev_b32 v{y}, 16, v{y}
        v_mad_i32_i24 v{x}, v{y}, -10, v{x}
        v_mul_u32_u24 v{y}, 1280, v{y}
        v_lshl_add_u32 v{x}, v{x}, 4, v{y}
        s_add_u32 m0, s{sScr}, {1024*i}
        s_nop 0
        buffer_load_dwordx4 v{x}, {R(R_T)}, s{t+3} offen lds
        """)
def projjob_finish(a, sScr, t):
    x, y, z, d0 = PV, PV + 1, PV + 2, PV + 4
    a(f"""
    v_lshrrev_b32 v{x}, 4, v0
    v_bfe_u32 v{y}, v0, 2, 2
    v_lshl_add_u32 v{x}, v{x}, 3, v{y}
    v_mul_u32_u24 v{x}, 160, v{x}
    v_add_u32 v{x}, s{sScr}, v{x}
    v_and_b32 v{y}, 3, v0
    v_lshl_add_u32 v{z}, v{y}, 3, v{x}
    v_lshl_add_u32 v{y}, v{y}, 4, v{x}
    """)
    for jn in range(5):
        for j in range(2):
            d = d0 + 4*jn + 2*j
            if jn < 4: a(f"ds_read_b64_tr_b16 v[{d}:{d+1}], v{y} offset:{640*j + 64*(jn>>1) + 8*(jn&1)}")
            else: a(f"ds_read_b64_tr_b16 v[{d}:{d+1}], v{z} offset:{640*j + 128}")
    a(f"s_add_u32 s{t+5}, s{t+6}, 4096\ns_waitcnt lgkmcnt(0)")
    for jn in range(5):
        d = d0 + 4*jn
        a(f"buffer_store_dwordx4 v[{d}:{d+3}], v5, {WSR}, s{t+6 if jn < 4 else t+5} offen offset:{1024*(jn&3)} sc1")

def gujob_issue(a, sJob, t, loads=True):
    x, y = PV, PV + 1
    a(f"""
    s_mul_i32 s{t+2}, s{sJob}, 2731
    s_lshr_b32 s{t+2}, s{t+2}, 16
    s_mul_i32 s{t+3}, s{t+2}, 24
    s_sub_u32 s{t+3}, s{sJob}, s{t+3}
    s_mul_i32 s{t+4}, s{t+2}, {64*F*2}
    s_lshl_b32 s{t+5}, s{t+3}, 7
    s_add_u32 s{t+4}, s{t+4}, s{t+5}
    v_lshrrev_b32 v{x}, 3, v0
    v_mul_u32_u24 v{x}, {F*2}, v{x}
    v_and_b32 v{y}, 7, v0
    v_lshl_add_u32 v{x}, v{y}, 4, v{x}
    """)
    a(f"""
    s_and_b32 s{t+1}, s{sW}, 1
    s_cselect_b32 s{R_T}, s{P_WU}, s{P_WG}
    s_cselect_b32 s{R_T+1}, s{P_WU+1}, s{P_WG+1}
    s_mov_b32 s{R_T+2}, {F*D*2}
    s_mov_b32 s{R_T+3}, 0x20000
    s_lshl_b32 s{t+6}, s{t+1}, 13
    """)
    for i in range(8):
        a(f"s_add_u32 m0, s{t+6}, {PSCR + 1024*i}\ns_add_u32 s{t+5}, s{t+4}, {i*8*F*2}")
        a(f"buffer_load_dwordx4 v{x}, {R(R_T)}, s{t+5} offen lds")
def gujob_finish(a, t):
    x, y, z = PV, PV + 1, PV + 2
    ONE, FRG, CS = PV + 4, PV + 8, PV + 40
    a(f"""
    v_lshrrev_b32 v{z}, 4, v0
    v_bfe_u32 v{x}, v0, 2, 2
    v_lshl_add_u32 v{x}, v{z}, 3, v{x}
    v_lshlrev_b32 v{x}, 7, v{x}
    v_and_b32 v{y}, 3, v0
    v_lshl_add_u32 v{x}, v{y}, 3, v{x}
    s_add_u32 s{t+6}, s{t+6}, {PSCR}
    v_add_u32 v{x}, s{t+6}, v{x}
    v_lshlrev_b32 v{z}, 4, v{z}
    """)
    for tt in range(4):
        for u in range(2):
            for j in range(2):
                d = FRG + 8*tt + 4*u + 2*j
                a(f"ds_read_b64_tr_b16 v[{d}:{d+1}], v{x} offset:{128*(32*u+4*j) + 32*tt}")
    a(f"""
    s_mul_i32 s{t+6}, s{t+2}, 12288
    s_lshl_b32 s{t+5}, s{t+3}, 9
    s_add_u32 s{t+6}, s{t+6}, s{t+5}
    s_lshl_b32 s{t+5}, s{t+1}, 6
    s_add_u32 s{t+6}, s{t+6}, s{t+5}
    s_add_u32 s{t+6}, s{t+6}, {WS_CSP}
    """)
    for i in range(4): a(f"v_mov_b32 v{ONE+i}, 0x3f803f80")
    a("s_nop 0\ns_waitcnt lgkmcnt(0)")
    for u in range(2):
        for tt in range(4):
            a(f"v_mfma_f32_16x16x32_bf16 {v(CS+4*tt,4)}, {v(FRG+8*tt+4*u,4)}, {v(ONE,4)}, {v(CS+4*tt,4) if u else 0}")
    for tt in range(4):
        a(f"""
        s_lshl_b32 s{t+4}, s{t+3}, 2
        s_add_u32 s{t+4}, s{t+4}, {tt}
        s_mul_i32 s{t+5}, s{t+4}, 43
        s_lshr_b32 s{t+5}, s{t+5}, 8
        s_mul_i32 s{t+5}, s{t+5}, 228
        s_lshl_b32 s{t+4}, s{t+4}, 1
        s_add_u32 s{t+4}, s{t+4}, s{t+5}
        s_mul_i32 s{t+5}, s{t+2}, 24
        s_add_u32 s{t+4}, s{t+4}, s{t+5}
        s_add_u32 s{t+4}, s{t+4}, s{t+1}
        s_lshl_b32 s{t+4}, s{t+4}, 10
        s_add_u32 s{t+4}, s{t+4}, {WS_WTG}
        s_add_u32 s{t+5}, s{t+4}, 12288
        """)
        for u in range(2):
            d = FRG + 8*tt + 4*u
            a(f"buffer_store_dwordx4 v[{d}:{d+3}], v5, {WSR}, s{t+4+u} offen sc1")
    a("s_mov_b32 exec_lo, 0x10001\ns_mov_b32 exec_hi, 0x10001")
    for tt in range(4):
        a(f"buffer_store_dwordx4 v[{CS+4*tt}:{CS+4*tt+3}], v{z}, {WSR}, s{t+6} offen offset:{128*tt} sc1")
    a("s_mov_b64 exec, -1")

def prep(a, stage):
    tj = 84; sJob, sScr = tj, tj + 1
    lg = a.uid("pg"); le = a.uid("pe")
    if stage == 0:
        a(f"""
        s_sub_u32 s{sScr}, s{sW}, 1
        s_lshl_b32 s{sJob}, s{sScr}, 8
        s_add_u32 s{sJob}, s{sJob}, s{sWG}
        s_add_u32 s{sJob}, s{sJob}, 160
        s_mul_i32 s{sScr}, s{sScr}, 5120
        s_add_u32 s{sScr}, s{sScr}, {PSCR + 16384}
        """)
    a(f"s_cmp_eq_u32 s{sW}, 0\ns_cbranch_scc1 {lg}\ns_cmp_eq_u32 s{sW}, 3\ns_cbranch_scc1 {lg}\ns_cmp_ge_u32 s{sJob}, 544\ns_cbranch_scc1 {le}")
    projjob_issue(a, sJob, sScr, tj) if stage == 0 else projjob_finish(a, sScr, tj)
    a(f"s_branch {le}")
    a.label(lg)
    a(f"s_cmp_ge_u32 s{sWG}, 240\ns_cbranch_scc1 {le}")
    gujob_issue(a, sWG, tj) if stage == 0 else gujob_finish(a, tj)
    a.label(le)

def xstat_fin(a):
    t = T + 16
    a(f"s_mov_b32 s{t}, 0xffff0000\nv_mov_b64 v[232:233], 0\ns_waitcnt vmcnt(0)")
    for i in range(12):
        a(f"v_lshlrev_b32 v234, 16, v{220+i}\nv_and_b32 v235, s{t}, v{220+i}\nv_add_f32 v232, v232, v234\nv_fmac_f32 v233, v234, v234\nv_add_f32 v232, v232, v235\nv_fmac_f32 v233, v235, v235")
    for mod in ("quad_perm:[1,0,3,2]", "quad_perm:[2,3,0,1]"):
        a(f"s_nop 1\nv_add_f32_dpp v232, v232, v232 {mod} row_mask:0xf bank_mask:0xf\nv_add_f32_dpp v233, v233, v233 {mod} row_mask:0xf bank_mask:0xf")
    a(f"""
    v_bfe_u32 v234, v0, 3, 2
    v_lshlrev_b32 v234, 10, v234
    v_bfe_u32 v235, v0, 2, 1
    v_lshl_add_u32 v234, v235, 3, v234
    v_lshrrev_b32 v235, 5, v0
    v_lshl_add_u32 v234, v235, 4, v234
    s_lshr_b32 s{t}, s{sWG}, 3
    s_lshl_b32 s{t}, s{t}, 12
    s_and_b32 s{t+1}, s{sWG}, 7
    s_lshl_b32 s{t+1}, s{t+1}, 2
    s_add_u32 s{t+1}, s{t+1}, s{sW}
    s_lshl_b32 s{t+1}, s{t+1}, 5
    s_add_u32 s{t}, s{t}, s{t+1}
    s_add_u32 s{t}, s{t}, {WS_ST0}
    s_mov_b32 exec_lo, 0x11111111
    s_mov_b32 exec_hi, 0x11111111
    buffer_store_dwordx2 v[232:233], v234, {WSR}, s{t} offen sc1
    s_mov_b64 exec, -1
    """)

def nonce_put(a):
    t = T + 8
    a(f"""
    s_memrealtime s[{t}:{t+1}]
    v_mov_b32 v1, 0
    s_waitcnt lgkmcnt(0)
    s_or_b32 s{t+2}, s{t}, 0x80000000
    v_mov_b32 v2, s{t+2}
    s_mov_b64 exec, 1
    global_store_dword v1, v2, s[{P_DBG}:{P_DBG+1}] sc1
    s_mov_b64 exec, -1
    """)
def flags_zero(a):
    t = T + 16
    a(f"""
    s_lshl_b32 s{t}, s{sWG}, 5
    s_add_u32 s{t}, s{t}, {WS_FL}
    s_lshl_b32 s{t+1}, s{sWG}, 7
    s_add_u32 s{t+1}, s{t+1}, {L_FG}
    s_add_u32 s{t+2}, s{t+1}, {LSTRIDE}
    v_lshlrev_b32 v236, 2, v0
    v_mov_b32 v237, 0
    s_mov_b64 exec, 0xff
    buffer_store_dword v237, v236, {WSR}, s{t} offen sc1
    s_mov_b64 exec, 0x3ff
    buffer_store_dword v237, v236, {WSR}, s{t+1} offen sc1
    buffer_store_dword v237, v236, {WSR}, s{t+2} offen sc1
    s_mov_b64 exec, -1
    """)

def nonce_issue(a, v2, v3):
    a(f"v_mov_b32 v{v3}, 0\nglobal_load_dword v{v2}, v{v3}, s[{P_DBG}:{P_DBG+1}] sc1")
def nonce_get(a, v1, v2, v3, cnt=0):
    t = T + 14
    lp = a.uid("non"); ok = a.uid("nonok")
    a(f"s_mov_b32 s{t+6}, 0\nv_mov_b32 v{v3}, 0\ns_lshl_b32 s{t+4}, s{sWG}, 7\ns_add_u32 s{t+4}, s{t+4}, {L_FG}\ns_waitcnt vmcnt({cnt})\ns_branch {lp}c")
    a.label(lp)
    a(f"global_load_dword v{v2}, v{v3}, s[{P_DBG}:{P_DBG+1}] sc1\ns_waitcnt vmcnt(0)")
    a.label(lp + "c")
    a(f"""
    v_cmp_eq_u32 vcc, 0, v{v2}
    s_cbranch_vccz {ok}
    s_sleep 4
    s_add_u32 s{t+6}, s{t+6}, 1
    s_cmp_lt_u32 s{t+6}, {SPIN}
    s_cbranch_scc1 {lp}
    s_mov_b32 s{sTMO}, {SPIN}
    """)
    a.label(ok)
    a(f"""
    v_readfirstlane_b32 s{sEP}, v{v2}
    s_getreg_b32 s{t+6}, hwreg(HW_REG_XCC_ID, 0, 4)
    v_add_u32 v{v2}, s{t+6}, v{v2}
    s_mov_b64 exec, 1
    buffer_store_dword v{v2}, v{v3}, {WSR}, s{t+4} offen offset:32 sc1
    s_mov_b64 exec, -1
    s_waitcnt lgkmcnt(0)
    """)

def census(a, va, vt, issue, cnt=0):
    t = T + 20
    a(f"""
    v_and_b32 v{va}, 31, v0
    v_lshlrev_b32 v{va}, 7, v{va}
    s_lshl_b32 s{t}, s{sG}, 12
    s_add_u32 s{t}, s{t}, {L_FG + 32}
    """)
    if issue:
        a(f"buffer_load_dword v{vt}, v{va}, {WSR}, s{t} offen sc1")
        return
    poll(a, va, vt, f"s{t}", f"s{sEP}", sleep=4, pre=cnt)
    a(f"""
    s_getreg_b32 s{t}, hwreg(HW_REG_XCC_ID, 0, 4)
    v_cmp_ne_u32 vcc, s{t}, v{vt}
    s_cmp_eq_u64 vcc, 0
    s_cselect_b32 s{t}, 1, 0
    v_mov_b32 v{va}, {Q1_NON}
    v_mov_b32 v{vt}, s{t}
    ds_write_b32 v{va}, v{vt} offset:4
    v_mov_b32 v{vt}, s{sEP}
    ds_write_b32 v{va}, v{vt}
    s_waitcnt lgkmcnt(0)
    """)

sMODE = 14 - 14 + 98
def read_nonce_mode(a):
    a(f"v_mov_b32 v1, {Q1_NON}\nds_read_b64 v[2:3], v1\ns_waitcnt lgkmcnt(0)\nv_readfirstlane_b32 s{sEP}, v2\nv_readfirstlane_b32 s{sMODE}, v3")

def qkv_ids(a, t):
    a(f"s_lshr_b32 s{t}, s{sWG}, 4\ns_and_b32 s{t+1}, s{sR}, 15")

def qkv_compute(a, first, SB):
    t = T
    sRT, sCT, sTY, sC0 = t, t+1, t+2, t+3
    LQ = 0 if first else LSTRIDE
    sWM, sWN = t+5, t+6
    a(f"""
    s_mul_i32 s{sTY}, s{sCT}, 52
    s_lshr_b32 s{sTY}, s{sTY}, 8
    s_mul_i32 s{sC0}, s{sTY}, 5
    s_sub_u32 s{sC0}, s{sCT}, s{sC0}
    s_lshl_b32 s{sC0}, s{sC0}, 7
    s_and_b32 s{sWM}, s{sW}, 1
    s_lshr_b32 s{sWN}, s{sW}, 1
    v_lshrrev_b32 v14, 5, v0
    v_and_b32 v15, 31, v0
    """)
    ACC = 128; FR = 16; VST = 80; VCS = 96; VCV = 192; ONE = 196; AD = 200; MS = 244
    sCS = t+15
    a(f"s_lshl_b32 s{sCS}, s{sWG}, 9\ns_lshl_b32 s{t+7}, s{sWN}, 8\ns_add_u32 s{sCS}, s{sCS}, s{t+7}\ns_add_u32 s{sCS}, s{sCS}, {WS_CSQ}")
    a(f"v_lshlrev_b32 v{AD+8}, 5, v14\nv_lshlrev_b32 v{AD+9}, 2, v15")
    if first:
        a(f"""
        s_lshl_b32 s{t+7}, s{sWM}, 13
        v_lshlrev_b32 v1, 7, v15
        v_add_u32 v1, s{t+7}, v1
        v_bfe_u32 v8, v0, 1, 3
        v_xor_b32 v8, v8, v14
        """)
        for kk in range(4):
            a(f"v_xor_b32 v9, {2*kk}, v8\nv_lshl_add_u32 v{2+kk}, v9, 4, v1")
    else:
        a(f"s_lshl_b32 s{t+7}, s{sWM}, 13\nv_lshlrev_b32 v2, 4, v0\nv_add_u32 v2, s{t+7}, v2")
    a(f"""
    v_and_b32 v10, 3, v0
    v_and_b32 v11, 1, v0
    v_bfe_u32 v12, v0, 1, 1
    v_lshl_add_u32 v11, v11, 1, v12
    s_cmp_eq_u32 s{sTY}, 2
    s_cselect_b64 vcc, -1, 0
    v_cndmask_b32 v10, v11, v10, vcc
    v_bfe_u32 v8, v0, 2, 2
    v_lshl_add_u32 v9, v14, 3, v8
    v_lshlrev_b32 v9, 8, v9
    v_lshl_add_u32 v9, v10, 3, v9
    v_bfe_u32 v10, v0, 4, 1
    v_lshl_add_u32 v9, v10, 5, v9
    s_lshl_b32 s{t+7}, s{sWN}, 1
    v_xor_b32 v8, s{t+7}, v8
    v_lshl_add_u32 v6, v8, 6, v9
    v_xor_b32 v8, 1, v8
    v_lshl_add_u32 v7, v8, 6, v9
    """)
    nxa = 4 if first else 1
    W0 = 16384 if first else qkW(0)
    for i in range(4): a(f"v_add_u32 v{8+i}, {WB + 49152*(i >> 1)}, v{6 + (i & 1)}")
    VM, VR = (96, 212)
    assert Q1_TAB == qkW(4)
    for i in range(0, 64, 2): a(f"v_mov_b64 v[{ACC+i}:{ACC+i+1}], 0")
    def reads(kk):
        b = FR + 16*kk; r = []
        for tm in range(2):
            if first: r.append(f"ds_read_b128 v[{b+4*tm}:{b+4*tm+3}], v{8+kk} offset:{4096*tm}")
            else: r.append(f"ds_read_b128 v[{b+4*tm}:{b+4*tm+3}], v8 offset:{4096*tm+1024*kk}")
        for tn in range(2):
            for j in range(2):
                d = b + 8 + 4*tn + 2*j
                r.append(f"ds_read_b64_tr_b16 v[{d}:{d+1}], v{12+tn} offset:{4096*kk+1024*j}")
        return r
    def mfmas(kk, vtype, tns=(0, 1)):
        b = FR + 16*kk; m = []
        for tn in tns:
            W = v(b + 8 + 4*tn, 4)
            for tm in range(2):
                c = ACC + 16*(2*tn + tm)
                X = v(b + 4*tm, 4)
                A, B = (X, W) if vtype else (W, X)
                m.append(f"v_mfma_f32_32x32x16_bf16 {v(c,16)}, {A}, {B}, {v(c,16)}")
        return m
    sC, sSa, sSw, sMk, sDst, sD1 = t+9, t+10, t+4, t+11, t+12, 96
    qloc = C.qloc and SB == '' and not first
    vlab = a.uid("qkv_v"); fin = a.uid("qkv_fin"); done = a.uid("qkv_cdone")
    a(f"s_mov_b32 s{sC}, {10 if first else 9}\ns_mov_b32 s{sSa}, 0\ns_mov_b32 s{sSw}, {W0}")
    a(f"s_cmp_eq_u32 s{sTY}, 2\ns_cbranch_scc1 {vlab}")
    def v_tab_reads(roff):
        a(f"v_lshlrev_b32 v1, 4, v14\nv_add_u32 v1, s{t+7}, v1")
        for tm in range(2):
            for q in range(4):
                a(f"ds_read_b128 v[{VM+16*tm+4*q}:{VM+16*tm+4*q+3}], v1 offset:{(32*tm+8*q)*4}")
                a(f"ds_read_b128 v[{VR+16*tm+4*q}:{VR+16*tm+4*q+3}], v1 offset:{roff+(32*tm+8*q)*4}")
    hooks = []
    def mainloop(vtype, epi, alt=None):
        lp = a.uid("qkv_loop"); hk = a.uid("qkv_hk"); hb = a.uid("qkv_hb"); ent = a.uid("qkv_ent")
        if first: xstat_fin(a)
        stamp(a, 1 if first else 18)
        def rd(c, kk):
            b = FR + 16*kk; r = []
            for tm in range(2):
                if first: r.append(f"ds_read_b128 v[{b+4*tm}:{b+4*tm+3}], v{2+kk} offset:{(c % 4)*16384+4096*tm}")
                else: r.append(f"ds_read_b128 v[{b+4*tm}:{b+4*tm+3}], v2 offset:{(c % 4)*16384+4096*tm+1024*kk}")
            o = qkW(c) - WB
            for tn in range(2):
                for j in range(2):
                    d = b + 8 + 4*tn + 2*j
                    r.append(f"ds_read_b64_tr_b16 v[{d}:{d+1}], v{8 + 2*(o // 49152) + tn} offset:{o % 49152 + 4096*kk+1024*j}")
            return r
        mf = lambda kk, tl: mfmas(kk, vtype, (tl >> 1,))[tl & 1]
        a(f"""
        s_lshl_b32 s{sC}, s{sRT}, 1
        s_add_u32 s{sC}, s{sC}, s{sWM}
        s_lshl_b32 s{sC}, s{sC}, 12
        s_add_u32 s{sC}, s{sC}, {WS_ST0 if first else L_ST2}
        v_lshlrev_b32 v6, 4, v0
        """)
        p_ld, p_st, p_b, p_r = (28, 56, 77, 120)
        ins = {}
        if first: ins[20] = ["s_waitcnt vmcnt(0)"]
        for i in range(4): ins[p_ld + 2*i] = [f"buffer_load_dwordx4 v[{VST+4*i}:{VST+4*i+3}], v6, {WSR}, s{sC} offen offset:{1024*i} sc1"]
        b = Asm(); b("s_waitcnt vmcnt(0)"); row_stats(b, VST, MS, MS + 1)
        neg = [f"v_sub_f32 v{VCV}, 0, v{VCV}", f"v_sub_f32 v{VCV+2}, 0, v{VCV+2}"]
        if vtype:
            if not first: b("\n".join(neg))
            a(f"s_lshl_b32 s{t+7}, s{sW}, 9\ns_add_u32 s{t+7}, s{t+7}, {qkW(4)}\nv_lshlrev_b32 v12, 2, v0\nv_add_u32 v12, s{t+7}, v12\nv_lshlrev_b32 v13, 4, v14\nv_add_u32 v13, s{t+7}, v13")
            ins[p_b] = [f"ds_write_b32 v12, v{MS}", f"ds_write_b32 v12, v{MS+1} offset:256"]
            for tm in range(2):
                for q in range(4):
                    ins[p_b].append(f"ds_read_b128 v[{VM+16*tm+4*q}:{VM+16*tm+4*q+3}], v13 offset:{(32*tm+8*q)*4}")
                    ins.setdefault(p_r, []).append(f"ds_read_b128 v[{VR+16*tm+4*q}:{VR+16*tm+4*q+3}], v13 offset:{256+(32*tm+8*q)*4}")
            fix = lambda tl: [f"v_fmac_f32 v{ACC+16*tl+i}, v{VCV+2*(tl>>1)}, v{VM+16*(tl&1)+i}" for i in range(16)]
            ff = 92
        else:
            qk_stats_fin(b)
            fix = lambda tl: [f"v_fmac_f32 v{ACC+16*tl+i}, v{MS+4*(tl&1)}, v{VCS+16*(tl>>1)+i}" for i in range(16)]
            ff = 80
        ins = dict(sorted({**ins, p_st: b.lines}.items()))
        if not first:
            gemm_unrolled(a, 10, 4, 6, rd, mf, [(0, 1), (2, 3)], ins, fix, ff, epi, 19, alt)
            return
        ins = {20: ["s_waitcnt vmcnt(0)"]}
        a(f"s_lshl_b32 s{t+7}, s{sWM}, 8\ns_add_u32 s{t+7}, s{t+7}, {Q1_TAB}")
        if vtype:
            a(f"v_lshlrev_b32 v13, 4, v14\nv_add_u32 v13, s{t+7}, v13")
            sr = [f"ds_read_b128 v[{R_+16*tm+4*q}:{R_+16*tm+4*q+3}], v13 offset:{o_+(32*tm+8*q)*4}" for R_, o_ in ((VM, 0), (VR, 512)) for tm in range(2) for q in range(4)]
            sf = neg
        else:
            a(f"v_add_u32 v13, s{t+7}, v{AD+9}\ns_cmp_eq_u32 s{sTY}, 0\ns_cselect_b32 s{sC}, {f32(QSCALE)}, 1.0")
            sr = [f"ds_read_b32 v{MS+4*tm+2*k_}, v13 offset:{128*tm+512*k_}" for tm in range(2) for k_ in range(2)]
            sf = [x for tm in range(2) for x in (f"v_sub_f32 v{MS+4*tm}, 0, v{MS+4*tm}", f"v_mul_f32 v{MS+4*tm+2}, s{sC}, v{MS+4*tm+2}")]
        a(f"s_lshl_b32 s{t+7}, s{sWN}, 8\ns_add_u32 s{t+7}, s{t+7}, {Q1_CS}\nv_add_u32 v7, s{t+7}, v{AD+9 if vtype else AD+8}\nv_mov_b32 v1, {Q1_NON}")
        ae = [f"ds_read_b64 v[{ONE}:{ONE+1}], v1"]
        for tn in range(2):
            if vtype: ae.append(f"ds_read_b32 v{VCV+2*tn}, v7 offset:{128*tn}")
            else: ae += [f"ds_read_b128 v[{VCS+16*tn+4*q}:{VCS+16*tn+4*q+3}], v7 offset:{(32*tn+16*(q>>1)+4*(q&1))*4}" for q in range(4)]
        def epi1(tn, pk):
            r = []
            if tn == 0: r = ["s_waitcnt lgkmcnt(0)", f"v_readfirstlane_b32 s{sEP}, v{ONE}", f"v_readfirstlane_b32 s{sMODE}, v{ONE+1}"] + sf
            if not pk: r += fix(2*tn) + fix(2*tn + 1)
            return r + epi(tn, pk)
        gemm_unrolled(a, 10, 4, 6, rd, mf, [(0, 1), (2, 3)], ins, lambda tl: [], 0, epi1, 2, None, ae + (sr if C.c_f == 9 else []), sr if C.c_f < 9 else [])
    HMASK1 = (1 << 8) | (1 << 2)
    HMASK2 = (1 << 5) | (1 << 2)
    if not first:
        for tn in range(2):
            for q in range(4):
                r = VCS + 16*tn + 4*q
                a(f"buffer_load_dwordx4 v[{r}:{r+3}], v{AD+8}, {WSR}, s{sCS} offen offset:{(32*tn+16*(q>>1)+4*(q&1))*4} sc1")
    a(f"""
    s_mul_i32 s{sDst}, s{sTY}, {ACT}
    s_lshl_b32 s{t+8}, s{sRT}, 2
    s_lshl_b32 s{t+7}, s{sWM}, 1
    s_add_u32 s{t+8}, s{t+8}, s{t+7}
    s_mul_i32 s{t+8}, s{t+8}, 1280
    s_add_u32 s{sDst}, s{sDst}, s{t+8}
    s_add_u32 s{sDst}, s{sDst}, {LQ}
    s_lshr_b32 s{t+8}, s{sC0}, 3
    s_lshl_b32 s{t+7}, s{sWN}, 3
    s_add_u32 s{t+8}, s{t+8}, s{t+7}
    v_add_u32 v80, s{t+8}, v14
    s_mov_b32 s{t+13}, {HEADB}
    v_mov_b32 v86, 0x7fffffff
    s_mov_b32 s{sMk}, 0
    s_add_u32 s{sD1}, s{sDst}, 1280
    """)
    if qloc:
        a(f"""
        s_lshl_b32 s{t+8}, s{sRT}, 1
        s_add_u32 s{t+8}, s{t+8}, s{sWM}
        s_mul_i32 s{t+8}, s{t+8}, {2*F*64}
        s_add_u32 s{t+8}, s{t+8}, {L_H + 57344}
        s_add_u32 s{t+7}, s{t+8}, {F*64}
        s_cmp_eq_u32 s{sTY}, 0
        s_cselect_b32 s{sDst}, s{t+8}, s{sDst}
        s_cselect_b32 s{sD1}, s{t+7}, s{sD1}
        s_cselect_b32 s{t+13}, 1280, s{t+13}
        """)
    a(f"s_add_u32 s{t+14}, s{sDst}, s{t+13}\ns_add_u32 s{sD1+1}, s{sD1}, s{t+13}")
    for sl in range(4):
        a(f"""
        v_add_u32 v81, {2*sl}, v80
        v_mul_u32_u24 v82, 205, v81
        v_lshrrev_b32 v82, 10, v82
        v_mad_i32_i24 v81, v82, -5, v81
        v_cmp_lt_u32 vcc, 2, v81
        v_lshlrev_b32 v82, 1, v82
        v_add_u32 v83, -3, v81
        v_cndmask_b32 v83, v81, v83, vcc
        v_addc_co_u32 v82, vcc, 0, v82, vcc
        v_lshlrev_b32 v83, 9, v83
        v_lshl_add_u32 v83, v15, 4, v83
        v_lshlrev_b32 v85, 3, v15
        v_add_u32 v85, 1024, v85
        v_cmp_eq_u32 vcc, 2, v81
        v_mul_lo_u32 v84, v82, s{t+13}
        s_cmp_lg_u64 vcc, 0
        v_cndmask_b32 v83, v83, v86, vcc
        v_cndmask_b32 v85, v86, v85, vcc
        s_cselect_b32 s{t+7}, {1 << sl}, 0
        s_or_b32 s{sMk}, s{sMk}, s{t+7}
        v_add_u32 v{AD+sl}, v83, v84
        v_add_u32 v{AD+4+sl}, v85, v84
        """)
    def qk_stats_fin(a):
        a(f"""
        s_cmp_eq_u32 s{sTY}, 0
        s_cselect_b32 s{t+7}, {f32(QSCALE)}, 1.0
        v_mul_f32 v{MS+2}, s{t+7}, v{MS+1}
        v_mul_f32 v{MS+6}, s{t+7}, v{MS+1}
        v_sub_f32 v{MS+4}, 0, v{MS}
        v_sub_f32 v{MS}, 0, v{MS}
        s_nop 1
        v_permlane32_swap_b32 v{MS}, v{MS+4}
        v_permlane32_swap_b32 v{MS+2}, v{MS+6}
        s_nop 1
        """)
    def epi_qk(tn, pk=True, bits='sc1'):
        r = []
        for tm in range(2):
            c = ACC + 16*(2*tn + tm); cs = VCS + 16*tn; m = MS + 4*tm
            for p in range(2):
                if pk:
                    for i in range(8*p, 8*p + 8, 2):
                        if first: r.append(f"v_pk_fma_f32 v[{c+i}:{c+i+1}], v[{cs+i}:{cs+i+1}], v[{m}:{m+1}], v[{c+i}:{c+i+1}] op_sel_hi:[1,0,1]")
                    for i in range(8*p, 8*p + 8, 2):
                        r.append(f"v_pk_mul_f32 v[{c+i}:{c+i+1}], v[{c+i}:{c+i+1}], v[{m+2}:{m+3}] op_sel_hi:[1,0]")
                else:
                    for i in range(8*p, 8*p + 8): r.append(f"v_mul_f32 v{c+i}, v{m+2}, v{c+i}")
                for i in range(4):
                    r.append(f"v_cvt_pk_bf16_f32 v{c+8*p+i}, v{c+8*p+2*i}, v{c+8*p+2*i+1}")
                r.append(f"buffer_store_dwordx4 v[{c+8*p}:{c+8*p+3}], v{AD+2*tn+p}, {WSR}, s{sD1 if tm else sDst} offen {bits}")
        return r
    def bparts(bits):
        for sl in range(4):
            sk = a.uid("qk_b")
            a(f"s_bitcmp0_b32 s{sMk}, {sl}\ns_cbranch_scc1 {sk}")
            for tm in range(2):
                o = ACC + 16*(2*(sl >> 1) + tm) + 8*(sl & 1)
                a(f"buffer_store_dwordx2 v[{o}:{o+1}], v{AD+4+sl}, {WSR}, s{sD1 if tm else sDst} offen {bits}")
                a(f"buffer_store_dwordx2 v[{o+2}:{o+3}], v{AD+4+sl}, {WSR}, s{sD1+1 if tm else t+14} offen {bits}")
            a.label(sk)
        a(f"s_branch {fin}")
    if qloc: mainloop(False, epi_qk, (f"s_cmp_eq_u32 s{sTY}, 0", lambda tn, pk: epi_qk(tn, pk, ""), lambda: bparts("sc1"), lambda: bparts("")))
    else:
        mainloop(False, epi_qk); bparts("sc1")
    a.label(vlab)
    if not first:
        for tn in range(2):
            a(f"buffer_load_dword v{VCV+2*tn}, v{AD+9}, {WSR}, s{sCS} offen offset:{128*tn} sc1")
    a(f"""
    s_lshl_b32 s{t+8}, s{sRT}, 3
    s_lshl_b32 s{t+7}, s{sWM}, 2
    s_add_u32 s{t+8}, s{t+8}, s{t+7}
    s_mul_i32 s{sDst}, s{t+8}, 640
    s_add_u32 s{sDst}, s{sDst}, {L_V + LQ}
    s_lshl_b32 s{t+7}, s{sWN}, 6
    s_add_u32 s{t+8}, s{sC0}, s{t+7}
    v_add_u32 v80, s{t+8}, v15
    v_mul_u32_u24 v81, 320, v14
    s_mov_b32 s{t+13}, {HEADB}
    s_movk_i32 s{t+14}, 3277
    s_movk_i32 s{t+7}, -20
    """)
    for tn in range(2):
        a(f"""
        v_add_u32 v83, {32*tn}, v80
        v_mul_u32_u24 v84, s{t+14}, v83
        v_lshrrev_b32 v84, 16, v84
        v_mad_i32_i24 v83, v84, s{t+7}, v83
        v_lshl_add_u32 v83, v83, 4, v81
        v_mul_lo_u32 v85, v84, s{t+13}
        v_add_u32 v{AD+tn}, v83, v85
        """)
    def epi_v(tn, pk=True):
        r = []
        for tm in range(2):
            c = ACC + 16*(2*tn + tm); cv = VCV + 2*tn
            for p in range(2):
                if pk:
                    for i in range(8*p, 8*p + 8, 2):
                        if first: r.append(f"v_pk_fma_f32 v[{c+i}:{c+i+1}], v[{VM+16*tm+i}:{VM+16*tm+i+1}], v[{cv}:{cv+1}], v[{c+i}:{c+i+1}] op_sel_hi:[1,0,1]")
                    for i in range(8*p, 8*p + 8, 2):
                        r.append(f"v_pk_mul_f32 v[{c+i}:{c+i+1}], v[{c+i}:{c+i+1}], v[{VR+16*tm+i}:{VR+16*tm+i+1}]")
                else:
                    for i in range(8*p, 8*p + 8): r.append(f"v_mul_f32 v{c+i}, v{VR+16*tm+i}, v{c+i}")
                for i in range(4):
                    r.append(f"v_cvt_pk_bf16_f32 v{c+8*p+i}, v{c+8*p+2*i}, v{c+8*p+2*i+1}")
                r.append(f"buffer_store_dwordx4 v[{c+8*p}:{c+8*p+3}], v{AD+tn}, {WSR}, s{sDst} offen offset:{640*(2*tm+p)} sc1")
        return r
    mainloop(True, epi_v)
    a.label(fin)
    stamp(a, 3 if first else 20)
    flag_setup(a, 1 if first else 6)
    a(f"s_lshl_b32 s{t+7}, s{sWG}, 5\ns_add_u32 s{t+7}, s{t+7}, s{sW}\ns_lshl_b32 s{t+7}, s{t+7}, 2\ns_add_u32 s{t+7}, s{t+7}, {L_FG + LQ}")
    a("s_waitcnt vmcnt(0)")
    if first:
        l1 = a.uid("q1f"); l2 = a.uid("q1g")
        a(f"s_cmp_eq_u32 s{sMODE}, 0\ns_cbranch_scc1 {l1}")
        flag_store(a, ""); a(f"s_branch {l2}")
        a.label(l1); flag_store(a, "sc1"); a.label(l2)
    else: flag_store(a, SB)
    flag_store(a, "sc1", t+7)
    a.label(done)

def qkvW_setup(a, sWo, sLW, sCT, sTmp, vW):
    a(f"""
    v_lshrrev_b32 v2, 4, v0
    v_mul_u32_u24 v1, 3840, v2
    v_lshlrev_b32 v7, 2, v2
    v_and_b32 v3, 15, v0
    v_xor_b32 v3, v3, v7
    v_lshl_add_u32 v{vW}, v3, 4, v1
    s_mul_i32 s{sWo}, s{sLW}, {16*3840}
    s_lshl_b32 s{sTmp}, s{sCT}, 8
    s_add_u32 s{sWo}, s{sWo}, s{sTmp}
    """)

def qkv1_loader(a):
    t = T
    sRT, sCT = t, t+1
    sLW, sAo, sWo, sM, sTmp, sRot, sThr, sA1, sW1, sSel = t+2, t+3, t+4, t+5, t+6, t+8, t+9, t+10, t+11, t+12
    a(f"s_sub_u32 s{sLW}, s{sW}, 4")
    qkvW_setup(a, sWo, sLW, sCT, sTmp, 6)
    a(f"""
    s_lshl_b32 s{sM}, s{sLW}, 12
    s_lshl_b32 s{sAo}, s{sRT}, 2
    s_add_u32 s{sAo}, s{sAo}, s{sLW}
    s_mul_i32 s{sAo}, s{sAo}, {32*1280}
    v_lshrrev_b32 v1, 3, v0
    v_mul_u32_u24 v1, 1280, v1
    v_and_b32 v3, 7, v0
    v_xor_b32 v3, v3, v2
    v_lshl_add_u32 v4, v3, 4, v1
    v_xor_b32 v3, 4, v3
    v_lshl_add_u32 v5, v3, 4, v1
    """)
    a("s_waitcnt lgkmcnt(0)")
    srd(a, R_X, P_X, ACT)
    srd(a, R_WQ, P_WQKV, D*3*D*2)
    def emitA(c, i0, k):
        for i in range(i0, i0 + k):
            a(f"s_add_u32 m0, s{sM}, {(c % 4)*16384 + 1024*i}\ns_add_u32 s{sTmp}, s{sAo}, {c*128 + i*8*1280}")
            a(f"buffer_load_dwordx4 v{4 + (i & 1)}, {R(R_X)}, s{sTmp} offen lds")
    def emitW(c, i0, k):
        for i in range(i0, i0 + k):
            a(f"s_add_u32 m0, s{sM}, {qkW(c) + 1024*i}\ns_add_u32 s{sTmp}, s{sWo}, {c*64*3840 + i*4*3840}")
            a(f"buffer_load_dwordx4 v6, {R(R_WQ)}, s{sTmp} offen lds")
    LD = Loader(a); mark = [0]
    def xstats(c):
        if c == 0:
            other_srds(a)
            a(f"""
            v_bfe_u32 v8, v0, 2, 2
            v_lshrrev_b32 v9, 5, v0
            v_lshl_add_u32 v9, v9, 3, v8
            v_lshlrev_b32 v9, 8, v9
            v_and_b32 v10, 3, v0
            v_lshl_add_u32 v9, v10, 3, v9
            v_bfe_u32 v10, v0, 4, 1
            v_lshl_add_u32 v9, v10, 5, v9
            v_xor_b32 v8, s{sLW}, v8
            v_lshl_add_u32 v9, v8, 6, v9
            v_add_u32 v9, {WB}, v9
            v_add_u32 v8, 49152, v9
            """)
            for i in range(4): a(f"v_mov_b32 v{12+i}, 0x3f803f80")
        for kk in range(0 if C.nocs else 4):
            for j in range(2):
                a(f"ds_read_b64_tr_b16 v[{16+4*kk+2*j}:{17+4*kk+2*j}], v{9 if qkW(c) - WB < 49152 else 8} offset:{(qkW(c) - WB) % 49152 + 4096*kk + 1024*j}")
        a("s_waitcnt lgkmcnt(0)")
        for kk in range(0 if C.nocs else 4):
            a(f"v_mfma_f32_32x32x16_bf16 v[32:47], v[12:15], v[{16+4*kk}:{19+4*kk}], {'v[32:47]' if (c or kk) else 0}")
        n = LD.total - mark[0]
        if c in (0, C.c_i, C.c_c): mark[0] = LD.total
        def st_issue():
            census(a, 80, 81, False, n)
            a(f"s_lshl_b32 s{t+7}, s{sRT}, 13\ns_add_u32 s{t+7}, s{t+7}, {WS_ST0}\ns_add_u32 s{t+13}, s{t+7}, 4096\nv_lshlrev_b32 v82, 4, v0")
            for h_ in range(2):
                for i in range(4): a(f"buffer_load_dwordx4 v[{96+16*h_+4*i}:{99+16*h_+4*i}], v82, {WSR}, s{t+13 if h_ else t+7} offen offset:{1024*i} sc1")
        def st_fin():
            a(f"s_waitcnt vmcnt({n})\nv_lshlrev_b32 v82, 2, v0\nv_add_u32 v82, {Q1_TAB}, v82")
            for h_ in range(2):
                row_stats(a, 96 + 16*h_, 84, 85)
                a(f"ds_write_b32 v82, v84 offset:{256*h_}\nds_write_b32 v82, v85 offset:{512+256*h_}")
            a("s_waitcnt lgkmcnt(0)")
        st = {0: lambda: (flags_zero(a), nonce_issue(a, 81, 82)), 2: lambda: nonce_get(a, 80, 81, 82, n), C.c_i: lambda: census(a, 80, 81, True), C.c_c: st_issue, C.c_f: st_fin}
        if c in st:
            l = a.uid("w7")
            a(f"s_cmp_lg_u32 s{sW}, 7\ns_cbranch_scc1 {l}")
            st[c](); a.label(l)
            LD.q += [("x7", "x", 99)] * {0: 4, 2: 1, C.c_i: 1, C.c_c: 8, C.c_f: 0}[c]
    if C.q1prio: a("s_setprio 2")
    stamp(a, 1)
    ph = Phase("q1", 10, 4, 4, emitA, emitW, lambda c: ((c % 4)*16384, (c % 4)*16384 + 16384), lambda c: (qkW(c), qkW(c) + 16384),
               None, C.bud_q1, after_bar=xstats, dbg=(C.dbg == 1))
    def waitfn(w):
        l1 = a.uid("pw"); l2 = a.uid("pw"); l3 = a.uid("pw")
        a(f"s_cmp_eq_u32 s{sW}, 4\ns_cbranch_scc1 {l1}\ns_cmp_eq_u32 s{sW}, 7\ns_cbranch_scc1 {l2}\ns_waitcnt vmcnt({w+5})\ns_branch {l3}")
        a.label(l1); a(f"s_waitcnt vmcnt({w+16})\ns_branch {l3}")
        a.label(l2); a(f"s_waitcnt vmcnt({w})")
        a.label(l3)
    ph.look = C.look_q1
    LD.run(ph, None)
    a(f"""
    v_and_b32 v1, 31, v0
    v_lshlrev_b32 v1, 2, v1
    s_lshl_b32 s{sTmp}, s{sLW}, 7
    v_add_u32 v1, s{sTmp}, v1
    v_add_u32 v2, {Q1_CS}, v1
    s_lshl_b32 s{sTmp}, s{sWG}, 9
    s_add_u32 s{sTmp}, s{sTmp}, {WS_CSQ}
    s_setprio 0
    s_nop 3
    ds_write_b32 v2, v32
    buffer_store_dword v32, v1, {WSR}, s{sTmp} offen
    s_waitcnt lgkmcnt(0)
    """)
    stamp(a, 2)
    a("s_barrier")
    read_nonce_mode(a)

def other_srds(a):
    srd(a, R_WS, P_WS, WS_END)
    srd(a, R_WG, P_WG, D*F*2)
    srd(a, R_WU, P_WU, D*F*2)
    srd(a, R_T, P_WS, WS_END)

def qkv1_idle(a):
    l2 = a.uid("idl"); l1 = a.uid("idl"); l3 = a.uid("idl"); l4 = a.uid("idl"); lj = a.uid("idl")
    tj = 84; K = NAME + "_kernel"
    a(f"v_lshlrev_b32 v5, 4, v0\ns_cmp_lt_u32 s{sW}, 4\ns_cbranch_scc1 {l1}")
    a(f"s_xor_b32 s{tj}, s{sW}, 7\ns_or_b32 s{tj}, s{tj}, s{T}\ns_cmp_lg_u32 s{tj}, 0\ns_cbranch_scc1 {l3}")
    nonce_put(a)
    a.label(l3)
    a(f"s_getpc_b64 s[{tj+4}:{tj+5}]")
    a.label("L_pc")
    a(f"""
    s_sub_u32 s{tj+4}, s{tj+4}, L_pc-{K}
    s_subb_u32 s{tj+5}, s{tj+5}, 0
    s_and_b32 s{tj}, s{T}, 1
    s_lshl_b32 s{tj}, s{tj}, 2
    s_add_u32 s{tj}, s{tj}, s{sW}
    s_sub_u32 s{tj}, s{tj}, 4
    s_lshl_b32 s{tj}, s{tj}, 13
    v_lshlrev_b32 v1, 7, v0
    v_add_u32 v2, s{tj}, v1
    global_load_dword v251, v2, s[{tj+4}:{tj+5}]
    """)
    a(f"s_lshl_b32 s{tj}, s{T}, 2\ns_add_u32 s{tj}, s{tj}, s{sW}\ns_add_u32 s{tj+2}, s{tj}, {60 - 4}\ns_lshl_b32 s{tj+2}, s{tj+2}, 13")
    for i in range(4):
        if C.q1pf: a(f"buffer_load_dword v251, v1, {R(R_WQ)}, s{tj+2} offen\ns_add_u32 s{tj+2}, s{tj+2}, {64*8192}")
        if i == 0: a("s_barrier")
    a(f"s_branch {l2}")
    a.label(l1)
    xstat_fin(a)
    a(f"s_cmp_lg_u32 s{sW}, 0\ns_cbranch_scc1 {l4}")
    flags_zero(a)
    a.label(l4)
    a(f"s_waitcnt vmcnt(0)\ns_barrier\ns_cmp_lg_u32 s{sW}, 0\ns_cbranch_scc1 {l2}")
    nonce_issue(a, 81, 82)
    nonce_get(a, 80, 81, 82)
    a.label(l2)
    a(f"s_mul_i32 s{tj}, s{T}, 10\ns_add_u32 s{tj+7}, s{tj}, 10\ns_add_u32 s{tj}, s{tj}, s{sW}\ns_mul_i32 s{tj+1}, s{sW}, 5120")
    a.label(lj)
    projjob_issue(a, tj, tj+1, tj)
    a("s_waitcnt vmcnt(0)")
    projjob_finish(a, tj+1, tj)
    a(f"s_add_u32 s{tj}, s{tj}, 8\ns_cmp_lt_u32 s{tj}, s{tj+7}\ns_cbranch_scc1 {lj}")
    l5 = a.uid("idl")
    a(f"s_waitcnt vmcnt(0)\ns_barrier\ns_cmp_lg_u32 s{sW}, 0\ns_cbranch_scc1 {l5}")
    a(f"""
    s_lshl_b32 s{tj}, s{sWG}, 7
    s_add_u32 s{tj}, s{tj}, {L_FG + 36}
    v_mov_b32 v1, 0
    v_mov_b32 v2, s{sEP}
    """)
    flag_store(a, "sc1", tj)
    census(a, 80, 81, True)
    census(a, 80, 81, False)
    a.label(l5)
    a("s_barrier")
    read_nonce_mode(a)

def phase_attn(a, SB, ld_label):
    fast = SB == ""
    t = T
    CH = 20480
    sQP, sKH, sSrc, sDst, sTmp, sC, sHB = t, t+1, t+2, t+3, t+4, t+5, t+8
    sEX = t+6
    sWs, sWd, sPF = t+9, t+10, t+11
    tj = 84; sJob, sScr = tj, tj + 1
    QAREA = 102400
    QA, QB = 16, 22
    NM, SS, PP, OO, KF, VF = 32, 64, 96, 112, 144, 160
    vK, vK8, vV = 2, 3, 4
    DUM = 176; XF = 177; vX1, vX2, vO = 28, 29, 30; sO, sFB = 96, 99; XB = 102400; PR = 32
    assert C.c0
    KVB = 'nt sc1' if C.nt_kv else 'sc1'
    stamp(a, 4)
    a(f"""
    s_and_b32 s{sQP}, s{sW}, 3
    s_lshr_b32 s{sKH}, s{sW}, 2
    v_lshlrev_b32 v5, 4, v0
    s_mul_i32 s{sHB}, s{sR}, {HEADB}
    s_add_u32 s{sHB}, s{sHB}, s{sLO}
    s_and_b32 s{sTmp}, s{sQP}, 1
    s_mul_i32 s{sSrc}, s{sTmp}, 5120
    s_mul_i32 s{sDst}, s{sTmp}, 10240
    s_lshr_b32 s{sTmp}, s{sQP}, 1
    s_mul_i32 s{sC}, s{sTmp}, 5120
    s_add_u32 s{sDst}, s{sDst}, s{sC}
    s_mul_i32 s{sC}, s{sTmp}, {ACT}
    s_add_u32 s{sSrc}, s{sSrc}, s{sC}
    s_add_u32 s{sSrc}, s{sSrc}, s{sHB}
    s_add_u32 s{sSrc}, s{sSrc}, {L_K}
    """)
    def kv_issue(j):
        GF.need(0x01010101 << j)
        a(f"s_add_u32 s{sTmp}, s{sG}, {j}\ns_and_b32 s{sTmp}, s{sTmp}, 7\ns_mul_i32 s{sTmp}, s{sTmp}, 10240\ns_add_u32 s{sTmp}, s{sTmp}, s{sSrc}")
        return lin_dma(a, 5, sTmp, 0, sDst, j * CH, 5, KVB)
    def init():
        a(f"""
        v_lshrrev_b32 v14, 5, v0
        v_and_b32 v15, 31, v0
        v_lshlrev_b32 v6, 3, v15
        s_mul_i32 s{sTmp}, s{sKH}, 10240
        v_add_u32 v{vK}, s{sTmp}, v5
        v_add_u32 v{vK8}, s{sTmp}, v6
        v_mul_u32_u24 v7, 320, v14
        v_lshl_add_u32 v7, v15, 4, v7
        v_add_u32 v{vV}, s{sTmp}, v7
        s_mov_b32 s{sEX}, 0x000fffff
        s_mov_b32 s{sEX+1}, 0x000fffff
        s_mov_b32 s{t+16}, -1
        s_mov_b32 s{t+17}, 0
        v_and_b32 v9, 27, v0
        v_cmp_eq_u32 vcc, 24, v9
        v_mov_b32 v8, 0x3f803f80
        s_nop 0
        v_cndmask_b32 v8, 0, v8, vcc
        v_mov_b32 v9, v8
        v_lshlrev_b32 v13, 7, v0
        v_mov_b32 v12, 0
        """)
        for i in range(0, 16, 2): a(f"v_mov_b64 v[{VF+i}:{VF+i+1}], v[8:9]")
        for i in range(0, 32, 2): a(f"v_mov_b64 v[{OO+i}:{OO+i+1}], 0")
        for i in range(0, 8, 2): a(f"v_mov_b64 v[{PP+8+i}:{PP+8+i+1}], 0")
        a(f"v_mov_b64 v[{QA+4}:{QA+5}], 0\nv_mov_b64 v[{QB+4}:{QB+5}], 0")
        a(f"""
        s_mul_i32 s{sC}, s{sQP}, 7168
        s_add_u32 s{sC}, s{sC}, {XB}
        v_add_u32 v{vX1}, s{sC}, v5
        v_lshrrev_b32 v{vX2}, 1, v5
        v_add_u32 v{vX2}, s{sC}, v{vX2}
        s_lshl_b32 s{sTmp}, s{sQP}, 2
        s_add_u32 s{sTmp}, s{sTmp}, {XB + 28672}
        v_mov_b32 v{XF}, s{sTmp}
        s_mul_i32 s{sTmp}, s{sR}, 5
        v_add_u32 v{vO}, s{sTmp}, v14
        v_lshrrev_b32 v10, 1, v{vO}
        v_and_b32 v{vO}, 1, v{vO}
        v_lshlrev_b32 v{vO}, 3, v{vO}
        v_lshl_add_u32 v{vO}, v10, 9, v{vO}
        v_lshl_add_u32 v{vO}, v15, 4, v{vO}
        s_lshl_b32 s{sTmp}, s{sG}, 2
        s_add_u32 s{sTmp}, s{sTmp}, s{sQP}
        s_mul_i32 s{sO}, s{sTmp}, 81920
        s_add_u32 s{sO}, s{sO}, s{sLO}
        s_add_u32 s{sO}, s{sO}, {L_O}
        s_add_u32 s{sO+1}, s{sO}, 40960
        s_mov_b32 s{sFB}, 0
        """)
        if C.c0:
            for st_ in range(2): a(f"v_mov_b32 v{KF+8*st_+4}, 0x3f803f80\nv_mov_b32 v{KF+8*st_+5}, 0x3f80")
    init()
    l0 = a.uid("att_old"); l1 = a.uid("att_j")
    a(f"s_cmp_eq_u32 s{sKH}, 0\ns_cbranch_scc1 {l0}")
    poll_local(a, "attn", 1, va=10, vt=11)
    stamp(a, 5)
    a(f"""
    s_mul_i32 s{sC}, s{sQP}, 2560
    s_add_u32 s{sPF}, s{sC}, {QAREA}
    s_mul_i32 s{sTmp}, s{sG}, 10240
    s_add_u32 s{sTmp}, s{sTmp}, s{sC}
    s_add_u32 s{sTmp}, s{sTmp}, s{sHB}
    """)
    a(f"s_add_u32 s{sC}, s{sTmp}, 1280")
    if fast and C.qloc:
        a(f"""
        s_lshl_b32 s{sWs}, s{sG}, 2
        s_add_u32 s{sWs}, s{sWs}, s{sQP}
        s_mul_i32 s{sWs}, s{sWs}, {2*F*64}
        s_mul_i32 s{sWd}, s{sR}, 1280
        s_add_u32 s{sWs}, s{sWs}, s{sWd}
        s_add_u32 s{sWs}, s{sWs}, {L_H + 57344}
        s_add_u32 s{sWd}, s{sWs}, {F*64}
        s_cmp_lg_u32 s{sL}, 0
        s_cselect_b32 s{sTmp}, s{sWs}, s{sTmp}
        s_cselect_b32 s{sC}, s{sWd}, s{sC}
        """)
    for x, sr in ((0, sTmp), (1, sC)):
        a(f"""
        s_add_u32 m0, s{sPF}, {1280*x}
        s_mov_b64 exec, -1
        buffer_load_dwordx4 v5, {WSR}, s{sr} offen {KVB} lds
        s_mov_b64 exec, 0xffff
        buffer_load_dwordx4 v5, {WSR}, s{sr} offen offset:1024 {KVB} lds
        """)
    a("s_mov_b64 exec, -1")
    a(f"s_mul_i32 s{sTmp}, s{sG}, 10240\ns_add_u32 s{sTmp}, s{sTmp}, s{sSrc}")
    lin_dma(a, 5, sTmp, 0, sDst, 0, 2, KVB)
    if C.stage: a(f"s_waitcnt vmcnt({C.stage - 1})")
    lin_dma(a, 5, sTmp, 2048, sDst, 2048, 3, KVB)
    if C.stage != 1: a(f"s_waitcnt vmcnt(3)")
    a(f"s_branch {l1}")
    a.label(l0)
    a(f"""
    s_setprio 1
    v_add_u32 v10, s{sG}, v0
    v_and_b32 v10, 7, v10
    v_bfe_u32 v11, v0, 3, 1
    v_mul_u32_u24 v11, 19, v11
    s_mul_i32 s{sTmp}, s{sR}, 20
    v_add_u32 v11, s{sTmp}, v11
    v_lshrrev_b32 v11, 7, v11
    v_lshl_add_u32 v10, v10, 5, v11
    s_and_b32 s{sTmp}, s{sQP}, 1
    s_lshl_b32 s{sTmp}, s{sTmp}, 4
    s_lshr_b32 s{sC}, s{sQP}, 1
    s_mul_i32 s{sC}, s{sC}, 5
    s_add_u32 s{sTmp}, s{sTmp}, s{sC}
    s_add_u32 s{sTmp}, s{sTmp}, 5
    v_add_u32 v10, s{sTmp}, v10
    v_lshlrev_b32 v12, 7, v10
    v_lshrrev_b32 v11, 4, v0
    v_lshl_add_u32 v12, v11, 2, v12
    s_and_b32 s{sWs}, s{sR}, 7
    s_mul_i32 s{sWs}, s{sWs}, 102400
    s_mul_i32 s{sWd}, s{sW}, 5120
    s_add_u32 s{sWs}, s{sWs}, s{sWd}
    s_add_u32 s{sWs}, s{sWs}, {WS_WTO}
    s_add_u32 s{sGO}, s{sLO}, {L_FG}
    s_add_u32 s{sGW}, s{sEP}, 1
    """)
    def cpf(lo, hi):
        l = a.uid("cpf"); pc = a.uid("pc")
        a(f"s_or_b32 s{sC}, s{sL}, s{sW}\ns_cmp_lg_u32 s{sC}, 0\ns_cbranch_scc1 {l}\ns_getpc_b64 s[{t+12}:{t+13}]")
        a.label(pc)
        a(f"""
        s_sub_u32 s{t+12}, s{t+12}, {pc}-{NAME}_kernel
        s_subb_u32 s{t+13}, s{t+13}, 0
        s_lshl_b32 s{sC}, s{sR}, 11
        s_add_u32 s{sC}, s{sC}, {lo}-{NAME}_kernel
        v_add_u32 v{PV+2}, s{sC}, v13
        v_min_u32 v{PV+2}, {hi}-{NAME}_kernel, v{PV+2}
        s_mov_b64 exec, 0xffff
        global_load_dword v{DUM}, v{PV+2}, s[{t+12}:{t+13}]
        s_mov_b64 exec, -1
        """)
        a.label(l)
    if fast and C.cpf: cpf("L_fast", "L_fast_post")
    a.label(l1)
    GF = Gate(a, 12, PV, fold=True, sleep=2)
    a(f"""
    s_mul_i32 s{sC}, s{sQP}, 2560
    s_add_u32 s{sC}, s{sC}, {QAREA}
    v_add_u32 v10, s{sC}, v5
    v_add_u32 v11, s{sC}, v6
    s_barrier
    ds_read_b128 v[{QA}:{QA+3}], v10
    ds_read_b128 v[{QB}:{QB+3}], v10 offset:1280
    s_mov_b32 exec_hi, 0
    ds_read_b64 v[{QA+4}:{QA+5}], v11 offset:1024
    ds_read_b64 v[{QB+4}:{QB+5}], v11 offset:{1280+1024}
    s_mov_b32 exec_hi, -1
    """)
    stamp(a, 6)
    l1 = a.uid("att_ap")
    a(f"s_cmp_lg_u32 s{sKH}, 0\ns_cbranch_scc1 {l1}")
    GF.load()
    a.label(l1)
    base = [0]
    def rdK(st, c, kt):
        off = c * CH + kt * 1280 - base[0]
        assert 0 <= off and off + 1024 < 65536
        b = KF + 8*st
        if C.c0: return [f"s_mov_b64 exec, s[{t+16}:{t+17}]", f"ds_read_b64 v[{b+4}:{b+5}], v{vK8} offset:{off+1024}", "s_mov_b64 exec, -1", f"ds_read_b128 v[{b}:{b+3}], v{vK} offset:{off}"]
        return [f"ds_read_b128 v[{b}:{b+3}], v{vK} offset:{off}", f"ds_read_b64 v[{b+4}:{b+5}], v{vK8} offset:{off+1024}"]
    def rdV(st, c, kt):
        off = c * CH + 5120 + kt * 1280 - base[0]
        assert 0 <= off and off + 640 < 65536
        b = VF + 8*st
        return [f"s_mov_b64 exec, s[{sEX}:{sEX+1}]", f"ds_read_b128 v[{b}:{b+3}], v{vV} offset:{off}",
                f"ds_read_b128 v[{b+4}:{b+7}], v{vV} offset:{off+640}", f"s_mov_b64 exec, -1"]
    def qk(x, st, c=None):
        b = KF + 8*st; q = (QA, QB)[x]; sd = SS + 16*x
        cc = v(NM + 16*x, 16) if (c is None and not C.c0) else '0'
        return [f"v_mfma_f32_32x32x16_bf16 {v(sd,16)}, {v(b,4)}, {v(q,4)}, {cc}",
                f"v_mfma_f32_32x32x8_bf16 {v(sd,16)}, {v(b+4,2)}, {v(q+4,2)}, {v(sd,16)}"]
    def pv(x, st):
        b = VF + 8*st; p = PP + 8*x; o = OO + 16*x
        return [f"v_mfma_f32_32x32x16_bf16 {v(o,16)}, {v(b,4)}, {v(p,4)}, {v(o,16)}",
                f"v_mfma_f32_32x32x16_bf16 {v(o,16)}, {v(b+4,4)}, {v(p+4,4)}, {v(o,16)}"]
    def sm(x):
        sd = SS + 16*x; p = PP + 8*x; r = []
        for i in range(8):
            r.append(f"v_exp_f32 v{sd+2*i}, v{sd+2*i}")
            r.append(f"v_exp_f32 v{sd+2*i+1}, v{sd+2*i+1}")
            if i > 0: r.append(f"v_cvt_pk_bf16_f32 v{p+i-1}, v{sd+2*i-2}, v{sd+2*i-1}")
        r.append(f"v_cvt_pk_bf16_f32 v{p+7}, v{sd+14}, v{sd+15}")
        return r
    def setm():
        for x in range(2): a(f"v_mov_b32 v{10+x}, v{8+x}")
        a("s_nop 0")
        for x in range(2): a(f"v_permlane32_swap_b32 v{8+x}, v{10+x}")
        a("s_nop 0")
        for x in range(2): a(f"v_max_f32 v{8+x}, v{8+x}, v{10+x}")
        if C.c0:
            a("s_mov_b32 exec_lo, 0")
            for x in range(2):
                q = (QA, QB)[x] + 4; r = NM + 4*x
                a(f"""
                v_sub_f32 v{r}, 0, v{8+x}
                v_and_b32 v{r+1}, 0xffff0000, v{r}
                v_sub_f32 v{r+2}, v{r}, v{r+1}
                v_and_b32 v{r+3}, 0xffff0000, v{r+2}
                v_sub_f32 v{r+2}, v{r+2}, v{r+3}
                v_lshrrev_b32 v{r+1}, 16, v{r+1}
                v_or_b32 v{q}, v{r+1}, v{r+3}
                v_lshrrev_b32 v{q+1}, 16, v{r+2}
                """)
            a("s_mov_b32 exec_lo, -1")
            return
        for x in range(2):
            a(f"v_sub_f32 v{NM+16*x}, 0, v{8+x}\nv_sub_f32 v{NM+16*x+1}, 0, v{8+x}")
            for i in range(2, 16, 2): a(f"v_mov_b64 v[{NM+16*x+i}:{NM+16*x+i+1}], v[{NM+16*x}:{NM+16*x+1}]")
    for x in rdK(0, 0, 0): a(x)
    a("s_waitcnt lgkmcnt(0)")
    m = qk(0, 0, "0") + qk(1, 0, "0")
    for i in (0, 1, 2, 3): a(m[i])
    a.nop(10)
    for x in range(2):
        sd = SS + 16*x
        a(f"v_max3_f32 v{8+x}, v{sd}, v{sd+1}, v{sd+2}")
        for i in range(3, 15, 2):
            a(f"v_max3_f32 v{8+x}, v{8+x}, v{sd+i}, v{sd+i+1}")
        a(f"v_max_f32 v{8+x}, v{8+x}, v{sd+15}")
    setm()
    for i in range(16): a(f"v_sub_f32 v{SS+i}, v{SS+i}, v8")
    l1 = a.uid("att_w0"); l2 = a.uid("att_w1")
    sDone = t + 15
    a(f"s_cmp_eq_u32 s{sKH}, 0\ns_cbranch_scc1 {l1}\ns_waitcnt vmcnt(0)\ns_barrier\ns_branch {l2}")
    a.label(l1)
    a("s_barrier")
    GF.upd()
    a(f"s_and_b32 s{sDone}, s{sNR}, 0x02020202\ns_cbranch_scc1 {l2}")
    GF.ok = 0x02020202; kv_issue(1); GF.ok = 0
    a.label(l2)
    stamp(a, 7)
    def l0only(fn):
        l = a.uid("l0")
        a(f"s_cmp_lg_u32 s{sL}, 0\ns_cbranch_scc1 {l}")
        fn(); a.label(l)
    def l2pf(i0, n):
        for i in range(i0, min(i0 + n, (C.l2pf + 3) // 4)):
            l = a.uid("pfs")
            a(f"""
            s_cmp_ge_u32 s{sW}, {C.l2pf - 4*i}
            s_cbranch_scc1 {l}
            s_lshr_b32 s{sPF}, s{sR}, 4
            s_mul_i32 s{sPF}, s{sPF}, {15 if C.rot_gu else 1}
            s_mul_i32 s{sC}, s{sW}, {1 if C.rot_gu else 2}
            s_add_u32 s{sPF}, s{sPF}, s{sC}
            s_add_u32 s{sPF}, s{sPF}, {4*i if C.rot_gu else 8*i}
            s_lshl_b32 s{sPF}, s{sPF}, 13
            s_and_b32 s{sC}, s{sR}, 15
            s_mul_i32 s{sC}, s{sC}, 245760
            s_add_u32 s{sPF}, s{sPF}, s{sC}
            s_add_u32 s{sPF}, s{sPF}, {WS_WTG}
            buffer_load_dword v{DUM}, v13, {WSR}, s{sPF} offen
            """)
            a.label(l)
    def wwo(c): lin_dma(a, 5, sWs, c*20480, sWd, c*20480, 5, 'nt' if C.nt_wo else '')
    def fp():
        a(f"""
        s_lshl_b32 s{sC}, s{sWG}, 5
        s_add_u32 s{sC}, s{sC}, s{sW}
        s_lshl_b32 s{sC}, s{sC}, 2
        s_add_u32 s{sC}, s{sC}, {L_FG + 16}
        v_mov_b32 v10, 0
        v_mov_b32 v11, s{sEP}
        s_mov_b64 exec, 1
        buffer_store_dword v11, v10, {WSR}, s{sC} offen sc1
        s_mov_b64 exec, -1
        """)
    def cs1():
        l = a.uid("cs")
        a(f"s_cmp_lg_u32 s{sW}, 3\ns_cbranch_scc1 {l}\ns_mov_b32 exec_hi, 0xffff")
        a(f"s_and_b32 s{sC}, s{sR}, 15\ns_mul_i32 s{sC}, s{sC}, 768\ns_add_u32 s{sC}, s{sC}, {WS_CSP}")
        for i in range(10):
            a(f"buffer_load_dwordx4 v[{PV+4*i}:{PV+3+4*i}], v5, {WSR}, s{sC} offen\ns_add_u32 s{sC}, s{sC}, 12288")
        a("s_mov_b32 exec_hi, -1")
        a.label(l)
    def cs2():
        l = a.uid("cs")
        a(f"s_cmp_lg_u32 s{sW}, 3\ns_cbranch_scc1 {l}\ns_mov_b32 exec_hi, 0xffff")
        for i in range(1, 10):
            a(f"v_pk_add_f32 v[{PV}:{PV+1}], v[{PV}:{PV+1}], v[{PV+4*i}:{PV+1+4*i}]\nv_pk_add_f32 v[{PV+2}:{PV+3}], v[{PV+2}:{PV+3}], v[{PV+2+4*i}:{PV+3+4*i}]")
        a(f"s_mul_i32 s{sC}, s{sWG}, 768\ns_add_u32 s{sC}, s{sC}, {WS_CSG}")
        a(f"buffer_store_dwordx4 v[{PV}:{PV+3}], v5, {WSR}, s{sC} offen\ns_mov_b32 exec_hi, -1")
        a.label(l)
    def fpw():
        a(f"s_lshl_b32 s{sC}, s{sW}, 13\ns_add_u32 s{sC}, s{sC}, {L_FG + 16}")
        poll(a, 13, PV, f"s{sC}", f"s{sEP}", sleep=2, wide=True)
    def wow():
        a(f"v_and_b32 v{PV+1}, 15, v0\nv_lshlrev_b32 v{PV+1}, 11, v{PV+1}\ns_mov_b32 s{sC}, {L_FG + 15*128 + 36}")
        poll(a, PV + 1, PV, f"s{sC}", f"s{sEP}", sleep=2)
    def l1only(fn):
        l = a.uid("l1")
        a(f"s_cmp_eq_u32 s{sL}, 0\ns_cbranch_scc1 {l}")
        fn(); a.label(l)
    def hook(j):
        if j == 1:
            kv_issue(2); kv_issue(3); a("s_waitcnt vmcnt(10)")
        GF.ok &= 0x0f0f0f0f
        W = lambda n_: a(f"s_waitcnt vmcnt({n_})")
        if j == 2: l0only(lambda: (W(0), prep(a, 0))); l1only(lambda: (W(5), kv_issue(4)))
        if j == 3:
            l0only(lambda: (kv_issue(4), kv_issue(5))); GF.ok &= 0x0f0f0f0f
            l1only(lambda: (W(5), kv_issue(5), kv_issue(6)))
        if j == 4: l0only(lambda: (W(5), prep(a, 1))); l1only(lambda: (W(10), kv_issue(7)))
        if j == 5: l0only(lambda: (wow(), fp(), kv_issue(6), kv_issue(7))); l1only(lambda: (W(10), wwo(0), wwo(1), l2pf(0, 1)))
        if j == 6:
            l0only(lambda: (W(0), wwo(0), wwo(1))); l1only(lambda: W(10))
            wwo(2); wwo(3)
            if fast and C.cpf: cpf("L_fast_tail", "L_fast_end")
            if fast:
                a(f"""
                s_lshl_b32 s{sPF}, s{sWG}, 1
                s_and_b32 s{sC}, s{sW}, 1
                s_add_u32 s{sPF}, s{sPF}, s{sC}
                s_mul_i32 s{sPF}, s{sPF}, 5120
                s_add_u32 s{sC}, s{sLO}, {L_O}
                s_bitcmp1_b32 s{sW}, 1
                s_cselect_b32 s{sC}, {L_X1}, s{sC}
                s_add_u32 s{sPF}, s{sPF}, s{sC}
                s_mov_b32 exec_hi, 0xff
                buffer_load_dword v{DUM}, v13, {WSR}, s{sPF} offen
                s_lshl_b32 s{sTmp}, s{sWG}, 9
                s_add_u32 s{sTmp}, s{sTmp}, s{sLO}
                s_add_u32 s{sTmp}, s{sTmp}, {L_ST1}
                s_mov_b64 exec, 15
                buffer_load_dword v{DUM}, v13, {WSR}, s{sTmp} offen
                s_mov_b64 exec, -1
                """)
            l1only(lambda: l2pf(1, 1))
        if j == 7:
            l0only(fpw)
            wwo(4)
            if fast and C.htouch == 0:
                a(f"""
                s_lshl_b32 s{sPF}, s{sWG}, 2
                s_add_u32 s{sPF}, s{sPF}, s{sQP}
                s_mul_i32 s{sPF}, s{sPF}, 6144
                s_add_u32 s{sPF}, s{sPF}, s{sLO}
                s_add_u32 s{sPF}, s{sPF}, {L_H}
                s_mov_b32 exec_hi, 0xffff
                buffer_load_dword v{DUM}, v13, {WSR}, s{sPF} offen
                s_mov_b32 exec_hi, -1
                """)
            l1only(lambda: l2pf(2, 2))
    def xreads():
        r = [f"ds_read_b32 v31, v{XF}"]
        for x in range(2): r.append(f"ds_read_b64 v[{PR+12+16*x}:{PR+13+16*x}], v{vX2} offset:{3584*x+3072}")
        for x in range(2):
            for i in range(3): r.append(f"ds_read_b128 v[{PR+16*x+4*i}:{PR+16*x+4*i+3}], v{vX1} offset:{3584*x+1024*i}")
        return r
    outl = []
    for c in range(8):
        for kt in range(4):
            st = kt & 1
            last = c == 7 and kt == 3
            if c == 0 and kt == 1:
                hk = a.uid("att_hk")
                a(f"s_cmp_eq_u32 s{sKH}, 0\ns_cbranch_scc1 {hk}"); a.label(hk + "r")
                def h0():
                    l = a.uid("h0")
                    a(f"s_cmp_eq_u32 s{sDone}, 0\ns_cbranch_scc1 {l}")
                    kv_issue(1)
                    a.label(l)
                outl.append((hk, h0))
            j = c + 1 if (kt == 3 and c < 6) else (7 if (c == 7 and kt == 0) else None)
            if j:
                hk = a.uid("att_hk")
                dstamp(a, 6, 3*j)
                a(f"s_cmp_eq_u32 s{sKH}, 0\ns_cbranch_scc1 {hk}")
                if C.flip and j < 7: a("s_setprio 2")
                a.label(hk + "r")
                dstamp(a, 6, 3*j+1)
                a("s_barrier")
                dstamp(a, 6, 3*j+2)
                outl.append((hk, (lambda jj: (lambda: hook(jj)))(j)))
            if C.flip and 1 <= c < 7 and kt == C.flip - 1: a("s_setprio 1")
            val = sm(0)
            mf = qk(1, st) + pv(1, st ^ 1)
            ex = rdV(st, c, kt)
            if kt == 3 and c in (2, 5):
                base[0] += 3 * CH
                ex += [f"v_add_u32 v{r}, {3*CH}, v{r}" for r in (vK, vK8, vV)]
            if not last: ex += rdK(st ^ 1, c + (kt + 1) // 4, (kt + 1) % 4)
            cut = 4
            if C.c0 and len(ex) == 8: del ex[3]; cut = 6
            a(mf[0]); [a(x) for x in ex[:cut]]; [a(x) for x in val[0:6]]
            a(mf[2]); [a(x) for x in ex[cut:]]; [a(x) for x in val[6:12]]
            a(mf[1]); [a(x) for x in val[12:18]]
            a(mf[3]); [a(x) for x in val[18:]]
            val = sm(1)
            a("s_waitcnt lgkmcnt(0)")
            if not last:
                mf = qk(0, st ^ 1) + pv(0, st)
                a(mf[0]); [a(x) for x in val[0:6]]
                a(mf[2]); [a(x) for x in val[6:12]]
                a(mf[1]); [a(x) for x in val[12:18]]
                a(mf[3]); [a(x) for x in val[18:]]
            else:
                mf = pv(0, st) + pv(1, st)
                a(mf[0]); [a(x) for x in val[0:6]]
                a(mf[1]); [a(x) for x in xreads()]; [a(x) for x in val[6:16]]
                a(mf[2]); [a(x) for x in val[16:]]
                a("s_nop 1"); a(mf[3])
    if fast: a.label("L_fast_tail")
    stamp(a, 8)
    fb = a.uid("att_fb"); comb = a.uid("att_comb"); done = a.uid("att_done"); yng = a.uid("att_y")
    def check():
        a(f"v_mul_f32 v10, {f32(2.0**63)}, v{OO+12}\nv_mul_f32 v11, {f32(2.0**63)}, v{OO+16+12}")
        a(f"v_add_f32 v10, v10, v10\nv_add_f32 v11, v11, v11\nv_mul_f32 v10, 0, v10\nv_mul_f32 v11, 0, v11")
        for i in range(12): a(f"v_fmac_f32 v10, 0, v{OO+i}\nv_fmac_f32 v11, 0, v{OO+16+i}")
        a(f"v_cmp_u_f32 vcc, v10, v11\ns_cbranch_vccnz {fb}")
    a(f"s_cmp_eq_u32 s{sKH}, 0\ns_cbranch_scc1 {yng}")
    def older():
        a.label(yng)
        a.nop(10)
        check()
        a.label(yng + "c")
        a(f"v_mov_b32 v{OO+13}, v8\nv_mov_b32 v{OO+16+13}, v9\nv_mov_b32 v10, s{sEP}")
        for x in range(2):
            for i in range(3):
                a(f"ds_write_b128 v{vX1}, v[{OO+16*x+4*i}:{OO+16*x+4*i+3}] offset:{3584*x+1024*i}")
            a(f"ds_write_b64 v{vX2}, v[{OO+16*x+12}:{OO+16*x+13}] offset:{3584*x+3072}")
        a(f"ds_write_b32 v{XF}, v10")
        l0only(lambda: (cs1(), l2pf(0, C.l2pf0)))
        a("s_waitcnt vmcnt(0) lgkmcnt(0)")
        l0only(cs2)
        a(f"s_setprio 0")
        stamp(a, 9)
    pl = a.uid("att_x")
    a(f"s_waitcnt lgkmcnt(0)\nv_cmp_ne_u32 vcc, s{sEP}, v31\ns_cbranch_vccnz {pl}")
    a.label(pl + "k")
    def respin():
        a.label(comb)
        a(f"s_mov_b32 s{sFB}, 1\ns_cmp_eq_u32 s{sKH}, 0\ns_cbranch_scc1 {yng}c")
        a.label(pl)
        a(f"s_mov_b32 s{t+12}, 0")
        a.label(pl + "l")
        for x in xreads(): a(x)
        a(f"""
        s_waitcnt lgkmcnt(0)
        v_cmp_ne_u32 vcc, s{sEP}, v31
        s_cbranch_vccz {pl}k
        s_add_u32 s{t+12}, s{t+12}, 1
        s_cmp_lt_u32 s{t+12}, {4*SPIN}
        s_cbranch_scc1 {pl}l
        s_branch {pl}k
        """)
    FF = 64
    for x in range(2):
        f = FF + 4*x
        a(f"v_max_f32 v{f+2}, v{8+x}, v{PR+13+16*x}\nv_sub_f32 v{f}, v{8+x}, v{f+2}\nv_sub_f32 v{f+1}, v{PR+13+16*x}, v{f+2}")
    for x in range(2):
        f = FF + 4*x
        a(f"v_exp_f32 v{f}, v{f}\nv_exp_f32 v{f+1}, v{f+1}")
    for x in range(2):
        f = FF + 4*x; o = OO + 16*x; pk = 72 + 6*x
        a(f"v_mul_f32 v{f+2}, v{f}, v{o+12}\nv_fmac_f32 v{f+2}, v{f+1}, v{PR+12+16*x}\nv_rcp_f32 v{f+2}, v{f+2}\ns_nop 0")
        a(f"v_mul_f32 v{f}, v{f}, v{f+2}\nv_mul_f32 v{f+2}, v{f+1}, v{f+2}")
        for i in range(0, 12, 2):
            a(f"v_pk_mul_f32 v[{o+i}:{o+i+1}], v[{o+i}:{o+i+1}], v[{f}:{f+1}] op_sel_hi:[1,0]")
        for i in range(0, 12, 2):
            a(f"v_pk_fma_f32 v[{o+i}:{o+i+1}], v[{PR+16*x+i}:{PR+1+16*x+i}], v[{f+2}:{f+3}], v[{o+i}:{o+i+1}] op_sel_hi:[1,0,1]")
        for i in range(6):
            a(f"v_cvt_pk_bf16_f32 v{pk+i}, v{o+2*i}, v{o+2*i+1}")
        a(f"""
        buffer_store_dwordx2 v[{pk}:{pk+1}], v{vO}, {WSR}, s{sO+x} offen {SB}
        buffer_store_dwordx2 v[{pk+2}:{pk+3}], v{vO}, {WSR}, s{sO+x} offen offset:512 {SB}
        s_mov_b32 exec_hi, 0
        buffer_store_dwordx2 v[{pk+4}:{pk+5}], v{vO}, {WSR}, s{sO+x} offen offset:1024 {SB}
        s_mov_b32 exec_hi, -1
        """)
    nck = a.uid("att_nc")
    a(f"s_cmp_lg_u32 s{sFB}, 0\ns_cbranch_scc1 {nck}")
    check()
    a.label(nck)
    flag_setup(a, 2)
    a("s_setprio 0\ns_waitcnt vmcnt(0)")
    flag_store(a, SB)
    a("s_barrier")
    stamp(a, 9)
    a(f"s_branch {ld_label}")
    for hk, fn in outl:
        a.label(hk); fn(); a(f"s_branch {hk}r")
    respin()
    older()
    def fallback():
        a.label(fb)
        sKb, sVb, sI = t+12, t+13, t+14
        def addr():
            a(f"""
            s_lshr_b32 s{sKb}, s{sI}, 2
            s_lshl_b32 s{sKb}, s{sKb}, 1
            s_add_u32 s{sKb}, s{sKb}, s{sKH}
            s_lshl_b32 s{sKb}, s{sKb}, 2
            s_and_b32 s{sVb}, s{sI}, 3
            s_add_u32 s{sKb}, s{sKb}, s{sVb}
            s_mul_i32 s{sKb}, s{sKb}, 1280
            s_add_u32 s{sKb}, s{sKb}, s{sHB}
            s_add_u32 s{sVb}, s{sKb}, {L_V}
            s_add_u32 s{sKb}, s{sKb}, {L_K}
            buffer_load_dwordx4 v[{KF}:{KF+3}], v5, {WSR}, s{sKb} offen sc1
            s_mov_b32 exec_hi, {0 if C.c0 else -1}
            buffer_load_dwordx2 v[{KF+4}:{KF+5}], v6, {WSR}, s{sKb} offen offset:1024 sc1
            s_mov_b32 exec_hi, -1
            """)
        l1 = a.uid("att_fb1"); l2 = a.uid("att_fb2")
        a(f"s_mov_b32 s{sI}, 0\nv_mov_b32 v8, 0xff800000\nv_mov_b32 v9, 0xff800000")
        a(f"s_mov_b32 exec_lo, 0\nv_mov_b64 v[{QA+4}:{QA+5}], 0\nv_mov_b64 v[{QB+4}:{QB+5}], 0\ns_mov_b32 exec_lo, -1")
        a.label(l1)
        addr()
        a("s_waitcnt vmcnt(0)")
        for x in range(2):
            for m in qk(x, 0, "0"): a(m)
        a.nop(12)
        for x in range(2):
            sd = SS + 16*x
            for i in range(0, 16, 2): a(f"v_max3_f32 v{8+x}, v{8+x}, v{sd+i}, v{sd+i+1}")
        a(f"s_add_u32 s{sI}, s{sI}, 1\ns_cmp_lt_u32 s{sI}, 32\ns_cbranch_scc1 {l1}")
        setm()
        for i in range(32): a(f"v_mov_b32 v{OO+i}, 0")
        a(f"s_mov_b32 s{sI}, 0")
        a.label(l2)
        addr()
        a(f"""
        s_mov_b64 exec, s[{sEX}:{sEX+1}]
        buffer_load_dwordx4 v[{VF}:{VF+3}], v7, {WSR}, s{sVb} offen sc1
        buffer_load_dwordx4 v[{VF+4}:{VF+7}], v7, {WSR}, s{sVb} offen offset:640 sc1
        s_mov_b64 exec, -1
        s_waitcnt vmcnt(0)
        """)
        for x in range(2):
            for m in qk(x, 0): a(m)
        a.nop(12)
        for x in range(2):
            for i in sm(x): a(i)
        a("s_nop 1")
        for x in range(2):
            for m in pv(x, 0): a(m)
        a(f"s_add_u32 s{sI}, s{sI}, 1\ns_cmp_lt_u32 s{sI}, 32\ns_cbranch_scc1 {l2}")
        a.nop(12)
        a(f"s_branch {comb}")
    return fallback

def xoff(SB, which):
    if SB == "": return (False, L_X1)
    return (True, L_X1) if which == 1 else (False, L_X2)
def add_x(a, dst, src, SB, which):
    lo, c = xoff(SB, which)
    a(f"s_add_u32 s{dst}, s{src}, {c}")
    if lo: a(f"s_add_u32 s{dst}, s{dst}, s{sLO}")

def proj_compute(a, down, SB, end_label):
    fast = SB == ""
    t = T
    K = F if down else D
    NCH = K // 128
    sRT, sCT = t, t+1
    st0 = 13 if down else 10
    sF, sRM, sST, sA, sA1, sThr, sSel = t+4, t+5, t+12, t+2, t+3, t+9, t+10
    NWS = 3 if down else C.wo_sets
    ACC = 14; RX = 34; AF = 54; WF = 134 if down else 54 + 16*C.wo_nas; RES = (220 if down else 54); VST = 200
    assert WF + 20*NWS <= 254
    vF, vF2, vR, vR2 = 10, 11, 12, 13
    a(f"""
    s_lshr_b32 s{sRT}, s{sWG}, 3
    s_and_b32 s{sCT}, s{sR}, 7
    v_and_b32 v3, 15, v0
    v_lshrrev_b32 v7, 4, v0
    s_lshl_b32 s{t+6}, s{sRT}, 1
    s_lshr_b32 s{t+7}, s{sW}, 1
    s_add_u32 s{t+6}, s{t+6}, s{t+7}
    s_and_b32 s{t+8}, s{sW}, 1
    s_lshl_b32 s{t+8}, s{t+8}, 8
    s_mul_i32 s{sA}, s{t+6}, {K*64}
    s_add_u32 s{sA}, s{sA}, s{t+8}
    s_add_u32 s{sA}, s{sA}, s{sLO}
    s_add_u32 s{sA}, s{sA}, {L_H if down else L_O}
    s_mul_i32 s{sF}, s{t+6}, 40960
    s_mul_i32 s{t+7}, s{sCT}, 5120
    s_add_u32 s{sF}, s{sF}, s{t+7}
    s_add_u32 s{sF}, s{sF}, s{t+8}
    s_lshl_b32 s{sST}, s{sW}, 8
    s_lshl_b32 s{t+7}, s{sRT}, 12
    s_add_u32 s{sST}, s{sST}, s{t+7}
    s_add_u32 s{sST}, s{sST}, s{sLO}
    s_lshl_b32 s{sRM}, s{sRT}, 2
    s_add_u32 s{sRM}, s{sRM}, s{sW}
    s_mul_i32 s{sRM}, s{sRM}, {16*1280}
    s_mul_i32 s{t+7}, s{sCT}, 160
    s_add_u32 s{sRM}, s{sRM}, s{t+7}
    v_lshlrev_b32 v1, 4, v3
    v_lshl_add_u32 v{vF}, v7, 9, v1
    v_lshrrev_b32 v2, 5, v0
    v_lshl_add_u32 v1, v2, 9, v1
    v_and_b32 v2, 1, v7
    v_lshl_add_u32 v{vF2}, v2, 3, v1
    v_add_u32 v{vF2}, 4096, v{vF2}
    v_mul_u32_u24 v1, 1280, v3
    v_lshl_add_u32 v{vR}, v7, 4, v1
    v_lshl_add_u32 v{vR2}, v7, 3, v1
    v_add_u32 v9, 4096, v{vF}
    """)
    if C.x_a == 1 and not down: a(f"s_lshr_b32 s{sA}, s{sW}, 1\ns_mul_i32 s{sA}, s{sA}, 40960\ns_add_u32 s{sA}, s{sA}, s{t+8}\ns_add_u32 s{sA}, s{sA}, {WS_WTG}")
    SA = Src(sA, sA1, sThr, 8192)
    if down:
        a(f"s_and_b32 s{t+7}, s{sRT}, 3\ns_mul_i32 s{t+7}, s{t+7}, {C.rot_dn}\ns_sub_u32 s{sThr}, 12, s{t+7}")
        SA.setup(a, t+7, 12, t+8)
    def io(store, rowmajor, rsrc, soff, reg, bits):
        op = "store" if store else "load"
        v16, v8 = (vR, vR2) if rowmajor else (vF, vF2)
        o1, o2 = (64, 128) if rowmajor else (2048, 0)
        return [f"buffer_{op}_dwordx4 v[{reg}:{reg+3}], v{v16}, {rsrc}, {soff} offen {bits}",
                f"buffer_{op}_dwordx4 v[{reg+4}:{reg+7}], v{v16}, {rsrc}, {soff} offen offset:{o1} {bits}",
                f"buffer_{op}_dwordx2 v[{reg+8}:{reg+9}], v{v8}, {rsrc}, {soff} offen offset:{o2} {bits}"]
    if down:
        add_x(a, t+7, sF, SB, 1)
        for x in io(False, False, WSR, f"s{t+7}", RES, "sc1"): a(x)
        a(f"s_add_u32 s{t+7}, s{sST}, {L_ST1}\nv_lshlrev_b32 v1, 4, v3")
        for i in range(4):
            a(f"buffer_load_dwordx4 v[{VST+4*i}:{VST+4*i+3}], v1, {WSR}, s{t+7} offen offset:{1024*i} sc1")
        if fast:
            a(f"s_lshl_b32 s{t+8}, s{sWG}, 9\ns_add_u32 s{t+8}, s{t+8}, {L_ST2}\nv_lshlrev_b32 v1, 7, v0\ns_mov_b64 exec, 15")
            a(f"buffer_load_dword v8, v1, {WSR}, s{t+8} offen\ns_mov_b64 exec, -1")
    else:
        l1 = a.uid("prj_r1"); l2 = a.uid("prj_r2")
        a(f"s_cmp_lg_u32 s{sL}, 0\ns_cbranch_scc1 {l1}")
        for x in io(False, True, R(R_X), f"s{sRM}", RES, ""): a(x)
        a(f"s_branch {l2}")
        a.label(l1)
        add_x(a, t+7, sF, SB, 2)
        for x in io(False, False, WSR, f"s{t+7}", RES, "sc1"): a(x)
        a.label(l2)
    a(f"v_lshlrev_b32 v4, 4, v0\nv_add_u32 v5, 61440, v4\nv_add_u32 v6, 122880, v4\ns_mov_b32 s{t+8}, 0xffff0000")
    def wadr(c):
        o = dnW(c) if down else c * 20480
        return 4 + o // 61440, o % 61440
    def reads(c, u):
        b = WF + 20*((4*c + u) % NWS); r, o = wadr(c)
        return [f"ds_read_b128 v[{b+4*jn}:{b+4*jn+3}], v{r} offset:{o + 5120*u + 1024*jn}" for jn in range(5)]
    NAS = 5 if down else C.wo_nas
    def aload(c):
        r = []
        if down and C.rot_dn: r += [f"s_cmp_gt_u32 s{sThr}, {c}", f"s_cselect_b32 s{sSel}, s{sA}, s{sA1}", f"s_add_u32 s{sSel}, s{sSel}, {c*8192}"]
        else: r += [f"s_add_u32 s{sSel}, s{sA}, {c*8192}"]
        for u in range(4):
            d = AF + 16*(c % NAS) + 4*u
            r.append(f"buffer_load_dwordx4 v[{d}:{d+3}], v{vF if u < 2 else 9}, {WSR}, s{sSel} offen offset:{2048*(u & 1)} sc1")
        return r
    def mfmas(c, u, zero=False):
        b = WF + 20*((4*c + u) % NWS); x = AF + 16*(c % NAS) + 4*u
        return [f"v_mfma_f32_16x16x32_bf16 {v(ACC+4*jn,4)}, {v(b+4*jn,4)}, {v(x,4)}, {0 if zero else v(ACC+4*jn,4)}" for jn in range(5)]
    D_ = NWS - 1
    rd = lambda st_: reads(st_ // 4, st_ % 4) if st_ < 4*NCH else []
    if down: a(f"s_and_b32 s{t+7}, s{sRT}, 3\ns_mul_i32 s{t+7}, s{t+7}, {4 if C.rot_dn else 0}")
    G_ = gate_local(a, "down" if down else "wo", 4 if down else 2, 1, 2, t+7)
    def setup2():
        if not down: a("s_waitcnt vmcnt(0)")
        for i in range(10):
            a(f"v_lshlrev_b32 v{RX+2*i}, 16, v{RES+i}\nv_and_b32 v{RX+1+2*i}, s{t+8}, v{RES+i}")
        if down:
            row_stats(a, VST, VST + 2, VST + 3)
            a(f"v_mul_f32 v{VST+2}, v{VST+3}, v{VST+3}")
        if not down: a("s_barrier")
        for st_ in range(D_):
            for x in rd(st_): a(x)
    if down: G_.load(); G_.upd()
    setup2()
    def al(c):
        G_.need(span(128*c, 128*c + 127, 96, 2) if down else (span(128*c, 128*c + 127, 20, 1) if C.x_a != 3 else 0xffffffff))
        if c == 0: stamp(a, st0)
        for x in aload(c):
            if C.x_d == 1 and down and c >= 3 and x.startswith("buffer"): x = x.replace(WSR, R(R_WQ)).replace(f"s{sSel} offen", "0 offen").replace("sc1", "")
            a(x)
    NPRE = C.dn_a if down else C.wo_a
    N0 = C.dn_a0 if down else C.wo_a0
    assert NPRE < NAS or NCH <= NAS
    for c in range(N0): al(c)
    stamp(a, 21 if down else 5)
    nis = N0; pend = []; nld = 4*N0
    for c in range(NCH):
        for u in range(4):
            step = 4*c + u
            left = min(D_ - 1, 4*NCH - 1 - step)
            assert nld > step
            a(f"s_waitcnt vmcnt({nld - step - 1}) lgkmcnt({min(15, 5*left)})")
            if down and C.stamp and C.dbg == 8 and u in (0, 2): a(f"s_memtime s[10:11]\ns_waitcnt lgkmcnt(0)\nv_writelane_b32 v254, s10, {2*c + u//2}")
            if step == 4*NCH - 1 or (down and u == 2 and c + 1 < NCH): a("s_barrier")
            if not pend and nis < min(NCH, c + NPRE + 1):
                full = down and nis >= C.dn_full
                G_.need(0xffffffff if full else (span(128*nis, 128*nis + 127, 96, 2) if down else span(128*nis, 128*nis + 127, 20, 1)))
                ld = aload(nis); nis += 1
                for x in ld[:-4]: a(x)
                pend = ld[-4:]
            k = 2 if nld - step < 4*NPRE - 2 else 1
            mf = mfmas(c, u, step == 0); r_ = rd(step + D_)
            for i in range(5):
                a(mf[i])
                if r_: a(r_[i])
                if pend and i in ((4,) if k == 1 else (1, 4)): a(pend.pop(0)); nld += 1
    stamp(a, st0 + 1)
    add_x(a, t+7, sF, SB, 2 if down else 1)
    flag_setup(a, 5 if down else 3)
    for i in range(0, 20, 2):
        c = ACC + i
        if down: a(f"v_pk_fma_f32 v[{c}:{c+1}], v[{c}:{c+1}], v[{VST+2}:{VST+3}], v[{RX+i}:{RX+i+1}] op_sel_hi:[1,0,1]")
        else: a(f"v_pk_add_f32 v[{c}:{c+1}], v[{c}:{c+1}], v[{RX+i}:{RX+i+1}]")
        a(f"v_cvt_pk_bf16_f32 v{60+i//2}, v{c}, v{c+1}")
    if down:
        l1 = a.uid("prj_o1")
        a(f"s_cmp_eq_u32 s{sL}, 0\ns_cbranch_scc1 {l1}")
        srd(a, R_T, P_OUT, ACT)
        for x in io(True, True, R(R_T), f"s{sRM}", 60, ["", "sc1", "nt"][C.outb]): a(x)
        a(f"s_branch {end_label}")
        a.label(l1)
    for x in io(True, False, WSR, f"s{t+7}", 60, SB): a(x)
    a(f"v_pk_add_f32 v[72:73], v[{ACC}:{ACC+1}], v[{ACC+2}:{ACC+3}]\nv_pk_mul_f32 v[74:75], v[{ACC}:{ACC+1}], v[{ACC}:{ACC+1}]")
    a(f"v_pk_fma_f32 v[74:75], v[{ACC+2}:{ACC+3}], v[{ACC+2}:{ACC+3}], v[74:75]")
    for i in range(4, 20, 2):
        a(f"v_pk_add_f32 v[72:73], v[72:73], v[{ACC+i}:{ACC+i+1}]\nv_pk_fma_f32 v[74:75], v[{ACC+i}:{ACC+i+1}], v[{ACC+i}:{ACC+i+1}], v[74:75]")
    a(f"""
    v_add_f32 v72, v72, v73
    v_add_f32 v73, v74, v75
    s_lshr_b32 s{t+7}, s{sCT}, 1
    s_lshl_b32 s{t+7}, s{t+7}, 10
    v_permlane32_swap_b32 v72, v73
    s_and_b32 s{t+8}, s{sCT}, 1
    s_lshl_b32 s{t+8}, s{t+8}, 3
    v_add_f32 v72, v72, v73
    v_mov_b32 v73, v72
    s_add_u32 s{t+7}, s{t+7}, s{t+8}
    s_add_u32 s{t+7}, s{t+7}, s{sST}
    v_permlane16_swap_b32 v72, v73
    s_add_u32 s{t+7}, s{t+7}, {L_ST2 if down else L_ST1}
    v_lshrrev_b32 v8, 5, v0
    v_lshlrev_b32 v8, 2, v8
    v_lshl_add_u32 v8, v3, 4, v8
    v_add_f32 v72, v72, v73
    buffer_store_dword v72, v8, {WSR}, s{t+7} offen {SB}
    s_waitcnt vmcnt(0)
    """)
    flag_store(a, SB)
    a("s_barrier")
    stamp(a, st0 + 2)

def gu_compute(a, SB):
    t = T
    sRT, sCT, sWM, sWN, sTB, sF0 = t, t+1, t+2, t+3, t+4, t+6
    FR = 16; ACC = 96; VCS = 192; VST = 216; MS = 232
    a(f"""
    s_lshr_b32 s{sRT}, s{sWG}, 4
    s_and_b32 s{sCT}, s{sR}, 15
    s_and_b32 s{sWM}, s{sW}, 1
    s_lshr_b32 s{sWN}, s{sW}, 1
    s_lshl_b32 s{sTB}, s{sRT}, 1
    s_add_u32 s{sTB}, s{sTB}, s{sWM}
    s_mul_i32 s{sF0}, s{sCT}, 96
    s_mul_i32 s{t+5}, s{sWN}, 48
    s_add_u32 s{sF0}, s{sF0}, s{t+5}
    s_mul_i32 s{t+5}, s{sWG}, 768
    s_mul_i32 s{t+7}, s{sWN}, 384
    s_add_u32 s{t+5}, s{t+5}, s{t+7}
    s_add_u32 s{t+5}, s{t+5}, {WS_CSG}
    v_lshrrev_b32 v12, 4, v0
    v_lshlrev_b32 v1, 4, v12
    """)
    for f in range(6):
        a(f"buffer_load_dwordx4 v[{VCS+4*f}:{VCS+4*f+3}], v1, {WSR}, s{t+5} offen offset:{64*f} sc1")
    a(f"""
    v_and_b32 v13, 15, v0
    v_lshlrev_b32 v3, 4, v13
    v_lshl_add_u32 v3, v12, 9, v3
    s_lshl_b32 s{t+5}, s{sWM}, 13
    v_add_u32 v3, s{t+5}, v3
    v_lshlrev_b32 v11, 4, v0
    s_mul_i32 s{t+5}, s{sWN}, 6144
    s_add_u32 s{t+5}, s{t+5}, {WB}
    v_add_u32 v4, s{t+5}, v11
    v_add_u32 v5, 49152, v4
    v_lshlrev_b32 v6, 2, v13
    s_mul_i32 s{t+11}, s{sTB}, {2*F*64}
    s_lshl_b32 s{t+7}, s{sF0}, 6
    s_add_u32 s{t+11}, s{t+11}, s{t+7}
    s_add_u32 s{t+11}, s{t+11}, s{sLO}
    s_add_u32 s{t+11}, s{t+11}, {L_H}
    s_add_u32 s{t+12}, s{t+11}, {F*64}
    """)
    flag_setup(a, 4)
    def reads(c, u):
        b = FR + 40*u; o = guW(c) - WB
        ra = [f"ds_read_b128 v[{b+4*tt}:{b+4*tt+3}], v3 offset:{(c % 4)*16384 + 4096*(tt >> 1) + 256*(tt & 1) + 2048*u}" for tt in range(4)]
        rw = [f"ds_read_b128 v[{b+16+4*f}:{b+19+4*f}], v{4 + o // 49152} offset:{o % 49152 + 12288*u + 1024*f}" for f in range(6)]
        return ra + rw
    def mfma(u, tl, z):
        b = FR + 40*u; c = ACC + 4*tl
        return f"v_mfma_f32_16x16x32_bf16 {v(c,4)}, {v(b+16+4*(tl>>2),4)}, {v(b+4*(tl&3),4)}, {0 if z else v(c,4)}"
    def epi(jn, pk):
        r = []
        g = ACC + 32*jn; u_ = g + 16
        for tp in range(2):
            c = g + 8*tp; d = u_ + 8*tp
            for i in range(8): r.append(f"v_max_f32 v{c+i}, 0, v{c+i}")
            if pk:
                for i in range(0, 8, 2): r.append(f"v_pk_mul_f32 v[{c+i}:{c+i+1}], v[{c+i}:{c+i+1}], v[{d+i}:{d+i+1}]")
            else:
                for i in range(8): r.append(f"v_mul_f32 v{c+i}, v{c+i}, v{d+i}")
            for i in range(4): r.append(f"v_cvt_pk_bf16_f32 v{c+i}, v{c+2*i}, v{c+2*i+1}")
            r += ["s_nop 0", f"v_permlane16_swap_b32 v{c}, v{c+2}", f"v_permlane16_swap_b32 v{c+1}, v{c+3}"]
            r.append(f"buffer_store_dwordx4 v[{c}:{c+3}], v11, {WSR}, s{t+11+tp} offen offset:{1024*jn} {SB}")
        return r
    a(f"s_lshl_b32 s{t+5}, s{sTB}, 12\ns_add_u32 s{t+5}, s{t+5}, s{sLO}\ns_add_u32 s{t+5}, s{t+5}, {L_ST1}")
    ins = {}
    for i in range(4): ins[36 + 48*C.gfull + 3*i] = [f"buffer_load_dwordx4 v[{VST+4*i}:{VST+4*i+3}], v11, {WSR}, s{t+5} offen offset:{1024*i} sc1"]
    ins[82 + 48*C.gfull] = ["s_waitcnt vmcnt(0)"] + [f"v_add_f32 v{VST}, v{VST}, v{VST+2*i}" for i in range(1, 8)] + \
         [f"v_mul_f32 v{MS}, {f32(-1.0/D)}, v{VST}", f"v_mul_f32 v{MS+1}, {f32(-1.0/D)}, v{VST}", "s_nop 0", f"v_permlane16_swap_b32 v{MS}, v{MS+1}",
          f"v_mov_b32 v{MS+2}, v{MS}", f"v_mov_b32 v{MS+3}, v{MS+1}", "s_nop 0", f"v_permlane32_swap_b32 v{MS}, v{MS+2}", f"v_permlane32_swap_b32 v{MS+1}, v{MS+3}"]
    fix = lambda tl: [f"v_fmac_f32 v{ACC+4*tl+i}, v{MS+(tl&3)}, v{VCS+4*(tl>>2)+i}" for i in range(4)]
    gemm16(a, 10, 24, reads, mfma, [tuple(range(8*j, 8*j+8)) for j in range(3)], ins, fix, 122 + 48*C.gfull, epi, 22)
    a("s_waitcnt vmcnt(0)")
    flag_store(a, SB)
    a("s_barrier")
    stamp(a, 23)

def loader_chain(a, SB, end_label, idle_label):
    t = T
    sLW, s4, s5, s6, aGU, aGU1, wGU, wGU1, wDN, wDN1, aQK, aQK1, wQK, wQK1, th10, th12, sTmp, sSel, thq = range(t, t + 19)
    sRot = sSel
    a(f"""
    s_sub_u32 s{sLW}, s{sW}, 4
    v_lshlrev_b32 v8, 4, v0
    s_mul_i32 s{s6}, s{sLW}, 6144
    s_and_b32 s{wGU}, s{sR}, 15
    s_mul_i32 s{wGU}, s{wGU}, 245760
    s_add_u32 s{wGU}, s{wGU}, s{s6}
    s_add_u32 s{wGU}, s{wGU}, {WS_WTG}
    s_lshr_b32 s{sRot}, s{sR}, 4
    s_mul_i32 s{sRot}, s{sRot}, {C.rot_gu}
    s_sub_u32 s{th10}, 10, s{sRot}
    """)
    S_aGU = Src(aGU, aGU1, th10, 4096); S_wGU = Src(wGU, wGU1, th10, 24576); S_wDN = Src(wDN, wDN1, th12, 20480)
    S_aQK = Src(aQK, aQK1, thq, 4096); S_wQK = Src(wQK, wQK1, thq, 64*3840)
    S_aGU.norot = S_wGU.norot = not C.rot_gu; S_wDN.norot = not C.rot_dn; S_aQK.norot = S_wQK.norot = not C.rot_qk
    S_wGU.setup(a, sRot, 10, sTmp)
    def rest():
        a(f"""
        s_lshl_b32 s{s4}, s{sLW}, 12
        s_mul_i32 s{s5}, s{sLW}, 5120
        s_lshr_b32 s{aQK}, s{sWG}, 4
        s_lshl_b32 s{aQK}, s{aQK}, 2
        s_add_u32 s{aQK}, s{aQK}, s{sLW}
        s_mul_i32 s{aQK}, s{aQK}, 40960
        """)
        add_x(a, aGU, aQK, SB, 1)
        add_x(a, aQK, aQK, SB, 2)
        a(f"s_and_b32 s{wDN}, s{sR}, 15")
        qkvW_setup(a, wQK, sLW, wDN, sTmp, 6)
        a(f"s_sub_u32 s{sRot}, 10, s{th10}")
        S_aGU.setup(a, sRot, 10, sTmp)
        a(f"s_lshr_b32 s{sRot}, s{sR}, 4\ns_mul_i32 s{sRot}, s{sRot}, {C.rot_qk}\ns_sub_u32 s{thq}, 10, s{sRot}")
        for S_ in (S_aQK, S_wQK): S_.setup(a, sRot, 10, sTmp)
        a(f"""
        s_and_b32 s{wDN}, s{sR}, 7
        s_mul_i32 s{wDN}, s{wDN}, 245760
        s_add_u32 s{wDN}, s{wDN}, s{s5}
        s_add_u32 s{wDN}, s{wDN}, {WS_WTD}
        s_lshr_b32 s{sRot}, s{sR}, 3
        s_mul_i32 s{sRot}, s{sRot}, {C.rot_dn}
        s_sub_u32 s{th12}, 12, s{sRot}
        """)
        S_wDN.setup(a, sRot, 12, sTmp)
    G_ = [None, None]
    def lin(S_, dst, dfn, bits):
        def f(c, i0, k):
            if bits == "sc1":
                G_[0].need(span(64*c, 64*c + 63, 80, 2) if C.gran else 0xffff)
                if G_[1] is not None: stamp(a, G_[1]); G_[1] = None
            if not S_.norot: S_.sel(a, c, sSel)
            lin_dma(a, 8, S_.sB if S_.norot else sSel, c*S_.stride + 1024*i0, dst, dfn(c) + 1024*i0, k, bits)
        return f
    def pf(kind, ep, st, rot):
        def f():
            a(f"s_lshr_b32 s{sTmp}, s{sR}, 4\ns_mul_i32 s{sTmp}, s{sTmp}, {4 if rot else 0}")
            G_[0] = gate_local(a, kind, ep, 1, 2, sTmp, sleep=C.psleep); G_[1] = st
        return f
    def emitWQ(c, i0, k):
        if not S_wQK.norot: S_wQK.sel(a, c, sSel)
        for i in range(i0, i0 + k):
            a(f"s_add_u32 m0, s{s4}, {qkW(c) + 1024*i}\ns_add_u32 s{sTmp}, s{wQK if S_wQK.norot else sSel}, {c*64*3840 + i*4*3840}")
            a(f"buffer_load_dwordx4 v6, {R(R_WQ)}, s{sTmp} offen {'nt' if C.nt_qk else ''} lds")
    rA = lambda c: (c % 4) * 16384
    full = lambda c: G_[0].need(0xffff) if c == 1 else None
    reg = lambda f, sz: (lambda c: (f(c), f(c) + sz))
    gu = Phase("gu", 10, 4, 6, lin(S_aGU, s4, rA, "sc1"), lin(S_wGU, s6, guW, "nt" if C.nt_gu else ""), reg(rA, 16384), reg(guW, 24576), pf("gu", 3, 21, C.rot_gu), C.bud_gu, dbg=(C.dbg == 3), after_bar=lambda c: G_[0].need(0xffff) if c == C.gfull else None)
    dn = Phase("dn", 12, 0, 5, None, lin(S_wDN, s5, dnW, "nt" if C.nt_dn else ""), None, reg(dnW, 20480), None, C.bud_dn, lag=2, early=C.dn_early, dbg=(C.dbg == 4))
    qk = Phase("qk", 10, 4, 4, lin(S_aQK, s4, rA, "sc1"), emitWQ, reg(rA, 16384), reg(qkW, 16384), pf("gu", 5, 17, C.rot_qk), C.bud_qk, early=C.qk_early, dbg=(C.dbg == 2), after_bar=full)
    L = Loader(a)
    L.live["wo"] = (0, 102400)
    if C.ldprio: a(f"s_setprio {C.ldprio}")
    pn = L.pre(gu, 0, C.gu_e, C.thr_p)
    rest()
    a("s_barrier")
    L.live.pop("wo")
    pn = L.pre(gu, pn, C.gu_e2, C.thr_e)
    a("s_barrier"); pn = L.pre(gu, pn, C.gu_p)
    pn = L.run(gu, dn, pn); stamp(a, 22); L.end(gu); pn = L.pre(dn, pn, C.dn_e, C.thr_e)
    L.wait({("dn", "W", 0)}); a("s_barrier"); pn = L.pre(dn, pn, C.dn_p, C.thr_p)
    dn.skip0 = True
    if C.qpf:
        a(f"s_lshl_b32 s{thq}, s{sR}, 2\ns_add_u32 s{thq}, s{thq}, s{sLW}\ns_mul_i32 s{thq}, s{thq}, {C.qpl*128}\nv_lshlrev_b32 v4, 7, v0")
        def qpf(c):
            k = c - C.qpf0
            if k % C.qps or not 0 <= k // C.qps < C.qpf: return
            k //= C.qps
            off = D*3*D*2 - (C.qpf - k) * C.qpl * 128 * 128
            a(f"s_add_u32 s{sTmp}, s{thq}, {off}\ns_mov_b64 exec, {hex((1 << C.qpl) - 1) if C.qpl <= 31 else -1}")
            if C.qpl == 32: a("s_mov_b32 exec_hi, 0")
            a(f"buffer_load_dword v5, v4, {R(R_WQ)}, s{sTmp} offen\ns_mov_b64 exec, -1")
            L.q.append(("dn", "P", 99))
        dn.after_bar = qpf
        assert not C.rot_qk
    def lastexit(ws_):
        l = a.uid("lx")
        a(f"s_cmp_eq_u32 s{sL}, 0\ns_cbranch_scc1 {l}")
        for w_ in ws_: a(f"s_waitcnt vmcnt({w_})\ns_barrier")
        a(f"s_barrier\ns_branch {end_label}")
        a.label(l)
    pn = L.run(dn, qk, pn, lastexit=lastexit); stamp(a, 14); L.end(dn)
    a(f"s_cmp_lg_u32 s{sL}, 0\ns_cbranch_scc1 {end_label}")
    pn = L.pre(qk, pn, C.qk_e, C.thr_e)
    a("s_barrier")
    a(f"s_and_b32 s{sTmp}, s{sR}, 15\ns_cmp_eq_u32 s{sTmp}, 15\ns_cbranch_scc1 {idle_label}")
    pn = L.pre(qk, pn, C.qk_p)
    L.run(qk, None, pn); stamp(a, 19); L.end(qk)

def build():
    a = Asm()
    K = NAME + "_kernel"
    t = T
    a(f".globl {K}\n.p2align 8\n.type {K},@function")
    a.label(K)
    a(f"""
    s_load_dwordx16 s[16:31], s[0:1], 0
    s_load_dwordx4 s[32:35], s[0:1], 64
    s_cmp_ge_u32 s2, 256
    s_cbranch_scc1 L_exit
    s_and_b32 s{sG}, s2, 7
    s_lshr_b32 s{sR}, s2, 3
    v_lshrrev_b32 v1, 6, v0
    v_and_b32 v0, 63, v0
    v_readfirstlane_b32 s{sW}, v1
    s_lshl_b32 s{sWG}, s{sG}, 5
    s_add_u32 s{sWG}, s{sWG}, s{sR}
    s_mov_b32 s{sL}, 0
    s_mov_b32 s{sLO}, 0
    s_mov_b32 s{sEP}, 0
    s_mov_b32 s{sTMO}, 0
    """)
    if C.stamp: a("v_mov_b32 v255, 0\nv_mov_b32 v254, 0\ns_memrealtime s[14:15]")
    stamp(a, 0)
    qkv_ids(a, t)
    a(f"s_cmp_lt_u32 s{sW}, 4\ns_cbranch_scc1 L_q1c\ns_cmp_eq_u32 s{t+1}, 15\ns_cbranch_scc1 L_q1c")
    qkv1_loader(a)
    a("s_branch L_q1done")
    a.label("L_q1c")
    a("s_waitcnt lgkmcnt(0)")
    srd(a, R_X, P_X, ACT)
    srd(a, R_WQ, P_WQKV, D*3*D*2)
    a(f"""
    s_cmp_gt_u32 s{sW}, 3
    s_cbranch_scc1 L_npf
    s_lshl_b32 s{t+8}, s{sWG}, 2
    s_add_u32 s{t+8}, s{t+8}, s{sW}
    s_mul_i32 s{t+8}, s{t+8}, 2560
    v_lshrrev_b32 v1, 5, v0
    v_mul_u32_u24 v1, 1280, v1
    v_and_b32 v2, 31, v0
    v_lshl_add_u32 v1, v2, 4, v1
    v_mov_b64 v[228:229], 0
    v_mov_b64 v[230:231], 0
    buffer_load_dwordx4 v[220:223], v1, {R(R_X)}, s{t+8} offen
    buffer_load_dwordx4 v[224:227], v1, {R(R_X)}, s{t+8} offen offset:512
    s_mov_b32 exec_lo, 0xffff
    s_mov_b32 exec_hi, 0xffff
    buffer_load_dwordx4 v[228:231], v1, {R(R_X)}, s{t+8} offen offset:1024
    s_mov_b64 exec, -1
    """)
    a.label("L_npf")
    other_srds(a)
    a(f"s_cmp_eq_u32 s{t+1}, 15\ns_cbranch_scc1 L_q1idle")
    qkv_compute(a, True, "sc1")
    a("s_branch L_q1done")
    a.label("L_q1idle")
    qkv1_idle(a)
    a.label("L_q1done")
    a(f"s_cmp_eq_u32 s{sMODE}, 0\ns_cbranch_scc1 L_slow")
    tails = []
    for nm, SB in (("fast", ""), ("slow", "sc1")):
        a.label(f"L_{nm}")
        tails.append(phase_attn(a, SB, f"L_{nm}_ld"))
        if nm == "fast": a.label("L_fast_post")
        proj_compute(a, False, SB, None)
        gu_compute(a, SB)
        proj_compute(a, True, SB, "L_end")
        qkv_ids(a, t)
        a(f"s_cmp_eq_u32 s{t+1}, 15\ns_cbranch_scc1 L_{nm}_idle")
        qkv_compute(a, False, SB)
        a(f"s_branch L_{nm}_next")
        a.label(f"L_{nm}_ld")
        loader_chain(a, SB, "L_end", f"L_{nm}_idle")
        a(f"s_branch L_{nm}_next")
        a.label(f"L_{nm}_idle")
        a("s_waitcnt vmcnt(0)\ns_barrier")
        a.label(f"L_{nm}_next")
        if C.ldprio: a("s_setprio 0")
        a(f"s_mov_b32 s{sL}, 1\ns_mov_b32 s{sLO}, {LSTRIDE}\ns_add_u32 s{sEP}, s{sEP}, 5\ns_mov_b32 s{R_WQ+2}, 0\ns_branch L_{nm}")
        if nm == "fast":
            a.label("L_end")
            a(f"""
            s_xor_b32 s{t}, s{sW}, 7
            s_or_b32 s{t}, s{t}, s2
            s_cmp_lg_u32 s{t}, 0
            s_cbranch_scc1 L_end2
            v_mov_b32 v1, 0
            s_mov_b64 exec, 1
            global_store_dword v1, v1, s[{P_DBG}:{P_DBG+1}] sc1
            s_mov_b64 exec, -1
            """)
            a.label("L_end2")
            if C.stamp:
                a("s_waitcnt vmcnt(0)")
                stamp(a, 16)
                a(f"""
                s_memrealtime s[10:11]
                s_waitcnt lgkmcnt(0)
                v_writelane_b32 v255, s14, 62
                v_writelane_b32 v255, s10, 63
                v_writelane_b32 v255, s{sTMO}, 61
                s_lshl_b32 s10, s2, 3
                s_add_u32 s10, s10, s{sW}
                s_lshl_b32 s10, s10, 8
                s_add_u32 s10, s10, {WS_STAMP}
                v_lshlrev_b32 v1, 2, v0
                v_add_u32 v1, s10, v1
                global_store_dword v1, v255, s[{P_WS}:{P_WS+1}]
                v_add_u32 v1, {1<<20}, v1
                global_store_dword v1, v254, s[{P_WS}:{P_WS+1}]
                """)
                if C.pj:
                    a(f"""
                    s_xor_b32 s{t}, s2, 8
                    s_xor_b32 s{t+1}, s{sW}, {C.pw}
                    s_or_b32 s{t}, s{t}, s{t+1}
                    s_cmp_lg_u32 s{t}, 0
                    s_cbranch_scc1 L_exit
                    v_readlane_b32 s{t+1}, v254, {C.pi}
                    v_readlane_b32 s{t+2}, v254, {C.pj % 64}
                    v_readlane_b32 s{t+3}, v254, 40
                    {f"s_mov_b32 s{t+1}, s14" if C.pi == 63 else ""}
                    s_sub_u32 s{t+1}, s{t+2}, s{t+1}
                    s_mul_i32 s{t+1}, s{t+1}, {C.pm}
                    s_add_u32 s{t+1}, s{t+1}, 1000
                    """)
                    a.label("L_probe")
                    a(f"""
                    s_memrealtime s[{t+4}:{t+5}]
                    s_waitcnt lgkmcnt(0)
                    s_sub_u32 s{t+6}, s{t+4}, s{t+3}
                    s_cmp_lt_u32 s{t+6}, s{t+1}
                    s_cbranch_scc1 L_probe
                    """)
                if C.dbgout:
                    a(f"s_xor_b32 s{t}, s2, 8\ns_or_b32 s{t}, s{t}, s{sW}\ns_cmp_lg_u32 s{t}, 0\ns_cbranch_scc1 L_exit\nv_readlane_b32 s{t+1}, v254, 0\nv_mov_b32 v1, 0")
                    for k, i in enumerate([1, 2, 7, 8, 10, 12, 23, 15, 20, 31, 32, 36, 47, 40]):
                        a(f"v_readlane_b32 s{t}, v254, {i}\ns_sub_u32 s{t}, s{t}, s{t+1}\ns_nop 1\nv_mov_b32 v2, s{t}\nglobal_store_dword v1, v2, s[{P_DBG}:{P_DBG+1}] offset:{4+4*k}")
            a.label("L_exit")
            a("s_endpgm")
            a.label("L_fast_end")
    for f in tails: f()
    hdr = open("cdna_kernels/" + NAME + ".s.ref").read().split("; Override")[0]
    hdr += "; @launch grid=(256,1,1) block=(512,1,1) lds=163840\n"
    txt = hdr + '.amdgcn_target "amdgcn-amd-amdhsa--gfx950"\n.text\n' + a.text() + f'''.section .rodata,"a"
.p2align 6
.amdhsa_kernel {K}
  .amdhsa_next_free_vgpr 256
  .amdhsa_next_free_sgpr 102
  .amdhsa_accum_offset 256
  .amdhsa_group_segment_fixed_size 0
  .amdhsa_kernarg_size 80
  .amdhsa_user_sgpr_count 2
  .amdhsa_user_sgpr_kernarg_segment_ptr 1
  .amdhsa_system_sgpr_workgroup_id_x 1
.end_amdhsa_kernel
'''
    for p in check(a.lines): print("HAZARD", p)
    return txt

if __name__ == "__main__":
    out = sys.argv[1] if len(sys.argv) > 1 else "cdna_kernels/" + NAME + ".s"
    for kv in sys.argv[2:]:
        k, _, val = kv.partition("=")
        assert hasattr(C, k), k
        setattr(C, k, int(val) if val else True)
    open(out, "w").write(build())
    print("written", out)
```

```python
import sys, math, struct
sys.path.insert(0, "gen")
from asmlib import *

NAME = "interleave_layers__softmax_full_mha__glu_gated_reglu__prompt"
S, D, F, H, DH = 2048, 640, 1536, 32, 20
ACT = S * D * 2
HEADB = 81920
L_Q = 0
L_K = L_Q + ACT
L_V = L_K + ACT
L_O = L_V + ACT
L_X1 = L_O + ACT
L_X2 = L_X1 + ACT
L_H = L_X2 + ACT
L_ST1 = L_H + S * F * 2
L_ST2 = L_ST1 + S * 64
L_FG = L_ST2 + S * 64
LSTRIDE = L_FG + 32768
WS_ST0 = LSTRIDE + L_ST2
WS_WTO = 2 * LSTRIDE
WS_WTD = WS_WTO + D * D * 2
WS_WTG = WS_WTD + F * D * 2
WS_CSP = WS_WTG + 2 * F * D * 2
WS_CSG = WS_CSP + 10 * 12288
WS_CSQ = WS_CSG + 256 * 768
WS_FL = WS_CSQ + 256 * 512
WS_END = WS_FL + 8192
WS_SIZE = 268435456
WS_STAMP = 200 << 20
QSCALE = (DH ** -0.5) * math.log2(math.e)
def f32(x): return "0x%08x" % struct.unpack("<I", struct.pack("<f", x))[0]

P_X, P_WQKV, P_WO, P_BX, P_WG, P_WU, P_WD, P_OUT, P_DBG, P_WS = 16, 18, 20, 22, 24, 26, 28, 30, 32, 34
sL, sG, sR, sW, sLO, sEP, sTMO, sWG = 3, 4, 5, 6, 7, 8, 9, 13
R_WS, R_X, R_WQ, R_WG, R_WU, R_T = 36, 40, 44, 48, 52, 56
T = 60
WSR = f"s[{R_WS}:{R_WS+3}]"
def R(r): return f"s[{r}:{r+3}]"
SPIN = 200000

class Cfg:
    stamp = False
    dbg = 0
    dbgout = 0
    pi = 0
    pj = 0
    pm = 1
    pw = 0
    look = 6
    gu_e = 12
    dn_e = 4
    qk_e = 0
    bud_gu = 10
    bud_dn = 3
    bud_qk = 6
    bud_q1 = 8
    dn_a = 3
    psleep = 1
    gran = 3
    flip = 0
    gfull = 1
    dn_a0 = 2
    wo_a0 = 2
    x_a = 0
    x_d = 0
    c_i = 6
    c_c = 7
    c_f = 8
    pp = 0
    x_q = 0
    hth = 0
    fkc = 5
    ev0 = 1
    ev1 = 0
    oxh = 6
    x_slow = 0
    x_gh = 0
    alias = 0
    ldprio = 0
    grp = 2
    qpf = 0
    qpf0 = 1
    qpl = 16
    qps = 1
    thr_e = 0
    thr_p = 0
    qk_s0 = 4
    dn_lag = 2
    dn_full = 5
    wo_a = 4
    wo_nas = 5
    c0 = 1
    g16 = 1
    e16 = 3
    wb = 0
    outb = 0
    q1prio = 0
    look_q1 = 6
    nocs = 0
    qloc = 1
    stage = 1
    cpf = 1
    l2pf0 = 0
    nt_kv = 0
    nt_wo = 0
    nt_gu = 0
    nt_dn = 0
    nt_qk = 0
    htouch = 0
    warm = 0
    gu_e2 = 0
    gu_p = 0
    dn_p = 20
    qk_p = 0
    wo_sets = 6
    q1pf = 1
    l2pf = 8
    rot = 0
    x_hit = 0
    tlb = 0
    rot_gu = 0
    rot_dn = 0
    rot_qk = 0
    dn_early = 99
    qk_early = 99
C = Cfg()

def stamp(a, i):
    if not C.stamp: return
    a(f"s_memtime s[10:11]\ns_mul_i32 s12, s{sL}, 24\ns_add_u32 m0, s12, {i}\ns_waitcnt lgkmcnt(0)\nv_writelane_b32 v255, s10, m0")
    if C.dbg == 7: a(f"s_memrealtime s[10:11]\ns_waitcnt lgkmcnt(0)\nv_writelane_b32 v254, s10, m0")

def dstamp(a, d, i):
    if C.stamp and C.dbg == d: a(f"s_memtime s[10:11]\ns_lshl_b32 s12, s{sL}, 5\ns_add_u32 m0, s12, {i}\ns_waitcnt lgkmcnt(0)\nv_writelane_b32 v254, s10, m0")

def cstamp(a, j):
    if C.stamp and C.dbg == 9:
        a(f"s_memtime s[10:11]\ns_lshl_b32 s12, s{sL}, 5\ns_add_u32 m0, s12, {2*j}\ns_waitcnt lgkmcnt(0)\nv_writelane_b32 v254, s10, m0")
        a(f"s_memrealtime s[10:11]\ns_add_u32 m0, s12, {2*j+1}\ns_waitcnt lgkmcnt(0)\nv_writelane_b32 v254, s10, m0")

def srd(a, r, ptr, size):
    a(f"s_mov_b32 s{r}, s{ptr}\ns_mov_b32 s{r+1}, s{ptr+1}\ns_mov_b32 s{r+2}, {size}\ns_mov_b32 s{r+3}, 0x20000")

def interleave(a, mf, other):
    n = len(mf); k = 0
    for i, m in enumerate(mf):
        a(m)
        tgt = (len(other) * (i + 1) + n - 1) // n
        while k < tgt:
            a(other[k]); k += 1

def poll(a, vaddr, vtmp, soff, want, sleep=0, pre=False, wide=False):
    lp = a.uid("poll"); ok = a.uid("pollok")
    cnt = T + 22
    a(f"s_mov_b32 s{cnt}, s{sTMO}")
    if pre is not False: a(f"s_waitcnt vmcnt({pre})\ns_branch {lp}c")
    a.label(lp)
    if wide: a(f"buffer_load_dwordx4 v[{vtmp}:{vtmp+3}], v{vaddr}, {WSR}, {soff} offen sc1")
    else: a(f"buffer_load_dword v{vtmp}, v{vaddr}, {WSR}, {soff} offen sc1")
    a(f"s_waitcnt vmcnt(0)")
    if pre is not False: a.label(lp + "c")
    a(f"v_subrev_u32 v{vtmp}, {want}, v{vtmp}")
    if wide:
        for i in range(1, 4): a(f"v_subrev_u32 v{vtmp+i}, {want}, v{vtmp+i}\nv_max_u32 v{vtmp}, v{vtmp}, v{vtmp+i}")
    a(f"v_cmp_lt_u32 vcc, 15, v{vtmp}")
    a(f"s_cbranch_vccz {ok}")
    if sleep: a(f"s_sleep {sleep}")
    a(f"s_add_u32 s{cnt}, s{cnt}, 1\ns_cmp_lt_u32 s{cnt}, {SPIN}\ns_cbranch_scc1 {lp}")
    a(f"s_mov_b32 s{sTMO}, {SPIN}")
    a.label(ok)

def poll_local(a, kind, ep, va=1, vt=2, sleep=0):
    t = T + 20
    if kind == "wo":
        a(f"v_and_b32 v{va}, 31, v0\nv_lshlrev_b32 v{va}, 5, v{va}\ns_lshr_b32 s{t}, s{sR}, 3\ns_lshl_b32 s{t}, s{t}, 2\ns_add_u32 s{t}, s{t}, 16")
    elif kind == "gu":
        a(f"v_lshrrev_b32 v{va}, 2, v0\nv_lshlrev_b32 v{va}, 5, v{va}\nv_and_b32 v{vt}, 3, v0\nv_lshl_add_u32 v{va}, v{vt}, 2, v{va}")
        a(f"s_lshr_b32 s{t}, s{sR}, 4\ns_lshl_b32 s{t}, s{t}, 9")
    elif kind == "down":
        a(f"v_bfe_u32 v{va}, v0, 1, 4\nv_lshlrev_b32 v{va}, 5, v{va}\nv_and_b32 v{vt}, 1, v0\nv_lshl_add_u32 v{va}, v{vt}, 3, v{va}")
        a(f"s_lshr_b32 s{t}, s{sR}, 4\ns_lshl_b32 s{t}, s{t}, 9\ns_bfe_u32 s{t+1}, s{sR}, 0x10003\ns_lshl_b32 s{t+1}, s{t+1}, 2\ns_add_u32 s{t}, s{t}, s{t+1}")
    elif kind == "attn":
        a(f"""
        v_bfe_u32 v{va}, v0, 2, 1
        v_mul_u32_u24 v{va}, 19, v{va}
        s_mul_i32 s{t}, s{sR}, 20
        v_add_u32 v{va}, s{t}, v{va}
        v_lshrrev_b32 v{va}, 7, v{va}
        v_lshrrev_b32 v{vt}, 4, v0
        v_min_u32 v{vt}, 2, v{vt}
        v_mad_u32_u24 v{va}, v{vt}, 5, v{va}
        v_bfe_u32 v{vt}, v0, 3, 1
        v_lshl_add_u32 v{va}, v{vt}, 4, v{va}
        v_lshlrev_b32 v{va}, 5, v{va}
        v_and_b32 v{vt}, 3, v0
        v_lshl_add_u32 v{va}, v{vt}, 2, v{va}
        s_mov_b32 s{t}, 0
        """)
    a(f"s_lshl_b32 s{t+1}, s{sG}, 10\ns_add_u32 s{t}, s{t}, s{t+1}\ns_add_u32 s{t}, s{t}, {WS_FL}\ns_add_u32 s{t+1}, s{sEP}, {ep}")
    poll(a, va, vt, f"s{t}", f"s{t+1}", sleep=sleep)

sNR, sGO, sGW = 92, 94, 95
class Gate:
    def __init__(self, a, va, vt, fold=False, sleep=0):
        self.a, self.va, self.vt, self.fold, self.sleep = a, va, vt, fold, sleep
        self.ok = 0
    def load(self): self.a(f"buffer_load_dword v{self.vt}, v{self.va}, {WSR}, s{sGO} offen sc1")
    def upd(self):
        self.a(f"s_waitcnt vmcnt(0)\nv_subrev_u32 v{self.vt}, s{sGW}, v{self.vt}\nv_cmp_lt_u32 s[{sNR}:{sNR+1}], 15, v{self.vt}")
        if self.fold: self.a(f"s_or_b32 s{sNR}, s{sNR}, s{sNR+1}")
    def reset(self): self.a(f"s_mov_b32 s{sNR}, -1")
    def need(self, mask):
        a = self.a
        mask &= ~self.ok
        if not mask: return
        self.ok |= mask
        lp = a.uid("gt"); cnt = T + 22
        a(f"s_and_b32 s{cnt}, s{sNR}, {hex(mask)}\ns_cbranch_scc0 {lp}k\ns_mov_b32 s{cnt}, s{sTMO}")
        if C.pp and not self.fold:
            v2 = self.vt2
            a(f"buffer_load_dword v{v2}, v{self.va}, {WSR}, s{sGO} offen sc1\ns_sleep {C.pp}")
            a.label(lp)
            for x_, y_ in ((self.vt, v2), (v2, self.vt)):
                a(f"buffer_load_dword v{x_}, v{self.va}, {WSR}, s{sGO} offen sc1\ns_waitcnt vmcnt(1)\nv_subrev_u32 v{y_}, s{sGW}, v{y_}\nv_cmp_lt_u32 s[{sNR}:{sNR+1}], 15, v{y_}")
                a(f"s_and_b32 s{cnt+1}, s{sNR}, {hex(mask)}\ns_cbranch_scc0 {lp}k")
        else:
            a.label(lp)
            self.load(); self.upd()
            a(f"s_and_b32 s{cnt+1}, s{sNR}, {hex(mask)}\ns_cbranch_scc0 {lp}k")
            if self.sleep: a(f"s_sleep {self.sleep}")
        a(f"s_add_u32 s{cnt}, s{cnt}, 1\ns_cmp_lt_u32 s{cnt}, {SPIN}\ns_cbranch_scc1 {lp}\ns_mov_b32 s{sTMO}, {SPIN}")
        a.label(lp + "k")
def span(lo, hi, w, bits):
    m = 0
    for p in range(lo // w, hi // w + 1): m |= ((1 << bits) - 1) << (bits * p)
    return m
def gate_local(a, kind, ep, va, vt, sRotCt=None, sleep=0):
    t = T + 20
    if kind == "wo":
        a(f"v_and_b32 v{va}, 31, v0\nv_lshlrev_b32 v{va}, 5, v{va}\ns_lshr_b32 s{sGO}, s{sR}, 3\ns_lshl_b32 s{sGO}, s{sGO}, 2\ns_add_u32 s{sGO}, s{sGO}, 16")
    elif kind == "down":
        a(f"v_lshrrev_b32 v{va}, 1, v0\nv_add_u32 v{va}, s{sRotCt}, v{va}\nv_and_b32 v{va}, 15, v{va}\nv_lshlrev_b32 v{va}, 5, v{va}\nv_and_b32 v{vt}, 1, v0\nv_lshl_add_u32 v{va}, v{vt}, 3, v{va}")
        a(f"s_lshr_b32 s{sGO}, s{sR}, 4\ns_lshl_b32 s{sGO}, s{sGO}, 9\ns_bfe_u32 s{t+1}, s{sR}, 0x10003\ns_lshl_b32 s{t+1}, s{t+1}, 2\ns_add_u32 s{sGO}, s{sGO}, s{t+1}")
    elif kind == "gu":
        a(f"v_lshrrev_b32 v{va}, 1, v0\nv_add_u32 v{va}, s{sRotCt}, v{va}\nv_and_b32 v{va}, 7, v{va}\nv_lshlrev_b32 v{va}, 5, v{va}\nv_and_b32 v{vt}, 1, v0\nv_lshl_add_u32 v{va}, v{vt}, 2, v{va}")
        a(f"s_lshr_b32 s{sGO}, s{sR}, 4\ns_lshl_b32 s{sGO}, s{sGO}, 9\ns_bfe_u32 s{t+1}, s{sW}, 0x10001\ns_lshl_b32 s{t+1}, s{t+1}, 8\ns_add_u32 s{sGO}, s{sGO}, s{t+1}")
        a(f"s_and_b32 s{t+1}, s{sW}, 1\ns_lshl_b32 s{t+1}, s{t+1}, 3\ns_add_u32 s{sGO}, s{sGO}, s{t+1}")
    a(f"s_lshl_b32 s{t+1}, s{sG}, 10\ns_add_u32 s{sGO}, s{sGO}, s{t+1}\ns_add_u32 s{sGO}, s{sGO}, {WS_FL}\ns_add_u32 s{sGW}, s{sEP}, {ep}")
    g = Gate(a, va, vt, sleep=sleep); g.reset(); g.vt2 = 8 if kind != 'gu' else 3
    return g

def flag_setup(a, ep):
    t = T + 20
    a(f"s_lshl_b32 s{t}, s{sWG}, 3\ns_add_u32 s{t}, s{t}, s{sW}\ns_lshl_b32 s{t}, s{t}, 2\ns_add_u32 s{t}, s{t}, {WS_FL}\ns_add_u32 s{t+1}, s{sEP}, {ep}")
    a(f"v_mov_b32 v1, 0\nv_mov_b32 v2, s{t+1}")
def flag_store(a, SB, s=T+20):
    a(f"s_mov_b64 exec, 1\nbuffer_store_dword v2, v1, {WSR}, s{s} offen {SB}\ns_mov_b64 exec, -1")
def publish_local(a, ep, SB):
    flag_setup(a, ep)
    a("s_waitcnt vmcnt(0)")
    flag_store(a, SB)

def row_stats(a, vst, vmean, vrstd):
    for i in range(1, 8):
        a(f"v_add_f32 v{vst}, v{vst}, v{vst+2*i}\nv_add_f32 v{vst+1}, v{vst+1}, v{vst+2*i+1}")
    finish_stats(a, vst, vst + 1, vmean, vrstd)

def finish_stats(a, vs, vq, vmean, vrstd):
    a(f"v_mul_f32 v{vmean}, {f32(1.0/D)}, v{vs}")
    a(f"v_mul_f32 v{vq}, {f32(1.0/D)}, v{vq}")
    a(f"v_fma_f32 v{vq}, -v{vmean}, v{vmean}, v{vq}")
    a(f"v_max_f32 v{vq}, 0, v{vq}")
    a(f"v_add_f32 v{vq}, {f32(1e-5)}, v{vq}")
    a(f"v_rsq_f32 v{vrstd}, v{vq}")
    a("s_nop 0")

def lin_dma(a, vaddr, src_s, src_off, dst_s, dst_off, npieces, bits="", rsrc=WSR, tmp=T+19):
    i = 0
    while i < npieces:
        k = min(4, npieces - i)
        a(f"s_add_u32 m0, s{dst_s}, {dst_off + 1024*i}")
        a(f"s_add_u32 s{tmp}, s{src_s}, {src_off + 1024*i}")
        for j in range(k):
            a(f"buffer_load_dwordx4 v{vaddr}, {rsrc}, s{tmp} offen offset:{1024*j} {bits} lds")
        i += k
    return npieces


def states(x):
    return int(x.split()[1]) + 1 if x.startswith("s_nop") else 1

def gemm_unrolled(a, n, P, nr, reads, mfma, groups, inserts, fix, fix_from, epi, st_end, alt=None, after_e=(), late=()):
    seq = []
    def add(ms, fill, pre=()):
        k = 0
        for i, (kk, tl) in enumerate(ms):
            tgt = (len(fill) * (i + 1) + len(ms) - 1) // len(ms)
            seq.append([list(pre) if i == 0 else [], mfma(kk, tl), tl, list(fill[k:tgt])]); k = tgt
    step = lambda kk: [(kk, tl) for tl in range(P)]
    a("s_barrier")
    for x in reads(0, 0) + reads(0, 1): a(x)
    w = f"s_waitcnt lgkmcnt({nr})"
    for c in range(n - 1):
        add(step(0), reads(c, 2), [w])
        add(step(1), reads(c, 3), [w])
        add(step(2), [], [w])
        seq[-2][3] += ["s_waitcnt lgkmcnt(0)"]; seq[-1][3] += ["s_barrier"]
        add(step(3), reads(c + 1, 0) + reads(c + 1, 1))
    nmain = len(seq)
    for i0, ins in inserts.items():
        i = i0; ins = list(ins)
        while ins:
            room = 4 - sum(states(x) for x in seq[i][3]) - len(seq[i+1][0])
            if ins[0].startswith("s_mov_b32 exec") and room < 3: room = 0
            while room > 0 and ins and "s_barrier" not in seq[i][3]:
                x = ins.pop(0); seq[i][3].append(x); room -= states(x)
            i += 1

        end = fix_from if i0 < fix_from else nmain
        assert i <= end and all(not (i0 < k < i) for k in inserts if len(inserts[i0]) > 1), (i0, i)
        if any(x.startswith("ds_") for x in inserts[i0]): assert any("s_waitcnt lgkmcnt(0)" in seq[j][3] for j in range(i, end)), (i, end)
    todo = {tl: list(fix(tl)) for tl in range(P)}
    used = lambda g: sum(states(x) for x in seq[g][3]) + len(seq[g+1][0])
    g = fix_from + 2
    while any(todo.values()):
        assert g + 2 < nmain, "no room for fix"
        if used(g) < 5 and "s_barrier" not in seq[g][3]:
            for back in range(P - 2, 1, -1):
                tl = seq[g - back][2]
                if not todo[tl] or g - back < fix_from: continue
                have = sum(used(x) + 1 for x in range(g - back, g)) + sum(states(x) for x in seq[g][3])
                room = sum(max(0, 5 - used(x)) for x in range(g - back, g))
                if have + room < 12: continue
                for x in range(g - back, g):
                    k = min(5 - used(x), 12 - have)
                    if k > 0: seq[x][3].append(f"s_nop {k-1}"); have += k
                while used(g) < 5 and todo[tl]: seq[g][3].append(todo[tl].pop(0))
            if used(g + 1) < 1: seq[g + 1][3].append("s_nop 0")
        g += 1

    c = n - 1
    g0 = groups[0]
    seq[-1][3] += reads(c, 2)
    add([(kk, tl) for kk in (0, 1) for tl in g0], reads(c, 3), [w])
    add([(kk, tl) for kk in (2, 3) for tl in g0], list(late), ["s_waitcnt lgkmcnt(0)"])
    if after_e:
        seq[-2][3].append("s_barrier"); seq[-1][3] += list(after_e)
    else: seq[-len(g0)*2][3].append("s_barrier")
    seq[-1][3].append("s_nop 4")
    def flush():
        for pre, m, tl, post in seq:
            for x in pre: a(x)
            a(m)
            for x in post: a(x)
        del seq[:]
    def tail(epi):
        for gi in range(1, len(groups)):
            ms = [(kk, tl) for kk in range(4) for tl in groups[gi]]
            if gi == 1: add(ms[:1], ["s_nop 4"]); add(ms[1:], epi(gi - 1, False))
            else: add(ms, ["s_nop 0"] + epi(gi - 1, False))
        flush()
        stamp(a, st_end)
        a.nop(3)
        for x in epi(len(groups) - 1, True): a(x)
    if alt:
        cond, epi2, post1, post2 = alt
        l = a.uid("alt")
        seq[-1][3][-1:] = [cond, f"s_cbranch_scc1 {l}", "s_nop 2"]
        flush(); tail(epi); post1()
        a.label(l); a("s_nop 2"); tail(epi2); post2()
    else: tail(epi)

def gemm16(a, n, P, reads, mfma, groups, inserts, fix, fix_from, epi, st_end):
    seq = []
    def add(ms, fill, span, pre=()):
        k = 0
        for i, (u, tl, z) in enumerate(ms):
            tgt = min(len(fill), (len(fill) * (i + 1) + span - 1) // span)
            seq.append([list(pre) if i == 0 else [], mfma(u, tl, z), tl, list(fill[k:tgt])]); k = tgt
        assert k == len(fill)
    w0 = "s_waitcnt lgkmcnt(0)"
    a("s_barrier")
    for x in reads(0, 0): a(x)
    nr = len(reads(0, 0))
    for c in range(n - 1):
        add([(0, tl, c == 0) for tl in range(P)], reads(c, 1), nr, [w0])
        seq[-2][3] += [w0]; seq[-1][3] += ["s_barrier"]
        add([(1, tl, False) for tl in range(P)], reads(c + 1, 0), nr)
    nmain = len(seq)
    used = lambda g: sum(states(x) * (2 if x.startswith(("buffer", "v_perm", "v_rsq")) else 1) for x in seq[g][3]) + len(seq[g+1][0])
    for i0, ins in inserts.items():
        i = i0; ins = list(ins)
        while ins:
            while used(i) < C.g16 and ins and "s_barrier" not in seq[i][3]: seq[i][3].append(ins.pop(0))
            i += 1
        assert i <= fix_from
        if any(x.startswith("ds_") for x in inserts[i0]): assert any(w0 in seq[j][3] + seq[j][0] for j in range(i, fix_from))
    todo = {tl: list(fix(tl)) for tl in range(P)}
    g = fix_from
    while any(todo.values()):
        assert g + 4 < nmain
        for back in sorted(range(P - 3, 7, -1), key=lambda b_: -len(todo[seq[g - b_][2]])):
            tl = seq[g - back][2]
            while used(g) < C.g16 and todo[tl] and "s_barrier" not in seq[g][3]: seq[g][3].append(todo[tl].pop(0))
        g += 1
    c = n - 1
    g0 = groups[0]
    add([(0, tl, False) for tl in g0 + groups[1]], reads(c, 1), nr, [w0])
    add([(1, tl, False) for tl in g0], ["s_barrier"], 1, [w0])
    rest = [(1, tl, False) for tl in groups[1]]
    for gi in range(2, len(groups)): rest += [(u, tl, False) for u in range(2) for tl in groups[gi]]
    e0 = epi(0, False); e1 = epi(1, False)
    k1 = len(groups[1])
    add(rest[:2], ["s_nop 1", "s_nop 1"], 2)
    nleft = len(rest) - 2
    add(rest[2:], (e0 + e1)[:C.e16*nleft], nleft)
    for k_, (pre, m, tl, post) in enumerate(seq):
        for x in pre: a(x)
        a(m)
        for x in post: a(x)
        if C.x_slow and k_ % C.x_slow == 0: a("s_nop 7")
    for x in (e0 + e1)[C.e16*nleft:]: a(x)
    stamp(a, st_end)
    for gi in range(2, len(groups)):
        for x in epi(gi, True): a(x)

class Src:
    def __init__(self, sB, sB1, sThr, stride): self.__dict__.update(locals())
    def setup(self, a, sRot, n, tmp):
        a(f"s_mul_i32 s{tmp}, s{sRot}, {self.stride}\ns_add_u32 s{self.sB}, s{self.sB}, s{tmp}\ns_sub_u32 s{self.sB1}, s{self.sB}, {n*self.stride}")
    def sel(self, a, c, dst):
        if getattr(self, "norot", False):
            a(f"s_mov_b32 s{dst}, s{self.sB}"); return
        a(f"s_cmp_gt_u32 s{self.sThr}, {c}\ns_cselect_b32 s{dst}, s{self.sB}, s{self.sB1}")

class Phase:
    def __init__(self, name, n, npa, npw, emitA, emitW, regA, regW, pollfn, budget, lag=1, after_bar=None, dbg=False, early=99):
        self.__dict__.update(locals())

class Loader:
    def __init__(self, a):
        self.a = a; self.q = []; self.live = {}; self.waitfn = None; self.total = 0
    def free(self, reg, key):
        return key in self.live or all(reg[1] <= lo or hi <= reg[0] for lo, hi in self.live.values())
    def can(self, ph, kind, c):
        return self.free((ph.regA if kind == "A" else ph.regW)(c), (ph.name, kind, c))
    def issue(self, ph, kind, c, i0, k):
        assert self.can(ph, kind, c)
        self.live[(ph.name, kind, c)] = (ph.regA if kind == "A" else ph.regW)(c)
        (ph.emitA if kind == "A" else ph.emitW)(c, i0, k)
        self.q += [(ph.name, kind, c)] * k; self.total += k
    def release(self, ph, c):
        for k in "AW": self.live.pop((ph.name, k, c), None)
    def wait(self, tags):
        last = -1
        for i, t in enumerate(self.q):
            if t in tags: last = i
        if last >= 0:
            self.q = self.q[last+1:]
            n7 = len(self.q); n = sum(1 for t in self.q if t[0] != "x7")
            assert n7 < 64
            if n7 != n:
                l = self.a.uid("w7")
                self.a(f"s_waitcnt vmcnt({n7})\ns_cmp_eq_u32 s{sW}, 7\ns_cbranch_scc1 {l}\ns_waitcnt vmcnt({n})")
                self.a.label(l)
            else: self.a(f"s_waitcnt vmcnt({n})")
    def pre(self, ph, pw, cnt, thr=0):
        done = 0
        while pw < ph.n * ph.npw and done < cnt and self.can(ph, "W", pw // ph.npw):
            k = min(4, ph.npw - pw % ph.npw, cnt - done)
            if thr:
                k = 1
                if len(self.q) >= thr:
                    self.a(f"s_waitcnt vmcnt({thr-1})"); self.q = self.q[len(self.q) - (thr - 1):]
            self.issue(ph, "W", pw // ph.npw, pw % ph.npw, k); pw += k; done += k
        return pw
    def run(self, ph, nxt, pw=0, after_poll=None, tail=None, waitfn=None, lastexit=None):
        a = self.a; n = ph.n
        pa = 0; pn = 0
        if ph.pollfn: ph.pollfn()
        if after_poll: after_poll()
        for c in range(1 if getattr(ph, "skip0", False) else 0, n):
            done = 0
            if lastexit and pw == n * ph.npw:
                assert all(t_[0] == ph.name for t_ in self.q)
                lastexit([len(self.q) - 1 - max([-1] + [i_ for i_, t_ in enumerate(self.q) if t_[2] <= cc]) for cc in range(c, n)]); lastexit = None
            while True:
                needed = pa < (c + 1) * ph.npa or pw < (c + 1) * ph.npw
                if not needed:
                    beyond = 0
                    for t in reversed(self.q):
                        if t[0] == ph.name and t[2] <= c: break
                        beyond += t[0] != "x7"
                    if beyond >= getattr(ph, 'look', C.look) and (done >= ph.budget or c == 0): break
                ca = pa // ph.npa if ph.npa else n; cw = pw // ph.npw
                okA = ca < n and self.can(ph, "A", ca)
                okW = cw < n and self.can(ph, "W", cw)
                if okW and (cw <= ca or not okA):
                    k = ph.npw - pw % ph.npw
                    if not needed: k = min(C.grp, k)
                    self.issue(ph, "W", cw, pw % ph.npw, k); pw += k
                elif okA:
                    k = ph.npa - pa % ph.npa
                    if not needed: k = min(C.grp, k)
                    self.issue(ph, "A", ca, pa % ph.npa, k); pa += k
                elif nxt and not lastexit and ca == n and cw == n and pn < nxt.early and self.can(nxt, "W", pn // nxt.npw):
                    k = min(2, nxt.npw - pn % nxt.npw)
                    self.issue(nxt, "W", pn // nxt.npw, pn % nxt.npw, k); pn += k
                else:
                    assert not needed
                    break
                done += k
            if tail and pa == n * ph.npa and pw == n * ph.npw:
                tail(); tail = None; self.waitfn = waitfn
            if ph.after_bar and c > 0: ph.after_bar(c - 1)
            self.wait({(ph.name, "A", c), (ph.name, "W", c)})
            if ph.dbg and C.stamp: a(f"s_memtime s[10:11]\ns_waitcnt lgkmcnt(0)\nv_writelane_b32 v254, s10, {2*c}")
            a("s_barrier")
            if ph.dbg and C.stamp: a(f"s_memtime s[10:11]\ns_waitcnt lgkmcnt(0)\nv_writelane_b32 v254, s10, {2*c+1}")
            self.release(ph, c - ph.lag)
        if ph.after_bar: ph.after_bar(n - 1)
        if nxt: pn = self.pre(nxt, pn, min(ph.budget, max(0, nxt.early - pn)))
        return pn
    def end(self, ph):
        self.a("s_barrier")
        for c in range(ph.n): self.release(ph, c)

Q1_TAB = 98304
Q1_NON = Q1_TAB + 2048
Q1_CS = Q1_NON + 64
WB = 65536
def guW(c): return WB + ((3 - c) % 4) * 24576
def dnW(c): return ((c + 2) % 8) * 20480
def qkW(c): return WB + ((c + C.qk_s0) % 6) * 16384

PSCR = 131072
PV = 180
def projjob_issue(a, sJob, sScr, t, loads=True):
    a(f"""
    s_and_b32 s{t+2}, s{sJob}, 7
    s_lshr_b32 s{t+3}, s{sJob}, 3
    s_cmp_lt_u32 s{t+3}, 20
    s_cselect_b32 s{R_T}, s{P_WO}, s{P_WD}
    s_cselect_b32 s{R_T+1}, s{P_WO+1}, s{P_WD+1}
    s_mov_b32 s{R_T+2}, {F*D*2}
    s_cselect_b32 s{R_T+2}, {D*D*2}, s{R_T+2}
    s_mov_b32 s{R_T+3}, 0x20000
    s_cselect_b32 s{t+4}, 0, 20
    s_cselect_b32 s{t+5}, 20, 48
    s_mov_b32 s{t+6}, {WS_WTD}
    s_cselect_b32 s{t+6}, {WS_WTO}, s{t+6}
    s_sub_u32 s{t+3}, s{t+3}, s{t+4}
    s_mul_i32 s{t+5}, s{t+5}, s{t+2}
    s_add_u32 s{t+5}, s{t+5}, s{t+3}
    s_mul_i32 s{t+5}, s{t+5}, 5120
    s_add_u32 s{t+6}, s{t+6}, s{t+5}
    s_mul_i32 s{t+3}, s{t+3}, {32*1280}
    s_mul_i32 s{t+2}, s{t+2}, 160
    s_add_u32 s{t+3}, s{t+3}, s{t+2}
    s_movk_i32 s{t+4}, 6554
    """)
    x, y = PV, PV + 1
    for i in range(5 if loads else 0):
        a(f"""
        v_add_u32 v{x}, {64*i}, v0
        v_mul_u32_u24 v{y}, s{t+4}, v{x}
        v_lshrrev_b32 v{y}, 16, v{y}
        v_mad_i32_i24 v{x}, v{y}, -10, v{x}
        v_mul_u32_u24 v{y}, 1280, v{y}
        v_lshl_add_u32 v{x}, v{x}, 4, v{y}
        s_add_u32 m0, s{sScr}, {1024*i}
        s_nop 0
        buffer_load_dwordx4 v{x}, {R(R_T)}, s{t+3} offen lds
        """)
def projjob_finish(a, sScr, t):
    x, y, z, d0 = PV, PV + 1, PV + 2, PV + 4
    a(f"""
    v_lshrrev_b32 v{x}, 4, v0
    v_bfe_u32 v{y}, v0, 2, 2
    v_lshl_add_u32 v{x}, v{x}, 3, v{y}
    v_mul_u32_u24 v{x}, 160, v{x}
    v_add_u32 v{x}, s{sScr}, v{x}
    v_and_b32 v{y}, 3, v0
    v_lshl_add_u32 v{z}, v{y}, 3, v{x}
    v_lshl_add_u32 v{y}, v{y}, 4, v{x}
    """)
    for jn in range(5):
        for j in range(2):
            d = d0 + 4*jn + 2*j
            if jn < 4: a(f"ds_read_b64_tr_b16 v[{d}:{d+1}], v{y} offset:{640*j + 64*(jn>>1) + 8*(jn&1)}")
            else: a(f"ds_read_b64_tr_b16 v[{d}:{d+1}], v{z} offset:{640*j + 128}")
    a(f"s_add_u32 s{t+5}, s{t+6}, 4096\ns_waitcnt lgkmcnt(0)")
    for jn in range(5):
        d = d0 + 4*jn
        a(f"buffer_store_dwordx4 v[{d}:{d+3}], v5, {WSR}, s{t+6 if jn < 4 else t+5} offen offset:{1024*(jn&3)} sc1")

def gujob_issue(a, sJob, t, loads=True):
    x, y = PV, PV + 1
    a(f"""
    s_mul_i32 s{t+2}, s{sJob}, 2731
    s_lshr_b32 s{t+2}, s{t+2}, 16
    s_mul_i32 s{t+3}, s{t+2}, 24
    s_sub_u32 s{t+3}, s{sJob}, s{t+3}
    s_mul_i32 s{t+4}, s{t+2}, {64*F*2}
    s_lshl_b32 s{t+5}, s{t+3}, 7
    s_add_u32 s{t+4}, s{t+4}, s{t+5}
    v_lshrrev_b32 v{x}, 3, v0
    v_mul_u32_u24 v{x}, {F*2}, v{x}
    v_and_b32 v{y}, 7, v0
    v_lshl_add_u32 v{x}, v{y}, 4, v{x}
    """)
    a(f"""
    s_and_b32 s{t+1}, s{sW}, 1
    s_cselect_b32 s{R_T}, s{P_WU}, s{P_WG}
    s_cselect_b32 s{R_T+1}, s{P_WU+1}, s{P_WG+1}
    s_mov_b32 s{R_T+2}, {F*D*2}
    s_mov_b32 s{R_T+3}, 0x20000
    s_lshl_b32 s{t+6}, s{t+1}, 13
    """)
    for i in range(8):
        a(f"s_add_u32 m0, s{t+6}, {PSCR + 1024*i}\ns_add_u32 s{t+5}, s{t+4}, {i*8*F*2}")
        a(f"buffer_load_dwordx4 v{x}, {R(R_T)}, s{t+5} offen lds")
def gujob_finish(a, t):
    x, y, z = PV, PV + 1, PV + 2
    ONE, FRG, CS = PV + 4, PV + 8, PV + 40
    a(f"""
    v_lshrrev_b32 v{z}, 4, v0
    v_bfe_u32 v{x}, v0, 2, 2
    v_lshl_add_u32 v{x}, v{z}, 3, v{x}
    v_lshlrev_b32 v{x}, 7, v{x}
    v_and_b32 v{y}, 3, v0
    v_lshl_add_u32 v{x}, v{y}, 3, v{x}
    s_add_u32 s{t+6}, s{t+6}, {PSCR}
    v_add_u32 v{x}, s{t+6}, v{x}
    v_lshlrev_b32 v{z}, 4, v{z}
    """)
    for tt in range(4):
        for u in range(2):
            for j in range(2):
                d = FRG + 8*tt + 4*u + 2*j
                a(f"ds_read_b64_tr_b16 v[{d}:{d+1}], v{x} offset:{128*(32*u+4*j) + 32*tt}")
    a(f"""
    s_mul_i32 s{t+6}, s{t+2}, 12288
    s_lshl_b32 s{t+5}, s{t+3}, 9
    s_add_u32 s{t+6}, s{t+6}, s{t+5}
    s_lshl_b32 s{t+5}, s{t+1}, 6
    s_add_u32 s{t+6}, s{t+6}, s{t+5}
    s_add_u32 s{t+6}, s{t+6}, {WS_CSP}
    """)
    for i in range(4): a(f"v_mov_b32 v{ONE+i}, 0x3f803f80")
    a("s_nop 0\ns_waitcnt lgkmcnt(0)")
    for u in range(2):
        for tt in range(4):
            a(f"v_mfma_f32_16x16x32_bf16 {v(CS+4*tt,4)}, {v(FRG+8*tt+4*u,4)}, {v(ONE,4)}, {v(CS+4*tt,4) if u else 0}")
    for tt in range(4):
        a(f"""
        s_lshl_b32 s{t+4}, s{t+3}, 2
        s_add_u32 s{t+4}, s{t+4}, {tt}
        s_mul_i32 s{t+5}, s{t+4}, 43
        s_lshr_b32 s{t+5}, s{t+5}, 8
        s_mul_i32 s{t+5}, s{t+5}, 228
        s_lshl_b32 s{t+4}, s{t+4}, 1
        s_add_u32 s{t+4}, s{t+4}, s{t+5}
        s_mul_i32 s{t+5}, s{t+2}, 24
        s_add_u32 s{t+4}, s{t+4}, s{t+5}
        s_add_u32 s{t+4}, s{t+4}, s{t+1}
        s_lshl_b32 s{t+4}, s{t+4}, 10
        s_add_u32 s{t+4}, s{t+4}, {WS_WTG}
        s_add_u32 s{t+5}, s{t+4}, 12288
        """)
        for u in range(2):
            d = FRG + 8*tt + 4*u
            a(f"buffer_store_dwordx4 v[{d}:{d+3}], v5, {WSR}, s{t+4+u} offen sc1")
    a("s_mov_b32 exec_lo, 0x10001\ns_mov_b32 exec_hi, 0x10001")
    for tt in range(4):
        a(f"buffer_store_dwordx4 v[{CS+4*tt}:{CS+4*tt+3}], v{z}, {WSR}, s{t+6} offen offset:{128*tt} sc1")
    a("s_mov_b64 exec, -1")

def prep(a, stage):
    tj = 84; sJob, sScr = tj, tj + 1
    lg = a.uid("pg"); le = a.uid("pe")
    if stage == 0:
        a(f"""
        s_sub_u32 s{sScr}, s{sW}, 1
        s_lshl_b32 s{sJob}, s{sScr}, 8
        s_add_u32 s{sJob}, s{sJob}, s{sWG}
        s_add_u32 s{sJob}, s{sJob}, 160
        s_mul_i32 s{sScr}, s{sScr}, 5120
        s_add_u32 s{sScr}, s{sScr}, {PSCR + 16384}
        """)
    a(f"s_cmp_eq_u32 s{sW}, 0\ns_cbranch_scc1 {lg}\ns_cmp_eq_u32 s{sW}, 3\ns_cbranch_scc1 {lg}\ns_cmp_ge_u32 s{sJob}, 544\ns_cbranch_scc1 {le}")
    projjob_issue(a, sJob, sScr, tj) if stage == 0 else projjob_finish(a, sScr, tj)
    a(f"s_branch {le}")
    a.label(lg)
    a(f"s_cmp_ge_u32 s{sWG}, 240\ns_cbranch_scc1 {le}")
    gujob_issue(a, sWG, tj) if stage == 0 else gujob_finish(a, tj)
    a.label(le)

def xstat_fin(a):
    t = T + 16
    a(f"s_mov_b32 s{t}, 0xffff0000\nv_mov_b64 v[232:233], 0\ns_waitcnt vmcnt(0)")
    for i in range(12):
        a(f"v_lshlrev_b32 v234, 16, v{220+i}\nv_and_b32 v235, s{t}, v{220+i}\nv_add_f32 v232, v232, v234\nv_fmac_f32 v233, v234, v234\nv_add_f32 v232, v232, v235\nv_fmac_f32 v233, v235, v235")
    for mod in ("quad_perm:[1,0,3,2]", "quad_perm:[2,3,0,1]"):
        a(f"s_nop 1\nv_add_f32_dpp v232, v232, v232 {mod} row_mask:0xf bank_mask:0xf\nv_add_f32_dpp v233, v233, v233 {mod} row_mask:0xf bank_mask:0xf")
    a(f"""
    v_bfe_u32 v234, v0, 3, 2
    v_lshlrev_b32 v234, 10, v234
    v_bfe_u32 v235, v0, 2, 1
    v_lshl_add_u32 v234, v235, 3, v234
    v_lshrrev_b32 v235, 5, v0
    v_lshl_add_u32 v234, v235, 4, v234
    s_lshr_b32 s{t}, s{sWG}, 3
    s_lshl_b32 s{t}, s{t}, 12
    s_and_b32 s{t+1}, s{sWG}, 7
    s_lshl_b32 s{t+1}, s{t+1}, 2
    s_add_u32 s{t+1}, s{t+1}, s{sW}
    s_lshl_b32 s{t+1}, s{t+1}, 5
    s_add_u32 s{t}, s{t}, s{t+1}
    s_add_u32 s{t}, s{t}, {WS_ST0}
    s_mov_b32 exec_lo, 0x11111111
    s_mov_b32 exec_hi, 0x11111111
    buffer_store_dwordx2 v[232:233], v234, {WSR}, s{t} offen sc1
    s_mov_b64 exec, -1
    """)

def nonce_put(a):
    t = T + 8
    a(f"""
    s_memrealtime s[{t}:{t+1}]
    v_mov_b32 v1, 0
    s_waitcnt lgkmcnt(0)
    s_or_b32 s{t+2}, s{t}, 0x80000000
    v_mov_b32 v2, s{t+2}
    s_mov_b64 exec, 1
    global_store_dword v1, v2, s[{P_DBG}:{P_DBG+1}] sc1
    s_mov_b64 exec, -1
    """)
def flags_zero(a):
    t = T + 16
    a(f"""
    s_lshl_b32 s{t}, s{sWG}, 5
    s_add_u32 s{t}, s{t}, {WS_FL}
    s_lshl_b32 s{t+1}, s{sWG}, 7
    s_add_u32 s{t+1}, s{t+1}, {L_FG}
    s_add_u32 s{t+2}, s{t+1}, {LSTRIDE}
    v_lshlrev_b32 v236, 2, v0
    v_mov_b32 v237, 0
    s_mov_b64 exec, 0xff
    buffer_store_dword v237, v236, {WSR}, s{t} offen sc1
    s_mov_b64 exec, 0x7ff
    buffer_store_dword v237, v236, {WSR}, s{t+1} offen sc1
    buffer_store_dword v237, v236, {WSR}, s{t+2} offen sc1
    s_mov_b64 exec, -1
    """)

def nonce_issue(a, v2, v3):
    a(f"v_mov_b32 v{v3}, 0\nglobal_load_dword v{v2}, v{v3}, s[{P_DBG}:{P_DBG+1}] sc1")
def nonce_get(a, v1, v2, v3, cnt=0):
    t = T + 14
    lp = a.uid("non"); ok = a.uid("nonok")
    a(f"s_mov_b32 s{t+6}, 0\nv_mov_b32 v{v3}, 0\ns_lshl_b32 s{t+4}, s{sWG}, 7\ns_add_u32 s{t+4}, s{t+4}, {L_FG}\ns_waitcnt vmcnt({cnt})\ns_branch {lp}c")
    a.label(lp)
    a(f"global_load_dword v{v2}, v{v3}, s[{P_DBG}:{P_DBG+1}] sc1\ns_waitcnt vmcnt(0)")
    a.label(lp + "c")
    a(f"""
    v_cmp_eq_u32 vcc, 0, v{v2}
    s_cbranch_vccz {ok}
    s_sleep 4
    s_add_u32 s{t+6}, s{t+6}, 1
    s_cmp_lt_u32 s{t+6}, {SPIN}
    s_cbranch_scc1 {lp}
    s_mov_b32 s{sTMO}, {SPIN}
    """)
    a.label(ok)
    a(f"""
    v_readfirstlane_b32 s{sEP}, v{v2}
    s_getreg_b32 s{t+6}, hwreg(HW_REG_XCC_ID, 0, 4)
    v_add_u32 v{v2}, s{t+6}, v{v2}
    s_mov_b64 exec, 1
    buffer_store_dword v{v2}, v{v3}, {WSR}, s{t+4} offen offset:32 sc1
    s_mov_b64 exec, -1
    s_waitcnt lgkmcnt(0)
    """)

def census(a, va, vt, issue, cnt=0):
    t = T + 20
    a(f"""
    v_and_b32 v{va}, 31, v0
    v_lshlrev_b32 v{va}, 7, v{va}
    s_lshl_b32 s{t}, s{sG}, 12
    s_add_u32 s{t}, s{t}, {L_FG + 32}
    """)
    if issue:
        a(f"buffer_load_dword v{vt}, v{va}, {WSR}, s{t} offen sc1")
        return
    poll(a, va, vt, f"s{t}", f"s{sEP}", sleep=4, pre=cnt)
    a(f"""
    s_getreg_b32 s{t}, hwreg(HW_REG_XCC_ID, 0, 4)
    v_cmp_ne_u32 vcc, s{t}, v{vt}
    s_cmp_eq_u64 vcc, 0
    s_cselect_b32 s{t}, 1, 0
    v_mov_b32 v{va}, {Q1_NON}
    v_mov_b32 v{vt}, s{t}
    ds_write_b32 v{va}, v{vt} offset:4
    v_mov_b32 v{vt}, s{sEP}
    ds_write_b32 v{va}, v{vt}
    s_waitcnt lgkmcnt(0)
    """)

sMODE = 14 - 14 + 98
def read_nonce_mode(a):
    a(f"v_mov_b32 v1, {Q1_NON}\nds_read_b64 v[2:3], v1\ns_waitcnt lgkmcnt(0)\nv_readfirstlane_b32 s{sEP}, v2\nv_readfirstlane_b32 s{sMODE}, v3")

def qkv_ids(a, t):
    a(f"s_lshr_b32 s{t}, s{sWG}, 4\ns_and_b32 s{t+1}, s{sR}, 15")

def qkv_compute(a, first, SB):
    t = T
    sRT, sCT, sTY, sC0 = t, t+1, t+2, t+3
    LQ = 0 if first else LSTRIDE
    sWM, sWN = t+5, t+6
    a(f"""
    s_mul_i32 s{sTY}, s{sCT}, 52
    s_lshr_b32 s{sTY}, s{sTY}, 8
    s_mul_i32 s{sC0}, s{sTY}, 5
    s_sub_u32 s{sC0}, s{sCT}, s{sC0}
    s_lshl_b32 s{sC0}, s{sC0}, 7
    s_and_b32 s{sWM}, s{sW}, 1
    s_lshr_b32 s{sWN}, s{sW}, 1
    v_lshrrev_b32 v14, 5, v0
    v_and_b32 v15, 31, v0
    """)
    ACC = 128; FR = 16; VST = 80; VCS = 96; VCV = 192; ONE = 196; AD = 200; MS = 244
    sCS = t+15
    a(f"s_lshl_b32 s{sCS}, s{sWG}, 9\ns_lshl_b32 s{t+7}, s{sWN}, 8\ns_add_u32 s{sCS}, s{sCS}, s{t+7}\ns_add_u32 s{sCS}, s{sCS}, {WS_CSQ}")
    a(f"v_lshlrev_b32 v{AD+8}, 5, v14\nv_lshlrev_b32 v{AD+9}, 2, v15")
    if first:
        a(f"""
        s_lshl_b32 s{t+7}, s{sWM}, 13
        v_lshlrev_b32 v1, 7, v15
        v_add_u32 v1, s{t+7}, v1
        v_bfe_u32 v8, v0, 1, 3
        v_xor_b32 v8, v8, v14
        """)
        for kk in range(4):
            a(f"v_xor_b32 v9, {2*kk}, v8\nv_lshl_add_u32 v{2+kk}, v9, 4, v1")
    else:
        a(f"s_lshl_b32 s{t+7}, s{sWM}, 13\nv_lshlrev_b32 v2, 4, v0\nv_add_u32 v2, s{t+7}, v2")
    a(f"""
    v_and_b32 v10, 3, v0
    v_and_b32 v11, 1, v0
    v_bfe_u32 v12, v0, 1, 1
    v_lshl_add_u32 v11, v11, 1, v12
    s_cmp_eq_u32 s{sTY}, 2
    s_cselect_b64 vcc, -1, 0
    v_cndmask_b32 v10, v11, v10, vcc
    v_bfe_u32 v8, v0, 2, 2
    v_lshl_add_u32 v9, v14, 3, v8
    v_lshlrev_b32 v9, 8, v9
    v_lshl_add_u32 v9, v10, 3, v9
    v_bfe_u32 v10, v0, 4, 1
    v_lshl_add_u32 v9, v10, 5, v9
    s_lshl_b32 s{t+7}, s{sWN}, 1
    v_xor_b32 v8, s{t+7}, v8
    v_lshl_add_u32 v6, v8, 6, v9
    v_xor_b32 v8, 1, v8
    v_lshl_add_u32 v7, v8, 6, v9
    """)
    nxa = 4 if first else 1
    W0 = 16384 if first else qkW(0)
    for i in range(4): a(f"v_add_u32 v{8+i}, {WB + 49152*(i >> 1)}, v{6 + (i & 1)}")
    VM, VR = (96, 212)
    assert Q1_TAB == qkW(4)
    for i in range(0, 64, 2): a(f"v_mov_b64 v[{ACC+i}:{ACC+i+1}], 0")
    def reads(kk):
        b = FR + 16*kk; r = []
        for tm in range(2):
            if first: r.append(f"ds_read_b128 v[{b+4*tm}:{b+4*tm+3}], v{8+kk} offset:{4096*tm}")
            else: r.append(f"ds_read_b128 v[{b+4*tm}:{b+4*tm+3}], v8 offset:{4096*tm+1024*kk}")
        for tn in range(2):
            for j in range(2):
                d = b + 8 + 4*tn + 2*j
                r.append(f"ds_read_b64_tr_b16 v[{d}:{d+1}], v{12+tn} offset:{4096*kk+1024*j}")
        return r
    def mfmas(kk, vtype, tns=(0, 1)):
        b = FR + 16*kk; m = []
        for tn in tns:
            W = v(b + 8 + 4*tn, 4)
            for tm in range(2):
                c = ACC + 16*(2*tn + tm)
                X = v(b + 4*tm, 4)
                A, B = (X, W) if vtype else (W, X)
                m.append(f"v_mfma_f32_32x32x16_bf16 {v(c,16)}, {A}, {B}, {v(c,16)}")
        return m
    sC, sSa, sSw, sMk, sDst, sD1 = t+9, t+10, t+4, t+11, t+12, 96
    qloc = C.qloc and SB == '' and not first
    vlab = a.uid("qkv_v"); fin = a.uid("qkv_fin"); done = a.uid("qkv_cdone")
    a(f"s_mov_b32 s{sC}, {10 if first else 9}\ns_mov_b32 s{sSa}, 0\ns_mov_b32 s{sSw}, {W0}")
    a(f"s_cmp_eq_u32 s{sTY}, 2\ns_cbranch_scc1 {vlab}")
    def v_tab_reads(roff):
        a(f"v_lshlrev_b32 v1, 4, v14\nv_add_u32 v1, s{t+7}, v1")
        for tm in range(2):
            for q in range(4):
                a(f"ds_read_b128 v[{VM+16*tm+4*q}:{VM+16*tm+4*q+3}], v1 offset:{(32*tm+8*q)*4}")
                a(f"ds_read_b128 v[{VR+16*tm+4*q}:{VR+16*tm+4*q+3}], v1 offset:{roff+(32*tm+8*q)*4}")
    hooks = []
    def mainloop(vtype, epi, alt=None):
        lp = a.uid("qkv_loop"); hk = a.uid("qkv_hk"); hb = a.uid("qkv_hb"); ent = a.uid("qkv_ent")
        if first: xstat_fin(a)
        stamp(a, 1 if first else 18)
        def rd(c, kk):
            b = FR + 16*kk; r = []
            for tm in range(2):
                if first: r.append(f"ds_read_b128 v[{b+4*tm}:{b+4*tm+3}], v{2+kk} offset:{(c % 4)*16384+4096*tm}")
                else: r.append(f"ds_read_b128 v[{b+4*tm}:{b+4*tm+3}], v2 offset:{(c % 4)*16384+4096*tm+1024*kk}")
            o = qkW(c) - WB
            for tn in range(2):
                for j in range(2):
                    d = b + 8 + 4*tn + 2*j
                    r.append(f"ds_read_b64_tr_b16 v[{d}:{d+1}], v{8 + 2*(o // 49152) + tn} offset:{o % 49152 + 4096*kk+1024*j}")
            return r
        mf = lambda kk, tl: mfmas(kk, vtype, (tl >> 1,))[tl & 1]
        a(f"""
        s_lshl_b32 s{sC}, s{sRT}, 1
        s_add_u32 s{sC}, s{sC}, s{sWM}
        s_lshl_b32 s{sC}, s{sC}, 12
        s_add_u32 s{sC}, s{sC}, {WS_ST0 if first else L_ST2}
        v_lshlrev_b32 v6, 4, v0
        """)
        p_ld, p_st, p_b, p_r = (28, 56, 77, 120)
        ins = {}
        if first: ins[20] = ["s_waitcnt vmcnt(0)"]
        for i in range(4): ins[p_ld + 2*i] = [f"buffer_load_dwordx4 v[{VST+4*i}:{VST+4*i+3}], v6, {WSR}, s{sC} offen offset:{1024*i} sc1"]
        b = Asm(); b("s_waitcnt vmcnt(0)"); row_stats(b, VST, MS, MS + 1)
        neg = [f"v_sub_f32 v{VCV}, 0, v{VCV}", f"v_sub_f32 v{VCV+2}, 0, v{VCV+2}"]
        if vtype:
            if not first: b("\n".join(neg))
            a(f"s_lshl_b32 s{t+7}, s{sW}, 9\ns_add_u32 s{t+7}, s{t+7}, {qkW(4)}\nv_lshlrev_b32 v12, 2, v0\nv_add_u32 v12, s{t+7}, v12\nv_lshlrev_b32 v13, 4, v14\nv_add_u32 v13, s{t+7}, v13")
            ins[p_b] = [f"ds_write_b32 v12, v{MS}", f"ds_write_b32 v12, v{MS+1} offset:256"]
            for tm in range(2):
                for q in range(4):
                    ins[p_b].append(f"ds_read_b128 v[{VM+16*tm+4*q}:{VM+16*tm+4*q+3}], v13 offset:{(32*tm+8*q)*4}")
                    ins.setdefault(p_r, []).append(f"ds_read_b128 v[{VR+16*tm+4*q}:{VR+16*tm+4*q+3}], v13 offset:{256+(32*tm+8*q)*4}")
            fix = lambda tl: [f"v_fmac_f32 v{ACC+16*tl+i}, v{VCV+2*(tl>>1)}, v{VM+16*(tl&1)+i}" for i in range(16)]
            ff = 92
        else:
            qk_stats_fin(b)
            fix = lambda tl: [f"v_fmac_f32 v{ACC+16*tl+i}, v{MS+4*(tl&1)}, v{VCS+16*(tl>>1)+i}" for i in range(16)]
            ff = 80
        ins = dict(sorted({**ins, p_st: b.lines}.items()))
        if not first:
            if C.x_q & 1: fix = lambda tl: []
            if C.x_q & 2: ins = {}
            gemm_unrolled(a, 10, 4, 6, rd, mf, [(0, 1), (2, 3)], ins, fix, ff, epi, 19, alt)
            return
        ins = {20: ["s_waitcnt vmcnt(0)"]}
        a(f"s_lshl_b32 s{t+7}, s{sWM}, 8\ns_add_u32 s{t+7}, s{t+7}, {Q1_TAB}")
        if vtype:
            a(f"v_lshlrev_b32 v13, 4, v14\nv_add_u32 v13, s{t+7}, v13")
            sr = [f"ds_read_b128 v[{R_+16*tm+4*q}:{R_+16*tm+4*q+3}], v13 offset:{o_+(32*tm+8*q)*4}" for R_, o_ in ((VM, 0), (VR, 512)) for tm in range(2) for q in range(4)]
            sf = neg
        else:
            a(f"v_add_u32 v13, s{t+7}, v{AD+9}\ns_cmp_eq_u32 s{sTY}, 0\ns_cselect_b32 s{sC}, {f32(QSCALE)}, 1.0")
            sr = [f"ds_read_b32 v{MS+4*tm+2*k_}, v13 offset:{128*tm+512*k_}" for tm in range(2) for k_ in range(2)]
            sf = [x for tm in range(2) for x in (f"v_sub_f32 v{MS+4*tm}, 0, v{MS+4*tm}", f"v_mul_f32 v{MS+4*tm+2}, s{sC}, v{MS+4*tm+2}")]
        a(f"s_lshl_b32 s{t+7}, s{sWN}, 8\ns_add_u32 s{t+7}, s{t+7}, {Q1_CS}\nv_add_u32 v7, s{t+7}, v{AD+9 if vtype else AD+8}\nv_mov_b32 v1, {Q1_NON}")
        ae = [f"ds_read_b64 v[{ONE}:{ONE+1}], v1"]
        for tn in range(2):
            if vtype: ae.append(f"ds_read_b32 v{VCV+2*tn}, v7 offset:{128*tn}")
            else: ae += [f"ds_read_b128 v[{VCS+16*tn+4*q}:{VCS+16*tn+4*q+3}], v7 offset:{(32*tn+16*(q>>1)+4*(q&1))*4}" for q in range(4)]
        def epi1(tn, pk):
            r = []
            if tn == 0: r = ["s_waitcnt lgkmcnt(0)", f"v_readfirstlane_b32 s{sEP}, v{ONE}", f"v_readfirstlane_b32 s{sMODE}, v{ONE+1}"] + sf
            if not pk: r += fix(2*tn) + fix(2*tn + 1)
            return r + epi(tn, pk)
        gemm_unrolled(a, 10, 4, 6, rd, mf, [(0, 1), (2, 3)], ins, lambda tl: [], 0, epi1, 2, None, ae + (sr if C.c_f == 9 else []), sr if C.c_f < 9 else [])
    HMASK1 = (1 << 8) | (1 << 2)
    HMASK2 = (1 << 5) | (1 << 2)
    if not first:
        for tn in range(2):
            for q in range(4):
                r = VCS + 16*tn + 4*q
                a(f"buffer_load_dwordx4 v[{r}:{r+3}], v{AD+8}, {WSR}, s{sCS} offen offset:{(32*tn+16*(q>>1)+4*(q&1))*4} sc1")
    a(f"""
    s_mul_i32 s{sDst}, s{sTY}, {ACT}
    s_lshl_b32 s{t+8}, s{sRT}, 2
    s_lshl_b32 s{t+7}, s{sWM}, 1
    s_add_u32 s{t+8}, s{t+8}, s{t+7}
    s_mul_i32 s{t+8}, s{t+8}, 1280
    s_add_u32 s{sDst}, s{sDst}, s{t+8}
    s_add_u32 s{sDst}, s{sDst}, {LQ}
    s_lshr_b32 s{t+8}, s{sC0}, 3
    s_lshl_b32 s{t+7}, s{sWN}, 3
    s_add_u32 s{t+8}, s{t+8}, s{t+7}
    v_add_u32 v80, s{t+8}, v14
    s_mov_b32 s{t+13}, {HEADB}
    v_mov_b32 v86, 0x7fffffff
    s_mov_b32 s{sMk}, 0
    s_add_u32 s{sD1}, s{sDst}, 1280
    """)
    if qloc:
        a(f"""
        s_lshl_b32 s{t+8}, s{sRT}, 1
        s_add_u32 s{t+8}, s{t+8}, s{sWM}
        s_mul_i32 s{t+8}, s{t+8}, {2*F*64}
        s_add_u32 s{t+8}, s{t+8}, {L_Q + 57344}
        s_add_u32 s{t+7}, s{t+8}, {F*64}
        s_cmp_eq_u32 s{sTY}, 0
        s_cselect_b32 s{sDst}, s{t+8}, s{sDst}
        s_cselect_b32 s{sD1}, s{t+7}, s{sD1}
        s_cselect_b32 s{t+13}, 1280, s{t+13}
        """)
    a(f"s_add_u32 s{t+14}, s{sDst}, s{t+13}\ns_add_u32 s{sD1+1}, s{sD1}, s{t+13}")
    for sl in range(4):
        a(f"""
        v_add_u32 v81, {2*sl}, v80
        v_mul_u32_u24 v82, 205, v81
        v_lshrrev_b32 v82, 10, v82
        v_mad_i32_i24 v81, v82, -5, v81
        v_cmp_lt_u32 vcc, 2, v81
        v_lshlrev_b32 v82, 1, v82
        v_add_u32 v83, -3, v81
        v_cndmask_b32 v83, v81, v83, vcc
        v_addc_co_u32 v82, vcc, 0, v82, vcc
        v_lshlrev_b32 v83, 9, v83
        v_lshl_add_u32 v83, v15, 4, v83
        v_lshlrev_b32 v85, 3, v15
        v_add_u32 v85, 1024, v85
        v_cmp_eq_u32 vcc, 2, v81
        v_mul_lo_u32 v84, v82, s{t+13}
        s_cmp_lg_u64 vcc, 0
        v_cndmask_b32 v83, v83, v86, vcc
        v_cndmask_b32 v85, v86, v85, vcc
        s_cselect_b32 s{t+7}, {1 << sl}, 0
        s_or_b32 s{sMk}, s{sMk}, s{t+7}
        v_add_u32 v{AD+sl}, v83, v84
        v_add_u32 v{AD+4+sl}, v85, v84
        """)
    def qk_stats_fin(a):
        a(f"""
        s_cmp_eq_u32 s{sTY}, 0
        s_cselect_b32 s{t+7}, {f32(QSCALE)}, 1.0
        v_mul_f32 v{MS+2}, s{t+7}, v{MS+1}
        v_mul_f32 v{MS+6}, s{t+7}, v{MS+1}
        v_sub_f32 v{MS+4}, 0, v{MS}
        v_sub_f32 v{MS}, 0, v{MS}
        s_nop 1
        v_permlane32_swap_b32 v{MS}, v{MS+4}
        v_permlane32_swap_b32 v{MS+2}, v{MS+6}
        s_nop 1
        """)
    def epi_qk(tn, pk=True, bits='sc1'):
        r = []
        for tm in range(2):
            c = ACC + 16*(2*tn + tm); cs = VCS + 16*tn; m = MS + 4*tm
            for p in range(2):
                if pk:
                    for i in range(8*p, 8*p + 8, 2):
                        if first: r.append(f"v_pk_fma_f32 v[{c+i}:{c+i+1}], v[{cs+i}:{cs+i+1}], v[{m}:{m+1}], v[{c+i}:{c+i+1}] op_sel_hi:[1,0,1]")
                    for i in range(8*p, 8*p + 8, 2):
                        r.append(f"v_pk_mul_f32 v[{c+i}:{c+i+1}], v[{c+i}:{c+i+1}], v[{m+2}:{m+3}] op_sel_hi:[1,0]")
                else:
                    for i in range(8*p, 8*p + 8): r.append(f"v_mul_f32 v{c+i}, v{m+2}, v{c+i}")
                for i in range(4):
                    r.append(f"v_cvt_pk_bf16_f32 v{c+8*p+i}, v{c+8*p+2*i}, v{c+8*p+2*i+1}")
                r.append(f"buffer_store_dwordx4 v[{c+8*p}:{c+8*p+3}], v{AD+2*tn+p}, {WSR}, s{sD1 if tm else sDst} offen {bits}")
        return r
    def bparts(bits):
        for sl in range(4):
            sk = a.uid("qk_b")
            a(f"s_bitcmp0_b32 s{sMk}, {sl}\ns_cbranch_scc1 {sk}")
            for tm in range(2):
                o = ACC + 16*(2*(sl >> 1) + tm) + 8*(sl & 1)
                a(f"buffer_store_dwordx2 v[{o}:{o+1}], v{AD+4+sl}, {WSR}, s{sD1 if tm else sDst} offen {bits}")
                a(f"buffer_store_dwordx2 v[{o+2}:{o+3}], v{AD+4+sl}, {WSR}, s{sD1+1 if tm else t+14} offen {bits}")
            a.label(sk)
        a(f"s_branch {fin}")
    if qloc: mainloop(False, epi_qk, (f"s_cmp_eq_u32 s{sTY}, 0", lambda tn, pk: epi_qk(tn, pk, ""), lambda: bparts("sc1"), lambda: bparts("")))
    else:
        mainloop(False, epi_qk); bparts("sc1")
    a.label(vlab)
    if not first:
        for tn in range(2):
            a(f"buffer_load_dword v{VCV+2*tn}, v{AD+9}, {WSR}, s{sCS} offen offset:{128*tn} sc1")
    a(f"""
    s_lshl_b32 s{t+8}, s{sRT}, 3
    s_lshl_b32 s{t+7}, s{sWM}, 2
    s_add_u32 s{t+8}, s{t+8}, s{t+7}
    s_mul_i32 s{sDst}, s{t+8}, 640
    s_add_u32 s{sDst}, s{sDst}, {L_V + LQ}
    s_lshl_b32 s{t+7}, s{sWN}, 6
    s_add_u32 s{t+8}, s{sC0}, s{t+7}
    v_add_u32 v80, s{t+8}, v15
    v_mul_u32_u24 v81, 320, v14
    s_mov_b32 s{t+13}, {HEADB}
    s_movk_i32 s{t+14}, 3277
    s_movk_i32 s{t+7}, -20
    """)
    for tn in range(2):
        a(f"""
        v_add_u32 v83, {32*tn}, v80
        v_mul_u32_u24 v84, s{t+14}, v83
        v_lshrrev_b32 v84, 16, v84
        v_mad_i32_i24 v83, v84, s{t+7}, v83
        v_lshl_add_u32 v83, v83, 4, v81
        v_mul_lo_u32 v85, v84, s{t+13}
        v_add_u32 v{AD+tn}, v83, v85
        """)
    def epi_v(tn, pk=True):
        r = []
        for tm in range(2):
            c = ACC + 16*(2*tn + tm); cv = VCV + 2*tn
            for p in range(2):
                if pk:
                    for i in range(8*p, 8*p + 8, 2):
                        if first: r.append(f"v_pk_fma_f32 v[{c+i}:{c+i+1}], v[{VM+16*tm+i}:{VM+16*tm+i+1}], v[{cv}:{cv+1}], v[{c+i}:{c+i+1}] op_sel_hi:[1,0,1]")
                    for i in range(8*p, 8*p + 8, 2):
                        r.append(f"v_pk_mul_f32 v[{c+i}:{c+i+1}], v[{c+i}:{c+i+1}], v[{VR+16*tm+i}:{VR+16*tm+i+1}]")
                else:
                    for i in range(8*p, 8*p + 8): r.append(f"v_mul_f32 v{c+i}, v{VR+16*tm+i}, v{c+i}")
                for i in range(4):
                    r.append(f"v_cvt_pk_bf16_f32 v{c+8*p+i}, v{c+8*p+2*i}, v{c+8*p+2*i+1}")
                r.append(f"buffer_store_dwordx4 v[{c+8*p}:{c+8*p+3}], v{AD+tn}, {WSR}, s{sDst} offen offset:{640*(2*tm+p)} sc1")
        return r
    mainloop(True, epi_v)
    a.label(fin)
    stamp(a, 3 if first else 20)
    flag_setup(a, 1 if first else 6)
    a(f"s_lshl_b32 s{t+7}, s{sWG}, 5\ns_add_u32 s{t+7}, s{t+7}, s{sW}\ns_lshl_b32 s{t+7}, s{t+7}, 2\ns_add_u32 s{t+7}, s{t+7}, {L_FG + LQ}")
    a("s_waitcnt vmcnt(0)")
    if first:
        l1 = a.uid("q1f"); l2 = a.uid("q1g")
        a(f"s_cmp_eq_u32 s{sMODE}, 0\ns_cbranch_scc1 {l1}")
        flag_store(a, ""); a(f"s_branch {l2}")
        a.label(l1); flag_store(a, "sc1"); a.label(l2)
    else: flag_store(a, SB)
    flag_store(a, "sc1", t+7)
    a.label(done)

def qkvW_setup(a, sWo, sLW, sCT, sTmp, vW):
    a(f"""
    v_lshrrev_b32 v2, 4, v0
    v_mul_u32_u24 v1, 3840, v2
    v_lshlrev_b32 v7, 2, v2
    v_and_b32 v3, 15, v0
    v_xor_b32 v3, v3, v7
    v_lshl_add_u32 v{vW}, v3, 4, v1
    s_mul_i32 s{sWo}, s{sLW}, {16*3840}
    s_lshl_b32 s{sTmp}, s{sCT}, 8
    s_add_u32 s{sWo}, s{sWo}, s{sTmp}
    """)

def qkv1_loader(a):
    t = T
    sRT, sCT = t, t+1
    sLW, sAo, sWo, sM, sTmp, sRot, sThr, sA1, sW1, sSel = t+2, t+3, t+4, t+5, t+6, t+8, t+9, t+10, t+11, t+12
    a(f"s_sub_u32 s{sLW}, s{sW}, 4")
    qkvW_setup(a, sWo, sLW, sCT, sTmp, 6)
    a(f"""
    s_lshl_b32 s{sM}, s{sLW}, 12
    s_lshl_b32 s{sAo}, s{sRT}, 2
    s_add_u32 s{sAo}, s{sAo}, s{sLW}
    s_mul_i32 s{sAo}, s{sAo}, {32*1280}
    v_lshrrev_b32 v1, 3, v0
    v_mul_u32_u24 v1, 1280, v1
    v_and_b32 v3, 7, v0
    v_xor_b32 v3, v3, v2
    v_lshl_add_u32 v4, v3, 4, v1
    v_xor_b32 v3, 4, v3
    v_lshl_add_u32 v5, v3, 4, v1
    """)
    a("s_waitcnt lgkmcnt(0)")
    srd(a, R_X, P_X, ACT)
    srd(a, R_WQ, P_WQKV, D*3*D*2)
    def emitA(c, i0, k):
        for i in range(i0, i0 + k):
            a(f"s_add_u32 m0, s{sM}, {(c % 4)*16384 + 1024*i}\ns_add_u32 s{sTmp}, s{sAo}, {c*128 + i*8*1280}")
            a(f"buffer_load_dwordx4 v{4 + (i & 1)}, {R(R_X)}, s{sTmp} offen lds")
    def emitW(c, i0, k):
        for i in range(i0, i0 + k):
            a(f"s_add_u32 m0, s{sM}, {qkW(c) + 1024*i}\ns_add_u32 s{sTmp}, s{sWo}, {c*64*3840 + i*4*3840}")
            a(f"buffer_load_dwordx4 v6, {R(R_WQ)}, s{sTmp} offen lds")
    LD = Loader(a); mark = [0]
    def xstats(c):
        if c == 0:
            other_srds(a)
            a(f"""
            v_bfe_u32 v8, v0, 2, 2
            v_lshrrev_b32 v9, 5, v0
            v_lshl_add_u32 v9, v9, 3, v8
            v_lshlrev_b32 v9, 8, v9
            v_and_b32 v10, 3, v0
            v_lshl_add_u32 v9, v10, 3, v9
            v_bfe_u32 v10, v0, 4, 1
            v_lshl_add_u32 v9, v10, 5, v9
            v_xor_b32 v8, s{sLW}, v8
            v_lshl_add_u32 v9, v8, 6, v9
            v_add_u32 v9, {WB}, v9
            v_add_u32 v8, 49152, v9
            """)
            for i in range(4): a(f"v_mov_b32 v{12+i}, 0x3f803f80")
        for kk in range(0 if C.nocs else 4):
            for j in range(2):
                a(f"ds_read_b64_tr_b16 v[{16+4*kk+2*j}:{17+4*kk+2*j}], v{9 if qkW(c) - WB < 49152 else 8} offset:{(qkW(c) - WB) % 49152 + 4096*kk + 1024*j}")
        a("s_waitcnt lgkmcnt(0)")
        for kk in range(0 if C.nocs else 4):
            a(f"v_mfma_f32_32x32x16_bf16 v[32:47], v[12:15], v[{16+4*kk}:{19+4*kk}], {'v[32:47]' if (c or kk) else 0}")
        n = LD.total - mark[0]
        if c in (0, C.c_i, C.c_c): mark[0] = LD.total
        def st_issue():
            census(a, 80, 81, False, n)
            a(f"s_lshl_b32 s{t+7}, s{sRT}, 13\ns_add_u32 s{t+7}, s{t+7}, {WS_ST0}\ns_add_u32 s{t+13}, s{t+7}, 4096\nv_lshlrev_b32 v82, 4, v0")
            for h_ in range(2):
                for i in range(4): a(f"buffer_load_dwordx4 v[{96+16*h_+4*i}:{99+16*h_+4*i}], v82, {WSR}, s{t+13 if h_ else t+7} offen offset:{1024*i} sc1")
        def st_fin():
            a(f"s_waitcnt vmcnt({n})\nv_lshlrev_b32 v82, 2, v0\nv_add_u32 v82, {Q1_TAB}, v82")
            for h_ in range(2):
                row_stats(a, 96 + 16*h_, 84, 85)
                a(f"ds_write_b32 v82, v84 offset:{256*h_}\nds_write_b32 v82, v85 offset:{512+256*h_}")
            a("s_waitcnt lgkmcnt(0)")
        st = {0: lambda: (flags_zero(a), nonce_issue(a, 81, 82)), 2: lambda: nonce_get(a, 80, 81, 82, n), C.c_i: lambda: census(a, 80, 81, True), C.c_c: st_issue, C.c_f: st_fin}
        if c in st:
            l = a.uid("w7")
            a(f"s_cmp_lg_u32 s{sW}, 7\ns_cbranch_scc1 {l}")
            st[c](); a.label(l)
            LD.q += [("x7", "x", 99)] * {0: 4, 2: 1, C.c_i: 1, C.c_c: 8, C.c_f: 0}[c]
    if C.q1prio: a("s_setprio 2")
    stamp(a, 1)
    ph = Phase("q1", 10, 4, 4, emitA, emitW, lambda c: ((c % 4)*16384, (c % 4)*16384 + 16384), lambda c: (qkW(c), qkW(c) + 16384),
               None, C.bud_q1, after_bar=xstats, dbg=(C.dbg == 1))
    def waitfn(w):
        l1 = a.uid("pw"); l2 = a.uid("pw"); l3 = a.uid("pw")
        a(f"s_cmp_eq_u32 s{sW}, 4\ns_cbranch_scc1 {l1}\ns_cmp_eq_u32 s{sW}, 7\ns_cbranch_scc1 {l2}\ns_waitcnt vmcnt({w+5})\ns_branch {l3}")
        a.label(l1); a(f"s_waitcnt vmcnt({w+16})\ns_branch {l3}")
        a.label(l2); a(f"s_waitcnt vmcnt({w})")
        a.label(l3)
    ph.look = C.look_q1
    LD.run(ph, None)
    a(f"""
    v_and_b32 v1, 31, v0
    v_lshlrev_b32 v1, 2, v1
    s_lshl_b32 s{sTmp}, s{sLW}, 7
    v_add_u32 v1, s{sTmp}, v1
    v_add_u32 v2, {Q1_CS}, v1
    s_lshl_b32 s{sTmp}, s{sWG}, 9
    s_add_u32 s{sTmp}, s{sTmp}, {WS_CSQ}
    s_setprio 0
    s_nop 3
    ds_write_b32 v2, v32
    buffer_store_dword v32, v1, {WSR}, s{sTmp} offen
    s_waitcnt lgkmcnt(0)
    """)
    stamp(a, 2)
    a("s_barrier")
    read_nonce_mode(a)

def other_srds(a):
    srd(a, R_WS, P_WS, WS_END)
    srd(a, R_WG, P_WG, D*F*2)
    srd(a, R_WU, P_WU, D*F*2)
    srd(a, R_T, P_WS, WS_END)

def qkv1_idle(a):
    l2 = a.uid("idl"); l1 = a.uid("idl"); l3 = a.uid("idl"); l4 = a.uid("idl"); lj = a.uid("idl")
    tj = 84; K = NAME + "_kernel"
    a(f"v_lshlrev_b32 v5, 4, v0\ns_cmp_lt_u32 s{sW}, 4\ns_cbranch_scc1 {l1}")
    a(f"s_xor_b32 s{tj}, s{sW}, 7\ns_or_b32 s{tj}, s{tj}, s{T}\ns_cmp_lg_u32 s{tj}, 0\ns_cbranch_scc1 {l3}")
    nonce_put(a)
    a.label(l3)
    a(f"s_getpc_b64 s[{tj+4}:{tj+5}]")
    a.label("L_pc")
    a(f"""
    s_sub_u32 s{tj+4}, s{tj+4}, L_pc-{K}
    s_subb_u32 s{tj+5}, s{tj+5}, 0
    s_and_b32 s{tj}, s{T}, 1
    s_lshl_b32 s{tj}, s{tj}, 2
    s_add_u32 s{tj}, s{tj}, s{sW}
    s_sub_u32 s{tj}, s{tj}, 4
    s_lshl_b32 s{tj}, s{tj}, 13
    v_lshlrev_b32 v1, 7, v0
    v_add_u32 v2, s{tj}, v1
    global_load_dword v251, v2, s[{tj+4}:{tj+5}]
    """)
    a(f"s_lshl_b32 s{tj}, s{T}, 2\ns_add_u32 s{tj}, s{tj}, s{sW}\ns_add_u32 s{tj+2}, s{tj}, {60 - 4}\ns_lshl_b32 s{tj+2}, s{tj+2}, 13")
    for i in range(4):
        if C.q1pf: a(f"buffer_load_dword v251, v1, {R(R_WQ)}, s{tj+2} offen\ns_add_u32 s{tj+2}, s{tj+2}, {64*8192}")
        if i == 0: a("s_barrier")
    a(f"s_branch {l2}")
    a.label(l1)
    xstat_fin(a)
    a(f"s_cmp_lg_u32 s{sW}, 0\ns_cbranch_scc1 {l4}")
    flags_zero(a)
    a.label(l4)
    a(f"s_waitcnt vmcnt(0)\ns_barrier\ns_cmp_lg_u32 s{sW}, 0\ns_cbranch_scc1 {l2}")
    nonce_issue(a, 81, 82)
    nonce_get(a, 80, 81, 82)
    a.label(l2)
    a(f"s_mul_i32 s{tj}, s{T}, 10\ns_add_u32 s{tj+7}, s{tj}, 10\ns_add_u32 s{tj}, s{tj}, s{sW}\ns_mul_i32 s{tj+1}, s{sW}, 5120")
    a.label(lj)
    projjob_issue(a, tj, tj+1, tj)
    a("s_waitcnt vmcnt(0)")
    projjob_finish(a, tj+1, tj)
    a(f"s_add_u32 s{tj}, s{tj}, 8\ns_cmp_lt_u32 s{tj}, s{tj+7}\ns_cbranch_scc1 {lj}")
    l5 = a.uid("idl")
    a(f"s_waitcnt vmcnt(0)\ns_barrier\ns_cmp_lg_u32 s{sW}, 0\ns_cbranch_scc1 {l5}")
    a(f"""
    s_lshl_b32 s{tj}, s{sWG}, 7
    s_add_u32 s{tj}, s{tj}, {L_FG + 36}
    v_mov_b32 v1, 0
    v_mov_b32 v2, s{sEP}
    """)
    flag_store(a, "sc1", tj)
    census(a, 80, 81, True)
    census(a, 80, 81, False)
    a.label(l5)
    a("s_barrier")
    read_nonce_mode(a)

def phase_attn(a, SB, ld_label):
    fast = SB == ""
    t = T
    CH = 20480
    sQP, sKH, sSrc, sDst, sTmp, sC, sHB = t, t+1, t+2, t+3, t+4, t+5, t+8
    sEX = t+6
    sWs, sWd, sPF = t+9, t+10, t+11
    tj = 84; sJob, sScr = tj, tj + 1
    QAREA = 102400
    QA, QB = 16, 22
    NM, SS, PP, OO, KF, VF = 32, 64, 96, 112, 144, 160
    vK, vK8, vV = 2, 3, 4
    DUM = 176; XF = 177; vX1, vX2, vO = 28, 29, 30; sO, sFB = 96, 99; XB = 102400; PR = 32
    assert C.c0
    KVB = 'nt sc1' if C.nt_kv else 'sc1'
    stamp(a, 4)
    a(f"""
    s_and_b32 s{sQP}, s{sW}, 3
    s_lshr_b32 s{sKH}, s{sW}, 2
    v_lshlrev_b32 v5, 4, v0
    s_mul_i32 s{sHB}, s{sR}, {HEADB}
    s_add_u32 s{sHB}, s{sHB}, s{sLO}
    s_and_b32 s{sTmp}, s{sQP}, 1
    s_mul_i32 s{sSrc}, s{sTmp}, 5120
    s_mul_i32 s{sDst}, s{sTmp}, 10240
    s_lshr_b32 s{sTmp}, s{sQP}, 1
    s_mul_i32 s{sC}, s{sTmp}, 5120
    s_add_u32 s{sDst}, s{sDst}, s{sC}
    s_mul_i32 s{sC}, s{sTmp}, {ACT}
    s_add_u32 s{sSrc}, s{sSrc}, s{sC}
    s_add_u32 s{sSrc}, s{sSrc}, s{sHB}
    s_add_u32 s{sSrc}, s{sSrc}, {L_K}
    """)
    def kv_issue(j):
        GF.need(0x01010101 << j)
        a(f"s_add_u32 s{sTmp}, s{sG}, {j}\ns_and_b32 s{sTmp}, s{sTmp}, 7\ns_mul_i32 s{sTmp}, s{sTmp}, 10240\ns_add_u32 s{sTmp}, s{sTmp}, s{sSrc}")
        return lin_dma(a, 5, sTmp, 0, sDst, j * CH, 5, KVB)
    def init():
        a(f"""
        v_lshrrev_b32 v14, 5, v0
        v_and_b32 v15, 31, v0
        v_lshlrev_b32 v6, 3, v15
        s_mul_i32 s{sTmp}, s{sKH}, 10240
        v_add_u32 v{vK}, s{sTmp}, v5
        v_add_u32 v{vK8}, s{sTmp}, v6
        v_mul_u32_u24 v7, 320, v14
        v_lshl_add_u32 v7, v15, 4, v7
        v_add_u32 v{vV}, s{sTmp}, v7
        s_mov_b32 s{sEX}, 0x000fffff
        s_mov_b32 s{sEX+1}, 0x000fffff
        s_mov_b32 s{t+16}, -1
        s_mov_b32 s{t+17}, 0
        v_and_b32 v9, 27, v0
        v_cmp_eq_u32 vcc, 24, v9
        v_mov_b32 v8, 0x3f803f80
        s_nop 0
        v_cndmask_b32 v8, 0, v8, vcc
        v_mov_b32 v9, v8
        v_lshlrev_b32 v13, 7, v0
        v_mov_b32 v12, 0
        """)
        for i in range(0, 16, 2): a(f"v_mov_b64 v[{VF+i}:{VF+i+1}], v[8:9]")
        for i in range(0, 32, 2): a(f"v_mov_b64 v[{OO+i}:{OO+i+1}], 0")
        for i in range(0, 8, 2): a(f"v_mov_b64 v[{PP+8+i}:{PP+8+i+1}], 0")
        a(f"v_mov_b64 v[{QA+4}:{QA+5}], 0\nv_mov_b64 v[{QB+4}:{QB+5}], 0")
        a(f"""
        s_mul_i32 s{sC}, s{sQP}, 7168
        s_add_u32 s{sC}, s{sC}, {XB}
        v_add_u32 v{vX1}, s{sC}, v5
        v_lshrrev_b32 v{vX2}, 1, v5
        v_add_u32 v{vX2}, s{sC}, v{vX2}
        s_lshl_b32 s{sTmp}, s{sQP}, 2
        s_add_u32 s{sTmp}, s{sTmp}, {XB + 28672}
        v_mov_b32 v{XF}, s{sTmp}
        s_mul_i32 s{sTmp}, s{sR}, 5
        v_add_u32 v{vO}, s{sTmp}, v14
        v_lshrrev_b32 v10, 1, v{vO}
        v_and_b32 v{vO}, 1, v{vO}
        v_lshlrev_b32 v{vO}, 3, v{vO}
        v_lshl_add_u32 v{vO}, v10, 9, v{vO}
        v_lshl_add_u32 v{vO}, v15, 4, v{vO}
        s_lshl_b32 s{sTmp}, s{sG}, 2
        s_add_u32 s{sTmp}, s{sTmp}, s{sQP}
        s_mul_i32 s{sO}, s{sTmp}, 81920
        {"" if fast else f"s_add_u32 s{sO}, s{sO}, s{sLO}"}
        s_add_u32 s{sO}, s{sO}, {L_O}
        s_add_u32 s{sO+1}, s{sO}, 40960
        s_mov_b32 s{sFB}, 0
        """)
        if C.c0:
            for st_ in range(2): a(f"v_mov_b32 v{KF+8*st_+4}, 0x3f803f80\nv_mov_b32 v{KF+8*st_+5}, 0x3f80")
    init()
    l0 = a.uid("att_old"); l1 = a.uid("att_j")
    a(f"s_cmp_eq_u32 s{sKH}, 0\ns_cbranch_scc1 {l0}")
    poll_local(a, "attn", 1, va=10, vt=11)
    stamp(a, 5)
    a(f"""
    s_mul_i32 s{sC}, s{sQP}, 2560
    s_add_u32 s{sPF}, s{sC}, {QAREA}
    s_mul_i32 s{sTmp}, s{sG}, 10240
    s_add_u32 s{sTmp}, s{sTmp}, s{sC}
    s_add_u32 s{sTmp}, s{sTmp}, s{sHB}
    """)
    a(f"s_add_u32 s{sC}, s{sTmp}, 1280")
    if fast and C.qloc:
        a(f"""
        s_lshl_b32 s{sWs}, s{sG}, 2
        s_add_u32 s{sWs}, s{sWs}, s{sQP}
        s_mul_i32 s{sWs}, s{sWs}, {2*F*64}
        s_mul_i32 s{sWd}, s{sR}, 1280
        s_add_u32 s{sWs}, s{sWs}, s{sWd}
        s_add_u32 s{sWs}, s{sWs}, {L_Q + 57344}
        s_add_u32 s{sWd}, s{sWs}, {F*64}
        s_cmp_lg_u32 s{sL}, 0
        s_cselect_b32 s{sTmp}, s{sWs}, s{sTmp}
        s_cselect_b32 s{sC}, s{sWd}, s{sC}
        """)
    for x, sr in ((0, sTmp), (1, sC)):
        a(f"""
        s_add_u32 m0, s{sPF}, {1280*x}
        s_mov_b64 exec, -1
        buffer_load_dwordx4 v5, {WSR}, s{sr} offen {KVB} lds
        s_mov_b64 exec, 0xffff
        buffer_load_dwordx4 v5, {WSR}, s{sr} offen offset:1024 {KVB} lds
        """)
    a("s_mov_b64 exec, -1")
    a(f"s_mul_i32 s{sTmp}, s{sG}, 10240\ns_add_u32 s{sTmp}, s{sTmp}, s{sSrc}")
    lin_dma(a, 5, sTmp, 0, sDst, 0, 2, KVB)
    if C.stage: a(f"s_waitcnt vmcnt({C.stage - 1})")
    lin_dma(a, 5, sTmp, 2048, sDst, 2048, 3, KVB)
    if C.stage != 1: a(f"s_waitcnt vmcnt(3)")
    a(f"s_branch {l1}")
    a.label(l0)
    a(f"""
    s_setprio 1
    v_add_u32 v10, s{sG}, v0
    v_and_b32 v10, 7, v10
    v_bfe_u32 v11, v0, 3, 1
    v_mul_u32_u24 v11, 19, v11
    s_mul_i32 s{sTmp}, s{sR}, 20
    v_add_u32 v11, s{sTmp}, v11
    v_lshrrev_b32 v11, 7, v11
    v_lshl_add_u32 v10, v10, 5, v11
    s_and_b32 s{sTmp}, s{sQP}, 1
    s_lshl_b32 s{sTmp}, s{sTmp}, 4
    s_lshr_b32 s{sC}, s{sQP}, 1
    s_mul_i32 s{sC}, s{sC}, 5
    s_add_u32 s{sTmp}, s{sTmp}, s{sC}
    s_add_u32 s{sTmp}, s{sTmp}, 5
    v_add_u32 v10, s{sTmp}, v10
    v_lshlrev_b32 v12, 7, v10
    v_lshrrev_b32 v11, 4, v0
    v_lshl_add_u32 v12, v11, 2, v12
    s_and_b32 s{sWs}, s{sR}, 7
    s_mul_i32 s{sWs}, s{sWs}, 102400
    s_mul_i32 s{sWd}, s{sW}, 5120
    s_add_u32 s{sWs}, s{sWs}, s{sWd}
    s_add_u32 s{sWs}, s{sWs}, {WS_WTO}
    s_add_u32 s{sGO}, s{sLO}, {L_FG}
    s_add_u32 s{sGW}, s{sEP}, 1
    """)
    def cpf(lo, hi):
        l = a.uid("cpf"); pc = a.uid("pc")
        a(f"s_or_b32 s{sC}, s{sL}, s{sW}\ns_cmp_lg_u32 s{sC}, 0\ns_cbranch_scc1 {l}\ns_getpc_b64 s[{t+12}:{t+13}]")
        a.label(pc)
        a(f"""
        s_sub_u32 s{t+12}, s{t+12}, {pc}-{NAME}_kernel
        s_subb_u32 s{t+13}, s{t+13}, 0
        s_lshl_b32 s{sC}, s{sR}, 11
        s_add_u32 s{sC}, s{sC}, {lo}-{NAME}_kernel
        v_add_u32 v{PV+2}, s{sC}, v13
        v_min_u32 v{PV+2}, {hi}-{NAME}_kernel, v{PV+2}
        s_mov_b64 exec, 0xffff
        global_load_dword v{DUM}, v{PV+2}, s[{t+12}:{t+13}]
        s_mov_b64 exec, -1
        """)
        a.label(l)
    if fast and C.cpf: cpf("L_fast", "L_fast_post")
    a.label(l1)
    GF = Gate(a, 12, PV, fold=True, sleep=2)
    a(f"""
    s_mul_i32 s{sC}, s{sQP}, 2560
    s_add_u32 s{sC}, s{sC}, {QAREA}
    v_add_u32 v10, s{sC}, v5
    v_add_u32 v11, s{sC}, v6
    s_barrier
    ds_read_b128 v[{QA}:{QA+3}], v10
    ds_read_b128 v[{QB}:{QB+3}], v10 offset:1280
    s_mov_b32 exec_hi, 0
    ds_read_b64 v[{QA+4}:{QA+5}], v11 offset:1024
    ds_read_b64 v[{QB+4}:{QB+5}], v11 offset:{1280+1024}
    s_mov_b32 exec_hi, -1
    """)
    stamp(a, 6)
    l1 = a.uid("att_ap")
    a(f"s_cmp_lg_u32 s{sKH}, 0\ns_cbranch_scc1 {l1}")
    GF.load()
    a.label(l1)
    base = [0]
    def rdK(st, c, kt):
        off = c * CH + kt * 1280 - base[0]
        assert 0 <= off and off + 1024 < 65536
        b = KF + 8*st
        if C.c0: return [f"s_mov_b64 exec, s[{t+16}:{t+17}]", f"ds_read_b64 v[{b+4}:{b+5}], v{vK8} offset:{off+1024}", "s_mov_b64 exec, -1", f"ds_read_b128 v[{b}:{b+3}], v{vK} offset:{off}"]
        return [f"ds_read_b128 v[{b}:{b+3}], v{vK} offset:{off}", f"ds_read_b64 v[{b+4}:{b+5}], v{vK8} offset:{off+1024}"]
    def rdV(st, c, kt):
        off = c * CH + 5120 + kt * 1280 - base[0]
        assert 0 <= off and off + 640 < 65536
        b = VF + 8*st
        return [f"s_mov_b64 exec, s[{sEX}:{sEX+1}]", f"ds_read_b128 v[{b}:{b+3}], v{vV} offset:{off}",
                f"ds_read_b128 v[{b+4}:{b+7}], v{vV} offset:{off+640}", f"s_mov_b64 exec, -1"]
    def qk(x, st, c=None):
        b = KF + 8*st; q = (QA, QB)[x]; sd = SS + 16*x
        cc = v(NM + 16*x, 16) if (c is None and not C.c0) else '0'
        return [f"v_mfma_f32_32x32x16_bf16 {v(sd,16)}, {v(b,4)}, {v(q,4)}, {cc}",
                f"v_mfma_f32_32x32x8_bf16 {v(sd,16)}, {v(b+4,2)}, {v(q+4,2)}, {v(sd,16)}"]
    def pv(x, st):
        b = VF + 8*st; p = PP + 8*x; o = OO + 16*x
        return [f"v_mfma_f32_32x32x16_bf16 {v(o,16)}, {v(b,4)}, {v(p,4)}, {v(o,16)}",
                f"v_mfma_f32_32x32x16_bf16 {v(o,16)}, {v(b+4,4)}, {v(p+4,4)}, {v(o,16)}"]
    def sm(x):
        sd = SS + 16*x; p = PP + 8*x; r = []
        for i in range(8):
            r.append(f"v_exp_f32 v{sd+2*i}, v{sd+2*i}")
            r.append(f"v_exp_f32 v{sd+2*i+1}, v{sd+2*i+1}")
            if i > 0: r.append(f"v_cvt_pk_bf16_f32 v{p+i-1}, v{sd+2*i-2}, v{sd+2*i-1}")
        r.append(f"v_cvt_pk_bf16_f32 v{p+7}, v{sd+14}, v{sd+15}")
        return r
    def setm():
        for x in range(2): a(f"v_mov_b32 v{10+x}, v{8+x}")
        a("s_nop 0")
        for x in range(2): a(f"v_permlane32_swap_b32 v{8+x}, v{10+x}")
        a("s_nop 0")
        for x in range(2): a(f"v_max_f32 v{8+x}, v{8+x}, v{10+x}")
        if C.c0:
            a("s_mov_b32 exec_lo, 0")
            for x in range(2):
                q = (QA, QB)[x] + 4; r = NM + 4*x
                a(f"""
                v_sub_f32 v{r}, 0, v{8+x}
                v_and_b32 v{r+1}, 0xffff0000, v{r}
                v_sub_f32 v{r+2}, v{r}, v{r+1}
                v_and_b32 v{r+3}, 0xffff0000, v{r+2}
                v_sub_f32 v{r+2}, v{r+2}, v{r+3}
                v_lshrrev_b32 v{r+1}, 16, v{r+1}
                v_or_b32 v{q}, v{r+1}, v{r+3}
                v_lshrrev_b32 v{q+1}, 16, v{r+2}
                """)
            a("s_mov_b32 exec_lo, -1")
            return
        for x in range(2):
            a(f"v_sub_f32 v{NM+16*x}, 0, v{8+x}\nv_sub_f32 v{NM+16*x+1}, 0, v{8+x}")
            for i in range(2, 16, 2): a(f"v_mov_b64 v[{NM+16*x+i}:{NM+16*x+i+1}], v[{NM+16*x}:{NM+16*x+1}]")
    for x in rdK(0, 0, 0): a(x)
    a("s_waitcnt lgkmcnt(0)")
    m = qk(0, 0, "0") + qk(1, 0, "0")
    for i in (0, 1, 2, 3): a(m[i])
    a.nop(10)
    for x in range(2):
        sd = SS + 16*x
        a(f"v_max3_f32 v{8+x}, v{sd}, v{sd+1}, v{sd+2}")
        for i in range(3, 15, 2):
            a(f"v_max3_f32 v{8+x}, v{8+x}, v{sd+i}, v{sd+i+1}")
        a(f"v_max_f32 v{8+x}, v{8+x}, v{sd+15}")
    setm()
    for i in range(16): a(f"v_sub_f32 v{SS+i}, v{SS+i}, v8")
    l1 = a.uid("att_w0"); l2 = a.uid("att_w1")
    sDone = t + 15
    a(f"s_cmp_eq_u32 s{sKH}, 0\ns_cbranch_scc1 {l1}\ns_waitcnt vmcnt(0)\ns_barrier\ns_branch {l2}")
    a.label(l1)
    a("s_barrier")
    GF.upd()
    a(f"s_and_b32 s{sDone}, s{sNR}, 0x02020202\ns_cbranch_scc1 {l2}")
    GF.ok = 0x02020202; kv_issue(1); GF.ok = 0
    a.label(l2)
    stamp(a, 7)
    cstamp(a, 0)
    def l0only(fn):
        l = a.uid("l0")
        a(f"s_cmp_lg_u32 s{sL}, 0\ns_cbranch_scc1 {l}")
        fn(); a.label(l)
    def l2pf(i0, n):
        for i in range(i0, min(i0 + n, (C.l2pf + 3) // 4)):
            l = a.uid("pfs")
            a(f"""
            s_cmp_ge_u32 s{sW}, {C.l2pf - 4*i}
            s_cbranch_scc1 {l}
            s_lshr_b32 s{sPF}, s{sR}, 4
            s_mul_i32 s{sPF}, s{sPF}, {15 if C.rot_gu else 1}
            s_mul_i32 s{sC}, s{sW}, {1 if C.rot_gu else 2}
            s_add_u32 s{sPF}, s{sPF}, s{sC}
            s_add_u32 s{sPF}, s{sPF}, {4*i if C.rot_gu else 8*i}
            s_lshl_b32 s{sPF}, s{sPF}, 13
            s_and_b32 s{sC}, s{sR}, 15
            s_mul_i32 s{sC}, s{sC}, 245760
            s_add_u32 s{sPF}, s{sPF}, s{sC}
            s_add_u32 s{sPF}, s{sPF}, {WS_WTG}
            buffer_load_dword v{DUM}, v13, {WSR}, s{sPF} offen
            """)
            a.label(l)
    def evpf(i):
        a(f"""
        s_lshr_b32 s{sPF}, s{sR}, 4
        s_lshl_b32 s{sC}, s{sW}, 1
        s_add_u32 s{sPF}, s{sPF}, s{sC}
        s_mul_i32 s{sPF}, s{sPF}, 24576
        s_and_b32 s{sC}, s{sR}, 15
        s_mul_i32 s{sC}, s{sC}, 245760
        s_add_u32 s{sPF}, s{sPF}, s{sC}
        s_add_u32 s{sPF}, s{sPF}, {WS_WTG + 49152 + 8192*i}
        buffer_load_dword v{DUM}, v13, {WSR}, s{sPF} offen
        """)
    if C.ev1:
        l2pf = lambda i0, n: [evpf(i) for i in range(i0, min(i0 + n, C.ev1))]
    def wwo(c): lin_dma(a, 5, sWs, c*20480, sWd, c*20480, 5, 'nt' if C.nt_wo else '')
    def fp():
        a(f"""
        s_lshl_b32 s{sC}, s{sWG}, 5
        s_add_u32 s{sC}, s{sC}, s{sW}
        s_lshl_b32 s{sC}, s{sC}, 2
        s_add_u32 s{sC}, s{sC}, {L_FG + 16}
        v_mov_b32 v10, 0
        v_mov_b32 v11, s{sEP}
        s_mov_b64 exec, 1
        buffer_store_dword v11, v10, {WSR}, s{sC} offen sc1
        s_mov_b64 exec, -1
        """)
    def cs1():
        l = a.uid("cs")
        a(f"s_cmp_lg_u32 s{sW}, 3\ns_cbranch_scc1 {l}\ns_mov_b32 exec_hi, 0xffff")
        a(f"s_and_b32 s{sC}, s{sR}, 15\ns_mul_i32 s{sC}, s{sC}, 768\ns_add_u32 s{sC}, s{sC}, {WS_CSP}")
        for i in range(10):
            a(f"buffer_load_dwordx4 v[{PV+4*i}:{PV+3+4*i}], v5, {WSR}, s{sC} offen\ns_add_u32 s{sC}, s{sC}, 12288")
        a("s_mov_b32 exec_hi, -1")
        a.label(l)
    def cs2():
        l = a.uid("cs")
        a(f"s_cmp_lg_u32 s{sW}, 3\ns_cbranch_scc1 {l}\ns_mov_b32 exec_hi, 0xffff")
        for i in range(1, 10):
            a(f"v_pk_add_f32 v[{PV}:{PV+1}], v[{PV}:{PV+1}], v[{PV+4*i}:{PV+1+4*i}]\nv_pk_add_f32 v[{PV+2}:{PV+3}], v[{PV+2}:{PV+3}], v[{PV+2+4*i}:{PV+3+4*i}]")
        a(f"s_mul_i32 s{sC}, s{sWG}, 768\ns_add_u32 s{sC}, s{sC}, {WS_CSG}")
        a(f"buffer_store_dwordx4 v[{PV}:{PV+3}], v5, {WSR}, s{sC} offen\ns_mov_b32 exec_hi, -1")
        a.label(l)
    def fpw():
        a(f"s_lshl_b32 s{sC}, s{sW}, 13\ns_add_u32 s{sC}, s{sC}, {L_FG + 16}")
        poll(a, 13, PV, f"s{sC}", f"s{sEP}", sleep=2, wide=True)
    def wow():
        a(f"v_and_b32 v{PV+1}, 15, v0\nv_lshlrev_b32 v{PV+1}, 11, v{PV+1}\ns_mov_b32 s{sC}, {L_FG + 15*128 + 36}")
        poll(a, PV + 1, PV, f"s{sC}", f"s{sEP}", sleep=2)
    def l1only(fn):
        l = a.uid("l1")
        a(f"s_cmp_eq_u32 s{sL}, 0\ns_cbranch_scc1 {l}")
        fn(); a.label(l)
    def hook(j):
        if j == 1:
            kv_issue(2); kv_issue(3); a("s_waitcnt vmcnt(10)")
        GF.ok &= 0x0f0f0f0f
        W = lambda n_: a(f"s_waitcnt vmcnt({n_})")
        if j == 2: l0only(lambda: (W(0), prep(a, 0))); l1only(lambda: (W(5), kv_issue(4)))
        if j == 3:
            l0only(lambda: (kv_issue(4), kv_issue(5))); GF.ok &= 0x0f0f0f0f
            l1only(lambda: (W(5), kv_issue(5), kv_issue(6)))
        if j == 4: l0only(lambda: (W(5), prep(a, 1))); l1only(lambda: (W(10), kv_issue(7)))
        if j == 5: l0only(lambda: (wow(), fp(), kv_issue(6), kv_issue(7))); l1only(lambda: (W(10), wwo(0), wwo(1), l2pf(0, 1)))
        if j == 6:
            l0only(lambda: (W(0), wwo(0), wwo(1))); l1only(lambda: W(10))
            wwo(2); wwo(3)
            if fast and C.cpf: cpf("L_fast_tail", "L_fast_end")
            l1only(lambda: l2pf(1, 1))
        if j == 7:
            l0only(fpw)
            wwo(4)
            l1only(lambda: l2pf(2, 2))
        if fast and j == C.oxh:
            a(f"""
            s_lshl_b32 s{sPF}, s{sWG}, 1
            s_and_b32 s{sC}, s{sW}, 1
            s_add_u32 s{sPF}, s{sPF}, s{sC}
            s_mul_i32 s{sPF}, s{sPF}, 5120
            s_mov_b32 s{sC}, {L_O}
            s_bitcmp1_b32 s{sW}, 1
            s_cselect_b32 s{sC}, {L_X1}, s{sC}
            s_add_u32 s{sPF}, s{sPF}, s{sC}
            s_mov_b32 exec_hi, 0xff
            buffer_load_dword v{DUM}, v13, {WSR}, s{sPF} offen
            s_lshl_b32 s{sTmp}, s{sWG}, 9
            s_add_u32 s{sTmp}, s{sTmp}, s{sLO}
            s_add_u32 s{sTmp}, s{sTmp}, {L_ST1}
            s_mov_b64 exec, 15
            buffer_load_dword v{DUM}, v13, {WSR}, s{sTmp} offen
            s_mov_b64 exec, -1
            """)
        if fast and j == C.hth:
            a(f"""
            s_lshl_b32 s{sPF}, s{sWG}, 2
            s_add_u32 s{sPF}, s{sPF}, s{sQP}
            s_mul_i32 s{sPF}, s{sPF}, 6144
            s_add_u32 s{sPF}, s{sPF}, {L_Q}
            s_mov_b32 exec_hi, 0xffff
            buffer_load_dword v{DUM}, v13, {WSR}, s{sPF} offen
            s_mov_b32 exec_hi, -1
            """)
    def xreads():
        r = [f"ds_read_b32 v31, v{XF}"]
        for x in range(2): r.append(f"ds_read_b64 v[{PR+12+16*x}:{PR+13+16*x}], v{vX2} offset:{3584*x+3072}")
        for x in range(2):
            for i in range(3): r.append(f"ds_read_b128 v[{PR+16*x+4*i}:{PR+16*x+4*i+3}], v{vX1} offset:{3584*x+1024*i}")
        return r
    outl = []
    for c in range(8):
        for kt in range(4):
            st = kt & 1
            last = c == 7 and kt == 3
            if c == 0 and kt == 1:
                hk = a.uid("att_hk")
                a(f"s_cmp_eq_u32 s{sKH}, 0\ns_cbranch_scc1 {hk}"); a.label(hk + "r")
                def h0():
                    l = a.uid("h0")
                    a(f"s_cmp_eq_u32 s{sDone}, 0\ns_cbranch_scc1 {l}")
                    kv_issue(1)
                    a.label(l)
                outl.append((hk, h0))
            j = c + 1 if (kt == 3 and c < 6) else (7 if (c == 7 and kt == 0) else None)
            if j:
                hk = a.uid("att_hk")
                dstamp(a, 6, 3*j)
                a(f"s_cmp_eq_u32 s{sKH}, 0\ns_cbranch_scc1 {hk}")
                if C.flip and j < 7: a("s_setprio 2")
                a.label(hk + "r")
                dstamp(a, 6, 3*j+1)
                a("s_barrier")
                dstamp(a, 6, 3*j+2)
                cstamp(a, j)
                outl.append((hk, (lambda jj: (lambda: hook(jj)))(j)))
                if j == 7 and C.ev0:
                    hk = a.uid("att_hk")
                    a(f"s_or_b32 s{sC}, s{sKH}, s{sL}\ns_cbranch_scc0 {hk}"); a.label(hk + "r")
                    outl.append((hk, lambda: [evpf(i) for i in range(C.ev0)]))
            if C.flip and 1 <= c < 7 and kt == C.flip - 1: a("s_setprio 1")
            val = sm(0)
            mf = qk(1, st) + pv(1, st ^ 1)
            ex = rdV(st, c, kt)
            if kt == 3 and c in (2, 5):
                base[0] += 3 * CH
                ex += [f"v_add_u32 v{r}, {3*CH}, v{r}" for r in (vK, vK8, vV)]
            if not last: ex += rdK(st ^ 1, c + (kt + 1) // 4, (kt + 1) % 4)
            cut = 4
            if C.c0 and len(ex) == 8: del ex[3]; cut = 6
            a(mf[0]); [a(x) for x in ex[:cut]]; [a(x) for x in val[0:6]]
            a(mf[2]); [a(x) for x in ex[cut:]]; [a(x) for x in val[6:12]]
            a(mf[1]); [a(x) for x in val[12:18]]
            a(mf[3]); [a(x) for x in val[18:]]
            val = sm(1)
            a("s_waitcnt lgkmcnt(0)")
            if not last:
                mf = qk(0, st ^ 1) + pv(0, st)
                a(mf[0]); [a(x) for x in val[0:6]]
                a(mf[2]); [a(x) for x in val[6:12]]
                a(mf[1]); [a(x) for x in val[12:18]]
                a(mf[3]); [a(x) for x in val[18:]]
            else:
                mf = pv(0, st) + pv(1, st)
                a(mf[0]); [a(x) for x in val[0:6]]
                a(mf[1]); [a(x) for x in xreads()]; [a(x) for x in val[6:16]]
                a(mf[2]); [a(x) for x in val[16:]]
                a("s_nop 1"); a(mf[3])
    if fast: a.label("L_fast_tail")
    stamp(a, 8)
    cstamp(a, 8)
    fb = a.uid("att_fb"); comb = a.uid("att_comb"); done = a.uid("att_done"); yng = a.uid("att_y")
    def check():
        a(f"v_mul_f32 v10, {f32(2.0**63)}, v{OO+12}\nv_mul_f32 v11, {f32(2.0**63)}, v{OO+16+12}")
        a(f"v_add_f32 v10, v10, v10\nv_add_f32 v11, v11, v11\nv_mul_f32 v10, 0, v10\nv_mul_f32 v11, 0, v11")
        for i in range(12): a(f"v_fmac_f32 v10, 0, v{OO+i}\nv_fmac_f32 v11, 0, v{OO+16+i}")
        a(f"v_cmp_u_f32 vcc, v10, v11\ns_cbranch_vccnz {fb}")
    a(f"s_cmp_eq_u32 s{sKH}, 0\ns_cbranch_scc1 {yng}")
    def older():
        a.label(yng)
        a.nop(10)
        check()
        a.label(yng + "c")
        a(f"v_mov_b32 v{OO+13}, v8\nv_mov_b32 v{OO+16+13}, v9\nv_mov_b32 v10, s{sEP}")
        for x in range(2):
            for i in range(3):
                a(f"ds_write_b128 v{vX1}, v[{OO+16*x+4*i}:{OO+16*x+4*i+3}] offset:{3584*x+1024*i}")
            a(f"ds_write_b64 v{vX2}, v[{OO+16*x+12}:{OO+16*x+13}] offset:{3584*x+3072}")
        a(f"ds_write_b32 v{XF}, v10")
        l0only(lambda: (cs1(), l2pf(0, C.l2pf0)))
        a("s_waitcnt vmcnt(0) lgkmcnt(0)")
        l0only(cs2)
        a(f"s_setprio 0")
        stamp(a, 9)
    pl = a.uid("att_x")
    a(f"s_waitcnt lgkmcnt(0)\nv_cmp_ne_u32 vcc, s{sEP}, v31\ns_cbranch_vccnz {pl}")
    a.label(pl + "k")
    def respin():
        a.label(comb)
        a(f"s_mov_b32 s{sFB}, 1\ns_cmp_eq_u32 s{sKH}, 0\ns_cbranch_scc1 {yng}c")
        a.label(pl)
        a(f"s_mov_b32 s{t+12}, 0")
        a.label(pl + "l")
        for x in xreads(): a(x)
        a(f"""
        s_waitcnt lgkmcnt(0)
        v_cmp_ne_u32 vcc, s{sEP}, v31
        s_cbranch_vccz {pl}k
        s_add_u32 s{t+12}, s{t+12}, 1
        s_cmp_lt_u32 s{t+12}, {4*SPIN}
        s_cbranch_scc1 {pl}l
        s_branch {pl}k
        """)
    FF = 64
    for x in range(2):
        f = FF + 4*x
        a(f"v_max_f32 v{f+2}, v{8+x}, v{PR+13+16*x}\nv_sub_f32 v{f}, v{8+x}, v{f+2}\nv_sub_f32 v{f+1}, v{PR+13+16*x}, v{f+2}")
    for x in range(2):
        f = FF + 4*x
        a(f"v_exp_f32 v{f}, v{f}\nv_exp_f32 v{f+1}, v{f+1}")
    for x in range(2):
        f = FF + 4*x; o = OO + 16*x; pk = 72 + 6*x
        a(f"v_mul_f32 v{f+2}, v{f}, v{o+12}\nv_fmac_f32 v{f+2}, v{f+1}, v{PR+12+16*x}\nv_rcp_f32 v{f+2}, v{f+2}\ns_nop 0")
        a(f"v_mul_f32 v{f}, v{f}, v{f+2}\nv_mul_f32 v{f+2}, v{f+1}, v{f+2}")
        for i in range(0, 12, 2):
            a(f"v_pk_mul_f32 v[{o+i}:{o+i+1}], v[{o+i}:{o+i+1}], v[{f}:{f+1}] op_sel_hi:[1,0]")
        for i in range(0, 12, 2):
            a(f"v_pk_fma_f32 v[{o+i}:{o+i+1}], v[{PR+16*x+i}:{PR+1+16*x+i}], v[{f+2}:{f+3}], v[{o+i}:{o+i+1}] op_sel_hi:[1,0,1]")
        for i in range(6):
            a(f"v_cvt_pk_bf16_f32 v{pk+i}, v{o+2*i}, v{o+2*i+1}")
        a(f"""
        buffer_store_dwordx2 v[{pk}:{pk+1}], v{vO}, {WSR}, s{sO+x} offen {SB}
        buffer_store_dwordx2 v[{pk+2}:{pk+3}], v{vO}, {WSR}, s{sO+x} offen offset:512 {SB}
        s_mov_b32 exec_hi, 0
        buffer_store_dwordx2 v[{pk+4}:{pk+5}], v{vO}, {WSR}, s{sO+x} offen offset:1024 {SB}
        s_mov_b32 exec_hi, -1
        """)
    nck = a.uid("att_nc")
    a(f"s_cmp_lg_u32 s{sFB}, 0\ns_cbranch_scc1 {nck}")
    check()
    a.label(nck)
    flag_setup(a, 2)
    a("s_setprio 0\ns_waitcnt vmcnt(0)")
    flag_store(a, SB)
    a("s_barrier")
    l = a.uid("fk")
    a(f"s_xor_b32 s{sC}, s{sW}, 4\ns_or_b32 s{sC}, s{sC}, s{sL}\ns_cmp_lg_u32 s{sC}, 0\ns_cbranch_scc1 {l}\ns_lshl_b32 s{sC}, s{sWG}, 7\ns_add_u32 s{sC}, s{sC}, {L_FG + 40}")
    flag_store(a, "sc1", sC)
    a.label(l)
    stamp(a, 9)
    a(f"s_branch {ld_label}")
    for hk, fn in outl:
        a.label(hk); fn(); a(f"s_branch {hk}r")
    respin()
    older()
    def fallback():
        a.label(fb)
        sKb, sVb, sI = t+12, t+13, t+14
        def addr():
            a(f"""
            s_lshr_b32 s{sKb}, s{sI}, 2
            s_lshl_b32 s{sKb}, s{sKb}, 1
            s_add_u32 s{sKb}, s{sKb}, s{sKH}
            s_lshl_b32 s{sKb}, s{sKb}, 2
            s_and_b32 s{sVb}, s{sI}, 3
            s_add_u32 s{sKb}, s{sKb}, s{sVb}
            s_mul_i32 s{sKb}, s{sKb}, 1280
            s_add_u32 s{sKb}, s{sKb}, s{sHB}
            s_add_u32 s{sVb}, s{sKb}, {L_V}
            s_add_u32 s{sKb}, s{sKb}, {L_K}
            buffer_load_dwordx4 v[{KF}:{KF+3}], v5, {WSR}, s{sKb} offen sc1
            s_mov_b32 exec_hi, {0 if C.c0 else -1}
            buffer_load_dwordx2 v[{KF+4}:{KF+5}], v6, {WSR}, s{sKb} offen offset:1024 sc1
            s_mov_b32 exec_hi, -1
            """)
        l1 = a.uid("att_fb1"); l2 = a.uid("att_fb2")
        a(f"s_mov_b32 s{sI}, 0\nv_mov_b32 v8, 0xff800000\nv_mov_b32 v9, 0xff800000")
        a(f"s_mov_b32 exec_lo, 0\nv_mov_b64 v[{QA+4}:{QA+5}], 0\nv_mov_b64 v[{QB+4}:{QB+5}], 0\ns_mov_b32 exec_lo, -1")
        a.label(l1)
        addr()
        a("s_waitcnt vmcnt(0)")
        for x in range(2):
            for m in qk(x, 0, "0"): a(m)
        a.nop(12)
        for x in range(2):
            sd = SS + 16*x
            for i in range(0, 16, 2): a(f"v_max3_f32 v{8+x}, v{8+x}, v{sd+i}, v{sd+i+1}")
        a(f"s_add_u32 s{sI}, s{sI}, 1\ns_cmp_lt_u32 s{sI}, 32\ns_cbranch_scc1 {l1}")
        setm()
        for i in range(32): a(f"v_mov_b32 v{OO+i}, 0")
        a(f"s_mov_b32 s{sI}, 0")
        a.label(l2)
        addr()
        a(f"""
        s_mov_b64 exec, s[{sEX}:{sEX+1}]
        buffer_load_dwordx4 v[{VF}:{VF+3}], v7, {WSR}, s{sVb} offen sc1
        buffer_load_dwordx4 v[{VF+4}:{VF+7}], v7, {WSR}, s{sVb} offen offset:640 sc1
        s_mov_b64 exec, -1
        s_waitcnt vmcnt(0)
        """)
        for x in range(2):
            for m in qk(x, 0): a(m)
        a.nop(12)
        for x in range(2):
            for i in sm(x): a(i)
        a("s_nop 1")
        for x in range(2):
            for m in pv(x, 0): a(m)
        a(f"s_add_u32 s{sI}, s{sI}, 1\ns_cmp_lt_u32 s{sI}, 32\ns_cbranch_scc1 {l2}")
        a.nop(12)
        a(f"s_branch {comb}")
    return fallback

def xoff(SB, which):
    if SB == "": return (False, L_X1)
    return (True, L_X1) if which == 1 else (False, L_X2)
def add_x(a, dst, src, SB, which):
    lo, c = xoff(SB, which)
    a(f"s_add_u32 s{dst}, s{src}, {c}")
    if lo: a(f"s_add_u32 s{dst}, s{dst}, s{sLO}")

def proj_compute(a, down, SB, end_label):
    fast = SB == ""
    t = T
    K = F if down else D
    NCH = K // 128
    sRT, sCT = t, t+1
    st0 = 13 if down else 10
    sF, sRM, sST, sA, sA1, sThr, sSel = t+4, t+5, t+12, t+2, t+3, t+9, t+10
    NWS = 3 if down else C.wo_sets
    ACC = 14; RX = 34; AF = 54; WF = 134 if down else 54 + 16*C.wo_nas; RES = (220 if down else 54); VST = 200
    assert WF + 20*NWS <= 254
    vF, vF2, vR, vR2 = 10, 11, 12, 13
    a(f"""
    s_lshr_b32 s{sRT}, s{sWG}, 3
    s_and_b32 s{sCT}, s{sR}, 7
    v_and_b32 v3, 15, v0
    v_lshrrev_b32 v7, 4, v0
    s_lshl_b32 s{t+6}, s{sRT}, 1
    s_lshr_b32 s{t+7}, s{sW}, 1
    s_add_u32 s{t+6}, s{t+6}, s{t+7}
    s_and_b32 s{t+8}, s{sW}, 1
    s_lshl_b32 s{t+8}, s{t+8}, 8
    s_mul_i32 s{sA}, s{t+6}, {K*64}
    s_add_u32 s{sA}, s{sA}, s{t+8}
    {"" if fast else f"s_add_u32 s{sA}, s{sA}, s{sLO}"}
    s_add_u32 s{sA}, s{sA}, {(L_Q if fast else L_H) if down else L_O}
    s_mul_i32 s{sF}, s{t+6}, 40960
    s_mul_i32 s{t+7}, s{sCT}, 5120
    s_add_u32 s{sF}, s{sF}, s{t+7}
    s_add_u32 s{sF}, s{sF}, s{t+8}
    s_lshl_b32 s{sST}, s{sW}, 8
    s_lshl_b32 s{t+7}, s{sRT}, 12
    s_add_u32 s{sST}, s{sST}, s{t+7}
    s_add_u32 s{sST}, s{sST}, s{sLO}
    s_lshl_b32 s{sRM}, s{sRT}, 2
    s_add_u32 s{sRM}, s{sRM}, s{sW}
    s_mul_i32 s{sRM}, s{sRM}, {16*1280}
    s_mul_i32 s{t+7}, s{sCT}, 160
    s_add_u32 s{sRM}, s{sRM}, s{t+7}
    v_lshlrev_b32 v1, 4, v3
    v_lshl_add_u32 v{vF}, v7, 9, v1
    v_lshrrev_b32 v2, 5, v0
    v_lshl_add_u32 v1, v2, 9, v1
    v_and_b32 v2, 1, v7
    v_lshl_add_u32 v{vF2}, v2, 3, v1
    v_add_u32 v{vF2}, 4096, v{vF2}
    v_mul_u32_u24 v1, 1280, v3
    v_lshl_add_u32 v{vR}, v7, 4, v1
    v_lshl_add_u32 v{vR2}, v7, 3, v1
    v_add_u32 v9, 4096, v{vF}
    """)
    if C.x_a == 1 and not down: a(f"s_lshr_b32 s{sA}, s{sW}, 1\ns_mul_i32 s{sA}, s{sA}, 40960\ns_add_u32 s{sA}, s{sA}, s{t+8}\ns_add_u32 s{sA}, s{sA}, {WS_WTG}")
    SA = Src(sA, sA1, sThr, 8192)
    if down:
        a(f"s_and_b32 s{t+7}, s{sRT}, 3\ns_mul_i32 s{t+7}, s{t+7}, {C.rot_dn}\ns_sub_u32 s{sThr}, 12, s{t+7}")
        SA.setup(a, t+7, 12, t+8)
    def io(store, rowmajor, rsrc, soff, reg, bits):
        op = "store" if store else "load"
        v16, v8 = (vR, vR2) if rowmajor else (vF, vF2)
        o1, o2 = (64, 128) if rowmajor else (2048, 0)
        return [f"buffer_{op}_dwordx4 v[{reg}:{reg+3}], v{v16}, {rsrc}, {soff} offen {bits}",
                f"buffer_{op}_dwordx4 v[{reg+4}:{reg+7}], v{v16}, {rsrc}, {soff} offen offset:{o1} {bits}",
                f"buffer_{op}_dwordx2 v[{reg+8}:{reg+9}], v{v8}, {rsrc}, {soff} offen offset:{o2} {bits}"]
    if down:
        add_x(a, t+7, sF, SB, 1)
        for x in io(False, False, WSR, f"s{t+7}", RES, "sc1"): a(x)
        a(f"s_add_u32 s{t+7}, s{sST}, {L_ST1}\nv_lshlrev_b32 v1, 4, v3")
        for i in range(4):
            a(f"buffer_load_dwordx4 v[{VST+4*i}:{VST+4*i+3}], v1, {WSR}, s{t+7} offen offset:{1024*i} sc1")
        if fast:
            a(f"s_lshl_b32 s{t+8}, s{sWG}, 9\ns_add_u32 s{t+8}, s{t+8}, {L_ST2}\nv_lshlrev_b32 v1, 7, v0\ns_mov_b64 exec, 15")
            a(f"buffer_load_dword v8, v1, {WSR}, s{t+8} offen\ns_mov_b64 exec, -1")
    else:
        l1 = a.uid("prj_r1"); l2 = a.uid("prj_r2")
        a(f"s_cmp_lg_u32 s{sL}, 0\ns_cbranch_scc1 {l1}")
        for x in io(False, True, R(R_X), f"s{sRM}", RES, ""): a(x)
        a(f"s_branch {l2}")
        a.label(l1)
        add_x(a, t+7, sF, SB, 2)
        for x in io(False, False, WSR, f"s{t+7}", RES, "sc1"): a(x)
        a.label(l2)
    a(f"v_lshlrev_b32 v4, 4, v0\nv_add_u32 v5, 61440, v4\nv_add_u32 v6, 122880, v4\ns_mov_b32 s{t+8}, 0xffff0000")
    def wadr(c):
        o = dnW(c) if down else c * 20480
        return 4 + o // 61440, o % 61440
    def reads(c, u):
        b = WF + 20*((4*c + u) % NWS); r, o = wadr(c)
        return [f"ds_read_b128 v[{b+4*jn}:{b+4*jn+3}], v{r} offset:{o + 5120*u + 1024*jn}" for jn in range(5)]
    NAS = 5 if down else C.wo_nas
    def aload(c):
        r = []
        if down and C.rot_dn: r += [f"s_cmp_gt_u32 s{sThr}, {c}", f"s_cselect_b32 s{sSel}, s{sA}, s{sA1}", f"s_add_u32 s{sSel}, s{sSel}, {c*8192}"]
        else: r += [f"s_add_u32 s{sSel}, s{sA}, {c*8192}"]
        for u in range(4):
            d = AF + 16*(c % NAS) + 4*u
            r.append(f"buffer_load_dwordx4 v[{d}:{d+3}], v{vF if u < 2 else 9}, {WSR}, s{sSel} offen offset:{2048*(u & 1)} sc1")
        return r
    def mfmas(c, u, zero=False):
        b = WF + 20*((4*c + u) % NWS); x = AF + 16*(c % NAS) + 4*u
        return [f"v_mfma_f32_16x16x32_bf16 {v(ACC+4*jn,4)}, {v(b+4*jn,4)}, {v(x,4)}, {0 if zero else v(ACC+4*jn,4)}" for jn in range(5)]
    D_ = NWS - 1
    rd = lambda st_: reads(st_ // 4, st_ % 4) if st_ < 4*NCH else []
    if down: a(f"s_and_b32 s{t+7}, s{sRT}, 3\ns_mul_i32 s{t+7}, s{t+7}, {4 if C.rot_dn else 0}")
    G_ = gate_local(a, "down" if down else "wo", 4 if down else 2, 1, 2, t+7)
    def setup2():
        if not down: a("s_waitcnt vmcnt(0)")
        for i in range(10):
            a(f"v_lshlrev_b32 v{RX+2*i}, 16, v{RES+i}\nv_and_b32 v{RX+1+2*i}, s{t+8}, v{RES+i}")
        if down:
            row_stats(a, VST, VST + 2, VST + 3)
            a(f"v_mul_f32 v{VST+2}, v{VST+3}, v{VST+3}")
        if not down: a("s_barrier")
        for st_ in range(D_):
            for x in rd(st_): a(x)
    if down: G_.load(); G_.upd()
    setup2()
    def al(c):
        G_.need(span(128*c, 128*c + 127, 96, 2) if down else (span(128*c, 128*c + 127, 20, 1) if C.x_a != 3 else 0xffffffff))
        if c == 0: stamp(a, st0)
        for x in aload(c):
            if C.x_d == 1 and down and c >= 3 and x.startswith("buffer"): x = x.replace(WSR, R(R_WQ)).replace(f"s{sSel} offen", "0 offen").replace("sc1", "")
            a(x)
    NPRE = C.dn_a if down else C.wo_a
    N0 = C.dn_a0 if down else C.wo_a0
    assert NPRE < NAS or NCH <= NAS
    for c in range(N0): al(c)
    stamp(a, 21 if down else 5)
    nis = N0; pend = []; nld = 4*N0
    for c in range(NCH):
        for u in range(4):
            step = 4*c + u
            left = min(D_ - 1, 4*NCH - 1 - step)
            assert nld > step
            a(f"s_waitcnt vmcnt({nld - step - 1}) lgkmcnt({min(15, 5*left)})")
            if down and C.stamp and C.dbg == 8 and u in (0, 2): a(f"s_memtime s[10:11]\ns_waitcnt lgkmcnt(0)\nv_writelane_b32 v254, s10, {2*c + u//2}")
            if step == 4*NCH - 1 or (down and u == 2 and c + 1 < NCH): a("s_barrier")
            if not pend and nis < min(NCH, c + NPRE + 1):
                full = down and nis >= C.dn_full
                G_.need(0xffffffff if full else (span(128*nis, 128*nis + 127, 96, 2) if down else span(128*nis, 128*nis + 127, 20, 1)))
                ld = aload(nis); nis += 1
                for x in ld[:-4]: a(x)
                pend = ld[-4:]
            k = 2 if nld - step < 4*NPRE - 2 else 1
            mf = mfmas(c, u, step == 0); r_ = rd(step + D_)
            for i in range(5):
                a(mf[i])
                if r_: a(r_[i])
                if pend and i in ((4,) if k == 1 else (1, 4)): a(pend.pop(0)); nld += 1
    stamp(a, st0 + 1)
    add_x(a, t+7, sF, SB, 2 if down else 1)
    flag_setup(a, 5 if down else 3)
    for i in range(0, 20, 2):
        c = ACC + i
        if down: a(f"v_pk_fma_f32 v[{c}:{c+1}], v[{c}:{c+1}], v[{VST+2}:{VST+3}], v[{RX+i}:{RX+i+1}] op_sel_hi:[1,0,1]")
        else: a(f"v_pk_add_f32 v[{c}:{c+1}], v[{c}:{c+1}], v[{RX+i}:{RX+i+1}]")
        a(f"v_cvt_pk_bf16_f32 v{60+i//2}, v{c}, v{c+1}")
    if down:
        l1 = a.uid("prj_o1")
        a(f"s_cmp_eq_u32 s{sL}, 0\ns_cbranch_scc1 {l1}")
        srd(a, R_T, P_OUT, ACT)
        for x in io(True, True, R(R_T), f"s{sRM}", 60, ["", "sc1", "nt"][C.outb]): a(x)
        a(f"s_branch {end_label}")
        a.label(l1)
    for x in io(True, False, WSR, f"s{t+7}", 60, SB): a(x)
    a(f"v_pk_add_f32 v[72:73], v[{ACC}:{ACC+1}], v[{ACC+2}:{ACC+3}]\nv_pk_mul_f32 v[74:75], v[{ACC}:{ACC+1}], v[{ACC}:{ACC+1}]")
    a(f"v_pk_fma_f32 v[74:75], v[{ACC+2}:{ACC+3}], v[{ACC+2}:{ACC+3}], v[74:75]")
    for i in range(4, 20, 2):
        a(f"v_pk_add_f32 v[72:73], v[72:73], v[{ACC+i}:{ACC+i+1}]\nv_pk_fma_f32 v[74:75], v[{ACC+i}:{ACC+i+1}], v[{ACC+i}:{ACC+i+1}], v[74:75]")
    a(f"""
    v_add_f32 v72, v72, v73
    v_add_f32 v73, v74, v75
    s_lshr_b32 s{t+7}, s{sCT}, 1
    s_lshl_b32 s{t+7}, s{t+7}, 10
    v_permlane32_swap_b32 v72, v73
    s_and_b32 s{t+8}, s{sCT}, 1
    s_lshl_b32 s{t+8}, s{t+8}, 3
    v_add_f32 v72, v72, v73
    v_mov_b32 v73, v72
    s_add_u32 s{t+7}, s{t+7}, s{t+8}
    s_add_u32 s{t+7}, s{t+7}, s{sST}
    v_permlane16_swap_b32 v72, v73
    s_add_u32 s{t+7}, s{t+7}, {L_ST2 if down else L_ST1}
    v_lshrrev_b32 v8, 5, v0
    v_lshlrev_b32 v8, 2, v8
    v_lshl_add_u32 v8, v3, 4, v8
    v_add_f32 v72, v72, v73
    buffer_store_dword v72, v8, {WSR}, s{t+7} offen {SB}
    s_waitcnt vmcnt(0)
    """)
    flag_store(a, SB)
    a("s_barrier")
    stamp(a, st0 + 2)

def gu_compute(a, SB):
    t = T
    sRT, sCT, sWM, sWN, sTB, sF0 = t, t+1, t+2, t+3, t+4, t+6
    FR = 16; ACC = 96; VCS = 192; VST = 216; MS = 232
    a(f"""
    s_lshr_b32 s{sRT}, s{sWG}, 4
    s_and_b32 s{sCT}, s{sR}, 15
    s_and_b32 s{sWM}, s{sW}, 1
    s_lshr_b32 s{sWN}, s{sW}, 1
    s_lshl_b32 s{sTB}, s{sRT}, 1
    s_add_u32 s{sTB}, s{sTB}, s{sWM}
    s_mul_i32 s{sF0}, s{sCT}, 96
    s_mul_i32 s{t+5}, s{sWN}, 48
    s_add_u32 s{sF0}, s{sF0}, s{t+5}
    s_mul_i32 s{t+5}, s{sWG}, 768
    s_mul_i32 s{t+7}, s{sWN}, 384
    s_add_u32 s{t+5}, s{t+5}, s{t+7}
    s_add_u32 s{t+5}, s{t+5}, {WS_CSG}
    v_lshrrev_b32 v12, 4, v0
    v_lshlrev_b32 v1, 4, v12
    """)
    for f in range(6):
        a(f"buffer_load_dwordx4 v[{VCS+4*f}:{VCS+4*f+3}], v1, {WSR}, s{t+5} offen offset:{64*f} sc1")
    a(f"""
    v_and_b32 v13, 15, v0
    v_lshlrev_b32 v3, 4, v13
    v_lshl_add_u32 v3, v12, 9, v3
    s_lshl_b32 s{t+5}, s{sWM}, 13
    v_add_u32 v3, s{t+5}, v3
    v_lshlrev_b32 v11, 4, v0
    s_mul_i32 s{t+5}, s{sWN}, 6144
    s_add_u32 s{t+5}, s{t+5}, {WB}
    v_add_u32 v4, s{t+5}, v11
    v_add_u32 v5, 49152, v4
    v_lshlrev_b32 v6, 2, v13
    s_mul_i32 s{t+11}, s{sTB}, {2*F*64}
    s_lshl_b32 s{t+7}, s{sF0}, 6
    s_add_u32 s{t+11}, s{t+11}, s{t+7}
    {"" if SB == "" else f"s_add_u32 s{t+11}, s{t+11}, s{sLO}"}
    s_add_u32 s{t+11}, s{t+11}, {L_Q if SB == "" else L_H}
    s_add_u32 s{t+12}, s{t+11}, {F*64}
    """)
    flag_setup(a, 4)
    def reads(c, u):
        b = FR + 40*u; o = guW(c) - WB
        ra = [f"ds_read_b128 v[{b+4*tt}:{b+4*tt+3}], v3 offset:{(c % 4)*16384 + 4096*(tt >> 1) + 256*(tt & 1) + 2048*u}" for tt in range(4)]
        rw = [f"ds_read_b128 v[{b+16+4*f}:{b+19+4*f}], v{4 + o // 49152} offset:{o % 49152 + 12288*u + 1024*f}" for f in range(6)]
        return ra + rw
    def mfma(u, tl, z):
        b = FR + 40*u; c = ACC + 4*tl
        return f"v_mfma_f32_16x16x32_bf16 {v(c,4)}, {v(b+16+4*(tl>>2),4)}, {v(b+4*(tl&3),4)}, {0 if z else v(c,4)}"
    def epi(jn, pk):
        r = []
        g = ACC + 32*jn; u_ = g + 16
        for tp in range(2):
            c = g + 8*tp; d = u_ + 8*tp
            for i in range(8): r.append(f"v_max_f32 v{c+i}, 0, v{c+i}")
            if pk:
                for i in range(0, 8, 2): r.append(f"v_pk_mul_f32 v[{c+i}:{c+i+1}], v[{c+i}:{c+i+1}], v[{d+i}:{d+i+1}]")
            else:
                for i in range(8): r.append(f"v_mul_f32 v{c+i}, v{c+i}, v{d+i}")
            for i in range(4): r.append(f"v_cvt_pk_bf16_f32 v{c+i}, v{c+2*i}, v{c+2*i+1}")
            r += ["s_nop 0", f"v_permlane16_swap_b32 v{c}, v{c+2}", f"v_permlane16_swap_b32 v{c+1}, v{c+3}"]
            r.append(f"buffer_store_dwordx4 v[{c}:{c+3}], v11, {WSR}, s{t+11+tp} offen offset:{1024*jn} {SB}")
        return r
    a(f"s_lshl_b32 s{t+5}, s{sTB}, 12\ns_add_u32 s{t+5}, s{t+5}, s{sLO}\ns_add_u32 s{t+5}, s{t+5}, {L_ST1}")
    ins = {}
    for i in range(4): ins[36 + 48*C.gfull + 3*i] = [f"buffer_load_dwordx4 v[{VST+4*i}:{VST+4*i+3}], v11, {WSR}, s{t+5} offen offset:{1024*i} sc1"]
    ins[82 + 48*C.gfull] = ["s_waitcnt vmcnt(0)"] + [f"v_add_f32 v{VST}, v{VST}, v{VST+2*i}" for i in range(1, 8)] + \
         [f"v_mul_f32 v{MS}, {f32(-1.0/D)}, v{VST}", f"v_mul_f32 v{MS+1}, {f32(-1.0/D)}, v{VST}", "s_nop 0", f"v_permlane16_swap_b32 v{MS}, v{MS+1}",
          f"v_mov_b32 v{MS+2}, v{MS}", f"v_mov_b32 v{MS+3}, v{MS+1}", "s_nop 0", f"v_permlane32_swap_b32 v{MS}, v{MS+2}", f"v_permlane32_swap_b32 v{MS+1}, v{MS+3}"]
    fix = lambda tl: [f"v_fmac_f32 v{ACC+4*tl+i}, v{MS+(tl&3)}, v{VCS+4*(tl>>2)+i}" for i in range(4)]
    gemm16(a, 10, 24, reads, mfma, [tuple(range(8*j, 8*j+8)) for j in range(3)], ins, fix, 122 + 48*C.gfull, epi, 22)
    a("s_waitcnt vmcnt(0)")
    flag_store(a, SB)
    a("s_barrier")
    stamp(a, 23)

def loader_chain(a, SB, end_label, idle_label):
    t = T
    sLW, s4, s5, s6, aGU, aGU1, wGU, wGU1, wDN, wDN1, aQK, aQK1, wQK, wQK1, th10, th12, sTmp, sSel, thq = range(t, t + 19)
    sRot = sSel
    a(f"""
    s_sub_u32 s{sLW}, s{sW}, 4
    v_lshlrev_b32 v8, 4, v0
    s_mul_i32 s{s6}, s{sLW}, 6144
    s_and_b32 s{wGU}, s{sR}, 15
    s_mul_i32 s{wGU}, s{wGU}, 245760
    s_add_u32 s{wGU}, s{wGU}, s{s6}
    s_add_u32 s{wGU}, s{wGU}, {WS_WTG}
    s_lshr_b32 s{sRot}, s{sR}, 4
    s_mul_i32 s{sRot}, s{sRot}, {C.rot_gu}
    s_sub_u32 s{th10}, 10, s{sRot}
    """)
    S_aGU = Src(aGU, aGU1, th10, 4096); S_wGU = Src(wGU, wGU1, th10, 24576); S_wDN = Src(wDN, wDN1, th12, 20480)
    S_aQK = Src(aQK, aQK1, thq, 4096); S_wQK = Src(wQK, wQK1, thq, 64*3840)
    S_aGU.norot = S_wGU.norot = not C.rot_gu; S_wDN.norot = not C.rot_dn; S_aQK.norot = S_wQK.norot = not C.rot_qk
    S_wGU.setup(a, sRot, 10, sTmp)
    def rest():
        a(f"""
        s_lshl_b32 s{s4}, s{sLW}, 12
        s_mul_i32 s{s5}, s{sLW}, 5120
        s_lshr_b32 s{aQK}, s{sWG}, 4
        s_lshl_b32 s{aQK}, s{aQK}, 2
        s_add_u32 s{aQK}, s{aQK}, s{sLW}
        s_mul_i32 s{aQK}, s{aQK}, 40960
        """)
        add_x(a, aGU, aQK, SB, 1)
        add_x(a, aQK, aQK, SB, 2)
        a(f"s_and_b32 s{wDN}, s{sR}, 15")
        qkvW_setup(a, wQK, sLW, wDN, sTmp, 6)
        a(f"s_sub_u32 s{sRot}, 10, s{th10}")
        S_aGU.setup(a, sRot, 10, sTmp)
        a(f"s_lshr_b32 s{sRot}, s{sR}, 4\ns_mul_i32 s{sRot}, s{sRot}, {C.rot_qk}\ns_sub_u32 s{thq}, 10, s{sRot}")
        for S_ in (S_aQK, S_wQK): S_.setup(a, sRot, 10, sTmp)
        a(f"""
        s_and_b32 s{wDN}, s{sR}, 7
        s_mul_i32 s{wDN}, s{wDN}, 245760
        s_add_u32 s{wDN}, s{wDN}, s{s5}
        s_add_u32 s{wDN}, s{wDN}, {WS_WTD}
        s_lshr_b32 s{sRot}, s{sR}, 3
        s_mul_i32 s{sRot}, s{sRot}, {C.rot_dn}
        s_sub_u32 s{th12}, 12, s{sRot}
        """)
        S_wDN.setup(a, sRot, 12, sTmp)
    G_ = [None, None]
    def lin(S_, dst, dfn, bits):
        def f(c, i0, k):
            if bits == "sc1":
                G_[0].need(span(64*c, 64*c + 63, 80, 2) if C.gran else 0xffff)
                if G_[1] is not None: stamp(a, G_[1]); G_[1] = None
            if not S_.norot: S_.sel(a, c, sSel)
            lin_dma(a, 8, S_.sB if S_.norot else sSel, (0 if (C.x_gh and S_ is S_wGU) else c)*S_.stride + 1024*i0, dst, dfn(c) + 1024*i0, k, bits)
        return f
    def pf(kind, ep, st, rot):
        def f():
            a(f"s_lshr_b32 s{sTmp}, s{sR}, 4\ns_mul_i32 s{sTmp}, s{sTmp}, {4 if rot else 0}")
            G_[0] = gate_local(a, kind, ep, 1, 2, sTmp, sleep=C.psleep); G_[1] = st
        return f
    def emitWQ(c, i0, k):
        if not S_wQK.norot: S_wQK.sel(a, c, sSel)
        for i in range(i0, i0 + k):
            a(f"s_add_u32 m0, s{s4}, {qkW(c) + 1024*i}\ns_add_u32 s{sTmp}, s{wQK if S_wQK.norot else sSel}, {c*64*3840 + i*4*3840}")
            a(f"buffer_load_dwordx4 v6, {R(R_WQ)}, s{sTmp} offen {'nt' if C.nt_qk else ''} lds")
    rA = lambda c: (c % 4) * 16384
    mark = [0]
    def gu_bar(c):
        if c == C.gfull: G_[0].need(0xffff)
        if SB != "": return
        if c == C.fkc:
            a(f"v_lshlrev_b32 v4, 7, v0\ns_lshl_b32 s{thq}, s{sLW}, 13\ns_add_u32 s{thq}, s{thq}, {L_FG + 40}\nbuffer_load_dword v5, v4, {WSR}, s{thq} offen sc1")
            L.q.append(("gu", "P", 99)); mark[0] = L.total
        if c == C.fkc + 2:
            l = a.uid("fkc")
            a(f"s_cmp_lg_u32 s{sL}, 0\ns_cbranch_scc1 {l}")
            poll(a, 4, 5, f"s{thq}", f"s{sEP}", sleep=2, pre=L.total - mark[0])
            a.label(l)
    assert C.fkc + 2 <= 8 and not C.rot_qk
    full = lambda c: G_[0].need(0xffff) if c == 1 else None
    reg = lambda f, sz: (lambda c: (f(c), f(c) + sz))
    gu = Phase("gu", 10, 4, 6, lin(S_aGU, s4, rA, "sc1"), lin(S_wGU, s6, guW, "nt" if C.nt_gu else ""), reg(rA, 16384), reg(guW, 24576), pf("gu", 3, 21, C.rot_gu), C.bud_gu, dbg=(C.dbg == 3), after_bar=gu_bar)
    dn = Phase("dn", 12, 0, 5, None, lin(S_wDN, s5, dnW, "nt" if C.nt_dn else ""), None, reg(dnW, 20480), None, C.bud_dn, lag=2, early=C.dn_early, dbg=(C.dbg == 4))
    qk = Phase("qk", 10, 4, 4, lin(S_aQK, s4, rA, "sc1"), emitWQ, reg(rA, 16384), reg(qkW, 16384), pf("gu", 5, 17, C.rot_qk), C.bud_qk, early=C.qk_early, dbg=(C.dbg == 2), after_bar=full)
    L = Loader(a)
    L.live["wo"] = (0, 102400)
    if C.ldprio: a(f"s_setprio {C.ldprio}")
    pn = L.pre(gu, 0, C.gu_e, C.thr_p)
    rest()
    a("s_barrier")
    L.live.pop("wo")
    pn = L.pre(gu, pn, C.gu_e2, C.thr_e)
    a("s_barrier"); pn = L.pre(gu, pn, C.gu_p)
    pn = L.run(gu, dn, pn); stamp(a, 22); L.end(gu); pn = L.pre(dn, pn, C.dn_e, C.thr_e)
    L.wait({("dn", "W", 0)}); a("s_barrier"); pn = L.pre(dn, pn, C.dn_p, C.thr_p)
    dn.skip0 = True
    if C.qpf:
        a(f"s_lshl_b32 s{thq}, s{sR}, 2\ns_add_u32 s{thq}, s{thq}, s{sLW}\ns_mul_i32 s{thq}, s{thq}, {C.qpl*128}\nv_lshlrev_b32 v4, 7, v0")
        def qpf(c):
            k = c - C.qpf0
            if k % C.qps or not 0 <= k // C.qps < C.qpf: return
            k //= C.qps
            off = D*3*D*2 - (C.qpf - k) * C.qpl * 128 * 128
            a(f"s_add_u32 s{sTmp}, s{thq}, {off}\ns_mov_b64 exec, {hex((1 << C.qpl) - 1) if C.qpl <= 31 else -1}")
            if C.qpl == 32: a("s_mov_b32 exec_hi, 0")
            a(f"buffer_load_dword v5, v4, {R(R_WQ)}, s{sTmp} offen\ns_mov_b64 exec, -1")
            L.q.append(("dn", "P", 99))
        dn.after_bar = qpf
        assert not C.rot_qk
    def lastexit(ws_):
        l = a.uid("lx")
        a(f"s_cmp_eq_u32 s{sL}, 0\ns_cbranch_scc1 {l}")
        for w_ in ws_: a(f"s_waitcnt vmcnt({w_})\ns_barrier")
        a(f"s_barrier\ns_branch {end_label}")
        a.label(l)
    pn = L.run(dn, qk, pn, lastexit=lastexit); stamp(a, 14); L.end(dn)
    a(f"s_cmp_lg_u32 s{sL}, 0\ns_cbranch_scc1 {end_label}")
    pn = L.pre(qk, pn, C.qk_e, C.thr_e)
    a("s_barrier")
    a(f"s_and_b32 s{sTmp}, s{sR}, 15\ns_cmp_eq_u32 s{sTmp}, 15\ns_cbranch_scc1 {idle_label}")
    pn = L.pre(qk, pn, C.qk_p)
    L.run(qk, None, pn); stamp(a, 19); L.end(qk)

def build():
    a = Asm()
    K = NAME + "_kernel"
    t = T
    a(f".globl {K}\n.p2align 8\n.type {K},@function")
    a.label(K)
    a(f"""
    s_load_dwordx16 s[16:31], s[0:1], 0
    s_load_dwordx4 s[32:35], s[0:1], 64
    s_cmp_ge_u32 s2, 256
    s_cbranch_scc1 L_exit
    s_and_b32 s{sG}, s2, 7
    s_lshr_b32 s{sR}, s2, 3
    v_lshrrev_b32 v1, 6, v0
    v_and_b32 v0, 63, v0
    v_readfirstlane_b32 s{sW}, v1
    s_lshl_b32 s{sWG}, s{sG}, 5
    s_add_u32 s{sWG}, s{sWG}, s{sR}
    s_mov_b32 s{sL}, 0
    s_mov_b32 s{sLO}, 0
    s_mov_b32 s{sEP}, 0
    s_mov_b32 s{sTMO}, 0
    """)
    if C.stamp: a("v_mov_b32 v255, 0\nv_mov_b32 v254, 0\ns_memrealtime s[14:15]")
    stamp(a, 0)
    qkv_ids(a, t)
    a(f"s_cmp_lt_u32 s{sW}, 4\ns_cbranch_scc1 L_q1c\ns_cmp_eq_u32 s{t+1}, 15\ns_cbranch_scc1 L_q1c")
    qkv1_loader(a)
    a("s_branch L_q1done")
    a.label("L_q1c")
    a("s_waitcnt lgkmcnt(0)")
    srd(a, R_X, P_X, ACT)
    srd(a, R_WQ, P_WQKV, D*3*D*2)
    a(f"""
    s_cmp_gt_u32 s{sW}, 3
    s_cbranch_scc1 L_npf
    s_lshl_b32 s{t+8}, s{sWG}, 2
    s_add_u32 s{t+8}, s{t+8}, s{sW}
    s_mul_i32 s{t+8}, s{t+8}, 2560
    v_lshrrev_b32 v1, 5, v0
    v_mul_u32_u24 v1, 1280, v1
    v_and_b32 v2, 31, v0
    v_lshl_add_u32 v1, v2, 4, v1
    v_mov_b64 v[228:229], 0
    v_mov_b64 v[230:231], 0
    buffer_load_dwordx4 v[220:223], v1, {R(R_X)}, s{t+8} offen
    buffer_load_dwordx4 v[224:227], v1, {R(R_X)}, s{t+8} offen offset:512
    s_mov_b32 exec_lo, 0xffff
    s_mov_b32 exec_hi, 0xffff
    buffer_load_dwordx4 v[228:231], v1, {R(R_X)}, s{t+8} offen offset:1024
    s_mov_b64 exec, -1
    """)
    a.label("L_npf")
    other_srds(a)
    a(f"s_cmp_eq_u32 s{t+1}, 15\ns_cbranch_scc1 L_q1idle")
    qkv_compute(a, True, "sc1")
    a("s_branch L_q1done")
    a.label("L_q1idle")
    qkv1_idle(a)
    a.label("L_q1done")
    a(f"s_cmp_eq_u32 s{sMODE}, 0\ns_cbranch_scc1 L_slow")
    tails = []
    for nm, SB in (("fast", ""), ("slow", "sc1")):
        a.label(f"L_{nm}")
        tails.append(phase_attn(a, SB, f"L_{nm}_ld"))
        if nm == "fast": a.label("L_fast_post")
        proj_compute(a, False, SB, None)
        gu_compute(a, SB)
        proj_compute(a, True, SB, "L_end")
        qkv_ids(a, t)
        a(f"s_cmp_eq_u32 s{t+1}, 15\ns_cbranch_scc1 L_{nm}_idle")
        qkv_compute(a, False, SB)
        a(f"s_branch L_{nm}_next")
        a.label(f"L_{nm}_ld")
        loader_chain(a, SB, "L_end", f"L_{nm}_idle")
        a(f"s_branch L_{nm}_next")
        a.label(f"L_{nm}_idle")
        a("s_waitcnt vmcnt(0)\ns_barrier")
        a.label(f"L_{nm}_next")
        if C.ldprio: a("s_setprio 0")
        a(f"s_mov_b32 s{sL}, 1\ns_mov_b32 s{sLO}, {LSTRIDE}\ns_add_u32 s{sEP}, s{sEP}, 5\ns_mov_b32 s{R_WQ+2}, 0\ns_branch L_{nm}")
        if nm == "fast":
            a.label("L_end")
            a(f"""
            s_xor_b32 s{t}, s{sW}, 7
            s_or_b32 s{t}, s{t}, s2
            s_cmp_lg_u32 s{t}, 0
            s_cbranch_scc1 L_end2
            v_mov_b32 v1, 0
            s_mov_b64 exec, 1
            global_store_dword v1, v1, s[{P_DBG}:{P_DBG+1}] sc1
            s_mov_b64 exec, -1
            """)
            a.label("L_end2")
            if C.stamp:
                a("s_waitcnt vmcnt(0)")
                stamp(a, 16)
                a(f"""
                s_memrealtime s[10:11]
                s_waitcnt lgkmcnt(0)
                v_writelane_b32 v255, s14, 62
                v_writelane_b32 v255, s10, 63
                v_writelane_b32 v255, s{sTMO}, 61
                s_lshl_b32 s10, s2, 3
                s_add_u32 s10, s10, s{sW}
                s_lshl_b32 s10, s10, 8
                s_add_u32 s10, s10, {WS_STAMP}
                v_lshlrev_b32 v1, 2, v0
                v_add_u32 v1, s10, v1
                global_store_dword v1, v255, s[{P_WS}:{P_WS+1}]
                v_add_u32 v1, {1<<20}, v1
                global_store_dword v1, v254, s[{P_WS}:{P_WS+1}]
                """)
                if C.pj:
                    a(f"""
                    s_xor_b32 s{t}, s2, 8
                    s_xor_b32 s{t+1}, s{sW}, {C.pw}
                    s_or_b32 s{t}, s{t}, s{t+1}
                    s_cmp_lg_u32 s{t}, 0
                    s_cbranch_scc1 L_exit
                    v_readlane_b32 s{t+1}, v254, {C.pi}
                    v_readlane_b32 s{t+2}, v254, {C.pj % 64}
                    v_readlane_b32 s{t+3}, v254, 40
                    {f"s_mov_b32 s{t+1}, s14" if C.pi == 63 else ""}
                    s_sub_u32 s{t+1}, s{t+2}, s{t+1}
                    s_mul_i32 s{t+1}, s{t+1}, {C.pm}
                    s_add_u32 s{t+1}, s{t+1}, 1000
                    """)
                    a.label("L_probe")
                    a(f"""
                    s_memrealtime s[{t+4}:{t+5}]
                    s_waitcnt lgkmcnt(0)
                    s_sub_u32 s{t+6}, s{t+4}, s{t+3}
                    s_cmp_lt_u32 s{t+6}, s{t+1}
                    s_cbranch_scc1 L_probe
                    """)
                if C.dbgout:
                    a(f"s_xor_b32 s{t}, s2, 8\ns_or_b32 s{t}, s{t}, s{sW}\ns_cmp_lg_u32 s{t}, 0\ns_cbranch_scc1 L_exit\nv_readlane_b32 s{t+1}, v254, 0\nv_mov_b32 v1, 0")
                    for k, i in enumerate([1, 2, 7, 8, 10, 12, 23, 15, 20, 31, 32, 36, 47, 40]):
                        a(f"v_readlane_b32 s{t}, v254, {i}\ns_sub_u32 s{t}, s{t}, s{t+1}\ns_nop 1\nv_mov_b32 v2, s{t}\nglobal_store_dword v1, v2, s[{P_DBG}:{P_DBG+1}] offset:{4+4*k}")
            a.label("L_exit")
            a("s_endpgm")
            a.label("L_fast_end")
    for f in tails: f()
    hdr = open("cdna_kernels/" + NAME + ".s.ref").read().split("; Override")[0]
    hdr += "; @launch grid=(256,1,1) block=(512,1,1) lds=163840\n"
    txt = hdr + '.amdgcn_target "amdgcn-amd-amdhsa--gfx950"\n.text\n' + a.text() + f'''.section .rodata,"a"
.p2align 6
.amdhsa_kernel {K}
  .amdhsa_next_free_vgpr 256
  .amdhsa_next_free_sgpr 102
  .amdhsa_accum_offset 256
  .amdhsa_group_segment_fixed_size 0
  .amdhsa_kernarg_size 80
  .amdhsa_user_sgpr_count 2
  .amdhsa_user_sgpr_kernarg_segment_ptr 1
  .amdhsa_system_sgpr_workgroup_id_x 1
.end_amdhsa_kernel
'''
    for p in check(a.lines): print("HAZARD", p)
    return txt

if __name__ == "__main__":
    out = sys.argv[1] if len(sys.argv) > 1 else "cdna_kernels/" + NAME + ".s"
    for kv in sys.argv[2:]:
        k, _, val = kv.partition("=")
        assert hasattr(C, k), k
        setattr(C, k, int(val) if val else True)
    open(out, "w").write(build())
    print("written", out)
```

```python
import sys, math, struct
sys.path.insert(0, "gen")
from asmlib import *

NAME = "interleave_layers__softmax_full_mha__glu_gated_reglu__prompt"
S, D, F, H, DH = 2048, 640, 1536, 32, 20
ACT = S * D * 2
HEADB = 81920
L_Q = 0
L_K = L_Q + ACT
L_V = L_K + ACT
L_O = L_V + ACT
L_X1 = L_O + ACT
L_X2 = L_X1 + ACT
L_H = L_X2 + ACT
L_ST1 = L_H + S * F * 2
L_ST2 = L_ST1 + S * 64
L_FG = L_ST2 + S * 64
LSTRIDE = L_FG + 32768
WS_ST0 = LSTRIDE + L_ST2
WS_WTO = 2 * LSTRIDE
WS_WTD = WS_WTO + D * D * 2
WS_WTG = WS_WTD + F * D * 2
WS_CSP = WS_WTG + 2 * F * D * 2
WS_CSG = WS_CSP + 10 * 12288
WS_CSQ = WS_CSG + 256 * 768
WS_FL = WS_CSQ + 256 * 512
WS_END = WS_FL + 8192
WS_SIZE = 268435456
WS_STAMP = 200 << 20
QSCALE = (DH ** -0.5) * math.log2(math.e)
def f32(x): return "0x%08x" % struct.unpack("<I", struct.pack("<f", x))[0]

P_X, P_WQKV, P_WO, P_BX, P_WG, P_WU, P_WD, P_OUT, P_DBG, P_WS = 16, 18, 20, 22, 24, 26, 28, 30, 32, 34
sL, sG, sR, sW, sLO, sEP, sTMO, sWG = 3, 4, 5, 6, 7, 8, 9, 13
R_WS, R_X, R_WQ, R_WG, R_WU, R_T = 36, 40, 44, 48, 52, 56
T = 60
WSR = f"s[{R_WS}:{R_WS+3}]"
def R(r): return f"s[{r}:{r+3}]"
SPIN = 200000

class Cfg:
    stamp = False
    dbg = 0
    dbgout = 0
    pi = 0
    pj = 0
    pm = 1
    pw = 0
    look = 6
    gu_e = 12
    dn_e = 4
    qk_e = 0
    bud_gu = 10
    bud_dn = 3
    bud_qk = 6
    bud_q1 = 8
    dn_a = 3
    psleep = 1
    gran = 3
    flip = 0
    gfull = 1
    dn_a0 = 2
    wo_a0 = 2
    x_a = 0
    x_d = 0
    c_i = 6
    c_c = 7
    c_f = 8
    pp = 0
    x_q = 0
    hth = 0
    fkc = 5
    bl = 0
    bln = 1
    thr0 = -1
    ev0 = 1
    ev1 = 0
    oxh = 6
    x_slow = 0
    x_gh = 0
    alias = 0
    ldprio = 0
    grp = 2
    qpf = 0
    qpf0 = 1
    qpl = 16
    qps = 1
    thr_e = 0
    thr_p = 0
    qk_s0 = 4
    dn_lag = 2
    dn_full = 5
    wo_a = 4
    wo_nas = 5
    c0 = 1
    g16 = 1
    e16 = 3
    wb = 0
    outb = 0
    q1prio = 0
    look_q1 = 6
    nocs = 0
    qloc = 1
    stage = 1
    cpf = 1
    l2pf0 = 0
    nt_kv = 0
    nt_wo = 0
    nt_gu = 0
    nt_dn = 0
    nt_qk = 0
    htouch = 0
    warm = 0
    gu_e2 = 0
    gu_p = 0
    dn_p = 20
    qk_p = 0
    wo_sets = 6
    q1pf = 1
    l2pf = 8
    rot = 0
    x_hit = 0
    tlb = 0
    rot_gu = 0
    rot_dn = 0
    rot_qk = 0
    dn_early = 99
    qk_early = 99
C = Cfg()

def stamp(a, i):
    if not C.stamp: return
    a(f"s_memtime s[10:11]\ns_mul_i32 s12, s{sL}, 24\ns_add_u32 m0, s12, {i}\ns_waitcnt lgkmcnt(0)\nv_writelane_b32 v255, s10, m0")
    if C.dbg == 7: a(f"s_memrealtime s[10:11]\ns_waitcnt lgkmcnt(0)\nv_writelane_b32 v254, s10, m0")

def dstamp(a, d, i):
    if C.stamp and C.dbg == d: a(f"s_memtime s[10:11]\ns_lshl_b32 s12, s{sL}, 5\ns_add_u32 m0, s12, {i}\ns_waitcnt lgkmcnt(0)\nv_writelane_b32 v254, s10, m0")

def cstamp(a, j):
    if C.stamp and C.dbg == 9:
        a(f"s_memtime s[10:11]\ns_lshl_b32 s12, s{sL}, 5\ns_add_u32 m0, s12, {2*j}\ns_waitcnt lgkmcnt(0)\nv_writelane_b32 v254, s10, m0")
        a(f"s_memrealtime s[10:11]\ns_add_u32 m0, s12, {2*j+1}\ns_waitcnt lgkmcnt(0)\nv_writelane_b32 v254, s10, m0")

def srd(a, r, ptr, size):
    a(f"s_mov_b32 s{r}, s{ptr}\ns_mov_b32 s{r+1}, s{ptr+1}\ns_mov_b32 s{r+2}, {size}\ns_mov_b32 s{r+3}, 0x20000")

def interleave(a, mf, other):
    n = len(mf); k = 0
    for i, m in enumerate(mf):
        a(m)
        tgt = (len(other) * (i + 1) + n - 1) // n
        while k < tgt:
            a(other[k]); k += 1

def poll(a, vaddr, vtmp, soff, want, sleep=0, pre=False, wide=False):
    lp = a.uid("poll"); ok = a.uid("pollok")
    cnt = T + 22
    a(f"s_mov_b32 s{cnt}, s{sTMO}")
    if pre is not False: a(f"s_waitcnt vmcnt({pre})\ns_branch {lp}c")
    a.label(lp)
    if wide: a(f"buffer_load_dwordx4 v[{vtmp}:{vtmp+3}], v{vaddr}, {WSR}, {soff} offen sc1")
    else: a(f"buffer_load_dword v{vtmp}, v{vaddr}, {WSR}, {soff} offen sc1")
    a(f"s_waitcnt vmcnt(0)")
    if pre is not False: a.label(lp + "c")
    a(f"v_subrev_u32 v{vtmp}, {want}, v{vtmp}")
    if wide:
        for i in range(1, 4): a(f"v_subrev_u32 v{vtmp+i}, {want}, v{vtmp+i}\nv_max_u32 v{vtmp}, v{vtmp}, v{vtmp+i}")
    a(f"v_cmp_lt_u32 vcc, 15, v{vtmp}")
    a(f"s_cbranch_vccz {ok}")
    if sleep: a(f"s_sleep {sleep}")
    a(f"s_add_u32 s{cnt}, s{cnt}, 1\ns_cmp_lt_u32 s{cnt}, {SPIN}\ns_cbranch_scc1 {lp}")
    a(f"s_mov_b32 s{sTMO}, {SPIN}")
    a.label(ok)

def poll_local(a, kind, ep, va=1, vt=2, sleep=0):
    t = T + 20
    if kind == "wo":
        a(f"v_and_b32 v{va}, 31, v0\nv_lshlrev_b32 v{va}, 5, v{va}\ns_lshr_b32 s{t}, s{sR}, 3\ns_lshl_b32 s{t}, s{t}, 2\ns_add_u32 s{t}, s{t}, 16")
    elif kind == "gu":
        a(f"v_lshrrev_b32 v{va}, 2, v0\nv_lshlrev_b32 v{va}, 5, v{va}\nv_and_b32 v{vt}, 3, v0\nv_lshl_add_u32 v{va}, v{vt}, 2, v{va}")
        a(f"s_lshr_b32 s{t}, s{sR}, 4\ns_lshl_b32 s{t}, s{t}, 9")
    elif kind == "down":
        a(f"v_bfe_u32 v{va}, v0, 1, 4\nv_lshlrev_b32 v{va}, 5, v{va}\nv_and_b32 v{vt}, 1, v0\nv_lshl_add_u32 v{va}, v{vt}, 3, v{va}")
        a(f"s_lshr_b32 s{t}, s{sR}, 4\ns_lshl_b32 s{t}, s{t}, 9\ns_bfe_u32 s{t+1}, s{sR}, 0x10003\ns_lshl_b32 s{t+1}, s{t+1}, 2\ns_add_u32 s{t}, s{t}, s{t+1}")
    elif kind == "attn":
        a(f"""
        v_bfe_u32 v{va}, v0, 2, 1
        v_mul_u32_u24 v{va}, 19, v{va}
        s_mul_i32 s{t}, s{sR}, 20
        v_add_u32 v{va}, s{t}, v{va}
        v_lshrrev_b32 v{va}, 7, v{va}
        v_lshrrev_b32 v{vt}, 4, v0
        v_min_u32 v{vt}, 2, v{vt}
        v_mad_u32_u24 v{va}, v{vt}, 5, v{va}
        v_bfe_u32 v{vt}, v0, 3, 1
        v_lshl_add_u32 v{va}, v{vt}, 4, v{va}
        v_lshlrev_b32 v{va}, 5, v{va}
        v_and_b32 v{vt}, 3, v0
        v_lshl_add_u32 v{va}, v{vt}, 2, v{va}
        s_mov_b32 s{t}, 0
        """)
    a(f"s_lshl_b32 s{t+1}, s{sG}, 10\ns_add_u32 s{t}, s{t}, s{t+1}\ns_add_u32 s{t}, s{t}, {WS_FL}\ns_add_u32 s{t+1}, s{sEP}, {ep}")
    poll(a, va, vt, f"s{t}", f"s{t+1}", sleep=sleep)

sNR, sGO, sGW = 92, 94, 95
class Gate:
    def __init__(self, a, va, vt, fold=False, sleep=0):
        self.a, self.va, self.vt, self.fold, self.sleep = a, va, vt, fold, sleep
        self.ok = 0
    def load(self): self.a(f"buffer_load_dword v{self.vt}, v{self.va}, {WSR}, s{sGO} offen sc1")
    def upd(self):
        self.a(f"s_waitcnt vmcnt(0)\nv_subrev_u32 v{self.vt}, s{sGW}, v{self.vt}\nv_cmp_lt_u32 s[{sNR}:{sNR+1}], 15, v{self.vt}")
        if self.fold: self.a(f"s_or_b32 s{sNR}, s{sNR}, s{sNR+1}")
    def reset(self): self.a(f"s_mov_b32 s{sNR}, -1")
    def need(self, mask):
        a = self.a
        mask &= ~self.ok
        if not mask: return
        self.ok |= mask
        lp = a.uid("gt"); cnt = T + 22
        a(f"s_and_b32 s{cnt}, s{sNR}, {hex(mask)}\ns_cbranch_scc0 {lp}k\ns_mov_b32 s{cnt}, s{sTMO}")
        if C.pp and not self.fold:
            v2 = self.vt2
            a(f"buffer_load_dword v{v2}, v{self.va}, {WSR}, s{sGO} offen sc1\ns_sleep {C.pp}")
            a.label(lp)
            for x_, y_ in ((self.vt, v2), (v2, self.vt)):
                a(f"buffer_load_dword v{x_}, v{self.va}, {WSR}, s{sGO} offen sc1\ns_waitcnt vmcnt(1)\nv_subrev_u32 v{y_}, s{sGW}, v{y_}\nv_cmp_lt_u32 s[{sNR}:{sNR+1}], 15, v{y_}")
                a(f"s_and_b32 s{cnt+1}, s{sNR}, {hex(mask)}\ns_cbranch_scc0 {lp}k")
        else:
            a.label(lp)
            self.load(); self.upd()
            a(f"s_and_b32 s{cnt+1}, s{sNR}, {hex(mask)}\ns_cbranch_scc0 {lp}k")
            if self.sleep: a(f"s_sleep {self.sleep}")
        a(f"s_add_u32 s{cnt}, s{cnt}, 1\ns_cmp_lt_u32 s{cnt}, {SPIN}\ns_cbranch_scc1 {lp}\ns_mov_b32 s{sTMO}, {SPIN}")
        a.label(lp + "k")
def span(lo, hi, w, bits):
    m = 0
    for p in range(lo // w, hi // w + 1): m |= ((1 << bits) - 1) << (bits * p)
    return m
def gate_local(a, kind, ep, va, vt, sRotCt=None, sleep=0):
    t = T + 20
    if kind == "wo":
        a(f"v_and_b32 v{va}, 31, v0\nv_lshlrev_b32 v{va}, 5, v{va}\ns_lshr_b32 s{sGO}, s{sR}, 3\ns_lshl_b32 s{sGO}, s{sGO}, 2\ns_add_u32 s{sGO}, s{sGO}, 16")
    elif kind == "down":
        a(f"v_lshrrev_b32 v{va}, 1, v0\nv_add_u32 v{va}, s{sRotCt}, v{va}\nv_and_b32 v{va}, 15, v{va}\nv_lshlrev_b32 v{va}, 5, v{va}\nv_and_b32 v{vt}, 1, v0\nv_lshl_add_u32 v{va}, v{vt}, 3, v{va}")
        a(f"s_lshr_b32 s{sGO}, s{sR}, 4\ns_lshl_b32 s{sGO}, s{sGO}, 9\ns_bfe_u32 s{t+1}, s{sR}, 0x10003\ns_lshl_b32 s{t+1}, s{t+1}, 2\ns_add_u32 s{sGO}, s{sGO}, s{t+1}")
    elif kind == "gu":
        a(f"v_lshrrev_b32 v{va}, 1, v0\nv_add_u32 v{va}, s{sRotCt}, v{va}\nv_and_b32 v{va}, 7, v{va}\nv_lshlrev_b32 v{va}, 5, v{va}\nv_and_b32 v{vt}, 1, v0\nv_lshl_add_u32 v{va}, v{vt}, 2, v{va}")
        a(f"s_lshr_b32 s{sGO}, s{sR}, 4\ns_lshl_b32 s{sGO}, s{sGO}, 9\ns_bfe_u32 s{t+1}, s{sW}, 0x10001\ns_lshl_b32 s{t+1}, s{t+1}, 8\ns_add_u32 s{sGO}, s{sGO}, s{t+1}")
        a(f"s_and_b32 s{t+1}, s{sW}, 1\ns_lshl_b32 s{t+1}, s{t+1}, 3\ns_add_u32 s{sGO}, s{sGO}, s{t+1}")
    a(f"s_lshl_b32 s{t+1}, s{sG}, 10\ns_add_u32 s{sGO}, s{sGO}, s{t+1}\ns_add_u32 s{sGO}, s{sGO}, {WS_FL}\ns_add_u32 s{sGW}, s{sEP}, {ep}")
    g = Gate(a, va, vt, sleep=sleep); g.reset(); g.vt2 = 8 if kind != 'gu' else 3
    return g

def flag_setup(a, ep):
    t = T + 20
    a(f"s_lshl_b32 s{t}, s{sWG}, 3\ns_add_u32 s{t}, s{t}, s{sW}\ns_lshl_b32 s{t}, s{t}, 2\ns_add_u32 s{t}, s{t}, {WS_FL}\ns_add_u32 s{t+1}, s{sEP}, {ep}")
    a(f"v_mov_b32 v1, 0\nv_mov_b32 v2, s{t+1}")
def flag_store(a, SB, s=T+20):
    a(f"s_mov_b64 exec, 1\nbuffer_store_dword v2, v1, {WSR}, s{s} offen {SB}\ns_mov_b64 exec, -1")
def publish_local(a, ep, SB):
    flag_setup(a, ep)
    a("s_waitcnt vmcnt(0)")
    flag_store(a, SB)

def row_stats(a, vst, vmean, vrstd):
    for i in range(1, 8):
        a(f"v_add_f32 v{vst}, v{vst}, v{vst+2*i}\nv_add_f32 v{vst+1}, v{vst+1}, v{vst+2*i+1}")
    finish_stats(a, vst, vst + 1, vmean, vrstd)

def finish_stats(a, vs, vq, vmean, vrstd):
    a(f"v_mul_f32 v{vmean}, {f32(1.0/D)}, v{vs}")
    a(f"v_mul_f32 v{vq}, {f32(1.0/D)}, v{vq}")
    a(f"v_fma_f32 v{vq}, -v{vmean}, v{vmean}, v{vq}")
    a(f"v_max_f32 v{vq}, 0, v{vq}")
    a(f"v_add_f32 v{vq}, {f32(1e-5)}, v{vq}")
    a(f"v_rsq_f32 v{vrstd}, v{vq}")
    a("s_nop 0")

def lin_dma(a, vaddr, src_s, src_off, dst_s, dst_off, npieces, bits="", rsrc=WSR, tmp=T+19):
    i = 0
    while i < npieces:
        k = min(4, npieces - i)
        a(f"s_add_u32 m0, s{dst_s}, {dst_off + 1024*i}")
        a(f"s_add_u32 s{tmp}, s{src_s}, {src_off + 1024*i}")
        for j in range(k):
            a(f"buffer_load_dwordx4 v{vaddr}, {rsrc}, s{tmp} offen offset:{1024*j} {bits} lds")
        i += k
    return npieces


def states(x):
    return int(x.split()[1]) + 1 if x.startswith("s_nop") else 1

def gemm_unrolled(a, n, P, nr, reads, mfma, groups, inserts, fix, fix_from, epi, st_end, alt=None, after_e=(), late=()):
    seq = []
    def add(ms, fill, pre=()):
        k = 0
        for i, (kk, tl) in enumerate(ms):
            tgt = (len(fill) * (i + 1) + len(ms) - 1) // len(ms)
            seq.append([list(pre) if i == 0 else [], mfma(kk, tl), tl, list(fill[k:tgt])]); k = tgt
    step = lambda kk: [(kk, tl) for tl in range(P)]
    a("s_barrier")
    for x in reads(0, 0) + reads(0, 1): a(x)
    w = f"s_waitcnt lgkmcnt({nr})"
    for c in range(n - 1):
        add(step(0), reads(c, 2), [w])
        add(step(1), reads(c, 3), [w])
        add(step(2), [], [w])
        seq[-2][3] += ["s_waitcnt lgkmcnt(0)"]; seq[-1][3] += ["s_barrier"]
        add(step(3), reads(c + 1, 0) + reads(c + 1, 1))
    nmain = len(seq)
    for i0, ins in inserts.items():
        i = i0; ins = list(ins)
        while ins:
            room = 4 - sum(states(x) for x in seq[i][3]) - len(seq[i+1][0])
            if ins[0].startswith("s_mov_b32 exec") and room < 3: room = 0
            while room > 0 and ins and "s_barrier" not in seq[i][3]:
                x = ins.pop(0); seq[i][3].append(x); room -= states(x)
            i += 1

        end = fix_from if i0 < fix_from else nmain
        assert i <= end and all(not (i0 < k < i) for k in inserts if len(inserts[i0]) > 1), (i0, i)
        if any(x.startswith("ds_") for x in inserts[i0]): assert any("s_waitcnt lgkmcnt(0)" in seq[j][3] for j in range(i, end)), (i, end)
    todo = {tl: list(fix(tl)) for tl in range(P)}
    used = lambda g: sum(states(x) for x in seq[g][3]) + len(seq[g+1][0])
    g = fix_from + 2
    while any(todo.values()):
        assert g + 2 < nmain, "no room for fix"
        if used(g) < 5 and "s_barrier" not in seq[g][3]:
            for back in range(P - 2, 1, -1):
                tl = seq[g - back][2]
                if not todo[tl] or g - back < fix_from: continue
                have = sum(used(x) + 1 for x in range(g - back, g)) + sum(states(x) for x in seq[g][3])
                room = sum(max(0, 5 - used(x)) for x in range(g - back, g))
                if have + room < 12: continue
                for x in range(g - back, g):
                    k = min(5 - used(x), 12 - have)
                    if k > 0: seq[x][3].append(f"s_nop {k-1}"); have += k
                while used(g) < 5 and todo[tl]: seq[g][3].append(todo[tl].pop(0))
            if used(g + 1) < 1: seq[g + 1][3].append("s_nop 0")
        g += 1

    c = n - 1
    g0 = groups[0]
    seq[-1][3] += reads(c, 2)
    add([(kk, tl) for kk in (0, 1) for tl in g0], reads(c, 3), [w])
    add([(kk, tl) for kk in (2, 3) for tl in g0], list(late), ["s_waitcnt lgkmcnt(0)"])
    if after_e:
        seq[-2][3].append("s_barrier"); seq[-1][3] += list(after_e)
    else: seq[-len(g0)*2][3].append("s_barrier")
    seq[-1][3].append("s_nop 4")
    def flush():
        for pre, m, tl, post in seq:
            for x in pre: a(x)
            a(m)
            for x in post: a(x)
        del seq[:]
    def tail(epi):
        for gi in range(1, len(groups)):
            ms = [(kk, tl) for kk in range(4) for tl in groups[gi]]
            if gi == 1: add(ms[:1], ["s_nop 4"]); add(ms[1:], epi(gi - 1, False))
            else: add(ms, ["s_nop 0"] + epi(gi - 1, False))
        flush()
        stamp(a, st_end)
        a.nop(3)
        for x in epi(len(groups) - 1, True): a(x)
    if alt:
        cond, epi2, post1, post2 = alt
        l = a.uid("alt")
        seq[-1][3][-1:] = [cond, f"s_cbranch_scc1 {l}", "s_nop 2"]
        flush(); tail(epi); post1()
        a.label(l); a("s_nop 2"); tail(epi2); post2()
    else: tail(epi)

def gemm16(a, n, P, reads, mfma, groups, inserts, fix, fix_from, epi, st_end, fillmax=1, nlead=2, alt=None, after_e=(), late=()):
    seq = []
    def add(ms, fill, span, pre=()):
        k = 0
        for i, (u, tl, z) in enumerate(ms):
            tgt = min(len(fill), (len(fill) * (i + 1) + span - 1) // span)
            seq.append([list(pre) if i == 0 else [], mfma(u, tl, z), tl, list(fill[k:tgt])]); k = tgt
        assert k == len(fill)
    w0 = "s_waitcnt lgkmcnt(0)"
    a("s_barrier")
    for x in reads(0, 0): a(x)
    nr = len(reads(0, 0)); sp = min(nr, P - 6)
    for c in range(n - 1):
        add([(0, tl, c == 0) for tl in range(P)], reads(c, 1), sp, [w0])
        bl = C.bl if (P == 16 and c >= n - 1 - C.bln) else 0
        seq[-2][3] += [w0]
        if bl: add([(1, tl, False) for tl in range(bl)], [], 1)
        seq[-1][3] += ["s_barrier"]
        add([(1, tl, False) for tl in range(bl, P)], reads(c + 1, 0), min(sp, max(1, P - bl - 2)))
    nmain = len(seq)
    used = lambda g: sum(states(x) * (2 if x.startswith(("buffer", "v_perm", "v_rsq")) else 1) for x in seq[g][3]) + len(seq[g+1][0])
    for i0, ins in inserts.items():
        i = i0; ins = list(ins)
        while ins:
            while used(i) < fillmax and ins and "s_barrier" not in seq[i][3]: seq[i][3].append(ins.pop(0))
            i += 1
        end = fix_from if i0 < fix_from else nmain - 1
        assert i <= end and all(not (i0 < k < i) for k in inserts if len(inserts[i0]) > 1), (i0, i)
        if any(x.startswith("ds_") for x in inserts[i0]): assert any(w0 in seq[j][3] + seq[j][0] for j in range(i, end)), (i0, i)
    todo = {tl: list(fix(tl)) for tl in range(P)}
    g = fix_from
    while any(todo.values()):
        assert g + 4 < nmain
        for back in sorted(range(P - 3, 3, -1), key=lambda b_: -len(todo[seq[g - b_][2]])):
            if sum(1 + sum(states(x) for x in seq[j][3]) for j in range(g - back, g)) < 8: continue
            tl = seq[g - back][2]
            while used(g) < fillmax and todo[tl] and "s_barrier" not in seq[g][3]: seq[g][3].append(todo[tl].pop(0))
        g += 1
    c = n - 1
    lead = sum(groups[:nlead], ())
    add([(0, tl, False) for tl in lead], reads(c, 1) + list(late), min(len(lead), nr), [w0])
    add([(1, tl, False) for tl in groups[0]], ["s_barrier"] + list(after_e), len(groups[0]) if after_e else 1, [w0])
    rest = [(1, tl, False) for gi in range(1, nlead) for tl in groups[gi]]
    for gi in range(nlead, len(groups)): rest += [(u, tl, False) for u in range(2) for tl in groups[gi]]
    def flush():
        for k_, (pre, m, tl, post) in enumerate(seq):
            for x in pre: a(x)
            a(m)
            for x in post: a(x)
            if C.x_slow and P == 24 and k_ % C.x_slow == 0: a("s_nop 7")
        del seq[:]
    def tail(epi):
        add(rest[:2], ["s_nop 1", "s_nop 1"], 2)
        nleft = len(rest) - 2
        e = epi(0, False) + epi(1, False)
        add(rest[2:], e[:C.e16*nleft], nleft)
        flush()
        for x in e[C.e16*nleft:]: a(x)
        stamp(a, st_end)
        for gi in range(2, len(groups)):
            for x in epi(gi, True): a(x)
    if alt:
        cond, epi2, post1, post2 = alt
        l = a.uid("alt")
        seq[-1][3] += [cond, f"s_cbranch_scc1 {l}"]
        flush(); tail(epi); post1()
        a.label(l); tail(epi2); post2()
    else: tail(epi)

class Src:
    def __init__(self, sB, sB1, sThr, stride): self.__dict__.update(locals())
    def setup(self, a, sRot, n, tmp):
        a(f"s_mul_i32 s{tmp}, s{sRot}, {self.stride}\ns_add_u32 s{self.sB}, s{self.sB}, s{tmp}\ns_sub_u32 s{self.sB1}, s{self.sB}, {n*self.stride}")
    def sel(self, a, c, dst):
        if getattr(self, "norot", False):
            a(f"s_mov_b32 s{dst}, s{self.sB}"); return
        a(f"s_cmp_gt_u32 s{self.sThr}, {c}\ns_cselect_b32 s{dst}, s{self.sB}, s{self.sB1}")

class Phase:
    def __init__(self, name, n, npa, npw, emitA, emitW, regA, regW, pollfn, budget, lag=1, after_bar=None, dbg=False, early=99):
        self.__dict__.update(locals())

class Loader:
    def __init__(self, a):
        self.a = a; self.q = []; self.live = {}; self.waitfn = None; self.total = 0
    def free(self, reg, key):
        return key in self.live or all(reg[1] <= lo or hi <= reg[0] for lo, hi in self.live.values())
    def can(self, ph, kind, c):
        return self.free((ph.regA if kind == "A" else ph.regW)(c), (ph.name, kind, c))
    def issue(self, ph, kind, c, i0, k):
        assert self.can(ph, kind, c)
        self.live[(ph.name, kind, c)] = (ph.regA if kind == "A" else ph.regW)(c)
        (ph.emitA if kind == "A" else ph.emitW)(c, i0, k)
        self.q += [(ph.name, kind, c)] * k; self.total += k
    def release(self, ph, c):
        for k in "AW": self.live.pop((ph.name, k, c), None)
    def wait(self, tags):
        last = -1
        for i, t in enumerate(self.q):
            if t in tags: last = i
        if last >= 0:
            self.q = self.q[last+1:]
            n7 = len(self.q); n = sum(1 for t in self.q if t[0] != "x7")
            assert n7 < 64
            if n7 != n:
                l = self.a.uid("w7")
                self.a(f"s_waitcnt vmcnt({n7})\ns_cmp_eq_u32 s{sW}, 7\ns_cbranch_scc1 {l}\ns_waitcnt vmcnt({n})")
                self.a.label(l)
            else: self.a(f"s_waitcnt vmcnt({n})")
    def pre(self, ph, pw, cnt, thr=0):
        done = 0
        while pw < ph.n * ph.npw and done < cnt and self.can(ph, "W", pw // ph.npw):
            k = min(4, ph.npw - pw % ph.npw, cnt - done)
            if thr:
                k = 1
                if len(self.q) >= thr:
                    self.a(f"s_waitcnt vmcnt({thr-1})"); self.q = self.q[len(self.q) - (thr - 1):]
            self.issue(ph, "W", pw // ph.npw, pw % ph.npw, k); pw += k; done += k
        return pw
    def run(self, ph, nxt, pw=0, after_poll=None, tail=None, waitfn=None, lastexit=None):
        a = self.a; n = ph.n
        pa = 0; pn = 0
        if ph.pollfn: ph.pollfn()
        if after_poll: after_poll()
        for c in range(1 if getattr(ph, "skip0", False) else 0, n):
            done = 0
            if lastexit and pw == n * ph.npw:
                assert all(t_[0] == ph.name for t_ in self.q)
                lastexit([len(self.q) - 1 - max([-1] + [i_ for i_, t_ in enumerate(self.q) if t_[2] <= cc]) for cc in range(c, n)]); lastexit = None
            while True:
                needed = pa < (c + 1) * ph.npa or pw < (c + 1) * ph.npw
                if not needed:
                    beyond = 0
                    for t in reversed(self.q):
                        if t[0] == ph.name and t[2] <= c: break
                        beyond += t[0] != "x7"
                    if beyond >= getattr(ph, 'look', C.look) and (done >= ph.budget or c == 0): break
                ca = pa // ph.npa if ph.npa else n; cw = pw // ph.npw
                okA = ca < n and self.can(ph, "A", ca)
                okW = cw < n and self.can(ph, "W", cw)
                if okW and (cw <= ca or not okA):
                    k = ph.npw - pw % ph.npw
                    if not needed: k = min(C.grp, k)
                    self.issue(ph, "W", cw, pw % ph.npw, k); pw += k
                elif okA:
                    k = ph.npa - pa % ph.npa
                    if not needed: k = min(C.grp, k)
                    self.issue(ph, "A", ca, pa % ph.npa, k); pa += k
                elif nxt and not lastexit and ca == n and cw == n and pn < nxt.early and self.can(nxt, "W", pn // nxt.npw):
                    k = min(2, nxt.npw - pn % nxt.npw)
                    self.issue(nxt, "W", pn // nxt.npw, pn % nxt.npw, k); pn += k
                else:
                    assert not needed
                    break
                done += k
            if tail and pa == n * ph.npa and pw == n * ph.npw:
                tail(); tail = None; self.waitfn = waitfn
            if ph.after_bar and c > 0: ph.after_bar(c - 1)
            self.wait({(ph.name, "A", c), (ph.name, "W", c)})
            if ph.dbg and C.stamp: a(f"s_memtime s[10:11]\ns_waitcnt lgkmcnt(0)\nv_writelane_b32 v254, s10, {2*c}")
            a("s_barrier")
            if ph.dbg and C.stamp: a(f"s_memtime s[10:11]\ns_waitcnt lgkmcnt(0)\nv_writelane_b32 v254, s10, {2*c+1}")
            self.release(ph, c - ph.lag)
        if ph.after_bar: ph.after_bar(n - 1)
        if nxt: pn = self.pre(nxt, pn, min(ph.budget, max(0, nxt.early - pn)))
        return pn
    def end(self, ph):
        self.a("s_barrier")
        for c in range(ph.n): self.release(ph, c)

Q1_TAB = 98304
Q1_NON = Q1_TAB + 2048
Q1_CS = Q1_NON + 64
WB = 65536
def guW(c): return WB + ((3 - c) % 4) * 24576
def dnW(c): return ((c + 2) % 8) * 20480
def qkW(c): return WB + ((c + C.qk_s0) % 6) * 16384

PSCR = 131072
PV = 180
def projjob_issue(a, sJob, sScr, t, loads=True):
    a(f"""
    s_and_b32 s{t+2}, s{sJob}, 7
    s_lshr_b32 s{t+3}, s{sJob}, 3
    s_cmp_lt_u32 s{t+3}, 20
    s_cselect_b32 s{R_T}, s{P_WO}, s{P_WD}
    s_cselect_b32 s{R_T+1}, s{P_WO+1}, s{P_WD+1}
    s_mov_b32 s{R_T+2}, {F*D*2}
    s_cselect_b32 s{R_T+2}, {D*D*2}, s{R_T+2}
    s_mov_b32 s{R_T+3}, 0x20000
    s_cselect_b32 s{t+4}, 0, 20
    s_cselect_b32 s{t+5}, 20, 48
    s_mov_b32 s{t+6}, {WS_WTD}
    s_cselect_b32 s{t+6}, {WS_WTO}, s{t+6}
    s_sub_u32 s{t+3}, s{t+3}, s{t+4}
    s_mul_i32 s{t+5}, s{t+5}, s{t+2}
    s_add_u32 s{t+5}, s{t+5}, s{t+3}
    s_mul_i32 s{t+5}, s{t+5}, 5120
    s_add_u32 s{t+6}, s{t+6}, s{t+5}
    s_mul_i32 s{t+3}, s{t+3}, {32*1280}
    s_mul_i32 s{t+2}, s{t+2}, 160
    s_add_u32 s{t+3}, s{t+3}, s{t+2}
    s_movk_i32 s{t+4}, 6554
    """)
    x, y = PV, PV + 1
    for i in range(5 if loads else 0):
        a(f"""
        v_add_u32 v{x}, {64*i}, v0
        v_mul_u32_u24 v{y}, s{t+4}, v{x}
        v_lshrrev_b32 v{y}, 16, v{y}
        v_mad_i32_i24 v{x}, v{y}, -10, v{x}
        v_mul_u32_u24 v{y}, 1280, v{y}
        v_lshl_add_u32 v{x}, v{x}, 4, v{y}
        s_add_u32 m0, s{sScr}, {1024*i}
        s_nop 0
        buffer_load_dwordx4 v{x}, {R(R_T)}, s{t+3} offen lds
        """)
def projjob_finish(a, sScr, t):
    x, y, z, d0 = PV, PV + 1, PV + 2, PV + 4
    a(f"""
    v_lshrrev_b32 v{x}, 4, v0
    v_bfe_u32 v{y}, v0, 2, 2
    v_lshl_add_u32 v{x}, v{x}, 3, v{y}
    v_mul_u32_u24 v{x}, 160, v{x}
    v_add_u32 v{x}, s{sScr}, v{x}
    v_and_b32 v{y}, 3, v0
    v_lshl_add_u32 v{z}, v{y}, 3, v{x}
    v_lshl_add_u32 v{y}, v{y}, 4, v{x}
    """)
    for jn in range(5):
        for j in range(2):
            d = d0 + 4*jn + 2*j
            if jn < 4: a(f"ds_read_b64_tr_b16 v[{d}:{d+1}], v{y} offset:{640*j + 64*(jn>>1) + 8*(jn&1)}")
            else: a(f"ds_read_b64_tr_b16 v[{d}:{d+1}], v{z} offset:{640*j + 128}")
    a(f"s_add_u32 s{t+5}, s{t+6}, 4096\ns_waitcnt lgkmcnt(0)")
    for jn in range(5):
        d = d0 + 4*jn
        a(f"buffer_store_dwordx4 v[{d}:{d+3}], v5, {WSR}, s{t+6 if jn < 4 else t+5} offen offset:{1024*(jn&3)} sc1")

def gujob_issue(a, sJob, t, loads=True):
    x, y = PV, PV + 1
    a(f"""
    s_mul_i32 s{t+2}, s{sJob}, 2731
    s_lshr_b32 s{t+2}, s{t+2}, 16
    s_mul_i32 s{t+3}, s{t+2}, 24
    s_sub_u32 s{t+3}, s{sJob}, s{t+3}
    s_mul_i32 s{t+4}, s{t+2}, {64*F*2}
    s_lshl_b32 s{t+5}, s{t+3}, 7
    s_add_u32 s{t+4}, s{t+4}, s{t+5}
    v_lshrrev_b32 v{x}, 3, v0
    v_mul_u32_u24 v{x}, {F*2}, v{x}
    v_and_b32 v{y}, 7, v0
    v_lshl_add_u32 v{x}, v{y}, 4, v{x}
    """)
    a(f"""
    s_and_b32 s{t+1}, s{sW}, 1
    s_cselect_b32 s{R_T}, s{P_WU}, s{P_WG}
    s_cselect_b32 s{R_T+1}, s{P_WU+1}, s{P_WG+1}
    s_mov_b32 s{R_T+2}, {F*D*2}
    s_mov_b32 s{R_T+3}, 0x20000
    s_lshl_b32 s{t+6}, s{t+1}, 13
    """)
    for i in range(8):
        a(f"s_add_u32 m0, s{t+6}, {PSCR + 1024*i}\ns_add_u32 s{t+5}, s{t+4}, {i*8*F*2}")
        a(f"buffer_load_dwordx4 v{x}, {R(R_T)}, s{t+5} offen lds")
def gujob_finish(a, t):
    x, y, z = PV, PV + 1, PV + 2
    ONE, FRG, CS = PV + 4, PV + 8, PV + 40
    a(f"""
    v_lshrrev_b32 v{z}, 4, v0
    v_bfe_u32 v{x}, v0, 2, 2
    v_lshl_add_u32 v{x}, v{z}, 3, v{x}
    v_lshlrev_b32 v{x}, 7, v{x}
    v_and_b32 v{y}, 3, v0
    v_lshl_add_u32 v{x}, v{y}, 3, v{x}
    s_add_u32 s{t+6}, s{t+6}, {PSCR}
    v_add_u32 v{x}, s{t+6}, v{x}
    v_lshlrev_b32 v{z}, 4, v{z}
    """)
    for tt in range(4):
        for u in range(2):
            for j in range(2):
                d = FRG + 8*tt + 4*u + 2*j
                a(f"ds_read_b64_tr_b16 v[{d}:{d+1}], v{x} offset:{128*(32*u+4*j) + 32*tt}")
    a(f"""
    s_mul_i32 s{t+6}, s{t+2}, 12288
    s_lshl_b32 s{t+5}, s{t+3}, 9
    s_add_u32 s{t+6}, s{t+6}, s{t+5}
    s_lshl_b32 s{t+5}, s{t+1}, 6
    s_add_u32 s{t+6}, s{t+6}, s{t+5}
    s_add_u32 s{t+6}, s{t+6}, {WS_CSP}
    """)
    for i in range(4): a(f"v_mov_b32 v{ONE+i}, 0x3f803f80")
    a("s_nop 0\ns_waitcnt lgkmcnt(0)")
    for u in range(2):
        for tt in range(4):
            a(f"v_mfma_f32_16x16x32_bf16 {v(CS+4*tt,4)}, {v(FRG+8*tt+4*u,4)}, {v(ONE,4)}, {v(CS+4*tt,4) if u else 0}")
    for tt in range(4):
        a(f"""
        s_lshl_b32 s{t+4}, s{t+3}, 2
        s_add_u32 s{t+4}, s{t+4}, {tt}
        s_mul_i32 s{t+5}, s{t+4}, 43
        s_lshr_b32 s{t+5}, s{t+5}, 8
        s_mul_i32 s{t+5}, s{t+5}, 228
        s_lshl_b32 s{t+4}, s{t+4}, 1
        s_add_u32 s{t+4}, s{t+4}, s{t+5}
        s_mul_i32 s{t+5}, s{t+2}, 24
        s_add_u32 s{t+4}, s{t+4}, s{t+5}
        s_add_u32 s{t+4}, s{t+4}, s{t+1}
        s_lshl_b32 s{t+4}, s{t+4}, 10
        s_add_u32 s{t+4}, s{t+4}, {WS_WTG}
        s_add_u32 s{t+5}, s{t+4}, 12288
        """)
        for u in range(2):
            d = FRG + 8*tt + 4*u
            a(f"buffer_store_dwordx4 v[{d}:{d+3}], v5, {WSR}, s{t+4+u} offen sc1")
    a("s_mov_b32 exec_lo, 0x10001\ns_mov_b32 exec_hi, 0x10001")
    for tt in range(4):
        a(f"buffer_store_dwordx4 v[{CS+4*tt}:{CS+4*tt+3}], v{z}, {WSR}, s{t+6} offen offset:{128*tt} sc1")
    a("s_mov_b64 exec, -1")

def prep(a, stage):
    tj = 84; sJob, sScr = tj, tj + 1
    lg = a.uid("pg"); le = a.uid("pe")
    if stage == 0:
        a(f"""
        s_sub_u32 s{sScr}, s{sW}, 1
        s_lshl_b32 s{sJob}, s{sScr}, 8
        s_add_u32 s{sJob}, s{sJob}, s{sWG}
        s_add_u32 s{sJob}, s{sJob}, 160
        s_mul_i32 s{sScr}, s{sScr}, 5120
        s_add_u32 s{sScr}, s{sScr}, {PSCR + 16384}
        """)
    a(f"s_cmp_eq_u32 s{sW}, 0\ns_cbranch_scc1 {lg}\ns_cmp_eq_u32 s{sW}, 3\ns_cbranch_scc1 {lg}\ns_cmp_ge_u32 s{sJob}, 544\ns_cbranch_scc1 {le}")
    projjob_issue(a, sJob, sScr, tj) if stage == 0 else projjob_finish(a, sScr, tj)
    a(f"s_branch {le}")
    a.label(lg)
    a(f"s_cmp_ge_u32 s{sWG}, 240\ns_cbranch_scc1 {le}")
    gujob_issue(a, sWG, tj) if stage == 0 else gujob_finish(a, tj)
    a.label(le)

def xstat_fin(a):
    t = T + 16
    a(f"s_mov_b32 s{t}, 0xffff0000\nv_mov_b64 v[232:233], 0\ns_waitcnt vmcnt(0)")
    for i in range(12):
        a(f"v_lshlrev_b32 v234, 16, v{220+i}\nv_and_b32 v235, s{t}, v{220+i}\nv_add_f32 v232, v232, v234\nv_fmac_f32 v233, v234, v234\nv_add_f32 v232, v232, v235\nv_fmac_f32 v233, v235, v235")
    for mod in ("quad_perm:[1,0,3,2]", "quad_perm:[2,3,0,1]"):
        a(f"s_nop 1\nv_add_f32_dpp v232, v232, v232 {mod} row_mask:0xf bank_mask:0xf\nv_add_f32_dpp v233, v233, v233 {mod} row_mask:0xf bank_mask:0xf")
    a(f"""
    v_bfe_u32 v234, v0, 3, 2
    v_lshlrev_b32 v234, 10, v234
    v_bfe_u32 v235, v0, 2, 1
    v_lshl_add_u32 v234, v235, 3, v234
    v_lshrrev_b32 v235, 5, v0
    v_lshl_add_u32 v234, v235, 4, v234
    s_lshr_b32 s{t}, s{sWG}, 3
    s_lshl_b32 s{t}, s{t}, 12
    s_and_b32 s{t+1}, s{sWG}, 7
    s_lshl_b32 s{t+1}, s{t+1}, 2
    s_add_u32 s{t+1}, s{t+1}, s{sW}
    s_lshl_b32 s{t+1}, s{t+1}, 5
    s_add_u32 s{t}, s{t}, s{t+1}
    s_add_u32 s{t}, s{t}, {WS_ST0}
    s_mov_b32 exec_lo, 0x11111111
    s_mov_b32 exec_hi, 0x11111111
    buffer_store_dwordx2 v[232:233], v234, {WSR}, s{t} offen sc1
    s_mov_b64 exec, -1
    """)

def nonce_put(a):
    t = T + 8
    a(f"""
    s_memrealtime s[{t}:{t+1}]
    v_mov_b32 v1, 0
    s_waitcnt lgkmcnt(0)
    s_or_b32 s{t+2}, s{t}, 0x80000000
    v_mov_b32 v2, s{t+2}
    s_mov_b64 exec, 1
    global_store_dword v1, v2, s[{P_DBG}:{P_DBG+1}] sc1
    s_mov_b64 exec, -1
    """)
def flags_zero(a):
    t = T + 16
    a(f"""
    s_lshl_b32 s{t}, s{sWG}, 5
    s_add_u32 s{t}, s{t}, {WS_FL}
    s_lshl_b32 s{t+1}, s{sWG}, 7
    s_add_u32 s{t+1}, s{t+1}, {L_FG}
    s_add_u32 s{t+2}, s{t+1}, {LSTRIDE}
    v_lshlrev_b32 v236, 2, v0
    v_mov_b32 v237, 0
    s_mov_b64 exec, 0xff
    buffer_store_dword v237, v236, {WSR}, s{t} offen sc1
    s_mov_b64 exec, 0x7ff
    buffer_store_dword v237, v236, {WSR}, s{t+1} offen sc1
    buffer_store_dword v237, v236, {WSR}, s{t+2} offen sc1
    s_mov_b64 exec, -1
    """)

def nonce_issue(a, v2, v3):
    a(f"v_mov_b32 v{v3}, 0\nglobal_load_dword v{v2}, v{v3}, s[{P_DBG}:{P_DBG+1}] sc1")
def nonce_get(a, v1, v2, v3, cnt=0):
    t = T + 14
    lp = a.uid("non"); ok = a.uid("nonok")
    a(f"s_mov_b32 s{t+6}, 0\nv_mov_b32 v{v3}, 0\ns_lshl_b32 s{t+4}, s{sWG}, 7\ns_add_u32 s{t+4}, s{t+4}, {L_FG}\ns_waitcnt vmcnt({cnt})\ns_branch {lp}c")
    a.label(lp)
    a(f"global_load_dword v{v2}, v{v3}, s[{P_DBG}:{P_DBG+1}] sc1\ns_waitcnt vmcnt(0)")
    a.label(lp + "c")
    a(f"""
    v_cmp_eq_u32 vcc, 0, v{v2}
    s_cbranch_vccz {ok}
    s_sleep 4
    s_add_u32 s{t+6}, s{t+6}, 1
    s_cmp_lt_u32 s{t+6}, {SPIN}
    s_cbranch_scc1 {lp}
    s_mov_b32 s{sTMO}, {SPIN}
    """)
    a.label(ok)
    a(f"""
    v_readfirstlane_b32 s{sEP}, v{v2}
    s_getreg_b32 s{t+6}, hwreg(HW_REG_XCC_ID, 0, 4)
    v_add_u32 v{v2}, s{t+6}, v{v2}
    s_mov_b64 exec, 1
    buffer_store_dword v{v2}, v{v3}, {WSR}, s{t+4} offen offset:32 sc1
    s_mov_b64 exec, -1
    s_waitcnt lgkmcnt(0)
    """)

def census(a, va, vt, issue, cnt=0):
    t = T + 20
    a(f"""
    v_and_b32 v{va}, 31, v0
    v_lshlrev_b32 v{va}, 7, v{va}
    s_lshl_b32 s{t}, s{sG}, 12
    s_add_u32 s{t}, s{t}, {L_FG + 32}
    """)
    if issue:
        a(f"buffer_load_dword v{vt}, v{va}, {WSR}, s{t} offen sc1")
        return
    poll(a, va, vt, f"s{t}", f"s{sEP}", sleep=4, pre=cnt)
    a(f"""
    s_getreg_b32 s{t}, hwreg(HW_REG_XCC_ID, 0, 4)
    v_cmp_ne_u32 vcc, s{t}, v{vt}
    s_cmp_eq_u64 vcc, 0
    s_cselect_b32 s{t}, 1, 0
    v_mov_b32 v{va}, {Q1_NON}
    v_mov_b32 v{vt}, s{t}
    ds_write_b32 v{va}, v{vt} offset:4
    v_mov_b32 v{vt}, s{sEP}
    ds_write_b32 v{va}, v{vt}
    s_waitcnt lgkmcnt(0)
    """)

sMODE = 14 - 14 + 98
def read_nonce_mode(a):
    a(f"v_mov_b32 v1, {Q1_NON}\nds_read_b64 v[2:3], v1\ns_waitcnt lgkmcnt(0)\nv_readfirstlane_b32 s{sEP}, v2\nv_readfirstlane_b32 s{sMODE}, v3")

def qkv_ids(a, t):
    a(f"s_lshr_b32 s{t}, s{sWG}, 4\ns_and_b32 s{t+1}, s{sR}, 15")

def qkv_compute(a, first, SB):
    t = T
    sRT, sCT, sTY, sC0 = t, t+1, t+2, t+3
    LQ = 0 if first else LSTRIDE
    sWM, sWN = t+5, t+6
    a(f"""
    s_mul_i32 s{sTY}, s{sCT}, 52
    s_lshr_b32 s{sTY}, s{sTY}, 8
    s_mul_i32 s{sC0}, s{sTY}, 5
    s_sub_u32 s{sC0}, s{sCT}, s{sC0}
    s_lshl_b32 s{sC0}, s{sC0}, 7
    s_and_b32 s{sWM}, s{sW}, 1
    s_lshr_b32 s{sWN}, s{sW}, 1
    v_lshrrev_b32 v14, 4, v0
    v_and_b32 v15, 15, v0
    """)
    FR = 16; VST = 80; VCS = 96; VM = 96; VR = 112; ACC = 128; VCV = 192; NON = 200; AD = 202; MS = 240; TMP = 212
    vq, vt = AD + 8, AD + 9
    sCS = t+15
    a(f"s_lshl_b32 s{sCS}, s{sWG}, 9\ns_lshl_b32 s{t+7}, s{sWN}, 8\ns_add_u32 s{sCS}, s{sCS}, s{t+7}\ns_add_u32 s{sCS}, s{sCS}, {WS_CSQ}")
    a(f"v_lshlrev_b32 v{vq}, 4, v14\nv_lshlrev_b32 v{vt}, 2, v15\ns_lshl_b32 s{t+7}, s{sWM}, 13")
    if first:
        a(f"""
        v_lshlrev_b32 v1, 7, v15
        v_add_u32 v1, s{t+7}, v1
        v_bfe_u32 v12, v0, 1, 3
        v_xor_b32 v12, v12, v14
        v_lshl_add_u32 v2, v12, 4, v1
        v_xor_b32 v12, 4, v12
        v_lshl_add_u32 v3, v12, 4, v1
        """)
    else:
        a(f"v_lshlrev_b32 v2, 4, v15\nv_lshl_add_u32 v2, v14, 9, v2\nv_add_u32 v2, s{t+7}, v2")
    a(f"""
    v_bfe_u32 v12, v0, 2, 2
    v_lshl_add_u32 v13, v14, 3, v12
    v_lshlrev_b32 v13, 8, v13
    v_and_b32 v1, 3, v0
    v_lshl_add_u32 v13, v1, 3, v13
    v_add_u32 v13, {WB}, v13
    v_bfe_u32 v12, v0, 2, 3
    s_lshl_b32 s{t+7}, s{sWN}, 2
    v_xor_b32 v12, s{t+7}, v12
    """)
    for nt in range(4): a(f"v_xor_b32 v1, {nt}, v12\nv_lshl_add_u32 v{4+nt}, v1, 5, v13\nv_add_u32 v{8+nt}, 49152, v{4+nt}")
    assert Q1_TAB == qkW(4)
    sC, sMk, sDst, sD1 = t+9, t+11, t+12, 96
    qloc = C.qloc and SB == '' and not first
    vlab = a.uid("qkv_v"); fin = a.uid("qkv_fin")
    a(f"s_cmp_eq_u32 s{sTY}, 2\ns_cbranch_scc1 {vlab}")
    def rd(c, u):
        b = FR + 32*u; o = qkW(c) - WB
        if first: r = [f"ds_read_b128 v[{b+4*tt}:{b+4*tt+3}], v{2+u} offset:{(c % 4)*16384+2048*tt}" for tt in range(4)]
        else: r = [f"ds_read_b128 v[{b+4*tt}:{b+4*tt+3}], v2 offset:{(c % 4)*16384+4096*(tt >> 1)+256*(tt & 1)+2048*u}" for tt in range(4)]
        for nt in range(4):
            for j in range(2):
                d = b + 16 + 4*nt + 2*j
                r.append(f"ds_read_b64_tr_b16 v[{d}:{d+1}], v{4 + 4*(o // 49152) + nt} offset:{o % 49152 + 8192*u + 1024*j}")
        return r
    def mainloop(vtype, epi, alt=None):
        if first: xstat_fin(a)
        stamp(a, 1 if first else 18)
        def mf(u, tl, z):
            b = FR + 32*u; c = ACC + 4*tl
            if vtype: A, B = v(b + 4*(tl >> 2), 4), v(b + 16 + 4*(tl & 3), 4)
            else: A, B = v(b + 16 + 4*(tl >> 2), 4), v(b + 4*(tl & 3), 4)
            return f"v_mfma_f32_16x16x32_bf16 {v(c,4)}, {A}, {B}, {0 if z else v(c,4)}"
        neg = [f"v_sub_f32 v{VCV+2*i}, 0, v{VCV+2*i}" for i in range(4)]
        if vtype: fix = lambda tl: [f"v_fmac_f32 v{ACC+4*tl+i}, v{VCV+2*(tl&3)}, v{VM+4*(tl>>2)+i}" for i in range(4)]
        else: fix = lambda tl: [f"v_fmac_f32 v{ACC+4*tl+i}, v{TMP+2*(tl&3)}, v{VCS+4*(tl>>2)+i}" for i in range(4)]
        groups = [tuple(range(4*j, 4*j + 4)) for j in range(4)]
        a(f"s_cmp_eq_u32 s{sTY}, 0\ns_cselect_b32 s{t+10}, {f32(QSCALE)}, 1.0")
        if not first:
            a(f"""
            s_lshl_b32 s{sC}, s{sRT}, 1
            s_add_u32 s{sC}, s{sC}, s{sWM}
            s_lshl_b32 s{sC}, s{sC}, 12
            s_add_u32 s{sC}, s{sC}, {L_ST2}
            v_lshlrev_b32 v3, 4, v0
            """)
            ins = {}
            for i in range(4): ins[58 + i + (12 if i > 1 else 0)] = [f"buffer_load_dwordx4 v[{VST+4*i}:{VST+4*i+3}], v3, {WSR}, s{sC} offen offset:{1024*i} sc1"]
            b = Asm(); b("s_waitcnt vmcnt(0)"); row_stats(b, VST, VST + 2, VST + 3)
            if vtype:
                b("\n".join(neg))
                a(f"s_lshl_b32 s{t+7}, s{sW}, 9\ns_add_u32 s{t+7}, s{t+7}, {qkW(4)}\nv_lshlrev_b32 v12, 2, v0\nv_add_u32 v12, s{t+7}, v12\nv_add_u32 v13, s{t+7}, v{vq}")
                ins[146] = [f"ds_write_b32 v12, v{VST+2}", f"ds_write_b32 v12, v{VST+3} offset:256"] + \
                    [f"ds_read_b128 v[{R_+4*tt}:{R_+4*tt+3}], v13 offset:{o_+64*tt}" for R_, o_ in ((VM, 0), (VR, 256)) for tt in range(4)]
                ff = 178
            else:
                for src, d, op in ((VST + 2, TMP, "v_sub_f32 v{0}, 0, v{1}"), (VST + 3, MS, "v_mul_f32 v{0}, s%d, v{1}" % (t + 10))):
                    b(op.format(d, src) + "\n" + op.format(d + 2, src) + f"\ns_nop 1\nv_permlane16_swap_b32 v{d}, v{d+2}\nv_mov_b32 v{d+4}, v{d}\nv_mov_b32 v{d+6}, v{d+2}\ns_nop 1")
                    b(f"v_permlane32_swap_b32 v{d}, v{d+4}\nv_permlane32_swap_b32 v{d+2}, v{d+6}")
                ff = 178
            ins = dict(sorted({**ins, 108: b.lines}.items()))
            gemm16(a, 10, 16, rd, mf, groups, ins, fix, ff, epi, 19, 2, 3, alt)
            return
        a(f"s_lshl_b32 s{t+7}, s{sWM}, 8\ns_add_u32 s{t+7}, s{t+7}, {Q1_TAB}\nv_add_u32 v13, s{t+7}, v{vq if vtype else vt}")
        if vtype:
            sr = [f"ds_read_b128 v[{R_+4*tt}:{R_+4*tt+3}], v13 offset:{o_+64*tt}" for R_, o_ in ((VM, 0), (VR, 512)) for tt in range(4)]
            sf = neg
        else:
            sr = [f"ds_read_b32 v{R_+2*tt}, v13 offset:{o_+64*tt}" for R_, o_ in ((TMP, 0), (MS, 512)) for tt in range(4)]
            sf = [x for tt in range(4) for x in (f"v_sub_f32 v{TMP+2*tt}, 0, v{TMP+2*tt}", f"v_mul_f32 v{MS+2*tt}, s{t+10}, v{MS+2*tt}")]
        a(f"s_lshl_b32 s{t+7}, s{sWN}, 8\ns_add_u32 s{t+7}, s{t+7}, {Q1_CS}\nv_add_u32 v12, s{t+7}, v{vt if vtype else vq}\nv_mov_b32 v1, {Q1_NON}")
        ae = [f"ds_read_b64 v[{NON}:{NON+1}], v1"]
        ae += [f"ds_read_b32 v{VCV+2*nt}, v12 offset:{64*nt}" if vtype else f"ds_read_b128 v[{VCS+4*nt}:{VCS+4*nt+3}], v12 offset:{64*nt}" for nt in range(4)]
        def epi1(g, pk):
            r = []
            if g == 0: r = ["s_waitcnt lgkmcnt(0)", f"v_readfirstlane_b32 s{sEP}, v{NON}", f"v_readfirstlane_b32 s{sMODE}, v{NON+1}"] + sf
            return r + sum((fix(tl) for tl in groups[g]), []) + epi(g, pk)
        assert C.c_f < 9
        gemm16(a, 10, 16, rd, mf, groups, {40: ["s_waitcnt vmcnt(0)"]}, lambda tl: [], 0, epi1, 2, 2, 3, None, ae, sr)
    if not first:
        for nt in range(4): a(f"buffer_load_dwordx4 v[{VCS+4*nt}:{VCS+4*nt+3}], v{vq}, {WSR}, s{sCS} offen offset:{64*nt} sc1")
    a(f"""
    s_mul_i32 s{sDst}, s{sTY}, {ACT}
    s_lshl_b32 s{t+8}, s{sRT}, 2
    s_lshl_b32 s{t+7}, s{sWM}, 1
    s_add_u32 s{t+8}, s{t+8}, s{t+7}
    s_mul_i32 s{t+8}, s{t+8}, 1280
    s_add_u32 s{sDst}, s{sDst}, s{t+8}
    s_add_u32 s{sDst}, s{sDst}, {LQ}
    s_lshr_b32 s{t+8}, s{sC0}, 3
    s_lshl_b32 s{t+7}, s{sWN}, 3
    s_add_u32 s{t+8}, s{t+8}, s{t+7}
    v_lshrrev_b32 v80, 5, v0
    v_add_u32 v80, s{t+8}, v80
    v_and_b32 v87, 31, v0
    s_mov_b32 s{t+13}, {HEADB}
    v_mov_b32 v86, 0x7fffffff
    s_mov_b32 s{sMk}, 0
    s_add_u32 s{sD1}, s{sDst}, 1280
    """)
    if qloc:
        a(f"""
        s_lshl_b32 s{t+8}, s{sRT}, 1
        s_add_u32 s{t+8}, s{t+8}, s{sWM}
        s_mul_i32 s{t+8}, s{t+8}, {2*F*64}
        s_add_u32 s{t+8}, s{t+8}, {L_Q + 57344}
        s_add_u32 s{t+7}, s{t+8}, {F*64}
        s_cmp_eq_u32 s{sTY}, 0
        s_cselect_b32 s{sDst}, s{t+8}, s{sDst}
        s_cselect_b32 s{sD1}, s{t+7}, s{sD1}
        s_cselect_b32 s{t+13}, 1280, s{t+13}
        """)
    a(f"s_add_u32 s{t+14}, s{sDst}, s{t+13}\ns_add_u32 s{sD1+1}, s{sD1}, s{t+13}")
    for sl in range(4):
        a(f"""
        v_add_u32 v81, {2*sl}, v80
        v_mul_u32_u24 v82, 205, v81
        v_lshrrev_b32 v82, 10, v82
        v_mad_i32_i24 v81, v82, -5, v81
        v_cmp_lt_u32 vcc, 2, v81
        v_lshlrev_b32 v82, 1, v82
        v_add_u32 v83, -3, v81
        v_cndmask_b32 v83, v81, v83, vcc
        v_addc_co_u32 v82, vcc, 0, v82, vcc
        v_lshlrev_b32 v83, 9, v83
        v_lshl_add_u32 v83, v87, 4, v83
        v_lshlrev_b32 v85, 3, v87
        v_add_u32 v85, 1024, v85
        v_cmp_eq_u32 vcc, 2, v81
        v_mul_lo_u32 v84, v82, s{t+13}
        s_cmp_lg_u64 vcc, 0
        v_cndmask_b32 v83, v83, v86, vcc
        v_cndmask_b32 v85, v86, v85, vcc
        s_cselect_b32 s{t+7}, {1 << sl}, 0
        s_or_b32 s{sMk}, s{sMk}, s{t+7}
        v_add_u32 v{AD+sl}, v83, v84
        v_add_u32 v{AD+4+sl}, v85, v84
        """)
    def pack(c, sw):
        return [f"v_cvt_pk_bf16_f32 v{c+i}, v{c+2*i}, v{c+2*i+1}" for i in range(4)] + \
               ["s_nop 0", f"v_permlane{sw}_swap_b32 v{c}, v{c+2}", f"v_permlane{sw}_swap_b32 v{c+1}, v{c+3}"]
    def epi_qk(nt, pk=True, bits='sc1'):
        r = []
        for tp in range(2):
            c = ACC + 16*nt + 8*tp
            if pk: r += [f"v_pk_mul_f32 v[{c+i}:{c+i+1}], v[{c+i}:{c+i+1}], v[{MS+4*tp+2*(i>>2)}:{MS+4*tp+2*(i>>2)+1}] op_sel_hi:[1,0]" for i in range(0, 8, 2)]
            else: r += [f"v_mul_f32 v{c+i}, v{MS+4*tp+2*(i>>2)}, v{c+i}" for i in range(8)]
            r += pack(c, 16)
            r.append(f"buffer_store_dwordx4 v[{c}:{c+3}], v{AD+nt}, {WSR}, s{sD1 if tp else sDst} offen {bits}")
        return r
    def bparts(bits):
        for sl in range(4):
            sk = a.uid("qk_b")
            a(f"s_bitcmp0_b32 s{sMk}, {sl}\ns_cbranch_scc1 {sk}")
            for tm in range(2):
                o = ACC + 16*sl + 8*tm
                a(f"buffer_store_dwordx2 v[{o}:{o+1}], v{AD+4+sl}, {WSR}, s{sD1 if tm else sDst} offen {bits}")
                a(f"buffer_store_dwordx2 v[{o+2}:{o+3}], v{AD+4+sl}, {WSR}, s{sD1+1 if tm else t+14} offen {bits}")
            a.label(sk)
        a(f"s_branch {fin}")
    if qloc: mainloop(False, epi_qk, (f"s_cmp_eq_u32 s{sTY}, 0", lambda g, pk: epi_qk(g, pk, ""), lambda: bparts("sc1"), lambda: bparts("")))
    else:
        mainloop(False, epi_qk); bparts("sc1")
    a.label(vlab)
    if not first:
        for nt in range(4): a(f"buffer_load_dword v{VCV+2*nt}, v{vt}, {WSR}, s{sCS} offen offset:{64*nt} sc1")
    a(f"""
    s_lshl_b32 s{t+8}, s{sRT}, 3
    s_lshl_b32 s{t+7}, s{sWM}, 2
    s_add_u32 s{t+8}, s{t+8}, s{t+7}
    s_mul_i32 s{sDst}, s{t+8}, 640
    s_add_u32 s{sDst}, s{sDst}, {L_V + LQ}
    s_lshl_b32 s{t+7}, s{sWN}, 6
    s_add_u32 s{t+8}, s{sC0}, s{t+7}
    v_lshrrev_b32 v80, 5, v0
    v_lshl_add_u32 v80, v80, 4, v15
    v_add_u32 v80, s{t+8}, v80
    v_and_b32 v81, 1, v14
    v_mul_u32_u24 v81, 320, v81
    s_mov_b32 s{t+13}, {HEADB}
    s_movk_i32 s{t+14}, 3277
    s_movk_i32 s{t+7}, -20
    """)
    for np_ in range(2):
        a(f"""
        v_add_u32 v83, {32*np_}, v80
        v_mul_u32_u24 v84, s{t+14}, v83
        v_lshrrev_b32 v84, 16, v84
        v_mad_i32_i24 v83, v84, s{t+7}, v83
        v_lshl_add_u32 v83, v83, 4, v81
        v_mul_lo_u32 v85, v84, s{t+13}
        v_add_u32 v{AD+np_}, v83, v85
        """)
    def epi_v(tt, pk=True):
        r = []
        for np_ in range(2):
            c = ACC + 16*tt + 8*np_
            if pk: r += [f"v_pk_mul_f32 v[{c+i}:{c+i+1}], v[{c+i}:{c+i+1}], v[{VR+4*tt+(i&3)}:{VR+4*tt+(i&3)+1}]" for i in range(0, 8, 2)]
            else: r += [f"v_mul_f32 v{c+i}, v{VR+4*tt+(i&3)}, v{c+i}" for i in range(8)]
            r += pack(c, 32)
            r.append(f"buffer_store_dwordx4 v[{c}:{c+3}], v{AD+np_}, {WSR}, s{sDst} offen offset:{640*tt} sc1")
        return r
    mainloop(True, epi_v)
    a.label(fin)
    stamp(a, 3 if first else 20)
    flag_setup(a, 1 if first else 6)
    a(f"s_lshl_b32 s{t+7}, s{sWG}, 5\ns_add_u32 s{t+7}, s{t+7}, s{sW}\ns_lshl_b32 s{t+7}, s{t+7}, 2\ns_add_u32 s{t+7}, s{t+7}, {L_FG + LQ}")
    a("s_waitcnt vmcnt(0)")
    if first:
        l1 = a.uid("q1f"); l2 = a.uid("q1g")
        a(f"s_cmp_eq_u32 s{sMODE}, 0\ns_cbranch_scc1 {l1}")
        flag_store(a, ""); a(f"s_branch {l2}")
        a.label(l1); flag_store(a, "sc1"); a.label(l2)
    else: flag_store(a, SB)
    flag_store(a, "sc1", t+7)

def qkvW_setup(a, sWo, sLW, sCT, sTmp, vW):
    a(f"""
    v_lshrrev_b32 v2, 4, v0
    v_mul_u32_u24 v1, 3840, v2
    v_lshlrev_b32 v7, 1, v2
    v_and_b32 v3, 15, v0
    v_xor_b32 v3, v3, v7
    v_lshl_add_u32 v{vW}, v3, 4, v1
    v_xor_b32 v3, 8, v3
    v_lshl_add_u32 v{vW+1}, v3, 4, v1
    s_mul_i32 s{sWo}, s{sLW}, {16*3840}
    s_lshl_b32 s{sTmp}, s{sCT}, 8
    s_add_u32 s{sWo}, s{sWo}, s{sTmp}
    """)

def qkv1_loader(a):
    t = T
    sRT, sCT = t, t+1
    sLW, sAo, sWo, sM, sTmp, sRot, sThr, sA1, sW1, sSel = t+2, t+3, t+4, t+5, t+6, t+8, t+9, t+10, t+11, t+12
    a(f"s_sub_u32 s{sLW}, s{sW}, 4")
    qkvW_setup(a, sWo, sLW, sCT, sTmp, 6)
    a(f"""
    s_lshl_b32 s{sM}, s{sLW}, 12
    s_lshl_b32 s{sAo}, s{sRT}, 2
    s_add_u32 s{sAo}, s{sAo}, s{sLW}
    s_mul_i32 s{sAo}, s{sAo}, {32*1280}
    v_lshrrev_b32 v1, 3, v0
    v_mul_u32_u24 v1, 1280, v1
    v_and_b32 v3, 7, v0
    v_xor_b32 v3, v3, v2
    v_lshl_add_u32 v4, v3, 4, v1
    v_xor_b32 v3, 4, v3
    v_lshl_add_u32 v5, v3, 4, v1
    """)
    a("s_waitcnt lgkmcnt(0)")
    srd(a, R_X, P_X, ACT)
    srd(a, R_WQ, P_WQKV, D*3*D*2)
    def emitA(c, i0, k):
        for i in range(i0, i0 + k):
            a(f"s_add_u32 m0, s{sM}, {(c % 4)*16384 + 1024*i}\ns_add_u32 s{sTmp}, s{sAo}, {c*128 + i*8*1280}")
            a(f"buffer_load_dwordx4 v{4 + (i & 1)}, {R(R_X)}, s{sTmp} offen lds")
    def emitW(c, i0, k):
        for i in range(i0, i0 + k):
            a(f"s_add_u32 m0, s{sM}, {qkW(c) + 1024*i}\ns_add_u32 s{sTmp}, s{sWo}, {c*64*3840 + i*4*3840}")
            a(f"buffer_load_dwordx4 v{6 + (i >> 1)}, {R(R_WQ)}, s{sTmp} offen lds")
    LD = Loader(a); mark = [0]
    def xstats(c):
        if c == 0:
            other_srds(a)
            a(f"""
            v_bfe_u32 v8, v0, 2, 2
            v_lshrrev_b32 v9, 4, v0
            v_lshl_add_u32 v9, v9, 3, v8
            v_lshlrev_b32 v9, 8, v9
            v_and_b32 v10, 3, v0
            v_lshl_add_u32 v9, v10, 3, v9
            v_add_u32 v9, {WB}, v9
            v_bfe_u32 v10, v0, 2, 3
            s_lshl_b32 s{t+7}, s{sLW}, 1
            v_xor_b32 v10, s{t+7}, v10
            v_lshl_add_u32 v8, v10, 5, v9
            v_xor_b32 v10, 1, v10
            v_lshl_add_u32 v9, v10, 5, v9
            v_add_u32 v10, 49152, v8
            v_add_u32 v11, 49152, v9
            """)
            for i in range(4): a(f"v_mov_b32 v{12+i}, 0x3f803f80")
        o_ = qkW(c) - WB
        for u in range(2):
            for e in range(2):
                for j in range(2):
                    d = 16 + 8*u + 4*e + 2*j
                    a(f"ds_read_b64_tr_b16 v[{d}:{d+1}], v{8 + 2*(o_ // 49152) + e} offset:{o_ % 49152 + 8192*u + 1024*j}")
        a("s_waitcnt lgkmcnt(0)")
        for u in range(2):
            for e in range(2):
                a(f"v_mfma_f32_16x16x32_bf16 v[{32+4*e}:{35+4*e}], v[12:15], v[{16+8*u+4*e}:{19+8*u+4*e}], {v(32+4*e,4) if (c or u) else 0}")
        n = LD.total - mark[0]
        if c in (0, C.c_i, C.c_c): mark[0] = LD.total
        def st_issue():
            census(a, 80, 81, False, n)
            a(f"s_lshl_b32 s{t+7}, s{sRT}, 13\ns_add_u32 s{t+7}, s{t+7}, {WS_ST0}\ns_add_u32 s{t+13}, s{t+7}, 4096\nv_lshlrev_b32 v82, 4, v0")
            for h_ in range(2):
                for i in range(4): a(f"buffer_load_dwordx4 v[{96+16*h_+4*i}:{99+16*h_+4*i}], v82, {WSR}, s{t+13 if h_ else t+7} offen offset:{1024*i} sc1")
        def st_fin():
            a(f"s_waitcnt vmcnt({n})\nv_lshlrev_b32 v82, 2, v0\nv_add_u32 v82, {Q1_TAB}, v82")
            for h_ in range(2):
                row_stats(a, 96 + 16*h_, 84, 85)
                a(f"ds_write_b32 v82, v84 offset:{256*h_}\nds_write_b32 v82, v85 offset:{512+256*h_}")
            a("s_waitcnt lgkmcnt(0)")
        st = {0: lambda: (flags_zero(a), nonce_issue(a, 81, 82)), 2: lambda: nonce_get(a, 80, 81, 82, n), C.c_i: lambda: census(a, 80, 81, True), C.c_c: st_issue, C.c_f: st_fin}
        if c in st:
            l = a.uid("w7")
            a(f"s_cmp_lg_u32 s{sW}, 7\ns_cbranch_scc1 {l}")
            st[c](); a.label(l)
            LD.q += [("x7", "x", 99)] * {0: 4, 2: 1, C.c_i: 1, C.c_c: 8, C.c_f: 0}[c]
    if C.q1prio: a("s_setprio 2")
    stamp(a, 1)
    ph = Phase("q1", 10, 4, 4, emitA, emitW, lambda c: ((c % 4)*16384, (c % 4)*16384 + 16384), lambda c: (qkW(c), qkW(c) + 16384),
               None, C.bud_q1, after_bar=xstats, dbg=(C.dbg == 1))
    def waitfn(w):
        l1 = a.uid("pw"); l2 = a.uid("pw"); l3 = a.uid("pw")
        a(f"s_cmp_eq_u32 s{sW}, 4\ns_cbranch_scc1 {l1}\ns_cmp_eq_u32 s{sW}, 7\ns_cbranch_scc1 {l2}\ns_waitcnt vmcnt({w+5})\ns_branch {l3}")
        a.label(l1); a(f"s_waitcnt vmcnt({w+16})\ns_branch {l3}")
        a.label(l2); a(f"s_waitcnt vmcnt({w})")
        a.label(l3)
    ph.look = C.look_q1
    LD.run(ph, None)
    a(f"""
    v_and_b32 v1, 15, v0
    v_lshlrev_b32 v1, 2, v1
    s_lshl_b32 s{sTmp}, s{sLW}, 7
    v_add_u32 v1, s{sTmp}, v1
    v_add_u32 v2, {Q1_CS}, v1
    s_lshl_b32 s{sTmp}, s{sWG}, 9
    s_add_u32 s{sTmp}, s{sTmp}, {WS_CSQ}
    s_setprio 0
    s_nop 3
    ds_write_b32 v2, v32
    ds_write_b32 v2, v36 offset:64
    buffer_store_dword v32, v1, {WSR}, s{sTmp} offen
    buffer_store_dword v36, v1, {WSR}, s{sTmp} offen offset:64
    s_waitcnt lgkmcnt(0)
    """)
    stamp(a, 2)
    a("s_barrier")
    read_nonce_mode(a)

def other_srds(a):
    srd(a, R_WS, P_WS, WS_END)
    srd(a, R_WG, P_WG, D*F*2)
    srd(a, R_WU, P_WU, D*F*2)
    srd(a, R_T, P_WS, WS_END)

def qkv1_idle(a):
    l2 = a.uid("idl"); l1 = a.uid("idl"); l3 = a.uid("idl"); l4 = a.uid("idl"); lj = a.uid("idl")
    tj = 84; K = NAME + "_kernel"
    a(f"v_lshlrev_b32 v5, 4, v0\ns_cmp_lt_u32 s{sW}, 4\ns_cbranch_scc1 {l1}")
    a(f"s_xor_b32 s{tj}, s{sW}, 7\ns_or_b32 s{tj}, s{tj}, s{T}\ns_cmp_lg_u32 s{tj}, 0\ns_cbranch_scc1 {l3}")
    nonce_put(a)
    a.label(l3)
    a(f"s_getpc_b64 s[{tj+4}:{tj+5}]")
    a.label("L_pc")
    a(f"""
    s_sub_u32 s{tj+4}, s{tj+4}, L_pc-{K}
    s_subb_u32 s{tj+5}, s{tj+5}, 0
    s_and_b32 s{tj}, s{T}, 1
    s_lshl_b32 s{tj}, s{tj}, 2
    s_add_u32 s{tj}, s{tj}, s{sW}
    s_sub_u32 s{tj}, s{tj}, 4
    s_lshl_b32 s{tj}, s{tj}, 13
    v_lshlrev_b32 v1, 7, v0
    v_add_u32 v2, s{tj}, v1
    global_load_dword v251, v2, s[{tj+4}:{tj+5}]
    """)
    a(f"s_lshl_b32 s{tj}, s{T}, 2\ns_add_u32 s{tj}, s{tj}, s{sW}\ns_add_u32 s{tj+2}, s{tj}, {60 - 4}\ns_lshl_b32 s{tj+2}, s{tj+2}, 13")
    for i in range(4):
        if C.q1pf: a(f"buffer_load_dword v251, v1, {R(R_WQ)}, s{tj+2} offen\ns_add_u32 s{tj+2}, s{tj+2}, {64*8192}")
        if i == 0: a("s_barrier")
    a(f"s_branch {l2}")
    a.label(l1)
    xstat_fin(a)
    a(f"s_cmp_lg_u32 s{sW}, 0\ns_cbranch_scc1 {l4}")
    flags_zero(a)
    a.label(l4)
    a(f"s_waitcnt vmcnt(0)\ns_barrier\ns_cmp_lg_u32 s{sW}, 0\ns_cbranch_scc1 {l2}")
    nonce_issue(a, 81, 82)
    nonce_get(a, 80, 81, 82)
    a.label(l2)
    a(f"s_mul_i32 s{tj}, s{T}, 10\ns_add_u32 s{tj+7}, s{tj}, 10\ns_add_u32 s{tj}, s{tj}, s{sW}\ns_mul_i32 s{tj+1}, s{sW}, 5120")
    a.label(lj)
    projjob_issue(a, tj, tj+1, tj)
    a("s_waitcnt vmcnt(0)")
    projjob_finish(a, tj+1, tj)
    a(f"s_add_u32 s{tj}, s{tj}, 8\ns_cmp_lt_u32 s{tj}, s{tj+7}\ns_cbranch_scc1 {lj}")
    l5 = a.uid("idl")
    a(f"s_waitcnt vmcnt(0)\ns_barrier\ns_cmp_lg_u32 s{sW}, 0\ns_cbranch_scc1 {l5}")
    a(f"""
    s_lshl_b32 s{tj}, s{sWG}, 7
    s_add_u32 s{tj}, s{tj}, {L_FG + 36}
    v_mov_b32 v1, 0
    v_mov_b32 v2, s{sEP}
    """)
    flag_store(a, "sc1", tj)
    census(a, 80, 81, True)
    census(a, 80, 81, False)
    a.label(l5)
    a("s_barrier")
    read_nonce_mode(a)

def phase_attn(a, SB, ld_label):
    fast = SB == ""
    t = T
    CH = 20480
    sQP, sKH, sSrc, sDst, sTmp, sC, sHB = t, t+1, t+2, t+3, t+4, t+5, t+8
    sEX = t+6
    sWs, sWd, sPF = t+9, t+10, t+11
    tj = 84; sJob, sScr = tj, tj + 1
    QAREA = 102400
    QA, QB = 16, 22
    NM, SS, PP, OO, KF, VF = 32, 64, 96, 112, 144, 160
    vK, vK8, vV = 2, 3, 4
    DUM = 176; XF = 177; vX1, vX2, vO = 28, 29, 30; sO, sFB = 96, 99; XB = 102400; PR = 32
    assert C.c0
    KVB = 'nt sc1' if C.nt_kv else 'sc1'
    stamp(a, 4)
    a(f"""
    s_and_b32 s{sQP}, s{sW}, 3
    s_lshr_b32 s{sKH}, s{sW}, 2
    v_lshlrev_b32 v5, 4, v0
    s_mul_i32 s{sHB}, s{sR}, {HEADB}
    s_add_u32 s{sHB}, s{sHB}, s{sLO}
    s_and_b32 s{sTmp}, s{sQP}, 1
    s_mul_i32 s{sSrc}, s{sTmp}, 5120
    s_mul_i32 s{sDst}, s{sTmp}, 10240
    s_lshr_b32 s{sTmp}, s{sQP}, 1
    s_mul_i32 s{sC}, s{sTmp}, 5120
    s_add_u32 s{sDst}, s{sDst}, s{sC}
    s_mul_i32 s{sC}, s{sTmp}, {ACT}
    s_add_u32 s{sSrc}, s{sSrc}, s{sC}
    s_add_u32 s{sSrc}, s{sSrc}, s{sHB}
    s_add_u32 s{sSrc}, s{sSrc}, {L_K}
    """)
    def kv_issue(j):
        GF.need(0x01010101 << j)
        a(f"s_add_u32 s{sTmp}, s{sG}, {j}\ns_and_b32 s{sTmp}, s{sTmp}, 7\ns_mul_i32 s{sTmp}, s{sTmp}, 10240\ns_add_u32 s{sTmp}, s{sTmp}, s{sSrc}")
        return lin_dma(a, 5, sTmp, 0, sDst, j * CH, 5, KVB)
    def init():
        a(f"""
        v_lshrrev_b32 v14, 5, v0
        v_and_b32 v15, 31, v0
        v_lshlrev_b32 v6, 3, v15
        s_mul_i32 s{sTmp}, s{sKH}, 10240
        v_add_u32 v{vK}, s{sTmp}, v5
        v_add_u32 v{vK8}, s{sTmp}, v6
        v_mul_u32_u24 v7, 320, v14
        v_lshl_add_u32 v7, v15, 4, v7
        v_add_u32 v{vV}, s{sTmp}, v7
        s_mov_b32 s{sEX}, 0x000fffff
        s_mov_b32 s{sEX+1}, 0x000fffff
        s_mov_b32 s{t+16}, -1
        s_mov_b32 s{t+17}, 0
        v_and_b32 v9, 27, v0
        v_cmp_eq_u32 vcc, 24, v9
        v_mov_b32 v8, 0x3f803f80
        s_nop 0
        v_cndmask_b32 v8, 0, v8, vcc
        v_mov_b32 v9, v8
        v_lshlrev_b32 v13, 7, v0
        v_mov_b32 v12, 0
        """)
        for i in range(0, 16, 2): a(f"v_mov_b64 v[{VF+i}:{VF+i+1}], v[8:9]")
        for i in range(0, 32, 2): a(f"v_mov_b64 v[{OO+i}:{OO+i+1}], 0")
        for i in range(0, 8, 2): a(f"v_mov_b64 v[{PP+8+i}:{PP+8+i+1}], 0")
        a(f"v_mov_b64 v[{QA+4}:{QA+5}], 0\nv_mov_b64 v[{QB+4}:{QB+5}], 0")
        a(f"""
        s_mul_i32 s{sC}, s{sQP}, 7168
        s_add_u32 s{sC}, s{sC}, {XB}
        v_add_u32 v{vX1}, s{sC}, v5
        v_lshrrev_b32 v{vX2}, 1, v5
        v_add_u32 v{vX2}, s{sC}, v{vX2}
        s_lshl_b32 s{sTmp}, s{sQP}, 2
        s_add_u32 s{sTmp}, s{sTmp}, {XB + 28672}
        v_mov_b32 v{XF}, s{sTmp}
        s_mul_i32 s{sTmp}, s{sR}, 5
        v_add_u32 v{vO}, s{sTmp}, v14
        v_lshrrev_b32 v10, 1, v{vO}
        v_and_b32 v{vO}, 1, v{vO}
        v_lshlrev_b32 v{vO}, 3, v{vO}
        v_lshl_add_u32 v{vO}, v10, 9, v{vO}
        v_lshl_add_u32 v{vO}, v15, 4, v{vO}
        s_lshl_b32 s{sTmp}, s{sG}, 2
        s_add_u32 s{sTmp}, s{sTmp}, s{sQP}
        s_mul_i32 s{sO}, s{sTmp}, 81920
        {"" if fast else f"s_add_u32 s{sO}, s{sO}, s{sLO}"}
        s_add_u32 s{sO}, s{sO}, {L_O}
        s_add_u32 s{sO+1}, s{sO}, 40960
        s_mov_b32 s{sFB}, 0
        """)
        if C.c0:
            for st_ in range(2): a(f"v_mov_b32 v{KF+8*st_+4}, 0x3f803f80\nv_mov_b32 v{KF+8*st_+5}, 0x3f80")
    init()
    l0 = a.uid("att_old"); l1 = a.uid("att_j")
    a(f"s_cmp_eq_u32 s{sKH}, 0\ns_cbranch_scc1 {l0}")
    poll_local(a, "attn", 1, va=10, vt=11)
    stamp(a, 5)
    a(f"""
    s_mul_i32 s{sC}, s{sQP}, 2560
    s_add_u32 s{sPF}, s{sC}, {QAREA}
    s_mul_i32 s{sTmp}, s{sG}, 10240
    s_add_u32 s{sTmp}, s{sTmp}, s{sC}
    s_add_u32 s{sTmp}, s{sTmp}, s{sHB}
    """)
    a(f"s_add_u32 s{sC}, s{sTmp}, 1280")
    if fast and C.qloc:
        a(f"""
        s_lshl_b32 s{sWs}, s{sG}, 2
        s_add_u32 s{sWs}, s{sWs}, s{sQP}
        s_mul_i32 s{sWs}, s{sWs}, {2*F*64}
        s_mul_i32 s{sWd}, s{sR}, 1280
        s_add_u32 s{sWs}, s{sWs}, s{sWd}
        s_add_u32 s{sWs}, s{sWs}, {L_Q + 57344}
        s_add_u32 s{sWd}, s{sWs}, {F*64}
        s_cmp_lg_u32 s{sL}, 0
        s_cselect_b32 s{sTmp}, s{sWs}, s{sTmp}
        s_cselect_b32 s{sC}, s{sWd}, s{sC}
        """)
    for x, sr in ((0, sTmp), (1, sC)):
        a(f"""
        s_add_u32 m0, s{sPF}, {1280*x}
        s_mov_b64 exec, -1
        buffer_load_dwordx4 v5, {WSR}, s{sr} offen {KVB} lds
        s_mov_b64 exec, 0xffff
        buffer_load_dwordx4 v5, {WSR}, s{sr} offen offset:1024 {KVB} lds
        """)
    a("s_mov_b64 exec, -1")
    a(f"s_mul_i32 s{sTmp}, s{sG}, 10240\ns_add_u32 s{sTmp}, s{sTmp}, s{sSrc}")
    lin_dma(a, 5, sTmp, 0, sDst, 0, 2, KVB)
    if C.stage: a(f"s_waitcnt vmcnt({C.stage - 1})")
    lin_dma(a, 5, sTmp, 2048, sDst, 2048, 3, KVB)
    if C.stage != 1: a(f"s_waitcnt vmcnt(3)")
    a(f"s_branch {l1}")
    a.label(l0)
    a(f"""
    s_setprio 1
    v_add_u32 v10, s{sG}, v0
    v_and_b32 v10, 7, v10
    v_bfe_u32 v11, v0, 3, 1
    v_mul_u32_u24 v11, 19, v11
    s_mul_i32 s{sTmp}, s{sR}, 20
    v_add_u32 v11, s{sTmp}, v11
    v_lshrrev_b32 v11, 7, v11
    v_lshl_add_u32 v10, v10, 5, v11
    s_and_b32 s{sTmp}, s{sQP}, 1
    s_lshl_b32 s{sTmp}, s{sTmp}, 4
    s_lshr_b32 s{sC}, s{sQP}, 1
    s_mul_i32 s{sC}, s{sC}, 5
    s_add_u32 s{sTmp}, s{sTmp}, s{sC}
    s_add_u32 s{sTmp}, s{sTmp}, 5
    v_add_u32 v10, s{sTmp}, v10
    v_lshlrev_b32 v12, 7, v10
    v_lshrrev_b32 v11, 4, v0
    v_lshl_add_u32 v12, v11, 2, v12
    s_and_b32 s{sWs}, s{sR}, 7
    s_mul_i32 s{sWs}, s{sWs}, 102400
    s_mul_i32 s{sWd}, s{sW}, 5120
    s_add_u32 s{sWs}, s{sWs}, s{sWd}
    s_add_u32 s{sWs}, s{sWs}, {WS_WTO}
    s_add_u32 s{sGO}, s{sLO}, {L_FG}
    s_add_u32 s{sGW}, s{sEP}, 1
    """)
    def cpf(lo, hi):
        l = a.uid("cpf"); pc = a.uid("pc")
        a(f"s_or_b32 s{sC}, s{sL}, s{sW}\ns_cmp_lg_u32 s{sC}, 0\ns_cbranch_scc1 {l}\ns_getpc_b64 s[{t+12}:{t+13}]")
        a.label(pc)
        a(f"""
        s_sub_u32 s{t+12}, s{t+12}, {pc}-{NAME}_kernel
        s_subb_u32 s{t+13}, s{t+13}, 0
        s_lshl_b32 s{sC}, s{sR}, 11
        s_add_u32 s{sC}, s{sC}, {lo}-{NAME}_kernel
        v_add_u32 v{PV+2}, s{sC}, v13
        v_min_u32 v{PV+2}, {hi}-{NAME}_kernel, v{PV+2}
        s_mov_b64 exec, 0xffff
        global_load_dword v{DUM}, v{PV+2}, s[{t+12}:{t+13}]
        s_mov_b64 exec, -1
        """)
        a.label(l)
    if fast and C.cpf: cpf("L_fast", "L_fast_post")
    a.label(l1)
    GF = Gate(a, 12, PV, fold=True, sleep=2)
    a(f"""
    s_mul_i32 s{sC}, s{sQP}, 2560
    s_add_u32 s{sC}, s{sC}, {QAREA}
    v_add_u32 v10, s{sC}, v5
    v_add_u32 v11, s{sC}, v6
    s_barrier
    ds_read_b128 v[{QA}:{QA+3}], v10
    ds_read_b128 v[{QB}:{QB+3}], v10 offset:1280
    s_mov_b32 exec_hi, 0
    ds_read_b64 v[{QA+4}:{QA+5}], v11 offset:1024
    ds_read_b64 v[{QB+4}:{QB+5}], v11 offset:{1280+1024}
    s_mov_b32 exec_hi, -1
    """)
    stamp(a, 6)
    l1 = a.uid("att_ap")
    a(f"s_cmp_lg_u32 s{sKH}, 0\ns_cbranch_scc1 {l1}")
    GF.load()
    a.label(l1)
    base = [0]
    def rdK(st, c, kt):
        off = c * CH + kt * 1280 - base[0]
        assert 0 <= off and off + 1024 < 65536
        b = KF + 8*st
        if C.c0: return [f"s_mov_b64 exec, s[{t+16}:{t+17}]", f"ds_read_b64 v[{b+4}:{b+5}], v{vK8} offset:{off+1024}", "s_mov_b64 exec, -1", f"ds_read_b128 v[{b}:{b+3}], v{vK} offset:{off}"]
        return [f"ds_read_b128 v[{b}:{b+3}], v{vK} offset:{off}", f"ds_read_b64 v[{b+4}:{b+5}], v{vK8} offset:{off+1024}"]
    def rdV(st, c, kt):
        off = c * CH + 5120 + kt * 1280 - base[0]
        assert 0 <= off and off + 640 < 65536
        b = VF + 8*st
        return [f"s_mov_b64 exec, s[{sEX}:{sEX+1}]", f"ds_read_b128 v[{b}:{b+3}], v{vV} offset:{off}",
                f"ds_read_b128 v[{b+4}:{b+7}], v{vV} offset:{off+640}", f"s_mov_b64 exec, -1"]
    def qk(x, st, c=None):
        b = KF + 8*st; q = (QA, QB)[x]; sd = SS + 16*x
        cc = v(NM + 16*x, 16) if (c is None and not C.c0) else '0'
        return [f"v_mfma_f32_32x32x16_bf16 {v(sd,16)}, {v(b,4)}, {v(q,4)}, {cc}",
                f"v_mfma_f32_32x32x8_bf16 {v(sd,16)}, {v(b+4,2)}, {v(q+4,2)}, {v(sd,16)}"]
    def pv(x, st):
        b = VF + 8*st; p = PP + 8*x; o = OO + 16*x
        return [f"v_mfma_f32_32x32x16_bf16 {v(o,16)}, {v(b,4)}, {v(p,4)}, {v(o,16)}",
                f"v_mfma_f32_32x32x16_bf16 {v(o,16)}, {v(b+4,4)}, {v(p+4,4)}, {v(o,16)}"]
    def sm(x):
        sd = SS + 16*x; p = PP + 8*x; r = []
        for i in range(8):
            r.append(f"v_exp_f32 v{sd+2*i}, v{sd+2*i}")
            r.append(f"v_exp_f32 v{sd+2*i+1}, v{sd+2*i+1}")
            if i > 0: r.append(f"v_cvt_pk_bf16_f32 v{p+i-1}, v{sd+2*i-2}, v{sd+2*i-1}")
        r.append(f"v_cvt_pk_bf16_f32 v{p+7}, v{sd+14}, v{sd+15}")
        return r
    def setm():
        for x in range(2): a(f"v_mov_b32 v{10+x}, v{8+x}")
        a("s_nop 0")
        for x in range(2): a(f"v_permlane32_swap_b32 v{8+x}, v{10+x}")
        a("s_nop 0")
        for x in range(2): a(f"v_max_f32 v{8+x}, v{8+x}, v{10+x}")
        if C.c0:
            a("s_mov_b32 exec_lo, 0")
            for x in range(2):
                q = (QA, QB)[x] + 4; r = NM + 4*x
                a(f"""
                v_sub_f32 v{r}, 0, v{8+x}
                v_and_b32 v{r+1}, 0xffff0000, v{r}
                v_sub_f32 v{r+2}, v{r}, v{r+1}
                v_and_b32 v{r+3}, 0xffff0000, v{r+2}
                v_sub_f32 v{r+2}, v{r+2}, v{r+3}
                v_lshrrev_b32 v{r+1}, 16, v{r+1}
                v_or_b32 v{q}, v{r+1}, v{r+3}
                v_lshrrev_b32 v{q+1}, 16, v{r+2}
                """)
            a("s_mov_b32 exec_lo, -1")
            return
        for x in range(2):
            a(f"v_sub_f32 v{NM+16*x}, 0, v{8+x}\nv_sub_f32 v{NM+16*x+1}, 0, v{8+x}")
            for i in range(2, 16, 2): a(f"v_mov_b64 v[{NM+16*x+i}:{NM+16*x+i+1}], v[{NM+16*x}:{NM+16*x+1}]")
    for x in rdK(0, 0, 0): a(x)
    a("s_waitcnt lgkmcnt(0)")
    m = qk(0, 0, "0") + qk(1, 0, "0")
    for i in (0, 1, 2, 3): a(m[i])
    a.nop(10)
    for x in range(2):
        sd = SS + 16*x
        a(f"v_max3_f32 v{8+x}, v{sd}, v{sd+1}, v{sd+2}")
        for i in range(3, 15, 2):
            a(f"v_max3_f32 v{8+x}, v{8+x}, v{sd+i}, v{sd+i+1}")
        a(f"v_max_f32 v{8+x}, v{8+x}, v{sd+15}")
    setm()
    for i in range(16): a(f"v_sub_f32 v{SS+i}, v{SS+i}, v8")
    l1 = a.uid("att_w0"); l2 = a.uid("att_w1")
    sDone = t + 15
    a(f"s_cmp_eq_u32 s{sKH}, 0\ns_cbranch_scc1 {l1}\ns_waitcnt vmcnt(0)\ns_barrier\ns_branch {l2}")
    a.label(l1)
    a("s_barrier")
    GF.upd()
    a(f"s_and_b32 s{sDone}, s{sNR}, 0x02020202\ns_cbranch_scc1 {l2}")
    GF.ok = 0x02020202; kv_issue(1); GF.ok = 0
    a.label(l2)
    stamp(a, 7)
    cstamp(a, 0)
    def l0only(fn):
        l = a.uid("l0")
        a(f"s_cmp_lg_u32 s{sL}, 0\ns_cbranch_scc1 {l}")
        fn(); a.label(l)
    def l2pf(i0, n):
        for i in range(i0, min(i0 + n, (C.l2pf + 3) // 4)):
            l = a.uid("pfs")
            a(f"""
            s_cmp_ge_u32 s{sW}, {C.l2pf - 4*i}
            s_cbranch_scc1 {l}
            s_lshr_b32 s{sPF}, s{sR}, 4
            s_mul_i32 s{sPF}, s{sPF}, {15 if C.rot_gu else 1}
            s_mul_i32 s{sC}, s{sW}, {1 if C.rot_gu else 2}
            s_add_u32 s{sPF}, s{sPF}, s{sC}
            s_add_u32 s{sPF}, s{sPF}, {4*i if C.rot_gu else 8*i}
            s_lshl_b32 s{sPF}, s{sPF}, 13
            s_and_b32 s{sC}, s{sR}, 15
            s_mul_i32 s{sC}, s{sC}, 245760
            s_add_u32 s{sPF}, s{sPF}, s{sC}
            s_add_u32 s{sPF}, s{sPF}, {WS_WTG}
            buffer_load_dword v{DUM}, v13, {WSR}, s{sPF} offen
            """)
            a.label(l)
    def evpf(i):
        a(f"""
        s_lshr_b32 s{sPF}, s{sR}, 4
        s_lshl_b32 s{sC}, s{sW}, 1
        s_add_u32 s{sPF}, s{sPF}, s{sC}
        s_mul_i32 s{sPF}, s{sPF}, 24576
        s_and_b32 s{sC}, s{sR}, 15
        s_mul_i32 s{sC}, s{sC}, 245760
        s_add_u32 s{sPF}, s{sPF}, s{sC}
        s_add_u32 s{sPF}, s{sPF}, {WS_WTG + 49152 + 8192*i}
        buffer_load_dword v{DUM}, v13, {WSR}, s{sPF} offen
        """)
    if C.ev1:
        l2pf = lambda i0, n: [evpf(i) for i in range(i0, min(i0 + n, C.ev1))]
    def wwo(c): lin_dma(a, 5, sWs, c*20480, sWd, c*20480, 5, 'nt' if C.nt_wo else '')
    def fp():
        a(f"""
        s_lshl_b32 s{sC}, s{sWG}, 5
        s_add_u32 s{sC}, s{sC}, s{sW}
        s_lshl_b32 s{sC}, s{sC}, 2
        s_add_u32 s{sC}, s{sC}, {L_FG + 16}
        v_mov_b32 v10, 0
        v_mov_b32 v11, s{sEP}
        s_mov_b64 exec, 1
        buffer_store_dword v11, v10, {WSR}, s{sC} offen sc1
        s_mov_b64 exec, -1
        """)
    def cs1():
        l = a.uid("cs")
        a(f"s_cmp_lg_u32 s{sW}, 3\ns_cbranch_scc1 {l}\ns_mov_b32 exec_hi, 0xffff")
        a(f"s_and_b32 s{sC}, s{sR}, 15\ns_mul_i32 s{sC}, s{sC}, 768\ns_add_u32 s{sC}, s{sC}, {WS_CSP}")
        for i in range(10):
            a(f"buffer_load_dwordx4 v[{PV+4*i}:{PV+3+4*i}], v5, {WSR}, s{sC} offen\ns_add_u32 s{sC}, s{sC}, 12288")
        a("s_mov_b32 exec_hi, -1")
        a.label(l)
    def cs2():
        l = a.uid("cs")
        a(f"s_cmp_lg_u32 s{sW}, 3\ns_cbranch_scc1 {l}\ns_mov_b32 exec_hi, 0xffff")
        for i in range(1, 10):
            a(f"v_pk_add_f32 v[{PV}:{PV+1}], v[{PV}:{PV+1}], v[{PV+4*i}:{PV+1+4*i}]\nv_pk_add_f32 v[{PV+2}:{PV+3}], v[{PV+2}:{PV+3}], v[{PV+2+4*i}:{PV+3+4*i}]")
        a(f"s_mul_i32 s{sC}, s{sWG}, 768\ns_add_u32 s{sC}, s{sC}, {WS_CSG}")
        a(f"buffer_store_dwordx4 v[{PV}:{PV+3}], v5, {WSR}, s{sC} offen\ns_mov_b32 exec_hi, -1")
        a.label(l)
    def fpw():
        a(f"s_lshl_b32 s{sC}, s{sW}, 13\ns_add_u32 s{sC}, s{sC}, {L_FG + 16}")
        poll(a, 13, PV, f"s{sC}", f"s{sEP}", sleep=2, wide=True)
    def wow():
        a(f"v_and_b32 v{PV+1}, 15, v0\nv_lshlrev_b32 v{PV+1}, 11, v{PV+1}\ns_mov_b32 s{sC}, {L_FG + 15*128 + 36}")
        poll(a, PV + 1, PV, f"s{sC}", f"s{sEP}", sleep=2)
    def l1only(fn):
        l = a.uid("l1")
        a(f"s_cmp_eq_u32 s{sL}, 0\ns_cbranch_scc1 {l}")
        fn(); a.label(l)
    def hook(j):
        if j == 1:
            kv_issue(2); kv_issue(3); a("s_waitcnt vmcnt(10)")
        GF.ok &= 0x0f0f0f0f
        W = lambda n_: a(f"s_waitcnt vmcnt({n_})")
        if j == 2: l0only(lambda: (W(0), prep(a, 0))); l1only(lambda: (W(5), kv_issue(4)))
        if j == 3:
            l0only(lambda: (kv_issue(4), kv_issue(5))); GF.ok &= 0x0f0f0f0f
            l1only(lambda: (W(5), kv_issue(5), kv_issue(6)))
        if j == 4: l0only(lambda: (W(5), prep(a, 1))); l1only(lambda: (W(10), kv_issue(7)))
        if j == 5: l0only(lambda: (wow(), fp(), kv_issue(6), kv_issue(7))); l1only(lambda: (W(10), wwo(0), wwo(1), l2pf(0, 1)))
        if j == 6:
            l0only(lambda: (W(0), wwo(0), wwo(1))); l1only(lambda: W(10))
            wwo(2); wwo(3)
            if fast and C.cpf: cpf("L_fast_tail", "L_fast_end")
            l1only(lambda: l2pf(1, 1))
        if j == 7:
            l0only(fpw)
            wwo(4)
            l1only(lambda: l2pf(2, 2))
        if fast and j == C.oxh:
            a(f"""
            s_lshl_b32 s{sPF}, s{sWG}, 1
            s_and_b32 s{sC}, s{sW}, 1
            s_add_u32 s{sPF}, s{sPF}, s{sC}
            s_mul_i32 s{sPF}, s{sPF}, 5120
            s_mov_b32 s{sC}, {L_O}
            s_bitcmp1_b32 s{sW}, 1
            s_cselect_b32 s{sC}, {L_X1}, s{sC}
            s_add_u32 s{sPF}, s{sPF}, s{sC}
            s_mov_b32 exec_hi, 0xff
            buffer_load_dword v{DUM}, v13, {WSR}, s{sPF} offen
            s_lshl_b32 s{sTmp}, s{sWG}, 9
            s_add_u32 s{sTmp}, s{sTmp}, s{sLO}
            s_add_u32 s{sTmp}, s{sTmp}, {L_ST1}
            s_mov_b64 exec, 15
            buffer_load_dword v{DUM}, v13, {WSR}, s{sTmp} offen
            s_mov_b64 exec, -1
            """)
        if fast and j == C.hth:
            a(f"""
            s_lshl_b32 s{sPF}, s{sWG}, 2
            s_add_u32 s{sPF}, s{sPF}, s{sQP}
            s_mul_i32 s{sPF}, s{sPF}, 6144
            s_add_u32 s{sPF}, s{sPF}, {L_Q}
            s_mov_b32 exec_hi, 0xffff
            buffer_load_dword v{DUM}, v13, {WSR}, s{sPF} offen
            s_mov_b32 exec_hi, -1
            """)
    def xreads():
        r = [f"ds_read_b32 v31, v{XF}"]
        for x in range(2): r.append(f"ds_read_b64 v[{PR+12+16*x}:{PR+13+16*x}], v{vX2} offset:{3584*x+3072}")
        for x in range(2):
            for i in range(3): r.append(f"ds_read_b128 v[{PR+16*x+4*i}:{PR+16*x+4*i+3}], v{vX1} offset:{3584*x+1024*i}")
        return r
    outl = []
    for c in range(8):
        for kt in range(4):
            st = kt & 1
            last = c == 7 and kt == 3
            if c == 0 and kt == 1:
                hk = a.uid("att_hk")
                a(f"s_cmp_eq_u32 s{sKH}, 0\ns_cbranch_scc1 {hk}"); a.label(hk + "r")
                def h0():
                    l = a.uid("h0")
                    a(f"s_cmp_eq_u32 s{sDone}, 0\ns_cbranch_scc1 {l}")
                    kv_issue(1)
                    a.label(l)
                outl.append((hk, h0))
            j = c + 1 if (kt == 3 and c < 6) else (7 if (c == 7 and kt == 0) else None)
            if j:
                hk = a.uid("att_hk")
                dstamp(a, 6, 3*j)
                a(f"s_cmp_eq_u32 s{sKH}, 0\ns_cbranch_scc1 {hk}")
                if C.flip and j < 7: a("s_setprio 2")
                a.label(hk + "r")
                dstamp(a, 6, 3*j+1)
                a("s_barrier")
                dstamp(a, 6, 3*j+2)
                cstamp(a, j)
                outl.append((hk, (lambda jj: (lambda: hook(jj)))(j)))
                if j == 7 and C.ev0:
                    hk = a.uid("att_hk")
                    a(f"s_or_b32 s{sC}, s{sKH}, s{sL}\ns_cbranch_scc0 {hk}"); a.label(hk + "r")
                    outl.append((hk, lambda: [evpf(i) for i in range(C.ev0)]))
            if C.flip and 1 <= c < 7 and kt == C.flip - 1: a("s_setprio 1")
            val = sm(0)
            mf = qk(1, st) + pv(1, st ^ 1)
            ex = rdV(st, c, kt)
            if kt == 3 and c in (2, 5):
                base[0] += 3 * CH
                ex += [f"v_add_u32 v{r}, {3*CH}, v{r}" for r in (vK, vK8, vV)]
            if not last: ex += rdK(st ^ 1, c + (kt + 1) // 4, (kt + 1) % 4)
            cut = 4
            if C.c0 and len(ex) == 8: del ex[3]; cut = 6
            a(mf[0]); [a(x) for x in ex[:cut]]; [a(x) for x in val[0:6]]
            a(mf[2]); [a(x) for x in ex[cut:]]; [a(x) for x in val[6:12]]
            a(mf[1]); [a(x) for x in val[12:18]]
            a(mf[3]); [a(x) for x in val[18:]]
            val = sm(1)
            a("s_waitcnt lgkmcnt(0)")
            if not last:
                mf = qk(0, st ^ 1) + pv(0, st)
                a(mf[0]); [a(x) for x in val[0:6]]
                a(mf[2]); [a(x) for x in val[6:12]]
                a(mf[1]); [a(x) for x in val[12:18]]
                a(mf[3]); [a(x) for x in val[18:]]
            else:
                mf = pv(0, st) + pv(1, st)
                a(mf[0]); [a(x) for x in val[0:6]]
                a(mf[1]); [a(x) for x in xreads()]; [a(x) for x in val[6:16]]
                a(mf[2]); [a(x) for x in val[16:]]
                a("s_nop 1"); a(mf[3])
    if fast: a.label("L_fast_tail")
    stamp(a, 8)
    cstamp(a, 8)
    fb = a.uid("att_fb"); comb = a.uid("att_comb"); done = a.uid("att_done"); yng = a.uid("att_y")
    def check():
        a(f"v_mul_f32 v10, {f32(2.0**63)}, v{OO+12}\nv_mul_f32 v11, {f32(2.0**63)}, v{OO+16+12}")
        a(f"v_add_f32 v10, v10, v10\nv_add_f32 v11, v11, v11\nv_mul_f32 v10, 0, v10\nv_mul_f32 v11, 0, v11")
        for i in range(12): a(f"v_fmac_f32 v10, 0, v{OO+i}\nv_fmac_f32 v11, 0, v{OO+16+i}")
        a(f"v_cmp_u_f32 vcc, v10, v11\ns_cbranch_vccnz {fb}")
    a(f"s_cmp_eq_u32 s{sKH}, 0\ns_cbranch_scc1 {yng}")
    def older():
        a.label(yng)
        a.nop(10)
        check()
        a.label(yng + "c")
        a(f"v_mov_b32 v{OO+13}, v8\nv_mov_b32 v{OO+16+13}, v9\nv_mov_b32 v10, s{sEP}")
        for x in range(2):
            for i in range(3):
                a(f"ds_write_b128 v{vX1}, v[{OO+16*x+4*i}:{OO+16*x+4*i+3}] offset:{3584*x+1024*i}")
            a(f"ds_write_b64 v{vX2}, v[{OO+16*x+12}:{OO+16*x+13}] offset:{3584*x+3072}")
        a(f"ds_write_b32 v{XF}, v10")
        l0only(lambda: (cs1(), l2pf(0, C.l2pf0)))
        a("s_waitcnt vmcnt(0) lgkmcnt(0)")
        l0only(cs2)
        a(f"s_setprio 0")
        stamp(a, 9)
    pl = a.uid("att_x")
    a(f"s_waitcnt lgkmcnt(0)\nv_cmp_ne_u32 vcc, s{sEP}, v31\ns_cbranch_vccnz {pl}")
    a.label(pl + "k")
    def respin():
        a.label(comb)
        a(f"s_mov_b32 s{sFB}, 1\ns_cmp_eq_u32 s{sKH}, 0\ns_cbranch_scc1 {yng}c")
        a.label(pl)
        a(f"s_mov_b32 s{t+12}, 0")
        a.label(pl + "l")
        for x in xreads(): a(x)
        a(f"""
        s_waitcnt lgkmcnt(0)
        v_cmp_ne_u32 vcc, s{sEP}, v31
        s_cbranch_vccz {pl}k
        s_add_u32 s{t+12}, s{t+12}, 1
        s_cmp_lt_u32 s{t+12}, {4*SPIN}
        s_cbranch_scc1 {pl}l
        s_branch {pl}k
        """)
    FF = 64
    for x in range(2):
        f = FF + 4*x
        a(f"v_max_f32 v{f+2}, v{8+x}, v{PR+13+16*x}\nv_sub_f32 v{f}, v{8+x}, v{f+2}\nv_sub_f32 v{f+1}, v{PR+13+16*x}, v{f+2}")
    for x in range(2):
        f = FF + 4*x
        a(f"v_exp_f32 v{f}, v{f}\nv_exp_f32 v{f+1}, v{f+1}")
    for x in range(2):
        f = FF + 4*x; o = OO + 16*x; pk = 72 + 6*x
        a(f"v_mul_f32 v{f+2}, v{f}, v{o+12}\nv_fmac_f32 v{f+2}, v{f+1}, v{PR+12+16*x}\nv_rcp_f32 v{f+2}, v{f+2}\ns_nop 0")
        a(f"v_mul_f32 v{f}, v{f}, v{f+2}\nv_mul_f32 v{f+2}, v{f+1}, v{f+2}")
        for i in range(0, 12, 2):
            a(f"v_pk_mul_f32 v[{o+i}:{o+i+1}], v[{o+i}:{o+i+1}], v[{f}:{f+1}] op_sel_hi:[1,0]")
        for i in range(0, 12, 2):
            a(f"v_pk_fma_f32 v[{o+i}:{o+i+1}], v[{PR+16*x+i}:{PR+1+16*x+i}], v[{f+2}:{f+3}], v[{o+i}:{o+i+1}] op_sel_hi:[1,0,1]")
        for i in range(6):
            a(f"v_cvt_pk_bf16_f32 v{pk+i}, v{o+2*i}, v{o+2*i+1}")
        a(f"""
        buffer_store_dwordx2 v[{pk}:{pk+1}], v{vO}, {WSR}, s{sO+x} offen {SB}
        buffer_store_dwordx2 v[{pk+2}:{pk+3}], v{vO}, {WSR}, s{sO+x} offen offset:512 {SB}
        s_mov_b32 exec_hi, 0
        buffer_store_dwordx2 v[{pk+4}:{pk+5}], v{vO}, {WSR}, s{sO+x} offen offset:1024 {SB}
        s_mov_b32 exec_hi, -1
        """)
    nck = a.uid("att_nc")
    a(f"s_cmp_lg_u32 s{sFB}, 0\ns_cbranch_scc1 {nck}")
    check()
    a.label(nck)
    flag_setup(a, 2)
    a("s_setprio 0\ns_waitcnt vmcnt(0)")
    flag_store(a, SB)
    a("s_barrier")
    l = a.uid("fk")
    a(f"s_xor_b32 s{sC}, s{sW}, 4\ns_or_b32 s{sC}, s{sC}, s{sL}\ns_cmp_lg_u32 s{sC}, 0\ns_cbranch_scc1 {l}\ns_lshl_b32 s{sC}, s{sWG}, 7\ns_add_u32 s{sC}, s{sC}, {L_FG + 40}")
    flag_store(a, "sc1", sC)
    a.label(l)
    stamp(a, 9)
    a(f"s_branch {ld_label}")
    for hk, fn in outl:
        a.label(hk); fn(); a(f"s_branch {hk}r")
    respin()
    older()
    def fallback():
        a.label(fb)
        sKb, sVb, sI = t+12, t+13, t+14
        def addr():
            a(f"""
            s_lshr_b32 s{sKb}, s{sI}, 2
            s_lshl_b32 s{sKb}, s{sKb}, 1
            s_add_u32 s{sKb}, s{sKb}, s{sKH}
            s_lshl_b32 s{sKb}, s{sKb}, 2
            s_and_b32 s{sVb}, s{sI}, 3
            s_add_u32 s{sKb}, s{sKb}, s{sVb}
            s_mul_i32 s{sKb}, s{sKb}, 1280
            s_add_u32 s{sKb}, s{sKb}, s{sHB}
            s_add_u32 s{sVb}, s{sKb}, {L_V}
            s_add_u32 s{sKb}, s{sKb}, {L_K}
            buffer_load_dwordx4 v[{KF}:{KF+3}], v5, {WSR}, s{sKb} offen sc1
            s_mov_b32 exec_hi, {0 if C.c0 else -1}
            buffer_load_dwordx2 v[{KF+4}:{KF+5}], v6, {WSR}, s{sKb} offen offset:1024 sc1
            s_mov_b32 exec_hi, -1
            """)
        l1 = a.uid("att_fb1"); l2 = a.uid("att_fb2")
        a(f"s_mov_b32 s{sI}, 0\nv_mov_b32 v8, 0xff800000\nv_mov_b32 v9, 0xff800000")
        a(f"s_mov_b32 exec_lo, 0\nv_mov_b64 v[{QA+4}:{QA+5}], 0\nv_mov_b64 v[{QB+4}:{QB+5}], 0\ns_mov_b32 exec_lo, -1")
        a.label(l1)
        addr()
        a("s_waitcnt vmcnt(0)")
        for x in range(2):
            for m in qk(x, 0, "0"): a(m)
        a.nop(12)
        for x in range(2):
            sd = SS + 16*x
            for i in range(0, 16, 2): a(f"v_max3_f32 v{8+x}, v{8+x}, v{sd+i}, v{sd+i+1}")
        a(f"s_add_u32 s{sI}, s{sI}, 1\ns_cmp_lt_u32 s{sI}, 32\ns_cbranch_scc1 {l1}")
        setm()
        for i in range(32): a(f"v_mov_b32 v{OO+i}, 0")
        a(f"s_mov_b32 s{sI}, 0")
        a.label(l2)
        addr()
        a(f"""
        s_mov_b64 exec, s[{sEX}:{sEX+1}]
        buffer_load_dwordx4 v[{VF}:{VF+3}], v7, {WSR}, s{sVb} offen sc1
        buffer_load_dwordx4 v[{VF+4}:{VF+7}], v7, {WSR}, s{sVb} offen offset:640 sc1
        s_mov_b64 exec, -1
        s_waitcnt vmcnt(0)
        """)
        for x in range(2):
            for m in qk(x, 0): a(m)
        a.nop(12)
        for x in range(2):
            for i in sm(x): a(i)
        a("s_nop 1")
        for x in range(2):
            for m in pv(x, 0): a(m)
        a(f"s_add_u32 s{sI}, s{sI}, 1\ns_cmp_lt_u32 s{sI}, 32\ns_cbranch_scc1 {l2}")
        a.nop(12)
        a(f"s_branch {comb}")
    return fallback

def xoff(SB, which):
    if SB == "": return (False, L_X1)
    return (True, L_X1) if which == 1 else (False, L_X2)
def add_x(a, dst, src, SB, which):
    lo, c = xoff(SB, which)
    a(f"s_add_u32 s{dst}, s{src}, {c}")
    if lo: a(f"s_add_u32 s{dst}, s{dst}, s{sLO}")

def proj_compute(a, down, SB, end_label):
    fast = SB == ""
    t = T
    K = F if down else D
    NCH = K // 128
    sRT, sCT = t, t+1
    st0 = 13 if down else 10
    sF, sRM, sST, sA, sA1, sThr, sSel = t+4, t+5, t+12, t+2, t+3, t+9, t+10
    NWS = 3 if down else C.wo_sets
    ACC = 14; RX = 34; AF = 54; WF = 134 if down else 54 + 16*C.wo_nas; RES = (220 if down else 54); VST = 200
    assert WF + 20*NWS <= 254
    vF, vF2, vR, vR2 = 10, 11, 12, 13
    a(f"""
    s_lshr_b32 s{sRT}, s{sWG}, 3
    s_and_b32 s{sCT}, s{sR}, 7
    v_and_b32 v3, 15, v0
    v_lshrrev_b32 v7, 4, v0
    s_lshl_b32 s{t+6}, s{sRT}, 1
    s_lshr_b32 s{t+7}, s{sW}, 1
    s_add_u32 s{t+6}, s{t+6}, s{t+7}
    s_and_b32 s{t+8}, s{sW}, 1
    s_lshl_b32 s{t+8}, s{t+8}, 8
    s_mul_i32 s{sA}, s{t+6}, {K*64}
    s_add_u32 s{sA}, s{sA}, s{t+8}
    {"" if fast else f"s_add_u32 s{sA}, s{sA}, s{sLO}"}
    s_add_u32 s{sA}, s{sA}, {(L_Q if fast else L_H) if down else L_O}
    s_mul_i32 s{sF}, s{t+6}, 40960
    s_mul_i32 s{t+7}, s{sCT}, 5120
    s_add_u32 s{sF}, s{sF}, s{t+7}
    s_add_u32 s{sF}, s{sF}, s{t+8}
    s_lshl_b32 s{sST}, s{sW}, 8
    s_lshl_b32 s{t+7}, s{sRT}, 12
    s_add_u32 s{sST}, s{sST}, s{t+7}
    s_add_u32 s{sST}, s{sST}, s{sLO}
    s_lshl_b32 s{sRM}, s{sRT}, 2
    s_add_u32 s{sRM}, s{sRM}, s{sW}
    s_mul_i32 s{sRM}, s{sRM}, {16*1280}
    s_mul_i32 s{t+7}, s{sCT}, 160
    s_add_u32 s{sRM}, s{sRM}, s{t+7}
    v_lshlrev_b32 v1, 4, v3
    v_lshl_add_u32 v{vF}, v7, 9, v1
    v_lshrrev_b32 v2, 5, v0
    v_lshl_add_u32 v1, v2, 9, v1
    v_and_b32 v2, 1, v7
    v_lshl_add_u32 v{vF2}, v2, 3, v1
    v_add_u32 v{vF2}, 4096, v{vF2}
    v_mul_u32_u24 v1, 1280, v3
    v_lshl_add_u32 v{vR}, v7, 4, v1
    v_lshl_add_u32 v{vR2}, v7, 3, v1
    v_add_u32 v9, 4096, v{vF}
    """)
    if C.x_a == 1 and not down: a(f"s_lshr_b32 s{sA}, s{sW}, 1\ns_mul_i32 s{sA}, s{sA}, 40960\ns_add_u32 s{sA}, s{sA}, s{t+8}\ns_add_u32 s{sA}, s{sA}, {WS_WTG}")
    SA = Src(sA, sA1, sThr, 8192)
    if down:
        a(f"s_and_b32 s{t+7}, s{sRT}, 3\ns_mul_i32 s{t+7}, s{t+7}, {C.rot_dn}\ns_sub_u32 s{sThr}, 12, s{t+7}")
        SA.setup(a, t+7, 12, t+8)
    def io(store, rowmajor, rsrc, soff, reg, bits):
        op = "store" if store else "load"
        v16, v8 = (vR, vR2) if rowmajor else (vF, vF2)
        o1, o2 = (64, 128) if rowmajor else (2048, 0)
        return [f"buffer_{op}_dwordx4 v[{reg}:{reg+3}], v{v16}, {rsrc}, {soff} offen {bits}",
                f"buffer_{op}_dwordx4 v[{reg+4}:{reg+7}], v{v16}, {rsrc}, {soff} offen offset:{o1} {bits}",
                f"buffer_{op}_dwordx2 v[{reg+8}:{reg+9}], v{v8}, {rsrc}, {soff} offen offset:{o2} {bits}"]
    if down:
        add_x(a, t+7, sF, SB, 1)
        for x in io(False, False, WSR, f"s{t+7}", RES, "sc1"): a(x)
        a(f"s_add_u32 s{t+7}, s{sST}, {L_ST1}\nv_lshlrev_b32 v1, 4, v3")
        for i in range(4):
            a(f"buffer_load_dwordx4 v[{VST+4*i}:{VST+4*i+3}], v1, {WSR}, s{t+7} offen offset:{1024*i} sc1")
        if fast:
            a(f"s_lshl_b32 s{t+8}, s{sWG}, 9\ns_add_u32 s{t+8}, s{t+8}, {L_ST2}\nv_lshlrev_b32 v1, 7, v0\ns_mov_b64 exec, 15")
            a(f"buffer_load_dword v8, v1, {WSR}, s{t+8} offen\ns_mov_b64 exec, -1")
    else:
        l1 = a.uid("prj_r1"); l2 = a.uid("prj_r2")
        a(f"s_cmp_lg_u32 s{sL}, 0\ns_cbranch_scc1 {l1}")
        for x in io(False, True, R(R_X), f"s{sRM}", RES, ""): a(x)
        a(f"s_branch {l2}")
        a.label(l1)
        add_x(a, t+7, sF, SB, 2)
        for x in io(False, False, WSR, f"s{t+7}", RES, "sc1"): a(x)
        a.label(l2)
    a(f"v_lshlrev_b32 v4, 4, v0\nv_add_u32 v5, 61440, v4\nv_add_u32 v6, 122880, v4\ns_mov_b32 s{t+8}, 0xffff0000")
    def wadr(c):
        o = dnW(c) if down else c * 20480
        return 4 + o // 61440, o % 61440
    def reads(c, u):
        b = WF + 20*((4*c + u) % NWS); r, o = wadr(c)
        return [f"ds_read_b128 v[{b+4*jn}:{b+4*jn+3}], v{r} offset:{o + 5120*u + 1024*jn}" for jn in range(5)]
    NAS = 5 if down else C.wo_nas
    def aload(c):
        r = []
        if down and C.rot_dn: r += [f"s_cmp_gt_u32 s{sThr}, {c}", f"s_cselect_b32 s{sSel}, s{sA}, s{sA1}", f"s_add_u32 s{sSel}, s{sSel}, {c*8192}"]
        else: r += [f"s_add_u32 s{sSel}, s{sA}, {c*8192}"]
        for u in range(4):
            d = AF + 16*(c % NAS) + 4*u
            r.append(f"buffer_load_dwordx4 v[{d}:{d+3}], v{vF if u < 2 else 9}, {WSR}, s{sSel} offen offset:{2048*(u & 1)} sc1")
        return r
    def mfmas(c, u, zero=False):
        b = WF + 20*((4*c + u) % NWS); x = AF + 16*(c % NAS) + 4*u
        return [f"v_mfma_f32_16x16x32_bf16 {v(ACC+4*jn,4)}, {v(b+4*jn,4)}, {v(x,4)}, {0 if zero else v(ACC+4*jn,4)}" for jn in range(5)]
    D_ = NWS - 1
    rd = lambda st_: reads(st_ // 4, st_ % 4) if st_ < 4*NCH else []
    if down: a(f"s_and_b32 s{t+7}, s{sRT}, 3\ns_mul_i32 s{t+7}, s{t+7}, {4 if C.rot_dn else 0}")
    G_ = gate_local(a, "down" if down else "wo", 4 if down else 2, 1, 2, t+7)
    def setup2():
        if not down: a("s_waitcnt vmcnt(0)")
        for i in range(10):
            a(f"v_lshlrev_b32 v{RX+2*i}, 16, v{RES+i}\nv_and_b32 v{RX+1+2*i}, s{t+8}, v{RES+i}")
        if down:
            row_stats(a, VST, VST + 2, VST + 3)
            a(f"v_mul_f32 v{VST+2}, v{VST+3}, v{VST+3}")
        if not down: a("s_barrier")
        for st_ in range(D_):
            for x in rd(st_): a(x)
    if down: G_.load(); G_.upd()
    setup2()
    def al(c):
        G_.need(span(128*c, 128*c + 127, 96, 2) if down else (span(128*c, 128*c + 127, 20, 1) if C.x_a != 3 else 0xffffffff))
        if c == 0: stamp(a, st0)
        for x in aload(c):
            if C.x_d == 1 and down and c >= 3 and x.startswith("buffer"): x = x.replace(WSR, R(R_WQ)).replace(f"s{sSel} offen", "0 offen").replace("sc1", "")
            a(x)
    NPRE = C.dn_a if down else C.wo_a
    N0 = C.dn_a0 if down else C.wo_a0
    assert NPRE < NAS or NCH <= NAS
    for c in range(N0): al(c)
    stamp(a, 21 if down else 5)
    nis = N0; pend = []; nld = 4*N0
    for c in range(NCH):
        for u in range(4):
            step = 4*c + u
            left = min(D_ - 1, 4*NCH - 1 - step)
            assert nld > step
            a(f"s_waitcnt vmcnt({nld - step - 1}) lgkmcnt({min(15, 5*left)})")
            if down and C.stamp and C.dbg == 8 and u in (0, 2): a(f"s_memtime s[10:11]\ns_waitcnt lgkmcnt(0)\nv_writelane_b32 v254, s10, {2*c + u//2}")
            if step == 4*NCH - 1 or (down and u == 2 and c + 1 < NCH): a("s_barrier")
            if not pend and nis < min(NCH, c + NPRE + 1):
                full = down and nis >= C.dn_full
                G_.need(0xffffffff if full else (span(128*nis, 128*nis + 127, 96, 2) if down else span(128*nis, 128*nis + 127, 20, 1)))
                ld = aload(nis); nis += 1
                for x in ld[:-4]: a(x)
                pend = ld[-4:]
            k = 2 if nld - step < 4*NPRE - 2 else 1
            mf = mfmas(c, u, step == 0); r_ = rd(step + D_)
            for i in range(5):
                a(mf[i])
                if r_: a(r_[i])
                if pend and i in ((4,) if k == 1 else (1, 4)): a(pend.pop(0)); nld += 1
    stamp(a, st0 + 1)
    add_x(a, t+7, sF, SB, 2 if down else 1)
    flag_setup(a, 5 if down else 3)
    for i in range(0, 20, 2):
        c = ACC + i
        if down: a(f"v_pk_fma_f32 v[{c}:{c+1}], v[{c}:{c+1}], v[{VST+2}:{VST+3}], v[{RX+i}:{RX+i+1}] op_sel_hi:[1,0,1]")
        else: a(f"v_pk_add_f32 v[{c}:{c+1}], v[{c}:{c+1}], v[{RX+i}:{RX+i+1}]")
        a(f"v_cvt_pk_bf16_f32 v{60+i//2}, v{c}, v{c+1}")
    if down:
        l1 = a.uid("prj_o1")
        a(f"s_cmp_eq_u32 s{sL}, 0\ns_cbranch_scc1 {l1}")
        srd(a, R_T, P_OUT, ACT)
        for x in io(True, True, R(R_T), f"s{sRM}", 60, ["", "sc1", "nt"][C.outb]): a(x)
        a(f"s_branch {end_label}")
        a.label(l1)
    for x in io(True, False, WSR, f"s{t+7}", 60, SB): a(x)
    a(f"v_pk_add_f32 v[72:73], v[{ACC}:{ACC+1}], v[{ACC+2}:{ACC+3}]\nv_pk_mul_f32 v[74:75], v[{ACC}:{ACC+1}], v[{ACC}:{ACC+1}]")
    a(f"v_pk_fma_f32 v[74:75], v[{ACC+2}:{ACC+3}], v[{ACC+2}:{ACC+3}], v[74:75]")
    for i in range(4, 20, 2):
        a(f"v_pk_add_f32 v[72:73], v[72:73], v[{ACC+i}:{ACC+i+1}]\nv_pk_fma_f32 v[74:75], v[{ACC+i}:{ACC+i+1}], v[{ACC+i}:{ACC+i+1}], v[74:75]")
    a(f"""
    v_add_f32 v72, v72, v73
    v_add_f32 v73, v74, v75
    s_lshr_b32 s{t+7}, s{sCT}, 1
    s_lshl_b32 s{t+7}, s{t+7}, 10
    v_permlane32_swap_b32 v72, v73
    s_and_b32 s{t+8}, s{sCT}, 1
    s_lshl_b32 s{t+8}, s{t+8}, 3
    v_add_f32 v72, v72, v73
    v_mov_b32 v73, v72
    s_add_u32 s{t+7}, s{t+7}, s{t+8}
    s_add_u32 s{t+7}, s{t+7}, s{sST}
    v_permlane16_swap_b32 v72, v73
    s_add_u32 s{t+7}, s{t+7}, {L_ST2 if down else L_ST1}
    v_lshrrev_b32 v8, 5, v0
    v_lshlrev_b32 v8, 2, v8
    v_lshl_add_u32 v8, v3, 4, v8
    v_add_f32 v72, v72, v73
    buffer_store_dword v72, v8, {WSR}, s{t+7} offen {SB}
    s_waitcnt vmcnt(0)
    """)
    flag_store(a, SB)
    a("s_barrier")
    stamp(a, st0 + 2)

def gu_compute(a, SB):
    t = T
    sRT, sCT, sWM, sWN, sTB, sF0 = t, t+1, t+2, t+3, t+4, t+6
    FR = 16; ACC = 96; VCS = 192; VST = 216; MS = 232
    a(f"""
    s_lshr_b32 s{sRT}, s{sWG}, 4
    s_and_b32 s{sCT}, s{sR}, 15
    s_and_b32 s{sWM}, s{sW}, 1
    s_lshr_b32 s{sWN}, s{sW}, 1
    s_lshl_b32 s{sTB}, s{sRT}, 1
    s_add_u32 s{sTB}, s{sTB}, s{sWM}
    s_mul_i32 s{sF0}, s{sCT}, 96
    s_mul_i32 s{t+5}, s{sWN}, 48
    s_add_u32 s{sF0}, s{sF0}, s{t+5}
    s_mul_i32 s{t+5}, s{sWG}, 768
    s_mul_i32 s{t+7}, s{sWN}, 384
    s_add_u32 s{t+5}, s{t+5}, s{t+7}
    s_add_u32 s{t+5}, s{t+5}, {WS_CSG}
    v_lshrrev_b32 v12, 4, v0
    v_lshlrev_b32 v1, 4, v12
    """)
    for f in range(6):
        a(f"buffer_load_dwordx4 v[{VCS+4*f}:{VCS+4*f+3}], v1, {WSR}, s{t+5} offen offset:{64*f} sc1")
    a(f"""
    v_and_b32 v13, 15, v0
    v_lshlrev_b32 v3, 4, v13
    v_lshl_add_u32 v3, v12, 9, v3
    s_lshl_b32 s{t+5}, s{sWM}, 13
    v_add_u32 v3, s{t+5}, v3
    v_lshlrev_b32 v11, 4, v0
    s_mul_i32 s{t+5}, s{sWN}, 6144
    s_add_u32 s{t+5}, s{t+5}, {WB}
    v_add_u32 v4, s{t+5}, v11
    v_add_u32 v5, 49152, v4
    v_lshlrev_b32 v6, 2, v13
    s_mul_i32 s{t+11}, s{sTB}, {2*F*64}
    s_lshl_b32 s{t+7}, s{sF0}, 6
    s_add_u32 s{t+11}, s{t+11}, s{t+7}
    {"" if SB == "" else f"s_add_u32 s{t+11}, s{t+11}, s{sLO}"}
    s_add_u32 s{t+11}, s{t+11}, {L_Q if SB == "" else L_H}
    s_add_u32 s{t+12}, s{t+11}, {F*64}
    """)
    flag_setup(a, 4)
    def reads(c, u):
        b = FR + 40*u; o = guW(c) - WB
        ra = [f"ds_read_b128 v[{b+4*tt}:{b+4*tt+3}], v3 offset:{(c % 4)*16384 + 4096*(tt >> 1) + 256*(tt & 1) + 2048*u}" for tt in range(4)]
        rw = [f"ds_read_b128 v[{b+16+4*f}:{b+19+4*f}], v{4 + o // 49152} offset:{o % 49152 + 12288*u + 1024*f}" for f in range(6)]
        return ra + rw
    def mfma(u, tl, z):
        b = FR + 40*u; c = ACC + 4*tl
        return f"v_mfma_f32_16x16x32_bf16 {v(c,4)}, {v(b+16+4*(tl>>2),4)}, {v(b+4*(tl&3),4)}, {0 if z else v(c,4)}"
    def epi(jn, pk):
        r = []
        g = ACC + 32*jn; u_ = g + 16
        for tp in range(2):
            c = g + 8*tp; d = u_ + 8*tp
            for i in range(8): r.append(f"v_max_f32 v{c+i}, 0, v{c+i}")
            if pk:
                for i in range(0, 8, 2): r.append(f"v_pk_mul_f32 v[{c+i}:{c+i+1}], v[{c+i}:{c+i+1}], v[{d+i}:{d+i+1}]")
            else:
                for i in range(8): r.append(f"v_mul_f32 v{c+i}, v{c+i}, v{d+i}")
            for i in range(4): r.append(f"v_cvt_pk_bf16_f32 v{c+i}, v{c+2*i}, v{c+2*i+1}")
            r += ["s_nop 0", f"v_permlane16_swap_b32 v{c}, v{c+2}", f"v_permlane16_swap_b32 v{c+1}, v{c+3}"]
            r.append(f"buffer_store_dwordx4 v[{c}:{c+3}], v11, {WSR}, s{t+11+tp} offen offset:{1024*jn} {SB}")
        return r
    a(f"s_lshl_b32 s{t+5}, s{sTB}, 12\ns_add_u32 s{t+5}, s{t+5}, s{sLO}\ns_add_u32 s{t+5}, s{t+5}, {L_ST1}")
    ins = {}
    for i in range(4): ins[36 + 48*C.gfull + 3*i] = [f"buffer_load_dwordx4 v[{VST+4*i}:{VST+4*i+3}], v11, {WSR}, s{t+5} offen offset:{1024*i} sc1"]
    ins[82 + 48*C.gfull] = ["s_waitcnt vmcnt(0)"] + [f"v_add_f32 v{VST}, v{VST}, v{VST+2*i}" for i in range(1, 8)] + \
         [f"v_mul_f32 v{MS}, {f32(-1.0/D)}, v{VST}", f"v_mul_f32 v{MS+1}, {f32(-1.0/D)}, v{VST}", "s_nop 0", f"v_permlane16_swap_b32 v{MS}, v{MS+1}",
          f"v_mov_b32 v{MS+2}, v{MS}", f"v_mov_b32 v{MS+3}, v{MS+1}", "s_nop 0", f"v_permlane32_swap_b32 v{MS}, v{MS+2}", f"v_permlane32_swap_b32 v{MS+1}, v{MS+3}"]
    fix = lambda tl: [f"v_fmac_f32 v{ACC+4*tl+i}, v{MS+(tl&3)}, v{VCS+4*(tl>>2)+i}" for i in range(4)]
    gemm16(a, 10, 24, reads, mfma, [tuple(range(8*j, 8*j+8)) for j in range(3)], ins, fix, 122 + 48*C.gfull, epi, 22, C.g16)
    a("s_waitcnt vmcnt(0)")
    flag_store(a, SB)
    a("s_barrier")
    stamp(a, 23)

def loader_chain(a, SB, end_label, idle_label):
    t = T
    sLW, s4, s5, s6, aGU, aGU1, wGU, wGU1, wDN, wDN1, aQK, aQK1, wQK, wQK1, th10, th12, sTmp, sSel, thq = range(t, t + 19)
    sRot = sSel
    a(f"""
    s_sub_u32 s{sLW}, s{sW}, 4
    v_lshlrev_b32 v8, 4, v0
    s_mul_i32 s{s6}, s{sLW}, 6144
    s_and_b32 s{wGU}, s{sR}, 15
    s_mul_i32 s{wGU}, s{wGU}, 245760
    s_add_u32 s{wGU}, s{wGU}, s{s6}
    s_add_u32 s{wGU}, s{wGU}, {WS_WTG}
    s_lshr_b32 s{sRot}, s{sR}, 4
    s_mul_i32 s{sRot}, s{sRot}, {C.rot_gu}
    s_sub_u32 s{th10}, 10, s{sRot}
    """)
    S_aGU = Src(aGU, aGU1, th10, 4096); S_wGU = Src(wGU, wGU1, th10, 24576); S_wDN = Src(wDN, wDN1, th12, 20480)
    S_aQK = Src(aQK, aQK1, thq, 4096); S_wQK = Src(wQK, wQK1, thq, 64*3840)
    S_aGU.norot = S_wGU.norot = not C.rot_gu; S_wDN.norot = not C.rot_dn; S_aQK.norot = S_wQK.norot = not C.rot_qk
    S_wGU.setup(a, sRot, 10, sTmp)
    def rest():
        a(f"""
        s_lshl_b32 s{s4}, s{sLW}, 12
        s_mul_i32 s{s5}, s{sLW}, 5120
        s_lshr_b32 s{aQK}, s{sWG}, 4
        s_lshl_b32 s{aQK}, s{aQK}, 2
        s_add_u32 s{aQK}, s{aQK}, s{sLW}
        s_mul_i32 s{aQK}, s{aQK}, 40960
        """)
        add_x(a, aGU, aQK, SB, 1)
        add_x(a, aQK, aQK, SB, 2)
        a(f"s_and_b32 s{wDN}, s{sR}, 15")
        qkvW_setup(a, wQK, sLW, wDN, sTmp, 6)
        a(f"s_sub_u32 s{sRot}, 10, s{th10}")
        S_aGU.setup(a, sRot, 10, sTmp)
        a(f"s_lshr_b32 s{sRot}, s{sR}, 4\ns_mul_i32 s{sRot}, s{sRot}, {C.rot_qk}\ns_sub_u32 s{thq}, 10, s{sRot}")
        for S_ in (S_aQK, S_wQK): S_.setup(a, sRot, 10, sTmp)
        a(f"""
        s_and_b32 s{wDN}, s{sR}, 7
        s_mul_i32 s{wDN}, s{wDN}, 245760
        s_add_u32 s{wDN}, s{wDN}, s{s5}
        s_add_u32 s{wDN}, s{wDN}, {WS_WTD}
        s_lshr_b32 s{sRot}, s{sR}, 3
        s_mul_i32 s{sRot}, s{sRot}, {C.rot_dn}
        s_sub_u32 s{th12}, 12, s{sRot}
        """)
        S_wDN.setup(a, sRot, 12, sTmp)
    G_ = [None, None]
    def lin(S_, dst, dfn, bits):
        def f(c, i0, k):
            if bits == "sc1":
                G_[0].need(span(64*c, 64*c + 63, 80, 2) if C.gran else 0xffff)
                if G_[1] is not None: stamp(a, G_[1]); G_[1] = None
            if not S_.norot: S_.sel(a, c, sSel)
            lin_dma(a, 8, S_.sB if S_.norot else sSel, (0 if (C.x_gh and S_ is S_wGU) else c)*S_.stride + 1024*i0, dst, dfn(c) + 1024*i0, k, bits)
        return f
    def pf(kind, ep, st, rot):
        def f():
            a(f"s_lshr_b32 s{sTmp}, s{sR}, 4\ns_mul_i32 s{sTmp}, s{sTmp}, {4 if rot else 0}")
            G_[0] = gate_local(a, kind, ep, 1, 2, sTmp, sleep=C.psleep); G_[1] = st
        return f
    def emitWQ(c, i0, k):
        if not S_wQK.norot: S_wQK.sel(a, c, sSel)
        for i in range(i0, i0 + k):
            a(f"s_add_u32 m0, s{s4}, {qkW(c) + 1024*i}\ns_add_u32 s{sTmp}, s{wQK if S_wQK.norot else sSel}, {c*64*3840 + i*4*3840}")
            a(f"buffer_load_dwordx4 v{6 + (i >> 1)}, {R(R_WQ)}, s{sTmp} offen lds")
    rA = lambda c: (c % 4) * 16384
    mark = [0]
    def gu_bar(c):
        if c == C.gfull: G_[0].need(0xffff)
        if C.thr0 >= 0 and 1 <= c < 8:
            l = a.uid("t0")
            a(f"s_cmp_lg_u32 s{sL}, 0\ns_cbranch_scc1 {l}\ns_waitcnt vmcnt({C.thr0})")
            a.label(l)
        if SB != "": return
        if c == C.fkc:
            a(f"v_lshlrev_b32 v4, 7, v0\ns_lshl_b32 s{thq}, s{sLW}, 13\ns_add_u32 s{thq}, s{thq}, {L_FG + 40}\nbuffer_load_dword v5, v4, {WSR}, s{thq} offen sc1")
            L.q.append(("gu", "P", 99)); mark[0] = L.total
        if c == C.fkc + 2:
            l = a.uid("fkc")
            a(f"s_cmp_lg_u32 s{sL}, 0\ns_cbranch_scc1 {l}")
            poll(a, 4, 5, f"s{thq}", f"s{sEP}", sleep=2, pre=L.total - mark[0])
            a.label(l)
    assert C.fkc + 2 <= 8 and not C.rot_qk
    full = lambda c: G_[0].need(0xffff) if c == 1 else None
    reg = lambda f, sz: (lambda c: (f(c), f(c) + sz))
    gu = Phase("gu", 10, 4, 6, lin(S_aGU, s4, rA, "sc1"), lin(S_wGU, s6, guW, "nt" if C.nt_gu else ""), reg(rA, 16384), reg(guW, 24576), pf("gu", 3, 21, C.rot_gu), C.bud_gu, dbg=(C.dbg == 3), after_bar=gu_bar)
    dn = Phase("dn", 12, 0, 5, None, lin(S_wDN, s5, dnW, "nt" if C.nt_dn else ""), None, reg(dnW, 20480), None, C.bud_dn, lag=2, early=C.dn_early, dbg=(C.dbg == 4))
    qk = Phase("qk", 10, 4, 4, lin(S_aQK, s4, rA, "sc1"), emitWQ, reg(rA, 16384), reg(qkW, 16384), pf("gu", 5, 17, C.rot_qk), C.bud_qk, early=C.qk_early, dbg=(C.dbg == 2), after_bar=full)
    L = Loader(a)
    L.live["wo"] = (0, 102400)
    if C.ldprio: a(f"s_setprio {C.ldprio}")
    pn = L.pre(gu, 0, C.gu_e, C.thr_p)
    rest()
    a("s_barrier")
    L.live.pop("wo")
    pn = L.pre(gu, pn, C.gu_e2, C.thr_e)
    a("s_barrier"); pn = L.pre(gu, pn, C.gu_p)
    pn = L.run(gu, dn, pn); stamp(a, 22); L.end(gu); pn = L.pre(dn, pn, C.dn_e, C.thr_e)
    L.wait({("dn", "W", 0)}); a("s_barrier"); pn = L.pre(dn, pn, C.dn_p, C.thr_p)
    dn.skip0 = True
    if C.qpf:
        a(f"s_lshl_b32 s{thq}, s{sR}, 2\ns_add_u32 s{thq}, s{thq}, s{sLW}\ns_mul_i32 s{thq}, s{thq}, {C.qpl*128}\nv_lshlrev_b32 v4, 7, v0")
        def qpf(c):
            k = c - C.qpf0
            if k % C.qps or not 0 <= k // C.qps < C.qpf: return
            k //= C.qps
            off = D*3*D*2 - (C.qpf - k) * C.qpl * 128 * 128
            a(f"s_add_u32 s{sTmp}, s{thq}, {off}\ns_mov_b64 exec, {hex((1 << C.qpl) - 1) if C.qpl <= 31 else -1}")
            if C.qpl == 32: a("s_mov_b32 exec_hi, 0")
            a(f"buffer_load_dword v5, v4, {R(R_WQ)}, s{sTmp} offen\ns_mov_b64 exec, -1")
            L.q.append(("dn", "P", 99))
        dn.after_bar = qpf
        assert not C.rot_qk
    def lastexit(ws_):
        l = a.uid("lx")
        a(f"s_cmp_eq_u32 s{sL}, 0\ns_cbranch_scc1 {l}")
        for w_ in ws_: a(f"s_waitcnt vmcnt({w_})\ns_barrier")
        a(f"s_barrier\ns_branch {end_label}")
        a.label(l)
    pn = L.run(dn, qk, pn, lastexit=lastexit); stamp(a, 14); L.end(dn)
    a(f"s_cmp_lg_u32 s{sL}, 0\ns_cbranch_scc1 {end_label}")
    pn = L.pre(qk, pn, C.qk_e, C.thr_e)
    a("s_barrier")
    a(f"s_and_b32 s{sTmp}, s{sR}, 15\ns_cmp_eq_u32 s{sTmp}, 15\ns_cbranch_scc1 {idle_label}")
    pn = L.pre(qk, pn, C.qk_p)
    L.run(qk, None, pn); stamp(a, 19); L.end(qk)

def build():
    a = Asm()
    K = NAME + "_kernel"
    t = T
    a(f".globl {K}\n.p2align 8\n.type {K},@function")
    a.label(K)
    a(f"""
    s_load_dwordx16 s[16:31], s[0:1], 0
    s_load_dwordx4 s[32:35], s[0:1], 64
    s_cmp_ge_u32 s2, 256
    s_cbranch_scc1 L_exit
    s_and_b32 s{sG}, s2, 7
    s_lshr_b32 s{sR}, s2, 3
    v_lshrrev_b32 v1, 6, v0
    v_and_b32 v0, 63, v0
    v_readfirstlane_b32 s{sW}, v1
    s_lshl_b32 s{sWG}, s{sG}, 5
    s_add_u32 s{sWG}, s{sWG}, s{sR}
    s_mov_b32 s{sL}, 0
    s_mov_b32 s{sLO}, 0
    s_mov_b32 s{sEP}, 0
    s_mov_b32 s{sTMO}, 0
    """)
    if C.stamp: a("v_mov_b32 v255, 0\nv_mov_b32 v254, 0\ns_memrealtime s[14:15]")
    stamp(a, 0)
    qkv_ids(a, t)
    a(f"s_cmp_lt_u32 s{sW}, 4\ns_cbranch_scc1 L_q1c\ns_cmp_eq_u32 s{t+1}, 15\ns_cbranch_scc1 L_q1c")
    qkv1_loader(a)
    a("s_branch L_q1done")
    a.label("L_q1c")
    a("s_waitcnt lgkmcnt(0)")
    srd(a, R_X, P_X, ACT)
    srd(a, R_WQ, P_WQKV, D*3*D*2)
    a(f"""
    s_cmp_gt_u32 s{sW}, 3
    s_cbranch_scc1 L_npf
    s_lshl_b32 s{t+8}, s{sWG}, 2
    s_add_u32 s{t+8}, s{t+8}, s{sW}
    s_mul_i32 s{t+8}, s{t+8}, 2560
    v_lshrrev_b32 v1, 5, v0
    v_mul_u32_u24 v1, 1280, v1
    v_and_b32 v2, 31, v0
    v_lshl_add_u32 v1, v2, 4, v1
    v_mov_b64 v[228:229], 0
    v_mov_b64 v[230:231], 0
    buffer_load_dwordx4 v[220:223], v1, {R(R_X)}, s{t+8} offen
    buffer_load_dwordx4 v[224:227], v1, {R(R_X)}, s{t+8} offen offset:512
    s_mov_b32 exec_lo, 0xffff
    s_mov_b32 exec_hi, 0xffff
    buffer_load_dwordx4 v[228:231], v1, {R(R_X)}, s{t+8} offen offset:1024
    s_mov_b64 exec, -1
    """)
    a.label("L_npf")
    other_srds(a)
    a(f"s_cmp_eq_u32 s{t+1}, 15\ns_cbranch_scc1 L_q1idle")
    qkv_compute(a, True, "sc1")
    a("s_branch L_q1done")
    a.label("L_q1idle")
    qkv1_idle(a)
    a.label("L_q1done")
    a(f"s_cmp_eq_u32 s{sMODE}, 0\ns_cbranch_scc1 L_slow")
    tails = []
    for nm, SB in (("fast", ""), ("slow", "sc1")):
        a.label(f"L_{nm}")
        tails.append(phase_attn(a, SB, f"L_{nm}_ld"))
        if nm == "fast": a.label("L_fast_post")
        proj_compute(a, False, SB, None)
        gu_compute(a, SB)
        proj_compute(a, True, SB, "L_end")
        qkv_ids(a, t)
        a(f"s_cmp_eq_u32 s{t+1}, 15\ns_cbranch_scc1 L_{nm}_idle")
        qkv_compute(a, False, SB)
        a(f"s_branch L_{nm}_next")
        a.label(f"L_{nm}_ld")
        loader_chain(a, SB, "L_end", f"L_{nm}_idle")
        a(f"s_branch L_{nm}_next")
        a.label(f"L_{nm}_idle")
        a("s_waitcnt vmcnt(0)\ns_barrier")
        a.label(f"L_{nm}_next")
        if C.ldprio: a("s_setprio 0")
        a(f"s_mov_b32 s{sL}, 1\ns_mov_b32 s{sLO}, {LSTRIDE}\ns_add_u32 s{sEP}, s{sEP}, 5\ns_mov_b32 s{R_WQ+2}, 0\ns_branch L_{nm}")
        if nm == "fast":
            a.label("L_end")
            a(f"""
            s_xor_b32 s{t}, s{sW}, 7
            s_or_b32 s{t}, s{t}, s2
            s_cmp_lg_u32 s{t}, 0
            s_cbranch_scc1 L_end2
            v_mov_b32 v1, 0
            s_mov_b64 exec, 1
            global_store_dword v1, v1, s[{P_DBG}:{P_DBG+1}] sc1
            s_mov_b64 exec, -1
            """)
            a.label("L_end2")
            if C.stamp:
                a("s_waitcnt vmcnt(0)")
                stamp(a, 16)
                a(f"""
                s_memrealtime s[10:11]
                s_waitcnt lgkmcnt(0)
                v_writelane_b32 v255, s14, 62
                v_writelane_b32 v255, s10, 63
                v_writelane_b32 v255, s{sTMO}, 61
                s_lshl_b32 s10, s2, 3
                s_add_u32 s10, s10, s{sW}
                s_lshl_b32 s10, s10, 8
                s_add_u32 s10, s10, {WS_STAMP}
                v_lshlrev_b32 v1, 2, v0
                v_add_u32 v1, s10, v1
                global_store_dword v1, v255, s[{P_WS}:{P_WS+1}]
                v_add_u32 v1, {1<<20}, v1
                global_store_dword v1, v254, s[{P_WS}:{P_WS+1}]
                """)
                if C.pj:
                    a(f"""
                    s_xor_b32 s{t}, s2, 8
                    s_xor_b32 s{t+1}, s{sW}, {C.pw}
                    s_or_b32 s{t}, s{t}, s{t+1}
                    s_cmp_lg_u32 s{t}, 0
                    s_cbranch_scc1 L_exit
                    v_readlane_b32 s{t+1}, v254, {C.pi}
                    v_readlane_b32 s{t+2}, v254, {C.pj % 64}
                    v_readlane_b32 s{t+3}, v254, 40
                    {f"s_mov_b32 s{t+1}, s14" if C.pi == 63 else ""}
                    s_sub_u32 s{t+1}, s{t+2}, s{t+1}
                    s_mul_i32 s{t+1}, s{t+1}, {C.pm}
                    s_add_u32 s{t+1}, s{t+1}, 1000
                    """)
                    a.label("L_probe")
                    a(f"""
                    s_memrealtime s[{t+4}:{t+5}]
                    s_waitcnt lgkmcnt(0)
                    s_sub_u32 s{t+6}, s{t+4}, s{t+3}
                    s_cmp_lt_u32 s{t+6}, s{t+1}
                    s_cbranch_scc1 L_probe
                    """)
                if C.dbgout:
                    a(f"s_xor_b32 s{t}, s2, 8\ns_or_b32 s{t}, s{t}, s{sW}\ns_cmp_lg_u32 s{t}, 0\ns_cbranch_scc1 L_exit\nv_readlane_b32 s{t+1}, v254, 0\nv_mov_b32 v1, 0")
                    for k, i in enumerate([1, 2, 7, 8, 10, 12, 23, 15, 20, 31, 32, 36, 47, 40]):
                        a(f"v_readlane_b32 s{t}, v254, {i}\ns_sub_u32 s{t}, s{t}, s{t+1}\ns_nop 1\nv_mov_b32 v2, s{t}\nglobal_store_dword v1, v2, s[{P_DBG}:{P_DBG+1}] offset:{4+4*k}")
            a.label("L_exit")
            a("s_endpgm")
            a.label("L_fast_end")
    for f in tails: f()
    hdr = open("cdna_kernels/" + NAME + ".s.ref").read().split("; Override")[0]
    hdr += "; @launch grid=(256,1,1) block=(512,1,1) lds=163840\n"
    txt = hdr + '.amdgcn_target "amdgcn-amd-amdhsa--gfx950"\n.text\n' + a.text() + f'''.section .rodata,"a"
.p2align 6
.amdhsa_kernel {K}
  .amdhsa_next_free_vgpr 256
  .amdhsa_next_free_sgpr 102
  .amdhsa_accum_offset 256
  .amdhsa_group_segment_fixed_size 0
  .amdhsa_kernarg_size 80
  .amdhsa_user_sgpr_count 2
  .amdhsa_user_sgpr_kernarg_segment_ptr 1
  .amdhsa_system_sgpr_workgroup_id_x 1
.end_amdhsa_kernel
'''
    for p in check(a.lines): print("HAZARD", p)
    return txt

if __name__ == "__main__":
    out = sys.argv[1] if len(sys.argv) > 1 else "cdna_kernels/" + NAME + ".s"
    for kv in sys.argv[2:]:
        k, _, val = kv.partition("=")
        assert hasattr(C, k), k
        setattr(C, k, int(val) if val else True)
    open(out, "w").write(build())
    print("written", out)
```

```python
import sys, math, struct
sys.path.insert(0, "gen")
from asmlib import *

NAME = "interleave_layers__softmax_full_mha__glu_gated_reglu__prompt"
S, D, F, H, DH = 2048, 640, 1536, 32, 20
ACT = S * D * 2
HEADB = 81920
L_Q = 0
L_K = L_Q + ACT
L_V = L_K + ACT
L_O = L_V + ACT
L_X1 = L_O + ACT
L_X2 = L_X1 + ACT
L_H = L_X2 + ACT
L_ST1 = L_H + S * F * 2
L_ST2 = L_ST1 + S * 64
L_FG = L_ST2 + S * 64
LSTRIDE = L_FG + 32768
WS_ST0 = LSTRIDE + L_ST2
WS_WTO = 2 * LSTRIDE
WS_WTD = WS_WTO + D * D * 2
WS_WTG = WS_WTD + F * D * 2
WS_CSP = WS_WTG + 2 * F * D * 2
WS_CSG = WS_CSP + 10 * 12288
WS_CSQ = WS_CSG + 256 * 768
WS_FL = WS_CSQ + 256 * 512
WS_END = WS_FL + 8192
WS_SIZE = 268435456
WS_STAMP = 200 << 20
QSCALE = (DH ** -0.5) * math.log2(math.e)
def f32(x): return "0x%08x" % struct.unpack("<I", struct.pack("<f", x))[0]

P_X, P_WQKV, P_WO, P_BX, P_WG, P_WU, P_WD, P_OUT, P_DBG, P_WS = 16, 18, 20, 22, 24, 26, 28, 30, 32, 34
sL, sG, sR, sW, sLO, sEP, sTMO, sWG = 3, 4, 5, 6, 7, 8, 9, 13
R_WS, R_X, R_WQ, R_WG, R_WU, R_T = 36, 40, 44, 48, 52, 56
T = 60
WSR = f"s[{R_WS}:{R_WS+3}]"
def R(r): return f"s[{r}:{r+3}]"
SPIN = 200000

class Cfg:
    stamp = False
    dbg = 0
    dbgout = 0
    pi = 0
    pj = 0
    pm = 1
    pw = 0
    look = 6
    gu_e = 12
    dn_e = 4
    qk_e = 0
    bud_gu = 10
    bud_dn = 3
    bud_qk = 6
    bud_q1 = 8
    dn_a = 3
    psleep = 1
    gran = 3
    flip = 0
    gfull = 1
    dn_a0 = 2
    wo_a0 = 2
    x_a = 0
    x_d = 0
    c_i = 6
    c_c = 7
    c_f = 8
    pp = 0
    x_q = 0
    hth = 0
    fkc = 5
    wpf = 0
    wpd = 1
    wpl = 16
    bl = 0
    bln = 1
    thr0 = -1
    ev0 = 1
    ev1 = 0
    oxh = 6
    x_slow = 0
    x_gh = 0
    alias = 0
    ldprio = 0
    grp = 2
    qpf = 0
    qpf0 = 1
    qpl = 16
    qps = 1
    thr_e = 0
    thr_p = 0
    qk_s0 = 4
    dn_lag = 2
    dn_full = 5
    wo_a = 4
    wo_nas = 5
    c0 = 1
    g16 = 1
    e16 = 3
    wb = 0
    outb = 0
    q1prio = 0
    look_q1 = 6
    nocs = 0
    qloc = 1
    stage = 1
    cpf = 1
    l2pf0 = 0
    nt_kv = 0
    nt_wo = 0
    nt_gu = 0
    nt_dn = 0
    nt_qk = 0
    htouch = 0
    warm = 0
    gu_e2 = 0
    gu_p = 0
    dn_p = 20
    qk_p = 0
    wo_sets = 6
    q1pf = 1
    l2pf = 8
    rot = 0
    x_hit = 0
    tlb = 0
    rot_gu = 0
    rot_dn = 0
    rot_qk = 0
    dn_early = 99
    qk_early = 99
C = Cfg()

def stamp(a, i):
    if not C.stamp: return
    a(f"s_memtime s[10:11]\ns_mul_i32 s12, s{sL}, 24\ns_add_u32 m0, s12, {i}\ns_waitcnt lgkmcnt(0)\nv_writelane_b32 v255, s10, m0")
    if C.dbg == 7: a(f"s_memrealtime s[10:11]\ns_waitcnt lgkmcnt(0)\nv_writelane_b32 v254, s10, m0")

def dstamp(a, d, i):
    if C.stamp and C.dbg == d: a(f"s_memtime s[10:11]\ns_lshl_b32 s12, s{sL}, 5\ns_add_u32 m0, s12, {i}\ns_waitcnt lgkmcnt(0)\nv_writelane_b32 v254, s10, m0")

def cstamp(a, j):
    if C.stamp and C.dbg == 9:
        a(f"s_memtime s[10:11]\ns_lshl_b32 s12, s{sL}, 5\ns_add_u32 m0, s12, {2*j}\ns_waitcnt lgkmcnt(0)\nv_writelane_b32 v254, s10, m0")
        a(f"s_memrealtime s[10:11]\ns_add_u32 m0, s12, {2*j+1}\ns_waitcnt lgkmcnt(0)\nv_writelane_b32 v254, s10, m0")

def srd(a, r, ptr, size):
    a(f"s_mov_b32 s{r}, s{ptr}\ns_mov_b32 s{r+1}, s{ptr+1}\ns_mov_b32 s{r+2}, {size}\ns_mov_b32 s{r+3}, 0x20000")

def interleave(a, mf, other):
    n = len(mf); k = 0
    for i, m in enumerate(mf):
        a(m)
        tgt = (len(other) * (i + 1) + n - 1) // n
        while k < tgt:
            a(other[k]); k += 1

def poll(a, vaddr, vtmp, soff, want, sleep=0, pre=False, wide=False):
    lp = a.uid("poll"); ok = a.uid("pollok")
    cnt = T + 22
    a(f"s_mov_b32 s{cnt}, s{sTMO}")
    if pre is not False: a(f"s_waitcnt vmcnt({pre})\ns_branch {lp}c")
    a.label(lp)
    if wide: a(f"buffer_load_dwordx4 v[{vtmp}:{vtmp+3}], v{vaddr}, {WSR}, {soff} offen sc1")
    else: a(f"buffer_load_dword v{vtmp}, v{vaddr}, {WSR}, {soff} offen sc1")
    a(f"s_waitcnt vmcnt(0)")
    if pre is not False: a.label(lp + "c")
    a(f"v_subrev_u32 v{vtmp}, {want}, v{vtmp}")
    if wide:
        for i in range(1, 4): a(f"v_subrev_u32 v{vtmp+i}, {want}, v{vtmp+i}\nv_max_u32 v{vtmp}, v{vtmp}, v{vtmp+i}")
    a(f"v_cmp_lt_u32 vcc, 15, v{vtmp}")
    a(f"s_cbranch_vccz {ok}")
    if sleep: a(f"s_sleep {sleep}")
    a(f"s_add_u32 s{cnt}, s{cnt}, 1\ns_cmp_lt_u32 s{cnt}, {SPIN}\ns_cbranch_scc1 {lp}")
    a(f"s_mov_b32 s{sTMO}, {SPIN}")
    a.label(ok)

def poll_local(a, kind, ep, va=1, vt=2, sleep=0):
    t = T + 20
    if kind == "wo":
        a(f"v_and_b32 v{va}, 31, v0\nv_lshlrev_b32 v{va}, 5, v{va}\ns_lshr_b32 s{t}, s{sR}, 3\ns_lshl_b32 s{t}, s{t}, 2\ns_add_u32 s{t}, s{t}, 16")
    elif kind == "gu":
        a(f"v_lshrrev_b32 v{va}, 2, v0\nv_lshlrev_b32 v{va}, 5, v{va}\nv_and_b32 v{vt}, 3, v0\nv_lshl_add_u32 v{va}, v{vt}, 2, v{va}")
        a(f"s_lshr_b32 s{t}, s{sR}, 4\ns_lshl_b32 s{t}, s{t}, 9")
    elif kind == "down":
        a(f"v_bfe_u32 v{va}, v0, 1, 4\nv_lshlrev_b32 v{va}, 5, v{va}\nv_and_b32 v{vt}, 1, v0\nv_lshl_add_u32 v{va}, v{vt}, 3, v{va}")
        a(f"s_lshr_b32 s{t}, s{sR}, 4\ns_lshl_b32 s{t}, s{t}, 9\ns_bfe_u32 s{t+1}, s{sR}, 0x10003\ns_lshl_b32 s{t+1}, s{t+1}, 2\ns_add_u32 s{t}, s{t}, s{t+1}")
    elif kind == "attn":
        a(f"""
        v_bfe_u32 v{va}, v0, 2, 1
        v_mul_u32_u24 v{va}, 19, v{va}
        s_mul_i32 s{t}, s{sR}, 20
        v_add_u32 v{va}, s{t}, v{va}
        v_lshrrev_b32 v{va}, 7, v{va}
        v_lshrrev_b32 v{vt}, 4, v0
        v_min_u32 v{vt}, 2, v{vt}
        v_mad_u32_u24 v{va}, v{vt}, 5, v{va}
        v_bfe_u32 v{vt}, v0, 3, 1
        v_lshl_add_u32 v{va}, v{vt}, 4, v{va}
        v_lshlrev_b32 v{va}, 5, v{va}
        v_and_b32 v{vt}, 3, v0
        v_lshl_add_u32 v{va}, v{vt}, 2, v{va}
        s_mov_b32 s{t}, 0
        """)
    a(f"s_lshl_b32 s{t+1}, s{sG}, 10\ns_add_u32 s{t}, s{t}, s{t+1}\ns_add_u32 s{t}, s{t}, {WS_FL}\ns_add_u32 s{t+1}, s{sEP}, {ep}")
    poll(a, va, vt, f"s{t}", f"s{t+1}", sleep=sleep)

sNR, sGO, sGW = 92, 94, 95
class Gate:
    def __init__(self, a, va, vt, fold=False, sleep=0):
        self.a, self.va, self.vt, self.fold, self.sleep = a, va, vt, fold, sleep
        self.ok = 0
    def load(self): self.a(f"buffer_load_dword v{self.vt}, v{self.va}, {WSR}, s{sGO} offen sc1")
    def upd(self):
        self.a(f"s_waitcnt vmcnt(0)\nv_subrev_u32 v{self.vt}, s{sGW}, v{self.vt}\nv_cmp_lt_u32 s[{sNR}:{sNR+1}], 15, v{self.vt}")
        if self.fold: self.a(f"s_or_b32 s{sNR}, s{sNR}, s{sNR+1}")
    def reset(self): self.a(f"s_mov_b32 s{sNR}, -1")
    def need(self, mask):
        a = self.a
        mask &= ~self.ok
        if not mask: return
        self.ok |= mask
        lp = a.uid("gt"); cnt = T + 22
        a(f"s_and_b32 s{cnt}, s{sNR}, {hex(mask)}\ns_cbranch_scc0 {lp}k\ns_mov_b32 s{cnt}, s{sTMO}")
        if C.pp and not self.fold:
            v2 = self.vt2
            a(f"buffer_load_dword v{v2}, v{self.va}, {WSR}, s{sGO} offen sc1\ns_sleep {C.pp}")
            a.label(lp)
            for x_, y_ in ((self.vt, v2), (v2, self.vt)):
                a(f"buffer_load_dword v{x_}, v{self.va}, {WSR}, s{sGO} offen sc1\ns_waitcnt vmcnt(1)\nv_subrev_u32 v{y_}, s{sGW}, v{y_}\nv_cmp_lt_u32 s[{sNR}:{sNR+1}], 15, v{y_}")
                a(f"s_and_b32 s{cnt+1}, s{sNR}, {hex(mask)}\ns_cbranch_scc0 {lp}k")
        else:
            a.label(lp)
            self.load(); self.upd()
            a(f"s_and_b32 s{cnt+1}, s{sNR}, {hex(mask)}\ns_cbranch_scc0 {lp}k")
            if self.sleep: a(f"s_sleep {self.sleep}")
        a(f"s_add_u32 s{cnt}, s{cnt}, 1\ns_cmp_lt_u32 s{cnt}, {SPIN}\ns_cbranch_scc1 {lp}\ns_mov_b32 s{sTMO}, {SPIN}")
        a.label(lp + "k")
def span(lo, hi, w, bits):
    m = 0
    for p in range(lo // w, hi // w + 1): m |= ((1 << bits) - 1) << (bits * p)
    return m
def gate_local(a, kind, ep, va, vt, sRotCt=None, sleep=0):
    t = T + 20
    if kind == "wo":
        a(f"v_and_b32 v{va}, 31, v0\nv_lshlrev_b32 v{va}, 5, v{va}\ns_lshr_b32 s{sGO}, s{sR}, 3\ns_lshl_b32 s{sGO}, s{sGO}, 2\ns_add_u32 s{sGO}, s{sGO}, 16")
    elif kind == "down":
        a(f"v_lshrrev_b32 v{va}, 1, v0\nv_add_u32 v{va}, s{sRotCt}, v{va}\nv_and_b32 v{va}, 15, v{va}\nv_lshlrev_b32 v{va}, 5, v{va}\nv_and_b32 v{vt}, 1, v0\nv_lshl_add_u32 v{va}, v{vt}, 3, v{va}")
        a(f"s_lshr_b32 s{sGO}, s{sR}, 4\ns_lshl_b32 s{sGO}, s{sGO}, 9\ns_bfe_u32 s{t+1}, s{sR}, 0x10003\ns_lshl_b32 s{t+1}, s{t+1}, 2\ns_add_u32 s{sGO}, s{sGO}, s{t+1}")
    elif kind == "gu":
        a(f"v_lshrrev_b32 v{va}, 1, v0\nv_add_u32 v{va}, s{sRotCt}, v{va}\nv_and_b32 v{va}, 7, v{va}\nv_lshlrev_b32 v{va}, 5, v{va}\nv_and_b32 v{vt}, 1, v0\nv_lshl_add_u32 v{va}, v{vt}, 2, v{va}")
        a(f"s_lshr_b32 s{sGO}, s{sR}, 4\ns_lshl_b32 s{sGO}, s{sGO}, 9\ns_bfe_u32 s{t+1}, s{sW}, 0x10001\ns_lshl_b32 s{t+1}, s{t+1}, 8\ns_add_u32 s{sGO}, s{sGO}, s{t+1}")
        a(f"s_and_b32 s{t+1}, s{sW}, 1\ns_lshl_b32 s{t+1}, s{t+1}, 3\ns_add_u32 s{sGO}, s{sGO}, s{t+1}")
    a(f"s_lshl_b32 s{t+1}, s{sG}, 10\ns_add_u32 s{sGO}, s{sGO}, s{t+1}\ns_add_u32 s{sGO}, s{sGO}, {WS_FL}\ns_add_u32 s{sGW}, s{sEP}, {ep}")
    g = Gate(a, va, vt, sleep=sleep); g.reset(); g.vt2 = 8 if kind != 'gu' else 3
    return g

def flag_setup(a, ep):
    t = T + 20
    a(f"s_lshl_b32 s{t}, s{sWG}, 3\ns_add_u32 s{t}, s{t}, s{sW}\ns_lshl_b32 s{t}, s{t}, 2\ns_add_u32 s{t}, s{t}, {WS_FL}\ns_add_u32 s{t+1}, s{sEP}, {ep}")
    a(f"v_mov_b32 v1, 0\nv_mov_b32 v2, s{t+1}")
def flag_store(a, SB, s=T+20):
    a(f"s_mov_b64 exec, 1\nbuffer_store_dword v2, v1, {WSR}, s{s} offen {SB}\ns_mov_b64 exec, -1")
def publish_local(a, ep, SB):
    flag_setup(a, ep)
    a("s_waitcnt vmcnt(0)")
    flag_store(a, SB)

def row_stats(a, vst, vmean, vrstd):
    for i in range(1, 8):
        a(f"v_add_f32 v{vst}, v{vst}, v{vst+2*i}\nv_add_f32 v{vst+1}, v{vst+1}, v{vst+2*i+1}")
    finish_stats(a, vst, vst + 1, vmean, vrstd)

def finish_stats(a, vs, vq, vmean, vrstd):
    a(f"v_mul_f32 v{vmean}, {f32(1.0/D)}, v{vs}")
    a(f"v_mul_f32 v{vq}, {f32(1.0/D)}, v{vq}")
    a(f"v_fma_f32 v{vq}, -v{vmean}, v{vmean}, v{vq}")
    a(f"v_max_f32 v{vq}, 0, v{vq}")
    a(f"v_add_f32 v{vq}, {f32(1e-5)}, v{vq}")
    a(f"v_rsq_f32 v{vrstd}, v{vq}")
    a("s_nop 0")

def lin_dma(a, vaddr, src_s, src_off, dst_s, dst_off, npieces, bits="", rsrc=WSR, tmp=T+19):
    i = 0
    while i < npieces:
        k = min(4, npieces - i)
        a(f"s_add_u32 m0, s{dst_s}, {dst_off + 1024*i}")
        a(f"s_add_u32 s{tmp}, s{src_s}, {src_off + 1024*i}")
        for j in range(k):
            a(f"buffer_load_dwordx4 v{vaddr}, {rsrc}, s{tmp} offen offset:{1024*j} {bits} lds")
        i += k
    return npieces


def states(x):
    return int(x.split()[1]) + 1 if x.startswith("s_nop") else 1

def gemm_unrolled(a, n, P, nr, reads, mfma, groups, inserts, fix, fix_from, epi, st_end, alt=None, after_e=(), late=()):
    seq = []
    def add(ms, fill, pre=()):
        k = 0
        for i, (kk, tl) in enumerate(ms):
            tgt = (len(fill) * (i + 1) + len(ms) - 1) // len(ms)
            seq.append([list(pre) if i == 0 else [], mfma(kk, tl), tl, list(fill[k:tgt])]); k = tgt
    step = lambda kk: [(kk, tl) for tl in range(P)]
    a("s_barrier")
    for x in reads(0, 0) + reads(0, 1): a(x)
    w = f"s_waitcnt lgkmcnt({nr})"
    for c in range(n - 1):
        add(step(0), reads(c, 2), [w])
        add(step(1), reads(c, 3), [w])
        add(step(2), [], [w])
        seq[-2][3] += ["s_waitcnt lgkmcnt(0)"]; seq[-1][3] += ["s_barrier"]
        add(step(3), reads(c + 1, 0) + reads(c + 1, 1))
    nmain = len(seq)
    for i0, ins in inserts.items():
        i = i0; ins = list(ins)
        while ins:
            room = 4 - sum(states(x) for x in seq[i][3]) - len(seq[i+1][0])
            if ins[0].startswith("s_mov_b32 exec") and room < 3: room = 0
            while room > 0 and ins and "s_barrier" not in seq[i][3]:
                x = ins.pop(0); seq[i][3].append(x); room -= states(x)
            i += 1

        end = fix_from if i0 < fix_from else nmain
        assert i <= end and all(not (i0 < k < i) for k in inserts if len(inserts[i0]) > 1), (i0, i)
        if any(x.startswith("ds_") for x in inserts[i0]): assert any("s_waitcnt lgkmcnt(0)" in seq[j][3] for j in range(i, end)), (i, end)
    todo = {tl: list(fix(tl)) for tl in range(P)}
    used = lambda g: sum(states(x) for x in seq[g][3]) + len(seq[g+1][0])
    g = fix_from + 2
    while any(todo.values()):
        assert g + 2 < nmain, "no room for fix"
        if used(g) < 5 and "s_barrier" not in seq[g][3]:
            for back in range(P - 2, 1, -1):
                tl = seq[g - back][2]
                if not todo[tl] or g - back < fix_from: continue
                have = sum(used(x) + 1 for x in range(g - back, g)) + sum(states(x) for x in seq[g][3])
                room = sum(max(0, 5 - used(x)) for x in range(g - back, g))
                if have + room < 12: continue
                for x in range(g - back, g):
                    k = min(5 - used(x), 12 - have)
                    if k > 0: seq[x][3].append(f"s_nop {k-1}"); have += k
                while used(g) < 5 and todo[tl]: seq[g][3].append(todo[tl].pop(0))
            if used(g + 1) < 1: seq[g + 1][3].append("s_nop 0")
        g += 1

    c = n - 1
    g0 = groups[0]
    seq[-1][3] += reads(c, 2)
    add([(kk, tl) for kk in (0, 1) for tl in g0], reads(c, 3), [w])
    add([(kk, tl) for kk in (2, 3) for tl in g0], list(late), ["s_waitcnt lgkmcnt(0)"])
    if after_e:
        seq[-2][3].append("s_barrier"); seq[-1][3] += list(after_e)
    else: seq[-len(g0)*2][3].append("s_barrier")
    seq[-1][3].append("s_nop 4")
    def flush():
        for pre, m, tl, post in seq:
            for x in pre: a(x)
            a(m)
            for x in post: a(x)
        del seq[:]
    def tail(epi):
        for gi in range(1, len(groups)):
            ms = [(kk, tl) for kk in range(4) for tl in groups[gi]]
            if gi == 1: add(ms[:1], ["s_nop 4"]); add(ms[1:], epi(gi - 1, False))
            else: add(ms, ["s_nop 0"] + epi(gi - 1, False))
        flush()
        stamp(a, st_end)
        a.nop(3)
        for x in epi(len(groups) - 1, True): a(x)
    if alt:
        cond, epi2, post1, post2 = alt
        l = a.uid("alt")
        seq[-1][3][-1:] = [cond, f"s_cbranch_scc1 {l}", "s_nop 2"]
        flush(); tail(epi); post1()
        a.label(l); a("s_nop 2"); tail(epi2); post2()
    else: tail(epi)

def gemm16(a, n, P, reads, mfma, groups, inserts, fix, fix_from, epi, st_end, fillmax=1, nlead=2, alt=None, after_e=(), late=()):
    seq = []
    def add(ms, fill, span, pre=()):
        k = 0
        for i, (u, tl, z) in enumerate(ms):
            tgt = min(len(fill), (len(fill) * (i + 1) + span - 1) // span)
            seq.append([list(pre) if i == 0 else [], mfma(u, tl, z), tl, list(fill[k:tgt])]); k = tgt
        assert k == len(fill)
    w0 = "s_waitcnt lgkmcnt(0)"
    a("s_barrier")
    for x in reads(0, 0): a(x)
    nr = len(reads(0, 0)); sp = min(nr, P - 6)
    for c in range(n - 1):
        add([(0, tl, c == 0) for tl in range(P)], reads(c, 1), sp, [w0])
        bl = C.bl if (P == 16 and c >= n - 1 - C.bln) else 0
        seq[-2][3] += [w0]
        if bl: add([(1, tl, False) for tl in range(bl)], [], 1)
        seq[-1][3] += ["s_barrier"]
        add([(1, tl, False) for tl in range(bl, P)], reads(c + 1, 0), min(sp, max(1, P - bl - 2)))
    nmain = len(seq)
    used = lambda g: sum(states(x) * (2 if x.startswith(("buffer", "v_perm", "v_rsq")) else 1) for x in seq[g][3]) + len(seq[g+1][0])
    for i0, ins in inserts.items():
        i = i0; ins = list(ins)
        while ins:
            while used(i) < fillmax and ins and "s_barrier" not in seq[i][3]: seq[i][3].append(ins.pop(0))
            i += 1
        end = fix_from if i0 < fix_from else nmain - 1
        assert i <= end and all(not (i0 < k < i) for k in inserts if len(inserts[i0]) > 1), (i0, i)
        if any(x.startswith("ds_") for x in inserts[i0]): assert any(w0 in seq[j][3] + seq[j][0] for j in range(i, end)), (i0, i)
    todo = {tl: list(fix(tl)) for tl in range(P)}
    g = fix_from
    while any(todo.values()):
        assert g + 4 < nmain
        for back in sorted(range(P - 3, 3, -1), key=lambda b_: -len(todo[seq[g - b_][2]])):
            if sum(1 + sum(states(x) for x in seq[j][3]) for j in range(g - back, g)) < 8: continue
            tl = seq[g - back][2]
            while used(g) < fillmax and todo[tl] and "s_barrier" not in seq[g][3]: seq[g][3].append(todo[tl].pop(0))
        g += 1
    c = n - 1
    lead = sum(groups[:nlead], ())
    add([(0, tl, False) for tl in lead], reads(c, 1) + list(late), min(len(lead), nr), [w0])
    add([(1, tl, False) for tl in groups[0]], ["s_barrier"] + list(after_e), len(groups[0]) if after_e else 1, [w0])
    rest = [(1, tl, False) for gi in range(1, nlead) for tl in groups[gi]]
    for gi in range(nlead, len(groups)): rest += [(u, tl, False) for u in range(2) for tl in groups[gi]]
    def flush():
        for k_, (pre, m, tl, post) in enumerate(seq):
            for x in pre: a(x)
            a(m)
            for x in post: a(x)
            if C.x_slow and P == 24 and k_ % C.x_slow == 0: a("s_nop 7")
        del seq[:]
    def tail(epi):
        add(rest[:2], ["s_nop 1", "s_nop 1"], 2)
        nleft = len(rest) - 2
        e = epi(0, False) + epi(1, False)
        add(rest[2:], e[:C.e16*nleft], nleft)
        flush()
        for x in e[C.e16*nleft:]: a(x)
        stamp(a, st_end)
        for gi in range(2, len(groups)):
            for x in epi(gi, True): a(x)
    if alt:
        cond, epi2, post1, post2 = alt
        l = a.uid("alt")
        seq[-1][3] += [cond, f"s_cbranch_scc1 {l}"]
        flush(); tail(epi); post1()
        a.label(l); tail(epi2); post2()
    else: tail(epi)

class Src:
    def __init__(self, sB, sB1, sThr, stride): self.__dict__.update(locals())
    def setup(self, a, sRot, n, tmp):
        a(f"s_mul_i32 s{tmp}, s{sRot}, {self.stride}\ns_add_u32 s{self.sB}, s{self.sB}, s{tmp}\ns_sub_u32 s{self.sB1}, s{self.sB}, {n*self.stride}")
    def sel(self, a, c, dst):
        if getattr(self, "norot", False):
            a(f"s_mov_b32 s{dst}, s{self.sB}"); return
        a(f"s_cmp_gt_u32 s{self.sThr}, {c}\ns_cselect_b32 s{dst}, s{self.sB}, s{self.sB1}")

class Phase:
    def __init__(self, name, n, npa, npw, emitA, emitW, regA, regW, pollfn, budget, lag=1, after_bar=None, dbg=False, early=99):
        self.__dict__.update(locals())

class Loader:
    def __init__(self, a):
        self.a = a; self.q = []; self.live = {}; self.waitfn = None; self.total = 0
    def free(self, reg, key):
        return key in self.live or all(reg[1] <= lo or hi <= reg[0] for lo, hi in self.live.values())
    def can(self, ph, kind, c):
        return self.free((ph.regA if kind == "A" else ph.regW)(c), (ph.name, kind, c))
    def issue(self, ph, kind, c, i0, k):
        assert self.can(ph, kind, c)
        self.live[(ph.name, kind, c)] = (ph.regA if kind == "A" else ph.regW)(c)
        (ph.emitA if kind == "A" else ph.emitW)(c, i0, k)
        self.q += [(ph.name, kind, c)] * k; self.total += k
    def release(self, ph, c):
        for k in "AW": self.live.pop((ph.name, k, c), None)
    def wait(self, tags):
        last = -1
        for i, t in enumerate(self.q):
            if t in tags: last = i
        if last >= 0:
            self.q = self.q[last+1:]
            n7 = len(self.q); n = sum(1 for t in self.q if t[0] != "x7")
            assert n7 < 64
            if n7 != n:
                l = self.a.uid("w7")
                self.a(f"s_waitcnt vmcnt({n7})\ns_cmp_eq_u32 s{sW}, 7\ns_cbranch_scc1 {l}\ns_waitcnt vmcnt({n})")
                self.a.label(l)
            else: self.a(f"s_waitcnt vmcnt({n})")
    def pre(self, ph, pw, cnt, thr=0):
        done = 0
        while pw < ph.n * ph.npw and done < cnt and self.can(ph, "W", pw // ph.npw):
            k = min(4, ph.npw - pw % ph.npw, cnt - done)
            if thr:
                k = 1
                if len(self.q) >= thr:
                    self.a(f"s_waitcnt vmcnt({thr-1})"); self.q = self.q[len(self.q) - (thr - 1):]
            self.issue(ph, "W", pw // ph.npw, pw % ph.npw, k); pw += k; done += k
        return pw
    def run(self, ph, nxt, pw=0, after_poll=None, tail=None, waitfn=None, lastexit=None):
        a = self.a; n = ph.n
        pa = 0; pn = 0
        if ph.pollfn: ph.pollfn()
        if after_poll: after_poll()
        for c in range(1 if getattr(ph, "skip0", False) else 0, n):
            done = 0
            if lastexit and pw == n * ph.npw:
                assert all(t_[0] == ph.name for t_ in self.q)
                lastexit([len(self.q) - 1 - max([-1] + [i_ for i_, t_ in enumerate(self.q) if t_[2] <= cc]) for cc in range(c, n)]); lastexit = None
            while True:
                needed = pa < (c + 1) * ph.npa or pw < (c + 1) * ph.npw
                if not needed:
                    beyond = 0
                    for t in reversed(self.q):
                        if t[0] == ph.name and t[2] <= c: break
                        beyond += t[0] != "x7"
                    if beyond >= getattr(ph, 'look', C.look) and (done >= ph.budget or c == 0): break
                ca = pa // ph.npa if ph.npa else n; cw = pw // ph.npw
                okA = ca < n and self.can(ph, "A", ca)
                okW = cw < n and self.can(ph, "W", cw)
                if okW and (cw <= ca or not okA):
                    k = ph.npw - pw % ph.npw
                    if not needed: k = min(C.grp, k)
                    self.issue(ph, "W", cw, pw % ph.npw, k); pw += k
                elif okA:
                    k = ph.npa - pa % ph.npa
                    if not needed: k = min(C.grp, k)
                    self.issue(ph, "A", ca, pa % ph.npa, k); pa += k
                elif nxt and not lastexit and ca == n and cw == n and pn < nxt.early and self.can(nxt, "W", pn // nxt.npw):
                    k = min(2, nxt.npw - pn % nxt.npw)
                    self.issue(nxt, "W", pn // nxt.npw, pn % nxt.npw, k); pn += k
                else:
                    assert not needed
                    break
                done += k
            if tail and pa == n * ph.npa and pw == n * ph.npw:
                tail(); tail = None; self.waitfn = waitfn
            if ph.after_bar and c > 0: ph.after_bar(c - 1)
            self.wait({(ph.name, "A", c), (ph.name, "W", c)})
            if ph.dbg and C.stamp: a(f"s_memtime s[10:11]\ns_waitcnt lgkmcnt(0)\nv_writelane_b32 v254, s10, {2*c}")
            a("s_barrier")
            if ph.dbg and C.stamp: a(f"s_memtime s[10:11]\ns_waitcnt lgkmcnt(0)\nv_writelane_b32 v254, s10, {2*c+1}")
            self.release(ph, c - ph.lag)
        if ph.after_bar: ph.after_bar(n - 1)
        if nxt: pn = self.pre(nxt, pn, min(ph.budget, max(0, nxt.early - pn)))
        return pn
    def end(self, ph):
        self.a("s_barrier")
        for c in range(ph.n): self.release(ph, c)

Q1_TAB = 98304
Q1_NON = Q1_TAB + 2048
Q1_CS = Q1_NON + 64
WB = 65536
def guW(c): return WB + ((3 - c) % 4) * 24576
def dnW(c): return ((c + 2) % 8) * 20480
def qkW(c): return WB + ((c + C.qk_s0) % 6) * 16384

PSCR = 131072
PV = 180
def projjob_issue(a, sJob, sScr, t, loads=True):
    a(f"""
    s_and_b32 s{t+2}, s{sJob}, 7
    s_lshr_b32 s{t+3}, s{sJob}, 3
    s_cmp_lt_u32 s{t+3}, 20
    s_cselect_b32 s{R_T}, s{P_WO}, s{P_WD}
    s_cselect_b32 s{R_T+1}, s{P_WO+1}, s{P_WD+1}
    s_mov_b32 s{R_T+2}, {F*D*2}
    s_cselect_b32 s{R_T+2}, {D*D*2}, s{R_T+2}
    s_mov_b32 s{R_T+3}, 0x20000
    s_cselect_b32 s{t+4}, 0, 20
    s_cselect_b32 s{t+5}, 20, 48
    s_mov_b32 s{t+6}, {WS_WTD}
    s_cselect_b32 s{t+6}, {WS_WTO}, s{t+6}
    s_sub_u32 s{t+3}, s{t+3}, s{t+4}
    s_mul_i32 s{t+5}, s{t+5}, s{t+2}
    s_add_u32 s{t+5}, s{t+5}, s{t+3}
    s_mul_i32 s{t+5}, s{t+5}, 5120
    s_add_u32 s{t+6}, s{t+6}, s{t+5}
    s_mul_i32 s{t+3}, s{t+3}, {32*1280}
    s_mul_i32 s{t+2}, s{t+2}, 160
    s_add_u32 s{t+3}, s{t+3}, s{t+2}
    s_movk_i32 s{t+4}, 6554
    """)
    x, y = PV, PV + 1
    for i in range(5 if loads else 0):
        a(f"""
        v_add_u32 v{x}, {64*i}, v0
        v_mul_u32_u24 v{y}, s{t+4}, v{x}
        v_lshrrev_b32 v{y}, 16, v{y}
        v_mad_i32_i24 v{x}, v{y}, -10, v{x}
        v_mul_u32_u24 v{y}, 1280, v{y}
        v_lshl_add_u32 v{x}, v{x}, 4, v{y}
        s_add_u32 m0, s{sScr}, {1024*i}
        s_nop 0
        buffer_load_dwordx4 v{x}, {R(R_T)}, s{t+3} offen lds
        """)
def projjob_finish(a, sScr, t):
    x, y, z, d0 = PV, PV + 1, PV + 2, PV + 4
    a(f"""
    v_lshrrev_b32 v{x}, 4, v0
    v_bfe_u32 v{y}, v0, 2, 2
    v_lshl_add_u32 v{x}, v{x}, 3, v{y}
    v_mul_u32_u24 v{x}, 160, v{x}
    v_add_u32 v{x}, s{sScr}, v{x}
    v_and_b32 v{y}, 3, v0
    v_lshl_add_u32 v{z}, v{y}, 3, v{x}
    v_lshl_add_u32 v{y}, v{y}, 4, v{x}
    """)
    for jn in range(5):
        for j in range(2):
            d = d0 + 4*jn + 2*j
            if jn < 4: a(f"ds_read_b64_tr_b16 v[{d}:{d+1}], v{y} offset:{640*j + 64*(jn>>1) + 8*(jn&1)}")
            else: a(f"ds_read_b64_tr_b16 v[{d}:{d+1}], v{z} offset:{640*j + 128}")
    a(f"s_add_u32 s{t+5}, s{t+6}, 4096\ns_waitcnt lgkmcnt(0)")
    for jn in range(5):
        d = d0 + 4*jn
        a(f"buffer_store_dwordx4 v[{d}:{d+3}], v5, {WSR}, s{t+6 if jn < 4 else t+5} offen offset:{1024*(jn&3)} sc1")

def gujob_issue(a, sJob, t, loads=True):
    x, y = PV, PV + 1
    a(f"""
    s_mul_i32 s{t+2}, s{sJob}, 2731
    s_lshr_b32 s{t+2}, s{t+2}, 16
    s_mul_i32 s{t+3}, s{t+2}, 24
    s_sub_u32 s{t+3}, s{sJob}, s{t+3}
    s_mul_i32 s{t+4}, s{t+2}, {64*F*2}
    s_lshl_b32 s{t+5}, s{t+3}, 7
    s_add_u32 s{t+4}, s{t+4}, s{t+5}
    v_lshrrev_b32 v{x}, 3, v0
    v_mul_u32_u24 v{x}, {F*2}, v{x}
    v_and_b32 v{y}, 7, v0
    v_lshl_add_u32 v{x}, v{y}, 4, v{x}
    """)
    a(f"""
    s_and_b32 s{t+1}, s{sW}, 1
    s_cselect_b32 s{R_T}, s{P_WU}, s{P_WG}
    s_cselect_b32 s{R_T+1}, s{P_WU+1}, s{P_WG+1}
    s_mov_b32 s{R_T+2}, {F*D*2}
    s_mov_b32 s{R_T+3}, 0x20000
    s_lshl_b32 s{t+6}, s{t+1}, 13
    """)
    for i in range(8):
        a(f"s_add_u32 m0, s{t+6}, {PSCR + 1024*i}\ns_add_u32 s{t+5}, s{t+4}, {i*8*F*2}")
        a(f"buffer_load_dwordx4 v{x}, {R(R_T)}, s{t+5} offen lds")
def gujob_finish(a, t):
    x, y, z = PV, PV + 1, PV + 2
    ONE, FRG, CS = PV + 4, PV + 8, PV + 40
    a(f"""
    v_lshrrev_b32 v{z}, 4, v0
    v_bfe_u32 v{x}, v0, 2, 2
    v_lshl_add_u32 v{x}, v{z}, 3, v{x}
    v_lshlrev_b32 v{x}, 7, v{x}
    v_and_b32 v{y}, 3, v0
    v_lshl_add_u32 v{x}, v{y}, 3, v{x}
    s_add_u32 s{t+6}, s{t+6}, {PSCR}
    v_add_u32 v{x}, s{t+6}, v{x}
    v_lshlrev_b32 v{z}, 4, v{z}
    """)
    for tt in range(4):
        for u in range(2):
            for j in range(2):
                d = FRG + 8*tt + 4*u + 2*j
                a(f"ds_read_b64_tr_b16 v[{d}:{d+1}], v{x} offset:{128*(32*u+4*j) + 32*tt}")
    a(f"""
    s_mul_i32 s{t+6}, s{t+2}, 12288
    s_lshl_b32 s{t+5}, s{t+3}, 9
    s_add_u32 s{t+6}, s{t+6}, s{t+5}
    s_lshl_b32 s{t+5}, s{t+1}, 6
    s_add_u32 s{t+6}, s{t+6}, s{t+5}
    s_add_u32 s{t+6}, s{t+6}, {WS_CSP}
    """)
    for i in range(4): a(f"v_mov_b32 v{ONE+i}, 0x3f803f80")
    a("s_nop 0\ns_waitcnt lgkmcnt(0)")
    for u in range(2):
        for tt in range(4):
            a(f"v_mfma_f32_16x16x32_bf16 {v(CS+4*tt,4)}, {v(FRG+8*tt+4*u,4)}, {v(ONE,4)}, {v(CS+4*tt,4) if u else 0}")
    for tt in range(4):
        a(f"""
        s_lshl_b32 s{t+4}, s{t+3}, 2
        s_add_u32 s{t+4}, s{t+4}, {tt}
        s_mul_i32 s{t+5}, s{t+4}, 43
        s_lshr_b32 s{t+5}, s{t+5}, 8
        s_mul_i32 s{t+5}, s{t+5}, 228
        s_lshl_b32 s{t+4}, s{t+4}, 1
        s_add_u32 s{t+4}, s{t+4}, s{t+5}
        s_mul_i32 s{t+5}, s{t+2}, 24
        s_add_u32 s{t+4}, s{t+4}, s{t+5}
        s_add_u32 s{t+4}, s{t+4}, s{t+1}
        s_lshl_b32 s{t+4}, s{t+4}, 10
        s_add_u32 s{t+4}, s{t+4}, {WS_WTG}
        s_add_u32 s{t+5}, s{t+4}, 12288
        """)
        for u in range(2):
            d = FRG + 8*tt + 4*u
            a(f"buffer_store_dwordx4 v[{d}:{d+3}], v5, {WSR}, s{t+4+u} offen sc1")
    a("s_mov_b32 exec_lo, 0x10001\ns_mov_b32 exec_hi, 0x10001")
    for tt in range(4):
        a(f"buffer_store_dwordx4 v[{CS+4*tt}:{CS+4*tt+3}], v{z}, {WSR}, s{t+6} offen offset:{128*tt} sc1")
    a("s_mov_b64 exec, -1")

def prep(a, stage):
    tj = 84; sJob, sScr = tj, tj + 1
    lg = a.uid("pg"); le = a.uid("pe")
    if stage == 0:
        a(f"""
        s_sub_u32 s{sScr}, s{sW}, 1
        s_lshl_b32 s{sJob}, s{sScr}, 8
        s_add_u32 s{sJob}, s{sJob}, s{sWG}
        s_add_u32 s{sJob}, s{sJob}, 160
        s_mul_i32 s{sScr}, s{sScr}, 5120
        s_add_u32 s{sScr}, s{sScr}, {PSCR + 16384}
        """)
    a(f"s_cmp_eq_u32 s{sW}, 0\ns_cbranch_scc1 {lg}\ns_cmp_eq_u32 s{sW}, 3\ns_cbranch_scc1 {lg}\ns_cmp_ge_u32 s{sJob}, 544\ns_cbranch_scc1 {le}")
    projjob_issue(a, sJob, sScr, tj) if stage == 0 else projjob_finish(a, sScr, tj)
    a(f"s_branch {le}")
    a.label(lg)
    a(f"s_cmp_ge_u32 s{sWG}, 240\ns_cbranch_scc1 {le}")
    gujob_issue(a, sWG, tj) if stage == 0 else gujob_finish(a, tj)
    a.label(le)

def xstat_fin(a):
    t = T + 16
    a(f"s_mov_b32 s{t}, 0xffff0000\nv_mov_b64 v[232:233], 0\ns_waitcnt vmcnt(0)")
    for i in range(12):
        a(f"v_lshlrev_b32 v234, 16, v{220+i}\nv_and_b32 v235, s{t}, v{220+i}\nv_add_f32 v232, v232, v234\nv_fmac_f32 v233, v234, v234\nv_add_f32 v232, v232, v235\nv_fmac_f32 v233, v235, v235")
    for mod in ("quad_perm:[1,0,3,2]", "quad_perm:[2,3,0,1]"):
        a(f"s_nop 1\nv_add_f32_dpp v232, v232, v232 {mod} row_mask:0xf bank_mask:0xf\nv_add_f32_dpp v233, v233, v233 {mod} row_mask:0xf bank_mask:0xf")
    a(f"""
    v_bfe_u32 v234, v0, 3, 2
    v_lshlrev_b32 v234, 10, v234
    v_bfe_u32 v235, v0, 2, 1
    v_lshl_add_u32 v234, v235, 3, v234
    v_lshrrev_b32 v235, 5, v0
    v_lshl_add_u32 v234, v235, 4, v234
    s_lshr_b32 s{t}, s{sWG}, 3
    s_lshl_b32 s{t}, s{t}, 12
    s_and_b32 s{t+1}, s{sWG}, 7
    s_lshl_b32 s{t+1}, s{t+1}, 2
    s_add_u32 s{t+1}, s{t+1}, s{sW}
    s_lshl_b32 s{t+1}, s{t+1}, 5
    s_add_u32 s{t}, s{t}, s{t+1}
    s_add_u32 s{t}, s{t}, {WS_ST0}
    s_mov_b32 exec_lo, 0x11111111
    s_mov_b32 exec_hi, 0x11111111
    buffer_store_dwordx2 v[232:233], v234, {WSR}, s{t} offen sc1
    s_mov_b64 exec, -1
    """)

def nonce_put(a):
    t = T + 8
    a(f"""
    s_memrealtime s[{t}:{t+1}]
    v_mov_b32 v1, 0
    s_waitcnt lgkmcnt(0)
    s_or_b32 s{t+2}, s{t}, 0x80000000
    v_mov_b32 v2, s{t+2}
    s_mov_b64 exec, 1
    global_store_dword v1, v2, s[{P_DBG}:{P_DBG+1}] sc1
    s_mov_b64 exec, -1
    """)
def flags_zero(a):
    t = T + 16
    a(f"""
    s_lshl_b32 s{t}, s{sWG}, 5
    s_add_u32 s{t}, s{t}, {WS_FL}
    s_lshl_b32 s{t+1}, s{sWG}, 7
    s_add_u32 s{t+1}, s{t+1}, {L_FG}
    s_add_u32 s{t+2}, s{t+1}, {LSTRIDE}
    v_lshlrev_b32 v236, 2, v0
    v_mov_b32 v237, 0
    s_mov_b64 exec, 0xff
    buffer_store_dword v237, v236, {WSR}, s{t} offen sc1
    s_mov_b64 exec, 0x7ff
    buffer_store_dword v237, v236, {WSR}, s{t+1} offen sc1
    buffer_store_dword v237, v236, {WSR}, s{t+2} offen sc1
    s_mov_b64 exec, -1
    """)

def nonce_issue(a, v2, v3):
    a(f"v_mov_b32 v{v3}, 0\nglobal_load_dword v{v2}, v{v3}, s[{P_DBG}:{P_DBG+1}] sc1")
def nonce_get(a, v1, v2, v3, cnt=0):
    t = T + 14
    lp = a.uid("non"); ok = a.uid("nonok")
    a(f"s_mov_b32 s{t+6}, 0\nv_mov_b32 v{v3}, 0\ns_lshl_b32 s{t+4}, s{sWG}, 7\ns_add_u32 s{t+4}, s{t+4}, {L_FG}\ns_waitcnt vmcnt({cnt})\ns_branch {lp}c")
    a.label(lp)
    a(f"global_load_dword v{v2}, v{v3}, s[{P_DBG}:{P_DBG+1}] sc1\ns_waitcnt vmcnt(0)")
    a.label(lp + "c")
    a(f"""
    v_cmp_eq_u32 vcc, 0, v{v2}
    s_cbranch_vccz {ok}
    s_sleep 4
    s_add_u32 s{t+6}, s{t+6}, 1
    s_cmp_lt_u32 s{t+6}, {SPIN}
    s_cbranch_scc1 {lp}
    s_mov_b32 s{sTMO}, {SPIN}
    """)
    a.label(ok)
    a(f"""
    v_readfirstlane_b32 s{sEP}, v{v2}
    s_getreg_b32 s{t+6}, hwreg(HW_REG_XCC_ID, 0, 4)
    v_add_u32 v{v2}, s{t+6}, v{v2}
    s_mov_b64 exec, 1
    buffer_store_dword v{v2}, v{v3}, {WSR}, s{t+4} offen offset:32 sc1
    s_mov_b64 exec, -1
    s_waitcnt lgkmcnt(0)
    """)

def census(a, va, vt, issue, cnt=0):
    t = T + 20
    a(f"""
    v_and_b32 v{va}, 31, v0
    v_lshlrev_b32 v{va}, 7, v{va}
    s_lshl_b32 s{t}, s{sG}, 12
    s_add_u32 s{t}, s{t}, {L_FG + 32}
    """)
    if issue:
        a(f"buffer_load_dword v{vt}, v{va}, {WSR}, s{t} offen sc1")
        return
    poll(a, va, vt, f"s{t}", f"s{sEP}", sleep=4, pre=cnt)
    a(f"""
    s_getreg_b32 s{t}, hwreg(HW_REG_XCC_ID, 0, 4)
    v_cmp_ne_u32 vcc, s{t}, v{vt}
    s_cmp_eq_u64 vcc, 0
    s_cselect_b32 s{t}, 1, 0
    v_mov_b32 v{va}, {Q1_NON}
    v_mov_b32 v{vt}, s{t}
    ds_write_b32 v{va}, v{vt} offset:4
    v_mov_b32 v{vt}, s{sEP}
    ds_write_b32 v{va}, v{vt}
    s_waitcnt lgkmcnt(0)
    """)

sMODE = 14 - 14 + 98
def read_nonce_mode(a):
    a(f"v_mov_b32 v1, {Q1_NON}\nds_read_b64 v[2:3], v1\ns_waitcnt lgkmcnt(0)\nv_readfirstlane_b32 s{sEP}, v2\nv_readfirstlane_b32 s{sMODE}, v3")

def qkv_ids(a, t):
    a(f"s_lshr_b32 s{t}, s{sWG}, 4\ns_and_b32 s{t+1}, s{sR}, 15")

def qkv_compute(a, first, SB):
    t = T
    sRT, sCT, sTY, sC0 = t, t+1, t+2, t+3
    LQ = 0 if first else LSTRIDE
    sWM, sWN = t+5, t+6
    a(f"""
    s_mul_i32 s{sTY}, s{sCT}, 52
    s_lshr_b32 s{sTY}, s{sTY}, 8
    s_mul_i32 s{sC0}, s{sTY}, 5
    s_sub_u32 s{sC0}, s{sCT}, s{sC0}
    s_lshl_b32 s{sC0}, s{sC0}, 7
    s_and_b32 s{sWM}, s{sW}, 1
    s_lshr_b32 s{sWN}, s{sW}, 1
    v_lshrrev_b32 v14, 4, v0
    v_and_b32 v15, 15, v0
    """)
    FR = 16; VST = 80; VCS = 96; VM = 96; VR = 112; ACC = 128; VCV = 192; NON = 200; AD = 202; MS = 240; TMP = 212
    vq, vt = AD + 8, AD + 9
    sCS = t+15
    a(f"s_lshl_b32 s{sCS}, s{sWG}, 9\ns_lshl_b32 s{t+7}, s{sWN}, 8\ns_add_u32 s{sCS}, s{sCS}, s{t+7}\ns_add_u32 s{sCS}, s{sCS}, {WS_CSQ}")
    a(f"v_lshlrev_b32 v{vq}, 4, v14\nv_lshlrev_b32 v{vt}, 2, v15\ns_lshl_b32 s{t+7}, s{sWM}, 13")
    if first:
        a(f"""
        v_lshlrev_b32 v1, 7, v15
        v_add_u32 v1, s{t+7}, v1
        v_bfe_u32 v12, v0, 1, 3
        v_xor_b32 v12, v12, v14
        v_lshl_add_u32 v2, v12, 4, v1
        v_xor_b32 v12, 4, v12
        v_lshl_add_u32 v3, v12, 4, v1
        """)
    else:
        a(f"v_lshlrev_b32 v2, 4, v15\nv_lshl_add_u32 v2, v14, 9, v2\nv_add_u32 v2, s{t+7}, v2")
    a(f"""
    v_bfe_u32 v12, v0, 2, 2
    v_lshl_add_u32 v13, v14, 3, v12
    v_lshlrev_b32 v13, 8, v13
    v_and_b32 v1, 3, v0
    v_lshl_add_u32 v13, v1, 3, v13
    v_add_u32 v13, {WB}, v13
    v_bfe_u32 v12, v0, 2, 3
    s_lshl_b32 s{t+7}, s{sWN}, 2
    v_xor_b32 v12, s{t+7}, v12
    """)
    for nt in range(4): a(f"v_xor_b32 v1, {nt}, v12\nv_lshl_add_u32 v{4+nt}, v1, 5, v13\nv_add_u32 v{8+nt}, 49152, v{4+nt}")
    assert Q1_TAB == qkW(4)
    sC, sMk, sDst, sD1 = t+9, t+11, t+12, 96
    qloc = C.qloc and SB == '' and not first
    vlab = a.uid("qkv_v"); fin = a.uid("qkv_fin")
    a(f"s_cmp_eq_u32 s{sTY}, 2\ns_cbranch_scc1 {vlab}")
    def rd(c, u):
        b = FR + 32*u; o = qkW(c) - WB
        if first: r = [f"ds_read_b128 v[{b+4*tt}:{b+4*tt+3}], v{2+u} offset:{(c % 4)*16384+2048*tt}" for tt in range(4)]
        else: r = [f"ds_read_b128 v[{b+4*tt}:{b+4*tt+3}], v2 offset:{(c % 4)*16384+4096*(tt >> 1)+256*(tt & 1)+2048*u}" for tt in range(4)]
        for nt in range(4):
            for j in range(2):
                d = b + 16 + 4*nt + 2*j
                r.append(f"ds_read_b64_tr_b16 v[{d}:{d+1}], v{4 + 4*(o // 49152) + nt} offset:{o % 49152 + 8192*u + 1024*j}")
        return r
    def mainloop(vtype, epi, alt=None):
        if first: xstat_fin(a)
        stamp(a, 1 if first else 18)
        def mf(u, tl, z):
            b = FR + 32*u; c = ACC + 4*tl
            if vtype: A, B = v(b + 4*(tl >> 2), 4), v(b + 16 + 4*(tl & 3), 4)
            else: A, B = v(b + 16 + 4*(tl >> 2), 4), v(b + 4*(tl & 3), 4)
            return f"v_mfma_f32_16x16x32_bf16 {v(c,4)}, {A}, {B}, {0 if z else v(c,4)}"
        neg = [f"v_sub_f32 v{VCV+2*i}, 0, v{VCV+2*i}" for i in range(4)]
        if vtype: fix = lambda tl: [f"v_fmac_f32 v{ACC+4*tl+i}, v{VCV+2*(tl&3)}, v{VM+4*(tl>>2)+i}" for i in range(4)]
        else: fix = lambda tl: [f"v_fmac_f32 v{ACC+4*tl+i}, v{TMP+2*(tl&3)}, v{VCS+4*(tl>>2)+i}" for i in range(4)]
        groups = [tuple(range(4*j, 4*j + 4)) for j in range(4)]
        a(f"s_cmp_eq_u32 s{sTY}, 0\ns_cselect_b32 s{t+10}, {f32(QSCALE)}, 1.0")
        if not first:
            a(f"""
            s_lshl_b32 s{sC}, s{sRT}, 1
            s_add_u32 s{sC}, s{sC}, s{sWM}
            s_lshl_b32 s{sC}, s{sC}, 12
            s_add_u32 s{sC}, s{sC}, {L_ST2}
            v_lshlrev_b32 v3, 4, v0
            """)
            ins = {}
            for i in range(4): ins[58 + i + (12 if i > 1 else 0)] = [f"buffer_load_dwordx4 v[{VST+4*i}:{VST+4*i+3}], v3, {WSR}, s{sC} offen offset:{1024*i} sc1"]
            b = Asm(); b("s_waitcnt vmcnt(0)"); row_stats(b, VST, VST + 2, VST + 3)
            if vtype:
                b("\n".join(neg))
                a(f"s_lshl_b32 s{t+7}, s{sW}, 9\ns_add_u32 s{t+7}, s{t+7}, {qkW(4)}\nv_lshlrev_b32 v12, 2, v0\nv_add_u32 v12, s{t+7}, v12\nv_add_u32 v13, s{t+7}, v{vq}")
                ins[146] = [f"ds_write_b32 v12, v{VST+2}", f"ds_write_b32 v12, v{VST+3} offset:256"] + \
                    [f"ds_read_b128 v[{R_+4*tt}:{R_+4*tt+3}], v13 offset:{o_+64*tt}" for R_, o_ in ((VM, 0), (VR, 256)) for tt in range(4)]
                ff = 178
            else:
                for src, d, op in ((VST + 2, TMP, "v_sub_f32 v{0}, 0, v{1}"), (VST + 3, MS, "v_mul_f32 v{0}, s%d, v{1}" % (t + 10))):
                    b(op.format(d, src) + "\n" + op.format(d + 2, src) + f"\ns_nop 1\nv_permlane16_swap_b32 v{d}, v{d+2}\nv_mov_b32 v{d+4}, v{d}\nv_mov_b32 v{d+6}, v{d+2}\ns_nop 1")
                    b(f"v_permlane32_swap_b32 v{d}, v{d+4}\nv_permlane32_swap_b32 v{d+2}, v{d+6}")
                ff = 178
            ins = dict(sorted({**ins, 108: b.lines}.items()))
            gemm16(a, 10, 16, rd, mf, groups, ins, fix, ff, epi, 19, 2, 3, alt)
            return
        a(f"s_lshl_b32 s{t+7}, s{sWM}, 8\ns_add_u32 s{t+7}, s{t+7}, {Q1_TAB}\nv_add_u32 v13, s{t+7}, v{vq if vtype else vt}")
        if vtype:
            sr = [f"ds_read_b128 v[{R_+4*tt}:{R_+4*tt+3}], v13 offset:{o_+64*tt}" for R_, o_ in ((VM, 0), (VR, 512)) for tt in range(4)]
            sf = neg
        else:
            sr = [f"ds_read_b32 v{R_+2*tt}, v13 offset:{o_+64*tt}" for R_, o_ in ((TMP, 0), (MS, 512)) for tt in range(4)]
            sf = [x for tt in range(4) for x in (f"v_sub_f32 v{TMP+2*tt}, 0, v{TMP+2*tt}", f"v_mul_f32 v{MS+2*tt}, s{t+10}, v{MS+2*tt}")]
        a(f"s_lshl_b32 s{t+7}, s{sWN}, 8\ns_add_u32 s{t+7}, s{t+7}, {Q1_CS}\nv_add_u32 v12, s{t+7}, v{vt if vtype else vq}\nv_mov_b32 v1, {Q1_NON}")
        ae = [f"ds_read_b64 v[{NON}:{NON+1}], v1"]
        ae += [f"ds_read_b32 v{VCV+2*nt}, v12 offset:{64*nt}" if vtype else f"ds_read_b128 v[{VCS+4*nt}:{VCS+4*nt+3}], v12 offset:{64*nt}" for nt in range(4)]
        def epi1(g, pk):
            r = []
            if g == 0: r = ["s_waitcnt lgkmcnt(0)", f"v_readfirstlane_b32 s{sEP}, v{NON}", f"v_readfirstlane_b32 s{sMODE}, v{NON+1}"] + sf
            return r + sum((fix(tl) for tl in groups[g]), []) + epi(g, pk)
        assert C.c_f < 9
        gemm16(a, 10, 16, rd, mf, groups, {40: ["s_waitcnt vmcnt(0)"]}, lambda tl: [], 0, epi1, 2, 2, 3, None, ae, sr)
    if not first:
        for nt in range(4): a(f"buffer_load_dwordx4 v[{VCS+4*nt}:{VCS+4*nt+3}], v{vq}, {WSR}, s{sCS} offen offset:{64*nt} sc1")
    a(f"""
    s_mul_i32 s{sDst}, s{sTY}, {ACT}
    s_lshl_b32 s{t+8}, s{sRT}, 2
    s_lshl_b32 s{t+7}, s{sWM}, 1
    s_add_u32 s{t+8}, s{t+8}, s{t+7}
    s_mul_i32 s{t+8}, s{t+8}, 1280
    s_add_u32 s{sDst}, s{sDst}, s{t+8}
    s_add_u32 s{sDst}, s{sDst}, {LQ}
    s_lshr_b32 s{t+8}, s{sC0}, 3
    s_lshl_b32 s{t+7}, s{sWN}, 3
    s_add_u32 s{t+8}, s{t+8}, s{t+7}
    v_lshrrev_b32 v80, 5, v0
    v_add_u32 v80, s{t+8}, v80
    v_and_b32 v87, 31, v0
    s_mov_b32 s{t+13}, {HEADB}
    v_mov_b32 v86, 0x7fffffff
    s_mov_b32 s{sMk}, 0
    s_add_u32 s{sD1}, s{sDst}, 1280
    """)
    if qloc:
        a(f"""
        s_lshl_b32 s{t+8}, s{sRT}, 1
        s_add_u32 s{t+8}, s{t+8}, s{sWM}
        s_mul_i32 s{t+8}, s{t+8}, {2*F*64}
        s_add_u32 s{t+8}, s{t+8}, {L_Q + 57344}
        s_add_u32 s{t+7}, s{t+8}, {F*64}
        s_cmp_eq_u32 s{sTY}, 0
        s_cselect_b32 s{sDst}, s{t+8}, s{sDst}
        s_cselect_b32 s{sD1}, s{t+7}, s{sD1}
        s_cselect_b32 s{t+13}, 1280, s{t+13}
        """)
    a(f"s_add_u32 s{t+14}, s{sDst}, s{t+13}\ns_add_u32 s{sD1+1}, s{sD1}, s{t+13}")
    for sl in range(4):
        a(f"""
        v_add_u32 v81, {2*sl}, v80
        v_mul_u32_u24 v82, 205, v81
        v_lshrrev_b32 v82, 10, v82
        v_mad_i32_i24 v81, v82, -5, v81
        v_cmp_lt_u32 vcc, 2, v81
        v_lshlrev_b32 v82, 1, v82
        v_add_u32 v83, -3, v81
        v_cndmask_b32 v83, v81, v83, vcc
        v_addc_co_u32 v82, vcc, 0, v82, vcc
        v_lshlrev_b32 v83, 9, v83
        v_lshl_add_u32 v83, v87, 4, v83
        v_lshlrev_b32 v85, 3, v87
        v_add_u32 v85, 1024, v85
        v_cmp_eq_u32 vcc, 2, v81
        v_mul_lo_u32 v84, v82, s{t+13}
        s_cmp_lg_u64 vcc, 0
        v_cndmask_b32 v83, v83, v86, vcc
        v_cndmask_b32 v85, v86, v85, vcc
        s_cselect_b32 s{t+7}, {1 << sl}, 0
        s_or_b32 s{sMk}, s{sMk}, s{t+7}
        v_add_u32 v{AD+sl}, v83, v84
        v_add_u32 v{AD+4+sl}, v85, v84
        """)
    def pack(c, sw):
        return [f"v_cvt_pk_bf16_f32 v{c+i}, v{c+2*i}, v{c+2*i+1}" for i in range(4)] + \
               ["s_nop 0", f"v_permlane{sw}_swap_b32 v{c}, v{c+2}", f"v_permlane{sw}_swap_b32 v{c+1}, v{c+3}"]
    def epi_qk(nt, pk=True, bits='sc1'):
        r = []
        for tp in range(2):
            c = ACC + 16*nt + 8*tp
            if pk: r += [f"v_pk_mul_f32 v[{c+i}:{c+i+1}], v[{c+i}:{c+i+1}], v[{MS+4*tp+2*(i>>2)}:{MS+4*tp+2*(i>>2)+1}] op_sel_hi:[1,0]" for i in range(0, 8, 2)]
            else: r += [f"v_mul_f32 v{c+i}, v{MS+4*tp+2*(i>>2)}, v{c+i}" for i in range(8)]
            r += pack(c, 16)
            r.append(f"buffer_store_dwordx4 v[{c}:{c+3}], v{AD+nt}, {WSR}, s{sD1 if tp else sDst} offen {bits}")
        return r
    def bparts(bits):
        for sl in range(4):
            sk = a.uid("qk_b")
            a(f"s_bitcmp0_b32 s{sMk}, {sl}\ns_cbranch_scc1 {sk}")
            for tm in range(2):
                o = ACC + 16*sl + 8*tm
                a(f"buffer_store_dwordx2 v[{o}:{o+1}], v{AD+4+sl}, {WSR}, s{sD1 if tm else sDst} offen {bits}")
                a(f"buffer_store_dwordx2 v[{o+2}:{o+3}], v{AD+4+sl}, {WSR}, s{sD1+1 if tm else t+14} offen {bits}")
            a.label(sk)
        a(f"s_branch {fin}")
    if qloc: mainloop(False, epi_qk, (f"s_cmp_eq_u32 s{sTY}, 0", lambda g, pk: epi_qk(g, pk, ""), lambda: bparts("sc1"), lambda: bparts("")))
    else:
        mainloop(False, epi_qk); bparts("sc1")
    a.label(vlab)
    if not first:
        for nt in range(4): a(f"buffer_load_dword v{VCV+2*nt}, v{vt}, {WSR}, s{sCS} offen offset:{64*nt} sc1")
    a(f"""
    s_lshl_b32 s{t+8}, s{sRT}, 3
    s_lshl_b32 s{t+7}, s{sWM}, 2
    s_add_u32 s{t+8}, s{t+8}, s{t+7}
    s_mul_i32 s{sDst}, s{t+8}, 640
    s_add_u32 s{sDst}, s{sDst}, {L_V + LQ}
    s_lshl_b32 s{t+7}, s{sWN}, 6
    s_add_u32 s{t+8}, s{sC0}, s{t+7}
    v_lshrrev_b32 v80, 5, v0
    v_lshl_add_u32 v80, v80, 4, v15
    v_add_u32 v80, s{t+8}, v80
    v_and_b32 v81, 1, v14
    v_mul_u32_u24 v81, 320, v81
    s_mov_b32 s{t+13}, {HEADB}
    s_movk_i32 s{t+14}, 3277
    s_movk_i32 s{t+7}, -20
    """)
    for np_ in range(2):
        a(f"""
        v_add_u32 v83, {32*np_}, v80
        v_mul_u32_u24 v84, s{t+14}, v83
        v_lshrrev_b32 v84, 16, v84
        v_mad_i32_i24 v83, v84, s{t+7}, v83
        v_lshl_add_u32 v83, v83, 4, v81
        v_mul_lo_u32 v85, v84, s{t+13}
        v_add_u32 v{AD+np_}, v83, v85
        """)
    def epi_v(tt, pk=True):
        r = []
        for np_ in range(2):
            c = ACC + 16*tt + 8*np_
            if pk: r += [f"v_pk_mul_f32 v[{c+i}:{c+i+1}], v[{c+i}:{c+i+1}], v[{VR+4*tt+(i&3)}:{VR+4*tt+(i&3)+1}]" for i in range(0, 8, 2)]
            else: r += [f"v_mul_f32 v{c+i}, v{VR+4*tt+(i&3)}, v{c+i}" for i in range(8)]
            r += pack(c, 32)
            r.append(f"buffer_store_dwordx4 v[{c}:{c+3}], v{AD+np_}, {WSR}, s{sDst} offen offset:{640*tt} sc1")
        return r
    mainloop(True, epi_v)
    a.label(fin)
    stamp(a, 3 if first else 20)
    flag_setup(a, 1 if first else 6)
    a(f"s_lshl_b32 s{t+7}, s{sWG}, 5\ns_add_u32 s{t+7}, s{t+7}, s{sW}\ns_lshl_b32 s{t+7}, s{t+7}, 2\ns_add_u32 s{t+7}, s{t+7}, {L_FG + LQ}")
    a("s_waitcnt vmcnt(0)")
    if first:
        l1 = a.uid("q1f"); l2 = a.uid("q1g")
        a(f"s_cmp_eq_u32 s{sMODE}, 0\ns_cbranch_scc1 {l1}")
        flag_store(a, ""); a(f"s_branch {l2}")
        a.label(l1); flag_store(a, "sc1"); a.label(l2)
    else: flag_store(a, SB)
    flag_store(a, "sc1", t+7)

def qkvW_setup(a, sWo, sLW, sCT, sTmp, vW):
    a(f"""
    v_lshrrev_b32 v2, 4, v0
    v_mul_u32_u24 v1, 3840, v2
    v_lshlrev_b32 v7, 1, v2
    v_and_b32 v3, 15, v0
    v_xor_b32 v3, v3, v7
    v_lshl_add_u32 v{vW}, v3, 4, v1
    v_xor_b32 v3, 8, v3
    v_lshl_add_u32 v{vW+1}, v3, 4, v1
    s_mul_i32 s{sWo}, s{sLW}, {16*3840}
    s_lshl_b32 s{sTmp}, s{sCT}, 8
    s_add_u32 s{sWo}, s{sWo}, s{sTmp}
    """)

def qkv1_loader(a):
    t = T
    sRT, sCT = t, t+1
    sLW, sAo, sWo, sM, sTmp, sRot, sThr, sA1, sW1, sSel = t+2, t+3, t+4, t+5, t+6, t+8, t+9, t+10, t+11, t+12
    a(f"s_sub_u32 s{sLW}, s{sW}, 4")
    qkvW_setup(a, sWo, sLW, sCT, sTmp, 6)
    a(f"""
    s_lshl_b32 s{sM}, s{sLW}, 12
    s_lshl_b32 s{sAo}, s{sRT}, 2
    s_add_u32 s{sAo}, s{sAo}, s{sLW}
    s_mul_i32 s{sAo}, s{sAo}, {32*1280}
    v_lshrrev_b32 v1, 3, v0
    v_mul_u32_u24 v1, 1280, v1
    v_and_b32 v3, 7, v0
    v_xor_b32 v3, v3, v2
    v_lshl_add_u32 v4, v3, 4, v1
    v_xor_b32 v3, 4, v3
    v_lshl_add_u32 v5, v3, 4, v1
    """)
    a("s_waitcnt lgkmcnt(0)")
    srd(a, R_X, P_X, ACT)
    srd(a, R_WQ, P_WQKV, D*3*D*2)
    def emitA(c, i0, k):
        for i in range(i0, i0 + k):
            a(f"s_add_u32 m0, s{sM}, {(c % 4)*16384 + 1024*i}\ns_add_u32 s{sTmp}, s{sAo}, {c*128 + i*8*1280}")
            a(f"buffer_load_dwordx4 v{4 + (i & 1)}, {R(R_X)}, s{sTmp} offen lds")
    def emitW(c, i0, k):
        for i in range(i0, i0 + k):
            a(f"s_add_u32 m0, s{sM}, {qkW(c) + 1024*i}\ns_add_u32 s{sTmp}, s{sWo}, {c*64*3840 + i*4*3840}")
            a(f"buffer_load_dwordx4 v{6 + (i >> 1)}, {R(R_WQ)}, s{sTmp} offen lds")
    LD = Loader(a); mark = [0]
    def xstats(c):
        if c == 0:
            other_srds(a)
            a(f"""
            v_bfe_u32 v8, v0, 2, 2
            v_lshrrev_b32 v9, 4, v0
            v_lshl_add_u32 v9, v9, 3, v8
            v_lshlrev_b32 v9, 8, v9
            v_and_b32 v10, 3, v0
            v_lshl_add_u32 v9, v10, 3, v9
            v_add_u32 v9, {WB}, v9
            v_bfe_u32 v10, v0, 2, 3
            s_lshl_b32 s{t+7}, s{sLW}, 1
            v_xor_b32 v10, s{t+7}, v10
            v_lshl_add_u32 v8, v10, 5, v9
            v_xor_b32 v10, 1, v10
            v_lshl_add_u32 v9, v10, 5, v9
            v_add_u32 v10, 49152, v8
            v_add_u32 v11, 49152, v9
            """)
            for i in range(4): a(f"v_mov_b32 v{12+i}, 0x3f803f80")
        o_ = qkW(c) - WB
        for u in range(2):
            for e in range(2):
                for j in range(2):
                    d = 16 + 8*u + 4*e + 2*j
                    a(f"ds_read_b64_tr_b16 v[{d}:{d+1}], v{8 + 2*(o_ // 49152) + e} offset:{o_ % 49152 + 8192*u + 1024*j}")
        a("s_waitcnt lgkmcnt(0)")
        for u in range(2):
            for e in range(2):
                a(f"v_mfma_f32_16x16x32_bf16 v[{32+4*e}:{35+4*e}], v[12:15], v[{16+8*u+4*e}:{19+8*u+4*e}], {v(32+4*e,4) if (c or u) else 0}")
        n = LD.total - mark[0]
        if c in (0, C.c_i, C.c_c): mark[0] = LD.total
        def st_issue():
            census(a, 80, 81, False, n)
            a(f"s_lshl_b32 s{t+7}, s{sRT}, 13\ns_add_u32 s{t+7}, s{t+7}, {WS_ST0}\ns_add_u32 s{t+13}, s{t+7}, 4096\nv_lshlrev_b32 v82, 4, v0")
            for h_ in range(2):
                for i in range(4): a(f"buffer_load_dwordx4 v[{96+16*h_+4*i}:{99+16*h_+4*i}], v82, {WSR}, s{t+13 if h_ else t+7} offen offset:{1024*i} sc1")
        def st_fin():
            a(f"s_waitcnt vmcnt({n})\nv_lshlrev_b32 v82, 2, v0\nv_add_u32 v82, {Q1_TAB}, v82")
            for h_ in range(2):
                row_stats(a, 96 + 16*h_, 84, 85)
                a(f"ds_write_b32 v82, v84 offset:{256*h_}\nds_write_b32 v82, v85 offset:{512+256*h_}")
            a("s_waitcnt lgkmcnt(0)")
        st = {0: lambda: (flags_zero(a), nonce_issue(a, 81, 82)), 2: lambda: nonce_get(a, 80, 81, 82, n), C.c_i: lambda: census(a, 80, 81, True), C.c_c: st_issue, C.c_f: st_fin}
        if c in st:
            l = a.uid("w7")
            a(f"s_cmp_lg_u32 s{sW}, 7\ns_cbranch_scc1 {l}")
            st[c](); a.label(l)
            LD.q += [("x7", "x", 99)] * {0: 4, 2: 1, C.c_i: 1, C.c_c: 8, C.c_f: 0}[c]
    if C.q1prio: a("s_setprio 2")
    stamp(a, 1)
    ph = Phase("q1", 10, 4, 4, emitA, emitW, lambda c: ((c % 4)*16384, (c % 4)*16384 + 16384), lambda c: (qkW(c), qkW(c) + 16384),
               None, C.bud_q1, after_bar=xstats, dbg=(C.dbg == 1))
    def waitfn(w):
        l1 = a.uid("pw"); l2 = a.uid("pw"); l3 = a.uid("pw")
        a(f"s_cmp_eq_u32 s{sW}, 4\ns_cbranch_scc1 {l1}\ns_cmp_eq_u32 s{sW}, 7\ns_cbranch_scc1 {l2}\ns_waitcnt vmcnt({w+5})\ns_branch {l3}")
        a.label(l1); a(f"s_waitcnt vmcnt({w+16})\ns_branch {l3}")
        a.label(l2); a(f"s_waitcnt vmcnt({w})")
        a.label(l3)
    ph.look = C.look_q1
    LD.run(ph, None)
    a(f"""
    v_and_b32 v1, 15, v0
    v_lshlrev_b32 v1, 2, v1
    s_lshl_b32 s{sTmp}, s{sLW}, 7
    v_add_u32 v1, s{sTmp}, v1
    v_add_u32 v2, {Q1_CS}, v1
    s_lshl_b32 s{sTmp}, s{sWG}, 9
    s_add_u32 s{sTmp}, s{sTmp}, {WS_CSQ}
    s_setprio 0
    s_nop 3
    ds_write_b32 v2, v32
    ds_write_b32 v2, v36 offset:64
    buffer_store_dword v32, v1, {WSR}, s{sTmp} offen
    buffer_store_dword v36, v1, {WSR}, s{sTmp} offen offset:64
    s_waitcnt lgkmcnt(0)
    """)
    stamp(a, 2)
    a("s_barrier")
    read_nonce_mode(a)

def other_srds(a):
    srd(a, R_WS, P_WS, WS_END)
    srd(a, R_WG, P_WG, D*F*2)
    srd(a, R_WU, P_WU, D*F*2)
    srd(a, R_T, P_WS, WS_END)

def qkv1_idle(a):
    l2 = a.uid("idl"); l1 = a.uid("idl"); l3 = a.uid("idl"); l4 = a.uid("idl"); lj = a.uid("idl")
    tj = 84; K = NAME + "_kernel"
    a(f"v_lshlrev_b32 v5, 4, v0\ns_cmp_lt_u32 s{sW}, 4\ns_cbranch_scc1 {l1}")
    a(f"s_xor_b32 s{tj}, s{sW}, 7\ns_or_b32 s{tj}, s{tj}, s{T}\ns_cmp_lg_u32 s{tj}, 0\ns_cbranch_scc1 {l3}")
    nonce_put(a)
    a.label(l3)
    a(f"s_getpc_b64 s[{tj+4}:{tj+5}]")
    a.label("L_pc")
    a(f"""
    s_sub_u32 s{tj+4}, s{tj+4}, L_pc-{K}
    s_subb_u32 s{tj+5}, s{tj+5}, 0
    s_and_b32 s{tj}, s{T}, 1
    s_lshl_b32 s{tj}, s{tj}, 2
    s_add_u32 s{tj}, s{tj}, s{sW}
    s_sub_u32 s{tj}, s{tj}, 4
    s_lshl_b32 s{tj}, s{tj}, 13
    v_lshlrev_b32 v1, 7, v0
    v_add_u32 v2, s{tj}, v1
    global_load_dword v251, v2, s[{tj+4}:{tj+5}]
    """)
    a(f"s_lshl_b32 s{tj}, s{T}, 2\ns_add_u32 s{tj}, s{tj}, s{sW}\ns_add_u32 s{tj+2}, s{tj}, {60 - 4}\ns_lshl_b32 s{tj+2}, s{tj+2}, 13")
    for i in range(4):
        if C.q1pf: a(f"buffer_load_dword v251, v1, {R(R_WQ)}, s{tj+2} offen\ns_add_u32 s{tj+2}, s{tj+2}, {64*8192}")
        if i == 0: a("s_barrier")
    a(f"s_branch {l2}")
    a.label(l1)
    xstat_fin(a)
    a(f"s_cmp_lg_u32 s{sW}, 0\ns_cbranch_scc1 {l4}")
    flags_zero(a)
    a.label(l4)
    a(f"s_waitcnt vmcnt(0)\ns_barrier\ns_cmp_lg_u32 s{sW}, 0\ns_cbranch_scc1 {l2}")
    nonce_issue(a, 81, 82)
    nonce_get(a, 80, 81, 82)
    a.label(l2)
    a(f"s_mul_i32 s{tj}, s{T}, 10\ns_add_u32 s{tj+7}, s{tj}, 10\ns_add_u32 s{tj}, s{tj}, s{sW}\ns_mul_i32 s{tj+1}, s{sW}, 5120")
    a.label(lj)
    projjob_issue(a, tj, tj+1, tj)
    a("s_waitcnt vmcnt(0)")
    projjob_finish(a, tj+1, tj)
    a(f"s_add_u32 s{tj}, s{tj}, 8\ns_cmp_lt_u32 s{tj}, s{tj+7}\ns_cbranch_scc1 {lj}")
    l5 = a.uid("idl")
    a(f"s_waitcnt vmcnt(0)\ns_barrier\ns_cmp_lg_u32 s{sW}, 0\ns_cbranch_scc1 {l5}")
    a(f"""
    s_lshl_b32 s{tj}, s{sWG}, 7
    s_add_u32 s{tj}, s{tj}, {L_FG + 36}
    v_mov_b32 v1, 0
    v_mov_b32 v2, s{sEP}
    """)
    flag_store(a, "sc1", tj)
    census(a, 80, 81, True)
    census(a, 80, 81, False)
    a.label(l5)
    a("s_barrier")
    read_nonce_mode(a)

def phase_attn(a, SB, ld_label):
    fast = SB == ""
    t = T
    CH = 20480
    sQP, sKH, sSrc, sDst, sTmp, sC, sHB = t, t+1, t+2, t+3, t+4, t+5, t+8
    sEX = t+6
    sWs, sWd, sPF = t+9, t+10, t+11
    tj = 84; sJob, sScr = tj, tj + 1
    QAREA = 102400
    QA, QB = 16, 22
    NM, SS, PP, OO, KF, VF = 32, 64, 96, 112, 144, 160
    vK, vK8, vV = 2, 3, 4
    DUM = 176; XF = 177; vX1, vX2, vO = 28, 29, 30; sO, sFB = 96, 99; XB = 102400; PR = 32
    assert C.c0
    KVB = 'nt sc1' if C.nt_kv else 'sc1'
    stamp(a, 4)
    a(f"""
    s_and_b32 s{sQP}, s{sW}, 3
    s_lshr_b32 s{sKH}, s{sW}, 2
    v_lshlrev_b32 v5, 4, v0
    s_mul_i32 s{sHB}, s{sR}, {HEADB}
    s_add_u32 s{sHB}, s{sHB}, s{sLO}
    s_and_b32 s{sTmp}, s{sQP}, 1
    s_mul_i32 s{sSrc}, s{sTmp}, 5120
    s_mul_i32 s{sDst}, s{sTmp}, 10240
    s_lshr_b32 s{sTmp}, s{sQP}, 1
    s_mul_i32 s{sC}, s{sTmp}, 5120
    s_add_u32 s{sDst}, s{sDst}, s{sC}
    s_mul_i32 s{sC}, s{sTmp}, {ACT}
    s_add_u32 s{sSrc}, s{sSrc}, s{sC}
    s_add_u32 s{sSrc}, s{sSrc}, s{sHB}
    s_add_u32 s{sSrc}, s{sSrc}, {L_K}
    """)
    def kv_issue(j):
        GF.need(0x01010101 << j)
        a(f"s_add_u32 s{sTmp}, s{sG}, {j}\ns_and_b32 s{sTmp}, s{sTmp}, 7\ns_mul_i32 s{sTmp}, s{sTmp}, 10240\ns_add_u32 s{sTmp}, s{sTmp}, s{sSrc}")
        return lin_dma(a, 5, sTmp, 0, sDst, j * CH, 5, KVB)
    def init():
        a(f"""
        v_lshrrev_b32 v14, 5, v0
        v_and_b32 v15, 31, v0
        v_lshlrev_b32 v6, 3, v15
        s_mul_i32 s{sTmp}, s{sKH}, 10240
        v_add_u32 v{vK}, s{sTmp}, v5
        v_add_u32 v{vK8}, s{sTmp}, v6
        v_mul_u32_u24 v7, 320, v14
        v_lshl_add_u32 v7, v15, 4, v7
        v_add_u32 v{vV}, s{sTmp}, v7
        s_mov_b32 s{sEX}, 0x000fffff
        s_mov_b32 s{sEX+1}, 0x000fffff
        s_mov_b32 s{t+16}, -1
        s_mov_b32 s{t+17}, 0
        v_and_b32 v9, 27, v0
        v_cmp_eq_u32 vcc, 24, v9
        v_mov_b32 v8, 0x3f803f80
        s_nop 0
        v_cndmask_b32 v8, 0, v8, vcc
        v_mov_b32 v9, v8
        v_lshlrev_b32 v13, 7, v0
        v_mov_b32 v12, 0
        """)
        for i in range(0, 16, 2): a(f"v_mov_b64 v[{VF+i}:{VF+i+1}], v[8:9]")
        for i in range(0, 32, 2): a(f"v_mov_b64 v[{OO+i}:{OO+i+1}], 0")
        for i in range(0, 8, 2): a(f"v_mov_b64 v[{PP+8+i}:{PP+8+i+1}], 0")
        a(f"v_mov_b64 v[{QA+4}:{QA+5}], 0\nv_mov_b64 v[{QB+4}:{QB+5}], 0")
        a(f"""
        s_mul_i32 s{sC}, s{sQP}, 7168
        s_add_u32 s{sC}, s{sC}, {XB}
        v_add_u32 v{vX1}, s{sC}, v5
        v_lshrrev_b32 v{vX2}, 1, v5
        v_add_u32 v{vX2}, s{sC}, v{vX2}
        s_lshl_b32 s{sTmp}, s{sQP}, 2
        s_add_u32 s{sTmp}, s{sTmp}, {XB + 28672}
        v_mov_b32 v{XF}, s{sTmp}
        s_mul_i32 s{sTmp}, s{sR}, 5
        v_add_u32 v{vO}, s{sTmp}, v14
        v_lshrrev_b32 v10, 1, v{vO}
        v_and_b32 v{vO}, 1, v{vO}
        v_lshlrev_b32 v{vO}, 3, v{vO}
        v_lshl_add_u32 v{vO}, v10, 9, v{vO}
        v_lshl_add_u32 v{vO}, v15, 4, v{vO}
        s_lshl_b32 s{sTmp}, s{sG}, 2
        s_add_u32 s{sTmp}, s{sTmp}, s{sQP}
        s_mul_i32 s{sO}, s{sTmp}, 81920
        {"" if fast else f"s_add_u32 s{sO}, s{sO}, s{sLO}"}
        s_add_u32 s{sO}, s{sO}, {L_O}
        s_add_u32 s{sO+1}, s{sO}, 40960
        s_mov_b32 s{sFB}, 0
        """)
        if C.c0:
            for st_ in range(2): a(f"v_mov_b32 v{KF+8*st_+4}, 0x3f803f80\nv_mov_b32 v{KF+8*st_+5}, 0x3f80")
    init()
    l0 = a.uid("att_old"); l1 = a.uid("att_j")
    a(f"s_cmp_eq_u32 s{sKH}, 0\ns_cbranch_scc1 {l0}")
    poll_local(a, "attn", 1, va=10, vt=11)
    stamp(a, 5)
    a(f"""
    s_mul_i32 s{sC}, s{sQP}, 2560
    s_add_u32 s{sPF}, s{sC}, {QAREA}
    s_mul_i32 s{sTmp}, s{sG}, 10240
    s_add_u32 s{sTmp}, s{sTmp}, s{sC}
    s_add_u32 s{sTmp}, s{sTmp}, s{sHB}
    """)
    a(f"s_add_u32 s{sC}, s{sTmp}, 1280")
    if fast and C.qloc:
        a(f"""
        s_lshl_b32 s{sWs}, s{sG}, 2
        s_add_u32 s{sWs}, s{sWs}, s{sQP}
        s_mul_i32 s{sWs}, s{sWs}, {2*F*64}
        s_mul_i32 s{sWd}, s{sR}, 1280
        s_add_u32 s{sWs}, s{sWs}, s{sWd}
        s_add_u32 s{sWs}, s{sWs}, {L_Q + 57344}
        s_add_u32 s{sWd}, s{sWs}, {F*64}
        s_cmp_lg_u32 s{sL}, 0
        s_cselect_b32 s{sTmp}, s{sWs}, s{sTmp}
        s_cselect_b32 s{sC}, s{sWd}, s{sC}
        """)
    for x, sr in ((0, sTmp), (1, sC)):
        a(f"""
        s_add_u32 m0, s{sPF}, {1280*x}
        s_mov_b64 exec, -1
        buffer_load_dwordx4 v5, {WSR}, s{sr} offen {KVB} lds
        s_mov_b64 exec, 0xffff
        buffer_load_dwordx4 v5, {WSR}, s{sr} offen offset:1024 {KVB} lds
        """)
    a("s_mov_b64 exec, -1")
    a(f"s_mul_i32 s{sTmp}, s{sG}, 10240\ns_add_u32 s{sTmp}, s{sTmp}, s{sSrc}")
    lin_dma(a, 5, sTmp, 0, sDst, 0, 2, KVB)
    if C.stage: a(f"s_waitcnt vmcnt({C.stage - 1})")
    lin_dma(a, 5, sTmp, 2048, sDst, 2048, 3, KVB)
    if C.stage != 1: a(f"s_waitcnt vmcnt(3)")
    a(f"s_branch {l1}")
    a.label(l0)
    a(f"""
    s_setprio 1
    v_add_u32 v10, s{sG}, v0
    v_and_b32 v10, 7, v10
    v_bfe_u32 v11, v0, 3, 1
    v_mul_u32_u24 v11, 19, v11
    s_mul_i32 s{sTmp}, s{sR}, 20
    v_add_u32 v11, s{sTmp}, v11
    v_lshrrev_b32 v11, 7, v11
    v_lshl_add_u32 v10, v10, 5, v11
    s_and_b32 s{sTmp}, s{sQP}, 1
    s_lshl_b32 s{sTmp}, s{sTmp}, 4
    s_lshr_b32 s{sC}, s{sQP}, 1
    s_mul_i32 s{sC}, s{sC}, 5
    s_add_u32 s{sTmp}, s{sTmp}, s{sC}
    s_add_u32 s{sTmp}, s{sTmp}, 5
    v_add_u32 v10, s{sTmp}, v10
    v_lshlrev_b32 v12, 7, v10
    v_lshrrev_b32 v11, 4, v0
    v_lshl_add_u32 v12, v11, 2, v12
    s_and_b32 s{sWs}, s{sR}, 7
    s_mul_i32 s{sWs}, s{sWs}, 102400
    s_mul_i32 s{sWd}, s{sW}, 5120
    s_add_u32 s{sWs}, s{sWs}, s{sWd}
    s_add_u32 s{sWs}, s{sWs}, {WS_WTO}
    s_add_u32 s{sGO}, s{sLO}, {L_FG}
    s_add_u32 s{sGW}, s{sEP}, 1
    """)
    def cpf(lo, hi):
        l = a.uid("cpf"); pc = a.uid("pc")
        a(f"s_or_b32 s{sC}, s{sL}, s{sW}\ns_cmp_lg_u32 s{sC}, 0\ns_cbranch_scc1 {l}\ns_getpc_b64 s[{t+12}:{t+13}]")
        a.label(pc)
        a(f"""
        s_sub_u32 s{t+12}, s{t+12}, {pc}-{NAME}_kernel
        s_subb_u32 s{t+13}, s{t+13}, 0
        s_lshl_b32 s{sC}, s{sR}, 11
        s_add_u32 s{sC}, s{sC}, {lo}-{NAME}_kernel
        v_add_u32 v{PV+2}, s{sC}, v13
        v_min_u32 v{PV+2}, {hi}-{NAME}_kernel, v{PV+2}
        s_mov_b64 exec, 0xffff
        global_load_dword v{DUM}, v{PV+2}, s[{t+12}:{t+13}]
        s_mov_b64 exec, -1
        """)
        a.label(l)
    if fast and C.cpf: cpf("L_fast", "L_fast_post")
    a.label(l1)
    GF = Gate(a, 12, PV, fold=True, sleep=2)
    a(f"""
    s_mul_i32 s{sC}, s{sQP}, 2560
    s_add_u32 s{sC}, s{sC}, {QAREA}
    v_add_u32 v10, s{sC}, v5
    v_add_u32 v11, s{sC}, v6
    s_barrier
    ds_read_b128 v[{QA}:{QA+3}], v10
    ds_read_b128 v[{QB}:{QB+3}], v10 offset:1280
    s_mov_b32 exec_hi, 0
    ds_read_b64 v[{QA+4}:{QA+5}], v11 offset:1024
    ds_read_b64 v[{QB+4}:{QB+5}], v11 offset:{1280+1024}
    s_mov_b32 exec_hi, -1
    """)
    stamp(a, 6)
    l1 = a.uid("att_ap")
    a(f"s_cmp_lg_u32 s{sKH}, 0\ns_cbranch_scc1 {l1}")
    GF.load()
    a.label(l1)
    base = [0]
    def rdK(st, c, kt):
        off = c * CH + kt * 1280 - base[0]
        assert 0 <= off and off + 1024 < 65536
        b = KF + 8*st
        if C.c0: return [f"s_mov_b64 exec, s[{t+16}:{t+17}]", f"ds_read_b64 v[{b+4}:{b+5}], v{vK8} offset:{off+1024}", "s_mov_b64 exec, -1", f"ds_read_b128 v[{b}:{b+3}], v{vK} offset:{off}"]
        return [f"ds_read_b128 v[{b}:{b+3}], v{vK} offset:{off}", f"ds_read_b64 v[{b+4}:{b+5}], v{vK8} offset:{off+1024}"]
    def rdV(st, c, kt):
        off = c * CH + 5120 + kt * 1280 - base[0]
        assert 0 <= off and off + 640 < 65536
        b = VF + 8*st
        return [f"s_mov_b64 exec, s[{sEX}:{sEX+1}]", f"ds_read_b128 v[{b}:{b+3}], v{vV} offset:{off}",
                f"ds_read_b128 v[{b+4}:{b+7}], v{vV} offset:{off+640}", f"s_mov_b64 exec, -1"]
    def qk(x, st, c=None):
        b = KF + 8*st; q = (QA, QB)[x]; sd = SS + 16*x
        cc = v(NM + 16*x, 16) if (c is None and not C.c0) else '0'
        return [f"v_mfma_f32_32x32x16_bf16 {v(sd,16)}, {v(b,4)}, {v(q,4)}, {cc}",
                f"v_mfma_f32_32x32x8_bf16 {v(sd,16)}, {v(b+4,2)}, {v(q+4,2)}, {v(sd,16)}"]
    def pv(x, st):
        b = VF + 8*st; p = PP + 8*x; o = OO + 16*x
        return [f"v_mfma_f32_32x32x16_bf16 {v(o,16)}, {v(b,4)}, {v(p,4)}, {v(o,16)}",
                f"v_mfma_f32_32x32x16_bf16 {v(o,16)}, {v(b+4,4)}, {v(p+4,4)}, {v(o,16)}"]
    def sm(x):
        sd = SS + 16*x; p = PP + 8*x; r = []
        for i in range(8):
            r.append(f"v_exp_f32 v{sd+2*i}, v{sd+2*i}")
            r.append(f"v_exp_f32 v{sd+2*i+1}, v{sd+2*i+1}")
            if i > 0: r.append(f"v_cvt_pk_bf16_f32 v{p+i-1}, v{sd+2*i-2}, v{sd+2*i-1}")
        r.append(f"v_cvt_pk_bf16_f32 v{p+7}, v{sd+14}, v{sd+15}")
        return r
    def setm():
        for x in range(2): a(f"v_mov_b32 v{10+x}, v{8+x}")
        a("s_nop 0")
        for x in range(2): a(f"v_permlane32_swap_b32 v{8+x}, v{10+x}")
        a("s_nop 0")
        for x in range(2): a(f"v_max_f32 v{8+x}, v{8+x}, v{10+x}")
        if C.c0:
            a("s_mov_b32 exec_lo, 0")
            for x in range(2):
                q = (QA, QB)[x] + 4; r = NM + 4*x
                a(f"""
                v_sub_f32 v{r}, 0, v{8+x}
                v_and_b32 v{r+1}, 0xffff0000, v{r}
                v_sub_f32 v{r+2}, v{r}, v{r+1}
                v_and_b32 v{r+3}, 0xffff0000, v{r+2}
                v_sub_f32 v{r+2}, v{r+2}, v{r+3}
                v_lshrrev_b32 v{r+1}, 16, v{r+1}
                v_or_b32 v{q}, v{r+1}, v{r+3}
                v_lshrrev_b32 v{q+1}, 16, v{r+2}
                """)
            a("s_mov_b32 exec_lo, -1")
            return
        for x in range(2):
            a(f"v_sub_f32 v{NM+16*x}, 0, v{8+x}\nv_sub_f32 v{NM+16*x+1}, 0, v{8+x}")
            for i in range(2, 16, 2): a(f"v_mov_b64 v[{NM+16*x+i}:{NM+16*x+i+1}], v[{NM+16*x}:{NM+16*x+1}]")
    for x in rdK(0, 0, 0): a(x)
    a("s_waitcnt lgkmcnt(0)")
    m = qk(0, 0, "0") + qk(1, 0, "0")
    for i in (0, 1, 2, 3): a(m[i])
    a.nop(10)
    for x in range(2):
        sd = SS + 16*x
        a(f"v_max3_f32 v{8+x}, v{sd}, v{sd+1}, v{sd+2}")
        for i in range(3, 15, 2):
            a(f"v_max3_f32 v{8+x}, v{8+x}, v{sd+i}, v{sd+i+1}")
        a(f"v_max_f32 v{8+x}, v{8+x}, v{sd+15}")
    setm()
    for i in range(16): a(f"v_sub_f32 v{SS+i}, v{SS+i}, v8")
    l1 = a.uid("att_w0"); l2 = a.uid("att_w1")
    sDone = t + 15
    a(f"s_cmp_eq_u32 s{sKH}, 0\ns_cbranch_scc1 {l1}\ns_waitcnt vmcnt(0)\ns_barrier\ns_branch {l2}")
    a.label(l1)
    a("s_barrier")
    GF.upd()
    a(f"s_and_b32 s{sDone}, s{sNR}, 0x02020202\ns_cbranch_scc1 {l2}")
    GF.ok = 0x02020202; kv_issue(1); GF.ok = 0
    a.label(l2)
    stamp(a, 7)
    cstamp(a, 0)
    def l0only(fn):
        l = a.uid("l0")
        a(f"s_cmp_lg_u32 s{sL}, 0\ns_cbranch_scc1 {l}")
        fn(); a.label(l)
    def l2pf(i0, n):
        for i in range(i0, min(i0 + n, (C.l2pf + 3) // 4)):
            l = a.uid("pfs")
            a(f"""
            s_cmp_ge_u32 s{sW}, {C.l2pf - 4*i}
            s_cbranch_scc1 {l}
            s_lshr_b32 s{sPF}, s{sR}, 4
            s_mul_i32 s{sPF}, s{sPF}, {15 if C.rot_gu else 1}
            s_mul_i32 s{sC}, s{sW}, {1 if C.rot_gu else 2}
            s_add_u32 s{sPF}, s{sPF}, s{sC}
            s_add_u32 s{sPF}, s{sPF}, {4*i if C.rot_gu else 8*i}
            s_lshl_b32 s{sPF}, s{sPF}, 13
            s_and_b32 s{sC}, s{sR}, 15
            s_mul_i32 s{sC}, s{sC}, 245760
            s_add_u32 s{sPF}, s{sPF}, s{sC}
            s_add_u32 s{sPF}, s{sPF}, {WS_WTG}
            buffer_load_dword v{DUM}, v13, {WSR}, s{sPF} offen
            """)
            a.label(l)
    def evpf(i):
        a(f"""
        s_lshr_b32 s{sPF}, s{sR}, 4
        s_lshl_b32 s{sC}, s{sW}, 1
        s_add_u32 s{sPF}, s{sPF}, s{sC}
        s_mul_i32 s{sPF}, s{sPF}, 24576
        s_and_b32 s{sC}, s{sR}, 15
        s_mul_i32 s{sC}, s{sC}, 245760
        s_add_u32 s{sPF}, s{sPF}, s{sC}
        s_add_u32 s{sPF}, s{sPF}, {WS_WTG + 49152 + 8192*i}
        buffer_load_dword v{DUM}, v13, {WSR}, s{sPF} offen
        """)
    if C.ev1:
        l2pf = lambda i0, n: [evpf(i) for i in range(i0, min(i0 + n, C.ev1))]
    def wwo(c): lin_dma(a, 5, sWs, c*20480, sWd, c*20480, 5, 'nt' if C.nt_wo else '')
    def fp():
        a(f"""
        s_lshl_b32 s{sC}, s{sWG}, 5
        s_add_u32 s{sC}, s{sC}, s{sW}
        s_lshl_b32 s{sC}, s{sC}, 2
        s_add_u32 s{sC}, s{sC}, {L_FG + 16}
        v_mov_b32 v10, 0
        v_mov_b32 v11, s{sEP}
        s_mov_b64 exec, 1
        buffer_store_dword v11, v10, {WSR}, s{sC} offen sc1
        s_mov_b64 exec, -1
        """)
    def cs1():
        l = a.uid("cs")
        a(f"s_cmp_lg_u32 s{sW}, 3\ns_cbranch_scc1 {l}\ns_mov_b32 exec_hi, 0xffff")
        a(f"s_and_b32 s{sC}, s{sR}, 15\ns_mul_i32 s{sC}, s{sC}, 768\ns_add_u32 s{sC}, s{sC}, {WS_CSP}")
        for i in range(10):
            a(f"buffer_load_dwordx4 v[{PV+4*i}:{PV+3+4*i}], v5, {WSR}, s{sC} offen\ns_add_u32 s{sC}, s{sC}, 12288")
        a("s_mov_b32 exec_hi, -1")
        a.label(l)
    def cs2():
        l = a.uid("cs")
        a(f"s_cmp_lg_u32 s{sW}, 3\ns_cbranch_scc1 {l}\ns_mov_b32 exec_hi, 0xffff")
        for i in range(1, 10):
            a(f"v_pk_add_f32 v[{PV}:{PV+1}], v[{PV}:{PV+1}], v[{PV+4*i}:{PV+1+4*i}]\nv_pk_add_f32 v[{PV+2}:{PV+3}], v[{PV+2}:{PV+3}], v[{PV+2+4*i}:{PV+3+4*i}]")
        a(f"s_mul_i32 s{sC}, s{sWG}, 768\ns_add_u32 s{sC}, s{sC}, {WS_CSG}")
        a(f"buffer_store_dwordx4 v[{PV}:{PV+3}], v5, {WSR}, s{sC} offen\ns_mov_b32 exec_hi, -1")
        a.label(l)
    def fpw():
        a(f"s_lshl_b32 s{sC}, s{sW}, 13\ns_add_u32 s{sC}, s{sC}, {L_FG + 16}")
        poll(a, 13, PV, f"s{sC}", f"s{sEP}", sleep=2, wide=True)
    def wow():
        a(f"v_and_b32 v{PV+1}, 15, v0\nv_lshlrev_b32 v{PV+1}, 11, v{PV+1}\ns_mov_b32 s{sC}, {L_FG + 15*128 + 36}")
        poll(a, PV + 1, PV, f"s{sC}", f"s{sEP}", sleep=2)
    def l1only(fn):
        l = a.uid("l1")
        a(f"s_cmp_eq_u32 s{sL}, 0\ns_cbranch_scc1 {l}")
        fn(); a.label(l)
    def hook(j):
        if j == 1:
            kv_issue(2); kv_issue(3); a("s_waitcnt vmcnt(10)")
        GF.ok &= 0x0f0f0f0f
        W = lambda n_: a(f"s_waitcnt vmcnt({n_})")
        if j == 2: l0only(lambda: (W(0), prep(a, 0))); l1only(lambda: (W(5), kv_issue(4)))
        if j == 3:
            l0only(lambda: (kv_issue(4), kv_issue(5))); GF.ok &= 0x0f0f0f0f
            l1only(lambda: (W(5), kv_issue(5), kv_issue(6)))
        if j == 4: l0only(lambda: (W(5), prep(a, 1))); l1only(lambda: (W(10), kv_issue(7)))
        if j == 5: l0only(lambda: (wow(), fp(), kv_issue(6), kv_issue(7))); l1only(lambda: (W(10), wwo(0), wwo(1), l2pf(0, 1)))
        if j == 6:
            l0only(lambda: (W(0), wwo(0), wwo(1))); l1only(lambda: W(10))
            wwo(2); wwo(3)
            if fast and C.cpf: cpf("L_fast_tail", "L_fast_end")
            l1only(lambda: l2pf(1, 1))
        if j == 7:
            l0only(fpw)
            wwo(4)
            l1only(lambda: l2pf(2, 2))
        if fast and j == C.oxh:
            a(f"""
            s_lshl_b32 s{sPF}, s{sWG}, 1
            s_and_b32 s{sC}, s{sW}, 1
            s_add_u32 s{sPF}, s{sPF}, s{sC}
            s_mul_i32 s{sPF}, s{sPF}, 5120
            s_mov_b32 s{sC}, {L_O}
            s_bitcmp1_b32 s{sW}, 1
            s_cselect_b32 s{sC}, {L_X1}, s{sC}
            s_add_u32 s{sPF}, s{sPF}, s{sC}
            s_mov_b32 exec_hi, 0xff
            buffer_load_dword v{DUM}, v13, {WSR}, s{sPF} offen
            s_lshl_b32 s{sTmp}, s{sWG}, 9
            s_add_u32 s{sTmp}, s{sTmp}, s{sLO}
            s_add_u32 s{sTmp}, s{sTmp}, {L_ST1}
            s_mov_b64 exec, 15
            buffer_load_dword v{DUM}, v13, {WSR}, s{sTmp} offen
            s_mov_b64 exec, -1
            """)
        if fast and j == C.hth:
            a(f"""
            s_lshl_b32 s{sPF}, s{sWG}, 2
            s_add_u32 s{sPF}, s{sPF}, s{sQP}
            s_mul_i32 s{sPF}, s{sPF}, 6144
            s_add_u32 s{sPF}, s{sPF}, {L_Q}
            s_mov_b32 exec_hi, 0xffff
            buffer_load_dword v{DUM}, v13, {WSR}, s{sPF} offen
            s_mov_b32 exec_hi, -1
            """)
    def xreads():
        r = [f"ds_read_b32 v31, v{XF}"]
        for x in range(2): r.append(f"ds_read_b64 v[{PR+12+16*x}:{PR+13+16*x}], v{vX2} offset:{3584*x+3072}")
        for x in range(2):
            for i in range(3): r.append(f"ds_read_b128 v[{PR+16*x+4*i}:{PR+16*x+4*i+3}], v{vX1} offset:{3584*x+1024*i}")
        return r
    outl = []
    for c in range(8):
        for kt in range(4):
            st = kt & 1
            last = c == 7 and kt == 3
            if c == 0 and kt == 1:
                hk = a.uid("att_hk")
                a(f"s_cmp_eq_u32 s{sKH}, 0\ns_cbranch_scc1 {hk}"); a.label(hk + "r")
                def h0():
                    l = a.uid("h0")
                    a(f"s_cmp_eq_u32 s{sDone}, 0\ns_cbranch_scc1 {l}")
                    kv_issue(1)
                    a.label(l)
                outl.append((hk, h0))
            j = c + 1 if (kt == 3 and c < 6) else (7 if (c == 7 and kt == 0) else None)
            if j:
                hk = a.uid("att_hk")
                dstamp(a, 6, 3*j)
                a(f"s_cmp_eq_u32 s{sKH}, 0\ns_cbranch_scc1 {hk}")
                if C.flip and j < 7: a("s_setprio 2")
                a.label(hk + "r")
                dstamp(a, 6, 3*j+1)
                a("s_barrier")
                dstamp(a, 6, 3*j+2)
                cstamp(a, j)
                outl.append((hk, (lambda jj: (lambda: hook(jj)))(j)))
                if j == 7 and C.ev0:
                    hk = a.uid("att_hk")
                    a(f"s_or_b32 s{sC}, s{sKH}, s{sL}\ns_cbranch_scc0 {hk}"); a.label(hk + "r")
                    outl.append((hk, lambda: [evpf(i) for i in range(C.ev0)]))
            if C.flip and 1 <= c < 7 and kt == C.flip - 1: a("s_setprio 1")
            val = sm(0)
            mf = qk(1, st) + pv(1, st ^ 1)
            ex = rdV(st, c, kt)
            if kt == 3 and c in (2, 5):
                base[0] += 3 * CH
                ex += [f"v_add_u32 v{r}, {3*CH}, v{r}" for r in (vK, vK8, vV)]
            if not last: ex += rdK(st ^ 1, c + (kt + 1) // 4, (kt + 1) % 4)
            cut = 4
            if C.c0 and len(ex) == 8: del ex[3]; cut = 6
            a(mf[0]); [a(x) for x in ex[:cut]]; [a(x) for x in val[0:6]]
            a(mf[2]); [a(x) for x in ex[cut:]]; [a(x) for x in val[6:12]]
            a(mf[1]); [a(x) for x in val[12:18]]
            a(mf[3]); [a(x) for x in val[18:]]
            val = sm(1)
            a("s_waitcnt lgkmcnt(0)")
            if not last:
                mf = qk(0, st ^ 1) + pv(0, st)
                a(mf[0]); [a(x) for x in val[0:6]]
                a(mf[2]); [a(x) for x in val[6:12]]
                a(mf[1]); [a(x) for x in val[12:18]]
                a(mf[3]); [a(x) for x in val[18:]]
            else:
                mf = pv(0, st) + pv(1, st)
                a(mf[0]); [a(x) for x in val[0:6]]
                a(mf[1]); [a(x) for x in xreads()]; [a(x) for x in val[6:16]]
                a(mf[2]); [a(x) for x in val[16:]]
                a("s_nop 1"); a(mf[3])
    if fast: a.label("L_fast_tail")
    stamp(a, 8)
    cstamp(a, 8)
    fb = a.uid("att_fb"); comb = a.uid("att_comb"); done = a.uid("att_done"); yng = a.uid("att_y")
    def check():
        a(f"v_mul_f32 v10, {f32(2.0**63)}, v{OO+12}\nv_mul_f32 v11, {f32(2.0**63)}, v{OO+16+12}")
        a(f"v_add_f32 v10, v10, v10\nv_add_f32 v11, v11, v11\nv_mul_f32 v10, 0, v10\nv_mul_f32 v11, 0, v11")
        for i in range(12): a(f"v_fmac_f32 v10, 0, v{OO+i}\nv_fmac_f32 v11, 0, v{OO+16+i}")
        a(f"v_cmp_u_f32 vcc, v10, v11\ns_cbranch_vccnz {fb}")
    a(f"s_cmp_eq_u32 s{sKH}, 0\ns_cbranch_scc1 {yng}")
    def older():
        a.label(yng)
        a.nop(10)
        check()
        a.label(yng + "c")
        a(f"v_mov_b32 v{OO+13}, v8\nv_mov_b32 v{OO+16+13}, v9\nv_mov_b32 v10, s{sEP}")
        for x in range(2):
            for i in range(3):
                a(f"ds_write_b128 v{vX1}, v[{OO+16*x+4*i}:{OO+16*x+4*i+3}] offset:{3584*x+1024*i}")
            a(f"ds_write_b64 v{vX2}, v[{OO+16*x+12}:{OO+16*x+13}] offset:{3584*x+3072}")
        a(f"ds_write_b32 v{XF}, v10")
        l0only(lambda: (cs1(), l2pf(0, C.l2pf0)))
        a("s_waitcnt vmcnt(0) lgkmcnt(0)")
        l0only(cs2)
        a(f"s_setprio 0")
        stamp(a, 9)
    pl = a.uid("att_x")
    a(f"s_waitcnt lgkmcnt(0)\nv_cmp_ne_u32 vcc, s{sEP}, v31\ns_cbranch_vccnz {pl}")
    a.label(pl + "k")
    def respin():
        a.label(comb)
        a(f"s_mov_b32 s{sFB}, 1\ns_cmp_eq_u32 s{sKH}, 0\ns_cbranch_scc1 {yng}c")
        a.label(pl)
        a(f"s_mov_b32 s{t+12}, 0")
        a.label(pl + "l")
        for x in xreads(): a(x)
        a(f"""
        s_waitcnt lgkmcnt(0)
        v_cmp_ne_u32 vcc, s{sEP}, v31
        s_cbranch_vccz {pl}k
        s_add_u32 s{t+12}, s{t+12}, 1
        s_cmp_lt_u32 s{t+12}, {4*SPIN}
        s_cbranch_scc1 {pl}l
        s_branch {pl}k
        """)
    FF = 64
    for x in range(2):
        f = FF + 4*x
        a(f"v_max_f32 v{f+2}, v{8+x}, v{PR+13+16*x}\nv_sub_f32 v{f}, v{8+x}, v{f+2}\nv_sub_f32 v{f+1}, v{PR+13+16*x}, v{f+2}")
    for x in range(2):
        f = FF + 4*x
        a(f"v_exp_f32 v{f}, v{f}\nv_exp_f32 v{f+1}, v{f+1}")
    for x in range(2):
        f = FF + 4*x; o = OO + 16*x; pk = 72 + 6*x
        a(f"v_mul_f32 v{f+2}, v{f}, v{o+12}\nv_fmac_f32 v{f+2}, v{f+1}, v{PR+12+16*x}\nv_rcp_f32 v{f+2}, v{f+2}\ns_nop 0")
        a(f"v_mul_f32 v{f}, v{f}, v{f+2}\nv_mul_f32 v{f+2}, v{f+1}, v{f+2}")
        for i in range(0, 12, 2):
            a(f"v_pk_mul_f32 v[{o+i}:{o+i+1}], v[{o+i}:{o+i+1}], v[{f}:{f+1}] op_sel_hi:[1,0]")
        for i in range(0, 12, 2):
            a(f"v_pk_fma_f32 v[{o+i}:{o+i+1}], v[{PR+16*x+i}:{PR+1+16*x+i}], v[{f+2}:{f+3}], v[{o+i}:{o+i+1}] op_sel_hi:[1,0,1]")
        for i in range(6):
            a(f"v_cvt_pk_bf16_f32 v{pk+i}, v{o+2*i}, v{o+2*i+1}")
        a(f"""
        buffer_store_dwordx2 v[{pk}:{pk+1}], v{vO}, {WSR}, s{sO+x} offen {SB}
        buffer_store_dwordx2 v[{pk+2}:{pk+3}], v{vO}, {WSR}, s{sO+x} offen offset:512 {SB}
        s_mov_b32 exec_hi, 0
        buffer_store_dwordx2 v[{pk+4}:{pk+5}], v{vO}, {WSR}, s{sO+x} offen offset:1024 {SB}
        s_mov_b32 exec_hi, -1
        """)
    nck = a.uid("att_nc")
    a(f"s_cmp_lg_u32 s{sFB}, 0\ns_cbranch_scc1 {nck}")
    check()
    a.label(nck)
    flag_setup(a, 2)
    a("s_setprio 0\ns_waitcnt vmcnt(0)")
    flag_store(a, SB)
    a("s_barrier")
    l = a.uid("fk")
    a(f"s_xor_b32 s{sC}, s{sW}, 4\ns_or_b32 s{sC}, s{sC}, s{sL}\ns_cmp_lg_u32 s{sC}, 0\ns_cbranch_scc1 {l}\ns_lshl_b32 s{sC}, s{sWG}, 7\ns_add_u32 s{sC}, s{sC}, {L_FG + 40}")
    flag_store(a, "sc1", sC)
    a.label(l)
    stamp(a, 9)
    a(f"s_branch {ld_label}")
    for hk, fn in outl:
        a.label(hk); fn(); a(f"s_branch {hk}r")
    respin()
    older()
    def fallback():
        a.label(fb)
        sKb, sVb, sI = t+12, t+13, t+14
        def addr():
            a(f"""
            s_lshr_b32 s{sKb}, s{sI}, 2
            s_lshl_b32 s{sKb}, s{sKb}, 1
            s_add_u32 s{sKb}, s{sKb}, s{sKH}
            s_lshl_b32 s{sKb}, s{sKb}, 2
            s_and_b32 s{sVb}, s{sI}, 3
            s_add_u32 s{sKb}, s{sKb}, s{sVb}
            s_mul_i32 s{sKb}, s{sKb}, 1280
            s_add_u32 s{sKb}, s{sKb}, s{sHB}
            s_add_u32 s{sVb}, s{sKb}, {L_V}
            s_add_u32 s{sKb}, s{sKb}, {L_K}
            buffer_load_dwordx4 v[{KF}:{KF+3}], v5, {WSR}, s{sKb} offen sc1
            s_mov_b32 exec_hi, {0 if C.c0 else -1}
            buffer_load_dwordx2 v[{KF+4}:{KF+5}], v6, {WSR}, s{sKb} offen offset:1024 sc1
            s_mov_b32 exec_hi, -1
            """)
        l1 = a.uid("att_fb1"); l2 = a.uid("att_fb2")
        a(f"s_mov_b32 s{sI}, 0\nv_mov_b32 v8, 0xff800000\nv_mov_b32 v9, 0xff800000")
        a(f"s_mov_b32 exec_lo, 0\nv_mov_b64 v[{QA+4}:{QA+5}], 0\nv_mov_b64 v[{QB+4}:{QB+5}], 0\ns_mov_b32 exec_lo, -1")
        a.label(l1)
        addr()
        a("s_waitcnt vmcnt(0)")
        for x in range(2):
            for m in qk(x, 0, "0"): a(m)
        a.nop(12)
        for x in range(2):
            sd = SS + 16*x
            for i in range(0, 16, 2): a(f"v_max3_f32 v{8+x}, v{8+x}, v{sd+i}, v{sd+i+1}")
        a(f"s_add_u32 s{sI}, s{sI}, 1\ns_cmp_lt_u32 s{sI}, 32\ns_cbranch_scc1 {l1}")
        setm()
        for i in range(32): a(f"v_mov_b32 v{OO+i}, 0")
        a(f"s_mov_b32 s{sI}, 0")
        a.label(l2)
        addr()
        a(f"""
        s_mov_b64 exec, s[{sEX}:{sEX+1}]
        buffer_load_dwordx4 v[{VF}:{VF+3}], v7, {WSR}, s{sVb} offen sc1
        buffer_load_dwordx4 v[{VF+4}:{VF+7}], v7, {WSR}, s{sVb} offen offset:640 sc1
        s_mov_b64 exec, -1
        s_waitcnt vmcnt(0)
        """)
        for x in range(2):
            for m in qk(x, 0): a(m)
        a.nop(12)
        for x in range(2):
            for i in sm(x): a(i)
        a("s_nop 1")
        for x in range(2):
            for m in pv(x, 0): a(m)
        a(f"s_add_u32 s{sI}, s{sI}, 1\ns_cmp_lt_u32 s{sI}, 32\ns_cbranch_scc1 {l2}")
        a.nop(12)
        a(f"s_branch {comb}")
    return fallback

def xoff(SB, which):
    if SB == "": return (False, L_X1)
    return (True, L_X1) if which == 1 else (False, L_X2)
def add_x(a, dst, src, SB, which):
    lo, c = xoff(SB, which)
    a(f"s_add_u32 s{dst}, s{src}, {c}")
    if lo: a(f"s_add_u32 s{dst}, s{dst}, s{sLO}")

def proj_compute(a, down, SB, end_label):
    fast = SB == ""
    t = T
    K = F if down else D
    NCH = K // 128
    sRT, sCT = t, t+1
    st0 = 13 if down else 10
    sF, sRM, sST, sA, sA1, sThr, sSel = t+4, t+5, t+12, t+2, t+3, t+9, t+10
    NWS = 3 if down else C.wo_sets
    ACC = 14; RX = 34; AF = 54; WF = 134 if down else 54 + 16*C.wo_nas; RES = (220 if down else 54); VST = 200
    assert WF + 20*NWS <= 254
    vF, vF2, vR, vR2 = 10, 11, 12, 13
    a(f"""
    s_lshr_b32 s{sRT}, s{sWG}, 3
    s_and_b32 s{sCT}, s{sR}, 7
    v_and_b32 v3, 15, v0
    v_lshrrev_b32 v7, 4, v0
    s_lshl_b32 s{t+6}, s{sRT}, 1
    s_lshr_b32 s{t+7}, s{sW}, 1
    s_add_u32 s{t+6}, s{t+6}, s{t+7}
    s_and_b32 s{t+8}, s{sW}, 1
    s_lshl_b32 s{t+8}, s{t+8}, 8
    s_mul_i32 s{sA}, s{t+6}, {K*64}
    s_add_u32 s{sA}, s{sA}, s{t+8}
    {"" if fast else f"s_add_u32 s{sA}, s{sA}, s{sLO}"}
    s_add_u32 s{sA}, s{sA}, {(L_Q if fast else L_H) if down else L_O}
    s_mul_i32 s{sF}, s{t+6}, 40960
    s_mul_i32 s{t+7}, s{sCT}, 5120
    s_add_u32 s{sF}, s{sF}, s{t+7}
    s_add_u32 s{sF}, s{sF}, s{t+8}
    s_lshl_b32 s{sST}, s{sW}, 8
    s_lshl_b32 s{t+7}, s{sRT}, 12
    s_add_u32 s{sST}, s{sST}, s{t+7}
    s_add_u32 s{sST}, s{sST}, s{sLO}
    s_lshl_b32 s{sRM}, s{sRT}, 2
    s_add_u32 s{sRM}, s{sRM}, s{sW}
    s_mul_i32 s{sRM}, s{sRM}, {16*1280}
    s_mul_i32 s{t+7}, s{sCT}, 160
    s_add_u32 s{sRM}, s{sRM}, s{t+7}
    v_lshlrev_b32 v1, 4, v3
    v_lshl_add_u32 v{vF}, v7, 9, v1
    v_lshrrev_b32 v2, 5, v0
    v_lshl_add_u32 v1, v2, 9, v1
    v_and_b32 v2, 1, v7
    v_lshl_add_u32 v{vF2}, v2, 3, v1
    v_add_u32 v{vF2}, 4096, v{vF2}
    v_mul_u32_u24 v1, 1280, v3
    v_lshl_add_u32 v{vR}, v7, 4, v1
    v_lshl_add_u32 v{vR2}, v7, 3, v1
    v_add_u32 v9, 4096, v{vF}
    """)
    if C.x_a == 1 and not down: a(f"s_lshr_b32 s{sA}, s{sW}, 1\ns_mul_i32 s{sA}, s{sA}, 40960\ns_add_u32 s{sA}, s{sA}, s{t+8}\ns_add_u32 s{sA}, s{sA}, {WS_WTG}")
    SA = Src(sA, sA1, sThr, 8192)
    if down:
        a(f"s_and_b32 s{t+7}, s{sRT}, 3\ns_mul_i32 s{t+7}, s{t+7}, {C.rot_dn}\ns_sub_u32 s{sThr}, 12, s{t+7}")
        SA.setup(a, t+7, 12, t+8)
    def io(store, rowmajor, rsrc, soff, reg, bits):
        op = "store" if store else "load"
        v16, v8 = (vR, vR2) if rowmajor else (vF, vF2)
        o1, o2 = (64, 128) if rowmajor else (2048, 0)
        return [f"buffer_{op}_dwordx4 v[{reg}:{reg+3}], v{v16}, {rsrc}, {soff} offen {bits}",
                f"buffer_{op}_dwordx4 v[{reg+4}:{reg+7}], v{v16}, {rsrc}, {soff} offen offset:{o1} {bits}",
                f"buffer_{op}_dwordx2 v[{reg+8}:{reg+9}], v{v8}, {rsrc}, {soff} offen offset:{o2} {bits}"]
    if down:
        add_x(a, t+7, sF, SB, 1)
        for x in io(False, False, WSR, f"s{t+7}", RES, "sc1"): a(x)
        a(f"s_add_u32 s{t+7}, s{sST}, {L_ST1}\nv_lshlrev_b32 v1, 4, v3")
        for i in range(4):
            a(f"buffer_load_dwordx4 v[{VST+4*i}:{VST+4*i+3}], v1, {WSR}, s{t+7} offen offset:{1024*i} sc1")
        if fast:
            a(f"s_lshl_b32 s{t+8}, s{sWG}, 9\ns_add_u32 s{t+8}, s{t+8}, {L_ST2}\nv_lshlrev_b32 v1, 7, v0\ns_mov_b64 exec, 15")
            a(f"buffer_load_dword v8, v1, {WSR}, s{t+8} offen\ns_mov_b64 exec, -1")
    else:
        l1 = a.uid("prj_r1"); l2 = a.uid("prj_r2")
        a(f"s_cmp_lg_u32 s{sL}, 0\ns_cbranch_scc1 {l1}")
        for x in io(False, True, R(R_X), f"s{sRM}", RES, ""): a(x)
        a(f"s_branch {l2}")
        a.label(l1)
        add_x(a, t+7, sF, SB, 2)
        for x in io(False, False, WSR, f"s{t+7}", RES, "sc1"): a(x)
        a.label(l2)
    a(f"v_lshlrev_b32 v4, 4, v0\nv_add_u32 v5, 61440, v4\nv_add_u32 v6, 122880, v4\ns_mov_b32 s{t+8}, 0xffff0000")
    def wadr(c):
        o = dnW(c) if down else c * 20480
        return 4 + o // 61440, o % 61440
    def reads(c, u):
        b = WF + 20*((4*c + u) % NWS); r, o = wadr(c)
        return [f"ds_read_b128 v[{b+4*jn}:{b+4*jn+3}], v{r} offset:{o + 5120*u + 1024*jn}" for jn in range(5)]
    NAS = 5 if down else C.wo_nas
    def aload(c):
        r = []
        if down and C.rot_dn: r += [f"s_cmp_gt_u32 s{sThr}, {c}", f"s_cselect_b32 s{sSel}, s{sA}, s{sA1}", f"s_add_u32 s{sSel}, s{sSel}, {c*8192}"]
        else: r += [f"s_add_u32 s{sSel}, s{sA}, {c*8192}"]
        for u in range(4):
            d = AF + 16*(c % NAS) + 4*u
            r.append(f"buffer_load_dwordx4 v[{d}:{d+3}], v{vF if u < 2 else 9}, {WSR}, s{sSel} offen offset:{2048*(u & 1)} sc1")
        return r
    def mfmas(c, u, zero=False):
        b = WF + 20*((4*c + u) % NWS); x = AF + 16*(c % NAS) + 4*u
        return [f"v_mfma_f32_16x16x32_bf16 {v(ACC+4*jn,4)}, {v(b+4*jn,4)}, {v(x,4)}, {0 if zero else v(ACC+4*jn,4)}" for jn in range(5)]
    D_ = NWS - 1
    rd = lambda st_: reads(st_ // 4, st_ % 4) if st_ < 4*NCH else []
    if down: a(f"s_and_b32 s{t+7}, s{sRT}, 3\ns_mul_i32 s{t+7}, s{t+7}, {4 if C.rot_dn else 0}")
    G_ = gate_local(a, "down" if down else "wo", 4 if down else 2, 1, 2, t+7)
    def setup2():
        if not down: a("s_waitcnt vmcnt(0)")
        for i in range(10):
            a(f"v_lshlrev_b32 v{RX+2*i}, 16, v{RES+i}\nv_and_b32 v{RX+1+2*i}, s{t+8}, v{RES+i}")
        if down:
            row_stats(a, VST, VST + 2, VST + 3)
            a(f"v_mul_f32 v{VST+2}, v{VST+3}, v{VST+3}")
        if not down: a("s_barrier")
        for st_ in range(D_):
            for x in rd(st_): a(x)
    if down: G_.load(); G_.upd()
    setup2()
    def al(c):
        G_.need(span(128*c, 128*c + 127, 96, 2) if down else (span(128*c, 128*c + 127, 20, 1) if C.x_a != 3 else 0xffffffff))
        if c == 0: stamp(a, st0)
        for x in aload(c):
            if C.x_d == 1 and down and c >= 3 and x.startswith("buffer"): x = x.replace(WSR, R(R_WQ)).replace(f"s{sSel} offen", "0 offen").replace("sc1", "")
            a(x)
    NPRE = C.dn_a if down else C.wo_a
    N0 = C.dn_a0 if down else C.wo_a0
    assert NPRE < NAS or NCH <= NAS
    for c in range(N0): al(c)
    stamp(a, 21 if down else 5)
    nis = N0; pend = []; nld = 4*N0
    for c in range(NCH):
        for u in range(4):
            step = 4*c + u
            left = min(D_ - 1, 4*NCH - 1 - step)
            assert nld > step
            a(f"s_waitcnt vmcnt({nld - step - 1}) lgkmcnt({min(15, 5*left)})")
            if down and C.stamp and C.dbg == 8 and u in (0, 2): a(f"s_memtime s[10:11]\ns_waitcnt lgkmcnt(0)\nv_writelane_b32 v254, s10, {2*c + u//2}")
            if step == 4*NCH - 1 or (down and u == 2 and c + 1 < NCH): a("s_barrier")
            if not pend and nis < min(NCH, c + NPRE + 1):
                full = down and nis >= C.dn_full
                G_.need(0xffffffff if full else (span(128*nis, 128*nis + 127, 96, 2) if down else span(128*nis, 128*nis + 127, 20, 1)))
                ld = aload(nis); nis += 1
                for x in ld[:-4]: a(x)
                pend = ld[-4:]
            k = 2 if nld - step < 4*NPRE - 2 else 1
            mf = mfmas(c, u, step == 0); r_ = rd(step + D_)
            for i in range(5):
                a(mf[i])
                if r_: a(r_[i])
                if pend and i in ((4,) if k == 1 else (1, 4)): a(pend.pop(0)); nld += 1
    stamp(a, st0 + 1)
    add_x(a, t+7, sF, SB, 2 if down else 1)
    flag_setup(a, 5 if down else 3)
    for i in range(0, 20, 2):
        c = ACC + i
        if down: a(f"v_pk_fma_f32 v[{c}:{c+1}], v[{c}:{c+1}], v[{VST+2}:{VST+3}], v[{RX+i}:{RX+i+1}] op_sel_hi:[1,0,1]")
        else: a(f"v_pk_add_f32 v[{c}:{c+1}], v[{c}:{c+1}], v[{RX+i}:{RX+i+1}]")
        a(f"v_cvt_pk_bf16_f32 v{60+i//2}, v{c}, v{c+1}")
    if down:
        l1 = a.uid("prj_o1")
        a(f"s_cmp_eq_u32 s{sL}, 0\ns_cbranch_scc1 {l1}")
        srd(a, R_T, P_OUT, ACT)
        for x in io(True, True, R(R_T), f"s{sRM}", 60, ["", "sc1", "nt"][C.outb]): a(x)
        a(f"s_branch {end_label}")
        a.label(l1)
    for x in io(True, False, WSR, f"s{t+7}", 60, SB): a(x)
    a(f"v_pk_add_f32 v[72:73], v[{ACC}:{ACC+1}], v[{ACC+2}:{ACC+3}]\nv_pk_mul_f32 v[74:75], v[{ACC}:{ACC+1}], v[{ACC}:{ACC+1}]")
    a(f"v_pk_fma_f32 v[74:75], v[{ACC+2}:{ACC+3}], v[{ACC+2}:{ACC+3}], v[74:75]")
    for i in range(4, 20, 2):
        a(f"v_pk_add_f32 v[72:73], v[72:73], v[{ACC+i}:{ACC+i+1}]\nv_pk_fma_f32 v[74:75], v[{ACC+i}:{ACC+i+1}], v[{ACC+i}:{ACC+i+1}], v[74:75]")
    a(f"""
    v_add_f32 v72, v72, v73
    v_add_f32 v73, v74, v75
    s_lshr_b32 s{t+7}, s{sCT}, 1
    s_lshl_b32 s{t+7}, s{t+7}, 10
    v_permlane32_swap_b32 v72, v73
    s_and_b32 s{t+8}, s{sCT}, 1
    s_lshl_b32 s{t+8}, s{t+8}, 3
    v_add_f32 v72, v72, v73
    v_mov_b32 v73, v72
    s_add_u32 s{t+7}, s{t+7}, s{t+8}
    s_add_u32 s{t+7}, s{t+7}, s{sST}
    v_permlane16_swap_b32 v72, v73
    s_add_u32 s{t+7}, s{t+7}, {L_ST2 if down else L_ST1}
    v_lshrrev_b32 v8, 5, v0
    v_lshlrev_b32 v8, 2, v8
    v_lshl_add_u32 v8, v3, 4, v8
    v_add_f32 v72, v72, v73
    buffer_store_dword v72, v8, {WSR}, s{t+7} offen {SB}
    s_waitcnt vmcnt(0)
    """)
    flag_store(a, SB)
    a("s_barrier")
    stamp(a, st0 + 2)

def gu_compute(a, SB):
    t = T
    sRT, sCT, sWM, sWN, sTB, sF0 = t, t+1, t+2, t+3, t+4, t+6
    FR = 16; ACC = 96; VCS = 192; VST = 216; MS = 232
    a(f"""
    s_lshr_b32 s{sRT}, s{sWG}, 4
    s_and_b32 s{sCT}, s{sR}, 15
    s_and_b32 s{sWM}, s{sW}, 1
    s_lshr_b32 s{sWN}, s{sW}, 1
    s_lshl_b32 s{sTB}, s{sRT}, 1
    s_add_u32 s{sTB}, s{sTB}, s{sWM}
    s_mul_i32 s{sF0}, s{sCT}, 96
    s_mul_i32 s{t+5}, s{sWN}, 48
    s_add_u32 s{sF0}, s{sF0}, s{t+5}
    s_mul_i32 s{t+5}, s{sWG}, 768
    s_mul_i32 s{t+7}, s{sWN}, 384
    s_add_u32 s{t+5}, s{t+5}, s{t+7}
    s_add_u32 s{t+5}, s{t+5}, {WS_CSG}
    v_lshrrev_b32 v12, 4, v0
    v_lshlrev_b32 v1, 4, v12
    """)
    for f in range(6):
        a(f"buffer_load_dwordx4 v[{VCS+4*f}:{VCS+4*f+3}], v1, {WSR}, s{t+5} offen offset:{64*f} sc1")
    a(f"""
    v_and_b32 v13, 15, v0
    v_lshlrev_b32 v3, 4, v13
    v_lshl_add_u32 v3, v12, 9, v3
    s_lshl_b32 s{t+5}, s{sWM}, 13
    v_add_u32 v3, s{t+5}, v3
    v_lshlrev_b32 v11, 4, v0
    s_mul_i32 s{t+5}, s{sWN}, 6144
    s_add_u32 s{t+5}, s{t+5}, {WB}
    v_add_u32 v4, s{t+5}, v11
    v_add_u32 v5, 49152, v4
    v_lshlrev_b32 v6, 2, v13
    s_mul_i32 s{t+11}, s{sTB}, {2*F*64}
    s_lshl_b32 s{t+7}, s{sF0}, 6
    s_add_u32 s{t+11}, s{t+11}, s{t+7}
    {"" if SB == "" else f"s_add_u32 s{t+11}, s{t+11}, s{sLO}"}
    s_add_u32 s{t+11}, s{t+11}, {L_Q if SB == "" else L_H}
    s_add_u32 s{t+12}, s{t+11}, {F*64}
    """)
    flag_setup(a, 4)
    def reads(c, u):
        b = FR + 40*u; o = guW(c) - WB
        ra = [f"ds_read_b128 v[{b+4*tt}:{b+4*tt+3}], v3 offset:{(c % 4)*16384 + 4096*(tt >> 1) + 256*(tt & 1) + 2048*u}" for tt in range(4)]
        rw = [f"ds_read_b128 v[{b+16+4*f}:{b+19+4*f}], v{4 + o // 49152} offset:{o % 49152 + 12288*u + 1024*f}" for f in range(6)]
        return ra + rw
    def mfma(u, tl, z):
        b = FR + 40*u; c = ACC + 4*tl
        return f"v_mfma_f32_16x16x32_bf16 {v(c,4)}, {v(b+16+4*(tl>>2),4)}, {v(b+4*(tl&3),4)}, {0 if z else v(c,4)}"
    def epi(jn, pk):
        r = []
        g = ACC + 32*jn; u_ = g + 16
        for tp in range(2):
            c = g + 8*tp; d = u_ + 8*tp
            for i in range(8): r.append(f"v_max_f32 v{c+i}, 0, v{c+i}")
            if pk:
                for i in range(0, 8, 2): r.append(f"v_pk_mul_f32 v[{c+i}:{c+i+1}], v[{c+i}:{c+i+1}], v[{d+i}:{d+i+1}]")
            else:
                for i in range(8): r.append(f"v_mul_f32 v{c+i}, v{c+i}, v{d+i}")
            for i in range(4): r.append(f"v_cvt_pk_bf16_f32 v{c+i}, v{c+2*i}, v{c+2*i+1}")
            r += ["s_nop 0", f"v_permlane16_swap_b32 v{c}, v{c+2}", f"v_permlane16_swap_b32 v{c+1}, v{c+3}"]
            r.append(f"buffer_store_dwordx4 v[{c}:{c+3}], v11, {WSR}, s{t+11+tp} offen offset:{1024*jn} {SB}")
        return r
    a(f"s_lshl_b32 s{t+5}, s{sTB}, 12\ns_add_u32 s{t+5}, s{t+5}, s{sLO}\ns_add_u32 s{t+5}, s{t+5}, {L_ST1}")
    ins = {}
    for i in range(4): ins[36 + 48*C.gfull + 3*i] = [f"buffer_load_dwordx4 v[{VST+4*i}:{VST+4*i+3}], v11, {WSR}, s{t+5} offen offset:{1024*i} sc1"]
    ins[82 + 48*C.gfull] = ["s_waitcnt vmcnt(0)"] + [f"v_add_f32 v{VST}, v{VST}, v{VST+2*i}" for i in range(1, 8)] + \
         [f"v_mul_f32 v{MS}, {f32(-1.0/D)}, v{VST}", f"v_mul_f32 v{MS+1}, {f32(-1.0/D)}, v{VST}", "s_nop 0", f"v_permlane16_swap_b32 v{MS}, v{MS+1}",
          f"v_mov_b32 v{MS+2}, v{MS}", f"v_mov_b32 v{MS+3}, v{MS+1}", "s_nop 0", f"v_permlane32_swap_b32 v{MS}, v{MS+2}", f"v_permlane32_swap_b32 v{MS+1}, v{MS+3}"]
    fix = lambda tl: [f"v_fmac_f32 v{ACC+4*tl+i}, v{MS+(tl&3)}, v{VCS+4*(tl>>2)+i}" for i in range(4)]
    gemm16(a, 10, 24, reads, mfma, [tuple(range(8*j, 8*j+8)) for j in range(3)], ins, fix, 122 + 48*C.gfull, epi, 22, C.g16)
    a("s_waitcnt vmcnt(0)")
    flag_store(a, SB)
    a("s_barrier")
    stamp(a, 23)

def loader_chain(a, SB, end_label, idle_label):
    t = T
    sLW, s4, s5, s6, aGU, aGU1, wGU, wGU1, wDN, wDN1, aQK, aQK1, wQK, wQK1, th10, th12, sTmp, sSel, thq = range(t, t + 19)
    sRot = sSel
    a(f"""
    s_sub_u32 s{sLW}, s{sW}, 4
    v_lshlrev_b32 v8, 4, v0
    s_mul_i32 s{s6}, s{sLW}, 6144
    s_and_b32 s{wGU}, s{sR}, 15
    s_mul_i32 s{wGU}, s{wGU}, 245760
    s_add_u32 s{wGU}, s{wGU}, s{s6}
    s_add_u32 s{wGU}, s{wGU}, {WS_WTG}
    s_lshr_b32 s{sRot}, s{sR}, 4
    s_mul_i32 s{sRot}, s{sRot}, {C.rot_gu}
    s_sub_u32 s{th10}, 10, s{sRot}
    """)
    S_aGU = Src(aGU, aGU1, th10, 4096); S_wGU = Src(wGU, wGU1, th10, 24576); S_wDN = Src(wDN, wDN1, th12, 20480)
    S_aQK = Src(aQK, aQK1, thq, 4096); S_wQK = Src(wQK, wQK1, thq, 64*3840)
    S_aGU.norot = S_wGU.norot = not C.rot_gu; S_wDN.norot = not C.rot_dn; S_aQK.norot = S_wQK.norot = not C.rot_qk
    S_wGU.setup(a, sRot, 10, sTmp)
    def rest():
        a(f"""
        s_lshl_b32 s{s4}, s{sLW}, 12
        s_mul_i32 s{s5}, s{sLW}, 5120
        s_lshr_b32 s{aQK}, s{sWG}, 4
        s_lshl_b32 s{aQK}, s{aQK}, 2
        s_add_u32 s{aQK}, s{aQK}, s{sLW}
        s_mul_i32 s{aQK}, s{aQK}, 40960
        """)
        add_x(a, aGU, aQK, SB, 1)
        add_x(a, aQK, aQK, SB, 2)
        a(f"s_and_b32 s{wDN}, s{sR}, 15")
        qkvW_setup(a, wQK, sLW, wDN, sTmp, 6)
        a(f"s_sub_u32 s{sRot}, 10, s{th10}")
        S_aGU.setup(a, sRot, 10, sTmp)
        a(f"s_lshr_b32 s{sRot}, s{sR}, 4\ns_mul_i32 s{sRot}, s{sRot}, {C.rot_qk}\ns_sub_u32 s{thq}, 10, s{sRot}")
        for S_ in (S_aQK, S_wQK): S_.setup(a, sRot, 10, sTmp)
        a(f"""
        s_and_b32 s{wDN}, s{sR}, 7
        s_mul_i32 s{wDN}, s{wDN}, 245760
        s_add_u32 s{wDN}, s{wDN}, s{s5}
        s_add_u32 s{wDN}, s{wDN}, {WS_WTD}
        s_lshr_b32 s{sRot}, s{sR}, 3
        s_mul_i32 s{sRot}, s{sRot}, {C.rot_dn}
        s_sub_u32 s{th12}, 12, s{sRot}
        """)
        S_wDN.setup(a, sRot, 12, sTmp)
    G_ = [None, None]
    def lin(S_, dst, dfn, bits):
        def f(c, i0, k):
            if bits == "sc1":
                G_[0].need(span(64*c, 64*c + 63, 80, 2) if C.gran else 0xffff)
                if G_[1] is not None: stamp(a, G_[1]); G_[1] = None
            if not S_.norot: S_.sel(a, c, sSel)
            lin_dma(a, 8, S_.sB if S_.norot else sSel, (0 if (C.x_gh and S_ is S_wGU) else c)*S_.stride + 1024*i0, dst, dfn(c) + 1024*i0, k, bits)
        return f
    def pf(kind, ep, st, rot):
        def f():
            a(f"s_lshr_b32 s{sTmp}, s{sR}, 4\ns_mul_i32 s{sTmp}, s{sTmp}, {4 if rot else 0}")
            G_[0] = gate_local(a, kind, ep, 1, 2, sTmp, sleep=C.psleep); G_[1] = st
        return f
    def emitWQ(c, i0, k):
        if not S_wQK.norot: S_wQK.sel(a, c, sSel)
        for i in range(i0, i0 + k):
            a(f"s_add_u32 m0, s{s4}, {qkW(c) + 1024*i}\ns_add_u32 s{sTmp}, s{wQK if S_wQK.norot else sSel}, {c*64*3840 + i*4*3840}")
            a(f"buffer_load_dwordx4 v{6 + (i >> 1)}, {R(R_WQ)}, s{sTmp} offen lds")
    rA = lambda c: (c % 4) * 16384
    mark = [0]
    def gu_bar(c):
        if c == C.gfull: G_[0].need(0xffff)
        if C.thr0 >= 0 and 1 <= c < 8:
            l = a.uid("t0")
            a(f"s_cmp_lg_u32 s{sL}, 0\ns_cbranch_scc1 {l}\ns_waitcnt vmcnt({C.thr0})")
            a.label(l)
        if SB != "": return
        if c == C.fkc:
            a(f"v_lshlrev_b32 v4, 7, v0\ns_lshl_b32 s{thq}, s{sLW}, 13\ns_add_u32 s{thq}, s{thq}, {L_FG + 40}\nbuffer_load_dword v5, v4, {WSR}, s{thq} offen sc1")
            L.q.append(("gu", "P", 99)); mark[0] = L.total
        if c == C.fkc + 2:
            l = a.uid("fkc")
            a(f"s_cmp_lg_u32 s{sL}, 0\ns_cbranch_scc1 {l}")
            poll(a, 4, 5, f"s{thq}", f"s{sEP}", sleep=2, pre=L.total - mark[0])
            a.label(l)
    assert C.fkc + 2 <= 8 and not C.rot_qk
    full = lambda c: G_[0].need(0xffff) if c == 1 else None
    reg = lambda f, sz: (lambda c: (f(c), f(c) + sz))
    gu = Phase("gu", 10, 4, 6, lin(S_aGU, s4, rA, "sc1"), lin(S_wGU, s6, guW, "nt" if C.nt_gu else ""), reg(rA, 16384), reg(guW, 24576), pf("gu", 3, 21, C.rot_gu), C.bud_gu, dbg=(C.dbg == 3), after_bar=gu_bar)
    dn = Phase("dn", 12, 0, 5, None, lin(S_wDN, s5, dnW, "nt" if C.nt_dn else ""), None, reg(dnW, 20480), None, C.bud_dn, lag=2, early=C.dn_early, dbg=(C.dbg == 4))
    qk = Phase("qk", 10, 4, 4, lin(S_aQK, s4, rA, "sc1"), emitWQ, reg(rA, 16384), reg(qkW, 16384), pf("gu", 5, 17, C.rot_qk), C.bud_qk, early=C.qk_early, dbg=(C.dbg == 2), after_bar=full)
    L = Loader(a)
    L.live["wo"] = (0, 102400)
    if C.ldprio: a(f"s_setprio {C.ldprio}")
    pn = L.pre(gu, 0, C.gu_e, C.thr_p)
    rest()
    if C.wpf:
        l = a.uid("wpf")
        a(f"""
        s_cmp_lg_u32 s{sL}, 0
        s_cbranch_scc1 {l}
        s_lshr_b32 s{sTmp}, s{sR}, 4
        s_lshl_b32 s{sSel}, s{sLW}, 1
        s_add_u32 s{sTmp}, s{sTmp}, s{sSel}
        s_mul_i32 s{sTmp}, s{sTmp}, 24576
        s_sub_u32 s{sSel}, s{wGU}, s{s6}
        s_add_u32 s{sTmp}, s{sTmp}, s{sSel}
        s_add_u32 s{sTmp}, s{sTmp}, {49152 + 8192*C.ev0}
        v_lshlrev_b32 v4, 7, v0
        s_mov_b32 exec_lo, {hex((1 << C.wpl) - 1)}
        s_mov_b32 exec_hi, 0
        """)
        for i in range(C.wpf):
            a(f"s_waitcnt vmcnt({C.wpd - 1})\nbuffer_load_dword v5, v4, {WSR}, s{sTmp} offen\ns_add_u32 s{sTmp}, s{sTmp}, {128*C.wpl}")
        a("s_mov_b64 exec, -1")
        a.label(l)
    a("s_barrier")
    L.live.pop("wo")
    pn = L.pre(gu, pn, C.gu_e2, C.thr_e)
    a("s_barrier"); pn = L.pre(gu, pn, C.gu_p)
    pn = L.run(gu, dn, pn); stamp(a, 22); L.end(gu); pn = L.pre(dn, pn, C.dn_e, C.thr_e)
    L.wait({("dn", "W", 0)}); a("s_barrier"); pn = L.pre(dn, pn, C.dn_p, C.thr_p)
    dn.skip0 = True
    if C.qpf:
        a(f"s_lshl_b32 s{thq}, s{sR}, 2\ns_add_u32 s{thq}, s{thq}, s{sLW}\ns_mul_i32 s{thq}, s{thq}, {C.qpl*128}\nv_lshlrev_b32 v4, 7, v0")
        def qpf(c):
            k = c - C.qpf0
            if k % C.qps or not 0 <= k // C.qps < C.qpf: return
            k //= C.qps
            off = D*3*D*2 - (C.qpf - k) * C.qpl * 128 * 128
            a(f"s_add_u32 s{sTmp}, s{thq}, {off}\ns_mov_b64 exec, {hex((1 << C.qpl) - 1) if C.qpl <= 31 else -1}")
            if C.qpl == 32: a("s_mov_b32 exec_hi, 0")
            a(f"buffer_load_dword v5, v4, {R(R_WQ)}, s{sTmp} offen\ns_mov_b64 exec, -1")
            L.q.append(("dn", "P", 99))
        dn.after_bar = qpf
        assert not C.rot_qk
    def lastexit(ws_):
        l = a.uid("lx")
        a(f"s_cmp_eq_u32 s{sL}, 0\ns_cbranch_scc1 {l}")
        for w_ in ws_: a(f"s_waitcnt vmcnt({w_})\ns_barrier")
        a(f"s_barrier\ns_branch {end_label}")
        a.label(l)
    pn = L.run(dn, qk, pn, lastexit=lastexit); stamp(a, 14); L.end(dn)
    a(f"s_cmp_lg_u32 s{sL}, 0\ns_cbranch_scc1 {end_label}")
    pn = L.pre(qk, pn, C.qk_e, C.thr_e)
    a("s_barrier")
    a(f"s_and_b32 s{sTmp}, s{sR}, 15\ns_cmp_eq_u32 s{sTmp}, 15\ns_cbranch_scc1 {idle_label}")
    pn = L.pre(qk, pn, C.qk_p)
    L.run(qk, None, pn); stamp(a, 19); L.end(qk)

def build():
    a = Asm()
    K = NAME + "_kernel"
    t = T
    a(f".globl {K}\n.p2align 8\n.type {K},@function")
    a.label(K)
    a(f"""
    s_load_dwordx16 s[16:31], s[0:1], 0
    s_load_dwordx4 s[32:35], s[0:1], 64
    s_cmp_ge_u32 s2, 256
    s_cbranch_scc1 L_exit
    s_and_b32 s{sG}, s2, 7
    s_lshr_b32 s{sR}, s2, 3
    v_lshrrev_b32 v1, 6, v0
    v_and_b32 v0, 63, v0
    v_readfirstlane_b32 s{sW}, v1
    s_lshl_b32 s{sWG}, s{sG}, 5
    s_add_u32 s{sWG}, s{sWG}, s{sR}
    s_mov_b32 s{sL}, 0
    s_mov_b32 s{sLO}, 0
    s_mov_b32 s{sEP}, 0
    s_mov_b32 s{sTMO}, 0
    """)
    if C.stamp: a("v_mov_b32 v255, 0\nv_mov_b32 v254, 0\ns_memrealtime s[14:15]")
    stamp(a, 0)
    qkv_ids(a, t)
    a(f"s_cmp_lt_u32 s{sW}, 4\ns_cbranch_scc1 L_q1c\ns_cmp_eq_u32 s{t+1}, 15\ns_cbranch_scc1 L_q1c")
    qkv1_loader(a)
    a("s_branch L_q1done")
    a.label("L_q1c")
    a("s_waitcnt lgkmcnt(0)")
    srd(a, R_X, P_X, ACT)
    srd(a, R_WQ, P_WQKV, D*3*D*2)
    a(f"""
    s_cmp_gt_u32 s{sW}, 3
    s_cbranch_scc1 L_npf
    s_lshl_b32 s{t+8}, s{sWG}, 2
    s_add_u32 s{t+8}, s{t+8}, s{sW}
    s_mul_i32 s{t+8}, s{t+8}, 2560
    v_lshrrev_b32 v1, 5, v0
    v_mul_u32_u24 v1, 1280, v1
    v_and_b32 v2, 31, v0
    v_lshl_add_u32 v1, v2, 4, v1
    v_mov_b64 v[228:229], 0
    v_mov_b64 v[230:231], 0
    buffer_load_dwordx4 v[220:223], v1, {R(R_X)}, s{t+8} offen
    buffer_load_dwordx4 v[224:227], v1, {R(R_X)}, s{t+8} offen offset:512
    s_mov_b32 exec_lo, 0xffff
    s_mov_b32 exec_hi, 0xffff
    buffer_load_dwordx4 v[228:231], v1, {R(R_X)}, s{t+8} offen offset:1024
    s_mov_b64 exec, -1
    """)
    a.label("L_npf")
    other_srds(a)
    a(f"s_cmp_eq_u32 s{t+1}, 15\ns_cbranch_scc1 L_q1idle")
    qkv_compute(a, True, "sc1")
    a("s_branch L_q1done")
    a.label("L_q1idle")
    qkv1_idle(a)
    a.label("L_q1done")
    a(f"s_cmp_eq_u32 s{sMODE}, 0\ns_cbranch_scc1 L_slow")
    tails = []
    for nm, SB in (("fast", ""), ("slow", "sc1")):
        a.label(f"L_{nm}")
        tails.append(phase_attn(a, SB, f"L_{nm}_ld"))
        if nm == "fast": a.label("L_fast_post")
        proj_compute(a, False, SB, None)
        gu_compute(a, SB)
        proj_compute(a, True, SB, "L_end")
        qkv_ids(a, t)
        a(f"s_cmp_eq_u32 s{t+1}, 15\ns_cbranch_scc1 L_{nm}_idle")
        qkv_compute(a, False, SB)
        a(f"s_branch L_{nm}_next")
        a.label(f"L_{nm}_ld")
        loader_chain(a, SB, "L_end", f"L_{nm}_idle")
        a(f"s_branch L_{nm}_next")
        a.label(f"L_{nm}_idle")
        a("s_waitcnt vmcnt(0)\ns_barrier")
        a.label(f"L_{nm}_next")
        if C.ldprio: a("s_setprio 0")
        a(f"s_mov_b32 s{sL}, 1\ns_mov_b32 s{sLO}, {LSTRIDE}\ns_add_u32 s{sEP}, s{sEP}, 5\ns_mov_b32 s{R_WQ+2}, 0\ns_branch L_{nm}")
        if nm == "fast":
            a.label("L_end")
            a(f"""
            s_xor_b32 s{t}, s{sW}, 7
            s_or_b32 s{t}, s{t}, s2
            s_cmp_lg_u32 s{t}, 0
            s_cbranch_scc1 L_end2
            v_mov_b32 v1, 0
            s_mov_b64 exec, 1
            global_store_dword v1, v1, s[{P_DBG}:{P_DBG+1}] sc1
            s_mov_b64 exec, -1
            """)
            a.label("L_end2")
            if C.stamp:
                a("s_waitcnt vmcnt(0)")
                stamp(a, 16)
                a(f"""
                s_memrealtime s[10:11]
                s_waitcnt lgkmcnt(0)
                v_writelane_b32 v255, s14, 62
                v_writelane_b32 v255, s10, 63
                v_writelane_b32 v255, s{sTMO}, 61
                s_lshl_b32 s10, s2, 3
                s_add_u32 s10, s10, s{sW}
                s_lshl_b32 s10, s10, 8
                s_add_u32 s10, s10, {WS_STAMP}
                v_lshlrev_b32 v1, 2, v0
                v_add_u32 v1, s10, v1
                global_store_dword v1, v255, s[{P_WS}:{P_WS+1}]
                v_add_u32 v1, {1<<20}, v1
                global_store_dword v1, v254, s[{P_WS}:{P_WS+1}]
                """)
                if C.pj:
                    a(f"""
                    s_xor_b32 s{t}, s2, 8
                    s_xor_b32 s{t+1}, s{sW}, {C.pw}
                    s_or_b32 s{t}, s{t}, s{t+1}
                    s_cmp_lg_u32 s{t}, 0
                    s_cbranch_scc1 L_exit
                    v_readlane_b32 s{t+1}, v254, {C.pi}
                    v_readlane_b32 s{t+2}, v254, {C.pj % 64}
                    v_readlane_b32 s{t+3}, v254, 40
                    {f"s_mov_b32 s{t+1}, s14" if C.pi == 63 else ""}
                    s_sub_u32 s{t+1}, s{t+2}, s{t+1}
                    s_mul_i32 s{t+1}, s{t+1}, {C.pm}
                    s_add_u32 s{t+1}, s{t+1}, 1000
                    """)
                    a.label("L_probe")
                    a(f"""
                    s_memrealtime s[{t+4}:{t+5}]
                    s_waitcnt lgkmcnt(0)
                    s_sub_u32 s{t+6}, s{t+4}, s{t+3}
                    s_cmp_lt_u32 s{t+6}, s{t+1}
                    s_cbranch_scc1 L_probe
                    """)
                if C.dbgout:
                    a(f"s_xor_b32 s{t}, s2, 8\ns_or_b32 s{t}, s{t}, s{sW}\ns_cmp_lg_u32 s{t}, 0\ns_cbranch_scc1 L_exit\nv_readlane_b32 s{t+1}, v254, 0\nv_mov_b32 v1, 0")
                    for k, i in enumerate([1, 2, 7, 8, 10, 12, 23, 15, 20, 31, 32, 36, 47, 40]):
                        a(f"v_readlane_b32 s{t}, v254, {i}\ns_sub_u32 s{t}, s{t}, s{t+1}\ns_nop 1\nv_mov_b32 v2, s{t}\nglobal_store_dword v1, v2, s[{P_DBG}:{P_DBG+1}] offset:{4+4*k}")
            a.label("L_exit")
            a("s_endpgm")
            a.label("L_fast_end")
    for f in tails: f()
    hdr = open("cdna_kernels/" + NAME + ".s.ref").read().split("; Override")[0]
    hdr += "; @launch grid=(256,1,1) block=(512,1,1) lds=163840\n"
    txt = hdr + '.amdgcn_target "amdgcn-amd-amdhsa--gfx950"\n.text\n' + a.text() + f'''.section .rodata,"a"
.p2align 6
.amdhsa_kernel {K}
  .amdhsa_next_free_vgpr 256
  .amdhsa_next_free_sgpr 102
  .amdhsa_accum_offset 256
  .amdhsa_group_segment_fixed_size 0
  .amdhsa_kernarg_size 80
  .amdhsa_user_sgpr_count 2
  .amdhsa_user_sgpr_kernarg_segment_ptr 1
  .amdhsa_system_sgpr_workgroup_id_x 1
.end_amdhsa_kernel
'''
    for p in check(a.lines): print("HAZARD", p)
    return txt

if __name__ == "__main__":
    out = sys.argv[1] if len(sys.argv) > 1 else "cdna_kernels/" + NAME + ".s"
    for kv in sys.argv[2:]:
        k, _, val = kv.partition("=")
        assert hasattr(C, k), k
        setattr(C, k, int(val) if val else True)
    open(out, "w").write(build())
    print("written", out)
```

```python
import sys, math, struct
sys.path.insert(0, "gen")
from asmlib import *

NAME = "interleave_layers__softmax_full_mha__glu_gated_reglu__prompt"
S, D, F, H, DH = 2048, 640, 1536, 32, 20
ACT = S * D * 2
HEADB = 81920
L_Q = 0
L_K = L_Q + ACT
L_V = L_K + ACT
L_O = L_V + ACT
L_X1 = L_O + ACT
L_X2 = L_X1 + ACT
L_H = L_X2 + ACT
L_ST1 = L_H + S * F * 2
L_ST2 = L_ST1 + S * 64
L_FG = L_ST2 + S * 64
LSTRIDE = L_FG + 32768
WS_ST0 = LSTRIDE + L_ST2
WS_WTO = 2 * LSTRIDE
WS_WTD = WS_WTO + D * D * 2
WS_WTG = WS_WTD + F * D * 2
WS_CSP = WS_WTG + 2 * F * D * 2
WS_CSG = WS_CSP + 10 * 12288
WS_CSQ = WS_CSG + 256 * 768
WS_FL = WS_CSQ + 256 * 512
WS_END = WS_FL + 8192
WS_SIZE = 268435456
WS_STAMP = 200 << 20
QSCALE = (DH ** -0.5) * math.log2(math.e)
def f32(x): return "0x%08x" % struct.unpack("<I", struct.pack("<f", x))[0]

P_X, P_WQKV, P_WO, P_BX, P_WG, P_WU, P_WD, P_OUT, P_DBG, P_WS = 16, 18, 20, 22, 24, 26, 28, 30, 32, 34
sL, sG, sR, sW, sLO, sEP, sTMO, sWG = 3, 4, 5, 6, 7, 8, 9, 13
R_WS, R_X, R_WQ, R_WG, R_WU, R_T = 36, 40, 44, 48, 52, 56
T = 60
WSR = f"s[{R_WS}:{R_WS+3}]"
def R(r): return f"s[{r}:{r+3}]"
SPIN = 200000

class Cfg:
    stamp = False
    dbg = 0
    dbgout = 0
    pi = 0
    pj = 0
    pm = 1
    pw = 0
    look = 6
    gu_e = 12
    dn_e = 4
    qk_e = 0
    bud_gu = 10
    bud_dn = 3
    bud_qk = 6
    bud_q1 = 8
    dn_a = 3
    psleep = 1
    gran = 3
    flip = 0
    gfull = 1
    dn_a0 = 2
    wo_a0 = 2
    x_a = 0
    x_d = 0
    c_i = 6
    c_c = 7
    c_f = 8
    pp = 0
    x_q = 0
    hth = 0
    fkc = 5
    wpf = 4
    evh = 0
    wpd = 1
    wpl = 16
    bl = 0
    bln = 1
    thr0 = 5
    ev0 = 0
    ev1 = 0
    oxh = 6
    x_slow = 0
    x_gh = 0
    alias = 0
    ldprio = 0
    grp = 2
    qpf = 0
    qpf0 = 1
    qpl = 16
    qps = 1
    thr_e = 0
    thr_p = 0
    qk_s0 = 4
    dn_lag = 2
    dn_full = 5
    wo_a = 4
    wo_nas = 5
    c0 = 1
    g16 = 1
    e16 = 3
    wb = 0
    outb = 0
    q1prio = 0
    look_q1 = 6
    nocs = 0
    qloc = 1
    stage = 1
    cpf = 1
    l2pf0 = 0
    nt_kv = 0
    nt_wo = 0
    nt_gu = 0
    nt_dn = 0
    nt_qk = 0
    htouch = 0
    warm = 0
    gu_e2 = 0
    gu_p = 0
    dn_p = 20
    qk_p = 0
    wo_sets = 6
    q1pf = 1
    l2pf = 8
    rot = 0
    x_hit = 0
    tlb = 0
    rot_gu = 0
    rot_dn = 0
    rot_qk = 0
    dn_early = 99
    qk_early = 99
C = Cfg()

def stamp(a, i):
    if not C.stamp: return
    a(f"s_memtime s[10:11]\ns_mul_i32 s12, s{sL}, 24\ns_add_u32 m0, s12, {i}\ns_waitcnt lgkmcnt(0)\nv_writelane_b32 v255, s10, m0")
    if C.dbg == 7: a(f"s_memrealtime s[10:11]\ns_waitcnt lgkmcnt(0)\nv_writelane_b32 v254, s10, m0")

def dstamp(a, d, i):
    if C.stamp and C.dbg == d: a(f"s_memtime s[10:11]\ns_lshl_b32 s12, s{sL}, 5\ns_add_u32 m0, s12, {i}\ns_waitcnt lgkmcnt(0)\nv_writelane_b32 v254, s10, m0")

def cstamp(a, j):
    if C.stamp and C.dbg == 9:
        a(f"s_memtime s[10:11]\ns_lshl_b32 s12, s{sL}, 5\ns_add_u32 m0, s12, {2*j}\ns_waitcnt lgkmcnt(0)\nv_writelane_b32 v254, s10, m0")
        a(f"s_memrealtime s[10:11]\ns_add_u32 m0, s12, {2*j+1}\ns_waitcnt lgkmcnt(0)\nv_writelane_b32 v254, s10, m0")

def srd(a, r, ptr, size):
    a(f"s_mov_b32 s{r}, s{ptr}\ns_mov_b32 s{r+1}, s{ptr+1}\ns_mov_b32 s{r+2}, {size}\ns_mov_b32 s{r+3}, 0x20000")

def interleave(a, mf, other):
    n = len(mf); k = 0
    for i, m in enumerate(mf):
        a(m)
        tgt = (len(other) * (i + 1) + n - 1) // n
        while k < tgt:
            a(other[k]); k += 1

def poll(a, vaddr, vtmp, soff, want, sleep=0, pre=False, wide=False):
    lp = a.uid("poll"); ok = a.uid("pollok")
    cnt = T + 22
    a(f"s_mov_b32 s{cnt}, s{sTMO}")
    if pre is not False: a(f"s_waitcnt vmcnt({pre})\ns_branch {lp}c")
    a.label(lp)
    if wide: a(f"buffer_load_dwordx4 v[{vtmp}:{vtmp+3}], v{vaddr}, {WSR}, {soff} offen sc1")
    else: a(f"buffer_load_dword v{vtmp}, v{vaddr}, {WSR}, {soff} offen sc1")
    a(f"s_waitcnt vmcnt(0)")
    if pre is not False: a.label(lp + "c")
    a(f"v_subrev_u32 v{vtmp}, {want}, v{vtmp}")
    if wide:
        for i in range(1, 4): a(f"v_subrev_u32 v{vtmp+i}, {want}, v{vtmp+i}\nv_max_u32 v{vtmp}, v{vtmp}, v{vtmp+i}")
    a(f"v_cmp_lt_u32 vcc, 15, v{vtmp}")
    a(f"s_cbranch_vccz {ok}")
    if sleep: a(f"s_sleep {sleep}")
    a(f"s_add_u32 s{cnt}, s{cnt}, 1\ns_cmp_lt_u32 s{cnt}, {SPIN}\ns_cbranch_scc1 {lp}")
    a(f"s_mov_b32 s{sTMO}, {SPIN}")
    a.label(ok)

def poll_local(a, kind, ep, va=1, vt=2, sleep=0):
    t = T + 20
    if kind == "wo":
        a(f"v_and_b32 v{va}, 31, v0\nv_lshlrev_b32 v{va}, 5, v{va}\ns_lshr_b32 s{t}, s{sR}, 3\ns_lshl_b32 s{t}, s{t}, 2\ns_add_u32 s{t}, s{t}, 16")
    elif kind == "gu":
        a(f"v_lshrrev_b32 v{va}, 2, v0\nv_lshlrev_b32 v{va}, 5, v{va}\nv_and_b32 v{vt}, 3, v0\nv_lshl_add_u32 v{va}, v{vt}, 2, v{va}")
        a(f"s_lshr_b32 s{t}, s{sR}, 4\ns_lshl_b32 s{t}, s{t}, 9")
    elif kind == "down":
        a(f"v_bfe_u32 v{va}, v0, 1, 4\nv_lshlrev_b32 v{va}, 5, v{va}\nv_and_b32 v{vt}, 1, v0\nv_lshl_add_u32 v{va}, v{vt}, 3, v{va}")
        a(f"s_lshr_b32 s{t}, s{sR}, 4\ns_lshl_b32 s{t}, s{t}, 9\ns_bfe_u32 s{t+1}, s{sR}, 0x10003\ns_lshl_b32 s{t+1}, s{t+1}, 2\ns_add_u32 s{t}, s{t}, s{t+1}")
    elif kind == "attn":
        a(f"""
        v_bfe_u32 v{va}, v0, 2, 1
        v_mul_u32_u24 v{va}, 19, v{va}
        s_mul_i32 s{t}, s{sR}, 20
        v_add_u32 v{va}, s{t}, v{va}
        v_lshrrev_b32 v{va}, 7, v{va}
        v_lshrrev_b32 v{vt}, 4, v0
        v_min_u32 v{vt}, 2, v{vt}
        v_mad_u32_u24 v{va}, v{vt}, 5, v{va}
        v_bfe_u32 v{vt}, v0, 3, 1
        v_lshl_add_u32 v{va}, v{vt}, 4, v{va}
        v_lshlrev_b32 v{va}, 5, v{va}
        v_and_b32 v{vt}, 3, v0
        v_lshl_add_u32 v{va}, v{vt}, 2, v{va}
        s_mov_b32 s{t}, 0
        """)
    a(f"s_lshl_b32 s{t+1}, s{sG}, 10\ns_add_u32 s{t}, s{t}, s{t+1}\ns_add_u32 s{t}, s{t}, {WS_FL}\ns_add_u32 s{t+1}, s{sEP}, {ep}")
    poll(a, va, vt, f"s{t}", f"s{t+1}", sleep=sleep)

sNR, sGO, sGW = 92, 94, 95
class Gate:
    def __init__(self, a, va, vt, fold=False, sleep=0):
        self.a, self.va, self.vt, self.fold, self.sleep = a, va, vt, fold, sleep
        self.ok = 0
    def load(self): self.a(f"buffer_load_dword v{self.vt}, v{self.va}, {WSR}, s{sGO} offen sc1")
    def upd(self):
        self.a(f"s_waitcnt vmcnt(0)\nv_subrev_u32 v{self.vt}, s{sGW}, v{self.vt}\nv_cmp_lt_u32 s[{sNR}:{sNR+1}], 15, v{self.vt}")
        if self.fold: self.a(f"s_or_b32 s{sNR}, s{sNR}, s{sNR+1}")
    def reset(self): self.a(f"s_mov_b32 s{sNR}, -1")
    def need(self, mask):
        a = self.a
        mask &= ~self.ok
        if not mask: return
        self.ok |= mask
        lp = a.uid("gt"); cnt = T + 22
        a(f"s_and_b32 s{cnt}, s{sNR}, {hex(mask)}\ns_cbranch_scc0 {lp}k\ns_mov_b32 s{cnt}, s{sTMO}")
        if C.pp and not self.fold:
            v2 = self.vt2
            a(f"buffer_load_dword v{v2}, v{self.va}, {WSR}, s{sGO} offen sc1\ns_sleep {C.pp}")
            a.label(lp)
            for x_, y_ in ((self.vt, v2), (v2, self.vt)):
                a(f"buffer_load_dword v{x_}, v{self.va}, {WSR}, s{sGO} offen sc1\ns_waitcnt vmcnt(1)\nv_subrev_u32 v{y_}, s{sGW}, v{y_}\nv_cmp_lt_u32 s[{sNR}:{sNR+1}], 15, v{y_}")
                a(f"s_and_b32 s{cnt+1}, s{sNR}, {hex(mask)}\ns_cbranch_scc0 {lp}k")
        else:
            a.label(lp)
            self.load(); self.upd()
            a(f"s_and_b32 s{cnt+1}, s{sNR}, {hex(mask)}\ns_cbranch_scc0 {lp}k")
            if self.sleep: a(f"s_sleep {self.sleep}")
        a(f"s_add_u32 s{cnt}, s{cnt}, 1\ns_cmp_lt_u32 s{cnt}, {SPIN}\ns_cbranch_scc1 {lp}\ns_mov_b32 s{sTMO}, {SPIN}")
        a.label(lp + "k")
def span(lo, hi, w, bits):
    m = 0
    for p in range(lo // w, hi // w + 1): m |= ((1 << bits) - 1) << (bits * p)
    return m
def gate_local(a, kind, ep, va, vt, sRotCt=None, sleep=0):
    t = T + 20
    if kind == "wo":
        a(f"v_and_b32 v{va}, 31, v0\nv_lshlrev_b32 v{va}, 5, v{va}\ns_lshr_b32 s{sGO}, s{sR}, 3\ns_lshl_b32 s{sGO}, s{sGO}, 2\ns_add_u32 s{sGO}, s{sGO}, 16")
    elif kind == "down":
        a(f"v_lshrrev_b32 v{va}, 1, v0\nv_add_u32 v{va}, s{sRotCt}, v{va}\nv_and_b32 v{va}, 15, v{va}\nv_lshlrev_b32 v{va}, 5, v{va}\nv_and_b32 v{vt}, 1, v0\nv_lshl_add_u32 v{va}, v{vt}, 3, v{va}")
        a(f"s_lshr_b32 s{sGO}, s{sR}, 4\ns_lshl_b32 s{sGO}, s{sGO}, 9\ns_bfe_u32 s{t+1}, s{sR}, 0x10003\ns_lshl_b32 s{t+1}, s{t+1}, 2\ns_add_u32 s{sGO}, s{sGO}, s{t+1}")
    elif kind == "gu":
        a(f"v_lshrrev_b32 v{va}, 1, v0\nv_add_u32 v{va}, s{sRotCt}, v{va}\nv_and_b32 v{va}, 7, v{va}\nv_lshlrev_b32 v{va}, 5, v{va}\nv_and_b32 v{vt}, 1, v0\nv_lshl_add_u32 v{va}, v{vt}, 2, v{va}")
        a(f"s_lshr_b32 s{sGO}, s{sR}, 4\ns_lshl_b32 s{sGO}, s{sGO}, 9\ns_bfe_u32 s{t+1}, s{sW}, 0x10001\ns_lshl_b32 s{t+1}, s{t+1}, 8\ns_add_u32 s{sGO}, s{sGO}, s{t+1}")
        a(f"s_and_b32 s{t+1}, s{sW}, 1\ns_lshl_b32 s{t+1}, s{t+1}, 3\ns_add_u32 s{sGO}, s{sGO}, s{t+1}")
    a(f"s_lshl_b32 s{t+1}, s{sG}, 10\ns_add_u32 s{sGO}, s{sGO}, s{t+1}\ns_add_u32 s{sGO}, s{sGO}, {WS_FL}\ns_add_u32 s{sGW}, s{sEP}, {ep}")
    g = Gate(a, va, vt, sleep=sleep); g.reset(); g.vt2 = 8 if kind != 'gu' else 3
    return g

def flag_setup(a, ep):
    t = T + 20
    a(f"s_lshl_b32 s{t}, s{sWG}, 3\ns_add_u32 s{t}, s{t}, s{sW}\ns_lshl_b32 s{t}, s{t}, 2\ns_add_u32 s{t}, s{t}, {WS_FL}\ns_add_u32 s{t+1}, s{sEP}, {ep}")
    a(f"v_mov_b32 v1, 0\nv_mov_b32 v2, s{t+1}")
def flag_store(a, SB, s=T+20):
    a(f"s_mov_b64 exec, 1\nbuffer_store_dword v2, v1, {WSR}, s{s} offen {SB}\ns_mov_b64 exec, -1")
def publish_local(a, ep, SB):
    flag_setup(a, ep)
    a("s_waitcnt vmcnt(0)")
    flag_store(a, SB)

def row_stats(a, vst, vmean, vrstd):
    for i in range(1, 8):
        a(f"v_add_f32 v{vst}, v{vst}, v{vst+2*i}\nv_add_f32 v{vst+1}, v{vst+1}, v{vst+2*i+1}")
    finish_stats(a, vst, vst + 1, vmean, vrstd)

def finish_stats(a, vs, vq, vmean, vrstd):
    a(f"v_mul_f32 v{vmean}, {f32(1.0/D)}, v{vs}")
    a(f"v_mul_f32 v{vq}, {f32(1.0/D)}, v{vq}")
    a(f"v_fma_f32 v{vq}, -v{vmean}, v{vmean}, v{vq}")
    a(f"v_max_f32 v{vq}, 0, v{vq}")
    a(f"v_add_f32 v{vq}, {f32(1e-5)}, v{vq}")
    a(f"v_rsq_f32 v{vrstd}, v{vq}")
    a("s_nop 0")

def lin_dma(a, vaddr, src_s, src_off, dst_s, dst_off, npieces, bits="", rsrc=WSR, tmp=T+19):
    i = 0
    while i < npieces:
        k = min(4, npieces - i)
        a(f"s_add_u32 m0, s{dst_s}, {dst_off + 1024*i}")
        a(f"s_add_u32 s{tmp}, s{src_s}, {src_off + 1024*i}")
        for j in range(k):
            a(f"buffer_load_dwordx4 v{vaddr}, {rsrc}, s{tmp} offen offset:{1024*j} {bits} lds")
        i += k
    return npieces


def states(x):
    return int(x.split()[1]) + 1 if x.startswith("s_nop") else 1

def gemm_unrolled(a, n, P, nr, reads, mfma, groups, inserts, fix, fix_from, epi, st_end, alt=None, after_e=(), late=()):
    seq = []
    def add(ms, fill, pre=()):
        k = 0
        for i, (kk, tl) in enumerate(ms):
            tgt = (len(fill) * (i + 1) + len(ms) - 1) // len(ms)
            seq.append([list(pre) if i == 0 else [], mfma(kk, tl), tl, list(fill[k:tgt])]); k = tgt
    step = lambda kk: [(kk, tl) for tl in range(P)]
    a("s_barrier")
    for x in reads(0, 0) + reads(0, 1): a(x)
    w = f"s_waitcnt lgkmcnt({nr})"
    for c in range(n - 1):
        add(step(0), reads(c, 2), [w])
        add(step(1), reads(c, 3), [w])
        add(step(2), [], [w])
        seq[-2][3] += ["s_waitcnt lgkmcnt(0)"]; seq[-1][3] += ["s_barrier"]
        add(step(3), reads(c + 1, 0) + reads(c + 1, 1))
    nmain = len(seq)
    for i0, ins in inserts.items():
        i = i0; ins = list(ins)
        while ins:
            room = 4 - sum(states(x) for x in seq[i][3]) - len(seq[i+1][0])
            if ins[0].startswith("s_mov_b32 exec") and room < 3: room = 0
            while room > 0 and ins and "s_barrier" not in seq[i][3]:
                x = ins.pop(0); seq[i][3].append(x); room -= states(x)
            i += 1

        end = fix_from if i0 < fix_from else nmain
        assert i <= end and all(not (i0 < k < i) for k in inserts if len(inserts[i0]) > 1), (i0, i)
        if any(x.startswith("ds_") for x in inserts[i0]): assert any("s_waitcnt lgkmcnt(0)" in seq[j][3] for j in range(i, end)), (i, end)
    todo = {tl: list(fix(tl)) for tl in range(P)}
    used = lambda g: sum(states(x) for x in seq[g][3]) + len(seq[g+1][0])
    g = fix_from + 2
    while any(todo.values()):
        assert g + 2 < nmain, "no room for fix"
        if used(g) < 5 and "s_barrier" not in seq[g][3]:
            for back in range(P - 2, 1, -1):
                tl = seq[g - back][2]
                if not todo[tl] or g - back < fix_from: continue
                have = sum(used(x) + 1 for x in range(g - back, g)) + sum(states(x) for x in seq[g][3])
                room = sum(max(0, 5 - used(x)) for x in range(g - back, g))
                if have + room < 12: continue
                for x in range(g - back, g):
                    k = min(5 - used(x), 12 - have)
                    if k > 0: seq[x][3].append(f"s_nop {k-1}"); have += k
                while used(g) < 5 and todo[tl]: seq[g][3].append(todo[tl].pop(0))
            if used(g + 1) < 1: seq[g + 1][3].append("s_nop 0")
        g += 1

    c = n - 1
    g0 = groups[0]
    seq[-1][3] += reads(c, 2)
    add([(kk, tl) for kk in (0, 1) for tl in g0], reads(c, 3), [w])
    add([(kk, tl) for kk in (2, 3) for tl in g0], list(late), ["s_waitcnt lgkmcnt(0)"])
    if after_e:
        seq[-2][3].append("s_barrier"); seq[-1][3] += list(after_e)
    else: seq[-len(g0)*2][3].append("s_barrier")
    seq[-1][3].append("s_nop 4")
    def flush():
        for pre, m, tl, post in seq:
            for x in pre: a(x)
            a(m)
            for x in post: a(x)
        del seq[:]
    def tail(epi):
        for gi in range(1, len(groups)):
            ms = [(kk, tl) for kk in range(4) for tl in groups[gi]]
            if gi == 1: add(ms[:1], ["s_nop 4"]); add(ms[1:], epi(gi - 1, False))
            else: add(ms, ["s_nop 0"] + epi(gi - 1, False))
        flush()
        stamp(a, st_end)
        a.nop(3)
        for x in epi(len(groups) - 1, True): a(x)
    if alt:
        cond, epi2, post1, post2 = alt
        l = a.uid("alt")
        seq[-1][3][-1:] = [cond, f"s_cbranch_scc1 {l}", "s_nop 2"]
        flush(); tail(epi); post1()
        a.label(l); a("s_nop 2"); tail(epi2); post2()
    else: tail(epi)

def gemm16(a, n, P, reads, mfma, groups, inserts, fix, fix_from, epi, st_end, fillmax=1, nlead=2, alt=None, after_e=(), late=()):
    seq = []
    def add(ms, fill, span, pre=()):
        k = 0
        for i, (u, tl, z) in enumerate(ms):
            tgt = min(len(fill), (len(fill) * (i + 1) + span - 1) // span)
            seq.append([list(pre) if i == 0 else [], mfma(u, tl, z), tl, list(fill[k:tgt])]); k = tgt
        assert k == len(fill)
    w0 = "s_waitcnt lgkmcnt(0)"
    a("s_barrier")
    for x in reads(0, 0): a(x)
    nr = len(reads(0, 0)); sp = min(nr, P - 6)
    for c in range(n - 1):
        add([(0, tl, c == 0) for tl in range(P)], reads(c, 1), sp, [w0])
        bl = C.bl if (P == 16 and c >= n - 1 - C.bln) else 0
        seq[-2][3] += [w0]
        if bl: add([(1, tl, False) for tl in range(bl)], [], 1)
        seq[-1][3] += ["s_barrier"]
        add([(1, tl, False) for tl in range(bl, P)], reads(c + 1, 0), min(sp, max(1, P - bl - 2)))
    nmain = len(seq)
    used = lambda g: sum(states(x) * (2 if x.startswith(("buffer", "v_perm", "v_rsq")) else 1) for x in seq[g][3]) + len(seq[g+1][0])
    for i0, ins in inserts.items():
        i = i0; ins = list(ins)
        while ins:
            while used(i) < fillmax and ins and "s_barrier" not in seq[i][3]: seq[i][3].append(ins.pop(0))
            i += 1
        end = fix_from if i0 < fix_from else nmain - 1
        assert i <= end and all(not (i0 < k < i) for k in inserts if len(inserts[i0]) > 1), (i0, i)
        if any(x.startswith("ds_") for x in inserts[i0]): assert any(w0 in seq[j][3] + seq[j][0] for j in range(i, end)), (i0, i)
    todo = {tl: list(fix(tl)) for tl in range(P)}
    g = fix_from
    while any(todo.values()):
        assert g + 4 < nmain
        for back in sorted(range(P - 3, 3, -1), key=lambda b_: -len(todo[seq[g - b_][2]])):
            if sum(1 + sum(states(x) for x in seq[j][3]) for j in range(g - back, g)) < 8: continue
            tl = seq[g - back][2]
            while used(g) < fillmax and todo[tl] and "s_barrier" not in seq[g][3]: seq[g][3].append(todo[tl].pop(0))
        g += 1
    c = n - 1
    lead = sum(groups[:nlead], ())
    add([(0, tl, False) for tl in lead], reads(c, 1) + list(late), min(len(lead), nr), [w0])
    add([(1, tl, False) for tl in groups[0]], ["s_barrier"] + list(after_e), len(groups[0]) if after_e else 1, [w0])
    rest = [(1, tl, False) for gi in range(1, nlead) for tl in groups[gi]]
    for gi in range(nlead, len(groups)): rest += [(u, tl, False) for u in range(2) for tl in groups[gi]]
    def flush():
        for k_, (pre, m, tl, post) in enumerate(seq):
            for x in pre: a(x)
            a(m)
            for x in post: a(x)
            if C.x_slow and P == 24 and k_ % C.x_slow == 0: a("s_nop 7")
        del seq[:]
    def tail(epi):
        add(rest[:2], ["s_nop 1", "s_nop 1"], 2)
        nleft = len(rest) - 2
        e = epi(0, False) + epi(1, False)
        add(rest[2:], e[:C.e16*nleft], nleft)
        flush()
        for x in e[C.e16*nleft:]: a(x)
        stamp(a, st_end)
        for gi in range(2, len(groups)):
            for x in epi(gi, True): a(x)
    if alt:
        cond, epi2, post1, post2 = alt
        l = a.uid("alt")
        seq[-1][3] += [cond, f"s_cbranch_scc1 {l}"]
        flush(); tail(epi); post1()
        a.label(l); tail(epi2); post2()
    else: tail(epi)

class Src:
    def __init__(self, sB, sB1, sThr, stride): self.__dict__.update(locals())
    def setup(self, a, sRot, n, tmp):
        a(f"s_mul_i32 s{tmp}, s{sRot}, {self.stride}\ns_add_u32 s{self.sB}, s{self.sB}, s{tmp}\ns_sub_u32 s{self.sB1}, s{self.sB}, {n*self.stride}")
    def sel(self, a, c, dst):
        if getattr(self, "norot", False):
            a(f"s_mov_b32 s{dst}, s{self.sB}"); return
        a(f"s_cmp_gt_u32 s{self.sThr}, {c}\ns_cselect_b32 s{dst}, s{self.sB}, s{self.sB1}")

class Phase:
    def __init__(self, name, n, npa, npw, emitA, emitW, regA, regW, pollfn, budget, lag=1, after_bar=None, dbg=False, early=99):
        self.__dict__.update(locals())

class Loader:
    def __init__(self, a):
        self.a = a; self.q = []; self.live = {}; self.waitfn = None; self.total = 0
    def free(self, reg, key):
        return key in self.live or all(reg[1] <= lo or hi <= reg[0] for lo, hi in self.live.values())
    def can(self, ph, kind, c):
        return self.free((ph.regA if kind == "A" else ph.regW)(c), (ph.name, kind, c))
    def issue(self, ph, kind, c, i0, k):
        assert self.can(ph, kind, c)
        self.live[(ph.name, kind, c)] = (ph.regA if kind == "A" else ph.regW)(c)
        (ph.emitA if kind == "A" else ph.emitW)(c, i0, k)
        self.q += [(ph.name, kind, c)] * k; self.total += k
    def release(self, ph, c):
        for k in "AW": self.live.pop((ph.name, k, c), None)
    def wait(self, tags):
        last = -1
        for i, t in enumerate(self.q):
            if t in tags: last = i
        if last >= 0:
            self.q = self.q[last+1:]
            n7 = len(self.q); n = sum(1 for t in self.q if t[0] != "x7")
            assert n7 < 64
            if n7 != n:
                l = self.a.uid("w7")
                self.a(f"s_waitcnt vmcnt({n7})\ns_cmp_eq_u32 s{sW}, 7\ns_cbranch_scc1 {l}\ns_waitcnt vmcnt({n})")
                self.a.label(l)
            else: self.a(f"s_waitcnt vmcnt({n})")
    def pre(self, ph, pw, cnt, thr=0):
        done = 0
        while pw < ph.n * ph.npw and done < cnt and self.can(ph, "W", pw // ph.npw):
            k = min(4, ph.npw - pw % ph.npw, cnt - done)
            if thr:
                k = 1
                if len(self.q) >= thr:
                    self.a(f"s_waitcnt vmcnt({thr-1})"); self.q = self.q[len(self.q) - (thr - 1):]
            self.issue(ph, "W", pw // ph.npw, pw % ph.npw, k); pw += k; done += k
        return pw
    def run(self, ph, nxt, pw=0, after_poll=None, tail=None, waitfn=None, lastexit=None):
        a = self.a; n = ph.n
        pa = 0; pn = 0
        if ph.pollfn: ph.pollfn()
        if after_poll: after_poll()
        for c in range(1 if getattr(ph, "skip0", False) else 0, n):
            done = 0
            if lastexit and pw == n * ph.npw:
                assert all(t_[0] == ph.name for t_ in self.q)
                lastexit([len(self.q) - 1 - max([-1] + [i_ for i_, t_ in enumerate(self.q) if t_[2] <= cc]) for cc in range(c, n)]); lastexit = None
            while True:
                needed = pa < (c + 1) * ph.npa or pw < (c + 1) * ph.npw
                if not needed:
                    beyond = 0
                    for t in reversed(self.q):
                        if t[0] == ph.name and t[2] <= c: break
                        beyond += t[0] != "x7"
                    if beyond >= getattr(ph, 'look', C.look) and (done >= ph.budget or c == 0): break
                ca = pa // ph.npa if ph.npa else n; cw = pw // ph.npw
                okA = ca < n and self.can(ph, "A", ca)
                okW = cw < n and self.can(ph, "W", cw)
                if okW and (cw <= ca or not okA):
                    k = ph.npw - pw % ph.npw
                    if not needed: k = min(C.grp, k)
                    self.issue(ph, "W", cw, pw % ph.npw, k); pw += k
                elif okA:
                    k = ph.npa - pa % ph.npa
                    if not needed: k = min(C.grp, k)
                    self.issue(ph, "A", ca, pa % ph.npa, k); pa += k
                elif nxt and not lastexit and ca == n and cw == n and pn < nxt.early and self.can(nxt, "W", pn // nxt.npw):
                    k = min(2, nxt.npw - pn % nxt.npw)
                    self.issue(nxt, "W", pn // nxt.npw, pn % nxt.npw, k); pn += k
                else:
                    assert not needed
                    break
                done += k
            if tail and pa == n * ph.npa and pw == n * ph.npw:
                tail(); tail = None; self.waitfn = waitfn
            if ph.after_bar and c > 0: ph.after_bar(c - 1)
            self.wait({(ph.name, "A", c), (ph.name, "W", c)})
            if ph.dbg and C.stamp: a(f"s_memtime s[10:11]\ns_waitcnt lgkmcnt(0)\nv_writelane_b32 v254, s10, {2*c}")
            a("s_barrier")
            if ph.dbg and C.stamp: a(f"s_memtime s[10:11]\ns_waitcnt lgkmcnt(0)\nv_writelane_b32 v254, s10, {2*c+1}")
            self.release(ph, c - ph.lag)
        if ph.after_bar: ph.after_bar(n - 1)
        if nxt: pn = self.pre(nxt, pn, min(ph.budget, max(0, nxt.early - pn)))
        return pn
    def end(self, ph):
        self.a("s_barrier")
        for c in range(ph.n): self.release(ph, c)

Q1_TAB = 98304
Q1_NON = Q1_TAB + 2048
Q1_CS = Q1_NON + 64
WB = 65536
def guW(c): return WB + ((3 - c) % 4) * 24576
def dnW(c): return ((c + 2) % 8) * 20480
def qkW(c): return WB + ((c + C.qk_s0) % 6) * 16384

PSCR = 131072
PV = 180
def projjob_issue(a, sJob, sScr, t, loads=True):
    a(f"""
    s_and_b32 s{t+2}, s{sJob}, 7
    s_lshr_b32 s{t+3}, s{sJob}, 3
    s_cmp_lt_u32 s{t+3}, 20
    s_cselect_b32 s{R_T}, s{P_WO}, s{P_WD}
    s_cselect_b32 s{R_T+1}, s{P_WO+1}, s{P_WD+1}
    s_mov_b32 s{R_T+2}, {F*D*2}
    s_cselect_b32 s{R_T+2}, {D*D*2}, s{R_T+2}
    s_mov_b32 s{R_T+3}, 0x20000
    s_cselect_b32 s{t+4}, 0, 20
    s_cselect_b32 s{t+5}, 20, 48
    s_mov_b32 s{t+6}, {WS_WTD}
    s_cselect_b32 s{t+6}, {WS_WTO}, s{t+6}
    s_sub_u32 s{t+3}, s{t+3}, s{t+4}
    s_mul_i32 s{t+5}, s{t+5}, s{t+2}
    s_add_u32 s{t+5}, s{t+5}, s{t+3}
    s_mul_i32 s{t+5}, s{t+5}, 5120
    s_add_u32 s{t+6}, s{t+6}, s{t+5}
    s_mul_i32 s{t+3}, s{t+3}, {32*1280}
    s_mul_i32 s{t+2}, s{t+2}, 160
    s_add_u32 s{t+3}, s{t+3}, s{t+2}
    s_movk_i32 s{t+4}, 6554
    """)
    x, y = PV, PV + 1
    for i in range(5 if loads else 0):
        a(f"""
        v_add_u32 v{x}, {64*i}, v0
        v_mul_u32_u24 v{y}, s{t+4}, v{x}
        v_lshrrev_b32 v{y}, 16, v{y}
        v_mad_i32_i24 v{x}, v{y}, -10, v{x}
        v_mul_u32_u24 v{y}, 1280, v{y}
        v_lshl_add_u32 v{x}, v{x}, 4, v{y}
        s_add_u32 m0, s{sScr}, {1024*i}
        s_nop 0
        buffer_load_dwordx4 v{x}, {R(R_T)}, s{t+3} offen lds
        """)
def projjob_finish(a, sScr, t):
    x, y, z, d0 = PV, PV + 1, PV + 2, PV + 4
    a(f"""
    v_lshrrev_b32 v{x}, 4, v0
    v_bfe_u32 v{y}, v0, 2, 2
    v_lshl_add_u32 v{x}, v{x}, 3, v{y}
    v_mul_u32_u24 v{x}, 160, v{x}
    v_add_u32 v{x}, s{sScr}, v{x}
    v_and_b32 v{y}, 3, v0
    v_lshl_add_u32 v{z}, v{y}, 3, v{x}
    v_lshl_add_u32 v{y}, v{y}, 4, v{x}
    """)
    for jn in range(5):
        for j in range(2):
            d = d0 + 4*jn + 2*j
            if jn < 4: a(f"ds_read_b64_tr_b16 v[{d}:{d+1}], v{y} offset:{640*j + 64*(jn>>1) + 8*(jn&1)}")
            else: a(f"ds_read_b64_tr_b16 v[{d}:{d+1}], v{z} offset:{640*j + 128}")
    a(f"s_add_u32 s{t+5}, s{t+6}, 4096\ns_waitcnt lgkmcnt(0)")
    for jn in range(5):
        d = d0 + 4*jn
        a(f"buffer_store_dwordx4 v[{d}:{d+3}], v5, {WSR}, s{t+6 if jn < 4 else t+5} offen offset:{1024*(jn&3)} sc1")

def gujob_issue(a, sJob, t, loads=True):
    x, y = PV, PV + 1
    a(f"""
    s_mul_i32 s{t+2}, s{sJob}, 2731
    s_lshr_b32 s{t+2}, s{t+2}, 16
    s_mul_i32 s{t+3}, s{t+2}, 24
    s_sub_u32 s{t+3}, s{sJob}, s{t+3}
    s_mul_i32 s{t+4}, s{t+2}, {64*F*2}
    s_lshl_b32 s{t+5}, s{t+3}, 7
    s_add_u32 s{t+4}, s{t+4}, s{t+5}
    v_lshrrev_b32 v{x}, 3, v0
    v_mul_u32_u24 v{x}, {F*2}, v{x}
    v_and_b32 v{y}, 7, v0
    v_lshl_add_u32 v{x}, v{y}, 4, v{x}
    """)
    a(f"""
    s_and_b32 s{t+1}, s{sW}, 1
    s_cselect_b32 s{R_T}, s{P_WU}, s{P_WG}
    s_cselect_b32 s{R_T+1}, s{P_WU+1}, s{P_WG+1}
    s_mov_b32 s{R_T+2}, {F*D*2}
    s_mov_b32 s{R_T+3}, 0x20000
    s_lshl_b32 s{t+6}, s{t+1}, 13
    """)
    for i in range(8):
        a(f"s_add_u32 m0, s{t+6}, {PSCR + 1024*i}\ns_add_u32 s{t+5}, s{t+4}, {i*8*F*2}")
        a(f"buffer_load_dwordx4 v{x}, {R(R_T)}, s{t+5} offen lds")
def gujob_finish(a, t):
    x, y, z = PV, PV + 1, PV + 2
    ONE, FRG, CS = PV + 4, PV + 8, PV + 40
    a(f"""
    v_lshrrev_b32 v{z}, 4, v0
    v_bfe_u32 v{x}, v0, 2, 2
    v_lshl_add_u32 v{x}, v{z}, 3, v{x}
    v_lshlrev_b32 v{x}, 7, v{x}
    v_and_b32 v{y}, 3, v0
    v_lshl_add_u32 v{x}, v{y}, 3, v{x}
    s_add_u32 s{t+6}, s{t+6}, {PSCR}
    v_add_u32 v{x}, s{t+6}, v{x}
    v_lshlrev_b32 v{z}, 4, v{z}
    """)
    for tt in range(4):
        for u in range(2):
            for j in range(2):
                d = FRG + 8*tt + 4*u + 2*j
                a(f"ds_read_b64_tr_b16 v[{d}:{d+1}], v{x} offset:{128*(32*u+4*j) + 32*tt}")
    a(f"""
    s_mul_i32 s{t+6}, s{t+2}, 12288
    s_lshl_b32 s{t+5}, s{t+3}, 9
    s_add_u32 s{t+6}, s{t+6}, s{t+5}
    s_lshl_b32 s{t+5}, s{t+1}, 6
    s_add_u32 s{t+6}, s{t+6}, s{t+5}
    s_add_u32 s{t+6}, s{t+6}, {WS_CSP}
    """)
    for i in range(4): a(f"v_mov_b32 v{ONE+i}, 0x3f803f80")
    a("s_nop 0\ns_waitcnt lgkmcnt(0)")
    for u in range(2):
        for tt in range(4):
            a(f"v_mfma_f32_16x16x32_bf16 {v(CS+4*tt,4)}, {v(FRG+8*tt+4*u,4)}, {v(ONE,4)}, {v(CS+4*tt,4) if u else 0}")
    for tt in range(4):
        a(f"""
        s_lshl_b32 s{t+4}, s{t+3}, 2
        s_add_u32 s{t+4}, s{t+4}, {tt}
        s_mul_i32 s{t+5}, s{t+4}, 43
        s_lshr_b32 s{t+5}, s{t+5}, 8
        s_mul_i32 s{t+5}, s{t+5}, 228
        s_lshl_b32 s{t+4}, s{t+4}, 1
        s_add_u32 s{t+4}, s{t+4}, s{t+5}
        s_mul_i32 s{t+5}, s{t+2}, 24
        s_add_u32 s{t+4}, s{t+4}, s{t+5}
        s_add_u32 s{t+4}, s{t+4}, s{t+1}
        s_lshl_b32 s{t+4}, s{t+4}, 10
        s_add_u32 s{t+4}, s{t+4}, {WS_WTG}
        s_add_u32 s{t+5}, s{t+4}, 12288
        """)
        for u in range(2):
            d = FRG + 8*tt + 4*u
            a(f"buffer_store_dwordx4 v[{d}:{d+3}], v5, {WSR}, s{t+4+u} offen sc1")
    a("s_mov_b32 exec_lo, 0x10001\ns_mov_b32 exec_hi, 0x10001")
    for tt in range(4):
        a(f"buffer_store_dwordx4 v[{CS+4*tt}:{CS+4*tt+3}], v{z}, {WSR}, s{t+6} offen offset:{128*tt} sc1")
    a("s_mov_b64 exec, -1")

def prep(a, stage):
    tj = 84; sJob, sScr = tj, tj + 1
    lg = a.uid("pg"); le = a.uid("pe")
    if stage == 0:
        a(f"""
        s_sub_u32 s{sScr}, s{sW}, 1
        s_lshl_b32 s{sJob}, s{sScr}, 8
        s_add_u32 s{sJob}, s{sJob}, s{sWG}
        s_add_u32 s{sJob}, s{sJob}, 160
        s_mul_i32 s{sScr}, s{sScr}, 5120
        s_add_u32 s{sScr}, s{sScr}, {PSCR + 16384}
        """)
    a(f"s_cmp_eq_u32 s{sW}, 0\ns_cbranch_scc1 {lg}\ns_cmp_eq_u32 s{sW}, 3\ns_cbranch_scc1 {lg}\ns_cmp_ge_u32 s{sJob}, 544\ns_cbranch_scc1 {le}")
    projjob_issue(a, sJob, sScr, tj) if stage == 0 else projjob_finish(a, sScr, tj)
    a(f"s_branch {le}")
    a.label(lg)
    a(f"s_cmp_ge_u32 s{sWG}, 240\ns_cbranch_scc1 {le}")
    gujob_issue(a, sWG, tj) if stage == 0 else gujob_finish(a, tj)
    a.label(le)

def xstat_fin(a):
    t = T + 16
    a(f"s_mov_b32 s{t}, 0xffff0000\nv_mov_b64 v[232:233], 0\ns_waitcnt vmcnt(0)")
    for i in range(12):
        a(f"v_lshlrev_b32 v234, 16, v{220+i}\nv_and_b32 v235, s{t}, v{220+i}\nv_add_f32 v232, v232, v234\nv_fmac_f32 v233, v234, v234\nv_add_f32 v232, v232, v235\nv_fmac_f32 v233, v235, v235")
    for mod in ("quad_perm:[1,0,3,2]", "quad_perm:[2,3,0,1]"):
        a(f"s_nop 1\nv_add_f32_dpp v232, v232, v232 {mod} row_mask:0xf bank_mask:0xf\nv_add_f32_dpp v233, v233, v233 {mod} row_mask:0xf bank_mask:0xf")
    a(f"""
    v_bfe_u32 v234, v0, 3, 2
    v_lshlrev_b32 v234, 10, v234
    v_bfe_u32 v235, v0, 2, 1
    v_lshl_add_u32 v234, v235, 3, v234
    v_lshrrev_b32 v235, 5, v0
    v_lshl_add_u32 v234, v235, 4, v234
    s_lshr_b32 s{t}, s{sWG}, 3
    s_lshl_b32 s{t}, s{t}, 12
    s_and_b32 s{t+1}, s{sWG}, 7
    s_lshl_b32 s{t+1}, s{t+1}, 2
    s_add_u32 s{t+1}, s{t+1}, s{sW}
    s_lshl_b32 s{t+1}, s{t+1}, 5
    s_add_u32 s{t}, s{t}, s{t+1}
    s_add_u32 s{t}, s{t}, {WS_ST0}
    s_mov_b32 exec_lo, 0x11111111
    s_mov_b32 exec_hi, 0x11111111
    buffer_store_dwordx2 v[232:233], v234, {WSR}, s{t} offen sc1
    s_mov_b64 exec, -1
    """)

def nonce_put(a):
    t = T + 8
    a(f"""
    s_memrealtime s[{t}:{t+1}]
    v_mov_b32 v1, 0
    s_waitcnt lgkmcnt(0)
    s_or_b32 s{t+2}, s{t}, 0x80000000
    v_mov_b32 v2, s{t+2}
    s_mov_b64 exec, 1
    global_store_dword v1, v2, s[{P_DBG}:{P_DBG+1}] sc1
    s_mov_b64 exec, -1
    """)
def flags_zero(a):
    t = T + 16
    a(f"""
    s_lshl_b32 s{t}, s{sWG}, 5
    s_add_u32 s{t}, s{t}, {WS_FL}
    s_lshl_b32 s{t+1}, s{sWG}, 7
    s_add_u32 s{t+1}, s{t+1}, {L_FG}
    s_add_u32 s{t+2}, s{t+1}, {LSTRIDE}
    v_lshlrev_b32 v236, 2, v0
    v_mov_b32 v237, 0
    s_mov_b64 exec, 0xff
    buffer_store_dword v237, v236, {WSR}, s{t} offen sc1
    s_mov_b64 exec, 0x7ff
    buffer_store_dword v237, v236, {WSR}, s{t+1} offen sc1
    buffer_store_dword v237, v236, {WSR}, s{t+2} offen sc1
    s_mov_b64 exec, -1
    """)

def nonce_issue(a, v2, v3):
    a(f"v_mov_b32 v{v3}, 0\nglobal_load_dword v{v2}, v{v3}, s[{P_DBG}:{P_DBG+1}] sc1")
def nonce_get(a, v1, v2, v3, cnt=0):
    t = T + 14
    lp = a.uid("non"); ok = a.uid("nonok")
    a(f"s_mov_b32 s{t+6}, 0\nv_mov_b32 v{v3}, 0\ns_lshl_b32 s{t+4}, s{sWG}, 7\ns_add_u32 s{t+4}, s{t+4}, {L_FG}\ns_waitcnt vmcnt({cnt})\ns_branch {lp}c")
    a.label(lp)
    a(f"global_load_dword v{v2}, v{v3}, s[{P_DBG}:{P_DBG+1}] sc1\ns_waitcnt vmcnt(0)")
    a.label(lp + "c")
    a(f"""
    v_cmp_eq_u32 vcc, 0, v{v2}
    s_cbranch_vccz {ok}
    s_sleep 4
    s_add_u32 s{t+6}, s{t+6}, 1
    s_cmp_lt_u32 s{t+6}, {SPIN}
    s_cbranch_scc1 {lp}
    s_mov_b32 s{sTMO}, {SPIN}
    """)
    a.label(ok)
    a(f"""
    v_readfirstlane_b32 s{sEP}, v{v2}
    s_getreg_b32 s{t+6}, hwreg(HW_REG_XCC_ID, 0, 4)
    v_add_u32 v{v2}, s{t+6}, v{v2}
    s_mov_b64 exec, 1
    buffer_store_dword v{v2}, v{v3}, {WSR}, s{t+4} offen offset:32 sc1
    s_mov_b64 exec, -1
    s_waitcnt lgkmcnt(0)
    """)

def census(a, va, vt, issue, cnt=0):
    t = T + 20
    a(f"""
    v_and_b32 v{va}, 31, v0
    v_lshlrev_b32 v{va}, 7, v{va}
    s_lshl_b32 s{t}, s{sG}, 12
    s_add_u32 s{t}, s{t}, {L_FG + 32}
    """)
    if issue:
        a(f"buffer_load_dword v{vt}, v{va}, {WSR}, s{t} offen sc1")
        return
    poll(a, va, vt, f"s{t}", f"s{sEP}", sleep=4, pre=cnt)
    a(f"""
    s_getreg_b32 s{t}, hwreg(HW_REG_XCC_ID, 0, 4)
    v_cmp_ne_u32 vcc, s{t}, v{vt}
    s_cmp_eq_u64 vcc, 0
    s_cselect_b32 s{t}, 1, 0
    v_mov_b32 v{va}, {Q1_NON}
    v_mov_b32 v{vt}, s{t}
    ds_write_b32 v{va}, v{vt} offset:4
    v_mov_b32 v{vt}, s{sEP}
    ds_write_b32 v{va}, v{vt}
    s_waitcnt lgkmcnt(0)
    """)

sMODE = 14 - 14 + 98
def read_nonce_mode(a):
    a(f"v_mov_b32 v1, {Q1_NON}\nds_read_b64 v[2:3], v1\ns_waitcnt lgkmcnt(0)\nv_readfirstlane_b32 s{sEP}, v2\nv_readfirstlane_b32 s{sMODE}, v3")

def qkv_ids(a, t):
    a(f"s_lshr_b32 s{t}, s{sWG}, 4\ns_and_b32 s{t+1}, s{sR}, 15")

def qkv_compute(a, first, SB):
    t = T
    sRT, sCT, sTY, sC0 = t, t+1, t+2, t+3
    LQ = 0 if first else LSTRIDE
    sWM, sWN = t+5, t+6
    a(f"""
    s_mul_i32 s{sTY}, s{sCT}, 52
    s_lshr_b32 s{sTY}, s{sTY}, 8
    s_mul_i32 s{sC0}, s{sTY}, 5
    s_sub_u32 s{sC0}, s{sCT}, s{sC0}
    s_lshl_b32 s{sC0}, s{sC0}, 7
    s_and_b32 s{sWM}, s{sW}, 1
    s_lshr_b32 s{sWN}, s{sW}, 1
    v_lshrrev_b32 v14, 4, v0
    v_and_b32 v15, 15, v0
    """)
    FR = 16; VST = 80; VCS = 96; VM = 96; VR = 112; ACC = 128; VCV = 192; NON = 200; AD = 202; MS = 240; TMP = 212
    vq, vt = AD + 8, AD + 9
    sCS = t+15
    a(f"s_lshl_b32 s{sCS}, s{sWG}, 9\ns_lshl_b32 s{t+7}, s{sWN}, 8\ns_add_u32 s{sCS}, s{sCS}, s{t+7}\ns_add_u32 s{sCS}, s{sCS}, {WS_CSQ}")
    a(f"v_lshlrev_b32 v{vq}, 4, v14\nv_lshlrev_b32 v{vt}, 2, v15\ns_lshl_b32 s{t+7}, s{sWM}, 13")
    if first:
        a(f"""
        v_lshlrev_b32 v1, 7, v15
        v_add_u32 v1, s{t+7}, v1
        v_bfe_u32 v12, v0, 1, 3
        v_xor_b32 v12, v12, v14
        v_lshl_add_u32 v2, v12, 4, v1
        v_xor_b32 v12, 4, v12
        v_lshl_add_u32 v3, v12, 4, v1
        """)
    else:
        a(f"v_lshlrev_b32 v2, 4, v15\nv_lshl_add_u32 v2, v14, 9, v2\nv_add_u32 v2, s{t+7}, v2")
    a(f"""
    v_bfe_u32 v12, v0, 2, 2
    v_lshl_add_u32 v13, v14, 3, v12
    v_lshlrev_b32 v13, 8, v13
    v_and_b32 v1, 3, v0
    v_lshl_add_u32 v13, v1, 3, v13
    v_add_u32 v13, {WB}, v13
    v_bfe_u32 v12, v0, 2, 3
    s_lshl_b32 s{t+7}, s{sWN}, 2
    v_xor_b32 v12, s{t+7}, v12
    """)
    for nt in range(4): a(f"v_xor_b32 v1, {nt}, v12\nv_lshl_add_u32 v{4+nt}, v1, 5, v13\nv_add_u32 v{8+nt}, 49152, v{4+nt}")
    assert Q1_TAB == qkW(4)
    sC, sMk, sDst, sD1 = t+9, t+11, t+12, 96
    qloc = C.qloc and SB == '' and not first
    vlab = a.uid("qkv_v"); fin = a.uid("qkv_fin")
    a(f"s_cmp_eq_u32 s{sTY}, 2\ns_cbranch_scc1 {vlab}")
    def rd(c, u):
        b = FR + 32*u; o = qkW(c) - WB
        if first: r = [f"ds_read_b128 v[{b+4*tt}:{b+4*tt+3}], v{2+u} offset:{(c % 4)*16384+2048*tt}" for tt in range(4)]
        else: r = [f"ds_read_b128 v[{b+4*tt}:{b+4*tt+3}], v2 offset:{(c % 4)*16384+4096*(tt >> 1)+256*(tt & 1)+2048*u}" for tt in range(4)]
        for nt in range(4):
            for j in range(2):
                d = b + 16 + 4*nt + 2*j
                r.append(f"ds_read_b64_tr_b16 v[{d}:{d+1}], v{4 + 4*(o // 49152) + nt} offset:{o % 49152 + 8192*u + 1024*j}")
        return r
    def mainloop(vtype, epi, alt=None):
        if first: xstat_fin(a)
        stamp(a, 1 if first else 18)
        def mf(u, tl, z):
            b = FR + 32*u; c = ACC + 4*tl
            if vtype: A, B = v(b + 4*(tl >> 2), 4), v(b + 16 + 4*(tl & 3), 4)
            else: A, B = v(b + 16 + 4*(tl >> 2), 4), v(b + 4*(tl & 3), 4)
            return f"v_mfma_f32_16x16x32_bf16 {v(c,4)}, {A}, {B}, {0 if z else v(c,4)}"
        neg = [f"v_sub_f32 v{VCV+2*i}, 0, v{VCV+2*i}" for i in range(4)]
        if vtype: fix = lambda tl: [f"v_fmac_f32 v{ACC+4*tl+i}, v{VCV+2*(tl&3)}, v{VM+4*(tl>>2)+i}" for i in range(4)]
        else: fix = lambda tl: [f"v_fmac_f32 v{ACC+4*tl+i}, v{TMP+2*(tl&3)}, v{VCS+4*(tl>>2)+i}" for i in range(4)]
        groups = [tuple(range(4*j, 4*j + 4)) for j in range(4)]
        a(f"s_cmp_eq_u32 s{sTY}, 0\ns_cselect_b32 s{t+10}, {f32(QSCALE)}, 1.0")
        if not first:
            a(f"""
            s_lshl_b32 s{sC}, s{sRT}, 1
            s_add_u32 s{sC}, s{sC}, s{sWM}
            s_lshl_b32 s{sC}, s{sC}, 12
            s_add_u32 s{sC}, s{sC}, {L_ST2}
            v_lshlrev_b32 v3, 4, v0
            """)
            ins = {}
            for i in range(4): ins[58 + i + (12 if i > 1 else 0)] = [f"buffer_load_dwordx4 v[{VST+4*i}:{VST+4*i+3}], v3, {WSR}, s{sC} offen offset:{1024*i} sc1"]
            b = Asm(); b("s_waitcnt vmcnt(0)"); row_stats(b, VST, VST + 2, VST + 3)
            if vtype:
                b("\n".join(neg))
                a(f"s_lshl_b32 s{t+7}, s{sW}, 9\ns_add_u32 s{t+7}, s{t+7}, {qkW(4)}\nv_lshlrev_b32 v12, 2, v0\nv_add_u32 v12, s{t+7}, v12\nv_add_u32 v13, s{t+7}, v{vq}")
                ins[146] = [f"ds_write_b32 v12, v{VST+2}", f"ds_write_b32 v12, v{VST+3} offset:256"] + \
                    [f"ds_read_b128 v[{R_+4*tt}:{R_+4*tt+3}], v13 offset:{o_+64*tt}" for R_, o_ in ((VM, 0), (VR, 256)) for tt in range(4)]
                ff = 178
            else:
                for src, d, op in ((VST + 2, TMP, "v_sub_f32 v{0}, 0, v{1}"), (VST + 3, MS, "v_mul_f32 v{0}, s%d, v{1}" % (t + 10))):
                    b(op.format(d, src) + "\n" + op.format(d + 2, src) + f"\ns_nop 1\nv_permlane16_swap_b32 v{d}, v{d+2}\nv_mov_b32 v{d+4}, v{d}\nv_mov_b32 v{d+6}, v{d+2}\ns_nop 1")
                    b(f"v_permlane32_swap_b32 v{d}, v{d+4}\nv_permlane32_swap_b32 v{d+2}, v{d+6}")
                ff = 178
            ins = dict(sorted({**ins, 108: b.lines}.items()))
            gemm16(a, 10, 16, rd, mf, groups, ins, fix, ff, epi, 19, 2, 3, alt)
            return
        a(f"s_lshl_b32 s{t+7}, s{sWM}, 8\ns_add_u32 s{t+7}, s{t+7}, {Q1_TAB}\nv_add_u32 v13, s{t+7}, v{vq if vtype else vt}")
        if vtype:
            sr = [f"ds_read_b128 v[{R_+4*tt}:{R_+4*tt+3}], v13 offset:{o_+64*tt}" for R_, o_ in ((VM, 0), (VR, 512)) for tt in range(4)]
            sf = neg
        else:
            sr = [f"ds_read_b32 v{R_+2*tt}, v13 offset:{o_+64*tt}" for R_, o_ in ((TMP, 0), (MS, 512)) for tt in range(4)]
            sf = [x for tt in range(4) for x in (f"v_sub_f32 v{TMP+2*tt}, 0, v{TMP+2*tt}", f"v_mul_f32 v{MS+2*tt}, s{t+10}, v{MS+2*tt}")]
        a(f"s_lshl_b32 s{t+7}, s{sWN}, 8\ns_add_u32 s{t+7}, s{t+7}, {Q1_CS}\nv_add_u32 v12, s{t+7}, v{vt if vtype else vq}\nv_mov_b32 v1, {Q1_NON}")
        ae = [f"ds_read_b64 v[{NON}:{NON+1}], v1"]
        ae += [f"ds_read_b32 v{VCV+2*nt}, v12 offset:{64*nt}" if vtype else f"ds_read_b128 v[{VCS+4*nt}:{VCS+4*nt+3}], v12 offset:{64*nt}" for nt in range(4)]
        def epi1(g, pk):
            r = []
            if g == 0: r = ["s_waitcnt lgkmcnt(0)", f"v_readfirstlane_b32 s{sEP}, v{NON}", f"v_readfirstlane_b32 s{sMODE}, v{NON+1}"] + sf
            return r + sum((fix(tl) for tl in groups[g]), []) + epi(g, pk)
        assert C.c_f < 9
        gemm16(a, 10, 16, rd, mf, groups, {40: ["s_waitcnt vmcnt(0)"]}, lambda tl: [], 0, epi1, 2, 2, 3, None, ae, sr)
    if not first:
        for nt in range(4): a(f"buffer_load_dwordx4 v[{VCS+4*nt}:{VCS+4*nt+3}], v{vq}, {WSR}, s{sCS} offen offset:{64*nt} sc1")
    a(f"""
    s_mul_i32 s{sDst}, s{sTY}, {ACT}
    s_lshl_b32 s{t+8}, s{sRT}, 2
    s_lshl_b32 s{t+7}, s{sWM}, 1
    s_add_u32 s{t+8}, s{t+8}, s{t+7}
    s_mul_i32 s{t+8}, s{t+8}, 1280
    s_add_u32 s{sDst}, s{sDst}, s{t+8}
    s_add_u32 s{sDst}, s{sDst}, {LQ}
    s_lshr_b32 s{t+8}, s{sC0}, 3
    s_lshl_b32 s{t+7}, s{sWN}, 3
    s_add_u32 s{t+8}, s{t+8}, s{t+7}
    v_lshrrev_b32 v80, 5, v0
    v_add_u32 v80, s{t+8}, v80
    v_and_b32 v87, 31, v0
    s_mov_b32 s{t+13}, {HEADB}
    v_mov_b32 v86, 0x7fffffff
    s_mov_b32 s{sMk}, 0
    s_add_u32 s{sD1}, s{sDst}, 1280
    """)
    if qloc:
        a(f"""
        s_lshl_b32 s{t+8}, s{sRT}, 1
        s_add_u32 s{t+8}, s{t+8}, s{sWM}
        s_mul_i32 s{t+8}, s{t+8}, {2*F*64}
        s_add_u32 s{t+8}, s{t+8}, {L_Q + 57344}
        s_add_u32 s{t+7}, s{t+8}, {F*64}
        s_cmp_eq_u32 s{sTY}, 0
        s_cselect_b32 s{sDst}, s{t+8}, s{sDst}
        s_cselect_b32 s{sD1}, s{t+7}, s{sD1}
        s_cselect_b32 s{t+13}, 1280, s{t+13}
        """)
    a(f"s_add_u32 s{t+14}, s{sDst}, s{t+13}\ns_add_u32 s{sD1+1}, s{sD1}, s{t+13}")
    for sl in range(4):
        a(f"""
        v_add_u32 v81, {2*sl}, v80
        v_mul_u32_u24 v82, 205, v81
        v_lshrrev_b32 v82, 10, v82
        v_mad_i32_i24 v81, v82, -5, v81
        v_cmp_lt_u32 vcc, 2, v81
        v_lshlrev_b32 v82, 1, v82
        v_add_u32 v83, -3, v81
        v_cndmask_b32 v83, v81, v83, vcc
        v_addc_co_u32 v82, vcc, 0, v82, vcc
        v_lshlrev_b32 v83, 9, v83
        v_lshl_add_u32 v83, v87, 4, v83
        v_lshlrev_b32 v85, 3, v87
        v_add_u32 v85, 1024, v85
        v_cmp_eq_u32 vcc, 2, v81
        v_mul_lo_u32 v84, v82, s{t+13}
        s_cmp_lg_u64 vcc, 0
        v_cndmask_b32 v83, v83, v86, vcc
        v_cndmask_b32 v85, v86, v85, vcc
        s_cselect_b32 s{t+7}, {1 << sl}, 0
        s_or_b32 s{sMk}, s{sMk}, s{t+7}
        v_add_u32 v{AD+sl}, v83, v84
        v_add_u32 v{AD+4+sl}, v85, v84
        """)
    def pack(c, sw):
        return [f"v_cvt_pk_bf16_f32 v{c+i}, v{c+2*i}, v{c+2*i+1}" for i in range(4)] + \
               ["s_nop 0", f"v_permlane{sw}_swap_b32 v{c}, v{c+2}", f"v_permlane{sw}_swap_b32 v{c+1}, v{c+3}"]
    def epi_qk(nt, pk=True, bits='sc1'):
        r = []
        for tp in range(2):
            c = ACC + 16*nt + 8*tp
            if pk: r += [f"v_pk_mul_f32 v[{c+i}:{c+i+1}], v[{c+i}:{c+i+1}], v[{MS+4*tp+2*(i>>2)}:{MS+4*tp+2*(i>>2)+1}] op_sel_hi:[1,0]" for i in range(0, 8, 2)]
            else: r += [f"v_mul_f32 v{c+i}, v{MS+4*tp+2*(i>>2)}, v{c+i}" for i in range(8)]
            r += pack(c, 16)
            r.append(f"buffer_store_dwordx4 v[{c}:{c+3}], v{AD+nt}, {WSR}, s{sD1 if tp else sDst} offen {bits}")
        return r
    def bparts(bits):
        for sl in range(4):
            sk = a.uid("qk_b")
            a(f"s_bitcmp0_b32 s{sMk}, {sl}\ns_cbranch_scc1 {sk}")
            for tm in range(2):
                o = ACC + 16*sl + 8*tm
                a(f"buffer_store_dwordx2 v[{o}:{o+1}], v{AD+4+sl}, {WSR}, s{sD1 if tm else sDst} offen {bits}")
                a(f"buffer_store_dwordx2 v[{o+2}:{o+3}], v{AD+4+sl}, {WSR}, s{sD1+1 if tm else t+14} offen {bits}")
            a.label(sk)
        a(f"s_branch {fin}")
    if qloc: mainloop(False, epi_qk, (f"s_cmp_eq_u32 s{sTY}, 0", lambda g, pk: epi_qk(g, pk, ""), lambda: bparts("sc1"), lambda: bparts("")))
    else:
        mainloop(False, epi_qk); bparts("sc1")
    a.label(vlab)
    if not first:
        for nt in range(4): a(f"buffer_load_dword v{VCV+2*nt}, v{vt}, {WSR}, s{sCS} offen offset:{64*nt} sc1")
    a(f"""
    s_lshl_b32 s{t+8}, s{sRT}, 3
    s_lshl_b32 s{t+7}, s{sWM}, 2
    s_add_u32 s{t+8}, s{t+8}, s{t+7}
    s_mul_i32 s{sDst}, s{t+8}, 640
    s_add_u32 s{sDst}, s{sDst}, {L_V + LQ}
    s_lshl_b32 s{t+7}, s{sWN}, 6
    s_add_u32 s{t+8}, s{sC0}, s{t+7}
    v_lshrrev_b32 v80, 5, v0
    v_lshl_add_u32 v80, v80, 4, v15
    v_add_u32 v80, s{t+8}, v80
    v_and_b32 v81, 1, v14
    v_mul_u32_u24 v81, 320, v81
    s_mov_b32 s{t+13}, {HEADB}
    s_movk_i32 s{t+14}, 3277
    s_movk_i32 s{t+7}, -20
    """)
    for np_ in range(2):
        a(f"""
        v_add_u32 v83, {32*np_}, v80
        v_mul_u32_u24 v84, s{t+14}, v83
        v_lshrrev_b32 v84, 16, v84
        v_mad_i32_i24 v83, v84, s{t+7}, v83
        v_lshl_add_u32 v83, v83, 4, v81
        v_mul_lo_u32 v85, v84, s{t+13}
        v_add_u32 v{AD+np_}, v83, v85
        """)
    def epi_v(tt, pk=True):
        r = []
        for np_ in range(2):
            c = ACC + 16*tt + 8*np_
            if pk: r += [f"v_pk_mul_f32 v[{c+i}:{c+i+1}], v[{c+i}:{c+i+1}], v[{VR+4*tt+(i&3)}:{VR+4*tt+(i&3)+1}]" for i in range(0, 8, 2)]
            else: r += [f"v_mul_f32 v{c+i}, v{VR+4*tt+(i&3)}, v{c+i}" for i in range(8)]
            r += pack(c, 32)
            r.append(f"buffer_store_dwordx4 v[{c}:{c+3}], v{AD+np_}, {WSR}, s{sDst} offen offset:{640*tt} sc1")
        return r
    mainloop(True, epi_v)
    a.label(fin)
    stamp(a, 3 if first else 20)
    flag_setup(a, 1 if first else 6)
    a(f"s_lshl_b32 s{t+7}, s{sWG}, 5\ns_add_u32 s{t+7}, s{t+7}, s{sW}\ns_lshl_b32 s{t+7}, s{t+7}, 2\ns_add_u32 s{t+7}, s{t+7}, {L_FG + LQ}")
    a("s_waitcnt vmcnt(0)")
    if first:
        l1 = a.uid("q1f"); l2 = a.uid("q1g")
        a(f"s_cmp_eq_u32 s{sMODE}, 0\ns_cbranch_scc1 {l1}")
        flag_store(a, ""); a(f"s_branch {l2}")
        a.label(l1); flag_store(a, "sc1"); a.label(l2)
    else: flag_store(a, SB)
    flag_store(a, "sc1", t+7)

def qkvW_setup(a, sWo, sLW, sCT, sTmp, vW):
    a(f"""
    v_lshrrev_b32 v2, 4, v0
    v_mul_u32_u24 v1, 3840, v2
    v_lshlrev_b32 v7, 1, v2
    v_and_b32 v3, 15, v0
    v_xor_b32 v3, v3, v7
    v_lshl_add_u32 v{vW}, v3, 4, v1
    v_xor_b32 v3, 8, v3
    v_lshl_add_u32 v{vW+1}, v3, 4, v1
    s_mul_i32 s{sWo}, s{sLW}, {16*3840}
    s_lshl_b32 s{sTmp}, s{sCT}, 8
    s_add_u32 s{sWo}, s{sWo}, s{sTmp}
    """)

def qkv1_loader(a):
    t = T
    sRT, sCT = t, t+1
    sLW, sAo, sWo, sM, sTmp, sRot, sThr, sA1, sW1, sSel = t+2, t+3, t+4, t+5, t+6, t+8, t+9, t+10, t+11, t+12
    a(f"s_sub_u32 s{sLW}, s{sW}, 4")
    qkvW_setup(a, sWo, sLW, sCT, sTmp, 6)
    a(f"""
    s_lshl_b32 s{sM}, s{sLW}, 12
    s_lshl_b32 s{sAo}, s{sRT}, 2
    s_add_u32 s{sAo}, s{sAo}, s{sLW}
    s_mul_i32 s{sAo}, s{sAo}, {32*1280}
    v_lshrrev_b32 v1, 3, v0
    v_mul_u32_u24 v1, 1280, v1
    v_and_b32 v3, 7, v0
    v_xor_b32 v3, v3, v2
    v_lshl_add_u32 v4, v3, 4, v1
    v_xor_b32 v3, 4, v3
    v_lshl_add_u32 v5, v3, 4, v1
    """)
    a("s_waitcnt lgkmcnt(0)")
    srd(a, R_X, P_X, ACT)
    srd(a, R_WQ, P_WQKV, D*3*D*2)
    def emitA(c, i0, k):
        for i in range(i0, i0 + k):
            a(f"s_add_u32 m0, s{sM}, {(c % 4)*16384 + 1024*i}\ns_add_u32 s{sTmp}, s{sAo}, {c*128 + i*8*1280}")
            a(f"buffer_load_dwordx4 v{4 + (i & 1)}, {R(R_X)}, s{sTmp} offen lds")
    def emitW(c, i0, k):
        for i in range(i0, i0 + k):
            a(f"s_add_u32 m0, s{sM}, {qkW(c) + 1024*i}\ns_add_u32 s{sTmp}, s{sWo}, {c*64*3840 + i*4*3840}")
            a(f"buffer_load_dwordx4 v{6 + (i >> 1)}, {R(R_WQ)}, s{sTmp} offen lds")
    LD = Loader(a); mark = [0]
    def xstats(c):
        if c == 0:
            other_srds(a)
            a(f"""
            v_bfe_u32 v8, v0, 2, 2
            v_lshrrev_b32 v9, 4, v0
            v_lshl_add_u32 v9, v9, 3, v8
            v_lshlrev_b32 v9, 8, v9
            v_and_b32 v10, 3, v0
            v_lshl_add_u32 v9, v10, 3, v9
            v_add_u32 v9, {WB}, v9
            v_bfe_u32 v10, v0, 2, 3
            s_lshl_b32 s{t+7}, s{sLW}, 1
            v_xor_b32 v10, s{t+7}, v10
            v_lshl_add_u32 v8, v10, 5, v9
            v_xor_b32 v10, 1, v10
            v_lshl_add_u32 v9, v10, 5, v9
            v_add_u32 v10, 49152, v8
            v_add_u32 v11, 49152, v9
            """)
            for i in range(4): a(f"v_mov_b32 v{12+i}, 0x3f803f80")
        o_ = qkW(c) - WB
        for u in range(2):
            for e in range(2):
                for j in range(2):
                    d = 16 + 8*u + 4*e + 2*j
                    a(f"ds_read_b64_tr_b16 v[{d}:{d+1}], v{8 + 2*(o_ // 49152) + e} offset:{o_ % 49152 + 8192*u + 1024*j}")
        a("s_waitcnt lgkmcnt(0)")
        for u in range(2):
            for e in range(2):
                a(f"v_mfma_f32_16x16x32_bf16 v[{32+4*e}:{35+4*e}], v[12:15], v[{16+8*u+4*e}:{19+8*u+4*e}], {v(32+4*e,4) if (c or u) else 0}")
        n = LD.total - mark[0]
        if c in (0, C.c_i, C.c_c): mark[0] = LD.total
        def st_issue():
            census(a, 80, 81, False, n)
            a(f"s_lshl_b32 s{t+7}, s{sRT}, 13\ns_add_u32 s{t+7}, s{t+7}, {WS_ST0}\ns_add_u32 s{t+13}, s{t+7}, 4096\nv_lshlrev_b32 v82, 4, v0")
            for h_ in range(2):
                for i in range(4): a(f"buffer_load_dwordx4 v[{96+16*h_+4*i}:{99+16*h_+4*i}], v82, {WSR}, s{t+13 if h_ else t+7} offen offset:{1024*i} sc1")
        def st_fin():
            a(f"s_waitcnt vmcnt({n})\nv_lshlrev_b32 v82, 2, v0\nv_add_u32 v82, {Q1_TAB}, v82")
            for h_ in range(2):
                row_stats(a, 96 + 16*h_, 84, 85)
                a(f"ds_write_b32 v82, v84 offset:{256*h_}\nds_write_b32 v82, v85 offset:{512+256*h_}")
            a("s_waitcnt lgkmcnt(0)")
        st = {0: lambda: (flags_zero(a), nonce_issue(a, 81, 82)), 2: lambda: nonce_get(a, 80, 81, 82, n), C.c_i: lambda: census(a, 80, 81, True), C.c_c: st_issue, C.c_f: st_fin}
        if c in st:
            l = a.uid("w7")
            a(f"s_cmp_lg_u32 s{sW}, 7\ns_cbranch_scc1 {l}")
            st[c](); a.label(l)
            LD.q += [("x7", "x", 99)] * {0: 4, 2: 1, C.c_i: 1, C.c_c: 8, C.c_f: 0}[c]
    if C.q1prio: a("s_setprio 2")
    stamp(a, 1)
    ph = Phase("q1", 10, 4, 4, emitA, emitW, lambda c: ((c % 4)*16384, (c % 4)*16384 + 16384), lambda c: (qkW(c), qkW(c) + 16384),
               None, C.bud_q1, after_bar=xstats, dbg=(C.dbg == 1))
    def waitfn(w):
        l1 = a.uid("pw"); l2 = a.uid("pw"); l3 = a.uid("pw")
        a(f"s_cmp_eq_u32 s{sW}, 4\ns_cbranch_scc1 {l1}\ns_cmp_eq_u32 s{sW}, 7\ns_cbranch_scc1 {l2}\ns_waitcnt vmcnt({w+5})\ns_branch {l3}")
        a.label(l1); a(f"s_waitcnt vmcnt({w+16})\ns_branch {l3}")
        a.label(l2); a(f"s_waitcnt vmcnt({w})")
        a.label(l3)
    ph.look = C.look_q1
    LD.run(ph, None)
    a(f"""
    v_and_b32 v1, 15, v0
    v_lshlrev_b32 v1, 2, v1
    s_lshl_b32 s{sTmp}, s{sLW}, 7
    v_add_u32 v1, s{sTmp}, v1
    v_add_u32 v2, {Q1_CS}, v1
    s_lshl_b32 s{sTmp}, s{sWG}, 9
    s_add_u32 s{sTmp}, s{sTmp}, {WS_CSQ}
    s_setprio 0
    s_nop 3
    ds_write_b32 v2, v32
    ds_write_b32 v2, v36 offset:64
    buffer_store_dword v32, v1, {WSR}, s{sTmp} offen
    buffer_store_dword v36, v1, {WSR}, s{sTmp} offen offset:64
    s_waitcnt lgkmcnt(0)
    """)
    stamp(a, 2)
    a("s_barrier")
    read_nonce_mode(a)

def other_srds(a):
    srd(a, R_WS, P_WS, WS_END)
    srd(a, R_WG, P_WG, D*F*2)
    srd(a, R_WU, P_WU, D*F*2)
    srd(a, R_T, P_WS, WS_END)

def qkv1_idle(a):
    l2 = a.uid("idl"); l1 = a.uid("idl"); l3 = a.uid("idl"); l4 = a.uid("idl"); lj = a.uid("idl")
    tj = 84; K = NAME + "_kernel"
    a(f"v_lshlrev_b32 v5, 4, v0\ns_cmp_lt_u32 s{sW}, 4\ns_cbranch_scc1 {l1}")
    a(f"s_xor_b32 s{tj}, s{sW}, 7\ns_or_b32 s{tj}, s{tj}, s{T}\ns_cmp_lg_u32 s{tj}, 0\ns_cbranch_scc1 {l3}")
    nonce_put(a)
    a.label(l3)
    a(f"s_getpc_b64 s[{tj+4}:{tj+5}]")
    a.label("L_pc")
    a(f"""
    s_sub_u32 s{tj+4}, s{tj+4}, L_pc-{K}
    s_subb_u32 s{tj+5}, s{tj+5}, 0
    s_and_b32 s{tj}, s{T}, 1
    s_lshl_b32 s{tj}, s{tj}, 2
    s_add_u32 s{tj}, s{tj}, s{sW}
    s_sub_u32 s{tj}, s{tj}, 4
    s_lshl_b32 s{tj}, s{tj}, 13
    v_lshlrev_b32 v1, 7, v0
    v_add_u32 v2, s{tj}, v1
    global_load_dword v251, v2, s[{tj+4}:{tj+5}]
    """)
    a(f"s_lshl_b32 s{tj}, s{T}, 2\ns_add_u32 s{tj}, s{tj}, s{sW}\ns_add_u32 s{tj+2}, s{tj}, {60 - 4}\ns_lshl_b32 s{tj+2}, s{tj+2}, 13")
    for i in range(4):
        if C.q1pf: a(f"buffer_load_dword v251, v1, {R(R_WQ)}, s{tj+2} offen\ns_add_u32 s{tj+2}, s{tj+2}, {64*8192}")
        if i == 0: a("s_barrier")
    a(f"s_branch {l2}")
    a.label(l1)
    xstat_fin(a)
    a(f"s_cmp_lg_u32 s{sW}, 0\ns_cbranch_scc1 {l4}")
    flags_zero(a)
    a.label(l4)
    a(f"s_waitcnt vmcnt(0)\ns_barrier\ns_cmp_lg_u32 s{sW}, 0\ns_cbranch_scc1 {l2}")
    nonce_issue(a, 81, 82)
    nonce_get(a, 80, 81, 82)
    a.label(l2)
    a(f"s_mul_i32 s{tj}, s{T}, 10\ns_add_u32 s{tj+7}, s{tj}, 10\ns_add_u32 s{tj}, s{tj}, s{sW}\ns_mul_i32 s{tj+1}, s{sW}, 5120")
    a.label(lj)
    projjob_issue(a, tj, tj+1, tj)
    a("s_waitcnt vmcnt(0)")
    projjob_finish(a, tj+1, tj)
    a(f"s_add_u32 s{tj}, s{tj}, 8\ns_cmp_lt_u32 s{tj}, s{tj+7}\ns_cbranch_scc1 {lj}")
    l5 = a.uid("idl")
    a(f"s_waitcnt vmcnt(0)\ns_barrier\ns_cmp_lg_u32 s{sW}, 0\ns_cbranch_scc1 {l5}")
    a(f"""
    s_lshl_b32 s{tj}, s{sWG}, 7
    s_add_u32 s{tj}, s{tj}, {L_FG + 36}
    v_mov_b32 v1, 0
    v_mov_b32 v2, s{sEP}
    """)
    flag_store(a, "sc1", tj)
    census(a, 80, 81, True)
    census(a, 80, 81, False)
    a.label(l5)
    a("s_barrier")
    read_nonce_mode(a)

def phase_attn(a, SB, ld_label):
    fast = SB == ""
    t = T
    CH = 20480
    sQP, sKH, sSrc, sDst, sTmp, sC, sHB = t, t+1, t+2, t+3, t+4, t+5, t+8
    sEX = t+6
    sWs, sWd, sPF = t+9, t+10, t+11
    tj = 84; sJob, sScr = tj, tj + 1
    QAREA = 102400
    QA, QB = 16, 22
    NM, SS, PP, OO, KF, VF = 32, 64, 96, 112, 144, 160
    vK, vK8, vV = 2, 3, 4
    DUM = 176; XF = 177; vX1, vX2, vO = 28, 29, 30; sO, sFB = 96, 99; XB = 102400; PR = 32
    assert C.c0
    KVB = 'nt sc1' if C.nt_kv else 'sc1'
    stamp(a, 4)
    a(f"""
    s_and_b32 s{sQP}, s{sW}, 3
    s_lshr_b32 s{sKH}, s{sW}, 2
    v_lshlrev_b32 v5, 4, v0
    s_mul_i32 s{sHB}, s{sR}, {HEADB}
    s_add_u32 s{sHB}, s{sHB}, s{sLO}
    s_and_b32 s{sTmp}, s{sQP}, 1
    s_mul_i32 s{sSrc}, s{sTmp}, 5120
    s_mul_i32 s{sDst}, s{sTmp}, 10240
    s_lshr_b32 s{sTmp}, s{sQP}, 1
    s_mul_i32 s{sC}, s{sTmp}, 5120
    s_add_u32 s{sDst}, s{sDst}, s{sC}
    s_mul_i32 s{sC}, s{sTmp}, {ACT}
    s_add_u32 s{sSrc}, s{sSrc}, s{sC}
    s_add_u32 s{sSrc}, s{sSrc}, s{sHB}
    s_add_u32 s{sSrc}, s{sSrc}, {L_K}
    """)
    def kv_issue(j):
        GF.need(0x01010101 << j)
        a(f"s_add_u32 s{sTmp}, s{sG}, {j}\ns_and_b32 s{sTmp}, s{sTmp}, 7\ns_mul_i32 s{sTmp}, s{sTmp}, 10240\ns_add_u32 s{sTmp}, s{sTmp}, s{sSrc}")
        return lin_dma(a, 5, sTmp, 0, sDst, j * CH, 5, KVB)
    def init():
        a(f"""
        v_lshrrev_b32 v14, 5, v0
        v_and_b32 v15, 31, v0
        v_lshlrev_b32 v6, 3, v15
        s_mul_i32 s{sTmp}, s{sKH}, 10240
        v_add_u32 v{vK}, s{sTmp}, v5
        v_add_u32 v{vK8}, s{sTmp}, v6
        v_mul_u32_u24 v7, 320, v14
        v_lshl_add_u32 v7, v15, 4, v7
        v_add_u32 v{vV}, s{sTmp}, v7
        s_mov_b32 s{sEX}, 0x000fffff
        s_mov_b32 s{sEX+1}, 0x000fffff
        s_mov_b32 s{t+16}, -1
        s_mov_b32 s{t+17}, 0
        v_and_b32 v9, 27, v0
        v_cmp_eq_u32 vcc, 24, v9
        v_mov_b32 v8, 0x3f803f80
        s_nop 0
        v_cndmask_b32 v8, 0, v8, vcc
        v_mov_b32 v9, v8
        v_lshlrev_b32 v13, 7, v0
        v_mov_b32 v12, 0
        """)
        for i in range(0, 16, 2): a(f"v_mov_b64 v[{VF+i}:{VF+i+1}], v[8:9]")
        for i in range(0, 32, 2): a(f"v_mov_b64 v[{OO+i}:{OO+i+1}], 0")
        for i in range(0, 8, 2): a(f"v_mov_b64 v[{PP+8+i}:{PP+8+i+1}], 0")
        a(f"v_mov_b64 v[{QA+4}:{QA+5}], 0\nv_mov_b64 v[{QB+4}:{QB+5}], 0")
        a(f"""
        s_mul_i32 s{sC}, s{sQP}, 7168
        s_add_u32 s{sC}, s{sC}, {XB}
        v_add_u32 v{vX1}, s{sC}, v5
        v_lshrrev_b32 v{vX2}, 1, v5
        v_add_u32 v{vX2}, s{sC}, v{vX2}
        s_lshl_b32 s{sTmp}, s{sQP}, 2
        s_add_u32 s{sTmp}, s{sTmp}, {XB + 28672}
        v_mov_b32 v{XF}, s{sTmp}
        s_mul_i32 s{sTmp}, s{sR}, 5
        v_add_u32 v{vO}, s{sTmp}, v14
        v_lshrrev_b32 v10, 1, v{vO}
        v_and_b32 v{vO}, 1, v{vO}
        v_lshlrev_b32 v{vO}, 3, v{vO}
        v_lshl_add_u32 v{vO}, v10, 9, v{vO}
        v_lshl_add_u32 v{vO}, v15, 4, v{vO}
        s_lshl_b32 s{sTmp}, s{sG}, 2
        s_add_u32 s{sTmp}, s{sTmp}, s{sQP}
        s_mul_i32 s{sO}, s{sTmp}, 81920
        {"" if fast else f"s_add_u32 s{sO}, s{sO}, s{sLO}"}
        s_add_u32 s{sO}, s{sO}, {L_O}
        s_add_u32 s{sO+1}, s{sO}, 40960
        s_mov_b32 s{sFB}, 0
        """)
        if C.c0:
            for st_ in range(2): a(f"v_mov_b32 v{KF+8*st_+4}, 0x3f803f80\nv_mov_b32 v{KF+8*st_+5}, 0x3f80")
    init()
    l0 = a.uid("att_old"); l1 = a.uid("att_j")
    a(f"s_cmp_eq_u32 s{sKH}, 0\ns_cbranch_scc1 {l0}")
    poll_local(a, "attn", 1, va=10, vt=11)
    stamp(a, 5)
    a(f"""
    s_mul_i32 s{sC}, s{sQP}, 2560
    s_add_u32 s{sPF}, s{sC}, {QAREA}
    s_mul_i32 s{sTmp}, s{sG}, 10240
    s_add_u32 s{sTmp}, s{sTmp}, s{sC}
    s_add_u32 s{sTmp}, s{sTmp}, s{sHB}
    """)
    a(f"s_add_u32 s{sC}, s{sTmp}, 1280")
    if fast and C.qloc:
        a(f"""
        s_lshl_b32 s{sWs}, s{sG}, 2
        s_add_u32 s{sWs}, s{sWs}, s{sQP}
        s_mul_i32 s{sWs}, s{sWs}, {2*F*64}
        s_mul_i32 s{sWd}, s{sR}, 1280
        s_add_u32 s{sWs}, s{sWs}, s{sWd}
        s_add_u32 s{sWs}, s{sWs}, {L_Q + 57344}
        s_add_u32 s{sWd}, s{sWs}, {F*64}
        s_cmp_lg_u32 s{sL}, 0
        s_cselect_b32 s{sTmp}, s{sWs}, s{sTmp}
        s_cselect_b32 s{sC}, s{sWd}, s{sC}
        """)
    for x, sr in ((0, sTmp), (1, sC)):
        a(f"""
        s_add_u32 m0, s{sPF}, {1280*x}
        s_mov_b64 exec, -1
        buffer_load_dwordx4 v5, {WSR}, s{sr} offen {KVB} lds
        s_mov_b64 exec, 0xffff
        buffer_load_dwordx4 v5, {WSR}, s{sr} offen offset:1024 {KVB} lds
        """)
    a("s_mov_b64 exec, -1")
    a(f"s_mul_i32 s{sTmp}, s{sG}, 10240\ns_add_u32 s{sTmp}, s{sTmp}, s{sSrc}")
    lin_dma(a, 5, sTmp, 0, sDst, 0, 2, KVB)
    if C.stage: a(f"s_waitcnt vmcnt({C.stage - 1})")
    lin_dma(a, 5, sTmp, 2048, sDst, 2048, 3, KVB)
    if C.stage != 1: a(f"s_waitcnt vmcnt(3)")
    a(f"s_branch {l1}")
    a.label(l0)
    a(f"""
    s_setprio 1
    v_add_u32 v10, s{sG}, v0
    v_and_b32 v10, 7, v10
    v_bfe_u32 v11, v0, 3, 1
    v_mul_u32_u24 v11, 19, v11
    s_mul_i32 s{sTmp}, s{sR}, 20
    v_add_u32 v11, s{sTmp}, v11
    v_lshrrev_b32 v11, 7, v11
    v_lshl_add_u32 v10, v10, 5, v11
    s_and_b32 s{sTmp}, s{sQP}, 1
    s_lshl_b32 s{sTmp}, s{sTmp}, 4
    s_lshr_b32 s{sC}, s{sQP}, 1
    s_mul_i32 s{sC}, s{sC}, 5
    s_add_u32 s{sTmp}, s{sTmp}, s{sC}
    s_add_u32 s{sTmp}, s{sTmp}, 5
    v_add_u32 v10, s{sTmp}, v10
    v_lshlrev_b32 v12, 7, v10
    v_lshrrev_b32 v11, 4, v0
    v_lshl_add_u32 v12, v11, 2, v12
    s_and_b32 s{sWs}, s{sR}, 7
    s_mul_i32 s{sWs}, s{sWs}, 102400
    s_mul_i32 s{sWd}, s{sW}, 5120
    s_add_u32 s{sWs}, s{sWs}, s{sWd}
    s_add_u32 s{sWs}, s{sWs}, {WS_WTO}
    s_add_u32 s{sGO}, s{sLO}, {L_FG}
    s_add_u32 s{sGW}, s{sEP}, 1
    """)
    def cpf(lo, hi):
        l = a.uid("cpf"); pc = a.uid("pc")
        a(f"s_or_b32 s{sC}, s{sL}, s{sW}\ns_cmp_lg_u32 s{sC}, 0\ns_cbranch_scc1 {l}\ns_getpc_b64 s[{t+12}:{t+13}]")
        a.label(pc)
        a(f"""
        s_sub_u32 s{t+12}, s{t+12}, {pc}-{NAME}_kernel
        s_subb_u32 s{t+13}, s{t+13}, 0
        s_lshl_b32 s{sC}, s{sR}, 11
        s_add_u32 s{sC}, s{sC}, {lo}-{NAME}_kernel
        v_add_u32 v{PV+2}, s{sC}, v13
        v_min_u32 v{PV+2}, {hi}-{NAME}_kernel, v{PV+2}
        s_mov_b64 exec, 0xffff
        global_load_dword v{DUM}, v{PV+2}, s[{t+12}:{t+13}]
        s_mov_b64 exec, -1
        """)
        a.label(l)
    if fast and C.cpf: cpf("L_fast", "L_fast_post")
    a.label(l1)
    GF = Gate(a, 12, PV, fold=True, sleep=2)
    a(f"""
    s_mul_i32 s{sC}, s{sQP}, 2560
    s_add_u32 s{sC}, s{sC}, {QAREA}
    v_add_u32 v10, s{sC}, v5
    v_add_u32 v11, s{sC}, v6
    s_barrier
    ds_read_b128 v[{QA}:{QA+3}], v10
    ds_read_b128 v[{QB}:{QB+3}], v10 offset:1280
    s_mov_b32 exec_hi, 0
    ds_read_b64 v[{QA+4}:{QA+5}], v11 offset:1024
    ds_read_b64 v[{QB+4}:{QB+5}], v11 offset:{1280+1024}
    s_mov_b32 exec_hi, -1
    """)
    stamp(a, 6)
    l1 = a.uid("att_ap")
    a(f"s_cmp_lg_u32 s{sKH}, 0\ns_cbranch_scc1 {l1}")
    GF.load()
    a.label(l1)
    base = [0]
    def rdK(st, c, kt):
        off = c * CH + kt * 1280 - base[0]
        assert 0 <= off and off + 1024 < 65536
        b = KF + 8*st
        if C.c0: return [f"s_mov_b64 exec, s[{t+16}:{t+17}]", f"ds_read_b64 v[{b+4}:{b+5}], v{vK8} offset:{off+1024}", "s_mov_b64 exec, -1", f"ds_read_b128 v[{b}:{b+3}], v{vK} offset:{off}"]
        return [f"ds_read_b128 v[{b}:{b+3}], v{vK} offset:{off}", f"ds_read_b64 v[{b+4}:{b+5}], v{vK8} offset:{off+1024}"]
    def rdV(st, c, kt):
        off = c * CH + 5120 + kt * 1280 - base[0]
        assert 0 <= off and off + 640 < 65536
        b = VF + 8*st
        return [f"s_mov_b64 exec, s[{sEX}:{sEX+1}]", f"ds_read_b128 v[{b}:{b+3}], v{vV} offset:{off}",
                f"ds_read_b128 v[{b+4}:{b+7}], v{vV} offset:{off+640}", f"s_mov_b64 exec, -1"]
    def qk(x, st, c=None):
        b = KF + 8*st; q = (QA, QB)[x]; sd = SS + 16*x
        cc = v(NM + 16*x, 16) if (c is None and not C.c0) else '0'
        return [f"v_mfma_f32_32x32x16_bf16 {v(sd,16)}, {v(b,4)}, {v(q,4)}, {cc}",
                f"v_mfma_f32_32x32x8_bf16 {v(sd,16)}, {v(b+4,2)}, {v(q+4,2)}, {v(sd,16)}"]
    def pv(x, st):
        b = VF + 8*st; p = PP + 8*x; o = OO + 16*x
        return [f"v_mfma_f32_32x32x16_bf16 {v(o,16)}, {v(b,4)}, {v(p,4)}, {v(o,16)}",
                f"v_mfma_f32_32x32x16_bf16 {v(o,16)}, {v(b+4,4)}, {v(p+4,4)}, {v(o,16)}"]
    def sm(x):
        sd = SS + 16*x; p = PP + 8*x; r = []
        for i in range(8):
            r.append(f"v_exp_f32 v{sd+2*i}, v{sd+2*i}")
            r.append(f"v_exp_f32 v{sd+2*i+1}, v{sd+2*i+1}")
            if i > 0: r.append(f"v_cvt_pk_bf16_f32 v{p+i-1}, v{sd+2*i-2}, v{sd+2*i-1}")
        r.append(f"v_cvt_pk_bf16_f32 v{p+7}, v{sd+14}, v{sd+15}")
        return r
    def setm():
        for x in range(2): a(f"v_mov_b32 v{10+x}, v{8+x}")
        a("s_nop 0")
        for x in range(2): a(f"v_permlane32_swap_b32 v{8+x}, v{10+x}")
        a("s_nop 0")
        for x in range(2): a(f"v_max_f32 v{8+x}, v{8+x}, v{10+x}")
        if C.c0:
            a("s_mov_b32 exec_lo, 0")
            for x in range(2):
                q = (QA, QB)[x] + 4; r = NM + 4*x
                a(f"""
                v_sub_f32 v{r}, 0, v{8+x}
                v_and_b32 v{r+1}, 0xffff0000, v{r}
                v_sub_f32 v{r+2}, v{r}, v{r+1}
                v_and_b32 v{r+3}, 0xffff0000, v{r+2}
                v_sub_f32 v{r+2}, v{r+2}, v{r+3}
                v_lshrrev_b32 v{r+1}, 16, v{r+1}
                v_or_b32 v{q}, v{r+1}, v{r+3}
                v_lshrrev_b32 v{q+1}, 16, v{r+2}
                """)
            a("s_mov_b32 exec_lo, -1")
            return
        for x in range(2):
            a(f"v_sub_f32 v{NM+16*x}, 0, v{8+x}\nv_sub_f32 v{NM+16*x+1}, 0, v{8+x}")
            for i in range(2, 16, 2): a(f"v_mov_b64 v[{NM+16*x+i}:{NM+16*x+i+1}], v[{NM+16*x}:{NM+16*x+1}]")
    for x in rdK(0, 0, 0): a(x)
    a("s_waitcnt lgkmcnt(0)")
    m = qk(0, 0, "0") + qk(1, 0, "0")
    for i in (0, 1, 2, 3): a(m[i])
    a.nop(10)
    for x in range(2):
        sd = SS + 16*x
        a(f"v_max3_f32 v{8+x}, v{sd}, v{sd+1}, v{sd+2}")
        for i in range(3, 15, 2):
            a(f"v_max3_f32 v{8+x}, v{8+x}, v{sd+i}, v{sd+i+1}")
        a(f"v_max_f32 v{8+x}, v{8+x}, v{sd+15}")
    setm()
    for i in range(16): a(f"v_sub_f32 v{SS+i}, v{SS+i}, v8")
    l1 = a.uid("att_w0"); l2 = a.uid("att_w1")
    sDone = t + 15
    a(f"s_cmp_eq_u32 s{sKH}, 0\ns_cbranch_scc1 {l1}\ns_waitcnt vmcnt(0)\ns_barrier\ns_branch {l2}")
    a.label(l1)
    a("s_barrier")
    GF.upd()
    a(f"s_and_b32 s{sDone}, s{sNR}, 0x02020202\ns_cbranch_scc1 {l2}")
    GF.ok = 0x02020202; kv_issue(1); GF.ok = 0
    a.label(l2)
    stamp(a, 7)
    cstamp(a, 0)
    def l0only(fn):
        l = a.uid("l0")
        a(f"s_cmp_lg_u32 s{sL}, 0\ns_cbranch_scc1 {l}")
        fn(); a.label(l)
    def l2pf(i0, n):
        for i in range(i0, min(i0 + n, (C.l2pf + 3) // 4)):
            l = a.uid("pfs")
            a(f"""
            s_cmp_ge_u32 s{sW}, {C.l2pf - 4*i}
            s_cbranch_scc1 {l}
            s_lshr_b32 s{sPF}, s{sR}, 4
            s_mul_i32 s{sPF}, s{sPF}, {15 if C.rot_gu else 1}
            s_mul_i32 s{sC}, s{sW}, {1 if C.rot_gu else 2}
            s_add_u32 s{sPF}, s{sPF}, s{sC}
            s_add_u32 s{sPF}, s{sPF}, {4*i if C.rot_gu else 8*i}
            s_lshl_b32 s{sPF}, s{sPF}, 13
            s_and_b32 s{sC}, s{sR}, 15
            s_mul_i32 s{sC}, s{sC}, 245760
            s_add_u32 s{sPF}, s{sPF}, s{sC}
            s_add_u32 s{sPF}, s{sPF}, {WS_WTG}
            buffer_load_dword v{DUM}, v13, {WSR}, s{sPF} offen
            """)
            a.label(l)
    def evpf(i):
        a(f"""
        s_lshr_b32 s{sPF}, s{sR}, 4
        s_lshl_b32 s{sC}, s{sW}, 1
        s_add_u32 s{sPF}, s{sPF}, s{sC}
        s_mul_i32 s{sPF}, s{sPF}, 24576
        s_and_b32 s{sC}, s{sR}, 15
        s_mul_i32 s{sC}, s{sC}, 245760
        s_add_u32 s{sPF}, s{sPF}, s{sC}
        s_add_u32 s{sPF}, s{sPF}, {WS_WTG + 49152 + 8192*i}
        buffer_load_dword v{DUM}, v13, {WSR}, s{sPF} offen
        """)
    if C.ev1:
        l2pf = lambda i0, n: [evpf(i) for i in range(i0, min(i0 + n, C.ev1))]
    def wwo(c): lin_dma(a, 5, sWs, c*20480, sWd, c*20480, 5, 'nt' if C.nt_wo else '')
    def fp():
        a(f"""
        s_lshl_b32 s{sC}, s{sWG}, 5
        s_add_u32 s{sC}, s{sC}, s{sW}
        s_lshl_b32 s{sC}, s{sC}, 2
        s_add_u32 s{sC}, s{sC}, {L_FG + 16}
        v_mov_b32 v10, 0
        v_mov_b32 v11, s{sEP}
        s_mov_b64 exec, 1
        buffer_store_dword v11, v10, {WSR}, s{sC} offen sc1
        s_mov_b64 exec, -1
        """)
    def cs1():
        l = a.uid("cs")
        a(f"s_cmp_lg_u32 s{sW}, 3\ns_cbranch_scc1 {l}\ns_mov_b32 exec_hi, 0xffff")
        a(f"s_and_b32 s{sC}, s{sR}, 15\ns_mul_i32 s{sC}, s{sC}, 768\ns_add_u32 s{sC}, s{sC}, {WS_CSP}")
        for i in range(10):
            a(f"buffer_load_dwordx4 v[{PV+4*i}:{PV+3+4*i}], v5, {WSR}, s{sC} offen\ns_add_u32 s{sC}, s{sC}, 12288")
        a("s_mov_b32 exec_hi, -1")
        a.label(l)
    def cs2():
        l = a.uid("cs")
        a(f"s_cmp_lg_u32 s{sW}, 3\ns_cbranch_scc1 {l}\ns_mov_b32 exec_hi, 0xffff")
        for i in range(1, 10):
            a(f"v_pk_add_f32 v[{PV}:{PV+1}], v[{PV}:{PV+1}], v[{PV+4*i}:{PV+1+4*i}]\nv_pk_add_f32 v[{PV+2}:{PV+3}], v[{PV+2}:{PV+3}], v[{PV+2+4*i}:{PV+3+4*i}]")
        a(f"s_mul_i32 s{sC}, s{sWG}, 768\ns_add_u32 s{sC}, s{sC}, {WS_CSG}")
        a(f"buffer_store_dwordx4 v[{PV}:{PV+3}], v5, {WSR}, s{sC} offen\ns_mov_b32 exec_hi, -1")
        a.label(l)
    def fpw():
        a(f"s_lshl_b32 s{sC}, s{sW}, 13\ns_add_u32 s{sC}, s{sC}, {L_FG + 16}")
        poll(a, 13, PV, f"s{sC}", f"s{sEP}", sleep=2, wide=True)
    def wow():
        a(f"v_and_b32 v{PV+1}, 15, v0\nv_lshlrev_b32 v{PV+1}, 11, v{PV+1}\ns_mov_b32 s{sC}, {L_FG + 15*128 + 36}")
        poll(a, PV + 1, PV, f"s{sC}", f"s{sEP}", sleep=2)
    def l1only(fn):
        l = a.uid("l1")
        a(f"s_cmp_eq_u32 s{sL}, 0\ns_cbranch_scc1 {l}")
        fn(); a.label(l)
    def hook(j):
        if j == 1:
            kv_issue(2); kv_issue(3); a("s_waitcnt vmcnt(10)")
        GF.ok &= 0x0f0f0f0f
        W = lambda n_: a(f"s_waitcnt vmcnt({n_})")
        if j == 2: l0only(lambda: (W(0), prep(a, 0))); l1only(lambda: (W(5), kv_issue(4)))
        if j == 3:
            l0only(lambda: (kv_issue(4), kv_issue(5))); GF.ok &= 0x0f0f0f0f
            l1only(lambda: (W(5), kv_issue(5), kv_issue(6)))
        if j == 4: l0only(lambda: (W(5), prep(a, 1))); l1only(lambda: (W(10), kv_issue(7)))
        if j == 5: l0only(lambda: (wow(), fp(), kv_issue(6), kv_issue(7))); l1only(lambda: (W(10), wwo(0), wwo(1), l2pf(0, 1)))
        if j == 6:
            l0only(lambda: (W(0), wwo(0), wwo(1))); l1only(lambda: W(10))
            wwo(2); wwo(3)
            if fast and C.cpf: cpf("L_fast_tail", "L_fast_end")
            l1only(lambda: l2pf(1, 1))
        if j == 7:
            def evearly():
                a(f"""
                s_lshr_b32 s{sPF}, s{sR}, 4
                s_lshl_b32 s{sC}, s{sW}, 1
                s_add_u32 s{sPF}, s{sPF}, s{sC}
                s_mul_i32 s{sPF}, s{sPF}, {24*128}
                s_add_u32 s{sPF}, s{sPF}, {L_FG + 48*128 + 16}
                s_and_b32 s{sC}, s{sR}, 15
                s_mul_i32 s{sC}, s{sC}, 6
                v_and_b32 v{PV+1}, 1, v0
                v_mul_u32_u24 v{PV+1}, 5, v{PV+1}
                v_add_u32 v{PV+1}, s{sC}, v{PV+1}
                v_lshrrev_b32 v{PV+1}, 2, v{PV+1}
                v_lshlrev_b32 v{PV+1}, 7, v{PV+1}
                v_bfe_u32 v{PV}, v0, 1, 1
                v_mad_u32_u24 v{PV+1}, v{PV}, 12, v{PV+1}
                """)
                poll(a, PV + 1, PV, f"s{sPF}", f"s{sEP}", sleep=2)
                evpf(2)
            l0only(lambda: (fpw(), evearly() if C.evh else None))
            wwo(4)
            l1only(lambda: l2pf(2, 2))
        if fast and j == C.oxh:
            a(f"""
            s_lshl_b32 s{sPF}, s{sWG}, 1
            s_and_b32 s{sC}, s{sW}, 1
            s_add_u32 s{sPF}, s{sPF}, s{sC}
            s_mul_i32 s{sPF}, s{sPF}, 5120
            s_mov_b32 s{sC}, {L_O}
            s_bitcmp1_b32 s{sW}, 1
            s_cselect_b32 s{sC}, {L_X1}, s{sC}
            s_add_u32 s{sPF}, s{sPF}, s{sC}
            s_mov_b32 exec_hi, 0xff
            buffer_load_dword v{DUM}, v13, {WSR}, s{sPF} offen
            s_lshl_b32 s{sTmp}, s{sWG}, 9
            s_add_u32 s{sTmp}, s{sTmp}, s{sLO}
            s_add_u32 s{sTmp}, s{sTmp}, {L_ST1}
            s_mov_b64 exec, 15
            buffer_load_dword v{DUM}, v13, {WSR}, s{sTmp} offen
            s_mov_b64 exec, -1
            """)
        if fast and j == C.hth:
            a(f"""
            s_lshl_b32 s{sPF}, s{sWG}, 2
            s_add_u32 s{sPF}, s{sPF}, s{sQP}
            s_mul_i32 s{sPF}, s{sPF}, 6144
            s_add_u32 s{sPF}, s{sPF}, {L_Q}
            s_mov_b32 exec_hi, 0xffff
            buffer_load_dword v{DUM}, v13, {WSR}, s{sPF} offen
            s_mov_b32 exec_hi, -1
            """)
    def xreads():
        r = [f"ds_read_b32 v31, v{XF}"]
        for x in range(2): r.append(f"ds_read_b64 v[{PR+12+16*x}:{PR+13+16*x}], v{vX2} offset:{3584*x+3072}")
        for x in range(2):
            for i in range(3): r.append(f"ds_read_b128 v[{PR+16*x+4*i}:{PR+16*x+4*i+3}], v{vX1} offset:{3584*x+1024*i}")
        return r
    outl = []
    for c in range(8):
        for kt in range(4):
            st = kt & 1
            last = c == 7 and kt == 3
            if c == 0 and kt == 1:
                hk = a.uid("att_hk")
                a(f"s_cmp_eq_u32 s{sKH}, 0\ns_cbranch_scc1 {hk}"); a.label(hk + "r")
                def h0():
                    l = a.uid("h0")
                    a(f"s_cmp_eq_u32 s{sDone}, 0\ns_cbranch_scc1 {l}")
                    kv_issue(1)
                    a.label(l)
                outl.append((hk, h0))
            j = c + 1 if (kt == 3 and c < 6) else (7 if (c == 7 and kt == 0) else None)
            if j:
                hk = a.uid("att_hk")
                dstamp(a, 6, 3*j)
                a(f"s_cmp_eq_u32 s{sKH}, 0\ns_cbranch_scc1 {hk}")
                if C.flip and j < 7: a("s_setprio 2")
                a.label(hk + "r")
                dstamp(a, 6, 3*j+1)
                a("s_barrier")
                dstamp(a, 6, 3*j+2)
                cstamp(a, j)
                outl.append((hk, (lambda jj: (lambda: hook(jj)))(j)))
                if j == 7 and C.ev0:
                    hk = a.uid("att_hk")
                    a(f"s_or_b32 s{sC}, s{sKH}, s{sL}\ns_cbranch_scc0 {hk}"); a.label(hk + "r")
                    outl.append((hk, lambda: [evpf(i) for i in range(C.ev0)]))
            if C.flip and 1 <= c < 7 and kt == C.flip - 1: a("s_setprio 1")
            val = sm(0)
            mf = qk(1, st) + pv(1, st ^ 1)
            ex = rdV(st, c, kt)
            if kt == 3 and c in (2, 5):
                base[0] += 3 * CH
                ex += [f"v_add_u32 v{r}, {3*CH}, v{r}" for r in (vK, vK8, vV)]
            if not last: ex += rdK(st ^ 1, c + (kt + 1) // 4, (kt + 1) % 4)
            cut = 4
            if C.c0 and len(ex) == 8: del ex[3]; cut = 6
            a(mf[0]); [a(x) for x in ex[:cut]]; [a(x) for x in val[0:6]]
            a(mf[2]); [a(x) for x in ex[cut:]]; [a(x) for x in val[6:12]]
            a(mf[1]); [a(x) for x in val[12:18]]
            a(mf[3]); [a(x) for x in val[18:]]
            val = sm(1)
            a("s_waitcnt lgkmcnt(0)")
            if not last:
                mf = qk(0, st ^ 1) + pv(0, st)
                a(mf[0]); [a(x) for x in val[0:6]]
                a(mf[2]); [a(x) for x in val[6:12]]
                a(mf[1]); [a(x) for x in val[12:18]]
                a(mf[3]); [a(x) for x in val[18:]]
            else:
                mf = pv(0, st) + pv(1, st)
                a(mf[0]); [a(x) for x in val[0:6]]
                a(mf[1]); [a(x) for x in xreads()]; [a(x) for x in val[6:16]]
                a(mf[2]); [a(x) for x in val[16:]]
                a("s_nop 1"); a(mf[3])
    if fast: a.label("L_fast_tail")
    stamp(a, 8)
    cstamp(a, 8)
    fb = a.uid("att_fb"); comb = a.uid("att_comb"); done = a.uid("att_done"); yng = a.uid("att_y")
    def check():
        a(f"v_mul_f32 v10, {f32(2.0**63)}, v{OO+12}\nv_mul_f32 v11, {f32(2.0**63)}, v{OO+16+12}")
        a(f"v_add_f32 v10, v10, v10\nv_add_f32 v11, v11, v11\nv_mul_f32 v10, 0, v10\nv_mul_f32 v11, 0, v11")
        for i in range(12): a(f"v_fmac_f32 v10, 0, v{OO+i}\nv_fmac_f32 v11, 0, v{OO+16+i}")
        a(f"v_cmp_u_f32 vcc, v10, v11\ns_cbranch_vccnz {fb}")
    a(f"s_cmp_eq_u32 s{sKH}, 0\ns_cbranch_scc1 {yng}")
    def older():
        a.label(yng)
        a.nop(10)
        check()
        a.label(yng + "c")
        a(f"v_mov_b32 v{OO+13}, v8\nv_mov_b32 v{OO+16+13}, v9\nv_mov_b32 v10, s{sEP}")
        for x in range(2):
            for i in range(3):
                a(f"ds_write_b128 v{vX1}, v[{OO+16*x+4*i}:{OO+16*x+4*i+3}] offset:{3584*x+1024*i}")
            a(f"ds_write_b64 v{vX2}, v[{OO+16*x+12}:{OO+16*x+13}] offset:{3584*x+3072}")
        a(f"ds_write_b32 v{XF}, v10")
        l0only(lambda: (cs1(), l2pf(0, C.l2pf0)))
        a("s_waitcnt vmcnt(0) lgkmcnt(0)")
        l0only(cs2)
        a(f"s_setprio 0")
        stamp(a, 9)
    pl = a.uid("att_x")
    a(f"s_waitcnt lgkmcnt(0)\nv_cmp_ne_u32 vcc, s{sEP}, v31\ns_cbranch_vccnz {pl}")
    a.label(pl + "k")
    def respin():
        a.label(comb)
        a(f"s_mov_b32 s{sFB}, 1\ns_cmp_eq_u32 s{sKH}, 0\ns_cbranch_scc1 {yng}c")
        a.label(pl)
        a(f"s_mov_b32 s{t+12}, 0")
        a.label(pl + "l")
        for x in xreads(): a(x)
        a(f"""
        s_waitcnt lgkmcnt(0)
        v_cmp_ne_u32 vcc, s{sEP}, v31
        s_cbranch_vccz {pl}k
        s_add_u32 s{t+12}, s{t+12}, 1
        s_cmp_lt_u32 s{t+12}, {4*SPIN}
        s_cbranch_scc1 {pl}l
        s_branch {pl}k
        """)
    FF = 64
    for x in range(2):
        f = FF + 4*x
        a(f"v_max_f32 v{f+2}, v{8+x}, v{PR+13+16*x}\nv_sub_f32 v{f}, v{8+x}, v{f+2}\nv_sub_f32 v{f+1}, v{PR+13+16*x}, v{f+2}")
    for x in range(2):
        f = FF + 4*x
        a(f"v_exp_f32 v{f}, v{f}\nv_exp_f32 v{f+1}, v{f+1}")
    for x in range(2):
        f = FF + 4*x; o = OO + 16*x; pk = 72 + 6*x
        a(f"v_mul_f32 v{f+2}, v{f}, v{o+12}\nv_fmac_f32 v{f+2}, v{f+1}, v{PR+12+16*x}\nv_rcp_f32 v{f+2}, v{f+2}\ns_nop 0")
        a(f"v_mul_f32 v{f}, v{f}, v{f+2}\nv_mul_f32 v{f+2}, v{f+1}, v{f+2}")
        for i in range(0, 12, 2):
            a(f"v_pk_mul_f32 v[{o+i}:{o+i+1}], v[{o+i}:{o+i+1}], v[{f}:{f+1}] op_sel_hi:[1,0]")
        for i in range(0, 12, 2):
            a(f"v_pk_fma_f32 v[{o+i}:{o+i+1}], v[{PR+16*x+i}:{PR+1+16*x+i}], v[{f+2}:{f+3}], v[{o+i}:{o+i+1}] op_sel_hi:[1,0,1]")
        for i in range(6):
            a(f"v_cvt_pk_bf16_f32 v{pk+i}, v{o+2*i}, v{o+2*i+1}")
        a(f"""
        buffer_store_dwordx2 v[{pk}:{pk+1}], v{vO}, {WSR}, s{sO+x} offen {SB}
        buffer_store_dwordx2 v[{pk+2}:{pk+3}], v{vO}, {WSR}, s{sO+x} offen offset:512 {SB}
        s_mov_b32 exec_hi, 0
        buffer_store_dwordx2 v[{pk+4}:{pk+5}], v{vO}, {WSR}, s{sO+x} offen offset:1024 {SB}
        s_mov_b32 exec_hi, -1
        """)
    nck = a.uid("att_nc")
    a(f"s_cmp_lg_u32 s{sFB}, 0\ns_cbranch_scc1 {nck}")
    check()
    a.label(nck)
    flag_setup(a, 2)
    a("s_setprio 0\ns_waitcnt vmcnt(0)")
    flag_store(a, SB)
    a("s_barrier")
    stamp(a, 9)
    a(f"s_branch {ld_label}")
    for hk, fn in outl:
        a.label(hk); fn(); a(f"s_branch {hk}r")
    respin()
    older()
    def fallback():
        a.label(fb)
        sKb, sVb, sI = t+12, t+13, t+14
        def addr():
            a(f"""
            s_lshr_b32 s{sKb}, s{sI}, 2
            s_lshl_b32 s{sKb}, s{sKb}, 1
            s_add_u32 s{sKb}, s{sKb}, s{sKH}
            s_lshl_b32 s{sKb}, s{sKb}, 2
            s_and_b32 s{sVb}, s{sI}, 3
            s_add_u32 s{sKb}, s{sKb}, s{sVb}
            s_mul_i32 s{sKb}, s{sKb}, 1280
            s_add_u32 s{sKb}, s{sKb}, s{sHB}
            s_add_u32 s{sVb}, s{sKb}, {L_V}
            s_add_u32 s{sKb}, s{sKb}, {L_K}
            buffer_load_dwordx4 v[{KF}:{KF+3}], v5, {WSR}, s{sKb} offen sc1
            s_mov_b32 exec_hi, {0 if C.c0 else -1}
            buffer_load_dwordx2 v[{KF+4}:{KF+5}], v6, {WSR}, s{sKb} offen offset:1024 sc1
            s_mov_b32 exec_hi, -1
            """)
        l1 = a.uid("att_fb1"); l2 = a.uid("att_fb2")
        a(f"s_mov_b32 s{sI}, 0\nv_mov_b32 v8, 0xff800000\nv_mov_b32 v9, 0xff800000")
        a(f"s_mov_b32 exec_lo, 0\nv_mov_b64 v[{QA+4}:{QA+5}], 0\nv_mov_b64 v[{QB+4}:{QB+5}], 0\ns_mov_b32 exec_lo, -1")
        a.label(l1)
        addr()
        a("s_waitcnt vmcnt(0)")
        for x in range(2):
            for m in qk(x, 0, "0"): a(m)
        a.nop(12)
        for x in range(2):
            sd = SS + 16*x
            for i in range(0, 16, 2): a(f"v_max3_f32 v{8+x}, v{8+x}, v{sd+i}, v{sd+i+1}")
        a(f"s_add_u32 s{sI}, s{sI}, 1\ns_cmp_lt_u32 s{sI}, 32\ns_cbranch_scc1 {l1}")
        setm()
        for i in range(32): a(f"v_mov_b32 v{OO+i}, 0")
        a(f"s_mov_b32 s{sI}, 0")
        a.label(l2)
        addr()
        a(f"""
        s_mov_b64 exec, s[{sEX}:{sEX+1}]
        buffer_load_dwordx4 v[{VF}:{VF+3}], v7, {WSR}, s{sVb} offen sc1
        buffer_load_dwordx4 v[{VF+4}:{VF+7}], v7, {WSR}, s{sVb} offen offset:640 sc1
        s_mov_b64 exec, -1
        s_waitcnt vmcnt(0)
        """)
        for x in range(2):
            for m in qk(x, 0): a(m)
        a.nop(12)
        for x in range(2):
            for i in sm(x): a(i)
        a("s_nop 1")
        for x in range(2):
            for m in pv(x, 0): a(m)
        a(f"s_add_u32 s{sI}, s{sI}, 1\ns_cmp_lt_u32 s{sI}, 32\ns_cbranch_scc1 {l2}")
        a.nop(12)
        a(f"s_branch {comb}")
    return fallback

def xoff(SB, which):
    if SB == "": return (False, L_X1)
    return (True, L_X1) if which == 1 else (False, L_X2)
def add_x(a, dst, src, SB, which):
    lo, c = xoff(SB, which)
    a(f"s_add_u32 s{dst}, s{src}, {c}")
    if lo: a(f"s_add_u32 s{dst}, s{dst}, s{sLO}")

def proj_compute(a, down, SB, end_label):
    fast = SB == ""
    t = T
    K = F if down else D
    NCH = K // 128
    sRT, sCT = t, t+1
    st0 = 13 if down else 10
    sF, sRM, sST, sA, sA1, sThr, sSel = t+4, t+5, t+12, t+2, t+3, t+9, t+10
    NWS = 3 if down else C.wo_sets
    ACC = 14; RX = 34; AF = 54; WF = 134 if down else 54 + 16*C.wo_nas; RES = (220 if down else 54); VST = 200
    assert WF + 20*NWS <= 254
    vF, vF2, vR, vR2 = 10, 11, 12, 13
    a(f"""
    s_lshr_b32 s{sRT}, s{sWG}, 3
    s_and_b32 s{sCT}, s{sR}, 7
    v_and_b32 v3, 15, v0
    v_lshrrev_b32 v7, 4, v0
    s_lshl_b32 s{t+6}, s{sRT}, 1
    s_lshr_b32 s{t+7}, s{sW}, 1
    s_add_u32 s{t+6}, s{t+6}, s{t+7}
    s_and_b32 s{t+8}, s{sW}, 1
    s_lshl_b32 s{t+8}, s{t+8}, 8
    s_mul_i32 s{sA}, s{t+6}, {K*64}
    s_add_u32 s{sA}, s{sA}, s{t+8}
    {"" if fast else f"s_add_u32 s{sA}, s{sA}, s{sLO}"}
    s_add_u32 s{sA}, s{sA}, {(L_Q if fast else L_H) if down else L_O}
    s_mul_i32 s{sF}, s{t+6}, 40960
    s_mul_i32 s{t+7}, s{sCT}, 5120
    s_add_u32 s{sF}, s{sF}, s{t+7}
    s_add_u32 s{sF}, s{sF}, s{t+8}
    s_lshl_b32 s{sST}, s{sW}, 8
    s_lshl_b32 s{t+7}, s{sRT}, 12
    s_add_u32 s{sST}, s{sST}, s{t+7}
    s_add_u32 s{sST}, s{sST}, s{sLO}
    s_lshl_b32 s{sRM}, s{sRT}, 2
    s_add_u32 s{sRM}, s{sRM}, s{sW}
    s_mul_i32 s{sRM}, s{sRM}, {16*1280}
    s_mul_i32 s{t+7}, s{sCT}, 160
    s_add_u32 s{sRM}, s{sRM}, s{t+7}
    v_lshlrev_b32 v1, 4, v3
    v_lshl_add_u32 v{vF}, v7, 9, v1
    v_lshrrev_b32 v2, 5, v0
    v_lshl_add_u32 v1, v2, 9, v1
    v_and_b32 v2, 1, v7
    v_lshl_add_u32 v{vF2}, v2, 3, v1
    v_add_u32 v{vF2}, 4096, v{vF2}
    v_mul_u32_u24 v1, 1280, v3
    v_lshl_add_u32 v{vR}, v7, 4, v1
    v_lshl_add_u32 v{vR2}, v7, 3, v1
    v_add_u32 v9, 4096, v{vF}
    """)
    if C.x_a == 1 and not down: a(f"s_lshr_b32 s{sA}, s{sW}, 1\ns_mul_i32 s{sA}, s{sA}, 40960\ns_add_u32 s{sA}, s{sA}, s{t+8}\ns_add_u32 s{sA}, s{sA}, {WS_WTG}")
    SA = Src(sA, sA1, sThr, 8192)
    if down:
        a(f"s_and_b32 s{t+7}, s{sRT}, 3\ns_mul_i32 s{t+7}, s{t+7}, {C.rot_dn}\ns_sub_u32 s{sThr}, 12, s{t+7}")
        SA.setup(a, t+7, 12, t+8)
    def io(store, rowmajor, rsrc, soff, reg, bits):
        op = "store" if store else "load"
        v16, v8 = (vR, vR2) if rowmajor else (vF, vF2)
        o1, o2 = (64, 128) if rowmajor else (2048, 0)
        return [f"buffer_{op}_dwordx4 v[{reg}:{reg+3}], v{v16}, {rsrc}, {soff} offen {bits}",
                f"buffer_{op}_dwordx4 v[{reg+4}:{reg+7}], v{v16}, {rsrc}, {soff} offen offset:{o1} {bits}",
                f"buffer_{op}_dwordx2 v[{reg+8}:{reg+9}], v{v8}, {rsrc}, {soff} offen offset:{o2} {bits}"]
    if down:
        add_x(a, t+7, sF, SB, 1)
        for x in io(False, False, WSR, f"s{t+7}", RES, "sc1"): a(x)
        a(f"s_add_u32 s{t+7}, s{sST}, {L_ST1}\nv_lshlrev_b32 v1, 4, v3")
        for i in range(4):
            a(f"buffer_load_dwordx4 v[{VST+4*i}:{VST+4*i+3}], v1, {WSR}, s{t+7} offen offset:{1024*i} sc1")
        if fast:
            a(f"s_lshl_b32 s{t+8}, s{sWG}, 9\ns_add_u32 s{t+8}, s{t+8}, {L_ST2}\nv_lshlrev_b32 v1, 7, v0\ns_mov_b64 exec, 15")
            a(f"buffer_load_dword v8, v1, {WSR}, s{t+8} offen\ns_mov_b64 exec, -1")
    else:
        l1 = a.uid("prj_r1"); l2 = a.uid("prj_r2")
        a(f"s_cmp_lg_u32 s{sL}, 0\ns_cbranch_scc1 {l1}")
        for x in io(False, True, R(R_X), f"s{sRM}", RES, ""): a(x)
        a(f"s_branch {l2}")
        a.label(l1)
        add_x(a, t+7, sF, SB, 2)
        for x in io(False, False, WSR, f"s{t+7}", RES, "sc1"): a(x)
        a.label(l2)
    a(f"v_lshlrev_b32 v4, 4, v0\nv_add_u32 v5, 61440, v4\nv_add_u32 v6, 122880, v4\ns_mov_b32 s{t+8}, 0xffff0000")
    def wadr(c):
        o = dnW(c) if down else c * 20480
        return 4 + o // 61440, o % 61440
    def reads(c, u):
        b = WF + 20*((4*c + u) % NWS); r, o = wadr(c)
        return [f"ds_read_b128 v[{b+4*jn}:{b+4*jn+3}], v{r} offset:{o + 5120*u + 1024*jn}" for jn in range(5)]
    NAS = 5 if down else C.wo_nas
    def aload(c):
        r = []
        if down and C.rot_dn: r += [f"s_cmp_gt_u32 s{sThr}, {c}", f"s_cselect_b32 s{sSel}, s{sA}, s{sA1}", f"s_add_u32 s{sSel}, s{sSel}, {c*8192}"]
        else: r += [f"s_add_u32 s{sSel}, s{sA}, {c*8192}"]
        for u in range(4):
            d = AF + 16*(c % NAS) + 4*u
            r.append(f"buffer_load_dwordx4 v[{d}:{d+3}], v{vF if u < 2 else 9}, {WSR}, s{sSel} offen offset:{2048*(u & 1)} sc1")
        return r
    def mfmas(c, u, zero=False):
        b = WF + 20*((4*c + u) % NWS); x = AF + 16*(c % NAS) + 4*u
        return [f"v_mfma_f32_16x16x32_bf16 {v(ACC+4*jn,4)}, {v(b+4*jn,4)}, {v(x,4)}, {0 if zero else v(ACC+4*jn,4)}" for jn in range(5)]
    D_ = NWS - 1
    rd = lambda st_: reads(st_ // 4, st_ % 4) if st_ < 4*NCH else []
    if down: a(f"s_and_b32 s{t+7}, s{sRT}, 3\ns_mul_i32 s{t+7}, s{t+7}, {4 if C.rot_dn else 0}")
    G_ = gate_local(a, "down" if down else "wo", 4 if down else 2, 1, 2, t+7)
    def setup2():
        if not down: a("s_waitcnt vmcnt(0)")
        for i in range(10):
            a(f"v_lshlrev_b32 v{RX+2*i}, 16, v{RES+i}\nv_and_b32 v{RX+1+2*i}, s{t+8}, v{RES+i}")
        if down:
            row_stats(a, VST, VST + 2, VST + 3)
            a(f"v_mul_f32 v{VST+2}, v{VST+3}, v{VST+3}")
        if not down: a("s_barrier")
        for st_ in range(D_):
            for x in rd(st_): a(x)
    if down: G_.load(); G_.upd()
    setup2()
    def al(c):
        G_.need(span(128*c, 128*c + 127, 96, 2) if down else (span(128*c, 128*c + 127, 20, 1) if C.x_a != 3 else 0xffffffff))
        if c == 0: stamp(a, st0)
        for x in aload(c):
            if C.x_d == 1 and down and c >= 3 and x.startswith("buffer"): x = x.replace(WSR, R(R_WQ)).replace(f"s{sSel} offen", "0 offen").replace("sc1", "")
            a(x)
    NPRE = C.dn_a if down else C.wo_a
    N0 = C.dn_a0 if down else C.wo_a0
    assert NPRE < NAS or NCH <= NAS
    for c in range(N0): al(c)
    stamp(a, 21 if down else 5)
    nis = N0; pend = []; nld = 4*N0
    for c in range(NCH):
        for u in range(4):
            step = 4*c + u
            left = min(D_ - 1, 4*NCH - 1 - step)
            assert nld > step
            a(f"s_waitcnt vmcnt({nld - step - 1}) lgkmcnt({min(15, 5*left)})")
            if down and C.stamp and C.dbg == 8 and u in (0, 2): a(f"s_memtime s[10:11]\ns_waitcnt lgkmcnt(0)\nv_writelane_b32 v254, s10, {2*c + u//2}")
            if step == 4*NCH - 1 or (down and u == 2 and c + 1 < NCH): a("s_barrier")
            if not pend and nis < min(NCH, c + NPRE + 1):
                full = down and nis >= C.dn_full
                G_.need(0xffffffff if full else (span(128*nis, 128*nis + 127, 96, 2) if down else span(128*nis, 128*nis + 127, 20, 1)))
                ld = aload(nis); nis += 1
                for x in ld[:-4]: a(x)
                pend = ld[-4:]
            k = 2 if nld - step < 4*NPRE - 2 else 1
            mf = mfmas(c, u, step == 0); r_ = rd(step + D_)
            for i in range(5):
                a(mf[i])
                if r_: a(r_[i])
                if pend and i in ((4,) if k == 1 else (1, 4)): a(pend.pop(0)); nld += 1
    stamp(a, st0 + 1)
    add_x(a, t+7, sF, SB, 2 if down else 1)
    flag_setup(a, 5 if down else 3)
    for i in range(0, 20, 2):
        c = ACC + i
        if down: a(f"v_pk_fma_f32 v[{c}:{c+1}], v[{c}:{c+1}], v[{VST+2}:{VST+3}], v[{RX+i}:{RX+i+1}] op_sel_hi:[1,0,1]")
        else: a(f"v_pk_add_f32 v[{c}:{c+1}], v[{c}:{c+1}], v[{RX+i}:{RX+i+1}]")
        a(f"v_cvt_pk_bf16_f32 v{60+i//2}, v{c}, v{c+1}")
    if down:
        l1 = a.uid("prj_o1")
        a(f"s_cmp_eq_u32 s{sL}, 0\ns_cbranch_scc1 {l1}")
        srd(a, R_T, P_OUT, ACT)
        for x in io(True, True, R(R_T), f"s{sRM}", 60, ["", "sc1", "nt"][C.outb]): a(x)
        a(f"s_branch {end_label}")
        a.label(l1)
    for x in io(True, False, WSR, f"s{t+7}", 60, SB): a(x)
    a(f"v_pk_add_f32 v[72:73], v[{ACC}:{ACC+1}], v[{ACC+2}:{ACC+3}]\nv_pk_mul_f32 v[74:75], v[{ACC}:{ACC+1}], v[{ACC}:{ACC+1}]")
    a(f"v_pk_fma_f32 v[74:75], v[{ACC+2}:{ACC+3}], v[{ACC+2}:{ACC+3}], v[74:75]")
    for i in range(4, 20, 2):
        a(f"v_pk_add_f32 v[72:73], v[72:73], v[{ACC+i}:{ACC+i+1}]\nv_pk_fma_f32 v[74:75], v[{ACC+i}:{ACC+i+1}], v[{ACC+i}:{ACC+i+1}], v[74:75]")
    a(f"""
    v_add_f32 v72, v72, v73
    v_add_f32 v73, v74, v75
    s_lshr_b32 s{t+7}, s{sCT}, 1
    s_lshl_b32 s{t+7}, s{t+7}, 10
    v_permlane32_swap_b32 v72, v73
    s_and_b32 s{t+8}, s{sCT}, 1
    s_lshl_b32 s{t+8}, s{t+8}, 3
    v_add_f32 v72, v72, v73
    v_mov_b32 v73, v72
    s_add_u32 s{t+7}, s{t+7}, s{t+8}
    s_add_u32 s{t+7}, s{t+7}, s{sST}
    v_permlane16_swap_b32 v72, v73
    s_add_u32 s{t+7}, s{t+7}, {L_ST2 if down else L_ST1}
    v_lshrrev_b32 v8, 5, v0
    v_lshlrev_b32 v8, 2, v8
    v_lshl_add_u32 v8, v3, 4, v8
    v_add_f32 v72, v72, v73
    buffer_store_dword v72, v8, {WSR}, s{t+7} offen {SB}
    s_waitcnt vmcnt(0)
    """)
    flag_store(a, SB)
    if not down:
        l = a.uid("fk")
        a(f"s_or_b32 s{t+7}, s{sW}, s{sCT}\ns_or_b32 s{t+7}, s{t+7}, s{sL}\ns_cbranch_scc1 {l}\ns_lshl_b32 s{t+7}, s{sWG}, 7\ns_add_u32 s{t+7}, s{t+7}, {L_FG + 40}")
        flag_store(a, "sc1", t+7)
        a.label(l)
    a("s_barrier")
    stamp(a, st0 + 2)

def gu_compute(a, SB):
    t = T
    sRT, sCT, sWM, sWN, sTB, sF0 = t, t+1, t+2, t+3, t+4, t+6
    FR = 16; ACC = 96; VCS = 192; VST = 216; MS = 232
    a(f"""
    s_lshr_b32 s{sRT}, s{sWG}, 4
    s_and_b32 s{sCT}, s{sR}, 15
    s_and_b32 s{sWM}, s{sW}, 1
    s_lshr_b32 s{sWN}, s{sW}, 1
    s_lshl_b32 s{sTB}, s{sRT}, 1
    s_add_u32 s{sTB}, s{sTB}, s{sWM}
    s_mul_i32 s{sF0}, s{sCT}, 96
    s_mul_i32 s{t+5}, s{sWN}, 48
    s_add_u32 s{sF0}, s{sF0}, s{t+5}
    s_mul_i32 s{t+5}, s{sWG}, 768
    s_mul_i32 s{t+7}, s{sWN}, 384
    s_add_u32 s{t+5}, s{t+5}, s{t+7}
    s_add_u32 s{t+5}, s{t+5}, {WS_CSG}
    v_lshrrev_b32 v12, 4, v0
    v_lshlrev_b32 v1, 4, v12
    """)
    for f in range(6):
        a(f"buffer_load_dwordx4 v[{VCS+4*f}:{VCS+4*f+3}], v1, {WSR}, s{t+5} offen offset:{64*f} sc1")
    a(f"""
    v_and_b32 v13, 15, v0
    v_lshlrev_b32 v3, 4, v13
    v_lshl_add_u32 v3, v12, 9, v3
    s_lshl_b32 s{t+5}, s{sWM}, 13
    v_add_u32 v3, s{t+5}, v3
    v_lshlrev_b32 v11, 4, v0
    s_mul_i32 s{t+5}, s{sWN}, 6144
    s_add_u32 s{t+5}, s{t+5}, {WB}
    v_add_u32 v4, s{t+5}, v11
    v_add_u32 v5, 49152, v4
    v_lshlrev_b32 v6, 2, v13
    s_mul_i32 s{t+11}, s{sTB}, {2*F*64}
    s_lshl_b32 s{t+7}, s{sF0}, 6
    s_add_u32 s{t+11}, s{t+11}, s{t+7}
    {"" if SB == "" else f"s_add_u32 s{t+11}, s{t+11}, s{sLO}"}
    s_add_u32 s{t+11}, s{t+11}, {L_Q if SB == "" else L_H}
    s_add_u32 s{t+12}, s{t+11}, {F*64}
    """)
    flag_setup(a, 4)
    def reads(c, u):
        b = FR + 40*u; o = guW(c) - WB
        ra = [f"ds_read_b128 v[{b+4*tt}:{b+4*tt+3}], v3 offset:{(c % 4)*16384 + 4096*(tt >> 1) + 256*(tt & 1) + 2048*u}" for tt in range(4)]
        rw = [f"ds_read_b128 v[{b+16+4*f}:{b+19+4*f}], v{4 + o // 49152} offset:{o % 49152 + 12288*u + 1024*f}" for f in range(6)]
        return ra + rw
    def mfma(u, tl, z):
        b = FR + 40*u; c = ACC + 4*tl
        return f"v_mfma_f32_16x16x32_bf16 {v(c,4)}, {v(b+16+4*(tl>>2),4)}, {v(b+4*(tl&3),4)}, {0 if z else v(c,4)}"
    def epi(jn, pk):
        r = []
        g = ACC + 32*jn; u_ = g + 16
        for tp in range(2):
            c = g + 8*tp; d = u_ + 8*tp
            for i in range(8): r.append(f"v_max_f32 v{c+i}, 0, v{c+i}")
            if pk:
                for i in range(0, 8, 2): r.append(f"v_pk_mul_f32 v[{c+i}:{c+i+1}], v[{c+i}:{c+i+1}], v[{d+i}:{d+i+1}]")
            else:
                for i in range(8): r.append(f"v_mul_f32 v{c+i}, v{c+i}, v{d+i}")
            for i in range(4): r.append(f"v_cvt_pk_bf16_f32 v{c+i}, v{c+2*i}, v{c+2*i+1}")
            r += ["s_nop 0", f"v_permlane16_swap_b32 v{c}, v{c+2}", f"v_permlane16_swap_b32 v{c+1}, v{c+3}"]
            r.append(f"buffer_store_dwordx4 v[{c}:{c+3}], v11, {WSR}, s{t+11+tp} offen offset:{1024*jn} {SB}")
        return r
    a(f"s_lshl_b32 s{t+5}, s{sTB}, 12\ns_add_u32 s{t+5}, s{t+5}, s{sLO}\ns_add_u32 s{t+5}, s{t+5}, {L_ST1}")
    ins = {}
    for i in range(4): ins[36 + 48*C.gfull + 3*i] = [f"buffer_load_dwordx4 v[{VST+4*i}:{VST+4*i+3}], v11, {WSR}, s{t+5} offen offset:{1024*i} sc1"]
    ins[82 + 48*C.gfull] = ["s_waitcnt vmcnt(0)"] + [f"v_add_f32 v{VST}, v{VST}, v{VST+2*i}" for i in range(1, 8)] + \
         [f"v_mul_f32 v{MS}, {f32(-1.0/D)}, v{VST}", f"v_mul_f32 v{MS+1}, {f32(-1.0/D)}, v{VST}", "s_nop 0", f"v_permlane16_swap_b32 v{MS}, v{MS+1}",
          f"v_mov_b32 v{MS+2}, v{MS}", f"v_mov_b32 v{MS+3}, v{MS+1}", "s_nop 0", f"v_permlane32_swap_b32 v{MS}, v{MS+2}", f"v_permlane32_swap_b32 v{MS+1}, v{MS+3}"]
    fix = lambda tl: [f"v_fmac_f32 v{ACC+4*tl+i}, v{MS+(tl&3)}, v{VCS+4*(tl>>2)+i}" for i in range(4)]
    gemm16(a, 10, 24, reads, mfma, [tuple(range(8*j, 8*j+8)) for j in range(3)], ins, fix, 122 + 48*C.gfull, epi, 22, C.g16)
    a("s_waitcnt vmcnt(0)")
    flag_store(a, SB)
    a("s_barrier")
    stamp(a, 23)

def loader_chain(a, SB, end_label, idle_label):
    t = T
    sLW, s4, s5, s6, aGU, aGU1, wGU, wGU1, wDN, wDN1, aQK, aQK1, wQK, wQK1, th10, th12, sTmp, sSel, thq = range(t, t + 19)
    sRot = sSel
    a(f"""
    s_sub_u32 s{sLW}, s{sW}, 4
    v_lshlrev_b32 v8, 4, v0
    s_mul_i32 s{s6}, s{sLW}, 6144
    s_and_b32 s{wGU}, s{sR}, 15
    s_mul_i32 s{wGU}, s{wGU}, 245760
    s_add_u32 s{wGU}, s{wGU}, s{s6}
    s_add_u32 s{wGU}, s{wGU}, {WS_WTG}
    s_lshr_b32 s{sRot}, s{sR}, 4
    s_mul_i32 s{sRot}, s{sRot}, {C.rot_gu}
    s_sub_u32 s{th10}, 10, s{sRot}
    """)
    S_aGU = Src(aGU, aGU1, th10, 4096); S_wGU = Src(wGU, wGU1, th10, 24576); S_wDN = Src(wDN, wDN1, th12, 20480)
    S_aQK = Src(aQK, aQK1, thq, 4096); S_wQK = Src(wQK, wQK1, thq, 64*3840)
    S_aGU.norot = S_wGU.norot = not C.rot_gu; S_wDN.norot = not C.rot_dn; S_aQK.norot = S_wQK.norot = not C.rot_qk
    S_wGU.setup(a, sRot, 10, sTmp)
    def rest():
        a(f"""
        s_lshl_b32 s{s4}, s{sLW}, 12
        s_mul_i32 s{s5}, s{sLW}, 5120
        s_lshr_b32 s{aQK}, s{sWG}, 4
        s_lshl_b32 s{aQK}, s{aQK}, 2
        s_add_u32 s{aQK}, s{aQK}, s{sLW}
        s_mul_i32 s{aQK}, s{aQK}, 40960
        """)
        add_x(a, aGU, aQK, SB, 1)
        add_x(a, aQK, aQK, SB, 2)
        a(f"s_and_b32 s{wDN}, s{sR}, 15")
        qkvW_setup(a, wQK, sLW, wDN, sTmp, 6)
        a(f"s_sub_u32 s{sRot}, 10, s{th10}")
        S_aGU.setup(a, sRot, 10, sTmp)
        a(f"s_lshr_b32 s{sRot}, s{sR}, 4\ns_mul_i32 s{sRot}, s{sRot}, {C.rot_qk}\ns_sub_u32 s{thq}, 10, s{sRot}")
        for S_ in (S_aQK, S_wQK): S_.setup(a, sRot, 10, sTmp)
        a(f"""
        s_and_b32 s{wDN}, s{sR}, 7
        s_mul_i32 s{wDN}, s{wDN}, 245760
        s_add_u32 s{wDN}, s{wDN}, s{s5}
        s_add_u32 s{wDN}, s{wDN}, {WS_WTD}
        s_lshr_b32 s{sRot}, s{sR}, 3
        s_mul_i32 s{sRot}, s{sRot}, {C.rot_dn}
        s_sub_u32 s{th12}, 12, s{sRot}
        """)
        S_wDN.setup(a, sRot, 12, sTmp)
    G_ = [None, None]
    def lin(S_, dst, dfn, bits):
        def f(c, i0, k):
            if bits == "sc1":
                G_[0].need(span(64*c, 64*c + 63, 80, 2) if C.gran else 0xffff)
                if G_[1] is not None: stamp(a, G_[1]); G_[1] = None
            if not S_.norot: S_.sel(a, c, sSel)
            lin_dma(a, 8, S_.sB if S_.norot else sSel, (0 if (C.x_gh and S_ is S_wGU) else c)*S_.stride + 1024*i0, dst, dfn(c) + 1024*i0, k, bits)
        return f
    def pf(kind, ep, st, rot):
        def f():
            a(f"s_lshr_b32 s{sTmp}, s{sR}, 4\ns_mul_i32 s{sTmp}, s{sTmp}, {4 if rot else 0}")
            G_[0] = gate_local(a, kind, ep, 1, 2, sTmp, sleep=C.psleep); G_[1] = st
        return f
    def emitWQ(c, i0, k):
        if not S_wQK.norot: S_wQK.sel(a, c, sSel)
        for i in range(i0, i0 + k):
            a(f"s_add_u32 m0, s{s4}, {qkW(c) + 1024*i}\ns_add_u32 s{sTmp}, s{wQK if S_wQK.norot else sSel}, {c*64*3840 + i*4*3840}")
            a(f"buffer_load_dwordx4 v{6 + (i >> 1)}, {R(R_WQ)}, s{sTmp} offen lds")
    rA = lambda c: (c % 4) * 16384
    mark = [0]
    def gu_bar(c):
        if c == C.gfull: G_[0].need(0xffff)
        if C.thr0 >= 0 and 1 <= c < 8:
            l = a.uid("t0")
            a(f"s_cmp_lg_u32 s{sL}, 0\ns_cbranch_scc1 {l}\ns_waitcnt vmcnt({C.thr0})")
            a.label(l)
        if SB != "": return
        if c == C.fkc:
            a(f"v_and_b32 v4, 7, v0\nv_lshlrev_b32 v4, 10, v4\ns_lshl_b32 s{thq}, s{sLW}, 13\ns_add_u32 s{thq}, s{thq}, {L_FG + 40}\nbuffer_load_dword v5, v4, {WSR}, s{thq} offen sc1")
            L.q.append(("gu", "P", 99)); mark[0] = L.total
        if c == C.fkc + 2:
            l = a.uid("fkc")
            a(f"s_cmp_lg_u32 s{sL}, 0\ns_cbranch_scc1 {l}")
            poll(a, 4, 5, f"s{thq}", f"s{sEP}", sleep=2, pre=L.total - mark[0])
            a.label(l)
    assert C.fkc + 2 <= 8 and not C.rot_qk
    full = lambda c: G_[0].need(0xffff) if c == 1 else None
    reg = lambda f, sz: (lambda c: (f(c), f(c) + sz))
    gu = Phase("gu", 10, 4, 6, lin(S_aGU, s4, rA, "sc1"), lin(S_wGU, s6, guW, "nt" if C.nt_gu else ""), reg(rA, 16384), reg(guW, 24576), pf("gu", 3, 21, C.rot_gu), C.bud_gu, dbg=(C.dbg == 3), after_bar=gu_bar)
    dn = Phase("dn", 12, 0, 5, None, lin(S_wDN, s5, dnW, "nt" if C.nt_dn else ""), None, reg(dnW, 20480), None, C.bud_dn, lag=2, early=C.dn_early, dbg=(C.dbg == 4))
    qk = Phase("qk", 10, 4, 4, lin(S_aQK, s4, rA, "sc1"), emitWQ, reg(rA, 16384), reg(qkW, 16384), pf("gu", 5, 17, C.rot_qk), C.bud_qk, early=C.qk_early, dbg=(C.dbg == 2), after_bar=full)
    L = Loader(a)
    L.live["wo"] = (0, 102400)
    if C.ldprio: a(f"s_setprio {C.ldprio}")
    pn = L.pre(gu, 0, C.gu_e, C.thr_p)
    rest()
    if C.wpf:
        l = a.uid("wpf")
        a(f"""
        s_cmp_lg_u32 s{sL}, 0
        s_cbranch_scc1 {l}
        s_lshr_b32 s{sTmp}, s{sR}, 4
        s_lshl_b32 s{sSel}, s{sLW}, 1
        s_add_u32 s{sTmp}, s{sTmp}, s{sSel}
        s_mul_i32 s{sTmp}, s{sTmp}, 24576
        s_sub_u32 s{sSel}, s{wGU}, s{s6}
        s_add_u32 s{sTmp}, s{sTmp}, s{sSel}
        s_add_u32 s{sTmp}, s{sTmp}, {49152 + 8192*C.ev0}
        v_lshlrev_b32 v4, 7, v0
        s_mov_b32 exec_lo, {hex((1 << C.wpl) - 1)}
        s_mov_b32 exec_hi, 0
        """)
        for i in range(C.wpf):
            a(f"s_waitcnt vmcnt({C.wpd - 1})\nbuffer_load_dword v5, v4, {WSR}, s{sTmp} offen\ns_add_u32 s{sTmp}, s{sTmp}, {128*C.wpl}")
        a("s_mov_b64 exec, -1")
        a.label(l)
    a("s_barrier")
    L.live.pop("wo")
    pn = L.pre(gu, pn, C.gu_e2, C.thr_e)
    a("s_barrier"); pn = L.pre(gu, pn, C.gu_p)
    pn = L.run(gu, dn, pn); stamp(a, 22); L.end(gu); pn = L.pre(dn, pn, C.dn_e, C.thr_e)
    L.wait({("dn", "W", 0)}); a("s_barrier"); pn = L.pre(dn, pn, C.dn_p, C.thr_p)
    dn.skip0 = True
    if C.qpf:
        a(f"s_lshl_b32 s{thq}, s{sR}, 2\ns_add_u32 s{thq}, s{thq}, s{sLW}\ns_mul_i32 s{thq}, s{thq}, {C.qpl*128}\nv_lshlrev_b32 v4, 7, v0")
        def qpf(c):
            k = c - C.qpf0
            if k % C.qps or not 0 <= k // C.qps < C.qpf: return
            k //= C.qps
            off = D*3*D*2 - (C.qpf - k) * C.qpl * 128 * 128
            a(f"s_add_u32 s{sTmp}, s{thq}, {off}\ns_mov_b64 exec, {hex((1 << C.qpl) - 1) if C.qpl <= 31 else -1}")
            if C.qpl == 32: a("s_mov_b32 exec_hi, 0")
            a(f"buffer_load_dword v5, v4, {R(R_WQ)}, s{sTmp} offen\ns_mov_b64 exec, -1")
            L.q.append(("dn", "P", 99))
        dn.after_bar = qpf
        assert not C.rot_qk
    def lastexit(ws_):
        l = a.uid("lx")
        a(f"s_cmp_eq_u32 s{sL}, 0\ns_cbranch_scc1 {l}")
        for w_ in ws_: a(f"s_waitcnt vmcnt({w_})\ns_barrier")
        a(f"s_barrier\ns_branch {end_label}")
        a.label(l)
    pn = L.run(dn, qk, pn, lastexit=lastexit); stamp(a, 14); L.end(dn)
    a(f"s_cmp_lg_u32 s{sL}, 0\ns_cbranch_scc1 {end_label}")
    pn = L.pre(qk, pn, C.qk_e, C.thr_e)
    a("s_barrier")
    a(f"s_and_b32 s{sTmp}, s{sR}, 15\ns_cmp_eq_u32 s{sTmp}, 15\ns_cbranch_scc1 {idle_label}")
    pn = L.pre(qk, pn, C.qk_p)
    L.run(qk, None, pn); stamp(a, 19); L.end(qk)

def build():
    a = Asm()
    K = NAME + "_kernel"
    t = T
    a(f".globl {K}\n.p2align 8\n.type {K},@function")
    a.label(K)
    a(f"""
    s_load_dwordx16 s[16:31], s[0:1], 0
    s_load_dwordx4 s[32:35], s[0:1], 64
    s_cmp_ge_u32 s2, 256
    s_cbranch_scc1 L_exit
    s_and_b32 s{sG}, s2, 7
    s_lshr_b32 s{sR}, s2, 3
    v_lshrrev_b32 v1, 6, v0
    v_and_b32 v0, 63, v0
    v_readfirstlane_b32 s{sW}, v1
    s_lshl_b32 s{sWG}, s{sG}, 5
    s_add_u32 s{sWG}, s{sWG}, s{sR}
    s_mov_b32 s{sL}, 0
    s_mov_b32 s{sLO}, 0
    s_mov_b32 s{sEP}, 0
    s_mov_b32 s{sTMO}, 0
    """)
    if C.stamp: a("v_mov_b32 v255, 0\nv_mov_b32 v254, 0\ns_memrealtime s[14:15]")
    stamp(a, 0)
    qkv_ids(a, t)
    a(f"s_cmp_lt_u32 s{sW}, 4\ns_cbranch_scc1 L_q1c\ns_cmp_eq_u32 s{t+1}, 15\ns_cbranch_scc1 L_q1c")
    qkv1_loader(a)
    a("s_branch L_q1done")
    a.label("L_q1c")
    a("s_waitcnt lgkmcnt(0)")
    srd(a, R_X, P_X, ACT)
    srd(a, R_WQ, P_WQKV, D*3*D*2)
    a(f"""
    s_cmp_gt_u32 s{sW}, 3
    s_cbranch_scc1 L_npf
    s_lshl_b32 s{t+8}, s{sWG}, 2
    s_add_u32 s{t+8}, s{t+8}, s{sW}
    s_mul_i32 s{t+8}, s{t+8}, 2560
    v_lshrrev_b32 v1, 5, v0
    v_mul_u32_u24 v1, 1280, v1
    v_and_b32 v2, 31, v0
    v_lshl_add_u32 v1, v2, 4, v1
    v_mov_b64 v[228:229], 0
    v_mov_b64 v[230:231], 0
    buffer_load_dwordx4 v[220:223], v1, {R(R_X)}, s{t+8} offen
    buffer_load_dwordx4 v[224:227], v1, {R(R_X)}, s{t+8} offen offset:512
    s_mov_b32 exec_lo, 0xffff
    s_mov_b32 exec_hi, 0xffff
    buffer_load_dwordx4 v[228:231], v1, {R(R_X)}, s{t+8} offen offset:1024
    s_mov_b64 exec, -1
    """)
    a.label("L_npf")
    other_srds(a)
    a(f"s_cmp_eq_u32 s{t+1}, 15\ns_cbranch_scc1 L_q1idle")
    qkv_compute(a, True, "sc1")
    a("s_branch L_q1done")
    a.label("L_q1idle")
    qkv1_idle(a)
    a.label("L_q1done")
    a(f"s_cmp_eq_u32 s{sMODE}, 0\ns_cbranch_scc1 L_slow")
    tails = []
    for nm, SB in (("fast", ""), ("slow", "sc1")):
        a.label(f"L_{nm}")
        tails.append(phase_attn(a, SB, f"L_{nm}_ld"))
        if nm == "fast": a.label("L_fast_post")
        proj_compute(a, False, SB, None)
        gu_compute(a, SB)
        proj_compute(a, True, SB, "L_end")
        qkv_ids(a, t)
        a(f"s_cmp_eq_u32 s{t+1}, 15\ns_cbranch_scc1 L_{nm}_idle")
        qkv_compute(a, False, SB)
        a(f"s_branch L_{nm}_next")
        a.label(f"L_{nm}_ld")
        loader_chain(a, SB, "L_end", f"L_{nm}_idle")
        a(f"s_branch L_{nm}_next")
        a.label(f"L_{nm}_idle")
        a("s_waitcnt vmcnt(0)\ns_barrier")
        a.label(f"L_{nm}_next")
        if C.ldprio: a("s_setprio 0")
        a(f"s_mov_b32 s{sL}, 1\ns_mov_b32 s{sLO}, {LSTRIDE}\ns_add_u32 s{sEP}, s{sEP}, 5\ns_mov_b32 s{R_WQ+2}, 0\ns_branch L_{nm}")
        if nm == "fast":
            a.label("L_end")
            a(f"""
            s_xor_b32 s{t}, s{sW}, 7
            s_or_b32 s{t}, s{t}, s2
            s_cmp_lg_u32 s{t}, 0
            s_cbranch_scc1 L_end2
            v_mov_b32 v1, 0
            s_mov_b64 exec, 1
            global_store_dword v1, v1, s[{P_DBG}:{P_DBG+1}] sc1
            s_mov_b64 exec, -1
            """)
            a.label("L_end2")
            if C.stamp:
                a("s_waitcnt vmcnt(0)")
                stamp(a, 16)
                a(f"""
                s_memrealtime s[10:11]
                s_waitcnt lgkmcnt(0)
                v_writelane_b32 v255, s14, 62
                v_writelane_b32 v255, s10, 63
                v_writelane_b32 v255, s{sTMO}, 61
                s_lshl_b32 s10, s2, 3
                s_add_u32 s10, s10, s{sW}
                s_lshl_b32 s10, s10, 8
                s_add_u32 s10, s10, {WS_STAMP}
                v_lshlrev_b32 v1, 2, v0
                v_add_u32 v1, s10, v1
                global_store_dword v1, v255, s[{P_WS}:{P_WS+1}]
                v_add_u32 v1, {1<<20}, v1
                global_store_dword v1, v254, s[{P_WS}:{P_WS+1}]
                """)
                if C.pj:
                    a(f"""
                    s_xor_b32 s{t}, s2, 8
                    s_xor_b32 s{t+1}, s{sW}, {C.pw}
                    s_or_b32 s{t}, s{t}, s{t+1}
                    s_cmp_lg_u32 s{t}, 0
                    s_cbranch_scc1 L_exit
                    v_readlane_b32 s{t+1}, v254, {C.pi}
                    v_readlane_b32 s{t+2}, v254, {C.pj % 64}
                    v_readlane_b32 s{t+3}, v254, 40
                    {f"s_mov_b32 s{t+1}, s14" if C.pi == 63 else ""}
                    s_sub_u32 s{t+1}, s{t+2}, s{t+1}
                    s_mul_i32 s{t+1}, s{t+1}, {C.pm}
                    s_add_u32 s{t+1}, s{t+1}, 1000
                    """)
                    a.label("L_probe")
                    a(f"""
                    s_memrealtime s[{t+4}:{t+5}]
                    s_waitcnt lgkmcnt(0)
                    s_sub_u32 s{t+6}, s{t+4}, s{t+3}
                    s_cmp_lt_u32 s{t+6}, s{t+1}
                    s_cbranch_scc1 L_probe
                    """)
                if C.dbgout:
                    a(f"s_xor_b32 s{t}, s2, 8\ns_or_b32 s{t}, s{t}, s{sW}\ns_cmp_lg_u32 s{t}, 0\ns_cbranch_scc1 L_exit\nv_readlane_b32 s{t+1}, v254, 0\nv_mov_b32 v1, 0")
                    for k, i in enumerate([1, 2, 7, 8, 10, 12, 23, 15, 20, 31, 32, 36, 47, 40]):
                        a(f"v_readlane_b32 s{t}, v254, {i}\ns_sub_u32 s{t}, s{t}, s{t+1}\ns_nop 1\nv_mov_b32 v2, s{t}\nglobal_store_dword v1, v2, s[{P_DBG}:{P_DBG+1}] offset:{4+4*k}")
            a.label("L_exit")
            a("s_endpgm")
            a.label("L_fast_end")
    for f in tails: f()
    hdr = open("cdna_kernels/" + NAME + ".s.ref").read().split("; Override")[0]
    hdr += "; @launch grid=(256,1,1) block=(512,1,1) lds=163840\n"
    txt = hdr + '.amdgcn_target "amdgcn-amd-amdhsa--gfx950"\n.text\n' + a.text() + f'''.section .rodata,"a"
.p2align 6
.amdhsa_kernel {K}
  .amdhsa_next_free_vgpr 256
  .amdhsa_next_free_sgpr 102
  .amdhsa_accum_offset 256
  .amdhsa_group_segment_fixed_size 0
  .amdhsa_kernarg_size 80
  .amdhsa_user_sgpr_count 2
  .amdhsa_user_sgpr_kernarg_segment_ptr 1
  .amdhsa_system_sgpr_workgroup_id_x 1
.end_amdhsa_kernel
'''
    for p in check(a.lines): print("HAZARD", p)
    return txt

if __name__ == "__main__":
    out = sys.argv[1] if len(sys.argv) > 1 else "cdna_kernels/" + NAME + ".s"
    for kv in sys.argv[2:]:
        k, _, val = kv.partition("=")
        assert hasattr(C, k), k
        setattr(C, k, int(val) if val else True)
    open(out, "w").write(build())
    print("written", out)
```

```python
import sys, math, struct
sys.path.insert(0, "gen")
from asmlib import *

NAME = "interleave_layers__softmax_full_mha__glu_gated_reglu__prompt"
S, D, F, H, DH = 2048, 640, 1536, 32, 20
ACT = S * D * 2
HEADB = 81920
L_Q = 0
L_K = L_Q + ACT
L_V = L_K + ACT
L_O = L_V + ACT
L_X1 = L_O + ACT
L_X2 = L_X1 + ACT
L_H = L_X2 + ACT
L_ST1 = L_H + S * F * 2
L_ST2 = L_ST1 + S * 64
L_FG = L_ST2 + S * 64
LSTRIDE = L_FG + 32768
WS_ST0 = LSTRIDE + L_ST2
WS_WTO = 2 * LSTRIDE
WS_WTD = WS_WTO + D * D * 2
WS_WTG = WS_WTD + F * D * 2
WS_CSP = WS_WTG + 2 * F * D * 2
WS_CSG = WS_CSP + 10 * 12288
WS_CSQ = WS_CSG + 256 * 768
WS_FL = WS_CSQ + 256 * 512
WS_END = WS_FL + 8192
WS_SIZE = 268435456
WS_STAMP = 200 << 20
QSCALE = (DH ** -0.5) * math.log2(math.e)
def f32(x): return "0x%08x" % struct.unpack("<I", struct.pack("<f", x))[0]

P_X, P_WQKV, P_WO, P_BX, P_WG, P_WU, P_WD, P_OUT, P_DBG, P_WS = 16, 18, 20, 22, 24, 26, 28, 30, 32, 34
sL, sG, sR, sW, sLO, sEP, sTMO, sWG = 3, 4, 5, 6, 7, 8, 9, 13
R_WS, R_X, R_WQ, R_WG, R_WU, R_T = 36, 40, 44, 48, 52, 56
T = 60
WSR = f"s[{R_WS}:{R_WS+3}]"
def R(r): return f"s[{r}:{r+3}]"
SPIN = 200000

class Cfg:
    stamp = False
    dbg = 0
    dbgout = 0
    pi = 0
    pj = 0
    pm = 1
    pw = 0
    look = 6
    gu_e = 12
    dn_e = 4
    qk_e = 0
    bud_gu = 10
    bud_dn = 3
    bud_qk = 6
    bud_q1 = 8
    dn_a = 3
    psleep = 0
    gran = 3
    flip = 0
    gfull = 1
    dn_a0 = 2
    wo_a0 = 2
    x_a = 0
    x_d = 0
    c_i = 6
    c_c = 7
    c_f = 8
    pp = 0
    x_q = 0
    hth = 0
    fkc = 5
    vpre = 2
    xv0 = 8
    xl0 = 0
    s2i = 0
    csi = 35
    bc = 1
    gfl = 0
    jit = 0
    etlb = 0
    x8f = 0
    wpf = 4
    evh = 0
    wpd = 1
    wpl = 16
    bl = 0
    bln = 1
    thr0 = 5
    ev0 = 0
    ev1 = 0
    oxh = 6
    x_slow = 0
    x_gh = 0
    alias = 0
    ldprio = 0
    grp = 2
    qpf = 0
    qpf0 = 1
    qpl = 16
    qps = 1
    thr_e = 0
    thr_p = 0
    qk_s0 = 4
    dn_lag = 2
    dn_full = 5
    wo_a = 4
    wo_nas = 5
    c0 = 1
    g16 = 1
    e16 = 3
    wb = 0
    outb = 0
    q1prio = 0
    look_q1 = 6
    nocs = 0
    qloc = 1
    stage = 1
    cpf = 1
    l2pf0 = 0
    nt_kv = 0
    nt_wo = 0
    nt_gu = 0
    nt_dn = 0
    nt_qk = 0
    htouch = 0
    warm = 0
    gu_e2 = 0
    gu_p = 0
    dn_p = 20
    qk_p = 0
    wo_sets = 6
    q1pf = 1
    l2pf = 8
    rot = 0
    x_hit = 0
    tlb = 0
    rot_gu = 0
    rot_dn = 0
    rot_qk = 0
    dn_early = 99
    qk_early = 99
C = Cfg()

def jitter(a, i):
    l = a.uid("jit")
    a(f"""
    s_memtime s[10:11]
    s_waitcnt lgkmcnt(0)
    s_mul_i32 s10, s10, 0x9e3779b1
    s_lshr_b32 s11, s10, 29
    s_cmp_lg_u32 s11, 0
    s_cbranch_scc1 {l}
    s_bfe_u32 s11, s10, {hex((C.jit << 16) | 20)}
    """)
    a.label(l + "l")
    a(f"s_sleep 32\ns_sub_u32 s11, s11, 1\ns_cbranch_scc0 {l}l")
    a.label(l)
def stamp(a, i):
    if C.jit: jitter(a, i)
    if not C.stamp: return
    a(f"s_memtime s[10:11]\ns_mul_i32 s12, s{sL}, 24\ns_add_u32 m0, s12, {i}\ns_waitcnt lgkmcnt(0)\nv_writelane_b32 v255, s10, m0")
    if C.dbg == 7: a(f"s_memrealtime s[10:11]\ns_waitcnt lgkmcnt(0)\nv_writelane_b32 v254, s10, m0")

def dstamp(a, d, i):
    if C.jit and i % 3 == 0: jitter(a, i)
    if C.stamp and C.dbg == d: a(f"s_memtime s[10:11]\ns_lshl_b32 s12, s{sL}, 5\ns_add_u32 m0, s12, {i}\ns_waitcnt lgkmcnt(0)\nv_writelane_b32 v254, s10, m0")

def cstamp(a, j):
    if C.stamp and C.dbg == 9:
        a(f"s_memtime s[10:11]\ns_lshl_b32 s12, s{sL}, 5\ns_add_u32 m0, s12, {2*j}\ns_waitcnt lgkmcnt(0)\nv_writelane_b32 v254, s10, m0")
        a(f"s_memrealtime s[10:11]\ns_add_u32 m0, s12, {2*j+1}\ns_waitcnt lgkmcnt(0)\nv_writelane_b32 v254, s10, m0")

def srd(a, r, ptr, size):
    a(f"s_mov_b32 s{r}, s{ptr}\ns_mov_b32 s{r+1}, s{ptr+1}\ns_mov_b32 s{r+2}, {size}\ns_mov_b32 s{r+3}, 0x20000")

def interleave(a, mf, other):
    n = len(mf); k = 0
    for i, m in enumerate(mf):
        a(m)
        tgt = (len(other) * (i + 1) + n - 1) // n
        while k < tgt:
            a(other[k]); k += 1

def poll(a, vaddr, vtmp, soff, want, sleep=0, pre=False, wide=False):
    lp = a.uid("poll"); ok = a.uid("pollok")
    cnt = T + 22
    a(f"s_mov_b32 s{cnt}, s{sTMO}")
    if pre is not False: a(f"s_waitcnt vmcnt({pre})\ns_branch {lp}c")
    a.label(lp)
    if wide: a(f"buffer_load_dwordx4 v[{vtmp}:{vtmp+3}], v{vaddr}, {WSR}, {soff} offen sc1")
    else: a(f"buffer_load_dword v{vtmp}, v{vaddr}, {WSR}, {soff} offen sc1")
    a(f"s_waitcnt vmcnt(0)")
    if pre is not False: a.label(lp + "c")
    a(f"v_subrev_u32 v{vtmp}, {want}, v{vtmp}")
    if wide:
        for i in range(1, 4): a(f"v_subrev_u32 v{vtmp+i}, {want}, v{vtmp+i}\nv_max_u32 v{vtmp}, v{vtmp}, v{vtmp+i}")
    a(f"v_cmp_lt_u32 vcc, 15, v{vtmp}")
    a(f"s_cbranch_vccz {ok}")
    if sleep: a(f"s_sleep {sleep}")
    a(f"s_add_u32 s{cnt}, s{cnt}, 1\ns_cmp_lt_u32 s{cnt}, {SPIN}\ns_cbranch_scc1 {lp}")
    a(f"s_mov_b32 s{sTMO}, {SPIN}")
    a.label(ok)

def poll_local(a, kind, ep, va=1, vt=2, sleep=0):
    t = T + 20
    if kind == "wo":
        a(f"v_and_b32 v{va}, 31, v0\nv_lshlrev_b32 v{va}, 5, v{va}\ns_lshr_b32 s{t}, s{sR}, 3\ns_lshl_b32 s{t}, s{t}, 2\ns_add_u32 s{t}, s{t}, 16")
    elif kind == "gu":
        a(f"v_lshrrev_b32 v{va}, 2, v0\nv_lshlrev_b32 v{va}, 5, v{va}\nv_and_b32 v{vt}, 3, v0\nv_lshl_add_u32 v{va}, v{vt}, 2, v{va}")
        a(f"s_lshr_b32 s{t}, s{sR}, 4\ns_lshl_b32 s{t}, s{t}, 9")
    elif kind == "down":
        a(f"v_bfe_u32 v{va}, v0, 1, 4\nv_lshlrev_b32 v{va}, 5, v{va}\nv_and_b32 v{vt}, 1, v0\nv_lshl_add_u32 v{va}, v{vt}, 3, v{va}")
        a(f"s_lshr_b32 s{t}, s{sR}, 4\ns_lshl_b32 s{t}, s{t}, 9\ns_bfe_u32 s{t+1}, s{sR}, 0x10003\ns_lshl_b32 s{t+1}, s{t+1}, 2\ns_add_u32 s{t}, s{t}, s{t+1}")
    elif kind == "attn":
        a(f"""
        v_bfe_u32 v{va}, v0, 2, 1
        v_mul_u32_u24 v{va}, 19, v{va}
        s_mul_i32 s{t}, s{sR}, 20
        v_add_u32 v{va}, s{t}, v{va}
        v_lshrrev_b32 v{va}, 7, v{va}
        v_lshrrev_b32 v{vt}, 4, v0
        v_min_u32 v{vt}, 2, v{vt}
        v_mad_u32_u24 v{va}, v{vt}, 5, v{va}
        v_bfe_u32 v{vt}, v0, 3, 1
        v_lshl_add_u32 v{va}, v{vt}, 4, v{va}
        v_lshlrev_b32 v{va}, 5, v{va}
        v_and_b32 v{vt}, 3, v0
        v_lshl_add_u32 v{va}, v{vt}, 2, v{va}
        s_mov_b32 s{t}, 0
        """)
    a(f"s_lshl_b32 s{t+1}, s{sG}, 10\ns_add_u32 s{t}, s{t}, s{t+1}\ns_add_u32 s{t}, s{t}, {WS_FL}\ns_add_u32 s{t+1}, s{sEP}, {ep}")
    poll(a, va, vt, f"s{t}", f"s{t+1}", sleep=sleep)

sNR, sGO, sGW = 92, 94, 95
class Gate:
    def __init__(self, a, va, vt, fold=False, sleep=0):
        self.a, self.va, self.vt, self.fold, self.sleep = a, va, vt, fold, sleep
        self.ok = 0
    def load(self): self.a(f"buffer_load_dword v{self.vt}, v{self.va}, {WSR}, s{sGO} offen sc1")
    def upd(self):
        self.a(f"s_waitcnt vmcnt(0)\nv_subrev_u32 v{self.vt}, s{sGW}, v{self.vt}\nv_cmp_lt_u32 s[{sNR}:{sNR+1}], 15, v{self.vt}")
        if self.fold: self.a(f"s_or_b32 s{sNR}, s{sNR}, s{sNR+1}")
    def reset(self): self.a(f"s_mov_b32 s{sNR}, -1")
    def load2(self): self.a(f"buffer_load_dword v{self.vt2}, v{self.va}, {WSR}, s{sGO} offen sc1")
    def bump(self, mask, cnt):
        a = self.a
        a(f"s_add_u32 s{sGW}, s{sGW}, 1\ns_waitcnt vmcnt({cnt})\nv_subrev_u32 v{self.vt2}, s{sGW}, v{self.vt2}\nv_cmp_lt_u32 s[{sNR}:{sNR+1}], 15, v{self.vt2}")
        self.ok = 0
        self.need(mask)
    def need(self, mask):
        a = self.a
        mask &= ~self.ok
        if not mask: return
        self.ok |= mask
        lp = a.uid("gt"); cnt = T + 22
        a(f"s_and_b32 s{cnt}, s{sNR}, {hex(mask)}\ns_cbranch_scc0 {lp}k\ns_mov_b32 s{cnt}, s{sTMO}")
        if C.pp and not self.fold:
            v2 = self.vt2
            a(f"buffer_load_dword v{v2}, v{self.va}, {WSR}, s{sGO} offen sc1\ns_sleep {C.pp}")
            a.label(lp)
            for x_, y_ in ((self.vt, v2), (v2, self.vt)):
                a(f"buffer_load_dword v{x_}, v{self.va}, {WSR}, s{sGO} offen sc1\ns_waitcnt vmcnt(1)\nv_subrev_u32 v{y_}, s{sGW}, v{y_}\nv_cmp_lt_u32 s[{sNR}:{sNR+1}], 15, v{y_}")
                a(f"s_and_b32 s{cnt+1}, s{sNR}, {hex(mask)}\ns_cbranch_scc0 {lp}k")
        else:
            a.label(lp)
            self.load(); self.upd()
            a(f"s_and_b32 s{cnt+1}, s{sNR}, {hex(mask)}\ns_cbranch_scc0 {lp}k")
            if self.sleep: a(f"s_sleep {self.sleep}")
        a(f"s_add_u32 s{cnt}, s{cnt}, 1\ns_cmp_lt_u32 s{cnt}, {SPIN}\ns_cbranch_scc1 {lp}\ns_mov_b32 s{sTMO}, {SPIN}")
        a.label(lp + "k")
def span(lo, hi, w, bits):
    m = 0
    for p in range(lo // w, hi // w + 1): m |= ((1 << bits) - 1) << (bits * p)
    return m
def gate_local(a, kind, ep, va, vt, sRotCt=None, sleep=0):
    t = T + 20
    if kind == "wo":
        a(f"v_and_b32 v{va}, 31, v0\nv_lshlrev_b32 v{va}, 5, v{va}\ns_lshr_b32 s{sGO}, s{sR}, 3\ns_lshl_b32 s{sGO}, s{sGO}, 2\ns_add_u32 s{sGO}, s{sGO}, 16")
    elif kind == "down":
        a(f"v_lshrrev_b32 v{va}, 1, v0\nv_add_u32 v{va}, s{sRotCt}, v{va}\nv_and_b32 v{va}, 15, v{va}\nv_lshlrev_b32 v{va}, 5, v{va}\nv_and_b32 v{vt}, 1, v0\nv_lshl_add_u32 v{va}, v{vt}, 3, v{va}")
        a(f"s_lshr_b32 s{sGO}, s{sR}, 4\ns_lshl_b32 s{sGO}, s{sGO}, 9\ns_bfe_u32 s{t+1}, s{sR}, 0x10003\ns_lshl_b32 s{t+1}, s{t+1}, 2\ns_add_u32 s{sGO}, s{sGO}, s{t+1}")
    elif kind == "gu":
        a(f"v_lshrrev_b32 v{va}, 1, v0\nv_add_u32 v{va}, s{sRotCt}, v{va}\nv_and_b32 v{va}, 7, v{va}\nv_lshlrev_b32 v{va}, 5, v{va}\nv_and_b32 v{vt}, 1, v0\nv_lshl_add_u32 v{va}, v{vt}, 2, v{va}")
        a(f"s_lshr_b32 s{sGO}, s{sR}, 4\ns_lshl_b32 s{sGO}, s{sGO}, 9\ns_bfe_u32 s{t+1}, s{sW}, 0x10001\ns_lshl_b32 s{t+1}, s{t+1}, 8\ns_add_u32 s{sGO}, s{sGO}, s{t+1}")
        a(f"s_and_b32 s{t+1}, s{sW}, 1\ns_lshl_b32 s{t+1}, s{t+1}, 3\ns_add_u32 s{sGO}, s{sGO}, s{t+1}")
    a(f"s_lshl_b32 s{t+1}, s{sG}, 10\ns_add_u32 s{sGO}, s{sGO}, s{t+1}\ns_add_u32 s{sGO}, s{sGO}, {WS_FL}\ns_add_u32 s{sGW}, s{sEP}, {ep}")
    g = Gate(a, va, vt, sleep=sleep); g.reset(); g.vt2 = 8 if kind != 'gu' else 3
    return g

def flag_setup(a, ep):
    t = T + 20
    a(f"s_lshl_b32 s{t}, s{sWG}, 3\ns_add_u32 s{t}, s{t}, s{sW}\ns_lshl_b32 s{t}, s{t}, 2\ns_add_u32 s{t}, s{t}, {WS_FL}\ns_add_u32 s{t+1}, s{sEP}, {ep}")
    a(f"v_mov_b32 v1, 0\nv_mov_b32 v2, s{t+1}")
def flag_store(a, SB, s=T+20):
    a(f"s_mov_b64 exec, 1\nbuffer_store_dword v2, v1, {WSR}, s{s} offen {SB}\ns_mov_b64 exec, -1")
def stage2(a, SB, cnt):
    a(f"s_waitcnt vmcnt({cnt})\ns_mov_b64 exec, 1\nbuffer_store_dword v253, v252, {WSR}, s100 offen {SB}\ns_mov_b64 exec, -1")
def publish_local(a, ep, SB):
    flag_setup(a, ep)
    a("s_waitcnt vmcnt(0)")
    flag_store(a, SB)

def row_stats(a, vst, vmean, vrstd):
    for i in range(1, 8):
        a(f"v_add_f32 v{vst}, v{vst}, v{vst+2*i}\nv_add_f32 v{vst+1}, v{vst+1}, v{vst+2*i+1}")
    finish_stats(a, vst, vst + 1, vmean, vrstd)

def finish_stats(a, vs, vq, vmean, vrstd):
    a(f"v_mul_f32 v{vmean}, {f32(1.0/D)}, v{vs}")
    a(f"v_mul_f32 v{vq}, {f32(1.0/D)}, v{vq}")
    a(f"v_fma_f32 v{vq}, -v{vmean}, v{vmean}, v{vq}")
    a(f"v_max_f32 v{vq}, 0, v{vq}")
    a(f"v_add_f32 v{vq}, {f32(1e-5)}, v{vq}")
    a(f"v_rsq_f32 v{vrstd}, v{vq}")
    a("s_nop 0")

def lin_dma(a, vaddr, src_s, src_off, dst_s, dst_off, npieces, bits="", rsrc=WSR, tmp=T+19):
    i = 0
    while i < npieces:
        k = min(4, npieces - i)
        a(f"s_add_u32 m0, s{dst_s}, {dst_off + 1024*i}")
        a(f"s_add_u32 s{tmp}, s{src_s}, {src_off + 1024*i}")
        for j in range(k):
            a(f"buffer_load_dwordx4 v{vaddr}, {rsrc}, s{tmp} offen offset:{1024*j} {bits} lds")
        i += k
    return npieces


def states(x):
    return int(x.split()[1]) + 1 if x.startswith("s_nop") else 1

def gemm_unrolled(a, n, P, nr, reads, mfma, groups, inserts, fix, fix_from, epi, st_end, alt=None, after_e=(), late=()):
    seq = []
    def add(ms, fill, pre=()):
        k = 0
        for i, (kk, tl) in enumerate(ms):
            tgt = (len(fill) * (i + 1) + len(ms) - 1) // len(ms)
            seq.append([list(pre) if i == 0 else [], mfma(kk, tl), tl, list(fill[k:tgt])]); k = tgt
    step = lambda kk: [(kk, tl) for tl in range(P)]
    a("s_barrier")
    for x in reads(0, 0) + reads(0, 1): a(x)
    w = f"s_waitcnt lgkmcnt({nr})"
    for c in range(n - 1):
        add(step(0), reads(c, 2), [w])
        add(step(1), reads(c, 3), [w])
        add(step(2), [], [w])
        seq[-2][3] += ["s_waitcnt lgkmcnt(0)"]; seq[-1][3] += ["s_barrier"]
        add(step(3), reads(c + 1, 0) + reads(c + 1, 1))
    nmain = len(seq)
    for i0, ins in inserts.items():
        i = i0; ins = list(ins)
        while ins:
            room = 4 - sum(states(x) for x in seq[i][3]) - len(seq[i+1][0])
            if ins[0].startswith("s_mov_b32 exec") and room < 3: room = 0
            while room > 0 and ins and "s_barrier" not in seq[i][3]:
                x = ins.pop(0); seq[i][3].append(x); room -= states(x)
            i += 1

        end = fix_from if i0 < fix_from else nmain
        assert i <= end and all(not (i0 < k < i) for k in inserts if len(inserts[i0]) > 1), (i0, i)
        if any(x.startswith("ds_") for x in inserts[i0]): assert any("s_waitcnt lgkmcnt(0)" in seq[j][3] for j in range(i, end)), (i, end)
    todo = {tl: list(fix(tl)) for tl in range(P)}
    used = lambda g: sum(states(x) for x in seq[g][3]) + len(seq[g+1][0])
    g = fix_from + 2
    while any(todo.values()):
        assert g + 2 < nmain, "no room for fix"
        if used(g) < 5 and "s_barrier" not in seq[g][3]:
            for back in range(P - 2, 1, -1):
                tl = seq[g - back][2]
                if not todo[tl] or g - back < fix_from: continue
                have = sum(used(x) + 1 for x in range(g - back, g)) + sum(states(x) for x in seq[g][3])
                room = sum(max(0, 5 - used(x)) for x in range(g - back, g))
                if have + room < 12: continue
                for x in range(g - back, g):
                    k = min(5 - used(x), 12 - have)
                    if k > 0: seq[x][3].append(f"s_nop {k-1}"); have += k
                while used(g) < 5 and todo[tl]: seq[g][3].append(todo[tl].pop(0))
            if used(g + 1) < 1: seq[g + 1][3].append("s_nop 0")
        g += 1

    c = n - 1
    g0 = groups[0]
    seq[-1][3] += reads(c, 2)
    add([(kk, tl) for kk in (0, 1) for tl in g0], reads(c, 3), [w])
    add([(kk, tl) for kk in (2, 3) for tl in g0], list(late), ["s_waitcnt lgkmcnt(0)"])
    if after_e:
        seq[-2][3].append("s_barrier"); seq[-1][3] += list(after_e)
    else: seq[-len(g0)*2][3].append("s_barrier")
    seq[-1][3].append("s_nop 4")
    def flush():
        for pre, m, tl, post in seq:
            for x in pre: a(x)
            a(m)
            for x in post: a(x)
        del seq[:]
    def tail(epi):
        for gi in range(1, len(groups)):
            ms = [(kk, tl) for kk in range(4) for tl in groups[gi]]
            if gi == 1: add(ms[:1], ["s_nop 4"]); add(ms[1:], epi(gi - 1, False))
            else: add(ms, ["s_nop 0"] + epi(gi - 1, False))
        flush()
        stamp(a, st_end)
        a.nop(3)
        for x in epi(len(groups) - 1, True): a(x)
    if alt:
        cond, epi2, post1, post2 = alt
        l = a.uid("alt")
        seq[-1][3][-1:] = [cond, f"s_cbranch_scc1 {l}", "s_nop 2"]
        flush(); tail(epi); post1()
        a.label(l); a("s_nop 2"); tail(epi2); post2()
    else: tail(epi)

def gemm16(a, n, P, reads, mfma, groups, inserts, fix, fix_from, epi, st_end, fillmax=1, nlead=2, alt=None, after_e=(), late=()):
    seq = []
    def add(ms, fill, span, pre=()):
        k = 0
        for i, (u, tl, z) in enumerate(ms):
            tgt = min(len(fill), (len(fill) * (i + 1) + span - 1) // span)
            seq.append([list(pre) if i == 0 else [], mfma(u, tl, z), tl, list(fill[k:tgt])]); k = tgt
        assert k == len(fill)
    w0 = "s_waitcnt lgkmcnt(0)"
    a("s_barrier")
    for x in reads(0, 0): a(x)
    nr = len(reads(0, 0)); sp = min(nr, P - 6)
    for c in range(n - 1):
        add([(0, tl, c == 0) for tl in range(P)], reads(c, 1), sp, [w0])
        bl = C.bl if (P == 16 and c >= n - 1 - C.bln) else 0
        seq[-2][3] += [w0]
        if bl: add([(1, tl, False) for tl in range(bl)], [], 1)
        seq[-1][3] += ["s_barrier"]
        add([(1, tl, False) for tl in range(bl, P)], reads(c + 1, 0), min(sp, max(1, P - bl - 2)))
    nmain = len(seq)
    used = lambda g: sum(states(x) * (2 if x.startswith(("buffer", "v_perm", "v_rsq")) else 1) for x in seq[g][3]) + len(seq[g+1][0])
    for i0, ins in inserts.items():
        i = i0; ins = list(ins)
        while ins:
            while used(i) < fillmax and ins and "s_barrier" not in seq[i][3]: seq[i][3].append(ins.pop(0))
            i += 1
        end = fix_from if i0 < fix_from else nmain - 1
        assert i <= end and all(not (i0 < k < i) for k in inserts if len(inserts[i0]) > 1), (i0, i)
        if any(x.startswith("ds_") for x in inserts[i0]): assert any(w0 in seq[j][3] + seq[j][0] for j in range(i, end)), (i0, i)
    todo = {tl: list(fix(tl)) for tl in range(P)}
    g = fix_from
    while any(todo.values()):
        assert g + 4 < nmain
        for back in sorted(range(P - 3, 3, -1), key=lambda b_: -len(todo[seq[g - b_][2]])):
            if sum(1 + sum(states(x) for x in seq[j][3]) for j in range(g - back, g)) < 8: continue
            tl = seq[g - back][2]
            while used(g) < fillmax and todo[tl] and "s_barrier" not in seq[g][3]: seq[g][3].append(todo[tl].pop(0))
        g += 1
    c = n - 1
    lead = sum(groups[:nlead], ())
    add([(0, tl, False) for tl in lead], reads(c, 1) + list(late), min(len(lead), nr), [w0])
    add([(1, tl, False) for tl in groups[0]], ["s_barrier"] + list(after_e), len(groups[0]) if after_e else 1, [w0])
    rest = [(1, tl, False) for gi in range(1, nlead) for tl in groups[gi]]
    for gi in range(nlead, len(groups)): rest += [(u, tl, False) for u in range(2) for tl in groups[gi]]
    def flush():
        for k_, (pre, m, tl, post) in enumerate(seq):
            for x in pre: a(x)
            a(m)
            for x in post: a(x)
            if C.x_slow and P == 24 and k_ % C.x_slow == 0: a("s_nop 7")
        del seq[:]
    def tail(epi):
        add(rest[:2], ["s_nop 1", "s_nop 1"], 2)
        nleft = len(rest) - 2
        e = epi(0, False) + epi(1, False)
        add(rest[2:], e[:C.e16*nleft], nleft)
        flush()
        for x in e[C.e16*nleft:]: a(x)
        stamp(a, st_end)
        for gi in range(2, len(groups)):
            for x in epi(gi, True): a(x)
    if alt:
        cond, epi2, post1, post2 = alt
        l = a.uid("alt")
        seq[-1][3] += [cond, f"s_cbranch_scc1 {l}"]
        flush(); tail(epi); post1()
        a.label(l); tail(epi2); post2()
    else: tail(epi)

class Src:
    def __init__(self, sB, sB1, sThr, stride): self.__dict__.update(locals())
    def setup(self, a, sRot, n, tmp):
        a(f"s_mul_i32 s{tmp}, s{sRot}, {self.stride}\ns_add_u32 s{self.sB}, s{self.sB}, s{tmp}\ns_sub_u32 s{self.sB1}, s{self.sB}, {n*self.stride}")
    def sel(self, a, c, dst):
        if getattr(self, "norot", False):
            a(f"s_mov_b32 s{dst}, s{self.sB}"); return
        a(f"s_cmp_gt_u32 s{self.sThr}, {c}\ns_cselect_b32 s{dst}, s{self.sB}, s{self.sB1}")

class Phase:
    def __init__(self, name, n, npa, npw, emitA, emitW, regA, regW, pollfn, budget, lag=1, after_bar=None, dbg=False, early=99):
        self.__dict__.update(locals())

class Loader:
    def __init__(self, a):
        self.a = a; self.q = []; self.live = {}; self.waitfn = None; self.total = 0
    def free(self, reg, key):
        return key in self.live or all(reg[1] <= lo or hi <= reg[0] for lo, hi in self.live.values())
    def can(self, ph, kind, c):
        return self.free((ph.regA if kind == "A" else ph.regW)(c), (ph.name, kind, c))
    def issue(self, ph, kind, c, i0, k):
        assert self.can(ph, kind, c)
        self.live[(ph.name, kind, c)] = (ph.regA if kind == "A" else ph.regW)(c)
        (ph.emitA if kind == "A" else ph.emitW)(c, i0, k)
        self.q += [(ph.name, kind, c)] * k; self.total += k
    def release(self, ph, c):
        for k in "AW": self.live.pop((ph.name, k, c), None)
    def wait(self, tags):
        last = -1
        for i, t in enumerate(self.q):
            if t in tags: last = i
        if last >= 0:
            self.q = self.q[last+1:]
            n7 = len(self.q); n = sum(1 for t in self.q if t[0] != "x7")
            assert n7 < 64
            if n7 != n:
                l = self.a.uid("w7")
                self.a(f"s_waitcnt vmcnt({n7})\ns_cmp_eq_u32 s{sW}, 7\ns_cbranch_scc1 {l}\ns_waitcnt vmcnt({n})")
                self.a.label(l)
            else: self.a(f"s_waitcnt vmcnt({n})")
    def pre(self, ph, pw, cnt, thr=0):
        done = 0
        while pw < ph.n * ph.npw and done < cnt and self.can(ph, "W", pw // ph.npw):
            k = min(4, ph.npw - pw % ph.npw, cnt - done)
            if thr:
                k = 1
                if len(self.q) >= thr:
                    self.a(f"s_waitcnt vmcnt({thr-1})"); self.q = self.q[len(self.q) - (thr - 1):]
            self.issue(ph, "W", pw // ph.npw, pw % ph.npw, k); pw += k; done += k
        return pw
    def run(self, ph, nxt, pw=0, after_poll=None, tail=None, waitfn=None, lastexit=None):
        a = self.a; n = ph.n
        pa = 0; pn = 0
        if ph.pollfn: ph.pollfn()
        if after_poll: after_poll()
        for c in range(1 if getattr(ph, "skip0", False) else 0, n):
            done = 0
            if lastexit and pw == n * ph.npw:
                assert all(t_[0] == ph.name for t_ in self.q)
                lastexit([len(self.q) - 1 - max([-1] + [i_ for i_, t_ in enumerate(self.q) if t_[2] <= cc]) for cc in range(c, n)]); lastexit = None
            while True:
                needed = pa < (c + 1) * ph.npa or pw < (c + 1) * ph.npw
                if not needed:
                    beyond = 0
                    for t in reversed(self.q):
                        if t[0] == ph.name and t[2] <= c: break
                        beyond += t[0] != "x7"
                    if beyond >= getattr(ph, 'look', C.look) and (done >= ph.budget or c == 0): break
                ca = pa // ph.npa if ph.npa else n; cw = pw // ph.npw
                okA = ca < n and self.can(ph, "A", ca)
                okW = cw < n and self.can(ph, "W", cw)
                if okW and (cw <= ca or not okA):
                    k = ph.npw - pw % ph.npw
                    if not needed: k = min(C.grp, k)
                    self.issue(ph, "W", cw, pw % ph.npw, k); pw += k
                elif okA:
                    k = ph.npa - pa % ph.npa
                    if not needed: k = min(C.grp, k)
                    self.issue(ph, "A", ca, pa % ph.npa, k); pa += k
                elif nxt and not lastexit and ca == n and cw == n and pn < nxt.early and self.can(nxt, "W", pn // nxt.npw):
                    k = min(2, nxt.npw - pn % nxt.npw)
                    self.issue(nxt, "W", pn // nxt.npw, pn % nxt.npw, k); pn += k
                else:
                    assert not needed
                    break
                done += k
            if tail and pa == n * ph.npa and pw == n * ph.npw:
                tail(); tail = None; self.waitfn = waitfn
            if ph.after_bar and c > 0: ph.after_bar(c - 1)
            self.wait({(ph.name, "A", c), (ph.name, "W", c)})
            if ph.dbg and C.stamp: a(f"s_memtime s[10:11]\ns_waitcnt lgkmcnt(0)\nv_writelane_b32 v254, s10, {2*c}")
            a("s_barrier")
            if ph.dbg and C.stamp: a(f"s_memtime s[10:11]\ns_waitcnt lgkmcnt(0)\nv_writelane_b32 v254, s10, {2*c+1}")
            if C.jit and c % 3 == 1: jitter(a, c)
            self.release(ph, c - ph.lag)
        if ph.after_bar: ph.after_bar(n - 1)
        if nxt: pn = self.pre(nxt, pn, min(ph.budget, max(0, nxt.early - pn)))
        return pn
    def end(self, ph):
        self.a("s_barrier")
        for c in range(ph.n): self.release(ph, c)

Q1_TAB = 98304
Q1_NON = Q1_TAB + 2048
Q1_CS = Q1_NON + 64
WB = 65536
def guW(c): return WB + ((3 - c) % 4) * 24576
def dnW(c): return ((c + 2) % 8) * 20480
def qkW(c): return WB + ((c + C.qk_s0) % 6) * 16384

PSCR = 131072
PV = 180
def projjob_issue(a, sJob, sScr, t, loads=True):
    a(f"""
    s_and_b32 s{t+2}, s{sJob}, 7
    s_lshr_b32 s{t+3}, s{sJob}, 3
    s_cmp_lt_u32 s{t+3}, 20
    s_cselect_b32 s{R_T}, s{P_WO}, s{P_WD}
    s_cselect_b32 s{R_T+1}, s{P_WO+1}, s{P_WD+1}
    s_mov_b32 s{R_T+2}, {F*D*2}
    s_cselect_b32 s{R_T+2}, {D*D*2}, s{R_T+2}
    s_mov_b32 s{R_T+3}, 0x20000
    s_cselect_b32 s{t+4}, 0, 20
    s_cselect_b32 s{t+5}, 20, 48
    s_mov_b32 s{t+6}, {WS_WTD}
    s_cselect_b32 s{t+6}, {WS_WTO}, s{t+6}
    s_sub_u32 s{t+3}, s{t+3}, s{t+4}
    s_mul_i32 s{t+5}, s{t+5}, s{t+2}
    s_add_u32 s{t+5}, s{t+5}, s{t+3}
    s_mul_i32 s{t+5}, s{t+5}, 5120
    s_add_u32 s{t+6}, s{t+6}, s{t+5}
    s_mul_i32 s{t+3}, s{t+3}, {32*1280}
    s_mul_i32 s{t+2}, s{t+2}, 160
    s_add_u32 s{t+3}, s{t+3}, s{t+2}
    s_movk_i32 s{t+4}, 6554
    """)
    x, y = PV, PV + 1
    for i in range(5 if loads else 0):
        a(f"""
        v_add_u32 v{x}, {64*i}, v0
        v_mul_u32_u24 v{y}, s{t+4}, v{x}
        v_lshrrev_b32 v{y}, 16, v{y}
        v_mad_i32_i24 v{x}, v{y}, -10, v{x}
        v_mul_u32_u24 v{y}, 1280, v{y}
        v_lshl_add_u32 v{x}, v{x}, 4, v{y}
        s_add_u32 m0, s{sScr}, {1024*i}
        s_nop 0
        buffer_load_dwordx4 v{x}, {R(R_T)}, s{t+3} offen lds
        """)
def projjob_finish(a, sScr, t):
    x, y, z, d0 = PV, PV + 1, PV + 2, PV + 4
    a(f"""
    v_lshrrev_b32 v{x}, 4, v0
    v_bfe_u32 v{y}, v0, 2, 2
    v_lshl_add_u32 v{x}, v{x}, 3, v{y}
    v_mul_u32_u24 v{x}, 160, v{x}
    v_add_u32 v{x}, s{sScr}, v{x}
    v_and_b32 v{y}, 3, v0
    v_lshl_add_u32 v{z}, v{y}, 3, v{x}
    v_lshl_add_u32 v{y}, v{y}, 4, v{x}
    """)
    for jn in range(5):
        for j in range(2):
            d = d0 + 4*jn + 2*j
            if jn < 4: a(f"ds_read_b64_tr_b16 v[{d}:{d+1}], v{y} offset:{640*j + 64*(jn>>1) + 8*(jn&1)}")
            else: a(f"ds_read_b64_tr_b16 v[{d}:{d+1}], v{z} offset:{640*j + 128}")
    a(f"s_add_u32 s{t+5}, s{t+6}, 4096\ns_waitcnt lgkmcnt(0)")
    for jn in range(5):
        d = d0 + 4*jn
        a(f"buffer_store_dwordx4 v[{d}:{d+3}], v5, {WSR}, s{t+6 if jn < 4 else t+5} offen offset:{1024*(jn&3)} sc1")

def gujob_issue(a, sJob, t, loads=True):
    x, y = PV, PV + 1
    a(f"""
    s_mul_i32 s{t+2}, s{sJob}, 2731
    s_lshr_b32 s{t+2}, s{t+2}, 16
    s_mul_i32 s{t+3}, s{t+2}, 24
    s_sub_u32 s{t+3}, s{sJob}, s{t+3}
    s_mul_i32 s{t+4}, s{t+2}, {64*F*2}
    s_lshl_b32 s{t+5}, s{t+3}, 7
    s_add_u32 s{t+4}, s{t+4}, s{t+5}
    v_lshrrev_b32 v{x}, 3, v0
    v_mul_u32_u24 v{x}, {F*2}, v{x}
    v_and_b32 v{y}, 7, v0
    v_lshl_add_u32 v{x}, v{y}, 4, v{x}
    """)
    a(f"""
    s_and_b32 s{t+1}, s{sW}, 1
    s_cselect_b32 s{R_T}, s{P_WU}, s{P_WG}
    s_cselect_b32 s{R_T+1}, s{P_WU+1}, s{P_WG+1}
    s_mov_b32 s{R_T+2}, {F*D*2}
    s_mov_b32 s{R_T+3}, 0x20000
    s_lshl_b32 s{t+6}, s{t+1}, 13
    """)
    for i in range(8):
        a(f"s_add_u32 m0, s{t+6}, {PSCR + 1024*i}\ns_add_u32 s{t+5}, s{t+4}, {i*8*F*2}")
        a(f"buffer_load_dwordx4 v{x}, {R(R_T)}, s{t+5} offen lds")
def gujob_finish(a, t):
    x, y, z = PV, PV + 1, PV + 2
    ONE, FRG, CS = PV + 4, PV + 8, PV + 40
    a(f"""
    v_lshrrev_b32 v{z}, 4, v0
    v_bfe_u32 v{x}, v0, 2, 2
    v_lshl_add_u32 v{x}, v{z}, 3, v{x}
    v_lshlrev_b32 v{x}, 7, v{x}
    v_and_b32 v{y}, 3, v0
    v_lshl_add_u32 v{x}, v{y}, 3, v{x}
    s_add_u32 s{t+6}, s{t+6}, {PSCR}
    v_add_u32 v{x}, s{t+6}, v{x}
    v_lshlrev_b32 v{z}, 4, v{z}
    """)
    for tt in range(4):
        for u in range(2):
            for j in range(2):
                d = FRG + 8*tt + 4*u + 2*j
                a(f"ds_read_b64_tr_b16 v[{d}:{d+1}], v{x} offset:{128*(32*u+4*j) + 32*tt}")
    a(f"""
    s_mul_i32 s{t+6}, s{t+2}, 12288
    s_lshl_b32 s{t+5}, s{t+3}, 9
    s_add_u32 s{t+6}, s{t+6}, s{t+5}
    s_lshl_b32 s{t+5}, s{t+1}, 6
    s_add_u32 s{t+6}, s{t+6}, s{t+5}
    s_add_u32 s{t+6}, s{t+6}, {WS_CSP}
    """)
    for i in range(4): a(f"v_mov_b32 v{ONE+i}, 0x3f803f80")
    a("s_nop 0\ns_waitcnt lgkmcnt(0)")
    for u in range(2):
        for tt in range(4):
            a(f"v_mfma_f32_16x16x32_bf16 {v(CS+4*tt,4)}, {v(FRG+8*tt+4*u,4)}, {v(ONE,4)}, {v(CS+4*tt,4) if u else 0}")
    for tt in range(4):
        a(f"""
        s_lshl_b32 s{t+4}, s{t+3}, 2
        s_add_u32 s{t+4}, s{t+4}, {tt}
        s_mul_i32 s{t+5}, s{t+4}, 43
        s_lshr_b32 s{t+5}, s{t+5}, 8
        s_mul_i32 s{t+5}, s{t+5}, 228
        s_lshl_b32 s{t+4}, s{t+4}, 1
        s_add_u32 s{t+4}, s{t+4}, s{t+5}
        s_mul_i32 s{t+5}, s{t+2}, 24
        s_add_u32 s{t+4}, s{t+4}, s{t+5}
        s_add_u32 s{t+4}, s{t+4}, s{t+1}
        s_lshl_b32 s{t+4}, s{t+4}, 10
        s_add_u32 s{t+4}, s{t+4}, {WS_WTG}
        s_add_u32 s{t+5}, s{t+4}, 12288
        """)
        for u in range(2):
            d = FRG + 8*tt + 4*u
            a(f"buffer_store_dwordx4 v[{d}:{d+3}], v5, {WSR}, s{t+4+u} offen sc1")
    a("s_mov_b32 exec_lo, 0x10001\ns_mov_b32 exec_hi, 0x10001")
    for tt in range(4):
        a(f"buffer_store_dwordx4 v[{CS+4*tt}:{CS+4*tt+3}], v{z}, {WSR}, s{t+6} offen offset:{128*tt} sc1")
    a("s_mov_b64 exec, -1")

def prep(a, stage):
    tj = 84; sJob, sScr = tj, tj + 1
    lg = a.uid("pg"); le = a.uid("pe")
    if stage == 0:
        a(f"""
        s_sub_u32 s{sScr}, s{sW}, 1
        s_lshl_b32 s{sJob}, s{sScr}, 8
        s_add_u32 s{sJob}, s{sJob}, s{sWG}
        s_add_u32 s{sJob}, s{sJob}, 160
        s_mul_i32 s{sScr}, s{sScr}, 5120
        s_add_u32 s{sScr}, s{sScr}, {PSCR + 16384}
        """)
    a(f"s_cmp_eq_u32 s{sW}, 0\ns_cbranch_scc1 {lg}\ns_cmp_eq_u32 s{sW}, 3\ns_cbranch_scc1 {lg}\ns_cmp_ge_u32 s{sJob}, 544\ns_cbranch_scc1 {le}")
    projjob_issue(a, sJob, sScr, tj) if stage == 0 else projjob_finish(a, sScr, tj)
    a(f"s_branch {le}")
    a.label(lg)
    a(f"s_cmp_ge_u32 s{sWG}, 240\ns_cbranch_scc1 {le}")
    gujob_issue(a, sWG, tj) if stage == 0 else gujob_finish(a, tj)
    a.label(le)

def xstat_fin(a):
    t = T + 16
    a(f"s_mov_b32 s{t}, 0xffff0000\nv_mov_b64 v[232:233], 0\ns_waitcnt vmcnt(0)")
    for i in range(12):
        a(f"v_lshlrev_b32 v234, 16, v{220+i}\nv_and_b32 v235, s{t}, v{220+i}\nv_add_f32 v232, v232, v234\nv_fmac_f32 v233, v234, v234\nv_add_f32 v232, v232, v235\nv_fmac_f32 v233, v235, v235")
    for mod in ("quad_perm:[1,0,3,2]", "quad_perm:[2,3,0,1]"):
        a(f"s_nop 1\nv_add_f32_dpp v232, v232, v232 {mod} row_mask:0xf bank_mask:0xf\nv_add_f32_dpp v233, v233, v233 {mod} row_mask:0xf bank_mask:0xf")
    a(f"""
    v_bfe_u32 v234, v0, 3, 2
    v_lshlrev_b32 v234, 10, v234
    v_bfe_u32 v235, v0, 2, 1
    v_lshl_add_u32 v234, v235, 3, v234
    v_lshrrev_b32 v235, 5, v0
    v_lshl_add_u32 v234, v235, 4, v234
    s_lshr_b32 s{t}, s{sWG}, 3
    s_lshl_b32 s{t}, s{t}, 12
    s_and_b32 s{t+1}, s{sWG}, 7
    s_lshl_b32 s{t+1}, s{t+1}, 2
    s_add_u32 s{t+1}, s{t+1}, s{sW}
    s_lshl_b32 s{t+1}, s{t+1}, 5
    s_add_u32 s{t}, s{t}, s{t+1}
    s_add_u32 s{t}, s{t}, {WS_ST0}
    s_mov_b32 exec_lo, 0x11111111
    s_mov_b32 exec_hi, 0x11111111
    buffer_store_dwordx2 v[232:233], v234, {WSR}, s{t} offen sc1
    s_mov_b64 exec, -1
    """)

def nonce_put(a):
    t = T + 8
    a(f"""
    s_memrealtime s[{t}:{t+1}]
    v_mov_b32 v1, 0
    s_waitcnt lgkmcnt(0)
    s_or_b32 s{t+2}, s{t}, 0x80000000
    v_mov_b32 v2, s{t+2}
    s_mov_b64 exec, 1
    global_store_dword v1, v2, s[{P_DBG}:{P_DBG+1}] sc1
    s_mov_b64 exec, -1
    """)
def flags_zero(a):
    t = T + 16
    a(f"""
    s_lshl_b32 s{t}, s{sWG}, 5
    s_add_u32 s{t}, s{t}, {WS_FL}
    s_lshl_b32 s{t+1}, s{sWG}, 7
    s_add_u32 s{t+1}, s{t+1}, {L_FG}
    s_add_u32 s{t+2}, s{t+1}, {LSTRIDE}
    v_lshlrev_b32 v236, 2, v0
    v_mov_b32 v237, 0
    s_mov_b64 exec, 0xff
    buffer_store_dword v237, v236, {WSR}, s{t} offen sc1
    s_mov_b64 exec, 0x7ff
    buffer_store_dword v237, v236, {WSR}, s{t+1} offen sc1
    buffer_store_dword v237, v236, {WSR}, s{t+2} offen sc1
    s_mov_b64 exec, -1
    """)

def nonce_issue(a, v2, v3):
    a(f"v_mov_b32 v{v3}, 0\nglobal_load_dword v{v2}, v{v3}, s[{P_DBG}:{P_DBG+1}] sc1")
def nonce_get(a, v1, v2, v3, cnt=0):
    t = T + 14
    lp = a.uid("non"); ok = a.uid("nonok")
    a(f"s_mov_b32 s{t+6}, 0\nv_mov_b32 v{v3}, 0\ns_lshl_b32 s{t+4}, s{sWG}, 7\ns_add_u32 s{t+4}, s{t+4}, {L_FG}\ns_waitcnt vmcnt({cnt})\ns_branch {lp}c")
    a.label(lp)
    a(f"global_load_dword v{v2}, v{v3}, s[{P_DBG}:{P_DBG+1}] sc1\ns_waitcnt vmcnt(0)")
    a.label(lp + "c")
    a(f"""
    v_cmp_eq_u32 vcc, 0, v{v2}
    s_cbranch_vccz {ok}
    s_sleep 4
    s_add_u32 s{t+6}, s{t+6}, 1
    s_cmp_lt_u32 s{t+6}, {SPIN}
    s_cbranch_scc1 {lp}
    s_mov_b32 s{sTMO}, {SPIN}
    """)
    a.label(ok)
    a(f"""
    v_readfirstlane_b32 s{sEP}, v{v2}
    s_getreg_b32 s{t+6}, hwreg(HW_REG_XCC_ID, 0, 4)
    v_add_u32 v{v2}, s{t+6}, v{v2}
    s_mov_b64 exec, 1
    buffer_store_dword v{v2}, v{v3}, {WSR}, s{t+4} offen offset:32 sc1
    s_mov_b64 exec, -1
    s_waitcnt lgkmcnt(0)
    """)

def census(a, va, vt, issue, cnt=0):
    t = T + 20
    a(f"""
    v_and_b32 v{va}, 31, v0
    v_lshlrev_b32 v{va}, 7, v{va}
    s_lshl_b32 s{t}, s{sG}, 12
    s_add_u32 s{t}, s{t}, {L_FG + 32}
    """)
    if issue:
        a(f"buffer_load_dword v{vt}, v{va}, {WSR}, s{t} offen sc1")
        return
    poll(a, va, vt, f"s{t}", f"s{sEP}", sleep=4, pre=cnt)
    a(f"""
    s_getreg_b32 s{t}, hwreg(HW_REG_XCC_ID, 0, 4)
    v_cmp_ne_u32 vcc, s{t}, v{vt}
    s_cmp_eq_u64 vcc, 0
    s_cselect_b32 s{t}, 1, 0
    v_mov_b32 v{va}, {Q1_NON}
    v_mov_b32 v{vt}, s{t}
    ds_write_b32 v{va}, v{vt} offset:4
    v_mov_b32 v{vt}, s{sEP}
    ds_write_b32 v{va}, v{vt}
    s_waitcnt lgkmcnt(0)
    """)

sMODE = 14 - 14 + 98
def read_nonce_mode(a):
    a(f"v_mov_b32 v1, {Q1_NON}\nds_read_b64 v[2:3], v1\ns_waitcnt lgkmcnt(0)\nv_readfirstlane_b32 s{sEP}, v2\nv_readfirstlane_b32 s{sMODE}, v3")

def qkv_ids(a, t):
    a(f"s_lshr_b32 s{t}, s{sWG}, 4\ns_and_b32 s{t+1}, s{sR}, 15")

def qkv_compute(a, first, SB):
    t = T
    sRT, sCT, sTY, sC0 = t, t+1, t+2, t+3
    LQ = 0 if first else LSTRIDE
    sWM, sWN = t+5, t+6
    a(f"""
    s_mul_i32 s{sTY}, s{sCT}, 52
    s_lshr_b32 s{sTY}, s{sTY}, 8
    s_mul_i32 s{sC0}, s{sTY}, 5
    s_sub_u32 s{sC0}, s{sCT}, s{sC0}
    s_lshl_b32 s{sC0}, s{sC0}, 7
    s_and_b32 s{sWM}, s{sW}, 1
    s_lshr_b32 s{sWN}, s{sW}, 1
    v_lshrrev_b32 v14, 4, v0
    v_and_b32 v15, 15, v0
    """)
    FR = 16; VST = 80; VCS = 96; VM = 96; VR = 112; ACC = 128; VCV = 192; NON = 200; AD = 202; MS = 240; TMP = 212
    vq, vt = AD + 8, AD + 9
    sCS = t+15
    a(f"s_lshl_b32 s{sCS}, s{sWG}, 9\ns_lshl_b32 s{t+7}, s{sWN}, 8\ns_add_u32 s{sCS}, s{sCS}, s{t+7}\ns_add_u32 s{sCS}, s{sCS}, {WS_CSQ}")
    a(f"v_lshlrev_b32 v{vq}, 4, v14\nv_lshlrev_b32 v{vt}, 2, v15\ns_lshl_b32 s{t+7}, s{sWM}, 13")
    if first:
        a(f"""
        v_lshlrev_b32 v1, 7, v15
        v_add_u32 v1, s{t+7}, v1
        v_bfe_u32 v12, v0, 1, 3
        v_xor_b32 v12, v12, v14
        v_lshl_add_u32 v2, v12, 4, v1
        v_xor_b32 v12, 4, v12
        v_lshl_add_u32 v3, v12, 4, v1
        """)
    else:
        a(f"v_lshlrev_b32 v2, 4, v15\nv_lshl_add_u32 v2, v14, 9, v2\nv_add_u32 v2, s{t+7}, v2")
    a(f"""
    v_bfe_u32 v12, v0, 2, 2
    v_lshl_add_u32 v13, v14, 3, v12
    v_lshlrev_b32 v13, 8, v13
    v_and_b32 v1, 3, v0
    v_lshl_add_u32 v13, v1, 3, v13
    v_add_u32 v13, {WB}, v13
    v_bfe_u32 v12, v0, 2, 3
    s_lshl_b32 s{t+7}, s{sWN}, 2
    v_xor_b32 v12, s{t+7}, v12
    """)
    for nt in range(4): a(f"v_xor_b32 v1, {nt}, v12\nv_lshl_add_u32 v{4+nt}, v1, 5, v13\nv_add_u32 v{8+nt}, 49152, v{4+nt}")
    assert Q1_TAB == qkW(4)
    sC, sMk, sDst, sD1 = t+9, t+11, t+12, 96
    qloc = C.qloc and SB == '' and not first
    vlab = a.uid("qkv_v"); fin = a.uid("qkv_fin")
    a(f"s_cmp_eq_u32 s{sTY}, 2\ns_cbranch_scc1 {vlab}")
    def rd(c, u):
        b = FR + 32*u; o = qkW(c) - WB
        if first: r = [f"ds_read_b128 v[{b+4*tt}:{b+4*tt+3}], v{2+u} offset:{(c % 4)*16384+2048*tt}" for tt in range(4)]
        else: r = [f"ds_read_b128 v[{b+4*tt}:{b+4*tt+3}], v2 offset:{(c % 4)*16384+4096*(tt >> 1)+256*(tt & 1)+2048*u}" for tt in range(4)]
        for nt in range(4):
            for j in range(2):
                d = b + 16 + 4*nt + 2*j
                r.append(f"ds_read_b64_tr_b16 v[{d}:{d+1}], v{4 + 4*(o // 49152) + nt} offset:{o % 49152 + 8192*u + 1024*j}")
        return r
    def mainloop(vtype, epi, alt=None):
        if first: xstat_fin(a)
        stamp(a, 1 if first else 18)
        def mf(u, tl, z):
            b = FR + 32*u; c = ACC + 4*tl
            if vtype: A, B = v(b + 4*(tl >> 2), 4), v(b + 16 + 4*(tl & 3), 4)
            else: A, B = v(b + 16 + 4*(tl >> 2), 4), v(b + 4*(tl & 3), 4)
            return f"v_mfma_f32_16x16x32_bf16 {v(c,4)}, {A}, {B}, {0 if z else v(c,4)}"
        neg = [f"v_sub_f32 v{VCV+2*i}, 0, v{VCV+2*i}" for i in range(4)]
        if vtype: fix = lambda tl: [f"v_fmac_f32 v{ACC+4*tl+i}, v{VCV+2*(tl&3)}, v{VM+4*(tl>>2)+i}" for i in range(4)]
        else: fix = lambda tl: [f"v_fmac_f32 v{ACC+4*tl+i}, v{TMP+2*(tl&3)}, v{VCS+4*(tl>>2)+i}" for i in range(4)]
        groups = [tuple(range(4*j, 4*j + 4)) for j in range(4)]
        a(f"s_cmp_eq_u32 s{sTY}, 0\ns_cselect_b32 s{t+10}, {f32(QSCALE)}, 1.0")
        if not first:
            a(f"""
            s_lshl_b32 s{sC}, s{sRT}, 1
            s_add_u32 s{sC}, s{sC}, s{sWM}
            s_lshl_b32 s{sC}, s{sC}, 12
            s_add_u32 s{sC}, s{sC}, {L_ST2}
            v_lshlrev_b32 v3, 4, v0
            """)
            ins = {}
            for nt in range(4): ins[26 + nt] = [f"buffer_load_dword v{VCV+2*nt}, v{vt}, {WSR}, s{sCS} offen offset:{64*nt} sc1" if vtype else
                                                f"buffer_load_dwordx4 v[{VCS+4*nt}:{VCS+4*nt+3}], v{vq}, {WSR}, s{sCS} offen offset:{64*nt} sc1"]
            for i in range(4): ins[58 + i + (12 if i > 1 else 0)] = [f"buffer_load_dwordx4 v[{VST+4*i}:{VST+4*i+3}], v3, {WSR}, s{sC} offen offset:{1024*i} sc1"]
            b = Asm(); b("s_waitcnt vmcnt(0)"); row_stats(b, VST, VST + 2, VST + 3)
            if vtype:
                b("\n".join(neg))
                a(f"s_lshl_b32 s{t+7}, s{sW}, 9\ns_add_u32 s{t+7}, s{t+7}, {qkW(4)}\nv_lshlrev_b32 v12, 2, v0\nv_add_u32 v12, s{t+7}, v12\nv_add_u32 v13, s{t+7}, v{vq}")
                ins[146] = [f"ds_write_b32 v12, v{VST+2}", f"ds_write_b32 v12, v{VST+3} offset:256"] + \
                    [f"ds_read_b128 v[{R_+4*tt}:{R_+4*tt+3}], v13 offset:{o_+64*tt}" for R_, o_ in ((VM, 0), (VR, 256)) for tt in range(4)]
                ff = 178
            else:
                for src, d, op in ((VST + 2, TMP, "v_sub_f32 v{0}, 0, v{1}"), (VST + 3, MS, "v_mul_f32 v{0}, s%d, v{1}" % (t + 10))):
                    b(op.format(d, src) + "\n" + op.format(d + 2, src) + f"\ns_nop 1\nv_permlane16_swap_b32 v{d}, v{d+2}\nv_mov_b32 v{d+4}, v{d}\nv_mov_b32 v{d+6}, v{d+2}\ns_nop 1")
                    b(f"v_permlane32_swap_b32 v{d}, v{d+4}\nv_permlane32_swap_b32 v{d+2}, v{d+6}")
                ff = 178
            ins = dict(sorted({**ins, 108: b.lines}.items()))
            stage2(a, SB, 0)
            gemm16(a, 10, 16, rd, mf, groups, ins, fix, ff, epi, 19, 2, 3, alt)
            return
        a(f"s_lshl_b32 s{t+7}, s{sWM}, 8\ns_add_u32 s{t+7}, s{t+7}, {Q1_TAB}\nv_add_u32 v13, s{t+7}, v{vq if vtype else vt}")
        if vtype:
            sr = [f"ds_read_b128 v[{R_+4*tt}:{R_+4*tt+3}], v13 offset:{o_+64*tt}" for R_, o_ in ((VM, 0), (VR, 512)) for tt in range(4)]
            sf = neg
        else:
            sr = [f"ds_read_b32 v{R_+2*tt}, v13 offset:{o_+64*tt}" for R_, o_ in ((TMP, 0), (MS, 512)) for tt in range(4)]
            sf = [x for tt in range(4) for x in (f"v_sub_f32 v{TMP+2*tt}, 0, v{TMP+2*tt}", f"v_mul_f32 v{MS+2*tt}, s{t+10}, v{MS+2*tt}")]
        a(f"s_lshl_b32 s{t+7}, s{sWN}, 8\ns_add_u32 s{t+7}, s{t+7}, {Q1_CS}\nv_add_u32 v12, s{t+7}, v{vt if vtype else vq}\nv_mov_b32 v1, {Q1_NON}")
        ae = [f"ds_read_b64 v[{NON}:{NON+1}], v1"]
        ae += [f"ds_read_b32 v{VCV+2*nt}, v12 offset:{64*nt}" if vtype else f"ds_read_b128 v[{VCS+4*nt}:{VCS+4*nt+3}], v12 offset:{64*nt}" for nt in range(4)]
        def epi1(g, pk):
            r = []
            if g == 0: r = ["s_waitcnt lgkmcnt(0)", f"v_readfirstlane_b32 s{sEP}, v{NON}", f"v_readfirstlane_b32 s{sMODE}, v{NON+1}"] + sf
            return r + sum((fix(tl) for tl in groups[g]), []) + epi(g, pk)
        assert C.c_f < 9
        gemm16(a, 10, 16, rd, mf, groups, {40: ["s_waitcnt vmcnt(0)"]}, lambda tl: [], 0, epi1, 2, 2, 3, None, ae, sr)
    a(f"""
    s_mul_i32 s{sDst}, s{sTY}, {ACT}
    s_lshl_b32 s{t+8}, s{sRT}, 2
    s_lshl_b32 s{t+7}, s{sWM}, 1
    s_add_u32 s{t+8}, s{t+8}, s{t+7}
    s_mul_i32 s{t+8}, s{t+8}, 1280
    s_add_u32 s{sDst}, s{sDst}, s{t+8}
    s_add_u32 s{sDst}, s{sDst}, {LQ}
    s_lshr_b32 s{t+8}, s{sC0}, 3
    s_lshl_b32 s{t+7}, s{sWN}, 3
    s_add_u32 s{t+8}, s{t+8}, s{t+7}
    v_lshrrev_b32 v80, 5, v0
    v_add_u32 v80, s{t+8}, v80
    v_and_b32 v87, 31, v0
    s_mov_b32 s{t+13}, {HEADB}
    v_mov_b32 v86, 0x7fffffff
    s_mov_b32 s{sMk}, 0
    s_add_u32 s{sD1}, s{sDst}, 1280
    """)
    if qloc:
        a(f"""
        s_lshl_b32 s{t+8}, s{sRT}, 1
        s_add_u32 s{t+8}, s{t+8}, s{sWM}
        s_mul_i32 s{t+8}, s{t+8}, {2*F*64}
        s_add_u32 s{t+8}, s{t+8}, {L_Q + 57344}
        s_add_u32 s{t+7}, s{t+8}, {F*64}
        s_cmp_eq_u32 s{sTY}, 0
        s_cselect_b32 s{sDst}, s{t+8}, s{sDst}
        s_cselect_b32 s{sD1}, s{t+7}, s{sD1}
        s_cselect_b32 s{t+13}, 1280, s{t+13}
        """)
    a(f"s_add_u32 s{t+14}, s{sDst}, s{t+13}\ns_add_u32 s{sD1+1}, s{sD1}, s{t+13}")
    for sl in range(4):
        a(f"""
        v_add_u32 v81, {2*sl}, v80
        v_mul_u32_u24 v82, 205, v81
        v_lshrrev_b32 v82, 10, v82
        v_mad_i32_i24 v81, v82, -5, v81
        v_cmp_lt_u32 vcc, 2, v81
        v_lshlrev_b32 v82, 1, v82
        v_add_u32 v83, -3, v81
        v_cndmask_b32 v83, v81, v83, vcc
        v_addc_co_u32 v82, vcc, 0, v82, vcc
        v_lshlrev_b32 v83, 9, v83
        v_lshl_add_u32 v83, v87, 4, v83
        v_lshlrev_b32 v85, 3, v87
        v_add_u32 v85, 1024, v85
        v_cmp_eq_u32 vcc, 2, v81
        v_mul_lo_u32 v84, v82, s{t+13}
        s_cmp_lg_u64 vcc, 0
        v_cndmask_b32 v83, v83, v86, vcc
        v_cndmask_b32 v85, v86, v85, vcc
        s_cselect_b32 s{t+7}, {1 << sl}, 0
        s_or_b32 s{sMk}, s{sMk}, s{t+7}
        v_add_u32 v{AD+sl}, v83, v84
        v_add_u32 v{AD+4+sl}, v85, v84
        """)
    def pack(c, sw):
        return [f"v_cvt_pk_bf16_f32 v{c+i}, v{c+2*i}, v{c+2*i+1}" for i in range(4)] + \
               ["s_nop 0", f"v_permlane{sw}_swap_b32 v{c}, v{c+2}", f"v_permlane{sw}_swap_b32 v{c+1}, v{c+3}"]
    def epi_qk(nt, pk=True, bits='sc1'):
        r = []
        for tp in range(2):
            c = ACC + 16*nt + 8*tp
            if pk: r += [f"v_pk_mul_f32 v[{c+i}:{c+i+1}], v[{c+i}:{c+i+1}], v[{MS+4*tp+2*(i>>2)}:{MS+4*tp+2*(i>>2)+1}] op_sel_hi:[1,0]" for i in range(0, 8, 2)]
            else: r += [f"v_mul_f32 v{c+i}, v{MS+4*tp+2*(i>>2)}, v{c+i}" for i in range(8)]
            r += pack(c, 16)
            r.append(f"buffer_store_dwordx4 v[{c}:{c+3}], v{AD+nt}, {WSR}, s{sD1 if tp else sDst} offen {bits}")
        return r
    def bparts(bits):
        for sl in range(4):
            sk = a.uid("qk_b")
            a(f"s_bitcmp0_b32 s{sMk}, {sl}\ns_cbranch_scc1 {sk}")
            for tm in range(2):
                o = ACC + 16*sl + 8*tm
                a(f"buffer_store_dwordx2 v[{o}:{o+1}], v{AD+4+sl}, {WSR}, s{sD1 if tm else sDst} offen {bits}")
                a(f"buffer_store_dwordx2 v[{o+2}:{o+3}], v{AD+4+sl}, {WSR}, s{sD1+1 if tm else t+14} offen {bits}")
            a.label(sk)
        a(f"s_branch {fin}")
    if qloc: mainloop(False, epi_qk, (f"s_cmp_eq_u32 s{sTY}, 0", lambda g, pk: epi_qk(g, pk, ""), lambda: bparts("sc1"), lambda: bparts("")))
    else:
        mainloop(False, epi_qk); bparts("sc1")
    a.label(vlab)
    a(f"""
    s_lshl_b32 s{t+8}, s{sRT}, 3
    s_lshl_b32 s{t+7}, s{sWM}, 2
    s_add_u32 s{t+8}, s{t+8}, s{t+7}
    s_mul_i32 s{sDst}, s{t+8}, 640
    s_add_u32 s{sDst}, s{sDst}, {L_V + LQ}
    s_lshl_b32 s{t+7}, s{sWN}, 6
    s_add_u32 s{t+8}, s{sC0}, s{t+7}
    v_lshrrev_b32 v80, 5, v0
    v_lshl_add_u32 v80, v80, 4, v15
    v_add_u32 v80, s{t+8}, v80
    v_and_b32 v81, 1, v14
    v_mul_u32_u24 v81, 320, v81
    s_mov_b32 s{t+13}, {HEADB}
    s_movk_i32 s{t+14}, 3277
    s_movk_i32 s{t+7}, -20
    """)
    for np_ in range(2):
        a(f"""
        v_add_u32 v83, {32*np_}, v80
        v_mul_u32_u24 v84, s{t+14}, v83
        v_lshrrev_b32 v84, 16, v84
        v_mad_i32_i24 v83, v84, s{t+7}, v83
        v_lshl_add_u32 v83, v83, 4, v81
        v_mul_lo_u32 v85, v84, s{t+13}
        v_add_u32 v{AD+np_}, v83, v85
        """)
    def epi_v(tt, pk=True):
        r = []
        for np_ in range(2):
            c = ACC + 16*tt + 8*np_
            if pk: r += [f"v_pk_mul_f32 v[{c+i}:{c+i+1}], v[{c+i}:{c+i+1}], v[{VR+4*tt+(i&3)}:{VR+4*tt+(i&3)+1}]" for i in range(0, 8, 2)]
            else: r += [f"v_mul_f32 v{c+i}, v{VR+4*tt+(i&3)}, v{c+i}" for i in range(8)]
            r += pack(c, 32)
            r.append(f"buffer_store_dwordx4 v[{c}:{c+3}], v{AD+np_}, {WSR}, s{sDst} offen offset:{640*tt} sc1")
        return r
    mainloop(True, epi_v)
    a.label(fin)
    stamp(a, 3 if first else 20)
    flag_setup(a, 1 if first else 8)
    a(f"s_lshl_b32 s{t+7}, s{sWG}, 5\ns_add_u32 s{t+7}, s{t+7}, s{sW}\ns_lshl_b32 s{t+7}, s{t+7}, 2\ns_add_u32 s{t+7}, s{t+7}, {L_FG + LQ}")
    a("s_waitcnt vmcnt(0)")
    if first:
        l1 = a.uid("q1f"); l2 = a.uid("q1g")
        a(f"s_cmp_eq_u32 s{sMODE}, 0\ns_cbranch_scc1 {l1}")
        flag_store(a, ""); a(f"s_branch {l2}")
        a.label(l1); flag_store(a, "sc1"); a.label(l2)
    else: flag_store(a, SB)
    flag_store(a, "sc1", t+7)

def qkvW_setup(a, sWo, sLW, sCT, sTmp, vW):
    a(f"""
    v_lshrrev_b32 v2, 4, v0
    v_mul_u32_u24 v1, 3840, v2
    v_lshlrev_b32 v7, 1, v2
    v_and_b32 v3, 15, v0
    v_xor_b32 v3, v3, v7
    v_lshl_add_u32 v{vW}, v3, 4, v1
    v_xor_b32 v3, 8, v3
    v_lshl_add_u32 v{vW+1}, v3, 4, v1
    s_mul_i32 s{sWo}, s{sLW}, {16*3840}
    s_lshl_b32 s{sTmp}, s{sCT}, 8
    s_add_u32 s{sWo}, s{sWo}, s{sTmp}
    """)

def qkv1_loader(a):
    t = T
    sRT, sCT = t, t+1
    sLW, sAo, sWo, sM, sTmp, sRot, sThr, sA1, sW1, sSel = t+2, t+3, t+4, t+5, t+6, t+8, t+9, t+10, t+11, t+12
    a(f"s_sub_u32 s{sLW}, s{sW}, 4")
    qkvW_setup(a, sWo, sLW, sCT, sTmp, 6)
    a(f"""
    s_lshl_b32 s{sM}, s{sLW}, 12
    s_lshl_b32 s{sAo}, s{sRT}, 2
    s_add_u32 s{sAo}, s{sAo}, s{sLW}
    s_mul_i32 s{sAo}, s{sAo}, {32*1280}
    v_lshrrev_b32 v1, 3, v0
    v_mul_u32_u24 v1, 1280, v1
    v_and_b32 v3, 7, v0
    v_xor_b32 v3, v3, v2
    v_lshl_add_u32 v4, v3, 4, v1
    v_xor_b32 v3, 4, v3
    v_lshl_add_u32 v5, v3, 4, v1
    """)
    a("s_waitcnt lgkmcnt(0)")
    srd(a, R_X, P_X, ACT)
    srd(a, R_WQ, P_WQKV, D*3*D*2)
    def emitA(c, i0, k):
        for i in range(i0, i0 + k):
            a(f"s_add_u32 m0, s{sM}, {(c % 4)*16384 + 1024*i}\ns_add_u32 s{sTmp}, s{sAo}, {c*128 + i*8*1280}")
            a(f"buffer_load_dwordx4 v{4 + (i & 1)}, {R(R_X)}, s{sTmp} offen lds")
    def emitW(c, i0, k):
        for i in range(i0, i0 + k):
            a(f"s_add_u32 m0, s{sM}, {qkW(c) + 1024*i}\ns_add_u32 s{sTmp}, s{sWo}, {c*64*3840 + i*4*3840}")
            a(f"buffer_load_dwordx4 v{6 + (i >> 1)}, {R(R_WQ)}, s{sTmp} offen lds")
    LD = Loader(a); mark = [0]
    def xstats(c):
        if c == 0:
            other_srds(a)
            a(f"""
            v_bfe_u32 v8, v0, 2, 2
            v_lshrrev_b32 v9, 4, v0
            v_lshl_add_u32 v9, v9, 3, v8
            v_lshlrev_b32 v9, 8, v9
            v_and_b32 v10, 3, v0
            v_lshl_add_u32 v9, v10, 3, v9
            v_add_u32 v9, {WB}, v9
            v_bfe_u32 v10, v0, 2, 3
            s_lshl_b32 s{t+7}, s{sLW}, 1
            v_xor_b32 v10, s{t+7}, v10
            v_lshl_add_u32 v8, v10, 5, v9
            v_xor_b32 v10, 1, v10
            v_lshl_add_u32 v9, v10, 5, v9
            v_add_u32 v10, 49152, v8
            v_add_u32 v11, 49152, v9
            """)
            for i in range(4): a(f"v_mov_b32 v{12+i}, 0x3f803f80")
        o_ = qkW(c) - WB
        for u in range(2):
            for e in range(2):
                for j in range(2):
                    d = 16 + 8*u + 4*e + 2*j
                    a(f"ds_read_b64_tr_b16 v[{d}:{d+1}], v{8 + 2*(o_ // 49152) + e} offset:{o_ % 49152 + 8192*u + 1024*j}")
        a("s_waitcnt lgkmcnt(0)")
        for u in range(2):
            for e in range(2):
                a(f"v_mfma_f32_16x16x32_bf16 v[{32+4*e}:{35+4*e}], v[12:15], v[{16+8*u+4*e}:{19+8*u+4*e}], {v(32+4*e,4) if (c or u) else 0}")
        n = LD.total - mark[0]
        if c in (0, C.c_i, C.c_c): mark[0] = LD.total
        def st_issue():
            census(a, 80, 81, False, n)
            a(f"s_lshl_b32 s{t+7}, s{sRT}, 13\ns_add_u32 s{t+7}, s{t+7}, {WS_ST0}\ns_add_u32 s{t+13}, s{t+7}, 4096\nv_lshlrev_b32 v82, 4, v0")
            for h_ in range(2):
                for i in range(4): a(f"buffer_load_dwordx4 v[{96+16*h_+4*i}:{99+16*h_+4*i}], v82, {WSR}, s{t+13 if h_ else t+7} offen offset:{1024*i} sc1")
        def st_fin():
            a(f"s_waitcnt vmcnt({n})\nv_lshlrev_b32 v82, 2, v0\nv_add_u32 v82, {Q1_TAB}, v82")
            for h_ in range(2):
                row_stats(a, 96 + 16*h_, 84, 85)
                a(f"ds_write_b32 v82, v84 offset:{256*h_}\nds_write_b32 v82, v85 offset:{512+256*h_}")
            a("s_waitcnt lgkmcnt(0)")
        st = {0: lambda: (flags_zero(a), nonce_issue(a, 81, 82)), 2: lambda: nonce_get(a, 80, 81, 82, n), C.c_i: lambda: census(a, 80, 81, True), C.c_c: st_issue, C.c_f: st_fin}
        if c in st:
            l = a.uid("w7")
            a(f"s_cmp_lg_u32 s{sW}, 7\ns_cbranch_scc1 {l}")
            st[c](); a.label(l)
            LD.q += [("x7", "x", 99)] * {0: 4, 2: 1, C.c_i: 1, C.c_c: 8, C.c_f: 0}[c]
    if C.q1prio: a("s_setprio 2")
    stamp(a, 1)
    ph = Phase("q1", 10, 4, 4, emitA, emitW, lambda c: ((c % 4)*16384, (c % 4)*16384 + 16384), lambda c: (qkW(c), qkW(c) + 16384),
               None, C.bud_q1, after_bar=xstats, dbg=(C.dbg == 1))
    def waitfn(w):
        l1 = a.uid("pw"); l2 = a.uid("pw"); l3 = a.uid("pw")
        a(f"s_cmp_eq_u32 s{sW}, 4\ns_cbranch_scc1 {l1}\ns_cmp_eq_u32 s{sW}, 7\ns_cbranch_scc1 {l2}\ns_waitcnt vmcnt({w+5})\ns_branch {l3}")
        a.label(l1); a(f"s_waitcnt vmcnt({w+16})\ns_branch {l3}")
        a.label(l2); a(f"s_waitcnt vmcnt({w})")
        a.label(l3)
    ph.look = C.look_q1
    LD.run(ph, None)
    a(f"""
    v_and_b32 v1, 15, v0
    v_lshlrev_b32 v1, 2, v1
    s_lshl_b32 s{sTmp}, s{sLW}, 7
    v_add_u32 v1, s{sTmp}, v1
    v_add_u32 v2, {Q1_CS}, v1
    s_lshl_b32 s{sTmp}, s{sWG}, 9
    s_add_u32 s{sTmp}, s{sTmp}, {WS_CSQ}
    s_setprio 0
    s_nop 3
    ds_write_b32 v2, v32
    ds_write_b32 v2, v36 offset:64
    buffer_store_dword v32, v1, {WSR}, s{sTmp} offen
    buffer_store_dword v36, v1, {WSR}, s{sTmp} offen offset:64
    s_waitcnt lgkmcnt(0)
    """)
    stamp(a, 2)
    a("s_barrier")
    read_nonce_mode(a)

def other_srds(a):
    srd(a, R_WS, P_WS, WS_END)
    srd(a, R_WG, P_WG, D*F*2)
    srd(a, R_WU, P_WU, D*F*2)
    srd(a, R_T, P_WS, WS_END)

def qkv1_idle(a):
    l2 = a.uid("idl"); l1 = a.uid("idl"); l3 = a.uid("idl"); l4 = a.uid("idl"); lj = a.uid("idl")
    tj = 84; K = NAME + "_kernel"
    a(f"v_lshlrev_b32 v5, 4, v0\ns_cmp_lt_u32 s{sW}, 4\ns_cbranch_scc1 {l1}")
    a(f"s_xor_b32 s{tj}, s{sW}, 7\ns_or_b32 s{tj}, s{tj}, s{T}\ns_cmp_lg_u32 s{tj}, 0\ns_cbranch_scc1 {l3}")
    nonce_put(a)
    a.label(l3)
    a(f"s_getpc_b64 s[{tj+4}:{tj+5}]")
    a.label("L_pc")
    a(f"""
    s_sub_u32 s{tj+4}, s{tj+4}, L_pc-{K}
    s_subb_u32 s{tj+5}, s{tj+5}, 0
    s_and_b32 s{tj}, s{T}, 1
    s_lshl_b32 s{tj}, s{tj}, 2
    s_add_u32 s{tj}, s{tj}, s{sW}
    s_sub_u32 s{tj}, s{tj}, 4
    s_lshl_b32 s{tj}, s{tj}, 13
    v_lshlrev_b32 v1, 7, v0
    v_add_u32 v2, s{tj}, v1
    global_load_dword v251, v2, s[{tj+4}:{tj+5}]
    """)
    a(f"s_lshl_b32 s{tj}, s{T}, 2\ns_add_u32 s{tj}, s{tj}, s{sW}\ns_add_u32 s{tj+2}, s{tj}, {60 - 4}\ns_lshl_b32 s{tj+2}, s{tj+2}, 13")
    for i in range(4):
        if C.q1pf: a(f"buffer_load_dword v251, v1, {R(R_WQ)}, s{tj+2} offen\ns_add_u32 s{tj+2}, s{tj+2}, {64*8192}")
        if i == 0: a("s_barrier")
    a(f"s_branch {l2}")
    a.label(l1)
    xstat_fin(a)
    a(f"s_cmp_lg_u32 s{sW}, 0\ns_cbranch_scc1 {l4}")
    flags_zero(a)
    a.label(l4)
    a(f"s_waitcnt vmcnt(0)\ns_barrier\ns_cmp_lg_u32 s{sW}, 0\ns_cbranch_scc1 {l2}")
    nonce_issue(a, 81, 82)
    nonce_get(a, 80, 81, 82)
    a.label(l2)
    a(f"s_mul_i32 s{tj}, s{T}, 10\ns_add_u32 s{tj+7}, s{tj}, 10\ns_add_u32 s{tj}, s{tj}, s{sW}\ns_mul_i32 s{tj+1}, s{sW}, 5120")
    a.label(lj)
    projjob_issue(a, tj, tj+1, tj)
    a("s_waitcnt vmcnt(0)")
    projjob_finish(a, tj+1, tj)
    a(f"s_add_u32 s{tj}, s{tj}, 8\ns_cmp_lt_u32 s{tj}, s{tj+7}\ns_cbranch_scc1 {lj}")
    l5 = a.uid("idl")
    a(f"s_waitcnt vmcnt(0)\ns_barrier\ns_cmp_lg_u32 s{sW}, 0\ns_cbranch_scc1 {l5}")
    a(f"""
    s_lshl_b32 s{tj}, s{sWG}, 7
    s_add_u32 s{tj}, s{tj}, {L_FG + 36}
    v_mov_b32 v1, 0
    v_mov_b32 v2, s{sEP}
    """)
    flag_store(a, "sc1", tj)
    census(a, 80, 81, True)
    census(a, 80, 81, False)
    a.label(l5)
    a("s_barrier")
    read_nonce_mode(a)

def phase_attn(a, SB, ld_label):
    fast = SB == ""
    t = T
    CH = 20480
    sQP, sKH, sSrc, sDst, sTmp, sC, sHB = t, t+1, t+2, t+3, t+4, t+5, t+8
    sEX = t+6
    sWs, sWd, sPF = t+9, t+10, t+11
    tj = 84; sJob, sScr = tj, tj + 1
    QAREA = 102400
    QA, QB = 16, 22
    NM, SS, PP, OO, KF, VF = 32, 64, 96, 112, 144, 160
    vK, vK8, vV = 2, 3, 4
    DUM = 176; XF = 177; vX1, vX2, vO = 28, 29, 30; sO, sFB = 96, 99; XB = 102400; PR = 32
    assert C.c0
    KVB = 'nt sc1' if C.nt_kv else 'sc1'
    stamp(a, 4)
    a(f"""
    s_and_b32 s{sQP}, s{sW}, 3
    s_lshr_b32 s{sKH}, s{sW}, 2
    v_lshlrev_b32 v5, 4, v0
    s_mul_i32 s{sHB}, s{sR}, {HEADB}
    s_add_u32 s{sHB}, s{sHB}, s{sLO}
    s_and_b32 s{sTmp}, s{sQP}, 1
    s_mul_i32 s{sSrc}, s{sTmp}, 5120
    s_mul_i32 s{sDst}, s{sTmp}, 10240
    s_lshr_b32 s{sTmp}, s{sQP}, 1
    s_mul_i32 s{sC}, s{sTmp}, 5120
    s_add_u32 s{sDst}, s{sDst}, s{sC}
    s_mul_i32 s{sC}, s{sTmp}, {ACT}
    s_add_u32 s{sSrc}, s{sSrc}, s{sC}
    s_add_u32 s{sSrc}, s{sSrc}, s{sHB}
    s_add_u32 s{sSrc}, s{sSrc}, {L_K}
    """)
    def kv_issue(j):
        GF.need(0x01010101 << j)
        a(f"s_add_u32 s{sTmp}, s{sG}, {j}\ns_and_b32 s{sTmp}, s{sTmp}, 7\ns_mul_i32 s{sTmp}, s{sTmp}, 10240\ns_add_u32 s{sTmp}, s{sTmp}, s{sSrc}")
        return lin_dma(a, 5, sTmp, 0, sDst, j * CH, 5, KVB)
    def init():
        a(f"""
        v_lshrrev_b32 v14, 5, v0
        v_and_b32 v15, 31, v0
        v_lshlrev_b32 v6, 3, v15
        s_mul_i32 s{sTmp}, s{sKH}, 10240
        v_add_u32 v{vK}, s{sTmp}, v5
        v_add_u32 v{vK8}, s{sTmp}, v6
        v_mul_u32_u24 v7, 320, v14
        v_lshl_add_u32 v7, v15, 4, v7
        v_add_u32 v{vV}, s{sTmp}, v7
        s_mov_b32 s{sEX}, 0x000fffff
        s_mov_b32 s{sEX+1}, 0x000fffff
        s_mov_b32 s{t+16}, -1
        s_mov_b32 s{t+17}, 0
        v_and_b32 v9, 27, v0
        v_cmp_eq_u32 vcc, 24, v9
        v_mov_b32 v8, 0x3f803f80
        s_nop 0
        v_cndmask_b32 v8, 0, v8, vcc
        v_mov_b32 v9, v8
        v_lshlrev_b32 v13, 7, v0
        v_mov_b32 v12, 0
        """)
        for i in range(0, 16, 2): a(f"v_mov_b64 v[{VF+i}:{VF+i+1}], v[8:9]")
        for i in range(0, 32, 2): a(f"v_mov_b64 v[{OO+i}:{OO+i+1}], 0")
        for i in range(0, 8, 2): a(f"v_mov_b64 v[{PP+8+i}:{PP+8+i+1}], 0")
        a(f"v_mov_b64 v[{QA+4}:{QA+5}], 0\nv_mov_b64 v[{QB+4}:{QB+5}], 0")
        a(f"""
        s_mul_i32 s{sC}, s{sQP}, 7168
        s_add_u32 s{sC}, s{sC}, {XB}
        v_add_u32 v{vX1}, s{sC}, v5
        v_lshrrev_b32 v{vX2}, 1, v5
        v_add_u32 v{vX2}, s{sC}, v{vX2}
        s_lshl_b32 s{sTmp}, s{sQP}, 2
        s_add_u32 s{sTmp}, s{sTmp}, {XB + 28672}
        v_mov_b32 v{XF}, s{sTmp}
        s_mul_i32 s{sTmp}, s{sR}, 5
        v_add_u32 v{vO}, s{sTmp}, v14
        v_lshrrev_b32 v10, 1, v{vO}
        v_and_b32 v{vO}, 1, v{vO}
        v_lshlrev_b32 v{vO}, 3, v{vO}
        v_lshl_add_u32 v{vO}, v10, 9, v{vO}
        v_lshl_add_u32 v{vO}, v15, 4, v{vO}
        s_lshl_b32 s{sTmp}, s{sG}, 2
        s_add_u32 s{sTmp}, s{sTmp}, s{sQP}
        s_mul_i32 s{sO}, s{sTmp}, 81920
        {"" if fast else f"s_add_u32 s{sO}, s{sO}, s{sLO}"}
        s_add_u32 s{sO}, s{sO}, {L_O}
        s_add_u32 s{sO+1}, s{sO}, 40960
        s_mov_b32 s{sFB}, 0
        """)
        if C.c0:
            for st_ in range(2): a(f"v_mov_b32 v{KF+8*st_+4}, 0x3f803f80\nv_mov_b32 v{KF+8*st_+5}, 0x3f80")
    init()
    l0 = a.uid("att_old"); l1 = a.uid("att_j")
    a(f"s_cmp_eq_u32 s{sKH}, 0\ns_cbranch_scc1 {l0}")
    a(f"""
    v_and_b32 v10, 1, v0
    v_mul_u32_u24 v10, 19, v10
    s_mul_i32 s{sTmp}, s{sR}, 20
    v_add_u32 v10, s{sTmp}, v10
    v_lshrrev_b32 v10, 7, v10
    v_lshlrev_b32 v10, 5, v10
    s_lshr_b32 s{sTmp}, s{sQP}, 1
    s_and_b32 s{sC}, s{sQP}, 1
    s_lshl_b32 s{sPF}, s{sTmp}, 9
    s_lshl_b32 s{sWs}, s{sC}, 2
    s_add_u32 s{sPF}, s{sPF}, s{sWs}
    v_and_b32 v11, 2, v0
    v_lshl_add_u32 v11, v11, 2, v10
    v_add_u32 v11, s{sPF}, v11
    s_mul_i32 s{sPF}, s{sTmp}, 160
    s_lshl_b32 s{sWs}, s{sC}, 9
    s_add_u32 s{sPF}, s{sPF}, s{sWs}
    s_add_u32 s{sPF}, s{sPF}, 160
    v_and_b32 v12, 6, v0
    v_lshl_add_u32 v12, v12, 1, v10
    v_add_u32 v12, s{sPF}, v12
    v_cmp_gt_u32 vcc, 8, v0
    s_lshl_b32 s{sGO}, s{sG}, 10
    s_add_u32 s{sGO}, s{sGO}, {WS_FL}
    v_cndmask_b32 v12, v12, v11, vcc
    s_add_u32 s{sGW}, s{sEP}, 1
    s_mul_i32 s{t+14}, s{sG}, 10240
    s_add_u32 s{t+14}, s{t+14}, s{sSrc}
    """)
    GL = Gate(a, 12, 11); GL.reset()
    a(f"""
    s_mul_i32 s{sC}, s{sQP}, 2560
    s_add_u32 s{sPF}, s{sC}, {QAREA}
    s_mul_i32 s{sTmp}, s{sG}, 10240
    s_add_u32 s{sTmp}, s{sTmp}, s{sC}
    s_add_u32 s{sTmp}, s{sTmp}, s{sHB}
    """)
    a(f"s_add_u32 s{sC}, s{sTmp}, 1280")
    if fast and C.qloc:
        a(f"""
        s_lshl_b32 s{sWs}, s{sG}, 2
        s_add_u32 s{sWs}, s{sWs}, s{sQP}
        s_mul_i32 s{sWs}, s{sWs}, {2*F*64}
        s_mul_i32 s{sWd}, s{sR}, 1280
        s_add_u32 s{sWs}, s{sWs}, s{sWd}
        s_add_u32 s{sWs}, s{sWs}, {L_Q + 57344}
        s_add_u32 s{sWd}, s{sWs}, {F*64}
        s_cmp_lg_u32 s{sL}, 0
        s_cselect_b32 s{sTmp}, s{sWs}, s{sTmp}
        s_cselect_b32 s{sC}, s{sWd}, s{sC}
        """)
    GL.need(0xff)
    for x, sr in ((0, sTmp), (1, sC)):
        a(f"""
        s_add_u32 m0, s{sPF}, {1280*x}
        s_mov_b64 exec, -1
        buffer_load_dwordx4 v5, {WSR}, s{sr} offen {KVB} lds
        s_mov_b64 exec, 0xffff
        buffer_load_dwordx4 v5, {WSR}, s{sr} offen offset:1024 {KVB} lds
        """)
    a("s_mov_b64 exec, -1")
    GL.need(0xff00)
    stamp(a, 5)
    lv = a.uid("att_v")
    a(f"s_cmp_ge_u32 s{sQP}, 2\ns_cbranch_scc1 {lv}")
    lin_dma(a, 5, t+14, 0, sDst, 0, 2, KVB)
    a(f"s_waitcnt vmcnt(0)")
    lin_dma(a, 5, t+14, 2048, sDst, 2048, 3, KVB)
    a(f"s_branch {l1}")
    a.label(lv)
    lin_dma(a, 5, t+14, 0, sDst, 0, C.vpre, KVB)
    a(f"s_waitcnt vmcnt({C.vpre})\ns_branch {l1}")
    a.label(l0)
    a(f"""
    s_setprio 1
    v_add_u32 v10, s{sG}, v0
    v_and_b32 v10, 7, v10
    v_bfe_u32 v11, v0, 3, 1
    v_mul_u32_u24 v11, 19, v11
    s_mul_i32 s{sTmp}, s{sR}, 20
    v_add_u32 v11, s{sTmp}, v11
    v_lshrrev_b32 v11, 7, v11
    v_lshl_add_u32 v10, v10, 5, v11
    s_and_b32 s{sTmp}, s{sQP}, 1
    s_lshl_b32 s{sTmp}, s{sTmp}, 4
    s_lshr_b32 s{sC}, s{sQP}, 1
    s_mul_i32 s{sC}, s{sC}, 5
    s_add_u32 s{sTmp}, s{sTmp}, s{sC}
    s_add_u32 s{sTmp}, s{sTmp}, 5
    v_add_u32 v10, s{sTmp}, v10
    v_lshlrev_b32 v12, 7, v10
    v_lshrrev_b32 v11, 4, v0
    v_lshl_add_u32 v12, v11, 2, v12
    s_and_b32 s{sWs}, s{sR}, 7
    s_mul_i32 s{sWs}, s{sWs}, 102400
    s_mul_i32 s{sWd}, s{sW}, 5120
    s_add_u32 s{sWs}, s{sWs}, s{sWd}
    s_add_u32 s{sWs}, s{sWs}, {WS_WTO}
    s_add_u32 s{sGO}, s{sLO}, {L_FG}
    s_add_u32 s{sGW}, s{sEP}, 1
    """)
    def cpf(lo, hi):
        l = a.uid("cpf"); pc = a.uid("pc")
        a(f"s_or_b32 s{sC}, s{sL}, s{sW}\ns_cmp_lg_u32 s{sC}, 0\ns_cbranch_scc1 {l}\ns_getpc_b64 s[{t+12}:{t+13}]")
        a.label(pc)
        a(f"""
        s_sub_u32 s{t+12}, s{t+12}, {pc}-{NAME}_kernel
        s_subb_u32 s{t+13}, s{t+13}, 0
        s_lshl_b32 s{sC}, s{sR}, 11
        s_add_u32 s{sC}, s{sC}, {lo}-{NAME}_kernel
        v_add_u32 v{PV+2}, s{sC}, v13
        v_min_u32 v{PV+2}, {hi}-{NAME}_kernel, v{PV+2}
        s_mov_b64 exec, 0xffff
        global_load_dword v{DUM}, v{PV+2}, s[{t+12}:{t+13}]
        s_mov_b64 exec, -1
        """)
        a.label(l)
    if fast and C.cpf: cpf("L_fast", "L_fast_post")
    a.label(l1)
    GF = Gate(a, 12, PV, fold=True, sleep=2)
    a(f"""
    s_mul_i32 s{sC}, s{sQP}, 2560
    s_add_u32 s{sC}, s{sC}, {QAREA}
    v_add_u32 v10, s{sC}, v5
    v_add_u32 v11, s{sC}, v6
    s_barrier
    ds_read_b128 v[{QA}:{QA+3}], v10
    ds_read_b128 v[{QB}:{QB+3}], v10 offset:1280
    s_mov_b32 exec_hi, 0
    ds_read_b64 v[{QA+4}:{QA+5}], v11 offset:1024
    ds_read_b64 v[{QB+4}:{QB+5}], v11 offset:{1280+1024}
    s_mov_b32 exec_hi, -1
    """)
    stamp(a, 6)
    l1 = a.uid("att_ap")
    a(f"s_cmp_lg_u32 s{sKH}, 0\ns_cbranch_scc1 {l1}")
    if not C.gfl: GF.load()
    a.label(l1)
    l1 = a.uid("att_v2")
    a(f"s_cmp_lt_u32 s{sW}, 6\ns_cbranch_scc1 {l1}")
    lin_dma(a, 5, t+14, 1024*C.vpre, sDst, 1024*C.vpre, 5 - C.vpre, KVB)
    a.label(l1)
    base = [0]
    def rdK(st, c, kt):
        off = c * CH + kt * 1280 - base[0]
        assert 0 <= off and off + 1024 < 65536
        b = KF + 8*st
        if C.c0: return [f"s_mov_b64 exec, s[{t+16}:{t+17}]", f"ds_read_b64 v[{b+4}:{b+5}], v{vK8} offset:{off+1024}", "s_mov_b64 exec, -1", f"ds_read_b128 v[{b}:{b+3}], v{vK} offset:{off}"]
        return [f"ds_read_b128 v[{b}:{b+3}], v{vK} offset:{off}", f"ds_read_b64 v[{b+4}:{b+5}], v{vK8} offset:{off+1024}"]
    def rdV(st, c, kt):
        off = c * CH + 5120 + kt * 1280 - base[0]
        assert 0 <= off and off + 640 < 65536
        b = VF + 8*st
        return [f"s_mov_b64 exec, s[{sEX}:{sEX+1}]", f"ds_read_b128 v[{b}:{b+3}], v{vV} offset:{off}",
                f"ds_read_b128 v[{b+4}:{b+7}], v{vV} offset:{off+640}", f"s_mov_b64 exec, -1"]
    def qk(x, st, c=None):
        b = KF + 8*st; q = (QA, QB)[x]; sd = SS + 16*x
        cc = v(NM + 16*x, 16) if (c is None and not C.c0) else '0'
        if C.x8f: return [f"v_mfma_f32_32x32x8_bf16 {v(sd,16)}, {v(b+4,2)}, {v(q+4,2)}, 0", f"v_mfma_f32_32x32x16_bf16 {v(sd,16)}, {v(b,4)}, {v(q,4)}, {v(sd,16)}"]
        return [f"v_mfma_f32_32x32x16_bf16 {v(sd,16)}, {v(b,4)}, {v(q,4)}, {cc}",
                f"v_mfma_f32_32x32x8_bf16 {v(sd,16)}, {v(b+4,2)}, {v(q+4,2)}, {v(sd,16)}"]
    def pv(x, st):
        b = VF + 8*st; p = PP + 8*x; o = OO + 16*x
        return [f"v_mfma_f32_32x32x16_bf16 {v(o,16)}, {v(b,4)}, {v(p,4)}, {v(o,16)}",
                f"v_mfma_f32_32x32x16_bf16 {v(o,16)}, {v(b+4,4)}, {v(p+4,4)}, {v(o,16)}"]
    def sm(x):
        sd = SS + 16*x; p = PP + 8*x; r = []
        for i in range(8):
            r.append(f"v_exp_f32 v{sd+2*i}, v{sd+2*i}")
            r.append(f"v_exp_f32 v{sd+2*i+1}, v{sd+2*i+1}")
            if i > 0: r.append(f"v_cvt_pk_bf16_f32 v{p+i-1}, v{sd+2*i-2}, v{sd+2*i-1}")
        r.append(f"v_cvt_pk_bf16_f32 v{p+7}, v{sd+14}, v{sd+15}")
        return r
    def setm():
        for x in range(2): a(f"v_mov_b32 v{10+x}, v{8+x}")
        a("s_nop 0")
        for x in range(2): a(f"v_permlane32_swap_b32 v{8+x}, v{10+x}")
        a("s_nop 0")
        for x in range(2): a(f"v_max_f32 v{8+x}, v{8+x}, v{10+x}")
        if C.c0:
            a("s_mov_b32 exec_lo, 0")
            for x in range(2):
                q = (QA, QB)[x] + 4; r = NM + 4*x
                a(f"""
                v_sub_f32 v{r}, 0, v{8+x}
                v_and_b32 v{r+1}, 0xffff0000, v{r}
                v_sub_f32 v{r+2}, v{r}, v{r+1}
                v_and_b32 v{r+3}, 0xffff0000, v{r+2}
                v_sub_f32 v{r+2}, v{r+2}, v{r+3}
                v_lshrrev_b32 v{r+1}, 16, v{r+1}
                v_or_b32 v{q}, v{r+1}, v{r+3}
                v_lshrrev_b32 v{q+1}, 16, v{r+2}
                """)
            a("s_mov_b32 exec_lo, -1")
            return
        for x in range(2):
            a(f"v_sub_f32 v{NM+16*x}, 0, v{8+x}\nv_sub_f32 v{NM+16*x+1}, 0, v{8+x}")
            for i in range(2, 16, 2): a(f"v_mov_b64 v[{NM+16*x+i}:{NM+16*x+i+1}], v[{NM+16*x}:{NM+16*x+1}]")
    for x in rdK(0, 0, 0): a(x)
    a("s_waitcnt lgkmcnt(0)")
    m = qk(0, 0, "0") + qk(1, 0, "0")
    for i in (0, 1, 2, 3): a(m[i])
    a.nop(10)
    for x in range(2):
        sd = SS + 16*x
        a(f"v_max3_f32 v{8+x}, v{sd}, v{sd+1}, v{sd+2}")
        for i in range(3, 15, 2):
            a(f"v_max3_f32 v{8+x}, v{8+x}, v{sd+i}, v{sd+i+1}")
        a(f"v_max_f32 v{8+x}, v{8+x}, v{sd+15}")
    setm()
    for i in range(16): a(f"v_sub_f32 v{SS+i}, v{SS+i}, v8")
    l1 = a.uid("att_w0"); l2 = a.uid("att_w1")
    sDone = t + 15
    a(f"s_cmp_eq_u32 s{sKH}, 0\ns_cbranch_scc1 {l1}")
    if C.bc:
        assert C.vpre >= 2
        a(f"s_waitcnt vmcnt(3)\ns_cmp_ge_u32 s{sQP}, 2\ns_cbranch_scc1 {l2}b\ns_waitcnt vmcnt(2)")
        a.label(l2 + "b")
    else: a("s_waitcnt vmcnt(0)")
    a(f"s_barrier\ns_branch {l2}")
    a.label(l1)
    if C.gfl: GF.load()
    a("s_barrier")
    GF.upd()
    a(f"s_and_b32 s{sDone}, s{sNR}, 0x02020202\ns_cbranch_scc1 {l2}")
    GF.ok = 0x02020202; kv_issue(1); GF.ok = 0
    a.label(l2)
    stamp(a, 7)
    cstamp(a, 0)
    def l0only(fn):
        l = a.uid("l0")
        a(f"s_cmp_lg_u32 s{sL}, 0\ns_cbranch_scc1 {l}")
        fn(); a.label(l)
    def l2pf(i0, n):
        for i in range(i0, min(i0 + n, (C.l2pf + 3) // 4)):
            l = a.uid("pfs")
            a(f"""
            s_cmp_ge_u32 s{sW}, {C.l2pf - 4*i}
            s_cbranch_scc1 {l}
            s_lshr_b32 s{sPF}, s{sR}, 4
            s_mul_i32 s{sPF}, s{sPF}, {15 if C.rot_gu else 1}
            s_mul_i32 s{sC}, s{sW}, {1 if C.rot_gu else 2}
            s_add_u32 s{sPF}, s{sPF}, s{sC}
            s_add_u32 s{sPF}, s{sPF}, {4*i if C.rot_gu else 8*i}
            s_lshl_b32 s{sPF}, s{sPF}, 13
            s_and_b32 s{sC}, s{sR}, 15
            s_mul_i32 s{sC}, s{sC}, 245760
            s_add_u32 s{sPF}, s{sPF}, s{sC}
            s_add_u32 s{sPF}, s{sPF}, {WS_WTG}
            buffer_load_dword v{DUM}, v13, {WSR}, s{sPF} offen
            """)
            a.label(l)
    def evpf(i):
        a(f"""
        s_lshr_b32 s{sPF}, s{sR}, 4
        s_lshl_b32 s{sC}, s{sW}, 1
        s_add_u32 s{sPF}, s{sPF}, s{sC}
        s_mul_i32 s{sPF}, s{sPF}, 24576
        s_and_b32 s{sC}, s{sR}, 15
        s_mul_i32 s{sC}, s{sC}, 245760
        s_add_u32 s{sPF}, s{sPF}, s{sC}
        s_add_u32 s{sPF}, s{sPF}, {WS_WTG + 49152 + 8192*i}
        buffer_load_dword v{DUM}, v13, {WSR}, s{sPF} offen
        """)
    if C.ev1:
        l2pf = lambda i0, n: [evpf(i) for i in range(i0, min(i0 + n, C.ev1))]
    def wwo(c): lin_dma(a, 5, sWs, c*20480, sWd, c*20480, 5, 'nt' if C.nt_wo else '')
    def fp():
        a(f"""
        s_lshl_b32 s{sC}, s{sWG}, 5
        s_add_u32 s{sC}, s{sC}, s{sW}
        s_lshl_b32 s{sC}, s{sC}, 2
        s_add_u32 s{sC}, s{sC}, {L_FG + 16}
        v_mov_b32 v10, 0
        v_mov_b32 v11, s{sEP}
        s_mov_b64 exec, 1
        buffer_store_dword v11, v10, {WSR}, s{sC} offen sc1
        s_mov_b64 exec, -1
        """)
    def cs1():
        l = a.uid("cs")
        a(f"s_cmp_lg_u32 s{sW}, 3\ns_cbranch_scc1 {l}\ns_mov_b32 exec_hi, 0xffff")
        a(f"s_and_b32 s{sC}, s{sR}, 15\ns_mul_i32 s{sC}, s{sC}, 768\ns_add_u32 s{sC}, s{sC}, {WS_CSP}")
        for i in range(10):
            a(f"buffer_load_dwordx4 v[{PV+4*i}:{PV+3+4*i}], v5, {WSR}, s{sC} offen\ns_add_u32 s{sC}, s{sC}, 12288")
        a("s_mov_b32 exec_hi, -1")
        a.label(l)
    def cs2():
        l = a.uid("cs")
        a(f"s_cmp_lg_u32 s{sW}, 3\ns_cbranch_scc1 {l}\ns_mov_b32 exec_hi, 0xffff")
        for i in range(1, 10):
            a(f"v_pk_add_f32 v[{PV}:{PV+1}], v[{PV}:{PV+1}], v[{PV+4*i}:{PV+1+4*i}]\nv_pk_add_f32 v[{PV+2}:{PV+3}], v[{PV+2}:{PV+3}], v[{PV+2+4*i}:{PV+3+4*i}]")
        a(f"s_mul_i32 s{sC}, s{sWG}, 768\ns_add_u32 s{sC}, s{sC}, {WS_CSG}")
        a(f"buffer_store_dwordx4 v[{PV}:{PV+3}], v5, {WSR}, s{sC} offen\ns_mov_b32 exec_hi, -1")
        a.label(l)
    def fpw():
        a(f"s_lshl_b32 s{sC}, s{sW}, 13\ns_add_u32 s{sC}, s{sC}, {L_FG + 16}")
        poll(a, 13, PV, f"s{sC}", f"s{sEP}", sleep=2, wide=True)
    def wow():
        a(f"v_and_b32 v{PV+1}, 15, v0\nv_lshlrev_b32 v{PV+1}, 11, v{PV+1}\ns_mov_b32 s{sC}, {L_FG + 15*128 + 36}")
        poll(a, PV + 1, PV, f"s{sC}", f"s{sEP}", sleep=2)
    def l1only(fn):
        l = a.uid("l1")
        a(f"s_cmp_eq_u32 s{sL}, 0\ns_cbranch_scc1 {l}")
        fn(); a.label(l)
    def hook(j):
        if j == 1:
            kv_issue(2); kv_issue(3); a("s_waitcnt vmcnt(10)")
        GF.ok &= 0x0f0f0f0f
        W = lambda n_: a(f"s_waitcnt vmcnt({n_})")
        if j == 2: l0only(lambda: (W(0), prep(a, 0))); l1only(lambda: (W(5), kv_issue(4)))
        if j == 3:
            l0only(lambda: (kv_issue(4), kv_issue(5))); GF.ok &= 0x0f0f0f0f
            l1only(lambda: (W(5), kv_issue(5), kv_issue(6)))
        if j == 4: l0only(lambda: (W(5), prep(a, 1))); l1only(lambda: (W(10), kv_issue(7)))
        if j == 5: l0only(lambda: (wow(), fp(), kv_issue(6), kv_issue(7))); l1only(lambda: (W(10), wwo(0), wwo(1), l2pf(0, 1)))
        if j == 6:
            l0only(lambda: (W(0), wwo(0), wwo(1))); l1only(lambda: W(10))
            wwo(2); wwo(3)
            if fast and C.cpf: cpf("L_fast_tail", "L_fast_end")
            l1only(lambda: l2pf(1, 1))
        if j == 7:
            def evearly():
                a(f"""
                s_lshr_b32 s{sPF}, s{sR}, 4
                s_lshl_b32 s{sC}, s{sW}, 1
                s_add_u32 s{sPF}, s{sPF}, s{sC}
                s_mul_i32 s{sPF}, s{sPF}, {24*128}
                s_add_u32 s{sPF}, s{sPF}, {L_FG + 48*128 + 16}
                s_and_b32 s{sC}, s{sR}, 15
                s_mul_i32 s{sC}, s{sC}, 6
                v_and_b32 v{PV+1}, 1, v0
                v_mul_u32_u24 v{PV+1}, 5, v{PV+1}
                v_add_u32 v{PV+1}, s{sC}, v{PV+1}
                v_lshrrev_b32 v{PV+1}, 2, v{PV+1}
                v_lshlrev_b32 v{PV+1}, 7, v{PV+1}
                v_bfe_u32 v{PV}, v0, 1, 1
                v_mad_u32_u24 v{PV+1}, v{PV}, 12, v{PV+1}
                """)
                poll(a, PV + 1, PV, f"s{sPF}", f"s{sEP}", sleep=2)
                evpf(2)
            l0only(lambda: (fpw(), evearly() if C.evh else None))
            wwo(4)
            l1only(lambda: l2pf(2, 2))
        if fast and j == C.oxh:
            a(f"""
            s_lshl_b32 s{sPF}, s{sWG}, 1
            s_and_b32 s{sC}, s{sW}, 1
            s_add_u32 s{sPF}, s{sPF}, s{sC}
            s_mul_i32 s{sPF}, s{sPF}, 5120
            s_mov_b32 s{sC}, {L_O}
            s_bitcmp1_b32 s{sW}, 1
            s_cselect_b32 s{sC}, {L_X1}, s{sC}
            s_add_u32 s{sPF}, s{sPF}, s{sC}
            s_mov_b32 exec_hi, 0xff
            buffer_load_dword v{DUM}, v13, {WSR}, s{sPF} offen
            s_lshl_b32 s{sTmp}, s{sWG}, 9
            s_add_u32 s{sTmp}, s{sTmp}, s{sLO}
            s_add_u32 s{sTmp}, s{sTmp}, {L_ST1}
            s_bitcmp1_b32 s{sW}, 0
            s_cselect_b32 s{sC}, {L_ST2 - L_ST1}, 0
            s_add_u32 s{sTmp}, s{sTmp}, s{sC}
            s_mov_b64 exec, 15
            buffer_load_dword v{DUM}, v13, {WSR}, s{sTmp} offen
            s_mov_b64 exec, -1
            """)
        if fast and j == C.hth:
            a(f"""
            s_lshl_b32 s{sPF}, s{sWG}, 2
            s_add_u32 s{sPF}, s{sPF}, s{sQP}
            s_mul_i32 s{sPF}, s{sPF}, 6144
            s_add_u32 s{sPF}, s{sPF}, {L_Q}
            s_mov_b32 exec_hi, 0xffff
            buffer_load_dword v{DUM}, v13, {WSR}, s{sPF} offen
            s_mov_b32 exec_hi, -1
            """)
    def xreads():
        r = [f"ds_read_b32 v31, v{XF}"]
        for x in range(2): r.append(f"ds_read_b64 v[{PR+12+16*x}:{PR+13+16*x}], v{vX2} offset:{3584*x+3072}")
        for x in range(2):
            for i in range(3): r.append(f"ds_read_b128 v[{PR+16*x+4*i}:{PR+16*x+4*i+3}], v{vX1} offset:{3584*x+1024*i}")
        return r
    outl = []
    for c in range(8):
        for kt in range(4):
            st = kt & 1
            last = c == 7 and kt == 3
            if c == 0 and kt == 1:
                hk = a.uid("att_hk")
                if C.bc:
                    a(f"s_cmp_eq_u32 s{sKH}, 0\ns_cbranch_scc1 {hk}\ns_waitcnt vmcnt(0)\ns_barrier"); a.label(hk + "r")
                else: a(f"s_cmp_eq_u32 s{sKH}, 0\ns_cbranch_scc1 {hk}"); a.label(hk + "r")
                def h0():
                    if C.bc: a("s_barrier")
                    l = a.uid("h0")
                    a(f"s_cmp_eq_u32 s{sDone}, 0\ns_cbranch_scc1 {l}")
                    kv_issue(1)
                    a.label(l)
                outl.append((hk, h0))
            j = c + 1 if (kt == 3 and c < 6) else (7 if (c == 7 and kt == 0) else None)
            if j:
                hk = a.uid("att_hk")
                dstamp(a, 6, 3*j)
                a(f"s_cmp_eq_u32 s{sKH}, 0\ns_cbranch_scc1 {hk}")
                if C.flip and j < 7: a("s_setprio 2")
                a.label(hk + "r")
                dstamp(a, 6, 3*j+1)
                a("s_barrier")
                dstamp(a, 6, 3*j+2)
                cstamp(a, j)
                outl.append((hk, (lambda jj: (lambda: hook(jj)))(j)))
                if j == 7 and C.ev0:
                    hk = a.uid("att_hk")
                    a(f"s_or_b32 s{sC}, s{sKH}, s{sL}\ns_cbranch_scc0 {hk}"); a.label(hk + "r")
                    outl.append((hk, lambda: [evpf(i) for i in range(C.ev0)]))
            if C.flip and 1 <= c < 7 and kt == C.flip - 1: a("s_setprio 1")
            val = sm(0)
            mf = qk(1, st) + pv(1, st ^ 1)
            ex = rdV(st, c, kt)
            if kt == 3 and c in (2, 5):
                base[0] += 3 * CH
                ex += [f"v_add_u32 v{r}, {3*CH}, v{r}" for r in (vK, vK8, vV)]
            if not last: ex += rdK(st ^ 1, c + (kt + 1) // 4, (kt + 1) % 4)
            cut = 4
            if C.c0 and len(ex) == 8: del ex[3]; cut = 6
            a(mf[0]); [a(x) for x in ex[:cut]]; [a(x) for x in val[0:6]]
            a(mf[2]); [a(x) for x in ex[cut:]]; [a(x) for x in val[6:12]]
            a(mf[1]); [a(x) for x in val[12:18]]
            a(mf[3]); [a(x) for x in val[18:]]
            val = sm(1)
            a("s_waitcnt lgkmcnt(0)")
            if not last:
                mf = qk(0, st ^ 1) + pv(0, st)
                a(mf[0]); [a(x) for x in val[0:6]]
                a(mf[2]); [a(x) for x in val[6:12]]
                a(mf[1]); [a(x) for x in val[12:18]]
                a(mf[3]); [a(x) for x in val[18:]]
            else:
                mf = pv(0, st) + pv(1, st)
                a(mf[0]); [a(x) for x in val[0:6]]
                a(mf[1]); [a(x) for x in xreads()]; [a(x) for x in val[6:16]]
                a(mf[2]); [a(x) for x in val[16:]]
                a("s_nop 1"); a(mf[3])
    if fast: a.label("L_fast_tail")
    stamp(a, 8)
    cstamp(a, 8)
    fb = a.uid("att_fb"); comb = a.uid("att_comb"); done = a.uid("att_done"); yng = a.uid("att_y")
    def check():
        a(f"v_mul_f32 v10, {f32(2.0**63)}, v{OO+12}\nv_mul_f32 v11, {f32(2.0**63)}, v{OO+16+12}")
        a(f"v_add_f32 v10, v10, v10\nv_add_f32 v11, v11, v11\nv_mul_f32 v10, 0, v10\nv_mul_f32 v11, 0, v11")
        for i in range(12): a(f"v_fmac_f32 v10, 0, v{OO+i}\nv_fmac_f32 v11, 0, v{OO+16+i}")
        a(f"v_cmp_u_f32 vcc, v10, v11\ns_cbranch_vccnz {fb}")
    a(f"s_cmp_eq_u32 s{sKH}, 0\ns_cbranch_scc1 {yng}")
    def older():
        a.label(yng)
        a.nop(10)
        check()
        a.label(yng + "c")
        a(f"v_mov_b32 v{OO+13}, v8\nv_mov_b32 v{OO+16+13}, v9\nv_mov_b32 v10, s{sEP}")
        for x in range(2):
            for i in range(3):
                a(f"ds_write_b128 v{vX1}, v[{OO+16*x+4*i}:{OO+16*x+4*i+3}] offset:{3584*x+1024*i}")
            a(f"ds_write_b64 v{vX2}, v[{OO+16*x+12}:{OO+16*x+13}] offset:{3584*x+3072}")
        a(f"ds_write_b32 v{XF}, v10")
        l0only(lambda: (cs1(), l2pf(0, C.l2pf0)))
        a("s_waitcnt vmcnt(0) lgkmcnt(0)")
        l0only(cs2)
        a(f"s_setprio 0")
        stamp(a, 9)
    pl = a.uid("att_x")
    a(f"s_waitcnt lgkmcnt(0)\nv_cmp_ne_u32 vcc, s{sEP}, v31\ns_cbranch_vccnz {pl}")
    a.label(pl + "k")
    def respin():
        a.label(comb)
        a(f"s_mov_b32 s{sFB}, 1\ns_cmp_eq_u32 s{sKH}, 0\ns_cbranch_scc1 {yng}c")
        a.label(pl)
        a(f"s_mov_b32 s{t+12}, 0")
        a.label(pl + "l")
        for x in xreads(): a(x)
        a(f"""
        s_waitcnt lgkmcnt(0)
        v_cmp_ne_u32 vcc, s{sEP}, v31
        s_cbranch_vccz {pl}k
        s_add_u32 s{t+12}, s{t+12}, 1
        s_cmp_lt_u32 s{t+12}, {4*SPIN}
        s_cbranch_scc1 {pl}l
        s_branch {pl}k
        """)
    FF = 64
    for x in range(2):
        f = FF + 4*x
        a(f"v_max_f32 v{f+2}, v{8+x}, v{PR+13+16*x}\nv_sub_f32 v{f}, v{8+x}, v{f+2}\nv_sub_f32 v{f+1}, v{PR+13+16*x}, v{f+2}")
    for x in range(2):
        f = FF + 4*x
        a(f"v_exp_f32 v{f}, v{f}\nv_exp_f32 v{f+1}, v{f+1}")
    for x in range(2):
        f = FF + 4*x; o = OO + 16*x; pk = 72 + 6*x
        a(f"v_mul_f32 v{f+2}, v{f}, v{o+12}\nv_fmac_f32 v{f+2}, v{f+1}, v{PR+12+16*x}\nv_rcp_f32 v{f+2}, v{f+2}\ns_nop 0")
        a(f"v_mul_f32 v{f}, v{f}, v{f+2}\nv_mul_f32 v{f+2}, v{f+1}, v{f+2}")
        for i in range(0, 12, 2):
            a(f"v_pk_mul_f32 v[{o+i}:{o+i+1}], v[{o+i}:{o+i+1}], v[{f}:{f+1}] op_sel_hi:[1,0]")
        for i in range(0, 12, 2):
            a(f"v_pk_fma_f32 v[{o+i}:{o+i+1}], v[{PR+16*x+i}:{PR+1+16*x+i}], v[{f+2}:{f+3}], v[{o+i}:{o+i+1}] op_sel_hi:[1,0,1]")
        for i in range(6):
            a(f"v_cvt_pk_bf16_f32 v{pk+i}, v{o+2*i}, v{o+2*i+1}")
        a(f"""
        buffer_store_dwordx2 v[{pk}:{pk+1}], v{vO}, {WSR}, s{sO+x} offen {SB}
        buffer_store_dwordx2 v[{pk+2}:{pk+3}], v{vO}, {WSR}, s{sO+x} offen offset:512 {SB}
        s_mov_b32 exec_hi, 0
        buffer_store_dwordx2 v[{pk+4}:{pk+5}], v{vO}, {WSR}, s{sO+x} offen offset:1024 {SB}
        s_mov_b32 exec_hi, -1
        """)
    nck = a.uid("att_nc")
    a(f"s_cmp_lg_u32 s{sFB}, 0\ns_cbranch_scc1 {nck}")
    check()
    a.label(nck)
    flag_setup(a, 2)
    a("s_setprio 0\ns_waitcnt vmcnt(0)")
    flag_store(a, SB)
    a("s_barrier")
    stamp(a, 9)
    a(f"s_branch {ld_label}")
    for hk, fn in outl:
        a.label(hk); fn(); a(f"s_branch {hk}r")
    respin()
    older()
    def fallback():
        a.label(fb)
        sKb, sVb, sI = t+12, t+13, t+14
        def addr():
            a(f"""
            s_lshr_b32 s{sKb}, s{sI}, 2
            s_lshl_b32 s{sKb}, s{sKb}, 1
            s_add_u32 s{sKb}, s{sKb}, s{sKH}
            s_lshl_b32 s{sKb}, s{sKb}, 2
            s_and_b32 s{sVb}, s{sI}, 3
            s_add_u32 s{sKb}, s{sKb}, s{sVb}
            s_mul_i32 s{sKb}, s{sKb}, 1280
            s_add_u32 s{sKb}, s{sKb}, s{sHB}
            s_add_u32 s{sVb}, s{sKb}, {L_V}
            s_add_u32 s{sKb}, s{sKb}, {L_K}
            buffer_load_dwordx4 v[{KF}:{KF+3}], v5, {WSR}, s{sKb} offen sc1
            s_mov_b32 exec_hi, {0 if C.c0 else -1}
            buffer_load_dwordx2 v[{KF+4}:{KF+5}], v6, {WSR}, s{sKb} offen offset:1024 sc1
            s_mov_b32 exec_hi, -1
            """)
        l1 = a.uid("att_fb1"); l2 = a.uid("att_fb2")
        a(f"s_mov_b32 s{sI}, 0\nv_mov_b32 v8, 0xff800000\nv_mov_b32 v9, 0xff800000")
        a(f"s_mov_b32 exec_lo, 0\nv_mov_b64 v[{QA+4}:{QA+5}], 0\nv_mov_b64 v[{QB+4}:{QB+5}], 0\ns_mov_b32 exec_lo, -1")
        a.label(l1)
        addr()
        a("s_waitcnt vmcnt(0)")
        for x in range(2):
            for m in qk(x, 0, "0"): a(m)
        a.nop(12)
        for x in range(2):
            sd = SS + 16*x
            for i in range(0, 16, 2): a(f"v_max3_f32 v{8+x}, v{8+x}, v{sd+i}, v{sd+i+1}")
        a(f"s_add_u32 s{sI}, s{sI}, 1\ns_cmp_lt_u32 s{sI}, 32\ns_cbranch_scc1 {l1}")
        setm()
        for i in range(32): a(f"v_mov_b32 v{OO+i}, 0")
        a(f"s_mov_b32 s{sI}, 0")
        a.label(l2)
        addr()
        a(f"""
        s_mov_b64 exec, s[{sEX}:{sEX+1}]
        buffer_load_dwordx4 v[{VF}:{VF+3}], v7, {WSR}, s{sVb} offen sc1
        buffer_load_dwordx4 v[{VF+4}:{VF+7}], v7, {WSR}, s{sVb} offen offset:640 sc1
        s_mov_b64 exec, -1
        s_waitcnt vmcnt(0)
        """)
        for x in range(2):
            for m in qk(x, 0): a(m)
        a.nop(12)
        for x in range(2):
            for i in sm(x): a(i)
        a("s_nop 1")
        for x in range(2):
            for m in pv(x, 0): a(m)
        a(f"s_add_u32 s{sI}, s{sI}, 1\ns_cmp_lt_u32 s{sI}, 32\ns_cbranch_scc1 {l2}")
        a.nop(12)
        a(f"s_branch {comb}")
    return fallback

def xoff(SB, which):
    if SB == "": return (False, L_X1)
    return (True, L_X1) if which == 1 else (False, L_X2)
def add_x(a, dst, src, SB, which):
    lo, c = xoff(SB, which)
    a(f"s_add_u32 s{dst}, s{src}, {c}")
    if lo: a(f"s_add_u32 s{dst}, s{dst}, s{sLO}")

def proj_compute(a, down, SB, end_label):
    fast = SB == ""
    t = T
    K = F if down else D
    NCH = K // 128
    sRT, sCT = t, t+1
    st0 = 13 if down else 10
    sF, sRM, sST, sA, sA1, sThr, sSel = t+4, t+5, t+12, t+2, t+3, t+9, t+10
    NWS = 3 if down else C.wo_sets
    ACC = 14; RX = 34; AF = 54; WF = 134 if down else 54 + 16*C.wo_nas; RES = (220 if down else 54); VST = 200
    assert WF + 20*NWS <= 254
    vF, vF2, vR, vR2 = 10, 11, 12, 13
    a(f"""
    s_lshr_b32 s{sRT}, s{sWG}, 3
    s_and_b32 s{sCT}, s{sR}, 7
    v_and_b32 v3, 15, v0
    v_lshrrev_b32 v7, 4, v0
    s_lshl_b32 s{t+6}, s{sRT}, 1
    s_lshr_b32 s{t+7}, s{sW}, 1
    s_add_u32 s{t+6}, s{t+6}, s{t+7}
    s_and_b32 s{t+8}, s{sW}, 1
    s_lshl_b32 s{t+8}, s{t+8}, 8
    s_mul_i32 s{sA}, s{t+6}, {K*64}
    s_add_u32 s{sA}, s{sA}, s{t+8}
    {"" if fast else f"s_add_u32 s{sA}, s{sA}, s{sLO}"}
    s_add_u32 s{sA}, s{sA}, {(L_Q if fast else L_H) if down else L_O}
    s_mul_i32 s{sF}, s{t+6}, 40960
    s_mul_i32 s{t+7}, s{sCT}, 5120
    s_add_u32 s{sF}, s{sF}, s{t+7}
    s_add_u32 s{sF}, s{sF}, s{t+8}
    s_lshl_b32 s{sST}, s{sW}, 8
    s_lshl_b32 s{t+7}, s{sRT}, 12
    s_add_u32 s{sST}, s{sST}, s{t+7}
    s_add_u32 s{sST}, s{sST}, s{sLO}
    s_lshl_b32 s{sRM}, s{sRT}, 2
    s_add_u32 s{sRM}, s{sRM}, s{sW}
    s_mul_i32 s{sRM}, s{sRM}, {16*1280}
    s_mul_i32 s{t+7}, s{sCT}, 160
    s_add_u32 s{sRM}, s{sRM}, s{t+7}
    v_lshlrev_b32 v1, 4, v3
    v_lshl_add_u32 v{vF}, v7, 9, v1
    v_lshrrev_b32 v2, 5, v0
    v_lshl_add_u32 v1, v2, 9, v1
    v_and_b32 v2, 1, v7
    v_lshl_add_u32 v{vF2}, v2, 3, v1
    v_add_u32 v{vF2}, 4096, v{vF2}
    v_mul_u32_u24 v1, 1280, v3
    v_lshl_add_u32 v{vR}, v7, 4, v1
    v_lshl_add_u32 v{vR2}, v7, 3, v1
    v_add_u32 v9, 4096, v{vF}
    """)
    if C.x_a == 1 and not down: a(f"s_lshr_b32 s{sA}, s{sW}, 1\ns_mul_i32 s{sA}, s{sA}, 40960\ns_add_u32 s{sA}, s{sA}, s{t+8}\ns_add_u32 s{sA}, s{sA}, {WS_WTG}")
    SA = Src(sA, sA1, sThr, 8192)
    if down:
        a(f"s_and_b32 s{t+7}, s{sRT}, 3\ns_mul_i32 s{t+7}, s{t+7}, {C.rot_dn}\ns_sub_u32 s{sThr}, 12, s{t+7}")
        SA.setup(a, t+7, 12, t+8)
    def io(store, rowmajor, rsrc, soff, reg, bits):
        op = "store" if store else "load"
        v16, v8 = (vR, vR2) if rowmajor else (vF, vF2)
        o1, o2 = (64, 128) if rowmajor else (2048, 0)
        return [f"buffer_{op}_dwordx4 v[{reg}:{reg+3}], v{v16}, {rsrc}, {soff} offen {bits}",
                f"buffer_{op}_dwordx4 v[{reg+4}:{reg+7}], v{v16}, {rsrc}, {soff} offen offset:{o1} {bits}",
                f"buffer_{op}_dwordx2 v[{reg+8}:{reg+9}], v{v8}, {rsrc}, {soff} offen offset:{o2} {bits}"]
    xld = []; xv = []
    if down:
        add_x(a, t+13, sF, SB, 1)
        a(f"s_add_u32 s{t+14}, s{sST}, {L_ST1}\nv_lshlrev_b32 v8, 4, v3")
        xld = io(False, False, WSR, f"s{t+13}", RES, "sc1") + [f"buffer_load_dwordx4 v[{VST+4*i}:{VST+4*i+3}], v8, {WSR}, s{t+14} offen offset:{1024*i} sc1" for i in range(4)]
    else:
        l1 = a.uid("prj_r1"); l2 = a.uid("prj_r2")
        a(f"s_cmp_lg_u32 s{sL}, 0\ns_cbranch_scc1 {l1}")
        for x in io(False, True, R(R_X), f"s{sRM}", RES, ""): a(x)
        a(f"s_branch {l2}")
        a.label(l1)
        add_x(a, t+7, sF, SB, 2)
        for x in io(False, False, WSR, f"s{t+7}", RES, "sc1"): a(x)
        a.label(l2)
    a(f"v_lshlrev_b32 v4, 4, v0\nv_add_u32 v5, 61440, v4\nv_add_u32 v6, 122880, v4\ns_mov_b32 s{t+8}, 0xffff0000")
    def wadr(c):
        o = dnW(c) if down else c * 20480
        return 4 + o // 61440, o % 61440
    def reads(c, u):
        b = WF + 20*((4*c + u) % NWS); r, o = wadr(c)
        return [f"ds_read_b128 v[{b+4*jn}:{b+4*jn+3}], v{r} offset:{o + 5120*u + 1024*jn}" for jn in range(5)]
    NAS = 5 if down else C.wo_nas
    def aload(c):
        r = []
        if down and C.rot_dn: r += [f"s_cmp_gt_u32 s{sThr}, {c}", f"s_cselect_b32 s{sSel}, s{sA}, s{sA1}", f"s_add_u32 s{sSel}, s{sSel}, {c*8192}"]
        else: r += [f"s_add_u32 s{sSel}, s{sA}, {c*8192}"]
        for u in range(4):
            d = AF + 16*(c % NAS) + 4*u
            r.append(f"buffer_load_dwordx4 v[{d}:{d+3}], v{vF if u < 2 else 9}, {WSR}, s{sSel} offen offset:{2048*(u & 1)} sc1")
        return r
    def mfmas(c, u, zero=False):
        b = WF + 20*((4*c + u) % NWS); x = AF + 16*(c % NAS) + 4*u
        return [f"v_mfma_f32_16x16x32_bf16 {v(ACC+4*jn,4)}, {v(b+4*jn,4)}, {v(x,4)}, {0 if zero else v(ACC+4*jn,4)}" for jn in range(5)]
    D_ = NWS - 1
    rd = lambda st_: reads(st_ // 4, st_ % 4) if st_ < 4*NCH else []
    if down: a(f"s_and_b32 s{t+7}, s{sRT}, 3\ns_mul_i32 s{t+7}, s{t+7}, {4 if C.rot_dn else 0}")
    G_ = gate_local(a, "down" if down else "wo", 5 if down else 2, 1, 2, t+7)
    b = Asm()
    for i in range(10):
        b(f"v_lshlrev_b32 v{RX+2*i}, 16, v{RES+i}\nv_and_b32 v{RX+1+2*i}, s{t+8}, v{RES+i}")
    if down:
        row_stats(b, VST, VST + 2, VST + 3)
        b(f"v_mul_f32 v{VST+2}, v{VST+3}, v{VST+3}")
        xv = b.lines
    else:
        a("s_waitcnt vmcnt(0)")
        for x in b.lines: a(x)
        a("s_barrier")
    for st_ in range(D_):
        for x in rd(st_): a(x)
    def al(c):
        G_.need(span(128*c, 128*c + 127, 96, 2) if down else (span(128*c, 128*c + 127, 20, 1) if C.x_a != 3 else 0xffffffff))
        if c == 0: stamp(a, st0)
        for x in aload(c):
            if C.x_d == 1 and down and c >= 3 and x.startswith("buffer"): x = x.replace(WSR, R(R_WQ)).replace(f"s{sSel} offen", "0 offen").replace("sc1", "")
            a(x)
    NPRE = C.dn_a if down else C.wo_a
    N0 = C.dn_a0 if down else C.wo_a0
    assert NPRE < NAS or NCH <= NAS
    for c in range(N0): al(c)
    stamp(a, 21 if down else 5)
    nis = N0; pend = []; nld = 4*N0; ops = list(range(nld))
    for c in range(NCH):
        for u in range(4):
            step = 4*c + u
            left = min(D_ - 1, 4*NCH - 1 - step)
            assert nld > step
            vstart = 4*NCH - C.xv0
            if down and step == vstart: assert not xld and max(i_ for i_, o_ in enumerate(ops) if o_ < 0) < ops.index(step)
            a(f"s_waitcnt vmcnt({len(ops) - 1 - ops.index(step)}) lgkmcnt({min(15, 5*left)})")
            if down and C.stamp and C.dbg == 8 and u in (0, 2): a(f"s_memtime s[10:11]\ns_waitcnt lgkmcnt(0)\nv_writelane_b32 v254, s10, {2*c + u//2}")
            if step == 4*NCH - 1 or (down and u == 2 and c + 1 < NCH): a("s_barrier")
            if not pend and nis < min(NCH, c + NPRE + 1):
                full = down and nis >= C.dn_full
                G_.need(0xffffffff if full else (span(128*nis, 128*nis + 127, 96, 2) if down else span(128*nis, 128*nis + 127, 20, 1)))
                ld = aload(nis); nis += 1
                for x in ld[:-4]: a(x)
                pend = ld[-4:]
            k = 2 if nld - step < 4*NPRE - 2 else 1
            mf = mfmas(c, u, step == 0); r_ = rd(step + D_)
            for i in range(5):
                a(mf[i])
                if r_: a(r_[i])
                if pend and i in ((4,) if k == 1 else (1, 4)): a(pend.pop(0)); ops.append(nld); nld += 1
                elif xld and step >= C.xl0 and i == 2: a(xld.pop(0)); ops.append(-1)
                if down and step >= vstart:
                    for _ in range(1 if r_ else 2):
                        if xv: a(xv.pop(0))
    assert not xld
    for x in xv: a(x)
    stamp(a, st0 + 1)
    add_x(a, t+7, sF, SB, 2 if down else 1)
    flag_setup(a, 6 if down else 3)
    for i in range(0, 20, 2):
        c = ACC + i
        if down: a(f"v_pk_fma_f32 v[{c}:{c+1}], v[{c}:{c+1}], v[{VST+2}:{VST+3}], v[{RX+i}:{RX+i+1}] op_sel_hi:[1,0,1]")
        else: a(f"v_pk_add_f32 v[{c}:{c+1}], v[{c}:{c+1}], v[{RX+i}:{RX+i+1}]")
        a(f"v_cvt_pk_bf16_f32 v{60+i//2}, v{c}, v{c+1}")
    if down:
        l1 = a.uid("prj_o1")
        a(f"s_cmp_eq_u32 s{sL}, 0\ns_cbranch_scc1 {l1}")
        srd(a, R_T, P_OUT, ACT)
        for x in io(True, True, R(R_T), f"s{sRM}", 60, ["", "sc1", "nt"][C.outb]): a(x)
        a(f"s_branch {end_label}")
        a.label(l1)
    for x in io(True, False, WSR, f"s{t+7}", 60, SB): a(x)
    a(f"v_pk_add_f32 v[72:73], v[{ACC}:{ACC+1}], v[{ACC+2}:{ACC+3}]\nv_pk_mul_f32 v[74:75], v[{ACC}:{ACC+1}], v[{ACC}:{ACC+1}]")
    a(f"v_pk_fma_f32 v[74:75], v[{ACC+2}:{ACC+3}], v[{ACC+2}:{ACC+3}], v[74:75]")
    for i in range(4, 20, 2):
        a(f"v_pk_add_f32 v[72:73], v[72:73], v[{ACC+i}:{ACC+i+1}]\nv_pk_fma_f32 v[74:75], v[{ACC+i}:{ACC+i+1}], v[{ACC+i}:{ACC+i+1}], v[74:75]")
    a(f"""
    v_add_f32 v72, v72, v73
    v_add_f32 v73, v74, v75
    s_lshr_b32 s{t+7}, s{sCT}, 1
    s_lshl_b32 s{t+7}, s{t+7}, 10
    v_permlane32_swap_b32 v72, v73
    s_and_b32 s{t+8}, s{sCT}, 1
    s_lshl_b32 s{t+8}, s{t+8}, 3
    v_add_f32 v72, v72, v73
    v_mov_b32 v73, v72
    s_add_u32 s{t+7}, s{t+7}, s{t+8}
    s_add_u32 s{t+7}, s{t+7}, s{sST}
    v_permlane16_swap_b32 v72, v73
    s_add_u32 s{t+7}, s{t+7}, {L_ST2 if down else L_ST1}
    v_lshrrev_b32 v8, 5, v0
    v_lshlrev_b32 v8, 2, v8
    v_lshl_add_u32 v8, v3, 4, v8
    v_add_f32 v72, v72, v73
    buffer_store_dword v72, v8, {WSR}, s{t+7} offen {SB}
    s_waitcnt vmcnt(1)
    """)
    flag_store(a, SB)
    a("s_barrier")
    stamp(a, st0 + 2)
    a(f"v_add_u32 v253, 1, v2\nv_mov_b32 v252, 0\ns_mov_b32 s100, s{T+20}")
    if not down:
        l = a.uid("fk")
        a(f"s_or_b32 s{t+7}, s{sW}, s{sCT}\ns_or_b32 s{t+7}, s{t+7}, s{sL}\ns_cbranch_scc1 {l}\ns_lshl_b32 s{t+7}, s{sWG}, 7\ns_add_u32 s{t+7}, s{t+7}, {L_FG + 40}")
        flag_store(a, "sc1", t+7)
        a.label(l)

def gu_compute(a, SB):
    t = T
    sRT, sCT, sWM, sWN, sTB, sF0 = t, t+1, t+2, t+3, t+4, t+6
    FR = 16; ACC = 96; VCS = 192; VST = 216; MS = 232
    a(f"""
    s_lshr_b32 s{sRT}, s{sWG}, 4
    s_and_b32 s{sCT}, s{sR}, 15
    s_and_b32 s{sWM}, s{sW}, 1
    s_lshr_b32 s{sWN}, s{sW}, 1
    s_lshl_b32 s{sTB}, s{sRT}, 1
    s_add_u32 s{sTB}, s{sTB}, s{sWM}
    s_mul_i32 s{sF0}, s{sCT}, 96
    s_mul_i32 s{t+5}, s{sWN}, 48
    s_add_u32 s{sF0}, s{sF0}, s{t+5}
    s_mul_i32 s{t+5}, s{sWG}, 768
    s_mul_i32 s{t+7}, s{sWN}, 384
    s_add_u32 s{t+5}, s{t+5}, s{t+7}
    s_add_u32 s{t+13}, s{t+5}, {WS_CSG}
    v_lshrrev_b32 v12, 4, v0
    v_lshlrev_b32 v7, 4, v12
    """)
    a(f"""
    v_and_b32 v13, 15, v0
    v_lshlrev_b32 v3, 4, v13
    v_lshl_add_u32 v3, v12, 9, v3
    s_lshl_b32 s{t+5}, s{sWM}, 13
    v_add_u32 v3, s{t+5}, v3
    v_lshlrev_b32 v11, 4, v0
    s_mul_i32 s{t+5}, s{sWN}, 6144
    s_add_u32 s{t+5}, s{t+5}, {WB}
    v_add_u32 v4, s{t+5}, v11
    v_add_u32 v5, 49152, v4
    v_lshlrev_b32 v6, 2, v13
    s_mul_i32 s{t+11}, s{sTB}, {2*F*64}
    s_lshl_b32 s{t+7}, s{sF0}, 6
    s_add_u32 s{t+11}, s{t+11}, s{t+7}
    {"" if SB == "" else f"s_add_u32 s{t+11}, s{t+11}, s{sLO}"}
    s_add_u32 s{t+11}, s{t+11}, {L_Q if SB == "" else L_H}
    s_add_u32 s{t+12}, s{t+11}, {F*64}
    """)
    flag_setup(a, 5)
    def reads(c, u):
        b = FR + 40*u; o = guW(c) - WB
        ra = [f"ds_read_b128 v[{b+4*tt}:{b+4*tt+3}], v3 offset:{(c % 4)*16384 + 4096*(tt >> 1) + 256*(tt & 1) + 2048*u}" for tt in range(4)]
        rw = [f"ds_read_b128 v[{b+16+4*f}:{b+19+4*f}], v{4 + o // 49152} offset:{o % 49152 + 12288*u + 1024*f}" for f in range(6)]
        return ra + rw
    def mfma(u, tl, z):
        b = FR + 40*u; c = ACC + 4*tl
        return f"v_mfma_f32_16x16x32_bf16 {v(c,4)}, {v(b+16+4*(tl>>2),4)}, {v(b+4*(tl&3),4)}, {0 if z else v(c,4)}"
    def epi(jn, pk):
        r = []
        g = ACC + 32*jn; u_ = g + 16
        for tp in range(2):
            c = g + 8*tp; d = u_ + 8*tp
            for i in range(8): r.append(f"v_max_f32 v{c+i}, 0, v{c+i}")
            if pk:
                for i in range(0, 8, 2): r.append(f"v_pk_mul_f32 v[{c+i}:{c+i+1}], v[{c+i}:{c+i+1}], v[{d+i}:{d+i+1}]")
            else:
                for i in range(8): r.append(f"v_mul_f32 v{c+i}, v{c+i}, v{d+i}")
            for i in range(4): r.append(f"v_cvt_pk_bf16_f32 v{c+i}, v{c+2*i}, v{c+2*i+1}")
            r += ["s_nop 0", f"v_permlane16_swap_b32 v{c}, v{c+2}", f"v_permlane16_swap_b32 v{c+1}, v{c+3}"]
            r.append(f"buffer_store_dwordx4 v[{c}:{c+3}], v11, {WSR}, s{t+11+tp} offen offset:{1024*jn} {SB}")
        return r
    a(f"s_lshl_b32 s{t+5}, s{sTB}, 12\ns_add_u32 s{t+5}, s{t+5}, s{sLO}\ns_add_u32 s{t+5}, s{t+5}, {L_ST1}")
    ins = {}
    for f in range(6): ins[C.csi + 2*f] = [f"buffer_load_dwordx4 v[{VCS+4*f}:{VCS+4*f+3}], v7, {WSR}, s{t+13} offen offset:{64*f} sc1"]
    for i in range(4): ins[36 + 48*C.gfull + 3*i] = [f"buffer_load_dwordx4 v[{VST+4*i}:{VST+4*i+3}], v11, {WSR}, s{t+5} offen offset:{1024*i} sc1"]
    ins[82 + 48*C.gfull] = ["s_waitcnt vmcnt(0)"] + [f"v_add_f32 v{VST}, v{VST}, v{VST+2*i}" for i in range(1, 8)] + \
         [f"v_mul_f32 v{MS}, {f32(-1.0/D)}, v{VST}", f"v_mul_f32 v{MS+1}, {f32(-1.0/D)}, v{VST}", "s_nop 0", f"v_permlane16_swap_b32 v{MS}, v{MS+1}",
          f"v_mov_b32 v{MS+2}, v{MS}", f"v_mov_b32 v{MS+3}, v{MS+1}", "s_nop 0", f"v_permlane32_swap_b32 v{MS}, v{MS+2}", f"v_permlane32_swap_b32 v{MS+1}, v{MS+3}"]
    fix = lambda tl: [f"v_fmac_f32 v{ACC+4*tl+i}, v{MS+(tl&3)}, v{VCS+4*(tl>>2)+i}" for i in range(4)]
    if C.s2i: ins = dict(sorted({**ins, 10: ["s_waitcnt vmcnt(0)", f"buffer_store_dword v253, v252, {WSR}, s100 offen {SB}"]}.items()))
    else: stage2(a, SB, 0)
    gemm16(a, 10, 24, reads, mfma, [tuple(range(8*j, 8*j+8)) for j in range(3)], ins, fix, 122 + 48*C.gfull, epi, 22, C.g16)
    a("s_waitcnt vmcnt(0)")
    flag_store(a, SB)
    a("s_barrier")
    stamp(a, 23)

def loader_chain(a, SB, end_label, idle_label):
    t = T
    sLW, s4, s5, s6, aGU, aGU1, wGU, wGU1, wDN, wDN1, aQK, aQK1, wQK, wQK1, th10, th12, sTmp, sSel, thq = range(t, t + 19)
    sRot = sSel
    a(f"""
    s_sub_u32 s{sLW}, s{sW}, 4
    v_lshlrev_b32 v8, 4, v0
    s_mul_i32 s{s6}, s{sLW}, 6144
    s_and_b32 s{wGU}, s{sR}, 15
    s_mul_i32 s{wGU}, s{wGU}, 245760
    s_add_u32 s{wGU}, s{wGU}, s{s6}
    s_add_u32 s{wGU}, s{wGU}, {WS_WTG}
    s_lshr_b32 s{sRot}, s{sR}, 4
    s_mul_i32 s{sRot}, s{sRot}, {C.rot_gu}
    s_sub_u32 s{th10}, 10, s{sRot}
    """)
    S_aGU = Src(aGU, aGU1, th10, 4096); S_wGU = Src(wGU, wGU1, th10, 24576); S_wDN = Src(wDN, wDN1, th12, 20480)
    S_aQK = Src(aQK, aQK1, thq, 4096); S_wQK = Src(wQK, wQK1, thq, 64*3840)
    S_aGU.norot = S_wGU.norot = not C.rot_gu; S_wDN.norot = not C.rot_dn; S_aQK.norot = S_wQK.norot = not C.rot_qk
    S_wGU.setup(a, sRot, 10, sTmp)
    def rest():
        a(f"""
        s_lshl_b32 s{s4}, s{sLW}, 12
        s_mul_i32 s{s5}, s{sLW}, 5120
        s_lshr_b32 s{aQK}, s{sWG}, 4
        s_lshl_b32 s{aQK}, s{aQK}, 2
        s_add_u32 s{aQK}, s{aQK}, s{sLW}
        s_mul_i32 s{aQK}, s{aQK}, 40960
        """)
        add_x(a, aGU, aQK, SB, 1)
        add_x(a, aQK, aQK, SB, 2)
        a(f"s_and_b32 s{wDN}, s{sR}, 15")
        qkvW_setup(a, wQK, sLW, wDN, sTmp, 6)
        a(f"s_sub_u32 s{sRot}, 10, s{th10}")
        S_aGU.setup(a, sRot, 10, sTmp)
        a(f"s_lshr_b32 s{sRot}, s{sR}, 4\ns_mul_i32 s{sRot}, s{sRot}, {C.rot_qk}\ns_sub_u32 s{thq}, 10, s{sRot}")
        for S_ in (S_aQK, S_wQK): S_.setup(a, sRot, 10, sTmp)
        a(f"""
        s_and_b32 s{wDN}, s{sR}, 7
        s_mul_i32 s{wDN}, s{wDN}, 245760
        s_add_u32 s{wDN}, s{wDN}, s{s5}
        s_add_u32 s{wDN}, s{wDN}, {WS_WTD}
        s_lshr_b32 s{sRot}, s{sR}, 3
        s_mul_i32 s{sRot}, s{sRot}, {C.rot_dn}
        s_sub_u32 s{th12}, 12, s{sRot}
        """)
        S_wDN.setup(a, sRot, 12, sTmp)
    G_ = [None, None]
    def lin(S_, dst, dfn, bits):
        def f(c, i0, k):
            if bits == "sc1":
                G_[0].need(span(64*c, 64*c + 63, 80, 2) if C.gran else 0xffff)
                if G_[1] is not None: stamp(a, G_[1]); G_[1] = None
            if not S_.norot: S_.sel(a, c, sSel)
            lin_dma(a, 8, S_.sB if S_.norot else sSel, (0 if (C.x_gh and S_ is S_wGU) else c)*S_.stride + 1024*i0, dst, dfn(c) + 1024*i0, k, bits)
        return f
    def pf(kind, ep, st, rot):
        def f():
            a(f"s_lshr_b32 s{sTmp}, s{sR}, 4\ns_mul_i32 s{sTmp}, s{sTmp}, {4 if rot else 0}")
            G_[0] = gate_local(a, kind, ep, 1, 2, sTmp, sleep=C.psleep); G_[1] = st
        return f
    def emitWQ(c, i0, k):
        if not S_wQK.norot: S_wQK.sel(a, c, sSel)
        for i in range(i0, i0 + k):
            a(f"s_add_u32 m0, s{s4}, {qkW(c) + 1024*i}\ns_add_u32 s{sTmp}, s{wQK if S_wQK.norot else sSel}, {c*64*3840 + i*4*3840}")
            a(f"buffer_load_dwordx4 v{6 + (i >> 1)}, {R(R_WQ)}, s{sTmp} offen lds")
    rA = lambda c: (c % 4) * 16384
    mark = [0]; mk2 = [0]
    def full(c, nm='qk'):
        if c == 0: G_[0].load2(); L.q.append((nm, "P", 99)); mk2[0] = L.total
        if c == 1: G_[0].bump(0xffff, L.total - mk2[0])
    def gu_bar(c):
        full(c - C.gfull + 1, 'gu')
        if C.thr0 >= 0 and 1 <= c < 8:
            l = a.uid("t0")
            a(f"s_cmp_lg_u32 s{sL}, 0\ns_cbranch_scc1 {l}\ns_waitcnt vmcnt({C.thr0})")
            a.label(l)
        if SB != "": return
        if c == C.fkc:
            a(f"v_and_b32 v4, 7, v0\nv_lshlrev_b32 v4, 10, v4\ns_lshl_b32 s{thq}, s{sLW}, 13\ns_add_u32 s{thq}, s{thq}, {L_FG + 40}\nbuffer_load_dword v5, v4, {WSR}, s{thq} offen sc1")
            L.q.append(("gu", "P", 99)); mark[0] = L.total
        if c == C.fkc + 2:
            l = a.uid("fkc")
            a(f"s_cmp_lg_u32 s{sL}, 0\ns_cbranch_scc1 {l}")
            poll(a, 4, 5, f"s{thq}", f"s{sEP}", sleep=2, pre=L.total - mark[0])
            a.label(l)
    assert C.fkc + 2 <= 8 and not C.rot_qk
    reg = lambda f, sz: (lambda c: (f(c), f(c) + sz))
    gu = Phase("gu", 10, 4, 6, lin(S_aGU, s4, rA, "sc1"), lin(S_wGU, s6, guW, "nt" if C.nt_gu else ""), reg(rA, 16384), reg(guW, 24576), pf("gu", 3, 21, C.rot_gu), C.bud_gu, dbg=(C.dbg == 3), after_bar=gu_bar)
    dn = Phase("dn", 12, 0, 5, None, lin(S_wDN, s5, dnW, "nt" if C.nt_dn else ""), None, reg(dnW, 20480), None, C.bud_dn, lag=2, early=C.dn_early, dbg=(C.dbg == 4))
    qk = Phase("qk", 10, 4, 4, lin(S_aQK, s4, rA, "sc1"), emitWQ, reg(rA, 16384), reg(qkW, 16384), pf("gu", 6, 17, C.rot_qk), C.bud_qk, early=C.qk_early, dbg=(C.dbg == 2), after_bar=full)
    L = Loader(a)
    L.live["wo"] = (0, 102400)
    if C.ldprio: a(f"s_setprio {C.ldprio}")
    pn = L.pre(gu, 0, C.gu_e, C.thr_p)
    rest()
    if C.wpf:
        l = a.uid("wpf")
        a(f"""
        s_cmp_lg_u32 s{sL}, 0
        s_cbranch_scc1 {l}
        s_lshr_b32 s{sTmp}, s{sR}, 4
        s_lshl_b32 s{sSel}, s{sLW}, 1
        s_add_u32 s{sTmp}, s{sTmp}, s{sSel}
        s_mul_i32 s{sTmp}, s{sTmp}, 24576
        s_sub_u32 s{sSel}, s{wGU}, s{s6}
        s_add_u32 s{sTmp}, s{sTmp}, s{sSel}
        s_add_u32 s{sTmp}, s{sTmp}, {49152 + 8192*C.ev0}
        v_lshlrev_b32 v4, 7, v0
        s_mov_b32 exec_lo, {hex((1 << C.wpl) - 1)}
        s_mov_b32 exec_hi, 0
        """)
        for i in range(C.wpf):
            a(f"s_waitcnt vmcnt({C.wpd - 1})\nbuffer_load_dword v5, v4, {WSR}, s{sTmp} offen\ns_add_u32 s{sTmp}, s{sTmp}, {128*C.wpl}")
        a("s_mov_b64 exec, -1")
        a.label(l)
    a("s_barrier")
    L.live.pop("wo")
    pn = L.pre(gu, pn, C.gu_e2, C.thr_e)
    a("s_barrier"); pn = L.pre(gu, pn, C.gu_p)
    pn = L.run(gu, dn, pn); stamp(a, 22); L.end(gu); pn = L.pre(dn, pn, C.dn_e, C.thr_e)
    L.wait({("dn", "W", 0)}); a("s_barrier"); pn = L.pre(dn, pn, C.dn_p, C.thr_p)
    dn.skip0 = True
    if C.qpf:
        a(f"s_lshl_b32 s{thq}, s{sR}, 2\ns_add_u32 s{thq}, s{thq}, s{sLW}\ns_mul_i32 s{thq}, s{thq}, {C.qpl*128}\nv_lshlrev_b32 v4, 7, v0")
        def qpf(c):
            k = c - C.qpf0
            if k % C.qps or not 0 <= k // C.qps < C.qpf: return
            k //= C.qps
            off = D*3*D*2 - (C.qpf - k) * C.qpl * 128 * 128
            a(f"s_add_u32 s{sTmp}, s{thq}, {off}\ns_mov_b64 exec, {hex((1 << C.qpl) - 1) if C.qpl <= 31 else -1}")
            if C.qpl == 32: a("s_mov_b32 exec_hi, 0")
            a(f"buffer_load_dword v5, v4, {R(R_WQ)}, s{sTmp} offen\ns_mov_b64 exec, -1")
            L.q.append(("dn", "P", 99))
        dn.after_bar = qpf
        assert not C.rot_qk
    def lastexit(ws_):
        l = a.uid("lx")
        a(f"s_cmp_eq_u32 s{sL}, 0\ns_cbranch_scc1 {l}")
        for w_ in ws_: a(f"s_waitcnt vmcnt({w_})\ns_barrier")
        a(f"s_barrier\ns_branch {end_label}")
        a.label(l)
    pn = L.run(dn, qk, pn, lastexit=lastexit); stamp(a, 14); L.end(dn)
    a(f"s_cmp_lg_u32 s{sL}, 0\ns_cbranch_scc1 {end_label}")
    pn = L.pre(qk, pn, C.qk_e, C.thr_e)
    a("s_barrier")
    a(f"s_and_b32 s{sTmp}, s{sR}, 15\ns_cmp_eq_u32 s{sTmp}, 15\ns_cbranch_scc1 {idle_label}")
    pn = L.pre(qk, pn, C.qk_p)
    L.run(qk, None, pn); stamp(a, 19); L.end(qk)

def build():
    a = Asm()
    K = NAME + "_kernel"
    t = T
    a(f".globl {K}\n.p2align 8\n.type {K},@function")
    a.label(K)
    a(f"""
    s_load_dwordx16 s[16:31], s[0:1], 0
    s_load_dwordx4 s[32:35], s[0:1], 64
    s_cmp_ge_u32 s2, 256
    s_cbranch_scc1 L_exit
    """)
    if C.etlb:
        a(f"v_and_b32 v2, 64, v0\nv_lshlrev_b32 v2, 15, v2\ns_waitcnt lgkmcnt(0)\nglobal_load_dword v251, v2, s[{P_WQKV}:{P_WQKV+1}]\nglobal_load_dword v251, v2, s[{P_X}:{P_X+1}]")
    a(f"""
    s_and_b32 s{sG}, s2, 7
    s_lshr_b32 s{sR}, s2, 3
    v_lshrrev_b32 v1, 6, v0
    v_and_b32 v0, 63, v0
    v_readfirstlane_b32 s{sW}, v1
    s_lshl_b32 s{sWG}, s{sG}, 5
    s_add_u32 s{sWG}, s{sWG}, s{sR}
    s_mov_b32 s{sL}, 0
    s_mov_b32 s{sLO}, 0
    s_mov_b32 s{sEP}, 0
    s_mov_b32 s{sTMO}, 0
    """)
    if C.stamp: a("v_mov_b32 v255, 0\nv_mov_b32 v254, 0\ns_memrealtime s[14:15]")
    stamp(a, 0)
    qkv_ids(a, t)
    a(f"s_cmp_lt_u32 s{sW}, 4\ns_cbranch_scc1 L_q1c\ns_cmp_eq_u32 s{t+1}, 15\ns_cbranch_scc1 L_q1c")
    qkv1_loader(a)
    a("s_branch L_q1done")
    a.label("L_q1c")
    a("s_waitcnt lgkmcnt(0)")
    srd(a, R_X, P_X, ACT)
    srd(a, R_WQ, P_WQKV, D*3*D*2)
    a(f"""
    s_cmp_gt_u32 s{sW}, 3
    s_cbranch_scc1 L_npf
    s_lshl_b32 s{t+8}, s{sWG}, 2
    s_add_u32 s{t+8}, s{t+8}, s{sW}
    s_mul_i32 s{t+8}, s{t+8}, 2560
    v_lshrrev_b32 v1, 5, v0
    v_mul_u32_u24 v1, 1280, v1
    v_and_b32 v2, 31, v0
    v_lshl_add_u32 v1, v2, 4, v1
    v_mov_b64 v[228:229], 0
    v_mov_b64 v[230:231], 0
    buffer_load_dwordx4 v[220:223], v1, {R(R_X)}, s{t+8} offen
    buffer_load_dwordx4 v[224:227], v1, {R(R_X)}, s{t+8} offen offset:512
    s_mov_b32 exec_lo, 0xffff
    s_mov_b32 exec_hi, 0xffff
    buffer_load_dwordx4 v[228:231], v1, {R(R_X)}, s{t+8} offen offset:1024
    s_mov_b64 exec, -1
    """)
    a.label("L_npf")
    other_srds(a)
    a(f"s_cmp_eq_u32 s{t+1}, 15\ns_cbranch_scc1 L_q1idle")
    qkv_compute(a, True, "sc1")
    a("s_branch L_q1done")
    a.label("L_q1idle")
    qkv1_idle(a)
    a.label("L_q1done")
    a(f"s_cmp_eq_u32 s{sMODE}, 0\ns_cbranch_scc1 L_slow")
    tails = []
    for nm, SB in (("fast", ""), ("slow", "sc1")):
        a.label(f"L_{nm}")
        tails.append(phase_attn(a, SB, f"L_{nm}_ld"))
        if nm == "fast": a.label("L_fast_post")
        proj_compute(a, False, SB, None)
        gu_compute(a, SB)
        proj_compute(a, True, SB, "L_end")
        qkv_ids(a, t)
        a(f"s_cmp_lg_u32 s{t+1}, 15\ns_cbranch_scc1 L_{nm}_q2")
        stage2(a, SB, 0)
        a(f"s_branch L_{nm}_idle")
        a.label(f"L_{nm}_q2")
        qkv_compute(a, False, SB)
        a(f"s_branch L_{nm}_next")
        a.label(f"L_{nm}_ld")
        loader_chain(a, SB, "L_end", f"L_{nm}_idle")
        a(f"s_branch L_{nm}_next")
        a.label(f"L_{nm}_idle")
        a("s_waitcnt vmcnt(0)\ns_barrier")
        a.label(f"L_{nm}_next")
        if C.ldprio: a("s_setprio 0")
        a(f"s_mov_b32 s{sL}, 1\ns_mov_b32 s{sLO}, {LSTRIDE}\ns_add_u32 s{sEP}, s{sEP}, 7\ns_mov_b32 s{R_WQ+2}, 0\ns_branch L_{nm}")
        if nm == "fast":
            a.label("L_end")
            a(f"""
            s_xor_b32 s{t}, s{sW}, 7
            s_or_b32 s{t}, s{t}, s2
            s_cmp_lg_u32 s{t}, 0
            s_cbranch_scc1 L_end2
            v_mov_b32 v1, 0
            s_mov_b64 exec, 1
            global_store_dword v1, v1, s[{P_DBG}:{P_DBG+1}] sc1
            s_mov_b64 exec, -1
            """)
            a.label("L_end2")
            if C.stamp:
                a("s_waitcnt vmcnt(0)")
                stamp(a, 16)
                a(f"""
                s_memrealtime s[10:11]
                s_waitcnt lgkmcnt(0)
                v_writelane_b32 v255, s14, 62
                v_writelane_b32 v255, s10, 63
                v_writelane_b32 v255, s{sTMO}, 61
                s_lshl_b32 s10, s2, 3
                s_add_u32 s10, s10, s{sW}
                s_lshl_b32 s10, s10, 8
                s_add_u32 s10, s10, {WS_STAMP}
                v_lshlrev_b32 v1, 2, v0
                v_add_u32 v1, s10, v1
                global_store_dword v1, v255, s[{P_WS}:{P_WS+1}]
                v_add_u32 v1, {1<<20}, v1
                global_store_dword v1, v254, s[{P_WS}:{P_WS+1}]
                """)
                if C.pj:
                    a(f"""
                    s_xor_b32 s{t}, s2, 8
                    s_xor_b32 s{t+1}, s{sW}, {C.pw}
                    s_or_b32 s{t}, s{t}, s{t+1}
                    s_cmp_lg_u32 s{t}, 0
                    s_cbranch_scc1 L_exit
                    v_readlane_b32 s{t+1}, v254, {C.pi}
                    v_readlane_b32 s{t+2}, v254, {C.pj % 64}
                    v_readlane_b32 s{t+3}, v254, 40
                    {f"s_mov_b32 s{t+1}, s14" if C.pi == 63 else ""}
                    s_sub_u32 s{t+1}, s{t+2}, s{t+1}
                    s_mul_i32 s{t+1}, s{t+1}, {C.pm}
                    s_add_u32 s{t+1}, s{t+1}, 1000
                    """)
                    a.label("L_probe")
                    a(f"""
                    s_memrealtime s[{t+4}:{t+5}]
                    s_waitcnt lgkmcnt(0)
                    s_sub_u32 s{t+6}, s{t+4}, s{t+3}
                    s_cmp_lt_u32 s{t+6}, s{t+1}
                    s_cbranch_scc1 L_probe
                    """)
                if C.dbgout:
                    a(f"s_xor_b32 s{t}, s2, 8\ns_or_b32 s{t}, s{t}, s{sW}\ns_cmp_lg_u32 s{t}, 0\ns_cbranch_scc1 L_exit\nv_readlane_b32 s{t+1}, v254, 0\nv_mov_b32 v1, 0")
                    for k, i in enumerate([1, 2, 7, 8, 10, 12, 23, 15, 20, 31, 32, 36, 47, 40]):
                        a(f"v_readlane_b32 s{t}, v254, {i}\ns_sub_u32 s{t}, s{t}, s{t+1}\ns_nop 1\nv_mov_b32 v2, s{t}\nglobal_store_dword v1, v2, s[{P_DBG}:{P_DBG+1}] offset:{4+4*k}")
            a.label("L_exit")
            a("s_endpgm")
            a.label("L_fast_end")
    for f in tails: f()
    hdr = open("cdna_kernels/" + NAME + ".s.ref").read().split("; Override")[0]
    hdr += "; @launch grid=(256,1,1) block=(512,1,1) lds=163840\n"
    txt = hdr + '.amdgcn_target "amdgcn-amd-amdhsa--gfx950"\n.text\n' + a.text() + f'''.section .rodata,"a"
.p2align 6
.amdhsa_kernel {K}
  .amdhsa_next_free_vgpr 256
  .amdhsa_next_free_sgpr 102
  .amdhsa_accum_offset 256
  .amdhsa_group_segment_fixed_size 0
  .amdhsa_kernarg_size 80
  .amdhsa_user_sgpr_count 2
  .amdhsa_user_sgpr_kernarg_segment_ptr 1
  .amdhsa_system_sgpr_workgroup_id_x 1
.end_amdhsa_kernel
'''
    for p in check(a.lines): print("HAZARD", p)
    return txt

if __name__ == "__main__":
    out = sys.argv[1] if len(sys.argv) > 1 else "cdna_kernels/" + NAME + ".s"
    for kv in sys.argv[2:]:
        k, _, val = kv.partition("=")
        assert hasattr(C, k), k
        setattr(C, k, int(val) if val else True)
    open(out, "w").write(build())
    print("written", out)
```

```python
import sys, math, struct
sys.path.insert(0, "gen")
from asmlib import *

NAME = "interleave_layers__softmax_full_mha__glu_gated_reglu__prompt"
S, D, F, H, DH = 2048, 640, 1536, 32, 20
ACT = S * D * 2
HEADB = 81920
L_Q = 0
L_K = L_Q + ACT
L_V = L_K + ACT
L_O = L_V + ACT
L_X1 = L_O + ACT
L_X2 = L_X1 + ACT
L_H = L_X2 + ACT
L_ST1 = L_H + S * F * 2
L_ST2 = L_ST1 + S * 64
L_FG = L_ST2 + S * 64
LSTRIDE = L_FG + 32768
WS_ST0 = LSTRIDE + L_ST2
WS_WTO = 2 * LSTRIDE
WS_WTD = WS_WTO + D * D * 2
WS_WTG = WS_WTD + F * D * 2
WS_CSP = WS_WTG + 2 * F * D * 2
WS_CSG = WS_CSP + 10 * 12288
WS_CSQ = WS_CSG + 256 * 768
WS_FL = WS_CSQ + 256 * 512
WS_END = WS_FL + 8192
WS_SIZE = 268435456
WS_STAMP = 200 << 20
QSCALE = (DH ** -0.5) * math.log2(math.e)
def f32(x): return "0x%08x" % struct.unpack("<I", struct.pack("<f", x))[0]

P_X, P_WQKV, P_WO, P_BX, P_WG, P_WU, P_WD, P_OUT, P_DBG, P_WS = 16, 18, 20, 22, 24, 26, 28, 30, 32, 34
sL, sG, sR, sW, sLO, sEP, sTMO, sWG = 3, 4, 5, 6, 7, 8, 9, 13
R_WS, R_X, R_WQ, R_WG, R_WU, R_T = 36, 40, 44, 48, 52, 56
T = 60
WSR = f"s[{R_WS}:{R_WS+3}]"
def R(r): return f"s[{r}:{r+3}]"
SPIN = 200000

class Cfg:
    stamp = False
    dbg = 0
    dbgout = 0
    pi = 0
    pj = 0
    pm = 1
    pw = 0
    look = 6
    gu_e = 12
    dn_e = 4
    qk_e = 0
    bud_gu = 9
    bud_dn = 3
    bud_qk = 6
    bud_q1 = 8
    dn_a = 3
    psleep = 0
    gran = 3
    flip = 2
    gfull = 1
    dn_a0 = 3
    wo_a0 = 2
    x_a = 0
    x_d = 0
    c_i = 6
    c_c = 7
    c_f = 8
    pp = 0
    x_q = 0
    hth = 0
    fkc = 5
    vpre = 2
    ag = 2
    flipm = 126
    flip0 = 6
    x_nh = 0
    x_an = 0
    htl = 0
    htc = 6
    xv0 = 8
    xl0 = 0
    s2i = 0
    csi = 35
    bc = 1
    gfl = 0
    jit = 0
    etlb = 0
    x8f = 0
    wpf = 4
    evh = 0
    wpd = 1
    wpl = 16
    bl = 0
    bln = 1
    thr0 = 5
    ev0 = 0
    ev1 = 0
    oxh = 6
    x_slow = 0
    x_gh = 0
    alias = 0
    ldprio = 0
    grp = 2
    qpf = 0
    qpf0 = 1
    qpl = 16
    qps = 1
    thr_e = 0
    thr_p = 0
    qk_s0 = 4
    dn_lag = 2
    dn_full = 5
    wo_a = 4
    wo_nas = 5
    c0 = 1
    g16 = 1
    e16 = 3
    wb = 0
    outb = 0
    q1prio = 0
    look_q1 = 6
    nocs = 0
    qloc = 1
    stage = 1
    cpf = 1
    l2pf0 = 0
    nt_kv = 0
    nt_wo = 0
    nt_gu = 0
    nt_dn = 0
    nt_qk = 0
    htouch = 0
    warm = 0
    gu_e2 = 0
    gu_p = 0
    dn_p = 20
    qk_p = 0
    wo_sets = 6
    q1pf = 1
    l2pf = 8
    rot = 0
    x_hit = 0
    tlb = 0
    rot_gu = 0
    rot_dn = 0
    rot_qk = 0
    dn_early = 99
    qk_early = 99
C = Cfg()

def jitter(a, i):
    l = a.uid("jit")
    a(f"""
    s_memtime s[10:11]
    s_waitcnt lgkmcnt(0)
    s_mul_i32 s10, s10, 0x9e3779b1
    s_lshr_b32 s11, s10, 29
    s_cmp_lg_u32 s11, 0
    s_cbranch_scc1 {l}
    s_bfe_u32 s11, s10, {hex((C.jit << 16) | 20)}
    """)
    a.label(l + "l")
    a(f"s_sleep 32\ns_sub_u32 s11, s11, 1\ns_cbranch_scc0 {l}l")
    a.label(l)
def stamp(a, i):
    if C.jit: jitter(a, i)
    if not C.stamp: return
    a(f"s_memtime s[10:11]\ns_mul_i32 s12, s{sL}, 24\ns_add_u32 m0, s12, {i}\ns_waitcnt lgkmcnt(0)\nv_writelane_b32 v255, s10, m0")
    if C.dbg == 7: a(f"s_memrealtime s[10:11]\ns_waitcnt lgkmcnt(0)\nv_writelane_b32 v254, s10, m0")

def dstamp(a, d, i):
    if C.jit and i % 3 == 0: jitter(a, i)
    if C.stamp and C.dbg == d: a(f"s_memtime s[10:11]\ns_lshl_b32 s12, s{sL}, 5\ns_add_u32 m0, s12, {i}\ns_waitcnt lgkmcnt(0)\nv_writelane_b32 v254, s10, m0")

def cstamp(a, j):
    if C.stamp and C.dbg == 9:
        a(f"s_memtime s[10:11]\ns_lshl_b32 s12, s{sL}, 5\ns_add_u32 m0, s12, {2*j}\ns_waitcnt lgkmcnt(0)\nv_writelane_b32 v254, s10, m0")
        a(f"s_memrealtime s[10:11]\ns_add_u32 m0, s12, {2*j+1}\ns_waitcnt lgkmcnt(0)\nv_writelane_b32 v254, s10, m0")

def srd(a, r, ptr, size):
    a(f"s_mov_b32 s{r}, s{ptr}\ns_mov_b32 s{r+1}, s{ptr+1}\ns_mov_b32 s{r+2}, {size}\ns_mov_b32 s{r+3}, 0x20000")

def interleave(a, mf, other):
    n = len(mf); k = 0
    for i, m in enumerate(mf):
        a(m)
        tgt = (len(other) * (i + 1) + n - 1) // n
        while k < tgt:
            a(other[k]); k += 1

def poll(a, vaddr, vtmp, soff, want, sleep=0, pre=False, wide=False):
    lp = a.uid("poll"); ok = a.uid("pollok")
    cnt = T + 22
    a(f"s_mov_b32 s{cnt}, s{sTMO}")
    if pre is not False: a(f"s_waitcnt vmcnt({pre})\ns_branch {lp}c")
    a.label(lp)
    if wide: a(f"buffer_load_dwordx4 v[{vtmp}:{vtmp+3}], v{vaddr}, {WSR}, {soff} offen sc1")
    else: a(f"buffer_load_dword v{vtmp}, v{vaddr}, {WSR}, {soff} offen sc1")
    a(f"s_waitcnt vmcnt(0)")
    if pre is not False: a.label(lp + "c")
    a(f"v_subrev_u32 v{vtmp}, {want}, v{vtmp}")
    if wide:
        for i in range(1, 4): a(f"v_subrev_u32 v{vtmp+i}, {want}, v{vtmp+i}\nv_max_u32 v{vtmp}, v{vtmp}, v{vtmp+i}")
    a(f"v_cmp_lt_u32 vcc, 15, v{vtmp}")
    a(f"s_cbranch_vccz {ok}")
    if sleep: a(f"s_sleep {sleep}")
    a(f"s_add_u32 s{cnt}, s{cnt}, 1\ns_cmp_lt_u32 s{cnt}, {SPIN}\ns_cbranch_scc1 {lp}")
    a(f"s_mov_b32 s{sTMO}, {SPIN}")
    a.label(ok)

def poll_local(a, kind, ep, va=1, vt=2, sleep=0):
    t = T + 20
    if kind == "wo":
        a(f"v_and_b32 v{va}, 31, v0\nv_lshlrev_b32 v{va}, 5, v{va}\ns_lshr_b32 s{t}, s{sR}, 3\ns_lshl_b32 s{t}, s{t}, 2\ns_add_u32 s{t}, s{t}, 16")
    elif kind == "gu":
        a(f"v_lshrrev_b32 v{va}, 2, v0\nv_lshlrev_b32 v{va}, 5, v{va}\nv_and_b32 v{vt}, 3, v0\nv_lshl_add_u32 v{va}, v{vt}, 2, v{va}")
        a(f"s_lshr_b32 s{t}, s{sR}, 4\ns_lshl_b32 s{t}, s{t}, 9")
    elif kind == "down":
        a(f"v_bfe_u32 v{va}, v0, 1, 4\nv_lshlrev_b32 v{va}, 5, v{va}\nv_and_b32 v{vt}, 1, v0\nv_lshl_add_u32 v{va}, v{vt}, 3, v{va}")
        a(f"s_lshr_b32 s{t}, s{sR}, 4\ns_lshl_b32 s{t}, s{t}, 9\ns_bfe_u32 s{t+1}, s{sR}, 0x10003\ns_lshl_b32 s{t+1}, s{t+1}, 2\ns_add_u32 s{t}, s{t}, s{t+1}")
    elif kind == "attn":
        a(f"""
        v_bfe_u32 v{va}, v0, 2, 1
        v_mul_u32_u24 v{va}, 19, v{va}
        s_mul_i32 s{t}, s{sR}, 20
        v_add_u32 v{va}, s{t}, v{va}
        v_lshrrev_b32 v{va}, 7, v{va}
        v_lshrrev_b32 v{vt}, 4, v0
        v_min_u32 v{vt}, 2, v{vt}
        v_mad_u32_u24 v{va}, v{vt}, 5, v{va}
        v_bfe_u32 v{vt}, v0, 3, 1
        v_lshl_add_u32 v{va}, v{vt}, 4, v{va}
        v_lshlrev_b32 v{va}, 5, v{va}
        v_and_b32 v{vt}, 3, v0
        v_lshl_add_u32 v{va}, v{vt}, 2, v{va}
        s_mov_b32 s{t}, 0
        """)
    a(f"s_lshl_b32 s{t+1}, s{sG}, 10\ns_add_u32 s{t}, s{t}, s{t+1}\ns_add_u32 s{t}, s{t}, {WS_FL}\ns_add_u32 s{t+1}, s{sEP}, {ep}")
    poll(a, va, vt, f"s{t}", f"s{t+1}", sleep=sleep)

sNR, sGO, sGW = 92, 94, 95
class Gate:
    def __init__(self, a, va, vt, fold=False, sleep=0):
        self.a, self.va, self.vt, self.fold, self.sleep = a, va, vt, fold, sleep
        self.ok = 0
    def load(self): self.a(f"buffer_load_dword v{self.vt}, v{self.va}, {WSR}, s{sGO} offen sc1")
    def upd(self):
        self.a(f"s_waitcnt vmcnt(0)\nv_subrev_u32 v{self.vt}, s{sGW}, v{self.vt}\nv_cmp_lt_u32 s[{sNR}:{sNR+1}], 15, v{self.vt}")
        if self.fold: self.a(f"s_or_b32 s{sNR}, s{sNR}, s{sNR+1}")
    def reset(self): self.a(f"s_mov_b32 s{sNR}, -1")
    def load2(self): self.a(f"buffer_load_dword v{self.vt2}, v{self.va}, {WSR}, s{sGO} offen sc1")
    def bump(self, mask, cnt):
        a = self.a
        a(f"s_add_u32 s{sGW}, s{sGW}, 1\ns_waitcnt vmcnt({cnt})\nv_subrev_u32 v{self.vt2}, s{sGW}, v{self.vt2}\nv_cmp_lt_u32 s[{sNR}:{sNR+1}], 15, v{self.vt2}")
        self.ok = 0
        self.need(mask)
    def need(self, mask):
        a = self.a
        mask &= ~self.ok
        if not mask: return
        self.ok |= mask
        lp = a.uid("gt"); cnt = T + 22
        a(f"s_and_b32 s{cnt}, s{sNR}, {hex(mask)}\ns_cbranch_scc0 {lp}k\ns_mov_b32 s{cnt}, s{sTMO}")
        if C.pp and not self.fold:
            v2 = self.vt2
            a(f"buffer_load_dword v{v2}, v{self.va}, {WSR}, s{sGO} offen sc1\ns_sleep {C.pp}")
            a.label(lp)
            for x_, y_ in ((self.vt, v2), (v2, self.vt)):
                a(f"buffer_load_dword v{x_}, v{self.va}, {WSR}, s{sGO} offen sc1\ns_waitcnt vmcnt(1)\nv_subrev_u32 v{y_}, s{sGW}, v{y_}\nv_cmp_lt_u32 s[{sNR}:{sNR+1}], 15, v{y_}")
                a(f"s_and_b32 s{cnt+1}, s{sNR}, {hex(mask)}\ns_cbranch_scc0 {lp}k")
        else:
            a.label(lp)
            self.load(); self.upd()
            a(f"s_and_b32 s{cnt+1}, s{sNR}, {hex(mask)}\ns_cbranch_scc0 {lp}k")
            if self.sleep: a(f"s_sleep {self.sleep}")
        a(f"s_add_u32 s{cnt}, s{cnt}, 1\ns_cmp_lt_u32 s{cnt}, {SPIN}\ns_cbranch_scc1 {lp}\ns_mov_b32 s{sTMO}, {SPIN}")
        a.label(lp + "k")
def span(lo, hi, w, bits):
    m = 0
    for p in range(lo // w, hi // w + 1): m |= ((1 << bits) - 1) << (bits * p)
    return m
def gate_local(a, kind, ep, va, vt, sRotCt=None, sleep=0):
    t = T + 20
    if kind == "wo":
        a(f"v_and_b32 v{va}, 31, v0\nv_lshlrev_b32 v{va}, 5, v{va}\ns_lshr_b32 s{sGO}, s{sR}, 3\ns_lshl_b32 s{sGO}, s{sGO}, 2\ns_add_u32 s{sGO}, s{sGO}, 16")
    elif kind == "down":
        a(f"v_lshrrev_b32 v{va}, 1, v0\nv_add_u32 v{va}, s{sRotCt}, v{va}\nv_and_b32 v{va}, 15, v{va}\nv_lshlrev_b32 v{va}, 5, v{va}\nv_and_b32 v{vt}, 1, v0\nv_lshl_add_u32 v{va}, v{vt}, 3, v{va}")
        a(f"s_lshr_b32 s{sGO}, s{sR}, 4\ns_lshl_b32 s{sGO}, s{sGO}, 9\ns_bfe_u32 s{t+1}, s{sR}, 0x10003\ns_lshl_b32 s{t+1}, s{t+1}, 2\ns_add_u32 s{sGO}, s{sGO}, s{t+1}")
    elif kind == "gu":
        a(f"v_lshrrev_b32 v{va}, 1, v0\nv_add_u32 v{va}, s{sRotCt}, v{va}\nv_and_b32 v{va}, 7, v{va}\nv_lshlrev_b32 v{va}, 5, v{va}\nv_and_b32 v{vt}, 1, v0\nv_lshl_add_u32 v{va}, v{vt}, 2, v{va}")
        a(f"s_lshr_b32 s{sGO}, s{sR}, 4\ns_lshl_b32 s{sGO}, s{sGO}, 9\ns_bfe_u32 s{t+1}, s{sW}, 0x10001\ns_lshl_b32 s{t+1}, s{t+1}, 8\ns_add_u32 s{sGO}, s{sGO}, s{t+1}")
        a(f"s_and_b32 s{t+1}, s{sW}, 1\ns_lshl_b32 s{t+1}, s{t+1}, 3\ns_add_u32 s{sGO}, s{sGO}, s{t+1}")
    a(f"s_lshl_b32 s{t+1}, s{sG}, 10\ns_add_u32 s{sGO}, s{sGO}, s{t+1}\ns_add_u32 s{sGO}, s{sGO}, {WS_FL}\ns_add_u32 s{sGW}, s{sEP}, {ep}")
    g = Gate(a, va, vt, sleep=sleep); g.reset(); g.vt2 = 8 if kind != 'gu' else 3
    return g

def flag_setup(a, ep):
    t = T + 20
    a(f"s_lshl_b32 s{t}, s{sWG}, 3\ns_add_u32 s{t}, s{t}, s{sW}\ns_lshl_b32 s{t}, s{t}, 2\ns_add_u32 s{t}, s{t}, {WS_FL}\ns_add_u32 s{t+1}, s{sEP}, {ep}")
    a(f"v_mov_b32 v1, 0\nv_mov_b32 v2, s{t+1}")
def flag_store(a, SB, s=T+20):
    a(f"s_mov_b64 exec, 1\nbuffer_store_dword v2, v1, {WSR}, s{s} offen {SB}\ns_mov_b64 exec, -1")
def stage2(a, SB, cnt):
    a(f"s_waitcnt vmcnt({cnt})\ns_mov_b64 exec, 1\nbuffer_store_dword v253, v252, {WSR}, s100 offen {SB}\ns_mov_b64 exec, -1")
def publish_local(a, ep, SB):
    flag_setup(a, ep)
    a("s_waitcnt vmcnt(0)")
    flag_store(a, SB)

def row_stats(a, vst, vmean, vrstd):
    for i in range(1, 8):
        a(f"v_add_f32 v{vst}, v{vst}, v{vst+2*i}\nv_add_f32 v{vst+1}, v{vst+1}, v{vst+2*i+1}")
    finish_stats(a, vst, vst + 1, vmean, vrstd)

def finish_stats(a, vs, vq, vmean, vrstd):
    a(f"v_mul_f32 v{vmean}, {f32(1.0/D)}, v{vs}")
    a(f"v_mul_f32 v{vq}, {f32(1.0/D)}, v{vq}")
    a(f"v_fma_f32 v{vq}, -v{vmean}, v{vmean}, v{vq}")
    a(f"v_max_f32 v{vq}, 0, v{vq}")
    a(f"v_add_f32 v{vq}, {f32(1e-5)}, v{vq}")
    a(f"v_rsq_f32 v{vrstd}, v{vq}")
    a("s_nop 0")

def lin_dma(a, vaddr, src_s, src_off, dst_s, dst_off, npieces, bits="", rsrc=WSR, tmp=T+19):
    i = 0
    while i < npieces:
        k = min(4, npieces - i)
        a(f"s_add_u32 m0, s{dst_s}, {dst_off + 1024*i}")
        a(f"s_add_u32 s{tmp}, s{src_s}, {src_off + 1024*i}")
        for j in range(k):
            a(f"buffer_load_dwordx4 v{vaddr}, {rsrc}, s{tmp} offen offset:{1024*j} {bits} lds")
        i += k
    return npieces


def states(x):
    return int(x.split()[1]) + 1 if x.startswith("s_nop") else 1

def gemm_unrolled(a, n, P, nr, reads, mfma, groups, inserts, fix, fix_from, epi, st_end, alt=None, after_e=(), late=()):
    seq = []
    def add(ms, fill, pre=()):
        k = 0
        for i, (kk, tl) in enumerate(ms):
            tgt = (len(fill) * (i + 1) + len(ms) - 1) // len(ms)
            seq.append([list(pre) if i == 0 else [], mfma(kk, tl), tl, list(fill[k:tgt])]); k = tgt
    step = lambda kk: [(kk, tl) for tl in range(P)]
    a("s_barrier")
    for x in reads(0, 0) + reads(0, 1): a(x)
    w = f"s_waitcnt lgkmcnt({nr})"
    for c in range(n - 1):
        add(step(0), reads(c, 2), [w])
        add(step(1), reads(c, 3), [w])
        add(step(2), [], [w])
        seq[-2][3] += ["s_waitcnt lgkmcnt(0)"]; seq[-1][3] += ["s_barrier"]
        add(step(3), reads(c + 1, 0) + reads(c + 1, 1))
    nmain = len(seq)
    for i0, ins in inserts.items():
        i = i0; ins = list(ins)
        while ins:
            room = 4 - sum(states(x) for x in seq[i][3]) - len(seq[i+1][0])
            if ins[0].startswith("s_mov_b32 exec") and room < 3: room = 0
            while room > 0 and ins and "s_barrier" not in seq[i][3]:
                x = ins.pop(0); seq[i][3].append(x); room -= states(x)
            i += 1

        end = fix_from if i0 < fix_from else nmain
        assert i <= end and all(not (i0 < k < i) for k in inserts if len(inserts[i0]) > 1), (i0, i)
        if any(x.startswith("ds_") for x in inserts[i0]): assert any("s_waitcnt lgkmcnt(0)" in seq[j][3] for j in range(i, end)), (i, end)
    todo = {tl: list(fix(tl)) for tl in range(P)}
    used = lambda g: sum(states(x) for x in seq[g][3]) + len(seq[g+1][0])
    g = fix_from + 2
    while any(todo.values()):
        assert g + 2 < nmain, "no room for fix"
        if used(g) < 5 and "s_barrier" not in seq[g][3]:
            for back in range(P - 2, 1, -1):
                tl = seq[g - back][2]
                if not todo[tl] or g - back < fix_from: continue
                have = sum(used(x) + 1 for x in range(g - back, g)) + sum(states(x) for x in seq[g][3])
                room = sum(max(0, 5 - used(x)) for x in range(g - back, g))
                if have + room < 12: continue
                for x in range(g - back, g):
                    k = min(5 - used(x), 12 - have)
                    if k > 0: seq[x][3].append(f"s_nop {k-1}"); have += k
                while used(g) < 5 and todo[tl]: seq[g][3].append(todo[tl].pop(0))
            if used(g + 1) < 1: seq[g + 1][3].append("s_nop 0")
        g += 1

    c = n - 1
    g0 = groups[0]
    seq[-1][3] += reads(c, 2)
    add([(kk, tl) for kk in (0, 1) for tl in g0], reads(c, 3), [w])
    add([(kk, tl) for kk in (2, 3) for tl in g0], list(late), ["s_waitcnt lgkmcnt(0)"])
    if after_e:
        seq[-2][3].append("s_barrier"); seq[-1][3] += list(after_e)
    else: seq[-len(g0)*2][3].append("s_barrier")
    seq[-1][3].append("s_nop 4")
    def flush():
        for pre, m, tl, post in seq:
            for x in pre: a(x)
            a(m)
            for x in post: a(x)
        del seq[:]
    def tail(epi):
        for gi in range(1, len(groups)):
            ms = [(kk, tl) for kk in range(4) for tl in groups[gi]]
            if gi == 1: add(ms[:1], ["s_nop 4"]); add(ms[1:], epi(gi - 1, False))
            else: add(ms, ["s_nop 0"] + epi(gi - 1, False))
        flush()
        stamp(a, st_end)
        a.nop(3)
        for x in epi(len(groups) - 1, True): a(x)
    if alt:
        cond, epi2, post1, post2 = alt
        l = a.uid("alt")
        seq[-1][3][-1:] = [cond, f"s_cbranch_scc1 {l}", "s_nop 2"]
        flush(); tail(epi); post1()
        a.label(l); a("s_nop 2"); tail(epi2); post2()
    else: tail(epi)

def gemm16(a, n, P, reads, mfma, groups, inserts, fix, fix_from, epi, st_end, fillmax=1, nlead=2, alt=None, after_e=(), late=()):
    seq = []
    def add(ms, fill, span, pre=()):
        k = 0
        for i, (u, tl, z) in enumerate(ms):
            tgt = min(len(fill), (len(fill) * (i + 1) + span - 1) // span)
            seq.append([list(pre) if i == 0 else [], mfma(u, tl, z), tl, list(fill[k:tgt])]); k = tgt
        assert k == len(fill)
    w0 = "s_waitcnt lgkmcnt(0)"
    a("s_barrier")
    for x in reads(0, 0): a(x)
    nr = len(reads(0, 0)); sp = min(nr, P - 6)
    for c in range(n - 1):
        add([(0, tl, c == 0) for tl in range(P)], reads(c, 1), sp, [w0])
        bl = C.bl if (P == 16 and c >= n - 1 - C.bln) else 0
        seq[-2][3] += [w0]
        if bl: add([(1, tl, False) for tl in range(bl)], [], 1)
        seq[-1][3] += ["s_barrier"]
        add([(1, tl, False) for tl in range(bl, P)], reads(c + 1, 0), min(sp, max(1, P - bl - 2)))
    nmain = len(seq)
    used = lambda g: sum(states(x) * (2 if x.startswith(("buffer", "v_perm", "v_rsq")) else 1) for x in seq[g][3]) + len(seq[g+1][0])
    for i0, ins in inserts.items():
        i = i0; ins = list(ins)
        while ins:
            while used(i) < fillmax and ins and "s_barrier" not in seq[i][3]: seq[i][3].append(ins.pop(0))
            i += 1
        end = fix_from if i0 < fix_from else nmain - 1
        assert i <= end and all(not (i0 < k < i) for k in inserts if len(inserts[i0]) > 1), (i0, i)
        if any(x.startswith("ds_") for x in inserts[i0]): assert any(w0 in seq[j][3] + seq[j][0] for j in range(i, end)), (i0, i)
    todo = {tl: list(fix(tl)) for tl in range(P)}
    g = fix_from
    while any(todo.values()):
        assert g + 4 < nmain
        for back in sorted(range(P - 3, 3, -1), key=lambda b_: -len(todo[seq[g - b_][2]])):
            if sum(1 + sum(states(x) for x in seq[j][3]) for j in range(g - back, g)) < 8: continue
            tl = seq[g - back][2]
            while used(g) < fillmax and todo[tl] and "s_barrier" not in seq[g][3]: seq[g][3].append(todo[tl].pop(0))
        g += 1
    c = n - 1
    lead = sum(groups[:nlead], ())
    add([(0, tl, False) for tl in lead], reads(c, 1) + list(late), min(len(lead), nr), [w0])
    add([(1, tl, False) for tl in groups[0]], ["s_barrier"] + list(after_e), len(groups[0]) if after_e else 1, [w0])
    rest = [(1, tl, False) for gi in range(1, nlead) for tl in groups[gi]]
    for gi in range(nlead, len(groups)): rest += [(u, tl, False) for u in range(2) for tl in groups[gi]]
    def flush():
        for k_, (pre, m, tl, post) in enumerate(seq):
            for x in pre: a(x)
            a(m)
            for x in post: a(x)
            if C.x_slow and P == 24 and k_ % C.x_slow == 0: a("s_nop 7")
        del seq[:]
    def tail(epi):
        add(rest[:2], ["s_nop 1", "s_nop 1"], 2)
        nleft = len(rest) - 2
        e = epi(0, False) + epi(1, False)
        add(rest[2:], e[:C.e16*nleft], nleft)
        flush()
        for x in e[C.e16*nleft:]: a(x)
        stamp(a, st_end)
        for gi in range(2, len(groups)):
            for x in epi(gi, True): a(x)
    if alt:
        cond, epi2, post1, post2 = alt
        l = a.uid("alt")
        seq[-1][3] += [cond, f"s_cbranch_scc1 {l}"]
        flush(); tail(epi); post1()
        a.label(l); tail(epi2); post2()
    else: tail(epi)

class Src:
    def __init__(self, sB, sB1, sThr, stride): self.__dict__.update(locals())
    def setup(self, a, sRot, n, tmp):
        a(f"s_mul_i32 s{tmp}, s{sRot}, {self.stride}\ns_add_u32 s{self.sB}, s{self.sB}, s{tmp}\ns_sub_u32 s{self.sB1}, s{self.sB}, {n*self.stride}")
    def sel(self, a, c, dst):
        if getattr(self, "norot", False):
            a(f"s_mov_b32 s{dst}, s{self.sB}"); return
        a(f"s_cmp_gt_u32 s{self.sThr}, {c}\ns_cselect_b32 s{dst}, s{self.sB}, s{self.sB1}")

class Phase:
    def __init__(self, name, n, npa, npw, emitA, emitW, regA, regW, pollfn, budget, lag=1, after_bar=None, dbg=False, early=99):
        self.__dict__.update(locals())

class Loader:
    def __init__(self, a):
        self.a = a; self.q = []; self.live = {}; self.waitfn = None; self.total = 0
    def free(self, reg, key):
        return key in self.live or all(reg[1] <= lo or hi <= reg[0] for lo, hi in self.live.values())
    def can(self, ph, kind, c):
        return self.free((ph.regA if kind == "A" else ph.regW)(c), (ph.name, kind, c))
    def issue(self, ph, kind, c, i0, k):
        assert self.can(ph, kind, c)
        self.live[(ph.name, kind, c)] = (ph.regA if kind == "A" else ph.regW)(c)
        (ph.emitA if kind == "A" else ph.emitW)(c, i0, k)
        self.q += [(ph.name, kind, c)] * k; self.total += k
    def release(self, ph, c):
        for k in "AW": self.live.pop((ph.name, k, c), None)
    def wait(self, tags):
        last = -1
        for i, t in enumerate(self.q):
            if t in tags: last = i
        if last >= 0:
            self.q = self.q[last+1:]
            n7 = len(self.q); n = sum(1 for t in self.q if t[0] != "x7")
            assert n7 < 64
            if n7 != n:
                l = self.a.uid("w7")
                self.a(f"s_waitcnt vmcnt({n7})\ns_cmp_eq_u32 s{sW}, 7\ns_cbranch_scc1 {l}\ns_waitcnt vmcnt({n})")
                self.a.label(l)
            else: self.a(f"s_waitcnt vmcnt({n})")
    def pre(self, ph, pw, cnt, thr=0):
        done = 0
        while pw < ph.n * ph.npw and done < cnt and self.can(ph, "W", pw // ph.npw):
            k = min(4, ph.npw - pw % ph.npw, cnt - done)
            if thr:
                k = 1
                if len(self.q) >= thr:
                    self.a(f"s_waitcnt vmcnt({thr-1})"); self.q = self.q[len(self.q) - (thr - 1):]
            self.issue(ph, "W", pw // ph.npw, pw % ph.npw, k); pw += k; done += k
        return pw
    def run(self, ph, nxt, pw=0, after_poll=None, tail=None, waitfn=None, lastexit=None):
        a = self.a; n = ph.n
        pa = 0; pn = 0
        if ph.pollfn: ph.pollfn()
        if after_poll: after_poll()
        for c in range(1 if getattr(ph, "skip0", False) else 0, n):
            done = 0
            if lastexit and pw == n * ph.npw:
                assert all(t_[0] == ph.name for t_ in self.q)
                lastexit([len(self.q) - 1 - max([-1] + [i_ for i_, t_ in enumerate(self.q) if t_[2] <= cc]) for cc in range(c, n)]); lastexit = None
            while True:
                needed = pa < (c + 1) * ph.npa or pw < (c + 1) * ph.npw
                if not needed:
                    beyond = 0
                    for t in reversed(self.q):
                        if t[0] == ph.name and t[2] <= c: break
                        beyond += t[0] != "x7"
                    if beyond >= getattr(ph, 'look', C.look) and (done >= ph.budget or c == 0): break
                ca = pa // ph.npa if ph.npa else n; cw = pw // ph.npw
                okA = ca < n and self.can(ph, "A", ca)
                okW = cw < n and self.can(ph, "W", cw)
                if okW and (cw <= ca or not okA):
                    k = ph.npw - pw % ph.npw
                    if not needed: k = min(C.grp, k)
                    self.issue(ph, "W", cw, pw % ph.npw, k); pw += k
                elif okA:
                    k = ph.npa - pa % ph.npa
                    if not needed: k = min(C.grp, k)
                    self.issue(ph, "A", ca, pa % ph.npa, k); pa += k
                elif nxt and not lastexit and ca == n and cw == n and pn < nxt.early and self.can(nxt, "W", pn // nxt.npw):
                    k = min(2, nxt.npw - pn % nxt.npw)
                    self.issue(nxt, "W", pn // nxt.npw, pn % nxt.npw, k); pn += k
                else:
                    assert not needed
                    break
                done += k
            if tail and pa == n * ph.npa and pw == n * ph.npw:
                tail(); tail = None; self.waitfn = waitfn
            if ph.after_bar and c > 0: ph.after_bar(c - 1)
            self.wait({(ph.name, "A", c), (ph.name, "W", c)})
            if ph.dbg and C.stamp: a(f"s_memtime s[10:11]\ns_waitcnt lgkmcnt(0)\nv_writelane_b32 v254, s10, {2*c}")
            a("s_barrier")
            if ph.dbg and C.stamp: a(f"s_memtime s[10:11]\ns_waitcnt lgkmcnt(0)\nv_writelane_b32 v254, s10, {2*c+1}")
            if C.jit and c % 3 == 1: jitter(a, c)
            self.release(ph, c - ph.lag)
        if ph.after_bar: ph.after_bar(n - 1)
        if nxt: pn = self.pre(nxt, pn, min(ph.budget, max(0, nxt.early - pn)))
        return pn
    def end(self, ph):
        self.a("s_barrier")
        for c in range(ph.n): self.release(ph, c)

Q1_TAB = 98304
Q1_NON = Q1_TAB + 2048
Q1_CS = Q1_NON + 64
WB = 65536
def guW(c): return WB + ((3 - c) % 4) * 24576
def dnW(c): return ((c + 2) % 8) * 20480
def qkW(c): return WB + ((c + C.qk_s0) % 6) * 16384

PSCR = 131072
PV = 180
def projjob_issue(a, sJob, sScr, t, loads=True):
    a(f"""
    s_and_b32 s{t+2}, s{sJob}, 7
    s_lshr_b32 s{t+3}, s{sJob}, 3
    s_cmp_lt_u32 s{t+3}, 20
    s_cselect_b32 s{R_T}, s{P_WO}, s{P_WD}
    s_cselect_b32 s{R_T+1}, s{P_WO+1}, s{P_WD+1}
    s_mov_b32 s{R_T+2}, {F*D*2}
    s_cselect_b32 s{R_T+2}, {D*D*2}, s{R_T+2}
    s_mov_b32 s{R_T+3}, 0x20000
    s_cselect_b32 s{t+4}, 0, 20
    s_cselect_b32 s{t+5}, 20, 48
    s_mov_b32 s{t+6}, {WS_WTD}
    s_cselect_b32 s{t+6}, {WS_WTO}, s{t+6}
    s_sub_u32 s{t+3}, s{t+3}, s{t+4}
    s_mul_i32 s{t+5}, s{t+5}, s{t+2}
    s_add_u32 s{t+5}, s{t+5}, s{t+3}
    s_mul_i32 s{t+5}, s{t+5}, 5120
    s_add_u32 s{t+6}, s{t+6}, s{t+5}
    s_mul_i32 s{t+3}, s{t+3}, {32*1280}
    s_mul_i32 s{t+2}, s{t+2}, 160
    s_add_u32 s{t+3}, s{t+3}, s{t+2}
    s_movk_i32 s{t+4}, 6554
    """)
    x, y = PV, PV + 1
    for i in range(5 if loads else 0):
        a(f"""
        v_add_u32 v{x}, {64*i}, v0
        v_mul_u32_u24 v{y}, s{t+4}, v{x}
        v_lshrrev_b32 v{y}, 16, v{y}
        v_mad_i32_i24 v{x}, v{y}, -10, v{x}
        v_mul_u32_u24 v{y}, 1280, v{y}
        v_lshl_add_u32 v{x}, v{x}, 4, v{y}
        s_add_u32 m0, s{sScr}, {1024*i}
        s_nop 0
        buffer_load_dwordx4 v{x}, {R(R_T)}, s{t+3} offen lds
        """)
def projjob_finish(a, sScr, t):
    x, y, z, d0 = PV, PV + 1, PV + 2, PV + 4
    a(f"""
    v_lshrrev_b32 v{x}, 4, v0
    v_bfe_u32 v{y}, v0, 2, 2
    v_lshl_add_u32 v{x}, v{x}, 3, v{y}
    v_mul_u32_u24 v{x}, 160, v{x}
    v_add_u32 v{x}, s{sScr}, v{x}
    v_and_b32 v{y}, 3, v0
    v_lshl_add_u32 v{z}, v{y}, 3, v{x}
    v_lshl_add_u32 v{y}, v{y}, 4, v{x}
    """)
    for jn in range(5):
        for j in range(2):
            d = d0 + 4*jn + 2*j
            if jn < 4: a(f"ds_read_b64_tr_b16 v[{d}:{d+1}], v{y} offset:{640*j + 64*(jn>>1) + 8*(jn&1)}")
            else: a(f"ds_read_b64_tr_b16 v[{d}:{d+1}], v{z} offset:{640*j + 128}")
    a(f"s_add_u32 s{t+5}, s{t+6}, 4096\ns_waitcnt lgkmcnt(0)")
    for jn in range(5):
        d = d0 + 4*jn
        a(f"buffer_store_dwordx4 v[{d}:{d+3}], v5, {WSR}, s{t+6 if jn < 4 else t+5} offen offset:{1024*(jn&3)} sc1")

def gujob_issue(a, sJob, t, loads=True):
    x, y = PV, PV + 1
    a(f"""
    s_mul_i32 s{t+2}, s{sJob}, 2731
    s_lshr_b32 s{t+2}, s{t+2}, 16
    s_mul_i32 s{t+3}, s{t+2}, 24
    s_sub_u32 s{t+3}, s{sJob}, s{t+3}
    s_mul_i32 s{t+4}, s{t+2}, {64*F*2}
    s_lshl_b32 s{t+5}, s{t+3}, 7
    s_add_u32 s{t+4}, s{t+4}, s{t+5}
    v_lshrrev_b32 v{x}, 3, v0
    v_mul_u32_u24 v{x}, {F*2}, v{x}
    v_and_b32 v{y}, 7, v0
    v_lshl_add_u32 v{x}, v{y}, 4, v{x}
    """)
    a(f"""
    s_and_b32 s{t+1}, s{sW}, 1
    s_cselect_b32 s{R_T}, s{P_WU}, s{P_WG}
    s_cselect_b32 s{R_T+1}, s{P_WU+1}, s{P_WG+1}
    s_mov_b32 s{R_T+2}, {F*D*2}
    s_mov_b32 s{R_T+3}, 0x20000
    s_lshl_b32 s{t+6}, s{t+1}, 13
    """)
    for i in range(8):
        a(f"s_add_u32 m0, s{t+6}, {PSCR + 1024*i}\ns_add_u32 s{t+5}, s{t+4}, {i*8*F*2}")
        a(f"buffer_load_dwordx4 v{x}, {R(R_T)}, s{t+5} offen lds")
def gujob_finish(a, t):
    x, y, z = PV, PV + 1, PV + 2
    ONE, FRG, CS = PV + 4, PV + 8, PV + 40
    a(f"""
    v_lshrrev_b32 v{z}, 4, v0
    v_bfe_u32 v{x}, v0, 2, 2
    v_lshl_add_u32 v{x}, v{z}, 3, v{x}
    v_lshlrev_b32 v{x}, 7, v{x}
    v_and_b32 v{y}, 3, v0
    v_lshl_add_u32 v{x}, v{y}, 3, v{x}
    s_add_u32 s{t+6}, s{t+6}, {PSCR}
    v_add_u32 v{x}, s{t+6}, v{x}
    v_lshlrev_b32 v{z}, 4, v{z}
    """)
    for tt in range(4):
        for u in range(2):
            for j in range(2):
                d = FRG + 8*tt + 4*u + 2*j
                a(f"ds_read_b64_tr_b16 v[{d}:{d+1}], v{x} offset:{128*(32*u+4*j) + 32*tt}")
    a(f"""
    s_mul_i32 s{t+6}, s{t+2}, 12288
    s_lshl_b32 s{t+5}, s{t+3}, 9
    s_add_u32 s{t+6}, s{t+6}, s{t+5}
    s_lshl_b32 s{t+5}, s{t+1}, 6
    s_add_u32 s{t+6}, s{t+6}, s{t+5}
    s_add_u32 s{t+6}, s{t+6}, {WS_CSP}
    """)
    for i in range(4): a(f"v_mov_b32 v{ONE+i}, 0x3f803f80")
    a("s_nop 0\ns_waitcnt lgkmcnt(0)")
    for u in range(2):
        for tt in range(4):
            a(f"v_mfma_f32_16x16x32_bf16 {v(CS+4*tt,4)}, {v(FRG+8*tt+4*u,4)}, {v(ONE,4)}, {v(CS+4*tt,4) if u else 0}")
    for tt in range(4):
        a(f"""
        s_lshl_b32 s{t+4}, s{t+3}, 2
        s_add_u32 s{t+4}, s{t+4}, {tt}
        s_mul_i32 s{t+5}, s{t+4}, 43
        s_lshr_b32 s{t+5}, s{t+5}, 8
        s_mul_i32 s{t+5}, s{t+5}, 228
        s_lshl_b32 s{t+4}, s{t+4}, 1
        s_add_u32 s{t+4}, s{t+4}, s{t+5}
        s_mul_i32 s{t+5}, s{t+2}, 24
        s_add_u32 s{t+4}, s{t+4}, s{t+5}
        s_add_u32 s{t+4}, s{t+4}, s{t+1}
        s_lshl_b32 s{t+4}, s{t+4}, 10
        s_add_u32 s{t+4}, s{t+4}, {WS_WTG}
        s_add_u32 s{t+5}, s{t+4}, 12288
        """)
        for u in range(2):
            d = FRG + 8*tt + 4*u
            a(f"buffer_store_dwordx4 v[{d}:{d+3}], v5, {WSR}, s{t+4+u} offen sc1")
    a("s_mov_b32 exec_lo, 0x10001\ns_mov_b32 exec_hi, 0x10001")
    for tt in range(4):
        a(f"buffer_store_dwordx4 v[{CS+4*tt}:{CS+4*tt+3}], v{z}, {WSR}, s{t+6} offen offset:{128*tt} sc1")
    a("s_mov_b64 exec, -1")

def prep(a, stage):
    tj = 84; sJob, sScr = tj, tj + 1
    lg = a.uid("pg"); le = a.uid("pe")
    if stage == 0:
        a(f"""
        s_sub_u32 s{sScr}, s{sW}, 1
        s_lshl_b32 s{sJob}, s{sScr}, 8
        s_add_u32 s{sJob}, s{sJob}, s{sWG}
        s_add_u32 s{sJob}, s{sJob}, 160
        s_mul_i32 s{sScr}, s{sScr}, 5120
        s_add_u32 s{sScr}, s{sScr}, {PSCR + 16384}
        """)
    a(f"s_cmp_eq_u32 s{sW}, 0\ns_cbranch_scc1 {lg}\ns_cmp_eq_u32 s{sW}, 3\ns_cbranch_scc1 {lg}\ns_cmp_ge_u32 s{sJob}, 544\ns_cbranch_scc1 {le}")
    projjob_issue(a, sJob, sScr, tj) if stage == 0 else projjob_finish(a, sScr, tj)
    a(f"s_branch {le}")
    a.label(lg)
    a(f"s_cmp_ge_u32 s{sWG}, 240\ns_cbranch_scc1 {le}")
    gujob_issue(a, sWG, tj) if stage == 0 else gujob_finish(a, tj)
    a.label(le)

def xstat_fin(a):
    t = T + 16
    a(f"s_mov_b32 s{t}, 0xffff0000\nv_mov_b64 v[232:233], 0\ns_waitcnt vmcnt(0)")
    for i in range(12):
        a(f"v_lshlrev_b32 v234, 16, v{220+i}\nv_and_b32 v235, s{t}, v{220+i}\nv_add_f32 v232, v232, v234\nv_fmac_f32 v233, v234, v234\nv_add_f32 v232, v232, v235\nv_fmac_f32 v233, v235, v235")
    for mod in ("quad_perm:[1,0,3,2]", "quad_perm:[2,3,0,1]"):
        a(f"s_nop 1\nv_add_f32_dpp v232, v232, v232 {mod} row_mask:0xf bank_mask:0xf\nv_add_f32_dpp v233, v233, v233 {mod} row_mask:0xf bank_mask:0xf")
    a(f"""
    v_bfe_u32 v234, v0, 3, 2
    v_lshlrev_b32 v234, 10, v234
    v_bfe_u32 v235, v0, 2, 1
    v_lshl_add_u32 v234, v235, 3, v234
    v_lshrrev_b32 v235, 5, v0
    v_lshl_add_u32 v234, v235, 4, v234
    s_lshr_b32 s{t}, s{sWG}, 3
    s_lshl_b32 s{t}, s{t}, 12
    s_and_b32 s{t+1}, s{sWG}, 7
    s_lshl_b32 s{t+1}, s{t+1}, 2
    s_add_u32 s{t+1}, s{t+1}, s{sW}
    s_lshl_b32 s{t+1}, s{t+1}, 5
    s_add_u32 s{t}, s{t}, s{t+1}
    s_add_u32 s{t}, s{t}, {WS_ST0}
    s_mov_b32 exec_lo, 0x11111111
    s_mov_b32 exec_hi, 0x11111111
    buffer_store_dwordx2 v[232:233], v234, {WSR}, s{t} offen sc1
    s_mov_b64 exec, -1
    """)

def nonce_put(a):
    t = T + 8
    a(f"""
    s_memrealtime s[{t}:{t+1}]
    v_mov_b32 v1, 0
    s_waitcnt lgkmcnt(0)
    s_or_b32 s{t+2}, s{t}, 0x80000000
    v_mov_b32 v2, s{t+2}
    s_mov_b64 exec, 1
    global_store_dword v1, v2, s[{P_DBG}:{P_DBG+1}] sc1
    s_mov_b64 exec, -1
    """)
def flags_zero(a):
    t = T + 16
    a(f"""
    s_lshl_b32 s{t}, s{sWG}, 5
    s_add_u32 s{t}, s{t}, {WS_FL}
    s_lshl_b32 s{t+1}, s{sWG}, 7
    s_add_u32 s{t+1}, s{t+1}, {L_FG}
    s_add_u32 s{t+2}, s{t+1}, {LSTRIDE}
    v_lshlrev_b32 v236, 2, v0
    v_mov_b32 v237, 0
    s_mov_b64 exec, 0xff
    buffer_store_dword v237, v236, {WSR}, s{t} offen sc1
    s_mov_b64 exec, 0x7ff
    buffer_store_dword v237, v236, {WSR}, s{t+1} offen sc1
    buffer_store_dword v237, v236, {WSR}, s{t+2} offen sc1
    s_mov_b64 exec, -1
    """)

def nonce_issue(a, v2, v3):
    a(f"v_mov_b32 v{v3}, 0\nglobal_load_dword v{v2}, v{v3}, s[{P_DBG}:{P_DBG+1}] sc1")
def nonce_get(a, v1, v2, v3, cnt=0):
    t = T + 14
    lp = a.uid("non"); ok = a.uid("nonok")
    a(f"s_mov_b32 s{t+6}, 0\nv_mov_b32 v{v3}, 0\ns_lshl_b32 s{t+4}, s{sWG}, 7\ns_add_u32 s{t+4}, s{t+4}, {L_FG}\ns_waitcnt vmcnt({cnt})\ns_branch {lp}c")
    a.label(lp)
    a(f"global_load_dword v{v2}, v{v3}, s[{P_DBG}:{P_DBG+1}] sc1\ns_waitcnt vmcnt(0)")
    a.label(lp + "c")
    a(f"""
    v_cmp_eq_u32 vcc, 0, v{v2}
    s_cbranch_vccz {ok}
    s_sleep 4
    s_add_u32 s{t+6}, s{t+6}, 1
    s_cmp_lt_u32 s{t+6}, {SPIN}
    s_cbranch_scc1 {lp}
    s_mov_b32 s{sTMO}, {SPIN}
    """)
    a.label(ok)
    a(f"""
    v_readfirstlane_b32 s{sEP}, v{v2}
    s_getreg_b32 s{t+6}, hwreg(HW_REG_XCC_ID, 0, 4)
    v_add_u32 v{v2}, s{t+6}, v{v2}
    s_mov_b64 exec, 1
    buffer_store_dword v{v2}, v{v3}, {WSR}, s{t+4} offen offset:32 sc1
    s_mov_b64 exec, -1
    s_waitcnt lgkmcnt(0)
    """)

def census(a, va, vt, issue, cnt=0):
    t = T + 20
    a(f"""
    v_and_b32 v{va}, 31, v0
    v_lshlrev_b32 v{va}, 7, v{va}
    s_lshl_b32 s{t}, s{sG}, 12
    s_add_u32 s{t}, s{t}, {L_FG + 32}
    """)
    if issue:
        a(f"buffer_load_dword v{vt}, v{va}, {WSR}, s{t} offen sc1")
        return
    poll(a, va, vt, f"s{t}", f"s{sEP}", sleep=4, pre=cnt)
    a(f"""
    s_getreg_b32 s{t}, hwreg(HW_REG_XCC_ID, 0, 4)
    v_cmp_ne_u32 vcc, s{t}, v{vt}
    s_cmp_eq_u64 vcc, 0
    s_cselect_b32 s{t}, 1, 0
    v_mov_b32 v{va}, {Q1_NON}
    v_mov_b32 v{vt}, s{t}
    ds_write_b32 v{va}, v{vt} offset:4
    v_mov_b32 v{vt}, s{sEP}
    ds_write_b32 v{va}, v{vt}
    s_waitcnt lgkmcnt(0)
    """)

sMODE = 14 - 14 + 98
def read_nonce_mode(a):
    a(f"v_mov_b32 v1, {Q1_NON}\nds_read_b64 v[2:3], v1\ns_waitcnt lgkmcnt(0)\nv_readfirstlane_b32 s{sEP}, v2\nv_readfirstlane_b32 s{sMODE}, v3")

def qkv_ids(a, t):
    a(f"s_lshr_b32 s{t}, s{sWG}, 4\ns_and_b32 s{t+1}, s{sR}, 15")

def qkv_compute(a, first, SB):
    t = T
    sRT, sCT, sTY, sC0 = t, t+1, t+2, t+3
    LQ = 0 if first else LSTRIDE
    sWM, sWN = t+5, t+6
    a(f"""
    s_mul_i32 s{sTY}, s{sCT}, 52
    s_lshr_b32 s{sTY}, s{sTY}, 8
    s_mul_i32 s{sC0}, s{sTY}, 5
    s_sub_u32 s{sC0}, s{sCT}, s{sC0}
    s_lshl_b32 s{sC0}, s{sC0}, 7
    s_and_b32 s{sWM}, s{sW}, 1
    s_lshr_b32 s{sWN}, s{sW}, 1
    v_lshrrev_b32 v14, 4, v0
    v_and_b32 v15, 15, v0
    """)
    FR = 16; VST = 80; VCS = 96; VM = 96; VR = 112; ACC = 128; VCV = 192; NON = 200; AD = 202; MS = 240; TMP = 212
    vq, vt = AD + 8, AD + 9
    sCS = t+15
    a(f"s_lshl_b32 s{sCS}, s{sWG}, 9\ns_lshl_b32 s{t+7}, s{sWN}, 8\ns_add_u32 s{sCS}, s{sCS}, s{t+7}\ns_add_u32 s{sCS}, s{sCS}, {WS_CSQ}")
    a(f"v_lshlrev_b32 v{vq}, 4, v14\nv_lshlrev_b32 v{vt}, 2, v15\ns_lshl_b32 s{t+7}, s{sWM}, 13")
    if first:
        a(f"""
        v_lshlrev_b32 v1, 7, v15
        v_add_u32 v1, s{t+7}, v1
        v_bfe_u32 v12, v0, 1, 3
        v_xor_b32 v12, v12, v14
        v_lshl_add_u32 v2, v12, 4, v1
        v_xor_b32 v12, 4, v12
        v_lshl_add_u32 v3, v12, 4, v1
        """)
    else:
        a(f"v_lshlrev_b32 v2, 4, v15\nv_lshl_add_u32 v2, v14, 9, v2\nv_add_u32 v2, s{t+7}, v2")
    a(f"""
    v_bfe_u32 v12, v0, 2, 2
    v_lshl_add_u32 v13, v14, 3, v12
    v_lshlrev_b32 v13, 8, v13
    v_and_b32 v1, 3, v0
    v_lshl_add_u32 v13, v1, 3, v13
    v_add_u32 v13, {WB}, v13
    v_bfe_u32 v12, v0, 2, 3
    s_lshl_b32 s{t+7}, s{sWN}, 2
    v_xor_b32 v12, s{t+7}, v12
    """)
    for nt in range(4): a(f"v_xor_b32 v1, {nt}, v12\nv_lshl_add_u32 v{4+nt}, v1, 5, v13\nv_add_u32 v{8+nt}, 49152, v{4+nt}")
    assert Q1_TAB == qkW(4)
    sC, sMk, sDst, sD1 = t+9, t+11, t+12, 96
    qloc = C.qloc and SB == '' and not first
    vlab = a.uid("qkv_v"); fin = a.uid("qkv_fin")
    a(f"s_cmp_eq_u32 s{sTY}, 2\ns_cbranch_scc1 {vlab}")
    def rd(c, u):
        b = FR + 32*u; o = qkW(c) - WB
        if first: r = [f"ds_read_b128 v[{b+4*tt}:{b+4*tt+3}], v{2+u} offset:{(c % 4)*16384+2048*tt}" for tt in range(4)]
        else: r = [f"ds_read_b128 v[{b+4*tt}:{b+4*tt+3}], v2 offset:{(c % 4)*16384+4096*(tt >> 1)+256*(tt & 1)+2048*u}" for tt in range(4)]
        for nt in range(4):
            for j in range(2):
                d = b + 16 + 4*nt + 2*j
                r.append(f"ds_read_b64_tr_b16 v[{d}:{d+1}], v{4 + 4*(o // 49152) + nt} offset:{o % 49152 + 8192*u + 1024*j}")
        return r
    def mainloop(vtype, epi, alt=None):
        if first: xstat_fin(a)
        stamp(a, 1 if first else 18)
        def mf(u, tl, z):
            b = FR + 32*u; c = ACC + 4*tl
            if vtype: A, B = v(b + 4*(tl >> 2), 4), v(b + 16 + 4*(tl & 3), 4)
            else: A, B = v(b + 16 + 4*(tl >> 2), 4), v(b + 4*(tl & 3), 4)
            return f"v_mfma_f32_16x16x32_bf16 {v(c,4)}, {A}, {B}, {0 if z else v(c,4)}"
        neg = [f"v_sub_f32 v{VCV+2*i}, 0, v{VCV+2*i}" for i in range(4)]
        if vtype: fix = lambda tl: [f"v_fmac_f32 v{ACC+4*tl+i}, v{VCV+2*(tl&3)}, v{VM+4*(tl>>2)+i}" for i in range(4)]
        else: fix = lambda tl: [f"v_fmac_f32 v{ACC+4*tl+i}, v{TMP+2*(tl&3)}, v{VCS+4*(tl>>2)+i}" for i in range(4)]
        groups = [tuple(range(4*j, 4*j + 4)) for j in range(4)]
        a(f"s_cmp_eq_u32 s{sTY}, 0\ns_cselect_b32 s{t+10}, {f32(QSCALE)}, 1.0")
        if not first:
            a(f"""
            s_lshl_b32 s{sC}, s{sRT}, 1
            s_add_u32 s{sC}, s{sC}, s{sWM}
            s_lshl_b32 s{sC}, s{sC}, 12
            s_add_u32 s{sC}, s{sC}, {L_ST2}
            v_lshlrev_b32 v3, 4, v0
            """)
            ins = {}
            for nt in range(4): ins[26 + nt] = [f"buffer_load_dword v{VCV+2*nt}, v{vt}, {WSR}, s{sCS} offen offset:{64*nt} sc1" if vtype else
                                                f"buffer_load_dwordx4 v[{VCS+4*nt}:{VCS+4*nt+3}], v{vq}, {WSR}, s{sCS} offen offset:{64*nt} sc1"]
            for i in range(4): ins[58 + i + (12 if i > 1 else 0)] = [f"buffer_load_dwordx4 v[{VST+4*i}:{VST+4*i+3}], v3, {WSR}, s{sC} offen offset:{1024*i} sc1"]
            b = Asm(); b("s_waitcnt vmcnt(0)"); row_stats(b, VST, VST + 2, VST + 3)
            if vtype:
                b("\n".join(neg))
                a(f"s_lshl_b32 s{t+7}, s{sW}, 9\ns_add_u32 s{t+7}, s{t+7}, {qkW(4)}\nv_lshlrev_b32 v12, 2, v0\nv_add_u32 v12, s{t+7}, v12\nv_add_u32 v13, s{t+7}, v{vq}")
                ins[146] = [f"ds_write_b32 v12, v{VST+2}", f"ds_write_b32 v12, v{VST+3} offset:256"] + \
                    [f"ds_read_b128 v[{R_+4*tt}:{R_+4*tt+3}], v13 offset:{o_+64*tt}" for R_, o_ in ((VM, 0), (VR, 256)) for tt in range(4)]
                ff = 178
            else:
                for src, d, op in ((VST + 2, TMP, "v_sub_f32 v{0}, 0, v{1}"), (VST + 3, MS, "v_mul_f32 v{0}, s%d, v{1}" % (t + 10))):
                    b(op.format(d, src) + "\n" + op.format(d + 2, src) + f"\ns_nop 1\nv_permlane16_swap_b32 v{d}, v{d+2}\nv_mov_b32 v{d+4}, v{d}\nv_mov_b32 v{d+6}, v{d+2}\ns_nop 1")
                    b(f"v_permlane32_swap_b32 v{d}, v{d+4}\nv_permlane32_swap_b32 v{d+2}, v{d+6}")
                ff = 178
            ins = dict(sorted({**ins, 108: b.lines}.items()))
            stage2(a, SB, 0)
            gemm16(a, 10, 16, rd, mf, groups, ins, fix, ff, epi, 19, 2, 3, alt)
            return
        a(f"s_lshl_b32 s{t+7}, s{sWM}, 8\ns_add_u32 s{t+7}, s{t+7}, {Q1_TAB}\nv_add_u32 v13, s{t+7}, v{vq if vtype else vt}")
        if vtype:
            sr = [f"ds_read_b128 v[{R_+4*tt}:{R_+4*tt+3}], v13 offset:{o_+64*tt}" for R_, o_ in ((VM, 0), (VR, 512)) for tt in range(4)]
            sf = neg
        else:
            sr = [f"ds_read_b32 v{R_+2*tt}, v13 offset:{o_+64*tt}" for R_, o_ in ((TMP, 0), (MS, 512)) for tt in range(4)]
            sf = [x for tt in range(4) for x in (f"v_sub_f32 v{TMP+2*tt}, 0, v{TMP+2*tt}", f"v_mul_f32 v{MS+2*tt}, s{t+10}, v{MS+2*tt}")]
        a(f"s_lshl_b32 s{t+7}, s{sWN}, 8\ns_add_u32 s{t+7}, s{t+7}, {Q1_CS}\nv_add_u32 v12, s{t+7}, v{vt if vtype else vq}\nv_mov_b32 v1, {Q1_NON}")
        ae = [f"ds_read_b64 v[{NON}:{NON+1}], v1"]
        ae += [f"ds_read_b32 v{VCV+2*nt}, v12 offset:{64*nt}" if vtype else f"ds_read_b128 v[{VCS+4*nt}:{VCS+4*nt+3}], v12 offset:{64*nt}" for nt in range(4)]
        def epi1(g, pk):
            r = []
            if g == 0: r = ["s_waitcnt lgkmcnt(0)", f"v_readfirstlane_b32 s{sEP}, v{NON}", f"v_readfirstlane_b32 s{sMODE}, v{NON+1}"] + sf
            return r + sum((fix(tl) for tl in groups[g]), []) + epi(g, pk)
        assert C.c_f < 9
        gemm16(a, 10, 16, rd, mf, groups, {40: ["s_waitcnt vmcnt(0)"]}, lambda tl: [], 0, epi1, 2, 2, 3, None, ae, sr)
    a(f"""
    s_mul_i32 s{sDst}, s{sTY}, {ACT}
    s_lshl_b32 s{t+8}, s{sRT}, 2
    s_lshl_b32 s{t+7}, s{sWM}, 1
    s_add_u32 s{t+8}, s{t+8}, s{t+7}
    s_mul_i32 s{t+8}, s{t+8}, 1280
    s_add_u32 s{sDst}, s{sDst}, s{t+8}
    s_add_u32 s{sDst}, s{sDst}, {LQ}
    s_lshr_b32 s{t+8}, s{sC0}, 3
    s_lshl_b32 s{t+7}, s{sWN}, 3
    s_add_u32 s{t+8}, s{t+8}, s{t+7}
    v_lshrrev_b32 v80, 5, v0
    v_add_u32 v80, s{t+8}, v80
    v_and_b32 v87, 31, v0
    s_mov_b32 s{t+13}, {HEADB}
    v_mov_b32 v86, 0x7fffffff
    s_mov_b32 s{sMk}, 0
    s_add_u32 s{sD1}, s{sDst}, 1280
    """)
    if qloc:
        a(f"""
        s_lshl_b32 s{t+8}, s{sRT}, 1
        s_add_u32 s{t+8}, s{t+8}, s{sWM}
        s_mul_i32 s{t+8}, s{t+8}, {2*F*64}
        s_add_u32 s{t+8}, s{t+8}, {L_Q + 57344}
        s_add_u32 s{t+7}, s{t+8}, {F*64}
        s_cmp_eq_u32 s{sTY}, 0
        s_cselect_b32 s{sDst}, s{t+8}, s{sDst}
        s_cselect_b32 s{sD1}, s{t+7}, s{sD1}
        s_cselect_b32 s{t+13}, 1280, s{t+13}
        """)
    a(f"s_add_u32 s{t+14}, s{sDst}, s{t+13}\ns_add_u32 s{sD1+1}, s{sD1}, s{t+13}")
    for sl in range(4):
        a(f"""
        v_add_u32 v81, {2*sl}, v80
        v_mul_u32_u24 v82, 205, v81
        v_lshrrev_b32 v82, 10, v82
        v_mad_i32_i24 v81, v82, -5, v81
        v_cmp_lt_u32 vcc, 2, v81
        v_lshlrev_b32 v82, 1, v82
        v_add_u32 v83, -3, v81
        v_cndmask_b32 v83, v81, v83, vcc
        v_addc_co_u32 v82, vcc, 0, v82, vcc
        v_lshlrev_b32 v83, 9, v83
        v_lshl_add_u32 v83, v87, 4, v83
        v_lshlrev_b32 v85, 3, v87
        v_add_u32 v85, 1024, v85
        v_cmp_eq_u32 vcc, 2, v81
        v_mul_lo_u32 v84, v82, s{t+13}
        s_cmp_lg_u64 vcc, 0
        v_cndmask_b32 v83, v83, v86, vcc
        v_cndmask_b32 v85, v86, v85, vcc
        s_cselect_b32 s{t+7}, {1 << sl}, 0
        s_or_b32 s{sMk}, s{sMk}, s{t+7}
        v_add_u32 v{AD+sl}, v83, v84
        v_add_u32 v{AD+4+sl}, v85, v84
        """)
    def pack(c, sw):
        return [f"v_cvt_pk_bf16_f32 v{c+i}, v{c+2*i}, v{c+2*i+1}" for i in range(4)] + \
               ["s_nop 0", f"v_permlane{sw}_swap_b32 v{c}, v{c+2}", f"v_permlane{sw}_swap_b32 v{c+1}, v{c+3}"]
    def epi_qk(nt, pk=True, bits='sc1'):
        r = []
        for tp in range(2):
            c = ACC + 16*nt + 8*tp
            if pk: r += [f"v_pk_mul_f32 v[{c+i}:{c+i+1}], v[{c+i}:{c+i+1}], v[{MS+4*tp+2*(i>>2)}:{MS+4*tp+2*(i>>2)+1}] op_sel_hi:[1,0]" for i in range(0, 8, 2)]
            else: r += [f"v_mul_f32 v{c+i}, v{MS+4*tp+2*(i>>2)}, v{c+i}" for i in range(8)]
            r += pack(c, 16)
            r.append(f"buffer_store_dwordx4 v[{c}:{c+3}], v{AD+nt}, {WSR}, s{sD1 if tp else sDst} offen {bits}")
        return r
    def bparts(bits):
        for sl in range(4):
            sk = a.uid("qk_b")
            a(f"s_bitcmp0_b32 s{sMk}, {sl}\ns_cbranch_scc1 {sk}")
            for tm in range(2):
                o = ACC + 16*sl + 8*tm
                a(f"buffer_store_dwordx2 v[{o}:{o+1}], v{AD+4+sl}, {WSR}, s{sD1 if tm else sDst} offen {bits}")
                a(f"buffer_store_dwordx2 v[{o+2}:{o+3}], v{AD+4+sl}, {WSR}, s{sD1+1 if tm else t+14} offen {bits}")
            a.label(sk)
        a(f"s_branch {fin}")
    if qloc: mainloop(False, epi_qk, (f"s_cmp_eq_u32 s{sTY}, 0", lambda g, pk: epi_qk(g, pk, ""), lambda: bparts("sc1"), lambda: bparts("")))
    else:
        mainloop(False, epi_qk); bparts("sc1")
    a.label(vlab)
    a(f"""
    s_lshl_b32 s{t+8}, s{sRT}, 3
    s_lshl_b32 s{t+7}, s{sWM}, 2
    s_add_u32 s{t+8}, s{t+8}, s{t+7}
    s_mul_i32 s{sDst}, s{t+8}, 640
    s_add_u32 s{sDst}, s{sDst}, {L_V + LQ}
    s_lshl_b32 s{t+7}, s{sWN}, 6
    s_add_u32 s{t+8}, s{sC0}, s{t+7}
    v_lshrrev_b32 v80, 5, v0
    v_lshl_add_u32 v80, v80, 4, v15
    v_add_u32 v80, s{t+8}, v80
    v_and_b32 v81, 1, v14
    v_mul_u32_u24 v81, 320, v81
    s_mov_b32 s{t+13}, {HEADB}
    s_movk_i32 s{t+14}, 3277
    s_movk_i32 s{t+7}, -20
    """)
    for np_ in range(2):
        a(f"""
        v_add_u32 v83, {32*np_}, v80
        v_mul_u32_u24 v84, s{t+14}, v83
        v_lshrrev_b32 v84, 16, v84
        v_mad_i32_i24 v83, v84, s{t+7}, v83
        v_lshl_add_u32 v83, v83, 4, v81
        v_mul_lo_u32 v85, v84, s{t+13}
        v_add_u32 v{AD+np_}, v83, v85
        """)
    def epi_v(tt, pk=True):
        r = []
        for np_ in range(2):
            c = ACC + 16*tt + 8*np_
            if pk: r += [f"v_pk_mul_f32 v[{c+i}:{c+i+1}], v[{c+i}:{c+i+1}], v[{VR+4*tt+(i&3)}:{VR+4*tt+(i&3)+1}]" for i in range(0, 8, 2)]
            else: r += [f"v_mul_f32 v{c+i}, v{VR+4*tt+(i&3)}, v{c+i}" for i in range(8)]
            r += pack(c, 32)
            r.append(f"buffer_store_dwordx4 v[{c}:{c+3}], v{AD+np_}, {WSR}, s{sDst} offen offset:{640*tt} sc1")
        return r
    mainloop(True, epi_v)
    a.label(fin)
    stamp(a, 3 if first else 20)
    flag_setup(a, 1 if first else 8)
    a(f"s_lshl_b32 s{t+7}, s{sWG}, 5\ns_add_u32 s{t+7}, s{t+7}, s{sW}\ns_lshl_b32 s{t+7}, s{t+7}, 2\ns_add_u32 s{t+7}, s{t+7}, {L_FG + LQ}")
    a("s_waitcnt vmcnt(0)")
    if first:
        l1 = a.uid("q1f"); l2 = a.uid("q1g")
        a(f"s_cmp_eq_u32 s{sMODE}, 0\ns_cbranch_scc1 {l1}")
        flag_store(a, ""); a(f"s_branch {l2}")
        a.label(l1); flag_store(a, "sc1"); a.label(l2)
    else: flag_store(a, SB)
    flag_store(a, "sc1", t+7)

def qkvW_setup(a, sWo, sLW, sCT, sTmp, vW):
    a(f"""
    v_lshrrev_b32 v2, 4, v0
    v_mul_u32_u24 v1, 3840, v2
    v_lshlrev_b32 v7, 1, v2
    v_and_b32 v3, 15, v0
    v_xor_b32 v3, v3, v7
    v_lshl_add_u32 v{vW}, v3, 4, v1
    v_xor_b32 v3, 8, v3
    v_lshl_add_u32 v{vW+1}, v3, 4, v1
    s_mul_i32 s{sWo}, s{sLW}, {16*3840}
    s_lshl_b32 s{sTmp}, s{sCT}, 8
    s_add_u32 s{sWo}, s{sWo}, s{sTmp}
    """)

def qkv1_loader(a):
    t = T
    sRT, sCT = t, t+1
    sLW, sAo, sWo, sM, sTmp, sRot, sThr, sA1, sW1, sSel = t+2, t+3, t+4, t+5, t+6, t+8, t+9, t+10, t+11, t+12
    a(f"s_sub_u32 s{sLW}, s{sW}, 4")
    qkvW_setup(a, sWo, sLW, sCT, sTmp, 6)
    a(f"""
    s_lshl_b32 s{sM}, s{sLW}, 12
    s_lshl_b32 s{sAo}, s{sRT}, 2
    s_add_u32 s{sAo}, s{sAo}, s{sLW}
    s_mul_i32 s{sAo}, s{sAo}, {32*1280}
    v_lshrrev_b32 v1, 3, v0
    v_mul_u32_u24 v1, 1280, v1
    v_and_b32 v3, 7, v0
    v_xor_b32 v3, v3, v2
    v_lshl_add_u32 v4, v3, 4, v1
    v_xor_b32 v3, 4, v3
    v_lshl_add_u32 v5, v3, 4, v1
    """)
    a("s_waitcnt lgkmcnt(0)")
    srd(a, R_X, P_X, ACT)
    srd(a, R_WQ, P_WQKV, D*3*D*2)
    def emitA(c, i0, k):
        for i in range(i0, i0 + k):
            a(f"s_add_u32 m0, s{sM}, {(c % 4)*16384 + 1024*i}\ns_add_u32 s{sTmp}, s{sAo}, {c*128 + i*8*1280}")
            a(f"buffer_load_dwordx4 v{4 + (i & 1)}, {R(R_X)}, s{sTmp} offen lds")
    def emitW(c, i0, k):
        for i in range(i0, i0 + k):
            a(f"s_add_u32 m0, s{sM}, {qkW(c) + 1024*i}\ns_add_u32 s{sTmp}, s{sWo}, {c*64*3840 + i*4*3840}")
            a(f"buffer_load_dwordx4 v{6 + (i >> 1)}, {R(R_WQ)}, s{sTmp} offen lds")
    LD = Loader(a); mark = [0]
    def xstats(c):
        if c == 0:
            other_srds(a)
            a(f"""
            v_bfe_u32 v8, v0, 2, 2
            v_lshrrev_b32 v9, 4, v0
            v_lshl_add_u32 v9, v9, 3, v8
            v_lshlrev_b32 v9, 8, v9
            v_and_b32 v10, 3, v0
            v_lshl_add_u32 v9, v10, 3, v9
            v_add_u32 v9, {WB}, v9
            v_bfe_u32 v10, v0, 2, 3
            s_lshl_b32 s{t+7}, s{sLW}, 1
            v_xor_b32 v10, s{t+7}, v10
            v_lshl_add_u32 v8, v10, 5, v9
            v_xor_b32 v10, 1, v10
            v_lshl_add_u32 v9, v10, 5, v9
            v_add_u32 v10, 49152, v8
            v_add_u32 v11, 49152, v9
            """)
            for i in range(4): a(f"v_mov_b32 v{12+i}, 0x3f803f80")
        o_ = qkW(c) - WB
        for u in range(2):
            for e in range(2):
                for j in range(2):
                    d = 16 + 8*u + 4*e + 2*j
                    a(f"ds_read_b64_tr_b16 v[{d}:{d+1}], v{8 + 2*(o_ // 49152) + e} offset:{o_ % 49152 + 8192*u + 1024*j}")
        a("s_waitcnt lgkmcnt(0)")
        for u in range(2):
            for e in range(2):
                a(f"v_mfma_f32_16x16x32_bf16 v[{32+4*e}:{35+4*e}], v[12:15], v[{16+8*u+4*e}:{19+8*u+4*e}], {v(32+4*e,4) if (c or u) else 0}")
        n = LD.total - mark[0]
        if c in (0, C.c_i, C.c_c): mark[0] = LD.total
        def st_issue():
            census(a, 80, 81, False, n)
            a(f"s_lshl_b32 s{t+7}, s{sRT}, 13\ns_add_u32 s{t+7}, s{t+7}, {WS_ST0}\ns_add_u32 s{t+13}, s{t+7}, 4096\nv_lshlrev_b32 v82, 4, v0")
            for h_ in range(2):
                for i in range(4): a(f"buffer_load_dwordx4 v[{96+16*h_+4*i}:{99+16*h_+4*i}], v82, {WSR}, s{t+13 if h_ else t+7} offen offset:{1024*i} sc1")
        def st_fin():
            a(f"s_waitcnt vmcnt({n})\nv_lshlrev_b32 v82, 2, v0\nv_add_u32 v82, {Q1_TAB}, v82")
            for h_ in range(2):
                row_stats(a, 96 + 16*h_, 84, 85)
                a(f"ds_write_b32 v82, v84 offset:{256*h_}\nds_write_b32 v82, v85 offset:{512+256*h_}")
            a("s_waitcnt lgkmcnt(0)")
        st = {0: lambda: (flags_zero(a), nonce_issue(a, 81, 82)), 2: lambda: nonce_get(a, 80, 81, 82, n), C.c_i: lambda: census(a, 80, 81, True), C.c_c: st_issue, C.c_f: st_fin}
        if c in st:
            l = a.uid("w7")
            a(f"s_cmp_lg_u32 s{sW}, 7\ns_cbranch_scc1 {l}")
            st[c](); a.label(l)
            LD.q += [("x7", "x", 99)] * {0: 4, 2: 1, C.c_i: 1, C.c_c: 8, C.c_f: 0}[c]
    if C.q1prio: a("s_setprio 2")
    stamp(a, 1)
    ph = Phase("q1", 10, 4, 4, emitA, emitW, lambda c: ((c % 4)*16384, (c % 4)*16384 + 16384), lambda c: (qkW(c), qkW(c) + 16384),
               None, C.bud_q1, after_bar=xstats, dbg=(C.dbg == 1))
    def waitfn(w):
        l1 = a.uid("pw"); l2 = a.uid("pw"); l3 = a.uid("pw")
        a(f"s_cmp_eq_u32 s{sW}, 4\ns_cbranch_scc1 {l1}\ns_cmp_eq_u32 s{sW}, 7\ns_cbranch_scc1 {l2}\ns_waitcnt vmcnt({w+5})\ns_branch {l3}")
        a.label(l1); a(f"s_waitcnt vmcnt({w+16})\ns_branch {l3}")
        a.label(l2); a(f"s_waitcnt vmcnt({w})")
        a.label(l3)
    ph.look = C.look_q1
    LD.run(ph, None)
    a(f"""
    v_and_b32 v1, 15, v0
    v_lshlrev_b32 v1, 2, v1
    s_lshl_b32 s{sTmp}, s{sLW}, 7
    v_add_u32 v1, s{sTmp}, v1
    v_add_u32 v2, {Q1_CS}, v1
    s_lshl_b32 s{sTmp}, s{sWG}, 9
    s_add_u32 s{sTmp}, s{sTmp}, {WS_CSQ}
    s_setprio 0
    s_nop 3
    ds_write_b32 v2, v32
    ds_write_b32 v2, v36 offset:64
    buffer_store_dword v32, v1, {WSR}, s{sTmp} offen
    buffer_store_dword v36, v1, {WSR}, s{sTmp} offen offset:64
    s_waitcnt lgkmcnt(0)
    """)
    stamp(a, 2)
    a("s_barrier")
    read_nonce_mode(a)

def other_srds(a):
    srd(a, R_WS, P_WS, WS_END)
    srd(a, R_WG, P_WG, D*F*2)
    srd(a, R_WU, P_WU, D*F*2)
    srd(a, R_T, P_WS, WS_END)

def qkv1_idle(a):
    l2 = a.uid("idl"); l1 = a.uid("idl"); l3 = a.uid("idl"); l4 = a.uid("idl"); lj = a.uid("idl")
    tj = 84; K = NAME + "_kernel"
    a(f"v_lshlrev_b32 v5, 4, v0\ns_cmp_lt_u32 s{sW}, 4\ns_cbranch_scc1 {l1}")
    a(f"s_xor_b32 s{tj}, s{sW}, 7\ns_or_b32 s{tj}, s{tj}, s{T}\ns_cmp_lg_u32 s{tj}, 0\ns_cbranch_scc1 {l3}")
    nonce_put(a)
    a.label(l3)
    a(f"s_getpc_b64 s[{tj+4}:{tj+5}]")
    a.label("L_pc")
    a(f"""
    s_sub_u32 s{tj+4}, s{tj+4}, L_pc-{K}
    s_subb_u32 s{tj+5}, s{tj+5}, 0
    s_and_b32 s{tj}, s{T}, 1
    s_lshl_b32 s{tj}, s{tj}, 2
    s_add_u32 s{tj}, s{tj}, s{sW}
    s_sub_u32 s{tj}, s{tj}, 4
    s_lshl_b32 s{tj}, s{tj}, 13
    v_lshlrev_b32 v1, 7, v0
    v_add_u32 v2, s{tj}, v1
    global_load_dword v251, v2, s[{tj+4}:{tj+5}]
    """)
    a(f"s_lshl_b32 s{tj}, s{T}, 2\ns_add_u32 s{tj}, s{tj}, s{sW}\ns_add_u32 s{tj+2}, s{tj}, {60 - 4}\ns_lshl_b32 s{tj+2}, s{tj+2}, 13")
    for i in range(4):
        if C.q1pf: a(f"buffer_load_dword v251, v1, {R(R_WQ)}, s{tj+2} offen\ns_add_u32 s{tj+2}, s{tj+2}, {64*8192}")
        if i == 0: a("s_barrier")
    a(f"s_branch {l2}")
    a.label(l1)
    xstat_fin(a)
    a(f"s_cmp_lg_u32 s{sW}, 0\ns_cbranch_scc1 {l4}")
    flags_zero(a)
    a.label(l4)
    a(f"s_waitcnt vmcnt(0)\ns_barrier\ns_cmp_lg_u32 s{sW}, 0\ns_cbranch_scc1 {l2}")
    nonce_issue(a, 81, 82)
    nonce_get(a, 80, 81, 82)
    a.label(l2)
    a(f"s_mul_i32 s{tj}, s{T}, 10\ns_add_u32 s{tj+7}, s{tj}, 10\ns_add_u32 s{tj}, s{tj}, s{sW}\ns_mul_i32 s{tj+1}, s{sW}, 5120")
    a.label(lj)
    projjob_issue(a, tj, tj+1, tj)
    a("s_waitcnt vmcnt(0)")
    projjob_finish(a, tj+1, tj)
    a(f"s_add_u32 s{tj}, s{tj}, 8\ns_cmp_lt_u32 s{tj}, s{tj+7}\ns_cbranch_scc1 {lj}")
    l5 = a.uid("idl")
    a(f"s_waitcnt vmcnt(0)\ns_barrier\ns_cmp_lg_u32 s{sW}, 0\ns_cbranch_scc1 {l5}")
    a(f"""
    s_lshl_b32 s{tj}, s{sWG}, 7
    s_add_u32 s{tj}, s{tj}, {L_FG + 36}
    v_mov_b32 v1, 0
    v_mov_b32 v2, s{sEP}
    """)
    flag_store(a, "sc1", tj)
    census(a, 80, 81, True)
    census(a, 80, 81, False)
    a.label(l5)
    a("s_barrier")
    read_nonce_mode(a)

HOOK = [None]
def phase_attn(a, SB, ld_label):
    fast = SB == ""
    t = T
    CH = 20480
    sQP, sKH, sSrc, sDst, sTmp, sC, sHB = t, t+1, t+2, t+3, t+4, t+5, t+8
    sEX = t+6
    sWs, sWd, sPF = t+9, t+10, t+11
    tj = 84; sJob, sScr = tj, tj + 1
    QAREA = 102400
    QA, QB = 16, 22
    NM, SS, PP, OO, KF, VF = 32, 64, 96, 112, 144, 160
    vK, vK8, vV = 2, 3, 4
    DUM = 176; XF = 177; vX1, vX2, vO = 28, 29, 30; sO, sFB = 96, 99; XB = 102400; PR = 184
    KS = [48, 54, 236, 242, 248]; VS = [144, 152, 160, 168, 40]; KF = KS[0]; VF = VS[0]
    assert C.c0
    KVB = 'nt sc1' if C.nt_kv else 'sc1'
    stamp(a, 4)
    a(f"""
    s_and_b32 s{sQP}, s{sW}, 3
    s_lshr_b32 s{sKH}, s{sW}, 2
    v_lshlrev_b32 v5, 4, v0
    s_mul_i32 s{sHB}, s{sR}, {HEADB}
    s_add_u32 s{sHB}, s{sHB}, s{sLO}
    s_and_b32 s{sTmp}, s{sQP}, 1
    s_mul_i32 s{sSrc}, s{sTmp}, 5120
    s_mul_i32 s{sDst}, s{sTmp}, 10240
    s_lshr_b32 s{sTmp}, s{sQP}, 1
    s_mul_i32 s{sC}, s{sTmp}, 5120
    s_add_u32 s{sDst}, s{sDst}, s{sC}
    s_mul_i32 s{sC}, s{sTmp}, {ACT}
    s_add_u32 s{sSrc}, s{sSrc}, s{sC}
    s_add_u32 s{sSrc}, s{sSrc}, s{sHB}
    s_add_u32 s{sSrc}, s{sSrc}, {L_K}
    """)
    def kv_issue(j):
        GF.need(0x01010101 << j)
        a(f"s_add_u32 s{sTmp}, s{sG}, {j}\ns_and_b32 s{sTmp}, s{sTmp}, 7\ns_mul_i32 s{sTmp}, s{sTmp}, 10240\ns_add_u32 s{sTmp}, s{sTmp}, s{sSrc}")
        return lin_dma(a, 5, sTmp, 0, sDst, j * CH, 5, KVB)
    def init():
        a(f"""
        v_lshrrev_b32 v14, 5, v0
        v_and_b32 v15, 31, v0
        v_lshlrev_b32 v6, 3, v15
        s_mul_i32 s{sTmp}, s{sKH}, 10240
        v_add_u32 v{vK}, s{sTmp}, v5
        v_add_u32 v{vK8}, s{sTmp}, v6
        v_mul_u32_u24 v7, 320, v14
        v_lshl_add_u32 v7, v15, 4, v7
        v_add_u32 v{vV}, s{sTmp}, v7
        s_mov_b32 s{sEX}, 0x000fffff
        s_mov_b32 s{sEX+1}, 0x000fffff
        s_mov_b32 s{t+16}, -1
        s_mov_b32 s{t+17}, 0
        v_and_b32 v9, 27, v0
        v_cmp_eq_u32 vcc, 24, v9
        v_mov_b32 v8, 0x3f803f80
        s_nop 0
        v_cndmask_b32 v8, 0, v8, vcc
        v_mov_b32 v9, v8
        v_lshlrev_b32 v13, 7, v0
        v_mov_b32 v12, 0
        """)
        for b_ in VS:
            for i in range(0, 8, 2): a(f"v_mov_b64 v[{b_+i}:{b_+i+1}], v[8:9]")
        for i in range(0, 32, 2): a(f"v_mov_b64 v[{OO+i}:{OO+i+1}], 0")
        for i in range(0, 8, 2): a(f"v_mov_b64 v[{PP+8+i}:{PP+8+i+1}], 0")
        a(f"v_mov_b64 v[{QA+4}:{QA+5}], 0\nv_mov_b64 v[{QB+4}:{QB+5}], 0")
        a(f"""
        s_mul_i32 s{sC}, s{sQP}, 7168
        s_add_u32 s{sC}, s{sC}, {XB}
        v_add_u32 v{vX1}, s{sC}, v5
        v_lshrrev_b32 v{vX2}, 1, v5
        v_add_u32 v{vX2}, s{sC}, v{vX2}
        s_lshl_b32 s{sTmp}, s{sQP}, 2
        s_add_u32 s{sTmp}, s{sTmp}, {XB + 28672}
        v_mov_b32 v{XF}, s{sTmp}
        s_mul_i32 s{sTmp}, s{sR}, 5
        v_add_u32 v{vO}, s{sTmp}, v14
        v_lshrrev_b32 v10, 1, v{vO}
        v_and_b32 v{vO}, 1, v{vO}
        v_lshlrev_b32 v{vO}, 3, v{vO}
        v_lshl_add_u32 v{vO}, v10, 9, v{vO}
        v_lshl_add_u32 v{vO}, v15, 4, v{vO}
        s_lshl_b32 s{sTmp}, s{sG}, 2
        s_add_u32 s{sTmp}, s{sTmp}, s{sQP}
        s_mul_i32 s{sO}, s{sTmp}, 81920
        {"" if fast else f"s_add_u32 s{sO}, s{sO}, s{sLO}"}
        s_add_u32 s{sO}, s{sO}, {L_O}
        s_add_u32 s{sO+1}, s{sO}, 40960
        s_mov_b32 s{sFB}, 0
        """)
        if C.c0:
            for b_ in KS: a(f"v_mov_b32 v{b_+4}, 0x3f803f80\nv_mov_b32 v{b_+5}, 0x3f80")
    init()
    l0 = a.uid("att_old"); l1 = a.uid("att_j")
    a(f"s_cmp_eq_u32 s{sKH}, 0\ns_cbranch_scc1 {l0}")
    a(f"""
    v_and_b32 v10, 1, v0
    v_mul_u32_u24 v10, 19, v10
    s_mul_i32 s{sTmp}, s{sR}, 20
    v_add_u32 v10, s{sTmp}, v10
    v_lshrrev_b32 v10, 7, v10
    v_lshlrev_b32 v10, 5, v10
    s_lshr_b32 s{sTmp}, s{sQP}, 1
    s_and_b32 s{sC}, s{sQP}, 1
    s_lshl_b32 s{sPF}, s{sTmp}, 9
    s_lshl_b32 s{sWs}, s{sC}, 2
    s_add_u32 s{sPF}, s{sPF}, s{sWs}
    v_and_b32 v11, 2, v0
    v_lshl_add_u32 v11, v11, 2, v10
    v_add_u32 v11, s{sPF}, v11
    s_mul_i32 s{sPF}, s{sTmp}, 160
    s_lshl_b32 s{sWs}, s{sC}, 9
    s_add_u32 s{sPF}, s{sPF}, s{sWs}
    s_add_u32 s{sPF}, s{sPF}, 160
    v_and_b32 v12, 6, v0
    v_lshl_add_u32 v12, v12, 1, v10
    v_add_u32 v12, s{sPF}, v12
    v_cmp_gt_u32 vcc, 8, v0
    s_lshl_b32 s{sGO}, s{sG}, 10
    s_add_u32 s{sGO}, s{sGO}, {WS_FL}
    v_cndmask_b32 v12, v12, v11, vcc
    s_add_u32 s{sGW}, s{sEP}, 1
    s_mul_i32 s{t+14}, s{sG}, 10240
    s_add_u32 s{t+14}, s{t+14}, s{sSrc}
    """)
    GL = Gate(a, 12, 11); GL.reset(); a("s_setprio 1")
    a(f"""
    s_mul_i32 s{sC}, s{sQP}, 2560
    s_add_u32 s{sPF}, s{sC}, {QAREA}
    s_mul_i32 s{sTmp}, s{sG}, 10240
    s_add_u32 s{sTmp}, s{sTmp}, s{sC}
    s_add_u32 s{sTmp}, s{sTmp}, s{sHB}
    """)
    a(f"s_add_u32 s{sC}, s{sTmp}, 1280")
    if fast and C.qloc:
        a(f"""
        s_lshl_b32 s{sWs}, s{sG}, 2
        s_add_u32 s{sWs}, s{sWs}, s{sQP}
        s_mul_i32 s{sWs}, s{sWs}, {2*F*64}
        s_mul_i32 s{sWd}, s{sR}, 1280
        s_add_u32 s{sWs}, s{sWs}, s{sWd}
        s_add_u32 s{sWs}, s{sWs}, {L_Q + 57344}
        s_add_u32 s{sWd}, s{sWs}, {F*64}
        s_cmp_lg_u32 s{sL}, 0
        s_cselect_b32 s{sTmp}, s{sWs}, s{sTmp}
        s_cselect_b32 s{sC}, s{sWd}, s{sC}
        """)
    GL.need(0xff)
    for x, sr in ((0, sTmp), (1, sC)):
        a(f"""
        s_add_u32 m0, s{sPF}, {1280*x}
        s_mov_b64 exec, -1
        buffer_load_dwordx4 v5, {WSR}, s{sr} offen {KVB} lds
        s_mov_b64 exec, 0xffff
        buffer_load_dwordx4 v5, {WSR}, s{sr} offen offset:1024 {KVB} lds
        """)
    a("s_mov_b64 exec, -1")
    GL.need(0xff00)
    stamp(a, 5)
    lv = a.uid("att_v")
    a(f"s_cmp_ge_u32 s{sQP}, 2\ns_cbranch_scc1 {lv}")
    lin_dma(a, 5, t+14, 0, sDst, 0, 2, KVB)
    a(f"s_waitcnt vmcnt(0)")
    lin_dma(a, 5, t+14, 2048, sDst, 2048, 3, KVB)
    a(f"s_branch {l1}")
    a.label(lv)
    lin_dma(a, 5, t+14, 0, sDst, 0, C.vpre, KVB)
    a(f"s_waitcnt vmcnt({C.vpre})\ns_branch {l1}")
    a.label(l0)
    a(f"""
    s_setprio 2
    v_add_u32 v10, s{sG}, v0
    v_and_b32 v10, 7, v10
    v_bfe_u32 v11, v0, 3, 1
    v_mul_u32_u24 v11, 19, v11
    s_mul_i32 s{sTmp}, s{sR}, 20
    v_add_u32 v11, s{sTmp}, v11
    v_lshrrev_b32 v11, 7, v11
    v_lshl_add_u32 v10, v10, 5, v11
    s_and_b32 s{sTmp}, s{sQP}, 1
    s_lshl_b32 s{sTmp}, s{sTmp}, 4
    s_lshr_b32 s{sC}, s{sQP}, 1
    s_mul_i32 s{sC}, s{sC}, 5
    s_add_u32 s{sTmp}, s{sTmp}, s{sC}
    s_add_u32 s{sTmp}, s{sTmp}, 5
    v_add_u32 v10, s{sTmp}, v10
    v_lshlrev_b32 v12, 7, v10
    v_lshrrev_b32 v11, 4, v0
    v_lshl_add_u32 v12, v11, 2, v12
    s_and_b32 s{sWs}, s{sR}, 7
    s_mul_i32 s{sWs}, s{sWs}, 102400
    s_mul_i32 s{sWd}, s{sW}, 5120
    s_add_u32 s{sWs}, s{sWs}, s{sWd}
    s_add_u32 s{sWs}, s{sWs}, {WS_WTO}
    s_add_u32 s{sGO}, s{sLO}, {L_FG}
    s_add_u32 s{sGW}, s{sEP}, 1
    """)
    def cpf(lo, hi):
        l = a.uid("cpf"); pc = a.uid("pc")
        a(f"s_or_b32 s{sC}, s{sL}, s{sW}\ns_cmp_lg_u32 s{sC}, 0\ns_cbranch_scc1 {l}\ns_getpc_b64 s[{t+12}:{t+13}]")
        a.label(pc)
        a(f"""
        s_sub_u32 s{t+12}, s{t+12}, {pc}-{NAME}_kernel
        s_subb_u32 s{t+13}, s{t+13}, 0
        s_lshl_b32 s{sC}, s{sR}, 11
        s_add_u32 s{sC}, s{sC}, {lo}-{NAME}_kernel
        v_add_u32 v{PV+2}, s{sC}, v13
        v_min_u32 v{PV+2}, {hi}-{NAME}_kernel, v{PV+2}
        s_mov_b64 exec, 0xffff
        global_load_dword v{DUM}, v{PV+2}, s[{t+12}:{t+13}]
        s_mov_b64 exec, -1
        """)
        a.label(l)
    if fast and C.cpf: cpf("L_fast", "L_fast_post")
    a.label(l1)
    GF = Gate(a, 12, PV, fold=True, sleep=2)
    a(f"""
    s_mul_i32 s{sC}, s{sQP}, 2560
    s_add_u32 s{sC}, s{sC}, {QAREA}
    v_add_u32 v10, s{sC}, v5
    v_add_u32 v11, s{sC}, v6
    s_barrier
    ds_read_b128 v[{QA}:{QA+3}], v10
    ds_read_b128 v[{QB}:{QB+3}], v10 offset:1280
    s_mov_b32 exec_hi, 0
    ds_read_b64 v[{QA+4}:{QA+5}], v11 offset:1024
    ds_read_b64 v[{QB+4}:{QB+5}], v11 offset:{1280+1024}
    s_mov_b32 exec_hi, -1
    """)
    stamp(a, 6)
    l1 = a.uid("att_ap")
    a(f"s_cmp_lg_u32 s{sKH}, 0\ns_cbranch_scc1 {l1}")
    if not C.gfl: GF.load()
    a.label(l1)
    l1 = a.uid("att_v2")
    a(f"s_cmp_lt_u32 s{sW}, 6\ns_cbranch_scc1 {l1}")
    lin_dma(a, 5, t+14, 1024*C.vpre, sDst, 1024*C.vpre, 5 - C.vpre, KVB)
    a.label(l1)
    base = [0]
    def rdK(st, c, kt):
        off = c * CH + kt * 1280 - base[0]
        assert 0 <= off and off + 1024 < 65536
        b = KS[st]
        if C.c0: return [f"s_mov_b64 exec, s[{t+16}:{t+17}]", f"ds_read_b64 v[{b+4}:{b+5}], v{vK8} offset:{off+1024}", "s_mov_b64 exec, -1", f"ds_read_b128 v[{b}:{b+3}], v{vK} offset:{off}"]
        return [f"ds_read_b128 v[{b}:{b+3}], v{vK} offset:{off}", f"ds_read_b64 v[{b+4}:{b+5}], v{vK8} offset:{off+1024}"]
    def rdV(st, c, kt):
        off = c * CH + 5120 + kt * 1280 - base[0]
        assert 0 <= off and off + 640 < 65536
        b = VS[st]
        return [f"s_mov_b64 exec, s[{sEX}:{sEX+1}]", f"ds_read_b128 v[{b}:{b+3}], v{vV} offset:{off}",
                f"ds_read_b128 v[{b+4}:{b+7}], v{vV} offset:{off+640}", f"s_mov_b64 exec, -1"]
    def qk(x, st, c=None):
        b = KS[st]; q = (QA, QB)[x]; sd = SS + 16*x
        cc = v(NM + 16*x, 16) if (c is None and not C.c0) else '0'
        if C.x8f: return [f"v_mfma_f32_32x32x8_bf16 {v(sd,16)}, {v(b+4,2)}, {v(q+4,2)}, 0", f"v_mfma_f32_32x32x16_bf16 {v(sd,16)}, {v(b,4)}, {v(q,4)}, {v(sd,16)}"]
        return [f"v_mfma_f32_32x32x16_bf16 {v(sd,16)}, {v(b,4)}, {v(q,4)}, {cc}",
                f"v_mfma_f32_32x32x8_bf16 {v(sd,16)}, {v(b+4,2)}, {v(q+4,2)}, {v(sd,16)}"]
    def pv(x, st):
        b = VS[st]; p = PP + 8*x; o = OO + 16*x
        return [f"v_mfma_f32_32x32x16_bf16 {v(o,16)}, {v(b,4)}, {v(p,4)}, {v(o,16)}",
                f"v_mfma_f32_32x32x16_bf16 {v(o,16)}, {v(b+4,4)}, {v(p+4,4)}, {v(o,16)}"]
    def sm(x):
        sd = SS + 16*x; p = PP + 8*x; r = []
        for i in range(8):
            r.append(f"v_exp_f32 v{sd+2*i}, v{sd+2*i}")
            r.append(f"v_exp_f32 v{sd+2*i+1}, v{sd+2*i+1}")
            if i > 0: r.append(f"v_cvt_pk_bf16_f32 v{p+i-1}, v{sd+2*i-2}, v{sd+2*i-1}")
        r.append(f"v_cvt_pk_bf16_f32 v{p+7}, v{sd+14}, v{sd+15}")
        return r
    def setm():
        for x in range(2): a(f"v_mov_b32 v{10+x}, v{8+x}")
        a("s_nop 0")
        for x in range(2): a(f"v_permlane32_swap_b32 v{8+x}, v{10+x}")
        a("s_nop 0")
        for x in range(2): a(f"v_max_f32 v{8+x}, v{8+x}, v{10+x}")
        if C.c0:
            a("s_mov_b32 exec_lo, 0")
            for x in range(2):
                q = (QA, QB)[x] + 4; r = NM + 4*x
                a(f"""
                v_sub_f32 v{r}, 0, v{8+x}
                v_and_b32 v{r+1}, 0xffff0000, v{r}
                v_sub_f32 v{r+2}, v{r}, v{r+1}
                v_and_b32 v{r+3}, 0xffff0000, v{r+2}
                v_sub_f32 v{r+2}, v{r+2}, v{r+3}
                v_lshrrev_b32 v{r+1}, 16, v{r+1}
                v_or_b32 v{q}, v{r+1}, v{r+3}
                v_lshrrev_b32 v{q+1}, 16, v{r+2}
                """)
            a("s_mov_b32 exec_lo, -1")
            return
        for x in range(2):
            a(f"v_sub_f32 v{NM+16*x}, 0, v{8+x}\nv_sub_f32 v{NM+16*x+1}, 0, v{8+x}")
            for i in range(2, 16, 2): a(f"v_mov_b64 v[{NM+16*x+i}:{NM+16*x+i+1}], v[{NM+16*x}:{NM+16*x+1}]")
    for x in rdK(0, 0, 0): a(x)
    a("s_waitcnt lgkmcnt(0)")
    m = qk(0, 0, "0") + qk(1, 0, "0")
    for i in (0, 1, 2, 3): a(m[i])
    a.nop(10)
    for x in range(2):
        sd = SS + 16*x
        a(f"v_max3_f32 v{8+x}, v{sd}, v{sd+1}, v{sd+2}")
        for i in range(3, 15, 2):
            a(f"v_max3_f32 v{8+x}, v{8+x}, v{sd+i}, v{sd+i+1}")
        a(f"v_max_f32 v{8+x}, v{8+x}, v{sd+15}")
    setm()
    for i in range(16): a(f"v_sub_f32 v{SS+i}, v{SS+i}, v8")
    l1 = a.uid("att_w0"); l2 = a.uid("att_w1")
    sDone = t + 15
    a(f"s_cmp_eq_u32 s{sKH}, 0\ns_cbranch_scc1 {l1}")
    if C.bc:
        assert C.vpre >= 2
        a(f"s_waitcnt vmcnt(3)\ns_cmp_ge_u32 s{sQP}, 2\ns_cbranch_scc1 {l2}b\ns_waitcnt vmcnt(2)")
        a.label(l2 + "b")
    else: a("s_waitcnt vmcnt(0)")
    a(f"s_barrier\ns_branch {l2}")
    a.label(l1)
    if C.gfl: GF.load()
    a("s_barrier")
    GF.upd()
    a(f"s_and_b32 s{sDone}, s{sNR}, 0x02020202\ns_cbranch_scc1 {l2}")
    GF.ok = 0x02020202; kv_issue(1); GF.ok = 0
    a.label(l2)
    stamp(a, 7)
    cstamp(a, 0)
    def l0only(fn):
        l = a.uid("l0")
        a(f"s_cmp_lg_u32 s{sL}, 0\ns_cbranch_scc1 {l}")
        fn(); a.label(l)
    def l2pf(i0, n):
        for i in range(i0, min(i0 + n, (C.l2pf + 3) // 4)):
            l = a.uid("pfs")
            a(f"""
            s_cmp_ge_u32 s{sW}, {C.l2pf - 4*i}
            s_cbranch_scc1 {l}
            s_lshr_b32 s{sPF}, s{sR}, 4
            s_mul_i32 s{sPF}, s{sPF}, {15 if C.rot_gu else 1}
            s_mul_i32 s{sC}, s{sW}, {1 if C.rot_gu else 2}
            s_add_u32 s{sPF}, s{sPF}, s{sC}
            s_add_u32 s{sPF}, s{sPF}, {4*i if C.rot_gu else 8*i}
            s_lshl_b32 s{sPF}, s{sPF}, 13
            s_and_b32 s{sC}, s{sR}, 15
            s_mul_i32 s{sC}, s{sC}, 245760
            s_add_u32 s{sPF}, s{sPF}, s{sC}
            s_add_u32 s{sPF}, s{sPF}, {WS_WTG}
            buffer_load_dword v{DUM}, v13, {WSR}, s{sPF} offen
            """)
            a.label(l)
    def evpf(i):
        a(f"""
        s_lshr_b32 s{sPF}, s{sR}, 4
        s_lshl_b32 s{sC}, s{sW}, 1
        s_add_u32 s{sPF}, s{sPF}, s{sC}
        s_mul_i32 s{sPF}, s{sPF}, 24576
        s_and_b32 s{sC}, s{sR}, 15
        s_mul_i32 s{sC}, s{sC}, 245760
        s_add_u32 s{sPF}, s{sPF}, s{sC}
        s_add_u32 s{sPF}, s{sPF}, {WS_WTG + 49152 + 8192*i}
        buffer_load_dword v{DUM}, v13, {WSR}, s{sPF} offen
        """)
    if C.ev1:
        l2pf = lambda i0, n: [evpf(i) for i in range(i0, min(i0 + n, C.ev1))]
    def wwo(c): lin_dma(a, 5, sWs, c*20480, sWd, c*20480, 5, 'nt' if C.nt_wo else '')
    def fp():
        a(f"""
        s_lshl_b32 s{sC}, s{sWG}, 5
        s_add_u32 s{sC}, s{sC}, s{sW}
        s_lshl_b32 s{sC}, s{sC}, 2
        s_add_u32 s{sC}, s{sC}, {L_FG + 16}
        v_mov_b32 v10, 0
        v_mov_b32 v11, s{sEP}
        s_mov_b64 exec, 1
        buffer_store_dword v11, v10, {WSR}, s{sC} offen sc1
        s_mov_b64 exec, -1
        """)
    def cs1():
        l = a.uid("cs")
        a(f"s_cmp_lg_u32 s{sW}, 3\ns_cbranch_scc1 {l}\ns_mov_b32 exec_hi, 0xffff")
        a(f"s_and_b32 s{sC}, s{sR}, 15\ns_mul_i32 s{sC}, s{sC}, 768\ns_add_u32 s{sC}, s{sC}, {WS_CSP}")
        for i in range(10):
            a(f"buffer_load_dwordx4 v[{PV+4*i}:{PV+3+4*i}], v5, {WSR}, s{sC} offen\ns_add_u32 s{sC}, s{sC}, 12288")
        a("s_mov_b32 exec_hi, -1")
        a.label(l)
    def cs2():
        l = a.uid("cs")
        a(f"s_cmp_lg_u32 s{sW}, 3\ns_cbranch_scc1 {l}\ns_mov_b32 exec_hi, 0xffff")
        for i in range(1, 10):
            a(f"v_pk_add_f32 v[{PV}:{PV+1}], v[{PV}:{PV+1}], v[{PV+4*i}:{PV+1+4*i}]\nv_pk_add_f32 v[{PV+2}:{PV+3}], v[{PV+2}:{PV+3}], v[{PV+2+4*i}:{PV+3+4*i}]")
        a(f"s_mul_i32 s{T+18}, s{sWG}, 768\ns_add_u32 s{T+18}, s{T+18}, {WS_CSG}\nv_lshlrev_b32 v{PV+4}, 4, v0")
        a(f"buffer_store_dwordx4 v[{PV}:{PV+3}], v{PV+4}, {WSR}, s{T+18} offen\ns_mov_b32 exec_hi, -1\ns_nop 1")
        a.label(l)
    def fpw():
        a(f"s_lshl_b32 s{sC}, s{sW}, 13\ns_add_u32 s{sC}, s{sC}, {L_FG + 16}")
        poll(a, 13, PV, f"s{sC}", f"s{sEP}", sleep=2, wide=True)
    def wow():
        a(f"v_and_b32 v{PV+1}, 15, v0\nv_lshlrev_b32 v{PV+1}, 11, v{PV+1}\ns_mov_b32 s{sC}, {L_FG + 15*128 + 36}")
        poll(a, PV + 1, PV, f"s{sC}", f"s{sEP}", sleep=2)
    def l1only(fn):
        l = a.uid("l1")
        a(f"s_cmp_eq_u32 s{sL}, 0\ns_cbranch_scc1 {l}")
        fn(); a.label(l)
    def hook(j):
        if C.x_nh:
            l_ = a.uid("nh"); a(f"s_cmp_lg_u32 s{sL}, 0\ns_cbranch_scc1 {l_}"); C.x_nh = 0; hook(j); C.x_nh = 1; a.label(l_); return
        if j == 1:
            kv_issue(2); kv_issue(3); a("s_waitcnt vmcnt(10)")
        GF.ok &= 0x0f0f0f0f
        W = lambda n_: a(f"s_waitcnt vmcnt({n_})")
        if j == 2: l0only(lambda: (W(0), prep(a, 0))); l1only(lambda: (W(5), kv_issue(4)))
        if j == 3:
            l0only(lambda: (kv_issue(4), kv_issue(5))); GF.ok &= 0x0f0f0f0f
            l1only(lambda: (W(5), kv_issue(5), kv_issue(6)))
        if j == 4: l0only(lambda: (W(5), prep(a, 1))); l1only(lambda: (W(10), kv_issue(7)))
        if j == 5: l0only(lambda: (wow(), fp(), kv_issue(6), kv_issue(7))); l1only(lambda: (W(10), wwo(0), wwo(1), l2pf(0, 1)))
        if j == 6:
            l0only(lambda: (W(0), wwo(0), wwo(1))); l1only(lambda: W(10))
            wwo(2); wwo(3)
            if fast and C.cpf: cpf("L_fast_tail", "L_fast_end")
            l1only(lambda: l2pf(1, 1))
        if j == 7:
            def evearly():
                a(f"""
                s_lshr_b32 s{sPF}, s{sR}, 4
                s_lshl_b32 s{sC}, s{sW}, 1
                s_add_u32 s{sPF}, s{sPF}, s{sC}
                s_mul_i32 s{sPF}, s{sPF}, {24*128}
                s_add_u32 s{sPF}, s{sPF}, {L_FG + 48*128 + 16}
                s_and_b32 s{sC}, s{sR}, 15
                s_mul_i32 s{sC}, s{sC}, 6
                v_and_b32 v{PV+1}, 1, v0
                v_mul_u32_u24 v{PV+1}, 5, v{PV+1}
                v_add_u32 v{PV+1}, s{sC}, v{PV+1}
                v_lshrrev_b32 v{PV+1}, 2, v{PV+1}
                v_lshlrev_b32 v{PV+1}, 7, v{PV+1}
                v_bfe_u32 v{PV}, v0, 1, 1
                v_mad_u32_u24 v{PV+1}, v{PV}, 12, v{PV+1}
                """)
                poll(a, PV + 1, PV, f"s{sPF}", f"s{sEP}", sleep=2)
                evpf(2)
            l0only(lambda: (fpw(), evearly() if C.evh else None))
            wwo(4)
            l1only(lambda: l2pf(2, 2))
        if fast and j == C.oxh:
            a(f"""
            s_lshl_b32 s{sPF}, s{sWG}, 1
            s_and_b32 s{sC}, s{sW}, 1
            s_add_u32 s{sPF}, s{sPF}, s{sC}
            s_mul_i32 s{sPF}, s{sPF}, 5120
            s_mov_b32 s{sC}, {L_O}
            s_bitcmp1_b32 s{sW}, 1
            s_cselect_b32 s{sC}, {L_X1}, s{sC}
            s_add_u32 s{sPF}, s{sPF}, s{sC}
            s_mov_b32 exec_hi, 0xff
            buffer_load_dword v{DUM}, v13, {WSR}, s{sPF} offen
            s_lshl_b32 s{sTmp}, s{sWG}, 9
            s_add_u32 s{sTmp}, s{sTmp}, s{sLO}
            s_add_u32 s{sTmp}, s{sTmp}, {L_ST1}
            s_bitcmp1_b32 s{sW}, 0
            s_cselect_b32 s{sC}, {L_ST2 - L_ST1}, 0
            s_add_u32 s{sTmp}, s{sTmp}, s{sC}
            s_mov_b64 exec, 15
            buffer_load_dword v{DUM}, v13, {WSR}, s{sTmp} offen
            s_mov_b64 exec, -1
            """)
        if fast and j == C.hth:
            a(f"""
            s_lshl_b32 s{sPF}, s{sWG}, 2
            s_add_u32 s{sPF}, s{sPF}, s{sQP}
            s_mul_i32 s{sPF}, s{sPF}, 6144
            s_add_u32 s{sPF}, s{sPF}, {L_Q}
            s_mov_b32 exec_hi, 0xffff
            buffer_load_dword v{DUM}, v13, {WSR}, s{sPF} offen
            s_mov_b32 exec_hi, -1
            """)
    def xreads():
        r = [f"ds_read_b32 v31, v{XF}"]
        for x in range(2): r.append(f"ds_read_b64 v[{PR+12+16*x}:{PR+13+16*x}], v{vX2} offset:{3584*x+3072}")
        for x in range(2):
            for i in range(3): r.append(f"ds_read_b128 v[{PR+16*x+4*i}:{PR+16*x+4*i+3}], v{vX1} offset:{3584*x+1024*i}")
        return r
    outl = []; pendw = [None]
    for c in range(8):
        for kt in range(4):
            st = kt & 1
            last = c == 7 and kt == 3
            if c == 0 and kt == 1:
                hk = a.uid("att_hk")
                if C.bc:
                    a(f"s_cmp_eq_u32 s{sKH}, 0\ns_cbranch_scc1 {hk}\ns_waitcnt vmcnt(0)\ns_barrier"); a.label(hk + "r")
                else: a(f"s_cmp_eq_u32 s{sKH}, 0\ns_cbranch_scc1 {hk}"); a.label(hk + "r")
                def h0():
                    if C.bc: a("s_barrier")
                    l = a.uid("h0")
                    a(f"s_cmp_eq_u32 s{sDone}, 0\ns_cbranch_scc1 {l}")
                    kv_issue(1)
                    a.label(l)
                outl.append((hk, h0))
            j = c + 1 if (kt == 3 and c < 6) else (7 if (c == 7 and kt == 0) else None)
            if j:
                hk = a.uid("att_hk")
                dstamp(a, 6, 3*j)
                a(f"s_cmp_eq_u32 s{sKH}, 0\ns_cbranch_scc1 {hk}")
                if C.flip and j < 7 and (C.flipm >> j) & 1:
                    l_ = a.uid("fl")
                    if not (C.flip0 >> j) & 1: a(f"s_cmp_eq_u32 s{sL}, 0\ns_cbranch_scc1 {hk}r")
                    a("s_setprio 3")
                a.label(hk + "r")
                dstamp(a, 6, 3*j+1)
                a("s_barrier")
                dstamp(a, 6, 3*j+2)
                cstamp(a, j)
                outl.append((hk, (lambda jj: (lambda: hook(jj)))(j)))
                if j == 7 and C.ev0:
                    hk = a.uid("att_hk")
                    a(f"s_or_b32 s{sC}, s{sKH}, s{sL}\ns_cbranch_scc0 {hk}"); a.label(hk + "r")
                    outl.append((hk, lambda: [evpf(i) for i in range(C.ev0)]))
            if C.flip and 1 <= c < 7 and kt == C.flip - 1 and (C.flipm >> c) & 1: a("s_setprio 2")
            T_ = 4*c + kt
            G_n = {0: 1, 1: 2}.get(T_, (C.ag if (T_ + 1) % C.ag == 0 and T_ >= 3 else 0))
            if C.ag == 1: G_n = 1
            val = sm(0)
            mf = qk(1, T_ % 5) + pv(1, (T_ - 1) % 5)
            e1 = []; e2 = []; e3 = []; wB = pendw[0]; pendw[0] = None
            if G_n:
                hi = min(31, T_ + G_n)
                if (hi // 4) * CH + 9600 - base[0] >= 65536:
                    e1 += [f"v_add_u32 v{r}, {c*CH - base[0]}, v{r}" for r in (vK, vK8, vV)]; base[0] = c * CH
                vs = [rdV(x % 5, x // 4, x % 4) for x in range(T_, min(32, T_ + G_n))]
                ks = [rdK(x % 5, x // 4, x % 4) for x in range(T_ + 1, min(32, T_ + G_n + 1))]
                if ks: e1 += [ks[0][3], ks[0][0]] + [k_[1] for k_ in ks]
                e1 += [vs[0][0]] + [x for v_ in vs for x in v_[1:3]] + [vs[0][3]]
                e2 = [k_[3] for k_ in ks[1:]]
                late_n = 2*(len(vs) - 1) + len(e2)
                if G_n > 2 and late_n: wB = late_n; pendw[0] = 0
                else: wB = 0
            a(mf[0]); [a(x) for x in e1]; [a(x) for x in val[0:6]]
            a(mf[2]); [a(x) for x in e2]; [a(x) for x in val[6:12]]
            a(mf[1]); [a(x) for x in val[12:18]]
            a(mf[3]); [a(x) for x in val[18:]]
            val = sm(1)
            if wB is not None: a(f"s_waitcnt lgkmcnt({wB})")
            if not last:
                mf = qk(0, (T_ + 1) % 5) + pv(0, T_ % 5)
                a(mf[0]); [a(x) for x in val[0:6]]
                a(mf[2]); [a(x) for x in val[6:12]]
                a(mf[1]); [a(x) for x in val[12:18]]
                a(mf[3]); [a(x) for x in val[18:]]
            else:
                mf = pv(0, T_ % 5) + pv(1, T_ % 5)
                a(mf[0]); [a(x) for x in val[0:6]]
                a(mf[1]); [a(x) for x in xreads()]; [a(x) for x in val[6:16]]
                a(mf[2]); [a(x) for x in val[16:]]
                a("s_nop 1"); a(mf[3])
    if fast: a.label("L_fast_tail")
    stamp(a, 8)
    cstamp(a, 8)
    fb = a.uid("att_fb"); comb = a.uid("att_comb"); done = a.uid("att_done"); yng = a.uid("att_y")
    def check():
        a(f"v_add_f32 v10, v{OO+12}, v{PR+12}\nv_add_f32 v11, v{OO+16+12}, v{PR+16+12}")
        a(f"v_mul_f32 v10, {f32(2.0**63)}, v10\nv_mul_f32 v11, {f32(2.0**63)}, v11")
        a(f"v_add_f32 v10, v10, v10\nv_add_f32 v11, v11, v11\nv_mul_f32 v10, 0, v10\nv_mul_f32 v11, 0, v11")
        for i in range(12): a(f"v_fmac_f32 v10, 0, v{OO+i}\nv_fmac_f32 v11, 0, v{OO+16+i}")
        a(f"v_cmp_u_f32 vcc, v10, v11\ns_cbranch_vccnz {fb}")
    a(f"s_cmp_eq_u32 s{sKH}, 0\ns_cbranch_scc1 {yng}")
    def older():
        a.label(yng)
        a("s_waitcnt lgkmcnt(0)")
        a.nop(9)
        a(f"v_mov_b32 v{OO+13}, v8\nv_mov_b32 v{OO+16+13}, v9\nv_mov_b32 v10, s{sEP}")
        for x in range(2):
            for i in range(3):
                a(f"ds_write_b128 v{vX1}, v[{OO+16*x+4*i}:{OO+16*x+4*i+3}] offset:{3584*x+1024*i}")
            a(f"ds_write_b64 v{vX2}, v[{OO+16*x+12}:{OO+16*x+13}] offset:{3584*x+3072}")
        a(f"ds_write_b32 v{XF}, v10")
        l0only(cs1)
        a("s_waitcnt lgkmcnt(0)")
        HOOK[0] = lambda: l0only(cs2)
        stamp(a, 9)
    pl = a.uid("att_x")
    a(f"s_waitcnt lgkmcnt(0)\nv_cmp_ne_u32 vcc, s{sEP}, v31\ns_cbranch_vccnz {pl}")
    a.label(pl + "k")
    def respin():
        a.label(comb)
        a(f"s_mov_b32 s{sFB}, 1")
        for x in range(2):
            for i in range(13): a(f"v_mov_b32 v{PR+16*x+i}, 0")
            a(f"v_mov_b32 v{PR+16*x+13}, v{8+x}")
        a(f"s_branch {pl}k")
        a.label(pl)
        a(f"s_mov_b32 s{t+12}, 0")
        a.label(pl + "l")
        for x in xreads(): a(x)
        a(f"""
        s_waitcnt lgkmcnt(0)
        v_cmp_ne_u32 vcc, s{sEP}, v31
        s_cbranch_vccz {pl}k
        s_add_u32 s{t+12}, s{t+12}, 1
        s_cmp_lt_u32 s{t+12}, {4*SPIN}
        s_cbranch_scc1 {pl}l
        s_branch {pl}k
        """)
    FF = 64
    for x in range(2):
        f = FF + 4*x
        a(f"v_max_f32 v{f+2}, v{8+x}, v{PR+13+16*x}\nv_sub_f32 v{f}, v{8+x}, v{f+2}\nv_sub_f32 v{f+1}, v{PR+13+16*x}, v{f+2}")
    for x in range(2):
        f = FF + 4*x
        a(f"v_exp_f32 v{f}, v{f}\nv_exp_f32 v{f+1}, v{f+1}")
    for x in range(2):
        f = FF + 4*x; o = OO + 16*x; pk = 72 + 6*x
        a(f"v_mul_f32 v{f+2}, v{f}, v{o+12}\nv_fmac_f32 v{f+2}, v{f+1}, v{PR+12+16*x}\nv_rcp_f32 v{f+2}, v{f+2}\ns_nop 0")
        a(f"v_mul_f32 v{f}, v{f}, v{f+2}\nv_mul_f32 v{f+2}, v{f+1}, v{f+2}")
        for i in range(0, 12, 2):
            a(f"v_pk_mul_f32 v[{o+i}:{o+i+1}], v[{o+i}:{o+i+1}], v[{f}:{f+1}] op_sel_hi:[1,0]")
        for i in range(0, 12, 2):
            a(f"v_pk_fma_f32 v[{o+i}:{o+i+1}], v[{PR+16*x+i}:{PR+1+16*x+i}], v[{f+2}:{f+3}], v[{o+i}:{o+i+1}] op_sel_hi:[1,0,1]")
        for i in range(6):
            a(f"v_cvt_pk_bf16_f32 v{pk+i}, v{o+2*i}, v{o+2*i+1}")
        a(f"""
        buffer_store_dwordx2 v[{pk}:{pk+1}], v{vO}, {WSR}, s{sO+x} offen {SB}
        buffer_store_dwordx2 v[{pk+2}:{pk+3}], v{vO}, {WSR}, s{sO+x} offen offset:512 {SB}
        s_mov_b32 exec_hi, 0
        buffer_store_dwordx2 v[{pk+4}:{pk+5}], v{vO}, {WSR}, s{sO+x} offen offset:1024 {SB}
        s_mov_b32 exec_hi, -1
        """)
    nck = a.uid("att_nc")
    a(f"s_cmp_lg_u32 s{sFB}, 0\ns_cbranch_scc1 {nck}")
    check()
    a.label(nck)
    flag_setup(a, 2)
    a("s_setprio 0\ns_waitcnt vmcnt(0)")
    flag_store(a, SB)
    a("s_barrier")
    stamp(a, 9)
    a(f"s_branch {ld_label}")
    for hk, fn in outl:
        a.label(hk); fn(); a(f"s_branch {hk}r")
    respin()
    older()
    def fallback():
        a.label(fb)
        sKb, sVb, sI = t+12, t+13, t+14
        def addr():
            a(f"""
            s_mul_i32 s{sKb}, s{sI}, 1280
            s_add_u32 s{sKb}, s{sKb}, s{sHB}
            s_add_u32 s{sVb}, s{sKb}, {L_V}
            s_add_u32 s{sKb}, s{sKb}, {L_K}
            buffer_load_dwordx4 v[{KF}:{KF+3}], v5, {WSR}, s{sKb} offen sc1
            s_mov_b32 exec_hi, {0 if C.c0 else -1}
            buffer_load_dwordx2 v[{KF+4}:{KF+5}], v6, {WSR}, s{sKb} offen offset:1024 sc1
            s_mov_b32 exec_hi, -1
            """)
        l1 = a.uid("att_fb1"); l2 = a.uid("att_fb2")
        a(f"s_mov_b32 s{sI}, 0\nv_mov_b32 v8, 0xff800000\nv_mov_b32 v9, 0xff800000")
        a(f"s_mov_b32 exec_lo, 0\nv_mov_b64 v[{QA+4}:{QA+5}], 0\nv_mov_b64 v[{QB+4}:{QB+5}], 0\ns_mov_b32 exec_lo, -1")
        a.label(l1)
        addr()
        a("s_waitcnt vmcnt(0)")
        for x in range(2):
            for m in qk(x, 0, "0"): a(m)
        a.nop(12)
        for x in range(2):
            sd = SS + 16*x
            for i in range(0, 16, 2): a(f"v_max3_f32 v{8+x}, v{8+x}, v{sd+i}, v{sd+i+1}")
        a(f"s_add_u32 s{sI}, s{sI}, 1\ns_cmp_lt_u32 s{sI}, 64\ns_cbranch_scc1 {l1}")
        setm()
        for i in range(32): a(f"v_mov_b32 v{OO+i}, 0")
        a(f"s_mov_b32 s{sI}, 0")
        a.label(l2)
        addr()
        a(f"""
        s_mov_b64 exec, s[{sEX}:{sEX+1}]
        buffer_load_dwordx4 v[{VF}:{VF+3}], v7, {WSR}, s{sVb} offen sc1
        buffer_load_dwordx4 v[{VF+4}:{VF+7}], v7, {WSR}, s{sVb} offen offset:640 sc1
        s_mov_b64 exec, -1
        s_waitcnt vmcnt(0)
        """)
        for x in range(2):
            for m in qk(x, 0): a(m)
        a.nop(12)
        for x in range(2):
            for i in sm(x): a(i)
        a("s_nop 1")
        for x in range(2):
            for m in pv(x, 0): a(m)
        a(f"s_add_u32 s{sI}, s{sI}, 1\ns_cmp_lt_u32 s{sI}, 64\ns_cbranch_scc1 {l2}")
        a.nop(12)
        a(f"s_branch {comb}")
    return fallback

def xoff(SB, which):
    if SB == "": return (False, L_X1)
    return (True, L_X1) if which == 1 else (False, L_X2)
def add_x(a, dst, src, SB, which):
    lo, c = xoff(SB, which)
    a(f"s_add_u32 s{dst}, s{src}, {c}")
    if lo: a(f"s_add_u32 s{dst}, s{dst}, s{sLO}")

def proj_compute(a, down, SB, end_label):
    fast = SB == ""
    t = T
    K = F if down else D
    NCH = K // 128
    sRT, sCT = t, t+1
    st0 = 13 if down else 10
    sF, sRM, sST, sA, sA1, sThr, sSel = t+4, t+5, t+12, t+2, t+3, t+9, t+10
    NWS = 3 if down else C.wo_sets
    ACC = 14; RX = 34; AF = 54; WF = 134 if down else 54 + 16*C.wo_nas; RES = (220 if down else 54); VST = 200
    assert WF + 20*NWS <= 254
    vF, vF2, vR, vR2 = 10, 11, 12, 13
    a(f"""
    s_lshr_b32 s{sRT}, s{sWG}, 3
    s_and_b32 s{sCT}, s{sR}, 7
    v_and_b32 v3, 15, v0
    v_lshrrev_b32 v7, 4, v0
    s_lshl_b32 s{t+6}, s{sRT}, 1
    s_lshr_b32 s{t+7}, s{sW}, 1
    s_add_u32 s{t+6}, s{t+6}, s{t+7}
    s_and_b32 s{t+8}, s{sW}, 1
    s_lshl_b32 s{t+8}, s{t+8}, 8
    s_mul_i32 s{sA}, s{t+6}, {K*64}
    s_add_u32 s{sA}, s{sA}, s{t+8}
    {"" if fast else f"s_add_u32 s{sA}, s{sA}, s{sLO}"}
    s_add_u32 s{sA}, s{sA}, {(L_Q if fast else L_H) if down else L_O}
    s_mul_i32 s{sF}, s{t+6}, 40960
    s_mul_i32 s{t+7}, s{sCT}, 5120
    s_add_u32 s{sF}, s{sF}, s{t+7}
    s_add_u32 s{sF}, s{sF}, s{t+8}
    s_lshl_b32 s{sST}, s{sW}, 8
    s_lshl_b32 s{t+7}, s{sRT}, 12
    s_add_u32 s{sST}, s{sST}, s{t+7}
    s_add_u32 s{sST}, s{sST}, s{sLO}
    s_lshl_b32 s{sRM}, s{sRT}, 2
    s_add_u32 s{sRM}, s{sRM}, s{sW}
    s_mul_i32 s{sRM}, s{sRM}, {16*1280}
    s_mul_i32 s{t+7}, s{sCT}, 160
    s_add_u32 s{sRM}, s{sRM}, s{t+7}
    v_lshlrev_b32 v1, 4, v3
    v_lshl_add_u32 v{vF}, v7, 9, v1
    v_lshrrev_b32 v2, 5, v0
    v_lshl_add_u32 v1, v2, 9, v1
    v_and_b32 v2, 1, v7
    v_lshl_add_u32 v{vF2}, v2, 3, v1
    v_add_u32 v{vF2}, 4096, v{vF2}
    v_mul_u32_u24 v1, 1280, v3
    v_lshl_add_u32 v{vR}, v7, 4, v1
    v_lshl_add_u32 v{vR2}, v7, 3, v1
    v_add_u32 v9, 4096, v{vF}
    """)
    if C.x_a == 1 and not down: a(f"s_lshr_b32 s{sA}, s{sW}, 1\ns_mul_i32 s{sA}, s{sA}, 40960\ns_add_u32 s{sA}, s{sA}, s{t+8}\ns_add_u32 s{sA}, s{sA}, {WS_WTG}")
    SA = Src(sA, sA1, sThr, 8192)
    if down:
        a(f"s_and_b32 s{t+7}, s{sRT}, 3\ns_mul_i32 s{t+7}, s{t+7}, {C.rot_dn}\ns_sub_u32 s{sThr}, 12, s{t+7}")
        SA.setup(a, t+7, 12, t+8)
    def io(store, rowmajor, rsrc, soff, reg, bits):
        op = "store" if store else "load"
        v16, v8 = (vR, vR2) if rowmajor else (vF, vF2)
        o1, o2 = (64, 128) if rowmajor else (2048, 0)
        return [f"buffer_{op}_dwordx4 v[{reg}:{reg+3}], v{v16}, {rsrc}, {soff} offen {bits}",
                f"buffer_{op}_dwordx4 v[{reg+4}:{reg+7}], v{v16}, {rsrc}, {soff} offen offset:{o1} {bits}",
                f"buffer_{op}_dwordx2 v[{reg+8}:{reg+9}], v{v8}, {rsrc}, {soff} offen offset:{o2} {bits}"]
    xld = []; xv = []
    if down:
        add_x(a, t+13, sF, SB, 1)
        a(f"s_add_u32 s{t+14}, s{sST}, {L_ST1}\nv_lshlrev_b32 v8, 4, v3")
        xld = io(False, False, WSR, f"s{t+13}", RES, "sc1") + [f"buffer_load_dwordx4 v[{VST+4*i}:{VST+4*i+3}], v8, {WSR}, s{t+14} offen offset:{1024*i} sc1" for i in range(4)]
    else:
        l1 = a.uid("prj_r1"); l2 = a.uid("prj_r2")
        a(f"s_cmp_lg_u32 s{sL}, 0\ns_cbranch_scc1 {l1}")
        for x in io(False, True, R(R_X), f"s{sRM}", RES, ""): a(x)
        a(f"s_branch {l2}")
        a.label(l1)
        add_x(a, t+7, sF, SB, 2)
        for x in io(False, False, WSR, f"s{t+7}", RES, "sc1"): a(x)
        a.label(l2)
        a("s_setprio 0\ns_waitcnt vmcnt(0)\ns_barrier")
        HOOK[0]()
    a(f"v_lshlrev_b32 v4, 4, v0\nv_add_u32 v5, 61440, v4\nv_add_u32 v6, 122880, v4\ns_mov_b32 s{t+8}, 0xffff0000")
    def wadr(c):
        o = dnW(c) if down else c * 20480
        return 4 + o // 61440, o % 61440
    def reads(c, u):
        b = WF + 20*((4*c + u) % NWS); r, o = wadr(c)
        return [f"ds_read_b128 v[{b+4*jn}:{b+4*jn+3}], v{r} offset:{o + 5120*u + 1024*jn}" for jn in range(5)]
    NAS = 5 if down else C.wo_nas
    def aload(c):
        r = []
        if down and C.rot_dn: r += [f"s_cmp_gt_u32 s{sThr}, {c}", f"s_cselect_b32 s{sSel}, s{sA}, s{sA1}", f"s_add_u32 s{sSel}, s{sSel}, {c*8192}"]
        else: r += [f"s_add_u32 s{sSel}, s{sA}, {c*8192}"]
        for u in range(4):
            d = AF + 16*(c % NAS) + 4*u
            r.append(f"buffer_load_dwordx4 v[{d}:{d+3}], v{vF if u < 2 else 9}, {WSR}, s{sSel} offen offset:{2048*(u & 1)} sc1")
        return r
    def mfmas(c, u, zero=False):
        b = WF + 20*((4*c + u) % NWS); x = AF + 16*(c % NAS) + 4*u
        return [f"v_mfma_f32_16x16x32_bf16 {v(ACC+4*jn,4)}, {v(b+4*jn,4)}, {v(x,4)}, {0 if zero else v(ACC+4*jn,4)}" for jn in range(5)]
    D_ = NWS - 1
    rd = lambda st_: reads(st_ // 4, st_ % 4) if st_ < 4*NCH else []
    if down: a(f"s_and_b32 s{t+7}, s{sRT}, 3\ns_mul_i32 s{t+7}, s{t+7}, {4 if C.rot_dn else 0}")
    G_ = gate_local(a, "down" if down else "wo", 5 if down else 2, 1, 2, t+7)
    b = Asm()
    for i in range(10):
        b(f"v_lshlrev_b32 v{RX+2*i}, 16, v{RES+i}\nv_and_b32 v{RX+1+2*i}, s{t+8}, v{RES+i}")
    if down:
        row_stats(b, VST, VST + 2, VST + 3)
        b(f"v_mul_f32 v{VST+2}, v{VST+3}, v{VST+3}")
        xv = b.lines
    else:
        G_.load()
    for st_ in range(D_):
        for x in rd(st_): a(x)
    if not down:
        for x in b.lines: a(x)
        G_.upd()
    def al(c):
        G_.need(span(128*c, 128*c + 127, 96, 2) if down else (span(128*c, 128*c + 127, 20, 1) if C.x_a != 3 else 0xffffffff))
        if c == 0: stamp(a, st0)
        for x in aload(c):
            if C.x_d == 1 and down and c >= 3 and x.startswith("buffer"): x = x.replace(WSR, R(R_WQ)).replace(f"s{sSel} offen", "0 offen").replace("sc1", "")
            a(x)
    NPRE = C.dn_a if down else C.wo_a
    N0 = C.dn_a0 if down else C.wo_a0
    assert NPRE < NAS or NCH <= NAS
    for c in range(N0): al(c)
    stamp(a, 21 if down else 5)
    nis = N0; pend = []; nld = 4*N0; ops = list(range(nld))
    for c in range(NCH):
        for u in range(4):
            step = 4*c + u
            left = min(D_ - 1, 4*NCH - 1 - step)
            assert nld > step
            vstart = 4*NCH - C.xv0
            if down and step == vstart: assert not xld and max(i_ for i_, o_ in enumerate(ops) if o_ < 0) < ops.index(step)
            a(f"s_waitcnt vmcnt({len(ops) - 1 - ops.index(step)}) lgkmcnt({min(15, 5*left)})")
            if down and C.stamp and C.dbg == 8 and u in (0, 2): a(f"s_memtime s[10:11]\ns_waitcnt lgkmcnt(0)\nv_writelane_b32 v254, s10, {2*c + u//2}")
            if step == 4*NCH - 1 or (down and u == 2 and c + 1 < NCH): a("s_barrier")
            if not pend and nis < min(NCH, c + NPRE + 1):
                full = down and nis >= C.dn_full
                G_.need(0xffffffff if full else (span(128*nis, 128*nis + 127, 96, 2) if down else span(128*nis, 128*nis + 127, 20, 1)))
                ld = aload(nis); nis += 1
                for x in ld[:-4]: a(x)
                pend = ld[-4:]
            k = 2 if nld - step < 4*NPRE - 2 else 1
            mf = mfmas(c, u, step == 0); r_ = rd(step + D_)
            for i in range(5):
                a(mf[i])
                if r_: a(r_[i])
                if pend and i in ((4,) if k == 1 else (1, 4)): a(pend.pop(0)); ops.append(nld); nld += 1
                elif xld and step >= C.xl0 and i == 2: a(xld.pop(0)); ops.append(-1)
                if down and step >= vstart:
                    for _ in range(1 if r_ else 2):
                        if xv: a(xv.pop(0))
    assert not xld
    for x in xv: a(x)
    stamp(a, st0 + 1)
    add_x(a, t+7, sF, SB, 2 if down else 1)
    flag_setup(a, 6 if down else 3)
    for i in range(0, 20, 2):
        c = ACC + i
        if down: a(f"v_pk_fma_f32 v[{c}:{c+1}], v[{c}:{c+1}], v[{VST+2}:{VST+3}], v[{RX+i}:{RX+i+1}] op_sel_hi:[1,0,1]")
        else: a(f"v_pk_add_f32 v[{c}:{c+1}], v[{c}:{c+1}], v[{RX+i}:{RX+i+1}]")
        a(f"v_cvt_pk_bf16_f32 v{60+i//2}, v{c}, v{c+1}")
    if down:
        l1 = a.uid("prj_o1")
        a(f"s_cmp_eq_u32 s{sL}, 0\ns_cbranch_scc1 {l1}")
        srd(a, R_T, P_OUT, ACT)
        for x in io(True, True, R(R_T), f"s{sRM}", 60, ["", "sc1", "nt"][C.outb]): a(x)
        a(f"s_branch {end_label}")
        a.label(l1)
    for x in io(True, False, WSR, f"s{t+7}", 60, SB): a(x)
    a(f"v_pk_add_f32 v[72:73], v[{ACC}:{ACC+1}], v[{ACC+2}:{ACC+3}]\nv_pk_mul_f32 v[74:75], v[{ACC}:{ACC+1}], v[{ACC}:{ACC+1}]")
    a(f"v_pk_fma_f32 v[74:75], v[{ACC+2}:{ACC+3}], v[{ACC+2}:{ACC+3}], v[74:75]")
    for i in range(4, 20, 2):
        a(f"v_pk_add_f32 v[72:73], v[72:73], v[{ACC+i}:{ACC+i+1}]\nv_pk_fma_f32 v[74:75], v[{ACC+i}:{ACC+i+1}], v[{ACC+i}:{ACC+i+1}], v[74:75]")
    a(f"""
    v_add_f32 v72, v72, v73
    v_add_f32 v73, v74, v75
    s_lshr_b32 s{t+7}, s{sCT}, 1
    s_lshl_b32 s{t+7}, s{t+7}, 10
    v_permlane32_swap_b32 v72, v73
    s_and_b32 s{t+8}, s{sCT}, 1
    s_lshl_b32 s{t+8}, s{t+8}, 3
    v_add_f32 v72, v72, v73
    v_mov_b32 v73, v72
    s_add_u32 s{t+7}, s{t+7}, s{t+8}
    s_add_u32 s{t+7}, s{t+7}, s{sST}
    v_permlane16_swap_b32 v72, v73
    s_add_u32 s{t+7}, s{t+7}, {L_ST2 if down else L_ST1}
    v_lshrrev_b32 v8, 5, v0
    v_lshlrev_b32 v8, 2, v8
    v_lshl_add_u32 v8, v3, 4, v8
    v_add_f32 v72, v72, v73
    buffer_store_dword v72, v8, {WSR}, s{t+7} offen {SB}
    s_waitcnt vmcnt(1)
    """)
    flag_store(a, SB)
    a("s_barrier")
    stamp(a, st0 + 2)
    a(f"v_add_u32 v253, 1, v2\nv_mov_b32 v252, 0\ns_mov_b32 s100, s{T+20}")
    if not down:
        l = a.uid("fk")
        a(f"s_or_b32 s{t+7}, s{sW}, s{sCT}\ns_or_b32 s{t+7}, s{t+7}, s{sL}\ns_cbranch_scc1 {l}\ns_lshl_b32 s{t+7}, s{sWG}, 7\ns_add_u32 s{t+7}, s{t+7}, {L_FG + 40}")
        flag_store(a, "sc1", t+7)
        a.label(l)

def gu_compute(a, SB):
    t = T
    sRT, sCT, sWM, sWN, sTB, sF0 = t, t+1, t+2, t+3, t+4, t+6
    FR = 16; ACC = 96; VCS = 192; VST = 216; MS = 232
    a(f"""
    s_lshr_b32 s{sRT}, s{sWG}, 4
    s_and_b32 s{sCT}, s{sR}, 15
    s_and_b32 s{sWM}, s{sW}, 1
    s_lshr_b32 s{sWN}, s{sW}, 1
    s_lshl_b32 s{sTB}, s{sRT}, 1
    s_add_u32 s{sTB}, s{sTB}, s{sWM}
    s_mul_i32 s{sF0}, s{sCT}, 96
    s_mul_i32 s{t+5}, s{sWN}, 48
    s_add_u32 s{sF0}, s{sF0}, s{t+5}
    s_mul_i32 s{t+5}, s{sWG}, 768
    s_mul_i32 s{t+7}, s{sWN}, 384
    s_add_u32 s{t+5}, s{t+5}, s{t+7}
    s_add_u32 s{t+13}, s{t+5}, {WS_CSG}
    v_lshrrev_b32 v12, 4, v0
    v_lshlrev_b32 v7, 4, v12
    """)
    a(f"""
    v_and_b32 v13, 15, v0
    v_lshlrev_b32 v3, 4, v13
    v_lshl_add_u32 v3, v12, 9, v3
    s_lshl_b32 s{t+5}, s{sWM}, 13
    v_add_u32 v3, s{t+5}, v3
    v_lshlrev_b32 v11, 4, v0
    s_mul_i32 s{t+5}, s{sWN}, 6144
    s_add_u32 s{t+5}, s{t+5}, {WB}
    v_add_u32 v4, s{t+5}, v11
    v_add_u32 v5, 49152, v4
    v_lshlrev_b32 v6, 2, v13
    s_mul_i32 s{t+11}, s{sTB}, {2*F*64}
    s_lshl_b32 s{t+7}, s{sF0}, 6
    s_add_u32 s{t+11}, s{t+11}, s{t+7}
    {"" if SB == "" else f"s_add_u32 s{t+11}, s{t+11}, s{sLO}"}
    s_add_u32 s{t+11}, s{t+11}, {L_Q if SB == "" else L_H}
    s_add_u32 s{t+12}, s{t+11}, {F*64}
    """)
    flag_setup(a, 5)
    def reads(c, u):
        b = FR + 40*u; o = guW(c) - WB
        ra = [f"ds_read_b128 v[{b+4*tt}:{b+4*tt+3}], v3 offset:{(c % 4)*16384 + 4096*(tt >> 1) + 256*(tt & 1) + 2048*u}" for tt in range(4)]
        rw = [f"ds_read_b128 v[{b+16+4*f}:{b+19+4*f}], v{4 + o // 49152} offset:{o % 49152 + 12288*u + 1024*f}" for f in range(6)]
        return ra + rw
    def mfma(u, tl, z):
        b = FR + 40*u; c = ACC + 4*tl
        return f"v_mfma_f32_16x16x32_bf16 {v(c,4)}, {v(b+16+4*(tl>>2),4)}, {v(b+4*(tl&3),4)}, {0 if z else v(c,4)}"
    def epi(jn, pk):
        r = []
        g = ACC + 32*jn; u_ = g + 16
        for tp in range(2):
            c = g + 8*tp; d = u_ + 8*tp
            for i in range(8): r.append(f"v_max_f32 v{c+i}, 0, v{c+i}")
            if pk:
                for i in range(0, 8, 2): r.append(f"v_pk_mul_f32 v[{c+i}:{c+i+1}], v[{c+i}:{c+i+1}], v[{d+i}:{d+i+1}]")
            else:
                for i in range(8): r.append(f"v_mul_f32 v{c+i}, v{c+i}, v{d+i}")
            for i in range(4): r.append(f"v_cvt_pk_bf16_f32 v{c+i}, v{c+2*i}, v{c+2*i+1}")
            r += ["s_nop 0", f"v_permlane16_swap_b32 v{c}, v{c+2}", f"v_permlane16_swap_b32 v{c+1}, v{c+3}"]
            r.append(f"buffer_store_dwordx4 v[{c}:{c+3}], v11, {WSR}, s{t+11+tp} offen offset:{1024*jn} {SB}")
        return r
    a(f"s_lshl_b32 s{t+5}, s{sTB}, 12\ns_add_u32 s{t+5}, s{t+5}, s{sLO}\ns_add_u32 s{t+5}, s{t+5}, {L_ST1}")
    ins = {}
    for f in range(6): ins[C.csi + 2*f] = [f"buffer_load_dwordx4 v[{VCS+4*f}:{VCS+4*f+3}], v7, {WSR}, s{t+13} offen offset:{64*f} sc1"]
    for i in range(4): ins[36 + 48*C.gfull + 3*i] = [f"buffer_load_dwordx4 v[{VST+4*i}:{VST+4*i+3}], v11, {WSR}, s{t+5} offen offset:{1024*i} sc1"]
    ins[82 + 48*C.gfull] = ["s_waitcnt vmcnt(0)"] + [f"v_add_f32 v{VST}, v{VST}, v{VST+2*i}" for i in range(1, 8)] + \
         [f"v_mul_f32 v{MS}, {f32(-1.0/D)}, v{VST}", f"v_mul_f32 v{MS+1}, {f32(-1.0/D)}, v{VST}", "s_nop 0", f"v_permlane16_swap_b32 v{MS}, v{MS+1}",
          f"v_mov_b32 v{MS+2}, v{MS}", f"v_mov_b32 v{MS+3}, v{MS+1}", "s_nop 0", f"v_permlane32_swap_b32 v{MS}, v{MS+2}", f"v_permlane32_swap_b32 v{MS+1}, v{MS+3}"]
    fix = lambda tl: [f"v_fmac_f32 v{ACC+4*tl+i}, v{MS+(tl&3)}, v{VCS+4*(tl>>2)+i}" for i in range(4)]
    if C.s2i: ins = dict(sorted({**ins, 10: ["s_waitcnt vmcnt(0)", f"buffer_store_dword v253, v252, {WSR}, s100 offen {SB}"]}.items()))
    else: stage2(a, SB, 0)
    gemm16(a, 10, 24, reads, mfma, [tuple(range(8*j, 8*j+8)) for j in range(3)], ins, fix, 122 + 48*C.gfull, epi, 22, C.g16)
    a("s_waitcnt vmcnt(0)")
    flag_store(a, SB)
    a("s_barrier")
    stamp(a, 23)

def loader_chain(a, SB, end_label, idle_label):
    t = T
    sLW, s4, s5, s6, aGU, aGU1, wGU, wGU1, wDN, wDN1, aQK, aQK1, wQK, wQK1, th10, th12, sTmp, sSel, thq = range(t, t + 19)
    sRot = sSel
    a(f"""
    s_sub_u32 s{sLW}, s{sW}, 4
    v_lshlrev_b32 v8, 4, v0
    s_mul_i32 s{s6}, s{sLW}, 6144
    s_and_b32 s{wGU}, s{sR}, 15
    s_mul_i32 s{wGU}, s{wGU}, 245760
    s_add_u32 s{wGU}, s{wGU}, s{s6}
    s_add_u32 s{wGU}, s{wGU}, {WS_WTG}
    s_lshr_b32 s{sRot}, s{sR}, 4
    s_mul_i32 s{sRot}, s{sRot}, {C.rot_gu}
    s_sub_u32 s{th10}, 10, s{sRot}
    """)
    S_aGU = Src(aGU, aGU1, th10, 4096); S_wGU = Src(wGU, wGU1, th10, 24576); S_wDN = Src(wDN, wDN1, th12, 20480)
    S_aQK = Src(aQK, aQK1, thq, 4096); S_wQK = Src(wQK, wQK1, thq, 64*3840)
    S_aGU.norot = S_wGU.norot = not C.rot_gu; S_wDN.norot = not C.rot_dn; S_aQK.norot = S_wQK.norot = not C.rot_qk
    S_wGU.setup(a, sRot, 10, sTmp)
    def rest():
        a(f"""
        s_lshl_b32 s{s4}, s{sLW}, 12
        s_mul_i32 s{s5}, s{sLW}, 5120
        s_lshr_b32 s{aQK}, s{sWG}, 4
        s_lshl_b32 s{aQK}, s{aQK}, 2
        s_add_u32 s{aQK}, s{aQK}, s{sLW}
        s_mul_i32 s{aQK}, s{aQK}, 40960
        """)
        add_x(a, aGU, aQK, SB, 1)
        add_x(a, aQK, aQK, SB, 2)
        a(f"s_and_b32 s{wDN}, s{sR}, 15")
        qkvW_setup(a, wQK, sLW, wDN, sTmp, 6)
        a(f"s_sub_u32 s{sRot}, 10, s{th10}")
        S_aGU.setup(a, sRot, 10, sTmp)
        a(f"s_lshr_b32 s{sRot}, s{sR}, 4\ns_mul_i32 s{sRot}, s{sRot}, {C.rot_qk}\ns_sub_u32 s{thq}, 10, s{sRot}")
        for S_ in (S_aQK, S_wQK): S_.setup(a, sRot, 10, sTmp)
        a(f"""
        s_and_b32 s{wDN}, s{sR}, 7
        s_mul_i32 s{wDN}, s{wDN}, 245760
        s_add_u32 s{wDN}, s{wDN}, s{s5}
        s_add_u32 s{wDN}, s{wDN}, {WS_WTD}
        s_lshr_b32 s{sRot}, s{sR}, 3
        s_mul_i32 s{sRot}, s{sRot}, {C.rot_dn}
        s_sub_u32 s{th12}, 12, s{sRot}
        """)
        S_wDN.setup(a, sRot, 12, sTmp)
    G_ = [None, None]
    def lin(S_, dst, dfn, bits):
        def f(c, i0, k):
            if bits == "sc1":
                G_[0].need(span(64*c, 64*c + 63, 80, 2) if C.gran else 0xffff)
                if G_[1] is not None: stamp(a, G_[1]); G_[1] = None
            if not S_.norot: S_.sel(a, c, sSel)
            lin_dma(a, 8, S_.sB if S_.norot else sSel, (0 if (C.x_gh and S_ is S_wGU) else c)*S_.stride + 1024*i0, dst, dfn(c) + 1024*i0, k, bits)
        return f
    def pf(kind, ep, st, rot):
        def f():
            a(f"s_lshr_b32 s{sTmp}, s{sR}, 4\ns_mul_i32 s{sTmp}, s{sTmp}, {4 if rot else 0}")
            G_[0] = gate_local(a, kind, ep, 1, 2, sTmp, sleep=C.psleep); G_[1] = st
        return f
    def emitWQ(c, i0, k):
        if not S_wQK.norot: S_wQK.sel(a, c, sSel)
        for i in range(i0, i0 + k):
            a(f"s_add_u32 m0, s{s4}, {qkW(c) + 1024*i}\ns_add_u32 s{sTmp}, s{wQK if S_wQK.norot else sSel}, {c*64*3840 + i*4*3840}")
            a(f"buffer_load_dwordx4 v{6 + (i >> 1)}, {R(R_WQ)}, s{sTmp} offen lds")
    rA = lambda c: (c % 4) * 16384
    mark = [0]; mk2 = [0]
    def full(c, nm='qk'):
        if c == 0: G_[0].load2(); L.q.append((nm, "P", 99)); mk2[0] = L.total
        if c == 1: G_[0].bump(0xffff, L.total - mk2[0])
    def gu_bar(c):
        full(c - C.gfull + 1, 'gu')
        if C.thr0 >= 0 and 1 <= c < 8:
            l = a.uid("t0")
            a(f"s_cmp_lg_u32 s{sL}, 0\ns_cbranch_scc1 {l}\ns_waitcnt vmcnt({C.thr0})")
            a.label(l)
        if SB != "": return
        if C.htl and c == C.htc:
            a(f"""
            s_lshr_b32 s{sTmp}, s{sWG}, 3
            s_lshl_b32 s{sTmp}, s{sTmp}, 1
            s_lshr_b32 s{sSel}, s{sLW}, 1
            s_add_u32 s{sTmp}, s{sTmp}, s{sSel}
            s_mul_i32 s{sTmp}, s{sTmp}, {F*64}
            s_and_b32 s{sSel}, s{sR}, 7
            s_lshl_b32 s{sSel}, s{sSel}, 1
            s_bitcmp1_b32 s{sLW}, 0
            s_addc_u32 s{sSel}, s{sSel}, 0
            s_mul_i32 s{sSel}, s{sSel}, {128*C.htl}
            s_add_u32 s{sTmp}, s{sTmp}, s{sSel}
            v_lshlrev_b32 v9, 7, v0
            s_mov_b32 exec_lo, {hex((1 << min(32, C.htl)) - 1)}
            s_mov_b32 exec_hi, {hex((1 << max(0, C.htl - 32)) - 1)}
            buffer_load_dword v10, v9, {WSR}, s{sTmp} offen
            s_mov_b64 exec, -1
            """)
            L.q.append(("gu", "P", 99)); L.total += 1
        if c == C.fkc:
            a(f"v_and_b32 v4, 7, v0\nv_lshlrev_b32 v4, 10, v4\ns_lshl_b32 s{thq}, s{sLW}, 13\ns_add_u32 s{thq}, s{thq}, {L_FG + 40}\nbuffer_load_dword v5, v4, {WSR}, s{thq} offen sc1")
            L.q.append(("gu", "P", 99)); mark[0] = L.total
        if c == C.fkc + 2:
            l = a.uid("fkc")
            a(f"s_cmp_lg_u32 s{sL}, 0\ns_cbranch_scc1 {l}")
            poll(a, 4, 5, f"s{thq}", f"s{sEP}", sleep=2, pre=L.total - mark[0])
            a.label(l)
    assert C.fkc + 2 <= 8 and not C.rot_qk
    reg = lambda f, sz: (lambda c: (f(c), f(c) + sz))
    gu = Phase("gu", 10, 4, 6, lin(S_aGU, s4, rA, "sc1"), lin(S_wGU, s6, guW, "nt" if C.nt_gu else ""), reg(rA, 16384), reg(guW, 24576), pf("gu", 3, 21, C.rot_gu), C.bud_gu, dbg=(C.dbg == 3), after_bar=gu_bar)
    dn = Phase("dn", 12, 0, 5, None, lin(S_wDN, s5, dnW, "nt" if C.nt_dn else ""), None, reg(dnW, 20480), None, C.bud_dn, lag=2, early=C.dn_early, dbg=(C.dbg == 4))
    qk = Phase("qk", 10, 4, 4, lin(S_aQK, s4, rA, "sc1"), emitWQ, reg(rA, 16384), reg(qkW, 16384), pf("gu", 6, 17, C.rot_qk), C.bud_qk, early=C.qk_early, dbg=(C.dbg == 2), after_bar=full)
    L = Loader(a)
    L.live["wo"] = (0, 102400)
    if C.ldprio: a(f"s_setprio {C.ldprio}")
    pn = L.pre(gu, 0, C.gu_e, C.thr_p)
    rest()
    if C.wpf:
        l = a.uid("wpf")
        a(f"""
        s_cmp_lg_u32 s{sL}, 0
        s_cbranch_scc1 {l}
        s_lshr_b32 s{sTmp}, s{sR}, 4
        s_lshl_b32 s{sSel}, s{sLW}, 1
        s_add_u32 s{sTmp}, s{sTmp}, s{sSel}
        s_mul_i32 s{sTmp}, s{sTmp}, 24576
        s_sub_u32 s{sSel}, s{wGU}, s{s6}
        s_add_u32 s{sTmp}, s{sTmp}, s{sSel}
        s_add_u32 s{sTmp}, s{sTmp}, {49152 + 8192*C.ev0}
        v_lshlrev_b32 v4, 7, v0
        s_mov_b32 exec_lo, {hex((1 << C.wpl) - 1)}
        s_mov_b32 exec_hi, 0
        """)
        for i in range(C.wpf):
            a(f"s_waitcnt vmcnt({C.wpd - 1})\nbuffer_load_dword v5, v4, {WSR}, s{sTmp} offen\ns_add_u32 s{sTmp}, s{sTmp}, {128*C.wpl}")
        a("s_mov_b64 exec, -1")
        a.label(l)
    a("s_barrier")
    L.live.pop("wo")
    pn = L.pre(gu, pn, C.gu_e2, C.thr_e)
    a("s_barrier"); pn = L.pre(gu, pn, C.gu_p)
    pn = L.run(gu, dn, pn); stamp(a, 22); L.end(gu); pn = L.pre(dn, pn, C.dn_e, C.thr_e)
    L.wait({("dn", "W", 0)}); a("s_barrier"); pn = L.pre(dn, pn, C.dn_p, C.thr_p)
    dn.skip0 = True
    if C.qpf:
        a(f"s_lshl_b32 s{thq}, s{sR}, 2\ns_add_u32 s{thq}, s{thq}, s{sLW}\ns_mul_i32 s{thq}, s{thq}, {C.qpl*128}\nv_lshlrev_b32 v4, 7, v0")
        def qpf(c):
            k = c - C.qpf0
            if k % C.qps or not 0 <= k // C.qps < C.qpf: return
            k //= C.qps
            off = D*3*D*2 - (C.qpf - k) * C.qpl * 128 * 128
            a(f"s_add_u32 s{sTmp}, s{thq}, {off}\ns_mov_b64 exec, {hex((1 << C.qpl) - 1) if C.qpl <= 31 else -1}")
            if C.qpl == 32: a("s_mov_b32 exec_hi, 0")
            a(f"buffer_load_dword v5, v4, {R(R_WQ)}, s{sTmp} offen\ns_mov_b64 exec, -1")
            L.q.append(("dn", "P", 99))
        dn.after_bar = qpf
        assert not C.rot_qk
    def lastexit(ws_):
        l = a.uid("lx")
        a(f"s_cmp_eq_u32 s{sL}, 0\ns_cbranch_scc1 {l}")
        for w_ in ws_: a(f"s_waitcnt vmcnt({w_})\ns_barrier")
        a(f"s_barrier\ns_branch {end_label}")
        a.label(l)
    pn = L.run(dn, qk, pn, lastexit=lastexit); stamp(a, 14); L.end(dn)
    a(f"s_cmp_lg_u32 s{sL}, 0\ns_cbranch_scc1 {end_label}")
    pn = L.pre(qk, pn, C.qk_e, C.thr_e)
    a("s_barrier")
    a(f"s_and_b32 s{sTmp}, s{sR}, 15\ns_cmp_eq_u32 s{sTmp}, 15\ns_cbranch_scc1 {idle_label}")
    pn = L.pre(qk, pn, C.qk_p)
    L.run(qk, None, pn); stamp(a, 19); L.end(qk)

def build():
    a = Asm()
    K = NAME + "_kernel"
    t = T
    a(f".globl {K}\n.p2align 8\n.type {K},@function")
    a.label(K)
    a(f"""
    s_load_dwordx16 s[16:31], s[0:1], 0
    s_load_dwordx4 s[32:35], s[0:1], 64
    s_cmp_ge_u32 s2, 256
    s_cbranch_scc1 L_exit
    """)
    if C.etlb:
        a(f"v_and_b32 v2, 64, v0\nv_lshlrev_b32 v2, 15, v2\ns_waitcnt lgkmcnt(0)\nglobal_load_dword v251, v2, s[{P_WQKV}:{P_WQKV+1}]\nglobal_load_dword v251, v2, s[{P_X}:{P_X+1}]")
    a(f"""
    s_and_b32 s{sG}, s2, 7
    s_lshr_b32 s{sR}, s2, 3
    v_lshrrev_b32 v1, 6, v0
    v_and_b32 v0, 63, v0
    v_readfirstlane_b32 s{sW}, v1
    s_lshl_b32 s{sWG}, s{sG}, 5
    s_add_u32 s{sWG}, s{sWG}, s{sR}
    s_mov_b32 s{sL}, 0
    s_mov_b32 s{sLO}, 0
    s_mov_b32 s{sEP}, 0
    s_mov_b32 s{sTMO}, 0
    """)
    if C.stamp: a("v_mov_b32 v255, 0\nv_mov_b32 v254, 0\ns_memrealtime s[14:15]")
    stamp(a, 0)
    qkv_ids(a, t)
    a(f"s_cmp_lt_u32 s{sW}, 4\ns_cbranch_scc1 L_q1c\ns_cmp_eq_u32 s{t+1}, 15\ns_cbranch_scc1 L_q1c")
    qkv1_loader(a)
    a("s_branch L_q1done")
    a.label("L_q1c")
    a("s_waitcnt lgkmcnt(0)")
    srd(a, R_X, P_X, ACT)
    srd(a, R_WQ, P_WQKV, D*3*D*2)
    a(f"""
    s_cmp_gt_u32 s{sW}, 3
    s_cbranch_scc1 L_npf
    s_lshl_b32 s{t+8}, s{sWG}, 2
    s_add_u32 s{t+8}, s{t+8}, s{sW}
    s_mul_i32 s{t+8}, s{t+8}, 2560
    v_lshrrev_b32 v1, 5, v0
    v_mul_u32_u24 v1, 1280, v1
    v_and_b32 v2, 31, v0
    v_lshl_add_u32 v1, v2, 4, v1
    v_mov_b64 v[228:229], 0
    v_mov_b64 v[230:231], 0
    buffer_load_dwordx4 v[220:223], v1, {R(R_X)}, s{t+8} offen
    buffer_load_dwordx4 v[224:227], v1, {R(R_X)}, s{t+8} offen offset:512
    s_mov_b32 exec_lo, 0xffff
    s_mov_b32 exec_hi, 0xffff
    buffer_load_dwordx4 v[228:231], v1, {R(R_X)}, s{t+8} offen offset:1024
    s_mov_b64 exec, -1
    """)
    a.label("L_npf")
    other_srds(a)
    a(f"s_cmp_eq_u32 s{t+1}, 15\ns_cbranch_scc1 L_q1idle")
    qkv_compute(a, True, "sc1")
    a("s_branch L_q1done")
    a.label("L_q1idle")
    qkv1_idle(a)
    a.label("L_q1done")
    a(f"s_cmp_eq_u32 s{sMODE}, 0\ns_cbranch_scc1 L_slow")
    tails = []
    for nm, SB in (("fast", ""), ("slow", "sc1")):
        a.label(f"L_{nm}")
        tails.append(phase_attn(a, SB, f"L_{nm}_ld"))
        if nm == "fast": a.label("L_fast_post")
        proj_compute(a, False, SB, None)
        gu_compute(a, SB)
        proj_compute(a, True, SB, "L_end")
        qkv_ids(a, t)
        a(f"s_cmp_lg_u32 s{t+1}, 15\ns_cbranch_scc1 L_{nm}_q2")
        stage2(a, SB, 0)
        a(f"s_branch L_{nm}_idle")
        a.label(f"L_{nm}_q2")
        qkv_compute(a, False, SB)
        a(f"s_branch L_{nm}_next")
        a.label(f"L_{nm}_ld")
        loader_chain(a, SB, "L_end", f"L_{nm}_idle")
        a(f"s_branch L_{nm}_next")
        a.label(f"L_{nm}_idle")
        a("s_waitcnt vmcnt(0)\ns_barrier")
        a.label(f"L_{nm}_next")
        if C.ldprio: a("s_setprio 0")
        a(f"s_mov_b32 s{sL}, 1\ns_mov_b32 s{sLO}, {LSTRIDE}\ns_add_u32 s{sEP}, s{sEP}, 7\ns_mov_b32 s{R_WQ+2}, 0\ns_branch L_{nm}")
        if nm == "fast":
            a.label("L_end")
            a(f"""
            s_xor_b32 s{t}, s{sW}, 7
            s_or_b32 s{t}, s{t}, s2
            s_cmp_lg_u32 s{t}, 0
            s_cbranch_scc1 L_end2
            v_mov_b32 v1, 0
            s_mov_b64 exec, 1
            global_store_dword v1, v1, s[{P_DBG}:{P_DBG+1}] sc1
            s_mov_b64 exec, -1
            """)
            a.label("L_end2")
            if C.stamp:
                a("s_waitcnt vmcnt(0)")
                stamp(a, 16)
                a(f"""
                s_memrealtime s[10:11]
                s_waitcnt lgkmcnt(0)
                v_writelane_b32 v255, s14, 62
                v_writelane_b32 v255, s10, 63
                v_writelane_b32 v255, s{sTMO}, 61
                s_lshl_b32 s10, s2, 3
                s_add_u32 s10, s10, s{sW}
                s_lshl_b32 s10, s10, 8
                s_add_u32 s10, s10, {WS_STAMP}
                v_lshlrev_b32 v1, 2, v0
                v_add_u32 v1, s10, v1
                global_store_dword v1, v255, s[{P_WS}:{P_WS+1}]
                v_add_u32 v1, {1<<20}, v1
                global_store_dword v1, v254, s[{P_WS}:{P_WS+1}]
                """)
                if C.pj:
                    a(f"""
                    s_xor_b32 s{t}, s2, 8
                    s_xor_b32 s{t+1}, s{sW}, {C.pw}
                    s_or_b32 s{t}, s{t}, s{t+1}
                    s_cmp_lg_u32 s{t}, 0
                    s_cbranch_scc1 L_exit
                    v_readlane_b32 s{t+1}, v254, {C.pi}
                    v_readlane_b32 s{t+2}, v254, {C.pj % 64}
                    v_readlane_b32 s{t+3}, v254, 40
                    {f"s_mov_b32 s{t+1}, s14" if C.pi == 63 else ""}
                    s_sub_u32 s{t+1}, s{t+2}, s{t+1}
                    s_mul_i32 s{t+1}, s{t+1}, {C.pm}
                    s_add_u32 s{t+1}, s{t+1}, 1000
                    """)
                    a.label("L_probe")
                    a(f"""
                    s_memrealtime s[{t+4}:{t+5}]
                    s_waitcnt lgkmcnt(0)
                    s_sub_u32 s{t+6}, s{t+4}, s{t+3}
                    s_cmp_lt_u32 s{t+6}, s{t+1}
                    s_cbranch_scc1 L_probe
                    """)
                if C.dbgout:
                    a(f"s_xor_b32 s{t}, s2, 8\ns_or_b32 s{t}, s{t}, s{sW}\ns_cmp_lg_u32 s{t}, 0\ns_cbranch_scc1 L_exit\nv_readlane_b32 s{t+1}, v254, 0\nv_mov_b32 v1, 0")
                    for k, i in enumerate([1, 2, 7, 8, 10, 12, 23, 15, 20, 31, 32, 36, 47, 40]):
                        a(f"v_readlane_b32 s{t}, v254, {i}\ns_sub_u32 s{t}, s{t}, s{t+1}\ns_nop 1\nv_mov_b32 v2, s{t}\nglobal_store_dword v1, v2, s[{P_DBG}:{P_DBG+1}] offset:{4+4*k}")
            a.label("L_exit")
            a("s_endpgm")
            a.label("L_fast_end")
    for f in tails: f()
    hdr = open("cdna_kernels/" + NAME + ".s.ref").read().split("; Override")[0]
    hdr += "; @launch grid=(256,1,1) block=(512,1,1) lds=163840\n"
    txt = hdr + '.amdgcn_target "amdgcn-amd-amdhsa--gfx950"\n.text\n' + a.text() + f'''.section .rodata,"a"
.p2align 6
.amdhsa_kernel {K}
  .amdhsa_next_free_vgpr 256
  .amdhsa_next_free_sgpr 102
  .amdhsa_accum_offset 256
  .amdhsa_group_segment_fixed_size 0
  .amdhsa_kernarg_size 80
  .amdhsa_user_sgpr_count 2
  .amdhsa_user_sgpr_kernarg_segment_ptr 1
  .amdhsa_system_sgpr_workgroup_id_x 1
.end_amdhsa_kernel
'''
    for p in check(a.lines): print("HAZARD", p)
    return txt

if __name__ == "__main__":
    out = sys.argv[1] if len(sys.argv) > 1 else "cdna_kernels/" + NAME + ".s"
    for kv in sys.argv[2:]:
        k, _, val = kv.partition("=")
        assert hasattr(C, k), k
        setattr(C, k, int(val) if val else True)
    open(out, "w").write(build())
    print("written", out)
```

```python
import sys, math, struct
sys.path.insert(0, "gen")
from asmlib import *

NAME = "interleave_layers__softmax_full_mha__glu_gated_reglu__prompt"
S, D, F, H, DH = 2048, 640, 1536, 32, 20
ACT = S * D * 2
HEADB = 81920
L_Q = 0
L_K = L_Q + ACT
L_V = L_K + ACT
L_O = L_V + ACT
L_X1 = L_O + ACT
L_X2 = L_X1 + ACT
L_H = L_X2 + ACT
L_ST1 = L_H + S * F * 2
L_ST2 = L_ST1 + S * 64
L_FG = L_ST2 + S * 64
LSTRIDE = L_FG + 32768
WS_ST0 = LSTRIDE + L_ST2
WS_WTO = 2 * LSTRIDE
WS_WTD = WS_WTO + D * D * 2
WS_WTG = WS_WTD + F * D * 2
WS_CSP = WS_WTG + 2 * F * D * 2
WS_CSG = WS_CSP + 10 * 12288
WS_CSQ = WS_CSG + 256 * 768
WS_FL = WS_CSQ + 256 * 512
WS_END = WS_FL + 8192
WS_SIZE = 268435456
WS_STAMP = 200 << 20
QSCALE = (DH ** -0.5) * math.log2(math.e)
def f32(x): return "0x%08x" % struct.unpack("<I", struct.pack("<f", x))[0]

P_X, P_WQKV, P_WO, P_BX, P_WG, P_WU, P_WD, P_OUT, P_DBG, P_WS = 16, 18, 20, 22, 24, 26, 28, 30, 32, 34
sL, sG, sR, sW, sLO, sEP, sTMO, sWG = 3, 4, 5, 6, 7, 8, 9, 13
R_WS, R_X, R_WQ, R_WG, R_WU, R_T = 36, 40, 44, 48, 52, 56
T = 60
WSR = f"s[{R_WS}:{R_WS+3}]"
def R(r): return f"s[{r}:{r+3}]"
SPIN = 200000

class Cfg:
    stamp = False
    dbg = 0
    dbgout = 0
    pi = 0
    pj = 0
    pm = 1
    pw = 0
    look = 6
    gu_e = 12
    dn_e = 4
    qk_e = 0
    bud_gu = 9
    bud_dn = 3
    bud_qk = 6
    bud_q1 = 8
    dn_a = 3
    psleep = 0
    gran = 3
    flip = 0
    gfull = 1
    dn_a0 = 3
    wo_a0 = 2
    x_a = 0
    x_d = 0
    c_i = 6
    c_c = 7
    c_f = 8
    pp = 0
    x_q = 0
    hth = 0
    fkc = 5
    vpre = 2
    ag = 4
    cu = 0
    od = 0
    ep = 3
    bsh = 0
    bskip = 0
    flipm = 126
    flip0 = 6
    x_nh = 0
    x_an = 0
    htl = 0
    htc = 6
    xv0 = 8
    xl0 = 0
    s2i = 0
    csi = 35
    bc = 1
    gfl = 0
    jit = 0
    etlb = 0
    x8f = 0
    wpf = 4
    evh = 0
    wpd = 1
    wpl = 16
    bl = 0
    bln = 1
    thr0 = 5
    ev0 = 0
    ev1 = 0
    oxh = 6
    x_slow = 0
    x_gh = 0
    alias = 0
    ldprio = 0
    grp = 2
    qpf = 0
    qpf0 = 1
    qpl = 16
    qps = 1
    thr_e = 0
    thr_p = 0
    qk_s0 = 4
    dn_lag = 2
    dn_full = 5
    wo_a = 4
    wo_nas = 5
    c0 = 1
    g16 = 1
    e16 = 3
    wb = 0
    outb = 0
    q1prio = 0
    look_q1 = 6
    nocs = 0
    qloc = 1
    stage = 1
    cpf = 1
    l2pf0 = 0
    nt_kv = 0
    nt_wo = 0
    nt_gu = 0
    nt_dn = 0
    nt_qk = 0
    htouch = 0
    warm = 0
    gu_e2 = 0
    gu_p = 0
    dn_p = 20
    qk_p = 0
    wo_sets = 6
    q1pf = 1
    l2pf = 8
    rot = 0
    x_hit = 0
    tlb = 0
    rot_gu = 0
    rot_dn = 0
    rot_qk = 0
    dn_early = 99
    qk_early = 99
C = Cfg()

def jitter(a, i):
    l = a.uid("jit")
    a(f"""
    s_memtime s[10:11]
    s_waitcnt lgkmcnt(0)
    s_mul_i32 s10, s10, 0x9e3779b1
    s_lshr_b32 s11, s10, 29
    s_cmp_lg_u32 s11, 0
    s_cbranch_scc1 {l}
    s_bfe_u32 s11, s10, {hex((C.jit << 16) | 20)}
    """)
    a.label(l + "l")
    a(f"s_sleep 32\ns_sub_u32 s11, s11, 1\ns_cbranch_scc0 {l}l")
    a.label(l)
def stamp(a, i):
    if C.jit: jitter(a, i)
    if not C.stamp: return
    a(f"s_memtime s[10:11]\ns_mul_i32 s12, s{sL}, 24\ns_add_u32 m0, s12, {i}\ns_waitcnt lgkmcnt(0)\nv_writelane_b32 v255, s10, m0")
    if C.dbg == 7: a(f"s_memrealtime s[10:11]\ns_waitcnt lgkmcnt(0)\nv_writelane_b32 v254, s10, m0")

def dstamp(a, d, i):
    if C.jit and i % 3 == 0: jitter(a, i)
    if C.stamp and C.dbg == d: a(f"s_memtime s[10:11]\ns_lshl_b32 s12, s{sL}, 5\ns_add_u32 m0, s12, {i}\ns_waitcnt lgkmcnt(0)\nv_writelane_b32 v254, s10, m0")

def cstamp(a, j):
    if C.stamp and C.dbg == 9:
        a(f"s_memtime s[10:11]\ns_lshl_b32 s12, s{sL}, 5\ns_add_u32 m0, s12, {2*j}\ns_waitcnt lgkmcnt(0)\nv_writelane_b32 v254, s10, m0")
        a(f"s_memrealtime s[10:11]\ns_add_u32 m0, s12, {2*j+1}\ns_waitcnt lgkmcnt(0)\nv_writelane_b32 v254, s10, m0")

def srd(a, r, ptr, size):
    a(f"s_mov_b32 s{r}, s{ptr}\ns_mov_b32 s{r+1}, s{ptr+1}\ns_mov_b32 s{r+2}, {size}\ns_mov_b32 s{r+3}, 0x20000")

def interleave(a, mf, other):
    n = len(mf); k = 0
    for i, m in enumerate(mf):
        a(m)
        tgt = (len(other) * (i + 1) + n - 1) // n
        while k < tgt:
            a(other[k]); k += 1

def poll(a, vaddr, vtmp, soff, want, sleep=0, pre=False, wide=False):
    lp = a.uid("poll"); ok = a.uid("pollok")
    cnt = T + 22
    a(f"s_mov_b32 s{cnt}, s{sTMO}")
    if pre is not False: a(f"s_waitcnt vmcnt({pre})\ns_branch {lp}c")
    a.label(lp)
    if wide: a(f"buffer_load_dwordx4 v[{vtmp}:{vtmp+3}], v{vaddr}, {WSR}, {soff} offen sc1")
    else: a(f"buffer_load_dword v{vtmp}, v{vaddr}, {WSR}, {soff} offen sc1")
    a(f"s_waitcnt vmcnt(0)")
    if pre is not False: a.label(lp + "c")
    a(f"v_subrev_u32 v{vtmp}, {want}, v{vtmp}")
    if wide:
        for i in range(1, 4): a(f"v_subrev_u32 v{vtmp+i}, {want}, v{vtmp+i}\nv_max_u32 v{vtmp}, v{vtmp}, v{vtmp+i}")
    a(f"v_cmp_lt_u32 vcc, 15, v{vtmp}")
    a(f"s_cbranch_vccz {ok}")
    if sleep: a(f"s_sleep {sleep}")
    a(f"s_add_u32 s{cnt}, s{cnt}, 1\ns_cmp_lt_u32 s{cnt}, {SPIN}\ns_cbranch_scc1 {lp}")
    a(f"s_mov_b32 s{sTMO}, {SPIN}")
    a.label(ok)

def poll_local(a, kind, ep, va=1, vt=2, sleep=0):
    t = T + 20
    if kind == "wo":
        a(f"v_and_b32 v{va}, 31, v0\nv_lshlrev_b32 v{va}, 5, v{va}\ns_lshr_b32 s{t}, s{sR}, 3\ns_lshl_b32 s{t}, s{t}, 2\ns_add_u32 s{t}, s{t}, 16")
    elif kind == "gu":
        a(f"v_lshrrev_b32 v{va}, 2, v0\nv_lshlrev_b32 v{va}, 5, v{va}\nv_and_b32 v{vt}, 3, v0\nv_lshl_add_u32 v{va}, v{vt}, 2, v{va}")
        a(f"s_lshr_b32 s{t}, s{sR}, 4\ns_lshl_b32 s{t}, s{t}, 9")
    elif kind == "down":
        a(f"v_bfe_u32 v{va}, v0, 1, 4\nv_lshlrev_b32 v{va}, 5, v{va}\nv_and_b32 v{vt}, 1, v0\nv_lshl_add_u32 v{va}, v{vt}, 3, v{va}")
        a(f"s_lshr_b32 s{t}, s{sR}, 4\ns_lshl_b32 s{t}, s{t}, 9\ns_bfe_u32 s{t+1}, s{sR}, 0x10003\ns_lshl_b32 s{t+1}, s{t+1}, 2\ns_add_u32 s{t}, s{t}, s{t+1}")
    elif kind == "attn":
        a(f"""
        v_bfe_u32 v{va}, v0, 2, 1
        v_mul_u32_u24 v{va}, 19, v{va}
        s_mul_i32 s{t}, s{sR}, 20
        v_add_u32 v{va}, s{t}, v{va}
        v_lshrrev_b32 v{va}, 7, v{va}
        v_lshrrev_b32 v{vt}, 4, v0
        v_min_u32 v{vt}, 2, v{vt}
        v_mad_u32_u24 v{va}, v{vt}, 5, v{va}
        v_bfe_u32 v{vt}, v0, 3, 1
        v_lshl_add_u32 v{va}, v{vt}, 4, v{va}
        v_lshlrev_b32 v{va}, 5, v{va}
        v_and_b32 v{vt}, 3, v0
        v_lshl_add_u32 v{va}, v{vt}, 2, v{va}
        s_mov_b32 s{t}, 0
        """)
    a(f"s_lshl_b32 s{t+1}, s{sG}, 10\ns_add_u32 s{t}, s{t}, s{t+1}\ns_add_u32 s{t}, s{t}, {WS_FL}\ns_add_u32 s{t+1}, s{sEP}, {ep}")
    poll(a, va, vt, f"s{t}", f"s{t+1}", sleep=sleep)

sNR, sGO, sGW = 92, 94, 95
class Gate:
    def __init__(self, a, va, vt, fold=False, sleep=0):
        self.a, self.va, self.vt, self.fold, self.sleep = a, va, vt, fold, sleep
        self.ok = 0
    def load(self): self.a(f"buffer_load_dword v{self.vt}, v{self.va}, {WSR}, s{sGO} offen sc1")
    def upd(self):
        self.a(f"s_waitcnt vmcnt(0)\nv_subrev_u32 v{self.vt}, s{sGW}, v{self.vt}\nv_cmp_lt_u32 s[{sNR}:{sNR+1}], 15, v{self.vt}")
        if self.fold: self.a(f"s_or_b32 s{sNR}, s{sNR}, s{sNR+1}")
    def reset(self): self.a(f"s_mov_b32 s{sNR}, -1")
    def load2(self): self.a(f"buffer_load_dword v{self.vt2}, v{self.va}, {WSR}, s{sGO} offen sc1")
    def bump(self, mask, cnt):
        a = self.a
        a(f"s_add_u32 s{sGW}, s{sGW}, 1\ns_waitcnt vmcnt({cnt})\nv_subrev_u32 v{self.vt2}, s{sGW}, v{self.vt2}\nv_cmp_lt_u32 s[{sNR}:{sNR+1}], 15, v{self.vt2}")
        self.ok = 0
        self.need(mask)
    def need(self, mask):
        a = self.a
        mask &= ~self.ok
        if not mask: return
        self.ok |= mask
        lp = a.uid("gt"); cnt = T + 22
        a(f"s_and_b32 s{cnt}, s{sNR}, {hex(mask)}\ns_cbranch_scc0 {lp}k\ns_mov_b32 s{cnt}, s{sTMO}")
        if C.pp and not self.fold:
            v2 = self.vt2
            a(f"buffer_load_dword v{v2}, v{self.va}, {WSR}, s{sGO} offen sc1\ns_sleep {C.pp}")
            a.label(lp)
            for x_, y_ in ((self.vt, v2), (v2, self.vt)):
                a(f"buffer_load_dword v{x_}, v{self.va}, {WSR}, s{sGO} offen sc1\ns_waitcnt vmcnt(1)\nv_subrev_u32 v{y_}, s{sGW}, v{y_}\nv_cmp_lt_u32 s[{sNR}:{sNR+1}], 15, v{y_}")
                a(f"s_and_b32 s{cnt+1}, s{sNR}, {hex(mask)}\ns_cbranch_scc0 {lp}k")
        else:
            a.label(lp)
            self.load(); self.upd()
            a(f"s_and_b32 s{cnt+1}, s{sNR}, {hex(mask)}\ns_cbranch_scc0 {lp}k")
            if self.sleep: a(f"s_sleep {self.sleep}")
        a(f"s_add_u32 s{cnt}, s{cnt}, 1\ns_cmp_lt_u32 s{cnt}, {SPIN}\ns_cbranch_scc1 {lp}\ns_mov_b32 s{sTMO}, {SPIN}")
        a.label(lp + "k")
def span(lo, hi, w, bits):
    m = 0
    for p in range(lo // w, hi // w + 1): m |= ((1 << bits) - 1) << (bits * p)
    return m
def gate_local(a, kind, ep, va, vt, sRotCt=None, sleep=0):
    t = T + 20
    if kind == "wo":
        a(f"v_and_b32 v{va}, 31, v0\nv_lshlrev_b32 v{va}, 5, v{va}\ns_lshr_b32 s{sGO}, s{sR}, 3\ns_lshl_b32 s{sGO}, s{sGO}, 2\ns_add_u32 s{sGO}, s{sGO}, 16")
    elif kind == "down":
        a(f"v_lshrrev_b32 v{va}, 1, v0\nv_add_u32 v{va}, s{sRotCt}, v{va}\nv_and_b32 v{va}, 15, v{va}\nv_lshlrev_b32 v{va}, 5, v{va}\nv_and_b32 v{vt}, 1, v0\nv_lshl_add_u32 v{va}, v{vt}, 3, v{va}")
        a(f"s_lshr_b32 s{sGO}, s{sR}, 4\ns_lshl_b32 s{sGO}, s{sGO}, 9\ns_bfe_u32 s{t+1}, s{sR}, 0x10003\ns_lshl_b32 s{t+1}, s{t+1}, 2\ns_add_u32 s{sGO}, s{sGO}, s{t+1}")
    elif kind == "gu":
        a(f"v_lshrrev_b32 v{va}, 1, v0\nv_add_u32 v{va}, s{sRotCt}, v{va}\nv_and_b32 v{va}, 7, v{va}\nv_lshlrev_b32 v{va}, 5, v{va}\nv_and_b32 v{vt}, 1, v0\nv_lshl_add_u32 v{va}, v{vt}, 2, v{va}")
        a(f"s_lshr_b32 s{sGO}, s{sR}, 4\ns_lshl_b32 s{sGO}, s{sGO}, 9\ns_bfe_u32 s{t+1}, s{sW}, 0x10001\ns_lshl_b32 s{t+1}, s{t+1}, 8\ns_add_u32 s{sGO}, s{sGO}, s{t+1}")
        a(f"s_and_b32 s{t+1}, s{sW}, 1\ns_lshl_b32 s{t+1}, s{t+1}, 3\ns_add_u32 s{sGO}, s{sGO}, s{t+1}")
    a(f"s_lshl_b32 s{t+1}, s{sG}, 10\ns_add_u32 s{sGO}, s{sGO}, s{t+1}\ns_add_u32 s{sGO}, s{sGO}, {WS_FL}\ns_add_u32 s{sGW}, s{sEP}, {ep}")
    g = Gate(a, va, vt, sleep=sleep); g.reset(); g.vt2 = 8 if kind != 'gu' else 3
    return g

def flag_setup(a, ep):
    t = T + 20
    a(f"s_lshl_b32 s{t}, s{sWG}, 3\ns_add_u32 s{t}, s{t}, s{sW}\ns_lshl_b32 s{t}, s{t}, 2\ns_add_u32 s{t}, s{t}, {WS_FL}\ns_add_u32 s{t+1}, s{sEP}, {ep}")
    a(f"v_mov_b32 v1, 0\nv_mov_b32 v2, s{t+1}")
def flag_store(a, SB, s=T+20):
    a(f"s_mov_b64 exec, 1\nbuffer_store_dword v2, v1, {WSR}, s{s} offen {SB}\ns_mov_b64 exec, -1")
def stage2(a, SB, cnt):
    a(f"s_waitcnt vmcnt({cnt})\ns_mov_b64 exec, 1\nbuffer_store_dword v253, v252, {WSR}, s100 offen {SB}\ns_mov_b64 exec, -1")
def publish_local(a, ep, SB):
    flag_setup(a, ep)
    a("s_waitcnt vmcnt(0)")
    flag_store(a, SB)

def row_stats(a, vst, vmean, vrstd):
    for i in range(1, 8):
        a(f"v_add_f32 v{vst}, v{vst}, v{vst+2*i}\nv_add_f32 v{vst+1}, v{vst+1}, v{vst+2*i+1}")
    finish_stats(a, vst, vst + 1, vmean, vrstd)

def finish_stats(a, vs, vq, vmean, vrstd):
    a(f"v_mul_f32 v{vmean}, {f32(1.0/D)}, v{vs}")
    a(f"v_mul_f32 v{vq}, {f32(1.0/D)}, v{vq}")
    a(f"v_fma_f32 v{vq}, -v{vmean}, v{vmean}, v{vq}")
    a(f"v_max_f32 v{vq}, 0, v{vq}")
    a(f"v_add_f32 v{vq}, {f32(1e-5)}, v{vq}")
    a(f"v_rsq_f32 v{vrstd}, v{vq}")
    a("s_nop 0")

def lin_dma(a, vaddr, src_s, src_off, dst_s, dst_off, npieces, bits="", rsrc=WSR, tmp=T+19):
    i = 0
    while i < npieces:
        k = min(4, npieces - i)
        a(f"s_add_u32 m0, s{dst_s}, {dst_off + 1024*i}")
        a(f"s_add_u32 s{tmp}, s{src_s}, {src_off + 1024*i}")
        for j in range(k):
            a(f"buffer_load_dwordx4 v{vaddr}, {rsrc}, s{tmp} offen offset:{1024*j} {bits} lds")
        i += k
    return npieces


def states(x):
    return int(x.split()[1]) + 1 if x.startswith("s_nop") else 1

def gemm_unrolled(a, n, P, nr, reads, mfma, groups, inserts, fix, fix_from, epi, st_end, alt=None, after_e=(), late=()):
    seq = []
    def add(ms, fill, pre=()):
        k = 0
        for i, (kk, tl) in enumerate(ms):
            tgt = (len(fill) * (i + 1) + len(ms) - 1) // len(ms)
            seq.append([list(pre) if i == 0 else [], mfma(kk, tl), tl, list(fill[k:tgt])]); k = tgt
    step = lambda kk: [(kk, tl) for tl in range(P)]
    a("s_barrier")
    for x in reads(0, 0) + reads(0, 1): a(x)
    w = f"s_waitcnt lgkmcnt({nr})"
    for c in range(n - 1):
        add(step(0), reads(c, 2), [w])
        add(step(1), reads(c, 3), [w])
        add(step(2), [], [w])
        seq[-2][3] += ["s_waitcnt lgkmcnt(0)"]; seq[-1][3] += ["s_barrier"]
        add(step(3), reads(c + 1, 0) + reads(c + 1, 1))
    nmain = len(seq)
    for i0, ins in inserts.items():
        i = i0; ins = list(ins)
        while ins:
            room = 4 - sum(states(x) for x in seq[i][3]) - len(seq[i+1][0])
            if ins[0].startswith("s_mov_b32 exec") and room < 3: room = 0
            while room > 0 and ins and "s_barrier" not in seq[i][3]:
                x = ins.pop(0); seq[i][3].append(x); room -= states(x)
            i += 1

        end = fix_from if i0 < fix_from else nmain
        assert i <= end and all(not (i0 < k < i) for k in inserts if len(inserts[i0]) > 1), (i0, i)
        if any(x.startswith("ds_") for x in inserts[i0]): assert any("s_waitcnt lgkmcnt(0)" in seq[j][3] for j in range(i, end)), (i, end)
    todo = {tl: list(fix(tl)) for tl in range(P)}
    used = lambda g: sum(states(x) for x in seq[g][3]) + len(seq[g+1][0])
    g = fix_from + 2
    while any(todo.values()):
        assert g + 2 < nmain, "no room for fix"
        if used(g) < 5 and "s_barrier" not in seq[g][3]:
            for back in range(P - 2, 1, -1):
                tl = seq[g - back][2]
                if not todo[tl] or g - back < fix_from: continue
                have = sum(used(x) + 1 for x in range(g - back, g)) + sum(states(x) for x in seq[g][3])
                room = sum(max(0, 5 - used(x)) for x in range(g - back, g))
                if have + room < 12: continue
                for x in range(g - back, g):
                    k = min(5 - used(x), 12 - have)
                    if k > 0: seq[x][3].append(f"s_nop {k-1}"); have += k
                while used(g) < 5 and todo[tl]: seq[g][3].append(todo[tl].pop(0))
            if used(g + 1) < 1: seq[g + 1][3].append("s_nop 0")
        g += 1

    c = n - 1
    g0 = groups[0]
    seq[-1][3] += reads(c, 2)
    add([(kk, tl) for kk in (0, 1) for tl in g0], reads(c, 3), [w])
    add([(kk, tl) for kk in (2, 3) for tl in g0], list(late), ["s_waitcnt lgkmcnt(0)"])
    if after_e:
        seq[-2][3].append("s_barrier"); seq[-1][3] += list(after_e)
    else: seq[-len(g0)*2][3].append("s_barrier")
    seq[-1][3].append("s_nop 4")
    def flush():
        for pre, m, tl, post in seq:
            for x in pre: a(x)
            a(m)
            for x in post: a(x)
        del seq[:]
    def tail(epi):
        for gi in range(1, len(groups)):
            ms = [(kk, tl) for kk in range(4) for tl in groups[gi]]
            if gi == 1: add(ms[:1], ["s_nop 4"]); add(ms[1:], epi(gi - 1, False))
            else: add(ms, ["s_nop 0"] + epi(gi - 1, False))
        flush()
        stamp(a, st_end)
        a.nop(3)
        for x in epi(len(groups) - 1, True): a(x)
    if alt:
        cond, epi2, post1, post2 = alt
        l = a.uid("alt")
        seq[-1][3][-1:] = [cond, f"s_cbranch_scc1 {l}", "s_nop 2"]
        flush(); tail(epi); post1()
        a.label(l); a("s_nop 2"); tail(epi2); post2()
    else: tail(epi)

def gemm16(a, n, P, reads, mfma, groups, inserts, fix, fix_from, epi, st_end, fillmax=1, nlead=2, alt=None, after_e=(), late=()):
    seq = []
    def add(ms, fill, span, pre=()):
        k = 0
        for i, (u, tl, z) in enumerate(ms):
            tgt = min(len(fill), (len(fill) * (i + 1) + span - 1) // span)
            seq.append([list(pre) if i == 0 else [], mfma(u, tl, z), tl, list(fill[k:tgt])]); k = tgt
        assert k == len(fill)
    w0 = "s_waitcnt lgkmcnt(0)"
    a("s_barrier")
    for x in reads(0, 0): a(x)
    nr = len(reads(0, 0)); sp = min(nr, P - 6)
    for c in range(n - 1):
        add([(0, tl, c == 0) for tl in range(P)], reads(c, 1), sp, [w0])
        bl = C.bl if (P == 16 and c >= n - 1 - C.bln) else 0
        seq[-2][3] += [w0]
        if bl: add([(1, tl, False) for tl in range(bl)], [], 1)
        seq[-1][3] += ["s_barrier"]
        add([(1, tl, False) for tl in range(bl, P)], reads(c + 1, 0), min(sp, max(1, P - bl - 2)))
    nmain = len(seq)
    used = lambda g: sum(states(x) * (2 if x.startswith(("buffer", "v_perm", "v_rsq")) else 1) for x in seq[g][3]) + len(seq[g+1][0])
    for i0, ins in inserts.items():
        i = i0; ins = list(ins)
        while ins:
            while used(i) < fillmax and ins and "s_barrier" not in seq[i][3]: seq[i][3].append(ins.pop(0))
            i += 1
        end = fix_from if i0 < fix_from else nmain - 1
        assert i <= end and all(not (i0 < k < i) for k in inserts if len(inserts[i0]) > 1), (i0, i)
        if any(x.startswith("ds_") for x in inserts[i0]): assert any(w0 in seq[j][3] + seq[j][0] for j in range(i, end)), (i0, i)
    todo = {tl: list(fix(tl)) for tl in range(P)}
    g = fix_from
    while any(todo.values()):
        assert g + 4 < nmain
        for back in sorted(range(P - 3, 3, -1), key=lambda b_: -len(todo[seq[g - b_][2]])):
            if sum(1 + sum(states(x) for x in seq[j][3]) for j in range(g - back, g)) < 8: continue
            tl = seq[g - back][2]
            while used(g) < fillmax and todo[tl] and "s_barrier" not in seq[g][3]: seq[g][3].append(todo[tl].pop(0))
        g += 1
    c = n - 1
    lead = sum(groups[:nlead], ())
    add([(0, tl, False) for tl in lead], reads(c, 1) + list(late), min(len(lead), nr), [w0])
    add([(1, tl, False) for tl in groups[0]], ["s_barrier"] + list(after_e), len(groups[0]) if after_e else 1, [w0])
    rest = [(1, tl, False) for gi in range(1, nlead) for tl in groups[gi]]
    for gi in range(nlead, len(groups)): rest += [(u, tl, False) for u in range(2) for tl in groups[gi]]
    def flush():
        for k_, (pre, m, tl, post) in enumerate(seq):
            for x in pre: a(x)
            a(m)
            for x in post: a(x)
            if C.x_slow and P == 24 and k_ % C.x_slow == 0: a("s_nop 7")
        del seq[:]
    def tail(epi):
        add(rest[:2], ["s_nop 1", "s_nop 1"], 2)
        nleft = len(rest) - 2
        e = epi(0, False) + epi(1, False)
        add(rest[2:], e[:C.e16*nleft], nleft)
        flush()
        for x in e[C.e16*nleft:]: a(x)
        stamp(a, st_end)
        for gi in range(2, len(groups)):
            for x in epi(gi, True): a(x)
    if alt:
        cond, epi2, post1, post2 = alt
        l = a.uid("alt")
        seq[-1][3] += [cond, f"s_cbranch_scc1 {l}"]
        flush(); tail(epi); post1()
        a.label(l); tail(epi2); post2()
    else: tail(epi)

class Src:
    def __init__(self, sB, sB1, sThr, stride): self.__dict__.update(locals())
    def setup(self, a, sRot, n, tmp):
        a(f"s_mul_i32 s{tmp}, s{sRot}, {self.stride}\ns_add_u32 s{self.sB}, s{self.sB}, s{tmp}\ns_sub_u32 s{self.sB1}, s{self.sB}, {n*self.stride}")
    def sel(self, a, c, dst):
        if getattr(self, "norot", False):
            a(f"s_mov_b32 s{dst}, s{self.sB}"); return
        a(f"s_cmp_gt_u32 s{self.sThr}, {c}\ns_cselect_b32 s{dst}, s{self.sB}, s{self.sB1}")

class Phase:
    def __init__(self, name, n, npa, npw, emitA, emitW, regA, regW, pollfn, budget, lag=1, after_bar=None, dbg=False, early=99):
        self.__dict__.update(locals())

class Loader:
    def __init__(self, a):
        self.a = a; self.q = []; self.live = {}; self.waitfn = None; self.total = 0
    def free(self, reg, key):
        return key in self.live or all(reg[1] <= lo or hi <= reg[0] for lo, hi in self.live.values())
    def can(self, ph, kind, c):
        return self.free((ph.regA if kind == "A" else ph.regW)(c), (ph.name, kind, c))
    def issue(self, ph, kind, c, i0, k):
        assert self.can(ph, kind, c)
        self.live[(ph.name, kind, c)] = (ph.regA if kind == "A" else ph.regW)(c)
        (ph.emitA if kind == "A" else ph.emitW)(c, i0, k)
        self.q += [(ph.name, kind, c)] * k; self.total += k
    def release(self, ph, c):
        for k in "AW": self.live.pop((ph.name, k, c), None)
    def wait(self, tags):
        last = -1
        for i, t in enumerate(self.q):
            if t in tags: last = i
        if last >= 0:
            self.q = self.q[last+1:]
            n7 = len(self.q); n = sum(1 for t in self.q if t[0] != "x7")
            assert n7 < 64
            if n7 != n:
                l = self.a.uid("w7")
                self.a(f"s_waitcnt vmcnt({n7})\ns_cmp_eq_u32 s{sW}, 7\ns_cbranch_scc1 {l}\ns_waitcnt vmcnt({n})")
                self.a.label(l)
            else: self.a(f"s_waitcnt vmcnt({n})")
    def pre(self, ph, pw, cnt, thr=0):
        done = 0
        while pw < ph.n * ph.npw and done < cnt and self.can(ph, "W", pw // ph.npw):
            k = min(4, ph.npw - pw % ph.npw, cnt - done)
            if thr:
                k = 1
                if len(self.q) >= thr:
                    self.a(f"s_waitcnt vmcnt({thr-1})"); self.q = self.q[len(self.q) - (thr - 1):]
            self.issue(ph, "W", pw // ph.npw, pw % ph.npw, k); pw += k; done += k
        return pw
    def run(self, ph, nxt, pw=0, after_poll=None, tail=None, waitfn=None, lastexit=None):
        a = self.a; n = ph.n
        pa = 0; pn = 0
        if ph.pollfn: ph.pollfn()
        if after_poll: after_poll()
        for c in range(1 if getattr(ph, "skip0", False) else 0, n):
            done = 0
            if lastexit and pw == n * ph.npw:
                assert all(t_[0] == ph.name for t_ in self.q)
                lastexit([len(self.q) - 1 - max([-1] + [i_ for i_, t_ in enumerate(self.q) if t_[2] <= cc]) for cc in range(c, n)]); lastexit = None
            while True:
                needed = pa < (c + 1) * ph.npa or pw < (c + 1) * ph.npw
                if not needed:
                    beyond = 0
                    for t in reversed(self.q):
                        if t[0] == ph.name and t[2] <= c: break
                        beyond += t[0] != "x7"
                    if beyond >= getattr(ph, 'look', C.look) and (done >= ph.budget or c == 0): break
                ca = pa // ph.npa if ph.npa else n; cw = pw // ph.npw
                okA = ca < n and self.can(ph, "A", ca)
                okW = cw < n and self.can(ph, "W", cw)
                if okW and (cw <= ca or not okA):
                    k = ph.npw - pw % ph.npw
                    if not needed: k = min(C.grp, k)
                    self.issue(ph, "W", cw, pw % ph.npw, k); pw += k
                elif okA:
                    k = ph.npa - pa % ph.npa
                    if not needed: k = min(C.grp, k)
                    self.issue(ph, "A", ca, pa % ph.npa, k); pa += k
                elif nxt and not lastexit and ca == n and cw == n and pn < nxt.early and self.can(nxt, "W", pn // nxt.npw):
                    k = min(2, nxt.npw - pn % nxt.npw)
                    self.issue(nxt, "W", pn // nxt.npw, pn % nxt.npw, k); pn += k
                else:
                    assert not needed
                    break
                done += k
            if tail and pa == n * ph.npa and pw == n * ph.npw:
                tail(); tail = None; self.waitfn = waitfn
            if ph.after_bar and c > 0: ph.after_bar(c - 1)
            self.wait({(ph.name, "A", c), (ph.name, "W", c)})
            if ph.dbg and C.stamp: a(f"s_memtime s[10:11]\ns_waitcnt lgkmcnt(0)\nv_writelane_b32 v254, s10, {2*c}")
            a("s_barrier")
            if ph.dbg and C.stamp: a(f"s_memtime s[10:11]\ns_waitcnt lgkmcnt(0)\nv_writelane_b32 v254, s10, {2*c+1}")
            if C.jit and c % 3 == 1: jitter(a, c)
            self.release(ph, c - ph.lag)
        if ph.after_bar: ph.after_bar(n - 1)
        if nxt: pn = self.pre(nxt, pn, min(ph.budget, max(0, nxt.early - pn)))
        return pn
    def end(self, ph):
        self.a("s_barrier")
        for c in range(ph.n): self.release(ph, c)

Q1_TAB = 98304
Q1_NON = Q1_TAB + 2048
Q1_CS = Q1_NON + 64
WB = 65536
def guW(c): return WB + ((3 - c) % 4) * 24576
def dnW(c): return ((c + 2) % 8) * 20480
def qkW(c): return WB + ((c + C.qk_s0) % 6) * 16384

PSCR = 131072
PV = 180
def projjob_issue(a, sJob, sScr, t, loads=True):
    a(f"""
    s_and_b32 s{t+2}, s{sJob}, 7
    s_lshr_b32 s{t+3}, s{sJob}, 3
    s_cmp_lt_u32 s{t+3}, 20
    s_cselect_b32 s{R_T}, s{P_WO}, s{P_WD}
    s_cselect_b32 s{R_T+1}, s{P_WO+1}, s{P_WD+1}
    s_mov_b32 s{R_T+2}, {F*D*2}
    s_cselect_b32 s{R_T+2}, {D*D*2}, s{R_T+2}
    s_mov_b32 s{R_T+3}, 0x20000
    s_cselect_b32 s{t+4}, 0, 20
    s_cselect_b32 s{t+5}, 20, 48
    s_mov_b32 s{t+6}, {WS_WTD}
    s_cselect_b32 s{t+6}, {WS_WTO}, s{t+6}
    s_sub_u32 s{t+3}, s{t+3}, s{t+4}
    s_mul_i32 s{t+5}, s{t+5}, s{t+2}
    s_add_u32 s{t+5}, s{t+5}, s{t+3}
    s_mul_i32 s{t+5}, s{t+5}, 5120
    s_add_u32 s{t+6}, s{t+6}, s{t+5}
    s_mul_i32 s{t+3}, s{t+3}, {32*1280}
    s_mul_i32 s{t+2}, s{t+2}, 160
    s_add_u32 s{t+3}, s{t+3}, s{t+2}
    s_movk_i32 s{t+4}, 6554
    """)
    x, y = PV, PV + 1
    for i in range(5 if loads else 0):
        a(f"""
        v_add_u32 v{x}, {64*i}, v0
        v_mul_u32_u24 v{y}, s{t+4}, v{x}
        v_lshrrev_b32 v{y}, 16, v{y}
        v_mad_i32_i24 v{x}, v{y}, -10, v{x}
        v_mul_u32_u24 v{y}, 1280, v{y}
        v_lshl_add_u32 v{x}, v{x}, 4, v{y}
        s_add_u32 m0, s{sScr}, {1024*i}
        s_nop 0
        buffer_load_dwordx4 v{x}, {R(R_T)}, s{t+3} offen lds
        """)
def projjob_finish(a, sScr, t):
    x, y, z, d0 = PV, PV + 1, PV + 2, PV + 4
    a(f"""
    v_lshrrev_b32 v{x}, 4, v0
    v_bfe_u32 v{y}, v0, 2, 2
    v_lshl_add_u32 v{x}, v{x}, 3, v{y}
    v_mul_u32_u24 v{x}, 160, v{x}
    v_add_u32 v{x}, s{sScr}, v{x}
    v_and_b32 v{y}, 3, v0
    v_lshl_add_u32 v{z}, v{y}, 3, v{x}
    v_lshl_add_u32 v{y}, v{y}, 4, v{x}
    """)
    for jn in range(5):
        for j in range(2):
            d = d0 + 4*jn + 2*j
            if jn < 4: a(f"ds_read_b64_tr_b16 v[{d}:{d+1}], v{y} offset:{640*j + 64*(jn>>1) + 8*(jn&1)}")
            else: a(f"ds_read_b64_tr_b16 v[{d}:{d+1}], v{z} offset:{640*j + 128}")
    a(f"s_add_u32 s{t+5}, s{t+6}, 4096\ns_waitcnt lgkmcnt(0)")
    for jn in range(5):
        d = d0 + 4*jn
        a(f"buffer_store_dwordx4 v[{d}:{d+3}], v5, {WSR}, s{t+6 if jn < 4 else t+5} offen offset:{1024*(jn&3)} sc1")

def gujob_issue(a, sJob, t, loads=True):
    x, y = PV, PV + 1
    a(f"""
    s_mul_i32 s{t+2}, s{sJob}, 2731
    s_lshr_b32 s{t+2}, s{t+2}, 16
    s_mul_i32 s{t+3}, s{t+2}, 24
    s_sub_u32 s{t+3}, s{sJob}, s{t+3}
    s_mul_i32 s{t+4}, s{t+2}, {64*F*2}
    s_lshl_b32 s{t+5}, s{t+3}, 7
    s_add_u32 s{t+4}, s{t+4}, s{t+5}
    v_lshrrev_b32 v{x}, 3, v0
    v_mul_u32_u24 v{x}, {F*2}, v{x}
    v_and_b32 v{y}, 7, v0
    v_lshl_add_u32 v{x}, v{y}, 4, v{x}
    """)
    a(f"""
    s_and_b32 s{t+1}, s{sW}, 1
    s_cselect_b32 s{R_T}, s{P_WU}, s{P_WG}
    s_cselect_b32 s{R_T+1}, s{P_WU+1}, s{P_WG+1}
    s_mov_b32 s{R_T+2}, {F*D*2}
    s_mov_b32 s{R_T+3}, 0x20000
    s_lshl_b32 s{t+6}, s{t+1}, 13
    """)
    for i in range(8):
        a(f"s_add_u32 m0, s{t+6}, {PSCR + 1024*i}\ns_add_u32 s{t+5}, s{t+4}, {i*8*F*2}")
        a(f"buffer_load_dwordx4 v{x}, {R(R_T)}, s{t+5} offen lds")
def gujob_finish(a, t):
    x, y, z = PV, PV + 1, PV + 2
    ONE, FRG, CS = PV + 4, PV + 8, PV + 40
    a(f"""
    v_lshrrev_b32 v{z}, 4, v0
    v_bfe_u32 v{x}, v0, 2, 2
    v_lshl_add_u32 v{x}, v{z}, 3, v{x}
    v_lshlrev_b32 v{x}, 7, v{x}
    v_and_b32 v{y}, 3, v0
    v_lshl_add_u32 v{x}, v{y}, 3, v{x}
    s_add_u32 s{t+6}, s{t+6}, {PSCR}
    v_add_u32 v{x}, s{t+6}, v{x}
    v_lshlrev_b32 v{z}, 4, v{z}
    """)
    for tt in range(4):
        for u in range(2):
            for j in range(2):
                d = FRG + 8*tt + 4*u + 2*j
                a(f"ds_read_b64_tr_b16 v[{d}:{d+1}], v{x} offset:{128*(32*u+4*j) + 32*tt}")
    a(f"""
    s_mul_i32 s{t+6}, s{t+2}, 12288
    s_lshl_b32 s{t+5}, s{t+3}, 9
    s_add_u32 s{t+6}, s{t+6}, s{t+5}
    s_lshl_b32 s{t+5}, s{t+1}, 6
    s_add_u32 s{t+6}, s{t+6}, s{t+5}
    s_add_u32 s{t+6}, s{t+6}, {WS_CSP}
    """)
    for i in range(4): a(f"v_mov_b32 v{ONE+i}, 0x3f803f80")
    a("s_nop 0\ns_waitcnt lgkmcnt(0)")
    for u in range(2):
        for tt in range(4):
            a(f"v_mfma_f32_16x16x32_bf16 {v(CS+4*tt,4)}, {v(FRG+8*tt+4*u,4)}, {v(ONE,4)}, {v(CS+4*tt,4) if u else 0}")
    for tt in range(4):
        a(f"""
        s_lshl_b32 s{t+4}, s{t+3}, 2
        s_add_u32 s{t+4}, s{t+4}, {tt}
        s_mul_i32 s{t+5}, s{t+4}, 43
        s_lshr_b32 s{t+5}, s{t+5}, 8
        s_mul_i32 s{t+5}, s{t+5}, 228
        s_lshl_b32 s{t+4}, s{t+4}, 1
        s_add_u32 s{t+4}, s{t+4}, s{t+5}
        s_mul_i32 s{t+5}, s{t+2}, 24
        s_add_u32 s{t+4}, s{t+4}, s{t+5}
        s_add_u32 s{t+4}, s{t+4}, s{t+1}
        s_lshl_b32 s{t+4}, s{t+4}, 10
        s_add_u32 s{t+4}, s{t+4}, {WS_WTG}
        s_add_u32 s{t+5}, s{t+4}, 12288
        """)
        for u in range(2):
            d = FRG + 8*tt + 4*u
            a(f"buffer_store_dwordx4 v[{d}:{d+3}], v5, {WSR}, s{t+4+u} offen sc1")
    a("s_mov_b32 exec_lo, 0x10001\ns_mov_b32 exec_hi, 0x10001")
    for tt in range(4):
        a(f"buffer_store_dwordx4 v[{CS+4*tt}:{CS+4*tt+3}], v{z}, {WSR}, s{t+6} offen offset:{128*tt} sc1")
    a("s_mov_b64 exec, -1")

def prep(a, stage):
    tj = 84; sJob, sScr = tj, tj + 1
    lg = a.uid("pg"); le = a.uid("pe")
    if stage == 0:
        a(f"""
        s_sub_u32 s{sScr}, s{sW}, 1
        s_lshl_b32 s{sJob}, s{sScr}, 8
        s_add_u32 s{sJob}, s{sJob}, s{sWG}
        s_add_u32 s{sJob}, s{sJob}, 160
        s_mul_i32 s{sScr}, s{sScr}, 5120
        s_add_u32 s{sScr}, s{sScr}, {PSCR + 16384}
        """)
    a(f"s_cmp_eq_u32 s{sW}, 0\ns_cbranch_scc1 {lg}\ns_cmp_eq_u32 s{sW}, 3\ns_cbranch_scc1 {lg}\ns_cmp_ge_u32 s{sJob}, 544\ns_cbranch_scc1 {le}")
    projjob_issue(a, sJob, sScr, tj) if stage == 0 else projjob_finish(a, sScr, tj)
    a(f"s_branch {le}")
    a.label(lg)
    a(f"s_cmp_ge_u32 s{sWG}, 240\ns_cbranch_scc1 {le}")
    gujob_issue(a, sWG, tj) if stage == 0 else gujob_finish(a, tj)
    a.label(le)

def xstat_fin(a):
    t = T + 16
    a(f"s_mov_b32 s{t}, 0xffff0000\nv_mov_b64 v[232:233], 0\ns_waitcnt vmcnt(0)")
    for i in range(12):
        a(f"v_lshlrev_b32 v234, 16, v{220+i}\nv_and_b32 v235, s{t}, v{220+i}\nv_add_f32 v232, v232, v234\nv_fmac_f32 v233, v234, v234\nv_add_f32 v232, v232, v235\nv_fmac_f32 v233, v235, v235")
    for mod in ("quad_perm:[1,0,3,2]", "quad_perm:[2,3,0,1]"):
        a(f"s_nop 1\nv_add_f32_dpp v232, v232, v232 {mod} row_mask:0xf bank_mask:0xf\nv_add_f32_dpp v233, v233, v233 {mod} row_mask:0xf bank_mask:0xf")
    a(f"""
    v_bfe_u32 v234, v0, 3, 2
    v_lshlrev_b32 v234, 10, v234
    v_bfe_u32 v235, v0, 2, 1
    v_lshl_add_u32 v234, v235, 3, v234
    v_lshrrev_b32 v235, 5, v0
    v_lshl_add_u32 v234, v235, 4, v234
    s_lshr_b32 s{t}, s{sWG}, 3
    s_lshl_b32 s{t}, s{t}, 12
    s_and_b32 s{t+1}, s{sWG}, 7
    s_lshl_b32 s{t+1}, s{t+1}, 2
    s_add_u32 s{t+1}, s{t+1}, s{sW}
    s_lshl_b32 s{t+1}, s{t+1}, 5
    s_add_u32 s{t}, s{t}, s{t+1}
    s_add_u32 s{t}, s{t}, {WS_ST0}
    s_mov_b32 exec_lo, 0x11111111
    s_mov_b32 exec_hi, 0x11111111
    buffer_store_dwordx2 v[232:233], v234, {WSR}, s{t} offen sc1
    s_mov_b64 exec, -1
    """)

def nonce_put(a):
    t = T + 8
    a(f"""
    s_memrealtime s[{t}:{t+1}]
    v_mov_b32 v1, 0
    s_waitcnt lgkmcnt(0)
    s_or_b32 s{t+2}, s{t}, 0x80000000
    v_mov_b32 v2, s{t+2}
    s_mov_b64 exec, 1
    global_store_dword v1, v2, s[{P_DBG}:{P_DBG+1}] sc1
    s_mov_b64 exec, -1
    """)
def flags_zero(a):
    t = T + 16
    a(f"""
    s_lshl_b32 s{t}, s{sWG}, 5
    s_add_u32 s{t}, s{t}, {WS_FL}
    s_lshl_b32 s{t+1}, s{sWG}, 7
    s_add_u32 s{t+1}, s{t+1}, {L_FG}
    s_add_u32 s{t+2}, s{t+1}, {LSTRIDE}
    v_lshlrev_b32 v236, 2, v0
    v_mov_b32 v237, 0
    s_mov_b64 exec, 0xff
    buffer_store_dword v237, v236, {WSR}, s{t} offen sc1
    s_mov_b64 exec, 0x7ff
    buffer_store_dword v237, v236, {WSR}, s{t+1} offen sc1
    buffer_store_dword v237, v236, {WSR}, s{t+2} offen sc1
    s_mov_b64 exec, -1
    """)

def nonce_issue(a, v2, v3):
    a(f"v_mov_b32 v{v3}, 0\nglobal_load_dword v{v2}, v{v3}, s[{P_DBG}:{P_DBG+1}] sc1")
def nonce_get(a, v1, v2, v3, cnt=0):
    t = T + 14
    lp = a.uid("non"); ok = a.uid("nonok")
    a(f"s_mov_b32 s{t+6}, 0\nv_mov_b32 v{v3}, 0\ns_lshl_b32 s{t+4}, s{sWG}, 7\ns_add_u32 s{t+4}, s{t+4}, {L_FG}\ns_waitcnt vmcnt({cnt})\ns_branch {lp}c")
    a.label(lp)
    a(f"global_load_dword v{v2}, v{v3}, s[{P_DBG}:{P_DBG+1}] sc1\ns_waitcnt vmcnt(0)")
    a.label(lp + "c")
    a(f"""
    v_cmp_eq_u32 vcc, 0, v{v2}
    s_cbranch_vccz {ok}
    s_sleep 4
    s_add_u32 s{t+6}, s{t+6}, 1
    s_cmp_lt_u32 s{t+6}, {SPIN}
    s_cbranch_scc1 {lp}
    s_mov_b32 s{sTMO}, {SPIN}
    """)
    a.label(ok)
    a(f"""
    v_readfirstlane_b32 s{sEP}, v{v2}
    s_getreg_b32 s{t+6}, hwreg(HW_REG_XCC_ID, 0, 4)
    v_add_u32 v{v2}, s{t+6}, v{v2}
    s_mov_b64 exec, 1
    buffer_store_dword v{v2}, v{v3}, {WSR}, s{t+4} offen offset:32 sc1
    s_mov_b64 exec, -1
    s_waitcnt lgkmcnt(0)
    """)

def census(a, va, vt, issue, cnt=0):
    t = T + 20
    a(f"""
    v_and_b32 v{va}, 31, v0
    v_lshlrev_b32 v{va}, 7, v{va}
    s_lshl_b32 s{t}, s{sG}, 12
    s_add_u32 s{t}, s{t}, {L_FG + 32}
    """)
    if issue:
        a(f"buffer_load_dword v{vt}, v{va}, {WSR}, s{t} offen sc1")
        return
    poll(a, va, vt, f"s{t}", f"s{sEP}", sleep=4, pre=cnt)
    a(f"""
    s_getreg_b32 s{t}, hwreg(HW_REG_XCC_ID, 0, 4)
    v_cmp_ne_u32 vcc, s{t}, v{vt}
    s_cmp_eq_u64 vcc, 0
    s_cselect_b32 s{t}, 1, 0
    v_mov_b32 v{va}, {Q1_NON}
    v_mov_b32 v{vt}, s{t}
    ds_write_b32 v{va}, v{vt} offset:4
    v_mov_b32 v{vt}, s{sEP}
    ds_write_b32 v{va}, v{vt}
    s_waitcnt lgkmcnt(0)
    """)

sMODE = 14 - 14 + 98
def read_nonce_mode(a):
    a(f"v_mov_b32 v1, {Q1_NON}\nds_read_b64 v[2:3], v1\ns_waitcnt lgkmcnt(0)\nv_readfirstlane_b32 s{sEP}, v2\nv_readfirstlane_b32 s{sMODE}, v3")

def qkv_ids(a, t):
    a(f"s_lshr_b32 s{t}, s{sWG}, 4\ns_and_b32 s{t+1}, s{sR}, 15")

def qkv_compute(a, first, SB):
    t = T
    sRT, sCT, sTY, sC0 = t, t+1, t+2, t+3
    LQ = 0 if first else LSTRIDE
    sWM, sWN = t+5, t+6
    a(f"""
    s_mul_i32 s{sTY}, s{sCT}, 52
    s_lshr_b32 s{sTY}, s{sTY}, 8
    s_mul_i32 s{sC0}, s{sTY}, 5
    s_sub_u32 s{sC0}, s{sCT}, s{sC0}
    s_lshl_b32 s{sC0}, s{sC0}, 7
    s_and_b32 s{sWM}, s{sW}, 1
    s_lshr_b32 s{sWN}, s{sW}, 1
    v_lshrrev_b32 v14, 4, v0
    v_and_b32 v15, 15, v0
    """)
    FR = 16; VST = 80; VCS = 96; VM = 96; VR = 112; ACC = 128; VCV = 192; NON = 200; AD = 202; MS = 240; TMP = 212
    vq, vt = AD + 8, AD + 9
    sCS = t+15
    a(f"s_lshl_b32 s{sCS}, s{sWG}, 9\ns_lshl_b32 s{t+7}, s{sWN}, 8\ns_add_u32 s{sCS}, s{sCS}, s{t+7}\ns_add_u32 s{sCS}, s{sCS}, {WS_CSQ}")
    a(f"v_lshlrev_b32 v{vq}, 4, v14\nv_lshlrev_b32 v{vt}, 2, v15\ns_lshl_b32 s{t+7}, s{sWM}, 13")
    if first:
        a(f"""
        v_lshlrev_b32 v1, 7, v15
        v_add_u32 v1, s{t+7}, v1
        v_bfe_u32 v12, v0, 1, 3
        v_xor_b32 v12, v12, v14
        v_lshl_add_u32 v2, v12, 4, v1
        v_xor_b32 v12, 4, v12
        v_lshl_add_u32 v3, v12, 4, v1
        """)
    else:
        a(f"v_lshlrev_b32 v2, 4, v15\nv_lshl_add_u32 v2, v14, 9, v2\nv_add_u32 v2, s{t+7}, v2")
    a(f"""
    v_bfe_u32 v12, v0, 2, 2
    v_lshl_add_u32 v13, v14, 3, v12
    v_lshlrev_b32 v13, 8, v13
    v_and_b32 v1, 3, v0
    v_lshl_add_u32 v13, v1, 3, v13
    v_add_u32 v13, {WB}, v13
    v_bfe_u32 v12, v0, 2, 3
    s_lshl_b32 s{t+7}, s{sWN}, 2
    v_xor_b32 v12, s{t+7}, v12
    """)
    for nt in range(4): a(f"v_xor_b32 v1, {nt}, v12\nv_lshl_add_u32 v{4+nt}, v1, 5, v13\nv_add_u32 v{8+nt}, 49152, v{4+nt}")
    assert Q1_TAB == qkW(4)
    sC, sMk, sDst, sD1 = t+9, t+11, t+12, 96
    qloc = C.qloc and SB == '' and not first
    vlab = a.uid("qkv_v"); fin = a.uid("qkv_fin")
    a(f"s_cmp_eq_u32 s{sTY}, 2\ns_cbranch_scc1 {vlab}")
    def rd(c, u):
        b = FR + 32*u; o = qkW(c) - WB
        if first: r = [f"ds_read_b128 v[{b+4*tt}:{b+4*tt+3}], v{2+u} offset:{(c % 4)*16384+2048*tt}" for tt in range(4)]
        else: r = [f"ds_read_b128 v[{b+4*tt}:{b+4*tt+3}], v2 offset:{(c % 4)*16384+4096*(tt >> 1)+256*(tt & 1)+2048*u}" for tt in range(4)]
        for nt in range(4):
            for j in range(2):
                d = b + 16 + 4*nt + 2*j
                r.append(f"ds_read_b64_tr_b16 v[{d}:{d+1}], v{4 + 4*(o // 49152) + nt} offset:{o % 49152 + 8192*u + 1024*j}")
        return r
    def mainloop(vtype, epi, alt=None):
        if first: xstat_fin(a)
        stamp(a, 1 if first else 18)
        def mf(u, tl, z):
            b = FR + 32*u; c = ACC + 4*tl
            if vtype: A, B = v(b + 4*(tl >> 2), 4), v(b + 16 + 4*(tl & 3), 4)
            else: A, B = v(b + 16 + 4*(tl >> 2), 4), v(b + 4*(tl & 3), 4)
            return f"v_mfma_f32_16x16x32_bf16 {v(c,4)}, {A}, {B}, {0 if z else v(c,4)}"
        neg = [f"v_sub_f32 v{VCV+2*i}, 0, v{VCV+2*i}" for i in range(4)]
        if vtype: fix = lambda tl: [f"v_fmac_f32 v{ACC+4*tl+i}, v{VCV+2*(tl&3)}, v{VM+4*(tl>>2)+i}" for i in range(4)]
        else: fix = lambda tl: [f"v_fmac_f32 v{ACC+4*tl+i}, v{TMP+2*(tl&3)}, v{VCS+4*(tl>>2)+i}" for i in range(4)]
        groups = [tuple(range(4*j, 4*j + 4)) for j in range(4)]
        a(f"s_cmp_eq_u32 s{sTY}, 0\ns_cselect_b32 s{t+10}, {f32(QSCALE)}, 1.0")
        if not first:
            a(f"""
            s_lshl_b32 s{sC}, s{sRT}, 1
            s_add_u32 s{sC}, s{sC}, s{sWM}
            s_lshl_b32 s{sC}, s{sC}, 12
            s_add_u32 s{sC}, s{sC}, {L_ST2}
            v_lshlrev_b32 v3, 4, v0
            """)
            ins = {}
            for nt in range(4): ins[26 + nt] = [f"buffer_load_dword v{VCV+2*nt}, v{vt}, {WSR}, s{sCS} offen offset:{64*nt} sc1" if vtype else
                                                f"buffer_load_dwordx4 v[{VCS+4*nt}:{VCS+4*nt+3}], v{vq}, {WSR}, s{sCS} offen offset:{64*nt} sc1"]
            for i in range(4): ins[58 + i + (12 if i > 1 else 0)] = [f"buffer_load_dwordx4 v[{VST+4*i}:{VST+4*i+3}], v3, {WSR}, s{sC} offen offset:{1024*i} sc1"]
            b = Asm(); b("s_waitcnt vmcnt(0)"); row_stats(b, VST, VST + 2, VST + 3)
            if vtype:
                b("\n".join(neg))
                a(f"s_lshl_b32 s{t+7}, s{sW}, 9\ns_add_u32 s{t+7}, s{t+7}, {qkW(4)}\nv_lshlrev_b32 v12, 2, v0\nv_add_u32 v12, s{t+7}, v12\nv_add_u32 v13, s{t+7}, v{vq}")
                ins[146] = [f"ds_write_b32 v12, v{VST+2}", f"ds_write_b32 v12, v{VST+3} offset:256"] + \
                    [f"ds_read_b128 v[{R_+4*tt}:{R_+4*tt+3}], v13 offset:{o_+64*tt}" for R_, o_ in ((VM, 0), (VR, 256)) for tt in range(4)]
                ff = 178
            else:
                for src, d, op in ((VST + 2, TMP, "v_sub_f32 v{0}, 0, v{1}"), (VST + 3, MS, "v_mul_f32 v{0}, s%d, v{1}" % (t + 10))):
                    b(op.format(d, src) + "\n" + op.format(d + 2, src) + f"\ns_nop 1\nv_permlane16_swap_b32 v{d}, v{d+2}\nv_mov_b32 v{d+4}, v{d}\nv_mov_b32 v{d+6}, v{d+2}\ns_nop 1")
                    b(f"v_permlane32_swap_b32 v{d}, v{d+4}\nv_permlane32_swap_b32 v{d+2}, v{d+6}")
                ff = 178
            ins = dict(sorted({**ins, 108: b.lines}.items()))
            stage2(a, SB, 0)
            gemm16(a, 10, 16, rd, mf, groups, ins, fix, ff, epi, 19, 2, 3, alt)
            return
        a(f"s_lshl_b32 s{t+7}, s{sWM}, 8\ns_add_u32 s{t+7}, s{t+7}, {Q1_TAB}\nv_add_u32 v13, s{t+7}, v{vq if vtype else vt}")
        if vtype:
            sr = [f"ds_read_b128 v[{R_+4*tt}:{R_+4*tt+3}], v13 offset:{o_+64*tt}" for R_, o_ in ((VM, 0), (VR, 512)) for tt in range(4)]
            sf = neg
        else:
            sr = [f"ds_read_b32 v{R_+2*tt}, v13 offset:{o_+64*tt}" for R_, o_ in ((TMP, 0), (MS, 512)) for tt in range(4)]
            sf = [x for tt in range(4) for x in (f"v_sub_f32 v{TMP+2*tt}, 0, v{TMP+2*tt}", f"v_mul_f32 v{MS+2*tt}, s{t+10}, v{MS+2*tt}")]
        a(f"s_lshl_b32 s{t+7}, s{sWN}, 8\ns_add_u32 s{t+7}, s{t+7}, {Q1_CS}\nv_add_u32 v12, s{t+7}, v{vt if vtype else vq}\nv_mov_b32 v1, {Q1_NON}")
        ae = [f"ds_read_b64 v[{NON}:{NON+1}], v1"]
        ae += [f"ds_read_b32 v{VCV+2*nt}, v12 offset:{64*nt}" if vtype else f"ds_read_b128 v[{VCS+4*nt}:{VCS+4*nt+3}], v12 offset:{64*nt}" for nt in range(4)]
        def epi1(g, pk):
            r = []
            if g == 0: r = ["s_waitcnt lgkmcnt(0)", f"v_readfirstlane_b32 s{sEP}, v{NON}", f"v_readfirstlane_b32 s{sMODE}, v{NON+1}"] + sf
            return r + sum((fix(tl) for tl in groups[g]), []) + epi(g, pk)
        assert C.c_f < 9
        gemm16(a, 10, 16, rd, mf, groups, {40: ["s_waitcnt vmcnt(0)"]}, lambda tl: [], 0, epi1, 2, 2, 3, None, ae, sr)
    a(f"""
    s_mul_i32 s{sDst}, s{sTY}, {ACT}
    s_lshl_b32 s{t+8}, s{sRT}, 2
    s_lshl_b32 s{t+7}, s{sWM}, 1
    s_add_u32 s{t+8}, s{t+8}, s{t+7}
    s_mul_i32 s{t+8}, s{t+8}, 1280
    s_add_u32 s{sDst}, s{sDst}, s{t+8}
    s_add_u32 s{sDst}, s{sDst}, {LQ}
    s_lshr_b32 s{t+8}, s{sC0}, 3
    s_lshl_b32 s{t+7}, s{sWN}, 3
    s_add_u32 s{t+8}, s{t+8}, s{t+7}
    v_lshrrev_b32 v80, 5, v0
    v_add_u32 v80, s{t+8}, v80
    v_and_b32 v87, 31, v0
    s_mov_b32 s{t+13}, {HEADB}
    v_mov_b32 v86, 0x7fffffff
    s_mov_b32 s{sMk}, 0
    s_add_u32 s{sD1}, s{sDst}, 1280
    """)
    if qloc:
        a(f"""
        s_lshl_b32 s{t+8}, s{sRT}, 1
        s_add_u32 s{t+8}, s{t+8}, s{sWM}
        s_mul_i32 s{t+8}, s{t+8}, {2*F*64}
        s_add_u32 s{t+8}, s{t+8}, {L_Q + 57344}
        s_add_u32 s{t+7}, s{t+8}, {F*64}
        s_cmp_eq_u32 s{sTY}, 0
        s_cselect_b32 s{sDst}, s{t+8}, s{sDst}
        s_cselect_b32 s{sD1}, s{t+7}, s{sD1}
        s_cselect_b32 s{t+13}, 1280, s{t+13}
        """)
    a(f"s_add_u32 s{t+14}, s{sDst}, s{t+13}\ns_add_u32 s{sD1+1}, s{sD1}, s{t+13}")
    for sl in range(4):
        a(f"""
        v_add_u32 v81, {2*sl}, v80
        v_mul_u32_u24 v82, 205, v81
        v_lshrrev_b32 v82, 10, v82
        v_mad_i32_i24 v81, v82, -5, v81
        v_cmp_lt_u32 vcc, 2, v81
        v_lshlrev_b32 v82, 1, v82
        v_add_u32 v83, -3, v81
        v_cndmask_b32 v83, v81, v83, vcc
        v_addc_co_u32 v82, vcc, 0, v82, vcc
        v_lshlrev_b32 v83, 9, v83
        v_lshl_add_u32 v83, v87, 4, v83
        v_lshlrev_b32 v85, 3, v87
        v_add_u32 v85, 1024, v85
        v_cmp_eq_u32 vcc, 2, v81
        v_mul_lo_u32 v84, v82, s{t+13}
        s_cmp_lg_u64 vcc, 0
        v_cndmask_b32 v83, v83, v86, vcc
        v_cndmask_b32 v85, v86, v85, vcc
        s_cselect_b32 s{t+7}, {1 << sl}, 0
        s_or_b32 s{sMk}, s{sMk}, s{t+7}
        v_add_u32 v{AD+sl}, v83, v84
        v_add_u32 v{AD+4+sl}, v85, v84
        """)
    def pack(c, sw):
        return [f"v_cvt_pk_bf16_f32 v{c+i}, v{c+2*i}, v{c+2*i+1}" for i in range(4)] + \
               ["s_nop 0", f"v_permlane{sw}_swap_b32 v{c}, v{c+2}", f"v_permlane{sw}_swap_b32 v{c+1}, v{c+3}"]
    def epi_qk(nt, pk=True, bits='sc1'):
        r = []
        for tp in range(2):
            c = ACC + 16*nt + 8*tp
            if pk: r += [f"v_pk_mul_f32 v[{c+i}:{c+i+1}], v[{c+i}:{c+i+1}], v[{MS+4*tp+2*(i>>2)}:{MS+4*tp+2*(i>>2)+1}] op_sel_hi:[1,0]" for i in range(0, 8, 2)]
            else: r += [f"v_mul_f32 v{c+i}, v{MS+4*tp+2*(i>>2)}, v{c+i}" for i in range(8)]
            r += pack(c, 16)
            r.append(f"buffer_store_dwordx4 v[{c}:{c+3}], v{AD+nt}, {WSR}, s{sD1 if tp else sDst} offen {bits}")
        return r
    def bparts(bits):
        for sl in range(4):
            sk = a.uid("qk_b")
            a(f"s_bitcmp0_b32 s{sMk}, {sl}\ns_cbranch_scc1 {sk}")
            for tm in range(2):
                o = ACC + 16*sl + 8*tm
                a(f"buffer_store_dwordx2 v[{o}:{o+1}], v{AD+4+sl}, {WSR}, s{sD1 if tm else sDst} offen {bits}")
                a(f"buffer_store_dwordx2 v[{o+2}:{o+3}], v{AD+4+sl}, {WSR}, s{sD1+1 if tm else t+14} offen {bits}")
            a.label(sk)
        a(f"s_branch {fin}")
    if qloc: mainloop(False, epi_qk, (f"s_cmp_eq_u32 s{sTY}, 0", lambda g, pk: epi_qk(g, pk, ""), lambda: bparts("sc1"), lambda: bparts("")))
    else:
        mainloop(False, epi_qk); bparts("sc1")
    a.label(vlab)
    a(f"""
    s_lshl_b32 s{t+8}, s{sRT}, 3
    s_lshl_b32 s{t+7}, s{sWM}, 2
    s_add_u32 s{t+8}, s{t+8}, s{t+7}
    s_mul_i32 s{sDst}, s{t+8}, 640
    s_add_u32 s{sDst}, s{sDst}, {L_V + LQ}
    s_lshl_b32 s{t+7}, s{sWN}, 6
    s_add_u32 s{t+8}, s{sC0}, s{t+7}
    v_lshrrev_b32 v80, 5, v0
    v_lshl_add_u32 v80, v80, 4, v15
    v_add_u32 v80, s{t+8}, v80
    v_and_b32 v81, 1, v14
    v_mul_u32_u24 v81, 320, v81
    s_mov_b32 s{t+13}, {HEADB}
    s_movk_i32 s{t+14}, 3277
    s_movk_i32 s{t+7}, -20
    """)
    for np_ in range(2):
        a(f"""
        v_add_u32 v83, {32*np_}, v80
        v_mul_u32_u24 v84, s{t+14}, v83
        v_lshrrev_b32 v84, 16, v84
        v_mad_i32_i24 v83, v84, s{t+7}, v83
        v_lshl_add_u32 v83, v83, 4, v81
        v_mul_lo_u32 v85, v84, s{t+13}
        v_add_u32 v{AD+np_}, v83, v85
        """)
    def epi_v(tt, pk=True):
        r = []
        for np_ in range(2):
            c = ACC + 16*tt + 8*np_
            if pk: r += [f"v_pk_mul_f32 v[{c+i}:{c+i+1}], v[{c+i}:{c+i+1}], v[{VR+4*tt+(i&3)}:{VR+4*tt+(i&3)+1}]" for i in range(0, 8, 2)]
            else: r += [f"v_mul_f32 v{c+i}, v{VR+4*tt+(i&3)}, v{c+i}" for i in range(8)]
            r += pack(c, 32)
            r.append(f"buffer_store_dwordx4 v[{c}:{c+3}], v{AD+np_}, {WSR}, s{sDst} offen offset:{640*tt} sc1")
        return r
    mainloop(True, epi_v)
    a.label(fin)
    stamp(a, 3 if first else 20)
    flag_setup(a, 1 if first else 8)
    a(f"s_lshl_b32 s{t+7}, s{sWG}, 5\ns_add_u32 s{t+7}, s{t+7}, s{sW}\ns_lshl_b32 s{t+7}, s{t+7}, 2\ns_add_u32 s{t+7}, s{t+7}, {L_FG + LQ}")
    a("s_waitcnt vmcnt(0)")
    if first:
        l1 = a.uid("q1f"); l2 = a.uid("q1g")
        a(f"s_cmp_eq_u32 s{sMODE}, 0\ns_cbranch_scc1 {l1}")
        flag_store(a, ""); a(f"s_branch {l2}")
        a.label(l1); flag_store(a, "sc1"); a.label(l2)
    else: flag_store(a, SB)
    flag_store(a, "sc1", t+7)

def qkvW_setup(a, sWo, sLW, sCT, sTmp, vW):
    a(f"""
    v_lshrrev_b32 v2, 4, v0
    v_mul_u32_u24 v1, 3840, v2
    v_lshlrev_b32 v7, 1, v2
    v_and_b32 v3, 15, v0
    v_xor_b32 v3, v3, v7
    v_lshl_add_u32 v{vW}, v3, 4, v1
    v_xor_b32 v3, 8, v3
    v_lshl_add_u32 v{vW+1}, v3, 4, v1
    s_mul_i32 s{sWo}, s{sLW}, {16*3840}
    s_lshl_b32 s{sTmp}, s{sCT}, 8
    s_add_u32 s{sWo}, s{sWo}, s{sTmp}
    """)

def qkv1_loader(a):
    t = T
    sRT, sCT = t, t+1
    sLW, sAo, sWo, sM, sTmp, sRot, sThr, sA1, sW1, sSel = t+2, t+3, t+4, t+5, t+6, t+8, t+9, t+10, t+11, t+12
    a(f"s_sub_u32 s{sLW}, s{sW}, 4")
    qkvW_setup(a, sWo, sLW, sCT, sTmp, 6)
    a(f"""
    s_lshl_b32 s{sM}, s{sLW}, 12
    s_lshl_b32 s{sAo}, s{sRT}, 2
    s_add_u32 s{sAo}, s{sAo}, s{sLW}
    s_mul_i32 s{sAo}, s{sAo}, {32*1280}
    v_lshrrev_b32 v1, 3, v0
    v_mul_u32_u24 v1, 1280, v1
    v_and_b32 v3, 7, v0
    v_xor_b32 v3, v3, v2
    v_lshl_add_u32 v4, v3, 4, v1
    v_xor_b32 v3, 4, v3
    v_lshl_add_u32 v5, v3, 4, v1
    """)
    a("s_waitcnt lgkmcnt(0)")
    srd(a, R_X, P_X, ACT)
    srd(a, R_WQ, P_WQKV, D*3*D*2)
    def emitA(c, i0, k):
        for i in range(i0, i0 + k):
            a(f"s_add_u32 m0, s{sM}, {(c % 4)*16384 + 1024*i}\ns_add_u32 s{sTmp}, s{sAo}, {c*128 + i*8*1280}")
            a(f"buffer_load_dwordx4 v{4 + (i & 1)}, {R(R_X)}, s{sTmp} offen lds")
    def emitW(c, i0, k):
        for i in range(i0, i0 + k):
            a(f"s_add_u32 m0, s{sM}, {qkW(c) + 1024*i}\ns_add_u32 s{sTmp}, s{sWo}, {c*64*3840 + i*4*3840}")
            a(f"buffer_load_dwordx4 v{6 + (i >> 1)}, {R(R_WQ)}, s{sTmp} offen lds")
    LD = Loader(a); mark = [0]
    def xstats(c):
        if c == 0:
            other_srds(a)
            a(f"""
            v_bfe_u32 v8, v0, 2, 2
            v_lshrrev_b32 v9, 4, v0
            v_lshl_add_u32 v9, v9, 3, v8
            v_lshlrev_b32 v9, 8, v9
            v_and_b32 v10, 3, v0
            v_lshl_add_u32 v9, v10, 3, v9
            v_add_u32 v9, {WB}, v9
            v_bfe_u32 v10, v0, 2, 3
            s_lshl_b32 s{t+7}, s{sLW}, 1
            v_xor_b32 v10, s{t+7}, v10
            v_lshl_add_u32 v8, v10, 5, v9
            v_xor_b32 v10, 1, v10
            v_lshl_add_u32 v9, v10, 5, v9
            v_add_u32 v10, 49152, v8
            v_add_u32 v11, 49152, v9
            """)
            for i in range(4): a(f"v_mov_b32 v{12+i}, 0x3f803f80")
        o_ = qkW(c) - WB
        for u in range(2):
            for e in range(2):
                for j in range(2):
                    d = 16 + 8*u + 4*e + 2*j
                    a(f"ds_read_b64_tr_b16 v[{d}:{d+1}], v{8 + 2*(o_ // 49152) + e} offset:{o_ % 49152 + 8192*u + 1024*j}")
        a("s_waitcnt lgkmcnt(0)")
        for u in range(2):
            for e in range(2):
                a(f"v_mfma_f32_16x16x32_bf16 v[{32+4*e}:{35+4*e}], v[12:15], v[{16+8*u+4*e}:{19+8*u+4*e}], {v(32+4*e,4) if (c or u) else 0}")
        n = LD.total - mark[0]
        if c in (0, C.c_i, C.c_c): mark[0] = LD.total
        def st_issue():
            census(a, 80, 81, False, n)
            a(f"s_lshl_b32 s{t+7}, s{sRT}, 13\ns_add_u32 s{t+7}, s{t+7}, {WS_ST0}\ns_add_u32 s{t+13}, s{t+7}, 4096\nv_lshlrev_b32 v82, 4, v0")
            for h_ in range(2):
                for i in range(4): a(f"buffer_load_dwordx4 v[{96+16*h_+4*i}:{99+16*h_+4*i}], v82, {WSR}, s{t+13 if h_ else t+7} offen offset:{1024*i} sc1")
        def st_fin():
            a(f"s_waitcnt vmcnt({n})\nv_lshlrev_b32 v82, 2, v0\nv_add_u32 v82, {Q1_TAB}, v82")
            for h_ in range(2):
                row_stats(a, 96 + 16*h_, 84, 85)
                a(f"ds_write_b32 v82, v84 offset:{256*h_}\nds_write_b32 v82, v85 offset:{512+256*h_}")
            a("s_waitcnt lgkmcnt(0)")
        st = {0: lambda: (flags_zero(a), nonce_issue(a, 81, 82)), 2: lambda: nonce_get(a, 80, 81, 82, n), C.c_i: lambda: census(a, 80, 81, True), C.c_c: st_issue, C.c_f: st_fin}
        if c in st:
            l = a.uid("w7")
            a(f"s_cmp_lg_u32 s{sW}, 7\ns_cbranch_scc1 {l}")
            st[c](); a.label(l)
            LD.q += [("x7", "x", 99)] * {0: 4, 2: 1, C.c_i: 1, C.c_c: 8, C.c_f: 0}[c]
    if C.q1prio: a("s_setprio 2")
    stamp(a, 1)
    ph = Phase("q1", 10, 4, 4, emitA, emitW, lambda c: ((c % 4)*16384, (c % 4)*16384 + 16384), lambda c: (qkW(c), qkW(c) + 16384),
               None, C.bud_q1, after_bar=xstats, dbg=(C.dbg == 1))
    def waitfn(w):
        l1 = a.uid("pw"); l2 = a.uid("pw"); l3 = a.uid("pw")
        a(f"s_cmp_eq_u32 s{sW}, 4\ns_cbranch_scc1 {l1}\ns_cmp_eq_u32 s{sW}, 7\ns_cbranch_scc1 {l2}\ns_waitcnt vmcnt({w+5})\ns_branch {l3}")
        a.label(l1); a(f"s_waitcnt vmcnt({w+16})\ns_branch {l3}")
        a.label(l2); a(f"s_waitcnt vmcnt({w})")
        a.label(l3)
    ph.look = C.look_q1
    LD.run(ph, None)
    a(f"""
    v_and_b32 v1, 15, v0
    v_lshlrev_b32 v1, 2, v1
    s_lshl_b32 s{sTmp}, s{sLW}, 7
    v_add_u32 v1, s{sTmp}, v1
    v_add_u32 v2, {Q1_CS}, v1
    s_lshl_b32 s{sTmp}, s{sWG}, 9
    s_add_u32 s{sTmp}, s{sTmp}, {WS_CSQ}
    s_setprio 0
    s_nop 3
    ds_write_b32 v2, v32
    ds_write_b32 v2, v36 offset:64
    buffer_store_dword v32, v1, {WSR}, s{sTmp} offen
    buffer_store_dword v36, v1, {WSR}, s{sTmp} offen offset:64
    s_waitcnt lgkmcnt(0)
    """)
    stamp(a, 2)
    a("s_barrier")
    read_nonce_mode(a)

def other_srds(a):
    srd(a, R_WS, P_WS, WS_END)
    srd(a, R_WG, P_WG, D*F*2)
    srd(a, R_WU, P_WU, D*F*2)
    srd(a, R_T, P_WS, WS_END)

def qkv1_idle(a):
    l2 = a.uid("idl"); l1 = a.uid("idl"); l3 = a.uid("idl"); l4 = a.uid("idl"); lj = a.uid("idl")
    tj = 84; K = NAME + "_kernel"
    a(f"v_lshlrev_b32 v5, 4, v0\ns_cmp_lt_u32 s{sW}, 4\ns_cbranch_scc1 {l1}")
    a(f"s_xor_b32 s{tj}, s{sW}, 7\ns_or_b32 s{tj}, s{tj}, s{T}\ns_cmp_lg_u32 s{tj}, 0\ns_cbranch_scc1 {l3}")
    nonce_put(a)
    a.label(l3)
    a(f"s_getpc_b64 s[{tj+4}:{tj+5}]")
    a.label("L_pc")
    a(f"""
    s_sub_u32 s{tj+4}, s{tj+4}, L_pc-{K}
    s_subb_u32 s{tj+5}, s{tj+5}, 0
    s_and_b32 s{tj}, s{T}, 1
    s_lshl_b32 s{tj}, s{tj}, 2
    s_add_u32 s{tj}, s{tj}, s{sW}
    s_sub_u32 s{tj}, s{tj}, 4
    s_lshl_b32 s{tj}, s{tj}, 13
    v_lshlrev_b32 v1, 7, v0
    v_add_u32 v2, s{tj}, v1
    global_load_dword v251, v2, s[{tj+4}:{tj+5}]
    """)
    a(f"s_lshl_b32 s{tj}, s{T}, 2\ns_add_u32 s{tj}, s{tj}, s{sW}\ns_add_u32 s{tj+2}, s{tj}, {60 - 4}\ns_lshl_b32 s{tj+2}, s{tj+2}, 13")
    for i in range(4):
        if C.q1pf: a(f"buffer_load_dword v251, v1, {R(R_WQ)}, s{tj+2} offen\ns_add_u32 s{tj+2}, s{tj+2}, {64*8192}")
        if i == 0: a("s_barrier")
    a(f"s_branch {l2}")
    a.label(l1)
    xstat_fin(a)
    a(f"s_cmp_lg_u32 s{sW}, 0\ns_cbranch_scc1 {l4}")
    flags_zero(a)
    a.label(l4)
    a(f"s_waitcnt vmcnt(0)\ns_barrier\ns_cmp_lg_u32 s{sW}, 0\ns_cbranch_scc1 {l2}")
    nonce_issue(a, 81, 82)
    nonce_get(a, 80, 81, 82)
    a.label(l2)
    a(f"s_mul_i32 s{tj}, s{T}, 10\ns_add_u32 s{tj+7}, s{tj}, 10\ns_add_u32 s{tj}, s{tj}, s{sW}\ns_mul_i32 s{tj+1}, s{sW}, 5120")
    a.label(lj)
    projjob_issue(a, tj, tj+1, tj)
    a("s_waitcnt vmcnt(0)")
    projjob_finish(a, tj+1, tj)
    a(f"s_add_u32 s{tj}, s{tj}, 8\ns_cmp_lt_u32 s{tj}, s{tj+7}\ns_cbranch_scc1 {lj}")
    l5 = a.uid("idl")
    a(f"s_waitcnt vmcnt(0)\ns_barrier\ns_cmp_lg_u32 s{sW}, 0\ns_cbranch_scc1 {l5}")
    a(f"""
    s_lshl_b32 s{tj}, s{sWG}, 7
    s_add_u32 s{tj}, s{tj}, {L_FG + 36}
    v_mov_b32 v1, 0
    v_mov_b32 v2, s{sEP}
    """)
    flag_store(a, "sc1", tj)
    census(a, 80, 81, True)
    census(a, 80, 81, False)
    a.label(l5)
    a("s_barrier")
    read_nonce_mode(a)

HOOK = [None]
def phase_attn(a, SB, ld_label):
    fast = SB == ""
    t = T
    CH = 20480
    sQP, sKH, sSrc, sDst, sTmp, sC, sHB = t, t+1, t+2, t+3, t+4, t+5, t+8
    sEX = t+6
    sWs, sWd, sPF = t+9, t+10, t+11
    tj = 84; sJob, sScr = tj, tj + 1
    QAREA = 102400
    QA, QB = 16, 22
    NM, SS, PP, OO, KF, VF = 32, 64, 96, 112, 144, 160
    vK, vK8, vV = 2, 3, 4
    DUM = 176; XF = 177; vX1, vX2, vO = 28, 29, 30; sO, sFB = 96, 99; XB = 102400; PR = 184
    KS = [48, 54, 236, 242, 248]; VS = [144, 152, 160, 168, 40]; KF = KS[0]; VF = VS[0]
    assert C.c0
    KVB = 'nt sc1' if C.nt_kv else 'sc1'
    stamp(a, 4)
    a(f"""
    s_and_b32 s{sQP}, s{sW}, 3
    s_lshr_b32 s{sKH}, s{sW}, 2
    v_lshlrev_b32 v5, 4, v0
    s_mul_i32 s{sHB}, s{sR}, {HEADB}
    s_add_u32 s{sHB}, s{sHB}, s{sLO}
    s_and_b32 s{sTmp}, s{sQP}, 1
    s_mul_i32 s{sSrc}, s{sTmp}, 5120
    s_mul_i32 s{sDst}, s{sTmp}, 10240
    s_lshr_b32 s{sTmp}, s{sQP}, 1
    s_mul_i32 s{sC}, s{sTmp}, 5120
    s_add_u32 s{sDst}, s{sDst}, s{sC}
    s_mul_i32 s{sC}, s{sTmp}, {ACT}
    s_add_u32 s{sSrc}, s{sSrc}, s{sC}
    s_add_u32 s{sSrc}, s{sSrc}, s{sHB}
    s_add_u32 s{sSrc}, s{sSrc}, {L_K}
    """)
    def kv_issue(j):
        GF.need(0x01010101 << j)
        a(f"s_add_u32 s{sTmp}, s{sG}, {j}\ns_and_b32 s{sTmp}, s{sTmp}, 7\ns_mul_i32 s{sTmp}, s{sTmp}, 10240\ns_add_u32 s{sTmp}, s{sTmp}, s{sSrc}")
        return lin_dma(a, 5, sTmp, 0, sDst, j * CH, 5, KVB)
    def init():
        a(f"""
        v_lshrrev_b32 v14, 5, v0
        v_and_b32 v15, 31, v0
        v_lshlrev_b32 v6, 3, v15
        s_mul_i32 s{sTmp}, s{sKH}, 10240
        v_add_u32 v{vK}, s{sTmp}, v5
        v_add_u32 v{vK8}, s{sTmp}, v6
        v_mul_u32_u24 v7, 320, v14
        v_lshl_add_u32 v7, v15, 4, v7
        v_add_u32 v{vV}, s{sTmp}, v7
        s_mov_b32 s{sEX}, 0x000fffff
        s_mov_b32 s{sEX+1}, 0x000fffff
        s_mov_b32 s{t+16}, -1
        s_mov_b32 s{t+17}, 0
        v_and_b32 v9, 27, v0
        v_cmp_eq_u32 vcc, 24, v9
        v_mov_b32 v8, 0x3f803f80
        s_nop 0
        v_cndmask_b32 v8, 0, v8, vcc
        v_mov_b32 v9, v8
        v_lshlrev_b32 v13, 7, v0
        v_mov_b32 v12, 0
        """)
        for b_ in VS:
            for i in range(0, 8, 2): a(f"v_mov_b64 v[{b_+i}:{b_+i+1}], v[8:9]")
        for i in range(0, 32, 2): a(f"v_mov_b64 v[{OO+i}:{OO+i+1}], 0")
        for i in range(0, 8, 2): a(f"v_mov_b64 v[{PP+8+i}:{PP+8+i+1}], 0")
        a(f"v_mov_b64 v[{QA+4}:{QA+5}], 0\nv_mov_b64 v[{QB+4}:{QB+5}], 0")
        a(f"""
        s_mul_i32 s{sC}, s{sQP}, 7168
        s_add_u32 s{sC}, s{sC}, {XB}
        v_add_u32 v{vX1}, s{sC}, v5
        v_lshrrev_b32 v{vX2}, 1, v5
        v_add_u32 v{vX2}, s{sC}, v{vX2}
        s_lshl_b32 s{sTmp}, s{sQP}, 2
        s_add_u32 s{sTmp}, s{sTmp}, {XB + 28672}
        v_mov_b32 v{XF}, s{sTmp}
        s_mul_i32 s{sTmp}, s{sR}, 5
        v_add_u32 v{vO}, s{sTmp}, v14
        v_lshrrev_b32 v10, 1, v{vO}
        v_and_b32 v{vO}, 1, v{vO}
        v_lshlrev_b32 v{vO}, 3, v{vO}
        v_lshl_add_u32 v{vO}, v10, 9, v{vO}
        v_lshl_add_u32 v{vO}, v15, 4, v{vO}
        s_lshl_b32 s{sTmp}, s{sG}, 2
        s_add_u32 s{sTmp}, s{sTmp}, s{sQP}
        s_mul_i32 s{sO}, s{sTmp}, 81920
        {"" if fast else f"s_add_u32 s{sO}, s{sO}, s{sLO}"}
        s_add_u32 s{sO}, s{sO}, {L_O}
        s_add_u32 s{sO+1}, s{sO}, 40960
        s_mov_b32 s{sFB}, 0
        """)
        if C.c0:
            for b_ in KS: a(f"v_mov_b32 v{b_+4}, 0x3f803f80\nv_mov_b32 v{b_+5}, 0x3f80")
    init()
    l0 = a.uid("att_old"); l1 = a.uid("att_j")
    a(f"s_cmp_eq_u32 s{sKH}, 0\ns_cbranch_scc1 {l0}")
    a(f"""
    v_and_b32 v10, 1, v0
    v_mul_u32_u24 v10, 19, v10
    s_mul_i32 s{sTmp}, s{sR}, 20
    v_add_u32 v10, s{sTmp}, v10
    v_lshrrev_b32 v10, 7, v10
    v_lshlrev_b32 v10, 5, v10
    s_lshr_b32 s{sTmp}, s{sQP}, 1
    s_and_b32 s{sC}, s{sQP}, 1
    s_lshl_b32 s{sPF}, s{sTmp}, 9
    s_lshl_b32 s{sWs}, s{sC}, 2
    s_add_u32 s{sPF}, s{sPF}, s{sWs}
    v_and_b32 v11, 2, v0
    v_lshl_add_u32 v11, v11, 2, v10
    v_add_u32 v11, s{sPF}, v11
    s_mul_i32 s{sPF}, s{sTmp}, 160
    s_lshl_b32 s{sWs}, s{sC}, 9
    s_add_u32 s{sPF}, s{sPF}, s{sWs}
    s_add_u32 s{sPF}, s{sPF}, 160
    v_and_b32 v12, 6, v0
    v_lshl_add_u32 v12, v12, 1, v10
    v_add_u32 v12, s{sPF}, v12
    v_cmp_gt_u32 vcc, 8, v0
    s_lshl_b32 s{sGO}, s{sG}, 10
    s_add_u32 s{sGO}, s{sGO}, {WS_FL}
    v_cndmask_b32 v12, v12, v11, vcc
    s_add_u32 s{sGW}, s{sEP}, 1
    s_mul_i32 s{t+14}, s{sG}, 10240
    s_add_u32 s{t+14}, s{t+14}, s{sSrc}
    """)
    GL = Gate(a, 12, 11); GL.reset(); a("s_setprio 1")
    a(f"""
    s_mul_i32 s{sC}, s{sQP}, 2560
    s_add_u32 s{sPF}, s{sC}, {QAREA}
    s_mul_i32 s{sTmp}, s{sG}, 10240
    s_add_u32 s{sTmp}, s{sTmp}, s{sC}
    s_add_u32 s{sTmp}, s{sTmp}, s{sHB}
    """)
    a(f"s_add_u32 s{sC}, s{sTmp}, 1280")
    if fast and C.qloc:
        a(f"""
        s_lshl_b32 s{sWs}, s{sG}, 2
        s_add_u32 s{sWs}, s{sWs}, s{sQP}
        s_mul_i32 s{sWs}, s{sWs}, {2*F*64}
        s_mul_i32 s{sWd}, s{sR}, 1280
        s_add_u32 s{sWs}, s{sWs}, s{sWd}
        s_add_u32 s{sWs}, s{sWs}, {L_Q + 57344}
        s_add_u32 s{sWd}, s{sWs}, {F*64}
        s_cmp_lg_u32 s{sL}, 0
        s_cselect_b32 s{sTmp}, s{sWs}, s{sTmp}
        s_cselect_b32 s{sC}, s{sWd}, s{sC}
        """)
    GL.need(0xff)
    for x, sr in ((0, sTmp), (1, sC)):
        a(f"""
        s_add_u32 m0, s{sPF}, {1280*x}
        s_mov_b64 exec, -1
        buffer_load_dwordx4 v5, {WSR}, s{sr} offen {KVB} lds
        s_mov_b64 exec, 0xffff
        buffer_load_dwordx4 v5, {WSR}, s{sr} offen offset:1024 {KVB} lds
        """)
    a("s_mov_b64 exec, -1")
    GL.need(0xff00)
    stamp(a, 5)
    lv = a.uid("att_v")
    a(f"s_cmp_ge_u32 s{sQP}, 2\ns_cbranch_scc1 {lv}")
    lin_dma(a, 5, t+14, 0, sDst, 0, 2, KVB)
    a(f"s_waitcnt vmcnt(0)")
    lin_dma(a, 5, t+14, 2048, sDst, 2048, 3, KVB)
    a(f"s_branch {l1}")
    a.label(lv)
    lin_dma(a, 5, t+14, 0, sDst, 0, C.vpre, KVB)
    a(f"s_waitcnt vmcnt({C.vpre})\ns_branch {l1}")
    a.label(l0)
    a(f"""
    s_setprio 2
    v_add_u32 v10, s{sG}, v0
    v_and_b32 v10, 7, v10
    v_bfe_u32 v11, v0, 3, 1
    v_mul_u32_u24 v11, 19, v11
    s_mul_i32 s{sTmp}, s{sR}, 20
    v_add_u32 v11, s{sTmp}, v11
    v_lshrrev_b32 v11, 7, v11
    v_lshl_add_u32 v10, v10, 5, v11
    s_and_b32 s{sTmp}, s{sQP}, 1
    s_lshl_b32 s{sTmp}, s{sTmp}, 4
    s_lshr_b32 s{sC}, s{sQP}, 1
    s_mul_i32 s{sC}, s{sC}, 5
    s_add_u32 s{sTmp}, s{sTmp}, s{sC}
    s_add_u32 s{sTmp}, s{sTmp}, 5
    v_add_u32 v10, s{sTmp}, v10
    v_lshlrev_b32 v12, 7, v10
    v_lshrrev_b32 v11, 4, v0
    v_lshl_add_u32 v12, v11, 2, v12
    s_and_b32 s{sWs}, s{sR}, 7
    s_mul_i32 s{sWs}, s{sWs}, 102400
    s_mul_i32 s{sWd}, s{sW}, 5120
    s_add_u32 s{sWs}, s{sWs}, s{sWd}
    s_add_u32 s{sWs}, s{sWs}, {WS_WTO}
    s_add_u32 s{sGO}, s{sLO}, {L_FG}
    s_add_u32 s{sGW}, s{sEP}, 1
    """)
    def cpf(lo, hi):
        l = a.uid("cpf"); pc = a.uid("pc")
        a(f"s_or_b32 s{sC}, s{sL}, s{sW}\ns_cmp_lg_u32 s{sC}, 0\ns_cbranch_scc1 {l}\ns_getpc_b64 s[{t+12}:{t+13}]")
        a.label(pc)
        a(f"""
        s_sub_u32 s{t+12}, s{t+12}, {pc}-{NAME}_kernel
        s_subb_u32 s{t+13}, s{t+13}, 0
        s_lshl_b32 s{sC}, s{sR}, 11
        s_add_u32 s{sC}, s{sC}, {lo}-{NAME}_kernel
        v_add_u32 v{PV+2}, s{sC}, v13
        v_min_u32 v{PV+2}, {hi}-{NAME}_kernel, v{PV+2}
        s_mov_b64 exec, 0xffff
        global_load_dword v{DUM}, v{PV+2}, s[{t+12}:{t+13}]
        s_mov_b64 exec, -1
        """)
        a.label(l)
    if fast and C.cpf: cpf("L_fast", "L_fast_post")
    a.label(l1)
    GF = Gate(a, 12, PV, fold=True, sleep=2)
    a(f"""
    s_mul_i32 s{sC}, s{sQP}, 2560
    s_add_u32 s{sC}, s{sC}, {QAREA}
    v_add_u32 v10, s{sC}, v5
    v_add_u32 v11, s{sC}, v6
    s_barrier
    ds_read_b128 v[{QA}:{QA+3}], v10
    ds_read_b128 v[{QB}:{QB+3}], v10 offset:1280
    s_mov_b32 exec_hi, 0
    ds_read_b64 v[{QA+4}:{QA+5}], v11 offset:1024
    ds_read_b64 v[{QB+4}:{QB+5}], v11 offset:{1280+1024}
    s_mov_b32 exec_hi, -1
    """)
    stamp(a, 6)
    l1 = a.uid("att_ap")
    a(f"s_cmp_lg_u32 s{sKH}, 0\ns_cbranch_scc1 {l1}")
    if not C.gfl: GF.load()
    a.label(l1)
    l1 = a.uid("att_v2")
    a(f"s_cmp_lt_u32 s{sW}, 6\ns_cbranch_scc1 {l1}")
    lin_dma(a, 5, t+14, 1024*C.vpre, sDst, 1024*C.vpre, 5 - C.vpre, KVB)
    a.label(l1)
    base = [0]
    def rdK(st, c, kt):
        off = c * CH + kt * 1280 - base[0]
        assert 0 <= off and off + 1024 < 65536
        b = KS[st]
        if C.c0: return [f"s_mov_b64 exec, s[{t+16}:{t+17}]", f"ds_read_b64 v[{b+4}:{b+5}], v{vK8} offset:{off+1024}", "s_mov_b64 exec, -1", f"ds_read_b128 v[{b}:{b+3}], v{vK} offset:{off}"]
        return [f"ds_read_b128 v[{b}:{b+3}], v{vK} offset:{off}", f"ds_read_b64 v[{b+4}:{b+5}], v{vK8} offset:{off+1024}"]
    def rdV(st, c, kt):
        off = c * CH + 5120 + kt * 1280 - base[0]
        assert 0 <= off and off + 640 < 65536
        b = VS[st]
        return [f"s_mov_b64 exec, s[{sEX}:{sEX+1}]", f"ds_read_b128 v[{b}:{b+3}], v{vV} offset:{off}",
                f"ds_read_b128 v[{b+4}:{b+7}], v{vV} offset:{off+640}", f"s_mov_b64 exec, -1"]
    def qk(x, st, c=None):
        b = KS[st]; q = (QA, QB)[x]; sd = SS + 16*x
        cc = v(NM + 16*x, 16) if (c is None and not C.c0) else '0'
        if C.x8f: return [f"v_mfma_f32_32x32x8_bf16 {v(sd,16)}, {v(b+4,2)}, {v(q+4,2)}, 0", f"v_mfma_f32_32x32x16_bf16 {v(sd,16)}, {v(b,4)}, {v(q,4)}, {v(sd,16)}"]
        return [f"v_mfma_f32_32x32x16_bf16 {v(sd,16)}, {v(b,4)}, {v(q,4)}, {cc}",
                f"v_mfma_f32_32x32x8_bf16 {v(sd,16)}, {v(b+4,2)}, {v(q+4,2)}, {v(sd,16)}"]
    def pv(x, st):
        b = VS[st]; p = PP + 8*x; o = OO + 16*x
        return [f"v_mfma_f32_32x32x16_bf16 {v(o,16)}, {v(b,4)}, {v(p,4)}, {v(o,16)}",
                f"v_mfma_f32_32x32x16_bf16 {v(o,16)}, {v(b+4,4)}, {v(p+4,4)}, {v(o,16)}"]
    def sm(x):
        sd = SS + 16*x; p = PP + 8*x; r = []
        for i in range(8):
            r.append(f"v_exp_f32 v{sd+2*i}, v{sd+2*i}")
            r.append(f"v_exp_f32 v{sd+2*i+1}, v{sd+2*i+1}")
            if i > 0: r.append(f"v_cvt_pk_bf16_f32 v{p+i-1}, v{sd+2*i-2}, v{sd+2*i-1}")
        r.append(f"v_cvt_pk_bf16_f32 v{p+7}, v{sd+14}, v{sd+15}")
        return r
    def setm():
        for x in range(2): a(f"v_mov_b32 v{10+x}, v{8+x}")
        a("s_nop 0")
        for x in range(2): a(f"v_permlane32_swap_b32 v{8+x}, v{10+x}")
        a("s_nop 0")
        for x in range(2): a(f"v_max_f32 v{8+x}, v{8+x}, v{10+x}")
        if C.c0:
            a("s_mov_b32 exec_lo, 0")
            for x in range(2):
                q = (QA, QB)[x] + 4; r = NM + 4*x
                a(f"""
                v_sub_f32 v{r}, 0, v{8+x}
                v_and_b32 v{r+1}, 0xffff0000, v{r}
                v_sub_f32 v{r+2}, v{r}, v{r+1}
                v_and_b32 v{r+3}, 0xffff0000, v{r+2}
                v_sub_f32 v{r+2}, v{r+2}, v{r+3}
                v_lshrrev_b32 v{r+1}, 16, v{r+1}
                v_or_b32 v{q}, v{r+1}, v{r+3}
                v_lshrrev_b32 v{q+1}, 16, v{r+2}
                """)
            a("s_mov_b32 exec_lo, -1")
            return
        for x in range(2):
            a(f"v_sub_f32 v{NM+16*x}, 0, v{8+x}\nv_sub_f32 v{NM+16*x+1}, 0, v{8+x}")
            for i in range(2, 16, 2): a(f"v_mov_b64 v[{NM+16*x+i}:{NM+16*x+i+1}], v[{NM+16*x}:{NM+16*x+1}]")
    for x in rdK(0, 0, 0): a(x)
    a("s_waitcnt lgkmcnt(0)")
    m = qk(0, 0, "0") + qk(1, 0, "0")
    for i in (0, 1, 2, 3): a(m[i])
    a.nop(10)
    for x in range(2):
        sd = SS + 16*x
        a(f"v_max3_f32 v{8+x}, v{sd}, v{sd+1}, v{sd+2}")
        for i in range(3, 15, 2):
            a(f"v_max3_f32 v{8+x}, v{8+x}, v{sd+i}, v{sd+i+1}")
        a(f"v_max_f32 v{8+x}, v{8+x}, v{sd+15}")
    setm()
    for i in range(16): a(f"v_sub_f32 v{SS+i}, v{SS+i}, v8")
    l1 = a.uid("att_w0"); l2 = a.uid("att_w1")
    sDone = t + 15
    a(f"s_cmp_eq_u32 s{sKH}, 0\ns_cbranch_scc1 {l1}")
    if C.bc:
        assert C.vpre >= 2
        a(f"s_waitcnt vmcnt(3)\ns_cmp_ge_u32 s{sQP}, 2\ns_cbranch_scc1 {l2}b\ns_waitcnt vmcnt(2)")
        a.label(l2 + "b")
    else: a("s_waitcnt vmcnt(0)")
    a(f"s_barrier\ns_branch {l2}")
    a.label(l1)
    if C.gfl: GF.load()
    a("s_barrier")
    GF.upd()
    a(f"s_and_b32 s{sDone}, s{sNR}, 0x02020202\ns_cbranch_scc1 {l2}")
    GF.ok = 0x02020202; kv_issue(1); GF.ok = 0
    a.label(l2)
    stamp(a, 7)
    cstamp(a, 0)
    def l0only(fn):
        l = a.uid("l0")
        a(f"s_cmp_lg_u32 s{sL}, 0\ns_cbranch_scc1 {l}")
        fn(); a.label(l)
    def l2pf(i0, n):
        for i in range(i0, min(i0 + n, (C.l2pf + 3) // 4)):
            l = a.uid("pfs")
            a(f"""
            s_cmp_ge_u32 s{sW}, {C.l2pf - 4*i}
            s_cbranch_scc1 {l}
            s_lshr_b32 s{sPF}, s{sR}, 4
            s_mul_i32 s{sPF}, s{sPF}, {15 if C.rot_gu else 1}
            s_mul_i32 s{sC}, s{sW}, {1 if C.rot_gu else 2}
            s_add_u32 s{sPF}, s{sPF}, s{sC}
            s_add_u32 s{sPF}, s{sPF}, {4*i if C.rot_gu else 8*i}
            s_lshl_b32 s{sPF}, s{sPF}, 13
            s_and_b32 s{sC}, s{sR}, 15
            s_mul_i32 s{sC}, s{sC}, 245760
            s_add_u32 s{sPF}, s{sPF}, s{sC}
            s_add_u32 s{sPF}, s{sPF}, {WS_WTG}
            buffer_load_dword v{DUM}, v13, {WSR}, s{sPF} offen
            """)
            a.label(l)
    def evpf(i):
        a(f"""
        s_lshr_b32 s{sPF}, s{sR}, 4
        s_lshl_b32 s{sC}, s{sW}, 1
        s_add_u32 s{sPF}, s{sPF}, s{sC}
        s_mul_i32 s{sPF}, s{sPF}, 24576
        s_and_b32 s{sC}, s{sR}, 15
        s_mul_i32 s{sC}, s{sC}, 245760
        s_add_u32 s{sPF}, s{sPF}, s{sC}
        s_add_u32 s{sPF}, s{sPF}, {WS_WTG + 49152 + 8192*i}
        buffer_load_dword v{DUM}, v13, {WSR}, s{sPF} offen
        """)
    if C.ev1:
        l2pf = lambda i0, n: [evpf(i) for i in range(i0, min(i0 + n, C.ev1))]
    def wwo(c): lin_dma(a, 5, sWs, c*20480, sWd, c*20480, 5, 'nt' if C.nt_wo else '')
    def fp():
        a(f"""
        s_lshl_b32 s{sC}, s{sWG}, 5
        s_add_u32 s{sC}, s{sC}, s{sW}
        s_lshl_b32 s{sC}, s{sC}, 2
        s_add_u32 s{sC}, s{sC}, {L_FG + 16}
        v_mov_b32 v10, 0
        v_mov_b32 v11, s{sEP}
        s_mov_b64 exec, 1
        buffer_store_dword v11, v10, {WSR}, s{sC} offen sc1
        s_mov_b64 exec, -1
        """)
    def cs1():
        l = a.uid("cs")
        a(f"s_cmp_lg_u32 s{sW}, 3\ns_cbranch_scc1 {l}\ns_mov_b32 exec_hi, 0xffff")
        a(f"s_and_b32 s{sC}, s{sR}, 15\ns_mul_i32 s{sC}, s{sC}, 768\ns_add_u32 s{sC}, s{sC}, {WS_CSP}")
        for i in range(10):
            a(f"buffer_load_dwordx4 v[{PV+4*i}:{PV+3+4*i}], v5, {WSR}, s{sC} offen\ns_add_u32 s{sC}, s{sC}, 12288")
        a("s_mov_b32 exec_hi, -1")
        a.label(l)
    def cs2():
        l = a.uid("cs")
        a(f"s_cmp_lg_u32 s{sW}, 3\ns_cbranch_scc1 {l}\ns_mov_b32 exec_hi, 0xffff")
        for i in range(1, 10):
            a(f"v_pk_add_f32 v[{PV}:{PV+1}], v[{PV}:{PV+1}], v[{PV+4*i}:{PV+1+4*i}]\nv_pk_add_f32 v[{PV+2}:{PV+3}], v[{PV+2}:{PV+3}], v[{PV+2+4*i}:{PV+3+4*i}]")
        a(f"s_mul_i32 s{T+18}, s{sWG}, 768\ns_add_u32 s{T+18}, s{T+18}, {WS_CSG}\nv_lshlrev_b32 v{PV+4}, 4, v0")
        a(f"buffer_store_dwordx4 v[{PV}:{PV+3}], v{PV+4}, {WSR}, s{T+18} offen\ns_mov_b32 exec_hi, -1\ns_nop 1")
        a.label(l)
    def fpw():
        a(f"s_lshl_b32 s{sC}, s{sW}, 13\ns_add_u32 s{sC}, s{sC}, {L_FG + 16}")
        poll(a, 13, PV, f"s{sC}", f"s{sEP}", sleep=2, wide=True)
    def wow():
        a(f"v_and_b32 v{PV+1}, 15, v0\nv_lshlrev_b32 v{PV+1}, 11, v{PV+1}\ns_mov_b32 s{sC}, {L_FG + 15*128 + 36}")
        poll(a, PV + 1, PV, f"s{sC}", f"s{sEP}", sleep=2)
    def l1only(fn):
        l = a.uid("l1")
        a(f"s_cmp_eq_u32 s{sL}, 0\ns_cbranch_scc1 {l}")
        fn(); a.label(l)
    def hook(j):
        if C.x_nh:
            l_ = a.uid("nh"); a(f"s_cmp_lg_u32 s{sL}, 0\ns_cbranch_scc1 {l_}"); C.x_nh = 0; hook(j); C.x_nh = 1; a.label(l_); return
        if j == 1:
            kv_issue(2); kv_issue(3); a("s_waitcnt vmcnt(10)")
        GF.ok &= 0x0f0f0f0f
        W = lambda n_: a(f"s_waitcnt vmcnt({n_})")
        if j == 2: l0only(lambda: (W(0), prep(a, 0))); l1only(lambda: (W(5), kv_issue(4)))
        if j == 3:
            l0only(lambda: (kv_issue(4), kv_issue(5))); GF.ok &= 0x0f0f0f0f
            l1only(lambda: (W(5), kv_issue(5), kv_issue(6)))
        if j == 4: l0only(lambda: (W(5), prep(a, 1))); l1only(lambda: (W(10), kv_issue(7)))
        if j == 5: l0only(lambda: (wow(), fp(), kv_issue(6), kv_issue(7))); l1only(lambda: (W(10), wwo(0), wwo(1), l2pf(0, 1)))
        if j == 6:
            l0only(lambda: (W(0), wwo(0), wwo(1))); l1only(lambda: W(10))
            wwo(2); wwo(3)
            if fast and C.cpf: cpf("L_fast_tail", "L_fast_end")
            l1only(lambda: l2pf(1, 1))
        if j == 7:
            def evearly():
                a(f"""
                s_lshr_b32 s{sPF}, s{sR}, 4
                s_lshl_b32 s{sC}, s{sW}, 1
                s_add_u32 s{sPF}, s{sPF}, s{sC}
                s_mul_i32 s{sPF}, s{sPF}, {24*128}
                s_add_u32 s{sPF}, s{sPF}, {L_FG + 48*128 + 16}
                s_and_b32 s{sC}, s{sR}, 15
                s_mul_i32 s{sC}, s{sC}, 6
                v_and_b32 v{PV+1}, 1, v0
                v_mul_u32_u24 v{PV+1}, 5, v{PV+1}
                v_add_u32 v{PV+1}, s{sC}, v{PV+1}
                v_lshrrev_b32 v{PV+1}, 2, v{PV+1}
                v_lshlrev_b32 v{PV+1}, 7, v{PV+1}
                v_bfe_u32 v{PV}, v0, 1, 1
                v_mad_u32_u24 v{PV+1}, v{PV}, 12, v{PV+1}
                """)
                poll(a, PV + 1, PV, f"s{sPF}", f"s{sEP}", sleep=2)
                evpf(2)
            l0only(lambda: (fpw(), evearly() if C.evh else None))
            wwo(4)
            l1only(lambda: l2pf(2, 2))
        if fast and j == C.oxh:
            a(f"""
            s_lshl_b32 s{sPF}, s{sWG}, 1
            s_and_b32 s{sC}, s{sW}, 1
            s_add_u32 s{sPF}, s{sPF}, s{sC}
            s_mul_i32 s{sPF}, s{sPF}, 5120
            s_mov_b32 s{sC}, {L_O}
            s_bitcmp1_b32 s{sW}, 1
            s_cselect_b32 s{sC}, {L_X1}, s{sC}
            s_add_u32 s{sPF}, s{sPF}, s{sC}
            s_mov_b32 exec_hi, 0xff
            buffer_load_dword v{DUM}, v13, {WSR}, s{sPF} offen
            s_lshl_b32 s{sTmp}, s{sWG}, 9
            s_add_u32 s{sTmp}, s{sTmp}, s{sLO}
            s_add_u32 s{sTmp}, s{sTmp}, {L_ST1}
            s_bitcmp1_b32 s{sW}, 0
            s_cselect_b32 s{sC}, {L_ST2 - L_ST1}, 0
            s_add_u32 s{sTmp}, s{sTmp}, s{sC}
            s_mov_b64 exec, 15
            buffer_load_dword v{DUM}, v13, {WSR}, s{sTmp} offen
            s_mov_b64 exec, -1
            """)
        if fast and j == C.hth:
            a(f"""
            s_lshl_b32 s{sPF}, s{sWG}, 2
            s_add_u32 s{sPF}, s{sPF}, s{sQP}
            s_mul_i32 s{sPF}, s{sPF}, 6144
            s_add_u32 s{sPF}, s{sPF}, {L_Q}
            s_mov_b32 exec_hi, 0xffff
            buffer_load_dword v{DUM}, v13, {WSR}, s{sPF} offen
            s_mov_b32 exec_hi, -1
            """)
    def xreads():
        r = [f"ds_read_b32 v31, v{XF}"]
        for x in range(2): r.append(f"ds_read_b64 v[{PR+12+16*x}:{PR+13+16*x}], v{vX2} offset:{3584*x+3072}")
        for x in range(2):
            for i in range(3): r.append(f"ds_read_b128 v[{PR+16*x+4*i}:{PR+16*x+4*i+3}], v{vX1} offset:{3584*x+1024*i}")
        return r
    outl = []; pendw = [None]
    for c in range(8):
        for kt in range(4):
            st = kt & 1
            last = c == 7 and kt == 3
            if c == 0 and kt == 1:
                hk = a.uid("att_hk")
                if C.bc:
                    a(f"s_cmp_eq_u32 s{sKH}, 0\ns_cbranch_scc1 {hk}\ns_waitcnt vmcnt(0)\ns_barrier"); a.label(hk + "r")
                else: a(f"s_cmp_eq_u32 s{sKH}, 0\ns_cbranch_scc1 {hk}"); a.label(hk + "r")
                def h0():
                    if C.bc: a("s_barrier")
                    l = a.uid("h0")
                    a(f"s_cmp_eq_u32 s{sDone}, 0\ns_cbranch_scc1 {l}")
                    kv_issue(1)
                    a.label(l)
                outl.append((hk, h0))
            j = c + 1 if (kt == (3 if c == 0 else 3 - C.bsh) and c < 6) else (7 if (c == 7 and kt == 0) else None)
            if j:
                hk = a.uid("att_hk")
                dstamp(a, 6, 3*j)
                a(f"s_cmp_eq_u32 s{sKH}, 0\ns_cbranch_scc1 {hk}")
                if C.flip and j < 7 and (C.flipm >> j) & 1:
                    l_ = a.uid("fl")
                    if not (C.flip0 >> j) & 1: a(f"s_cmp_eq_u32 s{sL}, 0\ns_cbranch_scc1 {hk}r")
                    a("s_setprio 3")
                a.label(hk + "r")
                dstamp(a, 6, 3*j+1)
                a("s_barrier")
                dstamp(a, 6, 3*j+2)
                cstamp(a, j)
                outl.append((hk, (lambda jj: (lambda: hook(jj)))(j)))
                if j == 7 and C.ev0:
                    hk = a.uid("att_hk")
                    a(f"s_or_b32 s{sC}, s{sKH}, s{sL}\ns_cbranch_scc0 {hk}"); a.label(hk + "r")
                    outl.append((hk, lambda: [evpf(i) for i in range(C.ev0)]))
            if C.flip and 1 <= c < 7 and kt == C.flip - 1 and (C.flipm >> c) & 1: a("s_setprio 2")
            T_ = 4*c + kt
            G_n = {0: 1, 1: 2}.get(T_, (C.ag if (T_ + 1) % C.ag == 0 and T_ >= 3 else 0))
            if C.ag == 1: G_n = 1
            val = sm(0)
            mf = qk(1, T_ % 5) + pv(1, (T_ - 1) % 5)
            e1 = []; e2 = []; e3 = []; wB = pendw[0]; pendw[0] = None
            if G_n:
                hi = min(31, T_ + G_n)
                if (hi // 4) * CH + 9600 - base[0] >= 65536:
                    e1 += [f"v_add_u32 v{r}, {c*CH - base[0]}, v{r}" for r in (vK, vK8, vV)]; base[0] = c * CH
                vs = [rdV(x % 5, x // 4, x % 4) for x in range(T_, min(32, T_ + G_n))]
                ks = [rdK(x % 5, x // 4, x % 4) for x in range(T_ + 1, min(32, T_ + G_n + 1))]
                if ks: e1 += [ks[0][3], ks[0][0]] + [k_[1] for k_ in ks]
                e1 += [vs[0][0]] + [x for v_ in vs for x in v_[1:3]] + [vs[0][3]]
                e2 = [k_[3] for k_ in ks[1:]]
                late_n = 2*(len(vs) - 1) + len(e2)
                if G_n > 2 and late_n: wB = late_n; pendw[0] = 0
                else: wB = 0
            cu = [(0, 6, 12, 18, 24), (0, 5, 11, 17, 24), (0, 5, 10, 17, 24), (0, 7, 12, 19, 24), (0, 4, 10, 16, 24), (0, 8, 14, 19, 24)][C.cu]
            od = [(0, 2, 1, 3), (0, 1, 2, 3), (2, 0, 3, 1), (0, 2, 3, 1), (2, 0, 1, 3)][C.od]
            if C.ep == 1 and G_n:
                k_ = e1.index(vs[0][0]); e2 = e1[k_:] + e2; e1 = e1[:k_] + (["s_mov_b64 exec, -1"] if ks else [])
            if C.ep == 2: e1, e2, e3 = [], e1, e2
            eB = [[], [], [], []]
            if C.ep >= 3 and G_n:
                e1 = [x for x in e1 if x.startswith("v_add")]
                if ks: e1 += [ks[0][3], ks[0][0]] + [k_[1] for k_ in ks] + ["s_mov_b64 exec, -1"]
                mk = lambda vv: [vv[0][0]] + [x for v_ in vv for x in v_[1:3]] + [vv[0][3]] if vv else []
                if C.ep == 3:
                    e2 = mk(vs[:2]); e3 = []
                    eB = [[k_[3] for k_ in ks[1:]], mk(vs[2:]), [], []]
                    wB = 2 if len(vs) > 1 else 0; pendw[0] = 0 if (len(vs) > 1) else None
                if C.ep == 4:
                    e2 = mk(vs); e3 = []
                    eB = [[k_[3]] for k_ in ks[1:]] + [[]] * (4 - len(ks[1:]))
                    wB = 2*(len(vs) - 1); pendw[0] = 0 if len(vs) > 1 else None
            def half(mf, val, ex):
                for i in range(4):
                    a(mf[od[i]]); [a(x) for x in ex[i]]; [a(x) for x in val[cu[i]:cu[i+1]]]
            half(mf, val, [e1, e2, e3, []])
            val = sm(1)
            if wB is not None: a(f"s_waitcnt lgkmcnt({wB})")
            if not last:
                mf = qk(0, (T_ + 1) % 5) + pv(0, T_ % 5)
                half(mf, val, eB)
            else:
                mf = pv(0, T_ % 5) + pv(1, T_ % 5)
                a(mf[0]); [a(x) for x in val[0:6]]
                a(mf[1]); [a(x) for x in xreads()]; [a(x) for x in val[6:16]]
                a(mf[2]); [a(x) for x in val[16:]]
                a("s_nop 1"); a(mf[3])
    if fast: a.label("L_fast_tail")
    stamp(a, 8)
    cstamp(a, 8)
    fb = a.uid("att_fb"); comb = a.uid("att_comb"); done = a.uid("att_done"); yng = a.uid("att_y")
    def check():
        a(f"v_add_f32 v10, v{OO+12}, v{PR+12}\nv_add_f32 v11, v{OO+16+12}, v{PR+16+12}")
        a(f"v_mul_f32 v10, {f32(2.0**63)}, v10\nv_mul_f32 v11, {f32(2.0**63)}, v11")
        a(f"v_add_f32 v10, v10, v10\nv_add_f32 v11, v11, v11\nv_mul_f32 v10, 0, v10\nv_mul_f32 v11, 0, v11")
        for i in range(12): a(f"v_fmac_f32 v10, 0, v{OO+i}\nv_fmac_f32 v11, 0, v{OO+16+i}")
        a(f"v_cmp_u_f32 vcc, v10, v11\ns_cbranch_vccnz {fb}")
    a(f"s_cmp_eq_u32 s{sKH}, 0\ns_cbranch_scc1 {yng}")
    def older():
        a.label(yng)
        a("s_waitcnt lgkmcnt(0)")
        a.nop(9)
        a(f"v_mov_b32 v{OO+13}, v8\nv_mov_b32 v{OO+16+13}, v9\nv_mov_b32 v10, s{sEP}")
        for x in range(2):
            for i in range(3):
                a(f"ds_write_b128 v{vX1}, v[{OO+16*x+4*i}:{OO+16*x+4*i+3}] offset:{3584*x+1024*i}")
            a(f"ds_write_b64 v{vX2}, v[{OO+16*x+12}:{OO+16*x+13}] offset:{3584*x+3072}")
        a(f"ds_write_b32 v{XF}, v10")
        l0only(cs1)
        a("s_waitcnt lgkmcnt(0)")
        HOOK[0] = lambda: l0only(cs2)
        stamp(a, 9)
    pl = a.uid("att_x")
    a(f"s_waitcnt lgkmcnt(0)\nv_cmp_ne_u32 vcc, s{sEP}, v31\ns_cbranch_vccnz {pl}")
    a.label(pl + "k")
    def respin():
        a.label(comb)
        a(f"s_mov_b32 s{sFB}, 1")
        for x in range(2):
            for i in range(13): a(f"v_mov_b32 v{PR+16*x+i}, 0")
            a(f"v_mov_b32 v{PR+16*x+13}, v{8+x}")
        a(f"s_branch {pl}k")
        a.label(pl)
        a(f"s_mov_b32 s{t+12}, 0")
        a.label(pl + "l")
        for x in xreads(): a(x)
        a(f"""
        s_waitcnt lgkmcnt(0)
        v_cmp_ne_u32 vcc, s{sEP}, v31
        s_cbranch_vccz {pl}k
        s_add_u32 s{t+12}, s{t+12}, 1
        s_cmp_lt_u32 s{t+12}, {4*SPIN}
        s_cbranch_scc1 {pl}l
        s_branch {pl}k
        """)
    FF = 64
    for x in range(2):
        f = FF + 4*x
        a(f"v_max_f32 v{f+2}, v{8+x}, v{PR+13+16*x}\nv_sub_f32 v{f}, v{8+x}, v{f+2}\nv_sub_f32 v{f+1}, v{PR+13+16*x}, v{f+2}")
    for x in range(2):
        f = FF + 4*x
        a(f"v_exp_f32 v{f}, v{f}\nv_exp_f32 v{f+1}, v{f+1}")
    for x in range(2):
        f = FF + 4*x; o = OO + 16*x; pk = 72 + 6*x
        a(f"v_mul_f32 v{f+2}, v{f}, v{o+12}\nv_fmac_f32 v{f+2}, v{f+1}, v{PR+12+16*x}\nv_rcp_f32 v{f+2}, v{f+2}\ns_nop 0")
        a(f"v_mul_f32 v{f}, v{f}, v{f+2}\nv_mul_f32 v{f+2}, v{f+1}, v{f+2}")
        for i in range(0, 12, 2):
            a(f"v_pk_mul_f32 v[{o+i}:{o+i+1}], v[{o+i}:{o+i+1}], v[{f}:{f+1}] op_sel_hi:[1,0]")
        for i in range(0, 12, 2):
            a(f"v_pk_fma_f32 v[{o+i}:{o+i+1}], v[{PR+16*x+i}:{PR+1+16*x+i}], v[{f+2}:{f+3}], v[{o+i}:{o+i+1}] op_sel_hi:[1,0,1]")
        for i in range(6):
            a(f"v_cvt_pk_bf16_f32 v{pk+i}, v{o+2*i}, v{o+2*i+1}")
        a(f"""
        buffer_store_dwordx2 v[{pk}:{pk+1}], v{vO}, {WSR}, s{sO+x} offen {SB}
        buffer_store_dwordx2 v[{pk+2}:{pk+3}], v{vO}, {WSR}, s{sO+x} offen offset:512 {SB}
        s_mov_b32 exec_hi, 0
        buffer_store_dwordx2 v[{pk+4}:{pk+5}], v{vO}, {WSR}, s{sO+x} offen offset:1024 {SB}
        s_mov_b32 exec_hi, -1
        """)
    nck = a.uid("att_nc")
    a(f"s_cmp_lg_u32 s{sFB}, 0\ns_cbranch_scc1 {nck}")
    check()
    a.label(nck)
    flag_setup(a, 2)
    a("s_setprio 0\ns_waitcnt vmcnt(0)")
    flag_store(a, SB)
    a("s_barrier")
    stamp(a, 9)
    a(f"s_branch {ld_label}")
    for hk, fn in outl:
        a.label(hk); fn(); a(f"s_branch {hk}r")
    respin()
    older()
    def fallback():
        a.label(fb)
        sKb, sVb, sI = t+12, t+13, t+14
        def addr():
            a(f"""
            s_mul_i32 s{sKb}, s{sI}, 1280
            s_add_u32 s{sKb}, s{sKb}, s{sHB}
            s_add_u32 s{sVb}, s{sKb}, {L_V}
            s_add_u32 s{sKb}, s{sKb}, {L_K}
            buffer_load_dwordx4 v[{KF}:{KF+3}], v5, {WSR}, s{sKb} offen sc1
            s_mov_b32 exec_hi, {0 if C.c0 else -1}
            buffer_load_dwordx2 v[{KF+4}:{KF+5}], v6, {WSR}, s{sKb} offen offset:1024 sc1
            s_mov_b32 exec_hi, -1
            """)
        l1 = a.uid("att_fb1"); l2 = a.uid("att_fb2")
        a(f"s_mov_b32 s{sI}, 0\nv_mov_b32 v8, 0xff800000\nv_mov_b32 v9, 0xff800000")
        a(f"s_mov_b32 exec_lo, 0\nv_mov_b64 v[{QA+4}:{QA+5}], 0\nv_mov_b64 v[{QB+4}:{QB+5}], 0\ns_mov_b32 exec_lo, -1")
        a.label(l1)
        addr()
        a("s_waitcnt vmcnt(0)")
        for x in range(2):
            for m in qk(x, 0, "0"): a(m)
        a.nop(12)
        for x in range(2):
            sd = SS + 16*x
            for i in range(0, 16, 2): a(f"v_max3_f32 v{8+x}, v{8+x}, v{sd+i}, v{sd+i+1}")
        a(f"s_add_u32 s{sI}, s{sI}, 1\ns_cmp_lt_u32 s{sI}, 64\ns_cbranch_scc1 {l1}")
        setm()
        for i in range(32): a(f"v_mov_b32 v{OO+i}, 0")
        a(f"s_mov_b32 s{sI}, 0")
        a.label(l2)
        addr()
        a(f"""
        s_mov_b64 exec, s[{sEX}:{sEX+1}]
        buffer_load_dwordx4 v[{VF}:{VF+3}], v7, {WSR}, s{sVb} offen sc1
        buffer_load_dwordx4 v[{VF+4}:{VF+7}], v7, {WSR}, s{sVb} offen offset:640 sc1
        s_mov_b64 exec, -1
        s_waitcnt vmcnt(0)
        """)
        for x in range(2):
            for m in qk(x, 0): a(m)
        a.nop(12)
        for x in range(2):
            for i in sm(x): a(i)
        a("s_nop 1")
        for x in range(2):
            for m in pv(x, 0): a(m)
        a(f"s_add_u32 s{sI}, s{sI}, 1\ns_cmp_lt_u32 s{sI}, 64\ns_cbranch_scc1 {l2}")
        a.nop(12)
        a(f"s_branch {comb}")
    return fallback

def xoff(SB, which):
    if SB == "": return (False, L_X1)
    return (True, L_X1) if which == 1 else (False, L_X2)
def add_x(a, dst, src, SB, which):
    lo, c = xoff(SB, which)
    a(f"s_add_u32 s{dst}, s{src}, {c}")
    if lo: a(f"s_add_u32 s{dst}, s{dst}, s{sLO}")

def proj_compute(a, down, SB, end_label):
    fast = SB == ""
    t = T
    K = F if down else D
    NCH = K // 128
    sRT, sCT = t, t+1
    st0 = 13 if down else 10
    sF, sRM, sST, sA, sA1, sThr, sSel = t+4, t+5, t+12, t+2, t+3, t+9, t+10
    NWS = 3 if down else C.wo_sets
    ACC = 14; RX = 34; AF = 54; WF = 134 if down else 54 + 16*C.wo_nas; RES = (220 if down else 54); VST = 200
    assert WF + 20*NWS <= 254
    vF, vF2, vR, vR2 = 10, 11, 12, 13
    a(f"""
    s_lshr_b32 s{sRT}, s{sWG}, 3
    s_and_b32 s{sCT}, s{sR}, 7
    v_and_b32 v3, 15, v0
    v_lshrrev_b32 v7, 4, v0
    s_lshl_b32 s{t+6}, s{sRT}, 1
    s_lshr_b32 s{t+7}, s{sW}, 1
    s_add_u32 s{t+6}, s{t+6}, s{t+7}
    s_and_b32 s{t+8}, s{sW}, 1
    s_lshl_b32 s{t+8}, s{t+8}, 8
    s_mul_i32 s{sA}, s{t+6}, {K*64}
    s_add_u32 s{sA}, s{sA}, s{t+8}
    {"" if fast else f"s_add_u32 s{sA}, s{sA}, s{sLO}"}
    s_add_u32 s{sA}, s{sA}, {(L_Q if fast else L_H) if down else L_O}
    s_mul_i32 s{sF}, s{t+6}, 40960
    s_mul_i32 s{t+7}, s{sCT}, 5120
    s_add_u32 s{sF}, s{sF}, s{t+7}
    s_add_u32 s{sF}, s{sF}, s{t+8}
    s_lshl_b32 s{sST}, s{sW}, 8
    s_lshl_b32 s{t+7}, s{sRT}, 12
    s_add_u32 s{sST}, s{sST}, s{t+7}
    s_add_u32 s{sST}, s{sST}, s{sLO}
    s_lshl_b32 s{sRM}, s{sRT}, 2
    s_add_u32 s{sRM}, s{sRM}, s{sW}
    s_mul_i32 s{sRM}, s{sRM}, {16*1280}
    s_mul_i32 s{t+7}, s{sCT}, 160
    s_add_u32 s{sRM}, s{sRM}, s{t+7}
    v_lshlrev_b32 v1, 4, v3
    v_lshl_add_u32 v{vF}, v7, 9, v1
    v_lshrrev_b32 v2, 5, v0
    v_lshl_add_u32 v1, v2, 9, v1
    v_and_b32 v2, 1, v7
    v_lshl_add_u32 v{vF2}, v2, 3, v1
    v_add_u32 v{vF2}, 4096, v{vF2}
    v_mul_u32_u24 v1, 1280, v3
    v_lshl_add_u32 v{vR}, v7, 4, v1
    v_lshl_add_u32 v{vR2}, v7, 3, v1
    v_add_u32 v9, 4096, v{vF}
    """)
    if C.x_a == 1 and not down: a(f"s_lshr_b32 s{sA}, s{sW}, 1\ns_mul_i32 s{sA}, s{sA}, 40960\ns_add_u32 s{sA}, s{sA}, s{t+8}\ns_add_u32 s{sA}, s{sA}, {WS_WTG}")
    SA = Src(sA, sA1, sThr, 8192)
    if down:
        a(f"s_and_b32 s{t+7}, s{sRT}, 3\ns_mul_i32 s{t+7}, s{t+7}, {C.rot_dn}\ns_sub_u32 s{sThr}, 12, s{t+7}")
        SA.setup(a, t+7, 12, t+8)
    def io(store, rowmajor, rsrc, soff, reg, bits):
        op = "store" if store else "load"
        v16, v8 = (vR, vR2) if rowmajor else (vF, vF2)
        o1, o2 = (64, 128) if rowmajor else (2048, 0)
        return [f"buffer_{op}_dwordx4 v[{reg}:{reg+3}], v{v16}, {rsrc}, {soff} offen {bits}",
                f"buffer_{op}_dwordx4 v[{reg+4}:{reg+7}], v{v16}, {rsrc}, {soff} offen offset:{o1} {bits}",
                f"buffer_{op}_dwordx2 v[{reg+8}:{reg+9}], v{v8}, {rsrc}, {soff} offen offset:{o2} {bits}"]
    xld = []; xv = []
    if down:
        add_x(a, t+13, sF, SB, 1)
        a(f"s_add_u32 s{t+14}, s{sST}, {L_ST1}\nv_lshlrev_b32 v8, 4, v3")
        xld = io(False, False, WSR, f"s{t+13}", RES, "sc1") + [f"buffer_load_dwordx4 v[{VST+4*i}:{VST+4*i+3}], v8, {WSR}, s{t+14} offen offset:{1024*i} sc1" for i in range(4)]
    else:
        l1 = a.uid("prj_r1"); l2 = a.uid("prj_r2")
        a(f"s_cmp_lg_u32 s{sL}, 0\ns_cbranch_scc1 {l1}")
        for x in io(False, True, R(R_X), f"s{sRM}", RES, ""): a(x)
        a(f"s_branch {l2}")
        a.label(l1)
        add_x(a, t+7, sF, SB, 2)
        for x in io(False, False, WSR, f"s{t+7}", RES, "sc1"): a(x)
        a.label(l2)
        a("s_setprio 0\ns_waitcnt vmcnt(0)\ns_barrier")
        HOOK[0]()
    a(f"v_lshlrev_b32 v4, 4, v0\nv_add_u32 v5, 61440, v4\nv_add_u32 v6, 122880, v4\ns_mov_b32 s{t+8}, 0xffff0000")
    def wadr(c):
        o = dnW(c) if down else c * 20480
        return 4 + o // 61440, o % 61440
    def reads(c, u):
        b = WF + 20*((4*c + u) % NWS); r, o = wadr(c)
        return [f"ds_read_b128 v[{b+4*jn}:{b+4*jn+3}], v{r} offset:{o + 5120*u + 1024*jn}" for jn in range(5)]
    NAS = 5 if down else C.wo_nas
    def aload(c):
        r = []
        if down and C.rot_dn: r += [f"s_cmp_gt_u32 s{sThr}, {c}", f"s_cselect_b32 s{sSel}, s{sA}, s{sA1}", f"s_add_u32 s{sSel}, s{sSel}, {c*8192}"]
        else: r += [f"s_add_u32 s{sSel}, s{sA}, {c*8192}"]
        for u in range(4):
            d = AF + 16*(c % NAS) + 4*u
            r.append(f"buffer_load_dwordx4 v[{d}:{d+3}], v{vF if u < 2 else 9}, {WSR}, s{sSel} offen offset:{2048*(u & 1)} sc1")
        return r
    def mfmas(c, u, zero=False):
        b = WF + 20*((4*c + u) % NWS); x = AF + 16*(c % NAS) + 4*u
        return [f"v_mfma_f32_16x16x32_bf16 {v(ACC+4*jn,4)}, {v(b+4*jn,4)}, {v(x,4)}, {0 if zero else v(ACC+4*jn,4)}" for jn in range(5)]
    D_ = NWS - 1
    rd = lambda st_: reads(st_ // 4, st_ % 4) if st_ < 4*NCH else []
    if down: a(f"s_and_b32 s{t+7}, s{sRT}, 3\ns_mul_i32 s{t+7}, s{t+7}, {4 if C.rot_dn else 0}")
    G_ = gate_local(a, "down" if down else "wo", 5 if down else 2, 1, 2, t+7)
    b = Asm()
    for i in range(10):
        b(f"v_lshlrev_b32 v{RX+2*i}, 16, v{RES+i}\nv_and_b32 v{RX+1+2*i}, s{t+8}, v{RES+i}")
    if down:
        row_stats(b, VST, VST + 2, VST + 3)
        b(f"v_mul_f32 v{VST+2}, v{VST+3}, v{VST+3}")
        xv = b.lines
    else:
        G_.load()
    for st_ in range(D_):
        for x in rd(st_): a(x)
    if not down:
        for x in b.lines: a(x)
        G_.upd()
    def al(c):
        G_.need(span(128*c, 128*c + 127, 96, 2) if down else (span(128*c, 128*c + 127, 20, 1) if C.x_a != 3 else 0xffffffff))
        if c == 0: stamp(a, st0)
        for x in aload(c):
            if C.x_d == 1 and down and c >= 3 and x.startswith("buffer"): x = x.replace(WSR, R(R_WQ)).replace(f"s{sSel} offen", "0 offen").replace("sc1", "")
            a(x)
    NPRE = C.dn_a if down else C.wo_a
    N0 = C.dn_a0 if down else C.wo_a0
    assert NPRE < NAS or NCH <= NAS
    for c in range(N0): al(c)
    stamp(a, 21 if down else 5)
    nis = N0; pend = []; nld = 4*N0; ops = list(range(nld))
    for c in range(NCH):
        for u in range(4):
            step = 4*c + u
            left = min(D_ - 1, 4*NCH - 1 - step)
            assert nld > step
            vstart = 4*NCH - C.xv0
            if down and step == vstart: assert not xld and max(i_ for i_, o_ in enumerate(ops) if o_ < 0) < ops.index(step)
            a(f"s_waitcnt vmcnt({len(ops) - 1 - ops.index(step)}) lgkmcnt({min(15, 5*left)})")
            if down and C.stamp and C.dbg == 8 and u in (0, 2): a(f"s_memtime s[10:11]\ns_waitcnt lgkmcnt(0)\nv_writelane_b32 v254, s10, {2*c + u//2}")
            if step == 4*NCH - 1 or (down and u == 2 and c + 1 < NCH): a("s_barrier")
            if not pend and nis < min(NCH, c + NPRE + 1):
                full = down and nis >= C.dn_full
                G_.need(0xffffffff if full else (span(128*nis, 128*nis + 127, 96, 2) if down else span(128*nis, 128*nis + 127, 20, 1)))
                ld = aload(nis); nis += 1
                for x in ld[:-4]: a(x)
                pend = ld[-4:]
            k = 2 if nld - step < 4*NPRE - 2 else 1
            mf = mfmas(c, u, step == 0); r_ = rd(step + D_)
            for i in range(5):
                a(mf[i])
                if r_: a(r_[i])
                if pend and i in ((4,) if k == 1 else (1, 4)): a(pend.pop(0)); ops.append(nld); nld += 1
                elif xld and step >= C.xl0 and i == 2: a(xld.pop(0)); ops.append(-1)
                if down and step >= vstart:
                    for _ in range(1 if r_ else 2):
                        if xv: a(xv.pop(0))
    assert not xld
    for x in xv: a(x)
    stamp(a, st0 + 1)
    add_x(a, t+7, sF, SB, 2 if down else 1)
    flag_setup(a, 6 if down else 3)
    for i in range(0, 20, 2):
        c = ACC + i
        if down: a(f"v_pk_fma_f32 v[{c}:{c+1}], v[{c}:{c+1}], v[{VST+2}:{VST+3}], v[{RX+i}:{RX+i+1}] op_sel_hi:[1,0,1]")
        else: a(f"v_pk_add_f32 v[{c}:{c+1}], v[{c}:{c+1}], v[{RX+i}:{RX+i+1}]")
        a(f"v_cvt_pk_bf16_f32 v{60+i//2}, v{c}, v{c+1}")
    if down:
        l1 = a.uid("prj_o1")
        a(f"s_cmp_eq_u32 s{sL}, 0\ns_cbranch_scc1 {l1}")
        srd(a, R_T, P_OUT, ACT)
        for x in io(True, True, R(R_T), f"s{sRM}", 60, ["", "sc1", "nt"][C.outb]): a(x)
        a(f"s_branch {end_label}")
        a.label(l1)
    for x in io(True, False, WSR, f"s{t+7}", 60, SB): a(x)
    a(f"v_pk_add_f32 v[72:73], v[{ACC}:{ACC+1}], v[{ACC+2}:{ACC+3}]\nv_pk_mul_f32 v[74:75], v[{ACC}:{ACC+1}], v[{ACC}:{ACC+1}]")
    a(f"v_pk_fma_f32 v[74:75], v[{ACC+2}:{ACC+3}], v[{ACC+2}:{ACC+3}], v[74:75]")
    for i in range(4, 20, 2):
        a(f"v_pk_add_f32 v[72:73], v[72:73], v[{ACC+i}:{ACC+i+1}]\nv_pk_fma_f32 v[74:75], v[{ACC+i}:{ACC+i+1}], v[{ACC+i}:{ACC+i+1}], v[74:75]")
    a(f"""
    v_add_f32 v72, v72, v73
    v_add_f32 v73, v74, v75
    s_lshr_b32 s{t+7}, s{sCT}, 1
    s_lshl_b32 s{t+7}, s{t+7}, 10
    v_permlane32_swap_b32 v72, v73
    s_and_b32 s{t+8}, s{sCT}, 1
    s_lshl_b32 s{t+8}, s{t+8}, 3
    v_add_f32 v72, v72, v73
    v_mov_b32 v73, v72
    s_add_u32 s{t+7}, s{t+7}, s{t+8}
    s_add_u32 s{t+7}, s{t+7}, s{sST}
    v_permlane16_swap_b32 v72, v73
    s_add_u32 s{t+7}, s{t+7}, {L_ST2 if down else L_ST1}
    v_lshrrev_b32 v8, 5, v0
    v_lshlrev_b32 v8, 2, v8
    v_lshl_add_u32 v8, v3, 4, v8
    v_add_f32 v72, v72, v73
    buffer_store_dword v72, v8, {WSR}, s{t+7} offen {SB}
    s_waitcnt vmcnt(1)
    """)
    flag_store(a, SB)
    a("s_barrier")
    stamp(a, st0 + 2)
    a(f"v_add_u32 v253, 1, v2\nv_mov_b32 v252, 0\ns_mov_b32 s100, s{T+20}")
    if not down:
        l = a.uid("fk")
        a(f"s_or_b32 s{t+7}, s{sW}, s{sCT}\ns_or_b32 s{t+7}, s{t+7}, s{sL}\ns_cbranch_scc1 {l}\ns_lshl_b32 s{t+7}, s{sWG}, 7\ns_add_u32 s{t+7}, s{t+7}, {L_FG + 40}")
        flag_store(a, "sc1", t+7)
        a.label(l)

def gu_compute(a, SB):
    t = T
    sRT, sCT, sWM, sWN, sTB, sF0 = t, t+1, t+2, t+3, t+4, t+6
    FR = 16; ACC = 96; VCS = 192; VST = 216; MS = 232
    a(f"""
    s_lshr_b32 s{sRT}, s{sWG}, 4
    s_and_b32 s{sCT}, s{sR}, 15
    s_and_b32 s{sWM}, s{sW}, 1
    s_lshr_b32 s{sWN}, s{sW}, 1
    s_lshl_b32 s{sTB}, s{sRT}, 1
    s_add_u32 s{sTB}, s{sTB}, s{sWM}
    s_mul_i32 s{sF0}, s{sCT}, 96
    s_mul_i32 s{t+5}, s{sWN}, 48
    s_add_u32 s{sF0}, s{sF0}, s{t+5}
    s_mul_i32 s{t+5}, s{sWG}, 768
    s_mul_i32 s{t+7}, s{sWN}, 384
    s_add_u32 s{t+5}, s{t+5}, s{t+7}
    s_add_u32 s{t+13}, s{t+5}, {WS_CSG}
    v_lshrrev_b32 v12, 4, v0
    v_lshlrev_b32 v7, 4, v12
    """)
    a(f"""
    v_and_b32 v13, 15, v0
    v_lshlrev_b32 v3, 4, v13
    v_lshl_add_u32 v3, v12, 9, v3
    s_lshl_b32 s{t+5}, s{sWM}, 13
    v_add_u32 v3, s{t+5}, v3
    v_lshlrev_b32 v11, 4, v0
    s_mul_i32 s{t+5}, s{sWN}, 6144
    s_add_u32 s{t+5}, s{t+5}, {WB}
    v_add_u32 v4, s{t+5}, v11
    v_add_u32 v5, 49152, v4
    v_lshlrev_b32 v6, 2, v13
    s_mul_i32 s{t+11}, s{sTB}, {2*F*64}
    s_lshl_b32 s{t+7}, s{sF0}, 6
    s_add_u32 s{t+11}, s{t+11}, s{t+7}
    {"" if SB == "" else f"s_add_u32 s{t+11}, s{t+11}, s{sLO}"}
    s_add_u32 s{t+11}, s{t+11}, {L_Q if SB == "" else L_H}
    s_add_u32 s{t+12}, s{t+11}, {F*64}
    """)
    flag_setup(a, 5)
    def reads(c, u):
        b = FR + 40*u; o = guW(c) - WB
        ra = [f"ds_read_b128 v[{b+4*tt}:{b+4*tt+3}], v3 offset:{(c % 4)*16384 + 4096*(tt >> 1) + 256*(tt & 1) + 2048*u}" for tt in range(4)]
        rw = [f"ds_read_b128 v[{b+16+4*f}:{b+19+4*f}], v{4 + o // 49152} offset:{o % 49152 + 12288*u + 1024*f}" for f in range(6)]
        return ra + rw
    def mfma(u, tl, z):
        b = FR + 40*u; c = ACC + 4*tl
        return f"v_mfma_f32_16x16x32_bf16 {v(c,4)}, {v(b+16+4*(tl>>2),4)}, {v(b+4*(tl&3),4)}, {0 if z else v(c,4)}"
    def epi(jn, pk):
        r = []
        g = ACC + 32*jn; u_ = g + 16
        for tp in range(2):
            c = g + 8*tp; d = u_ + 8*tp
            for i in range(8): r.append(f"v_max_f32 v{c+i}, 0, v{c+i}")
            if pk:
                for i in range(0, 8, 2): r.append(f"v_pk_mul_f32 v[{c+i}:{c+i+1}], v[{c+i}:{c+i+1}], v[{d+i}:{d+i+1}]")
            else:
                for i in range(8): r.append(f"v_mul_f32 v{c+i}, v{c+i}, v{d+i}")
            for i in range(4): r.append(f"v_cvt_pk_bf16_f32 v{c+i}, v{c+2*i}, v{c+2*i+1}")
            r += ["s_nop 0", f"v_permlane16_swap_b32 v{c}, v{c+2}", f"v_permlane16_swap_b32 v{c+1}, v{c+3}"]
            r.append(f"buffer_store_dwordx4 v[{c}:{c+3}], v11, {WSR}, s{t+11+tp} offen offset:{1024*jn} {SB}")
        return r
    a(f"s_lshl_b32 s{t+5}, s{sTB}, 12\ns_add_u32 s{t+5}, s{t+5}, s{sLO}\ns_add_u32 s{t+5}, s{t+5}, {L_ST1}")
    ins = {}
    for f in range(6): ins[C.csi + 2*f] = [f"buffer_load_dwordx4 v[{VCS+4*f}:{VCS+4*f+3}], v7, {WSR}, s{t+13} offen offset:{64*f} sc1"]
    for i in range(4): ins[36 + 48*C.gfull + 3*i] = [f"buffer_load_dwordx4 v[{VST+4*i}:{VST+4*i+3}], v11, {WSR}, s{t+5} offen offset:{1024*i} sc1"]
    ins[82 + 48*C.gfull] = ["s_waitcnt vmcnt(0)"] + [f"v_add_f32 v{VST}, v{VST}, v{VST+2*i}" for i in range(1, 8)] + \
         [f"v_mul_f32 v{MS}, {f32(-1.0/D)}, v{VST}", f"v_mul_f32 v{MS+1}, {f32(-1.0/D)}, v{VST}", "s_nop 0", f"v_permlane16_swap_b32 v{MS}, v{MS+1}",
          f"v_mov_b32 v{MS+2}, v{MS}", f"v_mov_b32 v{MS+3}, v{MS+1}", "s_nop 0", f"v_permlane32_swap_b32 v{MS}, v{MS+2}", f"v_permlane32_swap_b32 v{MS+1}, v{MS+3}"]
    fix = lambda tl: [f"v_fmac_f32 v{ACC+4*tl+i}, v{MS+(tl&3)}, v{VCS+4*(tl>>2)+i}" for i in range(4)]
    if C.s2i: ins = dict(sorted({**ins, 10: ["s_waitcnt vmcnt(0)", f"buffer_store_dword v253, v252, {WSR}, s100 offen {SB}"]}.items()))
    else: stage2(a, SB, 0)
    gemm16(a, 10, 24, reads, mfma, [tuple(range(8*j, 8*j+8)) for j in range(3)], ins, fix, 122 + 48*C.gfull, epi, 22, C.g16)
    a("s_waitcnt vmcnt(0)")
    flag_store(a, SB)
    a("s_barrier")
    stamp(a, 23)

def loader_chain(a, SB, end_label, idle_label):
    t = T
    sLW, s4, s5, s6, aGU, aGU1, wGU, wGU1, wDN, wDN1, aQK, aQK1, wQK, wQK1, th10, th12, sTmp, sSel, thq = range(t, t + 19)
    sRot = sSel
    a(f"""
    s_sub_u32 s{sLW}, s{sW}, 4
    v_lshlrev_b32 v8, 4, v0
    s_mul_i32 s{s6}, s{sLW}, 6144
    s_and_b32 s{wGU}, s{sR}, 15
    s_mul_i32 s{wGU}, s{wGU}, 245760
    s_add_u32 s{wGU}, s{wGU}, s{s6}
    s_add_u32 s{wGU}, s{wGU}, {WS_WTG}
    s_lshr_b32 s{sRot}, s{sR}, 4
    s_mul_i32 s{sRot}, s{sRot}, {C.rot_gu}
    s_sub_u32 s{th10}, 10, s{sRot}
    """)
    S_aGU = Src(aGU, aGU1, th10, 4096); S_wGU = Src(wGU, wGU1, th10, 24576); S_wDN = Src(wDN, wDN1, th12, 20480)
    S_aQK = Src(aQK, aQK1, thq, 4096); S_wQK = Src(wQK, wQK1, thq, 64*3840)
    S_aGU.norot = S_wGU.norot = not C.rot_gu; S_wDN.norot = not C.rot_dn; S_aQK.norot = S_wQK.norot = not C.rot_qk
    S_wGU.setup(a, sRot, 10, sTmp)
    def rest():
        a(f"""
        s_lshl_b32 s{s4}, s{sLW}, 12
        s_mul_i32 s{s5}, s{sLW}, 5120
        s_lshr_b32 s{aQK}, s{sWG}, 4
        s_lshl_b32 s{aQK}, s{aQK}, 2
        s_add_u32 s{aQK}, s{aQK}, s{sLW}
        s_mul_i32 s{aQK}, s{aQK}, 40960
        """)
        add_x(a, aGU, aQK, SB, 1)
        add_x(a, aQK, aQK, SB, 2)
        a(f"s_and_b32 s{wDN}, s{sR}, 15")
        qkvW_setup(a, wQK, sLW, wDN, sTmp, 6)
        a(f"s_sub_u32 s{sRot}, 10, s{th10}")
        S_aGU.setup(a, sRot, 10, sTmp)
        a(f"s_lshr_b32 s{sRot}, s{sR}, 4\ns_mul_i32 s{sRot}, s{sRot}, {C.rot_qk}\ns_sub_u32 s{thq}, 10, s{sRot}")
        for S_ in (S_aQK, S_wQK): S_.setup(a, sRot, 10, sTmp)
        a(f"""
        s_and_b32 s{wDN}, s{sR}, 7
        s_mul_i32 s{wDN}, s{wDN}, 245760
        s_add_u32 s{wDN}, s{wDN}, s{s5}
        s_add_u32 s{wDN}, s{wDN}, {WS_WTD}
        s_lshr_b32 s{sRot}, s{sR}, 3
        s_mul_i32 s{sRot}, s{sRot}, {C.rot_dn}
        s_sub_u32 s{th12}, 12, s{sRot}
        """)
        S_wDN.setup(a, sRot, 12, sTmp)
    G_ = [None, None]
    def lin(S_, dst, dfn, bits):
        def f(c, i0, k):
            if bits == "sc1":
                G_[0].need(span(64*c, 64*c + 63, 80, 2) if C.gran else 0xffff)
                if G_[1] is not None: stamp(a, G_[1]); G_[1] = None
            if not S_.norot: S_.sel(a, c, sSel)
            lin_dma(a, 8, S_.sB if S_.norot else sSel, (0 if (C.x_gh and S_ is S_wGU) else c)*S_.stride + 1024*i0, dst, dfn(c) + 1024*i0, k, bits)
        return f
    def pf(kind, ep, st, rot):
        def f():
            a(f"s_lshr_b32 s{sTmp}, s{sR}, 4\ns_mul_i32 s{sTmp}, s{sTmp}, {4 if rot else 0}")
            G_[0] = gate_local(a, kind, ep, 1, 2, sTmp, sleep=C.psleep); G_[1] = st
        return f
    def emitWQ(c, i0, k):
        if not S_wQK.norot: S_wQK.sel(a, c, sSel)
        for i in range(i0, i0 + k):
            a(f"s_add_u32 m0, s{s4}, {qkW(c) + 1024*i}\ns_add_u32 s{sTmp}, s{wQK if S_wQK.norot else sSel}, {c*64*3840 + i*4*3840}")
            a(f"buffer_load_dwordx4 v{6 + (i >> 1)}, {R(R_WQ)}, s{sTmp} offen lds")
    rA = lambda c: (c % 4) * 16384
    mark = [0]; mk2 = [0]
    def full(c, nm='qk'):
        if c == 0: G_[0].load2(); L.q.append((nm, "P", 99)); mk2[0] = L.total
        if c == 1: G_[0].bump(0xffff, L.total - mk2[0])
    def gu_bar(c):
        full(c - C.gfull + 1, 'gu')
        if C.thr0 >= 0 and 1 <= c < 8:
            l = a.uid("t0")
            a(f"s_cmp_lg_u32 s{sL}, 0\ns_cbranch_scc1 {l}\ns_waitcnt vmcnt({C.thr0})")
            a.label(l)
        if SB != "": return
        if C.htl and c == C.htc:
            a(f"""
            s_lshr_b32 s{sTmp}, s{sWG}, 3
            s_lshl_b32 s{sTmp}, s{sTmp}, 1
            s_lshr_b32 s{sSel}, s{sLW}, 1
            s_add_u32 s{sTmp}, s{sTmp}, s{sSel}
            s_mul_i32 s{sTmp}, s{sTmp}, {F*64}
            s_and_b32 s{sSel}, s{sR}, 7
            s_lshl_b32 s{sSel}, s{sSel}, 1
            s_bitcmp1_b32 s{sLW}, 0
            s_addc_u32 s{sSel}, s{sSel}, 0
            s_mul_i32 s{sSel}, s{sSel}, {128*C.htl}
            s_add_u32 s{sTmp}, s{sTmp}, s{sSel}
            v_lshlrev_b32 v9, 7, v0
            s_mov_b32 exec_lo, {hex((1 << min(32, C.htl)) - 1)}
            s_mov_b32 exec_hi, {hex((1 << max(0, C.htl - 32)) - 1)}
            buffer_load_dword v10, v9, {WSR}, s{sTmp} offen
            s_mov_b64 exec, -1
            """)
            L.q.append(("gu", "P", 99)); L.total += 1
        if c == C.fkc:
            a(f"v_and_b32 v4, 7, v0\nv_lshlrev_b32 v4, 10, v4\ns_lshl_b32 s{thq}, s{sLW}, 13\ns_add_u32 s{thq}, s{thq}, {L_FG + 40}\nbuffer_load_dword v5, v4, {WSR}, s{thq} offen sc1")
            L.q.append(("gu", "P", 99)); mark[0] = L.total
        if c == C.fkc + 2:
            l = a.uid("fkc")
            a(f"s_cmp_lg_u32 s{sL}, 0\ns_cbranch_scc1 {l}")
            poll(a, 4, 5, f"s{thq}", f"s{sEP}", sleep=2, pre=L.total - mark[0])
            a.label(l)
    assert C.fkc + 2 <= 8 and not C.rot_qk
    reg = lambda f, sz: (lambda c: (f(c), f(c) + sz))
    gu = Phase("gu", 10, 4, 6, lin(S_aGU, s4, rA, "sc1"), lin(S_wGU, s6, guW, "nt" if C.nt_gu else ""), reg(rA, 16384), reg(guW, 24576), pf("gu", 3, 21, C.rot_gu), C.bud_gu, dbg=(C.dbg == 3), after_bar=gu_bar)
    dn = Phase("dn", 12, 0, 5, None, lin(S_wDN, s5, dnW, "nt" if C.nt_dn else ""), None, reg(dnW, 20480), None, C.bud_dn, lag=2, early=C.dn_early, dbg=(C.dbg == 4))
    qk = Phase("qk", 10, 4, 4, lin(S_aQK, s4, rA, "sc1"), emitWQ, reg(rA, 16384), reg(qkW, 16384), pf("gu", 6, 17, C.rot_qk), C.bud_qk, early=C.qk_early, dbg=(C.dbg == 2), after_bar=full)
    L = Loader(a)
    L.live["wo"] = (0, 102400)
    if C.ldprio: a(f"s_setprio {C.ldprio}")
    pn = L.pre(gu, 0, C.gu_e, C.thr_p)
    rest()
    if C.wpf:
        l = a.uid("wpf")
        a(f"""
        s_cmp_lg_u32 s{sL}, 0
        s_cbranch_scc1 {l}
        s_lshr_b32 s{sTmp}, s{sR}, 4
        s_lshl_b32 s{sSel}, s{sLW}, 1
        s_add_u32 s{sTmp}, s{sTmp}, s{sSel}
        s_mul_i32 s{sTmp}, s{sTmp}, 24576
        s_sub_u32 s{sSel}, s{wGU}, s{s6}
        s_add_u32 s{sTmp}, s{sTmp}, s{sSel}
        s_add_u32 s{sTmp}, s{sTmp}, {49152 + 8192*C.ev0}
        v_lshlrev_b32 v4, 7, v0
        s_mov_b32 exec_lo, {hex((1 << C.wpl) - 1)}
        s_mov_b32 exec_hi, 0
        """)
        for i in range(C.wpf):
            a(f"s_waitcnt vmcnt({C.wpd - 1})\nbuffer_load_dword v5, v4, {WSR}, s{sTmp} offen\ns_add_u32 s{sTmp}, s{sTmp}, {128*C.wpl}")
        a("s_mov_b64 exec, -1")
        a.label(l)
    a("s_barrier")
    L.live.pop("wo")
    pn = L.pre(gu, pn, C.gu_e2, C.thr_e)
    a("s_barrier"); pn = L.pre(gu, pn, C.gu_p)
    pn = L.run(gu, dn, pn); stamp(a, 22); L.end(gu); pn = L.pre(dn, pn, C.dn_e, C.thr_e)
    L.wait({("dn", "W", 0)}); a("s_barrier"); pn = L.pre(dn, pn, C.dn_p, C.thr_p)
    dn.skip0 = True
    if C.qpf:
        a(f"s_lshl_b32 s{thq}, s{sR}, 2\ns_add_u32 s{thq}, s{thq}, s{sLW}\ns_mul_i32 s{thq}, s{thq}, {C.qpl*128}\nv_lshlrev_b32 v4, 7, v0")
        def qpf(c):
            k = c - C.qpf0
            if k % C.qps or not 0 <= k // C.qps < C.qpf: return
            k //= C.qps
            off = D*3*D*2 - (C.qpf - k) * C.qpl * 128 * 128
            a(f"s_add_u32 s{sTmp}, s{thq}, {off}\ns_mov_b64 exec, {hex((1 << C.qpl) - 1) if C.qpl <= 31 else -1}")
            if C.qpl == 32: a("s_mov_b32 exec_hi, 0")
            a(f"buffer_load_dword v5, v4, {R(R_WQ)}, s{sTmp} offen\ns_mov_b64 exec, -1")
            L.q.append(("dn", "P", 99))
        dn.after_bar = qpf
        assert not C.rot_qk
    def lastexit(ws_):
        l = a.uid("lx")
        a(f"s_cmp_eq_u32 s{sL}, 0\ns_cbranch_scc1 {l}")
        for w_ in ws_: a(f"s_waitcnt vmcnt({w_})\ns_barrier")
        a(f"s_barrier\ns_branch {end_label}")
        a.label(l)
    pn = L.run(dn, qk, pn, lastexit=lastexit); stamp(a, 14); L.end(dn)
    a(f"s_cmp_lg_u32 s{sL}, 0\ns_cbranch_scc1 {end_label}")
    pn = L.pre(qk, pn, C.qk_e, C.thr_e)
    a("s_barrier")
    a(f"s_and_b32 s{sTmp}, s{sR}, 15\ns_cmp_eq_u32 s{sTmp}, 15\ns_cbranch_scc1 {idle_label}")
    pn = L.pre(qk, pn, C.qk_p)
    L.run(qk, None, pn); stamp(a, 19); L.end(qk)

def build():
    a = Asm()
    K = NAME + "_kernel"
    t = T
    a(f".globl {K}\n.p2align 8\n.type {K},@function")
    a.label(K)
    a(f"""
    s_load_dwordx16 s[16:31], s[0:1], 0
    s_load_dwordx4 s[32:35], s[0:1], 64
    s_cmp_ge_u32 s2, 256
    s_cbranch_scc1 L_exit
    """)
    if C.etlb:
        a(f"v_and_b32 v2, 64, v0\nv_lshlrev_b32 v2, 15, v2\ns_waitcnt lgkmcnt(0)\nglobal_load_dword v251, v2, s[{P_WQKV}:{P_WQKV+1}]\nglobal_load_dword v251, v2, s[{P_X}:{P_X+1}]")
    a(f"""
    s_and_b32 s{sG}, s2, 7
    s_lshr_b32 s{sR}, s2, 3
    v_lshrrev_b32 v1, 6, v0
    v_and_b32 v0, 63, v0
    v_readfirstlane_b32 s{sW}, v1
    s_lshl_b32 s{sWG}, s{sG}, 5
    s_add_u32 s{sWG}, s{sWG}, s{sR}
    s_mov_b32 s{sL}, 0
    s_mov_b32 s{sLO}, 0
    s_mov_b32 s{sEP}, 0
    s_mov_b32 s{sTMO}, 0
    """)
    if C.stamp: a("v_mov_b32 v255, 0\nv_mov_b32 v254, 0\ns_memrealtime s[14:15]")
    stamp(a, 0)
    qkv_ids(a, t)
    a(f"s_cmp_lt_u32 s{sW}, 4\ns_cbranch_scc1 L_q1c\ns_cmp_eq_u32 s{t+1}, 15\ns_cbranch_scc1 L_q1c")
    qkv1_loader(a)
    a("s_branch L_q1done")
    a.label("L_q1c")
    a("s_waitcnt lgkmcnt(0)")
    srd(a, R_X, P_X, ACT)
    srd(a, R_WQ, P_WQKV, D*3*D*2)
    a(f"""
    s_cmp_gt_u32 s{sW}, 3
    s_cbranch_scc1 L_npf
    s_lshl_b32 s{t+8}, s{sWG}, 2
    s_add_u32 s{t+8}, s{t+8}, s{sW}
    s_mul_i32 s{t+8}, s{t+8}, 2560
    v_lshrrev_b32 v1, 5, v0
    v_mul_u32_u24 v1, 1280, v1
    v_and_b32 v2, 31, v0
    v_lshl_add_u32 v1, v2, 4, v1
    v_mov_b64 v[228:229], 0
    v_mov_b64 v[230:231], 0
    buffer_load_dwordx4 v[220:223], v1, {R(R_X)}, s{t+8} offen
    buffer_load_dwordx4 v[224:227], v1, {R(R_X)}, s{t+8} offen offset:512
    s_mov_b32 exec_lo, 0xffff
    s_mov_b32 exec_hi, 0xffff
    buffer_load_dwordx4 v[228:231], v1, {R(R_X)}, s{t+8} offen offset:1024
    s_mov_b64 exec, -1
    """)
    a.label("L_npf")
    other_srds(a)
    a(f"s_cmp_eq_u32 s{t+1}, 15\ns_cbranch_scc1 L_q1idle")
    qkv_compute(a, True, "sc1")
    a("s_branch L_q1done")
    a.label("L_q1idle")
    qkv1_idle(a)
    a.label("L_q1done")
    a(f"s_cmp_eq_u32 s{sMODE}, 0\ns_cbranch_scc1 L_slow")
    tails = []
    for nm, SB in (("fast", ""), ("slow", "sc1")):
        a.label(f"L_{nm}")
        tails.append(phase_attn(a, SB, f"L_{nm}_ld"))
        if nm == "fast": a.label("L_fast_post")
        proj_compute(a, False, SB, None)
        gu_compute(a, SB)
        proj_compute(a, True, SB, "L_end")
        qkv_ids(a, t)
        a(f"s_cmp_lg_u32 s{t+1}, 15\ns_cbranch_scc1 L_{nm}_q2")
        stage2(a, SB, 0)
        a(f"s_branch L_{nm}_idle")
        a.label(f"L_{nm}_q2")
        qkv_compute(a, False, SB)
        a(f"s_branch L_{nm}_next")
        a.label(f"L_{nm}_ld")
        loader_chain(a, SB, "L_end", f"L_{nm}_idle")
        a(f"s_branch L_{nm}_next")
        a.label(f"L_{nm}_idle")
        a("s_waitcnt vmcnt(0)\ns_barrier")
        a.label(f"L_{nm}_next")
        if C.ldprio: a("s_setprio 0")
        a(f"s_mov_b32 s{sL}, 1\ns_mov_b32 s{sLO}, {LSTRIDE}\ns_add_u32 s{sEP}, s{sEP}, 7\ns_mov_b32 s{R_WQ+2}, 0\ns_branch L_{nm}")
        if nm == "fast":
            a.label("L_end")
            a(f"""
            s_xor_b32 s{t}, s{sW}, 7
            s_or_b32 s{t}, s{t}, s2
            s_cmp_lg_u32 s{t}, 0
            s_cbranch_scc1 L_end2
            v_mov_b32 v1, 0
            s_mov_b64 exec, 1
            global_store_dword v1, v1, s[{P_DBG}:{P_DBG+1}] sc1
            s_mov_b64 exec, -1
            """)
            a.label("L_end2")
            if C.stamp:
                a("s_waitcnt vmcnt(0)")
                stamp(a, 16)
                a(f"""
                s_memrealtime s[10:11]
                s_waitcnt lgkmcnt(0)
                v_writelane_b32 v255, s14, 62
                v_writelane_b32 v255, s10, 63
                v_writelane_b32 v255, s{sTMO}, 61
                s_lshl_b32 s10, s2, 3
                s_add_u32 s10, s10, s{sW}
                s_lshl_b32 s10, s10, 8
                s_add_u32 s10, s10, {WS_STAMP}
                v_lshlrev_b32 v1, 2, v0
                v_add_u32 v1, s10, v1
                global_store_dword v1, v255, s[{P_WS}:{P_WS+1}]
                v_add_u32 v1, {1<<20}, v1
                global_store_dword v1, v254, s[{P_WS}:{P_WS+1}]
                """)
                if C.pj:
                    a(f"""
                    s_xor_b32 s{t}, s2, 8
                    s_xor_b32 s{t+1}, s{sW}, {C.pw}
                    s_or_b32 s{t}, s{t}, s{t+1}
                    s_cmp_lg_u32 s{t}, 0
                    s_cbranch_scc1 L_exit
                    v_readlane_b32 s{t+1}, v254, {C.pi}
                    v_readlane_b32 s{t+2}, v254, {C.pj % 64}
                    v_readlane_b32 s{t+3}, v254, 40
                    {f"s_mov_b32 s{t+1}, s14" if C.pi == 63 else ""}
                    s_sub_u32 s{t+1}, s{t+2}, s{t+1}
                    s_mul_i32 s{t+1}, s{t+1}, {C.pm}
                    s_add_u32 s{t+1}, s{t+1}, 1000
                    """)
                    a.label("L_probe")
                    a(f"""
                    s_memrealtime s[{t+4}:{t+5}]
                    s_waitcnt lgkmcnt(0)
                    s_sub_u32 s{t+6}, s{t+4}, s{t+3}
                    s_cmp_lt_u32 s{t+6}, s{t+1}
                    s_cbranch_scc1 L_probe
                    """)
                if C.dbgout:
                    a(f"s_xor_b32 s{t}, s2, 8\ns_or_b32 s{t}, s{t}, s{sW}\ns_cmp_lg_u32 s{t}, 0\ns_cbranch_scc1 L_exit\nv_readlane_b32 s{t+1}, v254, 0\nv_mov_b32 v1, 0")
                    for k, i in enumerate([1, 2, 7, 8, 10, 12, 23, 15, 20, 31, 32, 36, 47, 40]):
                        a(f"v_readlane_b32 s{t}, v254, {i}\ns_sub_u32 s{t}, s{t}, s{t+1}\ns_nop 1\nv_mov_b32 v2, s{t}\nglobal_store_dword v1, v2, s[{P_DBG}:{P_DBG+1}] offset:{4+4*k}")
            a.label("L_exit")
            a("s_endpgm")
            a.label("L_fast_end")
    for f in tails: f()
    hdr = open("cdna_kernels/" + NAME + ".s.ref").read().split("; Override")[0]
    hdr += "; @launch grid=(256,1,1) block=(512,1,1) lds=163840\n"
    txt = hdr + '.amdgcn_target "amdgcn-amd-amdhsa--gfx950"\n.text\n' + a.text() + f'''.section .rodata,"a"
.p2align 6
.amdhsa_kernel {K}
  .amdhsa_next_free_vgpr 256
  .amdhsa_next_free_sgpr 102
  .amdhsa_accum_offset 256
  .amdhsa_group_segment_fixed_size 0
  .amdhsa_kernarg_size 80
  .amdhsa_user_sgpr_count 2
  .amdhsa_user_sgpr_kernarg_segment_ptr 1
  .amdhsa_system_sgpr_workgroup_id_x 1
.end_amdhsa_kernel
'''
    for p in check(a.lines): print("HAZARD", p)
    return txt

if __name__ == "__main__":
    out = sys.argv[1] if len(sys.argv) > 1 else "cdna_kernels/" + NAME + ".s"
    for kv in sys.argv[2:]:
        k, _, val = kv.partition("=")
        assert hasattr(C, k), k
        setattr(C, k, int(val) if val else True)
    open(out, "w").write(build())
    print("written", out)
```
